```python
import torch

def _softmax(x, axis=-1):
    return torch.softmax(x, dim=axis)
def _gelu(x):
    return torch.nn.functional.gelu(x, approximate="tanh")
def _silu(x):
    return torch.nn.functional.silu(x)
def _sigmoid(x):
    return torch.sigmoid(x)
def _layernorm(x, axis=-1, eps=1e-5):
    m = x.mean(dim=axis, keepdim=True)
    v = x.var(dim=axis, keepdim=True, unbiased=False)
    return (x - m) / torch.sqrt(v + eps)
def _scatter_add(tgt, idx, src, axis=0):
    return tgt.clone().index_add_(axis, idx, src)
def _segment_sum(src, seg, n):
    out = torch.zeros((n,) + src.shape[1:], dtype=src.dtype)
    return out.index_add_(0, seg, src)
def _pad(x, pw):
    flat = tuple(v for pair in reversed(pw) for v in pair)
    return torch.nn.functional.pad(x, flat)

kernel_name = 'sequential_preLN__ssm_conv_s4d__swiglu_ffn__prompt'

def setup_inputs():

    _w = (lambda a: (lambda t: t.to(torch.bfloat16) if t.is_floating_point() else t)(torch.as_tensor(a)))
    def _A_setup():
        Bsz, L, D, N = 1, 2048, 448, 256
        return {
            "u": _w((lambda *s: torch.randn(*s, dtype=torch.bfloat16) * 0.05)(Bsz, L, D)),
            "log_A_real": _w((lambda *s: torch.randn(*s, dtype=torch.bfloat16) * 6.4)(D, N) * 0.5),
            "A_imag": _w((lambda *s: torch.randn(*s, dtype=torch.bfloat16) * 0.05)(D, N) * 3.14),
            "C_real": _w((lambda *s: torch.randn(*s, dtype=torch.bfloat16) * 0.05)(D, N) / N ** 0.5),
            "C_imag": _w((lambda *s: torch.randn(*s, dtype=torch.bfloat16) * 0.05)(D, N) / N ** 0.5),
            "log_dt": _w((lambda *s: torch.randn(*s, dtype=torch.bfloat16) * 0.05)(D) * 0.5 - 4.0),
            "D_skip": _w((lambda *s: torch.randn(*s, dtype=torch.bfloat16) * 0.05)(D)),
        }
    _A_in = _A_setup()

    def _B_setup():
        B, S, D, F = 1, 2048, 448, 1792
        return {
            "x": _w((lambda *s: torch.randn(*s, dtype=torch.bfloat16) * 0.05)(B, S, D)),
            "w_gate": _w((lambda *s: torch.randn(*s, dtype=torch.bfloat16) * 0.05)(D, F)),
            "w_up": _w((lambda *s: torch.randn(*s, dtype=torch.bfloat16) * 0.05)(D, F)),
            "w_down": _w((lambda *s: torch.randn(*s, dtype=torch.bfloat16) * 0.05)(F, D)),
        }
    _B_in = _B_setup()

    return {
        "A_u": _A_in["u"],
        "A_log_A_real": _A_in["log_A_real"],
        "A_A_imag": _A_in["A_imag"],
        "A_C_real": _A_in["C_real"],
        "A_C_imag": _A_in["C_imag"],
        "A_log_dt": _A_in["log_dt"],
        "A_D_skip": _A_in["D_skip"],
        "B_x": _B_in["x"],
        "B_w_gate": _B_in["w_gate"],
        "B_w_up": _B_in["w_up"],
        "B_w_down": _B_in["w_down"],
    }

def reference(A_u, A_log_A_real, A_A_imag, A_C_real, A_C_imag, A_log_dt, A_D_skip, B_x, B_w_gate, B_w_up, B_w_down):
    def _A_ref(u, log_A_real, A_imag, C_real, C_imag, log_dt, D_skip):
        L = u.shape[1]
        dt = torch.exp(log_dt)
        A = -torch.exp(log_A_real) + 1j * A_imag
        C = (C_real + 1j * C_imag) * dt[:, None]
        pos = (lambda x, dt: x.to(dt))(torch.arange(L), log_dt.dtype)
        P = torch.exp((A * dt[:, None])[:, :, None] * pos[None, None, :])
        K = 2.0 * torch.einsum("dn,dnl->dl", C, P).real
        L2 = 2 * L
        u_t = (lambda x, *d: x.permute(*d))(u, 0, 2, 1)
        Kf = (lambda x, *a, **k: torch.fft.rfft(x.float(), *a, **k))(K, L2)
        Uf = (lambda x, *a, **k: torch.fft.rfft(x.float(), *a, **k))(u_t, L2)
        y = (lambda x, *a, **k: torch.fft.irfft(x, *a, **k).to(torch.bfloat16))(Uf * Kf[None, :, :], L2)[:, :, :L]
        y = (lambda x, *d: x.permute(*d))(y, 0, 2, 1)
        return y + u * D_skip[None, None, :]

    def _B_ref(x, w_gate, w_up, w_down):
        g = _silu(x @ w_gate)
        u = x @ w_up
        return (g * u) @ w_down

    x = A_u
    h = x + _A_ref(_layernorm(x, axis=-1), A_log_A_real, A_A_imag, A_C_real, A_C_imag, A_log_dt, A_D_skip)
    h2 = h + _B_ref(_layernorm(h, axis=-1), B_w_gate, B_w_up, B_w_down)
    return h2
```

```python
import re

def split_ops(s):
    out=[]; depth=0; cur=''
    for ch in s:
        if ch=='[': depth+=1
        if ch==']': depth-=1
        if ch==',' and depth==0:
            out.append(cur.strip()); cur=''
        else: cur+=ch
    if cur.strip(): out.append(cur.strip())
    return out

REG_RE = re.compile(r'^(-|\|)?(abs\()?([vsa])(\d+|\[(\d+):(\d+)\])\)?\|?$')
def regs_of(tok):
    tok=tok.strip()
    if tok in ('vcc',): return [('s','vcc_lo'),('s','vcc_hi')]
    if tok in ('vcc_lo','vcc_hi','m0','exec_lo','exec_hi','scc'): return [('s',tok)]
    if tok=='exec': return [('s','exec_lo'),('s','exec_hi')]
    m=REG_RE.match(tok)
    if not m: return []
    k=m.group(3)
    if m.group(5) is not None:
        return [(k,i) for i in range(int(m.group(5)),int(m.group(6))+1)]
    return [(k,int(m.group(4)))]

TRANS = ('v_exp_f32','v_log_f32','v_rcp_f32','v_rsq_f32','v_sqrt_f32','v_sin_f32','v_cos_f32','v_rcp_iflag_f32')
class Ins:
    __slots__=('text','mn','ops','mods','defs','uses','kind','label','raw')
    def __init__(self,text):
        self.text=text; self.raw=text
        t=text.split(';')[0].strip()
        self.label=None; self.mn=''; self.ops=[]; self.mods=''; self.defs=[]; self.uses=[]; self.kind='other'
        if not t: self.kind='empty'; return
        if t.endswith(':'): self.label=t[:-1]; self.kind='label'; return
        if t.startswith('.'): self.kind='dir'; return
        sp=t.split(None,1); mn=sp[0]; rest=sp[1] if len(sp)>1 else ''
        self.mn=mn
        ops=split_ops(rest)
        mods=''
        if ops:
            last=ops[-1]; depth=0; cut=None
            for i,ch in enumerate(last):
                if ch=='[': depth+=1
                if ch==']': depth-=1
                if ch in ' \t' and depth==0: cut=i; break
            if cut is not None:
                mods=last[cut:].strip(); ops[-1]=last[:cut]
        self.ops=ops; self.mods=mods
        self.classify()
    def classify(s):
        mn=s.mn; o=s.ops; R=regs_of
        base=re.sub(r'_(e32|e64|dpp|sdwa)$','',mn)
        d=[];u=[]
        if mn.startswith('v_mfma'):
            s.kind='mfma'; d=R(o[0]); u=R(o[1])+R(o[2])+R(o[3])
        elif mn.startswith('v_'):
            s.kind='valu'
            if base.startswith('v_cmp'):
                d=R(o[0]); u=sum((R(x) for x in o[1:]),[])
                if base.startswith('v_cmpx'): d+=R('exec')
            elif base.startswith('v_permlane') and 'swap' in base:
                d=R(o[0])+R(o[1]); u=list(d)
            elif base in ('v_add_co_u32','v_sub_co_u32','v_subrev_co_u32'):
                d=R(o[0])+R(o[1]); u=R(o[2])+R(o[3])
            elif base in ('v_addc_co_u32','v_subb_co_u32'):
                d=R(o[0])+R(o[1]); u=R(o[2])+R(o[3])+R(o[4])
            elif base in ('v_mad_u64_u32',):
                d=R(o[0])+R(o[1]); u=sum((R(x) for x in o[2:]),[])
            else:
                d=R(o[0]); u=sum((R(x) for x in o[1:]),[])
                if base in ('v_fmac_f32','v_dot2c_f32_bf16','v_pk_fmac_f16','v_writelane_b32') : u+=d
                if 'dst_unused:UNUSED_PRESERVE' in s.mods: u+=d
                if ('op_sel' in s.mods) and base.startswith('v_cvt_') and False: u+=d
                if ('_dpp' in mn or 'row_' in s.mods or 'quad_perm' in s.mods): u+=d
        elif mn.startswith('ds_'):
            s.kind='ds'
            if mn.startswith('ds_read') or mn.startswith('ds_bpermute') or mn.startswith('ds_permute') or mn.startswith('ds_swizzle'):
                d=R(o[0]); u=sum((R(x) for x in o[1:]),[])
                if 'd16' in mn: u+=d
            else:
                u=sum((R(x) for x in o),[])
        elif mn.startswith('buffer_'):
            s.kind='vmem'
            if mn in ('buffer_wbl2','buffer_inv'): pass
            elif 'lds' in s.mods.split() :
                u=sum((R(x) for x in o),[])+[('s','m0')]
            elif mn.startswith('buffer_load'):
                d=R(o[0]); u=sum((R(x) for x in o[1:]),[])
            elif mn.startswith('buffer_atomic'):
                u=sum((R(x) for x in o),[])
                if 'sc0' in s.mods.split(): d=R(o[0])
            else:
                u=sum((R(x) for x in o),[])
        elif mn.startswith('global_'):
            s.kind='vmem'
            if mn.startswith('global_load_lds'):
                u=sum((R(x) for x in o),[])+[('s','m0')]
            elif mn.startswith('global_load'):
                d=R(o[0]); u=sum((R(x) for x in o[1:]),[])
            elif mn.startswith('global_atomic'):
                if 'sc0' in s.mods.split(): d=R(o[0]); u=sum((R(x) for x in o[1:]),[])
                else: u=sum((R(x) for x in o),[])
            else:
                u=sum((R(x) for x in o),[])
        elif mn.startswith('s_'):
            s.kind='salu'
            if mn in ('s_waitcnt',): s.kind='wait'
            elif mn=='s_nop': s.kind='nop'
            elif mn in ('s_barrier','s_endpgm','s_sleep','s_setprio'): pass
            elif mn.startswith('s_branch') or mn.startswith('s_cbranch'): s.kind='branch'
            elif mn.startswith('s_cmp') or mn.startswith('s_bitcmp'): u=sum((R(x) for x in o),[]); d=[('s','scc')]
            elif mn.startswith('s_load') or mn in('s_memtime','s_memrealtime'):
                s.kind='smem'; d=R(o[0]); u=sum((R(x) for x in o[1:]),[])
            elif mn in ('s_setpc_b64',): u=R(o[0]); s.kind='branch'
            elif mn in ('s_swappc_b64',): d=R(o[0]); u=R(o[1]); s.kind='branch'
            elif mn.endswith('saveexec_b64'): d=R(o[0])+R('exec'); u=R(o[1])+R('exec')
            else:
                d=R(o[0]) if o else []; u=sum((R(x) for x in o[1:]),[])
                if mn in ('s_addk_i32','s_mulk_i32'): u+=d
        s.defs=d; s.uses=u
    def is_trans(s): return re.sub(r'_(e32|e64|dpp|sdwa)$','',s.mn) in TRANS
    def is_dpp(s): return s.kind=='valu' and ('_dpp' in s.mn or 'row_' in s.mods or 'quad_perm' in s.mods or 'wave_' in s.mods)
    def passes(s):
        if '32x32' in s.mn: return 8
        return 4
    def states(s):
        if s.kind=='nop': return int(s.ops[0],0)+1
        if s.kind in ('label','dir','empty'): return 0
        return 1

def vregs(l): return set(r for r in l if r[0] in 'va')
def sregs(l): return set(r for r in l if r[0]=='s')

def required(prod, cons):
    need=0
    pd=set(prod.defs); cu=set(cons.uses); cd=set(cons.defs)
    pv=vregs(pd); ps=sregs(pd)
    if prod.kind=='valu':
        if pv & vregs(cu):
            if cons.kind=='mfma': need=max(need,2)
            if cons.is_dpp(): need=max(need,2)
            if cons.mn.startswith('v_permlane'): need=max(need,2)
            if cons.mn.startswith('v_readlane') or cons.mn.startswith('v_readfirstlane'): need=max(need,1)
            if prod.is_trans() and cons.kind=='valu' and not cons.is_trans(): need=max(need,1)
            if ('sdwa' in prod.mn or 'op_sel' in prod.mods) and cons.kind=='valu' and ('dst_sel:WORD' in prod.mods or 'dst_sel:BYTE' in prod.mods or (prod.mn.startswith('v_cvt') and 'op_sel' in prod.mods)): need=max(need,1)
        if ps:
            if cons.kind=='vmem' and (ps & sregs(cu)): need=max(need,5)
            if cons.kind in('valu',) and (ps & sregs(cu)):
                need=max(need,2)
                if cons.mn.startswith('v_readlane') or cons.mn.startswith('v_writelane'): need=max(need,4)
            if cons.kind in ('salu','branch','smem') and (ps & sregs(cu)): need=max(need,4)
            if ('s','exec_lo') in ps:
                if cons.is_dpp(): need=max(need,5)
                if cons.kind=='mfma': need=max(need,4)
                if cons.mn.startswith('v_readlane') or cons.mn.startswith('v_readfirstlane') or cons.mn.startswith('v_permlane'): need=max(need,4)
    if prod.kind=='salu':
        if ('s','m0') in ps and cons.kind=='vmem' and ('s','m0') in cu: need=max(need,1)
    if prod.kind=='mfma':
        p=prod.passes()
        D=vregs(pd)
        if cons.kind=='mfma':
            c_regs=set(regs_of(cons.ops[3])); ab=set(regs_of(cons.ops[1])+regs_of(cons.ops[2]))
            if D & ab: need=max(need, 12 if p==8 else 8)
            if D & c_regs:
                if not (c_regs==D and cons.passes()==p): need=max(need, 10 if p==8 else 6)
            elif D & vregs(cd): need=max(need, 10 if p==8 else 6)
        elif cons.kind in ('valu','vmem','ds'):
            if D & (vregs(cu)|vregs(cd)): need=max(need, 12 if p==8 else 8)
        if cons.kind=='valu':
            c=set(regs_of(prod.ops[3]))
            if c & vregs(cd): need=max(need, 7 if p==8 else 3)
    if prod.kind=='vmem' and cons.kind=='valu':
        if ('x4' in prod.mn or 'x3' in prod.mn) and 'store' in prod.mn:
            data = regs_of(prod.ops[0]) if prod.mn.startswith('buffer') else regs_of(prod.ops[1])
            if set(data) & vregs(cd): need=max(need,2)
    return need

def hazard_fix(lines, window=24, verbose=False):
    ins=[Ins(l) for l in lines]
    out=[]; nfix=0
    for c in ins:
        if c.kind in ('empty','dir','label'):
            out.append(c); continue
        dist=0; add=0
        for p in reversed(out):
            if p.kind in ('empty','dir','label'): continue
            if dist>=window: break
            need=required(p,c)
            if need>dist: add=max(add,need-dist)
            dist+=p.states()
        if add:
            nfix+=1
            rem=add
            while rem>0:
                k=min(rem,16); out.append(Ins(f"s_nop {k-1}")); rem-=k
        out.append(c)
    labels={c.label:i for i,c in enumerate(out) if c.kind=='label'}
    probs=[]
    for i,c in enumerate(out):
        if c.kind=='branch' and c.ops and c.ops[0] in labels:
            tgt=labels[c.ops[0]]
            tail=[x for x in out[max(0,i-40):i+1] if x.kind not in('empty','dir','label')]
            head=[x for x in out[tgt:tgt+40] if x.kind not in('empty','dir','label')]
            for hi,h in enumerate(head[:window]):
                dist=sum(x.states() for x in head[:hi])
                for p in reversed(tail):
                    if dist>=window: break
                    need=required(p,h)
                    if need>dist: probs.append(f"branch->{c.ops[0]}: '{p.text.strip()}' -> '{h.text.strip()}' need {need} have {dist}")
                    dist+=p.states()
    return [c.text for c in out], nfix, probs

WAIT_RE=re.compile(r'(vmcnt|lgkmcnt)\((\d+)\)')
def wait_lint(lines, follow_loops=1):
    ins=[Ins(l) for l in lines]
    labels={c.label:i for i,c in enumerate(ins) if c.kind=='label'}
    vm=[]; lg=[]; errs=[]; taken={}
    i=0; steps=0
    while i<len(ins) and steps<400000:
        steps+=1
        c=ins[i]
        if c.kind in('empty','dir','label'): i+=1; continue
        if c.kind=='wait':
            for k,n in WAIT_RE.findall(c.text):
                n=int(n)
                if k=='vmcnt':
                    while len(vm)>n: vm.pop(0)
                else:
                    if any(x[1]=='smem' for x in lg) and n>0: errs.append(f"line {i}: counted lgkmcnt with smem pending: {c.text}")
                    while len(lg)>n: lg.pop(0)
            i+=1; continue
        touched=set(c.uses)|set(c.defs)
        for q,name in ((vm,'vm'),(lg,'lgkm')):
            for (regs,kind,txt) in q:
                hit=regs & touched
                if hit:
                    if (c.kind in('ds','vmem')) and not (regs & set(c.uses)) : continue
                    if c.kind=='ds' and 'd16' in c.mn and name=='lgkm': continue
                    errs.append(f"line {i}: '{c.text.strip()}' touches {sorted(hit)[:4]} pending from '{txt.strip()}'")
        if c.kind=='vmem': vm.append((set(c.defs),'vmem',c.text))
        if c.kind=='ds': lg.append((set(c.defs),'ds',c.text))
        if c.kind=='smem':
            lg.append((set(c.defs),'smem',c.text))
        if len(vm)>63: errs.append(f"line {i}: vmcnt overflow {len(vm)}")
        if c.mn=='s_endpgm':
            i+=1; continue
        if c.kind=='branch' and c.ops and c.ops[0] in labels:
            t=labels[c.ops[0]]
            if t<=i:
                n=taken.get(i,0)
                if n<follow_loops: taken[i]=n+1; i=t; continue
        i+=1
    return errs

class Asm:
    def __init__(self): self.L=[]
    def __call__(self, s):
        for l in s.split('\n'):
            l=l.strip()
            if l: self.L.append(l)
    def c(self, s): self.L.append('; '+s)
    def extend(self, ls): self.L.extend(ls)

def interleave(primary, fillers, per=None, start=0):
    out=[]; n=len(primary)-start; nf=len(fillers); fi=0
    for i,p in enumerate(primary):
        out.extend(p if isinstance(p,list) else [p])
        if i>=start:
            tgt = (nf*(i-start+1)+n-1)//n if per is None else min(nf,(i-start+1)*per)
            while fi<tgt: out.append(fillers[fi]); fi+=1
    out.extend(fillers[fi:])
    return out
```

```python
import sys, math
sys.path.insert(0, "gen")
from asmlib import *

KNAME = "sequential_preLN__ssm_conv_s4d__swiglu_ffn__prompt_kernel"
L_, D_, N_, F_ = 2048, 448, 256, 1792
NWG = 224

WS_EPOCH = 0
WS_CNT2  = 4096
WS_CNT3  = 12288
WS_STATS = 32768
WS_HT    = 1 << 20
WS_M     = 4 << 20
WS_DBG   = 32 << 20
WS_SIZE  = 268435456

KG_PITCH = 528
KG_WAVE  = 53 * KG_PITCH
LDS_KX   = 112000
KX_COPY  = 4160
KX_CH    = 4 * KX_COPY
LDS_U    = LDS_KX + 2 * KX_CH
U_CH     = 4608
LDS_XT   = LDS_U + 2 * U_CH
XT_CH    = 4096
LDS_TOTAL = 163840
assert LDS_XT + 2 * XT_CH <= LDS_TOTAL

S_WG=2
S_X=8; S_LOGA=10; S_AIM=12; S_CR=14; S_CI=16; S_LOGDT=18; S_DSK=20; S_BX=22
S_WGT=24; S_WUP=26; S_WD=28; S_OUT=30; S_DBG=32; S_WS=34
SRD_X=36; SRD_WS=40; SRD_W=44; SRD_W2=48
S_W=52
S_CH=53
S_NH=54
S_D0=55
S_TAG=56
S_I=57; S_J=58
S_T0=60
S_YS=80
S_DSKV=81
S_DT=82
S_RET=84

LOG2E = 1.4426950408889634
INV2PI = 0.15915494309189535
def f2u(x):
    import struct
    return struct.unpack('<I', struct.pack('<f', x))[0]
def fl(x): return hex(f2u(x))

class Gen:
    def __init__(self, stop_after=None, dbg=False, mimic=2):
        self.A = Asm(); self.stop_after = stop_after; self.dbg = dbg; self.mimic = mimic
        self.nlab = 0
    def lab(self, p='L'):
        self.nlab += 1; return f"{p}_{self.nlab}"

    def prologue(self):
        A = self.A
        A(f"s_cmp_ge_u32 s{S_WG}, {NWG}")
        A("s_cbranch_scc1 L_end")
        A(f"s_load_dwordx16 s[8:23], s[0:1], 0")
        A(f"s_load_dwordx8 s[24:31], s[0:1], 64")
        A(f"s_load_dwordx4 s[32:35], s[0:1], 96")
        A("s_getpc_b64 s[4:5]")
        A("L_pc:")
        A("v_lshlrev_b32 v1, 7, v0")
        A("v_min_u32 v1, (L_codeend-L_pc-4), v1")
        A("global_load_dword v255, v1, s[4:5]")
        A("v_lshrrev_b32 v2, 6, v0")
        A("v_and_b32 v1, 63, v0")
        A(f"v_readfirstlane_b32 s{S_W}, v2")
        A(f"s_lshr_b32 s{S_CH}, s{S_W}, 1")
        A(f"s_and_b32 s{S_NH}, s{S_W}, 1")
        A(f"s_and_b32 s{S_T0}, s{S_WG}, 7")
        A(f"s_mul_i32 s{S_T0}, s{S_T0}, 28")
        A(f"s_lshr_b32 s{S_T0+1}, s{S_WG}, 3")
        A(f"s_add_u32 s{S_T0}, s{S_T0}, s{S_T0+1}")
        A(f"s_lshl_b32 s{S_D0}, s{S_T0}, 1")
        A(f"s_mul_i32 s{S_T0+2}, s{S_T0+1}, 37")
        A(f"s_lshr_b32 s{S_T0+2}, s{S_T0+2}, 8")
        A(f"s_mul_i32 s{S_T0+3}, s{S_T0+2}, 7")
        A(f"s_sub_u32 s{S_T0+3}, s{S_T0+1}, s{S_T0+3}")
        A(f"s_and_b32 s{S_T0+4}, s{S_WG}, 7")
        A(f"s_lshr_b32 s{S_T0+5}, s{S_T0+4}, 1")
        A(f"s_lshl_b32 s{S_T0+5}, s{S_T0+5}, 2")
        A(f"s_add_u32 s{S_I}, s{S_T0+5}, s{S_T0+2}")
        A(f"s_and_b32 s{S_T0+4}, s{S_T0+4}, 1")
        A(f"s_mul_i32 s{S_T0+4}, s{S_T0+4}, 7")
        A(f"s_add_u32 s{S_J}, s{S_T0+4}, s{S_T0+3}")

def q7check():
    for q in range(28): assert (q*37)>>8 == q//7, q
q7check()

def add_method(f):
    setattr(Gen, f.__name__, f); return f

V_LANE=1
V_T=0
V_ZERO=2
V_XG=8
V_OFF=16
V_EP=27
V_PA=28
V_SX=36
V_TMP=48

@add_method
def phase0_loads(self):
    A=self.A
    A("s_waitcnt lgkmcnt(0)")
    A(f"s_mov_b32 s{SRD_X}, s{S_X}\ns_mov_b32 s{SRD_X+1}, s{S_X+1}\ns_mov_b32 s{SRD_X+2}, {L_*D_*2}\ns_mov_b32 s{SRD_X+3}, 0x20000")
    A(f"s_mov_b32 s{SRD_WS}, s{S_WS}\ns_mov_b32 s{SRD_WS+1}, s{S_WS+1}\ns_mov_b32 s{SRD_WS+2}, {WS_SIZE}\ns_mov_b32 s{SRD_WS+3}, 0x20000")
    A(f"v_mov_b32 v{V_ZERO}, 0")
    A(f"global_load_dword v{V_EP}, v{V_ZERO}, s[{S_WS}:{S_WS+1}] sc1")
    A(f"s_lshl_b32 s{S_T0}, s{S_WG}, 2")
    A(f"s_add_u32 s{S_T0}, s{S_T0}, s{S_W}")
    A(f"s_mul_i32 s{S_T0+1}, s{S_T0}, {2*896}")
    A(f"s_add_u32 s{S_T0+2}, s{S_T0}, 1792")
    A(f"s_mul_i32 s{S_T0+2}, s{S_T0+2}, 896")
    A(f"v_lshlrev_b32 v3, 4, v{V_LANE}")
    A(f"v_mov_b32 v4, 0x10000000")
    A(f"v_cmp_gt_u32 vcc, 56, v{V_LANE}")
    A(f"v_cndmask_b32 v3, v4, v3, vcc")
    A(f"buffer_load_dwordx4 v[{V_SX}:{V_SX+3}], v3, s[{SRD_X}:{SRD_X+3}], s{S_T0+1} offen")
    A(f"buffer_load_dwordx4 v[{V_SX+4}:{V_SX+7}], v3, s[{SRD_X}:{SRD_X+3}], s{S_T0+1} offen offset:896")
    A(f"buffer_load_dwordx4 v[{V_SX+8}:{V_SX+11}], v3, s[{SRD_X}:{SRD_X+3}], s{S_T0+2} offen")
    A(f"s_add_u32 s{S_T0+3}, s{S_D0}, s{S_CH}")
    A(f"s_lshl_b32 s{S_T0+3}, s{S_T0+3}, 9")
    A(f"s_lshl_b32 s{S_T0+4}, s{S_NH}, 8")
    A(f"s_add_u32 s{S_T0+3}, s{S_T0+3}, s{S_T0+4}")
    A(f"v_lshl_add_u32 v4, v{V_LANE}, 2, s{S_T0+3}")
    A(f"v_xor_b32 v5, 256, v4")
    A(f"global_load_dword v{V_PA}, v4, s[{S_LOGA}:{S_LOGA+1}]")
    A(f"global_load_dword v{V_PA+1}, v4, s[{S_AIM}:{S_AIM+1}]")
    A(f"global_load_dword v{V_PA+2}, v4, s[{S_CR}:{S_CR+1}]")
    A(f"global_load_dword v{V_PA+3}, v4, s[{S_CI}:{S_CI+1}]")
    A(f"global_load_dword v{V_PA+4}, v5, s[{S_CR}:{S_CR+1}]")
    A(f"global_load_dword v{V_PA+5}, v5, s[{S_CI}:{S_CI+1}]")
    A(f"s_lshl_b32 s{S_T0+4}, s{S_D0}, 1")
    A(f"s_load_dword s{S_DT}, s[{S_LOGDT}:{S_LOGDT+1}], s{S_T0+4}")
    A(f"s_load_dword s{S_DSKV}, s[{S_DSK}:{S_DSK+1}], s{S_T0+4}")
    A(f"s_movk_i32 s{S_T0+5}, 7168")
    A(f"v_mul_lo_u32 v4, v{V_T}, s{S_T0+5}")
    A(f"v_add_u32 v4, s{S_T0+4}, v4")
    A(f"s_movk_i32 s{S_T0+5}, 4480")
    for j in range(8):
        if j<5: A(f"buffer_load_dword v{V_XG+j}, v4, s[{SRD_X}:{SRD_X+3}], 0 offen offset:{j*896}")
        else:   A(f"buffer_load_dword v{V_XG+j}, v4, s[{SRD_X}:{SRD_X+3}], s{S_T0+5} offen offset:{(j-5)*896}")
    l=self.lab()
    A(f"s_cmp_lg_u32 s{S_WG}, 0")
    A(f"s_cbranch_scc1 {l}")
    A("v_mov_b32 v4, 0\nv_mov_b32 v5, 0\nv_mov_b32 v6, 0\nv_mov_b32 v7, 0")
    A(f"v_lshlrev_b32 v3, 4, v{V_T}")
    for k in range(4):
        A(f"s_mov_b32 s{S_T0+5}, {WS_CNT2+4096*k}")
        A(f"buffer_store_dwordx4 v[4:7], v3, s[{SRD_WS}:{SRD_WS+3}], s{S_T0+5} offen sc1")
    A(f"{l}:")
    for x in range(11):
        o=V_OFF+x
        A(f"v_lshlrev_b32 v48, 3, v{V_T}")
        A(f"v_sub_u32 v48, {2047-x}, v48")
        A(f"v_max_i32 v49, 0, v48")
        A(f"v_cvt_f32_u32 v49, v49")
        A(f"v_cvt_pk_bf16_f32 v49, v49, v49")
        A(f"v_lshlrev_b32 v49, 16, v49")
        A(f"v_cvt_u32_f32 v49, v49")
        A(f"v_lshrrev_b32 v50, 8, v49")
        A(f"v_and_b32 v51, 7, v49")
        A(f"v_lshrrev_b32 v52, 1, v51")
        A(f"v_add_u32 v52, 8, v52")
        A(f"v_lshrrev_b32 v53, 2, v51")
        A(f"v_lshl_add_u32 v53, v50, 1, v53")
        A(f"v_add_u32 v53, 8, v53")
        A(f"v_add_u32 v54, 12, v50")
        A(f"v_cmp_eq_u32 vcc, 1, v50")
        A(f"v_cndmask_b32 v51, v51, v52, vcc")
        A(f"v_cmp_lt_u32 vcc, 1, v50")
        A(f"v_cndmask_b32 v51, v51, v53, vcc")
        A(f"v_cmp_lt_u32 vcc, 3, v50")
        A(f"v_cndmask_b32 v51, v51, v54, vcc")
        A(f"v_cmp_gt_i32 vcc, 0, v48")
        A(f"v_mov_b32 v52, 24")
        A(f"v_cndmask_b32 v51, v51, v52, vcc")
        A(f"v_bfe_u32 v52, v49, 3, 5")
        A(f"v_lshlrev_b32 v52, 1, v52")
        A(f"v_lshl_add_u32 v{o}, v51, 6, v52")

def bf16_lo(dst, src): return f"v_lshlrev_b32 v{dst}, 16, v{src}"
def bf16_hi(dst, src): return f"v_and_b32 v{dst}, 0xffff0000, v{src}"

@add_method
def stats1(self):
    A=self.A
    A(f"s_cmp_lg_u32 s{S_WG}, 0")
    l1=self.lab(); l2=self.lab()
    A(f"s_cbranch_scc1 {l1}")
    A("s_waitcnt vmcnt(0)")
    A(f"s_branch {l2}")
    A(f"{l1}:")
    A("s_waitcnt vmcnt(14)")
    A(f"{l2}:")
    F=48
    for r in range(3):
        for k in range(4):
            A(bf16_lo(F+8*r+2*k, V_SX+4*r+k)); A(bf16_hi(F+8*r+2*k+1, V_SX+4*r+k))
    S=72
    for r in range(3):
        b=F+8*r
        A(f"v_pk_add_f32 v[{S+2*r}:{S+2*r+1}], v[{b}:{b+1}], v[{b+2}:{b+3}]")
    for r in range(3):
        b=F+8*r
        A(f"v_pk_add_f32 v[78:79], v[{b+4}:{b+5}], v[{b+6}:{b+7}]")
        A(f"v_pk_add_f32 v[{S+2*r}:{S+2*r+1}], v[{S+2*r}:{S+2*r+1}], v[78:79]")
    for r in range(3):
        A(f"v_add_f32 v{S+2*r}, v{S+2*r}, v{S+2*r+1}")
    def dpp_reduce(regs, op="v_add_f32"):
        for mode in ["row_shr:1 row_mask:0xf bank_mask:0xf bound_ctrl:0","row_shr:2 row_mask:0xf bank_mask:0xf bound_ctrl:0",
                     "row_shr:4 row_mask:0xf bank_mask:0xf bound_ctrl:0","row_shr:8 row_mask:0xf bank_mask:0xf bound_ctrl:0",
                     "row_bcast:15 row_mask:0xa bank_mask:0xf","row_bcast:31 row_mask:0xc bank_mask:0xf"]:
            for rg in regs: A(f"{op}_dpp v{rg}, v{rg}, v{rg} {mode}")
    dpp_reduce([S,S+2,S+4])
    for r in range(3): A(f"v_readlane_b32 s{S_T0+6+r}, v{S+2*r}, 63")
    for r in range(3):
        A(f"v_mov_b32 v{S+2*r}, s{S_T0+6+r}")
        A(f"v_mul_f32 v{S+2*r}, {fl(1.0/448)}, v{S+2*r}")
    Q=80
    for r in range(3): A(f"v_mov_b32 v{Q+2*r}, 0\nv_mov_b32 v{Q+2*r+1}, 0")
    A("s_mov_b32 exec_hi, 0x00ffffff")
    for r in range(3):
        b=F+8*r
        for k in range(4):
            A(f"v_pk_add_f32 v[{b+2*k}:{b+2*k+1}], v[{b+2*k}:{b+2*k+1}], v[{S+2*r}:{S+2*r+1}] op_sel_hi:[1,0] neg_lo:[0,1] neg_hi:[0,1]")
    for k in range(4):
        for r in range(3):
            b=F+8*r
            A(f"v_pk_fma_f32 v[{Q+2*r}:{Q+2*r+1}], v[{b+2*k}:{b+2*k+1}], v[{b+2*k}:{b+2*k+1}], v[{Q+2*r}:{Q+2*r+1}]")
    A("s_mov_b32 exec_hi, -1")
    for r in range(3): A(f"v_add_f32 v{Q+2*r}, v{Q+2*r}, v{Q+2*r+1}")
    dpp_reduce([Q,Q+2,Q+4])
    for r in range(3): A(f"v_readlane_b32 s{S_T0+6+r}, v{Q+2*r}, 63")
    for r in range(3):
        q=Q+2*r
        A(f"v_mov_b32 v{q}, s{S_T0+6+r}")
        A(f"v_mul_f32 v{q}, {fl(1.0/448)}, v{q}")
        A(f"v_cvt_pk_bf16_f32 v{q}, v{q}, v{q}")
        A(f"v_lshlrev_b32 v{q}, 16, v{q}")
        A(f"v_add_f32 v{q}, {fl(1e-5)}, v{q}")
        A(f"v_cvt_pk_bf16_f32 v{q}, v{q}, v{q}")
        A(f"v_lshlrev_b32 v{q}, 16, v{q}")
        A(f"v_sqrt_f32 v{q}, v{q}")
    A(f"v_readfirstlane_b32 s{S_TAG}, v{V_EP}")
    A(f"s_add_u32 s{S_TAG}, s{S_TAG}, 0x9E3779B9")
    G=88
    A(f"v_cvt_pk_bf16_f32 v{G}, v{Q}, v{S}")
    A(f"v_mov_b32 v{G+1}, s{S_TAG}")
    A(f"v_cvt_pk_bf16_f32 v{G+2}, v{Q+2}, v{S+2}")
    A(f"v_mov_b32 v{G+3}, s{S_TAG}")
    A(f"v_cvt_pk_bf16_f32 v{G+4}, v{Q+4}, v{S+4}")
    A(f"v_mov_b32 v{G+5}, s{S_TAG}")
    A(f"s_lshl_b32 s{S_T0+1}, s{S_T0}, 4")
    A(f"s_add_u32 s{S_T0+1}, s{S_T0+1}, {WS_STATS}")
    A(f"s_lshl_b32 s{S_T0+2}, s{S_T0}, 3")
    A(f"s_add_u32 s{S_T0+2}, s{S_T0+2}, {WS_STATS+1792*8}")
    A("s_mov_b64 exec, 1")
    A(f"buffer_store_dwordx4 v[{G}:{G+3}], v{V_ZERO}, s[{SRD_WS}:{SRD_WS+3}], s{S_T0+1} offen sc1")
    l=self.lab()
    A(f"s_cmp_ge_u32 s{S_T0}, 256")
    A(f"s_cbranch_scc1 {l}")
    A(f"buffer_store_dwordx2 v[{G+4}:{G+5}], v{V_ZERO}, s[{SRD_WS}:{SRD_WS+3}], s{S_T0+2} offen sc1")
    A(f"{l}:")
    A("s_mov_b64 exec, -1")

def cmul(A, R, P, Z, T):
    A(f"v_pk_mul_f32 v[{T}:{T+1}], v[{P}:{P+1}], v[{Z}:{Z+1}] op_sel_hi:[0,1]")
    A(f"v_pk_fma_f32 v[{R}:{R+1}], v[{P}:{P+1}], v[{Z}:{Z+1}], v[{T}:{T+1}] op_sel:[1,1,0] op_sel_hi:[1,0,1] neg_lo:[1,0,0]")

ROWS=[0,1,2,3,4,5,6,7,256,258,260,262,512,516,768,772,1024,1280,1536,1792,2048]

@add_method
def kgen(self):
    A=self.A
    A("s_waitcnt vmcnt(9) lgkmcnt(0)")
    A(f"s_lshl_b32 s{S_T0}, s{S_CH}, 4")
    A(f"s_lshr_b32 s{S_DT}, s{S_DT}, s{S_T0}")
    A(f"s_lshl_b32 s{S_DT}, s{S_DT}, 16")
    A(f"s_lshr_b32 s{S_DSKV}, s{S_DSKV}, s{S_T0}")
    A(f"s_lshl_b32 s{S_DSKV}, s{S_DSKV}, 16")
    DT=48
    A(f"v_mov_b32 v{DT}, s{S_DT}")
    A(f"v_mul_f32 v{DT}, {fl(LOG2E)}, v{DT}")
    A(f"v_exp_f32 v{DT}, v{DT}")
    A(f"v_cvt_pk_bf16_f32 v{DT}, v{DT}, v{DT}")
    A(f"v_lshlrev_b32 v{DT}, 16, v{DT}")
    A(f"v_and_b32 v50, 0x7fff7fff, v{V_PA+2}")
    A(f"v_and_b32 v51, 0x7fff7fff, v{V_PA+3}")
    A(f"v_and_b32 v52, 0x7fff7fff, v{V_PA+4}")
    A(f"v_and_b32 v53, 0x7fff7fff, v{V_PA+5}")
    A("v_pk_max_u16 v50, v50, v51")
    A("v_pk_max_u16 v52, v52, v53")
    A("v_pk_max_u16 v50, v50, v52")
    A("v_lshrrev_b32 v51, 16, v50")
    A("v_and_b32 v50, 0xffff, v50")
    A("v_max_u32 v50, v50, v51")
    for mode in ["row_shr:1 row_mask:0xf bank_mask:0xf bound_ctrl:0","row_shr:2 row_mask:0xf bank_mask:0xf bound_ctrl:0",
                 "row_shr:4 row_mask:0xf bank_mask:0xf bound_ctrl:0","row_shr:8 row_mask:0xf bank_mask:0xf bound_ctrl:0",
                 "row_bcast:15 row_mask:0xa bank_mask:0xf","row_bcast:31 row_mask:0xc bank_mask:0xf"]:
        A(f"v_max_u32_dpp v50, v50, v50 {mode}")
    A(f"v_readlane_b32 s{S_T0}, v50, 63")
    A(f"s_lshr_b32 s{S_T0}, s{S_T0}, 7")
    A(f"s_max_u32 s{S_T0}, s{S_T0}, 1")
    A(f"s_min_u32 s{S_T0}, s{S_T0}, 253")
    A(f"s_sub_u32 s{S_T0+1}, 254, s{S_T0}")
    A(f"s_lshl_b32 s{S_T0+1}, s{S_T0+1}, 23")
    A(f"s_lshl_b32 s{S_T0}, s{S_T0}, 23")
    A(f"v_add_f32 v49, v{DT}, v{DT}")
    A(f"v_mul_f32 v49, s{S_T0}, v49")
    A(f"v_readfirstlane_b32 s{S_YS}, v49")
    AR=[50,51]; TH=[52,53]
    base=[56,80]
    def reg(e,name):
        names=['C','Z1','Z2','Z4','Z8','Z256','P','Q','R','T','X0','X1']
        return base[e]+2*names.index(name)
    for e in range(2):
        un = bf16_lo if e==0 else bf16_hi
        A(un(AR[e], V_PA)); A(un(TH[e], V_PA+1))
        A(un(reg(e,'C'), V_PA+2)); A(un(reg(e,'C')+1, V_PA+3))
    for e in range(2):
        A(f"v_mul_f32 v{AR[e]}, {fl(LOG2E)}, v{AR[e]}")
    for e in range(2): A(f"v_exp_f32 v{AR[e]}, v{AR[e]}")
    for e in range(2):
        A(f"v_cvt_pk_bf16_f32 v{AR[e]}, v{AR[e]}, v{AR[e]}")
    for e in range(2):
        A(f"v_lshlrev_b32 v{AR[e]}, 16, v{AR[e]}")
    for e in range(2):
        A(f"v_mul_f32 v{AR[e]}, v{AR[e]}, v{DT}")
        A(f"v_mul_f32 v{TH[e]}, v{TH[e]}, v{DT}")
    for e in range(2):
        A(f"v_mul_f32 v{AR[e]}, {fl(-LOG2E)}, v{AR[e]}")
        A(f"v_mul_f32 v{TH[e]}, {fl(INV2PI)}, v{TH[e]}")
        c=reg(e,'C')
        A(f"v_mul_f32 v{c}, s{S_T0+1}, v{c}")
        A(f"v_mul_f32 v{c+1}, s{S_T0+1}, v{c+1}")
    for name,p in (('Z1',1.0),('Z8',8.0),('Z256',256.0)):
        for e in range(2):
            z=reg(e,name); x0=reg(e,'X0'); x1=reg(e,'X1')
            if p==1.0:
                A(f"v_exp_f32 v{x0}, v{AR[e]}")
                A(f"v_fract_f32 v{x0+1}, v{TH[e]}")
            else:
                A(f"v_mul_f32 v{x0}, {fl(p)}, v{AR[e]}")
                A(f"v_mul_f32 v{x0+1}, {fl(p)}, v{TH[e]}")
                A(f"v_exp_f32 v{x0}, v{x0}")
                A(f"v_fract_f32 v{x0+1}, v{x0+1}")
            A(f"v_cos_f32 v{x1}, v{x0+1}")
            A(f"v_sin_f32 v{x1+1}, v{x0+1}")
        for e in range(2):
            z=reg(e,name); x0=reg(e,'X0'); x1=reg(e,'X1')
            A(f"v_pk_mul_f32 v[{z}:{z+1}], v[{x1}:{x1+1}], v[{x0}:{x0+1}] op_sel_hi:[1,0]")
    for e in range(2): cmul(A, reg(e,'Z2'), reg(e,'Z1'), reg(e,'Z1'), reg(e,'T'))
    for e in range(2): cmul(A, reg(e,'Z4'), reg(e,'Z2'), reg(e,'Z2'), reg(e,'T'))
    VA=104
    A(f"s_mul_i32 s{S_T0+2}, s{S_W}, {KG_WAVE}")
    A(f"v_lshl_add_u32 v{VA}, v{V_LANE}, 3, s{S_T0+2}")
    OUT=[106,108,110,112]; oi=[0]
    def emit(idx, name, neg):
        o=OUT[oi[0]%4]; oi[0]+=1
        for e in range(2):
            r=reg(e,name)
            A(f"v_cvt_pk_f16_f32 v{o+e}, v{r}, {'-' if neg else ''}v{r+1}")
        A(f"ds_write_b64 v{VA}, v[{o}:{o+1}] offset:{idx*KG_PITCH}")
    def step(dst, src, z):
        for e in range(2):
            A(f"v_pk_mul_f32 v[{reg(e,'T')}:{reg(e,'T')+1}], v[{reg(e,src)}:{reg(e,src)+1}], v[{reg(e,z)}:{reg(e,z)+1}] op_sel_hi:[0,1]")
        for e in range(2):
            A(f"v_pk_fma_f32 v[{reg(e,dst)}:{reg(e,dst)+1}], v[{reg(e,src)}:{reg(e,src)+1}], v[{reg(e,z)}:{reg(e,z)+1}], v[{reg(e,'T')}:{reg(e,'T')+1}] op_sel:[1,1,0] op_sel_hi:[1,0,1] neg_lo:[1,0,0]")
    emit(0,'C',True)
    step('P','C','Z1'); emit(1,'P',True)
    for r in range(2,8): step('P','P','Z1'); emit(r,'P',True)
    step('Q','C','Z256'); emit(8,'Q',True)
    step('R','Q','Z2'); emit(9,'R',True)
    step('R','R','Z2'); emit(10,'R',True)
    step('R','R','Z2'); emit(11,'R',True)
    step('Q','Q','Z256'); emit(12,'Q',True)
    step('R','Q','Z4'); emit(13,'R',True)
    step('Q','Q','Z256'); emit(14,'Q',True)
    step('R','Q','Z4'); emit(15,'R',True)
    for r in range(16,21): step('Q','Q','Z256'); emit(r,'Q',True)
    o=OUT[oi[0]%4]; oi[0]+=1
    A(f"v_mov_b32 v{o}, 0x3c00\nv_mov_b32 v{o+1}, 0x3c00")
    A(f"ds_write_b64 v{VA}, v[{o}:{o+1}] offset:{21*KG_PITCH}")
    emit(22,'Z8',False)
    step('P','Z8','Z8'); emit(23,'P',False)
    for b in range(3,32): step('P','P','Z8'); emit(21+b,'P',False)
    VAa=104; VAb=105
    A(f"v_and_b32 v48, 31, v{V_LANE}")
    A(f"v_min_u32 v49, 20, v48")
    A(f"v_lshrrev_b32 v50, 5, v{V_LANE}")
    A(f"v_lshlrev_b32 v50, 4, v50")
    A(f"v_add_u32 v50, s{S_T0+2}, v50")
    A(f"s_movk_i32 s{S_T0+3}, {KG_PITCH}")
    A(f"v_mad_u32_u24 v{VAa}, v49, s{S_T0+3}, v50")
    A(f"v_mad_u32_u24 v{VAb}, v48, s{S_T0+3}, v50")
    ACC=112
    FR=[64,72,80,88]
    def ld(ks):
        f=FR[ks%4]
        A(f"ds_read_b128 v[{f}:{f+3}], v{VAa} offset:{ks*32}")
        A(f"ds_read_b128 v[{f+4}:{f+7}], v{VAb} offset:{21*KG_PITCH+ks*32}")
    for ks in range(3): ld(ks)
    for ks in range(16):
        if ks+3<16: ld(ks+3)
        nxt=min(15,ks+3)-ks
        A(f"s_waitcnt lgkmcnt({2*nxt})")
        f=FR[ks%4]
        c = "0" if ks==0 else f"v[{ACC}:{ACC+15}]"
        A(f"v_mfma_f32_32x32x16_f16 v[{ACC}:{ACC+15}], v[{f}:{f+3}], v[{f+4}:{f+7}], {c}")
    l1=self.lab(); l2=self.lab()
    A(f"v_lshl_add_u32 v48, v{V_LANE}, 4, s{S_T0+2}")
    A(f"s_cmp_eq_u32 s{S_NH}, 0")
    A(f"s_cbranch_scc1 {l1}")
    for q in range(3): A(f"ds_write_b128 v48, v[{ACC+4*q}:{ACC+4*q+3}] offset:{q*1024}")
    A(f"{l1}:")
    A("s_waitcnt lgkmcnt(0)")
    A("s_barrier")
    A(f"s_cmp_eq_u32 s{S_NH}, 0")
    A(f"s_cbranch_scc0 {l2}")
    for q in range(3): A(f"ds_read_b128 v[{64+4*q}:{64+4*q+3}], v48 offset:{KG_WAVE+q*1024}")
    A(f"v_and_b32 v49, 31, v{V_LANE}")
    A(f"v_lshlrev_b32 v49, 1, v49")
    A(f"v_lshrrev_b32 v50, 5, v{V_LANE}")
    A(f"v_lshl_add_u32 v49, v50, 8, v49")
    A(f"v_add_u32 v49, s{S_T0+2}, v49")
    A("s_waitcnt lgkmcnt(0)")
    for r in range(12):
        A(f"v_add_f32 v{64+r}, v{64+r}, v{ACC+r}")
    for r in range(12):
        A(f"v_cvt_f16_f32 v{64+r}, v{64+r}")
    for r in range(12):
        row=(r&3)+8*(r>>2)
        A(f"ds_write_b16 v49, v{64+r} offset:{row*64}")
    A(f"v_mov_b32 v50, 0")
    A(f"v_lshl_add_u32 v51, v{V_LANE}, 1, s{S_T0+2}")
    A(f"ds_write_b16 v51, v50 offset:{24*64}")
    A(f"{l2}:")
    A("s_waitcnt lgkmcnt(0)")
    A("s_barrier")

@add_method
def kexpand(self):
    A=self.A
    D0=64
    def rd(ch,x):
        tb=(2*ch)*KG_WAVE; d=D0+ch*28
        A(f"ds_read_u16 v{d+x}, v{V_OFF+x} offset:{tb}")
    def mk(ch):
        d=D0+ch*28
        for c in range(4):
            for x in range(4):
                A(f"v_lshl_or_b32 v{d+12+4*c+x}, v{d+c+2*x+1}, 16, v{d+c+2*x}")
    def wr(ch):
        d=D0+ch*28
        for c in range(4):
            r=d+12+4*c
            A(f"ds_write_b128 v49, v[{r}:{r+3}] offset:{ch*KX_CH+c*KX_COPY}")
    for x in range(11): rd(0,x)
    for x in range(4): rd(1,x)
    A(f"v_lshlrev_b32 v49, 4, v{V_T}")
    A(f"v_add_u32 v49, {LDS_KX}, v49")
    A("s_waitcnt lgkmcnt(4)")
    mk(0)
    for x in range(4,11): rd(1,x)
    wr(0)
    A("s_waitcnt lgkmcnt(4)")
    mk(1)
    wr(1)
    A("v_mov_b32 v64, 0\nv_mov_b32 v65, 0\nv_mov_b32 v66, 0\nv_mov_b32 v67, 0")
    l=self.lab()
    A(f"s_cmp_lg_u32 s{S_W}, 0")
    A(f"s_cbranch_scc1 {l}")
    A(f"v_and_b32 v50, 31, v{V_LANE}")
    A(f"v_lshlrev_b32 v50, 4, v50")
    A(f"v_lshrrev_b32 v51, 5, v{V_LANE}")
    A(f"v_mul_u32_u24 v51, {U_CH}, v51")
    A(f"v_add_u32 v50, v50, v51")
    A(f"v_add_u32 v50, {LDS_U}, v50")
    A(f"ds_write_b128 v50, v[64:67]")
    A(f"v_lshrrev_b32 v50, 1, v{V_LANE}")
    A(f"v_and_b32 v50, 7, v50")
    A(f"v_mul_u32_u24 v50, {KX_COPY}, v50")
    A(f"v_and_b32 v51, 1, v{V_LANE}")
    A(f"v_lshl_add_u32 v50, v51, 4, v50")
    A(f"v_add_u32 v50, {LDS_KX+4096}, v50")
    A(f"ds_write_b128 v50, v[64:67]")
    A(f"{l}:")

S_GB=64
S_KSTR=68
@add_method
def stage_w(self, kind):
    A=self.A
    RING=24576
    if kind=='w1':
        stride=3584
        A(f"s_mov_b32 s{SRD_W}, s{S_WGT}\ns_mov_b32 s{SRD_W+1}, s{S_WGT+1}\ns_mov_b32 s{SRD_W+2}, {D_*F_*2}\ns_mov_b32 s{SRD_W+3}, 0x20000")
        A(f"s_mov_b32 s{SRD_W2}, s{S_WUP}\ns_mov_b32 s{SRD_W2+1}, s{S_WUP+1}\ns_mov_b32 s{SRD_W2+2}, {D_*F_*2}\ns_mov_b32 s{SRD_W2+3}, 0x20000")
        A(f"s_lshl_b32 s{S_T0}, s{S_J}, 8")
        A(f"s_lshl_b32 s{S_T0+1}, s{S_W}, 6")
        A(f"s_add_u32 s{S_T0}, s{S_T0}, s{S_T0+1}")
        for g in range(4):
            A(f"s_add_u32 s{S_T0+1}, s{S_W}, {g}")
            A(f"s_and_b32 s{S_T0+1}, s{S_T0+1}, 3")
            A(f"s_mul_i32 s{S_T0+1}, s{S_T0+1}, {7*16*stride}")
            A(f"s_add_u32 s{S_GB+g}, s{S_T0+1}, s{S_T0}")
        tileoff2=0
    else:
        stride=896
        A(f"s_mov_b32 s{SRD_W}, s{S_WD}\ns_mov_b32 s{SRD_W+1}, s{S_WD+1}\ns_mov_b32 s{SRD_W+2}, {D_*F_*2}\ns_mov_b32 s{SRD_W+3}, 0x20000")
        A(f"s_mov_b32 s{SRD_W2}, s{S_WD}\ns_mov_b32 s{SRD_W2+1}, s{S_WD+1}\ns_mov_b32 s{SRD_W2+2}, {D_*F_*2}\ns_mov_b32 s{SRD_W2+3}, 0x20000")
        A(f"s_cmp_ge_u32 s{S_J}, 7")
        A(f"s_cselect_b32 s{S_T0}, 7, 0")
        A(f"s_sub_u32 s{S_T0}, s{S_J}, s{S_T0}")
        A(f"s_lshl_b32 s{S_T0}, s{S_T0}, 7")
        A(f"s_mul_i32 s{S_T0+1}, s{S_W}, {448*stride}")
        A(f"s_add_u32 s{S_T0}, s{S_T0}, s{S_T0+1}")
        for g in range(4):
            A(f"s_add_u32 s{S_GB+g}, s{S_T0}, {g*7*16*stride}")
        tileoff2=64
    kstr=16*stride
    A(f"v_lshrrev_b32 v48, 2, v{V_LANE}")
    A(f"v_mul_u32_u24 v48, {stride}, v48")
    A(f"v_and_b32 v49, 3, v{V_LANE}")
    A(f"v_lshl_add_u32 v48, v49, 4, v48")
    if kind=='w1':
        A(f"v_mov_b32 v52, v48")
    else:
        A(f"s_lshl_b32 s{S_T0+1}, s{S_NH}, 6")
        A(f"s_xor_b32 s{S_T0+3}, s{S_T0+1}, 64")
        A(f"v_add_u32 v52, s{S_T0+3}, v48")
        A(f"v_add_u32 v48, s{S_T0+1}, v48")
    A(f"s_mul_i32 s{S_T0+2}, s{S_W}, {RING}")
    A(f"v_lshrrev_b32 v50, 5, v{V_LANE}")
    A(f"v_lshlrev_b32 v50, {9 if kind=='w1' else 8}, v50")
    A(f"v_bfe_u32 v51, v{V_LANE}, 2, 2")
    A(f"v_lshl_add_u32 v50, v51, 6, v50")
    A(f"v_bfe_u32 v51, v{V_LANE}, 4, 1")
    A(f"v_lshl_add_u32 v50, v51, 5, v50")
    A(f"v_and_b32 v51, 3, v{V_LANE}")
    A(f"v_lshl_add_u32 v50, v51, 3, v50")
    A(f"v_add_u32 v50, s{S_T0+2}, v50")
    second = 256 if kind=='w1' else 512
    def issue(c):
        slot=c%3
        for i in range(4):
            s=4*c+i; g=s//7; r=s%7
            A(f"s_add_u32 s{S_T0+3}, s{S_GB+g}, {r*kstr}")
            A(f"s_add_u32 m0, s{S_T0+2}, {slot*8192+i*2048}")
            A(f"buffer_load_dwordx4 v48, s[{SRD_W}:{SRD_W+3}], s{S_T0+3} offen lds")
            A(f"s_add_u32 m0, s{S_T0+2}, {slot*8192+i*2048+1024}")
            A(f"buffer_load_dwordx4 v52, s[{SRD_W2}:{SRD_W2+3}], s{S_T0+3} offen lds")
    for c in range(3): issue(c)
    for c in range(7):
        A(f"s_waitcnt vmcnt({8*min(2,6-c)})")
        slot=c%3
        for i in range(4):
            s=4*c+i
            for tile in range(2):
                a=8*s+4*tile; off=slot*8192+i*2048+tile*1024
                A(f"ds_read_b64_tr_b16 a[{a}:{a+1}], v50 offset:{off}")
                A(f"ds_read_b64_tr_b16 a[{a+2}:{a+3}], v50 offset:{off+second}")
            if i==1: A("s_waitcnt lgkmcnt(4)")
        if c+3<7:
            A("s_waitcnt lgkmcnt(0)")
            issue(c+3)
    A("s_waitcnt lgkmcnt(0)")

@add_method
def stats_consume(self):
    A=self.A
    SG=64
    A(f"v_lshlrev_b32 v48, 6, v{V_T}")
    A(f"s_mov_b32 s{S_T0}, {WS_STATS}")
    A(f"s_mov_b32 s{S_T0+1}, 0")
    lp=self.lab('Lpoll'); le=self.lab()
    A(f"{lp}:")
    for k in range(4):
        A(f"buffer_load_dwordx4 v[{SG+4*k}:{SG+4*k+3}], v48, s[{SRD_WS}:{SRD_WS+3}], s{S_T0} offen offset:{16*k} sc1")
    A("s_waitcnt vmcnt(0)")
    A(f"v_xor_b32 v49, s{S_TAG}, v{SG+1}")
    for k in range(1,8):
        A(f"v_xor_b32 v50, s{S_TAG}, v{SG+2*k+1}")
        A(f"v_or_b32 v49, v49, v50")
    A("v_cmp_ne_u32 vcc, 0, v49")
    A(f"s_add_u32 s{S_T0+1}, s{S_T0+1}, 1")
    A(f"s_cbranch_vccz {le}")
    A(f"s_cmp_lt_u32 s{S_T0+1}, 0x8000")
    A(f"s_cbranch_scc1 {lp}")
    A(f"{le}:")
    for j in range(8):
        A(f"v_lshlrev_b32 v{80+j}, 16, v{SG+2*j}")
        A(f"v_and_b32 v{88+j}, 0xffff0000, v{SG+2*j}")
    for j in range(8): A(f"v_rcp_f32 v{80+j}, v{80+j}")
    A(f"s_mov_b32 s{S_T0+2}, 0x05040100")
    A(f"s_mov_b32 s{S_T0+3}, 0x07060302")
    for ch in range(2):
        X=96+ch*8
        for j in range(8):
            A((bf16_lo if ch==0 else bf16_hi)(X+j, V_XG+j))
        for j in range(0,8,2):
            A(f"v_pk_add_f32 v[{X+j}:{X+j+1}], v[{X+j}:{X+j+1}], v[{88+j}:{88+j+1}] neg_lo:[0,1] neg_hi:[0,1]")
        if self.mimic>=2:
            for j in range(0,8,2):
                A(f"v_cvt_pk_bf16_f32 v{112+j//2}, v{X+j}, v{X+j+1}")
            for j in range(0,8,2):
                A(bf16_lo(X+j,112+j//2)); A(bf16_hi(X+j+1,112+j//2))
        for j in range(0,8,2):
            A(f"v_pk_mul_f32 v[{X+j}:{X+j+1}], v[{X+j}:{X+j+1}], v[{80+j}:{80+j+1}]")
        if self.mimic>=1:
            for j in range(0,8,2):
                A(f"v_cvt_pk_bf16_f32 v{112+j//2}, v{X+j}, v{X+j+1}")
            for j in range(0,8,2):
                A(bf16_lo(X+j,112+j//2)); A(bf16_hi(X+j+1,112+j//2))
        U=116+ch*4
        for j in range(0,8,2):
            A(f"v_cvt_pk_f16_f32 v{U+j//2}, v{X+j}, v{X+j+1}")
        XT=124+ch*4
        for j in range(0,8,2):
            A(f"v_perm_b32 v{XT+j//2}, v{V_XG+j+1}, v{V_XG+j}, s{S_T0+2+ch}")
    A(f"v_lshlrev_b32 v48, 4, v{V_T}")
    A(f"v_add_u32 v49, {LDS_U+512}, v48")
    A(f"v_add_u32 v50, {LDS_XT}, v48")
    A(f"ds_write_b128 v49, v[116:119]")
    A(f"ds_write_b128 v49, v[120:123] offset:{U_CH}")
    A(f"ds_write_b128 v50, v[124:127]")
    A(f"ds_write_b128 v50, v[128:131] offset:{XT_CH}")
    A("s_waitcnt lgkmcnt(0)")
    A("s_barrier")

C_ACC=64
C_F=[96,160]
C_G=[128,192]
C_VF=48; C_VG=49
C_EU=224; C_EX=232
@add_method
def conv(self):
    A=self.A
    A(f"v_and_b32 v50, 15, v{V_LANE}")
    A(f"v_lshrrev_b32 v51, 4, v{V_LANE}")
    A(f"v_sub_u32 v52, 3, v50")
    A(f"v_and_b32 v52, 3, v52")
    A(f"v_mul_u32_u24 v52, {KX_COPY}, v52")
    A(f"v_lshrrev_b32 v53, 2, v50")
    A(f"v_lshlrev_b32 v53, 3, v53")
    A(f"v_sub_u32 v52, v52, v53")
    A(f"v_lshl_add_u32 v52, v51, 4, v52")
    A(f"s_mul_i32 s{S_T0}, s{S_CH}, {KX_CH}")
    A(f"s_lshl_b32 s{S_T0+1}, s{S_NH}, 8")
    A(f"s_sub_u32 s{S_T0}, s{S_T0}, s{S_T0+1}")
    A(f"s_add_u32 s{S_T0}, s{S_T0}, {LDS_KX+2*2028-64*63}")
    A(f"v_add_u32 v{C_VF}, s{S_T0}, v52")
    A(f"v_lshlrev_b32 v52, 5, v50")
    A(f"v_lshl_add_u32 v52, v51, 4, v52")
    A(f"s_mul_i32 s{S_T0}, s{S_CH}, {U_CH}")
    A(f"s_sub_u32 s{S_T0}, s{S_T0}, s{S_T0+1}")
    A(f"s_add_u32 s{S_T0}, s{S_T0}, {LDS_U+480-192}")
    A(f"v_add_u32 v{C_VG}, s{S_T0}, v52")
    def loads(sp):
        st=sp&1; out=[]
        for k in range(8):
            g=C_G[st]+4*k; f=C_F[st]+4*k
            out.append(f"ds_read_b128 v[{g}:{g+3}], v{C_VG} offset:{512*k+64*(3-sp)}")
            o=64*(63-8*k-sp)
            out.append(f"ds_read_b64 v[{f}:{f+1}], v{C_VF} offset:{o}")
            out.append(f"ds_read_b64 v[{f+2}:{f+3}], v{C_VF} offset:{o+8}")
        return out
    def mfmas(sp):
        st=sp&1; out=[]
        for t in range(8):
            for d in range(t+1):
                acc=C_ACC+4*t
                c = "0" if (sp==0 and d==0) else f"v[{acc}:{acc+3}]"
                out.append((t,d,f"v_mfma_f32_16x16x32_f16 v[{acc}:{acc+3}], v[{C_F[st]+4*d}:{C_F[st]+4*d+3}], v[{C_G[st]+4*(t-d)}:{C_G[st]+4*(t-d)+3}], {c}"))
        return out
    l0=loads(0)
    A(f"v_lshlrev_b32 v52, 5, v50")
    A(f"v_lshl_add_u32 v52, v51, 3, v52")
    A(f"s_lshl_b32 s{S_T0}, s{S_NH}, 11")
    A(f"s_mul_i32 s{S_T0+1}, s{S_CH}, {U_CH}")
    A(f"s_add_u32 s{S_T0+1}, s{S_T0+1}, s{S_T0}")
    A(f"s_add_u32 s{S_T0+1}, s{S_T0+1}, {LDS_U+512}")
    A(f"v_add_u32 v53, s{S_T0+1}, v52")
    A(f"s_mul_i32 s{S_T0+1}, s{S_CH}, {XT_CH}")
    A(f"s_add_u32 s{S_T0+1}, s{S_T0+1}, s{S_T0}")
    A(f"s_add_u32 s{S_T0+1}, s{S_T0+1}, {LDS_XT}")
    A(f"v_add_u32 v54, s{S_T0+1}, v52")
    for k in range(5):
        for x in l0[3*k:3*k+3]: A(x)
    issued=5
    nxt=loads(1); ni=0
    cur_t=-1
    for (t,d,txt) in mfmas(0):
        first = (t!=cur_t)
        if first:
            cur_t=t
            if t<=3: A(f"s_waitcnt lgkmcnt({3*(issued-1-t)})")
            elif t==4: A("s_waitcnt lgkmcnt(0)")
        A(txt)
        if first and issued<8:
            for x in l0[3*issued:3*issued+3]: A(x)
            issued+=1
        elif t>=4 and ni<len(nxt):
            A(nxt[ni]); ni+=1
    assert ni==len(nxt)
    epi=[]
    for tt in range(4):
        epi.append(f"ds_read_b64 v[{C_EU+2*tt}:{C_EU+2*tt+1}], v53 offset:{512*tt}")
        epi.append(f"ds_read_b64 v[{C_EX+2*tt}:{C_EX+2*tt+1}], v54 offset:{512*tt}")
    for sp in range(1,4):
        A("s_waitcnt lgkmcnt(0)")
        nxt = loads(sp+1) if sp<3 else epi
        ni=0
        for (t,d,txt) in mfmas(sp):
            A(txt)
            if ni<len(nxt): A(nxt[ni]); ni+=1
    l=self.lab()
    A(f"s_cmp_eq_u32 s{S_NH}, 0")
    A(f"s_cbranch_scc1 {l}")
    A("s_nop 7")
    for r in range(16): A(f"v_swap_b32 v{C_ACC+r}, v{C_ACC+16+r}")
    A(f"{l}:")
    A("s_nop 7")
    A(f"s_lshl_b32 s{S_T0}, s{S_W}, 12")
    A(f"v_lshl_add_u32 v55, v{V_LANE}, 4, s{S_T0}")
    for tt in range(4): A(f"ds_write_b128 v55, v[{C_ACC+16+4*tt}:{C_ACC+16+4*tt+3}] offset:{1024*tt}")
    A("v_xor_b32 v55, 4096, v55")
    A("s_waitcnt lgkmcnt(0)")
    A("s_barrier")
    for tt in range(4): A(f"ds_read_b128 v[{96+4*tt}:{96+4*tt+3}], v55 offset:{1024*tt}")
    U=112; X=128; Y=C_ACC
    for tt in range(4):
        for h in range(2):
            A(f"v_cvt_f32_f16 v{U+4*tt+2*h}, v{C_EU+2*tt+h}")
            A(f"v_cvt_f32_f16_sdwa v{U+4*tt+2*h+1}, v{C_EU+2*tt+h} dst_sel:DWORD dst_unused:UNUSED_PAD src0_sel:WORD_1")
            A(bf16_lo(X+4*tt+2*h, C_EX+2*tt+h)); A(bf16_hi(X+4*tt+2*h+1, C_EX+2*tt+h))
    A(f"v_mov_b32 v144, s{S_DSKV}\nv_mov_b32 v145, s{S_DSKV}\nv_mov_b32 v146, s{S_YS}\nv_mov_b32 v147, s{S_YS}")
    for p in range(8):
        A(f"v_pk_mul_f32 v[{U+2*p}:{U+2*p+1}], v[{U+2*p}:{U+2*p+1}], v[144:145]")
    if self.mimic>=1:
        for p in range(8): A(f"v_cvt_pk_bf16_f32 v{148+p}, v{U+2*p}, v{U+2*p+1}")
        for p in range(8): A(bf16_lo(U+2*p,148+p)); A(bf16_hi(U+2*p+1,148+p))
    A("s_waitcnt lgkmcnt(0)")
    for p in range(8):
        A(f"v_pk_add_f32 v[{Y+2*p}:{Y+2*p+1}], v[{Y+2*p}:{Y+2*p+1}], v[{96+2*p}:{96+2*p+1}]")
    for p in range(8):
        A(f"v_pk_mul_f32 v[{Y+2*p}:{Y+2*p+1}], v[{Y+2*p}:{Y+2*p+1}], v[146:147]")
    if self.mimic>=1:
        for p in range(8): A(f"v_cvt_pk_bf16_f32 v{148+p}, v{Y+2*p}, v{Y+2*p+1}")
        for p in range(8): A(bf16_lo(Y+2*p,148+p)); A(bf16_hi(Y+2*p+1,148+p))
    for p in range(8):
        A(f"v_pk_add_f32 v[{Y+2*p}:{Y+2*p+1}], v[{Y+2*p}:{Y+2*p+1}], v[{U+2*p}:{U+2*p+1}]")
    if self.mimic>=1:
        for p in range(8): A(f"v_cvt_pk_bf16_f32 v{148+p}, v{Y+2*p}, v{Y+2*p+1}")
        for p in range(8): A(bf16_lo(Y+2*p,148+p)); A(bf16_hi(Y+2*p+1,148+p))
    for p in range(8):
        A(f"v_pk_add_f32 v[{Y+2*p}:{Y+2*p+1}], v[{Y+2*p}:{Y+2*p+1}], v[{X+2*p}:{X+2*p+1}]")
    H=148
    for p in range(8): A(f"v_cvt_pk_bf16_f32 v{H+p}, v{Y+2*p}, v{Y+2*p+1}")
    for pr in range(2):
        b=H+4*pr
        A(f"v_permlane16_swap_b32 v{b}, v{b+2}")
        A(f"v_permlane16_swap_b32 v{b+1}, v{b+3}")
    A(f"v_and_b32 v52, 1, v51")
    A(f"v_lshlrev_b32 v52, 3, v52")
    A(f"v_lshrrev_b32 v53, 1, v50")
    A(f"v_add_u32 v52, v52, v53")
    A(f"s_movk_i32 s{S_T0}, {448*64}")
    A(f"v_mul_lo_u32 v52, v52, s{S_T0}")
    A(f"v_and_b32 v53, 1, v50")
    A(f"v_lshl_add_u32 v52, v53, 5, v52")
    A(f"v_lshrrev_b32 v53, 1, v51")
    A(f"v_lshl_add_u32 v52, v53, 4, v52")
    A(f"s_lshl_b32 s{S_T0}, s{S_NH}, 5")
    A(f"s_mul_i32 s{S_T0}, s{S_T0}, {448*64}")
    A(f"s_add_u32 s{S_T0+1}, s{S_D0}, s{S_CH}")
    A(f"s_lshl_b32 s{S_T0+1}, s{S_T0+1}, 6")
    A(f"s_add_u32 s{S_T0}, s{S_T0}, s{S_T0+1}")
    A(f"s_add_u32 s{S_T0}, s{S_T0}, {WS_HT}")
    A(f"s_add_u32 s{S_T0+1}, s{S_T0}, {16*448*64}")
    A(f"buffer_store_dwordx4 v[{H}:{H+3}], v52, s[{SRD_WS}:{SRD_WS+3}], s{S_T0} offen sc1")
    A(f"buffer_store_dwordx4 v[{H+4}:{H+7}], v52, s[{SRD_WS}:{SRD_WS+3}], s{S_T0+1} offen sc1")

@add_method
def sync_all(self):
    A=self.A
    A("s_waitcnt vmcnt(0)")
    A("s_barrier")
    l=self.lab()
    A(f"s_cmp_lg_u32 s{S_W}, 0")
    A(f"s_cbranch_scc1 {l}")
    A(f"s_and_b32 s{S_T0}, s{S_WG}, 7")
    A(f"s_lshl_b32 s{S_T0}, s{S_T0}, 7")
    A(f"s_add_u32 s{S_T0}, s{S_T0}, {WS_CNT2}")
    A(f"v_lshlrev_b32 v48, 10, v{V_LANE}")
    A("v_mov_b32 v49, 1")
    A("s_mov_b64 exec, 0xff")
    A(f"buffer_atomic_add v49, v48, s[{SRD_WS}:{SRD_WS+3}], s{S_T0} offen")
    A("s_mov_b64 exec, -1")
    A(f"{l}:")

@add_method
def sync_all_wait(self):
    A=self.A
    l=self.lab(); lp=self.lab('Lpoll'); le=self.lab()
    A(f"s_cmp_lg_u32 s{S_W}, 0")
    A(f"s_cbranch_scc1 {l}")
    A(f"s_lshr_b32 s{S_T0}, s{S_WG}, 3")
    A(f"s_and_b32 s{S_T0}, s{S_T0}, 7")
    A(f"s_lshl_b32 s{S_T0}, s{S_T0}, 10")
    A(f"s_add_u32 s{S_T0}, s{S_T0}, {WS_CNT2}")
    A(f"v_and_b32 v48, 7, v{V_LANE}")
    A(f"v_lshlrev_b32 v48, 7, v48")
    A(f"s_mov_b32 s{S_T0+1}, 0")
    A(f"{lp}:")
    A(f"buffer_load_dword v49, v48, s[{SRD_WS}:{SRD_WS+3}], s{S_T0} offen sc1")
    A("s_waitcnt vmcnt(0)")
    A("v_cmp_gt_u32 vcc, 28, v49")
    A(f"s_add_u32 s{S_T0+1}, s{S_T0+1}, 1")
    A(f"s_cbranch_vccz {le}")
    A(f"s_cmp_lt_u32 s{S_T0+1}, 0x8000")
    A(f"s_cbranch_scc1 {lp}")
    A(f"{le}:")
    A(f"{l}:")
    A("s_barrier")

class Stream:
    def __init__(self, A):
        self.A=A; self.lds=[]; self.vm=[]
    def ds(self, text, tag=None):
        self.A(text); self.lds.append(tag)
    def vmem(self, text, tag=None):
        self.A(text); self.vm.append(tag)
    def need_lds(self, tags):
        idx=-1
        for t in tags:
            if t in self.lds: idx=max(idx, len(self.lds)-1-self.lds[::-1].index(t))
        if idx>=0:
            n=len(self.lds)-idx-1
            n=min(n,15)
            self.A(f"s_waitcnt lgkmcnt({n})")
            self.lds=self.lds[len(self.lds)-n:] if n>0 else []
    def need_vm(self, tags):
        idx=-1
        for t in tags:
            if t in self.vm: idx=max(idx, len(self.vm)-1-self.vm[::-1].index(t))
        if idx>=0:
            n=len(self.vm)-idx-1
            n=min(n,63)
            self.A(f"s_waitcnt vmcnt({n})")
            self.vm=self.vm[len(self.vm)-n:] if n>0 else []
    def item(self, it):
        if isinstance(it,str): self.A(it)
        elif it[0]=='ds': self.ds(it[1],it[2])
        elif it[0]=='vm': self.vmem(it[1],it[2])
        elif it[0]=='needl': self.need_lds(it[1])
        elif it[0]=='needv': self.need_vm(it[1])

G_ACC=[64,96]; G_CS=128; G_RING=160; G_SB=176; G_VB=204; G_SA=208; G_SF=[212,215]; G_ST=218; G_ET=226; G_PK=242
LDS_ST=114688
@add_method
def cs_mfma(self):
    A=self.A
    for k in range(4): A(f"v_mov_b32 v{48+k}, 0x3f803f80")
    for s in range(28):
        for t in range(2):
            d=G_CS+16*t
            c="0" if s==0 else f"v[{d}:{d+15}]"
            A(f"v_mfma_f32_32x32x16_bf16 v[{d}:{d+15}], a[{8*s+4*t}:{8*s+4*t+3}], v[48:51], {c}")

@add_method
def gemm1(self):
    A=self.A; S=Stream(A)
    A(f"s_mul_i32 s{S_T0}, s{S_I}, {4*28672}")
    A(f"s_mul_i32 s{S_T0+1}, s{S_W}, 7168")
    A(f"s_add_u32 s{S_T0}, s{S_T0}, s{S_T0+1}")
    A(f"s_add_u32 s{S_T0}, s{S_T0}, {WS_HT}")
    A(f"v_lshlrev_b32 v48, 4, v{V_LANE}")
    for lt in range(4):
        for k in range(7):
            off=lt*28672+k*1024
            A(f"s_add_u32 s{S_T0+2}, s{S_T0}, {off}")
            A(f"s_add_u32 m0, s{S_T0+1}, {off}")
            S.vmem(f"buffer_load_dwordx4 v48, s[{SRD_WS}:{SRD_WS+3}], s{S_T0+2} offen sc1 lds", f"X{lt}")
    A(f"v_lshrrev_b32 v50, 5, v{V_LANE}")
    A(f"v_lshlrev_b32 v50, 9, v50")
    A(f"v_bfe_u32 v51, v{V_LANE}, 2, 2")
    A(f"v_lshl_add_u32 v50, v51, 6, v50")
    A(f"v_bfe_u32 v51, v{V_LANE}, 4, 1")
    A(f"v_lshl_add_u32 v50, v51, 5, v50")
    A(f"v_and_b32 v51, 3, v{V_LANE}")
    A(f"v_lshl_add_u32 v50, v51, 3, v50")
    for g in range(4):
        A(f"s_add_u32 s{S_T0+2}, s{S_W}, {g}")
        A(f"s_and_b32 s{S_T0+2}, s{S_T0+2}, 3")
        A(f"s_sub_u32 s{S_T0+2}, s{S_T0+2}, {g}")
        A(f"s_mul_i32 s{S_T0+2}, s{S_T0+2}, 7168")
        A(f"v_add_u32 v{G_VB+g}, s{S_T0+2}, v50")
    A(f"v_and_b32 v53, 31, v{V_LANE}")
    A(f"v_lshlrev_b32 v53, 5, v53")
    A(f"v_add_u32 v53, {LDS_ST}, v53")
    A(f"s_lshl_b32 s{S_T0+2}, s{S_W}, 3")
    A(f"v_add_u32 v52, s{S_T0+2}, v53")
    A(f"s_lshl_b32 s{S_T0+4}, s{S_I}, 2")
    A(f"s_mul_i32 s{S_T0+4}, s{S_T0+4}, 112")
    A(f"s_lshl_b32 s{S_T0+5}, s{S_J}, 3")
    A(f"s_add_u32 s{S_T0+4}, s{S_T0+4}, s{S_T0+5}")
    A(f"s_lshl_b32 s{S_T0+5}, s{S_W}, 1")
    A(f"s_add_u32 s{S_T0+4}, s{S_T0+4}, s{S_T0+5}")
    A(f"s_lshl_b32 s{S_T0+4}, s{S_T0+4}, 10")
    A(f"s_add_u32 s{S_T0+4}, s{S_T0+4}, {WS_M}")
    SM=S_T0+4
    def breg(s): return G_SB+4*s if s<7 else G_RING+4*((s-7)%4)
    def bload(p,s):
        r=breg(s); vb=G_VB+s//7
        return [('ds',f"ds_read_b64_tr_b16 v[{r}:{r+1}], v{vb} offset:{s*1024}",f"B{p}_{s}a"),
                ('ds',f"ds_read_b64_tr_b16 v[{r+2}:{r+3}], v{vb} offset:{s*1024+256}",f"B{p}_{s}b")]
    def stats_items(p):
        it=[]
        sa=G_SA; T=G_ST
        for s in range(7):
            for k in range(4):
                r=breg(s)+k; t0=T+2*(k&1)*2
                first=(s==0 and k==0);
                lo=T+(k%4)*2; hi=lo+1
                it.append(bf16_lo(lo,r)); it.append(bf16_hi(hi,r))
                if s==0 and k<1:
                    it.append(f"v_add_f32 v{sa}, v{lo}, v{hi}")
                    it.append(f"v_mul_f32 v{sa+2}, v{lo}, v{lo}")
                    it.append(f"v_mul_f32 v{sa+3}, v{hi}, v{hi}")
                    it.append(f"v_mov_b32 v{sa+1}, 0")
                else:
                    it.append(f"v_add_f32 v{sa}, v{sa}, v{lo}")
                    it.append(f"v_add_f32 v{sa+1}, v{sa+1}, v{hi}")
                    it.append(f"v_fma_f32 v{sa+2}, v{lo}, v{lo}, v{sa+2}")
                    it.append(f"v_fma_f32 v{sa+3}, v{hi}, v{hi}, v{sa+3}")
        it.append(f"v_add_f32 v{T}, v{sa}, v{sa+1}")
        it.append(f"v_add_f32 v{T+1}, v{sa+2}, v{sa+3}")
        it.append(f"v_mov_b32 v{T+2}, v{T}")
        it.append(f"v_mov_b32 v{T+3}, v{T+1}")
        it.append("s_nop 1")
        it.append(f"v_permlane32_swap_b32 v{T}, v{T+2}")
        it.append(f"v_permlane32_swap_b32 v{T+1}, v{T+3}")
        it.append(f"v_add_f32 v{T}, v{T}, v{T+2}")
        it.append(f"v_add_f32 v{T+1}, v{T+1}, v{T+3}")
        it.append(('ds',f"ds_write_b64 v52, v[{T}:{T+1}] offset:{(p&1)*1024}",f"SW{p}"))
        return it
    def stats_final(p):
        T=G_ST; sf=G_SF[p&1]
        it=[('ds',f"ds_read_b128 v[{T}:{T+3}], v53 offset:{(p&1)*1024}",f"SR{p}a"),
            ('ds',f"ds_read_b128 v[{T+4}:{T+7}], v53 offset:{(p&1)*1024+16}",f"SR{p}b"),
            ('needl',[f"SR{p}a",f"SR{p}b"]),
            f"v_add_f32 v{T}, v{T}, v{T+2}", f"v_add_f32 v{T+1}, v{T+1}, v{T+3}",
            f"v_add_f32 v{T+4}, v{T+4}, v{T+6}", f"v_add_f32 v{T+5}, v{T+5}, v{T+7}",
            f"v_add_f32 v{T}, v{T}, v{T+4}", f"v_add_f32 v{T+1}, v{T+1}, v{T+5}",
            f"v_mul_f32 v{T}, {fl(1.0/448)}, v{T}",
            f"v_mul_f32 v{T+1}, {fl(1.0/448)}, v{T+1}",
            f"v_fma_f32 v{T+1}, -v{T}, v{T}, v{T+1}",
            f"v_max_f32 v{T+1}, 0, v{T+1}",
            f"v_cvt_pk_bf16_f32 v{T+2}, v{T+1}, v{T}",
            f"v_and_b32 v{sf}, 0xffff0000, v{T+2}",
            f"v_lshlrev_b32 v{T+1}, 16, v{T+2}",
            f"v_add_f32 v{T+1}, {fl(1e-5)}, v{T+1}",
            f"v_cvt_pk_bf16_f32 v{T+1}, v{T+1}, v{T+1}",
            f"v_lshlrev_b32 v{T+1}, 16, v{T+1}",
            f"v_sqrt_f32 v{T+1}, v{T+1}", "s_nop 0",
            f"v_cvt_pk_bf16_f32 v{T+1}, v{T+1}, v{T+1}",
            f"v_lshlrev_b32 v{T+1}, 16, v{T+1}",
            f"v_rcp_f32 v{T+1}, v{T+1}", "s_nop 0",
            f"v_mul_f32 v{sf+1}, {fl(-LOG2E)}, v{T+1}",
            f"v_mul_f32 v{sf+2}, v{T+1}, v{T+1}"]
        return it
    def epi_items(p):
        acc=G_ACC[p&1]; sf=G_SF[p&1]; it=[]; E=G_ET
        for r0 in range(0,16,4):
            rs=range(r0,r0+4)
            for r in rs: it.append(f"v_fma_f32 v{acc+r}, -v{sf}, v{G_CS+r}, v{acc+r}")
            for r in rs: it.append(f"v_fma_f32 v{acc+16+r}, -v{sf}, v{G_CS+16+r}, v{acc+16+r}")
            for r in rs: it.append(f"v_mul_f32 v{E+(r&3)}, v{sf+1}, v{acc+r}")
            for r in rs: it.append(f"v_exp_f32 v{E+(r&3)}, v{E+(r&3)}")
            for r in rs: it.append(f"v_mul_f32 v{acc+r}, v{acc+r}, v{acc+16+r}")
            for r in rs: it.append(f"v_add_f32 v{E+(r&3)}, 1.0, v{E+(r&3)}")
            for r in rs: it.append(f"v_rcp_f32 v{E+(r&3)}, v{E+(r&3)}")
            for r in rs: it.append(f"v_mul_f32 v{acc+r}, v{acc+r}, v{sf+2}")
            for r in rs: it.append(f"v_mul_f32 v{acc+r}, v{acc+r}, v{E+(r&3)}")
            q=r0//4
            it.append(f"v_cvt_pk_bf16_f32 v{G_PK+2*q}, v{acc+r0}, v{acc+r0+1}")
            it.append(f"v_cvt_pk_bf16_f32 v{G_PK+2*q+1}, v{acc+r0+2}, v{acc+r0+3}")
            if q==1 or q==3:
                h=q//2
                it.append(f"s_add_u32 s{SM+1}, s{SM}, {p*112*1024+h*1024}")
                it.append(('vm',f"buffer_store_dwordx4 v[{G_PK+4*h}:{G_PK+4*h+3}], v48, s[{SRD_WS}:{SRD_WS+3}], s{SM+1} offen sc1",f"M{p}_{h}"))
        return it
    S.need_vm(["X0"])
    A("s_barrier")
    for it in bload(0,0)+bload(0,1): S.item(it)
    for p in range(4):
        acc=G_ACC[p&1]
        st=stats_items(p)
        ep=epi_items(p-1) if p>0 else []
        fin=stats_final(p)
        BAR=20
        sti=0; epi=0; fi=0
        for s in range(28):
            S.need_lds([f"B{p}_{s}a",f"B{p}_{s}b"])
            r=breg(s)
            for t in range(2):
                d=acc+16*t
                c="0" if s==0 else f"v[{d}:{d+15}]"
                A(f"v_mfma_f32_32x32x16_bf16 v[{d}:{d+15}], a[{8*s+4*t}:{8*s+4*t+3}], v[{r}:{r+3}], {c}")
                if t==0:
                    ns=s+2
                    if ns<28:
                        for it in bload(p,ns): S.item(it)
                    elif p<3:
                        for it in bload(p+1,ns-28): S.item(it)
                gap=2*s+t
                if s<BAR:
                    avail = min(len(st), (24*(min(s,6)+1) if s<6 else len(st)))
                    tgt = min(avail, (len(st)*(gap+1)+2*(BAR-1)-1)//(2*(BAR-1)))
                    while sti<tgt: S.item(st[sti]); sti+=1
                if s>=1 and ep:
                    tgt=min(len(ep),(len(ep)*(gap-1)+53)//54)
                    while epi<tgt: S.item(ep[epi]); epi+=1
                if s>BAR:
                    tgt=min(len(fin),(len(fin)*(gap-2*BAR-1)+11)//12)
                    while fi<tgt: S.item(fin[fi]); fi+=1
            if s in (4,11,18,25) and p<3:
                g={4:0,11:1,18:2,25:3}[s]
                A(f"v_add_u32 v{G_VB+g}, 28672, v{G_VB+g}")
            if s==BAR:
                while sti<len(st): S.item(st[sti]); sti+=1
                S.need_lds([f"SW{p}"])
                if p<3: S.need_vm([f"X{p+1}"])
                A("s_barrier")
        while epi<len(ep): S.item(ep[epi]); epi+=1
        while fi<len(fin): S.item(fin[fi]); fi+=1
    A("s_nop 11")
    for it in epi_items(3): S.item(it)

@add_method
def sync_grp(self):
    A=self.A
    A("s_waitcnt vmcnt(0)")
    A("s_barrier")
    l=self.lab()
    A(f"s_cmp_lg_u32 s{S_W}, 0")
    A(f"s_cbranch_scc1 {l}")
    A(f"s_lshl_b32 s{S_T0}, s{S_I}, 7")
    A(f"s_add_u32 s{S_T0}, s{S_T0}, {WS_CNT3}")
    A("v_mov_b32 v49, 1")
    A("s_mov_b64 exec, 1")
    A(f"buffer_atomic_add v49, v{V_ZERO}, s[{SRD_WS}:{SRD_WS+3}], s{S_T0} offen")
    l2=self.lab()
    A(f"s_cmp_lg_u32 s{S_WG}, 0")
    A(f"s_cbranch_scc1 {l2}")
    A(f"v_mov_b32 v49, s{S_TAG}")
    A(f"buffer_store_dword v49, v{V_ZERO}, s[{SRD_WS}:{SRD_WS+3}], 0 offen sc1")
    A(f"{l2}:")
    A("s_mov_b64 exec, -1")
    A(f"{l}:")

@add_method
def sync_grp_wait(self):
    A=self.A
    l=self.lab(); lp=self.lab('Lpoll'); le=self.lab()
    A(f"s_cmp_lg_u32 s{S_W}, 0")
    A(f"s_cbranch_scc1 {l}")
    A(f"s_lshl_b32 s{S_T0}, s{S_I}, 7")
    A(f"s_add_u32 s{S_T0}, s{S_T0}, {WS_CNT3}")
    A(f"s_mov_b32 s{S_T0+1}, 0")
    A(f"{lp}:")
    A(f"buffer_load_dword v49, v{V_ZERO}, s[{SRD_WS}:{SRD_WS+3}], s{S_T0} offen sc1")
    A("s_waitcnt vmcnt(0)")
    A("v_cmp_gt_u32 vcc, 14, v49")
    A(f"s_add_u32 s{S_T0+1}, s{S_T0+1}, 1")
    A(f"s_cbranch_vccz {le}")
    A(f"s_cmp_lt_u32 s{S_T0+1}, 0x8000")
    A(f"s_cbranch_scc1 {lp}")
    A(f"{le}:")
    A(f"{l}:")
    A("s_barrier")

H_ACC=64
H_RING=128
NSL=14
LDS_RED=0
LDS_RES=49152
@add_method
def gemm2(self):
    A=self.A; S=Stream(A)
    A(f"s_cmp_ge_u32 s{S_J}, 7")
    A(f"s_cselect_b32 s{S_T0}, 2, 0")
    A(f"s_cselect_b32 s{S_T0+6}, 7, 0")
    A(f"s_sub_u32 s{S_T0+6}, s{S_J}, s{S_T0+6}")
    A(f"s_lshl_b32 s{S_T0+1}, s{S_I}, 2")
    A(f"s_add_u32 s{S_T0}, s{S_T0}, s{S_T0+1}")
    A(f"s_add_u32 s{S_T0+1}, s{S_T0}, s{S_CH}")
    A(f"s_xor_b32 s{S_T0+2}, s{S_CH}, 1")
    A(f"s_add_u32 s{S_T0+2}, s{S_T0}, s{S_T0+2}")
    A(f"s_mul_i32 s{S_T0+3}, s{S_W}, 28")
    for la in range(2):
        A(f"s_mul_i32 s{S_T0+4+la}, s{S_T0+1+la}, 112")
        A(f"s_add_u32 s{S_T0+4+la}, s{S_T0+4+la}, s{S_T0+3}")
        A(f"s_lshl_b32 s{S_T0+4+la}, s{S_T0+4+la}, 10")
        A(f"s_add_u32 s{S_T0+4+la}, s{S_T0+4+la}, {WS_M}")
    A(f"v_lshlrev_b32 v48, 4, v{V_LANE}")
    def mload(s):
        sl=s%NSL
        for la in range(2):
            r=H_RING+8*sl+4*la
            A(f"s_add_u32 s{S_T0+7}, s{S_T0+4+la}, {s*1024}")
            S.vmem(f"buffer_load_dwordx4 v[{r}:{r+3}], v48, s[{SRD_WS}:{SRD_WS+3}], s{S_T0+7} offen sc1", f"m{s}")
    A(f"s_mul_i32 s{S_T0+8}, s{S_T0+1}, 448")
    A(f"s_lshl_b32 s{S_T0+9}, s{S_T0+6}, 6")
    A(f"s_add_u32 s{S_T0+8}, s{S_T0+8}, s{S_T0+9}")
    A(f"s_lshl_b32 s{S_T0+9}, s{S_NH}, 5")
    A(f"s_add_u32 s{S_T0+8}, s{S_T0+8}, s{S_T0+9}")
    A(f"s_lshl_b32 s{S_T0+8}, s{S_T0+8}, 6")
    A(f"s_add_u32 s{S_T0+8}, s{S_T0+8}, {WS_HT}")
    A(f"s_lshl_b32 s{S_T0+9}, s{S_W}, 11")
    A(f"s_add_u32 s{S_T0+9}, s{S_T0+9}, {LDS_RES}")
    for k in range(2):
        A(f"s_add_u32 m0, s{S_T0+9}, {k*1024}")
        A(f"s_add_u32 s{S_T0+7}, s{S_T0+8}, {k*1024}")
        S.vmem(f"buffer_load_dwordx4 v48, s[{SRD_WS}:{SRD_WS+3}], s{S_T0+7} offen sc1 lds","res")
    for s in range(NSL): mload(s)
    for s in range(28):
        S.need_vm([f"m{s}"])
        sl=s%NSL
        for la in range(2):
            for ca in range(2):
                d=H_ACC+16*(2*la+ca)
                c="0" if s==0 else f"v[{d}:{d+15}]"
                r=H_RING+8*sl+4*la
                A(f"v_mfma_f32_32x32x16_bf16 v[{d}:{d+15}], a[{8*s+4*ca}:{8*s+4*ca+3}], v[{r}:{r+3}], {c}")
        if s+NSL<28: mload(s+NSL)
    A("s_nop 11")
    A("s_barrier")
    for x in range(1,4):
        A(f"s_xor_b32 s{S_T0+7}, s{S_W}, {x}")
        A(f"s_mul_i32 s{S_T0+7}, s{S_T0+7}, 12288")
        A(f"s_add_u32 s{S_T0+7}, s{S_T0+7}, {LDS_RED+(x-1)*4096}")
        A(f"v_add_u32 v49, s{S_T0+7}, v48")
        for q in range(4):
            d=H_ACC+16*x+4*q
            A(f"ds_write_b128 v49, v[{d}:{d+3}] offset:{q*1024}")
    A(f"v_lshrrev_b32 v50, 5, v{V_LANE}")
    A(f"v_lshlrev_b32 v50, 8, v50")
    A(f"v_bfe_u32 v51, v{V_LANE}, 2, 2")
    A(f"v_lshl_add_u32 v50, v51, 6, v50")
    A(f"v_bfe_u32 v51, v{V_LANE}, 4, 1")
    A(f"v_lshl_add_u32 v50, v51, 5, v50")
    A(f"v_and_b32 v51, 3, v{V_LANE}")
    A(f"v_lshl_add_u32 v50, v51, 3, v50")
    A(f"v_add_u32 v50, s{S_T0+9}, v50")
    A("s_waitcnt vmcnt(0) lgkmcnt(0)")
    A("s_barrier")
    A(f"s_mul_i32 s{S_T0+7}, s{S_W}, 12288")
    A(f"v_add_u32 v49, s{S_T0+7}, v48")
    P=128
    for q in range(4): A(f"ds_read_b64_tr_b16 v[{176+2*q}:{176+2*q+1}], v50 offset:{q*512}")
    for k in range(2):
        for q in range(4):
            A(f"ds_read_b128 v[{P+16*k+4*q}:{P+16*k+4*q+3}], v49 offset:{LDS_RED+k*4096+q*1024}")
    A("s_waitcnt lgkmcnt(4)")
    for r in range(0,16,2): A(f"v_pk_add_f32 v[{H_ACC+r}:{H_ACC+r+1}], v[{H_ACC+r}:{H_ACC+r+1}], v[{P+r}:{P+r+1}]")
    for q in range(4):
        A(f"ds_read_b128 v[{P+4*q}:{P+4*q+3}], v49 offset:{LDS_RED+2*4096+q*1024}")
    A("s_waitcnt lgkmcnt(4)")
    for r in range(0,16,2): A(f"v_pk_add_f32 v[{H_ACC+r}:{H_ACC+r+1}], v[{H_ACC+r}:{H_ACC+r+1}], v[{P+16+r}:{P+16+r+1}]")
    for q in range(4):
        for h in range(2):
            A(bf16_lo(192+4*q+2*h,176+2*q+h)); A(bf16_hi(192+4*q+2*h+1,176+2*q+h))
    A("s_waitcnt lgkmcnt(0)")
    for r in range(0,16,2): A(f"v_pk_add_f32 v[{H_ACC+r}:{H_ACC+r+1}], v[{H_ACC+r}:{H_ACC+r+1}], v[{P+r}:{P+r+1}]")
    if self.mimic>=1:
        for r in range(0,16,2): A(f"v_cvt_pk_bf16_f32 v{208+r//2}, v{H_ACC+r}, v{H_ACC+r+1}")
        for r in range(0,16,2): A(bf16_lo(H_ACC+r,208+r//2)); A(bf16_hi(H_ACC+r+1,208+r//2))
    for r in range(0,16,2): A(f"v_pk_add_f32 v[{H_ACC+r}:{H_ACC+r+1}], v[{H_ACC+r}:{H_ACC+r+1}], v[{192+r}:{192+r+1}]")
    O=208
    for r in range(0,16,2): A(f"v_cvt_pk_bf16_f32 v{O+r//2}, v{H_ACC+r}, v{H_ACC+r+1}")
    for q in (0,2):
        A(f"v_permlane32_swap_b32 v{O+2*q}, v{O+2*q+2}")
        A(f"v_permlane32_swap_b32 v{O+2*q+1}, v{O+2*q+3}")
    A(f"s_mov_b32 s{SRD_W}, s{S_OUT}\ns_mov_b32 s{SRD_W+1}, s{S_OUT+1}\ns_mov_b32 s{SRD_W+2}, {L_*D_*2}\ns_mov_b32 s{SRD_W+3}, 0x20000")
    A(f"v_and_b32 v50, 31, v{V_LANE}")
    A(f"v_mul_u32_u24 v50, 896, v50")
    A(f"v_lshrrev_b32 v51, 5, v{V_LANE}")
    A(f"v_lshl_add_u32 v50, v51, 4, v50")
    A(f"s_mul_i32 s{S_T0+7}, s{S_T0+1}, {32*896}")
    A(f"s_lshl_b32 s{S_T0+8}, s{S_T0+6}, 7")
    A(f"s_add_u32 s{S_T0+7}, s{S_T0+7}, s{S_T0+8}")
    A(f"s_lshl_b32 s{S_T0+8}, s{S_NH}, 6")
    A(f"s_add_u32 s{S_T0+7}, s{S_T0+7}, s{S_T0+8}")
    A(f"buffer_store_dwordx4 v[{O}:{O+3}], v50, s[{SRD_W}:{SRD_W+3}], s{S_T0+7} offen")
    A(f"buffer_store_dwordx4 v[{O+4}:{O+7}], v50, s[{SRD_W}:{SRD_W+3}], s{S_T0+7} offen offset:32")

@add_method
def dump_lds(self, lds_off, nbytes, ws_off_per_wg):
    A=self.A
    A("s_waitcnt vmcnt(0) lgkmcnt(0)")
    A("s_barrier")
    A(f"v_lshlrev_b32 v48, 4, v{V_T}")
    A(f"s_mul_i32 s{S_T0}, s{S_WG}, {ws_off_per_wg}")
    A(f"s_add_u32 s{S_T0}, s{S_T0}, {WS_DBG}")
    for k in range(nbytes//4096):
        A(f"v_add_u32 v49, {lds_off+k*4096}, v48")
        A("ds_read_b128 v[52:55], v49")
        A("s_waitcnt lgkmcnt(0)")
        A(f"s_add_u32 s{S_T0+1}, s{S_T0}, {k*4096}")
        A(f"buffer_store_dwordx4 v[52:55], v48, s[{SRD_WS}:{SRD_WS+3}], s{S_T0+1} offen")
        A("s_waitcnt vmcnt(0)")

@add_method
def dump_regs(self, first, n, kind='v'):
    A=self.A
    A("s_waitcnt vmcnt(0) lgkmcnt(0)")
    A("s_nop 15")
    A(f"v_lshlrev_b32 v3, 2, v{V_T}")
    A(f"s_mul_i32 s{S_T0}, s{S_WG}, {n*1024}")
    A(f"s_add_u32 s{S_T0}, s{S_T0}, {WS_DBG}")
    for k in range(n):
        A(f"s_add_u32 s{S_T0+1}, s{S_T0}, {k*1024}")
        A(f"buffer_store_dword {kind}{first+k}, v3, s[{SRD_WS}:{SRD_WS+3}], s{S_T0+1} offen")
    A("s_waitcnt vmcnt(0)")

@add_method
def build(self):
    A=self.A
    stop=self.stop_after
    def done(name):
        return stop==name
    self.prologue()
    self.phase0_loads()
    self.stats1()
    self.kgen()
    self.kexpand()
    A("s_waitcnt lgkmcnt(0)")
    A("s_barrier")
    if done('kx'):
        self.dump_lds(LDS_KX, 36864, 36864); return self.finish()
    self.stage_w('w1')
    if done('w1'):
        self.dump_regs(0,224,'a'); return self.finish()
    self.stats_consume()
    if done('u'):
        self.dump_lds(LDS_U-LDS_U%16, 20480, 20480); return self.finish()
    self.conv()
    self.sync_all()
    self.cs_mfma()
    self.sync_all_wait()
    if done('conv'): return self.finish()
    self.gemm1()
    self.sync_grp()
    self.stage_w('wd')
    self.sync_grp_wait()
    if done('gemm1'): return self.finish()
    self.gemm2()
    return self.finish()

@add_method
def finish(self):
    A=self.A
    A("L_end:")
    A("s_endpgm")
    A("L_codeend:")
    body, nfix, probs = hazard_fix(A.L)
    for p in probs: print("HAZARD(backedge):", p, file=sys.stderr)
    errs = wait_lint(body)
    for e in errs[:40]: print("WAITLINT:", e, file=sys.stderr)
    hdr = [
     "; Fused preLN + S4D long-conv + preLN + SwiGLU FFN, one persistent launch of 224 workgroups",
     f"; @launch grid=({NWG},1,1) block=(256,1,1) lds={LDS_TOTAL}",
     '.amdgcn_target "amdgcn-amd-amdhsa--gfx950"',
     ".text", f".globl {KNAME}", ".p2align 8", f".type {KNAME},@function", f"{KNAME}:"]
    ftr = ['.section .rodata,"a"', ".p2align 6", f".amdhsa_kernel {KNAME}",
     "  .amdhsa_next_free_vgpr 512", "  .amdhsa_next_free_sgpr 96", "  .amdhsa_accum_offset 256",
     "  .amdhsa_group_segment_fixed_size 0", "  .amdhsa_kernarg_size 112", "  .amdhsa_user_sgpr_count 2",
     "  .amdhsa_user_sgpr_kernarg_segment_ptr 1", "  .amdhsa_system_sgpr_workgroup_id_x 1",
     ".end_amdhsa_kernel"]
    self.nfix=nfix
    return "\n".join(hdr+body+ftr)+"\n"

if __name__=="__main__":
    import argparse
    ap=argparse.ArgumentParser(); ap.add_argument("-o",default="out.s"); ap.add_argument("--stop",default=None); ap.add_argument("--mimic",type=int,default=2)
    a=ap.parse_args()
    g=Gen(stop_after=a.stop, mimic=a.mimic)
    txt=g.build()
    open(a.o,"w").write(txt)
    print("wrote",a.o,len(txt.splitlines()),"lines; nops inserted:",g.nfix, file=sys.stderr)
```

```python
import sys, math
sys.path.insert(0, "gen")
from asmlib import *

KNAME = "sequential_preLN__ssm_conv_s4d__swiglu_ffn__prompt_kernel"
L_, D_, N_, F_ = 2048, 448, 256, 1792
NWG = 224

WS_EPOCH = 0
WS_CNT2  = 4096
WS_CNT3  = 12288
WS_STATS = 32768
WS_HT    = 1 << 20
WS_M     = 4 << 20
WS_DBG   = 32 << 20
WS_TS    = 16 << 20
WS_SIZE  = 268435456

KG_PITCH = 528
KG_WAVE  = 53 * KG_PITCH
LDS_KX   = 112000
KX_COPY  = 4160
KX_CH    = 4 * KX_COPY
LDS_U    = LDS_KX + 2 * KX_CH
U_CH     = 4608
LDS_XT   = LDS_U + 2 * U_CH
XT_CH    = 4096
LDS_TOTAL = 163840
assert LDS_XT + 2 * XT_CH <= LDS_TOTAL

S_WG=2
S_X=8; S_LOGA=10; S_AIM=12; S_CR=14; S_CI=16; S_LOGDT=18; S_DSK=20; S_BX=22
S_WGT=24; S_WUP=26; S_WD=28; S_OUT=30; S_DBG=32; S_WS=34
SRD_X=36; SRD_WS=40; SRD_W=44; SRD_W2=48
S_W=52
S_CH=53
S_NH=54
S_D0=55
S_TAG=56
S_I=57; S_J=58
S_T0=60
S_YS=80
S_DSKV=81
S_DT=82
S_RET=84

LOG2E = 1.4426950408889634
INV2PI = 0.15915494309189535
def f2u(x):
    import struct
    return struct.unpack('<I', struct.pack('<f', x))[0]
def fl(x): return hex(f2u(x))

class Gen:
    def __init__(self, stop_after=None, dbg=False, mimic=2, ts=False, perturb=0.0):
        self.A = Asm(); self.stop_after = stop_after; self.dbg = dbg; self.mimic = mimic
        self.nlab = 0; self.ts=ts; self.nts=0; self.tsnames=[]; self.perturb=perturb
    def stamp(self, name):
        if not self.ts: return
        k=self.nts; self.nts+=1; self.tsnames.append(name); assert k<16
        A=self.A
        A("s_waitcnt lgkmcnt(0)")
        A("s_memrealtime s[6:7]")
        A("s_waitcnt lgkmcnt(0)")
        A(f"s_mov_b32 s{86+k}, s6")
    def lab(self, p='L'):
        self.nlab += 1; return f"{p}_{self.nlab}"

    def prologue(self):
        A = self.A
        A(f"s_cmp_ge_u32 s{S_WG}, {NWG}")
        A("s_cbranch_scc1 L_end")
        if self.ts:
            A("s_memrealtime s[6:7]")
            A("s_waitcnt lgkmcnt(0)")
            A("s_mov_b32 s86, s6"); self.nts=1; self.tsnames.append('start')
        A(f"s_load_dwordx16 s[8:23], s[0:1], 0")
        A(f"s_load_dwordx8 s[24:31], s[0:1], 64")
        A(f"s_load_dwordx4 s[32:35], s[0:1], 96")
        A("s_getpc_b64 s[4:5]")
        A("L_pc:")
        A("v_lshlrev_b32 v1, 7, v0")
        A("v_min_u32 v1, (L_codeend-L_pc-4), v1")
        A("global_load_dword v255, v1, s[4:5]")
        A("v_lshrrev_b32 v2, 6, v0")
        A("v_and_b32 v1, 63, v0")
        A(f"v_readfirstlane_b32 s{S_W}, v2")
        A(f"s_lshr_b32 s{S_CH}, s{S_W}, 1")
        A(f"s_and_b32 s{S_NH}, s{S_W}, 1")
        A(f"s_and_b32 s{S_T0}, s{S_WG}, 7")
        A(f"s_mul_i32 s{S_T0}, s{S_T0}, 28")
        A(f"s_lshr_b32 s{S_T0+1}, s{S_WG}, 3")
        A(f"s_add_u32 s{S_T0}, s{S_T0}, s{S_T0+1}")
        A(f"s_lshl_b32 s{S_D0}, s{S_T0}, 1")
        A(f"s_mul_i32 s{S_T0+2}, s{S_T0+1}, 37")
        A(f"s_lshr_b32 s{S_T0+2}, s{S_T0+2}, 8")
        A(f"s_mul_i32 s{S_T0+3}, s{S_T0+2}, 7")
        A(f"s_sub_u32 s{S_T0+3}, s{S_T0+1}, s{S_T0+3}")
        A(f"s_and_b32 s{S_T0+4}, s{S_WG}, 7")
        A(f"s_lshr_b32 s{S_T0+5}, s{S_T0+4}, 1")
        A(f"s_lshl_b32 s{S_T0+5}, s{S_T0+5}, 2")
        A(f"s_add_u32 s{S_I}, s{S_T0+5}, s{S_T0+2}")
        A(f"s_and_b32 s{S_T0+4}, s{S_T0+4}, 1")
        A(f"s_mul_i32 s{S_T0+4}, s{S_T0+4}, 7")
        A(f"s_add_u32 s{S_J}, s{S_T0+4}, s{S_T0+3}")

def q7check():
    for q in range(28): assert (q*37)>>8 == q//7, q
q7check()

def add_method(f):
    setattr(Gen, f.__name__, f); return f

V_LANE=1
V_T=0
V_ZERO=2
V_XG=8
V_OFF=16
V_EP=27
V_PA=28
V_SX=36
V_TMP=48

@add_method
def phase0_loads(self):
    A=self.A
    A("s_waitcnt lgkmcnt(0)")
    A(f"s_mov_b32 s{SRD_X}, s{S_X}\ns_mov_b32 s{SRD_X+1}, s{S_X+1}\ns_mov_b32 s{SRD_X+2}, {L_*D_*2}\ns_mov_b32 s{SRD_X+3}, 0x20000")
    A(f"s_mov_b32 s{SRD_WS}, s{S_WS}\ns_mov_b32 s{SRD_WS+1}, s{S_WS+1}\ns_mov_b32 s{SRD_WS+2}, {WS_SIZE}\ns_mov_b32 s{SRD_WS+3}, 0x20000")
    A(f"v_mov_b32 v{V_ZERO}, 0")
    A(f"global_load_dword v{V_EP}, v{V_ZERO}, s[{S_WS}:{S_WS+1}] sc1")
    A(f"s_lshl_b32 s{S_T0}, s{S_WG}, 2")
    A(f"s_add_u32 s{S_T0}, s{S_T0}, s{S_W}")
    A(f"s_mul_i32 s{S_T0+1}, s{S_T0}, {2*896}")
    A(f"s_add_u32 s{S_T0+2}, s{S_T0}, 1792")
    A(f"s_mul_i32 s{S_T0+2}, s{S_T0+2}, 896")
    A(f"v_lshlrev_b32 v3, 4, v{V_LANE}")
    A(f"v_mov_b32 v4, 0x10000000")
    A(f"v_cmp_gt_u32 vcc, 56, v{V_LANE}")
    A(f"v_cndmask_b32 v3, v4, v3, vcc")
    A(f"buffer_load_dwordx4 v[{V_SX}:{V_SX+3}], v3, s[{SRD_X}:{SRD_X+3}], s{S_T0+1} offen")
    A(f"buffer_load_dwordx4 v[{V_SX+4}:{V_SX+7}], v3, s[{SRD_X}:{SRD_X+3}], s{S_T0+1} offen offset:896")
    A(f"buffer_load_dwordx4 v[{V_SX+8}:{V_SX+11}], v3, s[{SRD_X}:{SRD_X+3}], s{S_T0+2} offen")
    A(f"s_add_u32 s{S_T0+3}, s{S_D0}, s{S_CH}")
    A(f"s_lshl_b32 s{S_T0+3}, s{S_T0+3}, 9")
    A(f"s_lshl_b32 s{S_T0+4}, s{S_NH}, 8")
    A(f"s_add_u32 s{S_T0+3}, s{S_T0+3}, s{S_T0+4}")
    A(f"v_lshl_add_u32 v4, v{V_LANE}, 2, s{S_T0+3}")
    A(f"v_xor_b32 v5, 256, v4")
    A(f"global_load_dword v{V_PA}, v4, s[{S_LOGA}:{S_LOGA+1}]")
    A(f"global_load_dword v{V_PA+1}, v4, s[{S_AIM}:{S_AIM+1}]")
    A(f"global_load_dword v{V_PA+2}, v4, s[{S_CR}:{S_CR+1}]")
    A(f"global_load_dword v{V_PA+3}, v4, s[{S_CI}:{S_CI+1}]")
    A(f"global_load_dword v{V_PA+4}, v5, s[{S_CR}:{S_CR+1}]")
    A(f"global_load_dword v{V_PA+5}, v5, s[{S_CI}:{S_CI+1}]")
    A(f"s_lshl_b32 s{S_T0+4}, s{S_D0}, 1")
    A(f"s_load_dword s{S_DT}, s[{S_LOGDT}:{S_LOGDT+1}], s{S_T0+4}")
    A(f"s_load_dword s{S_DSKV}, s[{S_DSK}:{S_DSK+1}], s{S_T0+4}")
    A(f"s_movk_i32 s{S_T0+5}, 7168")
    A(f"v_mul_lo_u32 v4, v{V_T}, s{S_T0+5}")
    A(f"v_add_u32 v4, s{S_T0+4}, v4")
    A(f"s_movk_i32 s{S_T0+5}, 4480")
    for j in range(8):
        if j<5: A(f"buffer_load_dword v{V_XG+j}, v4, s[{SRD_X}:{SRD_X+3}], 0 offen offset:{j*896}")
        else:   A(f"buffer_load_dword v{V_XG+j}, v4, s[{SRD_X}:{SRD_X+3}], s{S_T0+5} offen offset:{(j-5)*896}")
    l=self.lab()
    A(f"s_cmp_lg_u32 s{S_WG}, 0")
    A(f"s_cbranch_scc1 {l}")
    A("v_mov_b32 v4, 0\nv_mov_b32 v5, 0\nv_mov_b32 v6, 0\nv_mov_b32 v7, 0")
    A(f"v_lshlrev_b32 v3, 4, v{V_T}")
    for k in range(4):
        A(f"s_mov_b32 s{S_T0+5}, {WS_CNT2+4096*k}")
        A(f"buffer_store_dwordx4 v[4:7], v3, s[{SRD_WS}:{SRD_WS+3}], s{S_T0+5} offen sc1")
    A(f"{l}:")
    for x in range(11):
        o=V_OFF+x
        A(f"v_lshlrev_b32 v48, 3, v{V_T}")
        A(f"v_sub_u32 v48, {2047-x}, v48")
        A(f"v_max_i32 v49, 0, v48")
        A(f"v_cvt_f32_u32 v49, v49")
        A(f"v_cvt_pk_bf16_f32 v49, v49, v49")
        A(f"v_lshlrev_b32 v49, 16, v49")
        A(f"v_cvt_u32_f32 v49, v49")
        A(f"v_lshrrev_b32 v50, 8, v49")
        A(f"v_and_b32 v51, 7, v49")
        A(f"v_lshrrev_b32 v52, 1, v51")
        A(f"v_add_u32 v52, 8, v52")
        A(f"v_lshrrev_b32 v53, 2, v51")
        A(f"v_lshl_add_u32 v53, v50, 1, v53")
        A(f"v_add_u32 v53, 8, v53")
        A(f"v_add_u32 v54, 12, v50")
        A(f"v_cmp_eq_u32 vcc, 1, v50")
        A(f"v_cndmask_b32 v51, v51, v52, vcc")
        A(f"v_cmp_lt_u32 vcc, 1, v50")
        A(f"v_cndmask_b32 v51, v51, v53, vcc")
        A(f"v_cmp_lt_u32 vcc, 3, v50")
        A(f"v_cndmask_b32 v51, v51, v54, vcc")
        A(f"v_cmp_gt_i32 vcc, 0, v48")
        A(f"v_mov_b32 v52, 24")
        A(f"v_cndmask_b32 v51, v51, v52, vcc")
        A(f"v_bfe_u32 v52, v49, 3, 5")
        A(f"v_lshlrev_b32 v52, 1, v52")
        A(f"v_lshl_add_u32 v{o}, v51, 6, v52")

def bf16_lo(dst, src): return f"v_lshlrev_b32 v{dst}, 16, v{src}"
def bf16_hi(dst, src): return f"v_and_b32 v{dst}, 0xffff0000, v{src}"

@add_method
def stats1(self):
    A=self.A
    A(f"s_cmp_lg_u32 s{S_WG}, 0")
    l1=self.lab(); l2=self.lab()
    A(f"s_cbranch_scc1 {l1}")
    A("s_waitcnt vmcnt(0)")
    A(f"s_branch {l2}")
    A(f"{l1}:")
    A("s_waitcnt vmcnt(14)")
    A(f"{l2}:")
    F=48
    for r in range(3):
        for k in range(4):
            A(bf16_lo(F+8*r+2*k, V_SX+4*r+k)); A(bf16_hi(F+8*r+2*k+1, V_SX+4*r+k))
    S=72
    for r in range(3):
        b=F+8*r
        A(f"v_pk_add_f32 v[{S+2*r}:{S+2*r+1}], v[{b}:{b+1}], v[{b+2}:{b+3}]")
    for r in range(3):
        b=F+8*r
        A(f"v_pk_add_f32 v[78:79], v[{b+4}:{b+5}], v[{b+6}:{b+7}]")
        A(f"v_pk_add_f32 v[{S+2*r}:{S+2*r+1}], v[{S+2*r}:{S+2*r+1}], v[78:79]")
    for r in range(3):
        A(f"v_add_f32 v{S+2*r}, v{S+2*r}, v{S+2*r+1}")
    def dpp_reduce(regs, op="v_add_f32"):
        for mode in ["row_shr:1 row_mask:0xf bank_mask:0xf bound_ctrl:0","row_shr:2 row_mask:0xf bank_mask:0xf bound_ctrl:0",
                     "row_shr:4 row_mask:0xf bank_mask:0xf bound_ctrl:0","row_shr:8 row_mask:0xf bank_mask:0xf bound_ctrl:0",
                     "row_bcast:15 row_mask:0xa bank_mask:0xf","row_bcast:31 row_mask:0xc bank_mask:0xf"]:
            for rg in regs: A(f"{op}_dpp v{rg}, v{rg}, v{rg} {mode}")
    dpp_reduce([S,S+2,S+4])
    for r in range(3): A(f"v_readlane_b32 s{S_T0+6+r}, v{S+2*r}, 63")
    for r in range(3):
        A(f"v_mov_b32 v{S+2*r}, s{S_T0+6+r}")
        A(f"v_mul_f32 v{S+2*r}, {fl(1.0/448)}, v{S+2*r}")
    Q=80
    for r in range(3): A(f"v_mov_b32 v{Q+2*r}, 0\nv_mov_b32 v{Q+2*r+1}, 0")
    A("s_mov_b32 exec_hi, 0x00ffffff")
    for r in range(3):
        b=F+8*r
        for k in range(4):
            A(f"v_pk_add_f32 v[{b+2*k}:{b+2*k+1}], v[{b+2*k}:{b+2*k+1}], v[{S+2*r}:{S+2*r+1}] op_sel_hi:[1,0] neg_lo:[0,1] neg_hi:[0,1]")
    for k in range(4):
        for r in range(3):
            b=F+8*r
            A(f"v_pk_fma_f32 v[{Q+2*r}:{Q+2*r+1}], v[{b+2*k}:{b+2*k+1}], v[{b+2*k}:{b+2*k+1}], v[{Q+2*r}:{Q+2*r+1}]")
    A("s_mov_b32 exec_hi, -1")
    for r in range(3): A(f"v_add_f32 v{Q+2*r}, v{Q+2*r}, v{Q+2*r+1}")
    dpp_reduce([Q,Q+2,Q+4])
    for r in range(3): A(f"v_readlane_b32 s{S_T0+6+r}, v{Q+2*r}, 63")
    for r in range(3):
        q=Q+2*r
        A(f"v_mov_b32 v{q}, s{S_T0+6+r}")
        A(f"v_mul_f32 v{q}, {fl(1.0/448)}, v{q}")
        A(f"v_cvt_pk_bf16_f32 v{q}, v{q}, v{q}")
        A(f"v_lshlrev_b32 v{q}, 16, v{q}")
        A(f"v_add_f32 v{q}, {fl(1e-5)}, v{q}")
        A(f"v_cvt_pk_bf16_f32 v{q}, v{q}, v{q}")
        A(f"v_lshlrev_b32 v{q}, 16, v{q}")
        A(f"v_sqrt_f32 v{q}, v{q}")
    A(f"v_readfirstlane_b32 s{S_TAG}, v{V_EP}")
    A(f"s_add_u32 s{S_TAG}, s{S_TAG}, 0x9E3779B9")
    G=88
    A(f"v_cvt_pk_bf16_f32 v{G}, v{Q}, v{S}")
    A(f"v_mov_b32 v{G+1}, s{S_TAG}")
    A(f"v_cvt_pk_bf16_f32 v{G+2}, v{Q+2}, v{S+2}")
    A(f"v_mov_b32 v{G+3}, s{S_TAG}")
    A(f"v_cvt_pk_bf16_f32 v{G+4}, v{Q+4}, v{S+4}")
    A(f"v_mov_b32 v{G+5}, s{S_TAG}")
    A(f"s_lshl_b32 s{S_T0+1}, s{S_T0}, 4")
    A(f"s_add_u32 s{S_T0+1}, s{S_T0+1}, {WS_STATS}")
    A(f"s_lshl_b32 s{S_T0+2}, s{S_T0}, 3")
    A(f"s_add_u32 s{S_T0+2}, s{S_T0+2}, {WS_STATS+1792*8}")
    A("s_mov_b64 exec, 1")
    A(f"buffer_store_dwordx4 v[{G}:{G+3}], v{V_ZERO}, s[{SRD_WS}:{SRD_WS+3}], s{S_T0+1} offen sc1")
    l=self.lab()
    A(f"s_cmp_ge_u32 s{S_T0}, 256")
    A(f"s_cbranch_scc1 {l}")
    A(f"buffer_store_dwordx2 v[{G+4}:{G+5}], v{V_ZERO}, s[{SRD_WS}:{SRD_WS+3}], s{S_T0+2} offen sc1")
    A(f"{l}:")
    A("s_mov_b64 exec, -1")

def cmul(A, R, P, Z, T):
    A(f"v_pk_mul_f32 v[{T}:{T+1}], v[{P}:{P+1}], v[{Z}:{Z+1}] op_sel_hi:[0,1]")
    A(f"v_pk_fma_f32 v[{R}:{R+1}], v[{P}:{P+1}], v[{Z}:{Z+1}], v[{T}:{T+1}] op_sel:[1,1,0] op_sel_hi:[1,0,1] neg_lo:[1,0,0]")

ROWS=[0,1,2,3,4,5,6,7,256,258,260,262,512,516,768,772,1024,1280,1536,1792,2048]

@add_method
def kgen(self):
    A=self.A
    A("s_waitcnt vmcnt(9) lgkmcnt(0)")
    A(f"s_lshl_b32 s{S_T0}, s{S_CH}, 4")
    A(f"s_lshr_b32 s{S_DT}, s{S_DT}, s{S_T0}")
    A(f"s_lshl_b32 s{S_DT}, s{S_DT}, 16")
    A(f"s_lshr_b32 s{S_DSKV}, s{S_DSKV}, s{S_T0}")
    A(f"s_lshl_b32 s{S_DSKV}, s{S_DSKV}, 16")
    DT=48
    A(f"v_mov_b32 v{DT}, s{S_DT}")
    A(f"v_mul_f32 v{DT}, {fl(LOG2E)}, v{DT}")
    A(f"v_exp_f32 v{DT}, v{DT}")
    A(f"v_cvt_pk_bf16_f32 v{DT}, v{DT}, v{DT}")
    A(f"v_lshlrev_b32 v{DT}, 16, v{DT}")
    A(f"v_and_b32 v50, 0x7fff7fff, v{V_PA+2}")
    A(f"v_and_b32 v51, 0x7fff7fff, v{V_PA+3}")
    A(f"v_and_b32 v52, 0x7fff7fff, v{V_PA+4}")
    A(f"v_and_b32 v53, 0x7fff7fff, v{V_PA+5}")
    A("v_pk_max_u16 v50, v50, v51")
    A("v_pk_max_u16 v52, v52, v53")
    A("v_pk_max_u16 v50, v50, v52")
    A("v_lshrrev_b32 v51, 16, v50")
    A("v_and_b32 v50, 0xffff, v50")
    A("v_max_u32 v50, v50, v51")
    for mode in ["row_shr:1 row_mask:0xf bank_mask:0xf bound_ctrl:0","row_shr:2 row_mask:0xf bank_mask:0xf bound_ctrl:0",
                 "row_shr:4 row_mask:0xf bank_mask:0xf bound_ctrl:0","row_shr:8 row_mask:0xf bank_mask:0xf bound_ctrl:0",
                 "row_bcast:15 row_mask:0xa bank_mask:0xf","row_bcast:31 row_mask:0xc bank_mask:0xf"]:
        A(f"v_max_u32_dpp v50, v50, v50 {mode}")
    A(f"v_readlane_b32 s{S_T0}, v50, 63")
    A(f"s_lshr_b32 s{S_T0}, s{S_T0}, 7")
    A(f"s_max_u32 s{S_T0}, s{S_T0}, 1")
    A(f"s_min_u32 s{S_T0}, s{S_T0}, 253")
    A(f"s_sub_u32 s{S_T0+1}, 254, s{S_T0}")
    A(f"s_lshl_b32 s{S_T0+1}, s{S_T0+1}, 23")
    A(f"s_lshl_b32 s{S_T0}, s{S_T0}, 23")
    A(f"v_add_f32 v49, v{DT}, v{DT}")
    A(f"v_mul_f32 v49, s{S_T0}, v49")
    A(f"v_readfirstlane_b32 s{S_YS}, v49")
    AR=[50,51]; TH=[52,53]
    base=[56,80]
    def reg(e,name):
        names=['C','Z1','Z2','Z4','Z8','Z256','P','Q','R','T','X0','X1']
        return base[e]+2*names.index(name)
    for e in range(2):
        un = bf16_lo if e==0 else bf16_hi
        A(un(AR[e], V_PA)); A(un(TH[e], V_PA+1))
        A(un(reg(e,'C'), V_PA+2)); A(un(reg(e,'C')+1, V_PA+3))
    for e in range(2):
        A(f"v_mul_f32 v{AR[e]}, {fl(LOG2E)}, v{AR[e]}")
    for e in range(2): A(f"v_exp_f32 v{AR[e]}, v{AR[e]}")
    for e in range(2):
        A(f"v_cvt_pk_bf16_f32 v{AR[e]}, v{AR[e]}, v{AR[e]}")
    for e in range(2):
        A(f"v_lshlrev_b32 v{AR[e]}, 16, v{AR[e]}")
    for e in range(2):
        A(f"v_mul_f32 v{AR[e]}, v{AR[e]}, v{DT}")
        A(f"v_mul_f32 v{TH[e]}, v{TH[e]}, v{DT}")
    for e in range(2):
        A(f"v_mul_f32 v{AR[e]}, {fl(-LOG2E)}, v{AR[e]}")
        A(f"v_mul_f32 v{TH[e]}, {fl(INV2PI)}, v{TH[e]}")
        c=reg(e,'C')
        A(f"v_mul_f32 v{c}, s{S_T0+1}, v{c}")
        A(f"v_mul_f32 v{c+1}, s{S_T0+1}, v{c+1}")
    for name,p in (('Z1',1.0),('Z8',8.0),('Z256',256.0)):
        for e in range(2):
            z=reg(e,name); x0=reg(e,'X0'); x1=reg(e,'X1')
            if p==1.0:
                A(f"v_exp_f32 v{x0}, v{AR[e]}")
                A(f"v_fract_f32 v{x0+1}, v{TH[e]}")
            else:
                A(f"v_mul_f32 v{x0}, {fl(p)}, v{AR[e]}")
                A(f"v_mul_f32 v{x0+1}, {fl(p)}, v{TH[e]}")
                A(f"v_exp_f32 v{x0}, v{x0}")
                A(f"v_fract_f32 v{x0+1}, v{x0+1}")
            A(f"v_cos_f32 v{x1}, v{x0+1}")
            A(f"v_sin_f32 v{x1+1}, v{x0+1}")
        for e in range(2):
            z=reg(e,name); x0=reg(e,'X0'); x1=reg(e,'X1')
            A(f"v_pk_mul_f32 v[{z}:{z+1}], v[{x1}:{x1+1}], v[{x0}:{x0+1}] op_sel_hi:[1,0]")
    for e in range(2): cmul(A, reg(e,'Z2'), reg(e,'Z1'), reg(e,'Z1'), reg(e,'T'))
    for e in range(2): cmul(A, reg(e,'Z4'), reg(e,'Z2'), reg(e,'Z2'), reg(e,'T'))
    VA=104
    A(f"s_mul_i32 s{S_T0+2}, s{S_W}, {KG_WAVE}")
    A(f"v_lshl_add_u32 v{VA}, v{V_LANE}, 3, s{S_T0+2}")
    OUT=[106,108,110,112]; oi=[0]
    def emit(idx, name, neg):
        o=OUT[oi[0]%4]; oi[0]+=1
        for e in range(2):
            r=reg(e,name)
            A(f"v_cvt_pk_f16_f32 v{o+e}, v{r}, {'-' if neg else ''}v{r+1}")
        A(f"ds_write_b64 v{VA}, v[{o}:{o+1}] offset:{idx*KG_PITCH}")
    def step(dst, src, z):
        for e in range(2):
            A(f"v_pk_mul_f32 v[{reg(e,'T')}:{reg(e,'T')+1}], v[{reg(e,src)}:{reg(e,src)+1}], v[{reg(e,z)}:{reg(e,z)+1}] op_sel_hi:[0,1]")
        for e in range(2):
            A(f"v_pk_fma_f32 v[{reg(e,dst)}:{reg(e,dst)+1}], v[{reg(e,src)}:{reg(e,src)+1}], v[{reg(e,z)}:{reg(e,z)+1}], v[{reg(e,'T')}:{reg(e,'T')+1}] op_sel:[1,1,0] op_sel_hi:[1,0,1] neg_lo:[1,0,0]")
    emit(0,'C',True)
    step('P','C','Z1'); emit(1,'P',True)
    for r in range(2,8): step('P','P','Z1'); emit(r,'P',True)
    step('Q','C','Z256'); emit(8,'Q',True)
    step('R','Q','Z2'); emit(9,'R',True)
    step('R','R','Z2'); emit(10,'R',True)
    step('R','R','Z2'); emit(11,'R',True)
    step('Q','Q','Z256'); emit(12,'Q',True)
    step('R','Q','Z4'); emit(13,'R',True)
    step('Q','Q','Z256'); emit(14,'Q',True)
    step('R','Q','Z4'); emit(15,'R',True)
    for r in range(16,21): step('Q','Q','Z256'); emit(r,'Q',True)
    o=OUT[oi[0]%4]; oi[0]+=1
    A(f"v_mov_b32 v{o}, 0x3c00\nv_mov_b32 v{o+1}, 0x3c00")
    A(f"ds_write_b64 v{VA}, v[{o}:{o+1}] offset:{21*KG_PITCH}")
    emit(22,'Z8',False)
    step('P','Z8','Z8'); emit(23,'P',False)
    for b in range(3,32): step('P','P','Z8'); emit(21+b,'P',False)
    VAa=104; VAb=105
    A(f"v_and_b32 v48, 31, v{V_LANE}")
    A(f"v_min_u32 v49, 20, v48")
    A(f"v_lshrrev_b32 v50, 5, v{V_LANE}")
    A(f"v_lshlrev_b32 v50, 4, v50")
    A(f"v_add_u32 v50, s{S_T0+2}, v50")
    A(f"s_movk_i32 s{S_T0+3}, {KG_PITCH}")
    A(f"v_mad_u32_u24 v{VAa}, v49, s{S_T0+3}, v50")
    A(f"v_mad_u32_u24 v{VAb}, v48, s{S_T0+3}, v50")
    ACC=112
    FR=[64,72,80,88]
    def ld(ks):
        f=FR[ks%4]
        A(f"ds_read_b128 v[{f}:{f+3}], v{VAa} offset:{ks*32}")
        A(f"ds_read_b128 v[{f+4}:{f+7}], v{VAb} offset:{21*KG_PITCH+ks*32}")
    for ks in range(3): ld(ks)
    for ks in range(16):
        if ks+3<16: ld(ks+3)
        nxt=min(15,ks+3)-ks
        A(f"s_waitcnt lgkmcnt({2*nxt})")
        f=FR[ks%4]
        c = "0" if ks==0 else f"v[{ACC}:{ACC+15}]"
        A(f"v_mfma_f32_32x32x16_f16 v[{ACC}:{ACC+15}], v[{f}:{f+3}], v[{f+4}:{f+7}], {c}")
    l1=self.lab(); l2=self.lab()
    A(f"v_lshl_add_u32 v48, v{V_LANE}, 4, s{S_T0+2}")
    A(f"s_cmp_eq_u32 s{S_NH}, 0")
    A(f"s_cbranch_scc1 {l1}")
    for q in range(3): A(f"ds_write_b128 v48, v[{ACC+4*q}:{ACC+4*q+3}] offset:{q*1024}")
    A(f"{l1}:")
    A("s_waitcnt lgkmcnt(0)")
    A("s_barrier")
    A(f"s_cmp_eq_u32 s{S_NH}, 0")
    A(f"s_cbranch_scc0 {l2}")
    for q in range(3): A(f"ds_read_b128 v[{64+4*q}:{64+4*q+3}], v48 offset:{KG_WAVE+q*1024}")
    A(f"v_and_b32 v49, 31, v{V_LANE}")
    A(f"v_lshlrev_b32 v49, 1, v49")
    A(f"v_lshrrev_b32 v50, 5, v{V_LANE}")
    A(f"v_lshl_add_u32 v49, v50, 8, v49")
    A(f"v_add_u32 v49, s{S_T0+2}, v49")
    A("s_waitcnt lgkmcnt(0)")
    for r in range(12):
        A(f"v_add_f32 v{64+r}, v{64+r}, v{ACC+r}")
    for r in range(12):
        A(f"v_cvt_f16_f32 v{64+r}, v{64+r}")
    for r in range(12):
        row=(r&3)+8*(r>>2)
        A(f"ds_write_b16 v49, v{64+r} offset:{row*64}")
    A(f"v_mov_b32 v50, 0")
    A(f"v_lshl_add_u32 v51, v{V_LANE}, 1, s{S_T0+2}")
    A(f"ds_write_b16 v51, v50 offset:{24*64}")
    A(f"{l2}:")
    A("s_waitcnt lgkmcnt(0)")
    A("s_barrier")

@add_method
def kexpand(self):
    A=self.A
    D0=64
    def rd(ch,x):
        tb=(2*ch)*KG_WAVE; d=D0+ch*28
        A(f"ds_read_u16 v{d+x}, v{V_OFF+x} offset:{tb}")
    def mk(ch):
        d=D0+ch*28
        for c in range(4):
            for x in range(4):
                A(f"v_lshl_or_b32 v{d+12+4*c+x}, v{d+c+2*x+1}, 16, v{d+c+2*x}")
    def wr(ch):
        d=D0+ch*28
        for c in range(4):
            r=d+12+4*c
            A(f"ds_write_b128 v49, v[{r}:{r+3}] offset:{ch*KX_CH+c*KX_COPY}")
    for x in range(11): rd(0,x)
    for x in range(4): rd(1,x)
    A(f"v_lshlrev_b32 v49, 4, v{V_T}")
    A(f"v_add_u32 v49, {LDS_KX}, v49")
    A("s_waitcnt lgkmcnt(4)")
    mk(0)
    for x in range(4,11): rd(1,x)
    wr(0)
    A("s_waitcnt lgkmcnt(4)")
    mk(1)
    wr(1)
    A("v_mov_b32 v64, 0\nv_mov_b32 v65, 0\nv_mov_b32 v66, 0\nv_mov_b32 v67, 0")
    l=self.lab()
    A(f"s_cmp_lg_u32 s{S_W}, 0")
    A(f"s_cbranch_scc1 {l}")
    A(f"v_and_b32 v50, 31, v{V_LANE}")
    A(f"v_lshlrev_b32 v50, 4, v50")
    A(f"v_lshrrev_b32 v51, 5, v{V_LANE}")
    A(f"v_mul_u32_u24 v51, {U_CH}, v51")
    A(f"v_add_u32 v50, v50, v51")
    A(f"v_add_u32 v50, {LDS_U}, v50")
    A(f"ds_write_b128 v50, v[64:67]")
    A(f"v_lshrrev_b32 v50, 1, v{V_LANE}")
    A(f"v_and_b32 v50, 7, v50")
    A(f"v_mul_u32_u24 v50, {KX_COPY}, v50")
    A(f"v_and_b32 v51, 1, v{V_LANE}")
    A(f"v_lshl_add_u32 v50, v51, 4, v50")
    A(f"v_add_u32 v50, {LDS_KX+4096}, v50")
    A(f"ds_write_b128 v50, v[64:67]")
    A(f"{l}:")

S_GB=64
S_KSTR=68
@add_method
def stage_w(self, kind):
    A=self.A
    RING=24576
    if kind=='w1':
        stride=3584
        A(f"s_mov_b32 s{SRD_W}, s{S_WGT}\ns_mov_b32 s{SRD_W+1}, s{S_WGT+1}\ns_mov_b32 s{SRD_W+2}, {D_*F_*2}\ns_mov_b32 s{SRD_W+3}, 0x20000")
        A(f"s_mov_b32 s{SRD_W2}, s{S_WUP}\ns_mov_b32 s{SRD_W2+1}, s{S_WUP+1}\ns_mov_b32 s{SRD_W2+2}, {D_*F_*2}\ns_mov_b32 s{SRD_W2+3}, 0x20000")
        A(f"s_lshl_b32 s{S_T0}, s{S_J}, 8")
        A(f"s_lshl_b32 s{S_T0+1}, s{S_W}, 6")
        A(f"s_add_u32 s{S_T0}, s{S_T0}, s{S_T0+1}")
        for g in range(4):
            A(f"s_add_u32 s{S_T0+1}, s{S_W}, {g}")
            A(f"s_and_b32 s{S_T0+1}, s{S_T0+1}, 3")
            A(f"s_mul_i32 s{S_T0+1}, s{S_T0+1}, {7*16*stride}")
            A(f"s_add_u32 s{S_GB+g}, s{S_T0+1}, s{S_T0}")
        tileoff2=0
    else:
        stride=896
        A(f"s_mov_b32 s{SRD_W}, s{S_WD}\ns_mov_b32 s{SRD_W+1}, s{S_WD+1}\ns_mov_b32 s{SRD_W+2}, {D_*F_*2}\ns_mov_b32 s{SRD_W+3}, 0x20000")
        A(f"s_mov_b32 s{SRD_W2}, s{S_WD}\ns_mov_b32 s{SRD_W2+1}, s{S_WD+1}\ns_mov_b32 s{SRD_W2+2}, {D_*F_*2}\ns_mov_b32 s{SRD_W2+3}, 0x20000")
        A(f"s_cmp_ge_u32 s{S_J}, 7")
        A(f"s_cselect_b32 s{S_T0}, 7, 0")
        A(f"s_sub_u32 s{S_T0}, s{S_J}, s{S_T0}")
        A(f"s_lshl_b32 s{S_T0}, s{S_T0}, 7")
        A(f"s_mul_i32 s{S_T0+1}, s{S_W}, {448*stride}")
        A(f"s_add_u32 s{S_T0}, s{S_T0}, s{S_T0+1}")
        for g in range(4):
            A(f"s_add_u32 s{S_GB+g}, s{S_T0}, {g*7*16*stride}")
        tileoff2=64
    kstr=16*stride
    A(f"v_lshrrev_b32 v48, 2, v{V_LANE}")
    A(f"v_mul_u32_u24 v48, {stride}, v48")
    A(f"v_and_b32 v49, 3, v{V_LANE}")
    A(f"v_lshl_add_u32 v48, v49, 4, v48")
    if kind=='w1':
        A(f"v_mov_b32 v52, v48")
    else:
        A(f"s_lshl_b32 s{S_T0+1}, s{S_NH}, 6")
        A(f"s_xor_b32 s{S_T0+3}, s{S_T0+1}, 64")
        A(f"v_add_u32 v52, s{S_T0+3}, v48")
        A(f"v_add_u32 v48, s{S_T0+1}, v48")
    A(f"s_mul_i32 s{S_T0+2}, s{S_W}, {RING}")
    A(f"v_lshrrev_b32 v50, 5, v{V_LANE}")
    A(f"v_lshlrev_b32 v50, {9 if kind=='w1' else 8}, v50")
    A(f"v_bfe_u32 v51, v{V_LANE}, 2, 2")
    A(f"v_lshl_add_u32 v50, v51, 6, v50")
    A(f"v_bfe_u32 v51, v{V_LANE}, 4, 1")
    A(f"v_lshl_add_u32 v50, v51, 5, v50")
    A(f"v_and_b32 v51, 3, v{V_LANE}")
    A(f"v_lshl_add_u32 v50, v51, 3, v50")
    A(f"v_add_u32 v50, s{S_T0+2}, v50")
    second = 256 if kind=='w1' else 512
    def issue(c):
        slot=c%3
        for i in range(4):
            s=4*c+i; g=s//7; r=s%7
            A(f"s_add_u32 s{S_T0+3}, s{S_GB+g}, {r*kstr}")
            A(f"s_add_u32 m0, s{S_T0+2}, {slot*8192+i*2048}")
            A(f"buffer_load_dwordx4 v48, s[{SRD_W}:{SRD_W+3}], s{S_T0+3} offen lds")
            A(f"s_add_u32 m0, s{S_T0+2}, {slot*8192+i*2048+1024}")
            A(f"buffer_load_dwordx4 v52, s[{SRD_W2}:{SRD_W2+3}], s{S_T0+3} offen lds")
    for c in range(3): issue(c)
    for c in range(7):
        A(f"s_waitcnt vmcnt({8*min(2,6-c)})")
        slot=c%3
        for i in range(4):
            s=4*c+i
            for tile in range(2):
                a=8*s+4*tile; off=slot*8192+i*2048+tile*1024
                A(f"ds_read_b64_tr_b16 a[{a}:{a+1}], v50 offset:{off}")
                A(f"ds_read_b64_tr_b16 a[{a+2}:{a+3}], v50 offset:{off+second}")
            if i==1: A("s_waitcnt lgkmcnt(4)")
        if c+3<7:
            A("s_waitcnt lgkmcnt(0)")
            issue(c+3)
    A("s_waitcnt lgkmcnt(0)")

@add_method
def stats_consume(self):
    A=self.A
    SG=64
    A(f"v_lshlrev_b32 v48, 6, v{V_T}")
    A(f"s_mov_b32 s{S_T0}, {WS_STATS}")
    A(f"s_mov_b32 s{S_T0+1}, 0")
    lp=self.lab('Lpoll'); le=self.lab()
    A(f"{lp}:")
    for k in range(4):
        A(f"buffer_load_dwordx4 v[{SG+4*k}:{SG+4*k+3}], v48, s[{SRD_WS}:{SRD_WS+3}], s{S_T0} offen offset:{16*k} sc1")
    A("s_waitcnt vmcnt(0)")
    A(f"v_xor_b32 v49, s{S_TAG}, v{SG+1}")
    for k in range(1,8):
        A(f"v_xor_b32 v50, s{S_TAG}, v{SG+2*k+1}")
        A(f"v_or_b32 v49, v49, v50")
    A("v_cmp_ne_u32 vcc, 0, v49")
    A(f"s_add_u32 s{S_T0+1}, s{S_T0+1}, 1")
    A(f"s_cbranch_vccz {le}")
    A(f"s_cmp_lt_u32 s{S_T0+1}, 0x8000")
    A(f"s_cbranch_scc1 {lp}")
    A(f"{le}:")
    for j in range(8):
        A(f"v_lshlrev_b32 v{80+j}, 16, v{SG+2*j}")
        A(f"v_and_b32 v{88+j}, 0xffff0000, v{SG+2*j}")
    for j in range(8): A(f"v_rcp_f32 v{80+j}, v{80+j}")
    A(f"s_mov_b32 s{S_T0+2}, 0x05040100")
    A(f"s_mov_b32 s{S_T0+3}, 0x07060302")
    for ch in range(2):
        X=96+ch*8
        for j in range(8):
            A((bf16_lo if ch==0 else bf16_hi)(X+j, V_XG+j))
        for j in range(0,8,2):
            A(f"v_pk_add_f32 v[{X+j}:{X+j+1}], v[{X+j}:{X+j+1}], v[{88+j}:{88+j+1}] neg_lo:[0,1] neg_hi:[0,1]")
        if self.mimic>=2:
            for j in range(0,8,2):
                A(f"v_cvt_pk_bf16_f32 v{112+j//2}, v{X+j}, v{X+j+1}")
            for j in range(0,8,2):
                A(bf16_lo(X+j,112+j//2)); A(bf16_hi(X+j+1,112+j//2))
        for j in range(0,8,2):
            A(f"v_pk_mul_f32 v[{X+j}:{X+j+1}], v[{X+j}:{X+j+1}], v[{80+j}:{80+j+1}]")
        if self.mimic>=1:
            for j in range(0,8,2):
                A(f"v_cvt_pk_bf16_f32 v{112+j//2}, v{X+j}, v{X+j+1}")
            for j in range(0,8,2):
                A(bf16_lo(X+j,112+j//2)); A(bf16_hi(X+j+1,112+j//2))
        U=116+ch*4
        for j in range(0,8,2):
            A(f"v_cvt_pk_f16_f32 v{U+j//2}, v{X+j}, v{X+j+1}")
        XT=124+ch*4
        for j in range(0,8,2):
            A(f"v_perm_b32 v{XT+j//2}, v{V_XG+j+1}, v{V_XG+j}, s{S_T0+2+ch}")
    A(f"v_lshlrev_b32 v48, 4, v{V_T}")
    A(f"v_add_u32 v49, {LDS_U+512}, v48")
    A(f"v_add_u32 v50, {LDS_XT}, v48")
    A(f"ds_write_b128 v49, v[116:119]")
    A(f"ds_write_b128 v49, v[120:123] offset:{U_CH}")
    A(f"ds_write_b128 v50, v[124:127]")
    A(f"ds_write_b128 v50, v[128:131] offset:{XT_CH}")
    A("s_waitcnt lgkmcnt(0)")
    A("s_barrier")

C_ACC=64
C_F=[96,160]
C_G=[128,192]
C_VF=48; C_VG=49
C_EU=224; C_EX=232
@add_method
def conv(self):
    A=self.A
    A(f"v_and_b32 v50, 15, v{V_LANE}")
    A(f"v_lshrrev_b32 v51, 4, v{V_LANE}")
    A(f"v_sub_u32 v52, 3, v50")
    A(f"v_and_b32 v52, 3, v52")
    A(f"v_mul_u32_u24 v52, {KX_COPY}, v52")
    A(f"v_lshrrev_b32 v53, 2, v50")
    A(f"v_lshlrev_b32 v53, 3, v53")
    A(f"v_sub_u32 v52, v52, v53")
    A(f"v_lshl_add_u32 v52, v51, 4, v52")
    A(f"s_mul_i32 s{S_T0}, s{S_CH}, {KX_CH}")
    A(f"s_lshl_b32 s{S_T0+1}, s{S_NH}, 8")
    A(f"s_sub_u32 s{S_T0}, s{S_T0}, s{S_T0+1}")
    A(f"s_add_u32 s{S_T0}, s{S_T0}, {LDS_KX+2*2028-64*63}")
    A(f"v_add_u32 v{C_VF}, s{S_T0}, v52")
    A(f"v_lshlrev_b32 v52, 5, v50")
    A(f"v_lshl_add_u32 v52, v51, 4, v52")
    A(f"s_mul_i32 s{S_T0}, s{S_CH}, {U_CH}")
    A(f"s_sub_u32 s{S_T0}, s{S_T0}, s{S_T0+1}")
    A(f"s_add_u32 s{S_T0}, s{S_T0}, {LDS_U+480-192}")
    A(f"v_add_u32 v{C_VG}, s{S_T0}, v52")
    def loads(sp):
        st=sp&1; out=[]
        for k in range(8):
            g=C_G[st]+4*k; f=C_F[st]+4*k
            out.append(f"ds_read_b128 v[{g}:{g+3}], v{C_VG} offset:{512*k+64*(3-sp)}")
            o=64*(63-8*k-sp)
            out.append(f"ds_read_b64 v[{f}:{f+1}], v{C_VF} offset:{o}")
            out.append(f"ds_read_b64 v[{f+2}:{f+3}], v{C_VF} offset:{o+8}")
        return out
    def mfmas(sp):
        st=sp&1; out=[]
        for t in range(8):
            for d in range(t+1):
                acc=C_ACC+4*t
                c = "0" if (sp==0 and d==0) else f"v[{acc}:{acc+3}]"
                out.append((t,d,f"v_mfma_f32_16x16x32_f16 v[{acc}:{acc+3}], v[{C_F[st]+4*d}:{C_F[st]+4*d+3}], v[{C_G[st]+4*(t-d)}:{C_G[st]+4*(t-d)+3}], {c}"))
        return out
    l0=loads(0)
    A(f"v_lshlrev_b32 v52, 5, v50")
    A(f"v_lshl_add_u32 v52, v51, 3, v52")
    A(f"s_lshl_b32 s{S_T0}, s{S_NH}, 11")
    A(f"s_mul_i32 s{S_T0+1}, s{S_CH}, {U_CH}")
    A(f"s_add_u32 s{S_T0+1}, s{S_T0+1}, s{S_T0}")
    A(f"s_add_u32 s{S_T0+1}, s{S_T0+1}, {LDS_U+512}")
    A(f"v_add_u32 v53, s{S_T0+1}, v52")
    A(f"s_mul_i32 s{S_T0+1}, s{S_CH}, {XT_CH}")
    A(f"s_add_u32 s{S_T0+1}, s{S_T0+1}, s{S_T0}")
    A(f"s_add_u32 s{S_T0+1}, s{S_T0+1}, {LDS_XT}")
    A(f"v_add_u32 v54, s{S_T0+1}, v52")
    for k in range(5):
        for x in l0[3*k:3*k+3]: A(x)
    issued=5
    nxt=loads(1); ni=0
    cur_t=-1
    for (t,d,txt) in mfmas(0):
        first = (t!=cur_t)
        if first:
            cur_t=t
            if t<=3: A(f"s_waitcnt lgkmcnt({3*(issued-1-t)})")
            elif t==4: A("s_waitcnt lgkmcnt(0)")
        A(txt)
        if first and issued<8:
            for x in l0[3*issued:3*issued+3]: A(x)
            issued+=1
        elif t>=4 and ni<len(nxt):
            A(nxt[ni]); ni+=1
    assert ni==len(nxt)
    epi=[]
    for tt in range(4):
        epi.append(f"ds_read_b64 v[{C_EU+2*tt}:{C_EU+2*tt+1}], v53 offset:{512*tt}")
        epi.append(f"ds_read_b64 v[{C_EX+2*tt}:{C_EX+2*tt+1}], v54 offset:{512*tt}")
    for sp in range(1,4):
        A("s_waitcnt lgkmcnt(0)")
        nxt = loads(sp+1) if sp<3 else epi
        ni=0
        for (t,d,txt) in mfmas(sp):
            A(txt)
            if ni<len(nxt): A(nxt[ni]); ni+=1
    l=self.lab()
    A(f"s_cmp_eq_u32 s{S_NH}, 0")
    A(f"s_cbranch_scc1 {l}")
    A("s_nop 7")
    for r in range(16): A(f"v_swap_b32 v{C_ACC+r}, v{C_ACC+16+r}")
    A(f"{l}:")
    A("s_nop 7")
    A(f"s_lshl_b32 s{S_T0}, s{S_W}, 12")
    A(f"v_lshl_add_u32 v55, v{V_LANE}, 4, s{S_T0}")
    for tt in range(4): A(f"ds_write_b128 v55, v[{C_ACC+16+4*tt}:{C_ACC+16+4*tt+3}] offset:{1024*tt}")
    A("v_xor_b32 v55, 4096, v55")
    A("s_waitcnt lgkmcnt(0)")
    A("s_barrier")
    for tt in range(4): A(f"ds_read_b128 v[{96+4*tt}:{96+4*tt+3}], v55 offset:{1024*tt}")
    U=112; X=128; Y=C_ACC
    for tt in range(4):
        for h in range(2):
            A(f"v_cvt_f32_f16 v{U+4*tt+2*h}, v{C_EU+2*tt+h}")
            A(f"v_cvt_f32_f16_sdwa v{U+4*tt+2*h+1}, v{C_EU+2*tt+h} dst_sel:DWORD dst_unused:UNUSED_PAD src0_sel:WORD_1")
            A(bf16_lo(X+4*tt+2*h, C_EX+2*tt+h)); A(bf16_hi(X+4*tt+2*h+1, C_EX+2*tt+h))
    A(f"v_mov_b32 v144, s{S_DSKV}\nv_mov_b32 v145, s{S_DSKV}\nv_mov_b32 v146, s{S_YS}\nv_mov_b32 v147, s{S_YS}")
    for p in range(8):
        A(f"v_pk_mul_f32 v[{U+2*p}:{U+2*p+1}], v[{U+2*p}:{U+2*p+1}], v[144:145]")
    if self.mimic>=1:
        for p in range(8): A(f"v_cvt_pk_bf16_f32 v{148+p}, v{U+2*p}, v{U+2*p+1}")
        for p in range(8): A(bf16_lo(U+2*p,148+p)); A(bf16_hi(U+2*p+1,148+p))
    A("s_waitcnt lgkmcnt(0)")
    for p in range(8):
        A(f"v_pk_add_f32 v[{Y+2*p}:{Y+2*p+1}], v[{Y+2*p}:{Y+2*p+1}], v[{96+2*p}:{96+2*p+1}]")
    for p in range(8):
        A(f"v_pk_mul_f32 v[{Y+2*p}:{Y+2*p+1}], v[{Y+2*p}:{Y+2*p+1}], v[146:147]")
    if self.mimic>=1:
        for p in range(8): A(f"v_cvt_pk_bf16_f32 v{148+p}, v{Y+2*p}, v{Y+2*p+1}")
        for p in range(8): A(bf16_lo(Y+2*p,148+p)); A(bf16_hi(Y+2*p+1,148+p))
    for p in range(8):
        A(f"v_pk_add_f32 v[{Y+2*p}:{Y+2*p+1}], v[{Y+2*p}:{Y+2*p+1}], v[{U+2*p}:{U+2*p+1}]")
    if self.mimic>=1:
        for p in range(8): A(f"v_cvt_pk_bf16_f32 v{148+p}, v{Y+2*p}, v{Y+2*p+1}")
        for p in range(8): A(bf16_lo(Y+2*p,148+p)); A(bf16_hi(Y+2*p+1,148+p))
    for p in range(8):
        A(f"v_pk_add_f32 v[{Y+2*p}:{Y+2*p+1}], v[{Y+2*p}:{Y+2*p+1}], v[{X+2*p}:{X+2*p+1}]")
    H=148
    for p in range(8): A(f"v_cvt_pk_bf16_f32 v{H+p}, v{Y+2*p}, v{Y+2*p+1}")
    for pr in range(2):
        b=H+4*pr
        A(f"v_permlane16_swap_b32 v{b}, v{b+2}")
        A(f"v_permlane16_swap_b32 v{b+1}, v{b+3}")
    A(f"v_and_b32 v52, 1, v51")
    A(f"v_lshlrev_b32 v52, 3, v52")
    A(f"v_lshrrev_b32 v53, 1, v50")
    A(f"v_add_u32 v52, v52, v53")
    A(f"s_movk_i32 s{S_T0}, {448*64}")
    A(f"v_mul_lo_u32 v52, v52, s{S_T0}")
    A(f"v_and_b32 v53, 1, v50")
    A(f"v_lshl_add_u32 v52, v53, 5, v52")
    A(f"v_lshrrev_b32 v53, 1, v51")
    A(f"v_lshl_add_u32 v52, v53, 4, v52")
    A(f"s_lshl_b32 s{S_T0}, s{S_NH}, 5")
    A(f"s_mul_i32 s{S_T0}, s{S_T0}, {448*64}")
    A(f"s_add_u32 s{S_T0+1}, s{S_D0}, s{S_CH}")
    A(f"s_lshl_b32 s{S_T0+1}, s{S_T0+1}, 6")
    A(f"s_add_u32 s{S_T0}, s{S_T0}, s{S_T0+1}")
    A(f"s_add_u32 s{S_T0}, s{S_T0}, {WS_HT}")
    A(f"s_add_u32 s{S_T0+1}, s{S_T0}, {16*448*64}")
    A(f"buffer_store_dwordx4 v[{H}:{H+3}], v52, s[{SRD_WS}:{SRD_WS+3}], s{S_T0} offen sc1")
    A(f"buffer_store_dwordx4 v[{H+4}:{H+7}], v52, s[{SRD_WS}:{SRD_WS+3}], s{S_T0+1} offen sc1")

@add_method
def sync_all(self):
    A=self.A
    A("s_waitcnt vmcnt(0)")
    A("s_barrier")
    l=self.lab()
    A(f"s_cmp_lg_u32 s{S_W}, 0")
    A(f"s_cbranch_scc1 {l}")
    A(f"s_and_b32 s{S_T0}, s{S_WG}, 7")
    A(f"s_lshl_b32 s{S_T0}, s{S_T0}, 7")
    A(f"s_add_u32 s{S_T0}, s{S_T0}, {WS_CNT2}")
    A(f"v_lshlrev_b32 v48, 10, v{V_LANE}")
    A("v_mov_b32 v49, 1")
    A("s_mov_b64 exec, 0xff")
    A(f"buffer_atomic_add v49, v48, s[{SRD_WS}:{SRD_WS+3}], s{S_T0} offen")
    A("s_mov_b64 exec, -1")
    A(f"{l}:")

@add_method
def sync_all_wait(self):
    A=self.A
    l=self.lab(); lp=self.lab('Lpoll'); le=self.lab()
    A(f"s_cmp_lg_u32 s{S_W}, 0")
    A(f"s_cbranch_scc1 {l}")
    A(f"s_lshr_b32 s{S_T0}, s{S_WG}, 3")
    A(f"s_and_b32 s{S_T0}, s{S_T0}, 7")
    A(f"s_lshl_b32 s{S_T0}, s{S_T0}, 10")
    A(f"s_add_u32 s{S_T0}, s{S_T0}, {WS_CNT2}")
    A(f"v_and_b32 v48, 7, v{V_LANE}")
    A(f"v_lshlrev_b32 v48, 7, v48")
    A(f"s_mov_b32 s{S_T0+1}, 0")
    A(f"{lp}:")
    A(f"buffer_load_dword v49, v48, s[{SRD_WS}:{SRD_WS+3}], s{S_T0} offen sc1")
    A("s_waitcnt vmcnt(0)")
    A("v_cmp_gt_u32 vcc, 28, v49")
    A(f"s_add_u32 s{S_T0+1}, s{S_T0+1}, 1")
    A(f"s_cbranch_vccz {le}")
    A(f"s_cmp_lt_u32 s{S_T0+1}, 0x8000")
    A(f"s_cbranch_scc1 {lp}")
    A(f"{le}:")
    A(f"{l}:")
    A("s_barrier")

class Stream:
    def __init__(self, A):
        self.A=A; self.lds=[]; self.vm=[]
    def ds(self, text, tag=None):
        self.A(text); self.lds.append(tag)
    def vmem(self, text, tag=None):
        self.A(text); self.vm.append(tag)
    def need_lds(self, tags):
        idx=-1
        for t in tags:
            if t in self.lds: idx=max(idx, len(self.lds)-1-self.lds[::-1].index(t))
        if idx>=0:
            n=len(self.lds)-idx-1
            n=min(n,15)
            self.A(f"s_waitcnt lgkmcnt({n})")
            self.lds=self.lds[len(self.lds)-n:] if n>0 else []
    def need_vm(self, tags):
        idx=-1
        for t in tags:
            if t in self.vm: idx=max(idx, len(self.vm)-1-self.vm[::-1].index(t))
        if idx>=0:
            n=len(self.vm)-idx-1
            n=min(n,63)
            self.A(f"s_waitcnt vmcnt({n})")
            self.vm=self.vm[len(self.vm)-n:] if n>0 else []
    def item(self, it):
        if isinstance(it,str): self.A(it)
        elif it[0]=='ds': self.ds(it[1],it[2])
        elif it[0]=='vm': self.vmem(it[1],it[2])
        elif it[0]=='needl': self.need_lds(it[1])
        elif it[0]=='needv': self.need_vm(it[1])

G_ACC=[64,96]; G_CS=128; G_RING=160; G_SB=176; G_VB=204; G_SA=208; G_SF=[212,215]; G_ST=218; G_ET=226; G_PK=242
LDS_ST=114688
@add_method
def cs_mfma(self):
    A=self.A
    for k in range(4): A(f"v_mov_b32 v{48+k}, 0x3f803f80")
    for s in range(28):
        for t in range(2):
            d=G_CS+16*t
            c="0" if s==0 else f"v[{d}:{d+15}]"
            A(f"v_mfma_f32_32x32x16_bf16 v[{d}:{d+15}], a[{8*s+4*t}:{8*s+4*t+3}], v[48:51], {c}")

@add_method
def gemm1(self):
    A=self.A; S=Stream(A)
    A(f"s_mul_i32 s{S_T0}, s{S_I}, {4*28672}")
    A(f"s_mul_i32 s{S_T0+1}, s{S_W}, 7168")
    A(f"s_add_u32 s{S_T0}, s{S_T0}, s{S_T0+1}")
    A(f"s_add_u32 s{S_T0}, s{S_T0}, {WS_HT}")
    A(f"v_lshlrev_b32 v48, 4, v{V_LANE}")
    for lt in range(4):
        for k in range(7):
            off=lt*28672+k*1024
            A(f"s_add_u32 s{S_T0+2}, s{S_T0}, {off}")
            A(f"s_add_u32 m0, s{S_T0+1}, {off}")
            S.vmem(f"buffer_load_dwordx4 v48, s[{SRD_WS}:{SRD_WS+3}], s{S_T0+2} offen sc1 lds", f"X{lt}")
    A(f"v_lshrrev_b32 v50, 5, v{V_LANE}")
    A(f"v_lshlrev_b32 v50, 9, v50")
    A(f"v_bfe_u32 v51, v{V_LANE}, 2, 2")
    A(f"v_lshl_add_u32 v50, v51, 6, v50")
    A(f"v_bfe_u32 v51, v{V_LANE}, 4, 1")
    A(f"v_lshl_add_u32 v50, v51, 5, v50")
    A(f"v_and_b32 v51, 3, v{V_LANE}")
    A(f"v_lshl_add_u32 v50, v51, 3, v50")
    for g in range(4):
        A(f"s_add_u32 s{S_T0+2}, s{S_W}, {g}")
        A(f"s_and_b32 s{S_T0+2}, s{S_T0+2}, 3")
        A(f"s_sub_u32 s{S_T0+2}, s{S_T0+2}, {g}")
        A(f"s_mul_i32 s{S_T0+2}, s{S_T0+2}, 7168")
        A(f"v_add_u32 v{G_VB+g}, s{S_T0+2}, v50")
    A(f"v_and_b32 v53, 31, v{V_LANE}")
    A(f"v_lshlrev_b32 v53, 5, v53")
    A(f"v_add_u32 v53, {LDS_ST}, v53")
    A(f"s_lshl_b32 s{S_T0+2}, s{S_W}, 3")
    A(f"v_add_u32 v52, s{S_T0+2}, v53")
    A(f"s_lshl_b32 s{S_T0+4}, s{S_I}, 2")
    A(f"s_mul_i32 s{S_T0+4}, s{S_T0+4}, 112")
    A(f"s_lshl_b32 s{S_T0+5}, s{S_J}, 3")
    A(f"s_add_u32 s{S_T0+4}, s{S_T0+4}, s{S_T0+5}")
    A(f"s_lshl_b32 s{S_T0+5}, s{S_W}, 1")
    A(f"s_add_u32 s{S_T0+4}, s{S_T0+4}, s{S_T0+5}")
    A(f"s_lshl_b32 s{S_T0+4}, s{S_T0+4}, 10")
    A(f"s_add_u32 s{S_T0+4}, s{S_T0+4}, {WS_M}")
    SM=S_T0+4
    def breg(s): return G_SB+4*s if s<7 else G_RING+4*((s-7)%4)
    def bload(p,s):
        r=breg(s); vb=G_VB+s//7
        return [('ds',f"ds_read_b64_tr_b16 v[{r}:{r+1}], v{vb} offset:{s*1024}",f"B{p}_{s}a"),
                ('ds',f"ds_read_b64_tr_b16 v[{r+2}:{r+3}], v{vb} offset:{s*1024+256}",f"B{p}_{s}b")]
    def stats_items(p):
        it=[]
        sa=G_SA; T=G_ST
        for s in range(7):
            for k in range(4):
                r=breg(s)+k; t0=T+2*(k&1)*2
                first=(s==0 and k==0);
                lo=T+(k%4)*2; hi=lo+1
                it.append(bf16_lo(lo,r)); it.append(bf16_hi(hi,r))
                if s==0 and k<1:
                    it.append(f"v_add_f32 v{sa}, v{lo}, v{hi}")
                    it.append(f"v_mul_f32 v{sa+2}, v{lo}, v{lo}")
                    it.append(f"v_mul_f32 v{sa+3}, v{hi}, v{hi}")
                    it.append(f"v_mov_b32 v{sa+1}, 0")
                else:
                    it.append(f"v_add_f32 v{sa}, v{sa}, v{lo}")
                    it.append(f"v_add_f32 v{sa+1}, v{sa+1}, v{hi}")
                    it.append(f"v_fma_f32 v{sa+2}, v{lo}, v{lo}, v{sa+2}")
                    it.append(f"v_fma_f32 v{sa+3}, v{hi}, v{hi}, v{sa+3}")
        it.append(f"v_add_f32 v{T}, v{sa}, v{sa+1}")
        it.append(f"v_add_f32 v{T+1}, v{sa+2}, v{sa+3}")
        it.append(f"v_mov_b32 v{T+2}, v{T}")
        it.append(f"v_mov_b32 v{T+3}, v{T+1}")
        it.append("s_nop 1")
        it.append(f"v_permlane32_swap_b32 v{T}, v{T+2}")
        it.append(f"v_permlane32_swap_b32 v{T+1}, v{T+3}")
        it.append(f"v_add_f32 v{T}, v{T}, v{T+2}")
        it.append(f"v_add_f32 v{T+1}, v{T+1}, v{T+3}")
        it.append(('ds',f"ds_write_b64 v52, v[{T}:{T+1}] offset:{(p&1)*1024}",f"SW{p}"))
        return it
    def stats_final(p):
        T=G_ST; sf=G_SF[p&1]
        it=[('ds',f"ds_read_b128 v[{T}:{T+3}], v53 offset:{(p&1)*1024}",f"SR{p}a"),
            ('ds',f"ds_read_b128 v[{T+4}:{T+7}], v53 offset:{(p&1)*1024+16}",f"SR{p}b"),
            ('needl',[f"SR{p}a",f"SR{p}b"]),
            f"v_add_f32 v{T}, v{T}, v{T+2}", f"v_add_f32 v{T+1}, v{T+1}, v{T+3}",
            f"v_add_f32 v{T+4}, v{T+4}, v{T+6}", f"v_add_f32 v{T+5}, v{T+5}, v{T+7}",
            f"v_add_f32 v{T}, v{T}, v{T+4}", f"v_add_f32 v{T+1}, v{T+1}, v{T+5}",
            f"v_mul_f32 v{T}, {fl(1.0/448)}, v{T}",
            f"v_mul_f32 v{T+1}, {fl(1.0/448)}, v{T+1}",
            f"v_fma_f32 v{T+1}, -v{T}, v{T}, v{T+1}",
            f"v_max_f32 v{T+1}, 0, v{T+1}",
            f"v_cvt_pk_bf16_f32 v{T+2}, v{T+1}, v{T}",
            f"v_and_b32 v{sf}, 0xffff0000, v{T+2}",
            f"v_lshlrev_b32 v{T+1}, 16, v{T+2}",
            f"v_add_f32 v{T+1}, {fl(1e-5)}, v{T+1}",
            f"v_cvt_pk_bf16_f32 v{T+1}, v{T+1}, v{T+1}",
            f"v_lshlrev_b32 v{T+1}, 16, v{T+1}",
            f"v_sqrt_f32 v{T+1}, v{T+1}", "s_nop 0",
            f"v_cvt_pk_bf16_f32 v{T+1}, v{T+1}, v{T+1}",
            f"v_lshlrev_b32 v{T+1}, 16, v{T+1}",
            f"v_rcp_f32 v{T+1}, v{T+1}", "s_nop 0",
            f"v_mul_f32 v{sf+1}, {fl(-LOG2E)}, v{T+1}",
            f"v_mul_f32 v{sf+2}, v{T+1}, v{T+1}"]
        return it
    def epi_items(p):
        acc=G_ACC[p&1]; sf=G_SF[p&1]; it=[]; E=G_ET
        for r0 in range(0,16,4):
            rs=range(r0,r0+4)
            for r in rs: it.append(f"v_fma_f32 v{acc+r}, -v{sf}, v{G_CS+r}, v{acc+r}")
            for r in rs: it.append(f"v_fma_f32 v{acc+16+r}, -v{sf}, v{G_CS+16+r}, v{acc+16+r}")
            for r in rs: it.append(f"v_mul_f32 v{E+(r&3)}, v{sf+1}, v{acc+r}")
            for r in rs: it.append(f"v_exp_f32 v{E+(r&3)}, v{E+(r&3)}")
            for r in rs: it.append(f"v_mul_f32 v{acc+r}, v{acc+r}, v{acc+16+r}")
            for r in rs: it.append(f"v_add_f32 v{E+(r&3)}, 1.0, v{E+(r&3)}")
            for r in rs: it.append(f"v_rcp_f32 v{E+(r&3)}, v{E+(r&3)}")
            for r in rs: it.append(f"v_mul_f32 v{acc+r}, v{acc+r}, v{sf+2}")
            for r in rs: it.append(f"v_mul_f32 v{acc+r}, v{acc+r}, v{E+(r&3)}")
            q=r0//4
            it.append(f"v_cvt_pk_bf16_f32 v{G_PK+2*q}, v{acc+r0}, v{acc+r0+1}")
            it.append(f"v_cvt_pk_bf16_f32 v{G_PK+2*q+1}, v{acc+r0+2}, v{acc+r0+3}")
            if q==1 or q==3:
                h=q//2
                it.append(f"s_add_u32 s{SM+1}, s{SM}, {p*112*1024+h*1024}")
                it.append(('vm',f"buffer_store_dwordx4 v[{G_PK+4*h}:{G_PK+4*h+3}], v48, s[{SRD_WS}:{SRD_WS+3}], s{SM+1} offen sc1",f"M{p}_{h}"))
        return it
    S.need_vm(["X0"])
    A("s_barrier")
    for it in bload(0,0)+bload(0,1): S.item(it)
    for p in range(4):
        acc=G_ACC[p&1]
        st=stats_items(p)
        ep=epi_items(p-1) if p>0 else []
        fin=stats_final(p)
        BAR=20
        sti=0; epi=0; fi=0
        for s in range(28):
            S.need_lds([f"B{p}_{s}a",f"B{p}_{s}b"])
            r=breg(s)
            for t in range(2):
                d=acc+16*t
                c="0" if s==0 else f"v[{d}:{d+15}]"
                A(f"v_mfma_f32_32x32x16_bf16 v[{d}:{d+15}], a[{8*s+4*t}:{8*s+4*t+3}], v[{r}:{r+3}], {c}")
                if t==0:
                    ns=s+2
                    if ns<28:
                        for it in bload(p,ns): S.item(it)
                    elif p<3:
                        for it in bload(p+1,ns-28): S.item(it)
                gap=2*s+t
                if s<BAR:
                    avail = min(len(st), (24*(min(s,6)+1) if s<6 else len(st)))
                    tgt = min(avail, (len(st)*(gap+1)+2*(BAR-1)-1)//(2*(BAR-1)))
                    while sti<tgt: S.item(st[sti]); sti+=1
                if s>=1 and ep:
                    tgt=min(len(ep),(len(ep)*(gap-1)+53)//54)
                    while epi<tgt: S.item(ep[epi]); epi+=1
                if s>BAR:
                    tgt=min(len(fin),(len(fin)*(gap-2*BAR-1)+11)//12)
                    while fi<tgt: S.item(fin[fi]); fi+=1
            if s in (4,11,18,25) and p<3:
                g={4:0,11:1,18:2,25:3}[s]
                A(f"v_add_u32 v{G_VB+g}, 28672, v{G_VB+g}")
            if s==BAR:
                while sti<len(st): S.item(st[sti]); sti+=1
                S.need_lds([f"SW{p}"])
                if p<3: S.need_vm([f"X{p+1}"])
                A("s_barrier")
        while epi<len(ep): S.item(ep[epi]); epi+=1
        while fi<len(fin): S.item(fin[fi]); fi+=1
    A("s_nop 11")
    for it in epi_items(3): S.item(it)

@add_method
def sync_grp(self):
    A=self.A
    A("s_waitcnt vmcnt(0)")
    A("s_barrier")
    l=self.lab()
    A(f"s_cmp_lg_u32 s{S_W}, 0")
    A(f"s_cbranch_scc1 {l}")
    A(f"s_lshl_b32 s{S_T0}, s{S_I}, 7")
    A(f"s_add_u32 s{S_T0}, s{S_T0}, {WS_CNT3}")
    A("v_mov_b32 v49, 1")
    A("s_mov_b64 exec, 1")
    A(f"buffer_atomic_add v49, v{V_ZERO}, s[{SRD_WS}:{SRD_WS+3}], s{S_T0} offen")
    l2=self.lab()
    A(f"s_cmp_lg_u32 s{S_WG}, 0")
    A(f"s_cbranch_scc1 {l2}")
    A(f"v_mov_b32 v49, s{S_TAG}")
    A(f"buffer_store_dword v49, v{V_ZERO}, s[{SRD_WS}:{SRD_WS+3}], 0 offen sc1")
    A(f"{l2}:")
    A("s_mov_b64 exec, -1")
    A(f"{l}:")

@add_method
def sync_grp_wait(self):
    A=self.A
    l=self.lab(); lp=self.lab('Lpoll'); le=self.lab()
    A(f"s_cmp_lg_u32 s{S_W}, 0")
    A(f"s_cbranch_scc1 {l}")
    A(f"s_lshl_b32 s{S_T0}, s{S_I}, 7")
    A(f"s_add_u32 s{S_T0}, s{S_T0}, {WS_CNT3}")
    A(f"s_mov_b32 s{S_T0+1}, 0")
    A(f"{lp}:")
    A(f"buffer_load_dword v49, v{V_ZERO}, s[{SRD_WS}:{SRD_WS+3}], s{S_T0} offen sc1")
    A("s_waitcnt vmcnt(0)")
    A("v_cmp_gt_u32 vcc, 14, v49")
    A(f"s_add_u32 s{S_T0+1}, s{S_T0+1}, 1")
    A(f"s_cbranch_vccz {le}")
    A(f"s_cmp_lt_u32 s{S_T0+1}, 0x8000")
    A(f"s_cbranch_scc1 {lp}")
    A(f"{le}:")
    A(f"{l}:")
    A("s_barrier")

H_ACC=64
H_RING=128
NSL=14
LDS_RED=0
LDS_RES=49152
@add_method
def gemm2(self):
    A=self.A; S=Stream(A)
    A(f"s_cmp_ge_u32 s{S_J}, 7")
    A(f"s_cselect_b32 s{S_T0}, 2, 0")
    A(f"s_cselect_b32 s{S_T0+6}, 7, 0")
    A(f"s_sub_u32 s{S_T0+6}, s{S_J}, s{S_T0+6}")
    A(f"s_lshl_b32 s{S_T0+1}, s{S_I}, 2")
    A(f"s_add_u32 s{S_T0}, s{S_T0}, s{S_T0+1}")
    A(f"s_add_u32 s{S_T0+1}, s{S_T0}, s{S_CH}")
    A(f"s_xor_b32 s{S_T0+2}, s{S_CH}, 1")
    A(f"s_add_u32 s{S_T0+2}, s{S_T0}, s{S_T0+2}")
    A(f"s_mul_i32 s{S_T0+3}, s{S_W}, 28")
    for la in range(2):
        A(f"s_mul_i32 s{S_T0+4+la}, s{S_T0+1+la}, 112")
        A(f"s_add_u32 s{S_T0+4+la}, s{S_T0+4+la}, s{S_T0+3}")
        A(f"s_lshl_b32 s{S_T0+4+la}, s{S_T0+4+la}, 10")
        A(f"s_add_u32 s{S_T0+4+la}, s{S_T0+4+la}, {WS_M}")
    A(f"v_lshlrev_b32 v48, 4, v{V_LANE}")
    def mload(s):
        sl=s%NSL
        for la in range(2):
            r=H_RING+8*sl+4*la
            A(f"s_add_u32 s{S_T0+7}, s{S_T0+4+la}, {s*1024}")
            S.vmem(f"buffer_load_dwordx4 v[{r}:{r+3}], v48, s[{SRD_WS}:{SRD_WS+3}], s{S_T0+7} offen sc1", f"m{s}")
    A(f"s_mul_i32 s{S_T0+8}, s{S_T0+1}, 448")
    A(f"s_lshl_b32 s{S_T0+9}, s{S_T0+6}, 6")
    A(f"s_add_u32 s{S_T0+8}, s{S_T0+8}, s{S_T0+9}")
    A(f"s_lshl_b32 s{S_T0+9}, s{S_NH}, 5")
    A(f"s_add_u32 s{S_T0+8}, s{S_T0+8}, s{S_T0+9}")
    A(f"s_lshl_b32 s{S_T0+8}, s{S_T0+8}, 6")
    A(f"s_add_u32 s{S_T0+8}, s{S_T0+8}, {WS_HT}")
    A(f"s_lshl_b32 s{S_T0+9}, s{S_W}, 11")
    A(f"s_add_u32 s{S_T0+9}, s{S_T0+9}, {LDS_RES}")
    for k in range(2):
        A(f"s_add_u32 m0, s{S_T0+9}, {k*1024}")
        A(f"s_add_u32 s{S_T0+7}, s{S_T0+8}, {k*1024}")
        S.vmem(f"buffer_load_dwordx4 v48, s[{SRD_WS}:{SRD_WS+3}], s{S_T0+7} offen sc1 lds","res")
    for s in range(NSL): mload(s)
    for s in range(28):
        S.need_vm([f"m{s}"])
        sl=s%NSL
        for la in range(2):
            for ca in range(2):
                d=H_ACC+16*(2*la+ca)
                c="0" if s==0 else f"v[{d}:{d+15}]"
                r=H_RING+8*sl+4*la
                A(f"v_mfma_f32_32x32x16_bf16 v[{d}:{d+15}], a[{8*s+4*ca}:{8*s+4*ca+3}], v[{r}:{r+3}], {c}")
        if s+NSL<28: mload(s+NSL)
    A("s_nop 11")
    A("s_barrier")
    for x in range(1,4):
        A(f"s_xor_b32 s{S_T0+7}, s{S_W}, {x}")
        A(f"s_mul_i32 s{S_T0+7}, s{S_T0+7}, 12288")
        A(f"s_add_u32 s{S_T0+7}, s{S_T0+7}, {LDS_RED+(x-1)*4096}")
        A(f"v_add_u32 v49, s{S_T0+7}, v48")
        for q in range(4):
            d=H_ACC+16*x+4*q
            A(f"ds_write_b128 v49, v[{d}:{d+3}] offset:{q*1024}")
    A(f"v_lshrrev_b32 v50, 5, v{V_LANE}")
    A(f"v_lshlrev_b32 v50, 8, v50")
    A(f"v_bfe_u32 v51, v{V_LANE}, 2, 2")
    A(f"v_lshl_add_u32 v50, v51, 6, v50")
    A(f"v_bfe_u32 v51, v{V_LANE}, 4, 1")
    A(f"v_lshl_add_u32 v50, v51, 5, v50")
    A(f"v_and_b32 v51, 3, v{V_LANE}")
    A(f"v_lshl_add_u32 v50, v51, 3, v50")
    A(f"v_add_u32 v50, s{S_T0+9}, v50")
    A("s_waitcnt vmcnt(0) lgkmcnt(0)")
    A("s_barrier")
    A(f"s_mul_i32 s{S_T0+7}, s{S_W}, 12288")
    A(f"v_add_u32 v49, s{S_T0+7}, v48")
    P=128
    for q in range(4): A(f"ds_read_b64_tr_b16 v[{176+2*q}:{176+2*q+1}], v50 offset:{q*512}")
    for k in range(2):
        for q in range(4):
            A(f"ds_read_b128 v[{P+16*k+4*q}:{P+16*k+4*q+3}], v49 offset:{LDS_RED+k*4096+q*1024}")
    A("s_waitcnt lgkmcnt(4)")
    for r in range(0,16,2): A(f"v_pk_add_f32 v[{H_ACC+r}:{H_ACC+r+1}], v[{H_ACC+r}:{H_ACC+r+1}], v[{P+r}:{P+r+1}]")
    for q in range(4):
        A(f"ds_read_b128 v[{P+4*q}:{P+4*q+3}], v49 offset:{LDS_RED+2*4096+q*1024}")
    A("s_waitcnt lgkmcnt(4)")
    for r in range(0,16,2): A(f"v_pk_add_f32 v[{H_ACC+r}:{H_ACC+r+1}], v[{H_ACC+r}:{H_ACC+r+1}], v[{P+16+r}:{P+16+r+1}]")
    for q in range(4):
        for h in range(2):
            A(bf16_lo(192+4*q+2*h,176+2*q+h)); A(bf16_hi(192+4*q+2*h+1,176+2*q+h))
    A("s_waitcnt lgkmcnt(0)")
    for r in range(0,16,2): A(f"v_pk_add_f32 v[{H_ACC+r}:{H_ACC+r+1}], v[{H_ACC+r}:{H_ACC+r+1}], v[{P+r}:{P+r+1}]")
    if self.mimic>=1:
        for r in range(0,16,2): A(f"v_cvt_pk_bf16_f32 v{208+r//2}, v{H_ACC+r}, v{H_ACC+r+1}")
        for r in range(0,16,2): A(bf16_lo(H_ACC+r,208+r//2)); A(bf16_hi(H_ACC+r+1,208+r//2))
    for r in range(0,16,2): A(f"v_pk_add_f32 v[{H_ACC+r}:{H_ACC+r+1}], v[{H_ACC+r}:{H_ACC+r+1}], v[{192+r}:{192+r+1}]")
    O=208
    if self.perturb:
        for r in range(16): A(f"v_add_f32 v{H_ACC+r}, {fl(self.perturb)}, v{H_ACC+r}")
    for r in range(0,16,2): A(f"v_cvt_pk_bf16_f32 v{O+r//2}, v{H_ACC+r}, v{H_ACC+r+1}")
    for q in (0,2):
        A(f"v_permlane32_swap_b32 v{O+2*q}, v{O+2*q+2}")
        A(f"v_permlane32_swap_b32 v{O+2*q+1}, v{O+2*q+3}")
    A(f"s_mov_b32 s{SRD_W}, s{S_OUT}\ns_mov_b32 s{SRD_W+1}, s{S_OUT+1}\ns_mov_b32 s{SRD_W+2}, {L_*D_*2}\ns_mov_b32 s{SRD_W+3}, 0x20000")
    A(f"v_and_b32 v50, 31, v{V_LANE}")
    A(f"v_mul_u32_u24 v50, 896, v50")
    A(f"v_lshrrev_b32 v51, 5, v{V_LANE}")
    A(f"v_lshl_add_u32 v50, v51, 4, v50")
    A(f"s_mul_i32 s{S_T0+7}, s{S_T0+1}, {32*896}")
    A(f"s_lshl_b32 s{S_T0+8}, s{S_T0+6}, 7")
    A(f"s_add_u32 s{S_T0+7}, s{S_T0+7}, s{S_T0+8}")
    A(f"s_lshl_b32 s{S_T0+8}, s{S_NH}, 6")
    A(f"s_add_u32 s{S_T0+7}, s{S_T0+7}, s{S_T0+8}")
    A(f"buffer_store_dwordx4 v[{O}:{O+3}], v50, s[{SRD_W}:{SRD_W+3}], s{S_T0+7} offen")
    A(f"buffer_store_dwordx4 v[{O+4}:{O+7}], v50, s[{SRD_W}:{SRD_W+3}], s{S_T0+7} offen offset:32")

@add_method
def dump_lds(self, lds_off, nbytes, ws_off_per_wg):
    A=self.A
    A("s_waitcnt vmcnt(0) lgkmcnt(0)")
    A("s_barrier")
    A(f"v_lshlrev_b32 v48, 4, v{V_T}")
    A(f"s_mul_i32 s{S_T0}, s{S_WG}, {ws_off_per_wg}")
    A(f"s_add_u32 s{S_T0}, s{S_T0}, {WS_DBG}")
    for k in range(nbytes//4096):
        A(f"v_add_u32 v49, {lds_off+k*4096}, v48")
        A("ds_read_b128 v[52:55], v49")
        A("s_waitcnt lgkmcnt(0)")
        A(f"s_add_u32 s{S_T0+1}, s{S_T0}, {k*4096}")
        A(f"buffer_store_dwordx4 v[52:55], v48, s[{SRD_WS}:{SRD_WS+3}], s{S_T0+1} offen")
        A("s_waitcnt vmcnt(0)")

@add_method
def dump_regs(self, first, n, kind='v'):
    A=self.A
    A("s_waitcnt vmcnt(0) lgkmcnt(0)")
    A("s_nop 15")
    A(f"v_lshlrev_b32 v3, 2, v{V_T}")
    A(f"s_mul_i32 s{S_T0}, s{S_WG}, {n*1024}")
    A(f"s_add_u32 s{S_T0}, s{S_T0}, {WS_DBG}")
    for k in range(n):
        A(f"s_add_u32 s{S_T0+1}, s{S_T0}, {k*1024}")
        A(f"buffer_store_dword {kind}{first+k}, v3, s[{SRD_WS}:{SRD_WS+3}], s{S_T0+1} offen")
    A("s_waitcnt vmcnt(0)")

@add_method
def build(self):
    A=self.A
    stop=self.stop_after
    def done(name):
        return stop==name
    self.prologue()
    self.phase0_loads()
    self.stamp('loads issued')
    self.stats1()
    self.stamp('stats1 published')
    self.kgen()
    self.stamp('kgen')
    self.kexpand()
    A("s_waitcnt lgkmcnt(0)")
    A("s_barrier")
    if done('kx'):
        self.dump_lds(LDS_KX, 36864, 36864); return self.finish()
    self.stamp('kexpand')
    self.stage_w('w1')
    self.stamp('w1 staged')
    if done('w1'):
        self.dump_regs(0,224,'a'); return self.finish()
    self.stats_consume()
    self.stamp('u ready')
    if done('u'):
        self.dump_lds(LDS_U-LDS_U%16, 20480, 20480); return self.finish()
    self.conv()
    self.stamp('conv done')
    self.sync_all()
    self.stamp('sync2 arrive')
    self.cs_mfma()
    self.stamp('cs done')
    self.sync_all_wait()
    self.stamp('sync2 passed')
    if done('conv'): return self.finish()
    self.gemm1()
    self.stamp('gemm1 done')
    self.sync_grp()
    self.stamp('sync3 arrive')
    self.stage_w('wd')
    self.stamp('wd staged')
    self.sync_grp_wait()
    self.stamp('sync3 passed')
    if done('gemm1'): return self.finish()
    self.gemm2()
    self.stamp('gemm2 done')
    return self.finish()

@add_method
def finish(self):
    A=self.A
    if self.ts:
        A("s_waitcnt vmcnt(0)")
        self.stamp('end')
        l=self.lab()
        A(f"s_cmp_lg_u32 s{S_W}, 0")
        A(f"s_cbranch_scc1 {l}")
        A("v_mov_b32 v4, 0")
        for k in range(self.nts): A(f"v_writelane_b32 v4, s{86+k}, {k}")
        A(f"v_lshlrev_b32 v5, 2, v{V_LANE}")
        A(f"s_lshl_b32 s{S_T0}, s{S_WG}, 8")
        A(f"s_add_u32 s{S_T0}, s{S_T0}, {WS_TS}")
        A(f"buffer_store_dword v4, v5, s[{SRD_WS}:{SRD_WS+3}], s{S_T0} offen")
        l2=self.lab()
        A(f"s_cmp_lg_u32 s{S_WG}, 0")
        A(f"s_cbranch_scc1 {l2}")
        A(f"global_store_dword v5, v4, s[{S_DBG}:{S_DBG+1}]")
        A(f"{l2}:")
        A(f"{l}:")
    A("L_end:")
    A("s_endpgm")
    A("L_codeend:")
    body, nfix, probs = hazard_fix(A.L)
    for p in probs: print("HAZARD(backedge):", p, file=sys.stderr)
    errs = wait_lint(body)
    for e in errs[:40]: print("WAITLINT:", e, file=sys.stderr)
    hdr = [
     "; Fused preLN + S4D long-conv + preLN + SwiGLU FFN, one persistent launch of 224 workgroups",
     f"; @launch grid=({NWG},1,1) block=(256,1,1) lds={LDS_TOTAL}",
     '.amdgcn_target "amdgcn-amd-amdhsa--gfx950"',
     ".text", f".globl {KNAME}", ".p2align 8", f".type {KNAME},@function", f"{KNAME}:"]
    ftr = ['.section .rodata,"a"', ".p2align 6", f".amdhsa_kernel {KNAME}",
     "  .amdhsa_next_free_vgpr 512", "  .amdhsa_next_free_sgpr 102", "  .amdhsa_accum_offset 256",
     "  .amdhsa_group_segment_fixed_size 0", "  .amdhsa_kernarg_size 112", "  .amdhsa_user_sgpr_count 2",
     "  .amdhsa_user_sgpr_kernarg_segment_ptr 1", "  .amdhsa_system_sgpr_workgroup_id_x 1",
     ".end_amdhsa_kernel"]
    self.nfix=nfix
    return "\n".join(hdr+body+ftr)+"\n"

if __name__=="__main__":
    import argparse
    ap=argparse.ArgumentParser(); ap.add_argument("-o",default="out.s"); ap.add_argument("--stop",default=None); ap.add_argument("--mimic",type=int,default=2); ap.add_argument("--ts",action="store_true"); ap.add_argument("--perturb",type=float,default=0.0)
    a=ap.parse_args()
    g=Gen(stop_after=a.stop, mimic=a.mimic, ts=a.ts, perturb=a.perturb)
    txt=g.build()
    open(a.o,"w").write(txt)
    print("wrote",a.o,len(txt.splitlines()),"lines; nops inserted:",g.nfix, file=sys.stderr)
```

```python
import re

def split_ops(s):
    out=[]; depth=0; cur=''
    for ch in s:
        if ch=='[': depth+=1
        if ch==']': depth-=1
        if ch==',' and depth==0:
            out.append(cur.strip()); cur=''
        else: cur+=ch
    if cur.strip(): out.append(cur.strip())
    return out

REG_RE = re.compile(r'^(-|\|)?(abs\()?([vsa])(\d+|\[(\d+):(\d+)\])\)?\|?$')
def regs_of(tok):
    tok=tok.strip()
    if tok in ('vcc',): return [('s','vcc_lo'),('s','vcc_hi')]
    if tok in ('vcc_lo','vcc_hi','m0','exec_lo','exec_hi','scc'): return [('s',tok)]
    if tok=='exec': return [('s','exec_lo'),('s','exec_hi')]
    m=REG_RE.match(tok)
    if not m: return []
    k=m.group(3)
    if m.group(5) is not None:
        return [(k,i) for i in range(int(m.group(5)),int(m.group(6))+1)]
    return [(k,int(m.group(4)))]

TRANS = ('v_exp_f32','v_log_f32','v_rcp_f32','v_rsq_f32','v_sqrt_f32','v_sin_f32','v_cos_f32','v_rcp_iflag_f32')
class Ins:
    __slots__=('text','mn','ops','mods','defs','uses','kind','label','raw')
    def __init__(self,text):
        self.text=text; self.raw=text
        t=text.split(';')[0].strip()
        self.label=None; self.mn=''; self.ops=[]; self.mods=''; self.defs=[]; self.uses=[]; self.kind='other'
        if not t: self.kind='empty'; return
        if t.endswith(':'): self.label=t[:-1]; self.kind='label'; return
        if t.startswith('.'): self.kind='dir'; return
        sp=t.split(None,1); mn=sp[0]; rest=sp[1] if len(sp)>1 else ''
        self.mn=mn
        ops=split_ops(rest)
        mods=''
        if ops:
            last=ops[-1]; depth=0; cut=None
            for i,ch in enumerate(last):
                if ch=='[': depth+=1
                if ch==']': depth-=1
                if ch in ' \t' and depth==0: cut=i; break
            if cut is not None:
                mods=last[cut:].strip(); ops[-1]=last[:cut]
        self.ops=ops; self.mods=mods
        self.classify()
    def classify(s):
        mn=s.mn; o=s.ops; R=regs_of
        base=re.sub(r'_(e32|e64|dpp|sdwa)$','',mn)
        d=[];u=[]
        if mn.startswith('v_mfma'):
            s.kind='mfma'; d=R(o[0]); u=R(o[1])+R(o[2])+R(o[3])
        elif mn.startswith('v_'):
            s.kind='valu'
            if base.startswith('v_cmp'):
                d=R(o[0]); u=sum((R(x) for x in o[1:]),[])
                if base.startswith('v_cmpx'): d+=R('exec')
            elif base.startswith('v_permlane') and 'swap' in base:
                d=R(o[0])+R(o[1]); u=list(d)
            elif base in ('v_add_co_u32','v_sub_co_u32','v_subrev_co_u32'):
                d=R(o[0])+R(o[1]); u=R(o[2])+R(o[3])
            elif base in ('v_addc_co_u32','v_subb_co_u32'):
                d=R(o[0])+R(o[1]); u=R(o[2])+R(o[3])+R(o[4])
            elif base in ('v_mad_u64_u32',):
                d=R(o[0])+R(o[1]); u=sum((R(x) for x in o[2:]),[])
            else:
                d=R(o[0]); u=sum((R(x) for x in o[1:]),[])
                if base in ('v_fmac_f32','v_dot2c_f32_bf16','v_pk_fmac_f16','v_writelane_b32') : u+=d
                if 'dst_unused:UNUSED_PRESERVE' in s.mods: u+=d
                if ('op_sel' in s.mods) and base.startswith('v_cvt_') and False: u+=d
                if ('_dpp' in mn or 'row_' in s.mods or 'quad_perm' in s.mods): u+=d
        elif mn.startswith('ds_'):
            s.kind='ds'
            if mn.startswith('ds_read') or mn.startswith('ds_bpermute') or mn.startswith('ds_permute') or mn.startswith('ds_swizzle'):
                d=R(o[0]); u=sum((R(x) for x in o[1:]),[])
                if 'd16' in mn: u+=d
            else:
                u=sum((R(x) for x in o),[])
        elif mn.startswith('buffer_'):
            s.kind='vmem'
            if mn in ('buffer_wbl2','buffer_inv'): pass
            elif 'lds' in s.mods.split() :
                u=sum((R(x) for x in o),[])+[('s','m0')]
            elif mn.startswith('buffer_load'):
                d=R(o[0]); u=sum((R(x) for x in o[1:]),[])
            elif mn.startswith('buffer_atomic'):
                u=sum((R(x) for x in o),[])
                if 'sc0' in s.mods.split(): d=R(o[0])
            else:
                u=sum((R(x) for x in o),[])
        elif mn.startswith('global_'):
            s.kind='vmem'
            if mn.startswith('global_load_lds'):
                u=sum((R(x) for x in o),[])+[('s','m0')]
            elif mn.startswith('global_load'):
                d=R(o[0]); u=sum((R(x) for x in o[1:]),[])
            elif mn.startswith('global_atomic'):
                if 'sc0' in s.mods.split(): d=R(o[0]); u=sum((R(x) for x in o[1:]),[])
                else: u=sum((R(x) for x in o),[])
            else:
                u=sum((R(x) for x in o),[])
        elif mn.startswith('s_'):
            s.kind='salu'
            if mn in ('s_waitcnt',): s.kind='wait'
            elif mn=='s_nop': s.kind='nop'
            elif mn in ('s_barrier','s_endpgm','s_sleep','s_setprio'): pass
            elif mn.startswith('s_branch') or mn.startswith('s_cbranch'): s.kind='branch'
            elif mn.startswith('s_cmp') or mn.startswith('s_bitcmp'): u=sum((R(x) for x in o),[]); d=[('s','scc')]
            elif mn.startswith('s_load') or mn in('s_memtime','s_memrealtime'):
                s.kind='smem'; d=R(o[0]); u=sum((R(x) for x in o[1:]),[])
            elif mn in ('s_setpc_b64',): u=R(o[0]); s.kind='branch'
            elif mn in ('s_swappc_b64',): d=R(o[0]); u=R(o[1]); s.kind='branch'
            elif mn.endswith('saveexec_b64'): d=R(o[0])+R('exec'); u=R(o[1])+R('exec')
            else:
                d=R(o[0]) if o else []; u=sum((R(x) for x in o[1:]),[])
                if mn in ('s_addk_i32','s_mulk_i32'): u+=d
        s.defs=d; s.uses=u
    def is_trans(s): return re.sub(r'_(e32|e64|dpp|sdwa)$','',s.mn) in TRANS
    def is_dpp(s): return s.kind=='valu' and ('_dpp' in s.mn or 'row_' in s.mods or 'quad_perm' in s.mods or 'wave_' in s.mods)
    def passes(s):
        if '32x32' in s.mn: return 8
        return 4
    def states(s):
        if s.kind=='nop': return int(s.ops[0],0)+1
        if s.kind in ('label','dir','empty'): return 0
        return 1

def vregs(l): return set(r for r in l if r[0] in 'va')
def sregs(l): return set(r for r in l if r[0]=='s')

def required(prod, cons):
    need=0
    pd=set(prod.defs); cu=set(cons.uses); cd=set(cons.defs)
    pv=vregs(pd); ps=sregs(pd)
    if prod.kind=='valu' and prod.mn.startswith('v_dot'):
        if pv & (vregs(cu)|vregs(cd)):
            if cons.mn==prod.mn:
                srcc=set(regs_of(cons.ops[3])) if len(cons.ops)>3 else set(regs_of(cons.ops[0]))
                ab=set(regs_of(cons.ops[1])+regs_of(cons.ops[2]))
                if pv & ab: need=max(need,3)
            else: need=max(need,3)
    if prod.kind=='valu':
        if pv & vregs(cu):
            if cons.kind=='mfma': need=max(need,2)
            if cons.is_dpp(): need=max(need,2)
            if cons.mn.startswith('v_permlane'): need=max(need,2)
            if cons.mn.startswith('v_readlane') or cons.mn.startswith('v_readfirstlane'): need=max(need,1)
            if prod.is_trans() and cons.kind=='valu' and not cons.is_trans(): need=max(need,1)
            if ('sdwa' in prod.mn or 'op_sel' in prod.mods) and cons.kind=='valu' and ('dst_sel:WORD' in prod.mods or 'dst_sel:BYTE' in prod.mods or (prod.mn.startswith('v_cvt') and 'op_sel' in prod.mods)): need=max(need,1)
        if ps:
            if cons.kind=='vmem' and (ps & sregs(cu)): need=max(need,5)
            if cons.kind in('valu',) and (ps & sregs(cu)):
                need=max(need,2)
                if cons.mn.startswith('v_readlane') or cons.mn.startswith('v_writelane'): need=max(need,4)
            if cons.kind in ('salu','branch','smem') and (ps & sregs(cu)): need=max(need,4)
            if ('s','exec_lo') in ps:
                if cons.is_dpp(): need=max(need,5)
                if cons.kind=='mfma': need=max(need,4)
                if cons.mn.startswith('v_readlane') or cons.mn.startswith('v_readfirstlane') or cons.mn.startswith('v_permlane'): need=max(need,4)
    if prod.kind=='salu':
        if ('s','m0') in ps and cons.kind=='vmem' and ('s','m0') in cu: need=max(need,1)
    if prod.kind=='mfma':
        p=prod.passes()
        D=vregs(pd)
        if cons.kind=='mfma':
            c_regs=set(regs_of(cons.ops[3])); ab=set(regs_of(cons.ops[1])+regs_of(cons.ops[2]))
            if D & ab: need=max(need, 12 if p==8 else 8)
            if D & c_regs:
                if not (c_regs==D and cons.passes()==p): need=max(need, 10 if p==8 else 6)
            elif D & vregs(cd): need=max(need, 10 if p==8 else 6)
        elif cons.kind in ('valu','vmem','ds'):
            if D & (vregs(cu)|vregs(cd)): need=max(need, 12 if p==8 else 8)
        if cons.kind=='valu':
            c=set(regs_of(prod.ops[3]))
            if c & vregs(cd): need=max(need, 7 if p==8 else 3)
    if prod.kind=='vmem' and cons.kind=='valu':
        if ('x4' in prod.mn or 'x3' in prod.mn) and 'store' in prod.mn:
            data = regs_of(prod.ops[0]) if prod.mn.startswith('buffer') else regs_of(prod.ops[1])
            if set(data) & vregs(cd): need=max(need,2)
    return need

def hazard_fix(lines, window=24, verbose=False):
    ins=[Ins(l) for l in lines]
    out=[]; nfix=0
    for c in ins:
        if c.kind in ('empty','dir','label'):
            out.append(c); continue
        dist=0; add=0
        for p in reversed(out):
            if p.kind in ('empty','dir','label'): continue
            if dist>=window: break
            need=required(p,c)
            if need>dist: add=max(add,need-dist)
            dist+=p.states()
        if add:
            nfix+=1
            rem=add
            while rem>0:
                k=min(rem,16); out.append(Ins(f"s_nop {k-1}")); rem-=k
        out.append(c)
    labels={c.label:i for i,c in enumerate(out) if c.kind=='label'}
    probs=[]
    for i,c in enumerate(out):
        if c.kind=='branch' and c.ops and c.ops[0] in labels:
            tgt=labels[c.ops[0]]
            tail=[x for x in out[max(0,i-40):i+1] if x.kind not in('empty','dir','label')]
            head=[x for x in out[tgt:tgt+40] if x.kind not in('empty','dir','label')]
            for hi,h in enumerate(head[:window]):
                dist=sum(x.states() for x in head[:hi])
                for p in reversed(tail):
                    if dist>=window: break
                    need=required(p,h)
                    if need>dist: probs.append(f"branch->{c.ops[0]}: '{p.text.strip()}' -> '{h.text.strip()}' need {need} have {dist}")
                    dist+=p.states()
    return [c.text for c in out], nfix, probs

WAIT_RE=re.compile(r'(vmcnt|lgkmcnt)\((\d+)\)')
def wait_lint(lines, follow_loops=1):
    ins=[Ins(l) for l in lines]
    labels={c.label:i for i,c in enumerate(ins) if c.kind=='label'}
    vm=[]; lg=[]; errs=[]; taken={}
    i=0; steps=0
    while i<len(ins) and steps<400000:
        steps+=1
        c=ins[i]
        if c.kind in('empty','dir','label'): i+=1; continue
        if c.kind=='wait':
            for k,n in WAIT_RE.findall(c.text):
                n=int(n)
                if k=='vmcnt':
                    while len(vm)>n: vm.pop(0)
                else:
                    if any(x[1]=='smem' for x in lg) and n>0: errs.append(f"line {i}: counted lgkmcnt with smem pending: {c.text}")
                    while len(lg)>n: lg.pop(0)
            i+=1; continue
        touched=set(c.uses)|set(c.defs)
        for q,name in ((vm,'vm'),(lg,'lgkm')):
            for (regs,kind,txt) in q:
                hit=regs & touched
                if hit:
                    if (c.kind in('ds','vmem')) and not (regs & set(c.uses)) : continue
                    if c.kind=='ds' and 'd16' in c.mn and name=='lgkm': continue
                    errs.append(f"line {i}: '{c.text.strip()}' touches {sorted(hit)[:4]} pending from '{txt.strip()}'")
        if c.kind=='vmem': vm.append((set(c.defs),'vmem',c.text))
        if c.kind=='ds': lg.append((set(c.defs),'ds',c.text))
        if c.kind=='smem':
            lg.append((set(c.defs),'smem',c.text))
        if len(vm)>63: errs.append(f"line {i}: vmcnt overflow {len(vm)}")
        if c.mn=='s_endpgm':
            i+=1; continue
        if c.kind=='branch' and c.ops and c.ops[0] in labels:
            t=labels[c.ops[0]]
            if t<=i:
                n=taken.get(i,0)
                if n<follow_loops: taken[i]=n+1; i=t; continue
        i+=1
    return errs

class Asm:
    def __init__(self): self.L=[]
    def __call__(self, s):
        for l in s.split('\n'):
            l=l.strip()
            if l: self.L.append(l)
    def c(self, s): self.L.append('; '+s)
    def extend(self, ls): self.L.extend(ls)

def interleave(primary, fillers, per=None, start=0):
    out=[]; n=len(primary)-start; nf=len(fillers); fi=0
    for i,p in enumerate(primary):
        out.extend(p if isinstance(p,list) else [p])
        if i>=start:
            tgt = (nf*(i-start+1)+n-1)//n if per is None else min(nf,(i-start+1)*per)
            while fi<tgt: out.append(fillers[fi]); fi+=1
    out.extend(fillers[fi:])
    return out
```

```python
import sys, math
sys.path.insert(0, "gen")
from asmlib import *

KNAME = "sequential_preLN__ssm_conv_s4d__swiglu_ffn__prompt_kernel"
L_, D_, N_, F_ = 2048, 448, 256, 1792
NWG = 224

WS_EPOCH = 0
WS_CNT2  = 4096
WS_CNT3  = 12288
WS_STATS = 32768
WS_HT    = 1 << 20
WS_M     = 4 << 20
WS_JF    = 65536
WS_CSF   = 131072
WS_CS    = 147456
WS_XT    = 12 << 20
WS_WF1   = 18 << 20
WS_WFD   = 22 << 20
WS_DBG   = 32 << 20
WS_TS    = 16 << 20
WS_SIZE  = 268435456

KG_PITCH = 528
KG_WAVE  = 53 * KG_PITCH
LDS_KX   = 112000
KX_COPY  = 4160
KX_CH    = 4 * KX_COPY
LDS_U    = LDS_KX + 2 * KX_CH
U_CH     = 4608
LDS_XT   = LDS_U + 2 * U_CH
XT_CH    = 4096
LDS_TOTAL = 163840
assert LDS_XT + 2 * XT_CH <= LDS_TOTAL
LDS_JOB = LDS_KX
LDS_CSP = LDS_KX + 32768
assert LDS_CSP + 512 <= LDS_U

S_WG=2
S_X=8; S_LOGA=10; S_AIM=12; S_CR=14; S_CI=16; S_LOGDT=18; S_DSK=20; S_BX=22
S_WGT=24; S_WUP=26; S_WD=28; S_OUT=30; S_DBG=32; S_WS=34
SRD_X=36; SRD_WS=40; SRD_W=44; SRD_W2=48
S_W=52
S_CH=53
S_NH=54
S_D0=55
S_TAG=56
S_I=57; S_J=58
S_T0=60
S_YS=80
S_DSKV=81
S_DT=82
S_W1I=83
S_JDST=84
S_JL=85
S_GW=59
S_JE=78
S_JK=79

LOG2E = 1.4426950408889634
INV2PI = 0.15915494309189535
def f2u(x):
    import struct
    return struct.unpack('<I', struct.pack('<f', x))[0]
def fl(x): return hex(f2u(x))

class Gen:
    def __init__(self, stop_after=None, dbg=False, mimic=2, ts=False, perturb=0.0):
        self.A = Asm(); self.stop_after = stop_after; self.dbg = dbg; self.mimic = mimic
        self.nlab = 0; self.ts=ts; self.nts=0; self.tsnames=[]; self.perturb=perturb; self.tsonly=None
    def stamp(self, name):
        if not self.ts: return
        if self.tsonly is not None and name not in self.tsonly: return
        k=self.nts; self.nts+=1; self.tsnames.append(name); assert k<16
        A=self.A
        A("s_waitcnt lgkmcnt(0)")
        A("s_memrealtime s[6:7]")
        A("s_waitcnt lgkmcnt(0)")
        A(f"s_mov_b32 s{86+k}, s6")
    def lab(self, p='L'):
        self.nlab += 1; return f"{p}_{self.nlab}"

    def prologue(self):
        A = self.A
        A(f"s_cmp_ge_u32 s{S_WG}, {NWG}")
        A("s_cbranch_scc1 L_end")
        if self.ts:
            A("s_memrealtime s[6:7]")
            A("s_waitcnt lgkmcnt(0)")
            A("s_mov_b32 s86, s6"); self.nts=1; self.tsnames.append('start')
        A(f"s_load_dwordx16 s[8:23], s[0:1], 0")
        A(f"s_load_dwordx8 s[24:31], s[0:1], 64")
        A(f"s_load_dwordx4 s[32:35], s[0:1], 96")
        A("s_getpc_b64 s[4:5]")
        A("L_pc:")
        A("v_lshlrev_b32 v1, 7, v0")
        A("v_min_u32 v1, (L_codeend-L_pc-4), v1")
        A("global_load_dword v255, v1, s[4:5]")
        A("v_lshrrev_b32 v2, 6, v0")
        A("v_and_b32 v1, 63, v0")
        A(f"v_readfirstlane_b32 s{S_W}, v2")
        A(f"s_lshr_b32 s{S_CH}, s{S_W}, 1")
        A(f"s_and_b32 s{S_NH}, s{S_W}, 1")
        A(f"s_and_b32 s{S_T0}, s{S_WG}, 7")
        A(f"s_mul_i32 s{S_T0}, s{S_T0}, 28")
        A(f"s_lshr_b32 s{S_T0+1}, s{S_WG}, 3")
        A(f"s_add_u32 s{S_T0}, s{S_T0}, s{S_T0+1}")
        A(f"s_lshl_b32 s{S_D0}, s{S_T0}, 1")
        A(f"s_mul_i32 s{S_T0+2}, s{S_T0+1}, 37")
        A(f"s_lshr_b32 s{S_T0+2}, s{S_T0+2}, 8")
        A(f"s_mul_i32 s{S_T0+3}, s{S_T0+2}, 7")
        A(f"s_sub_u32 s{S_T0+3}, s{S_T0+1}, s{S_T0+3}")
        A(f"s_and_b32 s{S_T0+4}, s{S_WG}, 7")
        A(f"s_lshr_b32 s{S_T0+5}, s{S_T0+4}, 1")
        A(f"s_lshl_b32 s{S_T0+5}, s{S_T0+5}, 2")
        A(f"s_add_u32 s{S_I}, s{S_T0+5}, s{S_T0+2}")
        A(f"s_and_b32 s{S_T0+4}, s{S_T0+4}, 1")
        A(f"s_mul_i32 s{S_T0+4}, s{S_T0+4}, 7")
        A(f"s_add_u32 s{S_J}, s{S_T0+4}, s{S_T0+3}")

def q7check():
    for q in range(28): assert (q*37)>>8 == q//7, q
q7check()

def add_method(f):
    setattr(Gen, f.__name__, f); return f

V_LANE=1
V_T=0
V_ZERO=2
V_XG=8
V_OFF=16
V_EP=27
V_PA=28
V_SX=36
V_TMP=48

@add_method
def phase0_loads(self):
    A=self.A
    A("s_waitcnt lgkmcnt(0)")
    self.stamp('kernarg')
    A(f"s_mov_b32 s{SRD_X}, s{S_X}\ns_mov_b32 s{SRD_X+1}, s{S_X+1}\ns_mov_b32 s{SRD_X+2}, {L_*D_*2}\ns_mov_b32 s{SRD_X+3}, 0x20000")
    A(f"s_mov_b32 s{SRD_WS}, s{S_WS}\ns_mov_b32 s{SRD_WS+1}, s{S_WS+1}\ns_mov_b32 s{SRD_WS+2}, {WS_SIZE}\ns_mov_b32 s{SRD_WS+3}, 0x20000")
    A(f"v_mov_b32 v{V_ZERO}, 0")
    A(f"s_lshl_b32 s{S_GW}, s{S_WG}, 2")
    A(f"s_add_u32 s{S_GW}, s{S_GW}, s{S_W}")
    l=self.lab()
    A(f"s_cmp_lg_u32 s{S_WG}, 0")
    A(f"s_cbranch_scc1 {l}")
    A("v_mov_b32 v4, 0\nv_mov_b32 v5, 0\nv_mov_b32 v6, 0\nv_mov_b32 v7, 0")
    A(f"v_lshlrev_b32 v3, 4, v{V_T}")
    for k in range(4):
        A(f"s_mov_b32 s{S_T0+5}, {WS_CNT2+4096*k}")
        A(f"buffer_store_dwordx4 v[4:7], v3, s[{SRD_WS}:{SRD_WS+3}], s{S_T0+5} offen sc1")
    A(f"{l}:")
    A(f"s_add_u32 s{S_T0+3}, s{S_D0}, s{S_CH}")
    A(f"s_lshl_b32 s{S_T0+3}, s{S_T0+3}, 9")
    A(f"s_lshl_b32 s{S_T0+4}, s{S_NH}, 8")
    A(f"s_add_u32 s{S_T0+3}, s{S_T0+3}, s{S_T0+4}")
    A(f"v_lshl_add_u32 v8, v{V_LANE}, 2, s{S_T0+3}")
    A(f"v_xor_b32 v9, 256, v8")
    A(f"global_load_dword v{V_PA}, v8, s[{S_LOGA}:{S_LOGA+1}]")
    A(f"global_load_dword v{V_PA+1}, v8, s[{S_AIM}:{S_AIM+1}]")
    A(f"global_load_dword v{V_PA+2}, v8, s[{S_CR}:{S_CR+1}]")
    A(f"global_load_dword v{V_PA+3}, v8, s[{S_CI}:{S_CI+1}]")
    A(f"global_load_dword v{V_PA+4}, v9, s[{S_CR}:{S_CR+1}]")
    A(f"global_load_dword v{V_PA+5}, v9, s[{S_CI}:{S_CI+1}]")
    A(f"s_lshl_b32 s{S_T0+4}, s{S_D0}, 1")
    A(f"s_load_dword s{S_DT}, s[{S_LOGDT}:{S_LOGDT+1}], s{S_T0+4}")
    A(f"s_load_dword s{S_DSKV}, s[{S_DSK}:{S_DSK+1}], s{S_T0+4}")
    A(f"global_load_dword v{V_EP}, v{V_ZERO}, s[{S_WS}:{S_WS+1}] sc1")
    self.xjob_issue()
    self.stamp('all issued')
    A(f"v_lshlrev_b32 v48, 3, v{V_T}")
    for x in range(11):
        o=V_OFF+x
        A(f"v_sub_u32 v49, {2047-x}, v48")
        A(f"v_cvt_f32_i32 v50, v49")
        A(f"v_cvt_pk_bf16_f32 v50, v50, v50")
        A(f"v_and_b32 v50, 0xffff, v50")
        A(f"v_subrev_u32 v50, 17024, v50")
        A(f"v_cmp_gt_i32 vcc, 128, v49")
        A(f"v_cndmask_b32 v50, v50, v49, vcc")
        if x>=8:
            A(f"v_cmp_gt_i32 vcc, 0, v49")
            A(f"v_mov_b32 v51, 768")
            A(f"v_cndmask_b32 v50, v50, v51, vcc")
        A(f"v_lshlrev_b32 v{o}, 1, v50")

LDS_XJ = LDS_KX
XJ_PITCH = 912
LDS_XS = LDS_XJ + 32*XJ_PITCH
NXJ = 64
NWJ = 588

@add_method
def xjob_issue(self):
    A=self.A; l=self.lab()
    A(f"s_cmp_ge_u32 s{S_WG}, {NXJ}")
    A(f"s_cbranch_scc1 {l}")
    A(f"s_lshl_b32 s{S_T0}, s{S_WG}, 5")
    A(f"s_lshl_b32 s{S_T0+1}, s{S_W}, 3")
    A(f"s_add_u32 s{S_T0}, s{S_T0}, s{S_T0+1}")
    A(f"s_mul_i32 s{S_T0}, s{S_T0}, 896")
    A(f"s_mul_i32 s{S_T0+1}, s{S_T0+1}, {XJ_PITCH}")
    A(f"s_add_u32 s{S_T0+1}, s{S_T0+1}, {LDS_XJ}")
    A(f"v_lshlrev_b32 v3, 4, v{V_LANE}")
    A("s_mov_b32 exec_hi, 0x00ffffff")
    for r in range(8):
        A(f"s_add_u32 m0, s{S_T0+1}, {r*XJ_PITCH}")
        A(f"s_add_u32 s{S_T0+2}, s{S_T0}, {r*896}")
        A(f"buffer_load_dwordx4 v3, s[{SRD_X}:{SRD_X+3}], s{S_T0+2} offen lds")
    A("s_mov_b32 exec_hi, -1")
    A(f"{l}:")

@add_method
def xjob_post(self):
    A=self.A; lo=self.lab('Lxo'); le=self.lab('Lxe')
    A(f"s_cmp_ge_u32 s{S_WG}, {NXJ}")
    A(f"s_cbranch_scc1 {lo}")
    A("s_waitcnt vmcnt(0) lgkmcnt(0)")
    A("s_barrier")
    J=64
    A(f"v_and_b32 v50, 31, v{V_LANE}")
    A(f"v_mul_u32_u24 v50, {XJ_PITCH}, v50")
    A(f"v_lshrrev_b32 v51, 5, v{V_LANE}")
    A(f"v_lshl_add_u32 v50, v51, 4, v50")
    A(f"s_mul_i32 s{S_T0}, s{S_W}, {7*32}")
    A(f"s_add_u32 s{S_T0+1}, s{S_T0}, {LDS_XJ}")
    A(f"v_add_u32 v50, s{S_T0+1}, v50")
    for i in range(7): A(f"ds_read_b128 v[{J+4*i}:{J+4*i+3}], v50 offset:{i*32}")
    A(f"v_lshrrev_b32 v52, 4, v{V_LANE}")
    A(f"v_lshlrev_b32 v52, 3, v52")
    A(f"v_bfe_u32 v53, v{V_LANE}, 2, 2")
    A(f"v_add_u32 v52, v52, v53")
    A(f"v_mul_u32_u24 v52, {XJ_PITCH}, v52")
    A(f"v_and_b32 v53, 3, v{V_LANE}")
    A(f"v_lshl_add_u32 v52, v53, 3, v52")
    A(f"v_add_u32 v52, s{S_T0+1}, v52")
    X=96
    for i in range(4):
        A(f"ds_read_b64_tr_b16 v[{X+4*i}:{X+4*i+1}], v52 offset:{i*32}")
        A(f"ds_read_b64_tr_b16 v[{X+4*i+2}:{X+4*i+3}], v52 offset:{i*32+4*XJ_PITCH}")
    A("v_mov_b32 v54, 0x3f803f80\nv_mov_b32 v56, 0\nv_mov_b32 v57, 0\nv_mov_b32 v58, 0\nv_mov_b32 v59, 0")
    A(f"v_and_b32 v53, 15, v{V_LANE}")
    A(f"v_lshlrev_b32 v53, 6, v53")
    A(f"v_lshrrev_b32 v55, 4, v{V_LANE}")
    A(f"v_lshl_add_u32 v53, v55, 4, v53")
    A(f"s_mul_i32 s{S_T0+2}, s{S_WG}, 448")
    A(f"s_mul_i32 s{S_T0+3}, s{S_W}, {7*16}")
    A(f"s_add_u32 s{S_T0+2}, s{S_T0+2}, s{S_T0+3}")
    A(f"s_lshl_b32 s{S_T0+2}, s{S_T0+2}, 6")
    A(f"s_add_u32 s{S_T0+2}, s{S_T0+2}, {WS_XT}")
    A("s_waitcnt lgkmcnt(8)")
    for i in range(28):
        A(f"v_dot2_f32_bf16 v{56+(i&1)}, v{J+i}, v54, v{56+(i&1)}")
        A(f"v_dot2_f32_bf16 v{58+(i&1)}, v{J+i}, v{J+i}, v{58+(i&1)}")
    for i in range(4,7):
        A(f"ds_read_b64_tr_b16 v[{X+4*i}:{X+4*i+1}], v52 offset:{i*32}")
        A(f"ds_read_b64_tr_b16 v[{X+4*i+2}:{X+4*i+3}], v52 offset:{i*32+4*XJ_PITCH}")
    A("v_add_f32 v56, v56, v57\nv_add_f32 v57, v58, v59")
    A("v_mov_b32 v58, v56\nv_mov_b32 v59, v57")
    A("v_permlane32_swap_b32 v56, v58\nv_permlane32_swap_b32 v57, v59")
    A("v_add_f32 v56, v56, v58\nv_add_f32 v57, v57, v59")
    A(f"v_and_b32 v60, 31, v{V_LANE}")
    A(f"v_lshlrev_b32 v60, 5, v60")
    A(f"v_add_u32 v60, {LDS_XS}, v60")
    A(f"s_lshl_b32 s{S_T0+3}, s{S_W}, 3")
    A(f"v_add_u32 v61, s{S_T0+3}, v60")
    A("ds_write_b64 v61, v[56:57]")
    for i in range(7):
        A(f"s_waitcnt lgkmcnt({min(15,2*(6-i)+1) if i<4 else 2*(6-i)+1})")
        A(f"s_add_u32 s{S_T0+3}, s{S_T0+2}, {i*1024}")
        A(f"buffer_store_dwordx4 v[{X+4*i}:{X+4*i+3}], v53, s[{SRD_WS}:{SRD_WS+3}], s{S_T0+3} offen sc1")
    A("s_waitcnt lgkmcnt(0)")
    A("s_barrier")
    l2=self.lab()
    A(f"v_readfirstlane_b32 s{S_TAG}, v{V_EP}")
    A(f"s_add_u32 s{S_TAG}, s{S_TAG}, 0x9E3779B9")
    A(f"s_cmp_lg_u32 s{S_W}, 0")
    A(f"s_cbranch_scc1 {l2}")
    A("ds_read_b128 v[64:67], v60\nds_read_b128 v[68:71], v60 offset:16")
    A("s_waitcnt lgkmcnt(0)")
    A("v_add_f32 v64, v64, v66\nv_add_f32 v65, v65, v67\nv_add_f32 v68, v68, v70\nv_add_f32 v69, v69, v71")
    A("v_add_f32 v64, v64, v68\nv_add_f32 v65, v65, v69")
    A(f"v_mul_f32 v64, {fl(1.0/448)}, v64")
    A(f"v_mul_f32 v65, {fl(1.0/448)}, v65")
    A("v_fma_f32 v65, -v64, v64, v65")
    A("v_max_f32 v65, 0, v65")
    A("v_cvt_pk_bf16_f32 v65, v65, v65")
    A("v_lshlrev_b32 v65, 16, v65")
    A(f"v_add_f32 v65, {fl(1e-5)}, v65")
    A("v_cvt_pk_bf16_f32 v65, v65, v65")
    A("v_lshlrev_b32 v65, 16, v65")
    A("v_sqrt_f32 v65, v65")
    A("v_cvt_pk_bf16_f32 v66, v65, v64")
    A(f"v_mov_b32 v67, s{S_TAG}")
    A(f"v_and_b32 v68, 31, v{V_LANE}")
    A("v_lshlrev_b32 v68, 3, v68")
    A(f"s_lshl_b32 s{S_T0+3}, s{S_WG}, 8")
    A(f"s_add_u32 s{S_T0+3}, s{S_T0+3}, {WS_STATS}")
    A("s_mov_b32 exec_hi, 0")
    A(f"buffer_store_dwordx2 v[66:67], v68, s[{SRD_WS}:{SRD_WS+3}], s{S_T0+3} offen sc1")
    A("s_mov_b32 exec_hi, -1")
    A(f"{l2}:")
    A(f"s_branch {le}")
    A(f"{lo}:")
    A("s_waitcnt vmcnt(0)")
    A(f"v_readfirstlane_b32 s{S_TAG}, v{V_EP}")
    A(f"s_add_u32 s{S_TAG}, s{S_TAG}, 0x9E3779B9")
    A(f"{le}:")

@add_method
def wjob_issue(self):
    A=self.A; le=self.lab('Lwe'); ld=self.lab('Lwd'); lc=self.lab('Lwc')
    A(f"s_mov_b32 s{S_JDST}, 0")
    A(f"s_cmp_lt_u32 s{S_GW}, 256")
    A(f"s_cbranch_scc1 {le}")
    A(f"s_sub_u32 s{S_T0}, s{S_GW}, 256")
    A(f"s_cmp_ge_u32 s{S_T0}, {NWJ}")
    A(f"s_cbranch_scc1 {le}")
    A(f"s_lshl_b32 s{S_JL}, s{S_W}, 13")
    A(f"s_add_u32 s{S_JL}, s{S_JL}, {LDS_JOB}")
    A(f"s_cmp_ge_u32 s{S_T0}, 392")
    A(f"s_cbranch_scc1 {ld}")
    A(f"s_cmp_ge_u32 s{S_T0}, 196")
    A(f"s_cselect_b32 s{SRD_W}, s{S_WUP}, s{S_WGT}")
    A(f"s_cselect_b32 s{SRD_W+1}, s{S_WUP+1}, s{S_WGT+1}")
    A(f"s_cselect_b32 s{S_T0+1}, 1, 0")
    A(f"s_mul_i32 s{S_T0+2}, s{S_T0+1}, 196")
    A(f"s_sub_u32 s{S_T0+2}, s{S_T0}, s{S_T0+2}")
    A(f"s_mul_i32 s{S_T0+3}, s{S_T0+2}, 9363")
    A(f"s_lshr_b32 s{S_T0+3}, s{S_T0+3}, 16")
    A(f"s_mul_i32 s{S_T0+4}, s{S_T0+3}, 7")
    A(f"s_sub_u32 s{S_T0+4}, s{S_T0+2}, s{S_T0+4}")
    A(f"s_movk_i32 s{S_T0+5}, 3584")
    A(f"s_lshl_b32 s{S_T0+6}, s{S_T0+3}, 2")
    A(f"s_add_u32 s{S_T0+6}, s{S_T0+6}, s{S_T0+1}")
    A(f"s_mul_i32 s{S_T0+6}, s{S_T0+6}, 28")
    A(f"s_lshl_b32 s{S_T0+7}, s{S_T0+4}, 2")
    A(f"s_add_u32 s{S_T0+6}, s{S_T0+6}, s{S_T0+7}")
    A(f"s_lshl_b32 s{S_T0+6}, s{S_T0+6}, 10")
    A(f"s_add_u32 s{S_JDST}, s{S_T0+6}, {WS_WF1}")
    A(f"s_mov_b32 s{S_JE}, {56*1024}")
    A(f"s_movk_i32 s{S_JK}, 0x0409")
    A(f"s_branch {lc}")
    A(f"{ld}:")
    A(f"s_mov_b32 s{SRD_W}, s{S_WD}")
    A(f"s_mov_b32 s{SRD_W+1}, s{S_WD+1}")
    A(f"s_sub_u32 s{S_T0+2}, s{S_T0}, 392")
    A(f"s_mul_i32 s{S_T0+3}, s{S_T0+2}, 2341")
    A(f"s_lshr_b32 s{S_T0+3}, s{S_T0+3}, 16")
    A(f"s_mul_i32 s{S_T0+4}, s{S_T0+3}, 28")
    A(f"s_sub_u32 s{S_T0+4}, s{S_T0+2}, s{S_T0+4}")
    A(f"s_movk_i32 s{S_T0+5}, 896")
    A(f"s_mul_i32 s{S_T0+6}, s{S_T0+3}, 224")
    A(f"s_lshl_b32 s{S_T0+7}, s{S_T0+4}, 2")
    A(f"s_add_u32 s{S_T0+6}, s{S_T0+6}, s{S_T0+7}")
    A(f"s_lshl_b32 s{S_T0+6}, s{S_T0+6}, 10")
    A(f"s_add_u32 s{S_JDST}, s{S_T0+6}, {WS_WFD}")
    A(f"s_mov_b32 s{S_JE}, {112*1024}")
    A(f"s_movk_i32 s{S_JK}, 0x0809")
    A(f"{lc}:")
    A(f"s_mov_b32 s{SRD_W+2}, {D_*F_*2}")
    A(f"s_mov_b32 s{SRD_W+3}, 0x20000")
    A(f"v_lshrrev_b32 v48, 3, v{V_LANE}")
    A(f"v_mul_lo_u32 v48, v48, s{S_T0+5}")
    A(f"v_bfe_u32 v49, v{V_LANE}, 4, 1")
    A(f"v_lshlrev_b32 v49, 2, v49")
    A(f"v_and_b32 v50, 7, v{V_LANE}")
    A(f"v_xor_b32 v49, v49, v50")
    A(f"v_lshl_add_u32 v48, v49, 4, v48")
    A(f"s_lshl_b32 s{S_T0+6}, s{S_T0+4}, 6")
    A(f"s_mul_i32 s{S_T0+6}, s{S_T0+6}, s{S_T0+5}")
    A(f"s_lshl_b32 s{S_T0+7}, s{S_T0+3}, 7")
    A(f"s_add_u32 s{S_T0+6}, s{S_T0+6}, s{S_T0+7}")
    A(f"s_lshl_b32 s{S_T0+7}, s{S_T0+5}, 3")
    for i in range(8):
        A(f"s_add_u32 m0, s{S_JL}, {i*1024}")
        A(f"buffer_load_dwordx4 v48, s[{SRD_W}:{SRD_W+3}], s{S_T0+6} offen lds")
        if i<7: A(f"s_add_u32 s{S_T0+6}, s{S_T0+6}, s{S_T0+7}")
    A(f"{le}:")

for _u in range(196): assert (_u*9363)>>16 == _u//7
for _u in range(196): assert (_u*2341)>>16 == _u//28

@add_method
def wjob_post(self):
    A=self.A; le=self.lab('Lwp')
    A(f"s_cmp_eq_u32 s{S_JDST}, 0")
    A(f"s_cbranch_scc1 {le}")
    J=64
    A(f"s_and_b32 s{S_T0}, s{S_JK}, 0xff")
    A(f"s_lshr_b32 s{S_T0+1}, s{S_JK}, 8")
    A(f"s_cmp_eq_u32 s{S_T0+1}, 4")
    A(f"s_cselect_b32 s{S_T0}, 10, 9")
    A(f"s_lshl_b32 s{S_T0+1}, s{S_T0+1}, 7")
    A(f"v_lshrrev_b32 v50, 5, v{V_LANE}")
    A(f"v_lshlrev_b32 v50, s{S_T0}, v50")
    A(f"v_bfe_u32 v51, v{V_LANE}, 2, 2")
    A(f"v_lshl_add_u32 v50, v51, 7, v50")
    A(f"v_lshrrev_b32 v51, 1, v51")
    A(f"v_lshlrev_b32 v51, 2, v51")
    A(f"v_bfe_u32 v52, v{V_LANE}, 4, 1")
    A(f"v_bfe_u32 v53, v{V_LANE}, 1, 1")
    A(f"v_lshl_add_u32 v52, v52, 1, v53")
    A(f"v_xor_b32 v51, v51, v52")
    A(f"v_lshl_add_u32 v50, v51, 4, v50")
    A(f"v_and_b32 v51, 1, v{V_LANE}")
    A(f"v_lshl_add_u32 v50, v51, 3, v50")
    A(f"v_add_u32 v50, s{S_JL}, v50")
    A(f"v_add_u32 v51, s{S_T0+1}, v50")
    A(f"v_xor_b32 v52, 64, v50")
    A(f"v_xor_b32 v53, 64, v51")
    A(f"v_lshlrev_b32 v54, 4, v{V_LANE}")
    A("s_waitcnt vmcnt(0)")
    def rd(k):
        kap,e=k>>1,k&1; r=J+4*k
        A(f"ds_read_b64_tr_b16 v[{r}:{r+1}], v{50+2*e} offset:{kap*2048}")
        A(f"ds_read_b64_tr_b16 v[{r+2}:{r+3}], v{51+2*e} offset:{kap*2048}")
    for k in range(6): rd(k)
    for k in range(8):
        kap,e=k>>1,k&1; r=J+4*k
        issued=min(8,6+k)
        A(f"s_waitcnt lgkmcnt({2*(issued-1-k)})")
        if e==0: A(f"s_add_u32 s{S_T0+2}, s{S_JDST}, {kap*1024}")
        else:
            A(f"s_add_u32 s{S_T0+2}, s{S_JDST}, s{S_JE}")
            A(f"s_add_u32 s{S_T0+2}, s{S_T0+2}, {kap*1024}")
        A(f"buffer_store_dwordx4 v[{r}:{r+3}], v54, s[{SRD_WS}:{SRD_WS+3}], s{S_T0+2} offen sc1")
        if 6+k<8: rd(6+k)
    A(f"{le}:")

@add_method
def job_flag(self, which):
    A=self.A; l=self.lab()
    if which=='x':
        A(f"s_cmp_ge_u32 s{S_GW}, 256")
        A(f"s_cbranch_scc1 {l}")
    else:
        A(f"s_cmp_eq_u32 s{S_JDST}, 0")
        A(f"s_cbranch_scc1 {l}")
    A("s_waitcnt vmcnt(0)")
    A(f"s_lshl_b32 s{S_T0+10}, s{S_GW}, 6")
    A(f"s_add_u32 s{S_T0+10}, s{S_T0+10}, {WS_JF}")
    A(f"v_mov_b32 v47, s{S_TAG}")
    A("s_mov_b64 exec, 1")
    A(f"buffer_store_dword v47, v{V_ZERO}, s[{SRD_WS}:{SRD_WS+3}], s{S_T0+10} offen sc1")
    A("s_mov_b64 exec, -1")
    A(f"{l}:")

def bf16_lo(dst, src): return f"v_lshlrev_b32 v{dst}, 16, v{src}"
def bf16_hi(dst, src): return f"v_and_b32 v{dst}, 0xffff0000, v{src}"

def cmul(A, R, P, Z, T):
    A(f"v_pk_mul_f32 v[{T}:{T+1}], v[{P}:{P+1}], v[{Z}:{Z+1}] op_sel_hi:[0,1]")
    A(f"v_pk_fma_f32 v[{R}:{R+1}], v[{P}:{P+1}], v[{Z}:{Z+1}], v[{T}:{T+1}] op_sel:[1,1,0] op_sel_hi:[1,0,1] neg_lo:[1,0,0]")

def kreg(e,name):
    names=['C','Z1','Z2','Z4','Z8','Z256','P','Q','R','T','X0','X1']
    return [128,152][e]+2*names.index(name)
ROWS=[0,1,2,3,4,5,6,7,256,258,260,262,512,516,768,772,1024,1280,1536,1792,2048]

@add_method
def kgen_setup(self):
    A=self.A
    A("s_waitcnt lgkmcnt(0)")
    A(f"s_lshl_b32 s{S_T0}, s{S_CH}, 4")
    A(f"s_lshr_b32 s{S_DT}, s{S_DT}, s{S_T0}")
    A(f"s_lshl_b32 s{S_DT}, s{S_DT}, 16")
    A(f"s_lshr_b32 s{S_DSKV}, s{S_DSKV}, s{S_T0}")
    A(f"s_lshl_b32 s{S_DSKV}, s{S_DSKV}, 16")
    DT=48
    A(f"v_mov_b32 v{DT}, s{S_DT}")
    A(f"v_mul_f32 v{DT}, {fl(LOG2E)}, v{DT}")
    A(f"v_exp_f32 v{DT}, v{DT}")
    A(f"v_cvt_pk_bf16_f32 v{DT}, v{DT}, v{DT}")
    A(f"v_lshlrev_b32 v{DT}, 16, v{DT}")
    A(f"v_and_b32 v50, 0x7fff7fff, v{V_PA+2}")
    A(f"v_and_b32 v51, 0x7fff7fff, v{V_PA+3}")
    A(f"v_and_b32 v52, 0x7fff7fff, v{V_PA+4}")
    A(f"v_and_b32 v53, 0x7fff7fff, v{V_PA+5}")
    A("v_pk_max_u16 v50, v50, v51")
    A("v_pk_max_u16 v52, v52, v53")
    A("v_pk_max_u16 v50, v50, v52")
    A("v_lshrrev_b32 v51, 16, v50")
    A("v_and_b32 v50, 0xffff, v50")
    A("v_max_u32 v50, v50, v51")
    for mode in ["row_shr:1 row_mask:0xf bank_mask:0xf bound_ctrl:0","row_shr:2 row_mask:0xf bank_mask:0xf bound_ctrl:0",
                 "row_shr:4 row_mask:0xf bank_mask:0xf bound_ctrl:0","row_shr:8 row_mask:0xf bank_mask:0xf bound_ctrl:0",
                 "row_bcast:15 row_mask:0xa bank_mask:0xf","row_bcast:31 row_mask:0xc bank_mask:0xf"]:
        A(f"v_max_u32_dpp v50, v50, v50 {mode}")
    A(f"v_readlane_b32 s{S_T0}, v50, 63")
    A(f"s_lshr_b32 s{S_T0}, s{S_T0}, 7")
    A(f"s_max_u32 s{S_T0}, s{S_T0}, 1")
    A(f"s_min_u32 s{S_T0}, s{S_T0}, 253")
    A(f"s_sub_u32 s{S_T0+1}, 254, s{S_T0}")
    A(f"s_lshl_b32 s{S_T0+1}, s{S_T0+1}, 23")
    A(f"s_lshl_b32 s{S_T0}, s{S_T0}, 23")
    A(f"v_add_f32 v49, v{DT}, v{DT}")
    A(f"v_mul_f32 v49, s{S_T0}, v49")
    A(f"v_readfirstlane_b32 s{S_YS}, v49")
    AR=[50,51]; TH=[52,53]
    reg=kreg
    for e in range(2):
        un = bf16_lo if e==0 else bf16_hi
        A(un(AR[e], V_PA)); A(un(TH[e], V_PA+1))
        A(un(reg(e,'C'), V_PA+2)); A(un(reg(e,'C')+1, V_PA+3))
    for e in range(2):
        A(f"v_mul_f32 v{AR[e]}, {fl(LOG2E)}, v{AR[e]}")
    for e in range(2): A(f"v_exp_f32 v{AR[e]}, v{AR[e]}")
    for e in range(2):
        A(f"v_cvt_pk_bf16_f32 v{AR[e]}, v{AR[e]}, v{AR[e]}")
    for e in range(2):
        A(f"v_lshlrev_b32 v{AR[e]}, 16, v{AR[e]}")
    for e in range(2):
        A(f"v_mul_f32 v{AR[e]}, v{AR[e]}, v{DT}")
        A(f"v_mul_f32 v{TH[e]}, v{TH[e]}, v{DT}")
    for e in range(2):
        A(f"v_mul_f32 v{AR[e]}, {fl(-LOG2E)}, v{AR[e]}")
        A(f"v_mul_f32 v{TH[e]}, {fl(INV2PI)}, v{TH[e]}")
        c=reg(e,'C')
        A(f"v_mul_f32 v{c}, s{S_T0+1}, v{c}")
        A(f"v_mul_f32 v{c+1}, s{S_T0+1}, v{c+1}")
    for name,p in (('Z1',1.0),('Z8',8.0),('Z256',256.0)):
        for e in range(2):
            z=reg(e,name); x0=reg(e,'X0'); x1=reg(e,'X1')
            if p==1.0:
                A(f"v_exp_f32 v{x0}, v{AR[e]}")
                A(f"v_fract_f32 v{x0+1}, v{TH[e]}")
            else:
                A(f"v_mul_f32 v{x0}, {fl(p)}, v{AR[e]}")
                A(f"v_mul_f32 v{x0+1}, {fl(p)}, v{TH[e]}")
                A(f"v_exp_f32 v{x0}, v{x0}")
                A(f"v_fract_f32 v{x0+1}, v{x0+1}")
            A(f"v_cos_f32 v{x1}, v{x0+1}")
            A(f"v_sin_f32 v{x1+1}, v{x0+1}")
        for e in range(2):
            z=reg(e,name); x0=reg(e,'X0'); x1=reg(e,'X1')
            A(f"v_pk_mul_f32 v[{z}:{z+1}], v[{x1}:{x1+1}], v[{x0}:{x0+1}] op_sel_hi:[1,0]")
    for e in range(2): cmul(A, reg(e,'Z2'), reg(e,'Z1'), reg(e,'Z1'), reg(e,'T'))
    for e in range(2): cmul(A, reg(e,'Z4'), reg(e,'Z2'), reg(e,'Z2'), reg(e,'T'))

@add_method
def kgen_gen(self):
    A=self.A
    reg=kreg
    VA=104
    A(f"s_mul_i32 s{S_T0+2}, s{S_W}, {KG_WAVE}")
    A(f"v_lshl_add_u32 v{VA}, v{V_LANE}, 3, s{S_T0+2}")
    OUT=[106,108,110,112]; oi=[0]
    def emit(idx, name, neg):
        o=OUT[oi[0]%4]; oi[0]+=1
        for e in range(2):
            r=reg(e,name)
            A(f"v_cvt_pk_f16_f32 v{o+e}, v{r}, {'-' if neg else ''}v{r+1}")
        A(f"ds_write_b64 v{VA}, v[{o}:{o+1}] offset:{idx*KG_PITCH}")
    def step(dst, src, z):
        for e in range(2):
            A(f"v_pk_mul_f32 v[{reg(e,'T')}:{reg(e,'T')+1}], v[{reg(e,src)}:{reg(e,src)+1}], v[{reg(e,z)}:{reg(e,z)+1}] op_sel_hi:[0,1]")
        for e in range(2):
            A(f"v_pk_fma_f32 v[{reg(e,dst)}:{reg(e,dst)+1}], v[{reg(e,src)}:{reg(e,src)+1}], v[{reg(e,z)}:{reg(e,z)+1}], v[{reg(e,'T')}:{reg(e,'T')+1}] op_sel:[1,1,0] op_sel_hi:[1,0,1] neg_lo:[1,0,0]")
    emit(0,'C',True)
    step('P','C','Z1'); emit(1,'P',True)
    for r in range(2,8): step('P','P','Z1'); emit(r,'P',True)
    step('Q','C','Z256'); emit(8,'Q',True)
    step('R','Q','Z2'); emit(9,'R',True)
    step('R','R','Z2'); emit(10,'R',True)
    step('R','R','Z2'); emit(11,'R',True)
    step('Q','Q','Z256'); emit(12,'Q',True)
    step('R','Q','Z4'); emit(13,'R',True)
    step('Q','Q','Z256'); emit(14,'Q',True)
    step('R','Q','Z4'); emit(15,'R',True)
    for r in range(16,21): step('Q','Q','Z256'); emit(r,'Q',True)
    self.job_flag('x')
    o=OUT[oi[0]%4]; oi[0]+=1
    A(f"v_mov_b32 v{o}, 0x3c00\nv_mov_b32 v{o+1}, 0x3c00")
    A(f"ds_write_b64 v{VA}, v[{o}:{o+1}] offset:{21*KG_PITCH}")
    emit(22,'Z8',False)
    step('P','Z8','Z8'); emit(23,'P',False)
    for b in range(3,32): step('P','P','Z8'); emit(21+b,'P',False)
    self.stamp('gen done')
    self.wjob_post()
    self.flag_load()
    A(f"s_mul_i32 s{S_T0+2}, s{S_W}, {KG_WAVE}")
    VAa=104; VAb=105
    A(f"v_and_b32 v48, 31, v{V_LANE}")
    A(f"v_min_u32 v49, 20, v48")
    A(f"v_lshrrev_b32 v50, 5, v{V_LANE}")
    A(f"v_lshlrev_b32 v50, 4, v50")
    A(f"v_add_u32 v50, s{S_T0+2}, v50")
    A(f"s_movk_i32 s{S_T0+3}, {KG_PITCH}")
    A(f"v_mad_u32_u24 v{VAa}, v49, s{S_T0+3}, v50")
    A(f"v_mad_u32_u24 v{VAb}, v48, s{S_T0+3}, v50")
    ACC=112
    FR=[64,72,80,88]
    def ld(ks):
        f=FR[ks%4]
        A(f"ds_read_b128 v[{f}:{f+3}], v{VAa} offset:{ks*32}")
        A(f"ds_read_b128 v[{f+4}:{f+7}], v{VAb} offset:{21*KG_PITCH+ks*32}")
    for ks in range(3): ld(ks)
    for ks in range(16):
        if ks+3<16: ld(ks+3)
        nxt=min(15,ks+3)-ks
        A(f"s_waitcnt lgkmcnt({2*nxt})")
        f=FR[ks%4]
        c = "0" if ks==0 else f"v[{ACC}:{ACC+15}]"
        A(f"v_mfma_f32_32x32x16_f16 v[{ACC}:{ACC+15}], v[{f}:{f+3}], v[{f+4}:{f+7}], {c}")
    l1=self.lab(); l2=self.lab()
    A(f"v_lshl_add_u32 v48, v{V_LANE}, 4, s{S_T0+2}")
    A(f"s_cmp_eq_u32 s{S_NH}, 0")
    A(f"s_cbranch_scc1 {l1}")
    for q in range(3): A(f"ds_write_b128 v48, v[{ACC+4*q}:{ACC+4*q+3}] offset:{q*1024}")
    A(f"{l1}:")
    A("s_waitcnt lgkmcnt(0)")
    A("s_barrier")
    A(f"s_cmp_eq_u32 s{S_NH}, 0")
    A(f"s_cbranch_scc0 {l2}")
    for q in range(3): A(f"ds_read_b128 v[{64+4*q}:{64+4*q+3}], v48 offset:{KG_WAVE+q*1024}")
    A(f"v_and_b32 v49, 31, v{V_LANE}")
    A(f"v_lshrrev_b32 v50, 5, v{V_LANE}")
    A(f"v_lshlrev_b32 v51, 4, v49")
    A(f"v_lshl_add_u32 v51, v50, 3, v51")
    A(f"v_add_u32 v51, s{S_T0+2}, v51")
    A(f"v_lshlrev_b32 v52, 3, v49")
    A(f"v_add_u32 v52, 512, v52")
    A(f"v_lshlrev_b32 v53, 2, v49")
    A(f"v_add_u32 v53, 768, v53")
    A(f"v_cmp_eq_u32 vcc, 1, v50")
    A(f"v_cndmask_b32 v52, v52, v53, vcc")
    A(f"v_add_u32 v52, s{S_T0+2}, v52")
    A(f"v_mov_b32 v53, 4")
    A(f"v_mov_b32 v54, 128")
    A(f"v_cndmask_b32 v53, v53, v54, vcc")
    A(f"v_add_u32 v53, v52, v53")
    A(f"v_lshlrev_b32 v54, 1, v49")
    A(f"v_lshl_add_u32 v54, v50, 8, v54")
    A(f"v_add_u32 v54, s{S_T0+2}, v54")
    A("s_waitcnt lgkmcnt(0)")
    for r in range(12):
        A(f"v_add_f32 v{64+r}, v{64+r}, v{ACC+r}")
    for r in range(12):
        A(f"v_cvt_f16_f32 v{64+r}, v{64+r}")
    for r in range(4): A(f"ds_write_b16 v51, v{64+r} offset:{2*r}")
    for r in (4,5): A(f"ds_write_b16 v52, v{64+r} offset:{2*(r-4)}")
    for r in (6,7): A(f"ds_write_b16 v53, v{64+r} offset:{2*(r-6)}")
    for r in range(8,12): A(f"ds_write_b16 v54, v{64+r} offset:{1024+64*(r-8)}")
    A(f"v_mov_b32 v50, 0")
    A(f"v_mov_b32 v51, s{S_T0+2}")
    A(f"ds_write_b16 v51, v50 offset:{2*768}")
    A(f"{l2}:")
    A("s_waitcnt lgkmcnt(0)")
    A("s_barrier")

@add_method
def kexpand(self):
    A=self.A
    D0=64
    def rd(ch,x):
        tb=(2*ch)*KG_WAVE; d=D0+ch*28
        A(f"ds_read_u16 v{d+x}, v{V_OFF+x} offset:{tb}")
    def mk(ch):
        d=D0+ch*28
        for c in range(4):
            for x in range(4):
                A(f"v_lshl_or_b32 v{d+12+4*c+x}, v{d+c+2*x+1}, 16, v{d+c+2*x}")
    def wr(ch):
        d=D0+ch*28
        for c in range(4):
            r=d+12+4*c
            A(f"ds_write_b128 v49, v[{r}:{r+3}] offset:{ch*KX_CH+c*KX_COPY}")
    for x in range(11): rd(0,x)
    for x in range(4): rd(1,x)
    A(f"v_lshlrev_b32 v49, 4, v{V_T}")
    A(f"v_add_u32 v49, {LDS_KX}, v49")
    A("s_waitcnt lgkmcnt(4)")
    mk(0)
    for x in range(4,11): rd(1,x)
    wr(0)
    A("s_waitcnt lgkmcnt(4)")
    mk(1)
    wr(1)
    A("v_mov_b32 v64, 0\nv_mov_b32 v65, 0\nv_mov_b32 v66, 0\nv_mov_b32 v67, 0")
    l=self.lab()
    A(f"s_cmp_lg_u32 s{S_W}, 0")
    A(f"s_cbranch_scc1 {l}")
    A(f"v_and_b32 v50, 31, v{V_LANE}")
    A(f"v_lshlrev_b32 v50, 4, v50")
    A(f"v_lshrrev_b32 v51, 5, v{V_LANE}")
    A(f"v_mul_u32_u24 v51, {U_CH}, v51")
    A(f"v_add_u32 v50, v50, v51")
    A(f"v_add_u32 v50, {LDS_U}, v50")
    A(f"ds_write_b128 v50, v[64:67]")
    A(f"v_lshrrev_b32 v50, 1, v{V_LANE}")
    A(f"v_and_b32 v50, 7, v50")
    A(f"v_mul_u32_u24 v50, {KX_COPY}, v50")
    A(f"v_and_b32 v51, 1, v{V_LANE}")
    A(f"v_lshl_add_u32 v50, v51, 4, v50")
    A(f"v_add_u32 v50, {LDS_KX+4096}, v50")
    A(f"ds_write_b128 v50, v[64:67]")
    A(f"{l}:")

S_GB=64
S_KSTR=68
@add_method
def stage_w(self, kind):
    A=self.A
    RING=24576
    if kind=='w1':
        stride=3584
        A(f"s_mov_b32 s{SRD_W}, s{S_WGT}\ns_mov_b32 s{SRD_W+1}, s{S_WGT+1}\ns_mov_b32 s{SRD_W+2}, {D_*F_*2}\ns_mov_b32 s{SRD_W+3}, 0x20000")
        A(f"s_mov_b32 s{SRD_W2}, s{S_WUP}\ns_mov_b32 s{SRD_W2+1}, s{S_WUP+1}\ns_mov_b32 s{SRD_W2+2}, {D_*F_*2}\ns_mov_b32 s{SRD_W2+3}, 0x20000")
        A(f"s_lshl_b32 s{S_T0}, s{S_J}, 8")
        A(f"s_lshl_b32 s{S_T0+1}, s{S_W}, 6")
        A(f"s_add_u32 s{S_T0}, s{S_T0}, s{S_T0+1}")
        for g in range(4):
            A(f"s_add_u32 s{S_T0+1}, s{S_W}, {g}")
            A(f"s_and_b32 s{S_T0+1}, s{S_T0+1}, 3")
            A(f"s_mul_i32 s{S_T0+1}, s{S_T0+1}, {7*16*stride}")
            A(f"s_add_u32 s{S_GB+g}, s{S_T0+1}, s{S_T0}")
        tileoff2=0
    else:
        stride=896
        A(f"s_mov_b32 s{SRD_W}, s{S_WD}\ns_mov_b32 s{SRD_W+1}, s{S_WD+1}\ns_mov_b32 s{SRD_W+2}, {D_*F_*2}\ns_mov_b32 s{SRD_W+3}, 0x20000")
        A(f"s_mov_b32 s{SRD_W2}, s{S_WD}\ns_mov_b32 s{SRD_W2+1}, s{S_WD+1}\ns_mov_b32 s{SRD_W2+2}, {D_*F_*2}\ns_mov_b32 s{SRD_W2+3}, 0x20000")
        A(f"s_cmp_ge_u32 s{S_J}, 7")
        A(f"s_cselect_b32 s{S_T0}, 7, 0")
        A(f"s_sub_u32 s{S_T0}, s{S_J}, s{S_T0}")
        A(f"s_lshl_b32 s{S_T0}, s{S_T0}, 7")
        A(f"s_mul_i32 s{S_T0+1}, s{S_W}, {448*stride}")
        A(f"s_add_u32 s{S_T0}, s{S_T0}, s{S_T0+1}")
        for g in range(4):
            A(f"s_add_u32 s{S_GB+g}, s{S_T0}, {g*7*16*stride}")
        tileoff2=64
    kstr=16*stride
    A(f"v_lshrrev_b32 v48, 2, v{V_LANE}")
    A(f"v_mul_u32_u24 v48, {stride}, v48")
    A(f"v_and_b32 v49, 3, v{V_LANE}")
    A(f"v_lshl_add_u32 v48, v49, 4, v48")
    if kind=='w1':
        A(f"v_mov_b32 v52, v48")
    else:
        A(f"s_lshl_b32 s{S_T0+1}, s{S_NH}, 6")
        A(f"s_xor_b32 s{S_T0+3}, s{S_T0+1}, 64")
        A(f"v_add_u32 v52, s{S_T0+3}, v48")
        A(f"v_add_u32 v48, s{S_T0+1}, v48")
    A(f"s_mul_i32 s{S_T0+2}, s{S_W}, {RING}")
    A(f"v_lshrrev_b32 v50, 5, v{V_LANE}")
    A(f"v_lshlrev_b32 v50, {9 if kind=='w1' else 8}, v50")
    A(f"v_bfe_u32 v51, v{V_LANE}, 2, 2")
    A(f"v_lshl_add_u32 v50, v51, 6, v50")
    A(f"v_bfe_u32 v51, v{V_LANE}, 4, 1")
    A(f"v_lshl_add_u32 v50, v51, 5, v50")
    A(f"v_and_b32 v51, 3, v{V_LANE}")
    A(f"v_lshl_add_u32 v50, v51, 3, v50")
    A(f"v_add_u32 v50, s{S_T0+2}, v50")
    second = 256 if kind=='w1' else 512
    def issue(c):
        slot=c%3
        for i in range(4):
            s=4*c+i; g=s//7; r=s%7
            A(f"s_add_u32 s{S_T0+3}, s{S_GB+g}, {r*kstr}")
            A(f"s_add_u32 m0, s{S_T0+2}, {slot*8192+i*2048}")
            A(f"buffer_load_dwordx4 v48, s[{SRD_W}:{SRD_W+3}], s{S_T0+3} offen lds")
            A(f"s_add_u32 m0, s{S_T0+2}, {slot*8192+i*2048+1024}")
            A(f"buffer_load_dwordx4 v52, s[{SRD_W2}:{SRD_W2+3}], s{S_T0+3} offen lds")
    for c in range(3): issue(c)
    for c in range(7):
        A(f"s_waitcnt vmcnt({8*min(2,6-c)})")
        slot=c%3
        for i in range(4):
            s=4*c+i
            for tile in range(2):
                a=8*s+4*tile; off=slot*8192+i*2048+tile*1024
                A(f"ds_read_b64_tr_b16 a[{a}:{a+1}], v50 offset:{off}")
                A(f"ds_read_b64_tr_b16 a[{a+2}:{a+3}], v50 offset:{off+second}")
            if i==1: A("s_waitcnt lgkmcnt(4)")
        if c+3<7:
            A("s_waitcnt lgkmcnt(0)")
            issue(c+3)
    A("s_waitcnt lgkmcnt(0)")

@add_method
def flag_load(self):
    A=self.A
    A(f"s_lshr_b32 s{S_T0}, s{S_D0}, 4")
    A(f"s_mul_i32 s{S_T0}, s{S_T0}, 37")
    A(f"s_lshr_b32 s{S_T0}, s{S_T0}, 8")
    A(f"s_lshl_b32 s{S_T0+1}, s{S_W}, 6")
    A(f"s_add_u32 s{S_T0}, s{S_T0}, s{S_T0+1}")
    A(f"v_and_b32 v44, 15, v{V_LANE}")
    A(f"v_lshlrev_b32 v45, 2, v44")
    A(f"v_add_u32 v45, s{S_T0}, v45")
    A(f"s_lshl_b32 s{S_T0}, s{S_J}, 2")
    A(f"s_add_u32 s{S_T0}, s{S_T0}, s{S_W}")
    A(f"s_lshr_b32 s{S_T0}, s{S_T0}, 1")
    A(f"s_mul_i32 s{S_T0}, s{S_T0}, 7")
    A(f"s_add_u32 s{S_T0}, s{S_T0}, 256")
    A(f"v_min_u32 v44, 13, v44")
    A(f"v_add_u32 v46, 189, v44")
    A(f"v_cmp_lt_u32 vcc, 6, v44")
    A(f"v_cndmask_b32 v44, v44, v46, vcc")
    A(f"v_add_u32 v44, s{S_T0}, v44")
    A(f"v_bfe_u32 v46, v{V_LANE}, 4, 1")
    A(f"v_cmp_eq_u32 vcc, 1, v46")
    A(f"v_cndmask_b32 v44, v45, v44, vcc")
    A(f"v_lshlrev_b32 v44, 6, v44")
    A(f"s_mov_b32 s{S_T0+11}, {WS_JF}")
    A(f"buffer_load_dword v46, v44, s[{SRD_WS}:{SRD_WS+3}], s{S_T0+11} offen sc1")

@add_method
def flag_wait(self, mask):
    A=self.A
    lp=self.lab('Lpoll'); le=self.lab()
    A(f"s_mov_b32 s{S_T0+1}, 0")
    A(f"{lp}:")
    A("s_waitcnt vmcnt(0)")
    A(f"v_cmp_eq_u32 vcc, s{S_TAG}, v46")
    A(f"s_and_b32 s{S_T0+2}, vcc_lo, {hex(mask)}")
    A(f"s_cmp_eq_u32 s{S_T0+2}, {hex(mask)}")
    A(f"s_cbranch_scc1 {le}")
    A(f"buffer_load_dword v46, v44, s[{SRD_WS}:{SRD_WS+3}], s{S_T0+11} offen sc1")
    A(f"s_add_u32 s{S_T0+1}, s{S_T0+1}, 1")
    A(f"s_cmp_lt_u32 s{S_T0+1}, 0x8000")
    A(f"s_cbranch_scc1 {lp}")
    A(f"{le}:")

@add_method
def xt_loads(self):
    A=self.A
    SG=144; XA=8
    A(f"v_lshrrev_b32 v48, 2, v{V_T}")
    A(f"s_movk_i32 s{S_T0+2}, {448*64}")
    A(f"v_mul_lo_u32 v48, v48, s{S_T0+2}")
    A(f"v_and_b32 v49, 3, v{V_T}")
    A(f"v_lshl_add_u32 v48, v49, 4, v48")
    A(f"s_lshl_b32 s{S_T0+2}, s{S_D0}, 6")
    A(f"s_add_u32 s{S_T0+2}, s{S_T0+2}, {WS_XT}")
    A(f"buffer_load_dwordx4 v[{XA}:{XA+3}], v48, s[{SRD_WS}:{SRD_WS+3}], s{S_T0+2} offen sc1")
    A(f"buffer_load_dwordx4 v[{XA+4}:{XA+7}], v48, s[{SRD_WS}:{SRD_WS+3}], s{S_T0+2} offen offset:64 sc1")
    A(f"v_lshlrev_b32 v43, 6, v{V_T}")
    A(f"s_mov_b32 s{S_T0+13}, {WS_STATS}")
    for k in range(4):
        A(f"buffer_load_dwordx4 v[{SG+4*k}:{SG+4*k+3}], v43, s[{SRD_WS}:{SRD_WS+3}], s{S_T0+13} offen offset:{16*k} sc1")

@add_method
def w1_setup(self):
    A=self.A
    A(f"s_lshl_b32 s{S_T0}, s{S_J}, 2")
    A(f"s_add_u32 s{S_T0}, s{S_T0}, s{S_W}")
    A(f"s_mul_i32 s{S_T0}, s{S_T0}, 56")
    for g in range(4):
        A(f"s_add_u32 s{S_T0+1}, s{S_W}, {g}")
        A(f"s_and_b32 s{S_T0+1}, s{S_T0+1}, 3")
        A(f"s_mul_i32 s{S_T0+1}, s{S_T0+1}, 7")
        A(f"s_add_u32 s{S_T0+1}, s{S_T0+1}, s{S_T0}")
        A(f"s_lshl_b32 s{S_T0+1}, s{S_T0+1}, 10")
        A(f"s_add_u32 s{S_GB+g}, s{S_T0+1}, {WS_WF1}")
    A(f"v_lshlrev_b32 v45, 4, v{V_LANE}")

@add_method
def w1_items(self, s0, s1):
    out=[]
    for s in range(s0,s1):
        g=s//7; i=s%7
        for t in range(2):
            out.append([f"s_add_u32 s{S_T0+12}, s{S_GB+g}, {i*1024+t*28*1024}",
                        f"buffer_load_dwordx4 a[{8*s+4*t}:{8*s+4*t+3}], v45, s[{SRD_WS}:{SRD_WS+3}], s{S_T0+12} offen sc1"])
    return out
@add_method
def w1_loads(self, s0, s1):
    for it in self.w1_items(s0,s1):
        for x in it: self.A(x)

@add_method
def stats_consume(self):
    A=self.A
    SG=144
    XA=8
    A("s_waitcnt vmcnt(0)")
    self.stamp('xt landed')
    lp=self.lab('Lpoll'); le=self.lab()
    A(f"s_mov_b32 s{S_T0+1}, 0")
    A(f"{lp}:")
    A(f"v_xor_b32 v49, s{S_TAG}, v{SG+1}")
    for k in range(1,8):
        A(f"v_xor_b32 v50, s{S_TAG}, v{SG+2*k+1}")
        A(f"v_or_b32 v49, v49, v50")
    A("v_cmp_ne_u32 vcc, 0, v49")
    A(f"s_add_u32 s{S_T0+1}, s{S_T0+1}, 1")
    A(f"s_cbranch_vccz {le}")
    for k in range(4):
        A(f"buffer_load_dwordx4 v[{SG+4*k}:{SG+4*k+3}], v43, s[{SRD_WS}:{SRD_WS+3}], s{S_T0+13} offen offset:{16*k} sc1")
    A("s_waitcnt vmcnt(0)")
    A(f"s_cmp_lt_u32 s{S_T0+1}, 0x8000")
    A(f"s_cbranch_scc1 {lp}")
    A(f"{le}:")
    for j in range(8):
        A(f"v_lshlrev_b32 v{80+j}, 16, v{SG+2*j}")
        A(f"v_and_b32 v{88+j}, 0xffff0000, v{SG+2*j}")
    for j in range(8): A(f"v_rcp_f32 v{80+j}, v{80+j}")
    for ch in range(2):
        X=96+ch*8
        for j in range(0,8,2):
            A(bf16_lo(X+j, XA+4*ch+j//2)); A(bf16_hi(X+j+1, XA+4*ch+j//2))
        for j in range(0,8,2):
            A(f"v_pk_add_f32 v[{X+j}:{X+j+1}], v[{X+j}:{X+j+1}], v[{88+j}:{88+j+1}] neg_lo:[0,1] neg_hi:[0,1]")
        if self.mimic>=2:
            for j in range(0,8,2):
                A(f"v_cvt_pk_bf16_f32 v{128+j//2}, v{X+j}, v{X+j+1}")
            for j in range(0,8,2):
                A(bf16_lo(X+j,128+j//2)); A(bf16_hi(X+j+1,128+j//2))
        for j in range(0,8,2):
            A(f"v_pk_mul_f32 v[{X+j}:{X+j+1}], v[{X+j}:{X+j+1}], v[{80+j}:{80+j+1}]")
        if self.mimic>=1:
            for j in range(0,8,2):
                A(f"v_cvt_pk_bf16_f32 v{128+j//2}, v{X+j}, v{X+j+1}")
            for j in range(0,8,2):
                A(bf16_lo(X+j,128+j//2)); A(bf16_hi(X+j+1,128+j//2))
        U=132+ch*4
        for j in range(0,8,2):
            A(f"v_cvt_pk_f16_f32 v{U+j//2}, v{X+j}, v{X+j+1}")
    A(f"v_lshlrev_b32 v48, 4, v{V_T}")
    A(f"v_add_u32 v49, {LDS_U+512}, v48")
    A(f"v_add_u32 v50, {LDS_XT}, v48")
    A(f"ds_write_b128 v49, v[132:135]")
    A(f"ds_write_b128 v49, v[136:139] offset:{U_CH}")
    A(f"ds_write_b128 v50, v[{XA}:{XA+3}]")
    A(f"ds_write_b128 v50, v[{XA+4}:{XA+7}] offset:{XT_CH}")
    self.flag_wait(0x3fff0000)
    self.w1_setup()
    A("s_waitcnt lgkmcnt(0)")
    A("s_barrier")

@add_method
def w1_rest(self):
    self.w1_loads(W1_IN_CONV,28)

@add_method
def wd_loads(self, s0, s1, S=None):
    out=[]
    for s in range(s0,s1):
        for ca in range(2):
            out.append(f"s_add_u32 s{S_T0+14}, s{S_T0+12+ca}, {s*1024}")
            out.append(('vm',f"buffer_load_dwordx4 a[{8*s+4*ca}:{8*s+4*ca+3}], v47, s[{SRD_WS}:{SRD_WS+3}], s{S_T0+14} offen sc1",f"WD{s}"))
    return out

@add_method
def wd_setup(self):
    A=self.A
    A(f"s_cmp_ge_u32 s{S_J}, 7")
    A(f"s_cselect_b32 s{S_T0+14}, 7, 0")
    A(f"s_sub_u32 s{S_T0+14}, s{S_J}, s{S_T0+14}")
    A(f"s_lshl_b32 s{S_T0+14}, s{S_T0+14}, 1")
    for ca in range(2):
        A(f"s_xor_b32 s{S_T0+12+ca}, s{S_NH}, {ca}")
        A(f"s_add_u32 s{S_T0+12+ca}, s{S_T0+12+ca}, s{S_T0+14}")
        A(f"s_mul_i32 s{S_T0+12+ca}, s{S_T0+12+ca}, 112")
        A(f"s_mul_i32 s{S_T0+15}, s{S_W}, 28")
        A(f"s_add_u32 s{S_T0+12+ca}, s{S_T0+12+ca}, s{S_T0+15}")
        A(f"s_lshl_b32 s{S_T0+12+ca}, s{S_T0+12+ca}, 10")
        A(f"s_add_u32 s{S_T0+12+ca}, s{S_T0+12+ca}, {WS_WFD}")
    A(f"v_lshlrev_b32 v47, 4, v{V_LANE}")

W1_IN_CONV=18
C_ACC=64
C_F=[96,160]
C_G=[128,192]
C_VF=48; C_VG=49
C_EU=224; C_EX=232
@add_method
def conv(self):
    A=self.A
    A(f"v_and_b32 v50, 15, v{V_LANE}")
    A(f"v_lshrrev_b32 v51, 4, v{V_LANE}")
    A(f"v_sub_u32 v52, 3, v50")
    A(f"v_and_b32 v52, 3, v52")
    A(f"v_mul_u32_u24 v52, {KX_COPY}, v52")
    A(f"v_lshrrev_b32 v53, 2, v50")
    A(f"v_lshlrev_b32 v53, 3, v53")
    A(f"v_sub_u32 v52, v52, v53")
    A(f"v_lshl_add_u32 v52, v51, 4, v52")
    A(f"s_mul_i32 s{S_T0}, s{S_CH}, {KX_CH}")
    A(f"s_lshl_b32 s{S_T0+1}, s{S_NH}, 8")
    A(f"s_sub_u32 s{S_T0}, s{S_T0}, s{S_T0+1}")
    A(f"s_add_u32 s{S_T0}, s{S_T0}, {LDS_KX+2*2028-64*63}")
    A(f"v_add_u32 v{C_VF}, s{S_T0}, v52")
    A(f"v_lshlrev_b32 v52, 5, v50")
    A(f"v_lshl_add_u32 v52, v51, 4, v52")
    A(f"s_mul_i32 s{S_T0}, s{S_CH}, {U_CH}")
    A(f"s_sub_u32 s{S_T0}, s{S_T0}, s{S_T0+1}")
    A(f"s_add_u32 s{S_T0}, s{S_T0}, {LDS_U+480-192}")
    A(f"v_add_u32 v{C_VG}, s{S_T0}, v52")
    def loads(sp):
        st=sp&1; out=[]
        for k in range(8):
            g=C_G[st]+4*k; f=C_F[st]+4*k
            out.append(f"ds_read_b128 v[{g}:{g+3}], v{C_VG} offset:{512*k+64*(3-sp)}")
            o=64*(63-8*k-sp)
            out.append(f"ds_read_b64 v[{f}:{f+1}], v{C_VF} offset:{o}")
            out.append(f"ds_read_b64 v[{f+2}:{f+3}], v{C_VF} offset:{o+8}")
        return out
    def mfmas(sp):
        st=sp&1; out=[]
        for t in range(8):
            for d in range(t+1):
                acc=C_ACC+4*t
                c = "0" if (sp==0 and d==0) else f"v[{acc}:{acc+3}]"
                out.append((t,d,f"v_mfma_f32_16x16x32_f16 v[{acc}:{acc+3}], v[{C_F[st]+4*d}:{C_F[st]+4*d+3}], v[{C_G[st]+4*(t-d)}:{C_G[st]+4*(t-d)+3}], {c}"))
        return out
    l0=loads(0)
    A(f"v_lshlrev_b32 v52, 5, v50")
    A(f"v_lshl_add_u32 v52, v51, 3, v52")
    A(f"s_lshl_b32 s{S_T0}, s{S_NH}, 11")
    A(f"s_mul_i32 s{S_T0+1}, s{S_CH}, {U_CH}")
    A(f"s_add_u32 s{S_T0+1}, s{S_T0+1}, s{S_T0}")
    A(f"s_add_u32 s{S_T0+1}, s{S_T0+1}, {LDS_U+512}")
    A(f"v_add_u32 v53, s{S_T0+1}, v52")
    A(f"s_mul_i32 s{S_T0+1}, s{S_CH}, {XT_CH}")
    A(f"s_add_u32 s{S_T0+1}, s{S_T0+1}, s{S_T0}")
    A(f"s_add_u32 s{S_T0+1}, s{S_T0+1}, {LDS_XT}")
    A(f"v_add_u32 v54, s{S_T0+1}, v52")
    for k in range(5):
        for x in l0[3*k:3*k+3]: A(x)
    issued=5
    wl=self.w1_items(0,W1_IN_CONV); wi=[0]; mc=[0]
    def wfill():
        mc[0]+=1
        if mc[0]%4==2 and wi[0]<len(wl):
            for x in wl[wi[0]]: A(x)
            wi[0]+=1
    nxt=loads(1); ni=0
    cur_t=-1
    for (t,d,txt) in mfmas(0):
        first = (t!=cur_t)
        if first:
            cur_t=t
            if t<=3: A(f"s_waitcnt lgkmcnt({3*(issued-1-t)})")
            elif t==4: A("s_waitcnt lgkmcnt(0)")
        A(txt)
        if first and issued<8:
            for x in l0[3*issued:3*issued+3]: A(x)
            issued+=1
        elif t>=4 and ni<len(nxt):
            A(nxt[ni]); ni+=1
        wfill()
    assert ni==len(nxt)
    epi=[]
    for tt in range(4):
        epi.append(f"ds_read_b64 v[{C_EU+2*tt}:{C_EU+2*tt+1}], v53 offset:{512*tt}")
        epi.append(f"ds_read_b64 v[{C_EX+2*tt}:{C_EX+2*tt+1}], v54 offset:{512*tt}")
    U=224; X=240
    PRE=160
    PRE=96
    UU=112
    pre=[]
    if self.mimic==0:
        pre.append(f"v_mov_b32 v47, s{S_DSKV}")
        for tt in range(4):
            for h in range(2):
                pre.append(f"v_cvt_f32_f16 v{UU+4*tt+2*h}, v{C_EU+2*tt+h}")
                pre.append(f"v_lshrrev_b32 v{UU+4*tt+2*h+1}, 16, v{C_EU+2*tt+h}")
                pre.append(f"v_cvt_f32_f16 v{UU+4*tt+2*h+1}, v{UU+4*tt+2*h+1}")
                pre.append(bf16_lo(PRE+4*tt+2*h, C_EX+2*tt+h)); pre.append(bf16_hi(PRE+4*tt+2*h+1, C_EX+2*tt+h))
        for r in range(16): pre.append(f"v_fma_f32 v{PRE+r}, v{UU+r}, v47, v{PRE+r}")
    for sp in range(1,4):
        A("s_waitcnt lgkmcnt(0)")
        nxt = loads(sp+1) if sp<3 else epi
        ni=0; pi=0; k=0
        for (t,d,txt) in mfmas(sp):
            A(txt); k+=1
            if ni<len(nxt): A(nxt[ni]); ni+=1
            elif sp==3 and pre:
                if k==12: A("s_waitcnt lgkmcnt(0)")
                if k>=12:
                    tgt=min(len(pre),(len(pre)*(k-11)+23)//24)
                    while pi<tgt: A(pre[pi]); pi+=1
            wfill()
        if sp==3:
            while pi<len(pre): A(pre[pi]); pi+=1
    assert wi[0]==len(wl)
    l=self.lab()
    A(f"s_cmp_eq_u32 s{S_NH}, 0")
    A(f"s_cbranch_scc1 {l}")
    A("s_nop 7")
    for r in range(16): A(f"v_swap_b32 v{C_ACC+r}, v{C_ACC+16+r}")
    A(f"{l}:")
    A("s_nop 7")
    A(f"s_lshl_b32 s{S_T0}, s{S_W}, 12")
    A(f"v_lshl_add_u32 v55, v{V_LANE}, 4, s{S_T0}")
    for tt in range(4): A(f"ds_write_b128 v55, v[{C_ACC+16+4*tt}:{C_ACC+16+4*tt+3}] offset:{1024*tt}")
    A("v_xor_b32 v55, 4096, v55")
    A("s_waitcnt lgkmcnt(0)")
    A("s_barrier")
    if self.mimic==0:
        Y=C_ACC; PT=128
        for tt in range(4): A(f"ds_read_b128 v[{PT+4*tt}:{PT+4*tt+3}], v55 offset:{1024*tt}")
        A(f"v_mov_b32 v146, s{S_YS}\nv_mov_b32 v147, s{S_YS}")
        for tt in range(4):
            A(f"s_waitcnt lgkmcnt({3-tt})")
            for p in (2*tt,2*tt+1):
                A(f"v_pk_add_f32 v[{Y+2*p}:{Y+2*p+1}], v[{Y+2*p}:{Y+2*p+1}], v[{PT+2*p}:{PT+2*p+1}]")
            for p in (2*tt,2*tt+1):
                A(f"v_pk_fma_f32 v[{Y+2*p}:{Y+2*p+1}], v[{Y+2*p}:{Y+2*p+1}], v[146:147], v[{PRE+2*p}:{PRE+2*p+1}]")
    else:
        for tt in range(4): A(f"ds_read_b128 v[{96+4*tt}:{96+4*tt+3}], v55 offset:{1024*tt}")
        U=112; X=128; Y=C_ACC
        for tt in range(4):
            for h in range(2):
                A(f"v_cvt_f32_f16 v{U+4*tt+2*h}, v{C_EU+2*tt+h}")
                A(f"v_cvt_f32_f16_sdwa v{U+4*tt+2*h+1}, v{C_EU+2*tt+h} dst_sel:DWORD dst_unused:UNUSED_PAD src0_sel:WORD_1")
                A(bf16_lo(X+4*tt+2*h, C_EX+2*tt+h)); A(bf16_hi(X+4*tt+2*h+1, C_EX+2*tt+h))
        A(f"v_mov_b32 v144, s{S_DSKV}\nv_mov_b32 v145, s{S_DSKV}\nv_mov_b32 v146, s{S_YS}\nv_mov_b32 v147, s{S_YS}")
        for p in range(8):
            A(f"v_pk_mul_f32 v[{U+2*p}:{U+2*p+1}], v[{U+2*p}:{U+2*p+1}], v[144:145]")
        if self.mimic>=1:
            for p in range(8): A(f"v_cvt_pk_bf16_f32 v{148+p}, v{U+2*p}, v{U+2*p+1}")
            for p in range(8): A(bf16_lo(U+2*p,148+p)); A(bf16_hi(U+2*p+1,148+p))
        A("s_waitcnt lgkmcnt(0)")
        for p in range(8):
            A(f"v_pk_add_f32 v[{Y+2*p}:{Y+2*p+1}], v[{Y+2*p}:{Y+2*p+1}], v[{96+2*p}:{96+2*p+1}]")
        for p in range(8):
            A(f"v_pk_mul_f32 v[{Y+2*p}:{Y+2*p+1}], v[{Y+2*p}:{Y+2*p+1}], v[146:147]")
        if self.mimic>=1:
            for p in range(8): A(f"v_cvt_pk_bf16_f32 v{148+p}, v{Y+2*p}, v{Y+2*p+1}")
            for p in range(8): A(bf16_lo(Y+2*p,148+p)); A(bf16_hi(Y+2*p+1,148+p))
        for p in range(8):
            A(f"v_pk_add_f32 v[{Y+2*p}:{Y+2*p+1}], v[{Y+2*p}:{Y+2*p+1}], v[{U+2*p}:{U+2*p+1}]")
        if self.mimic>=1:
            for p in range(8): A(f"v_cvt_pk_bf16_f32 v{148+p}, v{Y+2*p}, v{Y+2*p+1}")
            for p in range(8): A(bf16_lo(Y+2*p,148+p)); A(bf16_hi(Y+2*p+1,148+p))
        for p in range(8):
            A(f"v_pk_add_f32 v[{Y+2*p}:{Y+2*p+1}], v[{Y+2*p}:{Y+2*p+1}], v[{X+2*p}:{X+2*p+1}]")
    H=148
    for p in range(8): A(f"v_cvt_pk_bf16_f32 v{H+p}, v{Y+2*p}, v{Y+2*p+1}")
    for pr in range(2):
        b=H+4*pr
        A(f"v_permlane16_swap_b32 v{b}, v{b+2}")
        A(f"v_permlane16_swap_b32 v{b+1}, v{b+3}")
    A(f"v_and_b32 v52, 1, v51")
    A(f"v_lshlrev_b32 v52, 3, v52")
    A(f"v_lshrrev_b32 v53, 1, v50")
    A(f"v_add_u32 v52, v52, v53")
    A(f"s_movk_i32 s{S_T0}, {448*64}")
    A(f"v_mul_lo_u32 v52, v52, s{S_T0}")
    A(f"v_and_b32 v53, 1, v50")
    A(f"v_lshl_add_u32 v52, v53, 5, v52")
    A(f"v_lshrrev_b32 v53, 1, v51")
    A(f"v_lshl_add_u32 v52, v53, 4, v52")
    A(f"s_lshl_b32 s{S_T0}, s{S_NH}, 5")
    A(f"s_mul_i32 s{S_T0}, s{S_T0}, {448*64}")
    A(f"s_add_u32 s{S_T0+1}, s{S_D0}, s{S_CH}")
    A(f"s_lshl_b32 s{S_T0+1}, s{S_T0+1}, 6")
    A(f"s_add_u32 s{S_T0}, s{S_T0}, s{S_T0+1}")
    A(f"s_add_u32 s{S_T0}, s{S_T0}, {WS_HT}")
    A(f"s_add_u32 s{S_T0+1}, s{S_T0}, {16*448*64}")
    A(f"buffer_store_dwordx4 v[{H}:{H+3}], v52, s[{SRD_WS}:{SRD_WS+3}], s{S_T0} offen sc1")
    A(f"buffer_store_dwordx4 v[{H+4}:{H+7}], v52, s[{SRD_WS}:{SRD_WS+3}], s{S_T0+1} offen sc1")

@add_method
def sync_all(self):
    A=self.A
    A("s_waitcnt vmcnt(0)")
    A("s_barrier")
    l=self.lab()
    A(f"s_cmp_lg_u32 s{S_W}, 0")
    A(f"s_cbranch_scc1 {l}")
    A(f"s_and_b32 s{S_T0}, s{S_WG}, 7")
    A(f"s_lshl_b32 s{S_T0}, s{S_T0}, 7")
    A(f"s_add_u32 s{S_T0}, s{S_T0}, {WS_CNT2}")
    A(f"v_lshlrev_b32 v48, 10, v{V_LANE}")
    A("v_mov_b32 v49, 1")
    A("s_mov_b64 exec, 0xff")
    A(f"buffer_atomic_add v49, v48, s[{SRD_WS}:{SRD_WS+3}], s{S_T0} offen")
    A("s_mov_b64 exec, -1")
    A(f"{l}:")

@add_method
def sync_all_wait(self):
    A=self.A
    l=self.lab(); lp=self.lab('Lpoll'); le=self.lab()
    A(f"s_cmp_lg_u32 s{S_W}, 0")
    A(f"s_cbranch_scc1 {l}")
    A(f"s_lshr_b32 s{S_T0}, s{S_WG}, 3")
    A(f"s_and_b32 s{S_T0}, s{S_T0}, 7")
    A(f"s_lshl_b32 s{S_T0}, s{S_T0}, 10")
    A(f"s_add_u32 s{S_T0}, s{S_T0}, {WS_CNT2}")
    A(f"v_and_b32 v48, 7, v{V_LANE}")
    A(f"v_lshlrev_b32 v48, 7, v48")
    A(f"s_mov_b32 s{S_T0+1}, 0")
    A(f"{lp}:")
    A(f"buffer_load_dword v49, v48, s[{SRD_WS}:{SRD_WS+3}], s{S_T0} offen sc1")
    A("s_waitcnt vmcnt(0)")
    A("v_cmp_gt_u32 vcc, 28, v49")
    A(f"s_add_u32 s{S_T0+1}, s{S_T0+1}, 1")
    A(f"s_cbranch_vccz {le}")
    A(f"s_cmp_lt_u32 s{S_T0+1}, 0x8000")
    A(f"s_cbranch_scc1 {lp}")
    A(f"{le}:")
    A(f"{l}:")
    A("s_barrier")

class Stream:
    def __init__(self, A):
        self.A=A; self.lds=[]; self.vm=[]
    def ds(self, text, tag=None):
        self.A(text); self.lds.append(tag)
    def vmem(self, text, tag=None):
        self.A(text); self.vm.append(tag)
    def need_lds(self, tags):
        idx=-1
        for t in tags:
            if t in self.lds: idx=max(idx, len(self.lds)-1-self.lds[::-1].index(t))
        if idx>=0:
            n=len(self.lds)-idx-1
            n=min(n,15)
            self.A(f"s_waitcnt lgkmcnt({n})")
            self.lds=self.lds[len(self.lds)-n:] if n>0 else []
    def need_vm(self, tags):
        idx=-1
        for t in tags:
            if t in self.vm: idx=max(idx, len(self.vm)-1-self.vm[::-1].index(t))
        if idx>=0:
            n=len(self.vm)-idx-1
            n=min(n,63)
            self.A(f"s_waitcnt vmcnt({n})")
            self.vm=self.vm[len(self.vm)-n:] if n>0 else []
    def item(self, it):
        if isinstance(it,str): self.A(it)
        elif it[0]=='ds': self.ds(it[1],it[2])
        elif it[0]=='vm': self.vmem(it[1],it[2])
        elif it[0]=='needl': self.need_lds(it[1])
        elif it[0]=='needv': self.need_vm(it[1])

G_ACC=[64,96]; G_CS=128; G_RING=160; G_SB=176; G_VB=204; G_SA=208; G_SF=[212,215]; G_ST=218; G_ET=226; G_PK=242
LDS_ST=114688
@add_method
def cs_mfma(self, s0, s1):
    A=self.A
    if s0==0:
        for k in range(4): A(f"v_mov_b32 v{48+k}, 0x3f803f80")
    for s in range(s0,s1):
        for t in range(2):
            d=G_CS+16*t
            c="0" if s==0 else f"v[{d}:{d+15}]"
            A(f"v_mfma_f32_32x32x16_bf16 v[{d}:{d+15}], a[{8*s+4*t}:{8*s+4*t+3}], v[48:51], {c}")

def wd_loc(sig, ca):
    if sig<5: return ('v', 4+8*sig+4*ca)
    if sig<9: return ('a', 224+8*(sig-5)+4*ca)
    return ('a', 8*(sig-9)+4*ca)

@add_method
def wd_item(self, sig, ca):
    k,r=wd_loc(sig,ca)
    return [f"s_add_u32 s{S_T0+14}, s{S_T0+12+ca}, {sig*1024}",
            ('vm',f"buffer_load_dwordx4 {k}[{r}:{r+3}], v48, s[{SRD_WS}:{SRD_WS+3}], s{S_T0+14} offen sc1",f"WD{sig}")]

PF=3
@add_method
def gemm1(self):
    A=self.A; S=Stream(A); self.S=S
    A(f"s_mul_i32 s{S_T0}, s{S_I}, {4*28672}")
    A(f"s_mul_i32 s{S_T0+1}, s{S_W}, 7168")
    A(f"s_add_u32 s{S_T0}, s{S_T0}, s{S_T0+1}")
    A(f"s_add_u32 s{S_T0}, s{S_T0}, {WS_HT}")
    A(f"v_lshlrev_b32 v48, 4, v{V_LANE}")
    def xdma(lt,k):
        off=lt*28672+k*1024
        return [f"s_add_u32 s{S_T0+2}, s{S_T0}, {off}", f"s_add_u32 m0, s{S_T0+1}, {off}",
                ('vm',f"buffer_load_dwordx4 v48, s[{SRD_WS}:{SRD_WS+3}], s{S_T0+2} offen sc1 lds", f"X{lt}")]
    for lt in range(2):
        for k in range(7):
            for it in xdma(lt,k): S.item(it)
    self.wd_setup()
    A(f"v_lshrrev_b32 v50, 5, v{V_LANE}")
    A(f"v_lshlrev_b32 v50, 9, v50")
    A(f"v_bfe_u32 v51, v{V_LANE}, 2, 2")
    A(f"v_lshl_add_u32 v50, v51, 6, v50")
    A(f"v_bfe_u32 v51, v{V_LANE}, 4, 1")
    A(f"v_lshl_add_u32 v50, v51, 5, v50")
    A(f"v_and_b32 v51, 3, v{V_LANE}")
    A(f"v_lshl_add_u32 v50, v51, 3, v50")
    for g in range(4):
        A(f"s_add_u32 s{S_T0+3}, s{S_W}, {g}")
        A(f"s_and_b32 s{S_T0+3}, s{S_T0+3}, 3")
        A(f"s_sub_u32 s{S_T0+3}, s{S_T0+3}, {g}")
        A(f"s_mul_i32 s{S_T0+3}, s{S_T0+3}, 7168")
        A(f"v_add_u32 v{G_VB+g}, s{S_T0+3}, v50")
    A(f"v_and_b32 v53, 31, v{V_LANE}")
    A(f"v_lshlrev_b32 v53, 5, v53")
    A(f"v_add_u32 v53, {LDS_ST}, v53")
    A(f"s_lshl_b32 s{S_T0+3}, s{S_W}, 3")
    A(f"v_add_u32 v52, s{S_T0+3}, v53")
    A(f"v_mov_b32 v54, 0x3f803f80")
    A(f"s_lshl_b32 s{S_T0+4}, s{S_I}, 2")
    A(f"s_mul_i32 s{S_T0+4}, s{S_T0+4}, 112")
    A(f"s_lshl_b32 s{S_T0+5}, s{S_J}, 3")
    A(f"s_add_u32 s{S_T0+4}, s{S_T0+4}, s{S_T0+5}")
    A(f"s_lshl_b32 s{S_T0+5}, s{S_W}, 1")
    A(f"s_add_u32 s{S_T0+4}, s{S_T0+4}, s{S_T0+5}")
    A(f"s_lshl_b32 s{S_T0+4}, s{S_T0+4}, 10")
    A(f"s_add_u32 s{S_T0+4}, s{S_T0+4}, {WS_M}")
    SM=S_T0+4
    def breg(s): return G_SB+4*s if s<7 else G_RING+4*((s-7)%4)
    def bload(p,s):
        r=breg(s); vb=G_VB+s//7
        return [('ds',f"ds_read_b64_tr_b16 v[{r}:{r+1}], v{vb} offset:{s*1024}",f"B{p}_{s}a"),
                ('ds',f"ds_read_b64_tr_b16 v[{r+2}:{r+3}], v{vb} offset:{s*1024+256}",f"B{p}_{s}b")]
    def stats_burst(p):
        sa=G_SA; T=G_ST; it=[]
        for i in range(28):
            r=G_SB+i
            c1="0" if i<2 else f"v{sa+(i&1)}"; c2="0" if i<2 else f"v{sa+2+(i&1)}"
            it.append(f"v_dot2_f32_bf16 v{sa+(i&1)}, v{r}, v54, {c1}")
            it.append(f"v_dot2_f32_bf16 v{sa+2+(i&1)}, v{r}, v{r}, {c2}")
        return it
    def stats_comb(p):
        sa=G_SA; T=G_ST; it=[]
        it.append(f"v_add_f32 v{T}, v{sa}, v{sa+1}")
        it.append(f"v_add_f32 v{T+1}, v{sa+2}, v{sa+3}")
        it.append(f"v_mov_b32 v{T+2}, v{T}")
        it.append(f"v_mov_b32 v{T+3}, v{T+1}")
        it.append("s_nop 1")
        it.append(f"v_permlane32_swap_b32 v{T}, v{T+2}")
        it.append(f"v_permlane32_swap_b32 v{T+1}, v{T+3}")
        it.append(f"v_add_f32 v{T}, v{T}, v{T+2}")
        it.append(f"v_add_f32 v{T+1}, v{T+1}, v{T+3}")
        it.append(('ds',f"ds_write_b64 v52, v[{T}:{T+1}] offset:{(p&1)*1024}",f"SW{p}"))
        return it
    def stats_final(p):
        T=G_ST; sf=G_SF[p&1]
        it=[('ds',f"ds_read_b128 v[{T}:{T+3}], v53 offset:{(p&1)*1024}",f"SR{p}a"),
            ('ds',f"ds_read_b128 v[{T+4}:{T+7}], v53 offset:{(p&1)*1024+16}",f"SR{p}b"),
            "s_nop 0","s_nop 0",
            ('needl',[f"SR{p}a",f"SR{p}b"]),
            f"v_add_f32 v{T}, v{T}, v{T+2}", f"v_add_f32 v{T+1}, v{T+1}, v{T+3}",
            f"v_add_f32 v{T+4}, v{T+4}, v{T+6}", f"v_add_f32 v{T+5}, v{T+5}, v{T+7}",
            f"v_add_f32 v{T}, v{T}, v{T+4}", f"v_add_f32 v{T+1}, v{T+1}, v{T+5}",
            f"v_mul_f32 v{T}, {fl(1.0/448)}, v{T}",
            f"v_mul_f32 v{T+1}, {fl(1.0/448)}, v{T+1}",
            f"v_fma_f32 v{T+1}, -v{T}, v{T}, v{T+1}",
            f"v_max_f32 v{T+1}, 0, v{T+1}",
            f"v_cvt_pk_bf16_f32 v{T+2}, v{T+1}, v{T}",
            f"v_and_b32 v{sf}, 0xffff0000, v{T+2}",
            f"v_lshlrev_b32 v{T+1}, 16, v{T+2}",
            f"v_add_f32 v{T+1}, {fl(1e-5)}, v{T+1}",
            f"v_cvt_pk_bf16_f32 v{T+1}, v{T+1}, v{T+1}",
            f"v_lshlrev_b32 v{T+1}, 16, v{T+1}",
            f"v_sqrt_f32 v{T+1}, v{T+1}", "s_nop 0",
            f"v_cvt_pk_bf16_f32 v{T+1}, v{T+1}, v{T+1}",
            f"v_lshlrev_b32 v{T+1}, 16, v{T+1}",
            f"v_rcp_f32 v{T+1}, v{T+1}", "s_nop 0",
            f"v_mul_f32 v{sf+1}, {fl(-LOG2E)}, v{T+1}",
            f"v_mul_f32 v{sf+2}, v{T+1}, v{T+1}"]
        it=[x for x in it if x!="s_nop 0" or True]
        return it
    def epi_items(p):
        acc=G_ACC[p&1]; sf=G_SF[p&1]; it=[]; E=G_ET
        for r0 in range(0,16,4):
            rs=range(r0,r0+4)
            for r in rs: it.append(f"v_fma_f32 v{acc+r}, -v{sf}, v{G_CS+r}, v{acc+r}")
            for r in rs: it.append(f"v_fma_f32 v{acc+16+r}, -v{sf}, v{G_CS+16+r}, v{acc+16+r}")
            for r in rs: it.append(f"v_mul_f32 v{E+(r&3)}, v{sf+1}, v{acc+r}")
            for r in rs: it.append(f"v_exp_f32 v{E+(r&3)}, v{E+(r&3)}")
            for r in rs: it.append(f"v_mul_f32 v{acc+r}, v{acc+r}, v{acc+16+r}")
            for r in rs: it.append(f"v_add_f32 v{E+(r&3)}, 1.0, v{E+(r&3)}")
            for r in rs: it.append(f"v_rcp_f32 v{E+(r&3)}, v{E+(r&3)}")
            for r in rs: it.append(f"v_mul_f32 v{acc+r}, v{acc+r}, v{sf+2}")
            for r in rs: it.append(f"v_mul_f32 v{acc+r}, v{acc+r}, v{E+(r&3)}")
            q=r0//4
            it.append(f"v_cvt_pk_bf16_f32 v{G_PK+2*q}, v{acc+r0}, v{acc+r0+1}")
            it.append(f"v_cvt_pk_bf16_f32 v{G_PK+2*q+1}, v{acc+r0+2}, v{acc+r0+3}")
            if q==1 or q==3:
                h=q//2
                it.append(f"s_add_u32 s{SM+1}, s{SM}, {p*112*1024+h*1024}")
                it.append(('vm',f"buffer_store_dwordx4 v[{G_PK+4*h}:{G_PK+4*h+3}], v48, s[{SRD_WS}:{SRD_WS+3}], s{SM+1} offen sc1",f"M{p}_{h}"))
        return it
    vmx={0:[],1:[],2:[],3:[]}
    k=0
    for lt in (2,3):
        for q in range(7):
            vmx[0].append((1+2*k if 1+2*k<28 else 27, xdma(lt,q))); k+=1
    n=0
    for sig in range(5):
        for ca in range(2): vmx[1].append((2+2*n, self.wd_item(sig,ca))); n+=1
    n=0
    for sig in range(5,9):
        for ca in range(2): vmx[2].append((2+3*n, self.wd_item(sig,ca))); n+=1
    for n in range(28): vmx[3].append((n, self.wd_item(9+n//2, n%2)))
    S.need_vm(["X0"])
    A("s_barrier")
    for s in range(PF):
        for it in bload(0,s): S.item(it)
    BURST=9; BAR=16
    for p in range(4):
        acc=G_ACC[p&1]
        ep=epi_items(p-1) if p>0 else []
        comb=stats_comb(p); fin=stats_final(p)
        epi=0; ci=0; fi=0
        NG=54
        for s in range(28):
            S.need_lds([f"B{p}_{s}a",f"B{p}_{s}b"])
            r=breg(s)
            for t in range(2):
                d=acc+16*t
                c="0" if s==0 else f"v[{d}:{d+15}]"
                A(f"v_mfma_f32_32x32x16_bf16 v[{d}:{d+15}], a[{8*s+4*t}:{8*s+4*t+3}], v[{r}:{r+3}], {c}")
                if t==0:
                    ns=s+PF
                    if ns<28:
                        for it in bload(p,ns): S.item(it)
                    elif p<3:
                        for it in bload(p+1,ns-28): S.item(it)
                gap=2*s+t
                if t==1:
                    for (sl,items) in vmx[p]:
                        if sl==s:
                            for it in items: S.item(it)
                if s>=1 and ep:
                    tgt=min(len(ep),(len(ep)*(gap-1)+NG-1)//NG)
                    while epi<tgt: S.item(ep[epi]); epi+=1
                if s>BURST and s<BAR:
                    tgt=min(len(comb),(len(comb)*(gap-2*BURST-1)+9)//10)
                    while ci<tgt: S.item(comb[ci]); ci+=1
                if s>BAR:
                    tgt=min(len(fin),(len(fin)*(gap-2*BAR-1)+17)//18)
                    while fi<tgt: S.item(fin[fi]); fi+=1
            if s==BURST:
                for it in stats_burst(p): S.item(it)
            for g in range(4):
                if s==7*g+6-PF+0 and p<3 and False: pass
            if p<3 and s in (6-PF,13-PF,20-PF,27-PF):
                g={6-PF:0,13-PF:1,20-PF:2,27-PF:3}[s]
                A(f"v_add_u32 v{G_VB+g}, 28672, v{G_VB+g}")
            if s==BAR:
                while ci<len(comb): S.item(comb[ci]); ci+=1
                S.need_lds([f"SW{p}"])
                if p<3: S.need_vm([f"X{p+1}"])
                if p==3: S.need_vm(["M1_1"])
                A("s_barrier")
                if p==3:
                    l=self.lab()
                    A(f"s_cmp_lg_u32 s{S_W}, 0")
                    A(f"s_cbranch_scc1 {l}")
                    A(f"s_lshl_b32 s{S_T0+2}, s{S_I}, 7")
                    A(f"s_add_u32 s{S_T0+2}, s{S_T0+2}, {WS_CNT3}")
                    A("v_mov_b32 v55, 1")
                    A("s_mov_b64 exec, 1")
                    A(f"buffer_atomic_add v55, v{V_ZERO}, s[{SRD_WS}:{SRD_WS+3}], s{S_T0+2} offen")
                    A("s_mov_b64 exec, -1")
                    A(f"{l}:")
        while epi<len(ep): S.item(ep[epi]); epi+=1
        while fi<len(fin): S.item(fin[fi]); fi+=1
    A(f"s_lshl_b32 s{S_T0+2}, s{S_I}, 7")
    A(f"s_add_u32 s{S_T0+2}, s{S_T0+2}, {WS_CNT3}")
    S.vmem(f"buffer_load_dword v55, v{V_ZERO}, s[{SRD_WS}:{SRD_WS+3}], s{S_T0+2} offen sc1","pollE")
    A("s_nop 7")
    for it in epi_items(3): S.item(it)

H_ACC=64
H_RING=128
LDS_RED=0
LDS_RES=49152
@add_method
def gemm2(self):
    A=self.A; S=self.S
    A(f"s_cmp_ge_u32 s{S_J}, 7")
    A(f"s_cselect_b32 s{S_T0}, 1, 0")
    A(f"s_cselect_b32 s{S_T0+6}, 7, 0")
    A(f"s_sub_u32 s{S_T0+6}, s{S_J}, s{S_T0+6}")
    A(f"s_lshl_b32 s{S_T0+1}, s{S_I}, 2")
    A(f"s_sub_u32 s{S_T0+3}, 3, s{S_T0}")
    A(f"s_add_u32 s{S_T0+3}, s{S_T0+3}, s{S_T0+1}")
    A(f"s_add_u32 s{S_T0+1}, s{S_T0+1}, s{S_T0}")
    A(f"s_mul_i32 s{S_T0+7}, s{S_W}, 28")
    for la,src in ((0,S_T0+1),(1,S_T0+3)):
        A(f"s_mul_i32 s{S_T0+4+la}, s{src}, 112")
        A(f"s_add_u32 s{S_T0+4+la}, s{S_T0+4+la}, s{S_T0+7}")
        A(f"s_lshl_b32 s{S_T0+4+la}, s{S_T0+4+la}, 10")
        A(f"s_add_u32 s{S_T0+4+la}, s{S_T0+4+la}, {WS_M}")
    A(f"s_cmp_ge_u32 s{S_W}, 2")
    A(f"s_cselect_b32 s{S_T0+9}, s{S_T0+3}, s{S_T0+1}")
    lp=self.lab('Lpoll'); le=self.lab()
    A(f"s_mov_b32 s{S_T0+8}, 0")
    A(f"s_waitcnt vmcnt(2)")
    A(f"{lp}:")
    A("v_cmp_gt_u32 vcc, 14, v55")
    A(f"s_cbranch_vccz {le}")
    A(f"buffer_load_dword v55, v{V_ZERO}, s[{SRD_WS}:{SRD_WS+3}], s{S_T0+2} offen sc1")
    A("s_waitcnt vmcnt(0)")
    A(f"s_add_u32 s{S_T0+8}, s{S_T0+8}, 1")
    A(f"s_cmp_lt_u32 s{S_T0+8}, 0x8000")
    A(f"s_cbranch_scc1 {lp}")
    A(f"{le}:")
    S2=Stream(A); S2.vm=["Mfin","Mfin"]
    def mload(la,s):
        r=H_RING+4*s
        A(f"s_add_u32 s{S_T0+7}, s{S_T0+4+la}, {s*1024}")
        S2.vmem(f"buffer_load_dwordx4 v[{r}:{r+3}], v48, s[{SRD_WS}:{SRD_WS+3}], s{S_T0+7} offen sc1", f"m{la}_{s}")
    NPRE=6
    for s_ in range(NPRE): mload(0,s_)
    S2.need_vm(["Mfin"])
    A("s_barrier")
    l=self.lab()
    A(f"s_cmp_lg_u32 s{S_W}, 0")
    A(f"s_cbranch_scc1 {l}")
    A(f"s_lshl_b32 s{S_T0+10}, s{S_I}, 7")
    A(f"s_add_u32 s{S_T0+10}, s{S_T0+10}, {WS_CNT3+2048}")
    A("v_mov_b32 v55, 1")
    A("s_mov_b64 exec, 1")
    A(f"buffer_atomic_add v55, v{V_ZERO}, s[{SRD_WS}:{SRD_WS+3}], s{S_T0+10} offen")
    l2=self.lab()
    A(f"s_cmp_lg_u32 s{S_WG}, 0")
    A(f"s_cbranch_scc1 {l2}")
    A(f"v_mov_b32 v55, s{S_TAG}")
    A(f"buffer_store_dword v55, v{V_ZERO}, s[{SRD_WS}:{SRD_WS+3}], 0 offen sc1")
    A(f"{l2}:")
    A("s_mov_b64 exec, -1")
    A(f"{l}:")
    self.stamp('sync3 arrive')
    A(f"s_lshl_b32 s{S_T0+10}, s{S_I}, 7")
    A(f"s_add_u32 s{S_T0+10}, s{S_T0+10}, {WS_CNT3+2048}")
    rest=[]
    for sig in range(23,28):
        for ca in range(2): rest.append(self.wd_item(sig,ca))
    A(f"s_mul_i32 s{S_T0+8}, s{S_T0+9}, 448")
    A(f"s_lshl_b32 s{S_T0+11}, s{S_T0+6}, 6")
    A(f"s_add_u32 s{S_T0+8}, s{S_T0+8}, s{S_T0+11}")
    A(f"s_lshl_b32 s{S_T0+11}, s{S_NH}, 5")
    A(f"s_add_u32 s{S_T0+8}, s{S_T0+8}, s{S_T0+11}")
    A(f"s_lshl_b32 s{S_T0+8}, s{S_T0+8}, 6")
    A(f"s_add_u32 s{S_T0+8}, s{S_T0+8}, {WS_HT}")
    A(f"s_lshl_b32 s{S_T0+11}, s{S_W}, 11")
    A(f"s_add_u32 s{S_T0+11}, s{S_T0+11}, {LDS_RES}")
    return_items=None
    def mf(la,s):
        for ca in range(2):
            d=H_ACC+16*(2*la+ca)
            c="0" if s==0 else f"v[{d}:{d+15}]"
            k,r=wd_loc(s,ca); rr=H_RING+4*s
            A(f"v_mfma_f32_32x32x16_bf16 v[{d}:{d+15}], {k}[{r}:{r+3}], v[{rr}:{rr+3}], {c}")
    nxt=NPRE; ri=0
    queue=[('m',s_) for s_ in range(NPRE,28)]
    qq=[]
    for idx,q in enumerate(queue):
        qq.append(q)
        if idx%2==1 and ri<len(rest): qq.append(('w',ri)); ri+=1
    while ri<len(rest): qq.append(('w',ri)); ri+=1
    qq.append(('r',0)); qq.append(('r',1)); qq.append(('p',0))
    def issue(q):
        if q[0]=='m': mload(0,q[1])
        elif q[0]=='w':
            for it in rest[q[1]]: S2.item(it)
        elif q[0]=='r':
            A(f"s_add_u32 m0, s{S_T0+11}, {q[1]*1024}")
            A(f"s_add_u32 s{S_T0+7}, s{S_T0+8}, {q[1]*1024}")
            S2.vmem(f"buffer_load_dwordx4 v48, s[{SRD_WS}:{SRD_WS+3}], s{S_T0+7} offen sc1 lds","res")
        elif q[0]=='p':
            S2.vmem(f"buffer_load_dword v55, v{V_ZERO}, s[{SRD_WS}:{SRD_WS+3}], s{S_T0+10} offen sc1","pollL")
    qi=0
    LEAD=8
    for _ in range(LEAD): issue(qq[qi]); qi+=1
    for s_ in range(28):
        need=[f"m0_{s_}"]
        if s_>=23: need.append(f"WD{s_}")
        S2.need_vm(need)
        mf(0,s_)
        for _ in range(2 if s_<NPRE else 1):
            if qi<len(qq): issue(qq[qi]); qi+=1
    while qi<len(qq): issue(qq[qi]); qi+=1
    self.stamp('early done')
    lp=self.lab('Lpoll'); le=self.lab()
    A(f"s_mov_b32 s{S_T0+7}, 0")
    A("s_waitcnt vmcnt(0)")
    A(f"{lp}:")
    A("v_cmp_gt_u32 vcc, 14, v55")
    A(f"s_cbranch_vccz {le}")
    A(f"buffer_load_dword v55, v{V_ZERO}, s[{SRD_WS}:{SRD_WS+3}], s{S_T0+10} offen sc1")
    A("s_waitcnt vmcnt(0)")
    A(f"s_add_u32 s{S_T0+7}, s{S_T0+7}, 1")
    A(f"s_cmp_lt_u32 s{S_T0+7}, 0x8000")
    A(f"s_cbranch_scc1 {lp}")
    A(f"{le}:")
    self.stamp('late ready')
    S2.vm=[]
    for s_ in range(28): mload(1,s_)
    for s_ in range(28):
        S2.need_vm([f"m1_{s_}"])
        mf(1,s_)
    A("s_nop 11")
    lhi=self.lab('Lhi'); lj=self.lab('Lj')
    def writes(blocks):
        for x,blk in ((1,blocks[0]),(2,blocks[1]),(3,blocks[2])):
            A(f"s_xor_b32 s{S_T0+7}, s{S_W}, {x}")
            A(f"s_mul_i32 s{S_T0+7}, s{S_T0+7}, 12288")
            A(f"s_add_u32 s{S_T0+7}, s{S_T0+7}, {LDS_RED+(x-1)*4096}")
            A(f"v_add_u32 v49, s{S_T0+7}, v48")
            for q in range(4):
                d=H_ACC+16*blk+4*q
                A(f"ds_write_b128 v49, v[{d}:{d+3}] offset:{q*1024}")
    A(f"s_cmp_ge_u32 s{S_W}, 2")
    A(f"s_cbranch_scc1 {lhi}")
    writes([1,2,3])
    A(f"s_branch {lj}")
    A(f"{lhi}:")
    writes([3,0,1])
    A("s_waitcnt lgkmcnt(0)")
    for r in range(16): A(f"v_mov_b32 v{H_ACC+r}, v{H_ACC+32+r}")
    A(f"{lj}:")
    A(f"v_lshrrev_b32 v50, 5, v{V_LANE}")
    A(f"v_lshlrev_b32 v50, 8, v50")
    A(f"v_bfe_u32 v51, v{V_LANE}, 2, 2")
    A(f"v_lshl_add_u32 v50, v51, 6, v50")
    A(f"v_bfe_u32 v51, v{V_LANE}, 4, 1")
    A(f"v_lshl_add_u32 v50, v51, 5, v50")
    A(f"v_and_b32 v51, 3, v{V_LANE}")
    A(f"v_lshl_add_u32 v50, v51, 3, v50")
    A(f"v_add_u32 v50, s{S_T0+11}, v50")
    P=128
    for q in range(4): A(f"ds_read_b64_tr_b16 v[{176+2*q}:{176+2*q+1}], v50 offset:{q*512}")
    A(f"s_mov_b32 s{SRD_W}, s{S_OUT}\ns_mov_b32 s{SRD_W+1}, s{S_OUT+1}\ns_mov_b32 s{SRD_W+2}, {L_*D_*2}\ns_mov_b32 s{SRD_W+3}, 0x20000")
    A(f"v_and_b32 v52, 31, v{V_LANE}")
    A(f"v_mul_u32_u24 v52, 896, v52")
    A(f"v_lshrrev_b32 v51, 5, v{V_LANE}")
    A(f"v_lshl_add_u32 v52, v51, 4, v52")
    A(f"s_mul_i32 s{S_T0+8}, s{S_T0+9}, {32*896}")
    A(f"s_lshl_b32 s{S_T0+10}, s{S_T0+6}, 7")
    A(f"s_add_u32 s{S_T0+8}, s{S_T0+8}, s{S_T0+10}")
    A(f"s_lshl_b32 s{S_T0+10}, s{S_NH}, 6")
    A(f"s_add_u32 s{S_T0+8}, s{S_T0+8}, s{S_T0+10}")
    A(f"s_mul_i32 s{S_T0+7}, s{S_W}, 12288")
    A(f"v_add_u32 v49, s{S_T0+7}, v48")
    A("s_waitcnt lgkmcnt(0)")
    for q in range(4):
        for h in range(2):
            A(bf16_lo(192+4*q+2*h,176+2*q+h)); A(bf16_hi(192+4*q+2*h+1,176+2*q+h))
    if self.mimic==0:
        for r in range(0,16,2): A(f"v_pk_add_f32 v[{H_ACC+r}:{H_ACC+r+1}], v[{H_ACC+r}:{H_ACC+r+1}], v[{192+r}:{192+r+1}]")
    A("s_barrier")
    for k in range(3):
        for q in range(4):
            A(f"ds_read_b128 v[{P+16*k+4*q}:{P+16*k+4*q+3}], v49 offset:{LDS_RED+k*4096+q*1024}")
    for k in range(3):
        A(f"s_waitcnt lgkmcnt({8-4*k})")
        for r in range(0,16,2): A(f"v_pk_add_f32 v[{H_ACC+r}:{H_ACC+r+1}], v[{H_ACC+r}:{H_ACC+r+1}], v[{P+16*k+r}:{P+16*k+r+1}]")
    if self.mimic>=1:
        for r in range(0,16,2): A(f"v_cvt_pk_bf16_f32 v{208+r//2}, v{H_ACC+r}, v{H_ACC+r+1}")
        for r in range(0,16,2): A(bf16_lo(H_ACC+r,208+r//2)); A(bf16_hi(H_ACC+r+1,208+r//2))
        for r in range(0,16,2): A(f"v_pk_add_f32 v[{H_ACC+r}:{H_ACC+r+1}], v[{H_ACC+r}:{H_ACC+r+1}], v[{192+r}:{192+r+1}]")
    O=208
    if self.perturb:
        for r in range(16): A(f"v_add_f32 v{H_ACC+r}, {fl(self.perturb)}, v{H_ACC+r}")
    for r in range(0,16,2): A(f"v_cvt_pk_bf16_f32 v{O+r//2}, v{H_ACC+r}, v{H_ACC+r+1}")
    for q in (0,2):
        A(f"v_permlane32_swap_b32 v{O+2*q}, v{O+2*q+2}")
        A(f"v_permlane32_swap_b32 v{O+2*q+1}, v{O+2*q+3}")
    A(f"buffer_store_dwordx4 v[{O}:{O+3}], v52, s[{SRD_W}:{SRD_W+3}], s{S_T0+8} offen")
    A(f"buffer_store_dwordx4 v[{O+4}:{O+7}], v52, s[{SRD_W}:{SRD_W+3}], s{S_T0+8} offen offset:32")

@add_method
def dump_lds(self, lds_off, nbytes, ws_off_per_wg):
    A=self.A
    A("s_waitcnt vmcnt(0) lgkmcnt(0)")
    A("s_barrier")
    A(f"v_lshlrev_b32 v48, 4, v{V_T}")
    A(f"s_mul_i32 s{S_T0}, s{S_WG}, {ws_off_per_wg}")
    A(f"s_add_u32 s{S_T0}, s{S_T0}, {WS_DBG}")
    for k in range(nbytes//4096):
        A(f"v_add_u32 v49, {lds_off+k*4096}, v48")
        A("ds_read_b128 v[52:55], v49")
        A("s_waitcnt lgkmcnt(0)")
        A(f"s_add_u32 s{S_T0+1}, s{S_T0}, {k*4096}")
        A(f"buffer_store_dwordx4 v[52:55], v48, s[{SRD_WS}:{SRD_WS+3}], s{S_T0+1} offen")
        A("s_waitcnt vmcnt(0)")

@add_method
def dump_regs(self, first, n, kind='v'):
    A=self.A
    A("s_waitcnt vmcnt(0) lgkmcnt(0)")
    A("s_nop 15")
    A(f"v_lshlrev_b32 v3, 2, v{V_T}")
    A(f"s_mul_i32 s{S_T0}, s{S_WG}, {n*1024}")
    A(f"s_add_u32 s{S_T0}, s{S_T0}, {WS_DBG}")
    for k in range(n):
        A(f"s_add_u32 s{S_T0+1}, s{S_T0}, {k*1024}")
        A(f"buffer_store_dword {kind}{first+k}, v3, s[{SRD_WS}:{SRD_WS+3}], s{S_T0+1} offen")
    A("s_waitcnt vmcnt(0)")

@add_method
def build(self):
    A=self.A
    stop=self.stop_after
    def done(name):
        return stop==name
    self.prologue()
    self.phase0_loads()
    self.stamp('index done')
    self.xjob_post()
    self.stamp('xjob post')
    self.kgen_setup()
    self.wjob_issue()
    self.stamp('kgen setup')
    self.kgen_gen()
    self.stamp('kgen')
    if done('kx'):
        self.kexpand()
        A("s_waitcnt lgkmcnt(0)")
        A("s_barrier")
        self.dump_lds(LDS_KX, 36864, 36864); return self.finish()
    self.flag_wait(0xffff)
    self.job_flag('w')
    self.stamp('x flags')
    self.xt_loads()
    self.kexpand()
    self.stamp('kexpand')
    self.stats_consume()
    self.stamp('u ready')
    if done('u'):
        self.dump_lds(LDS_U-LDS_U%16, 20480, 20480); return self.finish()
    self.conv()
    self.stamp('conv done')
    self.sync_all()
    self.stamp('sync2 arrive')
    self.w1_rest()
    self.cs_mfma(0,W1_IN_CONV)
    A("s_waitcnt vmcnt(0)")
    self.cs_mfma(W1_IN_CONV,28)
    self.stamp('cs done')
    self.sync_all_wait()
    self.stamp('sync2 passed')
    if done('w1'):
        self.dump_regs(0,224,'a'); return self.finish()
    if done('conv'): return self.finish()
    self.gemm1()
    self.stamp('gemm1 done')
    self.gemm2()
    return self.finish()

@add_method
def finish(self):
    A=self.A
    if self.ts:
        A("s_waitcnt vmcnt(0)")
        self.stamp('end')
        l=self.lab()
        A(f"s_cmp_lg_u32 s{S_W}, 0")
        A(f"s_cbranch_scc1 {l}")
        A("v_mov_b32 v4, 0")
        for k in range(self.nts): A(f"v_writelane_b32 v4, s{86+k}, {k}")
        A(f"v_lshlrev_b32 v5, 2, v{V_LANE}")
        A(f"s_lshl_b32 s{S_T0}, s{S_WG}, 8")
        A(f"s_add_u32 s{S_T0}, s{S_T0}, {WS_TS}")
        A(f"buffer_store_dword v4, v5, s[{SRD_WS}:{SRD_WS+3}], s{S_T0} offen")
        l2=self.lab()
        A(f"s_cmp_lg_u32 s{S_WG}, 0")
        A(f"s_cbranch_scc1 {l2}")
        A(f"global_store_dword v5, v4, s[{S_DBG}:{S_DBG+1}]")
        A(f"{l2}:")
        A(f"{l}:")
    A("L_end:")
    A("s_endpgm")
    A("L_codeend:")
    body, nfix, probs = hazard_fix(A.L)
    for p in probs: print("HAZARD(backedge):", p, file=sys.stderr)
    errs = wait_lint(body)
    for e in errs[:40]: print("WAITLINT:", e, file=sys.stderr)
    hdr = [
     "; Fused preLN + S4D long-conv + preLN + SwiGLU FFN, one persistent launch of 224 workgroups",
     f"; @launch grid=({NWG},1,1) block=(256,1,1) lds={LDS_TOTAL}",
     '.amdgcn_target "amdgcn-amd-amdhsa--gfx950"',
     ".text", f".globl {KNAME}", ".p2align 8", f".type {KNAME},@function", f"{KNAME}:"]
    ftr = ['.section .rodata,"a"', ".p2align 6", f".amdhsa_kernel {KNAME}",
     "  .amdhsa_next_free_vgpr 512", "  .amdhsa_next_free_sgpr 102", "  .amdhsa_accum_offset 256",
     "  .amdhsa_group_segment_fixed_size 0", "  .amdhsa_kernarg_size 112", "  .amdhsa_user_sgpr_count 2",
     "  .amdhsa_user_sgpr_kernarg_segment_ptr 1", "  .amdhsa_system_sgpr_workgroup_id_x 1",
     ".end_amdhsa_kernel"]
    self.nfix=nfix
    return "\n".join(hdr+body+ftr)+"\n"

if __name__=="__main__":
    import argparse
    ap=argparse.ArgumentParser(); ap.add_argument("-o",default="out.s"); ap.add_argument("--stop",default=None); ap.add_argument("--mimic",type=int,default=2); ap.add_argument("--ts",action="store_true"); ap.add_argument("--perturb",type=float,default=0.0); ap.add_argument("--tsset",default="main")
    a=ap.parse_args()
    g=Gen(stop_after=a.stop, mimic=a.mimic, ts=a.ts, perturb=a.perturb)
    if a.tsset=='main': g.tsonly=set(['xjob post','kgen setup','kgen','x flags','kexpand','u ready','conv done','sync2 arrive','cs done','sync2 passed','gemm1 done','sync3 arrive','early done','late ready','end'])
    if a.tsset=='start': g.tsonly=set(['kernarg','all issued','index done','xjob post','kgen setup','gen done','kgen','x flags','kexpand','xt landed','u ready','end'])
    txt=g.build()
    open(a.o,"w").write(txt)
    print("wrote",a.o,len(txt.splitlines()),"lines; nops inserted:",g.nfix, "stamps:", g.tsnames, file=sys.stderr)
```

```python
import sys, math
sys.path.insert(0, "gen")
from asmlib import *

KNAME = "sequential_preLN__ssm_conv_s4d__swiglu_ffn__prompt_kernel"
L_, D_, N_, F_ = 2048, 448, 256, 1792
NWG = 224

WS_EPOCH = 0
WS_CNT2  = 4096
WS_CNT3  = 12288
WS_STATS = 32768
WS_HT    = 1 << 20
WS_M     = 4 << 20
WS_JF    = 65536
WS_CSF   = 131072
WS_CS    = 147456
WS_XT    = 12 << 20
WS_WF1   = 18 << 20
WS_WFD   = 22 << 20
WS_DBG   = 32 << 20
WS_TS    = 16 << 20
WS_SIZE  = 268435456

KG_PITCH = 528
KG_WAVE  = 53 * KG_PITCH
LDS_KX   = 112000
KX_COPY  = 4160
KX_CH    = 4 * KX_COPY
LDS_U    = LDS_KX + 2 * KX_CH
U_CH     = 4608
LDS_XT   = LDS_U + 2 * U_CH
XT_CH    = 4096
LDS_TOTAL = 163840
assert LDS_XT + 2 * XT_CH <= LDS_TOTAL
LDS_JOB = LDS_KX
LDS_CSP = LDS_KX + 32768
assert LDS_CSP + 512 <= LDS_U

S_WG=2
S_X=8; S_LOGA=10; S_AIM=12; S_CR=14; S_CI=16; S_LOGDT=18; S_DSK=20; S_BX=22
S_WGT=24; S_WUP=26; S_WD=28; S_OUT=30; S_DBG=32; S_WS=34
SRD_X=36; SRD_WS=40; SRD_W=44; SRD_W2=48
S_W=52
S_CH=53
S_NH=54
S_D0=55
S_TAG=56
S_I=57; S_J=58
S_T0=60
S_YS=80
S_DSKV=81
S_DT=82
S_W1I=83
S_JDST=84
S_JL=85
S_GW=59
S_JE=78
S_JK=79

LOG2E = 1.4426950408889634
INV2PI = 0.15915494309189535
def f2u(x):
    import struct
    return struct.unpack('<I', struct.pack('<f', x))[0]
def fl(x): return hex(f2u(x))

class Gen:
    def __init__(self, stop_after=None, dbg=False, mimic=2, ts=False, perturb=0.0):
        self.A = Asm(); self.stop_after = stop_after; self.dbg = dbg; self.mimic = mimic
        self.nlab = 0; self.ts=ts; self.nts=0; self.tsnames=[]; self.perturb=perturb; self.tsonly=None; self.tsop='s_memrealtime'
    def stamp(self, name):
        if not self.ts: return
        if self.tsonly is not None and name not in self.tsonly: return
        k=self.nts; self.nts+=1; self.tsnames.append(name); assert k<16
        A=self.A
        A("s_waitcnt lgkmcnt(0)")
        A(f"{self.tsop} s[6:7]")
        A("s_waitcnt lgkmcnt(0)")
        A(f"s_mov_b32 s{86+k}, s6")
    def lab(self, p='L'):
        self.nlab += 1; return f"{p}_{self.nlab}"

    def prologue(self):
        A = self.A
        A(f"s_cmp_ge_u32 s{S_WG}, {NWG}")
        A("s_cbranch_scc1 L_end")
        if self.ts:
            A(f"{self.tsop} s[6:7]")
            A("s_waitcnt lgkmcnt(0)")
            A("s_mov_b32 s86, s6"); self.nts=1; self.tsnames.append('start')
        A(f"s_load_dwordx16 s[8:23], s[0:1], 0")
        A(f"s_load_dwordx8 s[24:31], s[0:1], 64")
        A(f"s_load_dwordx4 s[32:35], s[0:1], 96")
        A("s_getpc_b64 s[4:5]")
        A("L_pc:")
        A("v_lshlrev_b32 v1, 7, v0")
        A("v_min_u32 v1, (L_codeend-L_pc-4), v1")
        A("global_load_dword v255, v1, s[4:5]")
        A("v_lshrrev_b32 v2, 6, v0")
        A("v_and_b32 v1, 63, v0")
        A(f"v_readfirstlane_b32 s{S_W}, v2")
        A(f"s_lshr_b32 s{S_CH}, s{S_W}, 1")
        A(f"s_and_b32 s{S_NH}, s{S_W}, 1")
        A(f"s_and_b32 s{S_T0}, s{S_WG}, 7")
        A(f"s_mul_i32 s{S_T0}, s{S_T0}, 28")
        A(f"s_lshr_b32 s{S_T0+1}, s{S_WG}, 3")
        A(f"s_add_u32 s{S_T0}, s{S_T0}, s{S_T0+1}")
        A(f"s_lshl_b32 s{S_D0}, s{S_T0}, 1")
        A(f"s_mul_i32 s{S_T0+2}, s{S_T0+1}, 37")
        A(f"s_lshr_b32 s{S_T0+2}, s{S_T0+2}, 8")
        A(f"s_mul_i32 s{S_T0+3}, s{S_T0+2}, 7")
        A(f"s_sub_u32 s{S_T0+3}, s{S_T0+1}, s{S_T0+3}")
        A(f"s_and_b32 s{S_T0+4}, s{S_WG}, 7")
        A(f"s_lshr_b32 s{S_T0+5}, s{S_T0+4}, 1")
        A(f"s_lshl_b32 s{S_T0+5}, s{S_T0+5}, 2")
        A(f"s_add_u32 s{S_I}, s{S_T0+5}, s{S_T0+2}")
        A(f"s_and_b32 s{S_T0+4}, s{S_T0+4}, 1")
        A(f"s_mul_i32 s{S_T0+4}, s{S_T0+4}, 7")
        A(f"s_add_u32 s{S_J}, s{S_T0+4}, s{S_T0+3}")

def q7check():
    for q in range(28): assert (q*37)>>8 == q//7, q
q7check()

def add_method(f):
    setattr(Gen, f.__name__, f); return f

V_LANE=1
V_T=0
V_ZERO=2
V_XG=8
V_OFF=16
V_EP=27
V_PA=28
V_SX=36
V_TMP=48

@add_method
def phase0_loads(self):
    A=self.A
    A("s_waitcnt lgkmcnt(0)")
    self.stamp('kernarg')
    A(f"s_mov_b32 s{SRD_X}, s{S_X}\ns_mov_b32 s{SRD_X+1}, s{S_X+1}\ns_mov_b32 s{SRD_X+2}, {L_*D_*2}\ns_mov_b32 s{SRD_X+3}, 0x20000")
    A(f"s_mov_b32 s{SRD_WS}, s{S_WS}\ns_mov_b32 s{SRD_WS+1}, s{S_WS+1}\ns_mov_b32 s{SRD_WS+2}, {WS_SIZE}\ns_mov_b32 s{SRD_WS+3}, 0x20000")
    A(f"v_mov_b32 v{V_ZERO}, 0")
    A(f"s_lshl_b32 s{S_GW}, s{S_WG}, 2")
    A(f"s_add_u32 s{S_GW}, s{S_GW}, s{S_W}")
    l=self.lab()
    A(f"s_cmp_lg_u32 s{S_WG}, 0")
    A(f"s_cbranch_scc1 {l}")
    A("v_mov_b32 v4, 0\nv_mov_b32 v5, 0\nv_mov_b32 v6, 0\nv_mov_b32 v7, 0")
    A(f"v_lshlrev_b32 v3, 4, v{V_T}")
    for k in range(4):
        A(f"s_mov_b32 s{S_T0+5}, {WS_CNT2+4096*k}")
        A(f"buffer_store_dwordx4 v[4:7], v3, s[{SRD_WS}:{SRD_WS+3}], s{S_T0+5} offen sc1")
    A(f"{l}:")
    A(f"s_add_u32 s{S_T0+3}, s{S_D0}, s{S_CH}")
    A(f"s_lshl_b32 s{S_T0+3}, s{S_T0+3}, 9")
    A(f"s_lshl_b32 s{S_T0+4}, s{S_NH}, 8")
    A(f"s_add_u32 s{S_T0+3}, s{S_T0+3}, s{S_T0+4}")
    A(f"v_lshl_add_u32 v8, v{V_LANE}, 2, s{S_T0+3}")
    A(f"v_xor_b32 v9, 256, v8")
    A(f"global_load_dword v{V_PA}, v8, s[{S_LOGA}:{S_LOGA+1}]")
    A(f"global_load_dword v{V_PA+1}, v8, s[{S_AIM}:{S_AIM+1}]")
    A(f"global_load_dword v{V_PA+2}, v8, s[{S_CR}:{S_CR+1}]")
    A(f"global_load_dword v{V_PA+3}, v8, s[{S_CI}:{S_CI+1}]")
    A(f"global_load_dword v{V_PA+4}, v9, s[{S_CR}:{S_CR+1}]")
    A(f"global_load_dword v{V_PA+5}, v9, s[{S_CI}:{S_CI+1}]")
    A(f"s_lshl_b32 s{S_T0+4}, s{S_D0}, 1")
    A(f"s_load_dword s{S_DT}, s[{S_LOGDT}:{S_LOGDT+1}], s{S_T0+4}")
    A(f"s_load_dword s{S_DSKV}, s[{S_DSK}:{S_DSK+1}], s{S_T0+4}")
    A(f"global_load_dword v{V_EP}, v{V_ZERO}, s[{S_WS}:{S_WS+1}] sc1")
    self.xjob_issue()
    self.stamp('all issued')
    A(f"v_lshlrev_b32 v48, 3, v{V_T}")
    for x in range(11):
        o=V_OFF+x
        A(f"v_sub_u32 v49, {2047-x}, v48")
        A(f"v_cvt_f32_i32 v50, v49")
        A(f"v_cvt_pk_bf16_f32 v50, v50, v50")
        A(f"v_and_b32 v50, 0xffff, v50")
        A(f"v_subrev_u32 v50, 17024, v50")
        A(f"v_cmp_gt_i32 vcc, 128, v49")
        A(f"v_cndmask_b32 v50, v50, v49, vcc")
        if x>=8:
            A(f"v_cmp_gt_i32 vcc, 0, v49")
            A(f"v_mov_b32 v51, 768")
            A(f"v_cndmask_b32 v50, v50, v51, vcc")
        A(f"v_lshlrev_b32 v{o}, 1, v50")

LDS_XJ = LDS_KX
XJ_PITCH = 912
LDS_XS = LDS_XJ + 32*XJ_PITCH
NXJ = 64
NWJ = 588

@add_method
def xjob_issue(self):
    A=self.A; l=self.lab()
    A(f"s_cmp_ge_u32 s{S_WG}, {NXJ}")
    A(f"s_cbranch_scc1 {l}")
    A(f"s_lshl_b32 s{S_T0}, s{S_WG}, 5")
    A(f"s_lshl_b32 s{S_T0+1}, s{S_W}, 3")
    A(f"s_add_u32 s{S_T0}, s{S_T0}, s{S_T0+1}")
    A(f"s_mul_i32 s{S_T0}, s{S_T0}, 896")
    A(f"s_mul_i32 s{S_T0+1}, s{S_T0+1}, {XJ_PITCH}")
    A(f"s_add_u32 s{S_T0+1}, s{S_T0+1}, {LDS_XJ}")
    A(f"v_lshlrev_b32 v3, 4, v{V_LANE}")
    A("s_mov_b32 exec_hi, 0x00ffffff")
    for r in range(8):
        A(f"s_add_u32 m0, s{S_T0+1}, {r*XJ_PITCH}")
        A(f"s_add_u32 s{S_T0+2}, s{S_T0}, {r*896}")
        A(f"buffer_load_dwordx4 v3, s[{SRD_X}:{SRD_X+3}], s{S_T0+2} offen lds")
    A("s_mov_b32 exec_hi, -1")
    A(f"{l}:")

@add_method
def xjob_post(self):
    A=self.A; lo=self.lab('Lxo'); le=self.lab('Lxe')
    A(f"s_cmp_ge_u32 s{S_WG}, {NXJ}")
    A(f"s_cbranch_scc1 {lo}")
    A("s_waitcnt vmcnt(0) lgkmcnt(0)")
    A("s_barrier")
    J=64
    A(f"v_and_b32 v50, 31, v{V_LANE}")
    A(f"v_mul_u32_u24 v50, {XJ_PITCH}, v50")
    A(f"v_lshrrev_b32 v51, 5, v{V_LANE}")
    A(f"v_lshl_add_u32 v50, v51, 4, v50")
    A(f"s_mul_i32 s{S_T0}, s{S_W}, {7*32}")
    A(f"s_add_u32 s{S_T0+1}, s{S_T0}, {LDS_XJ}")
    A(f"v_add_u32 v50, s{S_T0+1}, v50")
    for i in range(7): A(f"ds_read_b128 v[{J+4*i}:{J+4*i+3}], v50 offset:{i*32}")
    A(f"v_lshrrev_b32 v52, 4, v{V_LANE}")
    A(f"v_lshlrev_b32 v52, 3, v52")
    A(f"v_bfe_u32 v53, v{V_LANE}, 2, 2")
    A(f"v_add_u32 v52, v52, v53")
    A(f"v_mul_u32_u24 v52, {XJ_PITCH}, v52")
    A(f"v_and_b32 v53, 3, v{V_LANE}")
    A(f"v_lshl_add_u32 v52, v53, 3, v52")
    A(f"v_add_u32 v52, s{S_T0+1}, v52")
    X=96
    for i in range(4):
        A(f"ds_read_b64_tr_b16 v[{X+4*i}:{X+4*i+1}], v52 offset:{i*32}")
        A(f"ds_read_b64_tr_b16 v[{X+4*i+2}:{X+4*i+3}], v52 offset:{i*32+4*XJ_PITCH}")
    A("v_mov_b32 v54, 0x3f803f80\nv_mov_b32 v56, 0\nv_mov_b32 v57, 0\nv_mov_b32 v58, 0\nv_mov_b32 v59, 0")
    A(f"v_and_b32 v53, 15, v{V_LANE}")
    A(f"v_lshlrev_b32 v53, 6, v53")
    A(f"v_lshrrev_b32 v55, 4, v{V_LANE}")
    A(f"v_lshl_add_u32 v53, v55, 4, v53")
    A(f"s_mul_i32 s{S_T0+2}, s{S_WG}, 448")
    A(f"s_mul_i32 s{S_T0+3}, s{S_W}, {7*16}")
    A(f"s_add_u32 s{S_T0+2}, s{S_T0+2}, s{S_T0+3}")
    A(f"s_lshl_b32 s{S_T0+2}, s{S_T0+2}, 6")
    A(f"s_add_u32 s{S_T0+2}, s{S_T0+2}, {WS_XT}")
    A("s_waitcnt lgkmcnt(8)")
    for i in range(28):
        A(f"v_dot2_f32_bf16 v{56+(i&1)}, v{J+i}, v54, v{56+(i&1)}")
        A(f"v_dot2_f32_bf16 v{58+(i&1)}, v{J+i}, v{J+i}, v{58+(i&1)}")
    for i in range(4,7):
        A(f"ds_read_b64_tr_b16 v[{X+4*i}:{X+4*i+1}], v52 offset:{i*32}")
        A(f"ds_read_b64_tr_b16 v[{X+4*i+2}:{X+4*i+3}], v52 offset:{i*32+4*XJ_PITCH}")
    A("v_add_f32 v56, v56, v57\nv_add_f32 v57, v58, v59")
    A("v_mov_b32 v58, v56\nv_mov_b32 v59, v57")
    A("v_permlane32_swap_b32 v56, v58\nv_permlane32_swap_b32 v57, v59")
    A("v_add_f32 v56, v56, v58\nv_add_f32 v57, v57, v59")
    A(f"v_and_b32 v60, 31, v{V_LANE}")
    A(f"v_lshlrev_b32 v60, 5, v60")
    A(f"v_add_u32 v60, {LDS_XS}, v60")
    A(f"s_lshl_b32 s{S_T0+3}, s{S_W}, 3")
    A(f"v_add_u32 v61, s{S_T0+3}, v60")
    A("ds_write_b64 v61, v[56:57]")
    for i in range(7):
        A(f"s_waitcnt lgkmcnt({min(15,2*(6-i)+1) if i<4 else 2*(6-i)+1})")
        A(f"s_add_u32 s{S_T0+3}, s{S_T0+2}, {i*1024}")
        A(f"buffer_store_dwordx4 v[{X+4*i}:{X+4*i+3}], v53, s[{SRD_WS}:{SRD_WS+3}], s{S_T0+3} offen sc1")
    A("s_waitcnt lgkmcnt(0)")
    A("s_barrier")
    l2=self.lab()
    A(f"v_readfirstlane_b32 s{S_TAG}, v{V_EP}")
    A(f"s_add_u32 s{S_TAG}, s{S_TAG}, 0x9E3779B9")
    A(f"s_cmp_lg_u32 s{S_W}, 0")
    A(f"s_cbranch_scc1 {l2}")
    A("ds_read_b128 v[64:67], v60\nds_read_b128 v[68:71], v60 offset:16")
    A("s_waitcnt lgkmcnt(0)")
    A("v_add_f32 v64, v64, v66\nv_add_f32 v65, v65, v67\nv_add_f32 v68, v68, v70\nv_add_f32 v69, v69, v71")
    A("v_add_f32 v64, v64, v68\nv_add_f32 v65, v65, v69")
    A(f"v_mul_f32 v64, {fl(1.0/448)}, v64")
    A(f"v_mul_f32 v65, {fl(1.0/448)}, v65")
    A("v_fma_f32 v65, -v64, v64, v65")
    A("v_max_f32 v65, 0, v65")
    A("v_cvt_pk_bf16_f32 v65, v65, v65")
    A("v_lshlrev_b32 v65, 16, v65")
    A(f"v_add_f32 v65, {fl(1e-5)}, v65")
    A("v_cvt_pk_bf16_f32 v65, v65, v65")
    A("v_lshlrev_b32 v65, 16, v65")
    A("v_sqrt_f32 v65, v65")
    A("v_cvt_pk_bf16_f32 v66, v65, v64")
    A(f"v_mov_b32 v67, s{S_TAG}")
    A(f"v_and_b32 v68, 31, v{V_LANE}")
    A("v_lshlrev_b32 v68, 3, v68")
    A(f"s_lshl_b32 s{S_T0+3}, s{S_WG}, 8")
    A(f"s_add_u32 s{S_T0+3}, s{S_T0+3}, {WS_STATS}")
    A("s_mov_b32 exec_hi, 0")
    A(f"buffer_store_dwordx2 v[66:67], v68, s[{SRD_WS}:{SRD_WS+3}], s{S_T0+3} offen sc1")
    A("s_mov_b32 exec_hi, -1")
    A(f"{l2}:")
    A(f"s_branch {le}")
    A(f"{lo}:")
    A("s_waitcnt vmcnt(0)")
    A(f"v_readfirstlane_b32 s{S_TAG}, v{V_EP}")
    A(f"s_add_u32 s{S_TAG}, s{S_TAG}, 0x9E3779B9")
    A(f"{le}:")

@add_method
def wjob_issue(self):
    A=self.A; le=self.lab('Lwe'); ld=self.lab('Lwd'); lc=self.lab('Lwc')
    A(f"s_mov_b32 s{S_JDST}, 0")
    A(f"s_cmp_lt_u32 s{S_GW}, 256")
    A(f"s_cbranch_scc1 {le}")
    A(f"s_sub_u32 s{S_T0}, s{S_GW}, 256")
    A(f"s_cmp_ge_u32 s{S_T0}, {NWJ}")
    A(f"s_cbranch_scc1 {le}")
    A(f"s_lshl_b32 s{S_JL}, s{S_W}, 13")
    A(f"s_add_u32 s{S_JL}, s{S_JL}, {LDS_JOB}")
    A(f"s_cmp_ge_u32 s{S_T0}, 392")
    A(f"s_cbranch_scc1 {ld}")
    A(f"s_cmp_ge_u32 s{S_T0}, 196")
    A(f"s_cselect_b32 s{SRD_W}, s{S_WUP}, s{S_WGT}")
    A(f"s_cselect_b32 s{SRD_W+1}, s{S_WUP+1}, s{S_WGT+1}")
    A(f"s_cselect_b32 s{S_T0+1}, 1, 0")
    A(f"s_mul_i32 s{S_T0+2}, s{S_T0+1}, 196")
    A(f"s_sub_u32 s{S_T0+2}, s{S_T0}, s{S_T0+2}")
    A(f"s_mul_i32 s{S_T0+3}, s{S_T0+2}, 9363")
    A(f"s_lshr_b32 s{S_T0+3}, s{S_T0+3}, 16")
    A(f"s_mul_i32 s{S_T0+4}, s{S_T0+3}, 7")
    A(f"s_sub_u32 s{S_T0+4}, s{S_T0+2}, s{S_T0+4}")
    A(f"s_movk_i32 s{S_T0+5}, 3584")
    A(f"s_lshl_b32 s{S_T0+6}, s{S_T0+3}, 2")
    A(f"s_add_u32 s{S_T0+6}, s{S_T0+6}, s{S_T0+1}")
    A(f"s_mul_i32 s{S_T0+6}, s{S_T0+6}, 28")
    A(f"s_lshl_b32 s{S_T0+7}, s{S_T0+4}, 2")
    A(f"s_add_u32 s{S_T0+6}, s{S_T0+6}, s{S_T0+7}")
    A(f"s_lshl_b32 s{S_T0+6}, s{S_T0+6}, 10")
    A(f"s_add_u32 s{S_JDST}, s{S_T0+6}, {WS_WF1}")
    A(f"s_mov_b32 s{S_JE}, {56*1024}")
    A(f"s_movk_i32 s{S_JK}, 0x0409")
    A(f"s_branch {lc}")
    A(f"{ld}:")
    A(f"s_mov_b32 s{SRD_W}, s{S_WD}")
    A(f"s_mov_b32 s{SRD_W+1}, s{S_WD+1}")
    A(f"s_sub_u32 s{S_T0+2}, s{S_T0}, 392")
    A(f"s_mul_i32 s{S_T0+3}, s{S_T0+2}, 2341")
    A(f"s_lshr_b32 s{S_T0+3}, s{S_T0+3}, 16")
    A(f"s_mul_i32 s{S_T0+4}, s{S_T0+3}, 28")
    A(f"s_sub_u32 s{S_T0+4}, s{S_T0+2}, s{S_T0+4}")
    A(f"s_movk_i32 s{S_T0+5}, 896")
    A(f"s_mul_i32 s{S_T0+6}, s{S_T0+3}, 224")
    A(f"s_lshl_b32 s{S_T0+7}, s{S_T0+4}, 2")
    A(f"s_add_u32 s{S_T0+6}, s{S_T0+6}, s{S_T0+7}")
    A(f"s_lshl_b32 s{S_T0+6}, s{S_T0+6}, 10")
    A(f"s_add_u32 s{S_JDST}, s{S_T0+6}, {WS_WFD}")
    A(f"s_mov_b32 s{S_JE}, {112*1024}")
    A(f"s_movk_i32 s{S_JK}, 0x0809")
    A(f"{lc}:")
    A(f"s_mov_b32 s{SRD_W+2}, {D_*F_*2}")
    A(f"s_mov_b32 s{SRD_W+3}, 0x20000")
    A(f"v_lshrrev_b32 v48, 3, v{V_LANE}")
    A(f"v_mul_lo_u32 v48, v48, s{S_T0+5}")
    A(f"v_bfe_u32 v49, v{V_LANE}, 4, 1")
    A(f"v_lshlrev_b32 v49, 2, v49")
    A(f"v_and_b32 v50, 7, v{V_LANE}")
    A(f"v_xor_b32 v49, v49, v50")
    A(f"v_lshl_add_u32 v48, v49, 4, v48")
    A(f"s_lshl_b32 s{S_T0+6}, s{S_T0+4}, 6")
    A(f"s_mul_i32 s{S_T0+6}, s{S_T0+6}, s{S_T0+5}")
    A(f"s_lshl_b32 s{S_T0+7}, s{S_T0+3}, 7")
    A(f"s_add_u32 s{S_T0+6}, s{S_T0+6}, s{S_T0+7}")
    A(f"s_lshl_b32 s{S_T0+7}, s{S_T0+5}, 3")
    for i in range(8):
        A(f"s_add_u32 m0, s{S_JL}, {i*1024}")
        A(f"buffer_load_dwordx4 v48, s[{SRD_W}:{SRD_W+3}], s{S_T0+6} offen lds")
        if i<7: A(f"s_add_u32 s{S_T0+6}, s{S_T0+6}, s{S_T0+7}")
    A(f"{le}:")

for _u in range(196): assert (_u*9363)>>16 == _u//7
for _u in range(196): assert (_u*2341)>>16 == _u//28

@add_method
def wjob_post(self):
    A=self.A; le=self.lab('Lwp')
    A(f"s_cmp_eq_u32 s{S_JDST}, 0")
    A(f"s_cbranch_scc1 {le}")
    J=64
    A(f"s_and_b32 s{S_T0}, s{S_JK}, 0xff")
    A(f"s_lshr_b32 s{S_T0+1}, s{S_JK}, 8")
    A(f"s_cmp_eq_u32 s{S_T0+1}, 4")
    A(f"s_cselect_b32 s{S_T0}, 10, 9")
    A(f"s_lshl_b32 s{S_T0+1}, s{S_T0+1}, 7")
    A(f"v_lshrrev_b32 v50, 5, v{V_LANE}")
    A(f"v_lshlrev_b32 v50, s{S_T0}, v50")
    A(f"v_bfe_u32 v51, v{V_LANE}, 2, 2")
    A(f"v_lshl_add_u32 v50, v51, 7, v50")
    A(f"v_lshrrev_b32 v51, 1, v51")
    A(f"v_lshlrev_b32 v51, 2, v51")
    A(f"v_bfe_u32 v52, v{V_LANE}, 4, 1")
    A(f"v_bfe_u32 v53, v{V_LANE}, 1, 1")
    A(f"v_lshl_add_u32 v52, v52, 1, v53")
    A(f"v_xor_b32 v51, v51, v52")
    A(f"v_lshl_add_u32 v50, v51, 4, v50")
    A(f"v_and_b32 v51, 1, v{V_LANE}")
    A(f"v_lshl_add_u32 v50, v51, 3, v50")
    A(f"v_add_u32 v50, s{S_JL}, v50")
    A(f"v_add_u32 v51, s{S_T0+1}, v50")
    A(f"v_xor_b32 v52, 64, v50")
    A(f"v_xor_b32 v53, 64, v51")
    A(f"v_lshlrev_b32 v54, 4, v{V_LANE}")
    A("s_waitcnt vmcnt(0)")
    def rd(k):
        kap,e=k>>1,k&1; r=J+4*k
        A(f"ds_read_b64_tr_b16 v[{r}:{r+1}], v{50+2*e} offset:{kap*2048}")
        A(f"ds_read_b64_tr_b16 v[{r+2}:{r+3}], v{51+2*e} offset:{kap*2048}")
    for k in range(6): rd(k)
    for k in range(8):
        kap,e=k>>1,k&1; r=J+4*k
        issued=min(8,6+k)
        A(f"s_waitcnt lgkmcnt({2*(issued-1-k)})")
        if e==0: A(f"s_add_u32 s{S_T0+2}, s{S_JDST}, {kap*1024}")
        else:
            A(f"s_add_u32 s{S_T0+2}, s{S_JDST}, s{S_JE}")
            A(f"s_add_u32 s{S_T0+2}, s{S_T0+2}, {kap*1024}")
        A(f"buffer_store_dwordx4 v[{r}:{r+3}], v54, s[{SRD_WS}:{SRD_WS+3}], s{S_T0+2} offen sc1")
        if 6+k<8: rd(6+k)
    A(f"{le}:")

@add_method
def job_flag(self, which):
    A=self.A; l=self.lab()
    if which=='x':
        A(f"s_cmp_ge_u32 s{S_GW}, 256")
        A(f"s_cbranch_scc1 {l}")
    else:
        A(f"s_cmp_eq_u32 s{S_JDST}, 0")
        A(f"s_cbranch_scc1 {l}")
    A("s_waitcnt vmcnt(0)")
    A(f"s_lshl_b32 s{S_T0+10}, s{S_GW}, 6")
    A(f"s_add_u32 s{S_T0+10}, s{S_T0+10}, {WS_JF}")
    A(f"v_mov_b32 v47, s{S_TAG}")
    A("s_mov_b64 exec, 1")
    A(f"buffer_store_dword v47, v{V_ZERO}, s[{SRD_WS}:{SRD_WS+3}], s{S_T0+10} offen sc1")
    A("s_mov_b64 exec, -1")
    A(f"{l}:")

def bf16_lo(dst, src): return f"v_lshlrev_b32 v{dst}, 16, v{src}"
def bf16_hi(dst, src): return f"v_and_b32 v{dst}, 0xffff0000, v{src}"

def cmul(A, R, P, Z, T):
    A(f"v_pk_mul_f32 v[{T}:{T+1}], v[{P}:{P+1}], v[{Z}:{Z+1}] op_sel_hi:[0,1]")
    A(f"v_pk_fma_f32 v[{R}:{R+1}], v[{P}:{P+1}], v[{Z}:{Z+1}], v[{T}:{T+1}] op_sel:[1,1,0] op_sel_hi:[1,0,1] neg_lo:[1,0,0]")

def kreg(e,name):
    names=['C','Z1','Z2','Z4','Z8','Z256','P','Q','R','T','X0','X1']
    return [128,152][e]+2*names.index(name)
ROWS=[0,1,2,3,4,5,6,7,256,258,260,262,512,516,768,772,1024,1280,1536,1792,2048]

@add_method
def kgen_setup(self):
    A=self.A
    A("s_waitcnt lgkmcnt(0)")
    A(f"s_lshl_b32 s{S_T0}, s{S_CH}, 4")
    A(f"s_lshr_b32 s{S_DT}, s{S_DT}, s{S_T0}")
    A(f"s_lshl_b32 s{S_DT}, s{S_DT}, 16")
    A(f"s_lshr_b32 s{S_DSKV}, s{S_DSKV}, s{S_T0}")
    A(f"s_lshl_b32 s{S_DSKV}, s{S_DSKV}, 16")
    DT=48
    A(f"v_mov_b32 v{DT}, s{S_DT}")
    A(f"v_mul_f32 v{DT}, {fl(LOG2E)}, v{DT}")
    A(f"v_exp_f32 v{DT}, v{DT}")
    A(f"v_cvt_pk_bf16_f32 v{DT}, v{DT}, v{DT}")
    A(f"v_lshlrev_b32 v{DT}, 16, v{DT}")
    A(f"v_and_b32 v50, 0x7fff7fff, v{V_PA+2}")
    A(f"v_and_b32 v51, 0x7fff7fff, v{V_PA+3}")
    A(f"v_and_b32 v52, 0x7fff7fff, v{V_PA+4}")
    A(f"v_and_b32 v53, 0x7fff7fff, v{V_PA+5}")
    A("v_pk_max_u16 v50, v50, v51")
    A("v_pk_max_u16 v52, v52, v53")
    A("v_pk_max_u16 v50, v50, v52")
    A("v_lshrrev_b32 v51, 16, v50")
    A("v_and_b32 v50, 0xffff, v50")
    A("v_max_u32 v50, v50, v51")
    for mode in ["row_shr:1 row_mask:0xf bank_mask:0xf bound_ctrl:0","row_shr:2 row_mask:0xf bank_mask:0xf bound_ctrl:0",
                 "row_shr:4 row_mask:0xf bank_mask:0xf bound_ctrl:0","row_shr:8 row_mask:0xf bank_mask:0xf bound_ctrl:0",
                 "row_bcast:15 row_mask:0xa bank_mask:0xf","row_bcast:31 row_mask:0xc bank_mask:0xf"]:
        A(f"v_max_u32_dpp v50, v50, v50 {mode}")
    A(f"v_readlane_b32 s{S_T0}, v50, 63")
    A(f"s_lshr_b32 s{S_T0}, s{S_T0}, 7")
    A(f"s_max_u32 s{S_T0}, s{S_T0}, 1")
    A(f"s_min_u32 s{S_T0}, s{S_T0}, 253")
    A(f"s_sub_u32 s{S_T0+1}, 254, s{S_T0}")
    A(f"s_lshl_b32 s{S_T0+1}, s{S_T0+1}, 23")
    A(f"s_lshl_b32 s{S_T0}, s{S_T0}, 23")
    A(f"v_add_f32 v49, v{DT}, v{DT}")
    A(f"v_mul_f32 v49, s{S_T0}, v49")
    A(f"v_readfirstlane_b32 s{S_YS}, v49")
    AR=[50,51]; TH=[52,53]
    reg=kreg
    for e in range(2):
        un = bf16_lo if e==0 else bf16_hi
        A(un(AR[e], V_PA)); A(un(TH[e], V_PA+1))
        A(un(reg(e,'C'), V_PA+2)); A(un(reg(e,'C')+1, V_PA+3))
    for e in range(2):
        A(f"v_mul_f32 v{AR[e]}, {fl(LOG2E)}, v{AR[e]}")
    for e in range(2): A(f"v_exp_f32 v{AR[e]}, v{AR[e]}")
    for e in range(2):
        A(f"v_cvt_pk_bf16_f32 v{AR[e]}, v{AR[e]}, v{AR[e]}")
    for e in range(2):
        A(f"v_lshlrev_b32 v{AR[e]}, 16, v{AR[e]}")
    for e in range(2):
        A(f"v_mul_f32 v{AR[e]}, v{AR[e]}, v{DT}")
        A(f"v_mul_f32 v{TH[e]}, v{TH[e]}, v{DT}")
    for e in range(2):
        A(f"v_mul_f32 v{AR[e]}, {fl(-LOG2E)}, v{AR[e]}")
        A(f"v_mul_f32 v{TH[e]}, {fl(INV2PI)}, v{TH[e]}")
        c=reg(e,'C')
        A(f"v_mul_f32 v{c}, s{S_T0+1}, v{c}")
        A(f"v_mul_f32 v{c+1}, s{S_T0+1}, v{c+1}")
    for name,p in (('Z1',1.0),('Z8',8.0),('Z256',256.0)):
        for e in range(2):
            z=reg(e,name); x0=reg(e,'X0'); x1=reg(e,'X1')
            if p==1.0:
                A(f"v_exp_f32 v{x0}, v{AR[e]}")
                A(f"v_fract_f32 v{x0+1}, v{TH[e]}")
            else:
                A(f"v_mul_f32 v{x0}, {fl(p)}, v{AR[e]}")
                A(f"v_mul_f32 v{x0+1}, {fl(p)}, v{TH[e]}")
                A(f"v_exp_f32 v{x0}, v{x0}")
                A(f"v_fract_f32 v{x0+1}, v{x0+1}")
            A(f"v_cos_f32 v{x1}, v{x0+1}")
            A(f"v_sin_f32 v{x1+1}, v{x0+1}")
        for e in range(2):
            z=reg(e,name); x0=reg(e,'X0'); x1=reg(e,'X1')
            A(f"v_pk_mul_f32 v[{z}:{z+1}], v[{x1}:{x1+1}], v[{x0}:{x0+1}] op_sel_hi:[1,0]")
    for e in range(2): cmul(A, reg(e,'Z2'), reg(e,'Z1'), reg(e,'Z1'), reg(e,'T'))
    for e in range(2): cmul(A, reg(e,'Z4'), reg(e,'Z2'), reg(e,'Z2'), reg(e,'T'))

@add_method
def kgen_gen(self):
    A=self.A
    reg=kreg
    VA=104
    A(f"s_mul_i32 s{S_T0+2}, s{S_W}, {KG_WAVE}")
    A(f"v_lshl_add_u32 v{VA}, v{V_LANE}, 3, s{S_T0+2}")
    OUT=[106,108,110,112]; oi=[0]
    def emit(idx, name, neg):
        o=OUT[oi[0]%4]; oi[0]+=1
        for e in range(2):
            r=reg(e,name)
            A(f"v_cvt_pk_f16_f32 v{o+e}, v{r}, {'-' if neg else ''}v{r+1}")
        A(f"ds_write_b64 v{VA}, v[{o}:{o+1}] offset:{idx*KG_PITCH}")
    def step(dst, src, z):
        for e in range(2):
            A(f"v_pk_mul_f32 v[{reg(e,'T')}:{reg(e,'T')+1}], v[{reg(e,src)}:{reg(e,src)+1}], v[{reg(e,z)}:{reg(e,z)+1}] op_sel_hi:[0,1]")
        for e in range(2):
            A(f"v_pk_fma_f32 v[{reg(e,dst)}:{reg(e,dst)+1}], v[{reg(e,src)}:{reg(e,src)+1}], v[{reg(e,z)}:{reg(e,z)+1}], v[{reg(e,'T')}:{reg(e,'T')+1}] op_sel:[1,1,0] op_sel_hi:[1,0,1] neg_lo:[1,0,0]")
    emit(0,'C',True)
    step('P','C','Z1'); emit(1,'P',True)
    for r in range(2,8): step('P','P','Z1'); emit(r,'P',True)
    step('Q','C','Z256'); emit(8,'Q',True)
    step('R','Q','Z2'); emit(9,'R',True)
    step('R','R','Z2'); emit(10,'R',True)
    step('R','R','Z2'); emit(11,'R',True)
    step('Q','Q','Z256'); emit(12,'Q',True)
    step('R','Q','Z4'); emit(13,'R',True)
    step('Q','Q','Z256'); emit(14,'Q',True)
    step('R','Q','Z4'); emit(15,'R',True)
    for r in range(16,21): step('Q','Q','Z256'); emit(r,'Q',True)
    self.job_flag('x')
    o=OUT[oi[0]%4]; oi[0]+=1
    A(f"v_mov_b32 v{o}, 0x3c00\nv_mov_b32 v{o+1}, 0x3c00")
    A(f"ds_write_b64 v{VA}, v[{o}:{o+1}] offset:{21*KG_PITCH}")
    emit(22,'Z8',False)
    step('P','Z8','Z8'); emit(23,'P',False)
    for b in range(3,32): step('P','P','Z8'); emit(21+b,'P',False)
    self.stamp('gen done')
    self.wjob_post()
    self.flag_load()
    A(f"s_mul_i32 s{S_T0+2}, s{S_W}, {KG_WAVE}")
    VAa=104; VAb=105
    A(f"v_and_b32 v48, 31, v{V_LANE}")
    A(f"v_min_u32 v49, 20, v48")
    A(f"v_lshrrev_b32 v50, 5, v{V_LANE}")
    A(f"v_lshlrev_b32 v50, 4, v50")
    A(f"v_add_u32 v50, s{S_T0+2}, v50")
    A(f"s_movk_i32 s{S_T0+3}, {KG_PITCH}")
    A(f"v_mad_u32_u24 v{VAa}, v49, s{S_T0+3}, v50")
    A(f"v_mad_u32_u24 v{VAb}, v48, s{S_T0+3}, v50")
    ACC=112
    FR=[64,72,80,88]
    def ld(ks):
        f=FR[ks%4]
        A(f"ds_read_b128 v[{f}:{f+3}], v{VAa} offset:{ks*32}")
        A(f"ds_read_b128 v[{f+4}:{f+7}], v{VAb} offset:{21*KG_PITCH+ks*32}")
    for ks in range(3): ld(ks)
    for ks in range(16):
        if ks+3<16: ld(ks+3)
        nxt=min(15,ks+3)-ks
        A(f"s_waitcnt lgkmcnt({2*nxt})")
        f=FR[ks%4]
        c = "0" if ks==0 else f"v[{ACC}:{ACC+15}]"
        A(f"v_mfma_f32_32x32x16_f16 v[{ACC}:{ACC+15}], v[{f}:{f+3}], v[{f+4}:{f+7}], {c}")
    l1=self.lab(); l2=self.lab()
    A(f"v_lshl_add_u32 v48, v{V_LANE}, 4, s{S_T0+2}")
    A(f"s_cmp_eq_u32 s{S_NH}, 0")
    A(f"s_cbranch_scc1 {l1}")
    for q in range(3): A(f"ds_write_b128 v48, v[{ACC+4*q}:{ACC+4*q+3}] offset:{q*1024}")
    A(f"{l1}:")
    A("s_waitcnt lgkmcnt(0)")
    A("s_barrier")
    A(f"s_cmp_eq_u32 s{S_NH}, 0")
    A(f"s_cbranch_scc0 {l2}")
    for q in range(3): A(f"ds_read_b128 v[{64+4*q}:{64+4*q+3}], v48 offset:{KG_WAVE+q*1024}")
    A(f"v_and_b32 v49, 31, v{V_LANE}")
    A(f"v_lshrrev_b32 v50, 5, v{V_LANE}")
    A(f"v_lshlrev_b32 v51, 4, v49")
    A(f"v_lshl_add_u32 v51, v50, 3, v51")
    A(f"v_add_u32 v51, s{S_T0+2}, v51")
    A(f"v_lshlrev_b32 v52, 3, v49")
    A(f"v_add_u32 v52, 512, v52")
    A(f"v_lshlrev_b32 v53, 2, v49")
    A(f"v_add_u32 v53, 768, v53")
    A(f"v_cmp_eq_u32 vcc, 1, v50")
    A(f"v_cndmask_b32 v52, v52, v53, vcc")
    A(f"v_add_u32 v52, s{S_T0+2}, v52")
    A(f"v_mov_b32 v53, 4")
    A(f"v_mov_b32 v54, 128")
    A(f"v_cndmask_b32 v53, v53, v54, vcc")
    A(f"v_add_u32 v53, v52, v53")
    A(f"v_lshlrev_b32 v54, 1, v49")
    A(f"v_lshl_add_u32 v54, v50, 8, v54")
    A(f"v_add_u32 v54, s{S_T0+2}, v54")
    A("s_waitcnt lgkmcnt(0)")
    for r in range(12):
        A(f"v_add_f32 v{64+r}, v{64+r}, v{ACC+r}")
    for r in range(12):
        A(f"v_cvt_f16_f32 v{64+r}, v{64+r}")
    for r in range(4): A(f"ds_write_b16 v51, v{64+r} offset:{2*r}")
    for r in (4,5): A(f"ds_write_b16 v52, v{64+r} offset:{2*(r-4)}")
    for r in (6,7): A(f"ds_write_b16 v53, v{64+r} offset:{2*(r-6)}")
    for r in range(8,12): A(f"ds_write_b16 v54, v{64+r} offset:{1024+64*(r-8)}")
    A(f"v_mov_b32 v50, 0")
    A(f"v_mov_b32 v51, s{S_T0+2}")
    A(f"ds_write_b16 v51, v50 offset:{2*768}")
    A(f"{l2}:")
    A("s_waitcnt lgkmcnt(0)")
    A("s_barrier")

@add_method
def kexpand(self):
    A=self.A
    D0=64
    def rd(ch,x):
        tb=(2*ch)*KG_WAVE; d=D0+ch*28
        A(f"ds_read_u16 v{d+x}, v{V_OFF+x} offset:{tb}")
    def mk(ch):
        d=D0+ch*28
        for c in range(4):
            for x in range(4):
                A(f"v_lshl_or_b32 v{d+12+4*c+x}, v{d+c+2*x+1}, 16, v{d+c+2*x}")
    def wr(ch):
        d=D0+ch*28
        for c in range(4):
            r=d+12+4*c
            A(f"ds_write_b128 v49, v[{r}:{r+3}] offset:{ch*KX_CH+c*KX_COPY}")
    for x in range(11): rd(0,x)
    for x in range(4): rd(1,x)
    A(f"v_lshlrev_b32 v49, 4, v{V_T}")
    A(f"v_add_u32 v49, {LDS_KX}, v49")
    A("s_waitcnt lgkmcnt(4)")
    mk(0)
    for x in range(4,11): rd(1,x)
    wr(0)
    A("s_waitcnt lgkmcnt(4)")
    mk(1)
    wr(1)
    A("v_mov_b32 v64, 0\nv_mov_b32 v65, 0\nv_mov_b32 v66, 0\nv_mov_b32 v67, 0")
    l=self.lab()
    A(f"s_cmp_lg_u32 s{S_W}, 0")
    A(f"s_cbranch_scc1 {l}")
    A(f"v_and_b32 v50, 31, v{V_LANE}")
    A(f"v_lshlrev_b32 v50, 4, v50")
    A(f"v_lshrrev_b32 v51, 5, v{V_LANE}")
    A(f"v_mul_u32_u24 v51, {U_CH}, v51")
    A(f"v_add_u32 v50, v50, v51")
    A(f"v_add_u32 v50, {LDS_U}, v50")
    A(f"ds_write_b128 v50, v[64:67]")
    A(f"v_lshrrev_b32 v50, 1, v{V_LANE}")
    A(f"v_and_b32 v50, 7, v50")
    A(f"v_mul_u32_u24 v50, {KX_COPY}, v50")
    A(f"v_and_b32 v51, 1, v{V_LANE}")
    A(f"v_lshl_add_u32 v50, v51, 4, v50")
    A(f"v_add_u32 v50, {LDS_KX+4096}, v50")
    A(f"ds_write_b128 v50, v[64:67]")
    A(f"{l}:")

S_GB=64
S_KSTR=68
@add_method
def stage_w(self, kind):
    A=self.A
    RING=24576
    if kind=='w1':
        stride=3584
        A(f"s_mov_b32 s{SRD_W}, s{S_WGT}\ns_mov_b32 s{SRD_W+1}, s{S_WGT+1}\ns_mov_b32 s{SRD_W+2}, {D_*F_*2}\ns_mov_b32 s{SRD_W+3}, 0x20000")
        A(f"s_mov_b32 s{SRD_W2}, s{S_WUP}\ns_mov_b32 s{SRD_W2+1}, s{S_WUP+1}\ns_mov_b32 s{SRD_W2+2}, {D_*F_*2}\ns_mov_b32 s{SRD_W2+3}, 0x20000")
        A(f"s_lshl_b32 s{S_T0}, s{S_J}, 8")
        A(f"s_lshl_b32 s{S_T0+1}, s{S_W}, 6")
        A(f"s_add_u32 s{S_T0}, s{S_T0}, s{S_T0+1}")
        for g in range(4):
            A(f"s_add_u32 s{S_T0+1}, s{S_W}, {g}")
            A(f"s_and_b32 s{S_T0+1}, s{S_T0+1}, 3")
            A(f"s_mul_i32 s{S_T0+1}, s{S_T0+1}, {7*16*stride}")
            A(f"s_add_u32 s{S_GB+g}, s{S_T0+1}, s{S_T0}")
        tileoff2=0
    else:
        stride=896
        A(f"s_mov_b32 s{SRD_W}, s{S_WD}\ns_mov_b32 s{SRD_W+1}, s{S_WD+1}\ns_mov_b32 s{SRD_W+2}, {D_*F_*2}\ns_mov_b32 s{SRD_W+3}, 0x20000")
        A(f"s_mov_b32 s{SRD_W2}, s{S_WD}\ns_mov_b32 s{SRD_W2+1}, s{S_WD+1}\ns_mov_b32 s{SRD_W2+2}, {D_*F_*2}\ns_mov_b32 s{SRD_W2+3}, 0x20000")
        A(f"s_cmp_ge_u32 s{S_J}, 7")
        A(f"s_cselect_b32 s{S_T0}, 7, 0")
        A(f"s_sub_u32 s{S_T0}, s{S_J}, s{S_T0}")
        A(f"s_lshl_b32 s{S_T0}, s{S_T0}, 7")
        A(f"s_mul_i32 s{S_T0+1}, s{S_W}, {448*stride}")
        A(f"s_add_u32 s{S_T0}, s{S_T0}, s{S_T0+1}")
        for g in range(4):
            A(f"s_add_u32 s{S_GB+g}, s{S_T0}, {g*7*16*stride}")
        tileoff2=64
    kstr=16*stride
    A(f"v_lshrrev_b32 v48, 2, v{V_LANE}")
    A(f"v_mul_u32_u24 v48, {stride}, v48")
    A(f"v_and_b32 v49, 3, v{V_LANE}")
    A(f"v_lshl_add_u32 v48, v49, 4, v48")
    if kind=='w1':
        A(f"v_mov_b32 v52, v48")
    else:
        A(f"s_lshl_b32 s{S_T0+1}, s{S_NH}, 6")
        A(f"s_xor_b32 s{S_T0+3}, s{S_T0+1}, 64")
        A(f"v_add_u32 v52, s{S_T0+3}, v48")
        A(f"v_add_u32 v48, s{S_T0+1}, v48")
    A(f"s_mul_i32 s{S_T0+2}, s{S_W}, {RING}")
    A(f"v_lshrrev_b32 v50, 5, v{V_LANE}")
    A(f"v_lshlrev_b32 v50, {9 if kind=='w1' else 8}, v50")
    A(f"v_bfe_u32 v51, v{V_LANE}, 2, 2")
    A(f"v_lshl_add_u32 v50, v51, 6, v50")
    A(f"v_bfe_u32 v51, v{V_LANE}, 4, 1")
    A(f"v_lshl_add_u32 v50, v51, 5, v50")
    A(f"v_and_b32 v51, 3, v{V_LANE}")
    A(f"v_lshl_add_u32 v50, v51, 3, v50")
    A(f"v_add_u32 v50, s{S_T0+2}, v50")
    second = 256 if kind=='w1' else 512
    def issue(c):
        slot=c%3
        for i in range(4):
            s=4*c+i; g=s//7; r=s%7
            A(f"s_add_u32 s{S_T0+3}, s{S_GB+g}, {r*kstr}")
            A(f"s_add_u32 m0, s{S_T0+2}, {slot*8192+i*2048}")
            A(f"buffer_load_dwordx4 v48, s[{SRD_W}:{SRD_W+3}], s{S_T0+3} offen lds")
            A(f"s_add_u32 m0, s{S_T0+2}, {slot*8192+i*2048+1024}")
            A(f"buffer_load_dwordx4 v52, s[{SRD_W2}:{SRD_W2+3}], s{S_T0+3} offen lds")
    for c in range(3): issue(c)
    for c in range(7):
        A(f"s_waitcnt vmcnt({8*min(2,6-c)})")
        slot=c%3
        for i in range(4):
            s=4*c+i
            for tile in range(2):
                a=8*s+4*tile; off=slot*8192+i*2048+tile*1024
                A(f"ds_read_b64_tr_b16 a[{a}:{a+1}], v50 offset:{off}")
                A(f"ds_read_b64_tr_b16 a[{a+2}:{a+3}], v50 offset:{off+second}")
            if i==1: A("s_waitcnt lgkmcnt(4)")
        if c+3<7:
            A("s_waitcnt lgkmcnt(0)")
            issue(c+3)
    A("s_waitcnt lgkmcnt(0)")

@add_method
def flag_load(self):
    A=self.A
    A(f"s_lshr_b32 s{S_T0}, s{S_D0}, 4")
    A(f"s_mul_i32 s{S_T0}, s{S_T0}, 37")
    A(f"s_lshr_b32 s{S_T0}, s{S_T0}, 8")
    A(f"s_lshl_b32 s{S_T0+1}, s{S_W}, 6")
    A(f"s_add_u32 s{S_T0}, s{S_T0}, s{S_T0+1}")
    A(f"v_and_b32 v44, 15, v{V_LANE}")
    A(f"v_lshlrev_b32 v45, 2, v44")
    A(f"v_add_u32 v45, s{S_T0}, v45")
    A(f"s_lshl_b32 s{S_T0}, s{S_J}, 2")
    A(f"s_add_u32 s{S_T0}, s{S_T0}, s{S_W}")
    A(f"s_lshr_b32 s{S_T0}, s{S_T0}, 1")
    A(f"s_mul_i32 s{S_T0}, s{S_T0}, 7")
    A(f"s_add_u32 s{S_T0}, s{S_T0}, 256")
    A(f"v_min_u32 v44, 13, v44")
    A(f"v_add_u32 v46, 189, v44")
    A(f"v_cmp_lt_u32 vcc, 6, v44")
    A(f"v_cndmask_b32 v44, v44, v46, vcc")
    A(f"v_add_u32 v44, s{S_T0}, v44")
    A(f"v_bfe_u32 v46, v{V_LANE}, 4, 1")
    A(f"v_cmp_eq_u32 vcc, 1, v46")
    A(f"v_cndmask_b32 v44, v45, v44, vcc")
    A(f"v_lshlrev_b32 v44, 6, v44")
    A(f"s_mov_b32 s{S_T0+11}, {WS_JF}")
    A(f"buffer_load_dword v46, v44, s[{SRD_WS}:{SRD_WS+3}], s{S_T0+11} offen sc1")

@add_method
def flag_wait(self, mask):
    A=self.A
    lp=self.lab('Lpoll'); le=self.lab()
    A(f"s_mov_b32 s{S_T0+1}, 0")
    A(f"{lp}:")
    A("s_waitcnt vmcnt(0)")
    A(f"v_cmp_eq_u32 vcc, s{S_TAG}, v46")
    A(f"s_and_b32 s{S_T0+2}, vcc_lo, {hex(mask)}")
    A(f"s_cmp_eq_u32 s{S_T0+2}, {hex(mask)}")
    A(f"s_cbranch_scc1 {le}")
    A(f"buffer_load_dword v46, v44, s[{SRD_WS}:{SRD_WS+3}], s{S_T0+11} offen sc1")
    A(f"s_add_u32 s{S_T0+1}, s{S_T0+1}, 1")
    A(f"s_cmp_lt_u32 s{S_T0+1}, 0x8000")
    A(f"s_cbranch_scc1 {lp}")
    A(f"{le}:")

@add_method
def xt_loads(self):
    A=self.A
    SG=144; XA=8
    A(f"v_lshrrev_b32 v48, 2, v{V_T}")
    A(f"s_movk_i32 s{S_T0+2}, {448*64}")
    A(f"v_mul_lo_u32 v48, v48, s{S_T0+2}")
    A(f"v_and_b32 v49, 3, v{V_T}")
    A(f"v_lshl_add_u32 v48, v49, 4, v48")
    A(f"s_lshl_b32 s{S_T0+2}, s{S_D0}, 6")
    A(f"s_add_u32 s{S_T0+2}, s{S_T0+2}, {WS_XT}")
    A(f"buffer_load_dwordx4 v[{XA}:{XA+3}], v48, s[{SRD_WS}:{SRD_WS+3}], s{S_T0+2} offen sc1")
    A(f"buffer_load_dwordx4 v[{XA+4}:{XA+7}], v48, s[{SRD_WS}:{SRD_WS+3}], s{S_T0+2} offen offset:64 sc1")
    A(f"v_lshlrev_b32 v43, 6, v{V_T}")
    A(f"s_mov_b32 s{S_T0+13}, {WS_STATS}")
    for k in range(4):
        A(f"buffer_load_dwordx4 v[{SG+4*k}:{SG+4*k+3}], v43, s[{SRD_WS}:{SRD_WS+3}], s{S_T0+13} offen offset:{16*k} sc1")

@add_method
def w1_setup(self):
    A=self.A
    A(f"s_lshl_b32 s{S_T0}, s{S_J}, 2")
    A(f"s_add_u32 s{S_T0}, s{S_T0}, s{S_W}")
    A(f"s_mul_i32 s{S_T0}, s{S_T0}, 56")
    for g in range(4):
        A(f"s_add_u32 s{S_T0+1}, s{S_W}, {g}")
        A(f"s_and_b32 s{S_T0+1}, s{S_T0+1}, 3")
        A(f"s_mul_i32 s{S_T0+1}, s{S_T0+1}, 7")
        A(f"s_add_u32 s{S_T0+1}, s{S_T0+1}, s{S_T0}")
        A(f"s_lshl_b32 s{S_T0+1}, s{S_T0+1}, 10")
        A(f"s_add_u32 s{S_GB+g}, s{S_T0+1}, {WS_WF1}")
    A(f"v_lshlrev_b32 v45, 4, v{V_LANE}")

@add_method
def w1_items(self, s0, s1):
    out=[]
    for s in range(s0,s1):
        g=s//7; i=s%7
        for t in range(2):
            out.append([f"s_add_u32 s{S_T0+12}, s{S_GB+g}, {i*1024+t*28*1024}",
                        f"buffer_load_dwordx4 a[{8*s+4*t}:{8*s+4*t+3}], v45, s[{SRD_WS}:{SRD_WS+3}], s{S_T0+12} offen sc1"])
    return out
@add_method
def w1_loads(self, s0, s1):
    for it in self.w1_items(s0,s1):
        for x in it: self.A(x)

@add_method
def stats_consume(self):
    A=self.A
    SG=144
    XA=8
    A("s_waitcnt vmcnt(0)")
    self.stamp('xt landed')
    lp=self.lab('Lpoll'); le=self.lab()
    A(f"s_mov_b32 s{S_T0+1}, 0")
    A(f"{lp}:")
    A(f"v_xor_b32 v49, s{S_TAG}, v{SG+1}")
    for k in range(1,8):
        A(f"v_xor_b32 v50, s{S_TAG}, v{SG+2*k+1}")
        A(f"v_or_b32 v49, v49, v50")
    A("v_cmp_ne_u32 vcc, 0, v49")
    A(f"s_add_u32 s{S_T0+1}, s{S_T0+1}, 1")
    A(f"s_cbranch_vccz {le}")
    for k in range(4):
        A(f"buffer_load_dwordx4 v[{SG+4*k}:{SG+4*k+3}], v43, s[{SRD_WS}:{SRD_WS+3}], s{S_T0+13} offen offset:{16*k} sc1")
    A("s_waitcnt vmcnt(0)")
    A(f"s_cmp_lt_u32 s{S_T0+1}, 0x8000")
    A(f"s_cbranch_scc1 {lp}")
    A(f"{le}:")
    for j in range(8):
        A(f"v_lshlrev_b32 v{80+j}, 16, v{SG+2*j}")
        A(f"v_and_b32 v{88+j}, 0xffff0000, v{SG+2*j}")
    for j in range(8): A(f"v_rcp_f32 v{80+j}, v{80+j}")
    for ch in range(2):
        X=96+ch*8
        for j in range(0,8,2):
            A(bf16_lo(X+j, XA+4*ch+j//2)); A(bf16_hi(X+j+1, XA+4*ch+j//2))
        for j in range(0,8,2):
            A(f"v_pk_add_f32 v[{X+j}:{X+j+1}], v[{X+j}:{X+j+1}], v[{88+j}:{88+j+1}] neg_lo:[0,1] neg_hi:[0,1]")
        if self.mimic>=2:
            for j in range(0,8,2):
                A(f"v_cvt_pk_bf16_f32 v{128+j//2}, v{X+j}, v{X+j+1}")
            for j in range(0,8,2):
                A(bf16_lo(X+j,128+j//2)); A(bf16_hi(X+j+1,128+j//2))
        for j in range(0,8,2):
            A(f"v_pk_mul_f32 v[{X+j}:{X+j+1}], v[{X+j}:{X+j+1}], v[{80+j}:{80+j+1}]")
        if self.mimic>=1:
            for j in range(0,8,2):
                A(f"v_cvt_pk_bf16_f32 v{128+j//2}, v{X+j}, v{X+j+1}")
            for j in range(0,8,2):
                A(bf16_lo(X+j,128+j//2)); A(bf16_hi(X+j+1,128+j//2))
        U=132+ch*4
        for j in range(0,8,2):
            A(f"v_cvt_pk_f16_f32 v{U+j//2}, v{X+j}, v{X+j+1}")
    A(f"v_lshlrev_b32 v48, 4, v{V_T}")
    A(f"v_add_u32 v49, {LDS_U+512}, v48")
    A(f"v_add_u32 v50, {LDS_XT}, v48")
    A(f"ds_write_b128 v49, v[132:135]")
    A(f"ds_write_b128 v49, v[136:139] offset:{U_CH}")
    A(f"ds_write_b128 v50, v[{XA}:{XA+3}]")
    A(f"ds_write_b128 v50, v[{XA+4}:{XA+7}] offset:{XT_CH}")
    self.flag_wait(0x3fff0000)
    self.w1_setup()
    A("s_waitcnt lgkmcnt(0)")
    A("s_barrier")

@add_method
def w1_rest(self):
    self.w1_loads(W1_IN_CONV,28)

@add_method
def wd_loads(self, s0, s1, S=None):
    out=[]
    for s in range(s0,s1):
        for ca in range(2):
            out.append(f"s_add_u32 s{S_T0+14}, s{S_T0+12+ca}, {s*1024}")
            out.append(('vm',f"buffer_load_dwordx4 a[{8*s+4*ca}:{8*s+4*ca+3}], v47, s[{SRD_WS}:{SRD_WS+3}], s{S_T0+14} offen sc1",f"WD{s}"))
    return out

@add_method
def wd_setup(self):
    A=self.A
    A(f"s_cmp_ge_u32 s{S_J}, 7")
    A(f"s_cselect_b32 s{S_T0+14}, 7, 0")
    A(f"s_sub_u32 s{S_T0+14}, s{S_J}, s{S_T0+14}")
    A(f"s_lshl_b32 s{S_T0+14}, s{S_T0+14}, 1")
    for ca in range(2):
        A(f"s_xor_b32 s{S_T0+12+ca}, s{S_NH}, {ca}")
        A(f"s_add_u32 s{S_T0+12+ca}, s{S_T0+12+ca}, s{S_T0+14}")
        A(f"s_mul_i32 s{S_T0+12+ca}, s{S_T0+12+ca}, 112")
        A(f"s_mul_i32 s{S_T0+15}, s{S_W}, 28")
        A(f"s_add_u32 s{S_T0+12+ca}, s{S_T0+12+ca}, s{S_T0+15}")
        A(f"s_lshl_b32 s{S_T0+12+ca}, s{S_T0+12+ca}, 10")
        A(f"s_add_u32 s{S_T0+12+ca}, s{S_T0+12+ca}, {WS_WFD}")
    A(f"v_lshlrev_b32 v47, 4, v{V_LANE}")

W1_IN_CONV=18
C_ACC=64
C_F=[96,160]
C_G=[128,192]
C_VF=48; C_VG=49
C_EU=224; C_EX=232
@add_method
def conv(self):
    A=self.A
    A(f"v_and_b32 v50, 15, v{V_LANE}")
    A(f"v_lshrrev_b32 v51, 4, v{V_LANE}")
    A(f"v_sub_u32 v52, 3, v50")
    A(f"v_and_b32 v52, 3, v52")
    A(f"v_mul_u32_u24 v52, {KX_COPY}, v52")
    A(f"v_lshrrev_b32 v53, 2, v50")
    A(f"v_lshlrev_b32 v53, 3, v53")
    A(f"v_sub_u32 v52, v52, v53")
    A(f"v_lshl_add_u32 v52, v51, 4, v52")
    A(f"s_mul_i32 s{S_T0}, s{S_CH}, {KX_CH}")
    A(f"s_lshl_b32 s{S_T0+1}, s{S_NH}, 8")
    A(f"s_sub_u32 s{S_T0}, s{S_T0}, s{S_T0+1}")
    A(f"s_add_u32 s{S_T0}, s{S_T0}, {LDS_KX+2*2028-64*63}")
    A(f"v_add_u32 v{C_VF}, s{S_T0}, v52")
    A(f"v_lshlrev_b32 v52, 5, v50")
    A(f"v_lshl_add_u32 v52, v51, 4, v52")
    A(f"s_mul_i32 s{S_T0}, s{S_CH}, {U_CH}")
    A(f"s_sub_u32 s{S_T0}, s{S_T0}, s{S_T0+1}")
    A(f"s_add_u32 s{S_T0}, s{S_T0}, {LDS_U+480-192}")
    A(f"v_add_u32 v{C_VG}, s{S_T0}, v52")
    def loads(sp):
        st=sp&1; out=[]
        for k in range(8):
            g=C_G[st]+4*k; f=C_F[st]+4*k
            out.append(f"ds_read_b128 v[{g}:{g+3}], v{C_VG} offset:{512*k+64*(3-sp)}")
            o=64*(63-8*k-sp)
            out.append(f"ds_read_b64 v[{f}:{f+1}], v{C_VF} offset:{o}")
            out.append(f"ds_read_b64 v[{f+2}:{f+3}], v{C_VF} offset:{o+8}")
        return out
    def mfmas(sp):
        st=sp&1; out=[]
        for t in range(8):
            for d in range(t+1):
                acc=C_ACC+4*t
                c = "0" if (sp==0 and d==0) else f"v[{acc}:{acc+3}]"
                out.append((t,d,f"v_mfma_f32_16x16x32_f16 v[{acc}:{acc+3}], v[{C_F[st]+4*d}:{C_F[st]+4*d+3}], v[{C_G[st]+4*(t-d)}:{C_G[st]+4*(t-d)+3}], {c}"))
        return out
    l0=loads(0)
    A(f"v_lshlrev_b32 v52, 5, v50")
    A(f"v_lshl_add_u32 v52, v51, 3, v52")
    A(f"s_lshl_b32 s{S_T0}, s{S_NH}, 11")
    A(f"s_mul_i32 s{S_T0+1}, s{S_CH}, {U_CH}")
    A(f"s_add_u32 s{S_T0+1}, s{S_T0+1}, s{S_T0}")
    A(f"s_add_u32 s{S_T0+1}, s{S_T0+1}, {LDS_U+512}")
    A(f"v_add_u32 v53, s{S_T0+1}, v52")
    A(f"s_mul_i32 s{S_T0+1}, s{S_CH}, {XT_CH}")
    A(f"s_add_u32 s{S_T0+1}, s{S_T0+1}, s{S_T0}")
    A(f"s_add_u32 s{S_T0+1}, s{S_T0+1}, {LDS_XT}")
    A(f"v_add_u32 v54, s{S_T0+1}, v52")
    for k in range(5):
        for x in l0[3*k:3*k+3]: A(x)
    issued=5
    wl=self.w1_items(0,W1_IN_CONV); wi=[0]; mc=[0]
    def wfill():
        mc[0]+=1
        if mc[0]%4==2 and wi[0]<len(wl):
            for x in wl[wi[0]]: A(x)
            wi[0]+=1
    nxt=loads(1); ni=0
    cur_t=-1
    for (t,d,txt) in mfmas(0):
        first = (t!=cur_t)
        if first:
            cur_t=t
            if t<=3: A(f"s_waitcnt lgkmcnt({3*(issued-1-t)})")
            elif t==4: A("s_waitcnt lgkmcnt(0)")
        A(txt)
        if first and issued<8:
            for x in l0[3*issued:3*issued+3]: A(x)
            issued+=1
        elif t>=4 and ni<len(nxt):
            A(nxt[ni]); ni+=1
        wfill()
    assert ni==len(nxt)
    epi=[]
    for tt in range(4):
        epi.append(f"ds_read_b64 v[{C_EU+2*tt}:{C_EU+2*tt+1}], v53 offset:{512*tt}")
        epi.append(f"ds_read_b64 v[{C_EX+2*tt}:{C_EX+2*tt+1}], v54 offset:{512*tt}")
    U=224; X=240
    PRE=160
    PRE=96
    UU=112
    pre=[]
    if self.mimic==0:
        pre.append(f"v_mov_b32 v47, s{S_DSKV}")
        for tt in range(4):
            for h in range(2):
                pre.append(f"v_cvt_f32_f16 v{UU+4*tt+2*h}, v{C_EU+2*tt+h}")
                pre.append(f"v_lshrrev_b32 v{UU+4*tt+2*h+1}, 16, v{C_EU+2*tt+h}")
                pre.append(f"v_cvt_f32_f16 v{UU+4*tt+2*h+1}, v{UU+4*tt+2*h+1}")
                pre.append(bf16_lo(PRE+4*tt+2*h, C_EX+2*tt+h)); pre.append(bf16_hi(PRE+4*tt+2*h+1, C_EX+2*tt+h))
        for r in range(16): pre.append(f"v_fma_f32 v{PRE+r}, v{UU+r}, v47, v{PRE+r}")
    for sp in range(1,4):
        A("s_waitcnt lgkmcnt(0)")
        nxt = loads(sp+1) if sp<3 else epi
        ni=0; pi=0; k=0
        for (t,d,txt) in mfmas(sp):
            A(txt); k+=1
            if ni<len(nxt): A(nxt[ni]); ni+=1
            elif sp==3 and pre:
                if k==12: A("s_waitcnt lgkmcnt(0)")
                if k>=12:
                    tgt=min(len(pre),(len(pre)*(k-11)+23)//24)
                    while pi<tgt: A(pre[pi]); pi+=1
            wfill()
        if sp==3:
            while pi<len(pre): A(pre[pi]); pi+=1
    assert wi[0]==len(wl)
    l=self.lab()
    A(f"s_cmp_eq_u32 s{S_NH}, 0")
    A(f"s_cbranch_scc1 {l}")
    A("s_nop 7")
    for r in range(16): A(f"v_swap_b32 v{C_ACC+r}, v{C_ACC+16+r}")
    A(f"{l}:")
    A("s_nop 7")
    A(f"s_lshl_b32 s{S_T0}, s{S_W}, 12")
    A(f"v_lshl_add_u32 v55, v{V_LANE}, 4, s{S_T0}")
    for tt in range(4): A(f"ds_write_b128 v55, v[{C_ACC+16+4*tt}:{C_ACC+16+4*tt+3}] offset:{1024*tt}")
    A("v_xor_b32 v55, 4096, v55")
    A("s_waitcnt lgkmcnt(0)")
    A("s_barrier")
    if self.mimic==0:
        Y=C_ACC; PT=128
        for tt in range(4): A(f"ds_read_b128 v[{PT+4*tt}:{PT+4*tt+3}], v55 offset:{1024*tt}")
        A(f"v_mov_b32 v146, s{S_YS}\nv_mov_b32 v147, s{S_YS}")
        for tt in range(4):
            A(f"s_waitcnt lgkmcnt({3-tt})")
            for p in (2*tt,2*tt+1):
                A(f"v_pk_add_f32 v[{Y+2*p}:{Y+2*p+1}], v[{Y+2*p}:{Y+2*p+1}], v[{PT+2*p}:{PT+2*p+1}]")
            for p in (2*tt,2*tt+1):
                A(f"v_pk_fma_f32 v[{Y+2*p}:{Y+2*p+1}], v[{Y+2*p}:{Y+2*p+1}], v[146:147], v[{PRE+2*p}:{PRE+2*p+1}]")
    else:
        for tt in range(4): A(f"ds_read_b128 v[{96+4*tt}:{96+4*tt+3}], v55 offset:{1024*tt}")
        U=112; X=128; Y=C_ACC
        for tt in range(4):
            for h in range(2):
                A(f"v_cvt_f32_f16 v{U+4*tt+2*h}, v{C_EU+2*tt+h}")
                A(f"v_cvt_f32_f16_sdwa v{U+4*tt+2*h+1}, v{C_EU+2*tt+h} dst_sel:DWORD dst_unused:UNUSED_PAD src0_sel:WORD_1")
                A(bf16_lo(X+4*tt+2*h, C_EX+2*tt+h)); A(bf16_hi(X+4*tt+2*h+1, C_EX+2*tt+h))
        A(f"v_mov_b32 v144, s{S_DSKV}\nv_mov_b32 v145, s{S_DSKV}\nv_mov_b32 v146, s{S_YS}\nv_mov_b32 v147, s{S_YS}")
        for p in range(8):
            A(f"v_pk_mul_f32 v[{U+2*p}:{U+2*p+1}], v[{U+2*p}:{U+2*p+1}], v[144:145]")
        if self.mimic>=1:
            for p in range(8): A(f"v_cvt_pk_bf16_f32 v{148+p}, v{U+2*p}, v{U+2*p+1}")
            for p in range(8): A(bf16_lo(U+2*p,148+p)); A(bf16_hi(U+2*p+1,148+p))
        A("s_waitcnt lgkmcnt(0)")
        for p in range(8):
            A(f"v_pk_add_f32 v[{Y+2*p}:{Y+2*p+1}], v[{Y+2*p}:{Y+2*p+1}], v[{96+2*p}:{96+2*p+1}]")
        for p in range(8):
            A(f"v_pk_mul_f32 v[{Y+2*p}:{Y+2*p+1}], v[{Y+2*p}:{Y+2*p+1}], v[146:147]")
        if self.mimic>=1:
            for p in range(8): A(f"v_cvt_pk_bf16_f32 v{148+p}, v{Y+2*p}, v{Y+2*p+1}")
            for p in range(8): A(bf16_lo(Y+2*p,148+p)); A(bf16_hi(Y+2*p+1,148+p))
        for p in range(8):
            A(f"v_pk_add_f32 v[{Y+2*p}:{Y+2*p+1}], v[{Y+2*p}:{Y+2*p+1}], v[{U+2*p}:{U+2*p+1}]")
        if self.mimic>=1:
            for p in range(8): A(f"v_cvt_pk_bf16_f32 v{148+p}, v{Y+2*p}, v{Y+2*p+1}")
            for p in range(8): A(bf16_lo(Y+2*p,148+p)); A(bf16_hi(Y+2*p+1,148+p))
        for p in range(8):
            A(f"v_pk_add_f32 v[{Y+2*p}:{Y+2*p+1}], v[{Y+2*p}:{Y+2*p+1}], v[{X+2*p}:{X+2*p+1}]")
    H=148
    for p in range(8): A(f"v_cvt_pk_bf16_f32 v{H+p}, v{Y+2*p}, v{Y+2*p+1}")
    for pr in range(2):
        b=H+4*pr
        A(f"v_permlane16_swap_b32 v{b}, v{b+2}")
        A(f"v_permlane16_swap_b32 v{b+1}, v{b+3}")
    A(f"v_and_b32 v52, 1, v51")
    A(f"v_lshlrev_b32 v52, 3, v52")
    A(f"v_lshrrev_b32 v53, 1, v50")
    A(f"v_add_u32 v52, v52, v53")
    A(f"s_movk_i32 s{S_T0}, {448*64}")
    A(f"v_mul_lo_u32 v52, v52, s{S_T0}")
    A(f"v_and_b32 v53, 1, v50")
    A(f"v_lshl_add_u32 v52, v53, 5, v52")
    A(f"v_lshrrev_b32 v53, 1, v51")
    A(f"v_lshl_add_u32 v52, v53, 4, v52")
    A(f"s_lshl_b32 s{S_T0}, s{S_NH}, 5")
    A(f"s_mul_i32 s{S_T0}, s{S_T0}, {448*64}")
    A(f"s_add_u32 s{S_T0+1}, s{S_D0}, s{S_CH}")
    A(f"s_lshl_b32 s{S_T0+1}, s{S_T0+1}, 6")
    A(f"s_add_u32 s{S_T0}, s{S_T0}, s{S_T0+1}")
    A(f"s_add_u32 s{S_T0}, s{S_T0}, {WS_HT}")
    A(f"s_add_u32 s{S_T0+1}, s{S_T0}, {16*448*64}")
    A(f"buffer_store_dwordx4 v[{H}:{H+3}], v52, s[{SRD_WS}:{SRD_WS+3}], s{S_T0} offen sc1")
    A(f"buffer_store_dwordx4 v[{H+4}:{H+7}], v52, s[{SRD_WS}:{SRD_WS+3}], s{S_T0+1} offen sc1")

@add_method
def sync_all(self):
    A=self.A
    A("s_waitcnt vmcnt(0)")
    A("s_barrier")
    l=self.lab()
    A(f"s_cmp_lg_u32 s{S_W}, 0")
    A(f"s_cbranch_scc1 {l}")
    A(f"s_and_b32 s{S_T0}, s{S_WG}, 7")
    A(f"s_lshl_b32 s{S_T0}, s{S_T0}, 7")
    A(f"s_add_u32 s{S_T0}, s{S_T0}, {WS_CNT2}")
    A(f"v_lshlrev_b32 v48, 10, v{V_LANE}")
    A("v_mov_b32 v49, 1")
    A("s_mov_b64 exec, 0xff")
    A(f"buffer_atomic_add v49, v48, s[{SRD_WS}:{SRD_WS+3}], s{S_T0} offen")
    A("s_mov_b64 exec, -1")
    A(f"{l}:")

@add_method
def sync_all_wait(self):
    A=self.A
    l=self.lab(); lp=self.lab('Lpoll'); le=self.lab()
    A(f"s_cmp_lg_u32 s{S_W}, 0")
    A(f"s_cbranch_scc1 {l}")
    A(f"s_lshr_b32 s{S_T0}, s{S_WG}, 3")
    A(f"s_and_b32 s{S_T0}, s{S_T0}, 7")
    A(f"s_lshl_b32 s{S_T0}, s{S_T0}, 10")
    A(f"s_add_u32 s{S_T0}, s{S_T0}, {WS_CNT2}")
    A(f"v_and_b32 v48, 7, v{V_LANE}")
    A(f"v_lshlrev_b32 v48, 7, v48")
    A(f"s_mov_b32 s{S_T0+1}, 0")
    A(f"{lp}:")
    A(f"buffer_load_dword v49, v48, s[{SRD_WS}:{SRD_WS+3}], s{S_T0} offen sc1")
    A("s_waitcnt vmcnt(0)")
    A("v_cmp_gt_u32 vcc, 28, v49")
    A(f"s_add_u32 s{S_T0+1}, s{S_T0+1}, 1")
    A(f"s_cbranch_vccz {le}")
    A(f"s_cmp_lt_u32 s{S_T0+1}, 0x8000")
    A(f"s_cbranch_scc1 {lp}")
    A(f"{le}:")
    A(f"{l}:")
    A("s_barrier")

class Stream:
    def __init__(self, A):
        self.A=A; self.lds=[]; self.vm=[]
    def ds(self, text, tag=None):
        self.A(text); self.lds.append(tag)
    def vmem(self, text, tag=None):
        self.A(text); self.vm.append(tag)
    def need_lds(self, tags):
        idx=-1
        for t in tags:
            if t in self.lds: idx=max(idx, len(self.lds)-1-self.lds[::-1].index(t))
        if idx>=0:
            n=len(self.lds)-idx-1
            n=min(n,15)
            self.A(f"s_waitcnt lgkmcnt({n})")
            self.lds=self.lds[len(self.lds)-n:] if n>0 else []
    def need_vm(self, tags):
        idx=-1
        for t in tags:
            if t in self.vm: idx=max(idx, len(self.vm)-1-self.vm[::-1].index(t))
        if idx>=0:
            n=len(self.vm)-idx-1
            n=min(n,63)
            self.A(f"s_waitcnt vmcnt({n})")
            self.vm=self.vm[len(self.vm)-n:] if n>0 else []
    def item(self, it):
        if isinstance(it,str): self.A(it)
        elif it[0]=='ds': self.ds(it[1],it[2])
        elif it[0]=='vm': self.vmem(it[1],it[2])
        elif it[0]=='needl': self.need_lds(it[1])
        elif it[0]=='needv': self.need_vm(it[1])

G_ACC=[64,96]; G_CS=128; G_RING=160; G_SB=176; G_VB=204; G_SA=208; G_SF=[212,215]; G_ST=218; G_ET=226; G_PK=242
LDS_ST=114688
@add_method
def cs_mfma(self, s0, s1):
    A=self.A
    if s0==0:
        for k in range(4): A(f"v_mov_b32 v{48+k}, 0x3f803f80")
    for s in range(s0,s1):
        for t in range(2):
            d=G_CS+16*t
            c="0" if s==0 else f"v[{d}:{d+15}]"
            A(f"v_mfma_f32_32x32x16_bf16 v[{d}:{d+15}], a[{8*s+4*t}:{8*s+4*t+3}], v[48:51], {c}")

def wd_loc(sig, ca):
    if sig<5: return ('v', 4+8*sig+4*ca)
    if sig<9: return ('a', 224+8*(sig-5)+4*ca)
    return ('a', 8*(sig-9)+4*ca)

@add_method
def wd_item(self, sig, ca):
    k,r=wd_loc(sig,ca)
    return [f"s_add_u32 s{S_T0+14}, s{S_T0+12+ca}, {sig*1024}",
            ('vm',f"buffer_load_dwordx4 {k}[{r}:{r+3}], v48, s[{SRD_WS}:{SRD_WS+3}], s{S_T0+14} offen sc1",f"WD{sig}")]

PF=3
@add_method
def gemm1(self):
    A=self.A; S=Stream(A); self.S=S
    A(f"s_mul_i32 s{S_T0}, s{S_I}, {4*28672}")
    A(f"s_mul_i32 s{S_T0+1}, s{S_W}, 7168")
    A(f"s_add_u32 s{S_T0}, s{S_T0}, s{S_T0+1}")
    A(f"s_add_u32 s{S_T0}, s{S_T0}, {WS_HT}")
    A(f"v_lshlrev_b32 v48, 4, v{V_LANE}")
    def xdma(lt,k):
        off=lt*28672+k*1024
        return [f"s_add_u32 s{S_T0+2}, s{S_T0}, {off}", f"s_add_u32 m0, s{S_T0+1}, {off}",
                ('vm',f"buffer_load_dwordx4 v48, s[{SRD_WS}:{SRD_WS+3}], s{S_T0+2} offen sc1 lds", f"X{lt}")]
    for lt in range(2):
        for k in range(7):
            for it in xdma(lt,k): S.item(it)
    self.wd_setup()
    A(f"v_lshrrev_b32 v50, 5, v{V_LANE}")
    A(f"v_lshlrev_b32 v50, 9, v50")
    A(f"v_bfe_u32 v51, v{V_LANE}, 2, 2")
    A(f"v_lshl_add_u32 v50, v51, 6, v50")
    A(f"v_bfe_u32 v51, v{V_LANE}, 4, 1")
    A(f"v_lshl_add_u32 v50, v51, 5, v50")
    A(f"v_and_b32 v51, 3, v{V_LANE}")
    A(f"v_lshl_add_u32 v50, v51, 3, v50")
    for g in range(4):
        A(f"s_add_u32 s{S_T0+3}, s{S_W}, {g}")
        A(f"s_and_b32 s{S_T0+3}, s{S_T0+3}, 3")
        A(f"s_sub_u32 s{S_T0+3}, s{S_T0+3}, {g}")
        A(f"s_mul_i32 s{S_T0+3}, s{S_T0+3}, 7168")
        A(f"v_add_u32 v{G_VB+g}, s{S_T0+3}, v50")
    A(f"v_and_b32 v53, 31, v{V_LANE}")
    A(f"v_lshlrev_b32 v53, 5, v53")
    A(f"v_add_u32 v53, {LDS_ST}, v53")
    A(f"s_lshl_b32 s{S_T0+3}, s{S_W}, 3")
    A(f"v_add_u32 v52, s{S_T0+3}, v53")
    A(f"v_mov_b32 v54, 0x3f803f80")
    A(f"s_lshl_b32 s{S_T0+4}, s{S_I}, 2")
    A(f"s_mul_i32 s{S_T0+4}, s{S_T0+4}, 112")
    A(f"s_lshl_b32 s{S_T0+5}, s{S_J}, 3")
    A(f"s_add_u32 s{S_T0+4}, s{S_T0+4}, s{S_T0+5}")
    A(f"s_lshl_b32 s{S_T0+5}, s{S_W}, 1")
    A(f"s_add_u32 s{S_T0+4}, s{S_T0+4}, s{S_T0+5}")
    A(f"s_lshl_b32 s{S_T0+4}, s{S_T0+4}, 10")
    A(f"s_add_u32 s{S_T0+4}, s{S_T0+4}, {WS_M}")
    SM=S_T0+4
    def breg(s): return G_SB+4*s if s<7 else G_RING+4*((s-7)%4)
    def bload(p,s):
        r=breg(s); vb=G_VB+s//7
        return [('ds',f"ds_read_b64_tr_b16 v[{r}:{r+1}], v{vb} offset:{s*1024}",f"B{p}_{s}a"),
                ('ds',f"ds_read_b64_tr_b16 v[{r+2}:{r+3}], v{vb} offset:{s*1024+256}",f"B{p}_{s}b")]
    def stats_burst(p):
        sa=G_SA; T=G_ST; it=[]
        for i in range(28):
            r=G_SB+i
            c1="0" if i<2 else f"v{sa+(i&1)}"; c2="0" if i<2 else f"v{sa+2+(i&1)}"
            it.append(f"v_dot2_f32_bf16 v{sa+(i&1)}, v{r}, v54, {c1}")
            it.append(f"v_dot2_f32_bf16 v{sa+2+(i&1)}, v{r}, v{r}, {c2}")
        return it
    def stats_comb(p):
        sa=G_SA; T=G_ST; it=[]
        it.append(f"v_add_f32 v{T}, v{sa}, v{sa+1}")
        it.append(f"v_add_f32 v{T+1}, v{sa+2}, v{sa+3}")
        it.append(f"v_mov_b32 v{T+2}, v{T}")
        it.append(f"v_mov_b32 v{T+3}, v{T+1}")
        it.append("s_nop 1")
        it.append(f"v_permlane32_swap_b32 v{T}, v{T+2}")
        it.append(f"v_permlane32_swap_b32 v{T+1}, v{T+3}")
        it.append(f"v_add_f32 v{T}, v{T}, v{T+2}")
        it.append(f"v_add_f32 v{T+1}, v{T+1}, v{T+3}")
        it.append(('ds',f"ds_write_b64 v52, v[{T}:{T+1}] offset:{(p&1)*1024}",f"SW{p}"))
        return it
    def stats_final(p):
        T=G_ST; sf=G_SF[p&1]
        it=[('ds',f"ds_read_b128 v[{T}:{T+3}], v53 offset:{(p&1)*1024}",f"SR{p}a"),
            ('ds',f"ds_read_b128 v[{T+4}:{T+7}], v53 offset:{(p&1)*1024+16}",f"SR{p}b"),
            "s_nop 0","s_nop 0",
            ('needl',[f"SR{p}a",f"SR{p}b"]),
            f"v_add_f32 v{T}, v{T}, v{T+2}", f"v_add_f32 v{T+1}, v{T+1}, v{T+3}",
            f"v_add_f32 v{T+4}, v{T+4}, v{T+6}", f"v_add_f32 v{T+5}, v{T+5}, v{T+7}",
            f"v_add_f32 v{T}, v{T}, v{T+4}", f"v_add_f32 v{T+1}, v{T+1}, v{T+5}",
            f"v_mul_f32 v{T}, {fl(1.0/448)}, v{T}",
            f"v_mul_f32 v{T+1}, {fl(1.0/448)}, v{T+1}",
            f"v_fma_f32 v{T+1}, -v{T}, v{T}, v{T+1}",
            f"v_max_f32 v{T+1}, 0, v{T+1}",
            f"v_cvt_pk_bf16_f32 v{T+2}, v{T+1}, v{T}",
            f"v_and_b32 v{sf}, 0xffff0000, v{T+2}",
            f"v_lshlrev_b32 v{T+1}, 16, v{T+2}",
            f"v_add_f32 v{T+1}, {fl(1e-5)}, v{T+1}",
            f"v_cvt_pk_bf16_f32 v{T+1}, v{T+1}, v{T+1}",
            f"v_lshlrev_b32 v{T+1}, 16, v{T+1}",
            f"v_sqrt_f32 v{T+1}, v{T+1}", "s_nop 0",
            f"v_cvt_pk_bf16_f32 v{T+1}, v{T+1}, v{T+1}",
            f"v_lshlrev_b32 v{T+1}, 16, v{T+1}",
            f"v_rcp_f32 v{T+1}, v{T+1}", "s_nop 0",
            f"v_mul_f32 v{sf+1}, {fl(-LOG2E)}, v{T+1}",
            f"v_mul_f32 v{sf+2}, v{T+1}, v{T+1}"]
        it=[x for x in it if x!="s_nop 0" or True]
        return it
    def epi_items(p):
        acc=G_ACC[p&1]; sf=G_SF[p&1]; it=[]; E=G_ET
        for r0 in range(0,16,4):
            rs=range(r0,r0+4)
            for r in rs: it.append(f"v_fma_f32 v{acc+r}, -v{sf}, v{G_CS+r}, v{acc+r}")
            for r in rs: it.append(f"v_fma_f32 v{acc+16+r}, -v{sf}, v{G_CS+16+r}, v{acc+16+r}")
            for r in rs: it.append(f"v_mul_f32 v{E+(r&3)}, v{sf+1}, v{acc+r}")
            for r in rs: it.append(f"v_exp_f32 v{E+(r&3)}, v{E+(r&3)}")
            for r in rs: it.append(f"v_mul_f32 v{acc+r}, v{acc+r}, v{acc+16+r}")
            for r in rs: it.append(f"v_add_f32 v{E+(r&3)}, 1.0, v{E+(r&3)}")
            for r in rs: it.append(f"v_rcp_f32 v{E+(r&3)}, v{E+(r&3)}")
            for r in rs: it.append(f"v_mul_f32 v{acc+r}, v{acc+r}, v{sf+2}")
            for r in rs: it.append(f"v_mul_f32 v{acc+r}, v{acc+r}, v{E+(r&3)}")
            q=r0//4
            it.append(f"v_cvt_pk_bf16_f32 v{G_PK+2*q}, v{acc+r0}, v{acc+r0+1}")
            it.append(f"v_cvt_pk_bf16_f32 v{G_PK+2*q+1}, v{acc+r0+2}, v{acc+r0+3}")
            if q==1 or q==3:
                h=q//2
                it.append(f"s_add_u32 s{SM+1}, s{SM}, {p*112*1024+h*1024}")
                it.append(('vm',f"buffer_store_dwordx4 v[{G_PK+4*h}:{G_PK+4*h+3}], v48, s[{SRD_WS}:{SRD_WS+3}], s{SM+1} offen sc1",f"M{p}_{h}"))
        return it
    vmx={0:[],1:[],2:[],3:[]}
    k=0
    for lt in (2,3):
        for q in range(7):
            vmx[0].append((1+2*k if 1+2*k<28 else 27, xdma(lt,q))); k+=1
    n=0
    for sig in range(5):
        for ca in range(2): vmx[1].append((2+2*n, self.wd_item(sig,ca))); n+=1
    n=0
    for sig in range(5,9):
        for ca in range(2): vmx[2].append((2+3*n, self.wd_item(sig,ca))); n+=1
    for n in range(28): vmx[3].append((n, self.wd_item(9+n//2, n%2)))
    S.need_vm(["X0"])
    A("s_barrier")
    self.stamp('x0')
    for s in range(PF):
        for it in bload(0,s): S.item(it)
    BURST=9; BAR=16
    for p in range(4):
        acc=G_ACC[p&1]
        ep=epi_items(p-1) if p>0 else []
        comb=stats_comb(p); fin=stats_final(p)
        epi=0; ci=0; fi=0
        NG=54
        for s in range(28):
            S.need_lds([f"B{p}_{s}a",f"B{p}_{s}b"])
            r=breg(s)
            for t in range(2):
                d=acc+16*t
                c="0" if s==0 else f"v[{d}:{d+15}]"
                A(f"v_mfma_f32_32x32x16_bf16 v[{d}:{d+15}], a[{8*s+4*t}:{8*s+4*t+3}], v[{r}:{r+3}], {c}")
                if t==0:
                    ns=s+PF
                    if ns<28:
                        for it in bload(p,ns): S.item(it)
                    elif p<3:
                        for it in bload(p+1,ns-28): S.item(it)
                gap=2*s+t
                if t==1:
                    for (sl,items) in vmx[p]:
                        if sl==s:
                            for it in items: S.item(it)
                if s>=1 and ep:
                    tgt=min(len(ep),(len(ep)*(gap-1)+NG-1)//NG)
                    while epi<tgt: S.item(ep[epi]); epi+=1
                if s>BURST and s<BAR:
                    tgt=min(len(comb),(len(comb)*(gap-2*BURST-1)+9)//10)
                    while ci<tgt: S.item(comb[ci]); ci+=1
                if s>BAR:
                    tgt=min(len(fin),(len(fin)*(gap-2*BAR-1)+17)//18)
                    while fi<tgt: S.item(fin[fi]); fi+=1
            if s==BURST:
                for it in stats_burst(p): S.item(it)
            for g in range(4):
                if s==7*g+6-PF+0 and p<3 and False: pass
            if p<3 and s in (6-PF,13-PF,20-PF,27-PF):
                g={6-PF:0,13-PF:1,20-PF:2,27-PF:3}[s]
                A(f"v_add_u32 v{G_VB+g}, 28672, v{G_VB+g}")
            if s==BAR:
                while ci<len(comb): S.item(comb[ci]); ci+=1
                S.need_lds([f"SW{p}"])
                if p<3: S.need_vm([f"X{p+1}"])
                if p==3: S.need_vm(["M1_1"])
                A("s_barrier")
                if p==3:
                    l=self.lab()
                    A(f"s_cmp_lg_u32 s{S_W}, 0")
                    A(f"s_cbranch_scc1 {l}")
                    A(f"s_lshl_b32 s{S_T0+2}, s{S_I}, 7")
                    A(f"s_add_u32 s{S_T0+2}, s{S_T0+2}, {WS_CNT3}")
                    A("v_mov_b32 v55, 1")
                    A("s_mov_b64 exec, 1")
                    A(f"buffer_atomic_add v55, v{V_ZERO}, s[{SRD_WS}:{SRD_WS+3}], s{S_T0+2} offen")
                    A("s_mov_b64 exec, -1")
                    A(f"{l}:")
        while epi<len(ep): S.item(ep[epi]); epi+=1
        while fi<len(fin): S.item(fin[fi]); fi+=1
        if self.ts and (self.tsonly is None or f'pass{p}' in self.tsonly):
            self.stamp(f'pass{p}'); S.lds=[]
    A(f"s_lshl_b32 s{S_T0+2}, s{S_I}, 7")
    A(f"s_add_u32 s{S_T0+2}, s{S_T0+2}, {WS_CNT3}")
    S.vmem(f"buffer_load_dword v55, v{V_ZERO}, s[{SRD_WS}:{SRD_WS+3}], s{S_T0+2} offen sc1","pollE")
    A("s_nop 7")
    for it in epi_items(3): S.item(it)

H_ACC=64
H_RING=128
LDS_RED=0
LDS_RES=49152
@add_method
def gemm2(self):
    A=self.A; S=self.S
    A(f"s_cmp_ge_u32 s{S_J}, 7")
    A(f"s_cselect_b32 s{S_T0}, 1, 0")
    A(f"s_cselect_b32 s{S_T0+6}, 7, 0")
    A(f"s_sub_u32 s{S_T0+6}, s{S_J}, s{S_T0+6}")
    A(f"s_lshl_b32 s{S_T0+1}, s{S_I}, 2")
    A(f"s_sub_u32 s{S_T0+3}, 3, s{S_T0}")
    A(f"s_add_u32 s{S_T0+3}, s{S_T0+3}, s{S_T0+1}")
    A(f"s_add_u32 s{S_T0+1}, s{S_T0+1}, s{S_T0}")
    A(f"s_mul_i32 s{S_T0+7}, s{S_W}, 28")
    for la,src in ((0,S_T0+1),(1,S_T0+3)):
        A(f"s_mul_i32 s{S_T0+4+la}, s{src}, 112")
        A(f"s_add_u32 s{S_T0+4+la}, s{S_T0+4+la}, s{S_T0+7}")
        A(f"s_lshl_b32 s{S_T0+4+la}, s{S_T0+4+la}, 10")
        A(f"s_add_u32 s{S_T0+4+la}, s{S_T0+4+la}, {WS_M}")
    A(f"s_cmp_ge_u32 s{S_W}, 2")
    A(f"s_cselect_b32 s{S_T0+9}, s{S_T0+3}, s{S_T0+1}")
    lp=self.lab('Lpoll'); le=self.lab()
    A(f"s_mov_b32 s{S_T0+8}, 0")
    A(f"s_waitcnt vmcnt(2)")
    A(f"{lp}:")
    A("v_cmp_gt_u32 vcc, 14, v55")
    A(f"s_cbranch_vccz {le}")
    A(f"buffer_load_dword v55, v{V_ZERO}, s[{SRD_WS}:{SRD_WS+3}], s{S_T0+2} offen sc1")
    A("s_waitcnt vmcnt(0)")
    A(f"s_add_u32 s{S_T0+8}, s{S_T0+8}, 1")
    A(f"s_cmp_lt_u32 s{S_T0+8}, 0x8000")
    A(f"s_cbranch_scc1 {lp}")
    A(f"{le}:")
    S2=Stream(A); S2.vm=["Mfin","Mfin"]
    def mload(la,s):
        r=H_RING+4*s
        A(f"s_add_u32 s{S_T0+7}, s{S_T0+4+la}, {s*1024}")
        S2.vmem(f"buffer_load_dwordx4 v[{r}:{r+3}], v48, s[{SRD_WS}:{SRD_WS+3}], s{S_T0+7} offen sc1", f"m{la}_{s}")
    NPRE=6
    for s_ in range(NPRE): mload(0,s_)
    S2.need_vm(["Mfin"])
    A("s_barrier")
    l=self.lab()
    A(f"s_cmp_lg_u32 s{S_W}, 0")
    A(f"s_cbranch_scc1 {l}")
    A(f"s_lshl_b32 s{S_T0+10}, s{S_I}, 7")
    A(f"s_add_u32 s{S_T0+10}, s{S_T0+10}, {WS_CNT3+2048}")
    A("v_mov_b32 v55, 1")
    A("s_mov_b64 exec, 1")
    A(f"buffer_atomic_add v55, v{V_ZERO}, s[{SRD_WS}:{SRD_WS+3}], s{S_T0+10} offen")
    l2=self.lab()
    A(f"s_cmp_lg_u32 s{S_WG}, 0")
    A(f"s_cbranch_scc1 {l2}")
    A(f"v_mov_b32 v55, s{S_TAG}")
    A(f"buffer_store_dword v55, v{V_ZERO}, s[{SRD_WS}:{SRD_WS+3}], 0 offen sc1")
    A(f"{l2}:")
    A("s_mov_b64 exec, -1")
    A(f"{l}:")
    self.stamp('sync3 arrive')
    A(f"s_lshl_b32 s{S_T0+10}, s{S_I}, 7")
    A(f"s_add_u32 s{S_T0+10}, s{S_T0+10}, {WS_CNT3+2048}")
    rest=[]
    for sig in range(23,28):
        for ca in range(2): rest.append(self.wd_item(sig,ca))
    A(f"s_mul_i32 s{S_T0+8}, s{S_T0+9}, 448")
    A(f"s_lshl_b32 s{S_T0+11}, s{S_T0+6}, 6")
    A(f"s_add_u32 s{S_T0+8}, s{S_T0+8}, s{S_T0+11}")
    A(f"s_lshl_b32 s{S_T0+11}, s{S_NH}, 5")
    A(f"s_add_u32 s{S_T0+8}, s{S_T0+8}, s{S_T0+11}")
    A(f"s_lshl_b32 s{S_T0+8}, s{S_T0+8}, 6")
    A(f"s_add_u32 s{S_T0+8}, s{S_T0+8}, {WS_HT}")
    A(f"s_lshl_b32 s{S_T0+11}, s{S_W}, 11")
    A(f"s_add_u32 s{S_T0+11}, s{S_T0+11}, {LDS_RES}")
    return_items=None
    def mf(la,s):
        for ca in range(2):
            d=H_ACC+16*(2*la+ca)
            c="0" if s==0 else f"v[{d}:{d+15}]"
            k,r=wd_loc(s,ca); rr=H_RING+4*s
            A(f"v_mfma_f32_32x32x16_bf16 v[{d}:{d+15}], {k}[{r}:{r+3}], v[{rr}:{rr+3}], {c}")
    nxt=NPRE; ri=0
    queue=[('m',s_) for s_ in range(NPRE,28)]
    qq=[]
    for idx,q in enumerate(queue):
        qq.append(q)
        if idx%2==1 and ri<len(rest): qq.append(('w',ri)); ri+=1
    while ri<len(rest): qq.append(('w',ri)); ri+=1
    qq.append(('r',0)); qq.append(('r',1)); qq.append(('p',0))
    def issue(q):
        if q[0]=='m': mload(0,q[1])
        elif q[0]=='w':
            for it in rest[q[1]]: S2.item(it)
        elif q[0]=='r':
            A(f"s_add_u32 m0, s{S_T0+11}, {q[1]*1024}")
            A(f"s_add_u32 s{S_T0+7}, s{S_T0+8}, {q[1]*1024}")
            S2.vmem(f"buffer_load_dwordx4 v48, s[{SRD_WS}:{SRD_WS+3}], s{S_T0+7} offen sc1 lds","res")
        elif q[0]=='p':
            S2.vmem(f"buffer_load_dword v55, v{V_ZERO}, s[{SRD_WS}:{SRD_WS+3}], s{S_T0+10} offen sc1","pollL")
    qi=0
    LEAD=8
    for _ in range(LEAD): issue(qq[qi]); qi+=1
    for s_ in range(28):
        need=[f"m0_{s_}"]
        if s_>=23: need.append(f"WD{s_}")
        S2.need_vm(need)
        mf(0,s_)
        for _ in range(2 if s_<NPRE else 1):
            if qi<len(qq): issue(qq[qi]); qi+=1
    while qi<len(qq): issue(qq[qi]); qi+=1
    self.stamp('early done')
    lp=self.lab('Lpoll'); le=self.lab()
    A(f"s_mov_b32 s{S_T0+7}, 0")
    A("s_waitcnt vmcnt(0)")
    A(f"{lp}:")
    A("v_cmp_gt_u32 vcc, 14, v55")
    A(f"s_cbranch_vccz {le}")
    A(f"buffer_load_dword v55, v{V_ZERO}, s[{SRD_WS}:{SRD_WS+3}], s{S_T0+10} offen sc1")
    A("s_waitcnt vmcnt(0)")
    A(f"s_add_u32 s{S_T0+7}, s{S_T0+7}, 1")
    A(f"s_cmp_lt_u32 s{S_T0+7}, 0x8000")
    A(f"s_cbranch_scc1 {lp}")
    A(f"{le}:")
    self.stamp('late ready')
    S2.vm=[]
    for s_ in range(28): mload(1,s_)
    for s_ in range(28):
        S2.need_vm([f"m1_{s_}"])
        mf(1,s_)
    self.stamp('late done')
    A("s_nop 11")
    lhi=self.lab('Lhi'); lj=self.lab('Lj')
    def writes(blocks):
        for x,blk in ((1,blocks[0]),(2,blocks[1]),(3,blocks[2])):
            A(f"s_xor_b32 s{S_T0+7}, s{S_W}, {x}")
            A(f"s_mul_i32 s{S_T0+7}, s{S_T0+7}, 12288")
            A(f"s_add_u32 s{S_T0+7}, s{S_T0+7}, {LDS_RED+(x-1)*4096}")
            A(f"v_add_u32 v49, s{S_T0+7}, v48")
            for q in range(4):
                d=H_ACC+16*blk+4*q
                A(f"ds_write_b128 v49, v[{d}:{d+3}] offset:{q*1024}")
    A(f"s_cmp_ge_u32 s{S_W}, 2")
    A(f"s_cbranch_scc1 {lhi}")
    writes([1,2,3])
    A(f"s_branch {lj}")
    A(f"{lhi}:")
    writes([3,0,1])
    A("s_waitcnt lgkmcnt(0)")
    for r in range(16): A(f"v_mov_b32 v{H_ACC+r}, v{H_ACC+32+r}")
    A(f"{lj}:")
    A(f"v_lshrrev_b32 v50, 5, v{V_LANE}")
    A(f"v_lshlrev_b32 v50, 8, v50")
    A(f"v_bfe_u32 v51, v{V_LANE}, 2, 2")
    A(f"v_lshl_add_u32 v50, v51, 6, v50")
    A(f"v_bfe_u32 v51, v{V_LANE}, 4, 1")
    A(f"v_lshl_add_u32 v50, v51, 5, v50")
    A(f"v_and_b32 v51, 3, v{V_LANE}")
    A(f"v_lshl_add_u32 v50, v51, 3, v50")
    A(f"v_add_u32 v50, s{S_T0+11}, v50")
    P=128
    for q in range(4): A(f"ds_read_b64_tr_b16 v[{176+2*q}:{176+2*q+1}], v50 offset:{q*512}")
    A(f"s_mov_b32 s{SRD_W}, s{S_OUT}\ns_mov_b32 s{SRD_W+1}, s{S_OUT+1}\ns_mov_b32 s{SRD_W+2}, {L_*D_*2}\ns_mov_b32 s{SRD_W+3}, 0x20000")
    A(f"v_and_b32 v52, 31, v{V_LANE}")
    A(f"v_mul_u32_u24 v52, 896, v52")
    A(f"v_lshrrev_b32 v51, 5, v{V_LANE}")
    A(f"v_lshl_add_u32 v52, v51, 4, v52")
    A(f"s_mul_i32 s{S_T0+8}, s{S_T0+9}, {32*896}")
    A(f"s_lshl_b32 s{S_T0+10}, s{S_T0+6}, 7")
    A(f"s_add_u32 s{S_T0+8}, s{S_T0+8}, s{S_T0+10}")
    A(f"s_lshl_b32 s{S_T0+10}, s{S_NH}, 6")
    A(f"s_add_u32 s{S_T0+8}, s{S_T0+8}, s{S_T0+10}")
    A(f"s_mul_i32 s{S_T0+7}, s{S_W}, 12288")
    A(f"v_add_u32 v49, s{S_T0+7}, v48")
    A("s_waitcnt lgkmcnt(0)")
    for q in range(4):
        for h in range(2):
            A(bf16_lo(192+4*q+2*h,176+2*q+h)); A(bf16_hi(192+4*q+2*h+1,176+2*q+h))
    if self.mimic==0:
        for r in range(0,16,2): A(f"v_pk_add_f32 v[{H_ACC+r}:{H_ACC+r+1}], v[{H_ACC+r}:{H_ACC+r+1}], v[{192+r}:{192+r+1}]")
    A("s_barrier")
    self.stamp('red barrier')
    for k in range(3):
        for q in range(4):
            A(f"ds_read_b128 v[{P+16*k+4*q}:{P+16*k+4*q+3}], v49 offset:{LDS_RED+k*4096+q*1024}")
    for k in range(3):
        A(f"s_waitcnt lgkmcnt({8-4*k})")
        for r in range(0,16,2): A(f"v_pk_add_f32 v[{H_ACC+r}:{H_ACC+r+1}], v[{H_ACC+r}:{H_ACC+r+1}], v[{P+16*k+r}:{P+16*k+r+1}]")
    if self.mimic>=1:
        for r in range(0,16,2): A(f"v_cvt_pk_bf16_f32 v{208+r//2}, v{H_ACC+r}, v{H_ACC+r+1}")
        for r in range(0,16,2): A(bf16_lo(H_ACC+r,208+r//2)); A(bf16_hi(H_ACC+r+1,208+r//2))
        for r in range(0,16,2): A(f"v_pk_add_f32 v[{H_ACC+r}:{H_ACC+r+1}], v[{H_ACC+r}:{H_ACC+r+1}], v[{192+r}:{192+r+1}]")
    O=208
    if self.perturb:
        for r in range(16): A(f"v_add_f32 v{H_ACC+r}, {fl(self.perturb)}, v{H_ACC+r}")
    for r in range(0,16,2): A(f"v_cvt_pk_bf16_f32 v{O+r//2}, v{H_ACC+r}, v{H_ACC+r+1}")
    for q in (0,2):
        A(f"v_permlane32_swap_b32 v{O+2*q}, v{O+2*q+2}")
        A(f"v_permlane32_swap_b32 v{O+2*q+1}, v{O+2*q+3}")
    A(f"buffer_store_dwordx4 v[{O}:{O+3}], v52, s[{SRD_W}:{SRD_W+3}], s{S_T0+8} offen")
    A(f"buffer_store_dwordx4 v[{O+4}:{O+7}], v52, s[{SRD_W}:{SRD_W+3}], s{S_T0+8} offen offset:32")

@add_method
def dump_lds(self, lds_off, nbytes, ws_off_per_wg):
    A=self.A
    A("s_waitcnt vmcnt(0) lgkmcnt(0)")
    A("s_barrier")
    A(f"v_lshlrev_b32 v48, 4, v{V_T}")
    A(f"s_mul_i32 s{S_T0}, s{S_WG}, {ws_off_per_wg}")
    A(f"s_add_u32 s{S_T0}, s{S_T0}, {WS_DBG}")
    for k in range(nbytes//4096):
        A(f"v_add_u32 v49, {lds_off+k*4096}, v48")
        A("ds_read_b128 v[52:55], v49")
        A("s_waitcnt lgkmcnt(0)")
        A(f"s_add_u32 s{S_T0+1}, s{S_T0}, {k*4096}")
        A(f"buffer_store_dwordx4 v[52:55], v48, s[{SRD_WS}:{SRD_WS+3}], s{S_T0+1} offen")
        A("s_waitcnt vmcnt(0)")

@add_method
def dump_regs(self, first, n, kind='v'):
    A=self.A
    A("s_waitcnt vmcnt(0) lgkmcnt(0)")
    A("s_nop 15")
    A(f"v_lshlrev_b32 v3, 2, v{V_T}")
    A(f"s_mul_i32 s{S_T0}, s{S_WG}, {n*1024}")
    A(f"s_add_u32 s{S_T0}, s{S_T0}, {WS_DBG}")
    for k in range(n):
        A(f"s_add_u32 s{S_T0+1}, s{S_T0}, {k*1024}")
        A(f"buffer_store_dword {kind}{first+k}, v3, s[{SRD_WS}:{SRD_WS+3}], s{S_T0+1} offen")
    A("s_waitcnt vmcnt(0)")

@add_method
def build(self):
    A=self.A
    stop=self.stop_after
    def done(name):
        return stop==name
    self.prologue()
    self.phase0_loads()
    self.stamp('index done')
    self.xjob_post()
    self.stamp('xjob post')
    self.kgen_setup()
    self.wjob_issue()
    self.stamp('kgen setup')
    self.kgen_gen()
    self.stamp('kgen')
    if done('kx'):
        self.kexpand()
        A("s_waitcnt lgkmcnt(0)")
        A("s_barrier")
        self.dump_lds(LDS_KX, 36864, 36864); return self.finish()
    self.flag_wait(0xffff)
    self.job_flag('w')
    self.stamp('x flags')
    self.xt_loads()
    self.kexpand()
    self.stamp('kexpand')
    self.stats_consume()
    self.stamp('u ready')
    if done('u'):
        self.dump_lds(LDS_U-LDS_U%16, 20480, 20480); return self.finish()
    self.conv()
    self.stamp('conv done')
    self.sync_all()
    self.stamp('sync2 arrive')
    self.w1_rest()
    self.cs_mfma(0,W1_IN_CONV)
    A("s_waitcnt vmcnt(0)")
    self.cs_mfma(W1_IN_CONV,28)
    self.stamp('cs done')
    self.sync_all_wait()
    self.stamp('sync2 passed')
    if done('w1'):
        self.dump_regs(0,224,'a'); return self.finish()
    if done('conv'): return self.finish()
    self.gemm1()
    self.stamp('gemm1 done')
    self.gemm2()
    return self.finish()

@add_method
def finish(self):
    A=self.A
    if getattr(self,'delay',0):
        A(f"s_mov_b32 s60, {self.delay}")
        A("L_delay:")
        for _ in range(16): A("v_add_f32 v3, v3, v3")
        A("s_sub_u32 s60, s60, 1")
        A("s_cmp_lg_u32 s60, 0")
        A("s_cbranch_scc1 L_delay")
    if self.ts:
        A("s_waitcnt vmcnt(0)")
        self.stamp('end')
        l=self.lab()
        A(f"s_cmp_lg_u32 s{S_W}, 0")
        A(f"s_cbranch_scc1 {l}")
        A("v_mov_b32 v4, 0")
        for k in range(self.nts): A(f"v_writelane_b32 v4, s{86+k}, {k}")
        A(f"v_lshlrev_b32 v5, 2, v{V_LANE}")
        A(f"s_lshl_b32 s{S_T0}, s{S_WG}, 8")
        A(f"s_add_u32 s{S_T0}, s{S_T0}, {WS_TS}")
        A(f"buffer_store_dword v4, v5, s[{SRD_WS}:{SRD_WS+3}], s{S_T0} offen")
        l2=self.lab()
        A(f"s_cmp_lg_u32 s{S_WG}, 0")
        A(f"s_cbranch_scc1 {l2}")
        A(f"global_store_dword v5, v4, s[{S_DBG}:{S_DBG+1}]")
        A(f"{l2}:")
        A(f"{l}:")
    A("L_end:")
    A("s_endpgm")
    A("L_codeend:")
    body, nfix, probs = hazard_fix(A.L)
    for p in probs: print("HAZARD(backedge):", p, file=sys.stderr)
    errs = wait_lint(body)
    for e in errs[:40]: print("WAITLINT:", e, file=sys.stderr)
    hdr = [
     "; Fused preLN + S4D long-conv + preLN + SwiGLU FFN, one persistent launch of 224 workgroups",
     f"; @launch grid=({NWG},1,1) block=(256,1,1) lds={LDS_TOTAL}",
     '.amdgcn_target "amdgcn-amd-amdhsa--gfx950"',
     ".text", f".globl {KNAME}", ".p2align 8", f".type {KNAME},@function", f"{KNAME}:"]
    ftr = ['.section .rodata,"a"', ".p2align 6", f".amdhsa_kernel {KNAME}",
     "  .amdhsa_next_free_vgpr 512", "  .amdhsa_next_free_sgpr 102", "  .amdhsa_accum_offset 256",
     "  .amdhsa_group_segment_fixed_size 0", "  .amdhsa_kernarg_size 112", "  .amdhsa_user_sgpr_count 2",
     "  .amdhsa_user_sgpr_kernarg_segment_ptr 1", "  .amdhsa_system_sgpr_workgroup_id_x 1",
     ".end_amdhsa_kernel"]
    self.nfix=nfix
    return "\n".join(hdr+body+ftr)+"\n"

if __name__=="__main__":
    import argparse
    ap=argparse.ArgumentParser(); ap.add_argument("-o",default="out.s"); ap.add_argument("--stop",default=None); ap.add_argument("--mimic",type=int,default=2); ap.add_argument("--ts",action="store_true"); ap.add_argument("--perturb",type=float,default=0.0); ap.add_argument("--tsset",default="main"); ap.add_argument("--delay",type=int,default=0); ap.add_argument("--cyc",action="store_true")
    a=ap.parse_args()
    g=Gen(stop_after=a.stop, mimic=a.mimic, ts=a.ts, perturb=a.perturb)
    if a.tsset=='main': g.tsonly=set(['xjob post','kgen setup','kgen','x flags','kexpand','u ready','conv done','sync2 arrive','cs done','sync2 passed','gemm1 done','sync3 arrive','early done','late ready','end'])
    if a.cyc: g.tsop='s_memtime'
    if a.tsset=='g': g.tsonly=set(['sync2 passed','x0','pass0','pass1','pass2','pass3','gemm1 done','sync3 arrive','early done','late ready','late done','red barrier','end'])
    if a.tsset=='start': g.tsonly=set(['kernarg','all issued','index done','xjob post','kgen setup','gen done','kgen','x flags','kexpand','xt landed','u ready','end'])
    g.delay=a.delay
    txt=g.build()
    open(a.o,"w").write(txt)
    print("wrote",a.o,len(txt.splitlines()),"lines; nops inserted:",g.nfix, "stamps:", g.tsnames, file=sys.stderr)
```

```python
import sys, math
sys.path.insert(0, "gen")
from asmlib import *

KNAME = "sequential_preLN__ssm_conv_s4d__swiglu_ffn__prompt_kernel"
L_, D_, N_, F_ = 2048, 448, 256, 1792
NWG = 224
NGRID = 256

WS_EPOCH = 0
WS_CNT2  = 4096
WS_CNT3  = 12288
WS_STATS = 32768
WS_HT    = 1 << 20
WS_M     = 4 << 20
WS_ST2   = 49152
WS_JF    = 65536
WS_XF    = 196608
WS_CSF   = 131072
WS_CS    = 294912
WS_XT    = 12 << 20
WS_WF1   = 18 << 20
WS_WFD   = 22 << 20
WS_DBG   = 32 << 20
WS_TS    = 16 << 20
WS_SIZE  = 268435456

KG_PITCH = 528
KG_WAVE  = 53 * KG_PITCH
LDS_KX   = 112000
KX_COPY  = 4160
KX_CH    = 4 * KX_COPY
LDS_U    = LDS_KX + 2 * KX_CH
U_CH     = 4608
LDS_XT   = LDS_U + 2 * U_CH
XT_CH    = 4096
LDS_TOTAL = 163840
assert LDS_XT + 2 * XT_CH <= LDS_TOTAL
LDS_JOB = LDS_KX
LDS_CSP = LDS_KX + 32768
assert LDS_CSP + 512 <= LDS_U

S_WG=2
S_X=8; S_LOGA=10; S_AIM=12; S_CR=14; S_CI=16; S_LOGDT=18; S_DSK=20; S_BX=22
S_WGT=24; S_WUP=26; S_WD=28; S_OUT=30; S_DBG=32; S_WS=34
SRD_X=36; SRD_WS=40; SRD_W=44; SRD_W2=48
S_W=52
S_CH=53
S_NH=54
S_D0=55
S_TAG=56
S_I=57; S_J=58
S_T0=60
S_YS=80
S_DSKV=81
S_DT=82
S_W1I=83
S_JDST=84
S_JL=85
S_GW=59
S_JE=78
S_JK=79

LOG2E = 1.4426950408889634
INV2PI = 0.15915494309189535
def f2u(x):
    import struct
    return struct.unpack('<I', struct.pack('<f', x))[0]
def fl(x): return hex(f2u(x))

class Gen:
    def __init__(self, stop_after=None, dbg=False, mimic=2, ts=False, perturb=0.0):
        self.A = Asm(); self.stop_after = stop_after; self.dbg = dbg; self.mimic = mimic
        self.nlab = 0; self.ts=ts; self.nts=0; self.tsnames=[]; self.perturb=perturb; self.tsonly=None; self.tsop='s_memrealtime'; self.tswave=0
    def stamp(self, name):
        if not self.ts: return
        if self.tsonly is not None and name not in self.tsonly: return
        k=self.nts; self.nts+=1; self.tsnames.append(name); assert k<16
        A=self.A
        A("s_waitcnt lgkmcnt(0)")
        A(f"{self.tsop} s[6:7]")
        A("s_waitcnt lgkmcnt(0)")
        A(f"s_mov_b32 s{86+k}, s6")
    def lab(self, p='L'):
        self.nlab += 1; return f"{p}_{self.nlab}"

    def prologue(self):
        A = self.A
        A(f"s_cmp_ge_u32 s{S_WG}, {NGRID}")
        A("s_cbranch_scc1 L_end")
        if self.ts:
            A(f"{self.tsop} s[6:7]")
            A("s_waitcnt lgkmcnt(0)")
            A("s_mov_b32 s86, s6"); self.nts=1; self.tsnames.append('start')
        A(f"s_load_dwordx16 s[8:23], s[0:1], 0")
        A(f"s_load_dwordx8 s[24:31], s[0:1], 64")
        A(f"s_load_dwordx4 s[32:35], s[0:1], 96")
        A("s_getpc_b64 s[4:5]")
        A("L_pc:")
        A("v_lshlrev_b32 v1, 7, v0")
        A("v_add_u32 v2, 0x8000, v1")
        A("v_min_u32 v1, (L_codeend-L_pc-4), v1")
        A("global_load_dword v255, v1, s[4:5]")
        A("v_min_u32 v2, (L_codeend-L_pc-4), v2")
        A("global_load_dword v254, v2, s[4:5]")
        A("v_lshrrev_b32 v2, 6, v0")
        A("v_and_b32 v1, 63, v0")
        A(f"v_readfirstlane_b32 s{S_W}, v2")
        A(f"s_lshr_b32 s{S_CH}, s{S_W}, 1")
        A(f"s_and_b32 s{S_NH}, s{S_W}, 1")
        A(f"s_cmp_ge_u32 s{S_WG}, {NWG}")
        A("s_cbranch_scc1 L_helper")
        A(f"s_and_b32 s{S_T0}, s{S_WG}, 7")
        A(f"s_mul_i32 s{S_T0}, s{S_T0}, 28")
        A(f"s_lshr_b32 s{S_T0+1}, s{S_WG}, 3")
        A(f"s_add_u32 s{S_T0}, s{S_T0}, s{S_T0+1}")
        A(f"s_lshl_b32 s{S_D0}, s{S_T0}, 1")
        A(f"s_mul_i32 s{S_T0+2}, s{S_T0+1}, 37")
        A(f"s_lshr_b32 s{S_T0+2}, s{S_T0+2}, 8")
        A(f"s_mul_i32 s{S_T0+3}, s{S_T0+2}, 7")
        A(f"s_sub_u32 s{S_T0+3}, s{S_T0+1}, s{S_T0+3}")
        A(f"s_and_b32 s{S_T0+4}, s{S_WG}, 7")
        A(f"s_lshr_b32 s{S_T0+5}, s{S_T0+4}, 1")
        A(f"s_lshl_b32 s{S_T0+5}, s{S_T0+5}, 2")
        A(f"s_add_u32 s{S_I}, s{S_T0+5}, s{S_T0+2}")
        A(f"s_and_b32 s{S_T0+4}, s{S_T0+4}, 1")
        A(f"s_mul_i32 s{S_T0+4}, s{S_T0+4}, 7")
        A(f"s_add_u32 s{S_J}, s{S_T0+4}, s{S_T0+3}")

def q7check():
    for q in range(28): assert (q*37)>>8 == q//7, q
q7check()

def add_method(f):
    setattr(Gen, f.__name__, f); return f

V_LANE=1
V_T=0
V_ZERO=2
V_XG=8
V_OFF=16
V_EP=27
V_PA=28
V_SX=36
V_TMP=48

@add_method
def phase0_loads(self):
    A=self.A
    A("s_waitcnt lgkmcnt(0)")
    self.stamp('kernarg')
    A(f"s_mov_b32 s{SRD_X}, s{S_X}\ns_mov_b32 s{SRD_X+1}, s{S_X+1}\ns_mov_b32 s{SRD_X+2}, {L_*D_*2}\ns_mov_b32 s{SRD_X+3}, 0x20000")
    A(f"s_mov_b32 s{SRD_WS}, s{S_WS}\ns_mov_b32 s{SRD_WS+1}, s{S_WS+1}\ns_mov_b32 s{SRD_WS+2}, {WS_SIZE}\ns_mov_b32 s{SRD_WS+3}, 0x20000")
    A(f"v_mov_b32 v{V_ZERO}, 0")
    self.job_roles()
    l=self.lab()
    A(f"s_cmp_lg_u32 s{S_WG}, {NWG-1}")
    A(f"s_cbranch_scc1 {l}")
    self.zero_counters_body()
    A(f"{l}:")
    self.xjob_issue()
    A(f"s_add_u32 s{S_T0+3}, s{S_D0}, s{S_CH}")
    A(f"s_lshl_b32 s{S_T0+3}, s{S_T0+3}, 9")
    A(f"s_lshl_b32 s{S_T0+4}, s{S_NH}, 8")
    A(f"s_add_u32 s{S_T0+3}, s{S_T0+3}, s{S_T0+4}")
    A(f"v_lshl_add_u32 v8, v{V_LANE}, 2, s{S_T0+3}")
    A(f"v_xor_b32 v9, 256, v8")
    A(f"global_load_dword v{V_PA}, v8, s[{S_LOGA}:{S_LOGA+1}]")
    A(f"global_load_dword v{V_PA+1}, v8, s[{S_AIM}:{S_AIM+1}]")
    A(f"global_load_dword v{V_PA+2}, v8, s[{S_CR}:{S_CR+1}]")
    A(f"global_load_dword v{V_PA+3}, v8, s[{S_CI}:{S_CI+1}]")
    A(f"global_load_dword v{V_PA+4}, v9, s[{S_CR}:{S_CR+1}]")
    A(f"global_load_dword v{V_PA+5}, v9, s[{S_CI}:{S_CI+1}]")
    A(f"s_lshl_b32 s{S_T0+4}, s{S_D0}, 1")
    A(f"s_load_dword s{S_DT}, s[{S_LOGDT}:{S_LOGDT+1}], s{S_T0+4}")
    A(f"s_load_dword s{S_DSKV}, s[{S_DSK}:{S_DSK+1}], s{S_T0+4}")
    A(f"global_load_dword v{V_EP}, v{V_ZERO}, s[{S_WS}:{S_WS+1}] sc1")
    self.stamp('all issued')
    A(f"v_lshlrev_b32 v48, 3, v{V_T}")
    for x in range(11):
        o=V_OFF+x
        A(f"v_sub_u32 v49, {2047-x}, v48")
        A(f"v_cvt_f32_i32 v50, v49")
        A(f"v_cvt_pk_bf16_f32 v50, v50, v50")
        A(f"v_and_b32 v50, 0xffff, v50")
        A(f"v_subrev_u32 v50, 17024, v50")
        A(f"v_cmp_gt_i32 vcc, 128, v49")
        A(f"v_cndmask_b32 v50, v50, v49, vcc")
        if x>=8:
            A(f"v_cmp_gt_i32 vcc, 0, v49")
            A(f"v_mov_b32 v51, 768")
            A(f"v_cndmask_b32 v50, v50, v51, vcc")
        A(f"v_lshlrev_b32 v{o}, 1, v50")

NWJ = 588
LDS_XB = LDS_JOB + 3*8192

@add_method
def job_roles(self):
    A=self.A
    A(f"s_mul_i32 s{S_T0}, s{S_W}, 224")
    A(f"s_add_u32 s{S_GW}, s{S_T0}, s{S_WG}")
    A(f"s_lshl_b32 s{S_JL}, s{S_W}, 13")
    A(f"s_add_u32 s{S_JL}, s{S_JL}, {LDS_JOB}")

V_SR=64
@add_method
def xjob_issue(self):
    A=self.A
    A(f"v_bfe_u32 v50, v{V_LANE}, 4, 1")
    A(f"v_lshrrev_b32 v51, 5, v{V_LANE}")
    A(f"v_mul_u32_u24 v51, {224*8}, v51")
    A(f"v_add_u32 v50, v50, v51")
    A(f"s_lshl_b32 s{S_T0}, s{S_WG}, 3")
    A(f"s_lshl_b32 s{S_T0+1}, s{S_W}, 1")
    A(f"s_add_u32 s{S_T0}, s{S_T0}, s{S_T0+1}")
    A(f"v_add_u32 v50, s{S_T0}, v50")
    A(f"v_mul_u32_u24 v50, 896, v50")
    A(f"v_and_b32 v51, 15, v{V_LANE}")
    A(f"v_lshl_add_u32 v50, v51, 4, v50")
    A(f"v_mov_b32 v52, 0x10000000")
    A(f"v_cmp_gt_u32 vcc, 8, v51")
    A(f"v_cndmask_b32 v52, v52, v50, vcc")
    for k in range(3):
        A(f"buffer_load_dwordx4 v[{V_SR+4*k}:{V_SR+4*k+3}], v50, s[{SRD_X}:{SRD_X+3}], 0 offen offset:{256*k}")
    A(f"buffer_load_dwordx4 v[{V_SR+12}:{V_SR+15}], v52, s[{SRD_X}:{SRD_X+3}], 0 offen offset:768")

@add_method
def gather_items(self):
    A=self.A
    A(f"s_lshl_b32 s{S_T0+14}, s{S_D0}, 1")
    A(f"s_movk_i32 s{S_T0+15}, 7168")
    A(f"v_mul_lo_u32 v4, v{V_T}, s{S_T0+15}")
    A(f"v_add_u32 v4, s{S_T0+14}, v4")
    A(f"s_movk_i32 s{S_T0+15}, 4480")
    out=[]
    for j in range(8):
        if j<5: out.append(f"buffer_load_dword v{V_XG+j}, v4, s[{SRD_X}:{SRD_X+3}], 0 offen offset:{j*896}")
        else:   out.append(f"buffer_load_dword v{V_XG+j}, v4, s[{SRD_X}:{SRD_X+3}], s{S_T0+15} offen offset:{(j-5)*896}")
    return out

@add_method
def xjob_post(self):
    A=self.A
    A("s_waitcnt vmcnt(0) lgkmcnt(0)")
    A(f"v_readfirstlane_b32 s{S_TAG}, v{V_EP}")
    A(f"s_add_u32 s{S_TAG}, s{S_TAG}, 0x9E3779B9")
    J=V_SR
    A(f"v_bfe_u32 v50, v{V_LANE}, 4, 1")
    A(f"s_lshl_b32 s{S_T0}, s{S_W}, 1")
    A(f"v_add_u32 v50, s{S_T0}, v50")
    A(f"v_mul_u32_u24 v50, 896, v50")
    A(f"v_lshrrev_b32 v51, 5, v{V_LANE}")
    A(f"v_mul_u32_u24 v51, 7168, v51")
    A(f"v_add_u32 v50, v50, v51")
    A(f"v_and_b32 v51, 15, v{V_LANE}")
    A(f"v_lshl_add_u32 v50, v51, 4, v50")
    A(f"v_add_u32 v50, {LDS_XB}, v50")
    for k in range(3): A(f"ds_write_b128 v50, v[{J+4*k}:{J+4*k+3}] offset:{k*256}")
    A("s_mov_b32 exec_lo, 0x00ff00ff\ns_mov_b32 exec_hi, 0x00ff00ff")
    A(f"ds_write_b128 v50, v[{J+12}:{J+15}] offset:768")
    A("s_mov_b64 exec, -1")
    A("v_mov_b32 v54, 0x3f803f80")
    for i in range(16):
        c1="0" if i<2 else f"v{56+(i&1)}"; c2="0" if i<2 else f"v{58+(i&1)}"
        A(f"v_dot2_f32_bf16 v{56+(i&1)}, v{J+i}, v54, {c1}")
        A(f"v_dot2_f32_bf16 v{58+(i&1)}, v{J+i}, v{J+i}, {c2}")
    A(f"v_bfe_u32 v42, v{V_LANE}, 4, 1")
    A(f"v_lshlrev_b32 v42, 3, v42")
    A(f"v_lshrrev_b32 v39, 5, v{V_LANE}")
    A(f"v_mul_u32_u24 v39, {224*64}, v39")
    A(f"v_add_u32 v42, v42, v39")
    A(f"s_lshl_b32 s{S_T0+10}, s{S_WG}, 6")
    A(f"s_lshl_b32 s{S_T0+9}, s{S_W}, 4")
    A(f"s_add_u32 s{S_T0+10}, s{S_T0+10}, s{S_T0+9}")
    A(f"s_add_u32 s{S_T0+10}, s{S_T0+10}, {WS_STATS}")
    A("v_add_f32 v56, v56, v57\nv_add_f32 v57, v58, v59")
    for mode in ["row_shr:1","row_shr:2","row_shr:4","row_shr:8"]:
        A(f"v_add_f32_dpp v56, v56, v56 {mode} row_mask:0xf bank_mask:0xf bound_ctrl:0"); A(f"v_add_f32_dpp v57, v57, v57 {mode} row_mask:0xf bank_mask:0xf bound_ctrl:0")
    A(f"v_mul_f32 v56, {fl(1.0/448)}, v56")
    A(f"v_mul_f32 v57, {fl(1.0/448)}, v57")
    A("v_fma_f32 v57, -v56, v56, v57")
    A("v_max_f32 v57, 0, v57")
    A("v_cvt_pk_bf16_f32 v57, v57, v57")
    A("v_lshlrev_b32 v57, 16, v57")
    A(f"v_add_f32 v57, {fl(1e-5)}, v57")
    A("v_cvt_pk_bf16_f32 v57, v57, v57")
    A("v_lshlrev_b32 v57, 16, v57")
    A("v_sqrt_f32 v57, v57")
    A(f"v_mov_b32 v41, s{S_TAG}")
    A(f"v_cvt_pk_bf16_f32 v40, v57, v56")
    A(f"s_cmp_lt_u32 s{S_WG}, 32")
    A(f"s_cselect_b32 exec_hi, 0x80008000, 0")
    A("s_mov_b32 exec_lo, 0x80008000")
    A(f"buffer_store_dwordx2 v[40:41], v42, s[{SRD_WS}:{SRD_WS+3}], s{S_T0+10} offen sc1")
    A("s_mov_b64 exec, -1")
    A("s_waitcnt lgkmcnt(0)")
    A("s_barrier")
    X=80
    A(f"v_bfe_u32 v52, v{V_LANE}, 2, 2")
    A(f"v_mul_u32_u24 v52, 896, v52")
    A(f"v_lshrrev_b32 v53, 4, v{V_LANE}")
    A(f"v_lshl_add_u32 v52, v53, 5, v52")
    A(f"v_and_b32 v53, 3, v{V_LANE}")
    A(f"v_lshl_add_u32 v52, v53, 3, v52")
    A(f"s_lshl_b32 s{S_T0+1}, s{S_W}, 7")
    A(f"s_add_u32 s{S_T0+1}, s{S_T0+1}, {LDS_XB}")
    A(f"v_add_u32 v52, s{S_T0+1}, v52")
    for k in range(2):
        o=7168*k; x=X+8*k
        A(f"ds_read_b64_tr_b16 v[{x}:{x+1}], v52 offset:{o}")
        A(f"ds_read_b64_tr_b16 v[{x+2}:{x+3}], v52 offset:{o+4*896}")
        A(f"ds_read_b64_tr_b16 v[{x+4}:{x+5}], v52 offset:{o+512}")
        A(f"ds_read_b64_tr_b16 v[{x+6}:{x+7}], v52 offset:{o+512+4*896}")
    A(f"v_lshlrev_b32 v53, 4, v{V_LANE}")
    A(f"s_mul_i32 s{S_T0+2}, s{S_WG}, 7168")
    A(f"s_lshl_b32 s{S_T0+3}, s{S_W}, 10")
    A(f"s_add_u32 s{S_T0+2}, s{S_T0+2}, s{S_T0+3}")
    A(f"s_add_u32 s{S_T0+2}, s{S_T0+2}, {WS_XT}")
    def st(x,extra):
        A(f"s_add_u32 s{S_T0+3}, s{S_T0+2}, {extra}")
        A(f"buffer_store_dwordx4 v[{x}:{x+3}], v53, s[{SRD_WS}:{SRD_WS+3}], s{S_T0+3} offen sc1")
    l3=self.lab(); l32=self.lab()
    A("s_waitcnt lgkmcnt(6)")
    st(X,0)
    A(f"s_cmp_eq_u32 s{S_W}, 3")
    A(f"s_cbranch_scc1 {l3}")
    A("s_waitcnt lgkmcnt(4)")
    st(X+4,4096)
    A(f"{l3}:")
    A(f"s_cmp_ge_u32 s{S_WG}, 32")
    A(f"s_cbranch_scc1 {l32}")
    A("s_waitcnt lgkmcnt(0)")
    st(X+8,224*7168)
    A(f"s_cmp_eq_u32 s{S_W}, 3")
    A(f"s_cbranch_scc1 {l32}")
    st(X+12,224*7168+4096)
    A(f"{l32}:")
    A("s_waitcnt lgkmcnt(0)")

@add_method
def xflag_publish(self):
    A=self.A
    A("s_waitcnt vmcnt(0)")
    A(f"s_lshl_b32 s{S_T0+10}, s{S_WG}, 2")
    A(f"s_add_u32 s{S_T0+10}, s{S_T0+10}, s{S_W}")
    A(f"s_lshl_b32 s{S_T0+10}, s{S_T0+10}, 6")
    A(f"s_add_u32 s{S_T0+10}, s{S_T0+10}, {WS_XF}")
    A(f"v_mul_u32_u24 v42, {224*4*64}, v{V_LANE}")
    A(f"v_mov_b32 v41, s{S_TAG}")
    A(f"s_cmp_lt_u32 s{S_WG}, 32")
    A(f"s_cselect_b32 exec_lo, 3, 1")
    A("s_mov_b32 exec_hi, 0")
    A(f"buffer_store_dword v41, v42, s[{SRD_WS}:{SRD_WS+3}], s{S_T0+10} offen sc1")
    A("s_mov_b64 exec, -1")

@add_method
def zero_counters_body(self):
    A=self.A; l=self.lab()
    A(f"s_cmp_lg_u32 s{S_W}, 3")
    A(f"s_cbranch_scc1 {l}")
    A(f"v_lshlrev_b32 v3, 7, v{V_LANE}")
    A(f"s_mov_b32 s{S_T0+5}, {WS_CNT2}")
    A(f"buffer_store_dword v{V_ZERO}, v3, s[{SRD_WS}:{SRD_WS+3}], s{S_T0+5} offen sc1")
    A(f"s_mov_b32 s{S_T0+5}, {WS_CNT3}")
    A(f"buffer_store_dword v{V_ZERO}, v3, s[{SRD_WS}:{SRD_WS+3}], s{S_T0+5} offen sc1")
    A(f"{l}:")

S_HY=64; S_HL=65; S_HD=66; S_HE=67; S_HK=68; S_HRET=70
S_HSTR=69; S_HG=72; S_HP=73
@add_method
def wjob_params(self):
    A=self.A; ld=self.lab('Lwd'); lc=self.lab('Lwc'); T=S_T0
    A(f"s_cmp_ge_u32 s{S_HY}, 392")
    A(f"s_cbranch_scc1 {ld}")
    A(f"s_cmp_ge_u32 s{S_HY}, 196")
    A(f"s_cselect_b32 s{SRD_W}, s{S_WUP}, s{S_WGT}")
    A(f"s_cselect_b32 s{SRD_W+1}, s{S_WUP+1}, s{S_WGT+1}")
    A(f"s_cselect_b32 s{T+1}, 1, 0")
    A(f"s_mul_i32 s{T+2}, s{T+1}, 196")
    A(f"s_sub_u32 s{T+2}, s{S_HY}, s{T+2}")
    A(f"s_mul_i32 s{S_HP}, s{T+2}, 9363")
    A(f"s_lshr_b32 s{S_HP}, s{S_HP}, 16")
    A(f"s_mul_i32 s{S_HG}, s{S_HP}, 7")
    A(f"s_sub_u32 s{S_HG}, s{T+2}, s{S_HG}")
    A(f"s_movk_i32 s{S_HSTR}, 3584")
    A(f"s_lshl_b32 s{T+2}, s{S_HP}, 2")
    A(f"s_add_u32 s{T+2}, s{T+2}, s{T+1}")
    A(f"s_mul_i32 s{T+2}, s{T+2}, 28")
    A(f"s_lshl_b32 s{T+3}, s{S_HG}, 2")
    A(f"s_add_u32 s{T+2}, s{T+2}, s{T+3}")
    A(f"s_lshl_b32 s{T+2}, s{T+2}, 10")
    A(f"s_add_u32 s{S_HD}, s{T+2}, {WS_WF1}")
    A(f"s_mov_b32 s{S_HE}, {56*1024}")
    A(f"s_mov_b32 s{S_HK}, 4")
    A(f"s_branch {lc}")
    A(f"{ld}:")
    A(f"s_mov_b32 s{SRD_W}, s{S_WD}")
    A(f"s_mov_b32 s{SRD_W+1}, s{S_WD+1}")
    A(f"s_sub_u32 s{T+2}, s{S_HY}, 392")
    A(f"s_mul_i32 s{S_HP}, s{T+2}, 2341")
    A(f"s_lshr_b32 s{S_HP}, s{S_HP}, 16")
    A(f"s_mul_i32 s{S_HG}, s{S_HP}, 28")
    A(f"s_sub_u32 s{S_HG}, s{T+2}, s{S_HG}")
    A(f"s_movk_i32 s{S_HSTR}, 896")
    A(f"s_mul_i32 s{T+2}, s{S_HP}, 224")
    A(f"s_lshl_b32 s{T+3}, s{S_HG}, 2")
    A(f"s_add_u32 s{T+2}, s{T+2}, s{T+3}")
    A(f"s_lshl_b32 s{T+2}, s{T+2}, 10")
    A(f"s_add_u32 s{S_HD}, s{T+2}, {WS_WFD}")
    A(f"s_mov_b32 s{S_HE}, {112*1024}")
    A(f"s_mov_b32 s{S_HK}, 8")
    A(f"{lc}:")

for _u in range(196): assert (_u*9363)>>16 == _u//7
for _u in range(196): assert (_u*2341)>>16 == _u//28

@add_method
def helper(self):
    A=self.A; T=S_T0
    A("L_helper:")
    hs=[0]
    def hstamp():
        if not (self.ts and getattr(self,'hts',False)): return
        A(f"{self.tsop} s[6:7]"); A("s_waitcnt lgkmcnt(0)"); A(f"v_writelane_b32 v200, s6, {hs[0]}"); hs[0]+=1
    A("s_waitcnt lgkmcnt(0)")
    if self.ts and getattr(self,'hts',False):
        A("v_mov_b32 v200, 0"); A("v_writelane_b32 v200, s86, 0"); hs[0]=1
    hstamp()
    A(f"s_mov_b32 s{SRD_WS}, s{S_WS}\ns_mov_b32 s{SRD_WS+1}, s{S_WS+1}\ns_mov_b32 s{SRD_WS+2}, {WS_SIZE}\ns_mov_b32 s{SRD_WS+3}, 0x20000")
    A(f"s_mov_b32 s{SRD_W+2}, {D_*F_*2}")
    A(f"s_mov_b32 s{SRD_W+3}, 0x20000")
    A(f"v_mov_b32 v{V_ZERO}, 0")
    A(f"global_load_dword v{V_EP}, v{V_ZERO}, s[{S_WS}:{S_WS+1}] sc1")
    A(f"s_sub_u32 s{S_GW}, s{S_WG}, {NWG}")
    A(f"s_lshl_b32 s{S_GW}, s{S_GW}, 2")
    A(f"s_add_u32 s{S_GW}, s{S_GW}, s{S_W}")
    A(f"s_mul_i32 s{S_JL}, s{S_W}, 40960")
    A(f"v_lshrrev_b32 v40, 3, v{V_LANE}")
    A(f"v_bfe_u32 v49, v{V_LANE}, 4, 1")
    A(f"v_lshlrev_b32 v49, 2, v49")
    A(f"v_and_b32 v50, 7, v{V_LANE}")
    A(f"v_xor_b32 v49, v49, v50")
    A(f"v_lshlrev_b32 v41, 4, v49")
    A(f"v_bfe_u32 v51, v{V_LANE}, 2, 2")
    A(f"v_lshlrev_b32 v42, 7, v51")
    A(f"v_lshrrev_b32 v51, 1, v51")
    A(f"v_lshlrev_b32 v51, 2, v51")
    A(f"v_bfe_u32 v52, v{V_LANE}, 4, 1")
    A(f"v_bfe_u32 v53, v{V_LANE}, 1, 1")
    A(f"v_lshl_add_u32 v52, v52, 1, v53")
    A(f"v_xor_b32 v51, v51, v52")
    A(f"v_lshl_add_u32 v42, v51, 4, v42")
    A(f"v_and_b32 v51, 1, v{V_LANE}")
    A(f"v_lshl_add_u32 v42, v51, 3, v42")
    A(f"v_lshrrev_b32 v43, 5, v{V_LANE}")
    A(f"v_lshlrev_b32 v54, 4, v{V_LANE}")
    A(f"v_mul_u32_u24 v58, {2*896}, v43")
    A(f"v_and_b32 v59, 31, v{V_LANE}")
    A(f"v_lshl_add_u32 v58, v59, 2, v58")
    def call(lbl):
        A(f"s_getpc_b64 s[{T+14}:{T+15}]")
        r=self.lab('Lr')
        A(f"{r}:")
        A(f"s_add_u32 s{T+14}, s{T+14}, ({lbl}-{r})")
        A(f"s_addc_u32 s{T+15}, s{T+15}, (({lbl}-{r})>>31)")
        A(f"s_swappc_b64 s[{S_HRET}:{S_HRET+1}], s[{T+14}:{T+15}]")
    NS=9
    def setjob_y(expr_add, clamp):
        A(f"s_add_u32 s{S_HY}, s{S_GW}, {expr_add}")
        A(f"s_min_u32 s{S_HY}, s{S_HY}, {clamp}")
    def job(n,kind):
        if kind=='w1': setjob_y(128*n, 391)
        else: setjob_y(392+128*(n-4), NWJ-1)
        A(f"s_add_u32 s{S_HL}, s{S_JL}, {8192*(n if n<4 else n-4)}")
    def flag_cur():
        A(f"s_lshl_b32 s{T+10}, s{S_HY}, 6")
        A(f"s_add_u32 s{T+10}, s{T+10}, {WS_JF}")
        A(f"v_mov_b32 v47, s{S_TAG}")
        A("s_mov_b64 exec, 1")
        A(f"buffer_store_dword v47, v{V_ZERO}, s[{SRD_WS}:{SRD_WS+3}], s{T+10} offen sc1")
        A("s_mov_b64 exec, -1")
    def batch(ns, kind):
        k=len(ns); st = NS if kind=='w1' else 8
        for n in ns: job(n,kind); call("L_hissue")
        hstamp()
        for i,n in enumerate(ns):
            job(n,kind); A(f"s_waitcnt vmcnt({8*(k-1-i)+st*i})"); call("L_hpost")
            if i==0 and kind=='w1':
                A(f"v_readfirstlane_b32 s{S_TAG}, v{V_EP}")
                A(f"s_add_u32 s{S_TAG}, s{S_TAG}, 0x9E3779B9")
        hstamp()
        for i,n in enumerate(ns):
            A(f"s_waitcnt vmcnt({st*(k-1-i)+i})")
            job(n,kind); flag_cur()
        hstamp()
    l4=self.lab('Lh4'); lb=self.lab('Lhb')
    A(f"s_cmp_lt_u32 s{S_GW}, 8")
    A(f"s_cbranch_scc1 {l4}")
    batch([0,1,2],'w1')
    A(f"s_branch {lb}")
    A(f"{l4}:")
    sv=hs[0]; hs[0]=2
    batch([0,1,2,3],'w1')
    hs[0]=sv
    A(f"{lb}:")
    batch([4,5],'wd')
    self.sync_all_wait()
    hstamp()
    A(f"s_sub_u32 s{T}, s{S_WG}, {NWG}")
    A(f"s_mul_i32 s{T}, s{T}, 57344")
    A(f"s_mul_i32 s{T+1}, s{S_W}, 14336")
    A(f"s_add_u32 s{T}, s{T}, s{T+1}")
    A(f"s_add_u32 s{T}, s{T}, {WS_HT}")
    for k in range(14):
        if k%4==0:
            A(f"s_add_u32 s{T+2}, s{T}, {k*1024}")
            A(f"s_add_u32 m0, s{T+1}, {k*1024}")
        A(f"buffer_load_dwordx4 v54, s[{SRD_WS}:{SRD_WS+3}], s{T+2} offen offset:{(k%4)*1024} sc1 lds")
    A(f"v_lshlrev_b32 v50, 9, v43")
    A(f"v_bfe_u32 v51, v{V_LANE}, 2, 2")
    A(f"v_lshl_add_u32 v50, v51, 6, v50")
    A(f"v_bfe_u32 v51, v{V_LANE}, 4, 1")
    A(f"v_lshl_add_u32 v50, v51, 5, v50")
    A(f"v_and_b32 v51, 3, v{V_LANE}")
    A(f"v_lshl_add_u32 v50, v51, 3, v50")
    A(f"v_add_u32 v50, s{T+1}, v50")
    A("v_mov_b32 v55, 0x3f803f80")
    for k0 in range(0,14,2):
        A(f"s_waitcnt vmcnt({12-k0})")
        for k in (k0,k0+1):
            r=64+4*(k%4)
            A(f"ds_read_b64_tr_b16 v[{r}:{r+1}], v50 offset:{k*1024}")
            A(f"ds_read_b64_tr_b16 v[{r+2}:{r+3}], v50 offset:{k*1024+256}")
        A("s_waitcnt lgkmcnt(0)")
        for k in (k0,k0+1):
            r=64+4*(k%4)
            for d in range(4):
                i=4*k+d
                c1="0" if i<2 else f"v{56+(i&1)}"; c2="0" if i<2 else f"v{58+(i&1)}"
                A(f"v_dot2_f32_bf16 v{56+(i&1)}, v{r+d}, v55, {c1}")
                A(f"v_dot2_f32_bf16 v{58+(i&1)}, v{r+d}, v{r+d}, {c2}")
    A("s_nop 2")
    A("v_add_f32 v56, v56, v57\nv_add_f32 v57, v58, v59")
    A("v_mov_b32 v58, v56\nv_mov_b32 v59, v57")
    A("v_permlane32_swap_b32 v56, v58\nv_permlane32_swap_b32 v57, v59")
    A("v_add_f32 v56, v56, v58\nv_add_f32 v57, v57, v59")
    A(f"v_and_b32 v60, 31, v{V_LANE}")
    A(f"v_lshlrev_b32 v61, 4, v60")
    A(f"s_lshr_b32 s{T+3}, s{S_W}, 1")
    A(f"s_lshl_b32 s{T+3}, s{T+3}, 9")
    A(f"s_add_u32 s{T+3}, s{T+3}, 65536")
    A(f"v_add_u32 v61, s{T+3}, v61")
    A(f"s_and_b32 s{T+4}, s{S_W}, 1")
    A(f"s_lshl_b32 s{T+4}, s{T+4}, 3")
    A(f"v_add_u32 v62, s{T+4}, v61")
    A("ds_write_b64 v62, v[56:57]")
    A("s_waitcnt lgkmcnt(0)")
    A("s_barrier")
    lz=self.lab()
    A(f"s_cmp_lg_u32 s{T+4}, 0")
    A(f"s_cbranch_scc1 {lz}")
    A("ds_read_b128 v[64:67], v61")
    A("s_waitcnt lgkmcnt(0)")
    A("v_add_f32 v64, v64, v66\nv_add_f32 v65, v65, v67")
    A(f"v_mul_f32 v64, {fl(1.0/448)}, v64")
    A(f"v_mul_f32 v65, {fl(1.0/448)}, v65")
    A("v_fma_f32 v65, -v64, v64, v65")
    A("v_max_f32 v65, 0, v65")
    A("v_cvt_pk_bf16_f32 v65, v65, v65")
    A("v_lshlrev_b32 v65, 16, v65")
    A(f"v_add_f32 v65, {fl(1e-5)}, v65")
    A("v_cvt_pk_bf16_f32 v65, v65, v65")
    A("v_lshlrev_b32 v65, 16, v65")
    A("v_sqrt_f32 v65, v65")
    A("v_cvt_pk_bf16_f32 v66, v65, v64")
    A(f"v_mov_b32 v67, s{S_TAG}")
    A(f"v_lshlrev_b32 v68, 3, v60")
    A(f"s_sub_u32 s{T+5}, s{S_WG}, {NWG}")
    A(f"s_lshl_b32 s{T+5}, s{T+5}, 1")
    A(f"s_lshr_b32 s{T+6}, s{S_W}, 1")
    A(f"s_add_u32 s{T+5}, s{T+5}, s{T+6}")
    A(f"s_lshl_b32 s{T+5}, s{T+5}, 8")
    A(f"s_add_u32 s{T+5}, s{T+5}, {WS_ST2}")
    A("s_mov_b32 exec_hi, 0")
    A(f"buffer_store_dwordx2 v[66:67], v68, s[{SRD_WS}:{SRD_WS+3}], s{T+5} offen sc1")
    A("s_mov_b32 exec_hi, -1")
    A(f"{lz}:")
    hstamp()
    if self.ts and getattr(self,'hts',False):
        l=self.lab()
        A(f"s_cmp_lg_u32 s{S_W}, 0")
        A(f"s_cbranch_scc1 {l}")
        A(f"v_lshlrev_b32 v5, 2, v{V_LANE}")
        A(f"s_lshl_b32 s{T}, s{S_WG}, 8")
        A(f"s_add_u32 s{T}, s{T}, {WS_TS}")
        A(f"buffer_store_dword v200, v5, s[{SRD_WS}:{SRD_WS+3}], s{T} offen")
        A(f"{l}:")
    A("s_endpgm")
    A("L_hissue:")
    self.wjob_params()
    A(f"v_mul_lo_u32 v48, v40, s{S_HSTR}")
    A(f"v_add_u32 v48, v48, v41")
    A(f"s_lshl_b32 s{T+6}, s{S_HG}, 6")
    A(f"s_mul_i32 s{T+6}, s{T+6}, s{S_HSTR}")
    A(f"s_lshl_b32 s{T+7}, s{S_HP}, 7")
    A(f"s_add_u32 s{T+6}, s{T+6}, s{T+7}")
    A(f"s_lshl_b32 s{T+7}, s{S_HSTR}, 3")
    for i in range(8):
        A(f"s_add_u32 m0, s{S_HL}, {i*1024}")
        A(f"buffer_load_dwordx4 v48, s[{SRD_W}:{SRD_W+3}], s{T+6} offen lds")
        if i<7: A(f"s_add_u32 s{T+6}, s{T+6}, s{T+7}")
    A(f"s_setpc_b64 s[{S_HRET}:{S_HRET+1}]")
    A("L_hpost:")
    self.wjob_params()
    J=64
    A(f"s_cmp_eq_u32 s{S_HK}, 4")
    A(f"s_cselect_b32 s{T}, 10, 9")
    A(f"s_lshl_b32 s{T+1}, s{S_HK}, 7")
    A(f"v_lshlrev_b32 v50, s{T}, v43")
    A(f"v_add_u32 v50, v50, v42")
    A(f"v_add_u32 v50, s{S_HL}, v50")
    A(f"v_add_u32 v51, s{T+1}, v50")
    A(f"v_xor_b32 v52, 64, v50")
    A(f"v_xor_b32 v53, 64, v51")
    def rd(k):
        kap,e=k>>1,k&1; r=J+4*k
        A(f"ds_read_b64_tr_b16 v[{r}:{r+1}], v{50+2*e} offset:{kap*2048}")
        A(f"ds_read_b64_tr_b16 v[{r+2}:{r+3}], v{51+2*e} offset:{kap*2048}")
    for k in range(6): rd(k)
    for k in range(8):
        kap,e=k>>1,k&1; r=J+4*k
        issued=min(8,6+k)
        A(f"s_waitcnt lgkmcnt({2*(issued-1-k)})")
        if e==0: A(f"s_add_u32 s{T+2}, s{S_HD}, {kap*1024}")
        else:
            A(f"s_add_u32 s{T+2}, s{S_HD}, s{S_HE}")
            A(f"s_add_u32 s{T+2}, s{T+2}, {kap*1024}")
        A(f"buffer_store_dwordx4 v[{r}:{r+3}], v54, s[{SRD_WS}:{SRD_WS+3}], s{T+2} offen sc1")
        if 6+k<8: rd(6+k)
    lcs=self.lab('Lcs')
    A(f"s_cmp_lg_u32 s{S_HK}, 4")
    A(f"s_cbranch_scc1 {lcs}")
    A("v_mov_b32 v55, 0x3f803f80")
    for k in range(8):
        e=k&1
        for d in range(4):
            c="0" if (k<2 and d==0) else f"v{56+e}"
            A(f"v_dot2_f32_bf16 v{56+e}, v{J+4*k+d}, v55, {c}")
    A("s_nop 2")
    A("v_permlane32_swap_b32 v56, v57")
    A("v_add_f32 v56, v56, v57")
    A(f"s_cmp_ge_u32 s{S_HY}, 196")
    A(f"s_cselect_b32 s{T+2}, 1, 0")
    A(f"s_lshl_b32 s{T+3}, s{S_HP}, 2")
    A(f"s_add_u32 s{T+2}, s{T+2}, s{T+3}")
    A(f"s_mul_i32 s{T+2}, s{T+2}, 7")
    A(f"s_add_u32 s{T+2}, s{T+2}, s{S_HG}")
    A(f"s_lshl_b32 s{T+2}, s{T+2}, 7")
    A(f"s_add_u32 s{T+2}, s{T+2}, {WS_CS}")
    A(f"buffer_store_dword v56, v58, s[{SRD_WS}:{SRD_WS+3}], s{T+2} offen sc1")
    A(f"{lcs}:")
    A(f"s_setpc_b64 s[{S_HRET}:{S_HRET+1}]")

def bf16_lo(dst, src): return f"v_lshlrev_b32 v{dst}, 16, v{src}"
def bf16_hi(dst, src): return f"v_and_b32 v{dst}, 0xffff0000, v{src}"

def cmul(A, R, P, Z, T):
    A(f"v_pk_mul_f32 v[{T}:{T+1}], v[{P}:{P+1}], v[{Z}:{Z+1}] op_sel_hi:[0,1]")
    A(f"v_pk_fma_f32 v[{R}:{R+1}], v[{P}:{P+1}], v[{Z}:{Z+1}], v[{T}:{T+1}] op_sel:[1,1,0] op_sel_hi:[1,0,1] neg_lo:[1,0,0]")

def kreg(e,name):
    names=['C','Z1','Z2','Z4','Z8','Z256','P','Q','R','T','X0','X1']
    return [128,152][e]+2*names.index(name)
ROWS=[0,1,2,3,4,5,6,7,256,258,260,262,512,516,768,772,1024,1280,1536,1792,2048]

@add_method
def kgen_setup(self):
    A=self.A
    A("s_waitcnt lgkmcnt(0)")
    A(f"s_lshl_b32 s{S_T0}, s{S_CH}, 4")
    A(f"s_lshr_b32 s{S_DT}, s{S_DT}, s{S_T0}")
    A(f"s_lshl_b32 s{S_DT}, s{S_DT}, 16")
    A(f"s_lshr_b32 s{S_DSKV}, s{S_DSKV}, s{S_T0}")
    A(f"s_lshl_b32 s{S_DSKV}, s{S_DSKV}, 16")
    DT=48
    A(f"v_mov_b32 v{DT}, s{S_DT}")
    A(f"v_mul_f32 v{DT}, {fl(LOG2E)}, v{DT}")
    A(f"v_exp_f32 v{DT}, v{DT}")
    A(f"v_cvt_pk_bf16_f32 v{DT}, v{DT}, v{DT}")
    A(f"v_lshlrev_b32 v{DT}, 16, v{DT}")
    A(f"v_and_b32 v50, 0x7fff7fff, v{V_PA+2}")
    A(f"v_and_b32 v51, 0x7fff7fff, v{V_PA+3}")
    A(f"v_and_b32 v52, 0x7fff7fff, v{V_PA+4}")
    A(f"v_and_b32 v53, 0x7fff7fff, v{V_PA+5}")
    A("v_pk_max_u16 v50, v50, v51")
    A("v_pk_max_u16 v52, v52, v53")
    A("v_pk_max_u16 v50, v50, v52")
    A("v_lshrrev_b32 v51, 16, v50")
    A("v_and_b32 v50, 0xffff, v50")
    A("v_max_u32 v50, v50, v51")
    for mode in ["row_shr:1 row_mask:0xf bank_mask:0xf bound_ctrl:0","row_shr:2 row_mask:0xf bank_mask:0xf bound_ctrl:0",
                 "row_shr:4 row_mask:0xf bank_mask:0xf bound_ctrl:0","row_shr:8 row_mask:0xf bank_mask:0xf bound_ctrl:0",
                 "row_bcast:15 row_mask:0xa bank_mask:0xf","row_bcast:31 row_mask:0xc bank_mask:0xf"]:
        A(f"v_max_u32_dpp v50, v50, v50 {mode}")
    A(f"v_readlane_b32 s{S_T0}, v50, 63")
    A(f"s_lshr_b32 s{S_T0}, s{S_T0}, 7")
    A(f"s_max_u32 s{S_T0}, s{S_T0}, 1")
    A(f"s_min_u32 s{S_T0}, s{S_T0}, 253")
    A(f"s_sub_u32 s{S_T0+1}, 254, s{S_T0}")
    A(f"s_lshl_b32 s{S_T0+1}, s{S_T0+1}, 23")
    A(f"s_lshl_b32 s{S_T0}, s{S_T0}, 23")
    A(f"v_add_f32 v49, v{DT}, v{DT}")
    A(f"v_mul_f32 v49, s{S_T0}, v49")
    A(f"v_readfirstlane_b32 s{S_YS}, v49")
    AR=[50,51]; TH=[52,53]
    reg=kreg
    for e in range(2):
        un = bf16_lo if e==0 else bf16_hi
        A(un(AR[e], V_PA)); A(un(TH[e], V_PA+1))
        A(un(reg(e,'C'), V_PA+2)); A(un(reg(e,'C')+1, V_PA+3))
    for e in range(2):
        A(f"v_mul_f32 v{AR[e]}, {fl(LOG2E)}, v{AR[e]}")
    for e in range(2): A(f"v_exp_f32 v{AR[e]}, v{AR[e]}")
    for e in range(2):
        A(f"v_cvt_pk_bf16_f32 v{AR[e]}, v{AR[e]}, v{AR[e]}")
    for e in range(2):
        A(f"v_lshlrev_b32 v{AR[e]}, 16, v{AR[e]}")
    for e in range(2):
        A(f"v_mul_f32 v{AR[e]}, v{AR[e]}, v{DT}")
        A(f"v_mul_f32 v{TH[e]}, v{TH[e]}, v{DT}")
    for e in range(2):
        A(f"v_mul_f32 v{AR[e]}, {fl(-LOG2E)}, v{AR[e]}")
        A(f"v_mul_f32 v{TH[e]}, {fl(INV2PI)}, v{TH[e]}")
        c=reg(e,'C')
        A(f"v_mul_f32 v{c}, s{S_T0+1}, v{c}")
        A(f"v_mul_f32 v{c+1}, s{S_T0+1}, v{c+1}")
    for name,p in (('Z1',1.0),('Z8',8.0),('Z256',256.0)):
        for e in range(2):
            z=reg(e,name); x0=reg(e,'X0'); x1=reg(e,'X1')
            if p==1.0:
                A(f"v_exp_f32 v{x0}, v{AR[e]}")
                A(f"v_fract_f32 v{x0+1}, v{TH[e]}")
            else:
                A(f"v_mul_f32 v{x0}, {fl(p)}, v{AR[e]}")
                A(f"v_mul_f32 v{x0+1}, {fl(p)}, v{TH[e]}")
                A(f"v_exp_f32 v{x0}, v{x0}")
                A(f"v_fract_f32 v{x0+1}, v{x0+1}")
            A(f"v_cos_f32 v{x1}, v{x0+1}")
            A(f"v_sin_f32 v{x1+1}, v{x0+1}")
        for e in range(2):
            z=reg(e,name); x0=reg(e,'X0'); x1=reg(e,'X1')
            A(f"v_pk_mul_f32 v[{z}:{z+1}], v[{x1}:{x1+1}], v[{x0}:{x0+1}] op_sel_hi:[1,0]")
    for e in range(2): cmul(A, reg(e,'Z2'), reg(e,'Z1'), reg(e,'Z1'), reg(e,'T'))
    for e in range(2): cmul(A, reg(e,'Z4'), reg(e,'Z2'), reg(e,'Z2'), reg(e,'T'))

@add_method
def kgen_gen(self):
    A=self.A
    reg=kreg
    VA=104
    A(f"s_mul_i32 s{S_T0+2}, s{S_W}, {KG_WAVE}")
    A(f"v_lshl_add_u32 v{VA}, v{V_LANE}, 3, s{S_T0+2}")
    OUT=[106,108,110,112]; oi=[0]
    def emit(idx, name, neg):
        if idx==36: self.xflag_publish()
        o=OUT[oi[0]%4]; oi[0]+=1
        for e in range(2):
            r=reg(e,name)
            A(f"v_cvt_pk_f16_f32 v{o+e}, v{r}, {'-' if neg else ''}v{r+1}")
        A(f"ds_write_b64 v{VA}, v[{o}:{o+1}] offset:{idx*KG_PITCH}")
    def step(dst, src, z):
        for e in range(2):
            A(f"v_pk_mul_f32 v[{reg(e,'T')}:{reg(e,'T')+1}], v[{reg(e,src)}:{reg(e,src)+1}], v[{reg(e,z)}:{reg(e,z)+1}] op_sel_hi:[0,1]")
        for e in range(2):
            A(f"v_pk_fma_f32 v[{reg(e,dst)}:{reg(e,dst)+1}], v[{reg(e,src)}:{reg(e,src)+1}], v[{reg(e,z)}:{reg(e,z)+1}], v[{reg(e,'T')}:{reg(e,'T')+1}] op_sel:[1,1,0] op_sel_hi:[1,0,1] neg_lo:[1,0,0]")
    emit(0,'C',True)
    step('P','C','Z1'); emit(1,'P',True)
    for r in range(2,8): step('P','P','Z1'); emit(r,'P',True)
    step('Q','C','Z256'); emit(8,'Q',True)
    step('R','Q','Z2'); emit(9,'R',True)
    step('R','R','Z2'); emit(10,'R',True)
    step('R','R','Z2'); emit(11,'R',True)
    step('Q','Q','Z256'); emit(12,'Q',True)
    step('R','Q','Z4'); emit(13,'R',True)
    step('Q','Q','Z256'); emit(14,'Q',True)
    step('R','Q','Z4'); emit(15,'R',True)
    for r in range(16,21): step('Q','Q','Z256'); emit(r,'Q',True)
    o=OUT[oi[0]%4]; oi[0]+=1
    A(f"v_mov_b32 v{o}, 0x3c00\nv_mov_b32 v{o+1}, 0x3c00")
    A(f"ds_write_b64 v{VA}, v[{o}:{o+1}] offset:{21*KG_PITCH}")
    emit(22,'Z8',False)
    step('P','Z8','Z8'); emit(23,'P',False)
    for b in range(3,32): step('P','P','Z8'); emit(21+b,'P',False)
    self.stamp('gen done')
    A(f"s_mul_i32 s{S_T0+2}, s{S_W}, {KG_WAVE}")
    VAa=104; VAb=105
    A(f"v_and_b32 v48, 31, v{V_LANE}")
    A(f"v_min_u32 v49, 20, v48")
    A(f"v_lshrrev_b32 v50, 5, v{V_LANE}")
    A(f"v_lshlrev_b32 v50, 4, v50")
    A(f"v_add_u32 v50, s{S_T0+2}, v50")
    A(f"s_movk_i32 s{S_T0+3}, {KG_PITCH}")
    A(f"v_mad_u32_u24 v{VAa}, v49, s{S_T0+3}, v50")
    A(f"v_mad_u32_u24 v{VAb}, v48, s{S_T0+3}, v50")
    ACC=112
    FR=[64,72,80,88]
    def ld(ks):
        f=FR[ks%4]
        A(f"ds_read_b128 v[{f}:{f+3}], v{VAa} offset:{ks*32}")
        A(f"ds_read_b128 v[{f+4}:{f+7}], v{VAb} offset:{21*KG_PITCH+ks*32}")
    for ks in range(3): ld(ks)
    for ks in range(16):
        if ks+3<16: ld(ks+3)
        nxt=min(15,ks+3)-ks
        A(f"s_waitcnt lgkmcnt({2*nxt})")
        f=FR[ks%4]
        c = "0" if ks==0 else f"v[{ACC}:{ACC+15}]"
        A(f"v_mfma_f32_32x32x16_f16 v[{ACC}:{ACC+15}], v[{f}:{f+3}], v[{f+4}:{f+7}], {c}")
    l1=self.lab(); l2=self.lab()
    A(f"v_lshl_add_u32 v48, v{V_LANE}, 4, s{S_T0+2}")
    A(f"s_cmp_eq_u32 s{S_NH}, 0")
    A(f"s_cbranch_scc1 {l1}")
    for q in range(3): A(f"ds_write_b128 v48, v[{ACC+4*q}:{ACC+4*q+3}] offset:{q*1024}")
    A(f"{l1}:")
    A("s_waitcnt lgkmcnt(0)")
    self.stamp('kmfma')
    A("s_barrier")
    self.stamp('kbar1')
    A(f"s_cmp_eq_u32 s{S_NH}, 0")
    A(f"s_cbranch_scc0 {l2}")
    for q in range(3): A(f"ds_read_b128 v[{64+4*q}:{64+4*q+3}], v48 offset:{KG_WAVE+q*1024}")
    A(f"v_and_b32 v49, 31, v{V_LANE}")
    A(f"v_lshrrev_b32 v50, 5, v{V_LANE}")
    A(f"v_lshlrev_b32 v51, 4, v49")
    A(f"v_lshl_add_u32 v51, v50, 3, v51")
    A(f"v_add_u32 v51, s{S_T0+2}, v51")
    A(f"v_lshlrev_b32 v52, 3, v49")
    A(f"v_add_u32 v52, 512, v52")
    A(f"v_lshlrev_b32 v53, 2, v49")
    A(f"v_add_u32 v53, 768, v53")
    A(f"v_cmp_eq_u32 vcc, 1, v50")
    A(f"v_cndmask_b32 v52, v52, v53, vcc")
    A(f"v_add_u32 v52, s{S_T0+2}, v52")
    A(f"v_mov_b32 v53, 4")
    A(f"v_mov_b32 v54, 128")
    A(f"v_cndmask_b32 v53, v53, v54, vcc")
    A(f"v_add_u32 v53, v52, v53")
    A(f"v_lshlrev_b32 v54, 1, v49")
    A(f"v_lshl_add_u32 v54, v50, 8, v54")
    A(f"v_add_u32 v54, s{S_T0+2}, v54")
    A("s_waitcnt lgkmcnt(0)")
    for r in range(12):
        A(f"v_add_f32 v{64+r}, v{64+r}, v{ACC+r}")
    for r in range(12):
        A(f"v_cvt_f16_f32 v{64+r}, v{64+r}")
    for r in range(4): A(f"ds_write_b16 v51, v{64+r} offset:{2*r}")
    for r in (4,5): A(f"ds_write_b16 v52, v{64+r} offset:{2*(r-4)}")
    for r in (6,7): A(f"ds_write_b16 v53, v{64+r} offset:{2*(r-6)}")
    for r in range(8,12): A(f"ds_write_b16 v54, v{64+r} offset:{1024+64*(r-8)}")
    A(f"v_mov_b32 v50, 0")
    A(f"v_mov_b32 v51, s{S_T0+2}")
    A(f"ds_write_b16 v51, v50 offset:{2*768}")
    A(f"{l2}:")
    self.granule_loads()
    A("s_waitcnt lgkmcnt(0)")
    A("s_barrier")

@add_method
def kexpand(self):
    A=self.A
    D0=64
    def rd(ch,x):
        tb=(2*ch)*KG_WAVE; d=D0+ch*28
        A(f"ds_read_u16 v{d+x}, v{V_OFF+x} offset:{tb}")
    def mk(ch):
        d=D0+ch*28
        for c in range(4):
            for x in range(4):
                A(f"v_lshl_or_b32 v{d+12+4*c+x}, v{d+c+2*x+1}, 16, v{d+c+2*x}")
    def wr(ch):
        d=D0+ch*28
        for c in range(4):
            r=d+12+4*c
            A(f"ds_write_b128 v49, v[{r}:{r+3}] offset:{ch*KX_CH+c*KX_COPY}")
    for x in range(11): rd(0,x)
    for x in range(4): rd(1,x)
    A(f"v_lshlrev_b32 v49, 4, v{V_T}")
    A(f"v_add_u32 v49, {LDS_KX}, v49")
    A("s_waitcnt lgkmcnt(4)")
    mk(0)
    for x in range(4,11): rd(1,x)
    wr(0)
    A("s_waitcnt lgkmcnt(4)")
    mk(1)
    wr(1)
    A("v_mov_b32 v64, 0\nv_mov_b32 v65, 0\nv_mov_b32 v66, 0\nv_mov_b32 v67, 0")
    l=self.lab()
    A(f"s_cmp_lg_u32 s{S_W}, 0")
    A(f"s_cbranch_scc1 {l}")
    A(f"v_and_b32 v50, 31, v{V_LANE}")
    A(f"v_lshlrev_b32 v50, 4, v50")
    A(f"v_lshrrev_b32 v51, 5, v{V_LANE}")
    A(f"v_mul_u32_u24 v51, {U_CH}, v51")
    A(f"v_add_u32 v50, v50, v51")
    A(f"v_add_u32 v50, {LDS_U}, v50")
    A(f"ds_write_b128 v50, v[64:67]")
    A(f"v_lshrrev_b32 v50, 1, v{V_LANE}")
    A(f"v_and_b32 v50, 7, v50")
    A(f"v_mul_u32_u24 v50, {KX_COPY}, v50")
    A(f"v_and_b32 v51, 1, v{V_LANE}")
    A(f"v_lshl_add_u32 v50, v51, 4, v50")
    A(f"v_add_u32 v50, {LDS_KX+4096}, v50")
    A(f"ds_write_b128 v50, v[64:67]")
    A(f"{l}:")

S_GB=76
S_GB2=82
S_KSTR=68
@add_method
def stage_w(self, kind):
    A=self.A
    RING=24576
    if kind=='w1':
        stride=3584
        A(f"s_mov_b32 s{SRD_W}, s{S_WGT}\ns_mov_b32 s{SRD_W+1}, s{S_WGT+1}\ns_mov_b32 s{SRD_W+2}, {D_*F_*2}\ns_mov_b32 s{SRD_W+3}, 0x20000")
        A(f"s_mov_b32 s{SRD_W2}, s{S_WUP}\ns_mov_b32 s{SRD_W2+1}, s{S_WUP+1}\ns_mov_b32 s{SRD_W2+2}, {D_*F_*2}\ns_mov_b32 s{SRD_W2+3}, 0x20000")
        A(f"s_lshl_b32 s{S_T0}, s{S_J}, 8")
        A(f"s_lshl_b32 s{S_T0+1}, s{S_W}, 6")
        A(f"s_add_u32 s{S_T0}, s{S_T0}, s{S_T0+1}")
        for g in range(4):
            A(f"s_add_u32 s{S_T0+1}, s{S_W}, {g}")
            A(f"s_and_b32 s{S_T0+1}, s{S_T0+1}, 3")
            A(f"s_mul_i32 s{S_T0+1}, s{S_T0+1}, {7*16*stride}")
            A(f"s_add_u32 s{S_GB+g}, s{S_T0+1}, s{S_T0}")
        tileoff2=0
    else:
        stride=896
        A(f"s_mov_b32 s{SRD_W}, s{S_WD}\ns_mov_b32 s{SRD_W+1}, s{S_WD+1}\ns_mov_b32 s{SRD_W+2}, {D_*F_*2}\ns_mov_b32 s{SRD_W+3}, 0x20000")
        A(f"s_mov_b32 s{SRD_W2}, s{S_WD}\ns_mov_b32 s{SRD_W2+1}, s{S_WD+1}\ns_mov_b32 s{SRD_W2+2}, {D_*F_*2}\ns_mov_b32 s{SRD_W2+3}, 0x20000")
        A(f"s_cmp_ge_u32 s{S_J}, 7")
        A(f"s_cselect_b32 s{S_T0}, 7, 0")
        A(f"s_sub_u32 s{S_T0}, s{S_J}, s{S_T0}")
        A(f"s_lshl_b32 s{S_T0}, s{S_T0}, 7")
        A(f"s_mul_i32 s{S_T0+1}, s{S_W}, {448*stride}")
        A(f"s_add_u32 s{S_T0}, s{S_T0}, s{S_T0+1}")
        for g in range(4):
            A(f"s_add_u32 s{S_GB+g}, s{S_T0}, {g*7*16*stride}")
        tileoff2=64
    kstr=16*stride
    A(f"v_lshrrev_b32 v48, 2, v{V_LANE}")
    A(f"v_mul_u32_u24 v48, {stride}, v48")
    A(f"v_and_b32 v49, 3, v{V_LANE}")
    A(f"v_lshl_add_u32 v48, v49, 4, v48")
    if kind=='w1':
        A(f"v_mov_b32 v52, v48")
    else:
        A(f"s_lshl_b32 s{S_T0+1}, s{S_NH}, 6")
        A(f"s_xor_b32 s{S_T0+3}, s{S_T0+1}, 64")
        A(f"v_add_u32 v52, s{S_T0+3}, v48")
        A(f"v_add_u32 v48, s{S_T0+1}, v48")
    A(f"s_mul_i32 s{S_T0+2}, s{S_W}, {RING}")
    A(f"v_lshrrev_b32 v50, 5, v{V_LANE}")
    A(f"v_lshlrev_b32 v50, {9 if kind=='w1' else 8}, v50")
    A(f"v_bfe_u32 v51, v{V_LANE}, 2, 2")
    A(f"v_lshl_add_u32 v50, v51, 6, v50")
    A(f"v_bfe_u32 v51, v{V_LANE}, 4, 1")
    A(f"v_lshl_add_u32 v50, v51, 5, v50")
    A(f"v_and_b32 v51, 3, v{V_LANE}")
    A(f"v_lshl_add_u32 v50, v51, 3, v50")
    A(f"v_add_u32 v50, s{S_T0+2}, v50")
    second = 256 if kind=='w1' else 512
    def issue(c):
        slot=c%3
        for i in range(4):
            s=4*c+i; g=s//7; r=s%7
            A(f"s_add_u32 s{S_T0+3}, s{S_GB+g}, {r*kstr}")
            A(f"s_add_u32 m0, s{S_T0+2}, {slot*8192+i*2048}")
            A(f"buffer_load_dwordx4 v48, s[{SRD_W}:{SRD_W+3}], s{S_T0+3} offen lds")
            A(f"s_add_u32 m0, s{S_T0+2}, {slot*8192+i*2048+1024}")
            A(f"buffer_load_dwordx4 v52, s[{SRD_W2}:{SRD_W2+3}], s{S_T0+3} offen lds")
    for c in range(3): issue(c)
    for c in range(7):
        A(f"s_waitcnt vmcnt({8*min(2,6-c)})")
        slot=c%3
        for i in range(4):
            s=4*c+i
            for tile in range(2):
                a=8*s+4*tile; off=slot*8192+i*2048+tile*1024
                A(f"ds_read_b64_tr_b16 a[{a}:{a+1}], v50 offset:{off}")
                A(f"ds_read_b64_tr_b16 a[{a+2}:{a+3}], v50 offset:{off+second}")
            if i==1: A("s_waitcnt lgkmcnt(4)")
        if c+3<7:
            A("s_waitcnt lgkmcnt(0)")
            issue(c+3)
    A("s_waitcnt lgkmcnt(0)")

@add_method
def flag_load(self):
    A=self.A
    A(f"s_lshl_b32 s{S_T0}, s{S_J}, 2")
    A(f"s_add_u32 s{S_T0}, s{S_T0}, s{S_W}")
    A(f"s_lshr_b32 s{S_T0}, s{S_T0}, 1")
    A(f"s_mul_i32 s{S_T0}, s{S_T0}, 7")
    A(f"v_min_u32 v44, 13, v{V_LANE}")
    A(f"v_add_u32 v46, 189, v44")
    A(f"v_cmp_lt_u32 vcc, 6, v44")
    A(f"v_cndmask_b32 v44, v44, v46, vcc")
    A(f"v_add_u32 v44, s{S_T0}, v44")
    A(f"v_lshlrev_b32 v44, 6, v44")
    A(f"s_mov_b32 s{S_T0+11}, {WS_JF}")
    A(f"buffer_load_dword v46, v44, s[{SRD_WS}:{SRD_WS+3}], s{S_T0+11} offen sc1")

@add_method
def wdflag_load(self, S):
    A=self.A
    A(f"s_cmp_ge_u32 s{S_J}, 7")
    A(f"s_cselect_b32 s{S_T0+8}, 7, 0")
    A(f"s_sub_u32 s{S_T0+8}, s{S_J}, s{S_T0+8}")
    A(f"s_mul_i32 s{S_T0+8}, s{S_T0+8}, 28")
    A(f"s_mul_i32 s{S_T0+9}, s{S_W}, 7")
    A(f"s_add_u32 s{S_T0+8}, s{S_T0+8}, s{S_T0+9}")
    A(f"s_add_u32 s{S_T0+8}, s{S_T0+8}, 392")
    A(f"v_min_u32 v44, 6, v{V_LANE}")
    A(f"v_add_u32 v44, s{S_T0+8}, v44")
    A(f"v_lshlrev_b32 v44, 6, v44")
    A(f"s_mov_b32 s{S_T0+11}, {WS_JF}")
    S.vmem(f"buffer_load_dword v46, v44, s[{SRD_WS}:{SRD_WS+3}], s{S_T0+11} offen sc1","WDF")

@add_method
def wdflag_check(self, S):
    A=self.A
    lp=self.lab('Lpoll'); le=self.lab()
    S.need_vm(["WDF"])
    A(f"s_mov_b32 s{S_T0+8}, 0")
    A(f"{lp}:")
    A(f"v_cmp_eq_u32 vcc, s{S_TAG}, v46")
    A(f"s_and_b32 s{S_T0+9}, vcc_lo, 0x7f")
    A(f"s_cmp_eq_u32 s{S_T0+9}, 0x7f")
    A(f"s_cbranch_scc1 {le}")
    A(f"buffer_load_dword v46, v44, s[{SRD_WS}:{SRD_WS+3}], s{S_T0+11} offen sc1")
    A("s_waitcnt vmcnt(0)")
    A(f"s_add_u32 s{S_T0+8}, s{S_T0+8}, 1")
    A(f"s_cmp_lt_u32 s{S_T0+8}, 0x8000")
    A(f"s_cbranch_scc1 {lp}")
    A(f"{le}:")

@add_method
def granule_loads(self):
    A=self.A; SG=144
    A(f"s_lshr_b32 s{S_T0+12}, s{S_D0}, 6")
    A(f"s_and_b32 s{S_T0+12}, s{S_T0+12}, 3")
    A(f"s_lshl_b32 s{S_T0+12}, s{S_T0+12}, 6")
    A(f"s_add_u32 s{S_T0+12}, s{S_T0+12}, {WS_XF}")
    A(f"v_lshlrev_b32 v37, 8, v{V_T}")
    A(f"buffer_load_dword v36, v37, s[{SRD_WS}:{SRD_WS+3}], s{S_T0+12} offen sc1")
    A(f"v_lshlrev_b32 v43, 6, v{V_T}")
    A(f"s_mov_b32 s{S_T0+13}, {WS_STATS}")
    for k in range(4):
        A(f"buffer_load_dwordx4 v[{SG+4*k}:{SG+4*k+3}], v43, s[{SRD_WS}:{SRD_WS+3}], s{S_T0+13} offen offset:{16*k} sc1")

@add_method
def granule_wait(self):
    A=self.A; SG=144
    lp=self.lab('Lpoll'); le=self.lab()
    A(f"s_mov_b32 s{S_T0+1}, 0")
    A("s_waitcnt vmcnt(0)")
    A(f"{lp}:")
    A(f"v_xor_b32 v49, s{S_TAG}, v36")
    for k in range(8):
        A(f"v_xor_b32 v50, s{S_TAG}, v{SG+2*k+1}")
        A(f"v_or_b32 v49, v49, v50")
    A("v_cmp_ne_u32 vcc, 0, v49")
    A(f"s_add_u32 s{S_T0+1}, s{S_T0+1}, 1")
    A(f"s_cbranch_vccz {le}")
    A(f"buffer_load_dword v36, v37, s[{SRD_WS}:{SRD_WS+3}], s{S_T0+12} offen sc1")
    for k in range(4):
        A(f"buffer_load_dwordx4 v[{SG+4*k}:{SG+4*k+3}], v43, s[{SRD_WS}:{SRD_WS+3}], s{S_T0+13} offen offset:{16*k} sc1")
    A("s_waitcnt vmcnt(0)")
    A(f"s_cmp_lt_u32 s{S_T0+1}, 0x8000")
    A(f"s_cbranch_scc1 {lp}")
    A(f"{le}:")

@add_method
def flag_wait(self, mask):
    A=self.A
    lp=self.lab('Lpoll'); le=self.lab()
    A(f"s_mov_b32 s{S_T0+1}, 0")
    A(f"{lp}:")
    A("s_waitcnt vmcnt(0)")
    A(f"v_cmp_eq_u32 vcc, s{S_TAG}, v46")
    A(f"s_and_b32 s{S_T0+2}, vcc_lo, {hex(mask)}")
    A(f"s_cmp_eq_u32 s{S_T0+2}, {hex(mask)}")
    A(f"s_cbranch_scc1 {le}")
    A(f"buffer_load_dword v46, v44, s[{SRD_WS}:{SRD_WS+3}], s{S_T0+11} offen sc1")
    A(f"s_add_u32 s{S_T0+1}, s{S_T0+1}, 1")
    A(f"s_cmp_lt_u32 s{S_T0+1}, 0x8000")
    A(f"s_cbranch_scc1 {lp}")
    A(f"{le}:")

@add_method
def xt_loads(self):
    A=self.A; XA=8
    A(f"s_movk_i32 s{S_T0+2}, 7168")
    A(f"v_mul_lo_u32 v48, v{V_T}, s{S_T0+2}")
    A(f"s_lshl_b32 s{S_T0+2}, s{S_D0}, 4")
    A(f"s_add_u32 s{S_T0+2}, s{S_T0+2}, {WS_XT}")
    A(f"buffer_load_dwordx4 v[{XA}:{XA+3}], v48, s[{SRD_WS}:{SRD_WS+3}], s{S_T0+2} offen sc1")
    A(f"buffer_load_dwordx4 v[{XA+4}:{XA+7}], v48, s[{SRD_WS}:{SRD_WS+3}], s{S_T0+2} offen offset:16 sc1")

@add_method
def w1_setup(self):
    A=self.A
    A(f"s_lshl_b32 s{S_T0}, s{S_J}, 2")
    A(f"s_add_u32 s{S_T0}, s{S_T0}, s{S_W}")
    A(f"s_mul_i32 s{S_T0}, s{S_T0}, 56")
    for g in range(4):
        A(f"s_add_u32 s{S_T0+1}, s{S_W}, {g}")
        A(f"s_and_b32 s{S_T0+1}, s{S_T0+1}, 3")
        A(f"s_mul_i32 s{S_T0+1}, s{S_T0+1}, 7")
        A(f"s_add_u32 s{S_T0+1}, s{S_T0+1}, s{S_T0}")
        A(f"s_lshl_b32 s{S_T0+1}, s{S_T0+1}, 10")
        A(f"s_add_u32 s{S_GB+g}, s{S_T0+1}, {WS_WF1}")
        A(f"s_add_u32 s{S_GB2+g}, s{S_GB+g}, {28*1024}")
    A(f"v_lshlrev_b32 v45, 4, v{V_LANE}")
    A(f"v_add_u32 v3, 4096, v45")

@add_method
def w1_items(self, s0, s1):
    out=[]
    for s in range(s0,s1):
        g=s//7; i=s%7
        for t in range(2):
            sb=(S_GB if t==0 else S_GB2)+g
            va,off=("v45",i*1024) if i<4 else ("v3",(i-4)*1024)
            out.append([f"buffer_load_dwordx4 a[{8*s+4*t}:{8*s+4*t+3}], {va}, s[{SRD_WS}:{SRD_WS+3}], s{sb} offen offset:{off} sc1"])
    return out
@add_method
def w1_loads(self, s0, s1):
    for it in self.w1_items(s0,s1):
        for x in it: self.A(x)

@add_method
def stats_consume(self):
    A=self.A
    SG=144
    XA=8
    A("s_waitcnt vmcnt(0)")
    self.stamp('xt landed')
    for j in range(8):
        A(f"v_lshlrev_b32 v{80+j}, 16, v{SG+2*j}")
        A(f"v_and_b32 v{88+j}, 0xffff0000, v{SG+2*j}")
    for j in range(8): A(f"v_rcp_f32 v{80+j}, v{80+j}")
    for ch in range(2):
        X=96+ch*8
        for j in range(0,8,2):
            A(bf16_lo(X+j, XA+4*ch+j//2)); A(bf16_hi(X+j+1, XA+4*ch+j//2))
        for j in range(0,8,2):
            A(f"v_pk_add_f32 v[{X+j}:{X+j+1}], v[{X+j}:{X+j+1}], v[{88+j}:{88+j+1}] neg_lo:[0,1] neg_hi:[0,1]")
        if self.mimic>=2:
            for j in range(0,8,2):
                A(f"v_cvt_pk_bf16_f32 v{128+j//2}, v{X+j}, v{X+j+1}")
            for j in range(0,8,2):
                A(bf16_lo(X+j,128+j//2)); A(bf16_hi(X+j+1,128+j//2))
        for j in range(0,8,2):
            A(f"v_pk_mul_f32 v[{X+j}:{X+j+1}], v[{X+j}:{X+j+1}], v[{80+j}:{80+j+1}]")
        if self.mimic>=1:
            for j in range(0,8,2):
                A(f"v_cvt_pk_bf16_f32 v{128+j//2}, v{X+j}, v{X+j+1}")
            for j in range(0,8,2):
                A(bf16_lo(X+j,128+j//2)); A(bf16_hi(X+j+1,128+j//2))
        U=132+ch*4
        for j in range(0,8,2):
            A(f"v_cvt_pk_f16_f32 v{U+j//2}, v{X+j}, v{X+j+1}")
    A(f"v_lshlrev_b32 v48, 4, v{V_T}")
    A(f"v_add_u32 v49, {LDS_U+512}, v48")
    A(f"v_add_u32 v50, {LDS_XT}, v48")
    A(f"ds_write_b128 v49, v[132:135]")
    A(f"ds_write_b128 v49, v[136:139] offset:{U_CH}")
    A(f"ds_write_b128 v50, v[{XA}:{XA+3}]")
    A(f"ds_write_b128 v50, v[{XA+4}:{XA+7}] offset:{XT_CH}")
    self.w1_setup()
    A("s_waitcnt lgkmcnt(0)")
    A("s_barrier")

@add_method
def w1_rest(self):
    self.w1_loads(W1_IN_CONV,28)

@add_method
def wd_loads(self, s0, s1, S=None):
    out=[]
    for s in range(s0,s1):
        for ca in range(2):
            out.append(f"s_add_u32 s{S_T0+14}, s{S_T0+12+ca}, {s*1024}")
            out.append(('vm',f"buffer_load_dwordx4 a[{8*s+4*ca}:{8*s+4*ca+3}], v47, s[{SRD_WS}:{SRD_WS+3}], s{S_T0+14} offen sc1",f"WD{s}"))
    return out

@add_method
def wd_setup(self):
    A=self.A
    A(f"s_cmp_ge_u32 s{S_J}, 7")
    A(f"s_cselect_b32 s{S_T0+14}, 7, 0")
    A(f"s_sub_u32 s{S_T0+14}, s{S_J}, s{S_T0+14}")
    A(f"s_lshl_b32 s{S_T0+14}, s{S_T0+14}, 1")
    for ca in range(2):
        A(f"s_xor_b32 s{S_T0+12+ca}, s{S_NH}, {ca}")
        A(f"s_add_u32 s{S_T0+12+ca}, s{S_T0+12+ca}, s{S_T0+14}")
        A(f"s_mul_i32 s{S_T0+12+ca}, s{S_T0+12+ca}, 112")
        A(f"s_mul_i32 s{S_T0+15}, s{S_W}, 28")
        A(f"s_add_u32 s{S_T0+12+ca}, s{S_T0+12+ca}, s{S_T0+15}")
        A(f"s_lshl_b32 s{S_T0+12+ca}, s{S_T0+12+ca}, 10")
        A(f"s_add_u32 s{S_T0+12+ca}, s{S_T0+12+ca}, {WS_WFD}")
    A(f"v_lshlrev_b32 v47, 4, v{V_LANE}")

W1_PRE=16
W1_IN_CONV=0
C_ACC=64
C_F=[96,160]
C_G=[128,192]
C_VF=48; C_VG=49
C_EU=224; C_EX=232
@add_method
def conv(self):
    A=self.A
    A(f"v_and_b32 v50, 15, v{V_LANE}")
    A(f"v_lshrrev_b32 v51, 4, v{V_LANE}")
    A(f"v_sub_u32 v52, 3, v50")
    A(f"v_and_b32 v52, 3, v52")
    A(f"v_mul_u32_u24 v52, {KX_COPY}, v52")
    A(f"v_lshrrev_b32 v53, 2, v50")
    A(f"v_lshlrev_b32 v53, 3, v53")
    A(f"v_sub_u32 v52, v52, v53")
    A(f"v_lshl_add_u32 v52, v51, 4, v52")
    A(f"s_mul_i32 s{S_T0}, s{S_CH}, {KX_CH}")
    A(f"s_lshl_b32 s{S_T0+1}, s{S_NH}, 8")
    A(f"s_sub_u32 s{S_T0}, s{S_T0}, s{S_T0+1}")
    A(f"s_add_u32 s{S_T0}, s{S_T0}, {LDS_KX+2*2028-64*63}")
    A(f"v_add_u32 v{C_VF}, s{S_T0}, v52")
    A(f"v_lshlrev_b32 v52, 5, v50")
    A(f"v_lshl_add_u32 v52, v51, 4, v52")
    A(f"s_mul_i32 s{S_T0}, s{S_CH}, {U_CH}")
    A(f"s_sub_u32 s{S_T0}, s{S_T0}, s{S_T0+1}")
    A(f"s_add_u32 s{S_T0}, s{S_T0}, {LDS_U+480-192}")
    A(f"v_add_u32 v{C_VG}, s{S_T0}, v52")
    def loads(sp):
        st=sp&1; out=[]
        for k in range(8):
            g=C_G[st]+4*k; f=C_F[st]+4*k
            out.append(f"ds_read_b128 v[{g}:{g+3}], v{C_VG} offset:{512*k+64*(3-sp)}")
            o=64*(63-8*k-sp)
            out.append(f"ds_read_b64 v[{f}:{f+1}], v{C_VF} offset:{o}")
            out.append(f"ds_read_b64 v[{f+2}:{f+3}], v{C_VF} offset:{o+8}")
        return out
    def mfmas(sp):
        st=sp&1; out=[]
        for t in range(8):
            for d in range(t+1):
                acc=C_ACC+4*t
                c = "0" if (sp==0 and d==0) else f"v[{acc}:{acc+3}]"
                out.append((t,d,f"v_mfma_f32_16x16x32_f16 v[{acc}:{acc+3}], v[{C_F[st]+4*d}:{C_F[st]+4*d+3}], v[{C_G[st]+4*(t-d)}:{C_G[st]+4*(t-d)+3}], {c}"))
        return out
    l0=loads(0)
    A(f"v_lshlrev_b32 v52, 5, v50")
    A(f"v_lshl_add_u32 v52, v51, 3, v52")
    A(f"s_lshl_b32 s{S_T0}, s{S_NH}, 11")
    A(f"s_mul_i32 s{S_T0+1}, s{S_CH}, {U_CH}")
    A(f"s_add_u32 s{S_T0+1}, s{S_T0+1}, s{S_T0}")
    A(f"s_add_u32 s{S_T0+1}, s{S_T0+1}, {LDS_U+512}")
    A(f"v_add_u32 v53, s{S_T0+1}, v52")
    A(f"s_mul_i32 s{S_T0+1}, s{S_CH}, {XT_CH}")
    A(f"s_add_u32 s{S_T0+1}, s{S_T0+1}, s{S_T0}")
    A(f"s_add_u32 s{S_T0+1}, s{S_T0+1}, {LDS_XT}")
    A(f"v_add_u32 v54, s{S_T0+1}, v52")
    for k in range(5):
        for x in l0[3*k:3*k+3]: A(x)
    issued=5
    wl=self.w1_items(0,W1_IN_CONV); wi=[0]; mc=[0]
    def wfill():
        mc[0]+=1
        if mc[0]%4==2 and wi[0]<len(wl):
            for x in wl[wi[0]]: A(x)
            wi[0]+=1
    nxt=loads(1); ni=0
    cur_t=-1
    for (t,d,txt) in mfmas(0):
        first = (t!=cur_t)
        if first:
            cur_t=t
            if t<=3: A(f"s_waitcnt lgkmcnt({3*(issued-1-t)})")
            elif t==4: A("s_waitcnt lgkmcnt(0)")
        A(txt)
        if first and issued<8:
            for x in l0[3*issued:3*issued+3]: A(x)
            issued+=1
        elif t>=4 and ni<len(nxt):
            A(nxt[ni]); ni+=1
    assert ni==len(nxt)

    epi=[]
    for tt in range(4):
        epi.append(f"ds_read_b64 v[{C_EU+2*tt}:{C_EU+2*tt+1}], v53 offset:{512*tt}")
        epi.append(f"ds_read_b64 v[{C_EX+2*tt}:{C_EX+2*tt+1}], v54 offset:{512*tt}")
    U=224; X=240
    PRE=160
    PRE=96
    UU=112
    pre=[]
    if self.mimic==0:
        pre.append(f"v_mov_b32 v47, s{S_DSKV}")
        for tt in range(4):
            for h in range(2):
                pre.append(f"v_cvt_f32_f16 v{UU+4*tt+2*h}, v{C_EU+2*tt+h}")
                pre.append(f"v_lshrrev_b32 v{UU+4*tt+2*h+1}, 16, v{C_EU+2*tt+h}")
                pre.append(f"v_cvt_f32_f16 v{UU+4*tt+2*h+1}, v{UU+4*tt+2*h+1}")
                pre.append(bf16_lo(PRE+4*tt+2*h, C_EX+2*tt+h)); pre.append(bf16_hi(PRE+4*tt+2*h+1, C_EX+2*tt+h))
        for r in range(16): pre.append(f"v_fma_f32 v{PRE+r}, v{UU+r}, v47, v{PRE+r}")
    for sp in range(1,4):
        A("s_waitcnt lgkmcnt(0)")
        nxt = loads(sp+1) if sp<3 else epi
        ni=0; pi=0; k=0
        for (t,d,txt) in mfmas(sp):
            A(txt); k+=1
            if ni<len(nxt): A(nxt[ni]); ni+=1
            elif sp==3 and pre:
                if k==12: A("s_waitcnt lgkmcnt(0)")
                if k>=12:
                    tgt=min(len(pre),(len(pre)*(k-11)+23)//24)
                    while pi<tgt: A(pre[pi]); pi+=1
            wfill()
        if sp==3:
            while pi<len(pre): A(pre[pi]); pi+=1
    assert wi[0]==len(wl)
    l=self.lab()
    A(f"s_cmp_eq_u32 s{S_NH}, 0")
    A(f"s_cbranch_scc1 {l}")
    A("s_nop 7")
    for r in range(16): A(f"v_swap_b32 v{C_ACC+r}, v{C_ACC+16+r}")
    A(f"{l}:")
    A("s_nop 7")
    A(f"s_lshl_b32 s{S_T0}, s{S_W}, 12")
    A(f"v_lshl_add_u32 v55, v{V_LANE}, 4, s{S_T0}")
    for tt in range(4): A(f"ds_write_b128 v55, v[{C_ACC+16+4*tt}:{C_ACC+16+4*tt+3}] offset:{1024*tt}")
    A("v_xor_b32 v55, 4096, v55")
    A("s_waitcnt lgkmcnt(0)")
    A("s_barrier")
    if self.mimic==0:
        Y=C_ACC; PT=128
        for tt in range(4): A(f"ds_read_b128 v[{PT+4*tt}:{PT+4*tt+3}], v55 offset:{1024*tt}")
        A(f"v_mov_b32 v146, s{S_YS}\nv_mov_b32 v147, s{S_YS}")
        for tt in range(4):
            A(f"s_waitcnt lgkmcnt({3-tt})")
            for p in (2*tt,2*tt+1):
                A(f"v_pk_add_f32 v[{Y+2*p}:{Y+2*p+1}], v[{Y+2*p}:{Y+2*p+1}], v[{PT+2*p}:{PT+2*p+1}]")
            for p in (2*tt,2*tt+1):
                A(f"v_pk_fma_f32 v[{Y+2*p}:{Y+2*p+1}], v[{Y+2*p}:{Y+2*p+1}], v[146:147], v[{PRE+2*p}:{PRE+2*p+1}]")
    else:
        for tt in range(4): A(f"ds_read_b128 v[{96+4*tt}:{96+4*tt+3}], v55 offset:{1024*tt}")
        U=112; X=128; Y=C_ACC
        for tt in range(4):
            for h in range(2):
                A(f"v_cvt_f32_f16 v{U+4*tt+2*h}, v{C_EU+2*tt+h}")
                A(f"v_cvt_f32_f16_sdwa v{U+4*tt+2*h+1}, v{C_EU+2*tt+h} dst_sel:DWORD dst_unused:UNUSED_PAD src0_sel:WORD_1")
                A(bf16_lo(X+4*tt+2*h, C_EX+2*tt+h)); A(bf16_hi(X+4*tt+2*h+1, C_EX+2*tt+h))
        A(f"v_mov_b32 v144, s{S_DSKV}\nv_mov_b32 v145, s{S_DSKV}\nv_mov_b32 v146, s{S_YS}\nv_mov_b32 v147, s{S_YS}")
        for p in range(8):
            A(f"v_pk_mul_f32 v[{U+2*p}:{U+2*p+1}], v[{U+2*p}:{U+2*p+1}], v[144:145]")
        if self.mimic>=1:
            for p in range(8): A(f"v_cvt_pk_bf16_f32 v{148+p}, v{U+2*p}, v{U+2*p+1}")
            for p in range(8): A(bf16_lo(U+2*p,148+p)); A(bf16_hi(U+2*p+1,148+p))
        A("s_waitcnt lgkmcnt(0)")
        for p in range(8):
            A(f"v_pk_add_f32 v[{Y+2*p}:{Y+2*p+1}], v[{Y+2*p}:{Y+2*p+1}], v[{96+2*p}:{96+2*p+1}]")
        for p in range(8):
            A(f"v_pk_mul_f32 v[{Y+2*p}:{Y+2*p+1}], v[{Y+2*p}:{Y+2*p+1}], v[146:147]")
        if self.mimic>=1:
            for p in range(8): A(f"v_cvt_pk_bf16_f32 v{148+p}, v{Y+2*p}, v{Y+2*p+1}")
            for p in range(8): A(bf16_lo(Y+2*p,148+p)); A(bf16_hi(Y+2*p+1,148+p))
        for p in range(8):
            A(f"v_pk_add_f32 v[{Y+2*p}:{Y+2*p+1}], v[{Y+2*p}:{Y+2*p+1}], v[{U+2*p}:{U+2*p+1}]")
        if self.mimic>=1:
            for p in range(8): A(f"v_cvt_pk_bf16_f32 v{148+p}, v{Y+2*p}, v{Y+2*p+1}")
            for p in range(8): A(bf16_lo(Y+2*p,148+p)); A(bf16_hi(Y+2*p+1,148+p))
        for p in range(8):
            A(f"v_pk_add_f32 v[{Y+2*p}:{Y+2*p+1}], v[{Y+2*p}:{Y+2*p+1}], v[{X+2*p}:{X+2*p+1}]")
    H=148
    for p in range(8): A(f"v_cvt_pk_bf16_f32 v{H+p}, v{Y+2*p}, v{Y+2*p+1}")
    for pr in range(2):
        b=H+4*pr
        A(f"v_permlane16_swap_b32 v{b}, v{b+2}")
        A(f"v_permlane16_swap_b32 v{b+1}, v{b+3}")
    A(f"v_and_b32 v52, 1, v51")
    A(f"v_lshlrev_b32 v52, 3, v52")
    A(f"v_lshrrev_b32 v53, 1, v50")
    A(f"v_add_u32 v52, v52, v53")
    A(f"s_movk_i32 s{S_T0}, {448*64}")
    A(f"v_mul_lo_u32 v52, v52, s{S_T0}")
    A(f"v_and_b32 v53, 1, v50")
    A(f"v_lshl_add_u32 v52, v53, 5, v52")
    A(f"v_lshrrev_b32 v53, 1, v51")
    A(f"v_lshl_add_u32 v52, v53, 4, v52")
    A(f"s_lshl_b32 s{S_T0}, s{S_NH}, 5")
    A(f"s_mul_i32 s{S_T0}, s{S_T0}, {448*64}")
    A(f"s_add_u32 s{S_T0+1}, s{S_D0}, s{S_CH}")
    A(f"s_lshl_b32 s{S_T0+1}, s{S_T0+1}, 6")
    A(f"s_add_u32 s{S_T0}, s{S_T0}, s{S_T0+1}")
    A(f"s_add_u32 s{S_T0}, s{S_T0}, {WS_HT}")
    A(f"s_add_u32 s{S_T0+1}, s{S_T0}, {16*448*64}")
    A(f"buffer_store_dwordx4 v[{H}:{H+3}], v52, s[{SRD_WS}:{SRD_WS+3}], s{S_T0} offen sc1")
    A(f"buffer_store_dwordx4 v[{H+4}:{H+7}], v52, s[{SRD_WS}:{SRD_WS+3}], s{S_T0+1} offen sc1")

@add_method
def sync_all(self):
    A=self.A
    self.flag_load()
    A("s_waitcnt vmcnt(0)")
    A("s_barrier")
    l=self.lab()
    A(f"s_cmp_lg_u32 s{S_W}, 0")
    A(f"s_cbranch_scc1 {l}")
    A(f"s_and_b32 s{S_T0}, s{S_WG}, 7")
    A(f"s_lshl_b32 s{S_T0}, s{S_T0}, 7")
    A(f"s_add_u32 s{S_T0}, s{S_T0}, {WS_CNT2}")
    A(f"v_lshlrev_b32 v48, 10, v{V_LANE}")
    A("v_mov_b32 v49, 1")
    A("s_mov_b64 exec, 0xff")
    A(f"buffer_atomic_add v49, v48, s[{SRD_WS}:{SRD_WS+3}], s{S_T0} offen")
    A("s_mov_b64 exec, -1")
    A(f"{l}:")

@add_method
def sync_all_wait(self):
    A=self.A
    l=self.lab(); lp=self.lab('Lpoll'); le=self.lab()
    A(f"s_cmp_lg_u32 s{S_W}, 0")
    A(f"s_cbranch_scc1 {l}")
    A(f"s_lshr_b32 s{S_T0}, s{S_WG}, 3")
    A(f"s_and_b32 s{S_T0}, s{S_T0}, 7")
    A(f"s_lshl_b32 s{S_T0}, s{S_T0}, 10")
    A(f"s_add_u32 s{S_T0}, s{S_T0}, {WS_CNT2}")
    A(f"v_and_b32 v48, 7, v{V_LANE}")
    A(f"v_lshlrev_b32 v48, 7, v48")
    A(f"s_mov_b32 s{S_T0+1}, 0")
    A(f"{lp}:")
    A(f"buffer_load_dword v49, v48, s[{SRD_WS}:{SRD_WS+3}], s{S_T0} offen sc1")
    A("s_waitcnt vmcnt(0)")
    A("v_cmp_gt_u32 vcc, 28, v49")
    A(f"s_add_u32 s{S_T0+1}, s{S_T0+1}, 1")
    A(f"s_cbranch_vccz {le}")
    A(f"s_cmp_lt_u32 s{S_T0+1}, 0x8000")
    A(f"s_cbranch_scc1 {lp}")
    A(f"{le}:")
    A(f"{l}:")
    A("s_barrier")

class Stream:
    def __init__(self, A):
        self.A=A; self.lds=[]; self.vm=[]
    def ds(self, text, tag=None):
        self.A(text); self.lds.append(tag)
    def vmem(self, text, tag=None):
        self.A(text); self.vm.append(tag)
    def need_lds(self, tags):
        idx=-1
        for t in tags:
            if t in self.lds: idx=max(idx, len(self.lds)-1-self.lds[::-1].index(t))
        if idx>=0:
            n=len(self.lds)-idx-1
            n=min(n,15)
            self.A(f"s_waitcnt lgkmcnt({n})")
            self.lds=self.lds[len(self.lds)-n:] if n>0 else []
    def need_vm(self, tags):
        idx=-1
        for t in tags:
            if t in self.vm: idx=max(idx, len(self.vm)-1-self.vm[::-1].index(t))
        if idx>=0:
            n=len(self.vm)-idx-1
            n=min(n,63)
            self.A(f"s_waitcnt vmcnt({n})")
            self.vm=self.vm[len(self.vm)-n:] if n>0 else []
    def item(self, it):
        if isinstance(it,str): self.A(it)
        elif it[0]=='ds': self.ds(it[1],it[2])
        elif it[0]=='vm': self.vmem(it[1],it[2])
        elif it[0]=='needl': self.need_lds(it[1])
        elif it[0]=='needv': self.need_vm(it[1])

G_ACC=[64,96]; G_CS=128; G_RING=160; G_SB=184; G_VB=56; G_ST=54; G_ET=60; G_PK=232; G_R2=250; G_MU=240; G_C1=244
LDS_ST=114688
@add_method
def cs_mfma(self, s0, s1, init=True):
    A=self.A
    if s0==0 and init:
        for k in range(4): A(f"v_mov_b32 v{48+k}, 0x3f803f80")
    for s in range(s0,s1):
        for t in range(2):
            d=G_CS+16*t
            c="0" if s==0 else f"v[{d}:{d+15}]"
            A(f"v_mfma_f32_32x32x16_bf16 v[{d}:{d+15}], a[{8*s+4*t}:{8*s+4*t+3}], v[48:51], {c}")

def wd_loc(sig, ca):
    if sig<5: return ('v', 4+8*sig+4*ca)
    if sig<9: return ('a', 224+8*(sig-5)+4*ca)
    if sig<14: return ('v', 192+8*(sig-9)+4*ca)
    return ('a', 8*(sig-14)+4*ca)

@add_method
def wd_item(self, sig, ca):
    k,r=wd_loc(sig,ca)
    it=[]
    if sig%8==0 and sig>0: it.append(f"s_add_u32 s{S_T0+12+ca}, s{S_T0+12+ca}, 8192")
    va,off=("v48",(sig%8)*1024) if sig%8<4 else ("v3",(sig%8-4)*1024)
    it.append(('vm',f"buffer_load_dwordx4 {k}[{r}:{r+3}], {va}, s[{SRD_WS}:{SRD_WS+3}], s{S_T0+12+ca} offen offset:{off} sc1",f"WD{sig}"))
    return it

PF=4
@add_method
def gemm1(self):
    A=self.A; S=Stream(A); self.S=S
    A(f"s_mul_i32 s{S_T0}, s{S_I}, {4*28672}")
    A(f"s_mul_i32 s{S_T0+1}, s{S_W}, 7168")
    A(f"s_add_u32 s{S_T0}, s{S_T0}, s{S_T0+1}")
    A(f"s_add_u32 s{S_T0}, s{S_T0}, {WS_HT}")
    A(f"v_lshlrev_b32 v48, 4, v{V_LANE}")
    A(f"v_add_u32 v3, 4096, v48")
    def xdma(lt,k):
        base=lt*28672+(k//4)*4096
        it=[]
        if k%4==0: it+=[f"s_add_u32 s{S_T0+2}, s{S_T0}, {base}", f"s_add_u32 m0, s{S_T0+1}, {base}"]
        it.append(('vm',f"buffer_load_dwordx4 v48, s[{SRD_WS}:{SRD_WS+3}], s{S_T0+2} offen offset:{(k%4)*1024} sc1 lds", f"X{lt}"))
        return it
    for lt in range(2):
        for k in range(7):
            for it in xdma(lt,k): S.item(it)
    self.wd_setup()
    self.wdflag_load(S)
    A(f"s_lshl_b32 s{S_T0+3}, s{S_J}, 2")
    A(f"s_add_u32 s{S_T0+3}, s{S_T0+3}, s{S_W}")
    A(f"s_mul_i32 s{S_T0+3}, s{S_T0+3}, {2*896}")
    A(f"s_add_u32 s{S_T0+3}, s{S_T0+3}, {WS_CS}")
    A(f"v_lshrrev_b32 v50, 5, v{V_LANE}")
    A(f"v_mul_u32_u24 v50, 896, v50")
    A(f"v_and_b32 v51, 31, v{V_LANE}")
    A(f"v_lshl_add_u32 v50, v51, 2, v50")
    for g in range(7):
        S.vmem(f"buffer_load_dword v{184+g}, v50, s[{SRD_WS}:{SRD_WS+3}], s{S_T0+3} offen offset:{g*128} sc1","CSP")
    A(f"s_lshl_b32 s{S_T0+3}, s{S_W}, 8")
    A(f"s_add_u32 s{S_T0+3}, s{S_T0+3}, {LDS_ST+2048}")
    A(f"v_lshl_add_u32 v191, v{V_LANE}, 2, s{S_T0+3}")
    A(f"v_lshrrev_b32 v55, 5, v{V_LANE}")
    A(f"v_lshlrev_b32 v55, 4, v55")
    A(f"v_add_u32 v55, s{S_T0+3}, v55")
    A(f"v_lshrrev_b32 v50, 5, v{V_LANE}")
    A(f"v_lshlrev_b32 v50, 9, v50")
    A(f"v_bfe_u32 v51, v{V_LANE}, 2, 2")
    A(f"v_lshl_add_u32 v50, v51, 6, v50")
    A(f"v_bfe_u32 v51, v{V_LANE}, 4, 1")
    A(f"v_lshl_add_u32 v50, v51, 5, v50")
    A(f"v_and_b32 v51, 3, v{V_LANE}")
    A(f"v_lshl_add_u32 v50, v51, 3, v50")
    for g in range(4):
        A(f"s_add_u32 s{S_T0+3}, s{S_W}, {g}")
        A(f"s_and_b32 s{S_T0+3}, s{S_T0+3}, 3")
        A(f"s_sub_u32 s{S_T0+3}, s{S_T0+3}, {g}")
        A(f"s_mul_i32 s{S_T0+3}, s{S_T0+3}, 7168")
        A(f"v_add_u32 v{G_VB+g}, s{S_T0+3}, v50")
    A(f"v_and_b32 v52, 31, v{V_LANE}")
    A(f"v_lshlrev_b32 v52, 3, v52")
    A(f"s_lshl_b32 s{S_T0+10}, s{S_I}, 10")
    A(f"s_add_u32 s{S_T0+10}, s{S_T0+10}, {WS_ST2}")
    A(f"s_lshl_b32 s{S_T0+4}, s{S_I}, 2")
    A(f"s_mul_i32 s{S_T0+4}, s{S_T0+4}, 112")
    A(f"s_lshl_b32 s{S_T0+5}, s{S_J}, 3")
    A(f"s_add_u32 s{S_T0+4}, s{S_T0+4}, s{S_T0+5}")
    A(f"s_lshl_b32 s{S_T0+5}, s{S_W}, 1")
    A(f"s_add_u32 s{S_T0+4}, s{S_T0+4}, s{S_T0+5}")
    A(f"s_lshl_b32 s{S_T0+4}, s{S_T0+4}, 10")
    A(f"s_add_u32 s{S_T0+4}, s{S_T0+4}, {WS_M}")
    SM=S_T0+4
    RING=[G_RING+4*k for k in range(6)]
    def breg(p,s): return RING[(28*p+s)%6]
    def bload(p,s):
        r=breg(p,s); vb=G_VB+s//7
        return [('ds',f"ds_read_b64_tr_b16 v[{r}:{r+1}], v{vb} offset:{s*1024}",f"B{p}_{s}a"),
                ('ds',f"ds_read_b64_tr_b16 v[{r+2}:{r+3}], v{vb} offset:{s*1024+256}",f"B{p}_{s}b")]
    SG2=G_SB
    def stats_loads():
        it=[]
        for p in range(4):
            it.append(('vm',f"buffer_load_dwordx2 v[{SG2+2*p}:{SG2+2*p+1}], v52, s[{SRD_WS}:{SRD_WS+3}], s{S_T0+10} offen offset:{p*256} sc1","ST2"))
        return it
    def stats_check():
        lp=self.lab('Lpoll'); le=self.lab()
        S.need_vm(["ST2"])
        A(f"s_mov_b32 s{S_T0+8}, 0")
        A(f"{lp}:")
        A(f"v_xor_b32 v53, s{S_TAG}, v{SG2+1}")
        for p in range(1,4):
            A(f"v_xor_b32 v54, s{S_TAG}, v{SG2+2*p+1}")
            A(f"v_or_b32 v53, v53, v54")
        A("v_cmp_ne_u32 vcc, 0, v53")
        A(f"s_add_u32 s{S_T0+8}, s{S_T0+8}, 1")
        A(f"s_cbranch_vccz {le}")
        for p in range(4):
            A(f"buffer_load_dwordx2 v[{SG2+2*p}:{SG2+2*p+1}], v52, s[{SRD_WS}:{SRD_WS+3}], s{S_T0+10} offen offset:{p*256} sc1")
        A("s_waitcnt vmcnt(0)")
        A(f"s_cmp_lt_u32 s{S_T0+8}, 0x8000")
        A(f"s_cbranch_scc1 {lp}")
        A(f"{le}:")
    def stats_final(p):
        g=SG2+2*p; T=G_ST
        return [f"v_and_b32 v{G_MU+p}, 0xffff0000, v{g}",
                f"v_lshlrev_b32 v{T}, 16, v{g}",
                f"v_rcp_f32 v{T}, v{T}",
                f"s_nop 0",
                f"v_mul_f32 v{G_C1+p}, {fl(-LOG2E)}, v{T}",
                f"v_mul_f32 v{G_R2+p}, v{T}, v{T}"]
    def epi_items(p):
        acc=G_ACC[p&1]; it=[]; E=G_ET; mu=G_MU+p; c1=G_C1+p
        for r0 in range(0,16,4):
            rs=range(r0,r0+4)
            for r in rs: it.append(f"v_fma_f32 v{acc+r}, -v{mu}, v{G_CS+r}, v{acc+r}")
            for r in rs: it.append(f"v_fma_f32 v{acc+16+r}, -v{mu}, v{G_CS+16+r}, v{acc+16+r}")
            for r in rs: it.append(f"v_mul_f32 v{E+(r&3)}, v{c1}, v{acc+r}")
            for r in rs: it.append(f"v_exp_f32 v{E+(r&3)}, v{E+(r&3)}")
            for r in rs: it.append(f"v_mul_f32 v{acc+r}, v{acc+r}, v{acc+16+r}")
            for r in rs: it.append(f"v_add_f32 v{E+(r&3)}, 1.0, v{E+(r&3)}")
            for r in rs: it.append(f"v_rcp_f32 v{E+(r&3)}, v{E+(r&3)}")
            for r in rs: it.append(f"v_mul_f32 v{acc+r}, v{acc+r}, v{E+(r&3)}")
            q=r0//4
            it.append(f"v_cvt_pk_bf16_f32 v{G_PK+2*q}, v{acc+r0}, v{acc+r0+1}")
            it.append(f"v_cvt_pk_bf16_f32 v{G_PK+2*q+1}, v{acc+r0+2}, v{acc+r0+3}")
            if q==1 or q==3:
                h=q//2
                if h==0: it.append(f"s_add_u32 s{SM+1}, s{SM}, {p*112*1024}")
                it.append(('vm',f"buffer_store_dwordx4 v[{G_PK+4*h}:{G_PK+4*h+3}], v48, s[{SRD_WS}:{SRD_WS+3}], s{SM+1} offen offset:{h*1024} sc1",f"M{p}_{h}"))
        return it
    vmx={0:[],1:[],2:[],3:[]}
    wr=self.w1_items(W1_PRE,28)
    for n,it in enumerate(wr):
        sl=W1_PRE+n//2
        vmx[0].append((n//2, [('vm',it[0],f"W{sl}")]))
    k=0
    for lt in (2,3):
        for q in range(7):
            vmx[0].append((min(27,len(wr)//2+k), xdma(lt,q))); k+=1
    csit=[('needv',["CSP"])]
    for g in range(1,7): csit.append(f"v_add_f32 v184, v184, v{184+g}")
    csit.append(('ds',"ds_write_b32 v191, v184","CSW"))
    for t in range(2):
        for q in range(4):
            csit.append(('ds',f"ds_read_b128 v[{G_CS+16*t+4*q}:{G_CS+16*t+4*q+3}], v55 offset:{t*128+q*32}","CSR"))
    n=0
    for sig in range(5):
        for ca in range(2): vmx[1].append((9+(18*n)//10, self.wd_item(sig,ca))); n+=1
    n=0
    for sig in range(5,14):
        for ca in range(2): vmx[2].append((1+(26*n)//18, self.wd_item(sig,ca))); n+=1
    for n in range(28): vmx[3].append((n, self.wd_item(14+n//2, n%2)))
    S.need_vm(["X0"])
    A("s_barrier")
    self.stamp('x0')
    for s in range(PF):
        for it in bload(0,s): S.item(it)
    BAR=16; csi=[0]
    ST_LOAD=2; ST_CHK=8
    for p in range(4):
        acc=G_ACC[p&1]
        ep=epi_items(p-1) if p>0 else []
        e0=1
        if p==1:
            while csi[0]<len(csit): S.item(csit[csi[0]]); csi[0]+=1
            ep=[('needl',["CSR"])]+sum((stats_final(q) for q in range(4)),[])+ep
            e0=ST_CHK+1
        epi=0
        for s in range(28):
            if s%2==0: S.need_lds([f"B{p}_{s}a",f"B{p}_{s}b",f"B{p}_{s+1}a",f"B{p}_{s+1}b"])
            if p==0 and s>=W1_PRE and s%2==0: S.need_vm([f"W{s}",f"W{s+1}"])
            if p==0 and s>=18 and csi[0]<len(csit):
                for _ in range(2):
                    if csi[0]<len(csit): S.item(csit[csi[0]]); csi[0]+=1
            r=breg(p,s)
            for t in range(2):
                d=acc+16*t
                c="0" if s==0 else f"v[{d}:{d+15}]"
                A(f"v_mfma_f32_32x32x16_bf16 v[{d}:{d+15}], a[{8*s+4*t}:{8*s+4*t+3}], v[{r}:{r+3}], {c}")
                ns=s+PF
                if ns<28: S.item(bload(p,ns)[t])
                elif p<3: S.item(bload(p+1,ns-28)[t])
                gap=2*s+t
                if t==1:
                    for (sl,items) in vmx[p]:
                        if sl==s:
                            for it in items: S.item(it)
                if s>=e0 and ep:
                    ng=2*(28-e0)-1
                    tgt=min(len(ep),(len(ep)*(gap-2*e0+1)+ng-1)//ng)
                    while epi<tgt: S.item(ep[epi]); epi+=1
            if p==1 and s==ST_LOAD:
                for it in stats_loads(): S.item(it)
            if p==1 and s==ST_CHK: stats_check()
            if p<3 and s in (6-PF,13-PF,20-PF,27-PF):
                g={6-PF:0,13-PF:1,20-PF:2,27-PF:3}[s]
                A(f"v_add_u32 v{G_VB+g}, 28672, v{G_VB+g}")
            if s==BAR:
                if p<3: S.need_vm([f"X{p+1}"])
                if p==0: self.wdflag_check(S)
                if p==3: S.need_vm(["M1_1"])
                if p<3 or True: A("s_barrier")
                if p==3:
                    l=self.lab()
                    A(f"s_cmp_lg_u32 s{S_W}, 0")
                    A(f"s_cbranch_scc1 {l}")
                    A(f"s_lshl_b32 s{S_T0+2}, s{S_I}, 7")
                    A(f"s_add_u32 s{S_T0+2}, s{S_T0+2}, {WS_CNT3}")
                    A("v_mov_b32 v55, 1")
                    A("s_mov_b64 exec, 1")
                    A(f"buffer_atomic_add v55, v{V_ZERO}, s[{SRD_WS}:{SRD_WS+3}], s{S_T0+2} offen")
                    A("s_mov_b64 exec, -1")
                    A(f"{l}:")
        while epi<len(ep): S.item(ep[epi]); epi+=1
        if self.ts and (self.tsonly is None or f'pass{p}' in self.tsonly):
            self.stamp(f'pass{p}'); S.lds=[]
    A(f"s_lshl_b32 s{S_T0+2}, s{S_I}, 7")
    A(f"s_add_u32 s{S_T0+2}, s{S_T0+2}, {WS_CNT3}")
    S.vmem(f"buffer_load_dword v55, v{V_ZERO}, s[{SRD_WS}:{SRD_WS+3}], s{S_T0+2} offen sc1","pollE")
    A("s_nop 7")
    for it in epi_items(3): S.item(it)

H_ACC=64
H_RING=128
NRING=16
LDS_RED=0
LDS_RES=49152
@add_method
def gemm2(self):
    A=self.A; S=self.S
    A(f"s_cmp_ge_u32 s{S_J}, 7")
    A(f"s_cselect_b32 s{S_T0}, 1, 0")
    A(f"s_cselect_b32 s{S_T0+6}, 7, 0")
    A(f"s_sub_u32 s{S_T0+6}, s{S_J}, s{S_T0+6}")
    A(f"s_lshl_b32 s{S_T0+1}, s{S_I}, 2")
    A(f"s_sub_u32 s{S_T0+3}, 3, s{S_T0}")
    A(f"s_add_u32 s{S_T0+3}, s{S_T0+3}, s{S_T0+1}")
    A(f"s_add_u32 s{S_T0+1}, s{S_T0+1}, s{S_T0}")
    A(f"s_mul_i32 s{S_T0+7}, s{S_W}, 28")
    for la,src in ((0,S_T0+1),(1,S_T0+3)):
        A(f"s_mul_i32 s{S_T0+4+la}, s{src}, 112")
        A(f"s_add_u32 s{S_T0+4+la}, s{S_T0+4+la}, s{S_T0+7}")
        A(f"s_lshl_b32 s{S_T0+4+la}, s{S_T0+4+la}, 10")
        A(f"s_add_u32 s{S_T0+4+la}, s{S_T0+4+la}, {WS_M}")
    A(f"s_cmp_ge_u32 s{S_W}, 2")
    A(f"s_cselect_b32 s{S_T0+9}, s{S_T0+3}, s{S_T0+1}")
    lp=self.lab('Lpoll'); le=self.lab()
    A(f"s_mov_b32 s{S_T0+8}, 0")
    A(f"s_waitcnt vmcnt(2)")
    A(f"{lp}:")
    A("v_cmp_gt_u32 vcc, 14, v55")
    A(f"s_cbranch_vccz {le}")
    A(f"buffer_load_dword v55, v{V_ZERO}, s[{SRD_WS}:{SRD_WS+3}], s{S_T0+2} offen sc1")
    A("s_waitcnt vmcnt(0)")
    A(f"s_add_u32 s{S_T0+8}, s{S_T0+8}, 1")
    A(f"s_cmp_lt_u32 s{S_T0+8}, 0x8000")
    A(f"s_cbranch_scc1 {lp}")
    A(f"{le}:")
    S2=Stream(A); S2.vm=["Mfin","Mfin"]
    def mload(la,s):
        r=H_RING+4*((28*la+s)%NRING)
        if s%8==0 and s>0: A(f"s_add_u32 s{S_T0+4+la}, s{S_T0+4+la}, 8192")
        va,off=("v48",(s%8)*1024) if s%8<4 else ("v3",(s%8-4)*1024)
        S2.vmem(f"buffer_load_dwordx4 v[{r}:{r+3}], {va}, s[{SRD_WS}:{SRD_WS+3}], s{S_T0+4+la} offen offset:{off} sc1", f"m{la}_{s}")
    NPRE=6
    for s_ in range(NPRE): mload(0,s_)
    S2.need_vm(["Mfin"])
    A("s_barrier")
    l=self.lab()
    A(f"s_cmp_lg_u32 s{S_W}, 0")
    A(f"s_cbranch_scc1 {l}")
    A(f"s_lshl_b32 s{S_T0+10}, s{S_I}, 7")
    A(f"s_add_u32 s{S_T0+10}, s{S_T0+10}, {WS_CNT3+2048}")
    A("v_mov_b32 v55, 1")
    A("s_mov_b64 exec, 1")
    A(f"buffer_atomic_add v55, v{V_ZERO}, s[{SRD_WS}:{SRD_WS+3}], s{S_T0+10} offen")
    l2=self.lab()
    A(f"s_cmp_lg_u32 s{S_WG}, 0")
    A(f"s_cbranch_scc1 {l2}")
    A(f"v_mov_b32 v55, s{S_TAG}")
    A(f"buffer_store_dword v55, v{V_ZERO}, s[{SRD_WS}:{SRD_WS+3}], 0 offen sc1")
    A(f"{l2}:")
    A("s_mov_b64 exec, -1")
    A(f"{l}:")
    self.stamp('sync3 arrive')
    A(f"s_lshl_b32 s{S_T0+10}, s{S_I}, 7")
    A(f"s_add_u32 s{S_T0+10}, s{S_T0+10}, {WS_CNT3+2048}")
    A(f"s_mul_i32 s{S_T0+8}, s{S_T0+9}, 448")
    A(f"s_lshl_b32 s{S_T0+11}, s{S_T0+6}, 6")
    A(f"s_add_u32 s{S_T0+8}, s{S_T0+8}, s{S_T0+11}")
    A(f"s_lshl_b32 s{S_T0+11}, s{S_NH}, 5")
    A(f"s_add_u32 s{S_T0+8}, s{S_T0+8}, s{S_T0+11}")
    A(f"s_lshl_b32 s{S_T0+8}, s{S_T0+8}, 6")
    A(f"s_add_u32 s{S_T0+8}, s{S_T0+8}, {WS_HT}")
    A(f"s_lshl_b32 s{S_T0+11}, s{S_W}, 11")
    A(f"s_add_u32 s{S_T0+11}, s{S_T0+11}, {LDS_RES}")
    def mf(la,s):
        for ca in range(2):
            d=H_ACC+16*(2*la+ca)
            c="0" if s==0 else f"v[{d}:{d+15}]"
            k,r=wd_loc(s,ca); rr=H_RING+4*((28*la+s)%NRING)
            A(f"v_mfma_f32_32x32x16_bf16 v[{d}:{d+15}], {k}[{r}:{r+3}], v[{rr}:{rr+3}], {c}")
    for s_ in range(NPRE,NRING): mload(0,s_)
    POLL_AT=28-NRING
    for s_ in range(28):
        S2.need_vm([f"m0_{s_}"])
        mf(0,s_)
        if s_+NRING<28: mload(0,s_+NRING)
        if s_==POLL_AT-1:
            S2.vmem(f"buffer_load_dword v55, v{V_ZERO}, s[{SRD_WS}:{SRD_WS+3}], s{S_T0+10} offen sc1","pollL")
            A(f"s_mov_b32 m0, s{S_T0+11}")
            S2.vmem(f"buffer_load_dwordx4 v48, s[{SRD_WS}:{SRD_WS+3}], s{S_T0+8} offen sc1 lds","res")
            S2.vmem(f"buffer_load_dwordx4 v48, s[{SRD_WS}:{SRD_WS+3}], s{S_T0+8} offen offset:1024 sc1 lds","res")
        if s_==POLL_AT+5:
            lp=self.lab('Lpoll'); le=self.lab()
            S2.need_vm(["pollL"])
            A(f"s_mov_b32 s{S_T0+7}, 0")
            A(f"{lp}:")
            A("v_cmp_gt_u32 vcc, 14, v55")
            A(f"s_cbranch_vccz {le}")
            A(f"buffer_load_dword v55, v{V_ZERO}, s[{SRD_WS}:{SRD_WS+3}], s{S_T0+10} offen sc1")
            A("s_waitcnt vmcnt(0)")
            A(f"s_add_u32 s{S_T0+7}, s{S_T0+7}, 1")
            A(f"s_cmp_lt_u32 s{S_T0+7}, 0x8000")
            A(f"s_cbranch_scc1 {lp}")
            A(f"{le}:")
            self.stamp('late ready')
            nl=0
            while nl<28 and (28+nl)-NRING <= s_: mload(1,nl); nl+=1
        elif s_>POLL_AT+5:
            while nl<28 and (28+nl)-NRING <= s_: mload(1,nl); nl+=1
    self.stamp('early done')
    for s_ in range(28):
        S2.need_vm([f"m1_{s_}"])
        mf(1,s_)
        while nl<28 and (28+nl)-NRING <= 28+s_: mload(1,nl); nl+=1
    self.stamp('late done')
    A("s_nop 11")
    lhi=self.lab('Lhi'); lj=self.lab('Lj')
    def writes(blocks):
        for x,blk in ((1,blocks[0]),(2,blocks[1]),(3,blocks[2])):
            A(f"s_xor_b32 s{S_T0+7}, s{S_W}, {x}")
            A(f"s_mul_i32 s{S_T0+7}, s{S_T0+7}, 12288")
            A(f"s_add_u32 s{S_T0+7}, s{S_T0+7}, {LDS_RED+(x-1)*4096}")
            A(f"v_add_u32 v49, s{S_T0+7}, v48")
            for q in range(4):
                d=H_ACC+16*blk+4*q
                A(f"ds_write_b128 v49, v[{d}:{d+3}] offset:{q*1024}")
    A(f"s_cmp_ge_u32 s{S_W}, 2")
    A(f"s_cbranch_scc1 {lhi}")
    writes([1,2,3])
    A(f"s_branch {lj}")
    A(f"{lhi}:")
    writes([3,0,1])
    A("s_waitcnt lgkmcnt(0)")
    for r in range(16): A(f"v_mov_b32 v{H_ACC+r}, v{H_ACC+32+r}")
    A(f"{lj}:")
    A(f"v_lshrrev_b32 v50, 5, v{V_LANE}")
    A(f"v_lshlrev_b32 v50, 8, v50")
    A(f"v_bfe_u32 v51, v{V_LANE}, 2, 2")
    A(f"v_lshl_add_u32 v50, v51, 6, v50")
    A(f"v_bfe_u32 v51, v{V_LANE}, 4, 1")
    A(f"v_lshl_add_u32 v50, v51, 5, v50")
    A(f"v_and_b32 v51, 3, v{V_LANE}")
    A(f"v_lshl_add_u32 v50, v51, 3, v50")
    A(f"v_add_u32 v50, s{S_T0+11}, v50")
    P=128
    for q in range(4): A(f"ds_read_b64_tr_b16 v[{176+2*q}:{176+2*q+1}], v50 offset:{q*512}")
    A(f"s_mov_b32 s{SRD_W}, s{S_OUT}\ns_mov_b32 s{SRD_W+1}, s{S_OUT+1}\ns_mov_b32 s{SRD_W+2}, {L_*D_*2}\ns_mov_b32 s{SRD_W+3}, 0x20000")
    A(f"v_and_b32 v52, 31, v{V_LANE}")
    A(f"v_mul_u32_u24 v52, 896, v52")
    A(f"v_lshrrev_b32 v51, 5, v{V_LANE}")
    A(f"v_lshl_add_u32 v52, v51, 4, v52")
    A(f"s_mul_i32 s{S_T0+8}, s{S_T0+9}, {32*896}")
    A(f"s_lshl_b32 s{S_T0+10}, s{S_T0+6}, 7")
    A(f"s_add_u32 s{S_T0+8}, s{S_T0+8}, s{S_T0+10}")
    A(f"s_lshl_b32 s{S_T0+10}, s{S_NH}, 6")
    A(f"s_add_u32 s{S_T0+8}, s{S_T0+8}, s{S_T0+10}")
    A(f"s_mul_i32 s{S_T0+7}, s{S_W}, 12288")
    A(f"v_add_u32 v49, s{S_T0+7}, v48")
    A("s_waitcnt lgkmcnt(0)")
    for q in range(4):
        for h in range(2):
            A(bf16_lo(192+4*q+2*h,176+2*q+h)); A(bf16_hi(192+4*q+2*h+1,176+2*q+h))
    A(f"s_lshl_b32 s{S_T0+10}, s{S_I}, 2")
    A(f"s_sub_u32 s{S_T0+10}, s{S_T0+9}, s{S_T0+10}")
    A(f"v_mov_b32 v224, v{G_R2}")
    for k in range(1,4):
        A(f"s_cmp_eq_u32 s{S_T0+10}, {k}")
        A("s_cselect_b64 vcc, -1, 0")
        A(f"v_cndmask_b32 v224, v224, v{G_R2+k}, vcc")
    A("v_mov_b32 v225, v224")
    A("s_barrier")
    self.stamp('red barrier')
    for k in range(3):
        for q in range(4):
            A(f"ds_read_b128 v[{P+16*k+4*q}:{P+16*k+4*q+3}], v49 offset:{LDS_RED+k*4096+q*1024}")
    for k in range(3):
        A(f"s_waitcnt lgkmcnt({8-4*k})")
        for r in range(0,16,2): A(f"v_pk_add_f32 v[{H_ACC+r}:{H_ACC+r+1}], v[{H_ACC+r}:{H_ACC+r+1}], v[{P+16*k+r}:{P+16*k+r+1}]")
    if self.mimic>=1:
        for r in range(0,16,2): A(f"v_pk_mul_f32 v[{H_ACC+r}:{H_ACC+r+1}], v[{H_ACC+r}:{H_ACC+r+1}], v[224:225]")
        for r in range(0,16,2): A(f"v_cvt_pk_bf16_f32 v{208+r//2}, v{H_ACC+r}, v{H_ACC+r+1}")
        for r in range(0,16,2): A(bf16_lo(H_ACC+r,208+r//2)); A(bf16_hi(H_ACC+r+1,208+r//2))
        for r in range(0,16,2): A(f"v_pk_add_f32 v[{H_ACC+r}:{H_ACC+r+1}], v[{H_ACC+r}:{H_ACC+r+1}], v[{192+r}:{192+r+1}]")
    else:
        for r in range(0,16,2): A(f"v_pk_fma_f32 v[{H_ACC+r}:{H_ACC+r+1}], v[{H_ACC+r}:{H_ACC+r+1}], v[224:225], v[{192+r}:{192+r+1}]")
    O=208
    if self.perturb:
        for r in range(16): A(f"v_add_f32 v{H_ACC+r}, {fl(self.perturb)}, v{H_ACC+r}")
    for r in range(0,16,2): A(f"v_cvt_pk_bf16_f32 v{O+r//2}, v{H_ACC+r}, v{H_ACC+r+1}")
    for q in (0,2):
        A(f"v_permlane32_swap_b32 v{O+2*q}, v{O+2*q+2}")
        A(f"v_permlane32_swap_b32 v{O+2*q+1}, v{O+2*q+3}")
    A(f"buffer_store_dwordx4 v[{O}:{O+3}], v52, s[{SRD_W}:{SRD_W+3}], s{S_T0+8} offen")
    A(f"buffer_store_dwordx4 v[{O+4}:{O+7}], v52, s[{SRD_W}:{SRD_W+3}], s{S_T0+8} offen offset:32")

@add_method
def dump_lds(self, lds_off, nbytes, ws_off_per_wg):
    A=self.A
    A("s_waitcnt vmcnt(0) lgkmcnt(0)")
    A("s_barrier")
    A(f"v_lshlrev_b32 v48, 4, v{V_T}")
    A(f"s_mul_i32 s{S_T0}, s{S_WG}, {ws_off_per_wg}")
    A(f"s_add_u32 s{S_T0}, s{S_T0}, {WS_DBG}")
    for k in range(nbytes//4096):
        A(f"v_add_u32 v49, {lds_off+k*4096}, v48")
        A("ds_read_b128 v[52:55], v49")
        A("s_waitcnt lgkmcnt(0)")
        A(f"s_add_u32 s{S_T0+1}, s{S_T0}, {k*4096}")
        A(f"buffer_store_dwordx4 v[52:55], v48, s[{SRD_WS}:{SRD_WS+3}], s{S_T0+1} offen")
        A("s_waitcnt vmcnt(0)")

@add_method
def dump_regs(self, first, n, kind='v'):
    A=self.A
    A("s_waitcnt vmcnt(0) lgkmcnt(0)")
    A("s_nop 15")
    A(f"v_lshlrev_b32 v3, 2, v{V_T}")
    A(f"s_mul_i32 s{S_T0}, s{S_WG}, {n*1024}")
    A(f"s_add_u32 s{S_T0}, s{S_T0}, {WS_DBG}")
    for k in range(n):
        A(f"s_add_u32 s{S_T0+1}, s{S_T0}, {k*1024}")
        A(f"buffer_store_dword {kind}{first+k}, v3, s[{SRD_WS}:{SRD_WS+3}], s{S_T0+1} offen")
    A("s_waitcnt vmcnt(0)")

@add_method
def build(self):
    A=self.A
    stop=self.stop_after
    def done(name):
        return stop==name
    self.prologue()
    self.phase0_loads()
    self.stamp('index done')
    self.xjob_post()
    self.stamp('xjob post')
    self.kgen_setup()
    self.stamp('kgen setup')
    self.kgen_gen()
    self.stamp('kgen')
    if done('kx'):
        self.kexpand()
        A("s_waitcnt lgkmcnt(0)")
        A("s_barrier")
        self.dump_lds(LDS_KX, 36864, 36864); return self.finish()
    self.granule_wait()
    self.stamp('x flags')
    self.xt_loads()
    self.kexpand()
    self.stamp('kexpand')
    self.stats_consume()
    self.stamp('u ready')
    if done('u'):
        self.dump_lds(LDS_U-LDS_U%16, 20480, 20480); return self.finish()
    self.conv()
    self.stamp('conv done')
    self.sync_all()
    self.stamp('sync2 arrive')
    self.flag_wait(0x3fff)
    self.stamp('w1 flags')
    self.w1_loads(0,W1_PRE)
    self.stamp('cs done')
    self.sync_all_wait()
    self.stamp('sync2 passed')
    if done('w1'):
        self.dump_regs(0,224,'a'); return self.finish()
    if done('conv'): return self.finish()
    self.gemm1()
    self.stamp('gemm1 done')
    self.gemm2()
    return self.finish()

@add_method
def finish(self):
    A=self.A
    if self.ts:
        A("s_waitcnt vmcnt(0)")
        self.stamp('end')
        l=self.lab()
        A(f"s_cmp_lg_u32 s{S_W}, {self.tswave}")
        A(f"s_cbranch_scc1 {l}")
        A("v_mov_b32 v4, 0")
        for k in range(self.nts): A(f"v_writelane_b32 v4, s{86+k}, {k}")
        A(f"v_lshlrev_b32 v5, 2, v{V_LANE}")
        A(f"s_lshl_b32 s{S_T0}, s{S_WG}, 8")
        A(f"s_add_u32 s{S_T0}, s{S_T0}, {WS_TS}")
        A(f"buffer_store_dword v4, v5, s[{SRD_WS}:{SRD_WS+3}], s{S_T0} offen")
        l2=self.lab()
        A(f"s_cmp_lg_u32 s{S_WG}, 0")
        A(f"s_cbranch_scc1 {l2}")
        A(f"global_store_dword v5, v4, s[{S_DBG}:{S_DBG+1}]")
        A(f"{l2}:")
        A(f"{l}:")
    A("L_end:")
    A("s_endpgm")
    self.helper()
    A("L_codeend:")
    body, nfix, probs = hazard_fix(A.L)
    for p in probs: print("HAZARD(backedge):", p, file=sys.stderr)
    errs = wait_lint(body)
    for e in errs[:40]: print("WAITLINT:", e, file=sys.stderr)
    hdr = [
     "; Fused preLN + S4D long-conv + preLN + SwiGLU FFN: one persistent launch, 224 main + 32 weight re-layout workgroups",
     f"; @launch grid=({NGRID},1,1) block=(256,1,1) lds={LDS_TOTAL}",
     '.amdgcn_target "amdgcn-amd-amdhsa--gfx950"',
     ".text", f".globl {KNAME}", ".p2align 8", f".type {KNAME},@function", f"{KNAME}:"]
    ftr = ['.section .rodata,"a"', ".p2align 6", f".amdhsa_kernel {KNAME}",
     "  .amdhsa_next_free_vgpr 512", "  .amdhsa_next_free_sgpr 102", "  .amdhsa_accum_offset 256",
     "  .amdhsa_group_segment_fixed_size 0", "  .amdhsa_kernarg_size 112", "  .amdhsa_user_sgpr_count 2",
     "  .amdhsa_user_sgpr_kernarg_segment_ptr 1", "  .amdhsa_system_sgpr_workgroup_id_x 1",
     ".end_amdhsa_kernel"]
    self.nfix=nfix
    return "\n".join(hdr+body+ftr)+"\n"

if __name__=="__main__":
    import argparse
    ap=argparse.ArgumentParser(); ap.add_argument("-o",default="out.s"); ap.add_argument("--stop",default=None); ap.add_argument("--mimic",type=int,default=2); ap.add_argument("--ts",action="store_true"); ap.add_argument("--perturb",type=float,default=0.0); ap.add_argument("--tsset",default="main"); ap.add_argument("--cyc",action="store_true"); ap.add_argument("--tswave",type=int,default=0); ap.add_argument("--hts",action="store_true")
    a=ap.parse_args()
    g=Gen(stop_after=a.stop, mimic=a.mimic, ts=a.ts, perturb=a.perturb)
    if a.tsset=='main': g.tsonly=set(['xjob post','kgen','x flags','u ready','conv done','sync2 arrive','w1 flags','cs done','sync2 passed','gemm1 done','sync3 arrive','early done','late ready','end'])
    if a.cyc: g.tsop='s_memtime'
    g.tswave=a.tswave; g.hts=a.hts
    if a.tsset=='g': g.tsonly=set(['sync2 passed','x0','pass0','pass1','pass2','pass3','gemm1 done','sync3 arrive','early done','late ready','late done','red barrier','end'])
    if a.tsset=='start': g.tsonly=set(['kernarg','all issued','index done','xjob post','kgen setup','gen done','wjob post','kmfma','kbar1','kgen','x flags','kexpand','xt landed','u ready','end'])
    txt=g.build()
    open(a.o,"w").write(txt)
    print("wrote",a.o,len(txt.splitlines()),"lines; nops inserted:",g.nfix, "stamps:", g.tsnames, file=sys.stderr)
```

```python
import sys, math
sys.path.insert(0, "gen")
from asmlib import *

KNAME = "sequential_preLN__ssm_conv_s4d__swiglu_ffn__prompt_kernel"
L_, D_, N_, F_ = 2048, 448, 256, 1792
NWG = 224
NGRID = 256

WS_EPOCH = 0
WS_CNT2  = 4096
WS_CNT3  = 12288
WS_STATS = 32768
WS_HT    = 1 << 20
WS_M     = 4 << 20
WS_ST2   = 49152
WS_JF    = 65536
WS_XF    = 196608
WS_CSF   = 131072
WS_CS    = 294912
WS_XT    = 12 << 20
WS_WF1   = 18 << 20
WS_WFD   = 22 << 20
WS_DBG   = 32 << 20
WS_TS    = 16 << 20
WS_SIZE  = 268435456

KG_PITCH = 528
KG_WAVE  = 53 * KG_PITCH
LDS_KX   = 112000
KX_COPY  = 4160
KX_CH    = 4 * KX_COPY
LDS_U    = LDS_KX + 2 * KX_CH
U_CH     = 4608
LDS_XT   = LDS_U + 2 * U_CH
XT_CH    = 4096
LDS_TOTAL = 163840
assert LDS_XT + 2 * XT_CH <= LDS_TOTAL
LDS_JOB = LDS_KX
LDS_CSP = LDS_KX + 32768
assert LDS_CSP + 512 <= LDS_U

S_WG=2
S_X=8; S_LOGA=10; S_AIM=12; S_CR=14; S_CI=16; S_LOGDT=18; S_DSK=20; S_BX=22
S_WGT=24; S_WUP=26; S_WD=28; S_OUT=30; S_DBG=32; S_WS=34
SRD_X=36; SRD_WS=40; SRD_W=44; SRD_W2=48
S_W=52
S_CH=53
S_NH=54
S_D0=55
S_TAG=56
S_I=57; S_J=58
S_T0=60
S_YS=80
S_DSKV=81
S_DT=82
S_W1I=83
S_JDST=84
S_JL=85
S_GW=59
S_JE=78
S_JK=79

LOG2E = 1.4426950408889634
INV2PI = 0.15915494309189535
def f2u(x):
    import struct
    return struct.unpack('<I', struct.pack('<f', x))[0]
def fl(x): return hex(f2u(x))

class Gen:
    def __init__(self, stop_after=None, dbg=False, mimic=2, ts=False, perturb=0.0):
        self.A = Asm(); self.stop_after = stop_after; self.dbg = dbg; self.mimic = mimic
        self.nlab = 0; self.ts=ts; self.nts=0; self.tsnames=[]; self.perturb=perturb; self.tsonly=None; self.xmode='gather'; self.wpf=2; self.w1pf=0; self.tsop='s_memrealtime'; self.tswave=0
    def stamp(self, name):
        if not self.ts: return
        if self.tsonly is not None and name not in self.tsonly: return
        k=self.nts; self.nts+=1; self.tsnames.append(name); assert k<16
        A=self.A
        A("s_waitcnt lgkmcnt(0)")
        A(f"{self.tsop} s[6:7]")
        A("s_waitcnt lgkmcnt(0)")
        A(f"s_mov_b32 s{86+k}, s6")
    def lab(self, p='L'):
        self.nlab += 1; return f"{p}_{self.nlab}"

    def prologue(self):
        A = self.A
        A(f"s_cmp_ge_u32 s{S_WG}, {NGRID}")
        A("s_cbranch_scc1 L_end")
        if self.ts:
            A(f"{self.tsop} s[6:7]")
            A("s_waitcnt lgkmcnt(0)")
            A("s_mov_b32 s86, s6"); self.nts=1; self.tsnames.append('start')
        A(f"s_load_dwordx16 s[8:23], s[0:1], 0")
        A(f"s_load_dwordx8 s[24:31], s[0:1], 64")
        A(f"s_load_dwordx4 s[32:35], s[0:1], 96")
        A("s_getpc_b64 s[4:5]")
        A("L_pc:")
        A("v_lshlrev_b32 v1, 7, v0")
        A("v_add_u32 v2, 0x8000, v1")
        A("v_min_u32 v1, (L_codeend-L_pc-4), v1")
        A("global_load_dword v255, v1, s[4:5]")
        A("v_min_u32 v2, (L_codeend-L_pc-4), v2")
        A("global_load_dword v254, v2, s[4:5]")
        A("v_lshrrev_b32 v2, 6, v0")
        A("v_and_b32 v1, 63, v0")
        A(f"v_readfirstlane_b32 s{S_W}, v2")
        A(f"s_lshr_b32 s{S_CH}, s{S_W}, 1")
        A(f"s_and_b32 s{S_NH}, s{S_W}, 1")
        A(f"s_cmp_ge_u32 s{S_WG}, {NWG}")
        A("s_cbranch_scc1 L_helper")
        A(f"s_and_b32 s{S_T0}, s{S_WG}, 7")
        A(f"s_mul_i32 s{S_T0}, s{S_T0}, 28")
        A(f"s_lshr_b32 s{S_T0+1}, s{S_WG}, 3")
        A(f"s_add_u32 s{S_T0}, s{S_T0}, s{S_T0+1}")
        A(f"s_lshl_b32 s{S_D0}, s{S_T0}, 1")
        A(f"s_mul_i32 s{S_T0+2}, s{S_T0+1}, 37")
        A(f"s_lshr_b32 s{S_T0+2}, s{S_T0+2}, 8")
        A(f"s_mul_i32 s{S_T0+3}, s{S_T0+2}, 7")
        A(f"s_sub_u32 s{S_T0+3}, s{S_T0+1}, s{S_T0+3}")
        A(f"s_and_b32 s{S_T0+4}, s{S_WG}, 7")
        A(f"s_lshr_b32 s{S_T0+5}, s{S_T0+4}, 1")
        A(f"s_lshl_b32 s{S_T0+5}, s{S_T0+5}, 2")
        A(f"s_add_u32 s{S_I}, s{S_T0+5}, s{S_T0+2}")
        A(f"s_and_b32 s{S_T0+4}, s{S_T0+4}, 1")
        A(f"s_mul_i32 s{S_T0+4}, s{S_T0+4}, 7")
        A(f"s_add_u32 s{S_J}, s{S_T0+4}, s{S_T0+3}")

def q7check():
    for q in range(28): assert (q*37)>>8 == q//7, q
q7check()

def add_method(f):
    setattr(Gen, f.__name__, f); return f

V_LANE=1
V_T=0
V_ZERO=2
V_XG=8
V_OFF=16
V_EP=27
V_PA=28
V_SX=36
V_TMP=48

@add_method
def phase0_loads(self):
    A=self.A
    A("s_waitcnt lgkmcnt(0)")
    self.stamp('kernarg')
    A(f"s_mov_b32 s{SRD_X}, s{S_X}\ns_mov_b32 s{SRD_X+1}, s{S_X+1}\ns_mov_b32 s{SRD_X+2}, {L_*D_*2}\ns_mov_b32 s{SRD_X+3}, 0x20000")
    A(f"s_mov_b32 s{SRD_WS}, s{S_WS}\ns_mov_b32 s{SRD_WS+1}, s{S_WS+1}\ns_mov_b32 s{SRD_WS+2}, {WS_SIZE}\ns_mov_b32 s{SRD_WS+3}, 0x20000")
    A(f"v_mov_b32 v{V_ZERO}, 0")
    self.job_roles()
    l=self.lab()
    A(f"s_cmp_lg_u32 s{S_WG}, {NWG-1}")
    A(f"s_cbranch_scc1 {l}")
    self.zero_counters_body()
    A(f"{l}:")
    self.xjob_issue()
    A(f"s_add_u32 s{S_T0+3}, s{S_D0}, s{S_CH}")
    A(f"s_lshl_b32 s{S_T0+3}, s{S_T0+3}, 9")
    A(f"s_lshl_b32 s{S_T0+4}, s{S_NH}, 8")
    A(f"s_add_u32 s{S_T0+3}, s{S_T0+3}, s{S_T0+4}")
    A(f"v_lshl_add_u32 v8, v{V_LANE}, 2, s{S_T0+3}")
    A(f"v_xor_b32 v9, 256, v8")
    A(f"global_load_dword v{V_PA}, v8, s[{S_LOGA}:{S_LOGA+1}]")
    A(f"global_load_dword v{V_PA+1}, v8, s[{S_AIM}:{S_AIM+1}]")
    A(f"global_load_dword v{V_PA+2}, v8, s[{S_CR}:{S_CR+1}]")
    A(f"global_load_dword v{V_PA+3}, v8, s[{S_CI}:{S_CI+1}]")
    A(f"global_load_dword v{V_PA+4}, v9, s[{S_CR}:{S_CR+1}]")
    A(f"global_load_dword v{V_PA+5}, v9, s[{S_CI}:{S_CI+1}]")
    A(f"s_lshl_b32 s{S_T0+4}, s{S_D0}, 1")
    A(f"s_load_dword s{S_DT}, s[{S_LOGDT}:{S_LOGDT+1}], s{S_T0+4}")
    A(f"s_load_dword s{S_DSKV}, s[{S_DSK}:{S_DSK+1}], s{S_T0+4}")
    A(f"global_load_dword v{V_EP}, v{V_ZERO}, s[{S_WS}:{S_WS+1}] sc1")
    if self.xmode=='gather':
        self.gl=self.gather_items(); self.gi=0
        for _ in range(2): A(self.gl[self.gi]); self.gi+=1
    if self.wpf:
        lpf=self.lab()
        A(f"s_cmp_ge_u32 s{S_W}, {self.wpf}")
        A(f"s_cbranch_scc1 {lpf}")
        A(f"s_cmp_eq_u32 s{S_W}, 0")
        A(f"s_cselect_b32 s{SRD_W}, s{S_WGT}, s{S_WUP}")
        A(f"s_cselect_b32 s{SRD_W+1}, s{S_WGT+1}, s{S_WUP+1}")
        A(f"s_cmp_eq_u32 s{S_W}, 2")
        A(f"s_cselect_b32 s{SRD_W}, s{S_WD}, s{SRD_W}")
        A(f"s_cselect_b32 s{SRD_W+1}, s{S_WD+1}, s{SRD_W+1}")
        A(f"s_mov_b32 s{SRD_W+2}, {D_*F_*2}")
        A(f"s_mov_b32 s{SRD_W+3}, 0x20000")
        A(f"v_min_u32 v5, 55, v{V_LANE}")
        A(f"v_lshlrev_b32 v5, 7, v5")
        A(f"s_mul_i32 s{S_T0}, s{S_WG}, {56*128}")
        A(f"buffer_load_dword v253, v5, s[{SRD_W}:{SRD_W+3}], s{S_T0} offen")
        A(f"{lpf}:")
    self.stamp('all issued')
    A(f"s_mul_i32 s{S_T0+5}, s{S_W}, {KG_WAVE}")
    A(f"v_and_b32 v182, 31, v{V_LANE}")
    A(f"v_lshrrev_b32 v183, 5, v{V_LANE}")
    A(f"v_lshlrev_b32 v176, 4, v182")
    A(f"v_lshl_add_u32 v176, v183, 3, v176")
    A(f"v_add_u32 v176, s{S_T0+5}, v176")
    A(f"v_lshlrev_b32 v177, 3, v182")
    A(f"v_add_u32 v177, 512, v177")
    A(f"v_lshlrev_b32 v178, 2, v182")
    A(f"v_add_u32 v178, 768, v178")
    A(f"v_cmp_eq_u32 vcc, 1, v183")
    A(f"v_cndmask_b32 v177, v177, v178, vcc")
    A(f"v_add_u32 v177, s{S_T0+5}, v177")
    A(f"v_mov_b32 v178, 4")
    A(f"v_mov_b32 v179, 128")
    A(f"v_cndmask_b32 v178, v178, v179, vcc")
    A(f"v_add_u32 v178, v177, v178")
    A(f"v_lshlrev_b32 v179, 1, v182")
    A(f"v_lshl_add_u32 v179, v183, 8, v179")
    A(f"v_add_u32 v179, s{S_T0+5}, v179")
    A(f"v_lshlrev_b32 v48, 3, v{V_T}")
    for x in range(11):
        o=V_OFF+x
        A(f"v_sub_u32 v49, {2047-x}, v48")
        A(f"v_cvt_f32_i32 v50, v49")
        A(f"v_cvt_pk_bf16_f32 v50, v50, v50")
        A(f"v_and_b32 v50, 0xffff, v50")
        A(f"v_subrev_u32 v50, 17024, v50")
        A(f"v_cmp_gt_i32 vcc, 128, v49")
        A(f"v_cndmask_b32 v50, v50, v49, vcc")
        if x>=8:
            A(f"v_cmp_gt_i32 vcc, 0, v49")
            A(f"v_mov_b32 v51, 768")
            A(f"v_cndmask_b32 v50, v50, v51, vcc")
        A(f"v_lshlrev_b32 v{o}, 1, v50")

NWJ = 588
LDS_XB = LDS_JOB + 3*8192

@add_method
def job_roles(self):
    A=self.A
    A(f"s_mul_i32 s{S_T0}, s{S_W}, 224")
    A(f"s_add_u32 s{S_GW}, s{S_T0}, s{S_WG}")
    A(f"s_lshl_b32 s{S_JL}, s{S_W}, 13")
    A(f"s_add_u32 s{S_JL}, s{S_JL}, {LDS_JOB}")

V_SR=64
@add_method
def xjob_issue(self):
    A=self.A
    A(f"v_bfe_u32 v50, v{V_LANE}, 4, 1")
    A(f"v_lshrrev_b32 v51, 5, v{V_LANE}")
    A(f"v_mul_u32_u24 v51, {224*8}, v51")
    A(f"v_add_u32 v50, v50, v51")
    A(f"s_lshl_b32 s{S_T0}, s{S_WG}, 3")
    A(f"s_lshl_b32 s{S_T0+1}, s{S_W}, 1")
    A(f"s_add_u32 s{S_T0}, s{S_T0}, s{S_T0+1}")
    A(f"v_add_u32 v50, s{S_T0}, v50")
    A(f"v_mul_u32_u24 v50, 896, v50")
    A(f"v_and_b32 v51, 15, v{V_LANE}")
    A(f"v_lshl_add_u32 v50, v51, 4, v50")
    A(f"v_mov_b32 v52, 0x10000000")
    A(f"v_cmp_gt_u32 vcc, 8, v51")
    A(f"v_cndmask_b32 v52, v52, v50, vcc")
    for k in range(3):
        A(f"buffer_load_dwordx4 v[{V_SR+4*k}:{V_SR+4*k+3}], v50, s[{SRD_X}:{SRD_X+3}], 0 offen offset:{256*k}")
    A(f"buffer_load_dwordx4 v[{V_SR+12}:{V_SR+15}], v52, s[{SRD_X}:{SRD_X+3}], 0 offen offset:768")

@add_method
def gather_items(self):
    A=self.A
    A(f"s_lshl_b32 s{S_T0+14}, s{S_D0}, 1")
    A(f"s_movk_i32 s{S_T0+15}, 7168")
    A(f"v_mul_lo_u32 v4, v{V_T}, s{S_T0+15}")
    A(f"v_add_u32 v4, s{S_T0+14}, v4")
    A(f"s_movk_i32 s{S_T0+15}, 4480")
    out=[]
    for j in range(8):
        if j<5: out.append(f"buffer_load_dword v{V_XG+j}, v4, s[{SRD_X}:{SRD_X+3}], 0 offen offset:{j*896}")
        else:   out.append(f"buffer_load_dword v{V_XG+j}, v4, s[{SRD_X}:{SRD_X+3}], s{S_T0+15} offen offset:{(j-5)*896}")
    return out

@add_method
def xjob_post(self):
    A=self.A
    gather=(self.xmode=='gather')
    if self.wpf:
        lw=self.lab(); lc=self.lab()
        A(f"s_cmp_ge_u32 s{S_W}, {self.wpf}")
        A(f"s_cbranch_scc1 {lw}")
        A("s_waitcnt vmcnt(3) lgkmcnt(0)")
        A(f"s_branch {lc}")
        A(f"{lw}:")
        A("s_waitcnt vmcnt(2) lgkmcnt(0)")
        A(f"{lc}:")
    else:
        A(f"s_waitcnt vmcnt({2 if gather else 0}) lgkmcnt(0)")
    A(f"v_readfirstlane_b32 s{S_TAG}, v{V_EP}")
    A(f"s_add_u32 s{S_TAG}, s{S_TAG}, 0x9E3779B9")
    J=V_SR
    if not gather:
        A(f"v_bfe_u32 v50, v{V_LANE}, 4, 1")
        A(f"s_lshl_b32 s{S_T0}, s{S_W}, 1")
        A(f"v_add_u32 v50, s{S_T0}, v50")
        A(f"v_mul_u32_u24 v50, 896, v50")
        A(f"v_lshrrev_b32 v51, 5, v{V_LANE}")
        A(f"v_mul_u32_u24 v51, 7168, v51")
        A(f"v_add_u32 v50, v50, v51")
        A(f"v_and_b32 v51, 15, v{V_LANE}")
        A(f"v_lshl_add_u32 v50, v51, 4, v50")
        A(f"v_add_u32 v50, {LDS_XB}, v50")
        for k in range(3): A(f"ds_write_b128 v50, v[{J+4*k}:{J+4*k+3}] offset:{k*256}")
        A("s_mov_b32 exec_lo, 0x00ff00ff\ns_mov_b32 exec_hi, 0x00ff00ff")
        A(f"ds_write_b128 v50, v[{J+12}:{J+15}] offset:768")
        A("s_mov_b64 exec, -1")
    A("v_mov_b32 v54, 0x3f803f80")
    for i in range(16):
        c1="0" if i<2 else f"v{56+(i&1)}"; c2="0" if i<2 else f"v{58+(i&1)}"
        A(f"v_dot2_f32_bf16 v{56+(i&1)}, v{J+i}, v54, {c1}")
        A(f"v_dot2_f32_bf16 v{58+(i&1)}, v{J+i}, v{J+i}, {c2}")
    A(f"v_bfe_u32 v42, v{V_LANE}, 4, 1")
    A(f"v_lshlrev_b32 v42, 3, v42")
    A(f"v_lshrrev_b32 v39, 5, v{V_LANE}")
    A(f"v_mul_u32_u24 v39, {224*64}, v39")
    A(f"v_add_u32 v42, v42, v39")
    A(f"s_lshl_b32 s{S_T0+10}, s{S_WG}, 6")
    A(f"s_lshl_b32 s{S_T0+9}, s{S_W}, 4")
    A(f"s_add_u32 s{S_T0+10}, s{S_T0+10}, s{S_T0+9}")
    A(f"s_add_u32 s{S_T0+10}, s{S_T0+10}, {WS_STATS}")
    A("v_add_f32 v56, v56, v57\nv_add_f32 v57, v58, v59")
    for mode in ["row_shr:1","row_shr:2","row_shr:4","row_shr:8"]:
        A(f"v_add_f32_dpp v56, v56, v56 {mode} row_mask:0xf bank_mask:0xf bound_ctrl:0"); A(f"v_add_f32_dpp v57, v57, v57 {mode} row_mask:0xf bank_mask:0xf bound_ctrl:0")
    A(f"v_mul_f32 v56, {fl(1.0/448)}, v56")
    A(f"v_mul_f32 v57, {fl(1.0/448)}, v57")
    A("v_fma_f32 v57, -v56, v56, v57")
    A("v_max_f32 v57, 0, v57")
    A("v_cvt_pk_bf16_f32 v57, v57, v57")
    A("v_lshlrev_b32 v57, 16, v57")
    A(f"v_add_f32 v57, {fl(1e-5)}, v57")
    A("v_cvt_pk_bf16_f32 v57, v57, v57")
    A("v_lshlrev_b32 v57, 16, v57")
    A("v_sqrt_f32 v57, v57")
    A(f"v_mov_b32 v41, s{S_TAG}")
    A(f"v_cvt_pk_bf16_f32 v40, v57, v56")
    A(f"s_cmp_lt_u32 s{S_WG}, 32")
    A(f"s_cselect_b32 exec_hi, 0x80008000, 0")
    A("s_mov_b32 exec_lo, 0x80008000")
    A(f"buffer_store_dwordx2 v[40:41], v42, s[{SRD_WS}:{SRD_WS+3}], s{S_T0+10} offen sc1")
    A("s_mov_b64 exec, -1")
    if gather: return
    A("s_waitcnt lgkmcnt(0)")
    A("s_barrier")
    X=80
    A(f"v_bfe_u32 v52, v{V_LANE}, 2, 2")
    A(f"v_mul_u32_u24 v52, 896, v52")
    A(f"v_lshrrev_b32 v53, 4, v{V_LANE}")
    A(f"v_lshl_add_u32 v52, v53, 5, v52")
    A(f"v_and_b32 v53, 3, v{V_LANE}")
    A(f"v_lshl_add_u32 v52, v53, 3, v52")
    A(f"s_lshl_b32 s{S_T0+1}, s{S_W}, 7")
    A(f"s_add_u32 s{S_T0+1}, s{S_T0+1}, {LDS_XB}")
    A(f"v_add_u32 v52, s{S_T0+1}, v52")
    for k in range(2):
        o=7168*k; x=X+8*k
        A(f"ds_read_b64_tr_b16 v[{x}:{x+1}], v52 offset:{o}")
        A(f"ds_read_b64_tr_b16 v[{x+2}:{x+3}], v52 offset:{o+4*896}")
        A(f"ds_read_b64_tr_b16 v[{x+4}:{x+5}], v52 offset:{o+512}")
        A(f"ds_read_b64_tr_b16 v[{x+6}:{x+7}], v52 offset:{o+512+4*896}")
    A(f"v_lshlrev_b32 v53, 4, v{V_LANE}")
    A(f"s_mul_i32 s{S_T0+2}, s{S_WG}, 7168")
    A(f"s_lshl_b32 s{S_T0+3}, s{S_W}, 10")
    A(f"s_add_u32 s{S_T0+2}, s{S_T0+2}, s{S_T0+3}")
    A(f"s_add_u32 s{S_T0+2}, s{S_T0+2}, {WS_XT}")
    def st(x,extra):
        A(f"s_add_u32 s{S_T0+3}, s{S_T0+2}, {extra}")
        A(f"buffer_store_dwordx4 v[{x}:{x+3}], v53, s[{SRD_WS}:{SRD_WS+3}], s{S_T0+3} offen sc1")
    l3=self.lab(); l32=self.lab()
    A("s_waitcnt lgkmcnt(6)")
    st(X,0)
    A(f"s_cmp_eq_u32 s{S_W}, 3")
    A(f"s_cbranch_scc1 {l3}")
    A("s_waitcnt lgkmcnt(4)")
    st(X+4,4096)
    A(f"{l3}:")
    A(f"s_cmp_ge_u32 s{S_WG}, 32")
    A(f"s_cbranch_scc1 {l32}")
    A("s_waitcnt lgkmcnt(0)")
    st(X+8,224*7168)
    A(f"s_cmp_eq_u32 s{S_W}, 3")
    A(f"s_cbranch_scc1 {l32}")
    st(X+12,224*7168+4096)
    A(f"{l32}:")
    A("s_waitcnt lgkmcnt(0)")

@add_method
def xflag_publish(self):
    A=self.A
    A("s_waitcnt vmcnt(0)")
    A(f"s_lshl_b32 s{S_T0+10}, s{S_WG}, 2")
    A(f"s_add_u32 s{S_T0+10}, s{S_T0+10}, s{S_W}")
    A(f"s_lshl_b32 s{S_T0+10}, s{S_T0+10}, 6")
    A(f"s_add_u32 s{S_T0+10}, s{S_T0+10}, {WS_XF}")
    A(f"v_mul_u32_u24 v42, {224*4*64}, v{V_LANE}")
    A(f"v_mov_b32 v41, s{S_TAG}")
    A(f"s_cmp_lt_u32 s{S_WG}, 32")
    A(f"s_cselect_b32 exec_lo, 3, 1")
    A("s_mov_b32 exec_hi, 0")
    A(f"buffer_store_dword v41, v42, s[{SRD_WS}:{SRD_WS+3}], s{S_T0+10} offen sc1")
    A("s_mov_b64 exec, -1")

@add_method
def zero_counters_body(self):
    A=self.A; l=self.lab()
    A(f"s_cmp_lg_u32 s{S_W}, 3")
    A(f"s_cbranch_scc1 {l}")
    A(f"v_lshlrev_b32 v3, 7, v{V_LANE}")
    A(f"s_mov_b32 s{S_T0+5}, {WS_CNT2}")
    A(f"buffer_store_dword v{V_ZERO}, v3, s[{SRD_WS}:{SRD_WS+3}], s{S_T0+5} offen sc1")
    A(f"s_mov_b32 s{S_T0+5}, {WS_CNT3}")
    A(f"buffer_store_dword v{V_ZERO}, v3, s[{SRD_WS}:{SRD_WS+3}], s{S_T0+5} offen sc1")
    A(f"{l}:")

S_HY=64; S_HL=65; S_HD=66; S_HE=67; S_HK=68; S_HRET=70
S_HSTR=69; S_HG=72; S_HP=73
@add_method
def wjob_params(self):
    A=self.A; ld=self.lab('Lwd'); lc=self.lab('Lwc'); T=S_T0
    A(f"s_cmp_ge_u32 s{S_HY}, 392")
    A(f"s_cbranch_scc1 {ld}")
    A(f"s_cmp_ge_u32 s{S_HY}, 196")
    A(f"s_cselect_b32 s{SRD_W}, s{S_WUP}, s{S_WGT}")
    A(f"s_cselect_b32 s{SRD_W+1}, s{S_WUP+1}, s{S_WGT+1}")
    A(f"s_cselect_b32 s{T+1}, 1, 0")
    A(f"s_mul_i32 s{T+2}, s{T+1}, 196")
    A(f"s_sub_u32 s{T+2}, s{S_HY}, s{T+2}")
    A(f"s_mul_i32 s{S_HP}, s{T+2}, 9363")
    A(f"s_lshr_b32 s{S_HP}, s{S_HP}, 16")
    A(f"s_mul_i32 s{S_HG}, s{S_HP}, 7")
    A(f"s_sub_u32 s{S_HG}, s{T+2}, s{S_HG}")
    A(f"s_movk_i32 s{S_HSTR}, 3584")
    A(f"s_lshl_b32 s{T+2}, s{S_HP}, 2")
    A(f"s_add_u32 s{T+2}, s{T+2}, s{T+1}")
    A(f"s_mul_i32 s{T+2}, s{T+2}, 28")
    A(f"s_lshl_b32 s{T+3}, s{S_HG}, 2")
    A(f"s_add_u32 s{T+2}, s{T+2}, s{T+3}")
    A(f"s_lshl_b32 s{T+2}, s{T+2}, 10")
    A(f"s_add_u32 s{S_HD}, s{T+2}, {WS_WF1}")
    A(f"s_mov_b32 s{S_HE}, {56*1024}")
    A(f"s_mov_b32 s{S_HK}, 4")
    A(f"s_branch {lc}")
    A(f"{ld}:")
    A(f"s_mov_b32 s{SRD_W}, s{S_WD}")
    A(f"s_mov_b32 s{SRD_W+1}, s{S_WD+1}")
    A(f"s_sub_u32 s{T+2}, s{S_HY}, 392")
    A(f"s_mul_i32 s{S_HP}, s{T+2}, 2341")
    A(f"s_lshr_b32 s{S_HP}, s{S_HP}, 16")
    A(f"s_mul_i32 s{S_HG}, s{S_HP}, 28")
    A(f"s_sub_u32 s{S_HG}, s{T+2}, s{S_HG}")
    A(f"s_movk_i32 s{S_HSTR}, 896")
    A(f"s_mul_i32 s{T+2}, s{S_HP}, 224")
    A(f"s_lshl_b32 s{T+3}, s{S_HG}, 2")
    A(f"s_add_u32 s{T+2}, s{T+2}, s{T+3}")
    A(f"s_lshl_b32 s{T+2}, s{T+2}, 10")
    A(f"s_add_u32 s{S_HD}, s{T+2}, {WS_WFD}")
    A(f"s_mov_b32 s{S_HE}, {112*1024}")
    A(f"s_mov_b32 s{S_HK}, 8")
    A(f"{lc}:")

for _u in range(196): assert (_u*9363)>>16 == _u//7
for _u in range(196): assert (_u*2341)>>16 == _u//28

@add_method
def helper(self):
    A=self.A; T=S_T0
    A("L_helper:")
    hs=[0]
    def hstamp():
        if not (self.ts and getattr(self,'hts',False)): return
        A(f"{self.tsop} s[6:7]"); A("s_waitcnt lgkmcnt(0)"); A(f"v_writelane_b32 v200, s6, {hs[0]}"); hs[0]+=1
    A("s_waitcnt lgkmcnt(0)")
    if self.ts and getattr(self,'hts',False):
        A("v_mov_b32 v200, 0"); A("v_writelane_b32 v200, s86, 0"); hs[0]=1
    hstamp()
    A(f"s_mov_b32 s{SRD_WS}, s{S_WS}\ns_mov_b32 s{SRD_WS+1}, s{S_WS+1}\ns_mov_b32 s{SRD_WS+2}, {WS_SIZE}\ns_mov_b32 s{SRD_WS+3}, 0x20000")
    A(f"s_mov_b32 s{SRD_W+2}, {D_*F_*2}")
    A(f"s_mov_b32 s{SRD_W+3}, 0x20000")
    A(f"v_mov_b32 v{V_ZERO}, 0")
    A(f"global_load_dword v{V_EP}, v{V_ZERO}, s[{S_WS}:{S_WS+1}] sc1")
    A(f"s_sub_u32 s{S_GW}, s{S_WG}, {NWG}")
    A(f"s_lshl_b32 s{S_GW}, s{S_GW}, 2")
    A(f"s_add_u32 s{S_GW}, s{S_GW}, s{S_W}")
    A(f"s_mul_i32 s{S_JL}, s{S_W}, 40960")
    A(f"v_lshrrev_b32 v40, 3, v{V_LANE}")
    A(f"v_bfe_u32 v49, v{V_LANE}, 4, 1")
    A(f"v_lshlrev_b32 v49, 2, v49")
    A(f"v_and_b32 v50, 7, v{V_LANE}")
    A(f"v_xor_b32 v49, v49, v50")
    A(f"v_lshlrev_b32 v41, 4, v49")
    A(f"v_bfe_u32 v51, v{V_LANE}, 2, 2")
    A(f"v_lshlrev_b32 v42, 7, v51")
    A(f"v_lshrrev_b32 v51, 1, v51")
    A(f"v_lshlrev_b32 v51, 2, v51")
    A(f"v_bfe_u32 v52, v{V_LANE}, 4, 1")
    A(f"v_bfe_u32 v53, v{V_LANE}, 1, 1")
    A(f"v_lshl_add_u32 v52, v52, 1, v53")
    A(f"v_xor_b32 v51, v51, v52")
    A(f"v_lshl_add_u32 v42, v51, 4, v42")
    A(f"v_and_b32 v51, 1, v{V_LANE}")
    A(f"v_lshl_add_u32 v42, v51, 3, v42")
    A(f"v_lshrrev_b32 v43, 5, v{V_LANE}")
    A(f"v_lshlrev_b32 v54, 4, v{V_LANE}")
    A(f"v_mul_u32_u24 v58, {2*896}, v43")
    A(f"v_and_b32 v59, 31, v{V_LANE}")
    A(f"v_lshl_add_u32 v58, v59, 2, v58")
    def call(lbl):
        A(f"s_getpc_b64 s[{T+14}:{T+15}]")
        r=self.lab('Lr')
        A(f"{r}:")
        A(f"s_add_u32 s{T+14}, s{T+14}, ({lbl}-{r})")
        A(f"s_addc_u32 s{T+15}, s{T+15}, (({lbl}-{r})>>31)")
        A(f"s_swappc_b64 s[{S_HRET}:{S_HRET+1}], s[{T+14}:{T+15}]")
    NS=9
    def setjob_y(expr_add, clamp):
        A(f"s_add_u32 s{S_HY}, s{S_GW}, {expr_add}")
        A(f"s_min_u32 s{S_HY}, s{S_HY}, {clamp}")
    def job(n,kind):
        if kind=='w1': setjob_y(128*n, 391)
        else: setjob_y(392+128*(n-4), NWJ-1)
        A(f"s_add_u32 s{S_HL}, s{S_JL}, {8192*(n if n<4 else n-4)}")
    def flag_cur():
        A(f"s_lshl_b32 s{T+10}, s{S_HY}, 6")
        A(f"s_add_u32 s{T+10}, s{T+10}, {WS_JF}")
        A(f"v_mov_b32 v47, s{S_TAG}")
        A("s_mov_b64 exec, 1")
        A(f"buffer_store_dword v47, v{V_ZERO}, s[{SRD_WS}:{SRD_WS+3}], s{T+10} offen sc1")
        A("s_mov_b64 exec, -1")
    def batch(ns, kind):
        k=len(ns); st = NS if kind=='w1' else 8
        for n in ns: job(n,kind); call("L_hissue")
        hstamp()
        for i,n in enumerate(ns):
            job(n,kind); A(f"s_waitcnt vmcnt({8*(k-1-i)+st*i})"); call("L_hpost")
            if i==0 and kind=='w1':
                A(f"v_readfirstlane_b32 s{S_TAG}, v{V_EP}")
                A(f"s_add_u32 s{S_TAG}, s{S_TAG}, 0x9E3779B9")
        hstamp()
        for i,n in enumerate(ns):
            A(f"s_waitcnt vmcnt({st*(k-1-i)+i})")
            job(n,kind); flag_cur()
        hstamp()
    l4=self.lab('Lh4'); lb=self.lab('Lhb')
    A(f"s_cmp_lt_u32 s{S_GW}, 8")
    A(f"s_cbranch_scc1 {l4}")
    batch([0,1,2],'w1')
    A(f"s_branch {lb}")
    A(f"{l4}:")
    sv=hs[0]; hs[0]=2
    batch([0,1,2,3],'w1')
    hs[0]=sv
    A(f"{lb}:")
    batch([4,5],'wd')
    self.sync_all_wait()
    hstamp()
    A(f"s_sub_u32 s{T}, s{S_WG}, {NWG}")
    A(f"s_mul_i32 s{T}, s{T}, 57344")
    A(f"s_mul_i32 s{T+1}, s{S_W}, 14336")
    A(f"s_add_u32 s{T}, s{T}, s{T+1}")
    A(f"s_add_u32 s{T}, s{T}, {WS_HT}")
    for k in range(14):
        if k%4==0:
            A(f"s_add_u32 s{T+2}, s{T}, {k*1024}")
            A(f"s_add_u32 m0, s{T+1}, {k*1024}")
        A(f"buffer_load_dwordx4 v54, s[{SRD_WS}:{SRD_WS+3}], s{T+2} offen offset:{(k%4)*1024} sc1 lds")
    A(f"v_lshlrev_b32 v50, 9, v43")
    A(f"v_bfe_u32 v51, v{V_LANE}, 2, 2")
    A(f"v_lshl_add_u32 v50, v51, 6, v50")
    A(f"v_bfe_u32 v51, v{V_LANE}, 4, 1")
    A(f"v_lshl_add_u32 v50, v51, 5, v50")
    A(f"v_and_b32 v51, 3, v{V_LANE}")
    A(f"v_lshl_add_u32 v50, v51, 3, v50")
    A(f"v_add_u32 v50, s{T+1}, v50")
    A("v_mov_b32 v55, 0x3f803f80")
    for k0 in range(0,14,2):
        A(f"s_waitcnt vmcnt({12-k0})")
        for k in (k0,k0+1):
            r=64+4*(k%4)
            A(f"ds_read_b64_tr_b16 v[{r}:{r+1}], v50 offset:{k*1024}")
            A(f"ds_read_b64_tr_b16 v[{r+2}:{r+3}], v50 offset:{k*1024+256}")
        A("s_waitcnt lgkmcnt(0)")
        for k in (k0,k0+1):
            r=64+4*(k%4)
            for d in range(4):
                i=4*k+d
                c1="0" if i<2 else f"v{56+(i&1)}"; c2="0" if i<2 else f"v{58+(i&1)}"
                A(f"v_dot2_f32_bf16 v{56+(i&1)}, v{r+d}, v55, {c1}")
                A(f"v_dot2_f32_bf16 v{58+(i&1)}, v{r+d}, v{r+d}, {c2}")
    A("s_nop 2")
    A("v_add_f32 v56, v56, v57\nv_add_f32 v57, v58, v59")
    A("v_mov_b32 v58, v56\nv_mov_b32 v59, v57")
    A("v_permlane32_swap_b32 v56, v58\nv_permlane32_swap_b32 v57, v59")
    A("v_add_f32 v56, v56, v58\nv_add_f32 v57, v57, v59")
    A(f"v_and_b32 v60, 31, v{V_LANE}")
    A(f"v_lshlrev_b32 v61, 4, v60")
    A(f"s_lshr_b32 s{T+3}, s{S_W}, 1")
    A(f"s_lshl_b32 s{T+3}, s{T+3}, 9")
    A(f"s_add_u32 s{T+3}, s{T+3}, 65536")
    A(f"v_add_u32 v61, s{T+3}, v61")
    A(f"s_and_b32 s{T+4}, s{S_W}, 1")
    A(f"s_lshl_b32 s{T+4}, s{T+4}, 3")
    A(f"v_add_u32 v62, s{T+4}, v61")
    A("ds_write_b64 v62, v[56:57]")
    A("s_waitcnt lgkmcnt(0)")
    A("s_barrier")
    lz=self.lab()
    A(f"s_cmp_lg_u32 s{T+4}, 0")
    A(f"s_cbranch_scc1 {lz}")
    A("ds_read_b128 v[64:67], v61")
    A("s_waitcnt lgkmcnt(0)")
    A("v_add_f32 v64, v64, v66\nv_add_f32 v65, v65, v67")
    A(f"v_mul_f32 v64, {fl(1.0/448)}, v64")
    A(f"v_mul_f32 v65, {fl(1.0/448)}, v65")
    A("v_fma_f32 v65, -v64, v64, v65")
    A("v_max_f32 v65, 0, v65")
    A("v_cvt_pk_bf16_f32 v65, v65, v65")
    A("v_lshlrev_b32 v65, 16, v65")
    A(f"v_add_f32 v65, {fl(1e-5)}, v65")
    A("v_cvt_pk_bf16_f32 v65, v65, v65")
    A("v_lshlrev_b32 v65, 16, v65")
    A("v_sqrt_f32 v65, v65")
    A("v_cvt_pk_bf16_f32 v66, v65, v64")
    A(f"v_mov_b32 v67, s{S_TAG}")
    A(f"v_lshlrev_b32 v68, 3, v60")
    A(f"s_sub_u32 s{T+5}, s{S_WG}, {NWG}")
    A(f"s_lshl_b32 s{T+5}, s{T+5}, 1")
    A(f"s_lshr_b32 s{T+6}, s{S_W}, 1")
    A(f"s_add_u32 s{T+5}, s{T+5}, s{T+6}")
    A(f"s_lshl_b32 s{T+5}, s{T+5}, 8")
    A(f"s_add_u32 s{T+5}, s{T+5}, {WS_ST2}")
    A("s_mov_b32 exec_hi, 0")
    A(f"buffer_store_dwordx2 v[66:67], v68, s[{SRD_WS}:{SRD_WS+3}], s{T+5} offen sc1")
    A("s_mov_b32 exec_hi, -1")
    A(f"{lz}:")
    hstamp()
    if self.ts and getattr(self,'hts',False):
        l=self.lab()
        A(f"s_cmp_lg_u32 s{S_W}, 0")
        A(f"s_cbranch_scc1 {l}")
        A(f"v_lshlrev_b32 v5, 2, v{V_LANE}")
        A(f"s_lshl_b32 s{T}, s{S_WG}, 8")
        A(f"s_add_u32 s{T}, s{T}, {WS_TS}")
        A(f"buffer_store_dword v200, v5, s[{SRD_WS}:{SRD_WS+3}], s{T} offen")
        A(f"{l}:")
    A("s_endpgm")
    A("L_hissue:")
    self.wjob_params()
    A(f"v_mul_lo_u32 v48, v40, s{S_HSTR}")
    A(f"v_add_u32 v48, v48, v41")
    A(f"s_lshl_b32 s{T+6}, s{S_HG}, 6")
    A(f"s_mul_i32 s{T+6}, s{T+6}, s{S_HSTR}")
    A(f"s_lshl_b32 s{T+7}, s{S_HP}, 7")
    A(f"s_add_u32 s{T+6}, s{T+6}, s{T+7}")
    A(f"s_lshl_b32 s{T+7}, s{S_HSTR}, 3")
    for i in range(8):
        A(f"s_add_u32 m0, s{S_HL}, {i*1024}")
        A(f"buffer_load_dwordx4 v48, s[{SRD_W}:{SRD_W+3}], s{T+6} offen lds")
        if i<7: A(f"s_add_u32 s{T+6}, s{T+6}, s{T+7}")
    A(f"s_setpc_b64 s[{S_HRET}:{S_HRET+1}]")
    A("L_hpost:")
    self.wjob_params()
    J=64
    A(f"s_cmp_eq_u32 s{S_HK}, 4")
    A(f"s_cselect_b32 s{T}, 10, 9")
    A(f"s_lshl_b32 s{T+1}, s{S_HK}, 7")
    A(f"v_lshlrev_b32 v50, s{T}, v43")
    A(f"v_add_u32 v50, v50, v42")
    A(f"v_add_u32 v50, s{S_HL}, v50")
    A(f"v_add_u32 v51, s{T+1}, v50")
    A(f"v_xor_b32 v52, 64, v50")
    A(f"v_xor_b32 v53, 64, v51")
    def rd(k):
        kap,e=k>>1,k&1; r=J+4*k
        A(f"ds_read_b64_tr_b16 v[{r}:{r+1}], v{50+2*e} offset:{kap*2048}")
        A(f"ds_read_b64_tr_b16 v[{r+2}:{r+3}], v{51+2*e} offset:{kap*2048}")
    for k in range(6): rd(k)
    for k in range(8):
        kap,e=k>>1,k&1; r=J+4*k
        issued=min(8,6+k)
        A(f"s_waitcnt lgkmcnt({2*(issued-1-k)})")
        if e==0: A(f"s_add_u32 s{T+2}, s{S_HD}, {kap*1024}")
        else:
            A(f"s_add_u32 s{T+2}, s{S_HD}, s{S_HE}")
            A(f"s_add_u32 s{T+2}, s{T+2}, {kap*1024}")
        A(f"buffer_store_dwordx4 v[{r}:{r+3}], v54, s[{SRD_WS}:{SRD_WS+3}], s{T+2} offen sc1")
        if 6+k<8: rd(6+k)
    lcs=self.lab('Lcs')
    A(f"s_cmp_lg_u32 s{S_HK}, 4")
    A(f"s_cbranch_scc1 {lcs}")
    A("v_mov_b32 v55, 0x3f803f80")
    for k in range(8):
        e=k&1
        for d in range(4):
            c="0" if (k<2 and d==0) else f"v{56+e}"
            A(f"v_dot2_f32_bf16 v{56+e}, v{J+4*k+d}, v55, {c}")
    A("s_nop 2")
    A("v_permlane32_swap_b32 v56, v57")
    A("v_add_f32 v56, v56, v57")
    A(f"s_cmp_ge_u32 s{S_HY}, 196")
    A(f"s_cselect_b32 s{T+2}, 1, 0")
    A(f"s_lshl_b32 s{T+3}, s{S_HP}, 2")
    A(f"s_add_u32 s{T+2}, s{T+2}, s{T+3}")
    A(f"s_mul_i32 s{T+2}, s{T+2}, 7")
    A(f"s_add_u32 s{T+2}, s{T+2}, s{S_HG}")
    A(f"s_lshl_b32 s{T+2}, s{T+2}, 7")
    A(f"s_add_u32 s{T+2}, s{T+2}, {WS_CS}")
    A(f"buffer_store_dword v56, v58, s[{SRD_WS}:{SRD_WS+3}], s{T+2} offen sc1")
    A(f"{lcs}:")
    A(f"s_setpc_b64 s[{S_HRET}:{S_HRET+1}]")

def bf16_lo(dst, src): return f"v_lshlrev_b32 v{dst}, 16, v{src}"
def bf16_hi(dst, src): return f"v_and_b32 v{dst}, 0xffff0000, v{src}"

def cmul(A, R, P, Z, T):
    A(f"v_pk_mul_f32 v[{T}:{T+1}], v[{P}:{P+1}], v[{Z}:{Z+1}] op_sel_hi:[0,1]")
    A(f"v_pk_fma_f32 v[{R}:{R+1}], v[{P}:{P+1}], v[{Z}:{Z+1}], v[{T}:{T+1}] op_sel:[1,1,0] op_sel_hi:[1,0,1] neg_lo:[1,0,0]")

def kreg(e,name):
    names=['C','Z1','Z2','Z4','Z8','Z256','P','Q','R','T','X0','X1']
    return [128,152][e]+2*names.index(name)
ROWS=[0,1,2,3,4,5,6,7,256,258,260,262,512,516,768,772,1024,1280,1536,1792,2048]

@add_method
def kgen_setup(self):
    A=self.A
    A("s_waitcnt lgkmcnt(0)")
    A(f"s_lshl_b32 s{S_T0}, s{S_CH}, 4")
    A(f"s_lshr_b32 s{S_DT}, s{S_DT}, s{S_T0}")
    A(f"s_lshl_b32 s{S_DT}, s{S_DT}, 16")
    A(f"s_lshr_b32 s{S_DSKV}, s{S_DSKV}, s{S_T0}")
    A(f"s_lshl_b32 s{S_DSKV}, s{S_DSKV}, 16")
    DT=48
    A(f"v_mov_b32 v{DT}, s{S_DT}")
    A(f"v_mul_f32 v{DT}, {fl(LOG2E)}, v{DT}")
    A(f"v_exp_f32 v{DT}, v{DT}")
    A(f"v_cvt_pk_bf16_f32 v{DT}, v{DT}, v{DT}")
    A(f"v_lshlrev_b32 v{DT}, 16, v{DT}")
    A(f"v_and_b32 v50, 0x7fff7fff, v{V_PA+2}")
    A(f"v_and_b32 v51, 0x7fff7fff, v{V_PA+3}")
    A(f"v_and_b32 v52, 0x7fff7fff, v{V_PA+4}")
    A(f"v_and_b32 v53, 0x7fff7fff, v{V_PA+5}")
    A("v_pk_max_u16 v50, v50, v51")
    A("v_pk_max_u16 v52, v52, v53")
    A("v_pk_max_u16 v50, v50, v52")
    A("v_lshrrev_b32 v51, 16, v50")
    A("v_and_b32 v50, 0xffff, v50")
    A("v_max_u32 v50, v50, v51")
    for mode in ["row_shr:1 row_mask:0xf bank_mask:0xf bound_ctrl:0","row_shr:2 row_mask:0xf bank_mask:0xf bound_ctrl:0",
                 "row_shr:4 row_mask:0xf bank_mask:0xf bound_ctrl:0","row_shr:8 row_mask:0xf bank_mask:0xf bound_ctrl:0",
                 "row_bcast:15 row_mask:0xa bank_mask:0xf","row_bcast:31 row_mask:0xc bank_mask:0xf"]:
        A(f"v_max_u32_dpp v50, v50, v50 {mode}")
    A(f"v_readlane_b32 s{S_T0}, v50, 63")
    A(f"s_lshr_b32 s{S_T0}, s{S_T0}, 7")
    A(f"s_max_u32 s{S_T0}, s{S_T0}, 1")
    A(f"s_min_u32 s{S_T0}, s{S_T0}, 253")
    A(f"s_sub_u32 s{S_T0+1}, 254, s{S_T0}")
    A(f"s_lshl_b32 s{S_T0+1}, s{S_T0+1}, 23")
    A(f"s_lshl_b32 s{S_T0}, s{S_T0}, 23")
    A(f"v_add_f32 v49, v{DT}, v{DT}")
    A(f"v_mul_f32 v49, s{S_T0}, v49")
    A(f"v_readfirstlane_b32 s{S_YS}, v49")
    AR=[50,51]; TH=[52,53]
    reg=kreg
    for e in range(2):
        un = bf16_lo if e==0 else bf16_hi
        A(un(AR[e], V_PA)); A(un(TH[e], V_PA+1))
        A(un(reg(e,'C'), V_PA+2)); A(un(reg(e,'C')+1, V_PA+3))
    for e in range(2):
        A(f"v_mul_f32 v{AR[e]}, {fl(LOG2E)}, v{AR[e]}")
    for e in range(2): A(f"v_exp_f32 v{AR[e]}, v{AR[e]}")
    for e in range(2):
        A(f"v_cvt_pk_bf16_f32 v{AR[e]}, v{AR[e]}, v{AR[e]}")
    for e in range(2):
        A(f"v_lshlrev_b32 v{AR[e]}, 16, v{AR[e]}")
    for e in range(2):
        A(f"v_mul_f32 v{AR[e]}, v{AR[e]}, v{DT}")
        A(f"v_mul_f32 v{TH[e]}, v{TH[e]}, v{DT}")
    for e in range(2):
        A(f"v_mul_f32 v{AR[e]}, {fl(-LOG2E)}, v{AR[e]}")
        A(f"v_mul_f32 v{TH[e]}, {fl(INV2PI)}, v{TH[e]}")
        c=reg(e,'C')
        A(f"v_mul_f32 v{c}, s{S_T0+1}, v{c}")
        A(f"v_mul_f32 v{c+1}, s{S_T0+1}, v{c+1}")
    for name,p in (('Z1',1.0),('Z8',8.0),('Z256',256.0)):
        for e in range(2):
            z=reg(e,name); x0=reg(e,'X0'); x1=reg(e,'X1')
            if p==1.0:
                A(f"v_exp_f32 v{x0}, v{AR[e]}")
                A(f"v_fract_f32 v{x0+1}, v{TH[e]}")
            else:
                A(f"v_mul_f32 v{x0}, {fl(p)}, v{AR[e]}")
                A(f"v_mul_f32 v{x0+1}, {fl(p)}, v{TH[e]}")
                A(f"v_exp_f32 v{x0}, v{x0}")
                A(f"v_fract_f32 v{x0+1}, v{x0+1}")
            A(f"v_cos_f32 v{x1}, v{x0+1}")
            A(f"v_sin_f32 v{x1+1}, v{x0+1}")
        for e in range(2):
            z=reg(e,name); x0=reg(e,'X0'); x1=reg(e,'X1')
            A(f"v_pk_mul_f32 v[{z}:{z+1}], v[{x1}:{x1+1}], v[{x0}:{x0+1}] op_sel_hi:[1,0]")
    if self.xmode=='gather': A(self.gl[self.gi]); self.gi+=1
    for e in range(2): cmul(A, reg(e,'Z2'), reg(e,'Z1'), reg(e,'Z1'), reg(e,'T'))
    for e in range(2): cmul(A, reg(e,'Z4'), reg(e,'Z2'), reg(e,'Z2'), reg(e,'T'))

@add_method
def kgen_gen(self):
    A=self.A
    reg=kreg
    VA=104
    A(f"s_mul_i32 s{S_T0+2}, s{S_W}, {KG_WAVE}")
    A(f"v_lshl_add_u32 v{VA}, v{V_LANE}, 3, s{S_T0+2}")
    OUT=[106,108,110,112]; oi=[0]
    def emit(idx, name, neg):
        if self.xmode=='xt' and idx==36: self.xflag_publish()
        if self.xmode=='gather' and idx in (1,10,19,28,37): A(self.gl[self.gi]); self.gi+=1
        o=OUT[oi[0]%4]; oi[0]+=1
        for e in range(2):
            r=reg(e,name)
            A(f"v_cvt_pk_f16_f32 v{o+e}, v{r}, {'-' if neg else ''}v{r+1}")
        A(f"ds_write_b64 v{VA}, v[{o}:{o+1}] offset:{idx*KG_PITCH}")
    def step(dst, src, z):
        for e in range(2):
            A(f"v_pk_mul_f32 v[{reg(e,'T')}:{reg(e,'T')+1}], v[{reg(e,src)}:{reg(e,src)+1}], v[{reg(e,z)}:{reg(e,z)+1}] op_sel_hi:[0,1]")
        for e in range(2):
            A(f"v_pk_fma_f32 v[{reg(e,dst)}:{reg(e,dst)+1}], v[{reg(e,src)}:{reg(e,src)+1}], v[{reg(e,z)}:{reg(e,z)+1}], v[{reg(e,'T')}:{reg(e,'T')+1}] op_sel:[1,1,0] op_sel_hi:[1,0,1] neg_lo:[1,0,0]")
    emit(0,'C',True)
    step('P','C','Z1'); emit(1,'P',True)
    for r in range(2,8): step('P','P','Z1'); emit(r,'P',True)
    step('Q','C','Z256'); emit(8,'Q',True)
    step('R','Q','Z2'); emit(9,'R',True)
    step('R','R','Z2'); emit(10,'R',True)
    step('R','R','Z2'); emit(11,'R',True)
    step('Q','Q','Z256'); emit(12,'Q',True)
    step('R','Q','Z4'); emit(13,'R',True)
    step('Q','Q','Z256'); emit(14,'Q',True)
    step('R','Q','Z4'); emit(15,'R',True)
    for r in range(16,21): step('Q','Q','Z256'); emit(r,'Q',True)
    o=OUT[oi[0]%4]; oi[0]+=1
    A(f"v_mov_b32 v{o}, 0x3c00\nv_mov_b32 v{o+1}, 0x3c00")
    A(f"ds_write_b64 v{VA}, v[{o}:{o+1}] offset:{21*KG_PITCH}")
    emit(22,'Z8',False)
    step('P','Z8','Z8'); emit(23,'P',False)
    for b in range(3,32): step('P','P','Z8'); emit(21+b,'P',False)
    if self.xmode=='gather':
        while self.gi<8: A(self.gl[self.gi]); self.gi+=1
    self.stamp('gen done')
    A(f"s_mul_i32 s{S_T0+2}, s{S_W}, {KG_WAVE}")
    VAa=104; VAb=105
    A(f"v_and_b32 v48, 31, v{V_LANE}")
    A(f"v_min_u32 v49, 20, v48")
    A(f"v_lshrrev_b32 v50, 5, v{V_LANE}")
    A(f"v_lshlrev_b32 v50, 4, v50")
    A(f"v_add_u32 v50, s{S_T0+2}, v50")
    A(f"s_movk_i32 s{S_T0+3}, {KG_PITCH}")
    A(f"v_mad_u32_u24 v{VAa}, v49, s{S_T0+3}, v50")
    A(f"v_mad_u32_u24 v{VAb}, v48, s{S_T0+3}, v50")
    ACC=112
    FR=[64,72,80,88]
    def ld(ks):
        f=FR[ks%4]
        A(f"ds_read_b128 v[{f}:{f+3}], v{VAa} offset:{ks*32}")
        A(f"ds_read_b128 v[{f+4}:{f+7}], v{VAb} offset:{21*KG_PITCH+ks*32}")
    for ks in range(3): ld(ks)
    for ks in range(16):
        if ks+3<16: ld(ks+3)
        nxt=min(15,ks+3)-ks
        A(f"s_waitcnt lgkmcnt({2*nxt})")
        f=FR[ks%4]
        c = "0" if ks==0 else f"v[{ACC}:{ACC+15}]"
        A(f"v_mfma_f32_32x32x16_f16 v[{ACC}:{ACC+15}], v[{f}:{f+3}], v[{f+4}:{f+7}], {c}")
    l1=self.lab(); l2=self.lab()
    A(f"v_lshl_add_u32 v48, v{V_LANE}, 4, s{S_T0+2}")
    A(f"s_cmp_eq_u32 s{S_NH}, 0")
    A(f"s_cbranch_scc1 {l1}")
    for q in range(3): A(f"ds_write_b128 v48, v[{ACC+4*q}:{ACC+4*q+3}] offset:{q*1024}")
    A(f"{l1}:")
    A("s_nop 1")
    A("s_waitcnt lgkmcnt(0)")
    self.stamp('kmfma')
    A("s_barrier")
    self.stamp('kbar1')
    A(f"s_cmp_eq_u32 s{S_NH}, 0")
    A(f"s_cbranch_scc0 {l2}")
    for q in range(3): A(f"ds_read_b128 v[{64+4*q}:{64+4*q+3}], v48 offset:{KG_WAVE+q*1024}")
    A("s_waitcnt lgkmcnt(0)")
    for r in range(12):
        A(f"v_add_f32 v{64+r}, v{64+r}, v{ACC+r}")
    for r in range(12):
        A(f"v_cvt_f16_f32 v{64+r}, v{64+r}")
    for r in range(4): A(f"ds_write_b16 v176, v{64+r} offset:{2*r}")
    for r in (4,5): A(f"ds_write_b16 v177, v{64+r} offset:{2*(r-4)}")
    for r in (6,7): A(f"ds_write_b16 v178, v{64+r} offset:{2*(r-6)}")
    for r in range(8,12): A(f"ds_write_b16 v179, v{64+r} offset:{1024+64*(r-8)}")
    A(f"v_mov_b32 v50, 0")
    A(f"v_mov_b32 v51, s{S_T0+2}")
    A(f"ds_write_b16 v51, v50 offset:{2*768}")
    A(f"{l2}:")
    self.granule_loads()
    A("s_waitcnt lgkmcnt(0)")
    A("s_barrier")

@add_method
def kexpand(self):
    A=self.A
    D0=64
    def rd(ch,x):
        tb=(2*ch)*KG_WAVE; d=D0+ch*28
        A(f"ds_read_u16 v{d+x}, v{V_OFF+x} offset:{tb}")
    def mk(ch):
        d=D0+ch*28
        for c in range(4):
            for x in range(4):
                A(f"v_lshl_or_b32 v{d+12+4*c+x}, v{d+c+2*x+1}, 16, v{d+c+2*x}")
    def wr(ch):
        d=D0+ch*28
        for c in range(4):
            r=d+12+4*c
            A(f"ds_write_b128 v49, v[{r}:{r+3}] offset:{ch*KX_CH+c*KX_COPY}")
    for x in range(11): rd(0,x)
    for x in range(4): rd(1,x)
    A(f"v_lshlrev_b32 v49, 4, v{V_T}")
    A(f"v_add_u32 v49, {LDS_KX}, v49")
    A("s_waitcnt lgkmcnt(4)")
    mk(0)
    for x in range(4,11): rd(1,x)
    wr(0)
    A("s_waitcnt lgkmcnt(4)")
    mk(1)
    wr(1)
    A("v_mov_b32 v64, 0\nv_mov_b32 v65, 0\nv_mov_b32 v66, 0\nv_mov_b32 v67, 0")
    l=self.lab()
    A(f"s_cmp_lg_u32 s{S_W}, 0")
    A(f"s_cbranch_scc1 {l}")
    A(f"v_and_b32 v50, 31, v{V_LANE}")
    A(f"v_lshlrev_b32 v50, 4, v50")
    A(f"v_lshrrev_b32 v51, 5, v{V_LANE}")
    A(f"v_mul_u32_u24 v51, {U_CH}, v51")
    A(f"v_add_u32 v50, v50, v51")
    A(f"v_add_u32 v50, {LDS_U}, v50")
    A(f"ds_write_b128 v50, v[64:67]")
    A(f"v_lshrrev_b32 v50, 1, v{V_LANE}")
    A(f"v_and_b32 v50, 7, v50")
    A(f"v_mul_u32_u24 v50, {KX_COPY}, v50")
    A(f"v_and_b32 v51, 1, v{V_LANE}")
    A(f"v_lshl_add_u32 v50, v51, 4, v50")
    A(f"v_add_u32 v50, {LDS_KX+4096}, v50")
    A(f"ds_write_b128 v50, v[64:67]")
    A(f"{l}:")

S_GB=76
S_GB2=82
S_KSTR=68
@add_method
def stage_w(self, kind):
    A=self.A
    RING=24576
    if kind=='w1':
        stride=3584
        A(f"s_mov_b32 s{SRD_W}, s{S_WGT}\ns_mov_b32 s{SRD_W+1}, s{S_WGT+1}\ns_mov_b32 s{SRD_W+2}, {D_*F_*2}\ns_mov_b32 s{SRD_W+3}, 0x20000")
        A(f"s_mov_b32 s{SRD_W2}, s{S_WUP}\ns_mov_b32 s{SRD_W2+1}, s{S_WUP+1}\ns_mov_b32 s{SRD_W2+2}, {D_*F_*2}\ns_mov_b32 s{SRD_W2+3}, 0x20000")
        A(f"s_lshl_b32 s{S_T0}, s{S_J}, 8")
        A(f"s_lshl_b32 s{S_T0+1}, s{S_W}, 6")
        A(f"s_add_u32 s{S_T0}, s{S_T0}, s{S_T0+1}")
        for g in range(4):
            A(f"s_add_u32 s{S_T0+1}, s{S_W}, {g}")
            A(f"s_and_b32 s{S_T0+1}, s{S_T0+1}, 3")
            A(f"s_mul_i32 s{S_T0+1}, s{S_T0+1}, {7*16*stride}")
            A(f"s_add_u32 s{S_GB+g}, s{S_T0+1}, s{S_T0}")
        tileoff2=0
    else:
        stride=896
        A(f"s_mov_b32 s{SRD_W}, s{S_WD}\ns_mov_b32 s{SRD_W+1}, s{S_WD+1}\ns_mov_b32 s{SRD_W+2}, {D_*F_*2}\ns_mov_b32 s{SRD_W+3}, 0x20000")
        A(f"s_mov_b32 s{SRD_W2}, s{S_WD}\ns_mov_b32 s{SRD_W2+1}, s{S_WD+1}\ns_mov_b32 s{SRD_W2+2}, {D_*F_*2}\ns_mov_b32 s{SRD_W2+3}, 0x20000")
        A(f"s_cmp_ge_u32 s{S_J}, 7")
        A(f"s_cselect_b32 s{S_T0}, 7, 0")
        A(f"s_sub_u32 s{S_T0}, s{S_J}, s{S_T0}")
        A(f"s_lshl_b32 s{S_T0}, s{S_T0}, 7")
        A(f"s_mul_i32 s{S_T0+1}, s{S_W}, {448*stride}")
        A(f"s_add_u32 s{S_T0}, s{S_T0}, s{S_T0+1}")
        for g in range(4):
            A(f"s_add_u32 s{S_GB+g}, s{S_T0}, {g*7*16*stride}")
        tileoff2=64
    kstr=16*stride
    A(f"v_lshrrev_b32 v48, 2, v{V_LANE}")
    A(f"v_mul_u32_u24 v48, {stride}, v48")
    A(f"v_and_b32 v49, 3, v{V_LANE}")
    A(f"v_lshl_add_u32 v48, v49, 4, v48")
    if kind=='w1':
        A(f"v_mov_b32 v52, v48")
    else:
        A(f"s_lshl_b32 s{S_T0+1}, s{S_NH}, 6")
        A(f"s_xor_b32 s{S_T0+3}, s{S_T0+1}, 64")
        A(f"v_add_u32 v52, s{S_T0+3}, v48")
        A(f"v_add_u32 v48, s{S_T0+1}, v48")
    A(f"s_mul_i32 s{S_T0+2}, s{S_W}, {RING}")
    A(f"v_lshrrev_b32 v50, 5, v{V_LANE}")
    A(f"v_lshlrev_b32 v50, {9 if kind=='w1' else 8}, v50")
    A(f"v_bfe_u32 v51, v{V_LANE}, 2, 2")
    A(f"v_lshl_add_u32 v50, v51, 6, v50")
    A(f"v_bfe_u32 v51, v{V_LANE}, 4, 1")
    A(f"v_lshl_add_u32 v50, v51, 5, v50")
    A(f"v_and_b32 v51, 3, v{V_LANE}")
    A(f"v_lshl_add_u32 v50, v51, 3, v50")
    A(f"v_add_u32 v50, s{S_T0+2}, v50")
    second = 256 if kind=='w1' else 512
    def issue(c):
        slot=c%3
        for i in range(4):
            s=4*c+i; g=s//7; r=s%7
            A(f"s_add_u32 s{S_T0+3}, s{S_GB+g}, {r*kstr}")
            A(f"s_add_u32 m0, s{S_T0+2}, {slot*8192+i*2048}")
            A(f"buffer_load_dwordx4 v48, s[{SRD_W}:{SRD_W+3}], s{S_T0+3} offen lds")
            A(f"s_add_u32 m0, s{S_T0+2}, {slot*8192+i*2048+1024}")
            A(f"buffer_load_dwordx4 v52, s[{SRD_W2}:{SRD_W2+3}], s{S_T0+3} offen lds")
    for c in range(3): issue(c)
    for c in range(7):
        A(f"s_waitcnt vmcnt({8*min(2,6-c)})")
        slot=c%3
        for i in range(4):
            s=4*c+i
            for tile in range(2):
                a=8*s+4*tile; off=slot*8192+i*2048+tile*1024
                A(f"ds_read_b64_tr_b16 a[{a}:{a+1}], v50 offset:{off}")
                A(f"ds_read_b64_tr_b16 a[{a+2}:{a+3}], v50 offset:{off+second}")
            if i==1: A("s_waitcnt lgkmcnt(4)")
        if c+3<7:
            A("s_waitcnt lgkmcnt(0)")
            issue(c+3)
    A("s_waitcnt lgkmcnt(0)")

@add_method
def flag_load(self):
    A=self.A
    A(f"s_lshl_b32 s{S_T0}, s{S_J}, 2")
    A(f"s_add_u32 s{S_T0}, s{S_T0}, s{S_W}")
    A(f"s_lshr_b32 s{S_T0}, s{S_T0}, 1")
    A(f"s_mul_i32 s{S_T0}, s{S_T0}, 7")
    A(f"v_min_u32 v44, 13, v{V_LANE}")
    A(f"v_add_u32 v46, 189, v44")
    A(f"v_cmp_lt_u32 vcc, 6, v44")
    A(f"v_cndmask_b32 v44, v44, v46, vcc")
    A(f"v_add_u32 v44, s{S_T0}, v44")
    A(f"v_lshlrev_b32 v44, 6, v44")
    A(f"s_mov_b32 s{S_T0+11}, {WS_JF}")
    A(f"buffer_load_dword v46, v44, s[{SRD_WS}:{SRD_WS+3}], s{S_T0+11} offen sc1")

@add_method
def wdflag_load(self, S):
    A=self.A
    A(f"s_cmp_ge_u32 s{S_J}, 7")
    A(f"s_cselect_b32 s{S_T0+8}, 7, 0")
    A(f"s_sub_u32 s{S_T0+8}, s{S_J}, s{S_T0+8}")
    A(f"s_mul_i32 s{S_T0+8}, s{S_T0+8}, 28")
    A(f"s_mul_i32 s{S_T0+9}, s{S_W}, 7")
    A(f"s_add_u32 s{S_T0+8}, s{S_T0+8}, s{S_T0+9}")
    A(f"s_add_u32 s{S_T0+8}, s{S_T0+8}, 392")
    A(f"v_min_u32 v44, 6, v{V_LANE}")
    A(f"v_add_u32 v44, s{S_T0+8}, v44")
    A(f"v_lshlrev_b32 v44, 6, v44")
    A(f"s_mov_b32 s{S_T0+11}, {WS_JF}")
    S.vmem(f"buffer_load_dword v46, v44, s[{SRD_WS}:{SRD_WS+3}], s{S_T0+11} offen sc1","WDF")

@add_method
def wdflag_check(self, S):
    A=self.A
    lp=self.lab('Lpoll'); le=self.lab()
    S.need_vm(["WDF"])
    A(f"s_mov_b32 s{S_T0+8}, 0")
    A(f"{lp}:")
    A(f"v_cmp_eq_u32 vcc, s{S_TAG}, v46")
    A(f"s_and_b32 s{S_T0+9}, vcc_lo, 0x7f")
    A(f"s_cmp_eq_u32 s{S_T0+9}, 0x7f")
    A(f"s_cbranch_scc1 {le}")
    A(f"buffer_load_dword v46, v44, s[{SRD_WS}:{SRD_WS+3}], s{S_T0+11} offen sc1")
    A("s_waitcnt vmcnt(0)")
    A(f"s_add_u32 s{S_T0+8}, s{S_T0+8}, 1")
    A(f"s_cmp_lt_u32 s{S_T0+8}, 0x8000")
    A(f"s_cbranch_scc1 {lp}")
    A(f"{le}:")

@add_method
def granule_loads(self):
    A=self.A; SG=144
    if self.xmode=='gather':
        A(f"v_lshlrev_b32 v43, 6, v{V_T}")
        A(f"s_mov_b32 s{S_T0+13}, {WS_STATS}")
        for k in range(4):
            A(f"buffer_load_dwordx4 v[{SG+4*k}:{SG+4*k+3}], v43, s[{SRD_WS}:{SRD_WS+3}], s{S_T0+13} offen offset:{16*k} sc1")
        return
    A(f"s_lshr_b32 s{S_T0+12}, s{S_D0}, 6")
    A(f"s_and_b32 s{S_T0+12}, s{S_T0+12}, 3")
    A(f"s_lshl_b32 s{S_T0+12}, s{S_T0+12}, 6")
    A(f"s_add_u32 s{S_T0+12}, s{S_T0+12}, {WS_XF}")
    A(f"v_lshlrev_b32 v37, 8, v{V_T}")
    A(f"buffer_load_dword v36, v37, s[{SRD_WS}:{SRD_WS+3}], s{S_T0+12} offen sc1")
    A(f"v_lshlrev_b32 v43, 6, v{V_T}")
    A(f"s_mov_b32 s{S_T0+13}, {WS_STATS}")
    for k in range(4):
        A(f"buffer_load_dwordx4 v[{SG+4*k}:{SG+4*k+3}], v43, s[{SRD_WS}:{SRD_WS+3}], s{S_T0+13} offen offset:{16*k} sc1")

@add_method
def granule_wait(self):
    A=self.A; SG=144
    lp=self.lab('Lpoll'); le=self.lab()
    A(f"s_mov_b32 s{S_T0+1}, 0")
    A("s_waitcnt vmcnt(0)")
    A(f"{lp}:")
    if self.xmode=='gather': A("v_mov_b32 v49, 0")
    else: A(f"v_xor_b32 v49, s{S_TAG}, v36")
    for k in range(8):
        A(f"v_xor_b32 v50, s{S_TAG}, v{SG+2*k+1}")
        A(f"v_or_b32 v49, v49, v50")
    A("v_cmp_ne_u32 vcc, 0, v49")
    A(f"s_add_u32 s{S_T0+1}, s{S_T0+1}, 1")
    A(f"s_cbranch_vccz {le}")
    if self.xmode=='xt': A(f"buffer_load_dword v36, v37, s[{SRD_WS}:{SRD_WS+3}], s{S_T0+12} offen sc1")
    for k in range(4):
        A(f"buffer_load_dwordx4 v[{SG+4*k}:{SG+4*k+3}], v43, s[{SRD_WS}:{SRD_WS+3}], s{S_T0+13} offen offset:{16*k} sc1")
    A("s_waitcnt vmcnt(0)")
    A(f"s_cmp_lt_u32 s{S_T0+1}, 0x8000")
    A(f"s_cbranch_scc1 {lp}")
    A(f"{le}:")

@add_method
def flag_wait(self, mask, landed=False):
    A=self.A
    lp=self.lab('Lpoll'); le=self.lab(); lf=self.lab()
    A(f"s_mov_b32 s{S_T0+1}, 0")
    if landed: A(f"s_branch {lf}")
    A(f"{lp}:")
    A("s_waitcnt vmcnt(0)")
    A(f"{lf}:")
    A(f"v_cmp_eq_u32 vcc, s{S_TAG}, v46")
    A(f"s_and_b32 s{S_T0+2}, vcc_lo, {hex(mask)}")
    A(f"s_cmp_eq_u32 s{S_T0+2}, {hex(mask)}")
    A(f"s_cbranch_scc1 {le}")
    A(f"buffer_load_dword v46, v44, s[{SRD_WS}:{SRD_WS+3}], s{S_T0+11} offen sc1")
    A(f"s_add_u32 s{S_T0+1}, s{S_T0+1}, 1")
    A(f"s_cmp_lt_u32 s{S_T0+1}, 0x8000")
    A(f"s_cbranch_scc1 {lp}")
    A(f"{le}:")

@add_method
def xt_loads(self):
    A=self.A; XA=8
    A(f"s_movk_i32 s{S_T0+2}, 7168")
    A(f"v_mul_lo_u32 v48, v{V_T}, s{S_T0+2}")
    A(f"s_lshl_b32 s{S_T0+2}, s{S_D0}, 4")
    A(f"s_add_u32 s{S_T0+2}, s{S_T0+2}, {WS_XT}")
    A(f"buffer_load_dwordx4 v[{XA}:{XA+3}], v48, s[{SRD_WS}:{SRD_WS+3}], s{S_T0+2} offen sc1")
    A(f"buffer_load_dwordx4 v[{XA+4}:{XA+7}], v48, s[{SRD_WS}:{SRD_WS+3}], s{S_T0+2} offen offset:16 sc1")

@add_method
def w1_setup(self):
    A=self.A
    A(f"s_lshl_b32 s{S_T0}, s{S_J}, 2")
    A(f"s_add_u32 s{S_T0}, s{S_T0}, s{S_W}")
    A(f"s_mul_i32 s{S_T0}, s{S_T0}, 56")
    for g in range(4):
        A(f"s_add_u32 s{S_T0+1}, s{S_W}, {g}")
        A(f"s_and_b32 s{S_T0+1}, s{S_T0+1}, 3")
        A(f"s_mul_i32 s{S_T0+1}, s{S_T0+1}, 7")
        A(f"s_add_u32 s{S_T0+1}, s{S_T0+1}, s{S_T0}")
        A(f"s_lshl_b32 s{S_T0+1}, s{S_T0+1}, 10")
        A(f"s_add_u32 s{S_GB+g}, s{S_T0+1}, {WS_WF1}")
        A(f"s_add_u32 s{S_GB2+g}, s{S_GB+g}, {28*1024}")
    A(f"v_lshlrev_b32 v45, 4, v{V_LANE}")
    A(f"v_add_u32 v3, 4096, v45")

@add_method
def w1_items(self, s0, s1):
    out=[]
    for s in range(s0,s1):
        g=s//7; i=s%7
        for t in range(2):
            sb=(S_GB if t==0 else S_GB2)+g
            va,off=("v45",i*1024) if i<4 else ("v3",(i-4)*1024)
            out.append([f"buffer_load_dwordx4 a[{8*s+4*t}:{8*s+4*t+3}], {va}, s[{SRD_WS}:{SRD_WS+3}], s{sb} offen offset:{off} sc1"])
    return out
@add_method
def w1_loads(self, s0, s1):
    for it in self.w1_items(s0,s1):
        for x in it: self.A(x)

@add_method
def stats_consume(self):
    A=self.A
    SG=144
    XA=8
    A("s_waitcnt vmcnt(0)")
    self.stamp('xt landed')
    for j in range(8):
        A(f"v_lshlrev_b32 v{80+j}, 16, v{SG+2*j}")
        A(f"v_and_b32 v{88+j}, 0xffff0000, v{SG+2*j}")
    for j in range(8): A(f"v_rcp_f32 v{80+j}, v{80+j}")
    for ch in range(2):
        X=96+ch*8
        if self.xmode=='xt':
            for j in range(0,8,2):
                A(bf16_lo(X+j, XA+4*ch+j//2)); A(bf16_hi(X+j+1, XA+4*ch+j//2))
        else:
            for j in range(8): A((bf16_lo if ch==0 else bf16_hi)(X+j, V_XG+j))
        for j in range(0,8,2):
            A(f"v_pk_add_f32 v[{X+j}:{X+j+1}], v[{X+j}:{X+j+1}], v[{88+j}:{88+j+1}] neg_lo:[0,1] neg_hi:[0,1]")
        if self.mimic>=2:
            for j in range(0,8,2):
                A(f"v_cvt_pk_bf16_f32 v{128+j//2}, v{X+j}, v{X+j+1}")
            for j in range(0,8,2):
                A(bf16_lo(X+j,128+j//2)); A(bf16_hi(X+j+1,128+j//2))
        for j in range(0,8,2):
            A(f"v_pk_mul_f32 v[{X+j}:{X+j+1}], v[{X+j}:{X+j+1}], v[{80+j}:{80+j+1}]")
        if self.mimic>=1:
            for j in range(0,8,2):
                A(f"v_cvt_pk_bf16_f32 v{128+j//2}, v{X+j}, v{X+j+1}")
            for j in range(0,8,2):
                A(bf16_lo(X+j,128+j//2)); A(bf16_hi(X+j+1,128+j//2))
        U=132+ch*4
        for j in range(0,8,2):
            A(f"v_cvt_pk_f16_f32 v{U+j//2}, v{X+j}, v{X+j+1}")
    if self.xmode=='gather':
        A(f"s_mov_b32 s{S_T0+2}, 0x05040100")
        A(f"s_mov_b32 s{S_T0+3}, 0x07060302")
        for ch in range(2):
            for j in range(0,8,2):
                A(f"v_perm_b32 v{140+ch*4+j//2}, v{V_XG+j+1}, v{V_XG+j}, s{S_T0+2+ch}")
        XA=140
    A(f"v_lshlrev_b32 v48, 4, v{V_T}")
    A(f"v_add_u32 v49, {LDS_U+512}, v48")
    A(f"v_add_u32 v50, {LDS_XT}, v48")
    A(f"ds_write_b128 v49, v[132:135]")
    A(f"ds_write_b128 v49, v[136:139] offset:{U_CH}")
    A(f"ds_write_b128 v50, v[{XA}:{XA+3}]")
    A(f"ds_write_b128 v50, v[{XA+4}:{XA+7}] offset:{XT_CH}")
    self.w1_setup()
    if self.w1pf: self.flag_load()
    A("s_waitcnt lgkmcnt(0)")
    A("s_barrier")

@add_method
def w1_rest(self):
    self.w1_loads(W1_IN_CONV,28)

@add_method
def wd_loads(self, s0, s1, S=None):
    out=[]
    for s in range(s0,s1):
        for ca in range(2):
            out.append(f"s_add_u32 s{S_T0+14}, s{S_T0+12+ca}, {s*1024}")
            out.append(('vm',f"buffer_load_dwordx4 a[{8*s+4*ca}:{8*s+4*ca+3}], v47, s[{SRD_WS}:{SRD_WS+3}], s{S_T0+14} offen sc1",f"WD{s}"))
    return out

@add_method
def wd_setup(self):
    A=self.A
    A(f"s_cmp_ge_u32 s{S_J}, 7")
    A(f"s_cselect_b32 s{S_T0+14}, 7, 0")
    A(f"s_sub_u32 s{S_T0+14}, s{S_J}, s{S_T0+14}")
    A(f"s_lshl_b32 s{S_T0+14}, s{S_T0+14}, 1")
    for ca in range(2):
        A(f"s_xor_b32 s{S_T0+12+ca}, s{S_NH}, {ca}")
        A(f"s_add_u32 s{S_T0+12+ca}, s{S_T0+12+ca}, s{S_T0+14}")
        A(f"s_mul_i32 s{S_T0+12+ca}, s{S_T0+12+ca}, 112")
        A(f"s_mul_i32 s{S_T0+15}, s{S_W}, 28")
        A(f"s_add_u32 s{S_T0+12+ca}, s{S_T0+12+ca}, s{S_T0+15}")
        A(f"s_lshl_b32 s{S_T0+12+ca}, s{S_T0+12+ca}, 10")
        A(f"s_add_u32 s{S_T0+12+ca}, s{S_T0+12+ca}, {WS_WFD}")
    A(f"v_lshlrev_b32 v47, 4, v{V_LANE}")

W1_PRE=16
W1_IN_CONV=0
C_ACC=64
C_F=[96,160]
C_G=[128,192]
C_VF=48; C_VG=49
C_EU=224; C_EX=232
@add_method
def conv(self):
    A=self.A
    A(f"v_and_b32 v50, 15, v{V_LANE}")
    A(f"v_lshrrev_b32 v51, 4, v{V_LANE}")
    A(f"v_sub_u32 v52, 3, v50")
    A(f"v_and_b32 v52, 3, v52")
    A(f"v_mul_u32_u24 v52, {KX_COPY}, v52")
    A(f"v_lshrrev_b32 v53, 2, v50")
    A(f"v_lshlrev_b32 v53, 3, v53")
    A(f"v_sub_u32 v52, v52, v53")
    A(f"v_lshl_add_u32 v52, v51, 4, v52")
    A(f"s_mul_i32 s{S_T0}, s{S_CH}, {KX_CH}")
    A(f"s_lshl_b32 s{S_T0+1}, s{S_NH}, 8")
    A(f"s_sub_u32 s{S_T0}, s{S_T0}, s{S_T0+1}")
    A(f"s_add_u32 s{S_T0}, s{S_T0}, {LDS_KX+2*2028-64*63}")
    A(f"v_add_u32 v{C_VF}, s{S_T0}, v52")
    A(f"v_lshlrev_b32 v52, 5, v50")
    A(f"v_lshl_add_u32 v52, v51, 4, v52")
    A(f"s_mul_i32 s{S_T0}, s{S_CH}, {U_CH}")
    A(f"s_sub_u32 s{S_T0}, s{S_T0}, s{S_T0+1}")
    A(f"s_add_u32 s{S_T0}, s{S_T0}, {LDS_U+480-192}")
    A(f"v_add_u32 v{C_VG}, s{S_T0}, v52")
    def loads(sp):
        st=sp&1; out=[]
        for k in range(8):
            g=C_G[st]+4*k; f=C_F[st]+4*k
            out.append(f"ds_read_b128 v[{g}:{g+3}], v{C_VG} offset:{512*k+64*(3-sp)}")
            o=64*(63-8*k-sp)
            out.append(f"ds_read_b64 v[{f}:{f+1}], v{C_VF} offset:{o}")
            out.append(f"ds_read_b64 v[{f+2}:{f+3}], v{C_VF} offset:{o+8}")
        return out
    def mfmas(sp):
        st=sp&1; out=[]
        for t in range(8):
            for d in range(t+1):
                acc=C_ACC+4*t
                c = "0" if (sp==0 and d==0) else f"v[{acc}:{acc+3}]"
                out.append((t,d,f"v_mfma_f32_16x16x32_f16 v[{acc}:{acc+3}], v[{C_F[st]+4*d}:{C_F[st]+4*d+3}], v[{C_G[st]+4*(t-d)}:{C_G[st]+4*(t-d)+3}], {c}"))
        return out
    l0=loads(0)
    A(f"v_lshlrev_b32 v52, 5, v50")
    A(f"v_lshl_add_u32 v52, v51, 3, v52")
    A(f"s_lshl_b32 s{S_T0}, s{S_NH}, 11")
    A(f"s_mul_i32 s{S_T0+1}, s{S_CH}, {U_CH}")
    A(f"s_add_u32 s{S_T0+1}, s{S_T0+1}, s{S_T0}")
    A(f"s_add_u32 s{S_T0+1}, s{S_T0+1}, {LDS_U+512}")
    A(f"v_add_u32 v53, s{S_T0+1}, v52")
    A(f"s_mul_i32 s{S_T0+1}, s{S_CH}, {XT_CH}")
    A(f"s_add_u32 s{S_T0+1}, s{S_T0+1}, s{S_T0}")
    A(f"s_add_u32 s{S_T0+1}, s{S_T0+1}, {LDS_XT}")
    A(f"v_add_u32 v54, s{S_T0+1}, v52")
    A(f"v_and_b32 v42, 1, v51")
    A(f"v_lshlrev_b32 v42, 3, v42")
    A(f"v_lshrrev_b32 v41, 1, v50")
    A(f"v_add_u32 v42, v42, v41")
    A(f"s_movk_i32 s{S_T0+8}, {448*64}")
    A(f"v_mul_lo_u32 v42, v42, s{S_T0+8}")
    A(f"v_and_b32 v41, 1, v50")
    A(f"v_lshl_add_u32 v42, v41, 5, v42")
    A(f"v_lshrrev_b32 v41, 1, v51")
    A(f"v_lshl_add_u32 v42, v41, 4, v42")
    A(f"s_lshl_b32 s{S_T0+8}, s{S_NH}, 5")
    A(f"s_mul_i32 s{S_T0+8}, s{S_T0+8}, {448*64}")
    A(f"s_add_u32 s{S_T0+9}, s{S_D0}, s{S_CH}")
    A(f"s_lshl_b32 s{S_T0+9}, s{S_T0+9}, 6")
    A(f"s_add_u32 s{S_T0+8}, s{S_T0+8}, s{S_T0+9}")
    A(f"s_add_u32 s{S_T0+8}, s{S_T0+8}, {WS_HT}")
    A(f"s_add_u32 s{S_T0+9}, s{S_T0+8}, {16*448*64}")
    for k in range(5):
        for x in l0[3*k:3*k+3]: A(x)
    issued=5
    wl=self.w1_items(0,W1_IN_CONV); wi=[0]; mc=[0]
    def wfill():
        mc[0]+=1
        if mc[0]%4==2 and wi[0]<len(wl):
            for x in wl[wi[0]]: A(x)
            wi[0]+=1
    nxt=loads(1); ni=0
    cur_t=-1
    for (t,d,txt) in mfmas(0):
        first = (t!=cur_t)
        if first:
            cur_t=t
            if t<=3: A(f"s_waitcnt lgkmcnt({3*(issued-1-t)})")
            elif t==4: A("s_waitcnt lgkmcnt(0)")
        A(txt)
        if first and issued<8:
            for x in l0[3*issued:3*issued+3]: A(x)
            issued+=1
        elif t>=4 and ni<len(nxt):
            A(nxt[ni]); ni+=1
    assert ni==len(nxt)

    epi=[]
    for tt in range(4):
        epi.append(f"ds_read_b64 v[{C_EU+2*tt}:{C_EU+2*tt+1}], v53 offset:{512*tt}")
        epi.append(f"ds_read_b64 v[{C_EX+2*tt}:{C_EX+2*tt+1}], v54 offset:{512*tt}")
    U=224; X=240
    PRE=160
    PRE=96
    UU=112
    pre=[]
    if self.mimic==0:
        pre.append(f"v_mov_b32 v47, s{S_DSKV}")
        for tt in range(4):
            for h in range(2):
                pre.append(f"v_cvt_f32_f16 v{UU+4*tt+2*h}, v{C_EU+2*tt+h}")
                pre.append(f"v_lshrrev_b32 v{UU+4*tt+2*h+1}, 16, v{C_EU+2*tt+h}")
                pre.append(f"v_cvt_f32_f16 v{UU+4*tt+2*h+1}, v{UU+4*tt+2*h+1}")
                pre.append(bf16_lo(PRE+4*tt+2*h, C_EX+2*tt+h)); pre.append(bf16_hi(PRE+4*tt+2*h+1, C_EX+2*tt+h))
        for r in range(16): pre.append(f"v_fma_f32 v{PRE+r}, v{UU+r}, v47, v{PRE+r}")
    for sp in range(1,4):
        if self.w1pf and sp==self.w1pf:
            lpf=self.lab()
            A("s_waitcnt vmcnt(0)")
            A(f"v_cmp_eq_u32 vcc, s{S_TAG}, v46")
            A(f"s_and_b32 s{S_T0+2}, vcc_lo, 0x3fff")
            A(f"s_cmp_eq_u32 s{S_T0+2}, 0x3fff")
            A(f"s_cbranch_scc0 {lpf}")
            A(f"s_lshl_b32 s{S_T0+2}, s{S_J}, 2")
            A(f"s_add_u32 s{S_T0+2}, s{S_T0+2}, s{S_W}")
            A(f"s_mul_i32 s{S_T0+2}, s{S_T0+2}, {56*1024}")
            A(f"s_and_b32 s{S_T0+3}, s{S_I}, 3")
            A(f"s_mul_i32 s{S_T0+3}, s{S_T0+3}, {14*1024}")
            A(f"s_add_u32 s{S_T0+2}, s{S_T0+2}, s{S_T0+3}")
            A(f"s_add_u32 s{S_T0+2}, s{S_T0+2}, {WS_WF1}")
            A(f"v_min_u32 v40, 55, v{V_LANE}")
            A(f"v_lshlrev_b32 v40, 7, v40")
            A(f"buffer_load_dword v253, v40, s[{SRD_WS}:{SRD_WS+3}], s{S_T0+2} offen sc1")
            A(f"s_add_u32 s{S_T0+2}, s{S_T0+2}, {7*1024}")
            A(f"buffer_load_dword v252, v40, s[{SRD_WS}:{SRD_WS+3}], s{S_T0+2} offen sc1")
            A(f"{lpf}:")
        A("s_waitcnt lgkmcnt(0)")
        nxt = loads(sp+1) if sp<3 else epi
        ni=0; pi=0; k=0
        for (t,d,txt) in mfmas(sp):
            A(txt); k+=1
            if ni<len(nxt): A(nxt[ni]); ni+=1
            elif sp==3 and pre:
                if k==12: A("s_waitcnt lgkmcnt(0)")
                if k>=12:
                    tgt=min(len(pre),(len(pre)*(k-11)+23)//24)
                    while pi<tgt: A(pre[pi]); pi+=1
            wfill()
        if sp==3:
            while pi<len(pre): A(pre[pi]); pi+=1
    assert wi[0]==len(wl)
    A(f"s_lshl_b32 s{S_T0}, s{S_W}, 12")
    A(f"v_lshl_add_u32 v55, v{V_LANE}, 4, s{S_T0}")
    if self.mimic==0:
        lA=self.lab(); lB=self.lab()
        A(f"s_cmp_eq_u32 s{S_NH}, 0")
        A(f"s_cbranch_scc0 {lA}")
        A("s_nop 5")
        for tt in range(4): A(f"ds_write_b128 v55, v[{C_ACC+16+4*tt}:{C_ACC+16+4*tt+3}] offset:{1024*tt}")
        A(f"s_branch {lB}")
        A(f"{lA}:")
        A("s_nop 5")
        for tt in range(4): A(f"ds_write_b128 v55, v[{C_ACC+4*tt}:{C_ACC+4*tt+3}] offset:{1024*tt}")
        A(f"{lB}:")
        A("v_xor_b32 v55, 4096, v55")
        A(f"v_mov_b32 v146, s{S_YS}\nv_mov_b32 v147, s{S_YS}")
        A("s_waitcnt lgkmcnt(0)")
        A("s_barrier")
        PT=128
        for tt in range(4): A(f"ds_read_b128 v[{PT+4*tt}:{PT+4*tt+3}], v55 offset:{1024*tt}")
        def fin(Y):
            for tt in range(4):
                A(f"s_waitcnt lgkmcnt({3-tt})")
                for p in (2*tt,2*tt+1):
                    A(f"v_pk_add_f32 v[{PT+2*p}:{PT+2*p+1}], v[{Y+2*p}:{Y+2*p+1}], v[{PT+2*p}:{PT+2*p+1}]")
                for p in (2*tt,2*tt+1):
                    A(f"v_pk_fma_f32 v[{PT+2*p}:{PT+2*p+1}], v[{PT+2*p}:{PT+2*p+1}], v[146:147], v[{PRE+2*p}:{PRE+2*p+1}]")
        lA=self.lab(); lB=self.lab()
        A(f"s_cmp_eq_u32 s{S_NH}, 0")
        A(f"s_cbranch_scc0 {lA}")
        fin(C_ACC)
        A(f"s_branch {lB}")
        A(f"{lA}:")
        fin(C_ACC+16)
        A(f"{lB}:")
        Y=PT
    else:
        l=self.lab()
        A(f"s_cmp_eq_u32 s{S_NH}, 0")
        A(f"s_cbranch_scc1 {l}")
        A("s_nop 7")
        for r in range(16): A(f"v_swap_b32 v{C_ACC+r}, v{C_ACC+16+r}")
        A(f"{l}:")
        A("s_nop 7")
        for tt in range(4): A(f"ds_write_b128 v55, v[{C_ACC+16+4*tt}:{C_ACC+16+4*tt+3}] offset:{1024*tt}")
        A("v_xor_b32 v55, 4096, v55")
        A("s_waitcnt lgkmcnt(0)")
        A("s_barrier")
    if self.mimic==0: pass
    else:
        for tt in range(4): A(f"ds_read_b128 v[{96+4*tt}:{96+4*tt+3}], v55 offset:{1024*tt}")
        U=112; X=128; Y=C_ACC
        for tt in range(4):
            for h in range(2):
                A(f"v_cvt_f32_f16 v{U+4*tt+2*h}, v{C_EU+2*tt+h}")
                A(f"v_cvt_f32_f16_sdwa v{U+4*tt+2*h+1}, v{C_EU+2*tt+h} dst_sel:DWORD dst_unused:UNUSED_PAD src0_sel:WORD_1")
                A(bf16_lo(X+4*tt+2*h, C_EX+2*tt+h)); A(bf16_hi(X+4*tt+2*h+1, C_EX+2*tt+h))
        A(f"v_mov_b32 v144, s{S_DSKV}\nv_mov_b32 v145, s{S_DSKV}\nv_mov_b32 v146, s{S_YS}\nv_mov_b32 v147, s{S_YS}")
        for p in range(8):
            A(f"v_pk_mul_f32 v[{U+2*p}:{U+2*p+1}], v[{U+2*p}:{U+2*p+1}], v[144:145]")
        if self.mimic>=1:
            for p in range(8): A(f"v_cvt_pk_bf16_f32 v{148+p}, v{U+2*p}, v{U+2*p+1}")
            for p in range(8): A(bf16_lo(U+2*p,148+p)); A(bf16_hi(U+2*p+1,148+p))
        A("s_waitcnt lgkmcnt(0)")
        for p in range(8):
            A(f"v_pk_add_f32 v[{Y+2*p}:{Y+2*p+1}], v[{Y+2*p}:{Y+2*p+1}], v[{96+2*p}:{96+2*p+1}]")
        for p in range(8):
            A(f"v_pk_mul_f32 v[{Y+2*p}:{Y+2*p+1}], v[{Y+2*p}:{Y+2*p+1}], v[146:147]")
        if self.mimic>=1:
            for p in range(8): A(f"v_cvt_pk_bf16_f32 v{148+p}, v{Y+2*p}, v{Y+2*p+1}")
            for p in range(8): A(bf16_lo(Y+2*p,148+p)); A(bf16_hi(Y+2*p+1,148+p))
        for p in range(8):
            A(f"v_pk_add_f32 v[{Y+2*p}:{Y+2*p+1}], v[{Y+2*p}:{Y+2*p+1}], v[{U+2*p}:{U+2*p+1}]")
        if self.mimic>=1:
            for p in range(8): A(f"v_cvt_pk_bf16_f32 v{148+p}, v{Y+2*p}, v{Y+2*p+1}")
            for p in range(8): A(bf16_lo(Y+2*p,148+p)); A(bf16_hi(Y+2*p+1,148+p))
        for p in range(8):
            A(f"v_pk_add_f32 v[{Y+2*p}:{Y+2*p+1}], v[{Y+2*p}:{Y+2*p+1}], v[{X+2*p}:{X+2*p+1}]")
    H=148
    for p in range(8): A(f"v_cvt_pk_bf16_f32 v{H+p}, v{Y+2*p}, v{Y+2*p+1}")
    for pr in range(2):
        b=H+4*pr
        A(f"v_permlane16_swap_b32 v{b}, v{b+2}")
        A(f"v_permlane16_swap_b32 v{b+1}, v{b+3}")
    A(f"buffer_store_dwordx4 v[{H}:{H+3}], v42, s[{SRD_WS}:{SRD_WS+3}], s{S_T0+8} offen sc1")
    A(f"buffer_store_dwordx4 v[{H+4}:{H+7}], v42, s[{SRD_WS}:{SRD_WS+3}], s{S_T0+9} offen sc1")

@add_method
def sync_all(self):
    A=self.A
    self.flag_load()
    A("s_waitcnt vmcnt(0)")
    A("s_barrier")
    l=self.lab()
    A(f"s_cmp_lg_u32 s{S_W}, 0")
    A(f"s_cbranch_scc1 {l}")
    A(f"s_and_b32 s{S_T0}, s{S_WG}, 7")
    A(f"s_lshl_b32 s{S_T0}, s{S_T0}, 7")
    A(f"s_add_u32 s{S_T0}, s{S_T0}, {WS_CNT2}")
    A(f"v_lshlrev_b32 v48, 10, v{V_LANE}")
    A("v_mov_b32 v49, 1")
    A("s_mov_b64 exec, 0xff")
    A(f"buffer_atomic_add v49, v48, s[{SRD_WS}:{SRD_WS+3}], s{S_T0} offen")
    A("s_mov_b64 exec, -1")
    A(f"{l}:")

@add_method
def sync_all_wait(self):
    A=self.A
    l=self.lab(); lp=self.lab('Lpoll'); le=self.lab()
    A(f"s_cmp_lg_u32 s{S_W}, 0")
    A(f"s_cbranch_scc1 {l}")
    A(f"s_lshr_b32 s{S_T0}, s{S_WG}, 3")
    A(f"s_and_b32 s{S_T0}, s{S_T0}, 7")
    A(f"s_lshl_b32 s{S_T0}, s{S_T0}, 10")
    A(f"s_add_u32 s{S_T0}, s{S_T0}, {WS_CNT2}")
    A(f"v_and_b32 v48, 7, v{V_LANE}")
    A(f"v_lshlrev_b32 v48, 7, v48")
    A(f"s_mov_b32 s{S_T0+1}, 0")
    A(f"{lp}:")
    A(f"buffer_load_dword v49, v48, s[{SRD_WS}:{SRD_WS+3}], s{S_T0} offen sc1")
    A("s_waitcnt vmcnt(0)")
    A("v_cmp_gt_u32 vcc, 28, v49")
    A(f"s_add_u32 s{S_T0+1}, s{S_T0+1}, 1")
    A(f"s_cbranch_vccz {le}")
    A(f"s_cmp_lt_u32 s{S_T0+1}, 0x8000")
    A(f"s_cbranch_scc1 {lp}")
    A(f"{le}:")
    A(f"{l}:")
    A("s_barrier")

class Stream:
    def __init__(self, A):
        self.A=A; self.lds=[]; self.vm=[]
    def ds(self, text, tag=None):
        self.A(text); self.lds.append(tag)
    def vmem(self, text, tag=None):
        self.A(text); self.vm.append(tag)
    def need_lds(self, tags):
        idx=-1
        for t in tags:
            if t in self.lds: idx=max(idx, len(self.lds)-1-self.lds[::-1].index(t))
        if idx>=0:
            n=len(self.lds)-idx-1
            n=min(n,15)
            self.A(f"s_waitcnt lgkmcnt({n})")
            self.lds=self.lds[len(self.lds)-n:] if n>0 else []
    def need_vm(self, tags):
        idx=-1
        for t in tags:
            if t in self.vm: idx=max(idx, len(self.vm)-1-self.vm[::-1].index(t))
        if idx>=0:
            n=len(self.vm)-idx-1
            n=min(n,63)
            self.A(f"s_waitcnt vmcnt({n})")
            self.vm=self.vm[len(self.vm)-n:] if n>0 else []
    def item(self, it):
        if isinstance(it,str): self.A(it)
        elif it[0]=='ds': self.ds(it[1],it[2])
        elif it[0]=='vm': self.vmem(it[1],it[2])
        elif it[0]=='needl': self.need_lds(it[1])
        elif it[0]=='needv': self.need_vm(it[1])

G_ACC=[64,96]; G_CS=128; G_RING=160; G_SB=184; G_VB=56; G_ST=54; G_ET=60; G_PK=232; G_R2=250; G_MU=240; G_C1=244
LDS_ST=114688
@add_method
def cs_mfma(self, s0, s1, init=True):
    A=self.A
    if s0==0 and init:
        for k in range(4): A(f"v_mov_b32 v{48+k}, 0x3f803f80")
    for s in range(s0,s1):
        for t in range(2):
            d=G_CS+16*t
            c="0" if s==0 else f"v[{d}:{d+15}]"
            A(f"v_mfma_f32_32x32x16_bf16 v[{d}:{d+15}], a[{8*s+4*t}:{8*s+4*t+3}], v[48:51], {c}")

def wd_loc(sig, ca):
    if sig<5: return ('v', 4+8*sig+4*ca)
    if sig<9: return ('a', 224+8*(sig-5)+4*ca)
    if sig<14: return ('v', 192+8*(sig-9)+4*ca)
    return ('a', 8*(sig-14)+4*ca)

@add_method
def wd_item(self, sig, ca):
    k,r=wd_loc(sig,ca)
    it=[]
    if sig%8==0 and sig>0: it.append(f"s_add_u32 s{S_T0+12+ca}, s{S_T0+12+ca}, 8192")
    va,off=("v48",(sig%8)*1024) if sig%8<4 else ("v3",(sig%8-4)*1024)
    it.append(('vm',f"buffer_load_dwordx4 {k}[{r}:{r+3}], {va}, s[{SRD_WS}:{SRD_WS+3}], s{S_T0+12+ca} offen offset:{off} sc1",f"WD{sig}"))
    return it

PF=4
@add_method
def gemm1(self):
    A=self.A; S=Stream(A); self.S=S
    A(f"s_mul_i32 s{S_T0}, s{S_I}, {4*28672}")
    A(f"s_mul_i32 s{S_T0+1}, s{S_W}, 7168")
    A(f"s_add_u32 s{S_T0}, s{S_T0}, s{S_T0+1}")
    A(f"s_add_u32 s{S_T0}, s{S_T0}, {WS_HT}")
    A(f"v_lshlrev_b32 v48, 4, v{V_LANE}")
    A(f"v_add_u32 v3, 4096, v48")
    def xdma(lt,k):
        base=lt*28672+(k//4)*4096
        it=[]
        if k%4==0: it+=[f"s_add_u32 s{S_T0+2}, s{S_T0}, {base}", f"s_add_u32 m0, s{S_T0+1}, {base}"]
        it.append(('vm',f"buffer_load_dwordx4 v48, s[{SRD_WS}:{SRD_WS+3}], s{S_T0+2} offen offset:{(k%4)*1024} sc1 lds", f"X{lt}"))
        return it
    for lt in range(2):
        for k in range(7):
            for it in xdma(lt,k): S.item(it)
    self.wd_setup()
    self.wdflag_load(S)
    A(f"s_lshl_b32 s{S_T0+3}, s{S_J}, 2")
    A(f"s_add_u32 s{S_T0+3}, s{S_T0+3}, s{S_W}")
    A(f"s_mul_i32 s{S_T0+3}, s{S_T0+3}, {2*896}")
    A(f"s_add_u32 s{S_T0+3}, s{S_T0+3}, {WS_CS}")
    A(f"v_lshrrev_b32 v50, 5, v{V_LANE}")
    A(f"v_mul_u32_u24 v50, 896, v50")
    A(f"v_and_b32 v51, 31, v{V_LANE}")
    A(f"v_lshl_add_u32 v50, v51, 2, v50")
    for g in range(7):
        S.vmem(f"buffer_load_dword v{184+g}, v50, s[{SRD_WS}:{SRD_WS+3}], s{S_T0+3} offen offset:{g*128} sc1","CSP")
    A(f"s_lshl_b32 s{S_T0+3}, s{S_W}, 8")
    A(f"s_add_u32 s{S_T0+3}, s{S_T0+3}, {LDS_ST+2048}")
    A(f"v_lshl_add_u32 v191, v{V_LANE}, 2, s{S_T0+3}")
    A(f"v_lshrrev_b32 v55, 5, v{V_LANE}")
    A(f"v_lshlrev_b32 v55, 4, v55")
    A(f"v_add_u32 v55, s{S_T0+3}, v55")
    A(f"v_lshrrev_b32 v50, 5, v{V_LANE}")
    A(f"v_lshlrev_b32 v50, 9, v50")
    A(f"v_bfe_u32 v51, v{V_LANE}, 2, 2")
    A(f"v_lshl_add_u32 v50, v51, 6, v50")
    A(f"v_bfe_u32 v51, v{V_LANE}, 4, 1")
    A(f"v_lshl_add_u32 v50, v51, 5, v50")
    A(f"v_and_b32 v51, 3, v{V_LANE}")
    A(f"v_lshl_add_u32 v50, v51, 3, v50")
    for g in range(4):
        A(f"s_add_u32 s{S_T0+3}, s{S_W}, {g}")
        A(f"s_and_b32 s{S_T0+3}, s{S_T0+3}, 3")
        A(f"s_sub_u32 s{S_T0+3}, s{S_T0+3}, {g}")
        A(f"s_mul_i32 s{S_T0+3}, s{S_T0+3}, 7168")
        A(f"v_add_u32 v{G_VB+g}, s{S_T0+3}, v50")
    A(f"v_and_b32 v52, 31, v{V_LANE}")
    A(f"v_lshlrev_b32 v52, 3, v52")
    A(f"s_lshl_b32 s{S_T0+10}, s{S_I}, 10")
    A(f"s_add_u32 s{S_T0+10}, s{S_T0+10}, {WS_ST2}")
    A(f"s_lshl_b32 s{S_T0+4}, s{S_I}, 2")
    A(f"s_mul_i32 s{S_T0+4}, s{S_T0+4}, 112")
    A(f"s_lshl_b32 s{S_T0+5}, s{S_J}, 3")
    A(f"s_add_u32 s{S_T0+4}, s{S_T0+4}, s{S_T0+5}")
    A(f"s_lshl_b32 s{S_T0+5}, s{S_W}, 1")
    A(f"s_add_u32 s{S_T0+4}, s{S_T0+4}, s{S_T0+5}")
    A(f"s_lshl_b32 s{S_T0+4}, s{S_T0+4}, 10")
    A(f"s_add_u32 s{S_T0+4}, s{S_T0+4}, {WS_M}")
    SM=S_T0+4
    RING=[G_RING+4*k for k in range(6)]
    def breg(p,s): return RING[(28*p+s)%6]
    def bload(p,s):
        r=breg(p,s); vb=G_VB+s//7
        return [('ds',f"ds_read_b64_tr_b16 v[{r}:{r+1}], v{vb} offset:{s*1024}",f"B{p}_{s}a"),
                ('ds',f"ds_read_b64_tr_b16 v[{r+2}:{r+3}], v{vb} offset:{s*1024+256}",f"B{p}_{s}b")]
    SG2=G_SB
    def stats_loads():
        it=[]
        for p in range(4):
            it.append(('vm',f"buffer_load_dwordx2 v[{SG2+2*p}:{SG2+2*p+1}], v52, s[{SRD_WS}:{SRD_WS+3}], s{S_T0+10} offen offset:{p*256} sc1","ST2"))
        return it
    def stats_check():
        lp=self.lab('Lpoll'); le=self.lab()
        S.need_vm(["ST2"])
        A(f"s_mov_b32 s{S_T0+8}, 0")
        A(f"{lp}:")
        A(f"v_xor_b32 v53, s{S_TAG}, v{SG2+1}")
        for p in range(1,4):
            A(f"v_xor_b32 v54, s{S_TAG}, v{SG2+2*p+1}")
            A(f"v_or_b32 v53, v53, v54")
        A("v_cmp_ne_u32 vcc, 0, v53")
        A(f"s_add_u32 s{S_T0+8}, s{S_T0+8}, 1")
        A(f"s_cbranch_vccz {le}")
        for p in range(4):
            A(f"buffer_load_dwordx2 v[{SG2+2*p}:{SG2+2*p+1}], v52, s[{SRD_WS}:{SRD_WS+3}], s{S_T0+10} offen offset:{p*256} sc1")
        A("s_waitcnt vmcnt(0)")
        A(f"s_cmp_lt_u32 s{S_T0+8}, 0x8000")
        A(f"s_cbranch_scc1 {lp}")
        A(f"{le}:")
    def stats_final(p):
        g=SG2+2*p; T=G_ST
        return [f"v_and_b32 v{G_MU+p}, 0xffff0000, v{g}",
                f"v_lshlrev_b32 v{T}, 16, v{g}",
                f"v_rcp_f32 v{T}, v{T}",
                f"s_nop 0",
                f"v_mul_f32 v{G_C1+p}, {fl(-LOG2E)}, v{T}",
                f"v_mul_f32 v{G_R2+p}, v{T}, v{T}"]
    def epi_items(p):
        acc=G_ACC[p&1]; it=[]; E=G_ET; mu=G_MU+p; c1=G_C1+p
        for r0 in range(0,16,4):
            rs=range(r0,r0+4)
            for r in rs: it.append(f"v_fma_f32 v{acc+r}, -v{mu}, v{G_CS+r}, v{acc+r}")
            for r in rs: it.append(f"v_fma_f32 v{acc+16+r}, -v{mu}, v{G_CS+16+r}, v{acc+16+r}")
            for r in rs: it.append(f"v_mul_f32 v{E+(r&3)}, v{c1}, v{acc+r}")
            for r in rs: it.append(f"v_exp_f32 v{E+(r&3)}, v{E+(r&3)}")
            for r in rs: it.append(f"v_mul_f32 v{acc+r}, v{acc+r}, v{acc+16+r}")
            for r in rs: it.append(f"v_add_f32 v{E+(r&3)}, 1.0, v{E+(r&3)}")
            for r in rs: it.append(f"v_rcp_f32 v{E+(r&3)}, v{E+(r&3)}")
            for r in rs: it.append(f"v_mul_f32 v{acc+r}, v{acc+r}, v{E+(r&3)}")
            q=r0//4
            it.append(f"v_cvt_pk_bf16_f32 v{G_PK+2*q}, v{acc+r0}, v{acc+r0+1}")
            it.append(f"v_cvt_pk_bf16_f32 v{G_PK+2*q+1}, v{acc+r0+2}, v{acc+r0+3}")
            if q==1 or q==3:
                h=q//2
                if h==0: it.append(f"s_add_u32 s{SM+1}, s{SM}, {p*112*1024}")
                it.append(('vm',f"buffer_store_dwordx4 v[{G_PK+4*h}:{G_PK+4*h+3}], v48, s[{SRD_WS}:{SRD_WS+3}], s{SM+1} offen offset:{h*1024} sc1",f"M{p}_{h}"))
        return it
    vmx={0:[],1:[],2:[],3:[]}
    wr=self.w1_items(W1_PRE,28)
    for n,it in enumerate(wr):
        sl=W1_PRE+n//2
        vmx[0].append((n//2, [('vm',it[0],f"W{sl}")]))
    k=0
    for lt in (2,3):
        for q in range(7):
            vmx[0].append((min(27,len(wr)//2+k), xdma(lt,q))); k+=1
    csit=[('needv',["CSP"])]
    for g in range(1,7): csit.append(f"v_add_f32 v184, v184, v{184+g}")
    csit.append(('ds',"ds_write_b32 v191, v184","CSW"))
    for t in range(2):
        for q in range(4):
            csit.append(('ds',f"ds_read_b128 v[{G_CS+16*t+4*q}:{G_CS+16*t+4*q+3}], v55 offset:{t*128+q*32}","CSR"))
    n=0
    for sig in range(5):
        for ca in range(2): vmx[1].append((9+(18*n)//10, self.wd_item(sig,ca))); n+=1
    n=0
    for sig in range(5,14):
        for ca in range(2): vmx[2].append((1+(26*n)//18, self.wd_item(sig,ca))); n+=1
    for n in range(28): vmx[3].append((n, self.wd_item(14+n//2, n%2)))
    S.need_vm(["X0"])
    A("s_barrier")
    self.stamp('x0')
    for s in range(PF):
        for it in bload(0,s): S.item(it)
    BAR=16; csi=[0]
    ST_LOAD=2; ST_CHK=8
    for p in range(4):
        acc=G_ACC[p&1]
        ep=epi_items(p-1) if p>0 else []
        e0=1
        if p==1:
            while csi[0]<len(csit): S.item(csit[csi[0]]); csi[0]+=1
            ep=[('needl',["CSR"])]+sum((stats_final(q) for q in range(4)),[])+ep
            e0=ST_CHK+1
        epi=0
        for s in range(28):
            if s%2==0: S.need_lds([f"B{p}_{s}a",f"B{p}_{s}b",f"B{p}_{s+1}a",f"B{p}_{s+1}b"])
            if p==0 and s>=W1_PRE and s%2==0: S.need_vm([f"W{s}",f"W{s+1}"])
            if p==0 and s>=18 and csi[0]<len(csit):
                for _ in range(2):
                    if csi[0]<len(csit): S.item(csit[csi[0]]); csi[0]+=1
            r=breg(p,s)
            for t in range(2):
                d=acc+16*t
                c="0" if s==0 else f"v[{d}:{d+15}]"
                A(f"v_mfma_f32_32x32x16_bf16 v[{d}:{d+15}], a[{8*s+4*t}:{8*s+4*t+3}], v[{r}:{r+3}], {c}")
                ns=s+PF
                if ns<28: S.item(bload(p,ns)[t])
                elif p<3: S.item(bload(p+1,ns-28)[t])
                gap=2*s+t
                if t==1:
                    for (sl,items) in vmx[p]:
                        if sl==s:
                            for it in items: S.item(it)
                if s>=e0 and ep:
                    ng=2*(28-e0)-1
                    tgt=min(len(ep),(len(ep)*(gap-2*e0+1)+ng-1)//ng)
                    while epi<tgt: S.item(ep[epi]); epi+=1
            if p==1 and s==ST_LOAD:
                for it in stats_loads(): S.item(it)
            if p==1 and s==ST_CHK: stats_check()
            if p<3 and s in (6-PF,13-PF,20-PF,27-PF):
                g={6-PF:0,13-PF:1,20-PF:2,27-PF:3}[s]
                A(f"v_add_u32 v{G_VB+g}, 28672, v{G_VB+g}")
            if s==BAR:
                if p<3: S.need_vm([f"X{p+1}"])
                if p==0: self.wdflag_check(S)
                if p==3: S.need_vm(["M1_1"])
                if p<3 or True: A("s_barrier")
                if p==3:
                    l=self.lab()
                    A(f"s_cmp_lg_u32 s{S_W}, 0")
                    A(f"s_cbranch_scc1 {l}")
                    A(f"s_lshl_b32 s{S_T0+2}, s{S_I}, 7")
                    A(f"s_add_u32 s{S_T0+2}, s{S_T0+2}, {WS_CNT3}")
                    A("v_mov_b32 v55, 1")
                    A("s_mov_b64 exec, 1")
                    A(f"buffer_atomic_add v55, v{V_ZERO}, s[{SRD_WS}:{SRD_WS+3}], s{S_T0+2} offen")
                    A("s_mov_b64 exec, -1")
                    A(f"{l}:")
        while epi<len(ep): S.item(ep[epi]); epi+=1
        if self.ts and (self.tsonly is None or f'pass{p}' in self.tsonly):
            self.stamp(f'pass{p}'); S.lds=[]
    A(f"s_lshl_b32 s{S_T0+2}, s{S_I}, 7")
    A(f"s_add_u32 s{S_T0+2}, s{S_T0+2}, {WS_CNT3}")
    S.vmem(f"buffer_load_dword v55, v{V_ZERO}, s[{SRD_WS}:{SRD_WS+3}], s{S_T0+2} offen sc1","pollE")
    A("s_nop 7")
    acc=G_ACC[1]; E=G_ET
    A(f"v_mov_b32 v184, v{G_MU+3}")
    A(f"v_mov_b32 v186, v{G_C1+3}")
    for r0 in range(0,16,4):
        for r in (r0,r0+2): A(f"v_pk_fma_f32 v[{acc+r}:{acc+r+1}], v[{G_CS+r}:{G_CS+r+1}], v[184:185], v[{acc+r}:{acc+r+1}] op_sel_hi:[1,0,1] neg_lo:[0,1,0] neg_hi:[0,1,0]")
        for r in (r0,r0+2): A(f"v_pk_fma_f32 v[{acc+16+r}:{acc+16+r+1}], v[{G_CS+16+r}:{G_CS+16+r+1}], v[184:185], v[{acc+16+r}:{acc+16+r+1}] op_sel_hi:[1,0,1] neg_lo:[0,1,0] neg_hi:[0,1,0]")
        for r in (r0,r0+2): A(f"v_pk_mul_f32 v[{E+(r&3)}:{E+(r&3)+1}], v[{acc+r}:{acc+r+1}], v[186:187] op_sel_hi:[1,0]")
        for r in range(4): A(f"v_exp_f32 v{E+r}, v{E+r}")
        for r in (r0,r0+2): A(f"v_pk_mul_f32 v[{acc+r}:{acc+r+1}], v[{acc+r}:{acc+r+1}], v[{acc+16+r}:{acc+16+r+1}]")
        for r in (0,2): A(f"v_pk_add_f32 v[{E+r}:{E+r+1}], v[{E+r}:{E+r+1}], 1.0 op_sel_hi:[1,0]")
        for r in range(4): A(f"v_rcp_f32 v{E+r}, v{E+r}")
        for r in (r0,r0+2): A(f"v_pk_mul_f32 v[{acc+r}:{acc+r+1}], v[{acc+r}:{acc+r+1}], v[{E+(r&3)}:{E+(r&3)+1}]")
        q=r0//4
        A(f"v_cvt_pk_bf16_f32 v{G_PK+2*q}, v{acc+r0}, v{acc+r0+1}")
        A(f"v_cvt_pk_bf16_f32 v{G_PK+2*q+1}, v{acc+r0+2}, v{acc+r0+3}")
        if q in (1,3):
            h=q//2
            if h==0: A(f"s_add_u32 s{SM+1}, s{SM}, {3*112*1024}")
            S.vmem(f"buffer_store_dwordx4 v[{G_PK+4*h}:{G_PK+4*h+3}], v48, s[{SRD_WS}:{SRD_WS+3}], s{SM+1} offen offset:{h*1024} sc1",f"M3_{h}")

H_ACC=64
H_RING=128
NRING=16
LDS_RED=0
LDS_RES=49152
@add_method
def gemm2(self):
    A=self.A; S=self.S
    A(f"s_cmp_ge_u32 s{S_J}, 7")
    A(f"s_cselect_b32 s{S_T0}, 1, 0")
    A(f"s_cselect_b32 s{S_T0+6}, 7, 0")
    A(f"s_sub_u32 s{S_T0+6}, s{S_J}, s{S_T0+6}")
    A(f"s_lshl_b32 s{S_T0+1}, s{S_I}, 2")
    A(f"s_sub_u32 s{S_T0+3}, 3, s{S_T0}")
    A(f"s_add_u32 s{S_T0+3}, s{S_T0+3}, s{S_T0+1}")
    A(f"s_add_u32 s{S_T0+1}, s{S_T0+1}, s{S_T0}")
    A(f"s_mul_i32 s{S_T0+7}, s{S_W}, 28")
    for la,src in ((0,S_T0+1),(1,S_T0+3)):
        A(f"s_mul_i32 s{S_T0+4+la}, s{src}, 112")
        A(f"s_add_u32 s{S_T0+4+la}, s{S_T0+4+la}, s{S_T0+7}")
        A(f"s_lshl_b32 s{S_T0+4+la}, s{S_T0+4+la}, 10")
        A(f"s_add_u32 s{S_T0+4+la}, s{S_T0+4+la}, {WS_M}")
    lp=self.lab('Lpoll'); le=self.lab()
    A(f"s_mov_b32 s{S_T0+8}, 0")
    A(f"s_waitcnt vmcnt(2)")
    A(f"{lp}:")
    A("v_cmp_gt_u32 vcc, 14, v55")
    A(f"s_cbranch_vccz {le}")
    A(f"buffer_load_dword v55, v{V_ZERO}, s[{SRD_WS}:{SRD_WS+3}], s{S_T0+2} offen sc1")
    A("s_waitcnt vmcnt(0)")
    A(f"s_add_u32 s{S_T0+8}, s{S_T0+8}, 1")
    A(f"s_cmp_lt_u32 s{S_T0+8}, 0x8000")
    A(f"s_cbranch_scc1 {lp}")
    A(f"{le}:")
    S2=Stream(A); S2.vm=["Mfin","Mfin"]
    def mload(la,s):
        r=H_RING+4*((28*la+s)%NRING)
        if s%8==0 and s>0: A(f"s_add_u32 s{S_T0+4+la}, s{S_T0+4+la}, 8192")
        va,off=("v48",(s%8)*1024) if s%8<4 else ("v3",(s%8-4)*1024)
        S2.vmem(f"buffer_load_dwordx4 v[{r}:{r+3}], {va}, s[{SRD_WS}:{SRD_WS+3}], s{S_T0+4+la} offen offset:{off} sc1", f"m{la}_{s}")
    NPRE=6
    for s_ in range(NPRE): mload(0,s_)
    S2.need_vm(["Mfin"])
    A("s_barrier")
    l=self.lab()
    A(f"s_cmp_lg_u32 s{S_W}, 0")
    A(f"s_cbranch_scc1 {l}")
    A(f"s_lshl_b32 s{S_T0+10}, s{S_I}, 7")
    A(f"s_add_u32 s{S_T0+10}, s{S_T0+10}, {WS_CNT3+2048}")
    A("v_mov_b32 v55, 1")
    A("s_mov_b64 exec, 1")
    A(f"buffer_atomic_add v55, v{V_ZERO}, s[{SRD_WS}:{SRD_WS+3}], s{S_T0+10} offen")
    l2=self.lab()
    A(f"s_cmp_lg_u32 s{S_WG}, 0")
    A(f"s_cbranch_scc1 {l2}")
    A(f"v_mov_b32 v55, s{S_TAG}")
    A(f"buffer_store_dword v55, v{V_ZERO}, s[{SRD_WS}:{SRD_WS+3}], 0 offen sc1")
    A(f"{l2}:")
    A("s_mov_b64 exec, -1")
    A(f"{l}:")
    self.stamp('sync3 arrive')
    A(f"s_lshl_b32 s{S_T0+10}, s{S_I}, 7")
    A(f"s_add_u32 s{S_T0+10}, s{S_T0+10}, {WS_CNT3+2048}")
    A(f"s_lshl_b32 s{S_T0+11}, s{S_T0+6}, 6")
    A(f"s_lshl_b32 s{S_T0+7}, s{S_NH}, 5")
    A(f"s_add_u32 s{S_T0+11}, s{S_T0+11}, s{S_T0+7}")
    A(f"s_lshl_b32 s{S_T0+7}, s{S_CH}, 4")
    A(f"s_add_u32 s{S_T0+11}, s{S_T0+11}, s{S_T0+7}")
    for la,src,dst in ((0,S_T0+1,S_T0+8),(1,S_T0+3,S_T0+9)):
        A(f"s_mul_i32 s{dst}, s{src}, 448")
        A(f"s_add_u32 s{dst}, s{dst}, s{S_T0+11}")
        A(f"s_lshl_b32 s{dst}, s{dst}, 6")
        A(f"s_add_u32 s{dst}, s{dst}, {WS_HT}")
    A(f"s_lshl_b32 s{S_T0+11}, s{S_T0+11}, 1")
    A(f"s_mul_i32 s{S_T0+14}, s{S_T0+1}, {32*896}")
    A(f"s_add_u32 s{S_T0+14}, s{S_T0+14}, s{S_T0+11}")
    A(f"s_mul_i32 s{S_T0+15}, s{S_T0+3}, {32*896}")
    A(f"s_add_u32 s{S_T0+15}, s{S_T0+15}, s{S_T0+11}")
    A(f"s_lshl_b32 s{S_T0+11}, s{S_W}, 11")
    A(f"s_add_u32 s{S_T0+11}, s{S_T0+11}, {LDS_RES}")
    A(f"s_mov_b32 s{SRD_W}, s{S_OUT}\ns_mov_b32 s{SRD_W+1}, s{S_OUT+1}\ns_mov_b32 s{SRD_W+2}, {L_*D_*2}\ns_mov_b32 s{SRD_W+3}, 0x20000")
    A(f"s_cmp_eq_u32 s{S_T0}, 0")
    A("s_cselect_b64 vcc, -1, 0")
    A(f"v_cndmask_b32 v248, v{G_R2+1}, v{G_R2}, vcc")
    A(f"v_cndmask_b32 v254, v{G_R2+2}, v{G_R2+3}, vcc")
    A("v_mov_b32 v249, v248\nv_mov_b32 v255, v254")
    A(f"v_lshrrev_b32 v50, 5, v{V_LANE}")
    A(f"v_lshlrev_b32 v50, 8, v50")
    A(f"v_bfe_u32 v51, v{V_LANE}, 2, 2")
    A(f"v_lshl_add_u32 v50, v51, 6, v50")
    A(f"v_bfe_u32 v51, v{V_LANE}, 4, 1")
    A(f"v_lshl_add_u32 v50, v51, 5, v50")
    A(f"v_and_b32 v51, 3, v{V_LANE}")
    A(f"v_lshl_add_u32 v50, v51, 3, v50")
    A(f"v_add_u32 v50, s{S_T0+11}, v50")
    A(f"v_and_b32 v52, 31, v{V_LANE}")
    A(f"v_mul_u32_u24 v52, 896, v52")
    A(f"v_lshrrev_b32 v51, 5, v{V_LANE}")
    A(f"v_lshl_add_u32 v52, v51, 4, v52")
    for x in (1,2,3):
        A(f"s_xor_b32 s{S_T0+7}, s{S_W}, {x}")
        A(f"s_mul_i32 s{S_T0+7}, s{S_T0+7}, 6144")
        A(f"s_add_u32 s{S_T0+7}, s{S_T0+7}, {LDS_RED+(x-1)*2048}")
        A(f"v_add_u32 v{43+x}, s{S_T0+7}, v48")
    A(f"s_mul_i32 s{S_T0+7}, s{S_W}, 6144")
    A(f"s_add_u32 s{S_T0+7}, s{S_T0+7}, {LDS_RED}")
    A(f"v_add_u32 v47, s{S_T0+7}, v48")
    def by_half(fn):
        la_=self.lab('Lh'); lb_=self.lab('Lh')
        A(f"s_cmp_ge_u32 s{S_W}, 2")
        A(f"s_cbranch_scc1 {la_}")
        fn(0)
        A(f"s_branch {lb_}")
        A(f"{la_}:")
        fn(1)
        A(f"{lb_}:")
    def red_write(la):
        def f(h):
            b0=H_ACC+32*la; b1=b0+16
            for x,r in ((2,b0+8*(1-h)),(1,b1+8*h),(3,b1+8*(1-h))):
                for q in range(2):
                    A(f"ds_write_b128 v{43+x}, v[{r+4*q}:{r+4*q+3}] offset:{la*24576+q*1024}")
        by_half(f)
    def red_final(la):
        P=208; RS=232; O=244
        A(f"ds_read_b64_tr_b16 v[{RS}:{RS+1}], v50 offset:{la*1024}")
        A(f"ds_read_b64_tr_b16 v[{RS+2}:{RS+3}], v50 offset:{la*1024+512}")
        for k in range(3):
            for q in range(2):
                A(f"ds_read_b128 v[{P+8*k+4*q}:{P+8*k+4*q+3}], v47 offset:{la*24576+k*2048+q*1024}")
        A("s_waitcnt lgkmcnt(6)")
        for d in range(4): A(bf16_lo(RS+4+2*d,RS+d)); A(bf16_hi(RS+5+2*d,RS+d))
        A("s_waitcnt lgkmcnt(2)")
        for r in range(0,8,2): A(f"v_pk_add_f32 v[{P+r}:{P+r+1}], v[{P+r}:{P+r+1}], v[{P+8+r}:{P+8+r+1}]")
        A("s_waitcnt lgkmcnt(0)")
        for r in range(0,8,2): A(f"v_pk_add_f32 v[{P+r}:{P+r+1}], v[{P+r}:{P+r+1}], v[{P+16+r}:{P+16+r+1}]")
        def f(h):
            b=H_ACC+32*la+8*h
            for r in range(0,8,2): A(f"v_pk_add_f32 v[{P+r}:{P+r+1}], v[{P+r}:{P+r+1}], v[{b+r}:{b+r+1}]")
        by_half(f)
        r2=(248,254)[la]
        if self.mimic>=1:
            for r in range(0,8,2): A(f"v_pk_mul_f32 v[{P+r}:{P+r+1}], v[{P+r}:{P+r+1}], v[{r2}:{r2+1}]")
            for r in range(0,8,2): A(f"v_cvt_pk_bf16_f32 v{O+r//2}, v{P+r}, v{P+r+1}")
            for r in range(0,8,2): A(bf16_lo(P+r,O+r//2)); A(bf16_hi(P+r+1,O+r//2))
            for r in range(0,8,2): A(f"v_pk_add_f32 v[{P+r}:{P+r+1}], v[{P+r}:{P+r+1}], v[{RS+4+r}:{RS+4+r+1}]")
        else:
            for r in range(0,8,2): A(f"v_pk_fma_f32 v[{P+r}:{P+r+1}], v[{P+r}:{P+r+1}], v[{r2}:{r2+1}], v[{RS+4+r}:{RS+4+r+1}]")
        if self.perturb:
            for r in range(8): A(f"v_add_f32 v{P+r}, {fl(self.perturb)}, v{P+r}")
        for r in range(0,8,2): A(f"v_cvt_pk_bf16_f32 v{O+r//2}, v{P+r}, v{P+r+1}")
        A(f"v_permlane32_swap_b32 v{O}, v{O+2}")
        A(f"v_permlane32_swap_b32 v{O+1}, v{O+3}")
        return f"buffer_store_dwordx4 v[{O}:{O+3}], v52, s[{SRD_W}:{SRD_W+3}], s{S_T0+14+la} offen"
    def mf(la,s):
        for ca in range(2):
            d=H_ACC+16*(2*la+ca)
            c="0" if s==0 else f"v[{d}:{d+15}]"
            k,r=wd_loc(s,ca); rr=H_RING+4*((28*la+s)%NRING)
            A(f"v_mfma_f32_32x32x16_bf16 v[{d}:{d+15}], {k}[{r}:{r+3}], v[{rr}:{rr+3}], {c}")
    for s_ in range(NPRE,NRING): mload(0,s_)
    POLL_AT=28-NRING
    for s_ in range(28):
        S2.need_vm([f"m0_{s_}"])
        mf(0,s_)
        if s_+NRING<28: mload(0,s_+NRING)
        if s_==POLL_AT-1:
            S2.vmem(f"buffer_load_dword v55, v{V_ZERO}, s[{SRD_WS}:{SRD_WS+3}], s{S_T0+10} offen sc1","pollL")
            A(f"s_mov_b32 m0, s{S_T0+11}")
            S2.vmem(f"buffer_load_dwordx4 v48, s[{SRD_WS}:{SRD_WS+3}], s{S_T0+8} offen sc1 lds","res")
            A(f"s_add_u32 m0, s{S_T0+11}, 1024")
            S2.vmem(f"buffer_load_dwordx4 v48, s[{SRD_WS}:{SRD_WS+3}], s{S_T0+9} offen sc1 lds","res")
        if s_==POLL_AT+5:
            lp=self.lab('Lpoll'); le=self.lab()
            S2.need_vm(["pollL"])
            A(f"s_mov_b32 s{S_T0+7}, 0")
            A(f"{lp}:")
            A("v_cmp_gt_u32 vcc, 14, v55")
            A(f"s_cbranch_vccz {le}")
            A(f"buffer_load_dword v55, v{V_ZERO}, s[{SRD_WS}:{SRD_WS+3}], s{S_T0+10} offen sc1")
            A("s_waitcnt vmcnt(0)")
            A(f"s_add_u32 s{S_T0+7}, s{S_T0+7}, 1")
            A(f"s_cmp_lt_u32 s{S_T0+7}, 0x8000")
            A(f"s_cbranch_scc1 {lp}")
            A(f"{le}:")
            self.stamp('late ready')
            nl=0
            while nl<28 and (28+nl)-NRING <= s_: mload(1,nl); nl+=1
        elif s_>POLL_AT+5:
            while nl<28 and (28+nl)-NRING <= s_: mload(1,nl); nl+=1
    self.stamp('early done')
    for s_ in range(28):
        S2.need_vm([f"m1_{s_}"])
        mf(1,s_)
        while nl<28 and (28+nl)-NRING <= 28+s_: mload(1,nl); nl+=1
        if s_==5:
            red_write(0)
        if s_==13:
            A("s_waitcnt lgkmcnt(0)")
            A("s_barrier")
            st=red_final(0)
            S2.vmem(st,"out0")
    self.stamp('late done')
    A("s_nop 11")
    red_write(1)
    A("s_waitcnt lgkmcnt(0)")
    A("s_barrier")
    self.stamp('red barrier')
    A(red_final(1))

@add_method
def dump_lds(self, lds_off, nbytes, ws_off_per_wg):
    A=self.A
    A("s_waitcnt vmcnt(0) lgkmcnt(0)")
    A("s_barrier")
    A(f"v_lshlrev_b32 v48, 4, v{V_T}")
    A(f"s_mul_i32 s{S_T0}, s{S_WG}, {ws_off_per_wg}")
    A(f"s_add_u32 s{S_T0}, s{S_T0}, {WS_DBG}")
    for k in range(nbytes//4096):
        A(f"v_add_u32 v49, {lds_off+k*4096}, v48")
        A("ds_read_b128 v[52:55], v49")
        A("s_waitcnt lgkmcnt(0)")
        A(f"s_add_u32 s{S_T0+1}, s{S_T0}, {k*4096}")
        A(f"buffer_store_dwordx4 v[52:55], v48, s[{SRD_WS}:{SRD_WS+3}], s{S_T0+1} offen")
        A("s_waitcnt vmcnt(0)")

@add_method
def dump_regs(self, first, n, kind='v'):
    A=self.A
    A("s_waitcnt vmcnt(0) lgkmcnt(0)")
    A("s_nop 15")
    A(f"v_lshlrev_b32 v3, 2, v{V_T}")
    A(f"s_mul_i32 s{S_T0}, s{S_WG}, {n*1024}")
    A(f"s_add_u32 s{S_T0}, s{S_T0}, {WS_DBG}")
    for k in range(n):
        A(f"s_add_u32 s{S_T0+1}, s{S_T0}, {k*1024}")
        A(f"buffer_store_dword {kind}{first+k}, v3, s[{SRD_WS}:{SRD_WS+3}], s{S_T0+1} offen")
    A("s_waitcnt vmcnt(0)")

@add_method
def build(self):
    A=self.A
    stop=self.stop_after
    def done(name):
        return stop==name
    self.prologue()
    self.phase0_loads()
    self.stamp('index done')
    self.xjob_post()
    self.stamp('xjob post')
    self.kgen_setup()
    self.stamp('kgen setup')
    self.kgen_gen()
    self.stamp('kgen')
    if done('kx'):
        self.kexpand()
        A("s_waitcnt lgkmcnt(0)")
        A("s_barrier")
        self.dump_lds(LDS_KX, 36864, 36864); return self.finish()
    self.kexpand()
    self.stamp('kexpand')
    self.granule_wait()
    self.stamp('x flags')
    if self.xmode=='xt': self.xt_loads()
    self.stats_consume()
    self.stamp('u ready')
    if done('u'):
        self.dump_lds(LDS_U-LDS_U%16, 20480, 20480); return self.finish()
    self.conv()
    self.stamp('conv done')
    self.sync_all()
    self.stamp('sync2 arrive')
    self.flag_wait(0x3fff, landed=True)
    self.stamp('w1 flags')
    self.w1_loads(0,W1_PRE)
    self.stamp('cs done')
    self.sync_all_wait()
    self.stamp('sync2 passed')
    if done('w1'):
        self.dump_regs(0,224,'a'); return self.finish()
    if done('conv'): return self.finish()
    self.gemm1()
    self.stamp('gemm1 done')
    self.gemm2()
    return self.finish()

@add_method
def finish(self):
    A=self.A
    if self.ts:
        A("s_waitcnt vmcnt(0)")
        self.stamp('end')
        l=self.lab()
        A(f"s_cmp_lg_u32 s{S_W}, {self.tswave}")
        A(f"s_cbranch_scc1 {l}")
        A("v_mov_b32 v4, 0")
        for k in range(self.nts): A(f"v_writelane_b32 v4, s{86+k}, {k}")
        A(f"v_lshlrev_b32 v5, 2, v{V_LANE}")
        A(f"s_lshl_b32 s{S_T0}, s{S_WG}, 8")
        A(f"s_add_u32 s{S_T0}, s{S_T0}, {WS_TS}")
        A(f"buffer_store_dword v4, v5, s[{SRD_WS}:{SRD_WS+3}], s{S_T0} offen")
        l2=self.lab()
        A(f"s_cmp_lg_u32 s{S_WG}, 0")
        A(f"s_cbranch_scc1 {l2}")
        A(f"global_store_dword v5, v4, s[{S_DBG}:{S_DBG+1}]")
        A(f"{l2}:")
        A(f"{l}:")
    A("L_end:")
    A("s_endpgm")
    self.helper()
    A("L_codeend:")
    body, nfix, probs = hazard_fix(A.L)
    for p in probs: print("HAZARD(backedge):", p, file=sys.stderr)
    errs = wait_lint(body)
    for e in errs[:40]: print("WAITLINT:", e, file=sys.stderr)
    hdr = [
     "; Fused preLN + S4D long-conv + preLN + SwiGLU FFN: one persistent launch, 224 main + 32 weight re-layout workgroups",
     f"; @launch grid=({NGRID},1,1) block=(256,1,1) lds={LDS_TOTAL}",
     '.amdgcn_target "amdgcn-amd-amdhsa--gfx950"',
     ".text", f".globl {KNAME}", ".p2align 8", f".type {KNAME},@function", f"{KNAME}:"]
    ftr = ['.section .rodata,"a"', ".p2align 6", f".amdhsa_kernel {KNAME}",
     "  .amdhsa_next_free_vgpr 512", "  .amdhsa_next_free_sgpr 102", "  .amdhsa_accum_offset 256",
     "  .amdhsa_group_segment_fixed_size 0", "  .amdhsa_kernarg_size 112", "  .amdhsa_user_sgpr_count 2",
     "  .amdhsa_user_sgpr_kernarg_segment_ptr 1", "  .amdhsa_system_sgpr_workgroup_id_x 1",
     ".end_amdhsa_kernel"]
    self.nfix=nfix
    return "\n".join(hdr+body+ftr)+"\n"

if __name__=="__main__":
    import argparse
    ap=argparse.ArgumentParser(); ap.add_argument("-o",default="out.s"); ap.add_argument("--stop",default=None); ap.add_argument("--mimic",type=int,default=2); ap.add_argument("--ts",action="store_true"); ap.add_argument("--perturb",type=float,default=0.0); ap.add_argument("--tsset",default="main"); ap.add_argument("--cyc",action="store_true"); ap.add_argument("--tswave",type=int,default=0); ap.add_argument("--hts",action="store_true"); ap.add_argument("--xmode",default="gather"); ap.add_argument("--wpf",type=int,default=2); ap.add_argument("--w1pf",type=int,default=0); ap.add_argument("--w1pre",type=int,default=16)
    a=ap.parse_args()
    g=Gen(stop_after=a.stop, mimic=a.mimic, ts=a.ts, perturb=a.perturb)
    if a.tsset=='main': g.tsonly=set(['xjob post','kgen','x flags','u ready','conv done','sync2 arrive','w1 flags','cs done','sync2 passed','gemm1 done','sync3 arrive','early done','late ready','end'])
    if a.cyc: g.tsop='s_memtime'
    g.tswave=a.tswave; g.hts=a.hts; g.xmode=a.xmode; g.wpf=a.wpf; g.w1pf=a.w1pf; globals().__setitem__('W1_PRE',a.w1pre)
    if a.tsset=='g': g.tsonly=set(['sync2 passed','x0','pass0','pass1','pass2','pass3','gemm1 done','sync3 arrive','early done','late ready','late done','red barrier','end'])
    if a.tsset=='start': g.tsonly=set(['kernarg','all issued','index done','xjob post','kgen setup','gen done','wjob post','kmfma','kbar1','kgen','x flags','kexpand','xt landed','u ready','end'])
    txt=g.build()
    open(a.o,"w").write(txt)
    print("wrote",a.o,len(txt.splitlines()),"lines; nops inserted:",g.nfix, "stamps:", g.tsnames, file=sys.stderr)
```

```python
import sys, math
sys.path.insert(0, "gen")
from asmlib import *

KNAME = "sequential_preLN__ssm_conv_s4d__swiglu_ffn__prompt_kernel"
L_, D_, N_, F_ = 2048, 448, 256, 1792
NWG = 224
NGRID = 256

WS_EPOCH = 0
WS_CNT2  = 4096
WS_CNT3  = 12288
WS_STATS = 32768
WS_HT    = 1 << 20
WS_M     = 4 << 20
WS_ST2   = 49152
WS_JF    = 65536
WS_XF    = 196608
WS_CSF   = 131072
WS_CS    = 294912
WS_XT    = 12 << 20
WS_WF1   = 18 << 20
WS_WFD   = 22 << 20
WS_DBG   = 32 << 20
WS_TS    = 16 << 20
WS_SIZE  = 268435456

KG_PITCH = 528
KG_WAVE  = 53 * KG_PITCH
LDS_KX   = 112000
KX_COPY  = 4160
KX_CH    = 4 * KX_COPY
LDS_U    = LDS_KX + 2 * KX_CH
U_CH     = 4608
LDS_XT   = LDS_U + 2 * U_CH
XT_CH    = 4096
LDS_TOTAL = 163840
assert LDS_XT + 2 * XT_CH <= LDS_TOTAL
LDS_JOB = LDS_KX
LDS_CSP = LDS_KX + 32768
assert LDS_CSP + 512 <= LDS_U

S_WG=2
S_X=8; S_LOGA=10; S_AIM=12; S_CR=14; S_CI=16; S_LOGDT=18; S_DSK=20; S_BX=22
S_WGT=24; S_WUP=26; S_WD=28; S_OUT=30; S_DBG=32; S_WS=34
SRD_X=36; SRD_WS=40; SRD_W=44; SRD_W2=48
S_W=52
S_CH=53
S_NH=54
S_D0=55
S_TAG=56
S_I=57; S_J=58
S_T0=60
S_YS=80
S_DSKV=81
S_DT=82
S_W1I=83
S_JDST=84
S_JL=85
S_GW=59
S_JE=78
S_JK=79

LOG2E = 1.4426950408889634
INV2PI = 0.15915494309189535
def f2u(x):
    import struct
    return struct.unpack('<I', struct.pack('<f', x))[0]
def fl(x): return hex(f2u(x))

class Gen:
    def __init__(self, stop_after=None, dbg=False, mimic=2, ts=False, perturb=0.0):
        self.A = Asm(); self.stop_after = stop_after; self.dbg = dbg; self.mimic = mimic
        self.nlab = 0; self.ts=ts; self.nts=0; self.tsnames=[]; self.perturb=perturb; self.tsonly=None; self.xmode='gather'; self.costsched=0; self.w1start=0; self.w1_in_conv=0; self.pp=0; self.hsleep=0; self.msleep=0; self.wpf=2; self.w1pf=0; self.tsop='s_memrealtime'; self.tswave=0
    def stamp(self, name):
        if not self.ts: return
        if self.tsonly is not None and name not in self.tsonly: return
        k=self.nts; self.nts+=1; self.tsnames.append(name); assert k<16
        A=self.A
        A("s_waitcnt lgkmcnt(0)")
        A(f"{self.tsop} s[6:7]")
        A("s_waitcnt lgkmcnt(0)")
        A(f"s_mov_b32 s{86+k}, s6")
    def lab(self, p='L'):
        self.nlab += 1; return f"{p}_{self.nlab}"

    def prologue(self):
        A = self.A
        A(f"s_cmp_ge_u32 s{S_WG}, {NGRID}")
        A("s_cbranch_scc1 L_end")
        if self.ts:
            A(f"{self.tsop} s[6:7]")
            A("s_waitcnt lgkmcnt(0)")
            A("s_mov_b32 s86, s6"); self.nts=1; self.tsnames.append('start')
        A(f"s_load_dwordx16 s[8:23], s[0:1], 0")
        A(f"s_load_dwordx8 s[24:31], s[0:1], 64")
        A(f"s_load_dwordx4 s[32:35], s[0:1], 96")
        A("s_getpc_b64 s[4:5]")
        A("L_pc:")
        A("v_lshlrev_b32 v1, 7, v0")
        A("v_add_u32 v2, 0x8000, v1")
        A("v_min_u32 v1, (L_codeend-L_pc-4), v1")
        A("global_load_dword v255, v1, s[4:5]")
        A("v_min_u32 v2, (L_codeend-L_pc-4), v2")
        A("global_load_dword v254, v2, s[4:5]")
        A("v_lshrrev_b32 v2, 6, v0")
        A("v_and_b32 v1, 63, v0")
        A(f"v_readfirstlane_b32 s{S_W}, v2")
        A(f"s_lshr_b32 s{S_CH}, s{S_W}, 1")
        A(f"s_and_b32 s{S_NH}, s{S_W}, 1")
        A(f"s_cmp_ge_u32 s{S_WG}, {NWG}")
        A("s_cbranch_scc1 L_helper")
        A(f"s_and_b32 s{S_T0}, s{S_WG}, 7")
        A(f"s_mul_i32 s{S_T0}, s{S_T0}, 28")
        A(f"s_lshr_b32 s{S_T0+1}, s{S_WG}, 3")
        A(f"s_add_u32 s{S_T0}, s{S_T0}, s{S_T0+1}")
        A(f"s_lshl_b32 s{S_D0}, s{S_T0}, 1")
        A(f"s_mul_i32 s{S_T0+2}, s{S_T0+1}, 37")
        A(f"s_lshr_b32 s{S_T0+2}, s{S_T0+2}, 8")
        A(f"s_mul_i32 s{S_T0+3}, s{S_T0+2}, 7")
        A(f"s_sub_u32 s{S_T0+3}, s{S_T0+1}, s{S_T0+3}")
        A(f"s_and_b32 s{S_T0+4}, s{S_WG}, 7")
        A(f"s_lshr_b32 s{S_T0+5}, s{S_T0+4}, 1")
        A(f"s_lshl_b32 s{S_T0+5}, s{S_T0+5}, 2")
        A(f"s_add_u32 s{S_I}, s{S_T0+5}, s{S_T0+2}")
        A(f"s_and_b32 s{S_T0+4}, s{S_T0+4}, 1")
        A(f"s_mul_i32 s{S_T0+4}, s{S_T0+4}, 7")
        A(f"s_add_u32 s{S_J}, s{S_T0+4}, s{S_T0+3}")

def q7check():
    for q in range(28): assert (q*37)>>8 == q//7, q
q7check()

def add_method(f):
    setattr(Gen, f.__name__, f); return f

V_LANE=1
V_T=0
V_ZERO=2
V_XG=8
V_OFF=16
V_EP=27
V_PA=28
V_SX=36
V_TMP=48

@add_method
def phase0_loads(self):
    A=self.A
    A("s_waitcnt lgkmcnt(0)")
    self.stamp('kernarg')
    A(f"s_mov_b32 s{SRD_X}, s{S_X}\ns_mov_b32 s{SRD_X+1}, s{S_X+1}\ns_mov_b32 s{SRD_X+2}, {L_*D_*2}\ns_mov_b32 s{SRD_X+3}, 0x20000")
    A(f"s_mov_b32 s{SRD_WS}, s{S_WS}\ns_mov_b32 s{SRD_WS+1}, s{S_WS+1}\ns_mov_b32 s{SRD_WS+2}, {WS_SIZE}\ns_mov_b32 s{SRD_WS+3}, 0x20000")
    A(f"v_mov_b32 v{V_ZERO}, 0")
    self.job_roles()
    l=self.lab()
    A(f"s_cmp_lg_u32 s{S_WG}, {NWG-1}")
    A(f"s_cbranch_scc1 {l}")
    self.zero_counters_body()
    A(f"{l}:")
    self.xjob_issue()
    A(f"s_add_u32 s{S_T0+3}, s{S_D0}, s{S_CH}")
    A(f"s_lshl_b32 s{S_T0+3}, s{S_T0+3}, 9")
    A(f"s_lshl_b32 s{S_T0+4}, s{S_NH}, 8")
    A(f"s_add_u32 s{S_T0+3}, s{S_T0+3}, s{S_T0+4}")
    A(f"v_lshl_add_u32 v8, v{V_LANE}, 2, s{S_T0+3}")
    A(f"v_xor_b32 v9, 256, v8")
    A(f"global_load_dword v{V_PA}, v8, s[{S_LOGA}:{S_LOGA+1}]")
    A(f"global_load_dword v{V_PA+1}, v8, s[{S_AIM}:{S_AIM+1}]")
    A(f"global_load_dword v{V_PA+2}, v8, s[{S_CR}:{S_CR+1}]")
    A(f"global_load_dword v{V_PA+3}, v8, s[{S_CI}:{S_CI+1}]")
    A(f"global_load_dword v{V_PA+4}, v9, s[{S_CR}:{S_CR+1}]")
    A(f"global_load_dword v{V_PA+5}, v9, s[{S_CI}:{S_CI+1}]")
    A(f"s_lshl_b32 s{S_T0+4}, s{S_D0}, 1")
    A(f"s_load_dword s{S_DT}, s[{S_LOGDT}:{S_LOGDT+1}], s{S_T0+4}")
    A(f"s_load_dword s{S_DSKV}, s[{S_DSK}:{S_DSK+1}], s{S_T0+4}")
    A(f"global_load_dword v{V_EP}, v{V_ZERO}, s[{S_WS}:{S_WS+1}] sc1")
    if self.xmode=='gather':
        self.gl=self.gather_items(); self.gi=0
        for _ in range(2): A(self.gl[self.gi]); self.gi+=1
    if self.wpf:
        lpf=self.lab()
        A(f"s_cmp_ge_u32 s{S_W}, {self.wpf}")
        A(f"s_cbranch_scc1 {lpf}")
        A(f"s_cmp_eq_u32 s{S_W}, 0")
        A(f"s_cselect_b32 s{SRD_W}, s{S_WGT}, s{S_WUP}")
        A(f"s_cselect_b32 s{SRD_W+1}, s{S_WGT+1}, s{S_WUP+1}")
        A(f"s_cmp_eq_u32 s{S_W}, 2")
        A(f"s_cselect_b32 s{SRD_W}, s{S_WD}, s{SRD_W}")
        A(f"s_cselect_b32 s{SRD_W+1}, s{S_WD+1}, s{SRD_W+1}")
        A(f"s_mov_b32 s{SRD_W+2}, {D_*F_*2}")
        A(f"s_mov_b32 s{SRD_W+3}, 0x20000")
        A(f"v_min_u32 v5, 55, v{V_LANE}")
        A(f"v_lshlrev_b32 v5, 7, v5")
        A(f"s_mul_i32 s{S_T0}, s{S_WG}, {56*128}")
        A(f"buffer_load_dword v253, v5, s[{SRD_W}:{SRD_W+3}], s{S_T0} offen")
        A(f"{lpf}:")
    self.stamp('all issued')
    A(f"s_mul_i32 s{S_T0+5}, s{S_W}, {KG_WAVE}")
    A(f"v_and_b32 v182, 31, v{V_LANE}")
    A(f"v_lshrrev_b32 v183, 5, v{V_LANE}")
    A(f"v_lshlrev_b32 v176, 4, v182")
    A(f"v_lshl_add_u32 v176, v183, 3, v176")
    A(f"v_add_u32 v176, s{S_T0+5}, v176")
    A(f"v_lshlrev_b32 v177, 3, v182")
    A(f"v_add_u32 v177, 512, v177")
    A(f"v_lshlrev_b32 v178, 2, v182")
    A(f"v_add_u32 v178, 768, v178")
    A(f"v_cmp_eq_u32 vcc, 1, v183")
    A(f"v_cndmask_b32 v177, v177, v178, vcc")
    A(f"v_add_u32 v177, s{S_T0+5}, v177")
    A(f"v_mov_b32 v178, 4")
    A(f"v_mov_b32 v179, 128")
    A(f"v_cndmask_b32 v178, v178, v179, vcc")
    A(f"v_add_u32 v178, v177, v178")
    A(f"v_lshlrev_b32 v179, 1, v182")
    A(f"v_lshl_add_u32 v179, v183, 8, v179")
    A(f"v_add_u32 v179, s{S_T0+5}, v179")
    A(f"v_lshlrev_b32 v48, 3, v{V_T}")
    for x in range(11):
        o=V_OFF+x
        A(f"v_sub_u32 v49, {2047-x}, v48")
        A(f"v_cvt_f32_i32 v50, v49")
        A(f"v_cvt_pk_bf16_f32 v50, v50, v50")
        A(f"v_and_b32 v50, 0xffff, v50")
        A(f"v_subrev_u32 v50, 17024, v50")
        A(f"v_cmp_gt_i32 vcc, 128, v49")
        A(f"v_cndmask_b32 v50, v50, v49, vcc")
        if x>=8:
            A(f"v_cmp_gt_i32 vcc, 0, v49")
            A(f"v_mov_b32 v51, 768")
            A(f"v_cndmask_b32 v50, v50, v51, vcc")
        A(f"v_lshlrev_b32 v{o}, 1, v50")

NWJ = 588
LDS_XB = LDS_JOB + 3*8192

@add_method
def job_roles(self):
    A=self.A
    A(f"s_mul_i32 s{S_T0}, s{S_W}, 224")
    A(f"s_add_u32 s{S_GW}, s{S_T0}, s{S_WG}")
    A(f"s_lshl_b32 s{S_JL}, s{S_W}, 13")
    A(f"s_add_u32 s{S_JL}, s{S_JL}, {LDS_JOB}")

V_SR=64
@add_method
def xjob_issue(self):
    A=self.A
    A(f"v_bfe_u32 v50, v{V_LANE}, 4, 1")
    A(f"v_lshrrev_b32 v51, 5, v{V_LANE}")
    A(f"v_mul_u32_u24 v51, {224*8}, v51")
    A(f"v_add_u32 v50, v50, v51")
    A(f"s_lshl_b32 s{S_T0}, s{S_WG}, 3")
    A(f"s_lshl_b32 s{S_T0+1}, s{S_W}, 1")
    A(f"s_add_u32 s{S_T0}, s{S_T0}, s{S_T0+1}")
    A(f"v_add_u32 v50, s{S_T0}, v50")
    A(f"v_mul_u32_u24 v50, 896, v50")
    A(f"v_and_b32 v51, 15, v{V_LANE}")
    A(f"v_lshl_add_u32 v50, v51, 4, v50")
    A(f"v_mov_b32 v52, 0x10000000")
    A(f"v_cmp_gt_u32 vcc, 8, v51")
    A(f"v_cndmask_b32 v52, v52, v50, vcc")
    for k in range(3):
        A(f"buffer_load_dwordx4 v[{V_SR+4*k}:{V_SR+4*k+3}], v50, s[{SRD_X}:{SRD_X+3}], 0 offen offset:{256*k}")
    A(f"buffer_load_dwordx4 v[{V_SR+12}:{V_SR+15}], v52, s[{SRD_X}:{SRD_X+3}], 0 offen offset:768")

@add_method
def gather_items(self):
    A=self.A
    A(f"s_lshl_b32 s{S_T0+14}, s{S_D0}, 1")
    A(f"s_movk_i32 s{S_T0+15}, 7168")
    A(f"v_mul_lo_u32 v4, v{V_T}, s{S_T0+15}")
    A(f"v_add_u32 v4, s{S_T0+14}, v4")
    A(f"s_movk_i32 s{S_T0+15}, 4480")
    out=[]
    for j in range(8):
        if j<5: out.append(f"buffer_load_dword v{V_XG+j}, v4, s[{SRD_X}:{SRD_X+3}], 0 offen offset:{j*896}")
        else:   out.append(f"buffer_load_dword v{V_XG+j}, v4, s[{SRD_X}:{SRD_X+3}], s{S_T0+15} offen offset:{(j-5)*896}")
    return out

@add_method
def xjob_post(self):
    A=self.A
    gather=(self.xmode=='gather')
    if self.wpf:
        lw=self.lab(); lc=self.lab()
        A(f"s_cmp_ge_u32 s{S_W}, {self.wpf}")
        A(f"s_cbranch_scc1 {lw}")
        A("s_waitcnt vmcnt(3) lgkmcnt(0)")
        A(f"s_branch {lc}")
        A(f"{lw}:")
        A("s_waitcnt vmcnt(2) lgkmcnt(0)")
        A(f"{lc}:")
    else:
        A(f"s_waitcnt vmcnt({2 if gather else 0}) lgkmcnt(0)")
    A(f"v_readfirstlane_b32 s{S_TAG}, v{V_EP}")
    A(f"s_add_u32 s{S_TAG}, s{S_TAG}, 0x9E3779B9")
    J=V_SR
    if not gather:
        A(f"v_bfe_u32 v50, v{V_LANE}, 4, 1")
        A(f"s_lshl_b32 s{S_T0}, s{S_W}, 1")
        A(f"v_add_u32 v50, s{S_T0}, v50")
        A(f"v_mul_u32_u24 v50, 896, v50")
        A(f"v_lshrrev_b32 v51, 5, v{V_LANE}")
        A(f"v_mul_u32_u24 v51, 7168, v51")
        A(f"v_add_u32 v50, v50, v51")
        A(f"v_and_b32 v51, 15, v{V_LANE}")
        A(f"v_lshl_add_u32 v50, v51, 4, v50")
        A(f"v_add_u32 v50, {LDS_XB}, v50")
        for k in range(3): A(f"ds_write_b128 v50, v[{J+4*k}:{J+4*k+3}] offset:{k*256}")
        A("s_mov_b32 exec_lo, 0x00ff00ff\ns_mov_b32 exec_hi, 0x00ff00ff")
        A(f"ds_write_b128 v50, v[{J+12}:{J+15}] offset:768")
        A("s_mov_b64 exec, -1")
    A("v_mov_b32 v54, 0x3f803f80")
    for i in range(16):
        c1="0" if i<2 else f"v{56+(i&1)}"; c2="0" if i<2 else f"v{58+(i&1)}"
        A(f"v_dot2_f32_bf16 v{56+(i&1)}, v{J+i}, v54, {c1}")
        A(f"v_dot2_f32_bf16 v{58+(i&1)}, v{J+i}, v{J+i}, {c2}")
    A(f"v_bfe_u32 v42, v{V_LANE}, 4, 1")
    A(f"v_lshlrev_b32 v42, 3, v42")
    A(f"v_lshrrev_b32 v39, 5, v{V_LANE}")
    A(f"v_mul_u32_u24 v39, {224*64}, v39")
    A(f"v_add_u32 v42, v42, v39")
    A(f"s_lshl_b32 s{S_T0+10}, s{S_WG}, 6")
    A(f"s_lshl_b32 s{S_T0+9}, s{S_W}, 4")
    A(f"s_add_u32 s{S_T0+10}, s{S_T0+10}, s{S_T0+9}")
    A(f"s_add_u32 s{S_T0+10}, s{S_T0+10}, {WS_STATS}")
    A("v_add_f32 v56, v56, v57\nv_add_f32 v57, v58, v59")
    for mode in ["row_shr:1","row_shr:2","row_shr:4","row_shr:8"]:
        A(f"v_add_f32_dpp v56, v56, v56 {mode} row_mask:0xf bank_mask:0xf bound_ctrl:0"); A(f"v_add_f32_dpp v57, v57, v57 {mode} row_mask:0xf bank_mask:0xf bound_ctrl:0")
    A(f"v_mul_f32 v56, {fl(1.0/448)}, v56")
    A(f"v_mul_f32 v57, {fl(1.0/448)}, v57")
    A("v_fma_f32 v57, -v56, v56, v57")
    A("v_max_f32 v57, 0, v57")
    A("v_cvt_pk_bf16_f32 v57, v57, v57")
    A("v_lshlrev_b32 v57, 16, v57")
    A(f"v_add_f32 v57, {fl(1e-5)}, v57")
    A("v_cvt_pk_bf16_f32 v57, v57, v57")
    A("v_lshlrev_b32 v57, 16, v57")
    A("v_sqrt_f32 v57, v57")
    A(f"v_mov_b32 v41, s{S_TAG}")
    A(f"v_cvt_pk_bf16_f32 v40, v57, v56")
    A(f"s_cmp_lt_u32 s{S_WG}, 32")
    A(f"s_cselect_b32 exec_hi, 0x80008000, 0")
    A("s_mov_b32 exec_lo, 0x80008000")
    A(f"buffer_store_dwordx2 v[40:41], v42, s[{SRD_WS}:{SRD_WS+3}], s{S_T0+10} offen sc1")
    A("s_mov_b64 exec, -1")
    if gather: return
    A("s_waitcnt lgkmcnt(0)")
    A("s_barrier")
    X=80
    A(f"v_bfe_u32 v52, v{V_LANE}, 2, 2")
    A(f"v_mul_u32_u24 v52, 896, v52")
    A(f"v_lshrrev_b32 v53, 4, v{V_LANE}")
    A(f"v_lshl_add_u32 v52, v53, 5, v52")
    A(f"v_and_b32 v53, 3, v{V_LANE}")
    A(f"v_lshl_add_u32 v52, v53, 3, v52")
    A(f"s_lshl_b32 s{S_T0+1}, s{S_W}, 7")
    A(f"s_add_u32 s{S_T0+1}, s{S_T0+1}, {LDS_XB}")
    A(f"v_add_u32 v52, s{S_T0+1}, v52")
    for k in range(2):
        o=7168*k; x=X+8*k
        A(f"ds_read_b64_tr_b16 v[{x}:{x+1}], v52 offset:{o}")
        A(f"ds_read_b64_tr_b16 v[{x+2}:{x+3}], v52 offset:{o+4*896}")
        A(f"ds_read_b64_tr_b16 v[{x+4}:{x+5}], v52 offset:{o+512}")
        A(f"ds_read_b64_tr_b16 v[{x+6}:{x+7}], v52 offset:{o+512+4*896}")
    A(f"v_lshlrev_b32 v53, 4, v{V_LANE}")
    A(f"s_mul_i32 s{S_T0+2}, s{S_WG}, 7168")
    A(f"s_lshl_b32 s{S_T0+3}, s{S_W}, 10")
    A(f"s_add_u32 s{S_T0+2}, s{S_T0+2}, s{S_T0+3}")
    A(f"s_add_u32 s{S_T0+2}, s{S_T0+2}, {WS_XT}")
    def st(x,extra):
        A(f"s_add_u32 s{S_T0+3}, s{S_T0+2}, {extra}")
        A(f"buffer_store_dwordx4 v[{x}:{x+3}], v53, s[{SRD_WS}:{SRD_WS+3}], s{S_T0+3} offen sc1")
    l3=self.lab(); l32=self.lab()
    A("s_waitcnt lgkmcnt(6)")
    st(X,0)
    A(f"s_cmp_eq_u32 s{S_W}, 3")
    A(f"s_cbranch_scc1 {l3}")
    A("s_waitcnt lgkmcnt(4)")
    st(X+4,4096)
    A(f"{l3}:")
    A(f"s_cmp_ge_u32 s{S_WG}, 32")
    A(f"s_cbranch_scc1 {l32}")
    A("s_waitcnt lgkmcnt(0)")
    st(X+8,224*7168)
    A(f"s_cmp_eq_u32 s{S_W}, 3")
    A(f"s_cbranch_scc1 {l32}")
    st(X+12,224*7168+4096)
    A(f"{l32}:")
    A("s_waitcnt lgkmcnt(0)")

@add_method
def xflag_publish(self):
    A=self.A
    A("s_waitcnt vmcnt(0)")
    A(f"s_lshl_b32 s{S_T0+10}, s{S_WG}, 2")
    A(f"s_add_u32 s{S_T0+10}, s{S_T0+10}, s{S_W}")
    A(f"s_lshl_b32 s{S_T0+10}, s{S_T0+10}, 6")
    A(f"s_add_u32 s{S_T0+10}, s{S_T0+10}, {WS_XF}")
    A(f"v_mul_u32_u24 v42, {224*4*64}, v{V_LANE}")
    A(f"v_mov_b32 v41, s{S_TAG}")
    A(f"s_cmp_lt_u32 s{S_WG}, 32")
    A(f"s_cselect_b32 exec_lo, 3, 1")
    A("s_mov_b32 exec_hi, 0")
    A(f"buffer_store_dword v41, v42, s[{SRD_WS}:{SRD_WS+3}], s{S_T0+10} offen sc1")
    A("s_mov_b64 exec, -1")

@add_method
def zero_counters_body(self):
    A=self.A; l=self.lab()
    A(f"s_cmp_lg_u32 s{S_W}, 3")
    A(f"s_cbranch_scc1 {l}")
    A(f"v_lshlrev_b32 v3, 7, v{V_LANE}")
    A(f"s_mov_b32 s{S_T0+5}, {WS_CNT2}")
    A(f"buffer_store_dword v{V_ZERO}, v3, s[{SRD_WS}:{SRD_WS+3}], s{S_T0+5} offen sc1")
    A(f"s_mov_b32 s{S_T0+5}, {WS_CNT3}")
    A(f"buffer_store_dword v{V_ZERO}, v3, s[{SRD_WS}:{SRD_WS+3}], s{S_T0+5} offen sc1")
    A(f"{l}:")

S_HY=64; S_HL=65; S_HD=66; S_HE=67; S_HK=68; S_HRET=70
S_HSTR=69; S_HG=72; S_HP=73
@add_method
def wjob_params(self):
    A=self.A; ld=self.lab('Lwd'); lc=self.lab('Lwc'); T=S_T0
    A(f"s_cmp_ge_u32 s{S_HY}, 392")
    A(f"s_cbranch_scc1 {ld}")
    A(f"s_cmp_ge_u32 s{S_HY}, 196")
    A(f"s_cselect_b32 s{SRD_W}, s{S_WUP}, s{S_WGT}")
    A(f"s_cselect_b32 s{SRD_W+1}, s{S_WUP+1}, s{S_WGT+1}")
    A(f"s_cselect_b32 s{T+1}, 1, 0")
    A(f"s_mul_i32 s{T+2}, s{T+1}, 196")
    A(f"s_sub_u32 s{T+2}, s{S_HY}, s{T+2}")
    A(f"s_mul_i32 s{S_HP}, s{T+2}, 9363")
    A(f"s_lshr_b32 s{S_HP}, s{S_HP}, 16")
    A(f"s_mul_i32 s{S_HG}, s{S_HP}, 7")
    A(f"s_sub_u32 s{S_HG}, s{T+2}, s{S_HG}")
    A(f"s_movk_i32 s{S_HSTR}, 3584")
    A(f"s_lshl_b32 s{T+2}, s{S_HP}, 2")
    A(f"s_add_u32 s{T+2}, s{T+2}, s{T+1}")
    A(f"s_mul_i32 s{T+2}, s{T+2}, 28")
    A(f"s_lshl_b32 s{T+3}, s{S_HG}, 2")
    A(f"s_add_u32 s{T+2}, s{T+2}, s{T+3}")
    A(f"s_lshl_b32 s{T+2}, s{T+2}, 10")
    A(f"s_add_u32 s{S_HD}, s{T+2}, {WS_WF1}")
    A(f"s_mov_b32 s{S_HE}, {56*1024}")
    A(f"s_mov_b32 s{S_HK}, 4")
    A(f"s_branch {lc}")
    A(f"{ld}:")
    A(f"s_mov_b32 s{SRD_W}, s{S_WD}")
    A(f"s_mov_b32 s{SRD_W+1}, s{S_WD+1}")
    A(f"s_sub_u32 s{T+2}, s{S_HY}, 392")
    A(f"s_mul_i32 s{S_HP}, s{T+2}, 2341")
    A(f"s_lshr_b32 s{S_HP}, s{S_HP}, 16")
    A(f"s_mul_i32 s{S_HG}, s{S_HP}, 28")
    A(f"s_sub_u32 s{S_HG}, s{T+2}, s{S_HG}")
    A(f"s_movk_i32 s{S_HSTR}, 896")
    A(f"s_mul_i32 s{T+2}, s{S_HP}, 224")
    A(f"s_lshl_b32 s{T+3}, s{S_HG}, 2")
    A(f"s_add_u32 s{T+2}, s{T+2}, s{T+3}")
    A(f"s_lshl_b32 s{T+2}, s{T+2}, 10")
    A(f"s_add_u32 s{S_HD}, s{T+2}, {WS_WFD}")
    A(f"s_mov_b32 s{S_HE}, {112*1024}")
    A(f"s_mov_b32 s{S_HK}, 8")
    A(f"{lc}:")

for _u in range(196): assert (_u*9363)>>16 == _u//7
for _u in range(196): assert (_u*2341)>>16 == _u//28

@add_method
def helper(self):
    A=self.A; T=S_T0
    A("L_helper:")
    hs=[0]
    def hstamp():
        if not (self.ts and getattr(self,'hts',False)): return
        A(f"{self.tsop} s[6:7]"); A("s_waitcnt lgkmcnt(0)"); A(f"v_writelane_b32 v200, s6, {hs[0]}"); hs[0]+=1
    A("s_waitcnt lgkmcnt(0)")
    if self.ts and getattr(self,'hts',False):
        A("v_mov_b32 v200, 0"); A("v_writelane_b32 v200, s86, 0"); hs[0]=1
    hstamp()
    A(f"s_mov_b32 s{SRD_WS}, s{S_WS}\ns_mov_b32 s{SRD_WS+1}, s{S_WS+1}\ns_mov_b32 s{SRD_WS+2}, {WS_SIZE}\ns_mov_b32 s{SRD_WS+3}, 0x20000")
    A(f"s_mov_b32 s{SRD_W+2}, {D_*F_*2}")
    A(f"s_mov_b32 s{SRD_W+3}, 0x20000")
    A(f"v_mov_b32 v{V_ZERO}, 0")
    A(f"global_load_dword v{V_EP}, v{V_ZERO}, s[{S_WS}:{S_WS+1}] sc1")
    A(f"s_sub_u32 s{S_GW}, s{S_WG}, {NWG}")
    A(f"s_lshl_b32 s{S_GW}, s{S_GW}, 2")
    A(f"s_add_u32 s{S_GW}, s{S_GW}, s{S_W}")
    A(f"s_mul_i32 s{S_JL}, s{S_W}, 40960")
    A(f"v_lshrrev_b32 v40, 3, v{V_LANE}")
    A(f"v_bfe_u32 v49, v{V_LANE}, 4, 1")
    A(f"v_lshlrev_b32 v49, 2, v49")
    A(f"v_and_b32 v50, 7, v{V_LANE}")
    A(f"v_xor_b32 v49, v49, v50")
    A(f"v_lshlrev_b32 v41, 4, v49")
    A(f"v_bfe_u32 v51, v{V_LANE}, 2, 2")
    A(f"v_lshlrev_b32 v42, 7, v51")
    A(f"v_lshrrev_b32 v51, 1, v51")
    A(f"v_lshlrev_b32 v51, 2, v51")
    A(f"v_bfe_u32 v52, v{V_LANE}, 4, 1")
    A(f"v_bfe_u32 v53, v{V_LANE}, 1, 1")
    A(f"v_lshl_add_u32 v52, v52, 1, v53")
    A(f"v_xor_b32 v51, v51, v52")
    A(f"v_lshl_add_u32 v42, v51, 4, v42")
    A(f"v_and_b32 v51, 1, v{V_LANE}")
    A(f"v_lshl_add_u32 v42, v51, 3, v42")
    A(f"v_lshrrev_b32 v43, 5, v{V_LANE}")
    A(f"v_lshlrev_b32 v54, 4, v{V_LANE}")
    A(f"v_mul_u32_u24 v58, {2*896}, v43")
    A(f"v_and_b32 v59, 31, v{V_LANE}")
    A(f"v_lshl_add_u32 v58, v59, 2, v58")
    def call(lbl):
        A(f"s_getpc_b64 s[{T+14}:{T+15}]")
        r=self.lab('Lr')
        A(f"{r}:")
        A(f"s_add_u32 s{T+14}, s{T+14}, ({lbl}-{r})")
        A(f"s_addc_u32 s{T+15}, s{T+15}, (({lbl}-{r})>>31)")
        A(f"s_swappc_b64 s[{S_HRET}:{S_HRET+1}], s[{T+14}:{T+15}]")
    NS=9
    def setjob_y(expr_add, clamp):
        A(f"s_add_u32 s{S_HY}, s{S_GW}, {expr_add}")
        A(f"s_min_u32 s{S_HY}, s{S_HY}, {clamp}")
    def job(n,kind):
        if kind=='w1': setjob_y(128*n, 391)
        else: setjob_y(392+128*(n-4), NWJ-1)
        A(f"s_add_u32 s{S_HL}, s{S_JL}, {8192*(n if n<4 else n-4)}")
    def flag_cur():
        A(f"s_lshl_b32 s{T+10}, s{S_HY}, 6")
        A(f"s_add_u32 s{T+10}, s{T+10}, {WS_JF}")
        A(f"v_mov_b32 v47, s{S_TAG}")
        A("s_mov_b64 exec, 1")
        A(f"buffer_store_dword v47, v{V_ZERO}, s[{SRD_WS}:{SRD_WS+3}], s{T+10} offen sc1")
        A("s_mov_b64 exec, -1")
    def batch(ns, kind):
        k=len(ns); st = NS if kind=='w1' else 8
        for n in ns: job(n,kind); call("L_hissue")
        hstamp()
        for i,n in enumerate(ns):
            job(n,kind); A(f"s_waitcnt vmcnt({8*(k-1-i)+st*i})"); call("L_hpost")
            if i==0 and kind=='w1':
                A(f"v_readfirstlane_b32 s{S_TAG}, v{V_EP}")
                A(f"s_add_u32 s{S_TAG}, s{S_TAG}, 0x9E3779B9")
        hstamp()
        for i,n in enumerate(ns):
            A(f"s_waitcnt vmcnt({st*(k-1-i)+i})")
            job(n,kind); flag_cur()
        hstamp()
    l4=self.lab('Lh4'); lb=self.lab('Lhb')
    A(f"s_cmp_lt_u32 s{S_GW}, 8")
    A(f"s_cbranch_scc1 {l4}")
    batch([0,1,2],'w1')
    A(f"s_branch {lb}")
    A(f"{l4}:")
    sv=hs[0]; hs[0]=2
    batch([0,1,2,3],'w1')
    hs[0]=sv
    A(f"{lb}:")
    batch([4,5],'wd')
    lp=self.lab('Lpoll'); le=self.lab()
    A(f"s_mov_b32 s{T+1}, 0")
    A(f"s_mov_b32 s{T}, {WS_STATS+(8*(NWG-1)+6)*8+4}")
    A(f"{lp}:")
    A(f"buffer_load_dword v49, v{V_ZERO}, s[{SRD_WS}:{SRD_WS+3}], s{T} offen sc1")
    A("s_waitcnt vmcnt(0)")
    A(f"v_cmp_ne_u32 vcc, s{S_TAG}, v49")
    A(f"s_add_u32 s{T+1}, s{T+1}, 1")
    A(f"s_cbranch_vccz {le}")
    A(f"s_cmp_lt_u32 s{T+1}, 0x8000")
    A(f"s_cbranch_scc1 {lp}")
    A(f"{le}:")
    self.sync_all_wait(sleep=self.hsleep)
    hstamp()
    A(f"s_sub_u32 s{T}, s{S_WG}, {NWG}")
    A(f"s_mul_i32 s{T}, s{T}, 57344")
    A(f"s_mul_i32 s{T+1}, s{S_W}, 14336")
    A(f"s_add_u32 s{T}, s{T}, s{T+1}")
    A(f"s_add_u32 s{T}, s{T}, {WS_HT}")
    for k in range(14):
        if k%4==0:
            A(f"s_add_u32 s{T+2}, s{T}, {k*1024}")
            A(f"s_add_u32 m0, s{T+1}, {k*1024}")
        A(f"buffer_load_dwordx4 v54, s[{SRD_WS}:{SRD_WS+3}], s{T+2} offen offset:{(k%4)*1024} sc1 lds")
    A(f"v_lshlrev_b32 v50, 9, v43")
    A(f"v_bfe_u32 v51, v{V_LANE}, 2, 2")
    A(f"v_lshl_add_u32 v50, v51, 6, v50")
    A(f"v_bfe_u32 v51, v{V_LANE}, 4, 1")
    A(f"v_lshl_add_u32 v50, v51, 5, v50")
    A(f"v_and_b32 v51, 3, v{V_LANE}")
    A(f"v_lshl_add_u32 v50, v51, 3, v50")
    A(f"v_add_u32 v50, s{T+1}, v50")
    A("v_mov_b32 v55, 0x3f803f80")
    for k0 in range(0,14,2):
        A(f"s_waitcnt vmcnt({12-k0})")
        for k in (k0,k0+1):
            r=64+4*(k%4)
            A(f"ds_read_b64_tr_b16 v[{r}:{r+1}], v50 offset:{k*1024}")
            A(f"ds_read_b64_tr_b16 v[{r+2}:{r+3}], v50 offset:{k*1024+256}")
        A("s_waitcnt lgkmcnt(0)")
        for k in (k0,k0+1):
            r=64+4*(k%4)
            for d in range(4):
                i=4*k+d
                c1="0" if i<2 else f"v{56+(i&1)}"; c2="0" if i<2 else f"v{58+(i&1)}"
                A(f"v_dot2_f32_bf16 v{56+(i&1)}, v{r+d}, v55, {c1}")
                A(f"v_dot2_f32_bf16 v{58+(i&1)}, v{r+d}, v{r+d}, {c2}")
    A("s_nop 2")
    A("v_add_f32 v56, v56, v57\nv_add_f32 v57, v58, v59")
    A("v_mov_b32 v58, v56\nv_mov_b32 v59, v57")
    A("v_permlane32_swap_b32 v56, v58\nv_permlane32_swap_b32 v57, v59")
    A("v_add_f32 v56, v56, v58\nv_add_f32 v57, v57, v59")
    A(f"v_and_b32 v60, 31, v{V_LANE}")
    A(f"v_lshlrev_b32 v61, 4, v60")
    A(f"s_lshr_b32 s{T+3}, s{S_W}, 1")
    A(f"s_lshl_b32 s{T+3}, s{T+3}, 9")
    A(f"s_add_u32 s{T+3}, s{T+3}, 65536")
    A(f"v_add_u32 v61, s{T+3}, v61")
    A(f"s_and_b32 s{T+4}, s{S_W}, 1")
    A(f"s_lshl_b32 s{T+4}, s{T+4}, 3")
    A(f"v_add_u32 v62, s{T+4}, v61")
    A("ds_write_b64 v62, v[56:57]")
    A("s_waitcnt lgkmcnt(0)")
    A("s_barrier")
    lz=self.lab()
    A(f"s_cmp_lg_u32 s{T+4}, 0")
    A(f"s_cbranch_scc1 {lz}")
    A("ds_read_b128 v[64:67], v61")
    A("s_waitcnt lgkmcnt(0)")
    A("v_add_f32 v64, v64, v66\nv_add_f32 v65, v65, v67")
    A(f"v_mul_f32 v64, {fl(1.0/448)}, v64")
    A(f"v_mul_f32 v65, {fl(1.0/448)}, v65")
    A("v_fma_f32 v65, -v64, v64, v65")
    A("v_max_f32 v65, 0, v65")
    A("v_cvt_pk_bf16_f32 v65, v65, v65")
    A("v_lshlrev_b32 v65, 16, v65")
    A(f"v_add_f32 v65, {fl(1e-5)}, v65")
    A("v_cvt_pk_bf16_f32 v65, v65, v65")
    A("v_lshlrev_b32 v65, 16, v65")
    A("v_sqrt_f32 v65, v65")
    A("v_cvt_pk_bf16_f32 v66, v65, v64")
    A(f"v_mov_b32 v67, s{S_TAG}")
    A(f"v_lshlrev_b32 v68, 3, v60")
    A(f"s_sub_u32 s{T+5}, s{S_WG}, {NWG}")
    A(f"s_lshl_b32 s{T+5}, s{T+5}, 1")
    A(f"s_lshr_b32 s{T+6}, s{S_W}, 1")
    A(f"s_add_u32 s{T+5}, s{T+5}, s{T+6}")
    A(f"s_lshl_b32 s{T+5}, s{T+5}, 8")
    A(f"s_add_u32 s{T+5}, s{T+5}, {WS_ST2}")
    A("s_mov_b32 exec_hi, 0")
    A(f"buffer_store_dwordx2 v[66:67], v68, s[{SRD_WS}:{SRD_WS+3}], s{T+5} offen sc1")
    A("s_mov_b32 exec_hi, -1")
    A(f"{lz}:")
    hstamp()
    if self.ts and getattr(self,'hts',False):
        l=self.lab()
        A(f"s_cmp_lg_u32 s{S_W}, 0")
        A(f"s_cbranch_scc1 {l}")
        A(f"v_lshlrev_b32 v5, 2, v{V_LANE}")
        A(f"s_lshl_b32 s{T}, s{S_WG}, 8")
        A(f"s_add_u32 s{T}, s{T}, {WS_TS}")
        A(f"buffer_store_dword v200, v5, s[{SRD_WS}:{SRD_WS+3}], s{T} offen")
        A(f"{l}:")
    A("s_endpgm")
    A("L_hissue:")
    self.wjob_params()
    A(f"v_mul_lo_u32 v48, v40, s{S_HSTR}")
    A(f"v_add_u32 v48, v48, v41")
    A(f"s_lshl_b32 s{T+6}, s{S_HG}, 6")
    A(f"s_mul_i32 s{T+6}, s{T+6}, s{S_HSTR}")
    A(f"s_lshl_b32 s{T+7}, s{S_HP}, 7")
    A(f"s_add_u32 s{T+6}, s{T+6}, s{T+7}")
    A(f"s_lshl_b32 s{T+7}, s{S_HSTR}, 3")
    for i in range(8):
        A(f"s_add_u32 m0, s{S_HL}, {i*1024}")
        A(f"buffer_load_dwordx4 v48, s[{SRD_W}:{SRD_W+3}], s{T+6} offen lds")
        if i<7: A(f"s_add_u32 s{T+6}, s{T+6}, s{T+7}")
    A(f"s_setpc_b64 s[{S_HRET}:{S_HRET+1}]")
    A("L_hpost:")
    self.wjob_params()
    J=64
    A(f"s_cmp_eq_u32 s{S_HK}, 4")
    A(f"s_cselect_b32 s{T}, 10, 9")
    A(f"s_lshl_b32 s{T+1}, s{S_HK}, 7")
    A(f"v_lshlrev_b32 v50, s{T}, v43")
    A(f"v_add_u32 v50, v50, v42")
    A(f"v_add_u32 v50, s{S_HL}, v50")
    A(f"v_add_u32 v51, s{T+1}, v50")
    A(f"v_xor_b32 v52, 64, v50")
    A(f"v_xor_b32 v53, 64, v51")
    def rd(k):
        kap,e=k>>1,k&1; r=J+4*k
        A(f"ds_read_b64_tr_b16 v[{r}:{r+1}], v{50+2*e} offset:{kap*2048}")
        A(f"ds_read_b64_tr_b16 v[{r+2}:{r+3}], v{51+2*e} offset:{kap*2048}")
    for k in range(6): rd(k)
    for k in range(8):
        kap,e=k>>1,k&1; r=J+4*k
        issued=min(8,6+k)
        A(f"s_waitcnt lgkmcnt({2*(issued-1-k)})")
        if e==0: A(f"s_add_u32 s{T+2}, s{S_HD}, {kap*1024}")
        else:
            A(f"s_add_u32 s{T+2}, s{S_HD}, s{S_HE}")
            A(f"s_add_u32 s{T+2}, s{T+2}, {kap*1024}")
        A(f"buffer_store_dwordx4 v[{r}:{r+3}], v54, s[{SRD_WS}:{SRD_WS+3}], s{T+2} offen sc1")
        if 6+k<8: rd(6+k)
    lcs=self.lab('Lcs')
    A(f"s_cmp_lg_u32 s{S_HK}, 4")
    A(f"s_cbranch_scc1 {lcs}")
    A("v_mov_b32 v55, 0x3f803f80")
    for k in range(8):
        e=k&1
        for d in range(4):
            c="0" if (k<2 and d==0) else f"v{56+e}"
            A(f"v_dot2_f32_bf16 v{56+e}, v{J+4*k+d}, v55, {c}")
    A("s_nop 2")
    A("v_permlane32_swap_b32 v56, v57")
    A("v_add_f32 v56, v56, v57")
    A(f"s_cmp_ge_u32 s{S_HY}, 196")
    A(f"s_cselect_b32 s{T+2}, 1, 0")
    A(f"s_lshl_b32 s{T+3}, s{S_HP}, 2")
    A(f"s_add_u32 s{T+2}, s{T+2}, s{T+3}")
    A(f"s_mul_i32 s{T+2}, s{T+2}, 7")
    A(f"s_add_u32 s{T+2}, s{T+2}, s{S_HG}")
    A(f"s_lshl_b32 s{T+2}, s{T+2}, 7")
    A(f"s_add_u32 s{T+2}, s{T+2}, {WS_CS}")
    A(f"buffer_store_dword v56, v58, s[{SRD_WS}:{SRD_WS+3}], s{T+2} offen sc1")
    A(f"{lcs}:")
    A(f"s_setpc_b64 s[{S_HRET}:{S_HRET+1}]")

def bf16_lo(dst, src): return f"v_lshlrev_b32 v{dst}, 16, v{src}"
def bf16_hi(dst, src): return f"v_and_b32 v{dst}, 0xffff0000, v{src}"

def cmul(A, R, P, Z, T):
    A(f"v_pk_mul_f32 v[{T}:{T+1}], v[{P}:{P+1}], v[{Z}:{Z+1}] op_sel_hi:[0,1]")
    A(f"v_pk_fma_f32 v[{R}:{R+1}], v[{P}:{P+1}], v[{Z}:{Z+1}], v[{T}:{T+1}] op_sel:[1,1,0] op_sel_hi:[1,0,1] neg_lo:[1,0,0]")

def kreg(e,name):
    names=['C','Z1','Z2','Z4','Z8','Z256','P','Q','R','T','X0','X1']
    return [128,152][e]+2*names.index(name)
ROWS=[0,1,2,3,4,5,6,7,256,258,260,262,512,516,768,772,1024,1280,1536,1792,2048]

@add_method
def kgen_setup(self):
    A=self.A
    A("s_waitcnt lgkmcnt(0)")
    A(f"s_lshl_b32 s{S_T0}, s{S_CH}, 4")
    A(f"s_lshr_b32 s{S_DT}, s{S_DT}, s{S_T0}")
    A(f"s_lshl_b32 s{S_DT}, s{S_DT}, 16")
    A(f"s_lshr_b32 s{S_DSKV}, s{S_DSKV}, s{S_T0}")
    A(f"s_lshl_b32 s{S_DSKV}, s{S_DSKV}, 16")
    DT=48
    A(f"v_mov_b32 v{DT}, s{S_DT}")
    A(f"v_mul_f32 v{DT}, {fl(LOG2E)}, v{DT}")
    A(f"v_exp_f32 v{DT}, v{DT}")
    A(f"v_cvt_pk_bf16_f32 v{DT}, v{DT}, v{DT}")
    A(f"v_lshlrev_b32 v{DT}, 16, v{DT}")
    A(f"v_and_b32 v50, 0x7fff7fff, v{V_PA+2}")
    A(f"v_and_b32 v51, 0x7fff7fff, v{V_PA+3}")
    A(f"v_and_b32 v52, 0x7fff7fff, v{V_PA+4}")
    A(f"v_and_b32 v53, 0x7fff7fff, v{V_PA+5}")
    A("v_pk_max_u16 v50, v50, v51")
    A("v_pk_max_u16 v52, v52, v53")
    A("v_pk_max_u16 v50, v50, v52")
    A("v_lshrrev_b32 v51, 16, v50")
    A("v_and_b32 v50, 0xffff, v50")
    A("v_max_u32 v50, v50, v51")
    for mode in ["row_shr:1 row_mask:0xf bank_mask:0xf bound_ctrl:0","row_shr:2 row_mask:0xf bank_mask:0xf bound_ctrl:0",
                 "row_shr:4 row_mask:0xf bank_mask:0xf bound_ctrl:0","row_shr:8 row_mask:0xf bank_mask:0xf bound_ctrl:0",
                 "row_bcast:15 row_mask:0xa bank_mask:0xf","row_bcast:31 row_mask:0xc bank_mask:0xf"]:
        A(f"v_max_u32_dpp v50, v50, v50 {mode}")
    A(f"v_readlane_b32 s{S_T0}, v50, 63")
    A(f"s_lshr_b32 s{S_T0}, s{S_T0}, 7")
    A(f"s_max_u32 s{S_T0}, s{S_T0}, 1")
    A(f"s_min_u32 s{S_T0}, s{S_T0}, 253")
    A(f"s_sub_u32 s{S_T0+1}, 254, s{S_T0}")
    A(f"s_lshl_b32 s{S_T0+1}, s{S_T0+1}, 23")
    A(f"s_lshl_b32 s{S_T0}, s{S_T0}, 23")
    A(f"v_add_f32 v49, v{DT}, v{DT}")
    A(f"v_mul_f32 v49, s{S_T0}, v49")
    A(f"v_readfirstlane_b32 s{S_YS}, v49")
    AR=[50,51]; TH=[52,53]
    reg=kreg
    for e in range(2):
        un = bf16_lo if e==0 else bf16_hi
        A(un(AR[e], V_PA)); A(un(TH[e], V_PA+1))
        A(un(reg(e,'C'), V_PA+2)); A(un(reg(e,'C')+1, V_PA+3))
    for e in range(2):
        A(f"v_mul_f32 v{AR[e]}, {fl(LOG2E)}, v{AR[e]}")
    for e in range(2): A(f"v_exp_f32 v{AR[e]}, v{AR[e]}")
    for e in range(2):
        A(f"v_cvt_pk_bf16_f32 v{AR[e]}, v{AR[e]}, v{AR[e]}")
    for e in range(2):
        A(f"v_lshlrev_b32 v{AR[e]}, 16, v{AR[e]}")
    for e in range(2):
        A(f"v_mul_f32 v{AR[e]}, v{AR[e]}, v{DT}")
        A(f"v_mul_f32 v{TH[e]}, v{TH[e]}, v{DT}")
    for e in range(2):
        A(f"v_mul_f32 v{AR[e]}, {fl(-LOG2E)}, v{AR[e]}")
        A(f"v_mul_f32 v{TH[e]}, {fl(INV2PI)}, v{TH[e]}")
        c=reg(e,'C')
        A(f"v_mul_f32 v{c}, s{S_T0+1}, v{c}")
        A(f"v_mul_f32 v{c+1}, s{S_T0+1}, v{c+1}")
    for name,p in (('Z1',1.0),('Z8',8.0),('Z256',256.0)):
        for e in range(2):
            z=reg(e,name); x0=reg(e,'X0'); x1=reg(e,'X1')
            if p==1.0:
                A(f"v_exp_f32 v{x0}, v{AR[e]}")
                A(f"v_fract_f32 v{x0+1}, v{TH[e]}")
            else:
                A(f"v_mul_f32 v{x0}, {fl(p)}, v{AR[e]}")
                A(f"v_mul_f32 v{x0+1}, {fl(p)}, v{TH[e]}")
                A(f"v_exp_f32 v{x0}, v{x0}")
                A(f"v_fract_f32 v{x0+1}, v{x0+1}")
            A(f"v_cos_f32 v{x1}, v{x0+1}")
            A(f"v_sin_f32 v{x1+1}, v{x0+1}")
        for e in range(2):
            z=reg(e,name); x0=reg(e,'X0'); x1=reg(e,'X1')
            A(f"v_pk_mul_f32 v[{z}:{z+1}], v[{x1}:{x1+1}], v[{x0}:{x0+1}] op_sel_hi:[1,0]")
    if self.xmode=='gather': A(self.gl[self.gi]); self.gi+=1
    for e in range(2): cmul(A, reg(e,'Z2'), reg(e,'Z1'), reg(e,'Z1'), reg(e,'T'))
    for e in range(2): cmul(A, reg(e,'Z4'), reg(e,'Z2'), reg(e,'Z2'), reg(e,'T'))

@add_method
def kgen_gen(self):
    A=self.A
    reg=kreg
    VA=104
    A(f"s_mul_i32 s{S_T0+2}, s{S_W}, {KG_WAVE}")
    A(f"v_lshl_add_u32 v{VA}, v{V_LANE}, 3, s{S_T0+2}")
    OUT=[106,108,110,112]; oi=[0]
    def emit(idx, name, neg):
        if self.xmode=='xt' and idx==36: self.xflag_publish()
        if self.xmode=='gather' and idx in (1,10,19,28,37): A(self.gl[self.gi]); self.gi+=1
        o=OUT[oi[0]%4]; oi[0]+=1
        for e in range(2):
            r=reg(e,name)
            A(f"v_cvt_pk_f16_f32 v{o+e}, v{r}, {'-' if neg else ''}v{r+1}")
        A(f"ds_write_b64 v{VA}, v[{o}:{o+1}] offset:{idx*KG_PITCH}")
    def step(dst, src, z):
        for e in range(2):
            A(f"v_pk_mul_f32 v[{reg(e,'T')}:{reg(e,'T')+1}], v[{reg(e,src)}:{reg(e,src)+1}], v[{reg(e,z)}:{reg(e,z)+1}] op_sel_hi:[0,1]")
        for e in range(2):
            A(f"v_pk_fma_f32 v[{reg(e,dst)}:{reg(e,dst)+1}], v[{reg(e,src)}:{reg(e,src)+1}], v[{reg(e,z)}:{reg(e,z)+1}], v[{reg(e,'T')}:{reg(e,'T')+1}] op_sel:[1,1,0] op_sel_hi:[1,0,1] neg_lo:[1,0,0]")
    emit(0,'C',True)
    step('P','C','Z1'); emit(1,'P',True)
    for r in range(2,8): step('P','P','Z1'); emit(r,'P',True)
    step('Q','C','Z256'); emit(8,'Q',True)
    step('R','Q','Z2'); emit(9,'R',True)
    step('R','R','Z2'); emit(10,'R',True)
    step('R','R','Z2'); emit(11,'R',True)
    step('Q','Q','Z256'); emit(12,'Q',True)
    step('R','Q','Z4'); emit(13,'R',True)
    step('Q','Q','Z256'); emit(14,'Q',True)
    step('R','Q','Z4'); emit(15,'R',True)
    for r in range(16,21): step('Q','Q','Z256'); emit(r,'Q',True)
    o=OUT[oi[0]%4]; oi[0]+=1
    A(f"v_mov_b32 v{o}, 0x3c00\nv_mov_b32 v{o+1}, 0x3c00")
    A(f"ds_write_b64 v{VA}, v[{o}:{o+1}] offset:{21*KG_PITCH}")
    emit(22,'Z8',False)
    step('P','Z8','Z8'); emit(23,'P',False)
    for b in range(3,32): step('P','P','Z8'); emit(21+b,'P',False)
    if self.xmode=='gather':
        while self.gi<8: A(self.gl[self.gi]); self.gi+=1
    self.stamp('gen done')
    A(f"s_mul_i32 s{S_T0+2}, s{S_W}, {KG_WAVE}")
    VAa=104; VAb=105
    A(f"v_and_b32 v48, 31, v{V_LANE}")
    A(f"v_min_u32 v49, 20, v48")
    A(f"v_lshrrev_b32 v50, 5, v{V_LANE}")
    A(f"v_lshlrev_b32 v50, 4, v50")
    A(f"v_add_u32 v50, s{S_T0+2}, v50")
    A(f"s_movk_i32 s{S_T0+3}, {KG_PITCH}")
    A(f"v_mad_u32_u24 v{VAa}, v49, s{S_T0+3}, v50")
    A(f"v_mad_u32_u24 v{VAb}, v48, s{S_T0+3}, v50")
    ACC=112
    FR=[64,72,80,88]
    def ld(ks):
        f=FR[ks%4]
        A(f"ds_read_b128 v[{f}:{f+3}], v{VAa} offset:{ks*32}")
        A(f"ds_read_b128 v[{f+4}:{f+7}], v{VAb} offset:{21*KG_PITCH+ks*32}")
    for ks in range(3): ld(ks)
    for ks in range(16):
        if ks+3<16: ld(ks+3)
        nxt=min(15,ks+3)-ks
        A(f"s_waitcnt lgkmcnt({2*nxt})")
        f=FR[ks%4]
        c = "0" if ks==0 else f"v[{ACC}:{ACC+15}]"
        A(f"v_mfma_f32_32x32x16_f16 v[{ACC}:{ACC+15}], v[{f}:{f+3}], v[{f+4}:{f+7}], {c}")
    l1=self.lab(); l2=self.lab()
    A(f"v_lshl_add_u32 v48, v{V_LANE}, 4, s{S_T0+2}")
    A(f"s_cmp_eq_u32 s{S_NH}, 0")
    A(f"s_cbranch_scc1 {l1}")
    for q in range(3): A(f"ds_write_b128 v48, v[{ACC+4*q}:{ACC+4*q+3}] offset:{q*1024}")
    A(f"{l1}:")
    A("s_nop 1")
    A("s_waitcnt lgkmcnt(0)")
    self.stamp('kmfma')
    A("s_barrier")
    self.stamp('kbar1')
    A(f"s_cmp_eq_u32 s{S_NH}, 0")
    A(f"s_cbranch_scc0 {l2}")
    for q in range(3): A(f"ds_read_b128 v[{64+4*q}:{64+4*q+3}], v48 offset:{KG_WAVE+q*1024}")
    A("s_waitcnt lgkmcnt(0)")
    for r in range(12):
        A(f"v_add_f32 v{64+r}, v{64+r}, v{ACC+r}")
    for r in range(12):
        A(f"v_cvt_f16_f32 v{64+r}, v{64+r}")
    for r in range(4): A(f"ds_write_b16 v176, v{64+r} offset:{2*r}")
    for r in (4,5): A(f"ds_write_b16 v177, v{64+r} offset:{2*(r-4)}")
    for r in (6,7): A(f"ds_write_b16 v178, v{64+r} offset:{2*(r-6)}")
    for r in range(8,12): A(f"ds_write_b16 v179, v{64+r} offset:{1024+64*(r-8)}")
    A(f"v_mov_b32 v50, 0")
    A(f"v_mov_b32 v51, s{S_T0+2}")
    A(f"ds_write_b16 v51, v50 offset:{2*768}")
    A(f"{l2}:")
    self.granule_loads()
    A("s_waitcnt lgkmcnt(0)")
    A("s_barrier")

@add_method
def kexpand(self):
    A=self.A
    D0=64
    def rd(ch,x):
        tb=(2*ch)*KG_WAVE; d=D0+ch*28
        A(f"ds_read_u16 v{d+x}, v{V_OFF+x} offset:{tb}")
    def mk(ch):
        d=D0+ch*28
        for c in range(4):
            for x in range(4):
                A(f"v_lshl_or_b32 v{d+12+4*c+x}, v{d+c+2*x+1}, 16, v{d+c+2*x}")
    def wr(ch):
        d=D0+ch*28
        for c in range(4):
            r=d+12+4*c
            A(f"ds_write_b128 v49, v[{r}:{r+3}] offset:{ch*KX_CH+c*KX_COPY}")
    for x in range(11): rd(0,x)
    for x in range(4): rd(1,x)
    A(f"v_lshlrev_b32 v49, 4, v{V_T}")
    A(f"v_add_u32 v49, {LDS_KX}, v49")
    A("s_waitcnt lgkmcnt(4)")
    mk(0)
    for x in range(4,11): rd(1,x)
    wr(0)
    A("s_waitcnt lgkmcnt(4)")
    mk(1)
    wr(1)
    A("v_mov_b32 v64, 0\nv_mov_b32 v65, 0\nv_mov_b32 v66, 0\nv_mov_b32 v67, 0")
    l=self.lab()
    A(f"s_cmp_lg_u32 s{S_W}, 0")
    A(f"s_cbranch_scc1 {l}")
    A(f"v_and_b32 v50, 31, v{V_LANE}")
    A(f"v_lshlrev_b32 v50, 4, v50")
    A(f"v_lshrrev_b32 v51, 5, v{V_LANE}")
    A(f"v_mul_u32_u24 v51, {U_CH}, v51")
    A(f"v_add_u32 v50, v50, v51")
    A(f"v_add_u32 v50, {LDS_U}, v50")
    A(f"ds_write_b128 v50, v[64:67]")
    A(f"v_lshrrev_b32 v50, 1, v{V_LANE}")
    A(f"v_and_b32 v50, 7, v50")
    A(f"v_mul_u32_u24 v50, {KX_COPY}, v50")
    A(f"v_and_b32 v51, 1, v{V_LANE}")
    A(f"v_lshl_add_u32 v50, v51, 4, v50")
    A(f"v_add_u32 v50, {LDS_KX+4096}, v50")
    A(f"ds_write_b128 v50, v[64:67]")
    A(f"{l}:")

S_GB=76
S_GB2=82
S_KSTR=68
@add_method
def stage_w(self, kind):
    A=self.A
    RING=24576
    if kind=='w1':
        stride=3584
        A(f"s_mov_b32 s{SRD_W}, s{S_WGT}\ns_mov_b32 s{SRD_W+1}, s{S_WGT+1}\ns_mov_b32 s{SRD_W+2}, {D_*F_*2}\ns_mov_b32 s{SRD_W+3}, 0x20000")
        A(f"s_mov_b32 s{SRD_W2}, s{S_WUP}\ns_mov_b32 s{SRD_W2+1}, s{S_WUP+1}\ns_mov_b32 s{SRD_W2+2}, {D_*F_*2}\ns_mov_b32 s{SRD_W2+3}, 0x20000")
        A(f"s_lshl_b32 s{S_T0}, s{S_J}, 8")
        A(f"s_lshl_b32 s{S_T0+1}, s{S_W}, 6")
        A(f"s_add_u32 s{S_T0}, s{S_T0}, s{S_T0+1}")
        for g in range(4):
            A(f"s_add_u32 s{S_T0+1}, s{S_W}, {g}")
            A(f"s_and_b32 s{S_T0+1}, s{S_T0+1}, 3")
            A(f"s_mul_i32 s{S_T0+1}, s{S_T0+1}, {7*16*stride}")
            A(f"s_add_u32 s{S_GB+g}, s{S_T0+1}, s{S_T0}")
        tileoff2=0
    else:
        stride=896
        A(f"s_mov_b32 s{SRD_W}, s{S_WD}\ns_mov_b32 s{SRD_W+1}, s{S_WD+1}\ns_mov_b32 s{SRD_W+2}, {D_*F_*2}\ns_mov_b32 s{SRD_W+3}, 0x20000")
        A(f"s_mov_b32 s{SRD_W2}, s{S_WD}\ns_mov_b32 s{SRD_W2+1}, s{S_WD+1}\ns_mov_b32 s{SRD_W2+2}, {D_*F_*2}\ns_mov_b32 s{SRD_W2+3}, 0x20000")
        A(f"s_cmp_ge_u32 s{S_J}, 7")
        A(f"s_cselect_b32 s{S_T0}, 7, 0")
        A(f"s_sub_u32 s{S_T0}, s{S_J}, s{S_T0}")
        A(f"s_lshl_b32 s{S_T0}, s{S_T0}, 7")
        A(f"s_mul_i32 s{S_T0+1}, s{S_W}, {448*stride}")
        A(f"s_add_u32 s{S_T0}, s{S_T0}, s{S_T0+1}")
        for g in range(4):
            A(f"s_add_u32 s{S_GB+g}, s{S_T0}, {g*7*16*stride}")
        tileoff2=64
    kstr=16*stride
    A(f"v_lshrrev_b32 v48, 2, v{V_LANE}")
    A(f"v_mul_u32_u24 v48, {stride}, v48")
    A(f"v_and_b32 v49, 3, v{V_LANE}")
    A(f"v_lshl_add_u32 v48, v49, 4, v48")
    if kind=='w1':
        A(f"v_mov_b32 v52, v48")
    else:
        A(f"s_lshl_b32 s{S_T0+1}, s{S_NH}, 6")
        A(f"s_xor_b32 s{S_T0+3}, s{S_T0+1}, 64")
        A(f"v_add_u32 v52, s{S_T0+3}, v48")
        A(f"v_add_u32 v48, s{S_T0+1}, v48")
    A(f"s_mul_i32 s{S_T0+2}, s{S_W}, {RING}")
    A(f"v_lshrrev_b32 v50, 5, v{V_LANE}")
    A(f"v_lshlrev_b32 v50, {9 if kind=='w1' else 8}, v50")
    A(f"v_bfe_u32 v51, v{V_LANE}, 2, 2")
    A(f"v_lshl_add_u32 v50, v51, 6, v50")
    A(f"v_bfe_u32 v51, v{V_LANE}, 4, 1")
    A(f"v_lshl_add_u32 v50, v51, 5, v50")
    A(f"v_and_b32 v51, 3, v{V_LANE}")
    A(f"v_lshl_add_u32 v50, v51, 3, v50")
    A(f"v_add_u32 v50, s{S_T0+2}, v50")
    second = 256 if kind=='w1' else 512
    def issue(c):
        slot=c%3
        for i in range(4):
            s=4*c+i; g=s//7; r=s%7
            A(f"s_add_u32 s{S_T0+3}, s{S_GB+g}, {r*kstr}")
            A(f"s_add_u32 m0, s{S_T0+2}, {slot*8192+i*2048}")
            A(f"buffer_load_dwordx4 v48, s[{SRD_W}:{SRD_W+3}], s{S_T0+3} offen lds")
            A(f"s_add_u32 m0, s{S_T0+2}, {slot*8192+i*2048+1024}")
            A(f"buffer_load_dwordx4 v52, s[{SRD_W2}:{SRD_W2+3}], s{S_T0+3} offen lds")
    for c in range(3): issue(c)
    for c in range(7):
        A(f"s_waitcnt vmcnt({8*min(2,6-c)})")
        slot=c%3
        for i in range(4):
            s=4*c+i
            for tile in range(2):
                a=8*s+4*tile; off=slot*8192+i*2048+tile*1024
                A(f"ds_read_b64_tr_b16 a[{a}:{a+1}], v50 offset:{off}")
                A(f"ds_read_b64_tr_b16 a[{a+2}:{a+3}], v50 offset:{off+second}")
            if i==1: A("s_waitcnt lgkmcnt(4)")
        if c+3<7:
            A("s_waitcnt lgkmcnt(0)")
            issue(c+3)
    A("s_waitcnt lgkmcnt(0)")

@add_method
def flag_load(self):
    A=self.A
    A(f"s_lshl_b32 s{S_T0}, s{S_J}, 2")
    A(f"s_add_u32 s{S_T0}, s{S_T0}, s{S_W}")
    A(f"s_lshr_b32 s{S_T0}, s{S_T0}, 1")
    A(f"s_mul_i32 s{S_T0}, s{S_T0}, 7")
    A(f"v_min_u32 v44, 13, v{V_LANE}")
    A(f"v_add_u32 v46, 189, v44")
    A(f"v_cmp_lt_u32 vcc, 6, v44")
    A(f"v_cndmask_b32 v44, v44, v46, vcc")
    A(f"v_add_u32 v44, s{S_T0}, v44")
    A(f"v_lshlrev_b32 v44, 6, v44")
    A(f"s_mov_b32 s{S_T0+11}, {WS_JF}")
    A(f"buffer_load_dword v46, v44, s[{SRD_WS}:{SRD_WS+3}], s{S_T0+11} offen sc1")

@add_method
def wdflag_load(self, S):
    A=self.A
    A(f"s_cmp_ge_u32 s{S_J}, 7")
    A(f"s_cselect_b32 s{S_T0+8}, 7, 0")
    A(f"s_sub_u32 s{S_T0+8}, s{S_J}, s{S_T0+8}")
    A(f"s_mul_i32 s{S_T0+8}, s{S_T0+8}, 28")
    A(f"s_mul_i32 s{S_T0+9}, s{S_W}, 7")
    A(f"s_add_u32 s{S_T0+8}, s{S_T0+8}, s{S_T0+9}")
    A(f"s_add_u32 s{S_T0+8}, s{S_T0+8}, 392")
    A(f"v_min_u32 v44, 6, v{V_LANE}")
    A(f"v_add_u32 v44, s{S_T0+8}, v44")
    A(f"v_lshlrev_b32 v44, 6, v44")
    A(f"s_mov_b32 s{S_T0+11}, {WS_JF}")
    S.vmem(f"buffer_load_dword v46, v44, s[{SRD_WS}:{SRD_WS+3}], s{S_T0+11} offen sc1","WDF")

@add_method
def wdflag_check(self, S):
    A=self.A
    lp=self.lab('Lpoll'); le=self.lab()
    S.need_vm(["WDF"])
    A(f"s_mov_b32 s{S_T0+8}, 0")
    A(f"{lp}:")
    A(f"v_cmp_eq_u32 vcc, s{S_TAG}, v46")
    A(f"s_and_b32 s{S_T0+9}, vcc_lo, 0x7f")
    A(f"s_cmp_eq_u32 s{S_T0+9}, 0x7f")
    A(f"s_cbranch_scc1 {le}")
    A(f"buffer_load_dword v46, v44, s[{SRD_WS}:{SRD_WS+3}], s{S_T0+11} offen sc1")
    A("s_waitcnt vmcnt(0)")
    A(f"s_add_u32 s{S_T0+8}, s{S_T0+8}, 1")
    A(f"s_cmp_lt_u32 s{S_T0+8}, 0x8000")
    A(f"s_cbranch_scc1 {lp}")
    A(f"{le}:")

@add_method
def granule_loads(self):
    A=self.A; SG=144
    if self.xmode=='gather':
        A(f"v_lshlrev_b32 v43, 6, v{V_T}")
        A(f"s_mov_b32 s{S_T0+13}, {WS_STATS}")
        for k in range(4):
            A(f"buffer_load_dwordx4 v[{SG+4*k}:{SG+4*k+3}], v43, s[{SRD_WS}:{SRD_WS+3}], s{S_T0+13} offen offset:{16*k} sc1")
        return
    A(f"s_lshr_b32 s{S_T0+12}, s{S_D0}, 6")
    A(f"s_and_b32 s{S_T0+12}, s{S_T0+12}, 3")
    A(f"s_lshl_b32 s{S_T0+12}, s{S_T0+12}, 6")
    A(f"s_add_u32 s{S_T0+12}, s{S_T0+12}, {WS_XF}")
    A(f"v_lshlrev_b32 v37, 8, v{V_T}")
    A(f"buffer_load_dword v36, v37, s[{SRD_WS}:{SRD_WS+3}], s{S_T0+12} offen sc1")
    A(f"v_lshlrev_b32 v43, 6, v{V_T}")
    A(f"s_mov_b32 s{S_T0+13}, {WS_STATS}")
    for k in range(4):
        A(f"buffer_load_dwordx4 v[{SG+4*k}:{SG+4*k+3}], v43, s[{SRD_WS}:{SRD_WS+3}], s{S_T0+13} offen offset:{16*k} sc1")

@add_method
def granule_wait(self):
    A=self.A; SG=144
    lp=self.lab('Lpoll'); le=self.lab()
    A(f"s_mov_b32 s{S_T0+1}, 0")
    A("s_waitcnt vmcnt(0)")
    A(f"{lp}:")
    if self.xmode=='gather': A("v_mov_b32 v49, 0")
    else: A(f"v_xor_b32 v49, s{S_TAG}, v36")
    for k in range(8):
        A(f"v_xor_b32 v50, s{S_TAG}, v{SG+2*k+1}")
        A(f"v_or_b32 v49, v49, v50")
    A("v_cmp_ne_u32 vcc, 0, v49")
    A(f"s_add_u32 s{S_T0+1}, s{S_T0+1}, 1")
    A(f"s_cbranch_vccz {le}")
    if self.xmode=='xt': A(f"buffer_load_dword v36, v37, s[{SRD_WS}:{SRD_WS+3}], s{S_T0+12} offen sc1")
    for k in range(4):
        A(f"buffer_load_dwordx4 v[{SG+4*k}:{SG+4*k+3}], v43, s[{SRD_WS}:{SRD_WS+3}], s{S_T0+13} offen offset:{16*k} sc1")
    A("s_waitcnt vmcnt(0)")
    A(f"s_cmp_lt_u32 s{S_T0+1}, 0x8000")
    A(f"s_cbranch_scc1 {lp}")
    A(f"{le}:")

@add_method
def flag_wait(self, mask, landed=False):
    A=self.A
    lp=self.lab('Lpoll'); le=self.lab(); lf=self.lab()
    A(f"s_mov_b32 s{S_T0+1}, 0")
    if landed: A(f"s_branch {lf}")
    A(f"{lp}:")
    A("s_waitcnt vmcnt(0)")
    A(f"{lf}:")
    A(f"v_cmp_eq_u32 vcc, s{S_TAG}, v46")
    A(f"s_and_b32 s{S_T0+2}, vcc_lo, {hex(mask)}")
    A(f"s_cmp_eq_u32 s{S_T0+2}, {hex(mask)}")
    A(f"s_cbranch_scc1 {le}")
    A(f"buffer_load_dword v46, v44, s[{SRD_WS}:{SRD_WS+3}], s{S_T0+11} offen sc1")
    A(f"s_add_u32 s{S_T0+1}, s{S_T0+1}, 1")
    A(f"s_cmp_lt_u32 s{S_T0+1}, 0x8000")
    A(f"s_cbranch_scc1 {lp}")
    A(f"{le}:")

@add_method
def xt_loads(self):
    A=self.A; XA=8
    A(f"s_movk_i32 s{S_T0+2}, 7168")
    A(f"v_mul_lo_u32 v48, v{V_T}, s{S_T0+2}")
    A(f"s_lshl_b32 s{S_T0+2}, s{S_D0}, 4")
    A(f"s_add_u32 s{S_T0+2}, s{S_T0+2}, {WS_XT}")
    A(f"buffer_load_dwordx4 v[{XA}:{XA+3}], v48, s[{SRD_WS}:{SRD_WS+3}], s{S_T0+2} offen sc1")
    A(f"buffer_load_dwordx4 v[{XA+4}:{XA+7}], v48, s[{SRD_WS}:{SRD_WS+3}], s{S_T0+2} offen offset:16 sc1")

@add_method
def w1_setup(self):
    A=self.A
    A(f"s_lshl_b32 s{S_T0}, s{S_J}, 2")
    A(f"s_add_u32 s{S_T0}, s{S_T0}, s{S_W}")
    A(f"s_mul_i32 s{S_T0}, s{S_T0}, 56")
    for g in range(4):
        A(f"s_add_u32 s{S_T0+1}, s{S_W}, {g}")
        A(f"s_and_b32 s{S_T0+1}, s{S_T0+1}, 3")
        A(f"s_mul_i32 s{S_T0+1}, s{S_T0+1}, 7")
        A(f"s_add_u32 s{S_T0+1}, s{S_T0+1}, s{S_T0}")
        A(f"s_lshl_b32 s{S_T0+1}, s{S_T0+1}, 10")
        A(f"s_add_u32 s{S_GB+g}, s{S_T0+1}, {WS_WF1}")
        A(f"s_add_u32 s{S_GB2+g}, s{S_GB+g}, {28*1024}")
    A(f"v_lshlrev_b32 v45, 4, v{V_LANE}")
    A(f"v_add_u32 v3, 4096, v45")

@add_method
def w1_items(self, s0, s1):
    out=[]
    for s in range(s0,s1):
        g=s//7; i=s%7
        for t in range(2):
            sb=(S_GB if t==0 else S_GB2)+g
            va,off=("v45",i*1024) if i<4 else ("v3",(i-4)*1024)
            out.append([f"buffer_load_dwordx4 a[{8*s+4*t}:{8*s+4*t+3}], {va}, s[{SRD_WS}:{SRD_WS+3}], s{sb} offen offset:{off} sc1"])
    return out
@add_method
def w1_loads(self, s0, s1):
    for it in self.w1_items(s0,s1):
        for x in it: self.A(x)

@add_method
def x_prepare(self):
    A=self.A
    A("s_waitcnt vmcnt(4)")
    for ch in range(2):
        for j in range(8): A((bf16_lo if ch==0 else bf16_hi)(96+8*ch+j, V_XG+j))
    A(f"s_mov_b32 s{S_T0+2}, 0x05040100")
    A(f"s_mov_b32 s{S_T0+3}, 0x07060302")
    for ch in range(2):
        for j in range(0,8,2):
            A(f"v_perm_b32 v{176+ch*4+j//2}, v{V_XG+j+1}, v{V_XG+j}, s{S_T0+2+ch}")
    A(f"v_lshlrev_b32 v48, 4, v{V_T}")
    A(f"v_add_u32 v42, {LDS_U+512}, v48")
    A(f"v_add_u32 v50, {LDS_XT}, v48")
    A(f"ds_write_b128 v50, v[176:179]")
    A(f"ds_write_b128 v50, v[180:183] offset:{XT_CH}")
    self.w1_setup()

@add_method
def stats_consume(self):
    A=self.A
    SG=144
    for j in range(8):
        A(f"v_lshlrev_b32 v{80+j}, 16, v{SG+2*j}")
        A(f"v_and_b32 v{88+j}, 0xffff0000, v{SG+2*j}")
    for j in range(8): A(f"v_rcp_f32 v{80+j}, v{80+j}")
    for ch in range(2):
        X=96+ch*8
        for j in range(0,8,2):
            A(f"v_pk_add_f32 v[{X+j}:{X+j+1}], v[{X+j}:{X+j+1}], v[{88+j}:{88+j+1}] neg_lo:[0,1] neg_hi:[0,1]")
        if self.mimic>=2:
            for j in range(0,8,2):
                A(f"v_cvt_pk_bf16_f32 v{128+j//2}, v{X+j}, v{X+j+1}")
            for j in range(0,8,2):
                A(bf16_lo(X+j,128+j//2)); A(bf16_hi(X+j+1,128+j//2))
        for j in range(0,8,2):
            A(f"v_pk_mul_f32 v[{X+j}:{X+j+1}], v[{X+j}:{X+j+1}], v[{80+j}:{80+j+1}]")
        if self.mimic>=1:
            for j in range(0,8,2):
                A(f"v_cvt_pk_bf16_f32 v{128+j//2}, v{X+j}, v{X+j+1}")
            for j in range(0,8,2):
                A(bf16_lo(X+j,128+j//2)); A(bf16_hi(X+j+1,128+j//2))
        U=132+ch*4
        for j in range(0,8,2):
            A(f"v_cvt_pk_f16_f32 v{U+j//2}, v{X+j}, v{X+j+1}")
        A(f"ds_write_b128 v42, v[{U}:{U+3}] offset:{ch*U_CH}")
    if self.w1pf or self.w1start: self.flag_load()
    A("s_waitcnt lgkmcnt(0)")
    A("s_barrier")

@add_method
def w1_rest(self):
    self.w1_loads(W1_IN_CONV,28)

@add_method
def wd_loads(self, s0, s1, S=None):
    out=[]
    for s in range(s0,s1):
        for ca in range(2):
            out.append(f"s_add_u32 s{S_T0+14}, s{S_T0+12+ca}, {s*1024}")
            out.append(('vm',f"buffer_load_dwordx4 a[{8*s+4*ca}:{8*s+4*ca+3}], v47, s[{SRD_WS}:{SRD_WS+3}], s{S_T0+14} offen sc1",f"WD{s}"))
    return out

@add_method
def wd_setup(self):
    A=self.A
    A(f"s_cmp_ge_u32 s{S_J}, 7")
    A(f"s_cselect_b32 s{S_T0+14}, 7, 0")
    A(f"s_sub_u32 s{S_T0+14}, s{S_J}, s{S_T0+14}")
    A(f"s_lshl_b32 s{S_T0+14}, s{S_T0+14}, 1")
    for ca in range(2):
        A(f"s_xor_b32 s{S_T0+12+ca}, s{S_NH}, {ca}")
        A(f"s_add_u32 s{S_T0+12+ca}, s{S_T0+12+ca}, s{S_T0+14}")
        A(f"s_mul_i32 s{S_T0+12+ca}, s{S_T0+12+ca}, 112")
        A(f"s_mul_i32 s{S_T0+15}, s{S_W}, 28")
        A(f"s_add_u32 s{S_T0+12+ca}, s{S_T0+12+ca}, s{S_T0+15}")
        A(f"s_lshl_b32 s{S_T0+12+ca}, s{S_T0+12+ca}, 10")
        A(f"s_add_u32 s{S_T0+12+ca}, s{S_T0+12+ca}, {WS_WFD}")
    A(f"v_lshlrev_b32 v47, 4, v{V_LANE}")

W1_PRE=12
W1_IN_CONV=0
C_ACC=64
C_F=[96,160]
C_G=[128,192]
C_VF=34; C_VG=35
C_EU=224; C_EX=232
@add_method
def conv_setup(self):
    A=self.A
    A(f"v_and_b32 v50, 15, v{V_LANE}")
    A(f"v_lshrrev_b32 v51, 4, v{V_LANE}")
    A(f"v_sub_u32 v52, 3, v50")
    A(f"v_and_b32 v52, 3, v52")
    A(f"v_mul_u32_u24 v52, {KX_COPY}, v52")
    A(f"v_lshrrev_b32 v53, 2, v50")
    A(f"v_lshlrev_b32 v53, 3, v53")
    A(f"v_sub_u32 v52, v52, v53")
    A(f"v_lshl_add_u32 v52, v51, 4, v52")
    A(f"s_mul_i32 s{S_T0}, s{S_CH}, {KX_CH}")
    A(f"s_lshl_b32 s{S_T0+1}, s{S_NH}, 8")
    A(f"s_sub_u32 s{S_T0}, s{S_T0}, s{S_T0+1}")
    A(f"s_add_u32 s{S_T0}, s{S_T0}, {LDS_KX+2*2028-64*63}")
    A(f"v_add_u32 v{C_VF}, s{S_T0}, v52")
    A(f"v_lshlrev_b32 v52, 5, v50")
    A(f"v_lshl_add_u32 v52, v51, 4, v52")
    A(f"s_mul_i32 s{S_T0}, s{S_CH}, {U_CH}")
    A(f"s_sub_u32 s{S_T0}, s{S_T0}, s{S_T0+1}")
    A(f"s_add_u32 s{S_T0}, s{S_T0}, {LDS_U+480-192}")
    A(f"v_add_u32 v{C_VG}, s{S_T0}, v52")
    A(f"v_lshlrev_b32 v52, 5, v50")
    A(f"v_lshl_add_u32 v52, v51, 3, v52")
    A(f"s_lshl_b32 s{S_T0}, s{S_NH}, 11")
    A(f"s_mul_i32 s{S_T0+1}, s{S_CH}, {U_CH}")
    A(f"s_add_u32 s{S_T0+1}, s{S_T0+1}, s{S_T0}")
    A(f"s_add_u32 s{S_T0+1}, s{S_T0+1}, {LDS_U+512}")
    A(f"v_add_u32 v36, s{S_T0+1}, v52")
    A(f"s_mul_i32 s{S_T0+1}, s{S_CH}, {XT_CH}")
    A(f"s_add_u32 s{S_T0+1}, s{S_T0+1}, s{S_T0}")
    A(f"s_add_u32 s{S_T0+1}, s{S_T0+1}, {LDS_XT}")
    A(f"v_add_u32 v37, s{S_T0+1}, v52")
    A(f"v_and_b32 v38, 1, v51")
    A(f"v_lshlrev_b32 v38, 3, v38")
    A(f"v_lshrrev_b32 v53, 1, v50")
    A(f"v_add_u32 v38, v38, v53")
    A(f"s_movk_i32 s{S_T0+8}, {448*64}")
    A(f"v_mul_lo_u32 v38, v38, s{S_T0+8}")
    A(f"v_and_b32 v53, 1, v50")
    A(f"v_lshl_add_u32 v38, v53, 5, v38")
    A(f"v_lshrrev_b32 v53, 1, v51")
    A(f"v_lshl_add_u32 v38, v53, 4, v38")
    A(f"s_lshl_b32 s{S_T0+8}, s{S_NH}, 5")
    A(f"s_mul_i32 s{S_T0+8}, s{S_T0+8}, {448*64}")
    A(f"s_add_u32 s{S_T0+9}, s{S_D0}, s{S_CH}")
    A(f"s_lshl_b32 s{S_T0+9}, s{S_T0+9}, 6")
    A(f"s_add_u32 s{S_T0+8}, s{S_T0+8}, s{S_T0+9}")
    A(f"s_add_u32 s22, s{S_T0+8}, {WS_HT}")
    A(f"s_add_u32 s23, s22, {16*448*64}")

@add_method
def conv(self):
    A=self.A
    def loads(sp):
        st=sp&1; out=[]
        for k in range(8):
            g=C_G[st]+4*k; f=C_F[st]+4*k
            out.append(f"ds_read_b128 v[{g}:{g+3}], v{C_VG} offset:{512*k+64*(3-sp)}")
            o=64*(63-8*k-sp)
            out.append(f"ds_read_b64 v[{f}:{f+1}], v{C_VF} offset:{o}")
            out.append(f"ds_read_b64 v[{f+2}:{f+3}], v{C_VF} offset:{o+8}")
        return out
    def mfmas(sp):
        st=sp&1; out=[]
        for t in range(8):
            for d in range(t+1):
                acc=C_ACC+4*t
                c = "0" if (sp==0 and d==0) else f"v[{acc}:{acc+3}]"
                out.append((t,d,f"v_mfma_f32_16x16x32_f16 v[{acc}:{acc+3}], v[{C_F[st]+4*d}:{C_F[st]+4*d+3}], v[{C_G[st]+4*(t-d)}:{C_G[st]+4*(t-d)+3}], {c}"))
        return out
    l0=loads(0)
    for k in range(5):
        for x in l0[3*k:3*k+3]: A(x)
    issued=5
    nconv=((4-self.w1start)*9)//2 if self.w1start else 0
    self.w1_in_conv=nconv
    wl=self.w1_items(0,nconv); wi=[0]; mc=[0]; cur_sp=[0]
    def wfill():
        if not self.w1start or cur_sp[0]<self.w1start: return
        mc[0]+=1
        if mc[0]%4==2 and wi[0]<len(wl):
            for x in wl[wi[0]]: A(x)
            wi[0]+=1
    nxt=loads(1); ni=0
    cur_t=-1
    for (t,d,txt) in mfmas(0):
        first = (t!=cur_t)
        if first:
            cur_t=t
            if t<=3: A(f"s_waitcnt lgkmcnt({3*(issued-1-t)})")
            elif t==4: A("s_waitcnt lgkmcnt(0)")
        A(txt)
        if first and issued<8:
            for x in l0[3*issued:3*issued+3]: A(x)
            issued+=1
        elif t>=4 and ni<len(nxt):
            A(nxt[ni]); ni+=1
    assert ni==len(nxt)

    epi=[]
    for tt in range(4):
        epi.append(f"ds_read_b64 v[{C_EU+2*tt}:{C_EU+2*tt+1}], v36 offset:{512*tt}")
        epi.append(f"ds_read_b64 v[{C_EX+2*tt}:{C_EX+2*tt+1}], v37 offset:{512*tt}")
    U=224; X=240
    PRE=160
    PRE=96
    UU=112
    pre=[]
    if self.mimic==0:
        pre.append(f"v_mov_b32 v47, s{S_DSKV}")
        for tt in range(4):
            for h in range(2):
                pre.append(f"v_cvt_f32_f16 v{UU+4*tt+2*h}, v{C_EU+2*tt+h}")
                pre.append(f"v_lshrrev_b32 v{UU+4*tt+2*h+1}, 16, v{C_EU+2*tt+h}")
                pre.append(f"v_cvt_f32_f16 v{UU+4*tt+2*h+1}, v{UU+4*tt+2*h+1}")
                pre.append(bf16_lo(PRE+4*tt+2*h, C_EX+2*tt+h)); pre.append(bf16_hi(PRE+4*tt+2*h+1, C_EX+2*tt+h))
        for r in range(16): pre.append(f"v_fma_f32 v{PRE+r}, v{UU+r}, v47, v{PRE+r}")
    for sp in range(1,4):
        if self.w1start and sp==self.w1start:
            self.flag_wait(0x3fff)
        if self.w1pf and sp==self.w1pf:
            lpf=self.lab()
            A("s_waitcnt vmcnt(0)")
            A(f"v_cmp_eq_u32 vcc, s{S_TAG}, v46")
            A(f"s_and_b32 s{S_T0+2}, vcc_lo, 0x3fff")
            A(f"s_cmp_eq_u32 s{S_T0+2}, 0x3fff")
            A(f"s_cbranch_scc0 {lpf}")
            A(f"s_lshl_b32 s{S_T0+2}, s{S_J}, 2")
            A(f"s_add_u32 s{S_T0+2}, s{S_T0+2}, s{S_W}")
            A(f"s_mul_i32 s{S_T0+2}, s{S_T0+2}, {56*1024}")
            A(f"s_and_b32 s{S_T0+3}, s{S_I}, 3")
            A(f"s_mul_i32 s{S_T0+3}, s{S_T0+3}, {14*1024}")
            A(f"s_add_u32 s{S_T0+2}, s{S_T0+2}, s{S_T0+3}")
            A(f"s_add_u32 s{S_T0+2}, s{S_T0+2}, {WS_WF1}")
            A(f"v_min_u32 v40, 55, v{V_LANE}")
            A(f"v_lshlrev_b32 v40, 7, v40")
            A(f"buffer_load_dword v253, v40, s[{SRD_WS}:{SRD_WS+3}], s{S_T0+2} offen sc1")
            A(f"s_add_u32 s{S_T0+2}, s{S_T0+2}, {7*1024}")
            A(f"buffer_load_dword v252, v40, s[{SRD_WS}:{SRD_WS+3}], s{S_T0+2} offen sc1")
            A(f"{lpf}:")
        A("s_waitcnt lgkmcnt(0)")
        nxt = loads(sp+1) if sp<3 else epi
        cur_sp[0]=sp
        ni=0; pi=0; k=0
        for (t,d,txt) in mfmas(sp):
            A(txt); k+=1
            if ni<len(nxt): A(nxt[ni]); ni+=1
            elif sp==3 and pre:
                if k==12: A("s_waitcnt lgkmcnt(0)")
                if k>=12:
                    tgt=min(len(pre),(len(pre)*(k-11)+23)//24)
                    while pi<tgt: A(pre[pi]); pi+=1
            wfill()
        if sp==3:
            while pi<len(pre): A(pre[pi]); pi+=1
    assert wi[0]==len(wl)
    A(f"s_lshl_b32 s{S_T0}, s{S_W}, 12")
    A(f"v_lshl_add_u32 v55, v{V_LANE}, 4, s{S_T0}")
    if self.mimic==0:
        lA=self.lab(); lB=self.lab()
        A(f"s_cmp_eq_u32 s{S_NH}, 0")
        A(f"s_cbranch_scc0 {lA}")
        A("s_nop 5")
        for tt in range(4): A(f"ds_write_b128 v55, v[{C_ACC+16+4*tt}:{C_ACC+16+4*tt+3}] offset:{1024*tt}")
        A(f"s_branch {lB}")
        A(f"{lA}:")
        A("s_nop 5")
        for tt in range(4): A(f"ds_write_b128 v55, v[{C_ACC+4*tt}:{C_ACC+4*tt+3}] offset:{1024*tt}")
        A(f"{lB}:")
        A("v_xor_b32 v55, 4096, v55")
        A(f"v_mov_b32 v146, s{S_YS}\nv_mov_b32 v147, s{S_YS}")
        A("s_waitcnt lgkmcnt(0)")
        A("s_barrier")
        PT=128
        for tt in range(4): A(f"ds_read_b128 v[{PT+4*tt}:{PT+4*tt+3}], v55 offset:{1024*tt}")
        def fin(Y):
            for tt in range(4):
                A(f"s_waitcnt lgkmcnt({3-tt})")
                for p in (2*tt,2*tt+1):
                    A(f"v_pk_add_f32 v[{PT+2*p}:{PT+2*p+1}], v[{Y+2*p}:{Y+2*p+1}], v[{PT+2*p}:{PT+2*p+1}]")
                for p in (2*tt,2*tt+1):
                    A(f"v_pk_fma_f32 v[{PT+2*p}:{PT+2*p+1}], v[{PT+2*p}:{PT+2*p+1}], v[146:147], v[{PRE+2*p}:{PRE+2*p+1}]")
        lA=self.lab(); lB=self.lab()
        A(f"s_cmp_eq_u32 s{S_NH}, 0")
        A(f"s_cbranch_scc0 {lA}")
        fin(C_ACC)
        A(f"s_branch {lB}")
        A(f"{lA}:")
        fin(C_ACC+16)
        A(f"{lB}:")
        Y=PT
    else:
        l=self.lab()
        A(f"s_cmp_eq_u32 s{S_NH}, 0")
        A(f"s_cbranch_scc1 {l}")
        A("s_nop 7")
        for r in range(16): A(f"v_swap_b32 v{C_ACC+r}, v{C_ACC+16+r}")
        A(f"{l}:")
        A("s_nop 7")
        for tt in range(4): A(f"ds_write_b128 v55, v[{C_ACC+16+4*tt}:{C_ACC+16+4*tt+3}] offset:{1024*tt}")
        A("v_xor_b32 v55, 4096, v55")
        A("s_waitcnt lgkmcnt(0)")
        A("s_barrier")
    if self.mimic==0: pass
    else:
        for tt in range(4): A(f"ds_read_b128 v[{96+4*tt}:{96+4*tt+3}], v55 offset:{1024*tt}")
        U=112; X=128; Y=C_ACC
        for tt in range(4):
            for h in range(2):
                A(f"v_cvt_f32_f16 v{U+4*tt+2*h}, v{C_EU+2*tt+h}")
                A(f"v_cvt_f32_f16_sdwa v{U+4*tt+2*h+1}, v{C_EU+2*tt+h} dst_sel:DWORD dst_unused:UNUSED_PAD src0_sel:WORD_1")
                A(bf16_lo(X+4*tt+2*h, C_EX+2*tt+h)); A(bf16_hi(X+4*tt+2*h+1, C_EX+2*tt+h))
        A(f"v_mov_b32 v144, s{S_DSKV}\nv_mov_b32 v145, s{S_DSKV}\nv_mov_b32 v146, s{S_YS}\nv_mov_b32 v147, s{S_YS}")
        for p in range(8):
            A(f"v_pk_mul_f32 v[{U+2*p}:{U+2*p+1}], v[{U+2*p}:{U+2*p+1}], v[144:145]")
        if self.mimic>=1:
            for p in range(8): A(f"v_cvt_pk_bf16_f32 v{148+p}, v{U+2*p}, v{U+2*p+1}")
            for p in range(8): A(bf16_lo(U+2*p,148+p)); A(bf16_hi(U+2*p+1,148+p))
        A("s_waitcnt lgkmcnt(0)")
        for p in range(8):
            A(f"v_pk_add_f32 v[{Y+2*p}:{Y+2*p+1}], v[{Y+2*p}:{Y+2*p+1}], v[{96+2*p}:{96+2*p+1}]")
        for p in range(8):
            A(f"v_pk_mul_f32 v[{Y+2*p}:{Y+2*p+1}], v[{Y+2*p}:{Y+2*p+1}], v[146:147]")
        if self.mimic>=1:
            for p in range(8): A(f"v_cvt_pk_bf16_f32 v{148+p}, v{Y+2*p}, v{Y+2*p+1}")
            for p in range(8): A(bf16_lo(Y+2*p,148+p)); A(bf16_hi(Y+2*p+1,148+p))
        for p in range(8):
            A(f"v_pk_add_f32 v[{Y+2*p}:{Y+2*p+1}], v[{Y+2*p}:{Y+2*p+1}], v[{U+2*p}:{U+2*p+1}]")
        if self.mimic>=1:
            for p in range(8): A(f"v_cvt_pk_bf16_f32 v{148+p}, v{Y+2*p}, v{Y+2*p+1}")
            for p in range(8): A(bf16_lo(Y+2*p,148+p)); A(bf16_hi(Y+2*p+1,148+p))
        for p in range(8):
            A(f"v_pk_add_f32 v[{Y+2*p}:{Y+2*p+1}], v[{Y+2*p}:{Y+2*p+1}], v[{X+2*p}:{X+2*p+1}]")
    H=148
    for p in range(8): A(f"v_cvt_pk_bf16_f32 v{H+p}, v{Y+2*p}, v{Y+2*p+1}")
    for pr in range(2):
        b=H+4*pr
        A(f"v_permlane16_swap_b32 v{b}, v{b+2}")
        A(f"v_permlane16_swap_b32 v{b+1}, v{b+3}")
    A(f"buffer_store_dwordx4 v[{H}:{H+3}], v38, s[{SRD_WS}:{SRD_WS+3}], s22 offen sc1")
    A(f"buffer_store_dwordx4 v[{H+4}:{H+7}], v38, s[{SRD_WS}:{SRD_WS+3}], s23 offen sc1")

@add_method
def sync_all(self):
    A=self.A
    if not self.w1start: self.flag_load()
    A("s_waitcnt vmcnt(0)")
    A("s_barrier")
    l=self.lab()
    A(f"s_cmp_lg_u32 s{S_W}, 0")
    A(f"s_cbranch_scc1 {l}")
    A(f"s_and_b32 s{S_T0}, s{S_WG}, 7")
    A(f"s_lshl_b32 s{S_T0}, s{S_T0}, 7")
    A(f"s_add_u32 s{S_T0}, s{S_T0}, {WS_CNT2}")
    A(f"v_lshlrev_b32 v48, 10, v{V_LANE}")
    A("v_mov_b32 v49, 1")
    A("s_mov_b64 exec, 0xff")
    A(f"buffer_atomic_add v49, v48, s[{SRD_WS}:{SRD_WS+3}], s{S_T0} offen")
    A("s_mov_b64 exec, -1")
    A(f"{l}:")

@add_method
def sync_all_wait(self, sleep=0, presleep=0):
    A=self.A
    l=self.lab(); lp=self.lab('Lpoll'); le=self.lab()
    A(f"s_cmp_lg_u32 s{S_W}, 0")
    A(f"s_cbranch_scc1 {l}")
    A(f"s_lshr_b32 s{S_T0}, s{S_WG}, 3")
    A(f"s_and_b32 s{S_T0}, s{S_T0}, 7")
    A(f"s_lshl_b32 s{S_T0}, s{S_T0}, 10")
    A(f"s_add_u32 s{S_T0}, s{S_T0}, {WS_CNT2}")
    A(f"v_and_b32 v48, 7, v{V_LANE}")
    A(f"v_lshlrev_b32 v48, 7, v48")
    A(f"s_mov_b32 s{S_T0+1}, 0")
    if self.pp:
        A(f"buffer_load_dword v252, v48, s[{SRD_WS}:{SRD_WS+3}], s{S_T0} offen sc1")
        A(f"{lp}:")
        for a_,b_ in ((253,252),(252,253)):
            A(f"buffer_load_dword v{a_}, v48, s[{SRD_WS}:{SRD_WS+3}], s{S_T0} offen sc1")
            A("s_waitcnt vmcnt(1)")
            A(f"v_cmp_gt_u32 vcc, 28, v{b_}")
            A(f"s_cbranch_vccz {le}")
        A(f"s_add_u32 s{S_T0+1}, s{S_T0+1}, 1")
        A(f"s_cmp_lt_u32 s{S_T0+1}, 0x4000")
        A(f"s_cbranch_scc1 {lp}")
    else:
        A(f"{lp}:")
        A(f"buffer_load_dword v49, v48, s[{SRD_WS}:{SRD_WS+3}], s{S_T0} offen sc1")
        A("s_waitcnt vmcnt(0)")
        A("v_cmp_gt_u32 vcc, 28, v49")
        A(f"s_add_u32 s{S_T0+1}, s{S_T0+1}, 1")
        A(f"s_cbranch_vccz {le}")
        if sleep: A(f"s_sleep {sleep}")
        A(f"s_cmp_lt_u32 s{S_T0+1}, 0x8000")
        A(f"s_cbranch_scc1 {lp}")
    A(f"{le}:")
    A(f"{l}:")
    A("s_barrier")

class Stream:
    def __init__(self, A):
        self.A=A; self.lds=[]; self.vm=[]
    def ds(self, text, tag=None):
        self.A(text); self.lds.append(tag)
    def vmem(self, text, tag=None):
        self.A(text); self.vm.append(tag)
    def need_lds(self, tags):
        idx=-1
        for t in tags:
            if t in self.lds: idx=max(idx, len(self.lds)-1-self.lds[::-1].index(t))
        if idx>=0:
            n=len(self.lds)-idx-1
            n=min(n,15)
            self.A(f"s_waitcnt lgkmcnt({n})")
            self.lds=self.lds[len(self.lds)-n:] if n>0 else []
    def need_vm(self, tags):
        idx=-1
        for t in tags:
            if t in self.vm: idx=max(idx, len(self.vm)-1-self.vm[::-1].index(t))
        if idx>=0:
            n=len(self.vm)-idx-1
            n=min(n,63)
            self.A(f"s_waitcnt vmcnt({n})")
            self.vm=self.vm[len(self.vm)-n:] if n>0 else []
    def item(self, it):
        if isinstance(it,str): self.A(it)
        elif it[0]=='ds': self.ds(it[1],it[2])
        elif it[0]=='vm': self.vmem(it[1],it[2])
        elif it[0]=='needl': self.need_lds(it[1])
        elif it[0]=='needv': self.need_vm(it[1])

G_ACC=[64,96]; G_CS=128; G_RING=160; G_SB=184; G_VB=56; G_ST=54; G_ET=60; G_PK=232; G_R2=250; G_MU=240; G_C1=244
LDS_ST=114688
@add_method
def cs_mfma(self, s0, s1, init=True):
    A=self.A
    if s0==0 and init:
        for k in range(4): A(f"v_mov_b32 v{48+k}, 0x3f803f80")
    for s in range(s0,s1):
        for t in range(2):
            d=G_CS+16*t
            c="0" if s==0 else f"v[{d}:{d+15}]"
            A(f"v_mfma_f32_32x32x16_bf16 v[{d}:{d+15}], a[{8*s+4*t}:{8*s+4*t+3}], v[48:51], {c}")

def wd_loc(sig, ca):
    if sig<5: return ('v', 4+8*sig+4*ca)
    if sig<9: return ('a', 224+8*(sig-5)+4*ca)
    if sig<14: return ('v', 192+8*(sig-9)+4*ca)
    return ('a', 8*(sig-14)+4*ca)

@add_method
def wd_item(self, sig, ca):
    k,r=wd_loc(sig,ca)
    it=[]
    if sig%8==0 and sig>0: it.append(f"s_add_u32 s{S_T0+12+ca}, s{S_T0+12+ca}, 8192")
    va,off=("v48",(sig%8)*1024) if sig%8<4 else ("v3",(sig%8-4)*1024)
    it.append(('vm',f"buffer_load_dwordx4 {k}[{r}:{r+3}], {va}, s[{SRD_WS}:{SRD_WS+3}], s{S_T0+12+ca} offen offset:{off} sc1",f"WD{sig}"))
    return it

PF=4
@add_method
def gemm1(self):
    A=self.A; S=Stream(A); self.S=S
    A(f"s_mul_i32 s{S_T0}, s{S_I}, {4*28672}")
    A(f"s_mul_i32 s{S_T0+1}, s{S_W}, 7168")
    A(f"s_add_u32 s{S_T0}, s{S_T0}, s{S_T0+1}")
    A(f"s_add_u32 s{S_T0}, s{S_T0}, {WS_HT}")
    A(f"v_lshlrev_b32 v48, 4, v{V_LANE}")
    A(f"v_add_u32 v3, 4096, v48")
    def xdma(lt,k):
        base=lt*28672+(k//4)*4096
        it=[]
        if k%4==0: it+=[f"s_add_u32 s{S_T0+2}, s{S_T0}, {base}", f"s_add_u32 m0, s{S_T0+1}, {base}"]
        it.append(('vm',f"buffer_load_dwordx4 v48, s[{SRD_WS}:{SRD_WS+3}], s{S_T0+2} offen offset:{(k%4)*1024} sc1 lds", f"X{lt}"))
        return it
    for lt in range(2):
        for k in range(7):
            for it in xdma(lt,k): S.item(it)
    self.wd_setup()
    self.wdflag_load(S)
    A(f"s_lshl_b32 s{S_T0+3}, s{S_J}, 2")
    A(f"s_add_u32 s{S_T0+3}, s{S_T0+3}, s{S_W}")
    A(f"s_mul_i32 s{S_T0+3}, s{S_T0+3}, {2*896}")
    A(f"s_add_u32 s{S_T0+3}, s{S_T0+3}, {WS_CS}")
    A(f"v_lshrrev_b32 v50, 5, v{V_LANE}")
    A(f"v_mul_u32_u24 v50, 896, v50")
    A(f"v_and_b32 v51, 31, v{V_LANE}")
    A(f"v_lshl_add_u32 v50, v51, 2, v50")
    for g in range(7):
        S.vmem(f"buffer_load_dword v{184+g}, v50, s[{SRD_WS}:{SRD_WS+3}], s{S_T0+3} offen offset:{g*128} sc1","CSP")
    A(f"s_lshl_b32 s{S_T0+3}, s{S_W}, 8")
    A(f"s_add_u32 s{S_T0+3}, s{S_T0+3}, {LDS_ST+2048}")
    A(f"v_lshl_add_u32 v191, v{V_LANE}, 2, s{S_T0+3}")
    A(f"v_lshrrev_b32 v55, 5, v{V_LANE}")
    A(f"v_lshlrev_b32 v55, 4, v55")
    A(f"v_add_u32 v55, s{S_T0+3}, v55")
    A(f"v_lshrrev_b32 v50, 5, v{V_LANE}")
    A(f"v_lshlrev_b32 v50, 9, v50")
    A(f"v_bfe_u32 v51, v{V_LANE}, 2, 2")
    A(f"v_lshl_add_u32 v50, v51, 6, v50")
    A(f"v_bfe_u32 v51, v{V_LANE}, 4, 1")
    A(f"v_lshl_add_u32 v50, v51, 5, v50")
    A(f"v_and_b32 v51, 3, v{V_LANE}")
    A(f"v_lshl_add_u32 v50, v51, 3, v50")
    for g in range(4):
        A(f"s_add_u32 s{S_T0+3}, s{S_W}, {g}")
        A(f"s_and_b32 s{S_T0+3}, s{S_T0+3}, 3")
        A(f"s_sub_u32 s{S_T0+3}, s{S_T0+3}, {g}")
        A(f"s_mul_i32 s{S_T0+3}, s{S_T0+3}, 7168")
        A(f"v_add_u32 v{G_VB+g}, s{S_T0+3}, v50")
    A(f"v_and_b32 v52, 31, v{V_LANE}")
    A(f"v_lshlrev_b32 v52, 3, v52")
    A(f"s_lshl_b32 s{S_T0+10}, s{S_I}, 10")
    A(f"s_add_u32 s{S_T0+10}, s{S_T0+10}, {WS_ST2}")
    A(f"s_lshl_b32 s{S_T0+4}, s{S_I}, 2")
    A(f"s_mul_i32 s{S_T0+4}, s{S_T0+4}, 112")
    A(f"s_lshl_b32 s{S_T0+5}, s{S_J}, 3")
    A(f"s_add_u32 s{S_T0+4}, s{S_T0+4}, s{S_T0+5}")
    A(f"s_lshl_b32 s{S_T0+5}, s{S_W}, 1")
    A(f"s_add_u32 s{S_T0+4}, s{S_T0+4}, s{S_T0+5}")
    A(f"s_lshl_b32 s{S_T0+4}, s{S_T0+4}, 10")
    A(f"s_add_u32 s{S_T0+4}, s{S_T0+4}, {WS_M}")
    SM=S_T0+4
    RING=[G_RING+4*k for k in range(6)]
    def breg(p,s): return RING[(28*p+s)%6]
    def bload(p,s):
        r=breg(p,s); vb=G_VB+s//7
        return [('ds',f"ds_read_b64_tr_b16 v[{r}:{r+1}], v{vb} offset:{s*1024}",f"B{p}_{s}a"),
                ('ds',f"ds_read_b64_tr_b16 v[{r+2}:{r+3}], v{vb} offset:{s*1024+256}",f"B{p}_{s}b")]
    SG2=G_SB
    def stats_loads():
        it=[]
        for p in range(4):
            it.append(('vm',f"buffer_load_dwordx2 v[{SG2+2*p}:{SG2+2*p+1}], v52, s[{SRD_WS}:{SRD_WS+3}], s{S_T0+10} offen offset:{p*256} sc1","ST2"))
        return it
    def stats_check():
        lp=self.lab('Lpoll'); le=self.lab()
        S.need_vm(["ST2"])
        A(f"s_mov_b32 s{S_T0+8}, 0")
        A(f"{lp}:")
        A(f"v_xor_b32 v53, s{S_TAG}, v{SG2+1}")
        for p in range(1,4):
            A(f"v_xor_b32 v54, s{S_TAG}, v{SG2+2*p+1}")
            A(f"v_or_b32 v53, v53, v54")
        A("v_cmp_ne_u32 vcc, 0, v53")
        A(f"s_add_u32 s{S_T0+8}, s{S_T0+8}, 1")
        A(f"s_cbranch_vccz {le}")
        for p in range(4):
            A(f"buffer_load_dwordx2 v[{SG2+2*p}:{SG2+2*p+1}], v52, s[{SRD_WS}:{SRD_WS+3}], s{S_T0+10} offen offset:{p*256} sc1")
        A("s_waitcnt vmcnt(0)")
        A(f"s_cmp_lt_u32 s{S_T0+8}, 0x8000")
        A(f"s_cbranch_scc1 {lp}")
        A(f"{le}:")
    def stats_final(p):
        g=SG2+2*p; T=G_ST
        return [f"v_and_b32 v{G_MU+p}, 0xffff0000, v{g}",
                f"v_lshlrev_b32 v{T}, 16, v{g}",
                f"v_rcp_f32 v{T}, v{T}",
                f"s_nop 0",
                f"v_mul_f32 v{G_C1+p}, {fl(-LOG2E)}, v{T}",
                f"v_mul_f32 v{G_R2+p}, v{T}, v{T}"]
    def epi_items(p):
        acc=G_ACC[p&1]; it=[]; E=G_ET; mu=G_MU+p; c1=G_C1+p
        for r0 in range(0,16,4):
            rs=range(r0,r0+4)
            for r in rs: it.append(f"v_fma_f32 v{acc+r}, -v{mu}, v{G_CS+r}, v{acc+r}")
            for r in rs: it.append(f"v_fma_f32 v{acc+16+r}, -v{mu}, v{G_CS+16+r}, v{acc+16+r}")
            for r in rs: it.append(f"v_mul_f32 v{E+(r&3)}, v{c1}, v{acc+r}")
            for r in rs: it.append(f"v_exp_f32 v{E+(r&3)}, v{E+(r&3)}")
            for r in rs: it.append(f"v_mul_f32 v{acc+r}, v{acc+r}, v{acc+16+r}")
            for r in rs: it.append(f"v_add_f32 v{E+(r&3)}, 1.0, v{E+(r&3)}")
            for r in rs: it.append(f"v_rcp_f32 v{E+(r&3)}, v{E+(r&3)}")
            for r in rs: it.append(f"v_mul_f32 v{acc+r}, v{acc+r}, v{E+(r&3)}")
            q=r0//4
            it.append(f"v_cvt_pk_bf16_f32 v{G_PK+2*q}, v{acc+r0}, v{acc+r0+1}")
            it.append(f"v_cvt_pk_bf16_f32 v{G_PK+2*q+1}, v{acc+r0+2}, v{acc+r0+3}")
            if q==1 or q==3:
                h=q//2
                if h==0: it.append(f"s_add_u32 s{SM+1}, s{SM}, {p*112*1024}")
                it.append(('vm',f"buffer_store_dwordx4 v[{G_PK+4*h}:{G_PK+4*h+3}], v48, s[{SRD_WS}:{SRD_WS+3}], s{SM+1} offen offset:{h*1024} sc1",f"M{p}_{h}"))
        return it
    vmx={0:[],1:[],2:[],3:[]}
    wr=self.w1_items(W1_PRE,28)
    for n,it in enumerate(wr):
        sl=W1_PRE+n//2
        vmx[0].append((n//2, [('vm',it[0],f"W{sl}")]))
    k=0
    for lt in (2,3):
        for q in range(7):
            vmx[0].append((min(27,len(wr)//2+k), xdma(lt,q))); k+=1
    csit=[('needv',["CSP"])]
    for g in range(1,7): csit.append(f"v_add_f32 v184, v184, v{184+g}")
    csit.append(('ds',"ds_write_b32 v191, v184","CSW"))
    for t in range(2):
        for q in range(4):
            csit.append(('ds',f"ds_read_b128 v[{G_CS+16*t+4*q}:{G_CS+16*t+4*q+3}], v55 offset:{t*128+q*32}","CSR"))
    n=0
    for sig in range(5):
        for ca in range(2): vmx[1].append((9+(18*n)//10, self.wd_item(sig,ca))); n+=1
    n=0
    for sig in range(5,14):
        for ca in range(2): vmx[2].append((1+(26*n)//18, self.wd_item(sig,ca))); n+=1
    for n in range(28): vmx[3].append((n, self.wd_item(14+n//2, n%2)))
    S.need_vm(["X0"])
    A("s_barrier")
    self.stamp('x0')
    for s in range(PF):
        for it in bload(0,s): S.item(it)
    BAR=16; csi=[0]
    ST_LOAD=2; ST_CHK=8
    for p in range(4):
        acc=G_ACC[p&1]
        ep=epi_items(p-1) if p>0 else []
        e0=1
        if p==1:
            while csi[0]<len(csit): S.item(csit[csi[0]]); csi[0]+=1
            ep=[('needl',["CSR"])]+sum((stats_final(q) for q in range(4)),[])+ep
            e0=ST_CHK+1
        epi=0
        def cost(it):
            if isinstance(it,tuple):
                return {'ds':5,'vm':20}.get(it[0],1)
            m=it.split()[0]
            if m in ('v_exp_f32','v_rcp_f32','v_sqrt_f32'): return 8.6
            if m.startswith('s_'): return 3
            return 4.3
        fixed=[0.0]*56
        for g_ in range(56):
            sl_,t_=g_//2,g_%2
            fixed[g_]+=5
            if t_==1:
                for (sl,items) in vmx[p]:
                    if sl==sl_: fixed[g_]+=sum(cost(x) for x in items)
            if t_==0 and sl_%2==0: fixed[g_]+=3
        g0=2*e0
        tot=sum(cost(x) for x in ep)
        quota=[0]*56
        if ep:
            lo,hi=0.0,200.0
            for _ in range(30):
                mid=(lo+hi)/2
                if sum(max(0.0,mid-fixed[g_]) for g_ in range(g0,56))>=tot+25: hi=mid
                else: lo=mid
            quota=[max(0.0,hi-fixed[g_]) if g_>=g0 else 0.0 for g_ in range(56)]
        carry=0.0
        for s in range(28):
            if s%2==0: S.need_lds([f"B{p}_{s}a",f"B{p}_{s}b",f"B{p}_{s+1}a",f"B{p}_{s+1}b"])
            if p==0 and s>=W1_PRE and s%2==0: S.need_vm([f"W{s}",f"W{s+1}"])
            if p==0 and s>=18 and csi[0]<len(csit):
                for _ in range(2):
                    if csi[0]<len(csit): S.item(csit[csi[0]]); csi[0]+=1
            r=breg(p,s)
            for t in range(2):
                d=acc+16*t
                c="0" if s==0 else f"v[{d}:{d+15}]"
                A(f"v_mfma_f32_32x32x16_bf16 v[{d}:{d+15}], a[{8*s+4*t}:{8*s+4*t+3}], v[{r}:{r+3}], {c}")
                ns=s+PF
                if ns<28: S.item(bload(p,ns)[t])
                elif p<3: S.item(bload(p+1,ns-28)[t])
                gap=2*s+t
                if t==1:
                    for (sl,items) in vmx[p]:
                        if sl==s:
                            for it in items: S.item(it)
                if self.costsched:
                    carry+=quota[gap]
                    while epi<len(ep) and cost(ep[epi])<=carry+1.0:
                        carry-=cost(ep[epi]); S.item(ep[epi]); epi+=1
                elif s>=e0 and ep:
                    ng=2*(28-e0)-1
                    tgt=min(len(ep),(len(ep)*(gap-2*e0+1)+ng-1)//ng)
                    while epi<tgt: S.item(ep[epi]); epi+=1
            if p==1 and s==ST_LOAD:
                for it in stats_loads(): S.item(it)
            if p==1 and s==ST_CHK: stats_check()
            if p<3 and s in (6-PF,13-PF,20-PF,27-PF):
                g={6-PF:0,13-PF:1,20-PF:2,27-PF:3}[s]
                A(f"v_add_u32 v{G_VB+g}, 28672, v{G_VB+g}")
            if s==BAR:
                if p<3: S.need_vm([f"X{p+1}"])
                if p==0: self.wdflag_check(S)
                if p==3: S.need_vm(["M1_1"])
                A("s_barrier")
                if p==3:
                    l=self.lab()
                    A(f"s_cmp_lg_u32 s{S_W}, 0")
                    A(f"s_cbranch_scc1 {l}")
                    A(f"s_lshl_b32 s{S_T0+2}, s{S_I}, 7")
                    A(f"s_add_u32 s{S_T0+2}, s{S_T0+2}, {WS_CNT3}")
                    A("v_mov_b32 v55, 1")
                    A("s_mov_b64 exec, 1")
                    A(f"buffer_atomic_add v55, v{V_ZERO}, s[{SRD_WS}:{SRD_WS+3}], s{S_T0+2} offen")
                    A("s_mov_b64 exec, -1")
                    A(f"{l}:")
        while epi<len(ep): S.item(ep[epi]); epi+=1
        if self.ts and (self.tsonly is None or f'pass{p}' in self.tsonly):
            self.stamp(f'pass{p}'); S.lds=[]
    A(f"s_lshl_b32 s{S_T0+2}, s{S_I}, 7")
    A(f"s_add_u32 s{S_T0+2}, s{S_T0+2}, {WS_CNT3}")
    S.vmem(f"buffer_load_dword v55, v{V_ZERO}, s[{SRD_WS}:{SRD_WS+3}], s{S_T0+2} offen sc1","pollE")
    A("s_nop 7")
    acc=G_ACC[1]; E=G_ET
    A(f"v_mov_b32 v184, v{G_MU+3}")
    A(f"v_mov_b32 v186, v{G_C1+3}")
    for r0 in range(0,16,4):
        for r in (r0,r0+2): A(f"v_pk_fma_f32 v[{acc+r}:{acc+r+1}], v[{G_CS+r}:{G_CS+r+1}], v[184:185], v[{acc+r}:{acc+r+1}] op_sel_hi:[1,0,1] neg_lo:[0,1,0] neg_hi:[0,1,0]")
        for r in (r0,r0+2): A(f"v_pk_fma_f32 v[{acc+16+r}:{acc+16+r+1}], v[{G_CS+16+r}:{G_CS+16+r+1}], v[184:185], v[{acc+16+r}:{acc+16+r+1}] op_sel_hi:[1,0,1] neg_lo:[0,1,0] neg_hi:[0,1,0]")
        for r in (r0,r0+2): A(f"v_pk_mul_f32 v[{E+(r&3)}:{E+(r&3)+1}], v[{acc+r}:{acc+r+1}], v[186:187] op_sel_hi:[1,0]")
        for r in range(4): A(f"v_exp_f32 v{E+r}, v{E+r}")
        for r in (r0,r0+2): A(f"v_pk_mul_f32 v[{acc+r}:{acc+r+1}], v[{acc+r}:{acc+r+1}], v[{acc+16+r}:{acc+16+r+1}]")
        for r in (0,2): A(f"v_pk_add_f32 v[{E+r}:{E+r+1}], v[{E+r}:{E+r+1}], 1.0 op_sel_hi:[1,0]")
        for r in range(4): A(f"v_rcp_f32 v{E+r}, v{E+r}")
        for r in (r0,r0+2): A(f"v_pk_mul_f32 v[{acc+r}:{acc+r+1}], v[{acc+r}:{acc+r+1}], v[{E+(r&3)}:{E+(r&3)+1}]")
        q=r0//4
        A(f"v_cvt_pk_bf16_f32 v{G_PK+2*q}, v{acc+r0}, v{acc+r0+1}")
        A(f"v_cvt_pk_bf16_f32 v{G_PK+2*q+1}, v{acc+r0+2}, v{acc+r0+3}")
        if q in (1,3):
            h=q//2
            if h==0: A(f"s_add_u32 s{SM+1}, s{SM}, {3*112*1024}")
            S.vmem(f"buffer_store_dwordx4 v[{G_PK+4*h}:{G_PK+4*h+3}], v48, s[{SRD_WS}:{SRD_WS+3}], s{SM+1} offen offset:{h*1024} sc1",f"M3_{h}")

H_ACC=64
H_RING=128
NRING=16
LDS_RED=0
LDS_RES=49152
@add_method
def gemm2(self):
    A=self.A; S=self.S
    A(f"s_cmp_ge_u32 s{S_J}, 7")
    A(f"s_cselect_b32 s{S_T0}, 1, 0")
    A(f"s_cselect_b32 s{S_T0+6}, 7, 0")
    A(f"s_sub_u32 s{S_T0+6}, s{S_J}, s{S_T0+6}")
    A(f"s_lshl_b32 s{S_T0+1}, s{S_I}, 2")
    A(f"s_sub_u32 s{S_T0+3}, 3, s{S_T0}")
    A(f"s_add_u32 s{S_T0+3}, s{S_T0+3}, s{S_T0+1}")
    A(f"s_add_u32 s{S_T0+1}, s{S_T0+1}, s{S_T0}")
    A(f"s_mul_i32 s{S_T0+7}, s{S_W}, 28")
    for la,src in ((0,S_T0+1),(1,S_T0+3)):
        A(f"s_mul_i32 s{S_T0+4+la}, s{src}, 112")
        A(f"s_add_u32 s{S_T0+4+la}, s{S_T0+4+la}, s{S_T0+7}")
        A(f"s_lshl_b32 s{S_T0+4+la}, s{S_T0+4+la}, 10")
        A(f"s_add_u32 s{S_T0+4+la}, s{S_T0+4+la}, {WS_M}")
    lp=self.lab('Lpoll'); le=self.lab()
    A(f"s_mov_b32 s{S_T0+8}, 0")
    A(f"s_waitcnt vmcnt(2)")
    A(f"{lp}:")
    A("v_cmp_gt_u32 vcc, 14, v55")
    A(f"s_cbranch_vccz {le}")
    A(f"buffer_load_dword v55, v{V_ZERO}, s[{SRD_WS}:{SRD_WS+3}], s{S_T0+2} offen sc1")
    A("s_waitcnt vmcnt(0)")
    A(f"s_add_u32 s{S_T0+8}, s{S_T0+8}, 1")
    A(f"s_cmp_lt_u32 s{S_T0+8}, 0x8000")
    A(f"s_cbranch_scc1 {lp}")
    A(f"{le}:")
    S2=Stream(A); S2.vm=["Mfin","Mfin"]
    def mload(la,s):
        r=H_RING+4*((28*la+s)%NRING)
        if s%8==0 and s>0: A(f"s_add_u32 s{S_T0+4+la}, s{S_T0+4+la}, 8192")
        va,off=("v48",(s%8)*1024) if s%8<4 else ("v3",(s%8-4)*1024)
        S2.vmem(f"buffer_load_dwordx4 v[{r}:{r+3}], {va}, s[{SRD_WS}:{SRD_WS+3}], s{S_T0+4+la} offen offset:{off} sc1", f"m{la}_{s}")
    NPRE=6
    for s_ in range(NPRE): mload(0,s_)
    A(f"s_lshl_b32 s{S_T0+11}, s{S_T0+6}, 6")
    A(f"s_lshl_b32 s{S_T0+7}, s{S_NH}, 5")
    A(f"s_add_u32 s{S_T0+11}, s{S_T0+11}, s{S_T0+7}")
    A(f"s_lshl_b32 s{S_T0+7}, s{S_CH}, 4")
    A(f"s_add_u32 s{S_T0+11}, s{S_T0+11}, s{S_T0+7}")
    for la,src,dst in ((0,S_T0+1,S_T0+8),(1,S_T0+3,S_T0+9)):
        A(f"s_mul_i32 s{dst}, s{src}, 448")
        A(f"s_add_u32 s{dst}, s{dst}, s{S_T0+11}")
        A(f"s_lshl_b32 s{dst}, s{dst}, 6")
        A(f"s_add_u32 s{dst}, s{dst}, {WS_HT}")
    A(f"s_lshl_b32 s{S_T0+11}, s{S_T0+11}, 1")
    A(f"s_mul_i32 s{S_T0+14}, s{S_T0+1}, {32*896}")
    A(f"s_add_u32 s{S_T0+14}, s{S_T0+14}, s{S_T0+11}")
    A(f"s_mul_i32 s{S_T0+15}, s{S_T0+3}, {32*896}")
    A(f"s_add_u32 s{S_T0+15}, s{S_T0+15}, s{S_T0+11}")
    A(f"s_lshl_b32 s{S_T0+11}, s{S_W}, 11")
    A(f"s_add_u32 s{S_T0+11}, s{S_T0+11}, {LDS_RES}")
    A(f"s_mov_b32 s{SRD_W}, s{S_OUT}\ns_mov_b32 s{SRD_W+1}, s{S_OUT+1}\ns_mov_b32 s{SRD_W+2}, {L_*D_*2}\ns_mov_b32 s{SRD_W+3}, 0x20000")
    A(f"s_cmp_eq_u32 s{S_T0}, 0")
    A("s_cselect_b64 vcc, -1, 0")
    A(f"v_cndmask_b32 v248, v{G_R2+1}, v{G_R2}, vcc")
    A(f"v_cndmask_b32 v254, v{G_R2+2}, v{G_R2+3}, vcc")
    A("v_mov_b32 v249, v248\nv_mov_b32 v255, v254")
    A(f"v_lshrrev_b32 v50, 5, v{V_LANE}")
    A(f"v_lshlrev_b32 v50, 8, v50")
    A(f"v_bfe_u32 v51, v{V_LANE}, 2, 2")
    A(f"v_lshl_add_u32 v50, v51, 6, v50")
    A(f"v_bfe_u32 v51, v{V_LANE}, 4, 1")
    A(f"v_lshl_add_u32 v50, v51, 5, v50")
    A(f"v_and_b32 v51, 3, v{V_LANE}")
    A(f"v_lshl_add_u32 v50, v51, 3, v50")
    A(f"v_add_u32 v50, s{S_T0+11}, v50")
    A(f"v_and_b32 v52, 31, v{V_LANE}")
    A(f"v_mul_u32_u24 v52, 896, v52")
    A(f"v_lshrrev_b32 v51, 5, v{V_LANE}")
    A(f"v_lshl_add_u32 v52, v51, 4, v52")
    for x in (1,2,3):
        A(f"s_xor_b32 s{S_T0+7}, s{S_W}, {x}")
        A(f"s_mul_i32 s{S_T0+7}, s{S_T0+7}, 6144")
        A(f"s_add_u32 s{S_T0+7}, s{S_T0+7}, {LDS_RED+(x-1)*2048}")
        A(f"v_add_u32 v{43+x}, s{S_T0+7}, v48")
    A(f"s_mul_i32 s{S_T0+7}, s{S_W}, 6144")
    A(f"s_add_u32 s{S_T0+7}, s{S_T0+7}, {LDS_RED}")
    A(f"v_add_u32 v47, s{S_T0+7}, v48")
    S2.need_vm(["Mfin"])
    A("s_barrier")
    l=self.lab()
    A(f"s_lshl_b32 s{S_T0+10}, s{S_I}, 7")
    A(f"s_add_u32 s{S_T0+10}, s{S_T0+10}, {WS_CNT3+2048}")
    A(f"s_cmp_lg_u32 s{S_W}, 0")
    A(f"s_cbranch_scc1 {l}")
    A("v_mov_b32 v55, 1")
    A("s_mov_b64 exec, 1")
    A(f"buffer_atomic_add v55, v{V_ZERO}, s[{SRD_WS}:{SRD_WS+3}], s{S_T0+10} offen")
    l2=self.lab()
    A(f"s_cmp_lg_u32 s{S_WG}, 0")
    A(f"s_cbranch_scc1 {l2}")
    A(f"v_mov_b32 v55, s{S_TAG}")
    A(f"buffer_store_dword v55, v{V_ZERO}, s[{SRD_WS}:{SRD_WS+3}], 0 offen sc1")
    A(f"{l2}:")
    A("s_mov_b64 exec, -1")
    A(f"{l}:")
    self.stamp('sync3 arrive')
    def by_half(fn):
        la_=self.lab('Lh'); lb_=self.lab('Lh')
        A(f"s_cmp_ge_u32 s{S_W}, 2")
        A(f"s_cbranch_scc1 {la_}")
        fn(0)
        A(f"s_branch {lb_}")
        A(f"{la_}:")
        fn(1)
        A(f"{lb_}:")
    def red_write(la):
        def f(h):
            b0=H_ACC+32*la; b1=b0+16
            for x,r in ((2,b0+8*(1-h)),(1,b1+8*h),(3,b1+8*(1-h))):
                for q in range(2):
                    A(f"ds_write_b128 v{43+x}, v[{r+4*q}:{r+4*q+3}] offset:{la*24576+q*1024}")
        by_half(f)
    def red_final(la):
        P=208; RS=232; O=244
        A(f"ds_read_b64_tr_b16 v[{RS}:{RS+1}], v50 offset:{la*1024}")
        A(f"ds_read_b64_tr_b16 v[{RS+2}:{RS+3}], v50 offset:{la*1024+512}")
        for k in range(3):
            for q in range(2):
                A(f"ds_read_b128 v[{P+8*k+4*q}:{P+8*k+4*q+3}], v47 offset:{la*24576+k*2048+q*1024}")
        A("s_waitcnt lgkmcnt(6)")
        for d in range(4): A(bf16_lo(RS+4+2*d,RS+d)); A(bf16_hi(RS+5+2*d,RS+d))
        A("s_waitcnt lgkmcnt(2)")
        for r in range(0,8,2): A(f"v_pk_add_f32 v[{P+r}:{P+r+1}], v[{P+r}:{P+r+1}], v[{P+8+r}:{P+8+r+1}]")
        A("s_waitcnt lgkmcnt(0)")
        for r in range(0,8,2): A(f"v_pk_add_f32 v[{P+r}:{P+r+1}], v[{P+r}:{P+r+1}], v[{P+16+r}:{P+16+r+1}]")
        def f(h):
            b=H_ACC+32*la+8*h
            for r in range(0,8,2): A(f"v_pk_add_f32 v[{P+r}:{P+r+1}], v[{P+r}:{P+r+1}], v[{b+r}:{b+r+1}]")
        by_half(f)
        r2=(248,254)[la]
        if self.mimic>=1:
            for r in range(0,8,2): A(f"v_pk_mul_f32 v[{P+r}:{P+r+1}], v[{P+r}:{P+r+1}], v[{r2}:{r2+1}]")
            for r in range(0,8,2): A(f"v_cvt_pk_bf16_f32 v{O+r//2}, v{P+r}, v{P+r+1}")
            for r in range(0,8,2): A(bf16_lo(P+r,O+r//2)); A(bf16_hi(P+r+1,O+r//2))
            for r in range(0,8,2): A(f"v_pk_add_f32 v[{P+r}:{P+r+1}], v[{P+r}:{P+r+1}], v[{RS+4+r}:{RS+4+r+1}]")
        else:
            for r in range(0,8,2): A(f"v_pk_fma_f32 v[{P+r}:{P+r+1}], v[{P+r}:{P+r+1}], v[{r2}:{r2+1}], v[{RS+4+r}:{RS+4+r+1}]")
        if self.perturb:
            for r in range(8): A(f"v_add_f32 v{P+r}, {fl(self.perturb)}, v{P+r}")
        for r in range(0,8,2): A(f"v_cvt_pk_bf16_f32 v{O+r//2}, v{P+r}, v{P+r+1}")
        A(f"v_permlane32_swap_b32 v{O}, v{O+2}")
        A(f"v_permlane32_swap_b32 v{O+1}, v{O+3}")
        return f"buffer_store_dwordx4 v[{O}:{O+3}], v52, s[{SRD_W}:{SRD_W+3}], s{S_T0+14+la} offen"
    def mf(la,s):
        for ca in range(2):
            d=H_ACC+16*(2*la+ca)
            c="0" if s==0 else f"v[{d}:{d+15}]"
            k,r=wd_loc(s,ca); rr=H_RING+4*((28*la+s)%NRING)
            A(f"v_mfma_f32_32x32x16_bf16 v[{d}:{d+15}], {k}[{r}:{r+3}], v[{rr}:{rr+3}], {c}")
    for s_ in range(NPRE,NRING): mload(0,s_)
    POLL_AT=28-NRING
    for s_ in range(28):
        S2.need_vm([f"m0_{s_}"])
        mf(0,s_)
        if s_+NRING<28: mload(0,s_+NRING)
        if s_==POLL_AT-1:
            S2.vmem(f"buffer_load_dword v55, v{V_ZERO}, s[{SRD_WS}:{SRD_WS+3}], s{S_T0+10} offen sc1","pollL")
            A(f"s_mov_b32 m0, s{S_T0+11}")
            S2.vmem(f"buffer_load_dwordx4 v48, s[{SRD_WS}:{SRD_WS+3}], s{S_T0+8} offen sc1 lds","res")
            A(f"s_add_u32 m0, s{S_T0+11}, 1024")
            S2.vmem(f"buffer_load_dwordx4 v48, s[{SRD_WS}:{SRD_WS+3}], s{S_T0+9} offen sc1 lds","res")
        if s_==POLL_AT+5:
            lp=self.lab('Lpoll'); le=self.lab()
            S2.need_vm(["pollL"])
            A(f"s_mov_b32 s{S_T0+7}, 0")
            A(f"{lp}:")
            if self.pp>1:
                lq=self.lab('Lpoll')
                A("v_cmp_gt_u32 vcc, 14, v55")
                A(f"s_cbranch_vccz {le}")
                A(f"buffer_load_dword v54, v{V_ZERO}, s[{SRD_WS}:{SRD_WS+3}], s{S_T0+10} offen sc1")
                A(f"{lq}:")
                for a_,b_ in ((55,54),(54,55)):
                    A(f"buffer_load_dword v{a_}, v{V_ZERO}, s[{SRD_WS}:{SRD_WS+3}], s{S_T0+10} offen sc1")
                    A("s_waitcnt vmcnt(1)")
                    A(f"v_cmp_gt_u32 vcc, 14, v{b_}")
                    A(f"s_cbranch_vccz {le}")
                A(f"s_add_u32 s{S_T0+7}, s{S_T0+7}, 1")
                A(f"s_cmp_lt_u32 s{S_T0+7}, 0x4000")
                A(f"s_cbranch_scc1 {lq}")
            else:
                A("v_cmp_gt_u32 vcc, 14, v55")
                A(f"s_cbranch_vccz {le}")
                A(f"buffer_load_dword v55, v{V_ZERO}, s[{SRD_WS}:{SRD_WS+3}], s{S_T0+10} offen sc1")
                A("s_waitcnt vmcnt(0)")
                A(f"s_add_u32 s{S_T0+7}, s{S_T0+7}, 1")
                A(f"s_cmp_lt_u32 s{S_T0+7}, 0x8000")
                A(f"s_cbranch_scc1 {lp}")
            A(f"{le}:")
            self.stamp('late ready')
            nl=0
            while nl<28 and (28+nl)-NRING <= s_: mload(1,nl); nl+=1
        elif s_>POLL_AT+5:
            while nl<28 and (28+nl)-NRING <= s_: mload(1,nl); nl+=1
    self.stamp('early done')
    for s_ in range(28):
        S2.need_vm([f"m1_{s_}"])
        mf(1,s_)
        while nl<28 and (28+nl)-NRING <= 28+s_: mload(1,nl); nl+=1
        if s_==5:
            red_write(0)
        if s_==13:
            A("s_waitcnt lgkmcnt(0)")
            A("s_barrier")
            st=red_final(0)
            S2.vmem(st,"out0")
    self.stamp('late done')
    A("s_nop 11")
    red_write(1)
    A("s_waitcnt lgkmcnt(0)")
    A("s_barrier")
    self.stamp('red barrier')
    A(red_final(1))

@add_method
def dump_lds(self, lds_off, nbytes, ws_off_per_wg):
    A=self.A
    A("s_waitcnt vmcnt(0) lgkmcnt(0)")
    A("s_barrier")
    A(f"v_lshlrev_b32 v48, 4, v{V_T}")
    A(f"s_mul_i32 s{S_T0}, s{S_WG}, {ws_off_per_wg}")
    A(f"s_add_u32 s{S_T0}, s{S_T0}, {WS_DBG}")
    for k in range(nbytes//4096):
        A(f"v_add_u32 v49, {lds_off+k*4096}, v48")
        A("ds_read_b128 v[52:55], v49")
        A("s_waitcnt lgkmcnt(0)")
        A(f"s_add_u32 s{S_T0+1}, s{S_T0}, {k*4096}")
        A(f"buffer_store_dwordx4 v[52:55], v48, s[{SRD_WS}:{SRD_WS+3}], s{S_T0+1} offen")
        A("s_waitcnt vmcnt(0)")

@add_method
def dump_regs(self, first, n, kind='v'):
    A=self.A
    A("s_waitcnt vmcnt(0) lgkmcnt(0)")
    A("s_nop 15")
    A(f"v_lshlrev_b32 v3, 2, v{V_T}")
    A(f"s_mul_i32 s{S_T0}, s{S_WG}, {n*1024}")
    A(f"s_add_u32 s{S_T0}, s{S_T0}, {WS_DBG}")
    for k in range(n):
        A(f"s_add_u32 s{S_T0+1}, s{S_T0}, {k*1024}")
        A(f"buffer_store_dword {kind}{first+k}, v3, s[{SRD_WS}:{SRD_WS+3}], s{S_T0+1} offen")
    A("s_waitcnt vmcnt(0)")

@add_method
def build(self):
    A=self.A
    stop=self.stop_after
    def done(name):
        return stop==name
    self.prologue()
    self.phase0_loads()
    self.conv_setup()
    self.stamp('index done')
    self.xjob_post()
    self.stamp('xjob post')
    self.kgen_setup()
    self.stamp('kgen setup')
    self.kgen_gen()
    self.stamp('kgen')
    if done('kx'):
        self.kexpand()
        A("s_waitcnt lgkmcnt(0)")
        A("s_barrier")
        self.dump_lds(LDS_KX, 36864, 36864); return self.finish()
    self.kexpand()
    self.stamp('kexpand')
    self.x_prepare()
    self.granule_wait()
    self.stamp('x flags')
    if self.xmode=='xt': self.xt_loads()
    self.stats_consume()
    self.stamp('u ready')
    if done('u'):
        self.dump_lds(LDS_U-LDS_U%16, 20480, 20480); return self.finish()
    self.conv()
    self.stamp('conv done')
    self.sync_all()
    self.stamp('sync2 arrive')
    if not self.w1start:
        self.flag_wait(0x3fff, landed=True)
    self.stamp('w1 flags')
    self.w1_loads(self.w1_in_conv,W1_PRE)
    self.stamp('cs done')
    self.sync_all_wait(sleep=self.msleep)
    self.stamp('sync2 passed')
    if done('w1'):
        self.dump_regs(0,224,'a'); return self.finish()
    if done('conv'): return self.finish()
    self.gemm1()
    self.stamp('gemm1 done')
    self.gemm2()
    return self.finish()

@add_method
def finish(self):
    A=self.A
    if self.ts:
        A("s_waitcnt vmcnt(0)")
        self.stamp('end')
        l=self.lab()
        A(f"s_cmp_lg_u32 s{S_W}, {self.tswave}")
        A(f"s_cbranch_scc1 {l}")
        A("v_mov_b32 v4, 0")
        for k in range(self.nts): A(f"v_writelane_b32 v4, s{86+k}, {k}")
        A(f"v_lshlrev_b32 v5, 2, v{V_LANE}")
        A(f"s_lshl_b32 s{S_T0}, s{S_WG}, 8")
        A(f"s_add_u32 s{S_T0}, s{S_T0}, {WS_TS}")
        A(f"buffer_store_dword v4, v5, s[{SRD_WS}:{SRD_WS+3}], s{S_T0} offen")
        l2=self.lab()
        A(f"s_cmp_lg_u32 s{S_WG}, 0")
        A(f"s_cbranch_scc1 {l2}")
        A(f"global_store_dword v5, v4, s[{S_DBG}:{S_DBG+1}]")
        A(f"{l2}:")
        A(f"{l}:")
    A("L_end:")
    A("s_endpgm")
    self.helper()
    A("L_codeend:")
    body, nfix, probs = hazard_fix(A.L)
    for p in probs: print("HAZARD(backedge):", p, file=sys.stderr)
    errs = wait_lint(body)
    for e in errs[:40]: print("WAITLINT:", e, file=sys.stderr)
    hdr = [
     "; Fused preLN + S4D long-conv + preLN + SwiGLU FFN: one persistent launch, 224 main + 32 weight re-layout workgroups",
     f"; @launch grid=({NGRID},1,1) block=(256,1,1) lds={LDS_TOTAL}",
     '.amdgcn_target "amdgcn-amd-amdhsa--gfx950"',
     ".text", f".globl {KNAME}", ".p2align 8", f".type {KNAME},@function", f"{KNAME}:"]
    ftr = ['.section .rodata,"a"', ".p2align 6", f".amdhsa_kernel {KNAME}",
     "  .amdhsa_next_free_vgpr 512", "  .amdhsa_next_free_sgpr 102", "  .amdhsa_accum_offset 256",
     "  .amdhsa_group_segment_fixed_size 0", "  .amdhsa_kernarg_size 112", "  .amdhsa_user_sgpr_count 2",
     "  .amdhsa_user_sgpr_kernarg_segment_ptr 1", "  .amdhsa_system_sgpr_workgroup_id_x 1",
     ".end_amdhsa_kernel"]
    self.nfix=nfix
    return "\n".join(hdr+body+ftr)+"\n"

if __name__=="__main__":
    import argparse
    ap=argparse.ArgumentParser(); ap.add_argument("-o",default="out.s"); ap.add_argument("--stop",default=None); ap.add_argument("--mimic",type=int,default=2); ap.add_argument("--ts",action="store_true"); ap.add_argument("--perturb",type=float,default=0.0); ap.add_argument("--tsset",default="main"); ap.add_argument("--cyc",action="store_true"); ap.add_argument("--tswave",type=int,default=0); ap.add_argument("--hts",action="store_true"); ap.add_argument("--xmode",default="gather"); ap.add_argument("--wpf",type=int,default=2); ap.add_argument("--w1pf",type=int,default=0); ap.add_argument("--pp",type=int,default=0); ap.add_argument("--w1start",type=int,default=0); ap.add_argument("--cs",type=int,default=0); ap.add_argument("--hsleep",type=int,default=0); ap.add_argument("--msleep",type=int,default=0); ap.add_argument("--w1pre",type=int,default=12)
    a=ap.parse_args()
    g=Gen(stop_after=a.stop, mimic=a.mimic, ts=a.ts, perturb=a.perturb)
    if a.tsset=='main': g.tsonly=set(['xjob post','kgen','x flags','u ready','conv done','sync2 arrive','w1 flags','cs done','sync2 passed','gemm1 done','sync3 arrive','early done','late ready','end'])
    if a.cyc: g.tsop='s_memtime'
    g.tswave=a.tswave; g.hts=a.hts; g.xmode=a.xmode; g.pp=a.pp; g.w1start=a.w1start; g.costsched=a.cs; g.hsleep=a.hsleep; g.msleep=a.msleep; g.wpf=a.wpf; g.w1pf=a.w1pf; globals().__setitem__('W1_PRE',a.w1pre)
    if a.tsset=='end': g.tsonly=set(['end'])
    if a.tsset=='g': g.tsonly=set(['sync2 passed','x0','pass0','pass1','pass2','pass3','gemm1 done','sync3 arrive','early done','late ready','late done','red barrier','end'])
    if a.tsset=='start': g.tsonly=set(['kernarg','all issued','index done','xjob post','kgen setup','gen done','wjob post','kmfma','kbar1','kgen','x flags','kexpand','xt landed','u ready','end'])
    txt=g.build()
    open(a.o,"w").write(txt)
    print("wrote",a.o,len(txt.splitlines()),"lines; nops inserted:",g.nfix, "stamps:", g.tsnames, file=sys.stderr)
```

```python
import sys, math
sys.path.insert(0, "gen")
from asmlib import *

KNAME = "sequential_preLN__ssm_conv_s4d__swiglu_ffn__prompt_kernel"
L_, D_, N_, F_ = 2048, 448, 256, 1792
NWG = 224
NGRID = 256

WS_EPOCH = 0
WS_CNT2  = 4096
WS_CNT3  = 12288
WS_STATS = 32768
WS_HT    = 1 << 20
WS_M     = 4 << 20
WS_ST2   = 49152
WS_JF    = 65536
WS_XF    = 196608
WS_CSF   = 131072
WS_CS    = 294912
WS_XT    = 12 << 20
WS_WF1   = 18 << 20
WS_WFD   = 22 << 20
WS_DBG   = 32 << 20
WS_TS    = 16 << 20
WS_SIZE  = 268435456

KG_PITCH = 528
KG_WAVE  = 53 * KG_PITCH
LDS_KX   = 112000
KX_COPY  = 4160
KX_CH    = 4 * KX_COPY
LDS_U    = LDS_KX + 2 * KX_CH
U_CH     = 4608
LDS_XT   = LDS_U + 2 * U_CH
XT_CH    = 4096
LDS_TOTAL = 163840
assert LDS_XT + 2 * XT_CH <= LDS_TOTAL
LDS_JOB = LDS_KX
LDS_CSP = LDS_KX + 32768
assert LDS_CSP + 512 <= LDS_U

S_WG=2
S_X=8; S_LOGA=10; S_AIM=12; S_CR=14; S_CI=16; S_LOGDT=18; S_DSK=20; S_BX=22
S_WGT=24; S_WUP=26; S_WD=28; S_OUT=30; S_DBG=32; S_WS=34
SRD_X=36; SRD_WS=40; SRD_W=44; SRD_W2=48
S_W=52
S_CH=53
S_NH=54
S_D0=55
S_TAG=56
S_I=57; S_J=58
S_T0=60
S_YS=80
S_DSKV=81
S_DT=82
S_W1I=83
S_JDST=84
S_JL=85
S_GW=59
S_JE=78
S_JK=79

LOG2E = 1.4426950408889634
INV2PI = 0.15915494309189535
def f2u(x):
    import struct
    return struct.unpack('<I', struct.pack('<f', x))[0]
def fl(x): return hex(f2u(x))

class Gen:
    def __init__(self, stop_after=None, dbg=False, mimic=2, ts=False, perturb=0.0):
        self.A = Asm(); self.stop_after = stop_after; self.dbg = dbg; self.mimic = mimic
        self.nlab = 0; self.ts=ts; self.nts=0; self.tsnames=[]; self.perturb=perturb; self.tsonly=None; self.xmode='gather'; self.costsched=0; self.map=1; self.pp=0; self.hsleep=0; self.msleep=0; self.wpf=2; self.w1pf=0; self.tsop='s_memrealtime'; self.tswave=0
    def stamp(self, name):
        if not self.ts: return
        if self.tsonly is not None and name not in self.tsonly: return
        k=self.nts; self.nts+=1; self.tsnames.append(name); assert k<16
        A=self.A
        A("s_waitcnt lgkmcnt(0)")
        A(f"{self.tsop} s[6:7]")
        A("s_waitcnt lgkmcnt(0)")
        A(f"s_mov_b32 s{86+k}, s6")
    def lab(self, p='L'):
        self.nlab += 1; return f"{p}_{self.nlab}"

    def prologue(self):
        A = self.A
        A(f"s_cmp_ge_u32 s{S_WG}, {NGRID}")
        A("s_cbranch_scc1 L_end")
        if self.ts:
            A(f"{self.tsop} s[6:7]")
            A("s_waitcnt lgkmcnt(0)")
            A("s_mov_b32 s86, s6"); self.nts=1; self.tsnames.append('start')
        A(f"s_load_dwordx16 s[8:23], s[0:1], 0")
        A(f"s_load_dwordx8 s[24:31], s[0:1], 64")
        A(f"s_load_dwordx4 s[32:35], s[0:1], 96")
        A("s_getpc_b64 s[4:5]")
        A("L_pc:")
        A("v_lshlrev_b32 v1, 7, v0")
        A("v_add_u32 v2, 0x8000, v1")
        A("v_min_u32 v1, (L_codeend-L_pc-4), v1")
        A("global_load_dword v255, v1, s[4:5]")
        A("v_min_u32 v2, (L_codeend-L_pc-4), v2")
        A("global_load_dword v254, v2, s[4:5]")
        A("v_lshrrev_b32 v2, 6, v0")
        A("v_and_b32 v1, 63, v0")
        A(f"v_readfirstlane_b32 s{S_W}, v2")
        A(f"s_lshr_b32 s{S_CH}, s{S_W}, 1")
        A(f"s_and_b32 s{S_NH}, s{S_W}, 1")
        A(f"s_cmp_ge_u32 s{S_WG}, {NWG}")
        A("s_cbranch_scc1 L_helper")
        A(f"s_and_b32 s{S_T0}, s{S_WG}, 7")
        A(f"s_mul_i32 s{S_T0}, s{S_T0}, 28")
        A(f"s_lshr_b32 s{S_T0+1}, s{S_WG}, 3")
        A(f"s_add_u32 s{S_T0}, s{S_T0}, s{S_T0+1}")
        A(f"s_lshl_b32 s{S_D0}, s{S_T0}, 1")
        if self.map==0:
            A(f"s_mul_i32 s{S_T0+2}, s{S_T0+1}, 37")
            A(f"s_lshr_b32 s{S_T0+2}, s{S_T0+2}, 8")
            A(f"s_mul_i32 s{S_T0+3}, s{S_T0+2}, 7")
            A(f"s_sub_u32 s{S_T0+3}, s{S_T0+1}, s{S_T0+3}")
            A(f"s_and_b32 s{S_T0+4}, s{S_WG}, 7")
            A(f"s_lshr_b32 s{S_T0+5}, s{S_T0+4}, 1")
            A(f"s_lshl_b32 s{S_T0+5}, s{S_T0+5}, 2")
            A(f"s_add_u32 s{S_I}, s{S_T0+5}, s{S_T0+2}")
            A(f"s_and_b32 s{S_T0+4}, s{S_T0+4}, 1")
            A(f"s_mul_i32 s{S_T0+4}, s{S_T0+4}, 7")
            A(f"s_add_u32 s{S_J}, s{S_T0+4}, s{S_T0+3}")
        else:
            A(f"s_and_b32 s{S_T0+2}, s{S_WG}, 3")
            A(f"s_mul_i32 s{S_T0+2}, s{S_T0+2}, 28")
            A(f"s_add_u32 s{S_T0+2}, s{S_T0+2}, s{S_T0+1}")
            A(f"s_lshr_b32 s{S_J}, s{S_T0+2}, 3")
            A(f"s_and_b32 s{S_T0+2}, s{S_T0+2}, 7")
            A(f"s_bfe_u32 s{S_T0+3}, s{S_WG}, 0x10002")
            A(f"s_lshl_b32 s{S_T0+3}, s{S_T0+3}, 3")
            A(f"s_add_u32 s{S_I}, s{S_T0+2}, s{S_T0+3}")

def q7check():
    for q in range(28): assert (q*37)>>8 == q//7, q
q7check()

def add_method(f):
    setattr(Gen, f.__name__, f); return f

V_LANE=1
V_T=0
V_ZERO=2
V_XG=8
V_OFF=16
V_EP=27
V_PA=28
V_SX=36
V_TMP=48

@add_method
def phase0_loads(self):
    A=self.A
    A("s_waitcnt lgkmcnt(0)")
    self.stamp('kernarg')
    A(f"s_mov_b32 s{SRD_X}, s{S_X}\ns_mov_b32 s{SRD_X+1}, s{S_X+1}\ns_mov_b32 s{SRD_X+2}, {L_*D_*2}\ns_mov_b32 s{SRD_X+3}, 0x20000")
    A(f"s_mov_b32 s{SRD_WS}, s{S_WS}\ns_mov_b32 s{SRD_WS+1}, s{S_WS+1}\ns_mov_b32 s{SRD_WS+2}, {WS_SIZE}\ns_mov_b32 s{SRD_WS+3}, 0x20000")
    A(f"v_mov_b32 v{V_ZERO}, 0")
    self.job_roles()
    l=self.lab()
    A(f"s_cmp_lg_u32 s{S_WG}, {NWG-1}")
    A(f"s_cbranch_scc1 {l}")
    self.zero_counters_body()
    A(f"{l}:")
    self.xjob_issue()
    A(f"s_add_u32 s{S_T0+3}, s{S_D0}, s{S_CH}")
    A(f"s_lshl_b32 s{S_T0+3}, s{S_T0+3}, 9")
    A(f"s_lshl_b32 s{S_T0+4}, s{S_NH}, 8")
    A(f"s_add_u32 s{S_T0+3}, s{S_T0+3}, s{S_T0+4}")
    A(f"v_lshl_add_u32 v8, v{V_LANE}, 2, s{S_T0+3}")
    A(f"v_xor_b32 v9, 256, v8")
    A(f"global_load_dword v{V_PA}, v8, s[{S_LOGA}:{S_LOGA+1}]")
    A(f"global_load_dword v{V_PA+1}, v8, s[{S_AIM}:{S_AIM+1}]")
    A(f"global_load_dword v{V_PA+2}, v8, s[{S_CR}:{S_CR+1}]")
    A(f"global_load_dword v{V_PA+3}, v8, s[{S_CI}:{S_CI+1}]")
    A(f"global_load_dword v{V_PA+4}, v9, s[{S_CR}:{S_CR+1}]")
    A(f"global_load_dword v{V_PA+5}, v9, s[{S_CI}:{S_CI+1}]")
    A(f"s_lshl_b32 s{S_T0+4}, s{S_D0}, 1")
    A(f"s_load_dword s{S_DT}, s[{S_LOGDT}:{S_LOGDT+1}], s{S_T0+4}")
    A(f"s_load_dword s{S_DSKV}, s[{S_DSK}:{S_DSK+1}], s{S_T0+4}")
    A(f"global_load_dword v{V_EP}, v{V_ZERO}, s[{S_WS}:{S_WS+1}] sc1")
    if self.xmode=='gather':
        self.gl=self.gather_items(); self.gi=0
        for _ in range(2): A(self.gl[self.gi]); self.gi+=1
    if self.wpf:
        lpf=self.lab()
        A(f"s_cmp_ge_u32 s{S_W}, {self.wpf}")
        A(f"s_cbranch_scc1 {lpf}")
        A(f"s_cmp_eq_u32 s{S_W}, 0")
        A(f"s_cselect_b32 s{SRD_W}, s{S_WGT}, s{S_WUP}")
        A(f"s_cselect_b32 s{SRD_W+1}, s{S_WGT+1}, s{S_WUP+1}")
        A(f"s_cmp_eq_u32 s{S_W}, 2")
        A(f"s_cselect_b32 s{SRD_W}, s{S_WD}, s{SRD_W}")
        A(f"s_cselect_b32 s{SRD_W+1}, s{S_WD+1}, s{SRD_W+1}")
        A(f"s_mov_b32 s{SRD_W+2}, {D_*F_*2}")
        A(f"s_mov_b32 s{SRD_W+3}, 0x20000")
        A(f"v_min_u32 v5, 55, v{V_LANE}")
        A(f"v_lshlrev_b32 v5, 7, v5")
        A(f"s_mul_i32 s{S_T0}, s{S_WG}, {56*128}")
        A(f"buffer_load_dword v253, v5, s[{SRD_W}:{SRD_W+3}], s{S_T0} offen")
        A(f"{lpf}:")
    self.stamp('all issued')
    A(f"s_mul_i32 s{S_T0+5}, s{S_W}, {KG_WAVE}")
    A(f"v_and_b32 v182, 31, v{V_LANE}")
    A(f"v_lshrrev_b32 v183, 5, v{V_LANE}")
    A(f"v_lshlrev_b32 v176, 4, v182")
    A(f"v_lshl_add_u32 v176, v183, 3, v176")
    A(f"v_add_u32 v176, s{S_T0+5}, v176")
    A(f"v_lshlrev_b32 v177, 3, v182")
    A(f"v_add_u32 v177, 512, v177")
    A(f"v_lshlrev_b32 v178, 2, v182")
    A(f"v_add_u32 v178, 768, v178")
    A(f"v_cmp_eq_u32 vcc, 1, v183")
    A(f"v_cndmask_b32 v177, v177, v178, vcc")
    A(f"v_add_u32 v177, s{S_T0+5}, v177")
    A(f"v_mov_b32 v178, 4")
    A(f"v_mov_b32 v179, 128")
    A(f"v_cndmask_b32 v178, v178, v179, vcc")
    A(f"v_add_u32 v178, v177, v178")
    A(f"v_lshlrev_b32 v179, 1, v182")
    A(f"v_lshl_add_u32 v179, v183, 8, v179")
    A(f"v_add_u32 v179, s{S_T0+5}, v179")
    A(f"v_lshlrev_b32 v48, 3, v{V_T}")
    for x in range(11):
        o=V_OFF+x
        A(f"v_sub_u32 v49, {2047-x}, v48")
        A(f"v_cvt_f32_i32 v50, v49")
        A(f"v_cvt_pk_bf16_f32 v50, v50, v50")
        A(f"v_and_b32 v50, 0xffff, v50")
        A(f"v_subrev_u32 v50, 17024, v50")
        A(f"v_cmp_gt_i32 vcc, 128, v49")
        A(f"v_cndmask_b32 v50, v50, v49, vcc")
        if x>=8:
            A(f"v_cmp_gt_i32 vcc, 0, v49")
            A(f"v_mov_b32 v51, 768")
            A(f"v_cndmask_b32 v50, v50, v51, vcc")
        A(f"v_lshlrev_b32 v{o}, 1, v50")

NWJ = 588
LDS_XB = LDS_JOB + 3*8192

@add_method
def job_roles(self):
    A=self.A
    A(f"s_mul_i32 s{S_T0}, s{S_W}, 224")
    A(f"s_add_u32 s{S_GW}, s{S_T0}, s{S_WG}")
    A(f"s_lshl_b32 s{S_JL}, s{S_W}, 13")
    A(f"s_add_u32 s{S_JL}, s{S_JL}, {LDS_JOB}")

V_SR=64
@add_method
def xjob_issue(self):
    A=self.A
    A(f"v_bfe_u32 v50, v{V_LANE}, 4, 1")
    A(f"v_lshrrev_b32 v51, 5, v{V_LANE}")
    A(f"v_mul_u32_u24 v51, {224*8}, v51")
    A(f"v_add_u32 v50, v50, v51")
    A(f"s_lshl_b32 s{S_T0}, s{S_WG}, 3")
    A(f"s_lshl_b32 s{S_T0+1}, s{S_W}, 1")
    A(f"s_add_u32 s{S_T0}, s{S_T0}, s{S_T0+1}")
    A(f"v_add_u32 v50, s{S_T0}, v50")
    A(f"v_mul_u32_u24 v50, 896, v50")
    A(f"v_and_b32 v51, 15, v{V_LANE}")
    A(f"v_lshl_add_u32 v50, v51, 4, v50")
    A(f"v_mov_b32 v52, 0x10000000")
    A(f"v_cmp_gt_u32 vcc, 8, v51")
    A(f"v_cndmask_b32 v52, v52, v50, vcc")
    for k in range(3):
        A(f"buffer_load_dwordx4 v[{V_SR+4*k}:{V_SR+4*k+3}], v50, s[{SRD_X}:{SRD_X+3}], 0 offen offset:{256*k}")
    A(f"buffer_load_dwordx4 v[{V_SR+12}:{V_SR+15}], v52, s[{SRD_X}:{SRD_X+3}], 0 offen offset:768")

@add_method
def gather_items(self):
    A=self.A
    A(f"s_lshl_b32 s{S_T0+14}, s{S_D0}, 1")
    A(f"s_movk_i32 s{S_T0+15}, 7168")
    A(f"v_mul_lo_u32 v4, v{V_T}, s{S_T0+15}")
    A(f"v_add_u32 v4, s{S_T0+14}, v4")
    A(f"s_movk_i32 s{S_T0+15}, 4480")
    out=[]
    for j in range(8):
        if j<5: out.append(f"buffer_load_dword v{V_XG+j}, v4, s[{SRD_X}:{SRD_X+3}], 0 offen offset:{j*896}")
        else:   out.append(f"buffer_load_dword v{V_XG+j}, v4, s[{SRD_X}:{SRD_X+3}], s{S_T0+15} offen offset:{(j-5)*896}")
    return out

@add_method
def xjob_post(self):
    A=self.A
    gather=(self.xmode=='gather')
    if self.wpf:
        lw=self.lab(); lc=self.lab()
        A(f"s_cmp_ge_u32 s{S_W}, {self.wpf}")
        A(f"s_cbranch_scc1 {lw}")
        A("s_waitcnt vmcnt(3) lgkmcnt(0)")
        A(f"s_branch {lc}")
        A(f"{lw}:")
        A("s_waitcnt vmcnt(2) lgkmcnt(0)")
        A(f"{lc}:")
    else:
        A(f"s_waitcnt vmcnt({2 if gather else 0}) lgkmcnt(0)")
    A(f"v_readfirstlane_b32 s{S_TAG}, v{V_EP}")
    A(f"s_add_u32 s{S_TAG}, s{S_TAG}, 0x9E3779B9")
    J=V_SR
    if not gather:
        A(f"v_bfe_u32 v50, v{V_LANE}, 4, 1")
        A(f"s_lshl_b32 s{S_T0}, s{S_W}, 1")
        A(f"v_add_u32 v50, s{S_T0}, v50")
        A(f"v_mul_u32_u24 v50, 896, v50")
        A(f"v_lshrrev_b32 v51, 5, v{V_LANE}")
        A(f"v_mul_u32_u24 v51, 7168, v51")
        A(f"v_add_u32 v50, v50, v51")
        A(f"v_and_b32 v51, 15, v{V_LANE}")
        A(f"v_lshl_add_u32 v50, v51, 4, v50")
        A(f"v_add_u32 v50, {LDS_XB}, v50")
        for k in range(3): A(f"ds_write_b128 v50, v[{J+4*k}:{J+4*k+3}] offset:{k*256}")
        A("s_mov_b32 exec_lo, 0x00ff00ff\ns_mov_b32 exec_hi, 0x00ff00ff")
        A(f"ds_write_b128 v50, v[{J+12}:{J+15}] offset:768")
        A("s_mov_b64 exec, -1")
    A("v_mov_b32 v54, 0x3f803f80")
    for i in range(16):
        c1="0" if i<2 else f"v{56+(i&1)}"; c2="0" if i<2 else f"v{58+(i&1)}"
        A(f"v_dot2_f32_bf16 v{56+(i&1)}, v{J+i}, v54, {c1}")
        A(f"v_dot2_f32_bf16 v{58+(i&1)}, v{J+i}, v{J+i}, {c2}")
    A(f"v_bfe_u32 v42, v{V_LANE}, 4, 1")
    A(f"v_lshlrev_b32 v42, 3, v42")
    A(f"v_lshrrev_b32 v39, 5, v{V_LANE}")
    A(f"v_mul_u32_u24 v39, {224*64}, v39")
    A(f"v_add_u32 v42, v42, v39")
    A(f"s_lshl_b32 s{S_T0+10}, s{S_WG}, 6")
    A(f"s_lshl_b32 s{S_T0+9}, s{S_W}, 4")
    A(f"s_add_u32 s{S_T0+10}, s{S_T0+10}, s{S_T0+9}")
    A(f"s_add_u32 s{S_T0+10}, s{S_T0+10}, {WS_STATS}")
    A("v_add_f32 v56, v56, v57\nv_add_f32 v57, v58, v59")
    for mode in ["row_shr:1","row_shr:2","row_shr:4","row_shr:8"]:
        A(f"v_add_f32_dpp v56, v56, v56 {mode} row_mask:0xf bank_mask:0xf bound_ctrl:0"); A(f"v_add_f32_dpp v57, v57, v57 {mode} row_mask:0xf bank_mask:0xf bound_ctrl:0")
    A(f"v_mul_f32 v56, {fl(1.0/448)}, v56")
    A(f"v_mul_f32 v57, {fl(1.0/448)}, v57")
    A("v_fma_f32 v57, -v56, v56, v57")
    A("v_max_f32 v57, 0, v57")
    A("v_cvt_pk_bf16_f32 v57, v57, v57")
    A("v_lshlrev_b32 v57, 16, v57")
    A(f"v_add_f32 v57, {fl(1e-5)}, v57")
    A("v_cvt_pk_bf16_f32 v57, v57, v57")
    A("v_lshlrev_b32 v57, 16, v57")
    A("v_sqrt_f32 v57, v57")
    A(f"v_mov_b32 v41, s{S_TAG}")
    A(f"v_cvt_pk_bf16_f32 v40, v57, v56")
    A(f"s_cmp_lt_u32 s{S_WG}, 32")
    A(f"s_cselect_b32 exec_hi, 0x80008000, 0")
    A("s_mov_b32 exec_lo, 0x80008000")
    A(f"buffer_store_dwordx2 v[40:41], v42, s[{SRD_WS}:{SRD_WS+3}], s{S_T0+10} offen sc1")
    A("s_mov_b64 exec, -1")
    if gather: return
    A("s_waitcnt lgkmcnt(0)")
    A("s_barrier")
    X=80
    A(f"v_bfe_u32 v52, v{V_LANE}, 2, 2")
    A(f"v_mul_u32_u24 v52, 896, v52")
    A(f"v_lshrrev_b32 v53, 4, v{V_LANE}")
    A(f"v_lshl_add_u32 v52, v53, 5, v52")
    A(f"v_and_b32 v53, 3, v{V_LANE}")
    A(f"v_lshl_add_u32 v52, v53, 3, v52")
    A(f"s_lshl_b32 s{S_T0+1}, s{S_W}, 7")
    A(f"s_add_u32 s{S_T0+1}, s{S_T0+1}, {LDS_XB}")
    A(f"v_add_u32 v52, s{S_T0+1}, v52")
    for k in range(2):
        o=7168*k; x=X+8*k
        A(f"ds_read_b64_tr_b16 v[{x}:{x+1}], v52 offset:{o}")
        A(f"ds_read_b64_tr_b16 v[{x+2}:{x+3}], v52 offset:{o+4*896}")
        A(f"ds_read_b64_tr_b16 v[{x+4}:{x+5}], v52 offset:{o+512}")
        A(f"ds_read_b64_tr_b16 v[{x+6}:{x+7}], v52 offset:{o+512+4*896}")
    A(f"v_lshlrev_b32 v53, 4, v{V_LANE}")
    A(f"s_mul_i32 s{S_T0+2}, s{S_WG}, 7168")
    A(f"s_lshl_b32 s{S_T0+3}, s{S_W}, 10")
    A(f"s_add_u32 s{S_T0+2}, s{S_T0+2}, s{S_T0+3}")
    A(f"s_add_u32 s{S_T0+2}, s{S_T0+2}, {WS_XT}")
    def st(x,extra):
        A(f"s_add_u32 s{S_T0+3}, s{S_T0+2}, {extra}")
        A(f"buffer_store_dwordx4 v[{x}:{x+3}], v53, s[{SRD_WS}:{SRD_WS+3}], s{S_T0+3} offen sc1")
    l3=self.lab(); l32=self.lab()
    A("s_waitcnt lgkmcnt(6)")
    st(X,0)
    A(f"s_cmp_eq_u32 s{S_W}, 3")
    A(f"s_cbranch_scc1 {l3}")
    A("s_waitcnt lgkmcnt(4)")
    st(X+4,4096)
    A(f"{l3}:")
    A(f"s_cmp_ge_u32 s{S_WG}, 32")
    A(f"s_cbranch_scc1 {l32}")
    A("s_waitcnt lgkmcnt(0)")
    st(X+8,224*7168)
    A(f"s_cmp_eq_u32 s{S_W}, 3")
    A(f"s_cbranch_scc1 {l32}")
    st(X+12,224*7168+4096)
    A(f"{l32}:")
    A("s_waitcnt lgkmcnt(0)")

@add_method
def xflag_publish(self):
    A=self.A
    A("s_waitcnt vmcnt(0)")
    A(f"s_lshl_b32 s{S_T0+10}, s{S_WG}, 2")
    A(f"s_add_u32 s{S_T0+10}, s{S_T0+10}, s{S_W}")
    A(f"s_lshl_b32 s{S_T0+10}, s{S_T0+10}, 6")
    A(f"s_add_u32 s{S_T0+10}, s{S_T0+10}, {WS_XF}")
    A(f"v_mul_u32_u24 v42, {224*4*64}, v{V_LANE}")
    A(f"v_mov_b32 v41, s{S_TAG}")
    A(f"s_cmp_lt_u32 s{S_WG}, 32")
    A(f"s_cselect_b32 exec_lo, 3, 1")
    A("s_mov_b32 exec_hi, 0")
    A(f"buffer_store_dword v41, v42, s[{SRD_WS}:{SRD_WS+3}], s{S_T0+10} offen sc1")
    A("s_mov_b64 exec, -1")

@add_method
def zero_counters_body(self):
    A=self.A; l=self.lab()
    A(f"s_cmp_lg_u32 s{S_W}, 3")
    A(f"s_cbranch_scc1 {l}")
    A(f"v_lshlrev_b32 v3, 7, v{V_LANE}")
    A(f"s_mov_b32 s{S_T0+5}, {WS_CNT2}")
    A(f"buffer_store_dword v{V_ZERO}, v3, s[{SRD_WS}:{SRD_WS+3}], s{S_T0+5} offen sc1")
    A(f"s_mov_b32 s{S_T0+5}, {WS_CNT3}")
    A(f"buffer_store_dword v{V_ZERO}, v3, s[{SRD_WS}:{SRD_WS+3}], s{S_T0+5} offen sc1")
    A(f"{l}:")

S_HY=64; S_HL=65; S_HD=66; S_HE=67; S_HK=68; S_HRET=70
S_HSTR=69; S_HG=72; S_HP=73
@add_method
def wjob_params(self):
    A=self.A; ld=self.lab('Lwd'); lc=self.lab('Lwc'); T=S_T0
    A(f"s_cmp_ge_u32 s{S_HY}, 392")
    A(f"s_cbranch_scc1 {ld}")
    A(f"s_cmp_ge_u32 s{S_HY}, 196")
    A(f"s_cselect_b32 s{SRD_W}, s{S_WUP}, s{S_WGT}")
    A(f"s_cselect_b32 s{SRD_W+1}, s{S_WUP+1}, s{S_WGT+1}")
    A(f"s_cselect_b32 s{T+1}, 1, 0")
    A(f"s_mul_i32 s{T+2}, s{T+1}, 196")
    A(f"s_sub_u32 s{T+2}, s{S_HY}, s{T+2}")
    A(f"s_mul_i32 s{S_HP}, s{T+2}, 9363")
    A(f"s_lshr_b32 s{S_HP}, s{S_HP}, 16")
    A(f"s_mul_i32 s{S_HG}, s{S_HP}, 7")
    A(f"s_sub_u32 s{S_HG}, s{T+2}, s{S_HG}")
    A(f"s_movk_i32 s{S_HSTR}, 3584")
    A(f"s_lshl_b32 s{T+2}, s{S_HP}, 2")
    A(f"s_add_u32 s{T+2}, s{T+2}, s{T+1}")
    A(f"s_mul_i32 s{T+2}, s{T+2}, 28")
    A(f"s_lshl_b32 s{T+3}, s{S_HG}, 2")
    A(f"s_add_u32 s{T+2}, s{T+2}, s{T+3}")
    A(f"s_lshl_b32 s{T+2}, s{T+2}, 10")
    A(f"s_add_u32 s{S_HD}, s{T+2}, {WS_WF1}")
    A(f"s_mov_b32 s{S_HE}, {56*1024}")
    A(f"s_mov_b32 s{S_HK}, 4")
    A(f"s_branch {lc}")
    A(f"{ld}:")
    A(f"s_mov_b32 s{SRD_W}, s{S_WD}")
    A(f"s_mov_b32 s{SRD_W+1}, s{S_WD+1}")
    A(f"s_sub_u32 s{T+2}, s{S_HY}, 392")
    A(f"s_mul_i32 s{S_HP}, s{T+2}, 2341")
    A(f"s_lshr_b32 s{S_HP}, s{S_HP}, 16")
    A(f"s_mul_i32 s{S_HG}, s{S_HP}, 28")
    A(f"s_sub_u32 s{S_HG}, s{T+2}, s{S_HG}")
    A(f"s_movk_i32 s{S_HSTR}, 896")
    A(f"s_mul_i32 s{T+2}, s{S_HP}, 224")
    A(f"s_lshl_b32 s{T+3}, s{S_HG}, 2")
    A(f"s_add_u32 s{T+2}, s{T+2}, s{T+3}")
    A(f"s_lshl_b32 s{T+2}, s{T+2}, 10")
    A(f"s_add_u32 s{S_HD}, s{T+2}, {WS_WFD}")
    A(f"s_mov_b32 s{S_HE}, {112*1024}")
    A(f"s_mov_b32 s{S_HK}, 8")
    A(f"{lc}:")

for _u in range(196): assert (_u*9363)>>16 == _u//7
for _u in range(196): assert (_u*2341)>>16 == _u//28

@add_method
def helper(self):
    A=self.A; T=S_T0
    A("L_helper:")
    hs=[0]
    def hstamp():
        if not (self.ts and getattr(self,'hts',False)): return
        A(f"{self.tsop} s[6:7]"); A("s_waitcnt lgkmcnt(0)"); A(f"v_writelane_b32 v200, s6, {hs[0]}"); hs[0]+=1
    A("s_waitcnt lgkmcnt(0)")
    if self.ts and getattr(self,'hts',False):
        A("v_mov_b32 v200, 0"); A("v_writelane_b32 v200, s86, 0"); hs[0]=1
    hstamp()
    A(f"s_mov_b32 s{SRD_WS}, s{S_WS}\ns_mov_b32 s{SRD_WS+1}, s{S_WS+1}\ns_mov_b32 s{SRD_WS+2}, {WS_SIZE}\ns_mov_b32 s{SRD_WS+3}, 0x20000")
    A(f"s_mov_b32 s{SRD_W+2}, {D_*F_*2}")
    A(f"s_mov_b32 s{SRD_W+3}, 0x20000")
    A(f"v_mov_b32 v{V_ZERO}, 0")
    A(f"global_load_dword v{V_EP}, v{V_ZERO}, s[{S_WS}:{S_WS+1}] sc1")
    A(f"s_sub_u32 s{S_GW}, s{S_WG}, {NWG}")
    A(f"s_lshl_b32 s{S_GW}, s{S_GW}, 2")
    A(f"s_add_u32 s{S_GW}, s{S_GW}, s{S_W}")
    A(f"s_mul_i32 s{S_JL}, s{S_W}, 40960")
    A(f"v_lshrrev_b32 v40, 3, v{V_LANE}")
    A(f"v_bfe_u32 v49, v{V_LANE}, 4, 1")
    A(f"v_lshlrev_b32 v49, 2, v49")
    A(f"v_and_b32 v50, 7, v{V_LANE}")
    A(f"v_xor_b32 v49, v49, v50")
    A(f"v_lshlrev_b32 v41, 4, v49")
    A(f"v_bfe_u32 v51, v{V_LANE}, 2, 2")
    A(f"v_lshlrev_b32 v42, 7, v51")
    A(f"v_lshrrev_b32 v51, 1, v51")
    A(f"v_lshlrev_b32 v51, 2, v51")
    A(f"v_bfe_u32 v52, v{V_LANE}, 4, 1")
    A(f"v_bfe_u32 v53, v{V_LANE}, 1, 1")
    A(f"v_lshl_add_u32 v52, v52, 1, v53")
    A(f"v_xor_b32 v51, v51, v52")
    A(f"v_lshl_add_u32 v42, v51, 4, v42")
    A(f"v_and_b32 v51, 1, v{V_LANE}")
    A(f"v_lshl_add_u32 v42, v51, 3, v42")
    A(f"v_lshrrev_b32 v43, 5, v{V_LANE}")
    A(f"v_lshlrev_b32 v54, 4, v{V_LANE}")
    A(f"v_mul_u32_u24 v58, {2*896}, v43")
    A(f"v_and_b32 v59, 31, v{V_LANE}")
    A(f"v_lshl_add_u32 v58, v59, 2, v58")
    def call(lbl):
        A(f"s_getpc_b64 s[{T+14}:{T+15}]")
        r=self.lab('Lr')
        A(f"{r}:")
        A(f"s_add_u32 s{T+14}, s{T+14}, ({lbl}-{r})")
        A(f"s_addc_u32 s{T+15}, s{T+15}, (({lbl}-{r})>>31)")
        A(f"s_swappc_b64 s[{S_HRET}:{S_HRET+1}], s[{T+14}:{T+15}]")
    NS=9
    def setjob_y(expr_add, clamp):
        A(f"s_add_u32 s{S_HY}, s{S_GW}, {expr_add}")
        A(f"s_min_u32 s{S_HY}, s{S_HY}, {clamp}")
    def job(n,kind):
        if kind=='w1': setjob_y(128*n, 391)
        else: setjob_y(392+128*(n-4), NWJ-1)
        A(f"s_add_u32 s{S_HL}, s{S_JL}, {8192*(n if n<4 else n-4)}")
    def flag_cur():
        A(f"s_lshl_b32 s{T+10}, s{S_HY}, 6")
        A(f"s_add_u32 s{T+10}, s{T+10}, {WS_JF}")
        A(f"v_mov_b32 v47, s{S_TAG}")
        A("s_mov_b64 exec, 1")
        A(f"buffer_store_dword v47, v{V_ZERO}, s[{SRD_WS}:{SRD_WS+3}], s{T+10} offen sc1")
        A("s_mov_b64 exec, -1")
    def batch(ns, kind):
        k=len(ns); st = NS if kind=='w1' else 8
        for n in ns: job(n,kind); call("L_hissue")
        hstamp()
        for i,n in enumerate(ns):
            job(n,kind); A(f"s_waitcnt vmcnt({8*(k-1-i)+st*i})"); call("L_hpost")
            if i==0 and kind=='w1':
                A(f"v_readfirstlane_b32 s{S_TAG}, v{V_EP}")
                A(f"s_add_u32 s{S_TAG}, s{S_TAG}, 0x9E3779B9")
        hstamp()
        for i,n in enumerate(ns):
            A(f"s_waitcnt vmcnt({st*(k-1-i)+i})")
            job(n,kind); flag_cur()
        hstamp()
    l4=self.lab('Lh4'); lb=self.lab('Lhb')
    A(f"s_cmp_lt_u32 s{S_GW}, 8")
    A(f"s_cbranch_scc1 {l4}")
    batch([0,1,2],'w1')
    A(f"s_branch {lb}")
    A(f"{l4}:")
    sv=hs[0]; hs[0]=2
    batch([0,1,2,3],'w1')
    hs[0]=sv
    A(f"{lb}:")
    batch([4,5],'wd')
    lp=self.lab('Lpoll'); le=self.lab()
    A(f"s_mov_b32 s{T+1}, 0")
    A(f"s_mov_b32 s{T}, {WS_STATS+(8*(NWG-1)+6)*8+4}")
    A(f"{lp}:")
    A(f"buffer_load_dword v49, v{V_ZERO}, s[{SRD_WS}:{SRD_WS+3}], s{T} offen sc1")
    A("s_waitcnt vmcnt(0)")
    A(f"v_cmp_ne_u32 vcc, s{S_TAG}, v49")
    A(f"s_add_u32 s{T+1}, s{T+1}, 1")
    A(f"s_cbranch_vccz {le}")
    A(f"s_cmp_lt_u32 s{T+1}, 0x8000")
    A(f"s_cbranch_scc1 {lp}")
    A(f"{le}:")
    self.sync_all_wait(sleep=self.hsleep)
    hstamp()
    A(f"s_sub_u32 s{T}, s{S_WG}, {NWG}")
    A(f"s_mul_i32 s{T}, s{T}, 57344")
    A(f"s_mul_i32 s{T+1}, s{S_W}, 14336")
    A(f"s_add_u32 s{T}, s{T}, s{T+1}")
    A(f"s_add_u32 s{T}, s{T}, {WS_HT}")
    for k in range(14):
        if k%4==0:
            A(f"s_add_u32 s{T+2}, s{T}, {k*1024}")
            A(f"s_add_u32 m0, s{T+1}, {k*1024}")
        A(f"buffer_load_dwordx4 v54, s[{SRD_WS}:{SRD_WS+3}], s{T+2} offen offset:{(k%4)*1024} sc1 lds")
    A(f"v_lshlrev_b32 v50, 9, v43")
    A(f"v_bfe_u32 v51, v{V_LANE}, 2, 2")
    A(f"v_lshl_add_u32 v50, v51, 6, v50")
    A(f"v_bfe_u32 v51, v{V_LANE}, 4, 1")
    A(f"v_lshl_add_u32 v50, v51, 5, v50")
    A(f"v_and_b32 v51, 3, v{V_LANE}")
    A(f"v_lshl_add_u32 v50, v51, 3, v50")
    A(f"v_add_u32 v50, s{T+1}, v50")
    A("v_mov_b32 v55, 0x3f803f80")
    for k0 in range(0,14,2):
        A(f"s_waitcnt vmcnt({12-k0})")
        for k in (k0,k0+1):
            r=64+4*(k%4)
            A(f"ds_read_b64_tr_b16 v[{r}:{r+1}], v50 offset:{k*1024}")
            A(f"ds_read_b64_tr_b16 v[{r+2}:{r+3}], v50 offset:{k*1024+256}")
        A("s_waitcnt lgkmcnt(0)")
        for k in (k0,k0+1):
            r=64+4*(k%4)
            for d in range(4):
                i=4*k+d
                c1="0" if i<2 else f"v{56+(i&1)}"; c2="0" if i<2 else f"v{58+(i&1)}"
                A(f"v_dot2_f32_bf16 v{56+(i&1)}, v{r+d}, v55, {c1}")
                A(f"v_dot2_f32_bf16 v{58+(i&1)}, v{r+d}, v{r+d}, {c2}")
    A("s_nop 2")
    A("v_add_f32 v56, v56, v57\nv_add_f32 v57, v58, v59")
    A("v_mov_b32 v58, v56\nv_mov_b32 v59, v57")
    A("v_permlane32_swap_b32 v56, v58\nv_permlane32_swap_b32 v57, v59")
    A("v_add_f32 v56, v56, v58\nv_add_f32 v57, v57, v59")
    A(f"v_and_b32 v60, 31, v{V_LANE}")
    A(f"v_lshlrev_b32 v61, 4, v60")
    A(f"s_lshr_b32 s{T+3}, s{S_W}, 1")
    A(f"s_lshl_b32 s{T+3}, s{T+3}, 9")
    A(f"s_add_u32 s{T+3}, s{T+3}, 65536")
    A(f"v_add_u32 v61, s{T+3}, v61")
    A(f"s_and_b32 s{T+4}, s{S_W}, 1")
    A(f"s_lshl_b32 s{T+4}, s{T+4}, 3")
    A(f"v_add_u32 v62, s{T+4}, v61")
    A("ds_write_b64 v62, v[56:57]")
    A("s_waitcnt lgkmcnt(0)")
    A("s_barrier")
    lz=self.lab()
    A(f"s_cmp_lg_u32 s{T+4}, 0")
    A(f"s_cbranch_scc1 {lz}")
    A("ds_read_b128 v[64:67], v61")
    A("s_waitcnt lgkmcnt(0)")
    A("v_add_f32 v64, v64, v66\nv_add_f32 v65, v65, v67")
    A(f"v_mul_f32 v64, {fl(1.0/448)}, v64")
    A(f"v_mul_f32 v65, {fl(1.0/448)}, v65")
    A("v_fma_f32 v65, -v64, v64, v65")
    A("v_max_f32 v65, 0, v65")
    A("v_cvt_pk_bf16_f32 v65, v65, v65")
    A("v_lshlrev_b32 v65, 16, v65")
    A(f"v_add_f32 v65, {fl(1e-5)}, v65")
    A("v_cvt_pk_bf16_f32 v65, v65, v65")
    A("v_lshlrev_b32 v65, 16, v65")
    A("v_sqrt_f32 v65, v65")
    A("v_cvt_pk_bf16_f32 v66, v65, v64")
    A(f"v_mov_b32 v67, s{S_TAG}")
    A(f"v_lshlrev_b32 v68, 3, v60")
    A(f"s_sub_u32 s{T+5}, s{S_WG}, {NWG}")
    A(f"s_lshl_b32 s{T+5}, s{T+5}, 1")
    A(f"s_lshr_b32 s{T+6}, s{S_W}, 1")
    A(f"s_add_u32 s{T+5}, s{T+5}, s{T+6}")
    A(f"s_lshl_b32 s{T+5}, s{T+5}, 8")
    A(f"s_add_u32 s{T+5}, s{T+5}, {WS_ST2}")
    A("s_mov_b32 exec_hi, 0")
    A(f"buffer_store_dwordx2 v[66:67], v68, s[{SRD_WS}:{SRD_WS+3}], s{T+5} offen sc1")
    A("s_mov_b32 exec_hi, -1")
    A(f"{lz}:")
    hstamp()
    if self.ts and getattr(self,'hts',False):
        l=self.lab()
        A(f"s_cmp_lg_u32 s{S_W}, 0")
        A(f"s_cbranch_scc1 {l}")
        A(f"v_lshlrev_b32 v5, 2, v{V_LANE}")
        A(f"s_lshl_b32 s{T}, s{S_WG}, 8")
        A(f"s_add_u32 s{T}, s{T}, {WS_TS}")
        A(f"buffer_store_dword v200, v5, s[{SRD_WS}:{SRD_WS+3}], s{T} offen")
        A(f"{l}:")
    A("s_endpgm")
    A("L_hissue:")
    self.wjob_params()
    A(f"v_mul_lo_u32 v48, v40, s{S_HSTR}")
    A(f"v_add_u32 v48, v48, v41")
    A(f"s_lshl_b32 s{T+6}, s{S_HG}, 6")
    A(f"s_mul_i32 s{T+6}, s{T+6}, s{S_HSTR}")
    A(f"s_lshl_b32 s{T+7}, s{S_HP}, 7")
    A(f"s_add_u32 s{T+6}, s{T+6}, s{T+7}")
    A(f"s_lshl_b32 s{T+7}, s{S_HSTR}, 3")
    for i in range(8):
        A(f"s_add_u32 m0, s{S_HL}, {i*1024}")
        A(f"buffer_load_dwordx4 v48, s[{SRD_W}:{SRD_W+3}], s{T+6} offen lds")
        if i<7: A(f"s_add_u32 s{T+6}, s{T+6}, s{T+7}")
    A(f"s_setpc_b64 s[{S_HRET}:{S_HRET+1}]")
    A("L_hpost:")
    self.wjob_params()
    J=64
    A(f"s_cmp_eq_u32 s{S_HK}, 4")
    A(f"s_cselect_b32 s{T}, 10, 9")
    A(f"s_lshl_b32 s{T+1}, s{S_HK}, 7")
    A(f"v_lshlrev_b32 v50, s{T}, v43")
    A(f"v_add_u32 v50, v50, v42")
    A(f"v_add_u32 v50, s{S_HL}, v50")
    A(f"v_add_u32 v51, s{T+1}, v50")
    A(f"v_xor_b32 v52, 64, v50")
    A(f"v_xor_b32 v53, 64, v51")
    def rd(k):
        kap,e=k>>1,k&1; r=J+4*k
        A(f"ds_read_b64_tr_b16 v[{r}:{r+1}], v{50+2*e} offset:{kap*2048}")
        A(f"ds_read_b64_tr_b16 v[{r+2}:{r+3}], v{51+2*e} offset:{kap*2048}")
    for k in range(6): rd(k)
    for k in range(8):
        kap,e=k>>1,k&1; r=J+4*k
        issued=min(8,6+k)
        A(f"s_waitcnt lgkmcnt({2*(issued-1-k)})")
        if e==0: A(f"s_add_u32 s{T+2}, s{S_HD}, {kap*1024}")
        else:
            A(f"s_add_u32 s{T+2}, s{S_HD}, s{S_HE}")
            A(f"s_add_u32 s{T+2}, s{T+2}, {kap*1024}")
        A(f"buffer_store_dwordx4 v[{r}:{r+3}], v54, s[{SRD_WS}:{SRD_WS+3}], s{T+2} offen sc1")
        if 6+k<8: rd(6+k)
    lcs=self.lab('Lcs')
    A(f"s_cmp_lg_u32 s{S_HK}, 4")
    A(f"s_cbranch_scc1 {lcs}")
    A("v_mov_b32 v55, 0x3f803f80")
    for k in range(8):
        e=k&1
        for d in range(4):
            c="0" if (k<2 and d==0) else f"v{56+e}"
            A(f"v_dot2_f32_bf16 v{56+e}, v{J+4*k+d}, v55, {c}")
    A("s_nop 2")
    A("v_permlane32_swap_b32 v56, v57")
    A("v_add_f32 v56, v56, v57")
    A(f"s_cmp_ge_u32 s{S_HY}, 196")
    A(f"s_cselect_b32 s{T+2}, 1, 0")
    A(f"s_lshl_b32 s{T+3}, s{S_HP}, 2")
    A(f"s_add_u32 s{T+2}, s{T+2}, s{T+3}")
    A(f"s_mul_i32 s{T+2}, s{T+2}, 7")
    A(f"s_add_u32 s{T+2}, s{T+2}, s{S_HG}")
    A(f"s_lshl_b32 s{T+2}, s{T+2}, 7")
    A(f"s_add_u32 s{T+2}, s{T+2}, {WS_CS}")
    A(f"buffer_store_dword v56, v58, s[{SRD_WS}:{SRD_WS+3}], s{T+2} offen sc1")
    A(f"{lcs}:")
    A(f"s_setpc_b64 s[{S_HRET}:{S_HRET+1}]")

def bf16_lo(dst, src): return f"v_lshlrev_b32 v{dst}, 16, v{src}"
def bf16_hi(dst, src): return f"v_and_b32 v{dst}, 0xffff0000, v{src}"

def cmul(A, R, P, Z, T):
    A(f"v_pk_mul_f32 v[{T}:{T+1}], v[{P}:{P+1}], v[{Z}:{Z+1}] op_sel_hi:[0,1]")
    A(f"v_pk_fma_f32 v[{R}:{R+1}], v[{P}:{P+1}], v[{Z}:{Z+1}], v[{T}:{T+1}] op_sel:[1,1,0] op_sel_hi:[1,0,1] neg_lo:[1,0,0]")

def kreg(e,name):
    names=['C','Z1','Z2','Z4','Z8','Z256','P','Q','R','T','X0','X1']
    return [128,152][e]+2*names.index(name)
ROWS=[0,1,2,3,4,5,6,7,256,258,260,262,512,516,768,772,1024,1280,1536,1792,2048]

@add_method
def kgen_setup(self):
    A=self.A
    A("s_waitcnt lgkmcnt(0)")
    A(f"s_lshl_b32 s{S_T0}, s{S_CH}, 4")
    A(f"s_lshr_b32 s{S_DT}, s{S_DT}, s{S_T0}")
    A(f"s_lshl_b32 s{S_DT}, s{S_DT}, 16")
    A(f"s_lshr_b32 s{S_DSKV}, s{S_DSKV}, s{S_T0}")
    A(f"s_lshl_b32 s{S_DSKV}, s{S_DSKV}, 16")
    DT=48
    A(f"v_mov_b32 v{DT}, s{S_DT}")
    A(f"v_mul_f32 v{DT}, {fl(LOG2E)}, v{DT}")
    A(f"v_exp_f32 v{DT}, v{DT}")
    A(f"v_cvt_pk_bf16_f32 v{DT}, v{DT}, v{DT}")
    A(f"v_lshlrev_b32 v{DT}, 16, v{DT}")
    A(f"v_and_b32 v50, 0x7fff7fff, v{V_PA+2}")
    A(f"v_and_b32 v51, 0x7fff7fff, v{V_PA+3}")
    A(f"v_and_b32 v52, 0x7fff7fff, v{V_PA+4}")
    A(f"v_and_b32 v53, 0x7fff7fff, v{V_PA+5}")
    A("v_pk_max_u16 v50, v50, v51")
    A("v_pk_max_u16 v52, v52, v53")
    A("v_pk_max_u16 v50, v50, v52")
    A("v_lshrrev_b32 v51, 16, v50")
    A("v_and_b32 v50, 0xffff, v50")
    A("v_max_u32 v50, v50, v51")
    for mode in ["row_shr:1 row_mask:0xf bank_mask:0xf bound_ctrl:0","row_shr:2 row_mask:0xf bank_mask:0xf bound_ctrl:0",
                 "row_shr:4 row_mask:0xf bank_mask:0xf bound_ctrl:0","row_shr:8 row_mask:0xf bank_mask:0xf bound_ctrl:0",
                 "row_bcast:15 row_mask:0xa bank_mask:0xf","row_bcast:31 row_mask:0xc bank_mask:0xf"]:
        A(f"v_max_u32_dpp v50, v50, v50 {mode}")
    A(f"v_readlane_b32 s{S_T0}, v50, 63")
    A(f"s_lshr_b32 s{S_T0}, s{S_T0}, 7")
    A(f"s_max_u32 s{S_T0}, s{S_T0}, 1")
    A(f"s_min_u32 s{S_T0}, s{S_T0}, 253")
    A(f"s_sub_u32 s{S_T0+1}, 254, s{S_T0}")
    A(f"s_lshl_b32 s{S_T0+1}, s{S_T0+1}, 23")
    A(f"s_lshl_b32 s{S_T0}, s{S_T0}, 23")
    A(f"v_add_f32 v49, v{DT}, v{DT}")
    A(f"v_mul_f32 v49, s{S_T0}, v49")
    A(f"v_readfirstlane_b32 s{S_YS}, v49")
    AR=[50,51]; TH=[52,53]
    reg=kreg
    for e in range(2):
        un = bf16_lo if e==0 else bf16_hi
        A(un(AR[e], V_PA)); A(un(TH[e], V_PA+1))
        A(un(reg(e,'C'), V_PA+2)); A(un(reg(e,'C')+1, V_PA+3))
    for e in range(2):
        A(f"v_mul_f32 v{AR[e]}, {fl(LOG2E)}, v{AR[e]}")
    for e in range(2): A(f"v_exp_f32 v{AR[e]}, v{AR[e]}")
    for e in range(2):
        A(f"v_cvt_pk_bf16_f32 v{AR[e]}, v{AR[e]}, v{AR[e]}")
    for e in range(2):
        A(f"v_lshlrev_b32 v{AR[e]}, 16, v{AR[e]}")
    for e in range(2):
        A(f"v_mul_f32 v{AR[e]}, v{AR[e]}, v{DT}")
        A(f"v_mul_f32 v{TH[e]}, v{TH[e]}, v{DT}")
    for e in range(2):
        A(f"v_mul_f32 v{AR[e]}, {fl(-LOG2E)}, v{AR[e]}")
        A(f"v_mul_f32 v{TH[e]}, {fl(INV2PI)}, v{TH[e]}")
        c=reg(e,'C')
        A(f"v_mul_f32 v{c}, s{S_T0+1}, v{c}")
        A(f"v_mul_f32 v{c+1}, s{S_T0+1}, v{c+1}")
    for name,p in (('Z1',1.0),('Z8',8.0),('Z256',256.0)):
        for e in range(2):
            z=reg(e,name); x0=reg(e,'X0'); x1=reg(e,'X1')
            if p==1.0:
                A(f"v_exp_f32 v{x0}, v{AR[e]}")
                A(f"v_fract_f32 v{x0+1}, v{TH[e]}")
            else:
                A(f"v_mul_f32 v{x0}, {fl(p)}, v{AR[e]}")
                A(f"v_mul_f32 v{x0+1}, {fl(p)}, v{TH[e]}")
                A(f"v_exp_f32 v{x0}, v{x0}")
                A(f"v_fract_f32 v{x0+1}, v{x0+1}")
            A(f"v_cos_f32 v{x1}, v{x0+1}")
            A(f"v_sin_f32 v{x1+1}, v{x0+1}")
        for e in range(2):
            z=reg(e,name); x0=reg(e,'X0'); x1=reg(e,'X1')
            A(f"v_pk_mul_f32 v[{z}:{z+1}], v[{x1}:{x1+1}], v[{x0}:{x0+1}] op_sel_hi:[1,0]")
    if self.xmode=='gather': A(self.gl[self.gi]); self.gi+=1
    for e in range(2): cmul(A, reg(e,'Z2'), reg(e,'Z1'), reg(e,'Z1'), reg(e,'T'))
    for e in range(2): cmul(A, reg(e,'Z4'), reg(e,'Z2'), reg(e,'Z2'), reg(e,'T'))

@add_method
def kgen_gen(self):
    A=self.A
    reg=kreg
    VA=104
    A(f"s_mul_i32 s{S_T0+2}, s{S_W}, {KG_WAVE}")
    A(f"v_lshl_add_u32 v{VA}, v{V_LANE}, 3, s{S_T0+2}")
    OUT=[106,108,110,112]; oi=[0]
    def emit(idx, name, neg):
        if self.xmode=='xt' and idx==36: self.xflag_publish()
        if self.xmode=='gather' and idx in (1,10,19,28,37): A(self.gl[self.gi]); self.gi+=1
        o=OUT[oi[0]%4]; oi[0]+=1
        for e in range(2):
            r=reg(e,name)
            A(f"v_cvt_pk_f16_f32 v{o+e}, v{r}, {'-' if neg else ''}v{r+1}")
        A(f"ds_write_b64 v{VA}, v[{o}:{o+1}] offset:{idx*KG_PITCH}")
    def step(dst, src, z):
        for e in range(2):
            A(f"v_pk_mul_f32 v[{reg(e,'T')}:{reg(e,'T')+1}], v[{reg(e,src)}:{reg(e,src)+1}], v[{reg(e,z)}:{reg(e,z)+1}] op_sel_hi:[0,1]")
        for e in range(2):
            A(f"v_pk_fma_f32 v[{reg(e,dst)}:{reg(e,dst)+1}], v[{reg(e,src)}:{reg(e,src)+1}], v[{reg(e,z)}:{reg(e,z)+1}], v[{reg(e,'T')}:{reg(e,'T')+1}] op_sel:[1,1,0] op_sel_hi:[1,0,1] neg_lo:[1,0,0]")
    emit(0,'C',True)
    step('P','C','Z1'); emit(1,'P',True)
    for r in range(2,8): step('P','P','Z1'); emit(r,'P',True)
    step('Q','C','Z256'); emit(8,'Q',True)
    step('R','Q','Z2'); emit(9,'R',True)
    step('R','R','Z2'); emit(10,'R',True)
    step('R','R','Z2'); emit(11,'R',True)
    step('Q','Q','Z256'); emit(12,'Q',True)
    step('R','Q','Z4'); emit(13,'R',True)
    step('Q','Q','Z256'); emit(14,'Q',True)
    step('R','Q','Z4'); emit(15,'R',True)
    for r in range(16,21): step('Q','Q','Z256'); emit(r,'Q',True)
    o=OUT[oi[0]%4]; oi[0]+=1
    A(f"v_mov_b32 v{o}, 0x3c00\nv_mov_b32 v{o+1}, 0x3c00")
    A(f"ds_write_b64 v{VA}, v[{o}:{o+1}] offset:{21*KG_PITCH}")
    emit(22,'Z8',False)
    step('P','Z8','Z8'); emit(23,'P',False)
    for b in range(3,32): step('P','P','Z8'); emit(21+b,'P',False)
    if self.xmode=='gather':
        while self.gi<8: A(self.gl[self.gi]); self.gi+=1
    self.stamp('gen done')
    A(f"s_mul_i32 s{S_T0+2}, s{S_W}, {KG_WAVE}")
    VAa=104; VAb=105
    A(f"v_and_b32 v48, 31, v{V_LANE}")
    A(f"v_min_u32 v49, 20, v48")
    A(f"v_lshrrev_b32 v50, 5, v{V_LANE}")
    A(f"v_lshlrev_b32 v50, 4, v50")
    A(f"v_add_u32 v50, s{S_T0+2}, v50")
    A(f"s_movk_i32 s{S_T0+3}, {KG_PITCH}")
    A(f"v_mad_u32_u24 v{VAa}, v49, s{S_T0+3}, v50")
    A(f"v_mad_u32_u24 v{VAb}, v48, s{S_T0+3}, v50")
    ACC=112
    FR=[64,72,80,88]
    def ld(ks):
        f=FR[ks%4]
        A(f"ds_read_b128 v[{f}:{f+3}], v{VAa} offset:{ks*32}")
        A(f"ds_read_b128 v[{f+4}:{f+7}], v{VAb} offset:{21*KG_PITCH+ks*32}")
    for ks in range(3): ld(ks)
    for ks in range(16):
        if ks+3<16: ld(ks+3)
        nxt=min(15,ks+3)-ks
        A(f"s_waitcnt lgkmcnt({2*nxt})")
        f=FR[ks%4]
        c = "0" if ks==0 else f"v[{ACC}:{ACC+15}]"
        A(f"v_mfma_f32_32x32x16_f16 v[{ACC}:{ACC+15}], v[{f}:{f+3}], v[{f+4}:{f+7}], {c}")
    l1=self.lab(); l2=self.lab()
    A(f"v_lshl_add_u32 v48, v{V_LANE}, 4, s{S_T0+2}")
    A(f"s_cmp_eq_u32 s{S_NH}, 0")
    A(f"s_cbranch_scc1 {l1}")
    for q in range(3): A(f"ds_write_b128 v48, v[{ACC+4*q}:{ACC+4*q+3}] offset:{q*1024}")
    A(f"{l1}:")
    A("s_nop 1")
    A("s_waitcnt lgkmcnt(0)")
    self.stamp('kmfma')
    A("s_barrier")
    self.stamp('kbar1')
    A(f"s_cmp_eq_u32 s{S_NH}, 0")
    A(f"s_cbranch_scc0 {l2}")
    for q in range(3): A(f"ds_read_b128 v[{64+4*q}:{64+4*q+3}], v48 offset:{KG_WAVE+q*1024}")
    A("s_waitcnt lgkmcnt(0)")
    for r in range(12):
        A(f"v_add_f32 v{64+r}, v{64+r}, v{ACC+r}")
    for r in range(12):
        A(f"v_cvt_f16_f32 v{64+r}, v{64+r}")
    for r in range(4): A(f"ds_write_b16 v176, v{64+r} offset:{2*r}")
    for r in (4,5): A(f"ds_write_b16 v177, v{64+r} offset:{2*(r-4)}")
    for r in (6,7): A(f"ds_write_b16 v178, v{64+r} offset:{2*(r-6)}")
    for r in range(8,12): A(f"ds_write_b16 v179, v{64+r} offset:{1024+64*(r-8)}")
    A(f"v_mov_b32 v50, 0")
    A(f"v_mov_b32 v51, s{S_T0+2}")
    A(f"ds_write_b16 v51, v50 offset:{2*768}")
    A(f"{l2}:")
    self.granule_loads()
    A("s_waitcnt lgkmcnt(0)")
    A("s_barrier")

@add_method
def kexpand(self):
    A=self.A
    D0=64
    def rd(ch,x):
        tb=(2*ch)*KG_WAVE; d=D0+ch*28
        A(f"ds_read_u16 v{d+x}, v{V_OFF+x} offset:{tb}")
    def mk(ch):
        d=D0+ch*28
        for c in range(4):
            for x in range(4):
                A(f"v_lshl_or_b32 v{d+12+4*c+x}, v{d+c+2*x+1}, 16, v{d+c+2*x}")
    def wr(ch):
        d=D0+ch*28
        for c in range(4):
            r=d+12+4*c
            A(f"ds_write_b128 v49, v[{r}:{r+3}] offset:{ch*KX_CH+c*KX_COPY}")
    for x in range(11): rd(0,x)
    for x in range(4): rd(1,x)
    A(f"v_lshlrev_b32 v49, 4, v{V_T}")
    A(f"v_add_u32 v49, {LDS_KX}, v49")
    A("s_waitcnt lgkmcnt(4)")
    mk(0)
    for x in range(4,11): rd(1,x)
    wr(0)
    A("s_waitcnt lgkmcnt(4)")
    mk(1)
    wr(1)
    A("v_mov_b32 v64, 0\nv_mov_b32 v65, 0\nv_mov_b32 v66, 0\nv_mov_b32 v67, 0")
    l=self.lab()
    A(f"s_cmp_lg_u32 s{S_W}, 0")
    A(f"s_cbranch_scc1 {l}")
    A(f"v_and_b32 v50, 31, v{V_LANE}")
    A(f"v_lshlrev_b32 v50, 4, v50")
    A(f"v_lshrrev_b32 v51, 5, v{V_LANE}")
    A(f"v_mul_u32_u24 v51, {U_CH}, v51")
    A(f"v_add_u32 v50, v50, v51")
    A(f"v_add_u32 v50, {LDS_U}, v50")
    A(f"ds_write_b128 v50, v[64:67]")
    A(f"v_lshrrev_b32 v50, 1, v{V_LANE}")
    A(f"v_and_b32 v50, 7, v50")
    A(f"v_mul_u32_u24 v50, {KX_COPY}, v50")
    A(f"v_and_b32 v51, 1, v{V_LANE}")
    A(f"v_lshl_add_u32 v50, v51, 4, v50")
    A(f"v_add_u32 v50, {LDS_KX+4096}, v50")
    A(f"ds_write_b128 v50, v[64:67]")
    A(f"{l}:")

S_GB=76
S_GB2=82
S_KSTR=68
@add_method
def stage_w(self, kind):
    A=self.A
    RING=24576
    if kind=='w1':
        stride=3584
        A(f"s_mov_b32 s{SRD_W}, s{S_WGT}\ns_mov_b32 s{SRD_W+1}, s{S_WGT+1}\ns_mov_b32 s{SRD_W+2}, {D_*F_*2}\ns_mov_b32 s{SRD_W+3}, 0x20000")
        A(f"s_mov_b32 s{SRD_W2}, s{S_WUP}\ns_mov_b32 s{SRD_W2+1}, s{S_WUP+1}\ns_mov_b32 s{SRD_W2+2}, {D_*F_*2}\ns_mov_b32 s{SRD_W2+3}, 0x20000")
        A(f"s_lshl_b32 s{S_T0}, s{S_J}, 8")
        A(f"s_lshl_b32 s{S_T0+1}, s{S_W}, 6")
        A(f"s_add_u32 s{S_T0}, s{S_T0}, s{S_T0+1}")
        for g in range(4):
            A(f"s_add_u32 s{S_T0+1}, s{S_W}, {g}")
            A(f"s_and_b32 s{S_T0+1}, s{S_T0+1}, 3")
            A(f"s_mul_i32 s{S_T0+1}, s{S_T0+1}, {7*16*stride}")
            A(f"s_add_u32 s{S_GB+g}, s{S_T0+1}, s{S_T0}")
        tileoff2=0
    else:
        stride=896
        A(f"s_mov_b32 s{SRD_W}, s{S_WD}\ns_mov_b32 s{SRD_W+1}, s{S_WD+1}\ns_mov_b32 s{SRD_W+2}, {D_*F_*2}\ns_mov_b32 s{SRD_W+3}, 0x20000")
        A(f"s_mov_b32 s{SRD_W2}, s{S_WD}\ns_mov_b32 s{SRD_W2+1}, s{S_WD+1}\ns_mov_b32 s{SRD_W2+2}, {D_*F_*2}\ns_mov_b32 s{SRD_W2+3}, 0x20000")
        A(f"s_cmp_ge_u32 s{S_J}, 7")
        A(f"s_cselect_b32 s{S_T0}, 7, 0")
        A(f"s_sub_u32 s{S_T0}, s{S_J}, s{S_T0}")
        A(f"s_lshl_b32 s{S_T0}, s{S_T0}, 7")
        A(f"s_mul_i32 s{S_T0+1}, s{S_W}, {448*stride}")
        A(f"s_add_u32 s{S_T0}, s{S_T0}, s{S_T0+1}")
        for g in range(4):
            A(f"s_add_u32 s{S_GB+g}, s{S_T0}, {g*7*16*stride}")
        tileoff2=64
    kstr=16*stride
    A(f"v_lshrrev_b32 v48, 2, v{V_LANE}")
    A(f"v_mul_u32_u24 v48, {stride}, v48")
    A(f"v_and_b32 v49, 3, v{V_LANE}")
    A(f"v_lshl_add_u32 v48, v49, 4, v48")
    if kind=='w1':
        A(f"v_mov_b32 v52, v48")
    else:
        A(f"s_lshl_b32 s{S_T0+1}, s{S_NH}, 6")
        A(f"s_xor_b32 s{S_T0+3}, s{S_T0+1}, 64")
        A(f"v_add_u32 v52, s{S_T0+3}, v48")
        A(f"v_add_u32 v48, s{S_T0+1}, v48")
    A(f"s_mul_i32 s{S_T0+2}, s{S_W}, {RING}")
    A(f"v_lshrrev_b32 v50, 5, v{V_LANE}")
    A(f"v_lshlrev_b32 v50, {9 if kind=='w1' else 8}, v50")
    A(f"v_bfe_u32 v51, v{V_LANE}, 2, 2")
    A(f"v_lshl_add_u32 v50, v51, 6, v50")
    A(f"v_bfe_u32 v51, v{V_LANE}, 4, 1")
    A(f"v_lshl_add_u32 v50, v51, 5, v50")
    A(f"v_and_b32 v51, 3, v{V_LANE}")
    A(f"v_lshl_add_u32 v50, v51, 3, v50")
    A(f"v_add_u32 v50, s{S_T0+2}, v50")
    second = 256 if kind=='w1' else 512
    def issue(c):
        slot=c%3
        for i in range(4):
            s=4*c+i; g=s//7; r=s%7
            A(f"s_add_u32 s{S_T0+3}, s{S_GB+g}, {r*kstr}")
            A(f"s_add_u32 m0, s{S_T0+2}, {slot*8192+i*2048}")
            A(f"buffer_load_dwordx4 v48, s[{SRD_W}:{SRD_W+3}], s{S_T0+3} offen lds")
            A(f"s_add_u32 m0, s{S_T0+2}, {slot*8192+i*2048+1024}")
            A(f"buffer_load_dwordx4 v52, s[{SRD_W2}:{SRD_W2+3}], s{S_T0+3} offen lds")
    for c in range(3): issue(c)
    for c in range(7):
        A(f"s_waitcnt vmcnt({8*min(2,6-c)})")
        slot=c%3
        for i in range(4):
            s=4*c+i
            for tile in range(2):
                a=8*s+4*tile; off=slot*8192+i*2048+tile*1024
                A(f"ds_read_b64_tr_b16 a[{a}:{a+1}], v50 offset:{off}")
                A(f"ds_read_b64_tr_b16 a[{a+2}:{a+3}], v50 offset:{off+second}")
            if i==1: A("s_waitcnt lgkmcnt(4)")
        if c+3<7:
            A("s_waitcnt lgkmcnt(0)")
            issue(c+3)
    A("s_waitcnt lgkmcnt(0)")

@add_method
def flag_load(self):
    A=self.A
    A(f"s_lshl_b32 s{S_T0}, s{S_J}, 2")
    A(f"s_add_u32 s{S_T0}, s{S_T0}, s{S_W}")
    A(f"s_lshr_b32 s{S_T0}, s{S_T0}, 1")
    A(f"s_mul_i32 s{S_T0}, s{S_T0}, 7")
    A(f"v_min_u32 v44, 13, v{V_LANE}")
    A(f"v_add_u32 v46, 189, v44")
    A(f"v_cmp_lt_u32 vcc, 6, v44")
    A(f"v_cndmask_b32 v44, v44, v46, vcc")
    A(f"v_add_u32 v44, s{S_T0}, v44")
    A(f"v_lshlrev_b32 v44, 6, v44")
    A(f"s_mov_b32 s{S_T0+11}, {WS_JF}")
    A(f"buffer_load_dword v46, v44, s[{SRD_WS}:{SRD_WS+3}], s{S_T0+11} offen sc1")

@add_method
def wdflag_load(self, S):
    A=self.A
    A(f"s_cmp_ge_u32 s{S_J}, 7")
    A(f"s_cselect_b32 s{S_T0+8}, 7, 0")
    A(f"s_sub_u32 s{S_T0+8}, s{S_J}, s{S_T0+8}")
    A(f"s_mul_i32 s{S_T0+8}, s{S_T0+8}, 28")
    A(f"s_mul_i32 s{S_T0+9}, s{S_W}, 7")
    A(f"s_add_u32 s{S_T0+8}, s{S_T0+8}, s{S_T0+9}")
    A(f"s_add_u32 s{S_T0+8}, s{S_T0+8}, 392")
    A(f"v_min_u32 v44, 6, v{V_LANE}")
    A(f"v_add_u32 v44, s{S_T0+8}, v44")
    A(f"v_lshlrev_b32 v44, 6, v44")
    A(f"s_mov_b32 s{S_T0+11}, {WS_JF}")
    S.vmem(f"buffer_load_dword v46, v44, s[{SRD_WS}:{SRD_WS+3}], s{S_T0+11} offen sc1","WDF")

@add_method
def wdflag_check(self, S):
    A=self.A
    lp=self.lab('Lpoll'); le=self.lab()
    S.need_vm(["WDF"])
    A(f"s_mov_b32 s{S_T0+8}, 0")
    A(f"{lp}:")
    A(f"v_cmp_eq_u32 vcc, s{S_TAG}, v46")
    A(f"s_and_b32 s{S_T0+9}, vcc_lo, 0x7f")
    A(f"s_cmp_eq_u32 s{S_T0+9}, 0x7f")
    A(f"s_cbranch_scc1 {le}")
    A(f"buffer_load_dword v46, v44, s[{SRD_WS}:{SRD_WS+3}], s{S_T0+11} offen sc1")
    A("s_waitcnt vmcnt(0)")
    A(f"s_add_u32 s{S_T0+8}, s{S_T0+8}, 1")
    A(f"s_cmp_lt_u32 s{S_T0+8}, 0x8000")
    A(f"s_cbranch_scc1 {lp}")
    A(f"{le}:")

@add_method
def granule_loads(self):
    A=self.A; SG=144
    if self.xmode=='gather':
        A(f"v_lshlrev_b32 v43, 6, v{V_T}")
        A(f"s_mov_b32 s{S_T0+13}, {WS_STATS}")
        for k in range(4):
            A(f"buffer_load_dwordx4 v[{SG+4*k}:{SG+4*k+3}], v43, s[{SRD_WS}:{SRD_WS+3}], s{S_T0+13} offen offset:{16*k} sc1")
        return
    A(f"s_lshr_b32 s{S_T0+12}, s{S_D0}, 6")
    A(f"s_and_b32 s{S_T0+12}, s{S_T0+12}, 3")
    A(f"s_lshl_b32 s{S_T0+12}, s{S_T0+12}, 6")
    A(f"s_add_u32 s{S_T0+12}, s{S_T0+12}, {WS_XF}")
    A(f"v_lshlrev_b32 v37, 8, v{V_T}")
    A(f"buffer_load_dword v36, v37, s[{SRD_WS}:{SRD_WS+3}], s{S_T0+12} offen sc1")
    A(f"v_lshlrev_b32 v43, 6, v{V_T}")
    A(f"s_mov_b32 s{S_T0+13}, {WS_STATS}")
    for k in range(4):
        A(f"buffer_load_dwordx4 v[{SG+4*k}:{SG+4*k+3}], v43, s[{SRD_WS}:{SRD_WS+3}], s{S_T0+13} offen offset:{16*k} sc1")

@add_method
def granule_wait(self):
    A=self.A; SG=144
    lp=self.lab('Lpoll'); le=self.lab()
    A(f"s_mov_b32 s{S_T0+1}, 0")
    A("s_waitcnt vmcnt(0)")
    A(f"{lp}:")
    if self.xmode=='gather': A("v_mov_b32 v49, 0")
    else: A(f"v_xor_b32 v49, s{S_TAG}, v36")
    for k in range(8):
        A(f"v_xor_b32 v50, s{S_TAG}, v{SG+2*k+1}")
        A(f"v_or_b32 v49, v49, v50")
    A("v_cmp_ne_u32 vcc, 0, v49")
    A(f"s_add_u32 s{S_T0+1}, s{S_T0+1}, 1")
    A(f"s_cbranch_vccz {le}")
    if self.xmode=='xt': A(f"buffer_load_dword v36, v37, s[{SRD_WS}:{SRD_WS+3}], s{S_T0+12} offen sc1")
    for k in range(4):
        A(f"buffer_load_dwordx4 v[{SG+4*k}:{SG+4*k+3}], v43, s[{SRD_WS}:{SRD_WS+3}], s{S_T0+13} offen offset:{16*k} sc1")
    A("s_waitcnt vmcnt(0)")
    A(f"s_cmp_lt_u32 s{S_T0+1}, 0x8000")
    A(f"s_cbranch_scc1 {lp}")
    A(f"{le}:")

@add_method
def flag_wait(self, mask, landed=False):
    A=self.A
    lp=self.lab('Lpoll'); le=self.lab(); lf=self.lab()
    A(f"s_mov_b32 s{S_T0+1}, 0")
    if landed: A(f"s_branch {lf}")
    A(f"{lp}:")
    A("s_waitcnt vmcnt(0)")
    A(f"{lf}:")
    A(f"v_cmp_eq_u32 vcc, s{S_TAG}, v46")
    A(f"s_and_b32 s{S_T0+2}, vcc_lo, {hex(mask)}")
    A(f"s_cmp_eq_u32 s{S_T0+2}, {hex(mask)}")
    A(f"s_cbranch_scc1 {le}")
    A(f"buffer_load_dword v46, v44, s[{SRD_WS}:{SRD_WS+3}], s{S_T0+11} offen sc1")
    A(f"s_add_u32 s{S_T0+1}, s{S_T0+1}, 1")
    A(f"s_cmp_lt_u32 s{S_T0+1}, 0x8000")
    A(f"s_cbranch_scc1 {lp}")
    A(f"{le}:")

@add_method
def xt_loads(self):
    A=self.A; XA=8
    A(f"s_movk_i32 s{S_T0+2}, 7168")
    A(f"v_mul_lo_u32 v48, v{V_T}, s{S_T0+2}")
    A(f"s_lshl_b32 s{S_T0+2}, s{S_D0}, 4")
    A(f"s_add_u32 s{S_T0+2}, s{S_T0+2}, {WS_XT}")
    A(f"buffer_load_dwordx4 v[{XA}:{XA+3}], v48, s[{SRD_WS}:{SRD_WS+3}], s{S_T0+2} offen sc1")
    A(f"buffer_load_dwordx4 v[{XA+4}:{XA+7}], v48, s[{SRD_WS}:{SRD_WS+3}], s{S_T0+2} offen offset:16 sc1")

@add_method
def w1_setup(self):
    A=self.A
    A(f"s_lshl_b32 s{S_T0}, s{S_J}, 2")
    A(f"s_add_u32 s{S_T0}, s{S_T0}, s{S_W}")
    A(f"s_mul_i32 s{S_T0}, s{S_T0}, 56")
    for g in range(4):
        A(f"s_add_u32 s{S_T0+1}, s{S_W}, {g}")
        A(f"s_and_b32 s{S_T0+1}, s{S_T0+1}, 3")
        A(f"s_mul_i32 s{S_T0+1}, s{S_T0+1}, 7")
        A(f"s_add_u32 s{S_T0+1}, s{S_T0+1}, s{S_T0}")
        A(f"s_lshl_b32 s{S_T0+1}, s{S_T0+1}, 10")
        A(f"s_add_u32 s{S_GB+g}, s{S_T0+1}, {WS_WF1}")
        A(f"s_add_u32 s{S_GB2+g}, s{S_GB+g}, {28*1024}")
    A(f"v_lshlrev_b32 v45, 4, v{V_LANE}")
    A(f"v_add_u32 v3, 4096, v45")

@add_method
def w1_items(self, s0, s1):
    out=[]
    for s in range(s0,s1):
        g=s//7; i=s%7
        for t in range(2):
            sb=(S_GB if t==0 else S_GB2)+g
            va,off=("v45",i*1024) if i<4 else ("v3",(i-4)*1024)
            out.append([f"buffer_load_dwordx4 a[{8*s+4*t}:{8*s+4*t+3}], {va}, s[{SRD_WS}:{SRD_WS+3}], s{sb} offen offset:{off} sc1"])
    return out
@add_method
def w1_loads(self, s0, s1):
    for it in self.w1_items(s0,s1):
        for x in it: self.A(x)

@add_method
def x_prepare(self):
    A=self.A
    A("s_waitcnt vmcnt(4)")
    for ch in range(2):
        for j in range(8): A((bf16_lo if ch==0 else bf16_hi)(96+8*ch+j, V_XG+j))
    A(f"s_mov_b32 s{S_T0+2}, 0x05040100")
    A(f"s_mov_b32 s{S_T0+3}, 0x07060302")
    for ch in range(2):
        for j in range(0,8,2):
            A(f"v_perm_b32 v{176+ch*4+j//2}, v{V_XG+j+1}, v{V_XG+j}, s{S_T0+2+ch}")
    A(f"v_lshlrev_b32 v48, 4, v{V_T}")
    A(f"v_add_u32 v42, {LDS_U+512}, v48")
    A(f"v_add_u32 v50, {LDS_XT}, v48")
    A(f"ds_write_b128 v50, v[176:179]")
    A(f"ds_write_b128 v50, v[180:183] offset:{XT_CH}")
    self.w1_setup()

@add_method
def stats_consume(self):
    A=self.A
    SG=144
    for j in range(8):
        A(f"v_lshlrev_b32 v{80+j}, 16, v{SG+2*j}")
        A(f"v_and_b32 v{88+j}, 0xffff0000, v{SG+2*j}")
    for j in range(8): A(f"v_rcp_f32 v{80+j}, v{80+j}")
    for ch in range(2):
        X=96+ch*8
        for j in range(0,8,2):
            A(f"v_pk_add_f32 v[{X+j}:{X+j+1}], v[{X+j}:{X+j+1}], v[{88+j}:{88+j+1}] neg_lo:[0,1] neg_hi:[0,1]")
        if self.mimic>=2:
            for j in range(0,8,2):
                A(f"v_cvt_pk_bf16_f32 v{128+j//2}, v{X+j}, v{X+j+1}")
            for j in range(0,8,2):
                A(bf16_lo(X+j,128+j//2)); A(bf16_hi(X+j+1,128+j//2))
        for j in range(0,8,2):
            A(f"v_pk_mul_f32 v[{X+j}:{X+j+1}], v[{X+j}:{X+j+1}], v[{80+j}:{80+j+1}]")
        if self.mimic>=1:
            for j in range(0,8,2):
                A(f"v_cvt_pk_bf16_f32 v{128+j//2}, v{X+j}, v{X+j+1}")
            for j in range(0,8,2):
                A(bf16_lo(X+j,128+j//2)); A(bf16_hi(X+j+1,128+j//2))
        U=132+ch*4
        for j in range(0,8,2):
            A(f"v_cvt_pk_f16_f32 v{U+j//2}, v{X+j}, v{X+j+1}")
        A(f"ds_write_b128 v42, v[{U}:{U+3}] offset:{ch*U_CH}")
    if self.w1pf: self.flag_load()
    A("s_waitcnt lgkmcnt(0)")
    A("s_barrier")

@add_method
def w1_rest(self):
    self.w1_loads(W1_IN_CONV,28)

@add_method
def wd_loads(self, s0, s1, S=None):
    out=[]
    for s in range(s0,s1):
        for ca in range(2):
            out.append(f"s_add_u32 s{S_T0+14}, s{S_T0+12+ca}, {s*1024}")
            out.append(('vm',f"buffer_load_dwordx4 a[{8*s+4*ca}:{8*s+4*ca+3}], v47, s[{SRD_WS}:{SRD_WS+3}], s{S_T0+14} offen sc1",f"WD{s}"))
    return out

@add_method
def wd_setup(self):
    A=self.A
    A(f"s_cmp_ge_u32 s{S_J}, 7")
    A(f"s_cselect_b32 s{S_T0+14}, 7, 0")
    A(f"s_sub_u32 s{S_T0+14}, s{S_J}, s{S_T0+14}")
    A(f"s_lshl_b32 s{S_T0+14}, s{S_T0+14}, 1")
    for ca in range(2):
        A(f"s_xor_b32 s{S_T0+12+ca}, s{S_NH}, {ca}")
        A(f"s_add_u32 s{S_T0+12+ca}, s{S_T0+12+ca}, s{S_T0+14}")
        A(f"s_mul_i32 s{S_T0+12+ca}, s{S_T0+12+ca}, 112")
        A(f"s_mul_i32 s{S_T0+15}, s{S_W}, 28")
        A(f"s_add_u32 s{S_T0+12+ca}, s{S_T0+12+ca}, s{S_T0+15}")
        A(f"s_lshl_b32 s{S_T0+12+ca}, s{S_T0+12+ca}, 10")
        A(f"s_add_u32 s{S_T0+12+ca}, s{S_T0+12+ca}, {WS_WFD}")
    A(f"v_lshlrev_b32 v47, 4, v{V_LANE}")

W1_PRE=16
W1_IN_CONV=0
C_ACC=64
C_F=[96,160]
C_G=[128,192]
C_VF=34; C_VG=35
C_EU=224; C_EX=232
@add_method
def conv_setup(self):
    A=self.A
    A(f"v_and_b32 v50, 15, v{V_LANE}")
    A(f"v_lshrrev_b32 v51, 4, v{V_LANE}")
    A(f"v_sub_u32 v52, 3, v50")
    A(f"v_and_b32 v52, 3, v52")
    A(f"v_mul_u32_u24 v52, {KX_COPY}, v52")
    A(f"v_lshrrev_b32 v53, 2, v50")
    A(f"v_lshlrev_b32 v53, 3, v53")
    A(f"v_sub_u32 v52, v52, v53")
    A(f"v_lshl_add_u32 v52, v51, 4, v52")
    A(f"s_mul_i32 s{S_T0}, s{S_CH}, {KX_CH}")
    A(f"s_lshl_b32 s{S_T0+1}, s{S_NH}, 8")
    A(f"s_sub_u32 s{S_T0}, s{S_T0}, s{S_T0+1}")
    A(f"s_add_u32 s{S_T0}, s{S_T0}, {LDS_KX+2*2028-64*63}")
    A(f"v_add_u32 v{C_VF}, s{S_T0}, v52")
    A(f"v_lshlrev_b32 v52, 5, v50")
    A(f"v_lshl_add_u32 v52, v51, 4, v52")
    A(f"s_mul_i32 s{S_T0}, s{S_CH}, {U_CH}")
    A(f"s_sub_u32 s{S_T0}, s{S_T0}, s{S_T0+1}")
    A(f"s_add_u32 s{S_T0}, s{S_T0}, {LDS_U+480-192}")
    A(f"v_add_u32 v{C_VG}, s{S_T0}, v52")
    A(f"v_lshlrev_b32 v52, 5, v50")
    A(f"v_lshl_add_u32 v52, v51, 3, v52")
    A(f"s_lshl_b32 s{S_T0}, s{S_NH}, 11")
    A(f"s_mul_i32 s{S_T0+1}, s{S_CH}, {U_CH}")
    A(f"s_add_u32 s{S_T0+1}, s{S_T0+1}, s{S_T0}")
    A(f"s_add_u32 s{S_T0+1}, s{S_T0+1}, {LDS_U+512}")
    A(f"v_add_u32 v36, s{S_T0+1}, v52")
    A(f"s_mul_i32 s{S_T0+1}, s{S_CH}, {XT_CH}")
    A(f"s_add_u32 s{S_T0+1}, s{S_T0+1}, s{S_T0}")
    A(f"s_add_u32 s{S_T0+1}, s{S_T0+1}, {LDS_XT}")
    A(f"v_add_u32 v37, s{S_T0+1}, v52")
    A(f"v_and_b32 v38, 1, v51")
    A(f"v_lshlrev_b32 v38, 3, v38")
    A(f"v_lshrrev_b32 v53, 1, v50")
    A(f"v_add_u32 v38, v38, v53")
    A(f"s_movk_i32 s{S_T0+8}, {448*64}")
    A(f"v_mul_lo_u32 v38, v38, s{S_T0+8}")
    A(f"v_and_b32 v53, 1, v50")
    A(f"v_lshl_add_u32 v38, v53, 5, v38")
    A(f"v_lshrrev_b32 v53, 1, v51")
    A(f"v_lshl_add_u32 v38, v53, 4, v38")
    A(f"s_lshl_b32 s{S_T0+8}, s{S_NH}, 5")
    A(f"s_mul_i32 s{S_T0+8}, s{S_T0+8}, {448*64}")
    A(f"s_add_u32 s{S_T0+9}, s{S_D0}, s{S_CH}")
    A(f"s_lshl_b32 s{S_T0+9}, s{S_T0+9}, 6")
    A(f"s_add_u32 s{S_T0+8}, s{S_T0+8}, s{S_T0+9}")
    A(f"s_add_u32 s22, s{S_T0+8}, {WS_HT}")
    A(f"s_add_u32 s23, s22, {16*448*64}")

@add_method
def conv(self):
    A=self.A
    def loads(sp):
        st=sp&1; out=[]
        for k in range(8):
            g=C_G[st]+4*k; f=C_F[st]+4*k
            out.append(f"ds_read_b128 v[{g}:{g+3}], v{C_VG} offset:{512*k+64*(3-sp)}")
            o=64*(63-8*k-sp)
            out.append(f"ds_read_b64 v[{f}:{f+1}], v{C_VF} offset:{o}")
            out.append(f"ds_read_b64 v[{f+2}:{f+3}], v{C_VF} offset:{o+8}")
        return out
    def mfmas(sp):
        st=sp&1; out=[]
        for t in range(8):
            for d in range(t+1):
                acc=C_ACC+4*t
                c = "0" if (sp==0 and d==0) else f"v[{acc}:{acc+3}]"
                out.append((t,d,f"v_mfma_f32_16x16x32_f16 v[{acc}:{acc+3}], v[{C_F[st]+4*d}:{C_F[st]+4*d+3}], v[{C_G[st]+4*(t-d)}:{C_G[st]+4*(t-d)+3}], {c}"))
        return out
    l0=loads(0)
    for k in range(5):
        for x in l0[3*k:3*k+3]: A(x)
    issued=5
    wl=self.w1_items(0,W1_IN_CONV); wi=[0]; mc=[0]
    def wfill():
        mc[0]+=1
        if mc[0]%4==2 and wi[0]<len(wl):
            for x in wl[wi[0]]: A(x)
            wi[0]+=1
    nxt=loads(1); ni=0
    cur_t=-1
    for (t,d,txt) in mfmas(0):
        first = (t!=cur_t)
        if first:
            cur_t=t
            if t<=3: A(f"s_waitcnt lgkmcnt({3*(issued-1-t)})")
            elif t==4: A("s_waitcnt lgkmcnt(0)")
        A(txt)
        if first and issued<8:
            for x in l0[3*issued:3*issued+3]: A(x)
            issued+=1
        elif t>=4 and ni<len(nxt):
            A(nxt[ni]); ni+=1
    assert ni==len(nxt)

    epi=[]
    for tt in range(4):
        epi.append(f"ds_read_b64 v[{C_EU+2*tt}:{C_EU+2*tt+1}], v36 offset:{512*tt}")
        epi.append(f"ds_read_b64 v[{C_EX+2*tt}:{C_EX+2*tt+1}], v37 offset:{512*tt}")
    U=224; X=240
    PRE=160
    PRE=96
    UU=112
    pre=[]
    if self.mimic==0:
        pre.append(f"v_mov_b32 v47, s{S_DSKV}")
        for tt in range(4):
            for h in range(2):
                pre.append(f"v_cvt_f32_f16 v{UU+4*tt+2*h}, v{C_EU+2*tt+h}")
                pre.append(f"v_lshrrev_b32 v{UU+4*tt+2*h+1}, 16, v{C_EU+2*tt+h}")
                pre.append(f"v_cvt_f32_f16 v{UU+4*tt+2*h+1}, v{UU+4*tt+2*h+1}")
                pre.append(bf16_lo(PRE+4*tt+2*h, C_EX+2*tt+h)); pre.append(bf16_hi(PRE+4*tt+2*h+1, C_EX+2*tt+h))
        for r in range(16): pre.append(f"v_fma_f32 v{PRE+r}, v{UU+r}, v47, v{PRE+r}")
    for sp in range(1,4):
        if self.w1pf and sp==self.w1pf:
            lpf=self.lab()
            A("s_waitcnt vmcnt(0)")
            A(f"v_cmp_eq_u32 vcc, s{S_TAG}, v46")
            A(f"s_and_b32 s{S_T0+2}, vcc_lo, 0x3fff")
            A(f"s_cmp_eq_u32 s{S_T0+2}, 0x3fff")
            A(f"s_cbranch_scc0 {lpf}")
            A(f"s_lshl_b32 s{S_T0+2}, s{S_J}, 2")
            A(f"s_add_u32 s{S_T0+2}, s{S_T0+2}, s{S_W}")
            A(f"s_mul_i32 s{S_T0+2}, s{S_T0+2}, {56*1024}")
            A(f"s_and_b32 s{S_T0+3}, s{S_I}, 3")
            A(f"s_mul_i32 s{S_T0+3}, s{S_T0+3}, {14*1024}")
            A(f"s_add_u32 s{S_T0+2}, s{S_T0+2}, s{S_T0+3}")
            A(f"s_add_u32 s{S_T0+2}, s{S_T0+2}, {WS_WF1}")
            A(f"v_min_u32 v40, 55, v{V_LANE}")
            A(f"v_lshlrev_b32 v40, 7, v40")
            A(f"buffer_load_dword v253, v40, s[{SRD_WS}:{SRD_WS+3}], s{S_T0+2} offen sc1")
            A(f"s_add_u32 s{S_T0+2}, s{S_T0+2}, {7*1024}")
            A(f"buffer_load_dword v252, v40, s[{SRD_WS}:{SRD_WS+3}], s{S_T0+2} offen sc1")
            A(f"{lpf}:")
        A("s_waitcnt lgkmcnt(0)")
        nxt = loads(sp+1) if sp<3 else epi
        ni=0; pi=0; k=0
        for (t,d,txt) in mfmas(sp):
            A(txt); k+=1
            if ni<len(nxt): A(nxt[ni]); ni+=1
            elif sp==3 and pre:
                if k==12: A("s_waitcnt lgkmcnt(0)")
                if k>=12:
                    tgt=min(len(pre),(len(pre)*(k-11)+23)//24)
                    while pi<tgt: A(pre[pi]); pi+=1
            wfill()
        if sp==3:
            while pi<len(pre): A(pre[pi]); pi+=1
    assert wi[0]==len(wl)
    A(f"s_lshl_b32 s{S_T0}, s{S_W}, 12")
    A(f"v_lshl_add_u32 v55, v{V_LANE}, 4, s{S_T0}")
    if self.mimic==0:
        lA=self.lab(); lB=self.lab()
        A(f"s_cmp_eq_u32 s{S_NH}, 0")
        A(f"s_cbranch_scc0 {lA}")
        A("s_nop 5")
        for tt in range(4): A(f"ds_write_b128 v55, v[{C_ACC+16+4*tt}:{C_ACC+16+4*tt+3}] offset:{1024*tt}")
        A(f"s_branch {lB}")
        A(f"{lA}:")
        A("s_nop 5")
        for tt in range(4): A(f"ds_write_b128 v55, v[{C_ACC+4*tt}:{C_ACC+4*tt+3}] offset:{1024*tt}")
        A(f"{lB}:")
        A("v_xor_b32 v55, 4096, v55")
        A(f"v_mov_b32 v146, s{S_YS}\nv_mov_b32 v147, s{S_YS}")
        A("s_waitcnt lgkmcnt(0)")
        A("s_barrier")
        PT=128
        for tt in range(4): A(f"ds_read_b128 v[{PT+4*tt}:{PT+4*tt+3}], v55 offset:{1024*tt}")
        def fin(Y):
            for tt in range(4):
                A(f"s_waitcnt lgkmcnt({3-tt})")
                for p in (2*tt,2*tt+1):
                    A(f"v_pk_add_f32 v[{PT+2*p}:{PT+2*p+1}], v[{Y+2*p}:{Y+2*p+1}], v[{PT+2*p}:{PT+2*p+1}]")
                for p in (2*tt,2*tt+1):
                    A(f"v_pk_fma_f32 v[{PT+2*p}:{PT+2*p+1}], v[{PT+2*p}:{PT+2*p+1}], v[146:147], v[{PRE+2*p}:{PRE+2*p+1}]")
        lA=self.lab(); lB=self.lab()
        A(f"s_cmp_eq_u32 s{S_NH}, 0")
        A(f"s_cbranch_scc0 {lA}")
        fin(C_ACC)
        A(f"s_branch {lB}")
        A(f"{lA}:")
        fin(C_ACC+16)
        A(f"{lB}:")
        Y=PT
    else:
        l=self.lab()
        A(f"s_cmp_eq_u32 s{S_NH}, 0")
        A(f"s_cbranch_scc1 {l}")
        A("s_nop 7")
        for r in range(16): A(f"v_swap_b32 v{C_ACC+r}, v{C_ACC+16+r}")
        A(f"{l}:")
        A("s_nop 7")
        for tt in range(4): A(f"ds_write_b128 v55, v[{C_ACC+16+4*tt}:{C_ACC+16+4*tt+3}] offset:{1024*tt}")
        A("v_xor_b32 v55, 4096, v55")
        A("s_waitcnt lgkmcnt(0)")
        A("s_barrier")
    if self.mimic==0: pass
    else:
        for tt in range(4): A(f"ds_read_b128 v[{96+4*tt}:{96+4*tt+3}], v55 offset:{1024*tt}")
        U=112; X=128; Y=C_ACC
        for tt in range(4):
            for h in range(2):
                A(f"v_cvt_f32_f16 v{U+4*tt+2*h}, v{C_EU+2*tt+h}")
                A(f"v_cvt_f32_f16_sdwa v{U+4*tt+2*h+1}, v{C_EU+2*tt+h} dst_sel:DWORD dst_unused:UNUSED_PAD src0_sel:WORD_1")
                A(bf16_lo(X+4*tt+2*h, C_EX+2*tt+h)); A(bf16_hi(X+4*tt+2*h+1, C_EX+2*tt+h))
        A(f"v_mov_b32 v144, s{S_DSKV}\nv_mov_b32 v145, s{S_DSKV}\nv_mov_b32 v146, s{S_YS}\nv_mov_b32 v147, s{S_YS}")
        for p in range(8):
            A(f"v_pk_mul_f32 v[{U+2*p}:{U+2*p+1}], v[{U+2*p}:{U+2*p+1}], v[144:145]")
        if self.mimic>=1:
            for p in range(8): A(f"v_cvt_pk_bf16_f32 v{148+p}, v{U+2*p}, v{U+2*p+1}")
            for p in range(8): A(bf16_lo(U+2*p,148+p)); A(bf16_hi(U+2*p+1,148+p))
        A("s_waitcnt lgkmcnt(0)")
        for p in range(8):
            A(f"v_pk_add_f32 v[{Y+2*p}:{Y+2*p+1}], v[{Y+2*p}:{Y+2*p+1}], v[{96+2*p}:{96+2*p+1}]")
        for p in range(8):
            A(f"v_pk_mul_f32 v[{Y+2*p}:{Y+2*p+1}], v[{Y+2*p}:{Y+2*p+1}], v[146:147]")
        if self.mimic>=1:
            for p in range(8): A(f"v_cvt_pk_bf16_f32 v{148+p}, v{Y+2*p}, v{Y+2*p+1}")
            for p in range(8): A(bf16_lo(Y+2*p,148+p)); A(bf16_hi(Y+2*p+1,148+p))
        for p in range(8):
            A(f"v_pk_add_f32 v[{Y+2*p}:{Y+2*p+1}], v[{Y+2*p}:{Y+2*p+1}], v[{U+2*p}:{U+2*p+1}]")
        if self.mimic>=1:
            for p in range(8): A(f"v_cvt_pk_bf16_f32 v{148+p}, v{Y+2*p}, v{Y+2*p+1}")
            for p in range(8): A(bf16_lo(Y+2*p,148+p)); A(bf16_hi(Y+2*p+1,148+p))
        for p in range(8):
            A(f"v_pk_add_f32 v[{Y+2*p}:{Y+2*p+1}], v[{Y+2*p}:{Y+2*p+1}], v[{X+2*p}:{X+2*p+1}]")
    H=148
    for p in range(8): A(f"v_cvt_pk_bf16_f32 v{H+p}, v{Y+2*p}, v{Y+2*p+1}")
    for pr in range(2):
        b=H+4*pr
        A(f"v_permlane16_swap_b32 v{b}, v{b+2}")
        A(f"v_permlane16_swap_b32 v{b+1}, v{b+3}")
    A(f"buffer_store_dwordx4 v[{H}:{H+3}], v38, s[{SRD_WS}:{SRD_WS+3}], s22 offen sc1")
    A(f"buffer_store_dwordx4 v[{H+4}:{H+7}], v38, s[{SRD_WS}:{SRD_WS+3}], s23 offen sc1")

@add_method
def sync_all(self):
    A=self.A
    self.flag_load()
    A("s_waitcnt vmcnt(0)")
    A("s_barrier")
    l=self.lab()
    A(f"s_cmp_lg_u32 s{S_W}, 0")
    A(f"s_cbranch_scc1 {l}")
    A(f"s_and_b32 s{S_T0}, s{S_WG}, 7")
    A(f"s_lshl_b32 s{S_T0}, s{S_T0}, 7")
    A(f"s_add_u32 s{S_T0}, s{S_T0}, {WS_CNT2}")
    A(f"v_lshlrev_b32 v48, 10, v{V_LANE}")
    A("v_mov_b32 v49, 1")
    A("s_mov_b64 exec, 0xff")
    A(f"buffer_atomic_add v49, v48, s[{SRD_WS}:{SRD_WS+3}], s{S_T0} offen")
    A("s_mov_b64 exec, -1")
    A(f"{l}:")

@add_method
def sync_all_wait(self, sleep=0, presleep=0):
    A=self.A
    l=self.lab(); lp=self.lab('Lpoll'); le=self.lab()
    A(f"s_cmp_lg_u32 s{S_W}, 0")
    A(f"s_cbranch_scc1 {l}")
    A(f"s_lshr_b32 s{S_T0}, s{S_WG}, 3")
    A(f"s_and_b32 s{S_T0}, s{S_T0}, 7")
    A(f"s_lshl_b32 s{S_T0}, s{S_T0}, 10")
    A(f"s_add_u32 s{S_T0}, s{S_T0}, {WS_CNT2}")
    A(f"v_and_b32 v48, 7, v{V_LANE}")
    A(f"v_lshlrev_b32 v48, 7, v48")
    A(f"s_mov_b32 s{S_T0+1}, 0")
    if self.pp:
        A(f"buffer_load_dword v252, v48, s[{SRD_WS}:{SRD_WS+3}], s{S_T0} offen sc1")
        A(f"{lp}:")
        for a_,b_ in ((253,252),(252,253)):
            A(f"buffer_load_dword v{a_}, v48, s[{SRD_WS}:{SRD_WS+3}], s{S_T0} offen sc1")
            A("s_waitcnt vmcnt(1)")
            A(f"v_cmp_gt_u32 vcc, 28, v{b_}")
            A(f"s_cbranch_vccz {le}")
        A(f"s_add_u32 s{S_T0+1}, s{S_T0+1}, 1")
        A(f"s_cmp_lt_u32 s{S_T0+1}, 0x4000")
        A(f"s_cbranch_scc1 {lp}")
    else:
        A(f"{lp}:")
        A(f"buffer_load_dword v49, v48, s[{SRD_WS}:{SRD_WS+3}], s{S_T0} offen sc1")
        A("s_waitcnt vmcnt(0)")
        A("v_cmp_gt_u32 vcc, 28, v49")
        A(f"s_add_u32 s{S_T0+1}, s{S_T0+1}, 1")
        A(f"s_cbranch_vccz {le}")
        if sleep: A(f"s_sleep {sleep}")
        A(f"s_cmp_lt_u32 s{S_T0+1}, 0x8000")
        A(f"s_cbranch_scc1 {lp}")
    A(f"{le}:")
    A(f"{l}:")
    A("s_barrier")

class Stream:
    def __init__(self, A):
        self.A=A; self.lds=[]; self.vm=[]
    def ds(self, text, tag=None):
        self.A(text); self.lds.append(tag)
    def vmem(self, text, tag=None):
        self.A(text); self.vm.append(tag)
    def need_lds(self, tags):
        idx=-1
        for t in tags:
            if t in self.lds: idx=max(idx, len(self.lds)-1-self.lds[::-1].index(t))
        if idx>=0:
            n=len(self.lds)-idx-1
            n=min(n,15)
            self.A(f"s_waitcnt lgkmcnt({n})")
            self.lds=self.lds[len(self.lds)-n:] if n>0 else []
    def need_vm(self, tags):
        idx=-1
        for t in tags:
            if t in self.vm: idx=max(idx, len(self.vm)-1-self.vm[::-1].index(t))
        if idx>=0:
            n=len(self.vm)-idx-1
            n=min(n,63)
            self.A(f"s_waitcnt vmcnt({n})")
            self.vm=self.vm[len(self.vm)-n:] if n>0 else []
    def item(self, it):
        if isinstance(it,str): self.A(it)
        elif it[0]=='ds': self.ds(it[1],it[2])
        elif it[0]=='vm': self.vmem(it[1],it[2])
        elif it[0]=='needl': self.need_lds(it[1])
        elif it[0]=='needv': self.need_vm(it[1])

G_ACC=[64,96]; G_CS=128; G_RING=160; G_SB=184; G_VB=56; G_ST=54; G_ET=60; G_PK=232; G_R2=250; G_MU=240; G_C1=244
LDS_ST=114688
@add_method
def cs_mfma(self, s0, s1, init=True):
    A=self.A
    if s0==0 and init:
        for k in range(4): A(f"v_mov_b32 v{48+k}, 0x3f803f80")
    for s in range(s0,s1):
        for t in range(2):
            d=G_CS+16*t
            c="0" if s==0 else f"v[{d}:{d+15}]"
            A(f"v_mfma_f32_32x32x16_bf16 v[{d}:{d+15}], a[{8*s+4*t}:{8*s+4*t+3}], v[48:51], {c}")

def wd_loc(sig, ca):
    if sig<5: return ('v', 4+8*sig+4*ca)
    if sig<9: return ('a', 224+8*(sig-5)+4*ca)
    if sig<14: return ('v', 192+8*(sig-9)+4*ca)
    return ('a', 8*(sig-14)+4*ca)

@add_method
def wd_item(self, sig, ca):
    k,r=wd_loc(sig,ca)
    it=[]
    if sig%8==0 and sig>0: it.append(f"s_add_u32 s{S_T0+12+ca}, s{S_T0+12+ca}, 8192")
    va,off=("v48",(sig%8)*1024) if sig%8<4 else ("v3",(sig%8-4)*1024)
    it.append(('vm',f"buffer_load_dwordx4 {k}[{r}:{r+3}], {va}, s[{SRD_WS}:{SRD_WS+3}], s{S_T0+12+ca} offen offset:{off} sc1",f"WD{sig}"))
    return it

PF=4
@add_method
def gemm1(self):
    A=self.A; S=Stream(A); self.S=S
    A(f"s_mul_i32 s{S_T0}, s{S_I}, {4*28672}")
    A(f"s_mul_i32 s{S_T0+1}, s{S_W}, 7168")
    A(f"s_add_u32 s{S_T0}, s{S_T0}, s{S_T0+1}")
    A(f"s_add_u32 s{S_T0}, s{S_T0}, {WS_HT}")
    A(f"v_lshlrev_b32 v48, 4, v{V_LANE}")
    A(f"v_add_u32 v3, 4096, v48")
    def xdma(lt,k):
        base=lt*28672+(k//4)*4096
        it=[]
        if k%4==0: it+=[f"s_add_u32 s{S_T0+2}, s{S_T0}, {base}", f"s_add_u32 m0, s{S_T0+1}, {base}"]
        it.append(('vm',f"buffer_load_dwordx4 v48, s[{SRD_WS}:{SRD_WS+3}], s{S_T0+2} offen offset:{(k%4)*1024} sc1 lds", f"X{lt}"))
        return it
    for lt in range(2):
        for k in range(7):
            for it in xdma(lt,k): S.item(it)
    self.wd_setup()
    self.wdflag_load(S)
    A(f"s_lshl_b32 s{S_T0+3}, s{S_J}, 2")
    A(f"s_add_u32 s{S_T0+3}, s{S_T0+3}, s{S_W}")
    A(f"s_mul_i32 s{S_T0+3}, s{S_T0+3}, {2*896}")
    A(f"s_add_u32 s{S_T0+3}, s{S_T0+3}, {WS_CS}")
    A(f"v_lshrrev_b32 v50, 5, v{V_LANE}")
    A(f"v_mul_u32_u24 v50, 896, v50")
    A(f"v_and_b32 v51, 31, v{V_LANE}")
    A(f"v_lshl_add_u32 v50, v51, 2, v50")
    for g in range(7):
        S.vmem(f"buffer_load_dword v{184+g}, v50, s[{SRD_WS}:{SRD_WS+3}], s{S_T0+3} offen offset:{g*128} sc1","CSP")
    A(f"s_lshl_b32 s{S_T0+3}, s{S_W}, 8")
    A(f"s_add_u32 s{S_T0+3}, s{S_T0+3}, {LDS_ST+2048}")
    A(f"v_lshl_add_u32 v191, v{V_LANE}, 2, s{S_T0+3}")
    A(f"v_lshrrev_b32 v55, 5, v{V_LANE}")
    A(f"v_lshlrev_b32 v55, 4, v55")
    A(f"v_add_u32 v55, s{S_T0+3}, v55")
    A(f"v_lshrrev_b32 v50, 5, v{V_LANE}")
    A(f"v_lshlrev_b32 v50, 9, v50")
    A(f"v_bfe_u32 v51, v{V_LANE}, 2, 2")
    A(f"v_lshl_add_u32 v50, v51, 6, v50")
    A(f"v_bfe_u32 v51, v{V_LANE}, 4, 1")
    A(f"v_lshl_add_u32 v50, v51, 5, v50")
    A(f"v_and_b32 v51, 3, v{V_LANE}")
    A(f"v_lshl_add_u32 v50, v51, 3, v50")
    for g in range(4):
        A(f"s_add_u32 s{S_T0+3}, s{S_W}, {g}")
        A(f"s_and_b32 s{S_T0+3}, s{S_T0+3}, 3")
        A(f"s_sub_u32 s{S_T0+3}, s{S_T0+3}, {g}")
        A(f"s_mul_i32 s{S_T0+3}, s{S_T0+3}, 7168")
        A(f"v_add_u32 v{G_VB+g}, s{S_T0+3}, v50")
    A(f"v_and_b32 v52, 31, v{V_LANE}")
    A(f"v_lshlrev_b32 v52, 3, v52")
    A(f"s_lshl_b32 s{S_T0+10}, s{S_I}, 10")
    A(f"s_add_u32 s{S_T0+10}, s{S_T0+10}, {WS_ST2}")
    A(f"s_lshl_b32 s{S_T0+4}, s{S_I}, 2")
    A(f"s_mul_i32 s{S_T0+4}, s{S_T0+4}, 112")
    A(f"s_lshl_b32 s{S_T0+5}, s{S_J}, 3")
    A(f"s_add_u32 s{S_T0+4}, s{S_T0+4}, s{S_T0+5}")
    A(f"s_lshl_b32 s{S_T0+5}, s{S_W}, 1")
    A(f"s_add_u32 s{S_T0+4}, s{S_T0+4}, s{S_T0+5}")
    A(f"s_lshl_b32 s{S_T0+4}, s{S_T0+4}, 10")
    A(f"s_add_u32 s{S_T0+4}, s{S_T0+4}, {WS_M}")
    SM=S_T0+4
    RING=[G_RING+4*k for k in range(6)]
    def breg(p,s): return RING[(28*p+s)%6]
    def bload(p,s):
        r=breg(p,s); vb=G_VB+s//7
        return [('ds',f"ds_read_b64_tr_b16 v[{r}:{r+1}], v{vb} offset:{s*1024}",f"B{p}_{s}a"),
                ('ds',f"ds_read_b64_tr_b16 v[{r+2}:{r+3}], v{vb} offset:{s*1024+256}",f"B{p}_{s}b")]
    SG2=G_SB
    def stats_loads():
        it=[]
        for p in range(4):
            it.append(('vm',f"buffer_load_dwordx2 v[{SG2+2*p}:{SG2+2*p+1}], v52, s[{SRD_WS}:{SRD_WS+3}], s{S_T0+10} offen offset:{p*256} sc1","ST2"))
        return it
    def stats_check():
        lp=self.lab('Lpoll'); le=self.lab()
        S.need_vm(["ST2"])
        A(f"s_mov_b32 s{S_T0+8}, 0")
        A(f"{lp}:")
        A(f"v_xor_b32 v53, s{S_TAG}, v{SG2+1}")
        for p in range(1,4):
            A(f"v_xor_b32 v54, s{S_TAG}, v{SG2+2*p+1}")
            A(f"v_or_b32 v53, v53, v54")
        A("v_cmp_ne_u32 vcc, 0, v53")
        A(f"s_add_u32 s{S_T0+8}, s{S_T0+8}, 1")
        A(f"s_cbranch_vccz {le}")
        for p in range(4):
            A(f"buffer_load_dwordx2 v[{SG2+2*p}:{SG2+2*p+1}], v52, s[{SRD_WS}:{SRD_WS+3}], s{S_T0+10} offen offset:{p*256} sc1")
        A("s_waitcnt vmcnt(0)")
        A(f"s_cmp_lt_u32 s{S_T0+8}, 0x8000")
        A(f"s_cbranch_scc1 {lp}")
        A(f"{le}:")
    def stats_final(p):
        g=SG2+2*p; T=G_ST
        return [f"v_and_b32 v{G_MU+p}, 0xffff0000, v{g}",
                f"v_lshlrev_b32 v{T}, 16, v{g}",
                f"v_rcp_f32 v{T}, v{T}",
                f"s_nop 0",
                f"v_mul_f32 v{G_C1+p}, {fl(-LOG2E)}, v{T}",
                f"v_mul_f32 v{G_R2+p}, v{T}, v{T}"]
    def epi_items(p):
        acc=G_ACC[p&1]; it=[]; E=G_ET; mu=G_MU+p; c1=G_C1+p
        for r0 in range(0,16,4):
            rs=range(r0,r0+4)
            for r in rs: it.append(f"v_fma_f32 v{acc+r}, -v{mu}, v{G_CS+r}, v{acc+r}")
            for r in rs: it.append(f"v_fma_f32 v{acc+16+r}, -v{mu}, v{G_CS+16+r}, v{acc+16+r}")
            for r in rs: it.append(f"v_mul_f32 v{E+(r&3)}, v{c1}, v{acc+r}")
            for r in rs: it.append(f"v_exp_f32 v{E+(r&3)}, v{E+(r&3)}")
            for r in rs: it.append(f"v_mul_f32 v{acc+r}, v{acc+r}, v{acc+16+r}")
            for r in rs: it.append(f"v_add_f32 v{E+(r&3)}, 1.0, v{E+(r&3)}")
            for r in rs: it.append(f"v_rcp_f32 v{E+(r&3)}, v{E+(r&3)}")
            for r in rs: it.append(f"v_mul_f32 v{acc+r}, v{acc+r}, v{E+(r&3)}")
            q=r0//4
            it.append(f"v_cvt_pk_bf16_f32 v{G_PK+2*q}, v{acc+r0}, v{acc+r0+1}")
            it.append(f"v_cvt_pk_bf16_f32 v{G_PK+2*q+1}, v{acc+r0+2}, v{acc+r0+3}")
            if q==1 or q==3:
                h=q//2
                if h==0: it.append(f"s_add_u32 s{SM+1}, s{SM}, {p*112*1024}")
                it.append(('vm',f"buffer_store_dwordx4 v[{G_PK+4*h}:{G_PK+4*h+3}], v48, s[{SRD_WS}:{SRD_WS+3}], s{SM+1} offen offset:{h*1024} sc1",f"M{p}_{h}"))
        return it
    vmx={0:[],1:[],2:[],3:[]}
    wr=self.w1_items(W1_PRE,28)
    for n,it in enumerate(wr):
        sl=W1_PRE+n//2
        vmx[0].append((n//2, [('vm',it[0],f"W{sl}")]))
    k=0
    for lt in (2,3):
        for q in range(7):
            vmx[0].append((min(27,len(wr)//2+k), xdma(lt,q))); k+=1
    csit=[('needv',["CSP"])]
    for g in range(1,7): csit.append(f"v_add_f32 v184, v184, v{184+g}")
    csit.append(('ds',"ds_write_b32 v191, v184","CSW"))
    for t in range(2):
        for q in range(4):
            csit.append(('ds',f"ds_read_b128 v[{G_CS+16*t+4*q}:{G_CS+16*t+4*q+3}], v55 offset:{t*128+q*32}","CSR"))
    n=0
    for sig in range(5):
        for ca in range(2): vmx[1].append((9+(18*n)//10, self.wd_item(sig,ca))); n+=1
    n=0
    for sig in range(5,14):
        for ca in range(2): vmx[2].append((1+(26*n)//18, self.wd_item(sig,ca))); n+=1
    for n in range(28): vmx[3].append((n, self.wd_item(14+n//2, n%2)))
    S.need_vm(["X0"])
    A("s_barrier")
    self.stamp('x0')
    for s in range(PF):
        for it in bload(0,s): S.item(it)
    BAR=16; csi=[0]
    ST_LOAD=2; ST_CHK=8
    for p in range(4):
        acc=G_ACC[p&1]
        ep=epi_items(p-1) if p>0 else []
        e0=1
        if p==1:
            while csi[0]<len(csit): S.item(csit[csi[0]]); csi[0]+=1
            ep=[('needl',["CSR"])]+sum((stats_final(q) for q in range(4)),[])+ep
            e0=ST_CHK+1
        epi=0
        def cost(it):
            if isinstance(it,tuple):
                return {'ds':5,'vm':20}.get(it[0],1)
            m=it.split()[0]
            if m in ('v_exp_f32','v_rcp_f32','v_sqrt_f32'): return 8.6
            if m.startswith('s_'): return 3
            return 4.3
        fixed=[0.0]*56
        for g_ in range(56):
            sl_,t_=g_//2,g_%2
            fixed[g_]+=5
            if t_==1:
                for (sl,items) in vmx[p]:
                    if sl==sl_: fixed[g_]+=sum(cost(x) for x in items)
            if t_==0 and sl_%2==0: fixed[g_]+=3
        g0=2*e0
        tot=sum(cost(x) for x in ep)
        quota=[0]*56
        if ep:
            lo,hi=0.0,200.0
            for _ in range(30):
                mid=(lo+hi)/2
                if sum(max(0.0,mid-fixed[g_]) for g_ in range(g0,56))>=tot+25: hi=mid
                else: lo=mid
            quota=[max(0.0,hi-fixed[g_]) if g_>=g0 else 0.0 for g_ in range(56)]
        carry=0.0
        for s in range(28):
            if s%2==0: S.need_lds([f"B{p}_{s}a",f"B{p}_{s}b",f"B{p}_{s+1}a",f"B{p}_{s+1}b"])
            if p==0 and s>=W1_PRE and s%2==0: S.need_vm([f"W{s}",f"W{s+1}"])
            if p==0 and s>=18 and csi[0]<len(csit):
                for _ in range(2):
                    if csi[0]<len(csit): S.item(csit[csi[0]]); csi[0]+=1
            r=breg(p,s)
            for t in range(2):
                d=acc+16*t
                c="0" if s==0 else f"v[{d}:{d+15}]"
                A(f"v_mfma_f32_32x32x16_bf16 v[{d}:{d+15}], a[{8*s+4*t}:{8*s+4*t+3}], v[{r}:{r+3}], {c}")
                ns=s+PF
                if ns<28: S.item(bload(p,ns)[t])
                elif p<3: S.item(bload(p+1,ns-28)[t])
                gap=2*s+t
                if t==1:
                    for (sl,items) in vmx[p]:
                        if sl==s:
                            for it in items: S.item(it)
                if self.costsched:
                    carry+=quota[gap]
                    while epi<len(ep) and cost(ep[epi])<=carry+1.0:
                        carry-=cost(ep[epi]); S.item(ep[epi]); epi+=1
                elif s>=e0 and ep:
                    ng=2*(28-e0)-1
                    tgt=min(len(ep),(len(ep)*(gap-2*e0+1)+ng-1)//ng)
                    while epi<tgt: S.item(ep[epi]); epi+=1
            if p==1 and s==ST_LOAD:
                for it in stats_loads(): S.item(it)
            if p==1 and s==ST_CHK: stats_check()
            if p<3 and s in (6-PF,13-PF,20-PF,27-PF):
                g={6-PF:0,13-PF:1,20-PF:2,27-PF:3}[s]
                A(f"v_add_u32 v{G_VB+g}, 28672, v{G_VB+g}")
            if s==BAR:
                if p<3: S.need_vm([f"X{p+1}"])
                if p==0: self.wdflag_check(S)
                if p==3: S.need_vm(["M1_1"])
                A("s_barrier")
                if p==3:
                    l=self.lab()
                    A(f"s_cmp_lg_u32 s{S_W}, 0")
                    A(f"s_cbranch_scc1 {l}")
                    A(f"s_lshl_b32 s{S_T0+2}, s{S_I}, 7")
                    A(f"s_add_u32 s{S_T0+2}, s{S_T0+2}, {WS_CNT3}")
                    A("v_mov_b32 v55, 1")
                    A("s_mov_b64 exec, 1")
                    A(f"buffer_atomic_add v55, v{V_ZERO}, s[{SRD_WS}:{SRD_WS+3}], s{S_T0+2} offen")
                    A("s_mov_b64 exec, -1")
                    A(f"{l}:")
        while epi<len(ep): S.item(ep[epi]); epi+=1
        if self.ts and (self.tsonly is None or f'pass{p}' in self.tsonly):
            self.stamp(f'pass{p}'); S.lds=[]
    A(f"s_lshl_b32 s{S_T0+2}, s{S_I}, 7")
    A(f"s_add_u32 s{S_T0+2}, s{S_T0+2}, {WS_CNT3}")
    S.vmem(f"buffer_load_dword v55, v{V_ZERO}, s[{SRD_WS}:{SRD_WS+3}], s{S_T0+2} offen sc1","pollE")
    A("s_nop 7")
    acc=G_ACC[1]; E=G_ET
    A(f"v_mov_b32 v184, v{G_MU+3}")
    A(f"v_mov_b32 v186, v{G_C1+3}")
    for r0 in range(0,16,4):
        for r in (r0,r0+2): A(f"v_pk_fma_f32 v[{acc+r}:{acc+r+1}], v[{G_CS+r}:{G_CS+r+1}], v[184:185], v[{acc+r}:{acc+r+1}] op_sel_hi:[1,0,1] neg_lo:[0,1,0] neg_hi:[0,1,0]")
        for r in (r0,r0+2): A(f"v_pk_fma_f32 v[{acc+16+r}:{acc+16+r+1}], v[{G_CS+16+r}:{G_CS+16+r+1}], v[184:185], v[{acc+16+r}:{acc+16+r+1}] op_sel_hi:[1,0,1] neg_lo:[0,1,0] neg_hi:[0,1,0]")
        for r in (r0,r0+2): A(f"v_pk_mul_f32 v[{E+(r&3)}:{E+(r&3)+1}], v[{acc+r}:{acc+r+1}], v[186:187] op_sel_hi:[1,0]")
        for r in range(4): A(f"v_exp_f32 v{E+r}, v{E+r}")
        for r in (r0,r0+2): A(f"v_pk_mul_f32 v[{acc+r}:{acc+r+1}], v[{acc+r}:{acc+r+1}], v[{acc+16+r}:{acc+16+r+1}]")
        for r in (0,2): A(f"v_pk_add_f32 v[{E+r}:{E+r+1}], v[{E+r}:{E+r+1}], 1.0 op_sel_hi:[1,0]")
        for r in range(4): A(f"v_rcp_f32 v{E+r}, v{E+r}")
        for r in (r0,r0+2): A(f"v_pk_mul_f32 v[{acc+r}:{acc+r+1}], v[{acc+r}:{acc+r+1}], v[{E+(r&3)}:{E+(r&3)+1}]")
        q=r0//4
        A(f"v_cvt_pk_bf16_f32 v{G_PK+2*q}, v{acc+r0}, v{acc+r0+1}")
        A(f"v_cvt_pk_bf16_f32 v{G_PK+2*q+1}, v{acc+r0+2}, v{acc+r0+3}")
        if q in (1,3):
            h=q//2
            if h==0: A(f"s_add_u32 s{SM+1}, s{SM}, {3*112*1024}")
            S.vmem(f"buffer_store_dwordx4 v[{G_PK+4*h}:{G_PK+4*h+3}], v48, s[{SRD_WS}:{SRD_WS+3}], s{SM+1} offen offset:{h*1024} sc1",f"M3_{h}")

H_ACC=64
H_RING=128
NRING=16
LDS_RED=0
LDS_RES=49152
@add_method
def gemm2(self):
    A=self.A; S=self.S
    A(f"s_cmp_ge_u32 s{S_J}, 7")
    A(f"s_cselect_b32 s{S_T0}, 1, 0")
    A(f"s_cselect_b32 s{S_T0+6}, 7, 0")
    A(f"s_sub_u32 s{S_T0+6}, s{S_J}, s{S_T0+6}")
    A(f"s_lshl_b32 s{S_T0+1}, s{S_I}, 2")
    A(f"s_sub_u32 s{S_T0+3}, 3, s{S_T0}")
    A(f"s_add_u32 s{S_T0+3}, s{S_T0+3}, s{S_T0+1}")
    A(f"s_add_u32 s{S_T0+1}, s{S_T0+1}, s{S_T0}")
    A(f"s_mul_i32 s{S_T0+7}, s{S_W}, 28")
    for la,src in ((0,S_T0+1),(1,S_T0+3)):
        A(f"s_mul_i32 s{S_T0+4+la}, s{src}, 112")
        A(f"s_add_u32 s{S_T0+4+la}, s{S_T0+4+la}, s{S_T0+7}")
        A(f"s_lshl_b32 s{S_T0+4+la}, s{S_T0+4+la}, 10")
        A(f"s_add_u32 s{S_T0+4+la}, s{S_T0+4+la}, {WS_M}")
    lp=self.lab('Lpoll'); le=self.lab()
    A(f"s_mov_b32 s{S_T0+8}, 0")
    A(f"s_waitcnt vmcnt(2)")
    A(f"{lp}:")
    A("v_cmp_gt_u32 vcc, 14, v55")
    A(f"s_cbranch_vccz {le}")
    A(f"buffer_load_dword v55, v{V_ZERO}, s[{SRD_WS}:{SRD_WS+3}], s{S_T0+2} offen sc1")
    A("s_waitcnt vmcnt(0)")
    A(f"s_add_u32 s{S_T0+8}, s{S_T0+8}, 1")
    A(f"s_cmp_lt_u32 s{S_T0+8}, 0x8000")
    A(f"s_cbranch_scc1 {lp}")
    A(f"{le}:")
    S2=Stream(A); S2.vm=["Mfin","Mfin"]
    def mload(la,s):
        r=H_RING+4*((28*la+s)%NRING)
        if s%8==0 and s>0: A(f"s_add_u32 s{S_T0+4+la}, s{S_T0+4+la}, 8192")
        va,off=("v48",(s%8)*1024) if s%8<4 else ("v3",(s%8-4)*1024)
        S2.vmem(f"buffer_load_dwordx4 v[{r}:{r+3}], {va}, s[{SRD_WS}:{SRD_WS+3}], s{S_T0+4+la} offen offset:{off} sc1", f"m{la}_{s}")
    NPRE=6
    for s_ in range(NPRE): mload(0,s_)
    A(f"s_lshl_b32 s{S_T0+11}, s{S_T0+6}, 6")
    A(f"s_lshl_b32 s{S_T0+7}, s{S_NH}, 5")
    A(f"s_add_u32 s{S_T0+11}, s{S_T0+11}, s{S_T0+7}")
    A(f"s_lshl_b32 s{S_T0+7}, s{S_CH}, 4")
    A(f"s_add_u32 s{S_T0+11}, s{S_T0+11}, s{S_T0+7}")
    for la,src,dst in ((0,S_T0+1,S_T0+8),(1,S_T0+3,S_T0+9)):
        A(f"s_mul_i32 s{dst}, s{src}, 448")
        A(f"s_add_u32 s{dst}, s{dst}, s{S_T0+11}")
        A(f"s_lshl_b32 s{dst}, s{dst}, 6")
        A(f"s_add_u32 s{dst}, s{dst}, {WS_HT}")
    A(f"s_lshl_b32 s{S_T0+11}, s{S_T0+11}, 1")
    A(f"s_mul_i32 s{S_T0+14}, s{S_T0+1}, {32*896}")
    A(f"s_add_u32 s{S_T0+14}, s{S_T0+14}, s{S_T0+11}")
    A(f"s_mul_i32 s{S_T0+15}, s{S_T0+3}, {32*896}")
    A(f"s_add_u32 s{S_T0+15}, s{S_T0+15}, s{S_T0+11}")
    A(f"s_lshl_b32 s{S_T0+11}, s{S_W}, 11")
    A(f"s_add_u32 s{S_T0+11}, s{S_T0+11}, {LDS_RES}")
    A(f"s_mov_b32 s{SRD_W}, s{S_OUT}\ns_mov_b32 s{SRD_W+1}, s{S_OUT+1}\ns_mov_b32 s{SRD_W+2}, {L_*D_*2}\ns_mov_b32 s{SRD_W+3}, 0x20000")
    A(f"s_cmp_eq_u32 s{S_T0}, 0")
    A("s_cselect_b64 vcc, -1, 0")
    A(f"v_cndmask_b32 v248, v{G_R2+1}, v{G_R2}, vcc")
    A(f"v_cndmask_b32 v254, v{G_R2+2}, v{G_R2+3}, vcc")
    A("v_mov_b32 v249, v248\nv_mov_b32 v255, v254")
    A(f"v_lshrrev_b32 v50, 5, v{V_LANE}")
    A(f"v_lshlrev_b32 v50, 8, v50")
    A(f"v_bfe_u32 v51, v{V_LANE}, 2, 2")
    A(f"v_lshl_add_u32 v50, v51, 6, v50")
    A(f"v_bfe_u32 v51, v{V_LANE}, 4, 1")
    A(f"v_lshl_add_u32 v50, v51, 5, v50")
    A(f"v_and_b32 v51, 3, v{V_LANE}")
    A(f"v_lshl_add_u32 v50, v51, 3, v50")
    A(f"v_add_u32 v50, s{S_T0+11}, v50")
    A(f"v_and_b32 v52, 31, v{V_LANE}")
    A(f"v_mul_u32_u24 v52, 896, v52")
    A(f"v_lshrrev_b32 v51, 5, v{V_LANE}")
    A(f"v_lshl_add_u32 v52, v51, 4, v52")
    for x in (1,2,3):
        A(f"s_xor_b32 s{S_T0+7}, s{S_W}, {x}")
        A(f"s_mul_i32 s{S_T0+7}, s{S_T0+7}, 6144")
        A(f"s_add_u32 s{S_T0+7}, s{S_T0+7}, {LDS_RED+(x-1)*2048}")
        A(f"v_add_u32 v{43+x}, s{S_T0+7}, v48")
    A(f"s_mul_i32 s{S_T0+7}, s{S_W}, 6144")
    A(f"s_add_u32 s{S_T0+7}, s{S_T0+7}, {LDS_RED}")
    A(f"v_add_u32 v47, s{S_T0+7}, v48")
    S2.need_vm(["Mfin"])
    A("s_barrier")
    l=self.lab()
    A(f"s_lshl_b32 s{S_T0+10}, s{S_I}, 7")
    A(f"s_add_u32 s{S_T0+10}, s{S_T0+10}, {WS_CNT3+2048}")
    A(f"s_cmp_lg_u32 s{S_W}, 0")
    A(f"s_cbranch_scc1 {l}")
    A("v_mov_b32 v55, 1")
    A("s_mov_b64 exec, 1")
    A(f"buffer_atomic_add v55, v{V_ZERO}, s[{SRD_WS}:{SRD_WS+3}], s{S_T0+10} offen")
    l2=self.lab()
    A(f"s_cmp_lg_u32 s{S_WG}, 0")
    A(f"s_cbranch_scc1 {l2}")
    A(f"v_mov_b32 v55, s{S_TAG}")
    A(f"buffer_store_dword v55, v{V_ZERO}, s[{SRD_WS}:{SRD_WS+3}], 0 offen sc1")
    A(f"{l2}:")
    A("s_mov_b64 exec, -1")
    A(f"{l}:")
    self.stamp('sync3 arrive')
    def by_half(fn):
        la_=self.lab('Lh'); lb_=self.lab('Lh')
        A(f"s_cmp_ge_u32 s{S_W}, 2")
        A(f"s_cbranch_scc1 {la_}")
        fn(0)
        A(f"s_branch {lb_}")
        A(f"{la_}:")
        fn(1)
        A(f"{lb_}:")
    def red_write(la):
        def f(h):
            b0=H_ACC+32*la; b1=b0+16
            for x,r in ((2,b0+8*(1-h)),(1,b1+8*h),(3,b1+8*(1-h))):
                for q in range(2):
                    A(f"ds_write_b128 v{43+x}, v[{r+4*q}:{r+4*q+3}] offset:{la*24576+q*1024}")
        by_half(f)
    def red_final(la):
        P=208; RS=232; O=244
        A(f"ds_read_b64_tr_b16 v[{RS}:{RS+1}], v50 offset:{la*1024}")
        A(f"ds_read_b64_tr_b16 v[{RS+2}:{RS+3}], v50 offset:{la*1024+512}")
        for k in range(3):
            for q in range(2):
                A(f"ds_read_b128 v[{P+8*k+4*q}:{P+8*k+4*q+3}], v47 offset:{la*24576+k*2048+q*1024}")
        A("s_waitcnt lgkmcnt(6)")
        for d in range(4): A(bf16_lo(RS+4+2*d,RS+d)); A(bf16_hi(RS+5+2*d,RS+d))
        A("s_waitcnt lgkmcnt(2)")
        for r in range(0,8,2): A(f"v_pk_add_f32 v[{P+r}:{P+r+1}], v[{P+r}:{P+r+1}], v[{P+8+r}:{P+8+r+1}]")
        A("s_waitcnt lgkmcnt(0)")
        for r in range(0,8,2): A(f"v_pk_add_f32 v[{P+r}:{P+r+1}], v[{P+r}:{P+r+1}], v[{P+16+r}:{P+16+r+1}]")
        def f(h):
            b=H_ACC+32*la+8*h
            for r in range(0,8,2): A(f"v_pk_add_f32 v[{P+r}:{P+r+1}], v[{P+r}:{P+r+1}], v[{b+r}:{b+r+1}]")
        by_half(f)
        r2=(248,254)[la]
        if self.mimic>=1:
            for r in range(0,8,2): A(f"v_pk_mul_f32 v[{P+r}:{P+r+1}], v[{P+r}:{P+r+1}], v[{r2}:{r2+1}]")
            for r in range(0,8,2): A(f"v_cvt_pk_bf16_f32 v{O+r//2}, v{P+r}, v{P+r+1}")
            for r in range(0,8,2): A(bf16_lo(P+r,O+r//2)); A(bf16_hi(P+r+1,O+r//2))
            for r in range(0,8,2): A(f"v_pk_add_f32 v[{P+r}:{P+r+1}], v[{P+r}:{P+r+1}], v[{RS+4+r}:{RS+4+r+1}]")
        else:
            for r in range(0,8,2): A(f"v_pk_fma_f32 v[{P+r}:{P+r+1}], v[{P+r}:{P+r+1}], v[{r2}:{r2+1}], v[{RS+4+r}:{RS+4+r+1}]")
        if self.perturb:
            for r in range(8): A(f"v_add_f32 v{P+r}, {fl(self.perturb)}, v{P+r}")
        for r in range(0,8,2): A(f"v_cvt_pk_bf16_f32 v{O+r//2}, v{P+r}, v{P+r+1}")
        A(f"v_permlane32_swap_b32 v{O}, v{O+2}")
        A(f"v_permlane32_swap_b32 v{O+1}, v{O+3}")
        return f"buffer_store_dwordx4 v[{O}:{O+3}], v52, s[{SRD_W}:{SRD_W+3}], s{S_T0+14+la} offen"
    def mf(la,s):
        for ca in range(2):
            d=H_ACC+16*(2*la+ca)
            c="0" if s==0 else f"v[{d}:{d+15}]"
            k,r=wd_loc(s,ca); rr=H_RING+4*((28*la+s)%NRING)
            A(f"v_mfma_f32_32x32x16_bf16 v[{d}:{d+15}], {k}[{r}:{r+3}], v[{rr}:{rr+3}], {c}")
    for s_ in range(NPRE,NRING): mload(0,s_)
    POLL_AT=28-NRING
    for s_ in range(28):
        S2.need_vm([f"m0_{s_}"])
        mf(0,s_)
        if s_+NRING<28: mload(0,s_+NRING)
        if s_==POLL_AT-1:
            S2.vmem(f"buffer_load_dword v55, v{V_ZERO}, s[{SRD_WS}:{SRD_WS+3}], s{S_T0+10} offen sc1","pollL")
            A(f"s_mov_b32 m0, s{S_T0+11}")
            S2.vmem(f"buffer_load_dwordx4 v48, s[{SRD_WS}:{SRD_WS+3}], s{S_T0+8} offen sc1 lds","res")
            A(f"s_add_u32 m0, s{S_T0+11}, 1024")
            S2.vmem(f"buffer_load_dwordx4 v48, s[{SRD_WS}:{SRD_WS+3}], s{S_T0+9} offen sc1 lds","res")
        if s_==POLL_AT+5:
            lp=self.lab('Lpoll'); le=self.lab()
            S2.need_vm(["pollL"])
            A(f"s_mov_b32 s{S_T0+7}, 0")
            A(f"{lp}:")
            if self.pp>1:
                lq=self.lab('Lpoll')
                A("v_cmp_gt_u32 vcc, 14, v55")
                A(f"s_cbranch_vccz {le}")
                A(f"buffer_load_dword v54, v{V_ZERO}, s[{SRD_WS}:{SRD_WS+3}], s{S_T0+10} offen sc1")
                A(f"{lq}:")
                for a_,b_ in ((55,54),(54,55)):
                    A(f"buffer_load_dword v{a_}, v{V_ZERO}, s[{SRD_WS}:{SRD_WS+3}], s{S_T0+10} offen sc1")
                    A("s_waitcnt vmcnt(1)")
                    A(f"v_cmp_gt_u32 vcc, 14, v{b_}")
                    A(f"s_cbranch_vccz {le}")
                A(f"s_add_u32 s{S_T0+7}, s{S_T0+7}, 1")
                A(f"s_cmp_lt_u32 s{S_T0+7}, 0x4000")
                A(f"s_cbranch_scc1 {lq}")
            else:
                A("v_cmp_gt_u32 vcc, 14, v55")
                A(f"s_cbranch_vccz {le}")
                A(f"buffer_load_dword v55, v{V_ZERO}, s[{SRD_WS}:{SRD_WS+3}], s{S_T0+10} offen sc1")
                A("s_waitcnt vmcnt(0)")
                A(f"s_add_u32 s{S_T0+7}, s{S_T0+7}, 1")
                A(f"s_cmp_lt_u32 s{S_T0+7}, 0x8000")
                A(f"s_cbranch_scc1 {lp}")
            A(f"{le}:")
            self.stamp('late ready')
            nl=0
            while nl<28 and (28+nl)-NRING <= s_: mload(1,nl); nl+=1
        elif s_>POLL_AT+5:
            while nl<28 and (28+nl)-NRING <= s_: mload(1,nl); nl+=1
    self.stamp('early done')
    for s_ in range(28):
        S2.need_vm([f"m1_{s_}"])
        mf(1,s_)
        while nl<28 and (28+nl)-NRING <= 28+s_: mload(1,nl); nl+=1
        if s_==5:
            red_write(0)
        if s_==13:
            A("s_waitcnt lgkmcnt(0)")
            A("s_barrier")
            st=red_final(0)
            S2.vmem(st,"out0")
    self.stamp('late done')
    A("s_nop 11")
    red_write(1)
    A("s_waitcnt lgkmcnt(0)")
    A("s_barrier")
    self.stamp('red barrier')
    A(red_final(1))

@add_method
def dump_lds(self, lds_off, nbytes, ws_off_per_wg):
    A=self.A
    A("s_waitcnt vmcnt(0) lgkmcnt(0)")
    A("s_barrier")
    A(f"v_lshlrev_b32 v48, 4, v{V_T}")
    A(f"s_mul_i32 s{S_T0}, s{S_WG}, {ws_off_per_wg}")
    A(f"s_add_u32 s{S_T0}, s{S_T0}, {WS_DBG}")
    for k in range(nbytes//4096):
        A(f"v_add_u32 v49, {lds_off+k*4096}, v48")
        A("ds_read_b128 v[52:55], v49")
        A("s_waitcnt lgkmcnt(0)")
        A(f"s_add_u32 s{S_T0+1}, s{S_T0}, {k*4096}")
        A(f"buffer_store_dwordx4 v[52:55], v48, s[{SRD_WS}:{SRD_WS+3}], s{S_T0+1} offen")
        A("s_waitcnt vmcnt(0)")

@add_method
def dump_regs(self, first, n, kind='v'):
    A=self.A
    A("s_waitcnt vmcnt(0) lgkmcnt(0)")
    A("s_nop 15")
    A(f"v_lshlrev_b32 v3, 2, v{V_T}")
    A(f"s_mul_i32 s{S_T0}, s{S_WG}, {n*1024}")
    A(f"s_add_u32 s{S_T0}, s{S_T0}, {WS_DBG}")
    for k in range(n):
        A(f"s_add_u32 s{S_T0+1}, s{S_T0}, {k*1024}")
        A(f"buffer_store_dword {kind}{first+k}, v3, s[{SRD_WS}:{SRD_WS+3}], s{S_T0+1} offen")
    A("s_waitcnt vmcnt(0)")

@add_method
def build(self):
    A=self.A
    stop=self.stop_after
    def done(name):
        return stop==name
    self.prologue()
    self.phase0_loads()
    self.conv_setup()
    self.stamp('index done')
    self.xjob_post()
    self.stamp('xjob post')
    self.kgen_setup()
    self.stamp('kgen setup')
    self.kgen_gen()
    self.stamp('kgen')
    if done('kx'):
        self.kexpand()
        A("s_waitcnt lgkmcnt(0)")
        A("s_barrier")
        self.dump_lds(LDS_KX, 36864, 36864); return self.finish()
    self.kexpand()
    self.stamp('kexpand')
    self.x_prepare()
    self.granule_wait()
    self.stamp('x flags')
    if self.xmode=='xt': self.xt_loads()
    self.stats_consume()
    self.stamp('u ready')
    if done('u'):
        self.dump_lds(LDS_U-LDS_U%16, 20480, 20480); return self.finish()
    self.conv()
    self.stamp('conv done')
    self.sync_all()
    self.stamp('sync2 arrive')
    self.flag_wait(0x3fff, landed=True)
    self.stamp('w1 flags')
    self.w1_loads(0,W1_PRE)
    self.stamp('cs done')
    self.sync_all_wait(sleep=self.msleep)
    self.stamp('sync2 passed')
    if done('w1'):
        self.dump_regs(0,224,'a'); return self.finish()
    if done('conv'): return self.finish()
    self.gemm1()
    self.stamp('gemm1 done')
    self.gemm2()
    return self.finish()

@add_method
def finish(self):
    A=self.A
    if self.ts:
        A("s_waitcnt vmcnt(0)")
        self.stamp('end')
        l=self.lab()
        A(f"s_cmp_lg_u32 s{S_W}, {self.tswave}")
        A(f"s_cbranch_scc1 {l}")
        A("v_mov_b32 v4, 0")
        for k in range(self.nts): A(f"v_writelane_b32 v4, s{86+k}, {k}")
        A(f"v_lshlrev_b32 v5, 2, v{V_LANE}")
        A(f"s_lshl_b32 s{S_T0}, s{S_WG}, 8")
        A(f"s_add_u32 s{S_T0}, s{S_T0}, {WS_TS}")
        A(f"buffer_store_dword v4, v5, s[{SRD_WS}:{SRD_WS+3}], s{S_T0} offen")
        l2=self.lab()
        A(f"s_cmp_lg_u32 s{S_WG}, 0")
        A(f"s_cbranch_scc1 {l2}")
        A(f"global_store_dword v5, v4, s[{S_DBG}:{S_DBG+1}]")
        A(f"{l2}:")
        A(f"{l}:")
    A("L_end:")
    A("s_endpgm")
    self.helper()
    A("L_codeend:")
    body, nfix, probs = hazard_fix(A.L)
    for p in probs: print("HAZARD(backedge):", p, file=sys.stderr)
    errs = wait_lint(body)
    for e in errs[:40]: print("WAITLINT:", e, file=sys.stderr)
    hdr = [
     "; Fused preLN + S4D long-conv + preLN + SwiGLU FFN: one persistent launch, 224 main + 32 weight re-layout workgroups",
     f"; @launch grid=({NGRID},1,1) block=(256,1,1) lds={LDS_TOTAL}",
     '.amdgcn_target "amdgcn-amd-amdhsa--gfx950"',
     ".text", f".globl {KNAME}", ".p2align 8", f".type {KNAME},@function", f"{KNAME}:"]
    ftr = ['.section .rodata,"a"', ".p2align 6", f".amdhsa_kernel {KNAME}",
     "  .amdhsa_next_free_vgpr 512", "  .amdhsa_next_free_sgpr 102", "  .amdhsa_accum_offset 256",
     "  .amdhsa_group_segment_fixed_size 0", "  .amdhsa_kernarg_size 112", "  .amdhsa_user_sgpr_count 2",
     "  .amdhsa_user_sgpr_kernarg_segment_ptr 1", "  .amdhsa_system_sgpr_workgroup_id_x 1",
     ".end_amdhsa_kernel"]
    self.nfix=nfix
    return "\n".join(hdr+body+ftr)+"\n"

if __name__=="__main__":
    import argparse
    ap=argparse.ArgumentParser(); ap.add_argument("-o",default="out.s"); ap.add_argument("--stop",default=None); ap.add_argument("--mimic",type=int,default=2); ap.add_argument("--ts",action="store_true"); ap.add_argument("--perturb",type=float,default=0.0); ap.add_argument("--tsset",default="main"); ap.add_argument("--cyc",action="store_true"); ap.add_argument("--tswave",type=int,default=0); ap.add_argument("--hts",action="store_true"); ap.add_argument("--xmode",default="gather"); ap.add_argument("--wpf",type=int,default=2); ap.add_argument("--w1pf",type=int,default=0); ap.add_argument("--pp",type=int,default=0); ap.add_argument("--map",type=int,default=1); ap.add_argument("--cs",type=int,default=0); ap.add_argument("--hsleep",type=int,default=0); ap.add_argument("--msleep",type=int,default=0); ap.add_argument("--w1pre",type=int,default=16)
    a=ap.parse_args()
    g=Gen(stop_after=a.stop, mimic=a.mimic, ts=a.ts, perturb=a.perturb)
    if a.tsset=='main': g.tsonly=set(['xjob post','kgen','x flags','u ready','conv done','sync2 arrive','w1 flags','cs done','sync2 passed','gemm1 done','sync3 arrive','early done','late ready','end'])
    if a.cyc: g.tsop='s_memtime'
    g.tswave=a.tswave; g.hts=a.hts; g.xmode=a.xmode; g.pp=a.pp; g.map=a.map; g.costsched=a.cs; g.hsleep=a.hsleep; g.msleep=a.msleep; g.wpf=a.wpf; g.w1pf=a.w1pf; globals().__setitem__('W1_PRE',a.w1pre)
    if a.tsset=='end': g.tsonly=set(['end'])
    if a.tsset=='g': g.tsonly=set(['sync2 passed','x0','pass0','pass1','pass2','pass3','gemm1 done','sync3 arrive','early done','late ready','late done','red barrier','end'])
    if a.tsset=='start': g.tsonly=set(['kernarg','all issued','index done','xjob post','kgen setup','gen done','wjob post','kmfma','kbar1','kgen','x flags','kexpand','xt landed','u ready','end'])
    txt=g.build()
    open(a.o,"w").write(txt)
    print("wrote",a.o,len(txt.splitlines()),"lines; nops inserted:",g.nfix, "stamps:", g.tsnames, file=sys.stderr)
```

```python
import sys, math
sys.path.insert(0, "gen")
from asmlib import *

KNAME = "sequential_preLN__ssm_conv_s4d__swiglu_ffn__prompt_kernel"
L_, D_, N_, F_ = 2048, 448, 256, 1792
NWG = 224
NGRID = 256

WS_EPOCH = 0
WS_CNT2  = 4096
WS_CNT3  = 12288
WS_STATS = 32768
WS_HT    = 1 << 20
WS_M     = 4 << 20
WS_ST2   = 49152
WS_JF    = 65536
WS_XF    = 196608
WS_CSF   = 131072
WS_CS    = 294912
WS_XT    = 12 << 20
WS_WF1   = 18 << 20
WS_WFD   = 22 << 20
WS_DBG   = 32 << 20
WS_TS    = 16 << 20
WS_SIZE  = 268435456

KG_PITCH = 528
KG_WAVE  = 53 * KG_PITCH
LDS_KX   = 112000
KX_COPY  = 4160
KX_CH    = 4 * KX_COPY
LDS_U    = LDS_KX + 2 * KX_CH
U_CH     = 4608
LDS_XT   = LDS_U + 2 * U_CH
XT_CH    = 4096
LDS_TOTAL = 163840
assert LDS_XT + 2 * XT_CH <= LDS_TOTAL
LDS_JOB = LDS_KX
LDS_CSP = LDS_KX + 32768
assert LDS_CSP + 512 <= LDS_U

S_WG=2
S_X=8; S_LOGA=10; S_AIM=12; S_CR=14; S_CI=16; S_LOGDT=18; S_DSK=20; S_BX=22
S_WGT=24; S_WUP=26; S_WD=28; S_OUT=30; S_DBG=32; S_WS=34
SRD_X=36; SRD_WS=40; SRD_W=44; SRD_W2=48
S_W=52
S_CH=53
S_NH=54
S_D0=55
S_TAG=56
S_I=57; S_J=58
S_T0=60
S_YS=80
S_DSKV=81
S_DT=82
S_W1I=83
S_JDST=84
S_JL=85
S_GW=59
S_JE=78
S_JK=79

LOG2E = 1.4426950408889634
INV2PI = 0.15915494309189535
def f2u(x):
    import struct
    return struct.unpack('<I', struct.pack('<f', x))[0]
def fl(x): return hex(f2u(x))

class Gen:
    def __init__(self, stop_after=None, dbg=False, mimic=2, ts=False, perturb=0.0):
        self.A = Asm(); self.stop_after = stop_after; self.dbg = dbg; self.mimic = mimic
        self.nlab = 0; self.ts=ts; self.nts=0; self.tsnames=[]; self.perturb=perturb; self.tsonly=None; self.xmode='gather'; self.costsched=0; self.map=1; self.xlate=1; self.w1start=0; self.w1_in_conv=0; self.w1n=9; self.w1step=4; self.fsleep=0; self.npre=6; self.wdspan=28; self.emov=0; self.npre2=4; self.gidx=(1,10,19,28,37); self.ng0=2; self.pp=0; self.hsleep=0; self.msleep=0; self.wpf=2; self.w1pf=0; self.tsop='s_memrealtime'; self.tswave=0
    def stamp(self, name):
        if not self.ts: return
        if self.tsonly is not None and name not in self.tsonly: return
        k=self.nts; self.nts+=1; self.tsnames.append(name); assert k<16
        A=self.A
        A("s_waitcnt lgkmcnt(0)")
        A(f"{self.tsop} s[6:7]")
        A("s_waitcnt lgkmcnt(0)")
        A(f"s_mov_b32 s{86+k}, s6")
    def lab(self, p='L'):
        self.nlab += 1; return f"{p}_{self.nlab}"

    def prologue(self):
        A = self.A
        A(f"s_cmp_ge_u32 s{S_WG}, {NGRID}")
        A("s_cbranch_scc1 L_end")
        if self.ts:
            A(f"{self.tsop} s[6:7]")
            A("s_waitcnt lgkmcnt(0)")
            A("s_mov_b32 s86, s6"); self.nts=1; self.tsnames.append('start')
        A(f"s_load_dwordx16 s[8:23], s[0:1], 0")
        A(f"s_load_dwordx8 s[24:31], s[0:1], 64")
        A(f"s_load_dwordx4 s[32:35], s[0:1], 96")
        A("s_getpc_b64 s[4:5]")
        A("L_pc:")
        A("v_lshlrev_b32 v1, 7, v0")
        A("v_add_u32 v2, 0x8000, v1")
        A("v_min_u32 v1, (L_codeend-L_pc-4), v1")
        A("global_load_dword v255, v1, s[4:5]")
        A("v_min_u32 v2, (L_codeend-L_pc-4), v2")
        A("global_load_dword v254, v2, s[4:5]")
        A("v_lshrrev_b32 v2, 6, v0")
        A("v_and_b32 v1, 63, v0")
        A(f"v_readfirstlane_b32 s{S_W}, v2")
        A(f"s_lshr_b32 s{S_CH}, s{S_W}, 1")
        A(f"s_and_b32 s{S_NH}, s{S_W}, 1")
        A(f"s_cmp_ge_u32 s{S_WG}, {NWG}")
        A("s_cbranch_scc1 L_helper")
        A(f"s_and_b32 s{S_T0}, s{S_WG}, 7")
        A(f"s_mul_i32 s{S_T0}, s{S_T0}, 28")
        A(f"s_lshr_b32 s{S_T0+1}, s{S_WG}, 3")
        A(f"s_add_u32 s{S_T0}, s{S_T0}, s{S_T0+1}")
        A(f"s_lshl_b32 s{S_D0}, s{S_T0}, 1")
        if self.map==0:
            A(f"s_mul_i32 s{S_T0+2}, s{S_T0+1}, 37")
            A(f"s_lshr_b32 s{S_T0+2}, s{S_T0+2}, 8")
            A(f"s_mul_i32 s{S_T0+3}, s{S_T0+2}, 7")
            A(f"s_sub_u32 s{S_T0+3}, s{S_T0+1}, s{S_T0+3}")
            A(f"s_and_b32 s{S_T0+4}, s{S_WG}, 7")
            A(f"s_lshr_b32 s{S_T0+5}, s{S_T0+4}, 1")
            A(f"s_lshl_b32 s{S_T0+5}, s{S_T0+5}, 2")
            A(f"s_add_u32 s{S_I}, s{S_T0+5}, s{S_T0+2}")
            A(f"s_and_b32 s{S_T0+4}, s{S_T0+4}, 1")
            A(f"s_mul_i32 s{S_T0+4}, s{S_T0+4}, 7")
            A(f"s_add_u32 s{S_J}, s{S_T0+4}, s{S_T0+3}")
        else:
            A(f"s_and_b32 s{S_T0+2}, s{S_WG}, 3")
            A(f"s_mul_i32 s{S_T0+2}, s{S_T0+2}, 28")
            A(f"s_add_u32 s{S_T0+2}, s{S_T0+2}, s{S_T0+1}")
            A(f"s_lshr_b32 s{S_J}, s{S_T0+2}, 3")
            A(f"s_and_b32 s{S_T0+2}, s{S_T0+2}, 7")
            A(f"s_bfe_u32 s{S_T0+3}, s{S_WG}, 0x10002")
            A(f"s_lshl_b32 s{S_T0+3}, s{S_T0+3}, 3")
            A(f"s_add_u32 s{S_I}, s{S_T0+2}, s{S_T0+3}")

def q7check():
    for q in range(28): assert (q*37)>>8 == q//7, q
q7check()

def add_method(f):
    setattr(Gen, f.__name__, f); return f

V_LANE=1
V_T=0
V_ZERO=2
V_XG=8
V_OFF=16
V_EP=27
V_PA=28
V_SX=36
V_TMP=48

@add_method
def phase0_loads(self):
    A=self.A
    A("s_waitcnt lgkmcnt(0)")
    self.stamp('kernarg')
    A(f"s_mov_b32 s{SRD_X}, s{S_X}\ns_mov_b32 s{SRD_X+1}, s{S_X+1}\ns_mov_b32 s{SRD_X+2}, {L_*D_*2}\ns_mov_b32 s{SRD_X+3}, 0x20000")
    A(f"s_mov_b32 s{SRD_WS}, s{S_WS}\ns_mov_b32 s{SRD_WS+1}, s{S_WS+1}\ns_mov_b32 s{SRD_WS+2}, {WS_SIZE}\ns_mov_b32 s{SRD_WS+3}, 0x20000")
    A(f"v_mov_b32 v{V_ZERO}, 0")
    self.job_roles()
    l=self.lab()
    A(f"s_cmp_lg_u32 s{S_WG}, {NWG-1}")
    A(f"s_cbranch_scc1 {l}")
    self.zero_counters_body()
    A(f"{l}:")
    self.xjob_issue()
    A(f"s_add_u32 s{S_T0+3}, s{S_D0}, s{S_CH}")
    A(f"s_lshl_b32 s{S_T0+3}, s{S_T0+3}, 9")
    A(f"s_lshl_b32 s{S_T0+4}, s{S_NH}, 8")
    A(f"s_add_u32 s{S_T0+3}, s{S_T0+3}, s{S_T0+4}")
    A(f"v_lshl_add_u32 v8, v{V_LANE}, 2, s{S_T0+3}")
    A(f"v_xor_b32 v9, 256, v8")
    A(f"global_load_dword v{V_PA}, v8, s[{S_LOGA}:{S_LOGA+1}]")
    A(f"global_load_dword v{V_PA+1}, v8, s[{S_AIM}:{S_AIM+1}]")
    A(f"global_load_dword v{V_PA+2}, v8, s[{S_CR}:{S_CR+1}]")
    A(f"global_load_dword v{V_PA+3}, v8, s[{S_CI}:{S_CI+1}]")
    A(f"global_load_dword v{V_PA+4}, v9, s[{S_CR}:{S_CR+1}]")
    A(f"global_load_dword v{V_PA+5}, v9, s[{S_CI}:{S_CI+1}]")
    A(f"s_lshl_b32 s{S_T0+4}, s{S_D0}, 1")
    A(f"s_load_dword s{S_DT}, s[{S_LOGDT}:{S_LOGDT+1}], s{S_T0+4}")
    A(f"s_load_dword s{S_DSKV}, s[{S_DSK}:{S_DSK+1}], s{S_T0+4}")
    A(f"global_load_dword v{V_EP}, v{V_ZERO}, s[{S_WS}:{S_WS+1}] sc1")
    if self.xmode=='gather':
        self.gl=self.gather_items(); self.gi=0
        for _ in range(self.ng0): A(self.gl[self.gi]); self.gi+=1
    if self.wpf:
        lpf=self.lab()
        A(f"s_cmp_ge_u32 s{S_W}, {self.wpf}")
        A(f"s_cbranch_scc1 {lpf}")
        A(f"s_cmp_eq_u32 s{S_W}, 0")
        A(f"s_cselect_b32 s{SRD_W}, s{S_WGT}, s{S_WUP}")
        A(f"s_cselect_b32 s{SRD_W+1}, s{S_WGT+1}, s{S_WUP+1}")
        A(f"s_cmp_eq_u32 s{S_W}, 2")
        A(f"s_cselect_b32 s{SRD_W}, s{S_WD}, s{SRD_W}")
        A(f"s_cselect_b32 s{SRD_W+1}, s{S_WD+1}, s{SRD_W+1}")
        A(f"s_mov_b32 s{SRD_W+2}, {D_*F_*2}")
        A(f"s_mov_b32 s{SRD_W+3}, 0x20000")
        A(f"v_min_u32 v5, 55, v{V_LANE}")
        A(f"v_lshlrev_b32 v5, 7, v5")
        A(f"s_mul_i32 s{S_T0}, s{S_WG}, {56*128}")
        A(f"buffer_load_dword v253, v5, s[{SRD_W}:{SRD_W+3}], s{S_T0} offen")
        A(f"{lpf}:")
    self.stamp('all issued')
    A(f"s_mul_i32 s{S_T0+5}, s{S_W}, {KG_WAVE}")
    A(f"v_and_b32 v182, 31, v{V_LANE}")
    A(f"v_lshrrev_b32 v183, 5, v{V_LANE}")
    A(f"v_lshlrev_b32 v176, 4, v182")
    A(f"v_lshl_add_u32 v176, v183, 3, v176")
    A(f"v_add_u32 v176, s{S_T0+5}, v176")
    A(f"v_lshlrev_b32 v177, 3, v182")
    A(f"v_add_u32 v177, 512, v177")
    A(f"v_lshlrev_b32 v178, 2, v182")
    A(f"v_add_u32 v178, 768, v178")
    A(f"v_cmp_eq_u32 vcc, 1, v183")
    A(f"v_cndmask_b32 v177, v177, v178, vcc")
    A(f"v_add_u32 v177, s{S_T0+5}, v177")
    A(f"v_mov_b32 v178, 4")
    A(f"v_mov_b32 v179, 128")
    A(f"v_cndmask_b32 v178, v178, v179, vcc")
    A(f"v_add_u32 v178, v177, v178")
    A(f"v_lshlrev_b32 v179, 1, v182")
    A(f"v_lshl_add_u32 v179, v183, 8, v179")
    A(f"v_add_u32 v179, s{S_T0+5}, v179")
    A(f"v_lshlrev_b32 v48, 3, v{V_T}")
    for x in range(11):
        o=V_OFF+x
        A(f"v_sub_u32 v49, {2047-x}, v48")
        A(f"v_cvt_f32_i32 v50, v49")
        A(f"v_cvt_pk_bf16_f32 v50, v50, v50")
        A(f"v_and_b32 v50, 0xffff, v50")
        A(f"v_subrev_u32 v50, 17024, v50")
        A(f"v_cmp_gt_i32 vcc, 128, v49")
        A(f"v_cndmask_b32 v50, v50, v49, vcc")
        if x>=8:
            A(f"v_cmp_gt_i32 vcc, 0, v49")
            A(f"v_mov_b32 v51, 768")
            A(f"v_cndmask_b32 v50, v50, v51, vcc")
        A(f"v_lshlrev_b32 v{o}, 1, v50")

NWJ = 588
LDS_XB = LDS_JOB + 3*8192

@add_method
def job_roles(self):
    A=self.A
    A(f"s_mul_i32 s{S_T0}, s{S_W}, 224")
    A(f"s_add_u32 s{S_GW}, s{S_T0}, s{S_WG}")
    A(f"s_lshl_b32 s{S_JL}, s{S_W}, 13")
    A(f"s_add_u32 s{S_JL}, s{S_JL}, {LDS_JOB}")

V_SR=64
@add_method
def xjob_issue(self):
    A=self.A
    A(f"v_bfe_u32 v50, v{V_LANE}, 4, 1")
    A(f"v_lshrrev_b32 v51, 5, v{V_LANE}")
    A(f"v_mul_u32_u24 v51, {224*8}, v51")
    A(f"v_add_u32 v50, v50, v51")
    A(f"s_lshl_b32 s{S_T0}, s{S_WG}, 3")
    A(f"s_lshl_b32 s{S_T0+1}, s{S_W}, 1")
    A(f"s_add_u32 s{S_T0}, s{S_T0}, s{S_T0+1}")
    A(f"v_add_u32 v50, s{S_T0}, v50")
    A(f"v_mul_u32_u24 v50, 896, v50")
    A(f"v_and_b32 v51, 15, v{V_LANE}")
    A(f"v_lshl_add_u32 v50, v51, 4, v50")
    A(f"v_mov_b32 v52, 0x10000000")
    A(f"v_cmp_gt_u32 vcc, 8, v51")
    A(f"v_cndmask_b32 v52, v52, v50, vcc")
    for k in range(3):
        A(f"buffer_load_dwordx4 v[{V_SR+4*k}:{V_SR+4*k+3}], v50, s[{SRD_X}:{SRD_X+3}], 0 offen offset:{256*k}")
    A(f"buffer_load_dwordx4 v[{V_SR+12}:{V_SR+15}], v52, s[{SRD_X}:{SRD_X+3}], 0 offen offset:768")

@add_method
def gather_items(self):
    A=self.A
    A(f"s_lshl_b32 s{S_T0+14}, s{S_D0}, 1")
    A(f"s_movk_i32 s{S_T0+15}, 7168")
    A(f"v_mul_lo_u32 v4, v{V_T}, s{S_T0+15}")
    A(f"v_add_u32 v4, s{S_T0+14}, v4")
    A(f"s_movk_i32 s{S_T0+15}, 4480")
    out=[]
    for j in range(8):
        if j<5: out.append(f"buffer_load_dword v{V_XG+j}, v4, s[{SRD_X}:{SRD_X+3}], 0 offen offset:{j*896}")
        else:   out.append(f"buffer_load_dword v{V_XG+j}, v4, s[{SRD_X}:{SRD_X+3}], s{S_T0+15} offen offset:{(j-5)*896}")
    return out

@add_method
def xjob_post(self):
    A=self.A
    gather=(self.xmode=='gather')
    if self.wpf:
        lw=self.lab(); lc=self.lab()
        A(f"s_cmp_ge_u32 s{S_W}, {self.wpf}")
        A(f"s_cbranch_scc1 {lw}")
        A(f"s_waitcnt vmcnt({self.ng0+1}) lgkmcnt(0)")
        A(f"s_branch {lc}")
        A(f"{lw}:")
        A(f"s_waitcnt vmcnt({self.ng0}) lgkmcnt(0)")
        A(f"{lc}:")
    else:
        A(f"s_waitcnt vmcnt({2 if gather else 0}) lgkmcnt(0)")
    A(f"v_readfirstlane_b32 s{S_TAG}, v{V_EP}")
    A(f"s_add_u32 s{S_TAG}, s{S_TAG}, 0x9E3779B9")
    J=V_SR
    if not gather:
        A(f"v_bfe_u32 v50, v{V_LANE}, 4, 1")
        A(f"s_lshl_b32 s{S_T0}, s{S_W}, 1")
        A(f"v_add_u32 v50, s{S_T0}, v50")
        A(f"v_mul_u32_u24 v50, 896, v50")
        A(f"v_lshrrev_b32 v51, 5, v{V_LANE}")
        A(f"v_mul_u32_u24 v51, 7168, v51")
        A(f"v_add_u32 v50, v50, v51")
        A(f"v_and_b32 v51, 15, v{V_LANE}")
        A(f"v_lshl_add_u32 v50, v51, 4, v50")
        A(f"v_add_u32 v50, {LDS_XB}, v50")
        for k in range(3): A(f"ds_write_b128 v50, v[{J+4*k}:{J+4*k+3}] offset:{k*256}")
        A("s_mov_b32 exec_lo, 0x00ff00ff\ns_mov_b32 exec_hi, 0x00ff00ff")
        A(f"ds_write_b128 v50, v[{J+12}:{J+15}] offset:768")
        A("s_mov_b64 exec, -1")
    A("v_mov_b32 v54, 0x3f803f80")
    for i in range(16):
        c1="0" if i<2 else f"v{56+(i&1)}"; c2="0" if i<2 else f"v{58+(i&1)}"
        A(f"v_dot2_f32_bf16 v{56+(i&1)}, v{J+i}, v54, {c1}")
        A(f"v_dot2_f32_bf16 v{58+(i&1)}, v{J+i}, v{J+i}, {c2}")
    A(f"v_bfe_u32 v42, v{V_LANE}, 4, 1")
    A(f"v_lshlrev_b32 v42, 3, v42")
    A(f"v_lshrrev_b32 v39, 5, v{V_LANE}")
    A(f"v_mul_u32_u24 v39, {224*64}, v39")
    A(f"v_add_u32 v42, v42, v39")
    A(f"s_lshl_b32 s{S_T0+10}, s{S_WG}, 6")
    A(f"s_lshl_b32 s{S_T0+9}, s{S_W}, 4")
    A(f"s_add_u32 s{S_T0+10}, s{S_T0+10}, s{S_T0+9}")
    A(f"s_add_u32 s{S_T0+10}, s{S_T0+10}, {WS_STATS}")
    A("v_add_f32 v56, v56, v57\nv_add_f32 v57, v58, v59")
    for mode in ["row_shr:1","row_shr:2","row_shr:4","row_shr:8"]:
        A(f"v_add_f32_dpp v56, v56, v56 {mode} row_mask:0xf bank_mask:0xf bound_ctrl:0"); A(f"v_add_f32_dpp v57, v57, v57 {mode} row_mask:0xf bank_mask:0xf bound_ctrl:0")
    A(f"v_mul_f32 v56, {fl(1.0/448)}, v56")
    A(f"v_mul_f32 v57, {fl(1.0/448)}, v57")
    A("v_fma_f32 v57, -v56, v56, v57")
    A("v_max_f32 v57, 0, v57")
    A("v_cvt_pk_bf16_f32 v57, v57, v57")
    A("v_lshlrev_b32 v57, 16, v57")
    A(f"v_add_f32 v57, {fl(1e-5)}, v57")
    A("v_cvt_pk_bf16_f32 v57, v57, v57")
    A("v_lshlrev_b32 v57, 16, v57")
    A("v_sqrt_f32 v57, v57")
    A(f"v_mov_b32 v41, s{S_TAG}")
    A(f"v_cvt_pk_bf16_f32 v40, v57, v56")
    A(f"s_cmp_lt_u32 s{S_WG}, 32")
    A(f"s_cselect_b32 exec_hi, 0x80008000, 0")
    A("s_mov_b32 exec_lo, 0x80008000")
    A(f"buffer_store_dwordx2 v[40:41], v42, s[{SRD_WS}:{SRD_WS+3}], s{S_T0+10} offen sc1")
    A("s_mov_b64 exec, -1")
    if gather: return
    A("s_waitcnt lgkmcnt(0)")
    A("s_barrier")
    X=80
    A(f"v_bfe_u32 v52, v{V_LANE}, 2, 2")
    A(f"v_mul_u32_u24 v52, 896, v52")
    A(f"v_lshrrev_b32 v53, 4, v{V_LANE}")
    A(f"v_lshl_add_u32 v52, v53, 5, v52")
    A(f"v_and_b32 v53, 3, v{V_LANE}")
    A(f"v_lshl_add_u32 v52, v53, 3, v52")
    A(f"s_lshl_b32 s{S_T0+1}, s{S_W}, 7")
    A(f"s_add_u32 s{S_T0+1}, s{S_T0+1}, {LDS_XB}")
    A(f"v_add_u32 v52, s{S_T0+1}, v52")
    for k in range(2):
        o=7168*k; x=X+8*k
        A(f"ds_read_b64_tr_b16 v[{x}:{x+1}], v52 offset:{o}")
        A(f"ds_read_b64_tr_b16 v[{x+2}:{x+3}], v52 offset:{o+4*896}")
        A(f"ds_read_b64_tr_b16 v[{x+4}:{x+5}], v52 offset:{o+512}")
        A(f"ds_read_b64_tr_b16 v[{x+6}:{x+7}], v52 offset:{o+512+4*896}")
    A(f"v_lshlrev_b32 v53, 4, v{V_LANE}")
    A(f"s_mul_i32 s{S_T0+2}, s{S_WG}, 7168")
    A(f"s_lshl_b32 s{S_T0+3}, s{S_W}, 10")
    A(f"s_add_u32 s{S_T0+2}, s{S_T0+2}, s{S_T0+3}")
    A(f"s_add_u32 s{S_T0+2}, s{S_T0+2}, {WS_XT}")
    def st(x,extra):
        A(f"s_add_u32 s{S_T0+3}, s{S_T0+2}, {extra}")
        A(f"buffer_store_dwordx4 v[{x}:{x+3}], v53, s[{SRD_WS}:{SRD_WS+3}], s{S_T0+3} offen sc1")
    l3=self.lab(); l32=self.lab()
    A("s_waitcnt lgkmcnt(6)")
    st(X,0)
    A(f"s_cmp_eq_u32 s{S_W}, 3")
    A(f"s_cbranch_scc1 {l3}")
    A("s_waitcnt lgkmcnt(4)")
    st(X+4,4096)
    A(f"{l3}:")
    A(f"s_cmp_ge_u32 s{S_WG}, 32")
    A(f"s_cbranch_scc1 {l32}")
    A("s_waitcnt lgkmcnt(0)")
    st(X+8,224*7168)
    A(f"s_cmp_eq_u32 s{S_W}, 3")
    A(f"s_cbranch_scc1 {l32}")
    st(X+12,224*7168+4096)
    A(f"{l32}:")
    A("s_waitcnt lgkmcnt(0)")

@add_method
def xflag_publish(self):
    A=self.A
    A("s_waitcnt vmcnt(0)")
    A(f"s_lshl_b32 s{S_T0+10}, s{S_WG}, 2")
    A(f"s_add_u32 s{S_T0+10}, s{S_T0+10}, s{S_W}")
    A(f"s_lshl_b32 s{S_T0+10}, s{S_T0+10}, 6")
    A(f"s_add_u32 s{S_T0+10}, s{S_T0+10}, {WS_XF}")
    A(f"v_mul_u32_u24 v42, {224*4*64}, v{V_LANE}")
    A(f"v_mov_b32 v41, s{S_TAG}")
    A(f"s_cmp_lt_u32 s{S_WG}, 32")
    A(f"s_cselect_b32 exec_lo, 3, 1")
    A("s_mov_b32 exec_hi, 0")
    A(f"buffer_store_dword v41, v42, s[{SRD_WS}:{SRD_WS+3}], s{S_T0+10} offen sc1")
    A("s_mov_b64 exec, -1")

@add_method
def zero_counters_body(self):
    A=self.A; l=self.lab()
    A(f"s_cmp_lg_u32 s{S_W}, 3")
    A(f"s_cbranch_scc1 {l}")
    A(f"v_lshlrev_b32 v3, 7, v{V_LANE}")
    A(f"s_mov_b32 s{S_T0+5}, {WS_CNT2}")
    A(f"buffer_store_dword v{V_ZERO}, v3, s[{SRD_WS}:{SRD_WS+3}], s{S_T0+5} offen sc1")
    A(f"s_mov_b32 s{S_T0+5}, {WS_CNT3}")
    A(f"buffer_store_dword v{V_ZERO}, v3, s[{SRD_WS}:{SRD_WS+3}], s{S_T0+5} offen sc1")
    A(f"{l}:")

S_HY=64; S_HL=65; S_HD=66; S_HE=67; S_HK=68; S_HRET=70
S_HSTR=69; S_HG=72; S_HP=73
@add_method
def wjob_params(self):
    A=self.A; ld=self.lab('Lwd'); lc=self.lab('Lwc'); T=S_T0
    A(f"s_cmp_ge_u32 s{S_HY}, 392")
    A(f"s_cbranch_scc1 {ld}")
    A(f"s_cmp_ge_u32 s{S_HY}, 196")
    A(f"s_cselect_b32 s{SRD_W}, s{S_WUP}, s{S_WGT}")
    A(f"s_cselect_b32 s{SRD_W+1}, s{S_WUP+1}, s{S_WGT+1}")
    A(f"s_cselect_b32 s{T+1}, 1, 0")
    A(f"s_mul_i32 s{T+2}, s{T+1}, 196")
    A(f"s_sub_u32 s{T+2}, s{S_HY}, s{T+2}")
    A(f"s_mul_i32 s{S_HP}, s{T+2}, 9363")
    A(f"s_lshr_b32 s{S_HP}, s{S_HP}, 16")
    A(f"s_mul_i32 s{S_HG}, s{S_HP}, 7")
    A(f"s_sub_u32 s{S_HG}, s{T+2}, s{S_HG}")
    A(f"s_movk_i32 s{S_HSTR}, 3584")
    A(f"s_lshl_b32 s{T+2}, s{S_HP}, 2")
    A(f"s_add_u32 s{T+2}, s{T+2}, s{T+1}")
    A(f"s_mul_i32 s{T+2}, s{T+2}, 28")
    A(f"s_lshl_b32 s{T+3}, s{S_HG}, 2")
    A(f"s_add_u32 s{T+2}, s{T+2}, s{T+3}")
    A(f"s_lshl_b32 s{T+2}, s{T+2}, 10")
    A(f"s_add_u32 s{S_HD}, s{T+2}, {WS_WF1}")
    A(f"s_mov_b32 s{S_HE}, {56*1024}")
    A(f"s_mov_b32 s{S_HK}, 4")
    A(f"s_branch {lc}")
    A(f"{ld}:")
    A(f"s_mov_b32 s{SRD_W}, s{S_WD}")
    A(f"s_mov_b32 s{SRD_W+1}, s{S_WD+1}")
    A(f"s_sub_u32 s{T+2}, s{S_HY}, 392")
    A(f"s_mul_i32 s{S_HP}, s{T+2}, 2341")
    A(f"s_lshr_b32 s{S_HP}, s{S_HP}, 16")
    A(f"s_mul_i32 s{S_HG}, s{S_HP}, 28")
    A(f"s_sub_u32 s{S_HG}, s{T+2}, s{S_HG}")
    A(f"s_movk_i32 s{S_HSTR}, 896")
    A(f"s_mul_i32 s{T+2}, s{S_HP}, 224")
    A(f"s_lshl_b32 s{T+3}, s{S_HG}, 2")
    A(f"s_add_u32 s{T+2}, s{T+2}, s{T+3}")
    A(f"s_lshl_b32 s{T+2}, s{T+2}, 10")
    A(f"s_add_u32 s{S_HD}, s{T+2}, {WS_WFD}")
    A(f"s_mov_b32 s{S_HE}, {112*1024}")
    A(f"s_mov_b32 s{S_HK}, 8")
    A(f"{lc}:")

for _u in range(196): assert (_u*9363)>>16 == _u//7
for _u in range(196): assert (_u*2341)>>16 == _u//28

@add_method
def helper(self):
    A=self.A; T=S_T0
    A("L_helper:")
    hs=[0]
    def hstamp():
        if not (self.ts and getattr(self,'hts',False)): return
        A(f"{self.tsop} s[6:7]"); A("s_waitcnt lgkmcnt(0)"); A(f"v_writelane_b32 v200, s6, {hs[0]}"); hs[0]+=1
    A("s_waitcnt lgkmcnt(0)")
    if self.ts and getattr(self,'hts',False):
        A("v_mov_b32 v200, 0"); A("v_writelane_b32 v200, s86, 0"); hs[0]=1
    hstamp()
    A(f"s_mov_b32 s{SRD_WS}, s{S_WS}\ns_mov_b32 s{SRD_WS+1}, s{S_WS+1}\ns_mov_b32 s{SRD_WS+2}, {WS_SIZE}\ns_mov_b32 s{SRD_WS+3}, 0x20000")
    A(f"s_mov_b32 s{SRD_W+2}, {D_*F_*2}")
    A(f"s_mov_b32 s{SRD_W+3}, 0x20000")
    A(f"v_mov_b32 v{V_ZERO}, 0")
    A(f"global_load_dword v{V_EP}, v{V_ZERO}, s[{S_WS}:{S_WS+1}] sc1")
    A(f"s_sub_u32 s{S_GW}, s{S_WG}, {NWG}")
    A(f"s_lshl_b32 s{S_GW}, s{S_GW}, 2")
    A(f"s_add_u32 s{S_GW}, s{S_GW}, s{S_W}")
    A(f"s_mul_i32 s{S_JL}, s{S_W}, 40960")
    A(f"v_lshrrev_b32 v40, 3, v{V_LANE}")
    A(f"v_bfe_u32 v49, v{V_LANE}, 4, 1")
    A(f"v_lshlrev_b32 v49, 2, v49")
    A(f"v_and_b32 v50, 7, v{V_LANE}")
    A(f"v_xor_b32 v49, v49, v50")
    A(f"v_lshlrev_b32 v41, 4, v49")
    A(f"v_bfe_u32 v51, v{V_LANE}, 2, 2")
    A(f"v_lshlrev_b32 v42, 7, v51")
    A(f"v_lshrrev_b32 v51, 1, v51")
    A(f"v_lshlrev_b32 v51, 2, v51")
    A(f"v_bfe_u32 v52, v{V_LANE}, 4, 1")
    A(f"v_bfe_u32 v53, v{V_LANE}, 1, 1")
    A(f"v_lshl_add_u32 v52, v52, 1, v53")
    A(f"v_xor_b32 v51, v51, v52")
    A(f"v_lshl_add_u32 v42, v51, 4, v42")
    A(f"v_and_b32 v51, 1, v{V_LANE}")
    A(f"v_lshl_add_u32 v42, v51, 3, v42")
    A(f"v_lshrrev_b32 v43, 5, v{V_LANE}")
    A(f"v_lshlrev_b32 v54, 4, v{V_LANE}")
    A(f"v_mul_u32_u24 v58, {2*896}, v43")
    A(f"v_and_b32 v59, 31, v{V_LANE}")
    A(f"v_lshl_add_u32 v58, v59, 2, v58")
    def call(lbl):
        A(f"s_getpc_b64 s[{T+14}:{T+15}]")
        r=self.lab('Lr')
        A(f"{r}:")
        A(f"s_add_u32 s{T+14}, s{T+14}, ({lbl}-{r})")
        A(f"s_addc_u32 s{T+15}, s{T+15}, (({lbl}-{r})>>31)")
        A(f"s_swappc_b64 s[{S_HRET}:{S_HRET+1}], s[{T+14}:{T+15}]")
    NS=9
    def setjob_y(expr_add, clamp):
        A(f"s_add_u32 s{S_HY}, s{S_GW}, {expr_add}")
        A(f"s_min_u32 s{S_HY}, s{S_HY}, {clamp}")
    def job(n,kind):
        if kind=='w1': setjob_y(128*n, 391)
        else: setjob_y(392+128*(n-4), NWJ-1)
        A(f"s_add_u32 s{S_HL}, s{S_JL}, {8192*(n if n<4 else n-4)}")
    def flag_cur():
        A(f"s_lshl_b32 s{T+10}, s{S_HY}, 6")
        A(f"s_add_u32 s{T+10}, s{T+10}, {WS_JF}")
        A(f"v_mov_b32 v47, s{S_TAG}")
        A("s_mov_b64 exec, 1")
        A(f"buffer_store_dword v47, v{V_ZERO}, s[{SRD_WS}:{SRD_WS+3}], s{T+10} offen sc1")
        A("s_mov_b64 exec, -1")
    def batch(ns, kind):
        k=len(ns); st = NS if kind=='w1' else 8
        for n in ns: job(n,kind); call("L_hissue")
        hstamp()
        for i,n in enumerate(ns):
            job(n,kind); A(f"s_waitcnt vmcnt({8*(k-1-i)+st*i})"); call("L_hpost")
            if i==0 and kind=='w1':
                A(f"v_readfirstlane_b32 s{S_TAG}, v{V_EP}")
                A(f"s_add_u32 s{S_TAG}, s{S_TAG}, 0x9E3779B9")
        hstamp()
        for i,n in enumerate(ns):
            A(f"s_waitcnt vmcnt({st*(k-1-i)+i})")
            job(n,kind); flag_cur()
        hstamp()
    l4=self.lab('Lh4'); lb=self.lab('Lhb')
    A(f"s_cmp_lt_u32 s{S_GW}, 8")
    A(f"s_cbranch_scc1 {l4}")
    batch([0,1,2],'w1')
    A(f"s_branch {lb}")
    A(f"{l4}:")
    sv=hs[0]; hs[0]=2
    batch([0,1,2,3],'w1')
    hs[0]=sv
    A(f"{lb}:")
    batch([4,5],'wd')
    lp=self.lab('Lpoll'); le=self.lab()
    A(f"s_mov_b32 s{T+1}, 0")
    A(f"s_mov_b32 s{T}, {WS_STATS+(8*(NWG-1)+6)*8+4}")
    A(f"{lp}:")
    A(f"buffer_load_dword v49, v{V_ZERO}, s[{SRD_WS}:{SRD_WS+3}], s{T} offen sc1")
    A("s_waitcnt vmcnt(0)")
    A(f"v_cmp_ne_u32 vcc, s{S_TAG}, v49")
    A(f"s_add_u32 s{T+1}, s{T+1}, 1")
    A(f"s_cbranch_vccz {le}")
    A(f"s_cmp_lt_u32 s{T+1}, 0x8000")
    A(f"s_cbranch_scc1 {lp}")
    A(f"{le}:")
    self.sync_all_wait(sleep=self.hsleep)
    hstamp()
    A(f"s_sub_u32 s{T}, s{S_WG}, {NWG}")
    A(f"s_mul_i32 s{T}, s{T}, 57344")
    A(f"s_mul_i32 s{T+1}, s{S_W}, 14336")
    A(f"s_add_u32 s{T}, s{T}, s{T+1}")
    A(f"s_add_u32 s{T}, s{T}, {WS_HT}")
    for k in range(14):
        if k%4==0:
            A(f"s_add_u32 s{T+2}, s{T}, {k*1024}")
            A(f"s_add_u32 m0, s{T+1}, {k*1024}")
        A(f"buffer_load_dwordx4 v54, s[{SRD_WS}:{SRD_WS+3}], s{T+2} offen offset:{(k%4)*1024} sc1 lds")
    A(f"v_lshlrev_b32 v50, 9, v43")
    A(f"v_bfe_u32 v51, v{V_LANE}, 2, 2")
    A(f"v_lshl_add_u32 v50, v51, 6, v50")
    A(f"v_bfe_u32 v51, v{V_LANE}, 4, 1")
    A(f"v_lshl_add_u32 v50, v51, 5, v50")
    A(f"v_and_b32 v51, 3, v{V_LANE}")
    A(f"v_lshl_add_u32 v50, v51, 3, v50")
    A(f"v_add_u32 v50, s{T+1}, v50")
    A("v_mov_b32 v55, 0x3f803f80")
    for k0 in range(0,14,2):
        A(f"s_waitcnt vmcnt({12-k0})")
        for k in (k0,k0+1):
            r=64+4*(k%4)
            A(f"ds_read_b64_tr_b16 v[{r}:{r+1}], v50 offset:{k*1024}")
            A(f"ds_read_b64_tr_b16 v[{r+2}:{r+3}], v50 offset:{k*1024+256}")
        A("s_waitcnt lgkmcnt(0)")
        for k in (k0,k0+1):
            r=64+4*(k%4)
            for d in range(4):
                i=4*k+d
                c1="0" if i<2 else f"v{56+(i&1)}"; c2="0" if i<2 else f"v{58+(i&1)}"
                A(f"v_dot2_f32_bf16 v{56+(i&1)}, v{r+d}, v55, {c1}")
                A(f"v_dot2_f32_bf16 v{58+(i&1)}, v{r+d}, v{r+d}, {c2}")
    A("s_nop 2")
    A("v_add_f32 v56, v56, v57\nv_add_f32 v57, v58, v59")
    A("v_mov_b32 v58, v56\nv_mov_b32 v59, v57")
    A("v_permlane32_swap_b32 v56, v58\nv_permlane32_swap_b32 v57, v59")
    A("v_add_f32 v56, v56, v58\nv_add_f32 v57, v57, v59")
    A(f"v_and_b32 v60, 31, v{V_LANE}")
    A(f"v_lshlrev_b32 v61, 4, v60")
    A(f"s_lshr_b32 s{T+3}, s{S_W}, 1")
    A(f"s_lshl_b32 s{T+3}, s{T+3}, 9")
    A(f"s_add_u32 s{T+3}, s{T+3}, 65536")
    A(f"v_add_u32 v61, s{T+3}, v61")
    A(f"s_and_b32 s{T+4}, s{S_W}, 1")
    A(f"s_lshl_b32 s{T+4}, s{T+4}, 3")
    A(f"v_add_u32 v62, s{T+4}, v61")
    A("ds_write_b64 v62, v[56:57]")
    A("s_waitcnt lgkmcnt(0)")
    A("s_barrier")
    lz=self.lab()
    A(f"s_cmp_lg_u32 s{T+4}, 0")
    A(f"s_cbranch_scc1 {lz}")
    A("ds_read_b128 v[64:67], v61")
    A("s_waitcnt lgkmcnt(0)")
    A("v_add_f32 v64, v64, v66\nv_add_f32 v65, v65, v67")
    A(f"v_mul_f32 v64, {fl(1.0/448)}, v64")
    A(f"v_mul_f32 v65, {fl(1.0/448)}, v65")
    A("v_fma_f32 v65, -v64, v64, v65")
    A("v_max_f32 v65, 0, v65")
    A("v_cvt_pk_bf16_f32 v65, v65, v65")
    A("v_lshlrev_b32 v65, 16, v65")
    A(f"v_add_f32 v65, {fl(1e-5)}, v65")
    A("v_cvt_pk_bf16_f32 v65, v65, v65")
    A("v_lshlrev_b32 v65, 16, v65")
    A("v_sqrt_f32 v65, v65")
    A("v_cvt_pk_bf16_f32 v66, v65, v64")
    A(f"v_mov_b32 v67, s{S_TAG}")
    A(f"v_lshlrev_b32 v68, 3, v60")
    A(f"s_sub_u32 s{T+5}, s{S_WG}, {NWG}")
    A(f"s_lshl_b32 s{T+5}, s{T+5}, 1")
    A(f"s_lshr_b32 s{T+6}, s{S_W}, 1")
    A(f"s_add_u32 s{T+5}, s{T+5}, s{T+6}")
    A(f"s_lshl_b32 s{T+5}, s{T+5}, 8")
    A(f"s_add_u32 s{T+5}, s{T+5}, {WS_ST2}")
    A("s_mov_b32 exec_hi, 0")
    A(f"buffer_store_dwordx2 v[66:67], v68, s[{SRD_WS}:{SRD_WS+3}], s{T+5} offen sc1")
    A("s_mov_b32 exec_hi, -1")
    A(f"{lz}:")
    hstamp()
    if self.ts and getattr(self,'hts',False):
        l=self.lab()
        A(f"s_cmp_lg_u32 s{S_W}, 0")
        A(f"s_cbranch_scc1 {l}")
        A(f"v_lshlrev_b32 v5, 2, v{V_LANE}")
        A(f"s_lshl_b32 s{T}, s{S_WG}, 8")
        A(f"s_add_u32 s{T}, s{T}, {WS_TS}")
        A(f"buffer_store_dword v200, v5, s[{SRD_WS}:{SRD_WS+3}], s{T} offen")
        A(f"{l}:")
    A("s_endpgm")
    A("L_hissue:")
    self.wjob_params()
    A(f"v_mul_lo_u32 v48, v40, s{S_HSTR}")
    A(f"v_add_u32 v48, v48, v41")
    A(f"s_lshl_b32 s{T+6}, s{S_HG}, 6")
    A(f"s_mul_i32 s{T+6}, s{T+6}, s{S_HSTR}")
    A(f"s_lshl_b32 s{T+7}, s{S_HP}, 7")
    A(f"s_add_u32 s{T+6}, s{T+6}, s{T+7}")
    A(f"s_lshl_b32 s{T+7}, s{S_HSTR}, 3")
    for i in range(8):
        A(f"s_add_u32 m0, s{S_HL}, {i*1024}")
        A(f"buffer_load_dwordx4 v48, s[{SRD_W}:{SRD_W+3}], s{T+6} offen lds")
        if i<7: A(f"s_add_u32 s{T+6}, s{T+6}, s{T+7}")
    A(f"s_setpc_b64 s[{S_HRET}:{S_HRET+1}]")
    A("L_hpost:")
    self.wjob_params()
    J=64
    A(f"s_cmp_eq_u32 s{S_HK}, 4")
    A(f"s_cselect_b32 s{T}, 10, 9")
    A(f"s_lshl_b32 s{T+1}, s{S_HK}, 7")
    A(f"v_lshlrev_b32 v50, s{T}, v43")
    A(f"v_add_u32 v50, v50, v42")
    A(f"v_add_u32 v50, s{S_HL}, v50")
    A(f"v_add_u32 v51, s{T+1}, v50")
    A(f"v_xor_b32 v52, 64, v50")
    A(f"v_xor_b32 v53, 64, v51")
    def rd(k):
        kap,e=k>>1,k&1; r=J+4*k
        A(f"ds_read_b64_tr_b16 v[{r}:{r+1}], v{50+2*e} offset:{kap*2048}")
        A(f"ds_read_b64_tr_b16 v[{r+2}:{r+3}], v{51+2*e} offset:{kap*2048}")
    for k in range(6): rd(k)
    for k in range(8):
        kap,e=k>>1,k&1; r=J+4*k
        issued=min(8,6+k)
        A(f"s_waitcnt lgkmcnt({2*(issued-1-k)})")
        if e==0: A(f"s_add_u32 s{T+2}, s{S_HD}, {kap*1024}")
        else:
            A(f"s_add_u32 s{T+2}, s{S_HD}, s{S_HE}")
            A(f"s_add_u32 s{T+2}, s{T+2}, {kap*1024}")
        A(f"buffer_store_dwordx4 v[{r}:{r+3}], v54, s[{SRD_WS}:{SRD_WS+3}], s{T+2} offen sc1")
        if 6+k<8: rd(6+k)
    lcs=self.lab('Lcs')
    A(f"s_cmp_lg_u32 s{S_HK}, 4")
    A(f"s_cbranch_scc1 {lcs}")
    A("v_mov_b32 v55, 0x3f803f80")
    for k in range(8):
        e=k&1
        for d in range(4):
            c="0" if (k<2 and d==0) else f"v{56+e}"
            A(f"v_dot2_f32_bf16 v{56+e}, v{J+4*k+d}, v55, {c}")
    A("s_nop 2")
    A("v_permlane32_swap_b32 v56, v57")
    A("v_add_f32 v56, v56, v57")
    A(f"s_cmp_ge_u32 s{S_HY}, 196")
    A(f"s_cselect_b32 s{T+2}, 1, 0")
    A(f"s_lshl_b32 s{T+3}, s{S_HP}, 2")
    A(f"s_add_u32 s{T+2}, s{T+2}, s{T+3}")
    A(f"s_mul_i32 s{T+2}, s{T+2}, 7")
    A(f"s_add_u32 s{T+2}, s{T+2}, s{S_HG}")
    A(f"s_lshl_b32 s{T+2}, s{T+2}, 7")
    A(f"s_add_u32 s{T+2}, s{T+2}, {WS_CS}")
    A(f"buffer_store_dword v56, v58, s[{SRD_WS}:{SRD_WS+3}], s{T+2} offen sc1")
    A(f"{lcs}:")
    A(f"s_setpc_b64 s[{S_HRET}:{S_HRET+1}]")

def bf16_lo(dst, src): return f"v_lshlrev_b32 v{dst}, 16, v{src}"
def bf16_hi(dst, src): return f"v_and_b32 v{dst}, 0xffff0000, v{src}"

def cmul(A, R, P, Z, T):
    A(f"v_pk_mul_f32 v[{T}:{T+1}], v[{P}:{P+1}], v[{Z}:{Z+1}] op_sel_hi:[0,1]")
    A(f"v_pk_fma_f32 v[{R}:{R+1}], v[{P}:{P+1}], v[{Z}:{Z+1}], v[{T}:{T+1}] op_sel:[1,1,0] op_sel_hi:[1,0,1] neg_lo:[1,0,0]")

def kreg(e,name):
    names=['C','Z1','Z2','Z4','Z8','Z256','P','Q','R','T','X0','X1']
    return [128,152][e]+2*names.index(name)
ROWS=[0,1,2,3,4,5,6,7,256,258,260,262,512,516,768,772,1024,1280,1536,1792,2048]

@add_method
def kgen_setup(self):
    A=self.A
    A("s_waitcnt lgkmcnt(0)")
    A(f"s_lshl_b32 s{S_T0}, s{S_CH}, 4")
    A(f"s_lshr_b32 s{S_DT}, s{S_DT}, s{S_T0}")
    A(f"s_lshl_b32 s{S_DT}, s{S_DT}, 16")
    A(f"s_lshr_b32 s{S_DSKV}, s{S_DSKV}, s{S_T0}")
    A(f"s_lshl_b32 s{S_DSKV}, s{S_DSKV}, 16")
    DT=48
    A(f"v_mov_b32 v{DT}, s{S_DT}")
    A(f"v_mul_f32 v{DT}, {fl(LOG2E)}, v{DT}")
    A(f"v_exp_f32 v{DT}, v{DT}")
    A(f"v_cvt_pk_bf16_f32 v{DT}, v{DT}, v{DT}")
    A(f"v_lshlrev_b32 v{DT}, 16, v{DT}")
    A(f"v_and_b32 v50, 0x7fff7fff, v{V_PA+2}")
    A(f"v_and_b32 v51, 0x7fff7fff, v{V_PA+3}")
    A(f"v_and_b32 v52, 0x7fff7fff, v{V_PA+4}")
    A(f"v_and_b32 v53, 0x7fff7fff, v{V_PA+5}")
    A("v_pk_max_u16 v50, v50, v51")
    A("v_pk_max_u16 v52, v52, v53")
    A("v_pk_max_u16 v50, v50, v52")
    A("v_lshrrev_b32 v51, 16, v50")
    A("v_and_b32 v50, 0xffff, v50")
    A("v_max_u32 v50, v50, v51")
    for mode in ["row_shr:1 row_mask:0xf bank_mask:0xf bound_ctrl:0","row_shr:2 row_mask:0xf bank_mask:0xf bound_ctrl:0",
                 "row_shr:4 row_mask:0xf bank_mask:0xf bound_ctrl:0","row_shr:8 row_mask:0xf bank_mask:0xf bound_ctrl:0",
                 "row_bcast:15 row_mask:0xa bank_mask:0xf","row_bcast:31 row_mask:0xc bank_mask:0xf"]:
        A(f"v_max_u32_dpp v50, v50, v50 {mode}")
    A(f"v_readlane_b32 s{S_T0}, v50, 63")
    A(f"s_lshr_b32 s{S_T0}, s{S_T0}, 7")
    A(f"s_max_u32 s{S_T0}, s{S_T0}, 1")
    A(f"s_min_u32 s{S_T0}, s{S_T0}, 253")
    A(f"s_sub_u32 s{S_T0+1}, 254, s{S_T0}")
    A(f"s_lshl_b32 s{S_T0+1}, s{S_T0+1}, 23")
    A(f"s_lshl_b32 s{S_T0}, s{S_T0}, 23")
    A(f"v_add_f32 v49, v{DT}, v{DT}")
    A(f"v_mul_f32 v49, s{S_T0}, v49")
    A(f"v_readfirstlane_b32 s{S_YS}, v49")
    AR=[50,51]; TH=[52,53]
    reg=kreg
    for e in range(2):
        un = bf16_lo if e==0 else bf16_hi
        A(un(AR[e], V_PA)); A(un(TH[e], V_PA+1))
        A(un(reg(e,'C'), V_PA+2)); A(un(reg(e,'C')+1, V_PA+3))
    for e in range(2):
        A(f"v_mul_f32 v{AR[e]}, {fl(LOG2E)}, v{AR[e]}")
    for e in range(2): A(f"v_exp_f32 v{AR[e]}, v{AR[e]}")
    for e in range(2):
        A(f"v_cvt_pk_bf16_f32 v{AR[e]}, v{AR[e]}, v{AR[e]}")
    for e in range(2):
        A(f"v_lshlrev_b32 v{AR[e]}, 16, v{AR[e]}")
    for e in range(2):
        A(f"v_mul_f32 v{AR[e]}, v{AR[e]}, v{DT}")
        A(f"v_mul_f32 v{TH[e]}, v{TH[e]}, v{DT}")
    for e in range(2):
        A(f"v_mul_f32 v{AR[e]}, {fl(-LOG2E)}, v{AR[e]}")
        A(f"v_mul_f32 v{TH[e]}, {fl(INV2PI)}, v{TH[e]}")
        c=reg(e,'C')
        A(f"v_mul_f32 v{c}, s{S_T0+1}, v{c}")
        A(f"v_mul_f32 v{c+1}, s{S_T0+1}, v{c+1}")
    for name,p in (('Z1',1.0),('Z8',8.0),('Z256',256.0)):
        for e in range(2):
            z=reg(e,name); x0=reg(e,'X0'); x1=reg(e,'X1')
            if p==1.0:
                A(f"v_exp_f32 v{x0}, v{AR[e]}")
                A(f"v_fract_f32 v{x0+1}, v{TH[e]}")
            else:
                A(f"v_mul_f32 v{x0}, {fl(p)}, v{AR[e]}")
                A(f"v_mul_f32 v{x0+1}, {fl(p)}, v{TH[e]}")
                A(f"v_exp_f32 v{x0}, v{x0}")
                A(f"v_fract_f32 v{x0+1}, v{x0+1}")
            A(f"v_cos_f32 v{x1}, v{x0+1}")
            A(f"v_sin_f32 v{x1+1}, v{x0+1}")
        for e in range(2):
            z=reg(e,name); x0=reg(e,'X0'); x1=reg(e,'X1')
            A(f"v_pk_mul_f32 v[{z}:{z+1}], v[{x1}:{x1+1}], v[{x0}:{x0+1}] op_sel_hi:[1,0]")
    if self.xmode=='gather': A(self.gl[self.gi]); self.gi+=1
    for e in range(2): cmul(A, reg(e,'Z2'), reg(e,'Z1'), reg(e,'Z1'), reg(e,'T'))
    for e in range(2): cmul(A, reg(e,'Z4'), reg(e,'Z2'), reg(e,'Z2'), reg(e,'T'))

@add_method
def kgen_gen(self):
    A=self.A
    reg=kreg
    VA=104
    A(f"s_mul_i32 s{S_T0+2}, s{S_W}, {KG_WAVE}")
    A(f"v_lshl_add_u32 v{VA}, v{V_LANE}, 3, s{S_T0+2}")
    OUT=[106,108,110,112]; oi=[0]
    def emit(idx, name, neg):
        if self.xmode=='xt' and idx==36: self.xflag_publish()
        if self.xmode=='gather' and idx in self.gidx: A(self.gl[self.gi]); self.gi+=1
        o=OUT[oi[0]%4]; oi[0]+=1
        for e in range(2):
            r=reg(e,name)
            A(f"v_cvt_pk_f16_f32 v{o+e}, v{r}, {'-' if neg else ''}v{r+1}")
        A(f"ds_write_b64 v{VA}, v[{o}:{o+1}] offset:{idx*KG_PITCH}")
    def step(dst, src, z):
        for e in range(2):
            A(f"v_pk_mul_f32 v[{reg(e,'T')}:{reg(e,'T')+1}], v[{reg(e,src)}:{reg(e,src)+1}], v[{reg(e,z)}:{reg(e,z)+1}] op_sel_hi:[0,1]")
        for e in range(2):
            A(f"v_pk_fma_f32 v[{reg(e,dst)}:{reg(e,dst)+1}], v[{reg(e,src)}:{reg(e,src)+1}], v[{reg(e,z)}:{reg(e,z)+1}], v[{reg(e,'T')}:{reg(e,'T')+1}] op_sel:[1,1,0] op_sel_hi:[1,0,1] neg_lo:[1,0,0]")
    emit(0,'C',True)
    step('P','C','Z1'); emit(1,'P',True)
    for r in range(2,8): step('P','P','Z1'); emit(r,'P',True)
    step('Q','C','Z256'); emit(8,'Q',True)
    step('R','Q','Z2'); emit(9,'R',True)
    step('R','R','Z2'); emit(10,'R',True)
    step('R','R','Z2'); emit(11,'R',True)
    step('Q','Q','Z256'); emit(12,'Q',True)
    step('R','Q','Z4'); emit(13,'R',True)
    step('Q','Q','Z256'); emit(14,'Q',True)
    step('R','Q','Z4'); emit(15,'R',True)
    for r in range(16,21): step('Q','Q','Z256'); emit(r,'Q',True)
    o=OUT[oi[0]%4]; oi[0]+=1
    A(f"v_mov_b32 v{o}, 0x3c00\nv_mov_b32 v{o+1}, 0x3c00")
    A(f"ds_write_b64 v{VA}, v[{o}:{o+1}] offset:{21*KG_PITCH}")
    emit(22,'Z8',False)
    step('P','Z8','Z8'); emit(23,'P',False)
    for b in range(3,32): step('P','P','Z8'); emit(21+b,'P',False)
    if self.xmode=='gather':
        while self.gi<8: A(self.gl[self.gi]); self.gi+=1
    self.stamp('gen done')
    A(f"s_mul_i32 s{S_T0+2}, s{S_W}, {KG_WAVE}")
    VAa=104; VAb=105
    A(f"v_and_b32 v48, 31, v{V_LANE}")
    A(f"v_min_u32 v49, 20, v48")
    A(f"v_lshrrev_b32 v50, 5, v{V_LANE}")
    A(f"v_lshlrev_b32 v50, 4, v50")
    A(f"v_add_u32 v50, s{S_T0+2}, v50")
    A(f"s_movk_i32 s{S_T0+3}, {KG_PITCH}")
    A(f"v_mad_u32_u24 v{VAa}, v49, s{S_T0+3}, v50")
    A(f"v_mad_u32_u24 v{VAb}, v48, s{S_T0+3}, v50")
    ACC=112
    FR=[64,72,80,88]
    def ld(ks):
        f=FR[ks%4]
        A(f"ds_read_b128 v[{f}:{f+3}], v{VAa} offset:{ks*32}")
        A(f"ds_read_b128 v[{f+4}:{f+7}], v{VAb} offset:{21*KG_PITCH+ks*32}")
    for ks in range(3): ld(ks)
    for ks in range(16):
        if ks+3<16: ld(ks+3)
        nxt=min(15,ks+3)-ks
        A(f"s_waitcnt lgkmcnt({2*nxt})")
        f=FR[ks%4]
        c = "0" if ks==0 else f"v[{ACC}:{ACC+15}]"
        A(f"v_mfma_f32_32x32x16_f16 v[{ACC}:{ACC+15}], v[{f}:{f+3}], v[{f+4}:{f+7}], {c}")
    l1=self.lab(); l2=self.lab()
    A(f"v_lshl_add_u32 v48, v{V_LANE}, 4, s{S_T0+2}")
    A(f"s_cmp_eq_u32 s{S_NH}, 0")
    A(f"s_cbranch_scc1 {l1}")
    for q in range(3): A(f"ds_write_b128 v48, v[{ACC+4*q}:{ACC+4*q+3}] offset:{q*1024}")
    A(f"{l1}:")
    A("s_nop 1")
    A("s_waitcnt lgkmcnt(0)")
    self.stamp('kmfma')
    A("s_barrier")
    self.stamp('kbar1')
    A(f"s_cmp_eq_u32 s{S_NH}, 0")
    A(f"s_cbranch_scc0 {l2}")
    for q in range(3): A(f"ds_read_b128 v[{64+4*q}:{64+4*q+3}], v48 offset:{KG_WAVE+q*1024}")
    A("s_waitcnt lgkmcnt(0)")
    for r in range(12):
        A(f"v_add_f32 v{64+r}, v{64+r}, v{ACC+r}")
    for r in range(12):
        A(f"v_cvt_f16_f32 v{64+r}, v{64+r}")
    for r in range(4): A(f"ds_write_b16 v176, v{64+r} offset:{2*r}")
    for r in (4,5): A(f"ds_write_b16 v177, v{64+r} offset:{2*(r-4)}")
    for r in (6,7): A(f"ds_write_b16 v178, v{64+r} offset:{2*(r-6)}")
    for r in range(8,12): A(f"ds_write_b16 v179, v{64+r} offset:{1024+64*(r-8)}")
    A(f"v_mov_b32 v50, 0")
    A(f"v_mov_b32 v51, s{S_T0+2}")
    A(f"ds_write_b16 v51, v50 offset:{2*768}")
    A(f"{l2}:")
    self.granule_loads()
    A("s_waitcnt lgkmcnt(0)")
    A("s_barrier")

@add_method
def kexpand(self):
    A=self.A
    D0=64
    def rd(ch,x):
        tb=(2*ch)*KG_WAVE; d=D0+ch*28
        A(f"ds_read_u16 v{d+x}, v{V_OFF+x} offset:{tb}")
    def mk(ch):
        d=D0+ch*28
        for c in range(4):
            for x in range(4):
                A(f"v_lshl_or_b32 v{d+12+4*c+x}, v{d+c+2*x+1}, 16, v{d+c+2*x}")
    def wr(ch):
        d=D0+ch*28
        for c in range(4):
            r=d+12+4*c
            A(f"ds_write_b128 v49, v[{r}:{r+3}] offset:{ch*KX_CH+c*KX_COPY}")
    for x in range(11): rd(0,x)
    for x in range(4): rd(1,x)
    A(f"v_lshlrev_b32 v49, 4, v{V_T}")
    A(f"v_add_u32 v49, {LDS_KX}, v49")
    A("s_waitcnt lgkmcnt(4)")
    mk(0)
    for x in range(4,11): rd(1,x)
    wr(0)
    A("s_waitcnt lgkmcnt(4)")
    mk(1)
    wr(1)

S_GB=76
S_GB2=82
S_KSTR=68
@add_method
def stage_w(self, kind):
    A=self.A
    RING=24576
    if kind=='w1':
        stride=3584
        A(f"s_mov_b32 s{SRD_W}, s{S_WGT}\ns_mov_b32 s{SRD_W+1}, s{S_WGT+1}\ns_mov_b32 s{SRD_W+2}, {D_*F_*2}\ns_mov_b32 s{SRD_W+3}, 0x20000")
        A(f"s_mov_b32 s{SRD_W2}, s{S_WUP}\ns_mov_b32 s{SRD_W2+1}, s{S_WUP+1}\ns_mov_b32 s{SRD_W2+2}, {D_*F_*2}\ns_mov_b32 s{SRD_W2+3}, 0x20000")
        A(f"s_lshl_b32 s{S_T0}, s{S_J}, 8")
        A(f"s_lshl_b32 s{S_T0+1}, s{S_W}, 6")
        A(f"s_add_u32 s{S_T0}, s{S_T0}, s{S_T0+1}")
        for g in range(4):
            A(f"s_add_u32 s{S_T0+1}, s{S_W}, {g}")
            A(f"s_and_b32 s{S_T0+1}, s{S_T0+1}, 3")
            A(f"s_mul_i32 s{S_T0+1}, s{S_T0+1}, {7*16*stride}")
            A(f"s_add_u32 s{S_GB+g}, s{S_T0+1}, s{S_T0}")
        tileoff2=0
    else:
        stride=896
        A(f"s_mov_b32 s{SRD_W}, s{S_WD}\ns_mov_b32 s{SRD_W+1}, s{S_WD+1}\ns_mov_b32 s{SRD_W+2}, {D_*F_*2}\ns_mov_b32 s{SRD_W+3}, 0x20000")
        A(f"s_mov_b32 s{SRD_W2}, s{S_WD}\ns_mov_b32 s{SRD_W2+1}, s{S_WD+1}\ns_mov_b32 s{SRD_W2+2}, {D_*F_*2}\ns_mov_b32 s{SRD_W2+3}, 0x20000")
        A(f"s_cmp_ge_u32 s{S_J}, 7")
        A(f"s_cselect_b32 s{S_T0}, 7, 0")
        A(f"s_sub_u32 s{S_T0}, s{S_J}, s{S_T0}")
        A(f"s_lshl_b32 s{S_T0}, s{S_T0}, 7")
        A(f"s_mul_i32 s{S_T0+1}, s{S_W}, {448*stride}")
        A(f"s_add_u32 s{S_T0}, s{S_T0}, s{S_T0+1}")
        for g in range(4):
            A(f"s_add_u32 s{S_GB+g}, s{S_T0}, {g*7*16*stride}")
        tileoff2=64
    kstr=16*stride
    A(f"v_lshrrev_b32 v48, 2, v{V_LANE}")
    A(f"v_mul_u32_u24 v48, {stride}, v48")
    A(f"v_and_b32 v49, 3, v{V_LANE}")
    A(f"v_lshl_add_u32 v48, v49, 4, v48")
    if kind=='w1':
        A(f"v_mov_b32 v52, v48")
    else:
        A(f"s_lshl_b32 s{S_T0+1}, s{S_NH}, 6")
        A(f"s_xor_b32 s{S_T0+3}, s{S_T0+1}, 64")
        A(f"v_add_u32 v52, s{S_T0+3}, v48")
        A(f"v_add_u32 v48, s{S_T0+1}, v48")
    A(f"s_mul_i32 s{S_T0+2}, s{S_W}, {RING}")
    A(f"v_lshrrev_b32 v50, 5, v{V_LANE}")
    A(f"v_lshlrev_b32 v50, {9 if kind=='w1' else 8}, v50")
    A(f"v_bfe_u32 v51, v{V_LANE}, 2, 2")
    A(f"v_lshl_add_u32 v50, v51, 6, v50")
    A(f"v_bfe_u32 v51, v{V_LANE}, 4, 1")
    A(f"v_lshl_add_u32 v50, v51, 5, v50")
    A(f"v_and_b32 v51, 3, v{V_LANE}")
    A(f"v_lshl_add_u32 v50, v51, 3, v50")
    A(f"v_add_u32 v50, s{S_T0+2}, v50")
    second = 256 if kind=='w1' else 512
    def issue(c):
        slot=c%3
        for i in range(4):
            s=4*c+i; g=s//7; r=s%7
            A(f"s_add_u32 s{S_T0+3}, s{S_GB+g}, {r*kstr}")
            A(f"s_add_u32 m0, s{S_T0+2}, {slot*8192+i*2048}")
            A(f"buffer_load_dwordx4 v48, s[{SRD_W}:{SRD_W+3}], s{S_T0+3} offen lds")
            A(f"s_add_u32 m0, s{S_T0+2}, {slot*8192+i*2048+1024}")
            A(f"buffer_load_dwordx4 v52, s[{SRD_W2}:{SRD_W2+3}], s{S_T0+3} offen lds")
    for c in range(3): issue(c)
    for c in range(7):
        A(f"s_waitcnt vmcnt({8*min(2,6-c)})")
        slot=c%3
        for i in range(4):
            s=4*c+i
            for tile in range(2):
                a=8*s+4*tile; off=slot*8192+i*2048+tile*1024
                A(f"ds_read_b64_tr_b16 a[{a}:{a+1}], v50 offset:{off}")
                A(f"ds_read_b64_tr_b16 a[{a+2}:{a+3}], v50 offset:{off+second}")
            if i==1: A("s_waitcnt lgkmcnt(4)")
        if c+3<7:
            A("s_waitcnt lgkmcnt(0)")
            issue(c+3)
    A("s_waitcnt lgkmcnt(0)")

@add_method
def flag_load(self):
    A=self.A
    A(f"s_lshl_b32 s{S_T0}, s{S_J}, 2")
    A(f"s_add_u32 s{S_T0}, s{S_T0}, s{S_W}")
    A(f"s_lshr_b32 s{S_T0}, s{S_T0}, 1")
    A(f"s_mul_i32 s{S_T0}, s{S_T0}, 7")
    A(f"v_min_u32 v44, 13, v{V_LANE}")
    A(f"v_add_u32 v46, 189, v44")
    A(f"v_cmp_lt_u32 vcc, 6, v44")
    A(f"v_cndmask_b32 v44, v44, v46, vcc")
    A(f"v_add_u32 v44, s{S_T0}, v44")
    A(f"v_lshlrev_b32 v44, 6, v44")
    A(f"s_mov_b32 s{S_T0+11}, {WS_JF}")
    A(f"buffer_load_dword v46, v44, s[{SRD_WS}:{SRD_WS+3}], s{S_T0+11} offen sc1")

@add_method
def wdflag_load(self, S):
    A=self.A
    A(f"s_cmp_ge_u32 s{S_J}, 7")
    A(f"s_cselect_b32 s{S_T0+8}, 7, 0")
    A(f"s_sub_u32 s{S_T0+8}, s{S_J}, s{S_T0+8}")
    A(f"s_mul_i32 s{S_T0+8}, s{S_T0+8}, 28")
    A(f"s_mul_i32 s{S_T0+9}, s{S_W}, 7")
    A(f"s_add_u32 s{S_T0+8}, s{S_T0+8}, s{S_T0+9}")
    A(f"s_add_u32 s{S_T0+8}, s{S_T0+8}, 392")
    A(f"v_min_u32 v44, 6, v{V_LANE}")
    A(f"v_add_u32 v44, s{S_T0+8}, v44")
    A(f"v_lshlrev_b32 v44, 6, v44")
    A(f"s_mov_b32 s{S_T0+11}, {WS_JF}")
    S.vmem(f"buffer_load_dword v46, v44, s[{SRD_WS}:{SRD_WS+3}], s{S_T0+11} offen sc1","WDF")

@add_method
def wdflag_check(self, S):
    A=self.A
    lp=self.lab('Lpoll'); le=self.lab()
    S.need_vm(["WDF"])
    A(f"s_mov_b32 s{S_T0+8}, 0")
    A(f"{lp}:")
    A(f"v_cmp_eq_u32 vcc, s{S_TAG}, v46")
    A(f"s_and_b32 s{S_T0+9}, vcc_lo, 0x7f")
    A(f"s_cmp_eq_u32 s{S_T0+9}, 0x7f")
    A(f"s_cbranch_scc1 {le}")
    A(f"buffer_load_dword v46, v44, s[{SRD_WS}:{SRD_WS+3}], s{S_T0+11} offen sc1")
    A("s_waitcnt vmcnt(0)")
    A(f"s_add_u32 s{S_T0+8}, s{S_T0+8}, 1")
    A(f"s_cmp_lt_u32 s{S_T0+8}, 0x8000")
    A(f"s_cbranch_scc1 {lp}")
    A(f"{le}:")

@add_method
def granule_loads(self):
    A=self.A; SG=144
    if self.xmode=='gather':
        A(f"v_lshlrev_b32 v43, 6, v{V_T}")
        A(f"s_mov_b32 s{S_T0+13}, {WS_STATS}")
        for k in range(4):
            A(f"buffer_load_dwordx4 v[{SG+4*k}:{SG+4*k+3}], v43, s[{SRD_WS}:{SRD_WS+3}], s{S_T0+13} offen offset:{16*k} sc1")
        return
    A(f"s_lshr_b32 s{S_T0+12}, s{S_D0}, 6")
    A(f"s_and_b32 s{S_T0+12}, s{S_T0+12}, 3")
    A(f"s_lshl_b32 s{S_T0+12}, s{S_T0+12}, 6")
    A(f"s_add_u32 s{S_T0+12}, s{S_T0+12}, {WS_XF}")
    A(f"v_lshlrev_b32 v37, 8, v{V_T}")
    A(f"buffer_load_dword v36, v37, s[{SRD_WS}:{SRD_WS+3}], s{S_T0+12} offen sc1")
    A(f"v_lshlrev_b32 v43, 6, v{V_T}")
    A(f"s_mov_b32 s{S_T0+13}, {WS_STATS}")
    for k in range(4):
        A(f"buffer_load_dwordx4 v[{SG+4*k}:{SG+4*k+3}], v43, s[{SRD_WS}:{SRD_WS+3}], s{S_T0+13} offen offset:{16*k} sc1")

@add_method
def granule_wait(self):
    A=self.A; SG=144
    lp=self.lab('Lpoll'); le=self.lab()
    A(f"s_mov_b32 s{S_T0+1}, 0")
    A("s_waitcnt vmcnt(0)")
    A(f"{lp}:")
    if self.xmode=='gather': A("v_mov_b32 v49, 0")
    else: A(f"v_xor_b32 v49, s{S_TAG}, v36")
    for k in range(8):
        A(f"v_xor_b32 v50, s{S_TAG}, v{SG+2*k+1}")
        A(f"v_or_b32 v49, v49, v50")
    A("v_cmp_ne_u32 vcc, 0, v49")
    A(f"s_add_u32 s{S_T0+1}, s{S_T0+1}, 1")
    A(f"s_cbranch_vccz {le}")
    if self.xmode=='xt': A(f"buffer_load_dword v36, v37, s[{SRD_WS}:{SRD_WS+3}], s{S_T0+12} offen sc1")
    for k in range(4):
        A(f"buffer_load_dwordx4 v[{SG+4*k}:{SG+4*k+3}], v43, s[{SRD_WS}:{SRD_WS+3}], s{S_T0+13} offen offset:{16*k} sc1")
    A("s_waitcnt vmcnt(0)")
    A(f"s_cmp_lt_u32 s{S_T0+1}, 0x8000")
    A(f"s_cbranch_scc1 {lp}")
    A(f"{le}:")

@add_method
def flag_wait(self, mask, landed=False, sleep=0):
    A=self.A
    lp=self.lab('Lpoll'); le=self.lab(); lf=self.lab()
    A(f"s_mov_b32 s{S_T0+1}, 0")
    if landed: A(f"s_branch {lf}")
    A(f"{lp}:")
    A("s_waitcnt vmcnt(0)")
    A(f"{lf}:")
    A(f"v_cmp_eq_u32 vcc, s{S_TAG}, v46")
    A(f"s_and_b32 s{S_T0+2}, vcc_lo, {hex(mask)}")
    A(f"s_cmp_eq_u32 s{S_T0+2}, {hex(mask)}")
    A(f"s_cbranch_scc1 {le}")
    if sleep: A(f"s_sleep {sleep}")
    A(f"buffer_load_dword v46, v44, s[{SRD_WS}:{SRD_WS+3}], s{S_T0+11} offen sc1")
    A(f"s_add_u32 s{S_T0+1}, s{S_T0+1}, 1")
    A(f"s_cmp_lt_u32 s{S_T0+1}, 0x8000")
    A(f"s_cbranch_scc1 {lp}")
    A(f"{le}:")

@add_method
def xt_loads(self):
    A=self.A; XA=8
    A(f"s_movk_i32 s{S_T0+2}, 7168")
    A(f"v_mul_lo_u32 v48, v{V_T}, s{S_T0+2}")
    A(f"s_lshl_b32 s{S_T0+2}, s{S_D0}, 4")
    A(f"s_add_u32 s{S_T0+2}, s{S_T0+2}, {WS_XT}")
    A(f"buffer_load_dwordx4 v[{XA}:{XA+3}], v48, s[{SRD_WS}:{SRD_WS+3}], s{S_T0+2} offen sc1")
    A(f"buffer_load_dwordx4 v[{XA+4}:{XA+7}], v48, s[{SRD_WS}:{SRD_WS+3}], s{S_T0+2} offen offset:16 sc1")

@add_method
def w1_setup(self):
    A=self.A
    A(f"s_lshl_b32 s{S_T0}, s{S_J}, 2")
    A(f"s_add_u32 s{S_T0}, s{S_T0}, s{S_W}")
    A(f"s_mul_i32 s{S_T0}, s{S_T0}, 56")
    for g in range(4):
        A(f"s_add_u32 s{S_T0+1}, s{S_W}, {g}")
        A(f"s_and_b32 s{S_T0+1}, s{S_T0+1}, 3")
        A(f"s_mul_i32 s{S_T0+1}, s{S_T0+1}, 7")
        A(f"s_add_u32 s{S_T0+1}, s{S_T0+1}, s{S_T0}")
        A(f"s_lshl_b32 s{S_T0+1}, s{S_T0+1}, 10")
        A(f"s_add_u32 s{S_GB+g}, s{S_T0+1}, {WS_WF1}")
        A(f"s_add_u32 s{S_GB2+g}, s{S_GB+g}, {28*1024}")
    A(f"v_lshlrev_b32 v45, 4, v{V_LANE}")
    A(f"v_add_u32 v3, 4096, v45")

@add_method
def w1_items(self, s0, s1):
    out=[]
    for s in range(s0,s1):
        g=s//7; i=s%7
        for t in range(2):
            sb=(S_GB if t==0 else S_GB2)+g
            va,off=("v45",i*1024) if i<4 else ("v3",(i-4)*1024)
            out.append([f"buffer_load_dwordx4 a[{8*s+4*t}:{8*s+4*t+3}], {va}, s[{SRD_WS}:{SRD_WS+3}], s{sb} offen offset:{off} sc1"])
    return out
@add_method
def w1_loads(self, s0, s1):
    for it in self.w1_items(s0,s1):
        for x in it: self.A(x)

@add_method
def x_prepare(self):
    A=self.A
    A("s_waitcnt vmcnt(4)")
    for ch in range(2):
        for j in range(8): A((bf16_lo if ch==0 else bf16_hi)(96+8*ch+j, V_XG+j))
    A(f"s_mov_b32 s{S_T0+2}, 0x05040100")
    A(f"s_mov_b32 s{S_T0+3}, 0x07060302")
    for ch in range(2):
        for j in range(0,8,2):
            A(f"v_perm_b32 v{176+ch*4+j//2}, v{V_XG+j+1}, v{V_XG+j}, s{S_T0+2+ch}")
    A(f"v_lshlrev_b32 v48, 4, v{V_T}")
    A(f"v_add_u32 v42, {LDS_U+512}, v48")
    A(f"v_add_u32 v50, {LDS_XT}, v48")
    A(f"ds_write_b128 v50, v[176:179]")
    A(f"ds_write_b128 v50, v[180:183] offset:{XT_CH}")
    self.w1_setup()

@add_method
def stats_consume(self):
    A=self.A
    SG=144
    for j in range(8):
        A(f"v_lshlrev_b32 v{80+j}, 16, v{SG+2*j}")
        A(f"v_and_b32 v{88+j}, 0xffff0000, v{SG+2*j}")
    for j in range(8): A(f"v_rcp_f32 v{80+j}, v{80+j}")
    for ch in range(2):
        X=96+ch*8
        for j in range(0,8,2):
            A(f"v_pk_add_f32 v[{X+j}:{X+j+1}], v[{X+j}:{X+j+1}], v[{88+j}:{88+j+1}] neg_lo:[0,1] neg_hi:[0,1]")
        if self.mimic>=2:
            for j in range(0,8,2):
                A(f"v_cvt_pk_bf16_f32 v{128+j//2}, v{X+j}, v{X+j+1}")
            for j in range(0,8,2):
                A(bf16_lo(X+j,128+j//2)); A(bf16_hi(X+j+1,128+j//2))
        for j in range(0,8,2):
            A(f"v_pk_mul_f32 v[{X+j}:{X+j+1}], v[{X+j}:{X+j+1}], v[{80+j}:{80+j+1}]")
        if self.mimic>=1:
            for j in range(0,8,2):
                A(f"v_cvt_pk_bf16_f32 v{128+j//2}, v{X+j}, v{X+j+1}")
            for j in range(0,8,2):
                A(bf16_lo(X+j,128+j//2)); A(bf16_hi(X+j+1,128+j//2))
        U=132+ch*4
        for j in range(0,8,2):
            A(f"v_cvt_pk_f16_f32 v{U+j//2}, v{X+j}, v{X+j+1}")
        A(f"ds_write_b128 v42, v[{U}:{U+3}] offset:{ch*U_CH}")
    if self.w1pf or self.w1start: self.flag_load()
    A("s_waitcnt lgkmcnt(0)")
    A("s_barrier")

@add_method
def w1_rest(self):
    self.w1_loads(W1_IN_CONV,28)

@add_method
def wd_loads(self, s0, s1, S=None):
    out=[]
    for s in range(s0,s1):
        for ca in range(2):
            out.append(f"s_add_u32 s{S_T0+14}, s{S_T0+12+ca}, {s*1024}")
            out.append(('vm',f"buffer_load_dwordx4 a[{8*s+4*ca}:{8*s+4*ca+3}], v47, s[{SRD_WS}:{SRD_WS+3}], s{S_T0+14} offen sc1",f"WD{s}"))
    return out

@add_method
def wd_setup(self):
    A=self.A
    A(f"s_cmp_ge_u32 s{S_J}, 7")
    A(f"s_cselect_b32 s{S_T0+14}, 7, 0")
    A(f"s_sub_u32 s{S_T0+14}, s{S_J}, s{S_T0+14}")
    A(f"s_lshl_b32 s{S_T0+14}, s{S_T0+14}, 1")
    for ca in range(2):
        A(f"s_xor_b32 s{S_T0+12+ca}, s{S_NH}, {ca}")
        A(f"s_add_u32 s{S_T0+12+ca}, s{S_T0+12+ca}, s{S_T0+14}")
        A(f"s_mul_i32 s{S_T0+12+ca}, s{S_T0+12+ca}, 112")
        A(f"s_mul_i32 s{S_T0+15}, s{S_W}, 28")
        A(f"s_add_u32 s{S_T0+12+ca}, s{S_T0+12+ca}, s{S_T0+15}")
        A(f"s_lshl_b32 s{S_T0+12+ca}, s{S_T0+12+ca}, 10")
        A(f"s_add_u32 s{S_T0+12+ca}, s{S_T0+12+ca}, {WS_WFD}")
    A(f"v_lshlrev_b32 v47, 4, v{V_LANE}")

W1_PRE=16
W1_IN_CONV=0
C_ACC=64
C_F=[96,160]
C_G=[128,192]
C_VF=34; C_VG=35
C_EU=224; C_EX=232
@add_method
def conv_setup(self):
    A=self.A
    A(f"v_and_b32 v50, 15, v{V_LANE}")
    A(f"v_lshrrev_b32 v51, 4, v{V_LANE}")
    A(f"v_sub_u32 v52, 3, v50")
    A(f"v_and_b32 v52, 3, v52")
    A(f"v_mul_u32_u24 v52, {KX_COPY}, v52")
    A(f"v_lshrrev_b32 v53, 2, v50")
    A(f"v_lshlrev_b32 v53, 3, v53")
    A(f"v_sub_u32 v52, v52, v53")
    A(f"v_lshl_add_u32 v52, v51, 4, v52")
    A(f"s_mul_i32 s{S_T0}, s{S_CH}, {KX_CH}")
    A(f"s_lshl_b32 s{S_T0+1}, s{S_NH}, 8")
    A(f"s_sub_u32 s{S_T0}, s{S_T0}, s{S_T0+1}")
    A(f"s_add_u32 s{S_T0}, s{S_T0}, {LDS_KX+2*2028-64*63}")
    A(f"v_add_u32 v{C_VF}, s{S_T0}, v52")
    A(f"v_lshlrev_b32 v52, 5, v50")
    A(f"v_lshl_add_u32 v52, v51, 4, v52")
    A(f"s_mul_i32 s{S_T0}, s{S_CH}, {U_CH}")
    A(f"s_sub_u32 s{S_T0}, s{S_T0}, s{S_T0+1}")
    A(f"s_add_u32 s{S_T0}, s{S_T0}, {LDS_U+480-192}")
    A(f"v_add_u32 v{C_VG}, s{S_T0}, v52")
    A(f"v_lshlrev_b32 v52, 5, v50")
    A(f"v_lshl_add_u32 v52, v51, 3, v52")
    A(f"s_lshl_b32 s{S_T0}, s{S_NH}, 11")
    A(f"s_mul_i32 s{S_T0+1}, s{S_CH}, {U_CH}")
    A(f"s_add_u32 s{S_T0+1}, s{S_T0+1}, s{S_T0}")
    A(f"s_add_u32 s{S_T0+1}, s{S_T0+1}, {LDS_U+512}")
    A(f"v_add_u32 v36, s{S_T0+1}, v52")
    A(f"s_mul_i32 s{S_T0+1}, s{S_CH}, {XT_CH}")
    A(f"s_add_u32 s{S_T0+1}, s{S_T0+1}, s{S_T0}")
    A(f"s_add_u32 s{S_T0+1}, s{S_T0+1}, {LDS_XT}")
    A(f"v_add_u32 v37, s{S_T0+1}, v52")
    A(f"v_and_b32 v38, 1, v51")
    A(f"v_lshlrev_b32 v38, 3, v38")
    A(f"v_lshrrev_b32 v53, 1, v50")
    A(f"v_add_u32 v38, v38, v53")
    A(f"s_movk_i32 s{S_T0+8}, {448*64}")
    A(f"v_mul_lo_u32 v38, v38, s{S_T0+8}")
    A(f"v_and_b32 v53, 1, v50")
    A(f"v_lshl_add_u32 v38, v53, 5, v38")
    A(f"v_lshrrev_b32 v53, 1, v51")
    A(f"v_lshl_add_u32 v38, v53, 4, v38")
    A(f"s_lshl_b32 s{S_T0+8}, s{S_NH}, 5")
    A(f"s_mul_i32 s{S_T0+8}, s{S_T0+8}, {448*64}")
    A(f"s_add_u32 s{S_T0+9}, s{S_D0}, s{S_CH}")
    A(f"s_lshl_b32 s{S_T0+9}, s{S_T0+9}, 6")
    A(f"s_add_u32 s{S_T0+8}, s{S_T0+8}, s{S_T0+9}")
    A(f"s_add_u32 s22, s{S_T0+8}, {WS_HT}")
    A(f"s_add_u32 s23, s22, {16*448*64}")

@add_method
def conv(self):
    A=self.A
    def loads(sp):
        st=sp&1; out=[]
        for k in range(8):
            g=C_G[st]+4*k; f=C_F[st]+4*k
            out.append(f"ds_read_b128 v[{g}:{g+3}], v{C_VG} offset:{512*k+64*(3-sp)}")
            o=64*(63-8*k-sp)
            out.append(f"ds_read_b64 v[{f}:{f+1}], v{C_VF} offset:{o}")
            out.append(f"ds_read_b64 v[{f+2}:{f+3}], v{C_VF} offset:{o+8}")
        return out
    def mfmas(sp):
        st=sp&1; out=[]
        for t in range(8):
            for d in range(t+1):
                acc=C_ACC+4*t
                c = "0" if (sp==0 and d==0) else f"v[{acc}:{acc+3}]"
                out.append((t,d,f"v_mfma_f32_16x16x32_f16 v[{acc}:{acc+3}], v[{C_F[st]+4*d}:{C_F[st]+4*d+3}], v[{C_G[st]+4*(t-d)}:{C_G[st]+4*(t-d)+3}], {c}"))
        return out
    l0=loads(0)
    for k in range(5):
        for x in l0[3*k:3*k+3]: A(x)
    issued=5
    nconv=self.w1n if self.w1start else 0
    self.w1_in_conv=nconv
    wl=self.w1_items(0,nconv); wi=[0]; mc=[0]; cur_sp=[0]
    def wfill():
        if not self.w1start or cur_sp[0]<self.w1start: return
        mc[0]+=1
        if mc[0]%self.w1step==1 and wi[0]<len(wl):
            for x in wl[wi[0]]: A(x)
            wi[0]+=1
    nxt=loads(1); ni=0
    cur_t=-1
    for (t,d,txt) in mfmas(0):
        first = (t!=cur_t)
        if first:
            cur_t=t
            if t<=3: A(f"s_waitcnt lgkmcnt({3*(issued-1-t)})")
            elif t==4: A("s_waitcnt lgkmcnt(0)")
        A(txt)
        if first and issued<8:
            for x in l0[3*issued:3*issued+3]: A(x)
            issued+=1
        elif t>=4 and ni<len(nxt):
            A(nxt[ni]); ni+=1
    assert ni==len(nxt)

    epi=[]
    for tt in range(4):
        epi.append(f"ds_read_b64 v[{C_EU+2*tt}:{C_EU+2*tt+1}], v36 offset:{512*tt}")
        epi.append(f"ds_read_b64 v[{C_EX+2*tt}:{C_EX+2*tt+1}], v37 offset:{512*tt}")
    U=224; X=240
    PRE=160
    PRE=96
    UU=112
    pre=[]
    if self.mimic==0:
        pre.append(f"v_mov_b32 v47, s{S_DSKV}")
        for tt in range(4):
            for h in range(2):
                pre.append(f"v_cvt_f32_f16 v{UU+4*tt+2*h}, v{C_EU+2*tt+h}")
                pre.append(f"v_lshrrev_b32 v{UU+4*tt+2*h+1}, 16, v{C_EU+2*tt+h}")
                pre.append(f"v_cvt_f32_f16 v{UU+4*tt+2*h+1}, v{UU+4*tt+2*h+1}")
                pre.append(bf16_lo(PRE+4*tt+2*h, C_EX+2*tt+h)); pre.append(bf16_hi(PRE+4*tt+2*h+1, C_EX+2*tt+h))
        for r in range(16): pre.append(f"v_fma_f32 v{PRE+r}, v{UU+r}, v47, v{PRE+r}")
    for sp in range(1,4):
        if self.w1start and sp==self.w1start:
            self.flag_wait(0x3fff, sleep=self.fsleep)
            self.stamp('w1 flags')
        if self.w1pf and sp==self.w1pf:
            lpf=self.lab()
            A("s_waitcnt vmcnt(0)")
            A(f"v_cmp_eq_u32 vcc, s{S_TAG}, v46")
            A(f"s_and_b32 s{S_T0+2}, vcc_lo, 0x3fff")
            A(f"s_cmp_eq_u32 s{S_T0+2}, 0x3fff")
            A(f"s_cbranch_scc0 {lpf}")
            A(f"s_lshl_b32 s{S_T0+2}, s{S_J}, 2")
            A(f"s_add_u32 s{S_T0+2}, s{S_T0+2}, s{S_W}")
            A(f"s_mul_i32 s{S_T0+2}, s{S_T0+2}, {56*1024}")
            A(f"s_and_b32 s{S_T0+3}, s{S_I}, 3")
            A(f"s_mul_i32 s{S_T0+3}, s{S_T0+3}, {14*1024}")
            A(f"s_add_u32 s{S_T0+2}, s{S_T0+2}, s{S_T0+3}")
            A(f"s_add_u32 s{S_T0+2}, s{S_T0+2}, {WS_WF1}")
            A(f"v_min_u32 v40, 55, v{V_LANE}")
            A(f"v_lshlrev_b32 v40, 7, v40")
            A(f"buffer_load_dword v253, v40, s[{SRD_WS}:{SRD_WS+3}], s{S_T0+2} offen sc1")
            A(f"s_add_u32 s{S_T0+2}, s{S_T0+2}, {7*1024}")
            A(f"buffer_load_dword v252, v40, s[{SRD_WS}:{SRD_WS+3}], s{S_T0+2} offen sc1")
            A(f"{lpf}:")
        A("s_waitcnt lgkmcnt(0)")
        nxt = loads(sp+1) if sp<3 else epi
        cur_sp[0]=sp
        ni=0; pi=0; k=0
        for (t,d,txt) in mfmas(sp):
            A(txt); k+=1
            if ni<len(nxt): A(nxt[ni]); ni+=1
            elif sp==3 and pre:
                if k==12: A("s_waitcnt lgkmcnt(0)")
                if k>=12:
                    tgt=min(len(pre),(len(pre)*(k-11)+23)//24)
                    while pi<tgt: A(pre[pi]); pi+=1
            wfill()
        if sp==3:
            while pi<len(pre): A(pre[pi]); pi+=1
    assert wi[0]==len(wl)
    A(f"s_lshl_b32 s{S_T0}, s{S_W}, 12")
    A(f"v_lshl_add_u32 v55, v{V_LANE}, 4, s{S_T0}")
    if self.mimic==0:
        lA=self.lab(); lB=self.lab()
        A(f"s_cmp_eq_u32 s{S_NH}, 0")
        A(f"s_cbranch_scc0 {lA}")
        A("s_nop 5")
        for tt in range(4): A(f"ds_write_b128 v55, v[{C_ACC+16+4*tt}:{C_ACC+16+4*tt+3}] offset:{1024*tt}")
        A(f"s_branch {lB}")
        A(f"{lA}:")
        A("s_nop 5")
        for tt in range(4): A(f"ds_write_b128 v55, v[{C_ACC+4*tt}:{C_ACC+4*tt+3}] offset:{1024*tt}")
        A(f"{lB}:")
        A("v_xor_b32 v55, 4096, v55")
        A(f"v_mov_b32 v146, s{S_YS}\nv_mov_b32 v147, s{S_YS}")
        A("s_waitcnt lgkmcnt(0)")
        A("s_barrier")
        PT=128
        for tt in range(4): A(f"ds_read_b128 v[{PT+4*tt}:{PT+4*tt+3}], v55 offset:{1024*tt}")
        def fin(Y):
            for tt in range(4):
                A(f"s_waitcnt lgkmcnt({3-tt})")
                for p in (2*tt,2*tt+1):
                    A(f"v_pk_add_f32 v[{PT+2*p}:{PT+2*p+1}], v[{Y+2*p}:{Y+2*p+1}], v[{PT+2*p}:{PT+2*p+1}]")
                for p in (2*tt,2*tt+1):
                    A(f"v_pk_fma_f32 v[{PT+2*p}:{PT+2*p+1}], v[{PT+2*p}:{PT+2*p+1}], v[146:147], v[{PRE+2*p}:{PRE+2*p+1}]")
        lA=self.lab(); lB=self.lab()
        A(f"s_cmp_eq_u32 s{S_NH}, 0")
        A(f"s_cbranch_scc0 {lA}")
        fin(C_ACC)
        A(f"s_branch {lB}")
        A(f"{lA}:")
        fin(C_ACC+16)
        A(f"{lB}:")
        Y=PT
    else:
        l=self.lab()
        A(f"s_cmp_eq_u32 s{S_NH}, 0")
        A(f"s_cbranch_scc1 {l}")
        A("s_nop 7")
        for r in range(16): A(f"v_swap_b32 v{C_ACC+r}, v{C_ACC+16+r}")
        A(f"{l}:")
        A("s_nop 7")
        for tt in range(4): A(f"ds_write_b128 v55, v[{C_ACC+16+4*tt}:{C_ACC+16+4*tt+3}] offset:{1024*tt}")
        A("v_xor_b32 v55, 4096, v55")
        A("s_waitcnt lgkmcnt(0)")
        A("s_barrier")
    if self.mimic==0: pass
    else:
        for tt in range(4): A(f"ds_read_b128 v[{96+4*tt}:{96+4*tt+3}], v55 offset:{1024*tt}")
        U=112; X=128; Y=C_ACC
        for tt in range(4):
            for h in range(2):
                A(f"v_cvt_f32_f16 v{U+4*tt+2*h}, v{C_EU+2*tt+h}")
                A(f"v_cvt_f32_f16_sdwa v{U+4*tt+2*h+1}, v{C_EU+2*tt+h} dst_sel:DWORD dst_unused:UNUSED_PAD src0_sel:WORD_1")
                A(bf16_lo(X+4*tt+2*h, C_EX+2*tt+h)); A(bf16_hi(X+4*tt+2*h+1, C_EX+2*tt+h))
        A(f"v_mov_b32 v144, s{S_DSKV}\nv_mov_b32 v145, s{S_DSKV}\nv_mov_b32 v146, s{S_YS}\nv_mov_b32 v147, s{S_YS}")
        for p in range(8):
            A(f"v_pk_mul_f32 v[{U+2*p}:{U+2*p+1}], v[{U+2*p}:{U+2*p+1}], v[144:145]")
        if self.mimic>=1:
            for p in range(8): A(f"v_cvt_pk_bf16_f32 v{148+p}, v{U+2*p}, v{U+2*p+1}")
            for p in range(8): A(bf16_lo(U+2*p,148+p)); A(bf16_hi(U+2*p+1,148+p))
        A("s_waitcnt lgkmcnt(0)")
        for p in range(8):
            A(f"v_pk_add_f32 v[{Y+2*p}:{Y+2*p+1}], v[{Y+2*p}:{Y+2*p+1}], v[{96+2*p}:{96+2*p+1}]")
        for p in range(8):
            A(f"v_pk_mul_f32 v[{Y+2*p}:{Y+2*p+1}], v[{Y+2*p}:{Y+2*p+1}], v[146:147]")
        if self.mimic>=1:
            for p in range(8): A(f"v_cvt_pk_bf16_f32 v{148+p}, v{Y+2*p}, v{Y+2*p+1}")
            for p in range(8): A(bf16_lo(Y+2*p,148+p)); A(bf16_hi(Y+2*p+1,148+p))
        for p in range(8):
            A(f"v_pk_add_f32 v[{Y+2*p}:{Y+2*p+1}], v[{Y+2*p}:{Y+2*p+1}], v[{U+2*p}:{U+2*p+1}]")
        if self.mimic>=1:
            for p in range(8): A(f"v_cvt_pk_bf16_f32 v{148+p}, v{Y+2*p}, v{Y+2*p+1}")
            for p in range(8): A(bf16_lo(Y+2*p,148+p)); A(bf16_hi(Y+2*p+1,148+p))
        for p in range(8):
            A(f"v_pk_add_f32 v[{Y+2*p}:{Y+2*p+1}], v[{Y+2*p}:{Y+2*p+1}], v[{X+2*p}:{X+2*p+1}]")
    H=148
    for p in range(8): A(f"v_cvt_pk_bf16_f32 v{H+p}, v{Y+2*p}, v{Y+2*p+1}")
    for pr in range(2):
        b=H+4*pr
        A(f"v_permlane16_swap_b32 v{b}, v{b+2}")
        A(f"v_permlane16_swap_b32 v{b+1}, v{b+3}")
    A(f"buffer_store_dwordx4 v[{H}:{H+3}], v38, s[{SRD_WS}:{SRD_WS+3}], s22 offen sc1")
    A(f"buffer_store_dwordx4 v[{H+4}:{H+7}], v38, s[{SRD_WS}:{SRD_WS+3}], s23 offen sc1")

@add_method
def sync_all(self):
    A=self.A
    if not self.w1start: self.flag_load()
    A("s_waitcnt vmcnt(0)")
    A("s_barrier")
    l=self.lab()
    A(f"s_cmp_lg_u32 s{S_W}, 0")
    A(f"s_cbranch_scc1 {l}")
    A(f"s_and_b32 s{S_T0}, s{S_WG}, 7")
    A(f"s_lshl_b32 s{S_T0}, s{S_T0}, 7")
    A(f"s_add_u32 s{S_T0}, s{S_T0}, {WS_CNT2}")
    A(f"v_lshlrev_b32 v48, 10, v{V_LANE}")
    A("v_mov_b32 v49, 1")
    A("s_mov_b64 exec, 0xff")
    A(f"buffer_atomic_add v49, v48, s[{SRD_WS}:{SRD_WS+3}], s{S_T0} offen")
    A("s_mov_b64 exec, -1")
    A(f"{l}:")

@add_method
def sync_all_wait(self, sleep=0, presleep=0):
    A=self.A
    l=self.lab(); lp=self.lab('Lpoll'); le=self.lab()
    A(f"s_cmp_lg_u32 s{S_W}, 0")
    A(f"s_cbranch_scc1 {l}")
    A(f"s_lshr_b32 s{S_T0}, s{S_WG}, 3")
    A(f"s_and_b32 s{S_T0}, s{S_T0}, 7")
    A(f"s_lshl_b32 s{S_T0}, s{S_T0}, 10")
    A(f"s_add_u32 s{S_T0}, s{S_T0}, {WS_CNT2}")
    A(f"v_and_b32 v48, 7, v{V_LANE}")
    A(f"v_lshlrev_b32 v48, 7, v48")
    A(f"s_mov_b32 s{S_T0+1}, 0")
    if self.pp:
        A(f"buffer_load_dword v252, v48, s[{SRD_WS}:{SRD_WS+3}], s{S_T0} offen sc1")
        A(f"{lp}:")
        for a_,b_ in ((253,252),(252,253)):
            A(f"buffer_load_dword v{a_}, v48, s[{SRD_WS}:{SRD_WS+3}], s{S_T0} offen sc1")
            A("s_waitcnt vmcnt(1)")
            A(f"v_cmp_gt_u32 vcc, 28, v{b_}")
            A(f"s_cbranch_vccz {le}")
        A(f"s_add_u32 s{S_T0+1}, s{S_T0+1}, 1")
        A(f"s_cmp_lt_u32 s{S_T0+1}, 0x4000")
        A(f"s_cbranch_scc1 {lp}")
    else:
        A(f"{lp}:")
        A(f"buffer_load_dword v49, v48, s[{SRD_WS}:{SRD_WS+3}], s{S_T0} offen sc1")
        A("s_waitcnt vmcnt(0)")
        A("v_cmp_gt_u32 vcc, 28, v49")
        A(f"s_add_u32 s{S_T0+1}, s{S_T0+1}, 1")
        A(f"s_cbranch_vccz {le}")
        if sleep: A(f"s_sleep {sleep}")
        A(f"s_cmp_lt_u32 s{S_T0+1}, 0x8000")
        A(f"s_cbranch_scc1 {lp}")
    A(f"{le}:")
    A(f"{l}:")
    A("s_barrier")

class Stream:
    def __init__(self, A):
        self.A=A; self.lds=[]; self.vm=[]
    def ds(self, text, tag=None):
        self.A(text); self.lds.append(tag)
    def vmem(self, text, tag=None):
        self.A(text); self.vm.append(tag)
    def need_lds(self, tags):
        idx=-1
        for t in tags:
            if t in self.lds: idx=max(idx, len(self.lds)-1-self.lds[::-1].index(t))
        if idx>=0:
            n=len(self.lds)-idx-1
            n=min(n,15)
            self.A(f"s_waitcnt lgkmcnt({n})")
            self.lds=self.lds[len(self.lds)-n:] if n>0 else []
    def need_vm(self, tags):
        idx=-1
        for t in tags:
            if t in self.vm: idx=max(idx, len(self.vm)-1-self.vm[::-1].index(t))
        if idx>=0:
            n=len(self.vm)-idx-1
            n=min(n,63)
            self.A(f"s_waitcnt vmcnt({n})")
            self.vm=self.vm[len(self.vm)-n:] if n>0 else []
    def item(self, it):
        if isinstance(it,str): self.A(it)
        elif it[0]=='ds': self.ds(it[1],it[2])
        elif it[0]=='vm': self.vmem(it[1],it[2])
        elif it[0]=='needl': self.need_lds(it[1])
        elif it[0]=='needv': self.need_vm(it[1])

G_ACC=[64,96]; G_CS=128; G_RING=160; G_SB=184; G_VB=56; G_ST=54; G_ET=60; G_PK=232; G_R2=250; G_MU=240; G_C1=244
LDS_ST=114688
@add_method
def cs_mfma(self, s0, s1, init=True):
    A=self.A
    if s0==0 and init:
        for k in range(4): A(f"v_mov_b32 v{48+k}, 0x3f803f80")
    for s in range(s0,s1):
        for t in range(2):
            d=G_CS+16*t
            c="0" if s==0 else f"v[{d}:{d+15}]"
            A(f"v_mfma_f32_32x32x16_bf16 v[{d}:{d+15}], a[{8*s+4*t}:{8*s+4*t+3}], v[48:51], {c}")

def wd_loc(sig, ca):
    if sig<5: return ('v', 4+8*sig+4*ca)
    if sig<9: return ('a', 224+8*(sig-5)+4*ca)
    if sig<14: return ('v', 192+8*(sig-9)+4*ca)
    return ('a', 8*(sig-14)+4*ca)

@add_method
def wd_item(self, sig, ca):
    k,r=wd_loc(sig,ca)
    it=[]
    if sig%8==0 and sig>0: it.append(f"s_add_u32 s{S_T0+12+ca}, s{S_T0+12+ca}, 8192")
    va,off=("v48",(sig%8)*1024) if sig%8<4 else ("v3",(sig%8-4)*1024)
    it.append(('vm',f"buffer_load_dwordx4 {k}[{r}:{r+3}], {va}, s[{SRD_WS}:{SRD_WS+3}], s{S_T0+12+ca} offen offset:{off} sc1",f"WD{sig}"))
    return it

PF=4
@add_method
def gemm1(self):
    A=self.A; S=Stream(A); self.S=S
    A(f"s_mul_i32 s{S_T0}, s{S_I}, {4*28672}")
    A(f"s_mul_i32 s{S_T0+1}, s{S_W}, 7168")
    A(f"s_add_u32 s{S_T0}, s{S_T0}, s{S_T0+1}")
    A(f"s_add_u32 s{S_T0}, s{S_T0}, {WS_HT}")
    A(f"v_lshlrev_b32 v48, 4, v{V_LANE}")
    A(f"v_add_u32 v3, 4096, v48")
    def xdma(lt,k):
        base=lt*28672+(k//4)*4096
        it=[]
        if k%4==0: it+=[f"s_add_u32 s{S_T0+2}, s{S_T0}, {base}", f"s_add_u32 m0, s{S_T0+1}, {base}"]
        it.append(('vm',f"buffer_load_dwordx4 v48, s[{SRD_WS}:{SRD_WS+3}], s{S_T0+2} offen offset:{(k%4)*1024} sc1 lds", f"X{lt}"))
        return it
    for lt in range(2):
        for k in range(7):
            for it in xdma(lt,k): S.item(it)
    self.wd_setup()
    self.wdflag_load(S)
    A(f"s_lshl_b32 s{S_T0+3}, s{S_J}, 2")
    A(f"s_add_u32 s{S_T0+3}, s{S_T0+3}, s{S_W}")
    A(f"s_mul_i32 s{S_T0+3}, s{S_T0+3}, {2*896}")
    A(f"s_add_u32 s{S_T0+3}, s{S_T0+3}, {WS_CS}")
    A(f"v_lshrrev_b32 v50, 5, v{V_LANE}")
    A(f"v_mul_u32_u24 v50, 896, v50")
    A(f"v_and_b32 v51, 31, v{V_LANE}")
    A(f"v_lshl_add_u32 v50, v51, 2, v50")
    for g in range(7):
        S.vmem(f"buffer_load_dword v{184+g}, v50, s[{SRD_WS}:{SRD_WS+3}], s{S_T0+3} offen offset:{g*128} sc1","CSP")
    A(f"s_lshl_b32 s{S_T0+3}, s{S_W}, 8")
    A(f"s_add_u32 s{S_T0+3}, s{S_T0+3}, {LDS_ST+2048}")
    A(f"v_lshl_add_u32 v191, v{V_LANE}, 2, s{S_T0+3}")
    A(f"v_lshrrev_b32 v55, 5, v{V_LANE}")
    A(f"v_lshlrev_b32 v55, 4, v55")
    A(f"v_add_u32 v55, s{S_T0+3}, v55")
    A(f"v_lshrrev_b32 v50, 5, v{V_LANE}")
    A(f"v_lshlrev_b32 v50, 9, v50")
    A(f"v_bfe_u32 v51, v{V_LANE}, 2, 2")
    A(f"v_lshl_add_u32 v50, v51, 6, v50")
    A(f"v_bfe_u32 v51, v{V_LANE}, 4, 1")
    A(f"v_lshl_add_u32 v50, v51, 5, v50")
    A(f"v_and_b32 v51, 3, v{V_LANE}")
    A(f"v_lshl_add_u32 v50, v51, 3, v50")
    for g in range(4):
        A(f"s_add_u32 s{S_T0+3}, s{S_W}, {g}")
        A(f"s_and_b32 s{S_T0+3}, s{S_T0+3}, 3")
        A(f"s_sub_u32 s{S_T0+3}, s{S_T0+3}, {g}")
        A(f"s_mul_i32 s{S_T0+3}, s{S_T0+3}, 7168")
        A(f"v_add_u32 v{G_VB+g}, s{S_T0+3}, v50")
    A(f"v_and_b32 v52, 31, v{V_LANE}")
    A(f"v_lshlrev_b32 v52, 3, v52")
    A(f"s_lshl_b32 s{S_T0+10}, s{S_I}, 10")
    A(f"s_add_u32 s{S_T0+10}, s{S_T0+10}, {WS_ST2}")
    A(f"s_lshl_b32 s{S_T0+4}, s{S_I}, 2")
    A(f"s_mul_i32 s{S_T0+4}, s{S_T0+4}, 112")
    A(f"s_lshl_b32 s{S_T0+5}, s{S_J}, 3")
    A(f"s_add_u32 s{S_T0+4}, s{S_T0+4}, s{S_T0+5}")
    A(f"s_lshl_b32 s{S_T0+5}, s{S_W}, 1")
    A(f"s_add_u32 s{S_T0+4}, s{S_T0+4}, s{S_T0+5}")
    A(f"s_lshl_b32 s{S_T0+4}, s{S_T0+4}, 10")
    A(f"s_add_u32 s{S_T0+4}, s{S_T0+4}, {WS_M}")
    SM=S_T0+4
    RING=[G_RING+4*k for k in range(6)]
    def breg(p,s): return RING[(28*p+s)%6]
    def bload(p,s):
        r=breg(p,s); vb=G_VB+s//7
        return [('ds',f"ds_read_b64_tr_b16 v[{r}:{r+1}], v{vb} offset:{s*1024}",f"B{p}_{s}a"),
                ('ds',f"ds_read_b64_tr_b16 v[{r+2}:{r+3}], v{vb} offset:{s*1024+256}",f"B{p}_{s}b")]
    SG2=G_SB
    def stats_loads():
        it=[]
        for p in range(4):
            it.append(('vm',f"buffer_load_dwordx2 v[{SG2+2*p}:{SG2+2*p+1}], v52, s[{SRD_WS}:{SRD_WS+3}], s{S_T0+10} offen offset:{p*256} sc1","ST2"))
        return it
    def stats_check():
        lp=self.lab('Lpoll'); le=self.lab()
        S.need_vm(["ST2"])
        A(f"s_mov_b32 s{S_T0+8}, 0")
        A(f"{lp}:")
        A(f"v_xor_b32 v53, s{S_TAG}, v{SG2+1}")
        for p in range(1,4):
            A(f"v_xor_b32 v54, s{S_TAG}, v{SG2+2*p+1}")
            A(f"v_or_b32 v53, v53, v54")
        A("v_cmp_ne_u32 vcc, 0, v53")
        A(f"s_add_u32 s{S_T0+8}, s{S_T0+8}, 1")
        A(f"s_cbranch_vccz {le}")
        for p in range(4):
            A(f"buffer_load_dwordx2 v[{SG2+2*p}:{SG2+2*p+1}], v52, s[{SRD_WS}:{SRD_WS+3}], s{S_T0+10} offen offset:{p*256} sc1")
        A("s_waitcnt vmcnt(0)")
        A(f"s_cmp_lt_u32 s{S_T0+8}, 0x8000")
        A(f"s_cbranch_scc1 {lp}")
        A(f"{le}:")
    def stats_final(p):
        g=SG2+2*p; T=G_ST
        return [f"v_and_b32 v{G_MU+p}, 0xffff0000, v{g}",
                f"v_lshlrev_b32 v{T}, 16, v{g}",
                f"v_rcp_f32 v{T}, v{T}",
                f"s_nop 0",
                f"v_mul_f32 v{G_C1+p}, {fl(-LOG2E)}, v{T}",
                f"v_mul_f32 v{G_R2+p}, v{T}, v{T}"]
    def epi_items(p):
        acc=G_ACC[p&1]; it=[]; E=G_ET; mu=G_MU+p; c1=G_C1+p
        for r0 in range(0,16,4):
            rs=range(r0,r0+4)
            for r in rs: it.append(f"v_fma_f32 v{acc+r}, -v{mu}, v{G_CS+r}, v{acc+r}")
            for r in rs: it.append(f"v_fma_f32 v{acc+16+r}, -v{mu}, v{G_CS+16+r}, v{acc+16+r}")
            for r in rs: it.append(f"v_mul_f32 v{E+(r&3)}, v{c1}, v{acc+r}")
            for r in rs: it.append(f"v_exp_f32 v{E+(r&3)}, v{E+(r&3)}")
            for r in rs: it.append(f"v_mul_f32 v{acc+r}, v{acc+r}, v{acc+16+r}")
            for r in rs: it.append(f"v_add_f32 v{E+(r&3)}, 1.0, v{E+(r&3)}")
            for r in rs: it.append(f"v_rcp_f32 v{E+(r&3)}, v{E+(r&3)}")
            for r in rs: it.append(f"v_mul_f32 v{acc+r}, v{acc+r}, v{E+(r&3)}")
            q=r0//4
            it.append(f"v_cvt_pk_bf16_f32 v{G_PK+2*q}, v{acc+r0}, v{acc+r0+1}")
            it.append(f"v_cvt_pk_bf16_f32 v{G_PK+2*q+1}, v{acc+r0+2}, v{acc+r0+3}")
            if q==1 or q==3:
                h=q//2
                if h==0: it.append(f"s_add_u32 s{SM+1}, s{SM}, {p*112*1024}")
                it.append(('vm',f"buffer_store_dwordx4 v[{G_PK+4*h}:{G_PK+4*h+3}], v48, s[{SRD_WS}:{SRD_WS+3}], s{SM+1} offen offset:{h*1024} sc1",f"M{p}_{h}"))
        return it
    vmx={0:[],1:[],2:[],3:[]}
    wr=self.w1_items(W1_PRE,28)
    for n,it in enumerate(wr):
        sl=W1_PRE+n//2
        vmx[0].append((n//2, [('vm',it[0],f"W{sl}")]))
    if self.xlate:
        for q in range(7): vmx[1].append((q, xdma(2,q)))
        for q in range(7): vmx[2].append((q, xdma(3,q)))
    else:
        k=0
        for lt in (2,3):
            for q in range(7):
                vmx[0].append((min(27,len(wr)//2+k), xdma(lt,q))); k+=1
    csit=[('needv',["CSP"])]
    for g in range(1,7): csit.append(f"v_add_f32 v184, v184, v{184+g}")
    csit.append(('ds',"ds_write_b32 v191, v184","CSW"))
    for t in range(2):
        for q in range(4):
            csit.append(('ds',f"ds_read_b128 v[{G_CS+16*t+4*q}:{G_CS+16*t+4*q+3}], v55 offset:{t*128+q*32}","CSR"))
    n=0
    for sig in range(5):
        for ca in range(2): vmx[1].append((9+(18*n)//10, self.wd_item(sig,ca))); n+=1
    n=0
    for sig in range(5,14):
        for ca in range(2): vmx[2].append(((8+(19*n)//18) if self.xlate else (1+(26*n)//18), self.wd_item(sig,ca))); n+=1
    for n in range(28): vmx[3].append((max(n//2,(n*self.wdspan)//28), self.wd_item(14+n//2, n%2)))
    S.need_vm(["X0"])
    A("s_barrier")
    self.stamp('x0')
    for s in range(PF):
        for it in bload(0,s): S.item(it)
    BAR=16; csi=[0]
    ST_LOAD=2; ST_CHK=8
    for p in range(4):
        acc=G_ACC[p&1]
        ep=epi_items(p-1) if p>0 else []
        e0=1
        if p==1:
            while csi[0]<len(csit): S.item(csit[csi[0]]); csi[0]+=1
            ep=[('needl',["CSR"])]+sum((stats_final(q) for q in range(4)),[])+ep
            e0=ST_CHK+1
        epi=0
        def cost(it):
            if isinstance(it,tuple):
                return {'ds':5,'vm':20}.get(it[0],1)
            m=it.split()[0]
            if m in ('v_exp_f32','v_rcp_f32','v_sqrt_f32'): return 8.6
            if m.startswith('s_'): return 3
            return 4.3
        fixed=[0.0]*56
        for g_ in range(56):
            sl_,t_=g_//2,g_%2
            fixed[g_]+=5
            if t_==1:
                for (sl,items) in vmx[p]:
                    if sl==sl_: fixed[g_]+=sum(cost(x) for x in items)
            if t_==0 and sl_%2==0: fixed[g_]+=3
        g0=2*e0
        tot=sum(cost(x) for x in ep)
        quota=[0]*56
        if ep:
            lo,hi=0.0,200.0
            for _ in range(30):
                mid=(lo+hi)/2
                if sum(max(0.0,mid-fixed[g_]) for g_ in range(g0,56))>=tot+25: hi=mid
                else: lo=mid
            quota=[max(0.0,hi-fixed[g_]) if g_>=g0 else 0.0 for g_ in range(56)]
        carry=0.0
        for s in range(28):
            if s%2==0: S.need_lds([f"B{p}_{s}a",f"B{p}_{s}b",f"B{p}_{s+1}a",f"B{p}_{s+1}b"])
            if p==0 and s>=W1_PRE and s%2==0: S.need_vm([f"W{s}",f"W{s+1}"])
            if p==0 and s>=18 and csi[0]<len(csit):
                for _ in range(2):
                    if csi[0]<len(csit): S.item(csit[csi[0]]); csi[0]+=1
            r=breg(p,s)
            for t in range(2):
                d=acc+16*t
                c="0" if s==0 else f"v[{d}:{d+15}]"
                A(f"v_mfma_f32_32x32x16_bf16 v[{d}:{d+15}], a[{8*s+4*t}:{8*s+4*t+3}], v[{r}:{r+3}], {c}")
                ns=s+PF
                if ns<28: S.item(bload(p,ns)[t])
                elif p<3: S.item(bload(p+1,ns-28)[t])
                gap=2*s+t
                if t==1:
                    for (sl,items) in vmx[p]:
                        if sl==s:
                            for it in items: S.item(it)
                if self.costsched:
                    carry+=quota[gap]
                    while epi<len(ep) and cost(ep[epi])<=carry+1.0:
                        carry-=cost(ep[epi]); S.item(ep[epi]); epi+=1
                elif s>=e0 and ep:
                    ng=2*(28-e0)-1
                    tgt=min(len(ep),(len(ep)*(gap-2*e0+1)+ng-1)//ng)
                    while epi<tgt: S.item(ep[epi]); epi+=1
            if p==1 and s==ST_LOAD:
                for it in stats_loads(): S.item(it)
            if p==1 and s==ST_CHK: stats_check()
            if p<3 and s in (6-PF,13-PF,20-PF,27-PF):
                g={6-PF:0,13-PF:1,20-PF:2,27-PF:3}[s]
                A(f"v_add_u32 v{G_VB+g}, 28672, v{G_VB+g}")
            if p==3 and s==22 and self.emov:
                A(f"s_lshl_b32 s{S_T0+2}, s{S_I}, 7")
                A(f"s_add_u32 s{S_T0+2}, s{S_T0+2}, {WS_CNT3}")
                S.vmem(f"buffer_load_dword v55, v{V_ZERO}, s[{SRD_WS}:{SRD_WS+3}], s{S_T0+2} offen sc1","pollE")
            if s==((4 if self.emov else BAR) if p==3 else BAR):
                if p<3: S.need_vm([f"X{p+1}"])
                if p==0: self.wdflag_check(S)
                if p==3: S.need_vm(["M1_1"])
                A("s_barrier")
                if p==3:
                    l=self.lab()
                    A(f"s_cmp_lg_u32 s{S_W}, 0")
                    A(f"s_cbranch_scc1 {l}")
                    A(f"s_lshl_b32 s{S_T0+2}, s{S_I}, 7")
                    A(f"s_add_u32 s{S_T0+2}, s{S_T0+2}, {WS_CNT3}")
                    A("v_mov_b32 v55, 1")
                    A("s_mov_b64 exec, 1")
                    A(f"buffer_atomic_add v55, v{V_ZERO}, s[{SRD_WS}:{SRD_WS+3}], s{S_T0+2} offen")
                    A("s_mov_b64 exec, -1")
                    A(f"{l}:")
        while epi<len(ep): S.item(ep[epi]); epi+=1
        if self.ts and (self.tsonly is None or f'pass{p}' in self.tsonly):
            self.stamp(f'pass{p}'); S.lds=[]
    self.g2_ids()
    self.early_loads=[]
    if self.emov:
        lp=self.lab('Lpoll'); le=self.lab()
        S.need_vm(["pollE"])
        A(f"s_mov_b32 s{S_T0+8}, 0")
        A(f"{lp}:")
        A("v_cmp_gt_u32 vcc, 14, v55")
        A(f"s_cbranch_vccz {le}")
        A(f"buffer_load_dword v55, v{V_ZERO}, s[{SRD_WS}:{SRD_WS+3}], s{S_T0+2} offen sc1")
        A("s_waitcnt vmcnt(0)")
        A(f"s_add_u32 s{S_T0+8}, s{S_T0+8}, 1")
        A(f"s_cmp_lt_u32 s{S_T0+8}, 0x8000")
        A(f"s_cbranch_scc1 {lp}")
        A(f"{le}:")
    else:
        A(f"s_lshl_b32 s{S_T0+2}, s{S_I}, 7")
        A(f"s_add_u32 s{S_T0+2}, s{S_T0+2}, {WS_CNT3}")
        S.vmem(f"buffer_load_dword v55, v{V_ZERO}, s[{SRD_WS}:{SRD_WS+3}], s{S_T0+2} offen sc1","pollE")
    A("s_nop 7")
    acc=G_ACC[1]; E=G_ET
    PMU,PC1=(54,52) if self.emov else (184,186)
    A(f"v_mov_b32 v{PMU}, v{G_MU+3}")
    A(f"v_mov_b32 v{PC1}, v{G_C1+3}")
    ne=0
    for r0 in range(0,16,4):
        for r in (r0,r0+2): A(f"v_pk_fma_f32 v[{acc+r}:{acc+r+1}], v[{G_CS+r}:{G_CS+r+1}], v[{PMU}:{PMU+1}], v[{acc+r}:{acc+r+1}] op_sel_hi:[1,0,1] neg_lo:[0,1,0] neg_hi:[0,1,0]")
        for r in (r0,r0+2): A(f"v_pk_fma_f32 v[{acc+16+r}:{acc+16+r+1}], v[{G_CS+16+r}:{G_CS+16+r+1}], v[{PMU}:{PMU+1}], v[{acc+16+r}:{acc+16+r+1}] op_sel_hi:[1,0,1] neg_lo:[0,1,0] neg_hi:[0,1,0]")
        for r in (r0,r0+2): A(f"v_pk_mul_f32 v[{E+(r&3)}:{E+(r&3)+1}], v[{acc+r}:{acc+r+1}], v[{PC1}:{PC1+1}] op_sel_hi:[1,0]")
        for r in range(4): A(f"v_exp_f32 v{E+r}, v{E+r}")
        if self.emov:
            for _ in range(2): S.vmem(self.m_load_text(0,ne),f"m0_{ne}"); ne+=1
        for r in (r0,r0+2): A(f"v_pk_mul_f32 v[{acc+r}:{acc+r+1}], v[{acc+r}:{acc+r+1}], v[{acc+16+r}:{acc+16+r+1}]")
        for r in (0,2): A(f"v_pk_add_f32 v[{E+r}:{E+r+1}], v[{E+r}:{E+r+1}], 1.0 op_sel_hi:[1,0]")
        for r in range(4): A(f"v_rcp_f32 v{E+r}, v{E+r}")
        for r in (r0,r0+2): A(f"v_pk_mul_f32 v[{acc+r}:{acc+r+1}], v[{acc+r}:{acc+r+1}], v[{E+(r&3)}:{E+(r&3)+1}]")
        q=r0//4
        A(f"v_cvt_pk_bf16_f32 v{G_PK+2*q}, v{acc+r0}, v{acc+r0+1}")
        A(f"v_cvt_pk_bf16_f32 v{G_PK+2*q+1}, v{acc+r0+2}, v{acc+r0+3}")
        if q in (1,3):
            h=q//2
            if h==0: A(f"s_add_u32 s{SM+1}, s{SM}, {3*112*1024}")
            S.vmem(f"buffer_store_dwordx4 v[{G_PK+4*h}:{G_PK+4*h+3}], v48, s[{SRD_WS}:{SRD_WS+3}], s{SM+1} offen offset:{h*1024} sc1",f"M3_{h}")

S_MB=76
@add_method
def g2_ids(self):
    A=self.A
    A(f"s_cmp_ge_u32 s{S_J}, 7")
    A(f"s_cselect_b32 s{S_T0}, 1, 0")
    A(f"s_cselect_b32 s{S_T0+6}, 7, 0")
    A(f"s_sub_u32 s{S_T0+6}, s{S_J}, s{S_T0+6}")
    A(f"s_lshl_b32 s{S_T0+1}, s{S_I}, 2")
    A(f"s_sub_u32 s{S_T0+3}, 3, s{S_T0}")
    A(f"s_add_u32 s{S_T0+3}, s{S_T0+3}, s{S_T0+1}")
    A(f"s_add_u32 s{S_T0+1}, s{S_T0+1}, s{S_T0}")
    A(f"s_mul_i32 s{S_T0+7}, s{S_W}, 28")
    for la,src in ((0,S_T0+1),(1,S_T0+3)):
        A(f"s_mul_i32 s{S_MB+la}, s{src}, 112")
        A(f"s_add_u32 s{S_MB+la}, s{S_MB+la}, s{S_T0+7}")
        A(f"s_lshl_b32 s{S_MB+la}, s{S_MB+la}, 10")
        A(f"s_add_u32 s{S_MB+la}, s{S_MB+la}, {WS_M}")
@add_method
def m_entry(self, la, s): return H_RING+4*((28*la+s+(8 if self.emov else 0))%NRING)
@add_method
def m_load_text(self, la, s):
    r=self.m_entry(la,s)
    if s%8==0 and s>0: self.A(f"s_add_u32 s{S_MB+la}, s{S_MB+la}, 8192")
    va,off=("v48",(s%8)*1024) if s%8<4 else ("v3",(s%8-4)*1024)
    return f"buffer_load_dwordx4 v[{r}:{r+3}], {va}, s[{SRD_WS}:{SRD_WS+3}], s{S_MB+la} offen offset:{off} sc1"

H_ACC=64
H_RING=128
NRING=16
LDS_RED=0
LDS_RES=49152
@add_method
def gemm2(self):
    A=self.A; S=self.S
    if not self.emov:
        lp=self.lab('Lpoll'); le=self.lab()
        A(f"s_mov_b32 s{S_T0+8}, 0")
        A(f"s_waitcnt vmcnt(2)")
        A(f"{lp}:")
        A("v_cmp_gt_u32 vcc, 14, v55")
        A(f"s_cbranch_vccz {le}")
        A(f"buffer_load_dword v55, v{V_ZERO}, s[{SRD_WS}:{SRD_WS+3}], s{S_T0+2} offen sc1")
        A("s_waitcnt vmcnt(0)")
        A(f"s_add_u32 s{S_T0+8}, s{S_T0+8}, 1")
        A(f"s_cmp_lt_u32 s{S_T0+8}, 0x8000")
        A(f"s_cbranch_scc1 {lp}")
        A(f"{le}:")
    S2=Stream(A)
    if self.emov:
        S2.vm=["m0_0","m0_1","m0_2","m0_3","Mfin","m0_4","m0_5","m0_6","m0_7","Mfin"]
    else: S2.vm=["Mfin","Mfin"]
    def mload(la,s):
        S2.vmem(self.m_load_text(la,s), f"m{la}_{s}")
    N0=8 if self.emov else 0
    NPRE=self.npre
    NPRE=max(NPRE,N0) if not self.emov else N0+self.npre2
    for s_ in range(N0,NPRE): mload(0,s_)
    A(f"s_lshl_b32 s{S_T0+11}, s{S_T0+6}, 6")
    A(f"s_lshl_b32 s{S_T0+7}, s{S_NH}, 5")
    A(f"s_add_u32 s{S_T0+11}, s{S_T0+11}, s{S_T0+7}")
    A(f"s_lshl_b32 s{S_T0+7}, s{S_CH}, 4")
    A(f"s_add_u32 s{S_T0+11}, s{S_T0+11}, s{S_T0+7}")
    for la,src,dst in ((0,S_T0+1,S_T0+8),(1,S_T0+3,S_T0+9)):
        A(f"s_mul_i32 s{dst}, s{src}, 448")
        A(f"s_add_u32 s{dst}, s{dst}, s{S_T0+11}")
        A(f"s_lshl_b32 s{dst}, s{dst}, 6")
        A(f"s_add_u32 s{dst}, s{dst}, {WS_HT}")
    A(f"s_lshl_b32 s{S_T0+11}, s{S_T0+11}, 1")
    A(f"s_mul_i32 s{S_T0+14}, s{S_T0+1}, {32*896}")
    A(f"s_add_u32 s{S_T0+14}, s{S_T0+14}, s{S_T0+11}")
    A(f"s_mul_i32 s{S_T0+15}, s{S_T0+3}, {32*896}")
    A(f"s_add_u32 s{S_T0+15}, s{S_T0+15}, s{S_T0+11}")
    A(f"s_lshl_b32 s{S_T0+11}, s{S_W}, 11")
    A(f"s_add_u32 s{S_T0+11}, s{S_T0+11}, {LDS_RES}")
    A(f"s_mov_b32 s{SRD_W}, s{S_OUT}\ns_mov_b32 s{SRD_W+1}, s{S_OUT+1}\ns_mov_b32 s{SRD_W+2}, {L_*D_*2}\ns_mov_b32 s{SRD_W+3}, 0x20000")
    A(f"s_cmp_eq_u32 s{S_T0}, 0")
    A("s_cselect_b64 vcc, -1, 0")
    A(f"v_cndmask_b32 v248, v{G_R2+1}, v{G_R2}, vcc")
    A(f"v_cndmask_b32 v254, v{G_R2+2}, v{G_R2+3}, vcc")
    A("v_mov_b32 v249, v248\nv_mov_b32 v255, v254")
    A(f"v_lshrrev_b32 v50, 5, v{V_LANE}")
    A(f"v_lshlrev_b32 v50, 8, v50")
    A(f"v_bfe_u32 v51, v{V_LANE}, 2, 2")
    A(f"v_lshl_add_u32 v50, v51, 6, v50")
    A(f"v_bfe_u32 v51, v{V_LANE}, 4, 1")
    A(f"v_lshl_add_u32 v50, v51, 5, v50")
    A(f"v_and_b32 v51, 3, v{V_LANE}")
    A(f"v_lshl_add_u32 v50, v51, 3, v50")
    A(f"v_add_u32 v50, s{S_T0+11}, v50")
    A(f"v_and_b32 v52, 31, v{V_LANE}")
    A(f"v_mul_u32_u24 v52, 896, v52")
    A(f"v_lshrrev_b32 v51, 5, v{V_LANE}")
    A(f"v_lshl_add_u32 v52, v51, 4, v52")
    for x in (1,2,3):
        A(f"s_xor_b32 s{S_T0+7}, s{S_W}, {x}")
        A(f"s_mul_i32 s{S_T0+7}, s{S_T0+7}, 6144")
        A(f"s_add_u32 s{S_T0+7}, s{S_T0+7}, {LDS_RED+(x-1)*2048}")
        A(f"v_add_u32 v{43+x}, s{S_T0+7}, v48")
    A(f"s_mul_i32 s{S_T0+7}, s{S_W}, 6144")
    A(f"s_add_u32 s{S_T0+7}, s{S_T0+7}, {LDS_RED}")
    A(f"v_add_u32 v47, s{S_T0+7}, v48")
    S2.need_vm(["Mfin"])
    A("s_barrier")
    l=self.lab()
    A(f"s_lshl_b32 s{S_T0+10}, s{S_I}, 7")
    A(f"s_add_u32 s{S_T0+10}, s{S_T0+10}, {WS_CNT3+2048}")
    A(f"s_cmp_lg_u32 s{S_W}, 0")
    A(f"s_cbranch_scc1 {l}")
    A("v_mov_b32 v55, 1")
    A("s_mov_b64 exec, 1")
    A(f"buffer_atomic_add v55, v{V_ZERO}, s[{SRD_WS}:{SRD_WS+3}], s{S_T0+10} offen")
    l2=self.lab()
    A(f"s_cmp_lg_u32 s{S_WG}, 0")
    A(f"s_cbranch_scc1 {l2}")
    A(f"v_mov_b32 v55, s{S_TAG}")
    A(f"buffer_store_dword v55, v{V_ZERO}, s[{SRD_WS}:{SRD_WS+3}], 0 offen sc1")
    A(f"{l2}:")
    A("s_mov_b64 exec, -1")
    A(f"{l}:")
    self.stamp('sync3 arrive')
    def by_half(fn):
        la_=self.lab('Lh'); lb_=self.lab('Lh')
        A(f"s_cmp_ge_u32 s{S_W}, 2")
        A(f"s_cbranch_scc1 {la_}")
        fn(0)
        A(f"s_branch {lb_}")
        A(f"{la_}:")
        fn(1)
        A(f"{lb_}:")
    def red_write(la):
        def f(h):
            b0=H_ACC+32*la; b1=b0+16
            for x,r in ((2,b0+8*(1-h)),(1,b1+8*h),(3,b1+8*(1-h))):
                for q in range(2):
                    A(f"ds_write_b128 v{43+x}, v[{r+4*q}:{r+4*q+3}] offset:{la*24576+q*1024}")
        by_half(f)
    def red_final(la):
        P=208; RS=232; O=244
        A(f"ds_read_b64_tr_b16 v[{RS}:{RS+1}], v50 offset:{la*1024}")
        A(f"ds_read_b64_tr_b16 v[{RS+2}:{RS+3}], v50 offset:{la*1024+512}")
        for k in range(3):
            for q in range(2):
                A(f"ds_read_b128 v[{P+8*k+4*q}:{P+8*k+4*q+3}], v47 offset:{la*24576+k*2048+q*1024}")
        A("s_waitcnt lgkmcnt(6)")
        for d in range(4): A(bf16_lo(RS+4+2*d,RS+d)); A(bf16_hi(RS+5+2*d,RS+d))
        A("s_waitcnt lgkmcnt(2)")
        for r in range(0,8,2): A(f"v_pk_add_f32 v[{P+r}:{P+r+1}], v[{P+r}:{P+r+1}], v[{P+8+r}:{P+8+r+1}]")
        A("s_waitcnt lgkmcnt(0)")
        for r in range(0,8,2): A(f"v_pk_add_f32 v[{P+r}:{P+r+1}], v[{P+r}:{P+r+1}], v[{P+16+r}:{P+16+r+1}]")
        def f(h):
            b=H_ACC+32*la+8*h
            for r in range(0,8,2): A(f"v_pk_add_f32 v[{P+r}:{P+r+1}], v[{P+r}:{P+r+1}], v[{b+r}:{b+r+1}]")
        by_half(f)
        r2=(248,254)[la]
        if self.mimic>=1:
            for r in range(0,8,2): A(f"v_pk_mul_f32 v[{P+r}:{P+r+1}], v[{P+r}:{P+r+1}], v[{r2}:{r2+1}]")
            for r in range(0,8,2): A(f"v_cvt_pk_bf16_f32 v{O+r//2}, v{P+r}, v{P+r+1}")
            for r in range(0,8,2): A(bf16_lo(P+r,O+r//2)); A(bf16_hi(P+r+1,O+r//2))
            for r in range(0,8,2): A(f"v_pk_add_f32 v[{P+r}:{P+r+1}], v[{P+r}:{P+r+1}], v[{RS+4+r}:{RS+4+r+1}]")
        else:
            for r in range(0,8,2): A(f"v_pk_fma_f32 v[{P+r}:{P+r+1}], v[{P+r}:{P+r+1}], v[{r2}:{r2+1}], v[{RS+4+r}:{RS+4+r+1}]")
        if self.perturb:
            for r in range(8): A(f"v_add_f32 v{P+r}, {fl(self.perturb)}, v{P+r}")
        for r in range(0,8,2): A(f"v_cvt_pk_bf16_f32 v{O+r//2}, v{P+r}, v{P+r+1}")
        A(f"v_permlane32_swap_b32 v{O}, v{O+2}")
        A(f"v_permlane32_swap_b32 v{O+1}, v{O+3}")
        return f"buffer_store_dwordx4 v[{O}:{O+3}], v52, s[{SRD_W}:{SRD_W+3}], s{S_T0+14+la} offen"
    def mf(la,s):
        for ca in range(2):
            d=H_ACC+16*(2*la+ca)
            c="0" if s==0 else f"v[{d}:{d+15}]"
            k,r=wd_loc(s,ca); rr=self.m_entry(la,s)
            A(f"v_mfma_f32_32x32x16_bf16 v[{d}:{d+15}], {k}[{r}:{r+3}], v[{rr}:{rr+3}], {c}")
    for s_ in range(NPRE,NRING): mload(0,s_)
    POLL_AT=28-NRING
    for s_ in range(28):
        S2.need_vm([f"m0_{s_}"])
        mf(0,s_)
        if s_+NRING<28: mload(0,s_+NRING)
        if s_==POLL_AT-1:
            S2.vmem(f"buffer_load_dword v55, v{V_ZERO}, s[{SRD_WS}:{SRD_WS+3}], s{S_T0+10} offen sc1","pollL")
            A(f"s_mov_b32 m0, s{S_T0+11}")
            S2.vmem(f"buffer_load_dwordx4 v48, s[{SRD_WS}:{SRD_WS+3}], s{S_T0+8} offen sc1 lds","res")
            A(f"s_add_u32 m0, s{S_T0+11}, 1024")
            S2.vmem(f"buffer_load_dwordx4 v48, s[{SRD_WS}:{SRD_WS+3}], s{S_T0+9} offen sc1 lds","res")
        if s_==POLL_AT+5:
            lp=self.lab('Lpoll'); le=self.lab()
            S2.need_vm(["pollL"])
            A(f"s_mov_b32 s{S_T0+7}, 0")
            A(f"{lp}:")
            if self.pp>1:
                lq=self.lab('Lpoll')
                A("v_cmp_gt_u32 vcc, 14, v55")
                A(f"s_cbranch_vccz {le}")
                A(f"buffer_load_dword v54, v{V_ZERO}, s[{SRD_WS}:{SRD_WS+3}], s{S_T0+10} offen sc1")
                A(f"{lq}:")
                for a_,b_ in ((55,54),(54,55)):
                    A(f"buffer_load_dword v{a_}, v{V_ZERO}, s[{SRD_WS}:{SRD_WS+3}], s{S_T0+10} offen sc1")
                    A("s_waitcnt vmcnt(1)")
                    A(f"v_cmp_gt_u32 vcc, 14, v{b_}")
                    A(f"s_cbranch_vccz {le}")
                A(f"s_add_u32 s{S_T0+7}, s{S_T0+7}, 1")
                A(f"s_cmp_lt_u32 s{S_T0+7}, 0x4000")
                A(f"s_cbranch_scc1 {lq}")
            else:
                A("v_cmp_gt_u32 vcc, 14, v55")
                A(f"s_cbranch_vccz {le}")
                A(f"buffer_load_dword v55, v{V_ZERO}, s[{SRD_WS}:{SRD_WS+3}], s{S_T0+10} offen sc1")
                A("s_waitcnt vmcnt(0)")
                A(f"s_add_u32 s{S_T0+7}, s{S_T0+7}, 1")
                A(f"s_cmp_lt_u32 s{S_T0+7}, 0x8000")
                A(f"s_cbranch_scc1 {lp}")
            A(f"{le}:")
            self.stamp('late ready')
            nl=0
            while nl<28 and (28+nl)-NRING <= s_: mload(1,nl); nl+=1
        elif s_>POLL_AT+5:
            while nl<28 and (28+nl)-NRING <= s_: mload(1,nl); nl+=1
    self.stamp('early done')
    for s_ in range(28):
        S2.need_vm([f"m1_{s_}"])
        mf(1,s_)
        while nl<28 and (28+nl)-NRING <= 28+s_: mload(1,nl); nl+=1
        if s_==5:
            red_write(0)
        if s_==13:
            A("s_waitcnt lgkmcnt(0)")
            A("s_barrier")
            st=red_final(0)
            S2.vmem(st,"out0")
    self.stamp('late done')
    A("s_nop 11")
    red_write(1)
    A("s_waitcnt lgkmcnt(0)")
    A("s_barrier")
    self.stamp('red barrier')
    A(red_final(1))

@add_method
def dump_lds(self, lds_off, nbytes, ws_off_per_wg):
    A=self.A
    A("s_waitcnt vmcnt(0) lgkmcnt(0)")
    A("s_barrier")
    A(f"v_lshlrev_b32 v48, 4, v{V_T}")
    A(f"s_mul_i32 s{S_T0}, s{S_WG}, {ws_off_per_wg}")
    A(f"s_add_u32 s{S_T0}, s{S_T0}, {WS_DBG}")
    for k in range(nbytes//4096):
        A(f"v_add_u32 v49, {lds_off+k*4096}, v48")
        A("ds_read_b128 v[52:55], v49")
        A("s_waitcnt lgkmcnt(0)")
        A(f"s_add_u32 s{S_T0+1}, s{S_T0}, {k*4096}")
        A(f"buffer_store_dwordx4 v[52:55], v48, s[{SRD_WS}:{SRD_WS+3}], s{S_T0+1} offen")
        A("s_waitcnt vmcnt(0)")

@add_method
def dump_regs(self, first, n, kind='v'):
    A=self.A
    A("s_waitcnt vmcnt(0) lgkmcnt(0)")
    A("s_nop 15")
    A(f"v_lshlrev_b32 v3, 2, v{V_T}")
    A(f"s_mul_i32 s{S_T0}, s{S_WG}, {n*1024}")
    A(f"s_add_u32 s{S_T0}, s{S_T0}, {WS_DBG}")
    for k in range(n):
        A(f"s_add_u32 s{S_T0+1}, s{S_T0}, {k*1024}")
        A(f"buffer_store_dword {kind}{first+k}, v3, s[{SRD_WS}:{SRD_WS+3}], s{S_T0+1} offen")
    A("s_waitcnt vmcnt(0)")

@add_method
def build(self):
    A=self.A
    stop=self.stop_after
    def done(name):
        return stop==name
    self.prologue()
    self.phase0_loads()
    A("v_mov_b32 v56, 0\nv_mov_b32 v57, 0\nv_mov_b32 v58, 0\nv_mov_b32 v59, 0")
    l=self.lab()
    A(f"s_cmp_lg_u32 s{S_W}, 0")
    A(f"s_cbranch_scc1 {l}")
    A(f"v_and_b32 v50, 31, v{V_LANE}")
    A(f"v_lshlrev_b32 v50, 4, v50")
    A(f"v_lshrrev_b32 v51, 5, v{V_LANE}")
    A(f"v_mul_u32_u24 v51, {U_CH}, v51")
    A(f"v_add_u32 v50, v50, v51")
    A(f"v_add_u32 v50, {LDS_U}, v50")
    A(f"ds_write_b128 v50, v[56:59]")
    A(f"v_lshrrev_b32 v50, 1, v{V_LANE}")
    A(f"v_and_b32 v50, 7, v50")
    A(f"v_mul_u32_u24 v50, {KX_COPY}, v50")
    A(f"v_and_b32 v51, 1, v{V_LANE}")
    A(f"v_lshl_add_u32 v50, v51, 4, v50")
    A(f"v_add_u32 v50, {LDS_KX+4096}, v50")
    A(f"ds_write_b128 v50, v[56:59]")
    A(f"{l}:")
    self.conv_setup()
    self.stamp('index done')
    self.xjob_post()
    self.stamp('xjob post')
    self.kgen_setup()
    self.stamp('kgen setup')
    self.kgen_gen()
    self.stamp('kgen')
    if done('kx'):
        self.kexpand()
        A("s_waitcnt lgkmcnt(0)")
        A("s_barrier")
        self.dump_lds(LDS_KX, 36864, 36864); return self.finish()
    self.kexpand()
    self.stamp('kexpand')
    self.x_prepare()
    self.granule_wait()
    self.stamp('x flags')
    if self.xmode=='xt': self.xt_loads()
    self.stats_consume()
    self.stamp('u ready')
    if done('u'):
        self.dump_lds(LDS_U-LDS_U%16, 20480, 20480); return self.finish()
    self.conv()
    self.stamp('conv done')
    self.sync_all()
    self.stamp('sync2 arrive')
    if not self.w1start:
        self.flag_wait(0x3fff, landed=True)
        self.stamp('w1 flags')
    self.w1_loads(self.w1_in_conv,W1_PRE)
    self.stamp('cs done')
    self.sync_all_wait(sleep=self.msleep)
    self.stamp('sync2 passed')
    if done('w1'):
        self.dump_regs(0,224,'a'); return self.finish()
    if done('conv'): return self.finish()
    self.gemm1()
    self.stamp('gemm1 done')
    self.gemm2()
    return self.finish()

@add_method
def finish(self):
    A=self.A
    if self.ts:
        A("s_waitcnt vmcnt(0)")
        self.stamp('end')
        l=self.lab()
        A(f"s_cmp_lg_u32 s{S_W}, {self.tswave}")
        A(f"s_cbranch_scc1 {l}")
        A("v_mov_b32 v4, 0")
        for k in range(self.nts): A(f"v_writelane_b32 v4, s{86+k}, {k}")
        A(f"v_lshlrev_b32 v5, 2, v{V_LANE}")
        A(f"s_lshl_b32 s{S_T0}, s{S_WG}, 8")
        A(f"s_add_u32 s{S_T0}, s{S_T0}, {WS_TS}")
        A(f"buffer_store_dword v4, v5, s[{SRD_WS}:{SRD_WS+3}], s{S_T0} offen")
        l2=self.lab()
        A(f"s_cmp_lg_u32 s{S_WG}, 0")
        A(f"s_cbranch_scc1 {l2}")
        A(f"global_store_dword v5, v4, s[{S_DBG}:{S_DBG+1}]")
        A(f"{l2}:")
        A(f"{l}:")
    A("L_end:")
    A("s_endpgm")
    self.helper()
    A("L_codeend:")
    body, nfix, probs = hazard_fix(A.L)
    for p in probs: print("HAZARD(backedge):", p, file=sys.stderr)
    errs = wait_lint(body)
    for e in errs[:40]: print("WAITLINT:", e, file=sys.stderr)
    hdr = [
     "; Fused preLN + S4D long-conv + preLN + SwiGLU FFN: one persistent launch, 224 main + 32 weight re-layout workgroups",
     f"; @launch grid=({NGRID},1,1) block=(256,1,1) lds={LDS_TOTAL}",
     '.amdgcn_target "amdgcn-amd-amdhsa--gfx950"',
     ".text", f".globl {KNAME}", ".p2align 8", f".type {KNAME},@function", f"{KNAME}:"]
    ftr = ['.section .rodata,"a"', ".p2align 6", f".amdhsa_kernel {KNAME}",
     "  .amdhsa_next_free_vgpr 512", "  .amdhsa_next_free_sgpr 102", "  .amdhsa_accum_offset 256",
     "  .amdhsa_group_segment_fixed_size 0", "  .amdhsa_kernarg_size 112", "  .amdhsa_user_sgpr_count 2",
     "  .amdhsa_user_sgpr_kernarg_segment_ptr 1", "  .amdhsa_system_sgpr_workgroup_id_x 1",
     ".end_amdhsa_kernel"]
    self.nfix=nfix
    return "\n".join(hdr+body+ftr)+"\n"

if __name__=="__main__":
    import argparse
    ap=argparse.ArgumentParser(); ap.add_argument("-o",default="out.s"); ap.add_argument("--stop",default=None); ap.add_argument("--mimic",type=int,default=2); ap.add_argument("--ts",action="store_true"); ap.add_argument("--perturb",type=float,default=0.0); ap.add_argument("--tsset",default="main"); ap.add_argument("--cyc",action="store_true"); ap.add_argument("--tswave",type=int,default=0); ap.add_argument("--hts",action="store_true"); ap.add_argument("--xmode",default="gather"); ap.add_argument("--wpf",type=int,default=2); ap.add_argument("--w1pf",type=int,default=0); ap.add_argument("--pp",type=int,default=0); ap.add_argument("--gidx",default="1,10,19,28,37"); ap.add_argument("--ng0",type=int,default=2); ap.add_argument("--emov",type=int,default=0); ap.add_argument("--wdspan",type=int,default=28); ap.add_argument("--npre2",type=int,default=4); ap.add_argument("--npre",type=int,default=6); ap.add_argument("--w1start",type=int,default=0); ap.add_argument("--w1n",type=int,default=9); ap.add_argument("--w1step",type=int,default=4); ap.add_argument("--fsleep",type=int,default=0); ap.add_argument("--xlate",type=int,default=1); ap.add_argument("--map",type=int,default=1); ap.add_argument("--cs",type=int,default=0); ap.add_argument("--hsleep",type=int,default=0); ap.add_argument("--msleep",type=int,default=0); ap.add_argument("--w1pre",type=int,default=16)
    a=ap.parse_args()
    g=Gen(stop_after=a.stop, mimic=a.mimic, ts=a.ts, perturb=a.perturb)
    if a.tsset=='main': g.tsonly=set(['xjob post','kgen','x flags','u ready','conv done','sync2 arrive','w1 flags','cs done','sync2 passed','gemm1 done','sync3 arrive','early done','late ready','end'])
    if a.cyc: g.tsop='s_memtime'
    g.tswave=a.tswave; g.hts=a.hts; g.xmode=a.xmode; g.pp=a.pp; g.gidx=tuple(int(x) for x in a.gidx.split(',') if x); g.ng0=a.ng0; g.wdspan=a.wdspan; g.emov=a.emov; g.npre2=a.npre2; g.npre=a.npre; g.w1start=a.w1start; g.w1n=a.w1n; g.w1step=a.w1step; g.fsleep=a.fsleep; g.xlate=a.xlate; g.map=a.map; g.costsched=a.cs; g.hsleep=a.hsleep; g.msleep=a.msleep; g.wpf=a.wpf; g.w1pf=a.w1pf; globals().__setitem__('W1_PRE',a.w1pre)
    if a.tsset=='end': g.tsonly=set(['end'])
    if a.tsset=='g': g.tsonly=set(['sync2 passed','x0','pass0','pass1','pass2','pass3','gemm1 done','sync3 arrive','early done','late ready','late done','red barrier','end'])
    if a.tsset=='start': g.tsonly=set(['kernarg','all issued','index done','xjob post','kgen setup','gen done','wjob post','kmfma','kbar1','kgen','x flags','kexpand','xt landed','u ready','end'])
    txt=g.build()
    open(a.o,"w").write(txt)
    print("wrote",a.o,len(txt.splitlines()),"lines; nops inserted:",g.nfix, "stamps:", g.tsnames, file=sys.stderr)
```

```python
import sys, math
sys.path.insert(0, "gen")
from asmlib import *

KNAME = "sequential_preLN__ssm_conv_s4d__swiglu_ffn__prompt_kernel"
L_, D_, N_, F_ = 2048, 448, 256, 1792
NWG = 224
NGRID = 256

WS_EPOCH = 0
WS_CNT2  = 4096
WS_CNT3  = 12288
WS_STATS = 32768
WS_HT    = 1 << 20
WS_M     = 4 << 20
WS_ST2   = 49152
WS_JF    = 65536
WS_XF    = 196608
WS_CSF   = 131072
WS_CS    = 294912
WS_XT    = 12 << 20
WS_WF1   = 18 << 20
WS_WFD   = 22 << 20
WS_DBG   = 32 << 20
WS_TS    = 16 << 20
WS_SIZE  = 268435456

KG_PITCH = 528
KG_WAVE  = 53 * KG_PITCH
LDS_KX   = 112000
KX_COPY  = 4160
KX_CH    = 4 * KX_COPY
LDS_U    = LDS_KX + 2 * KX_CH
U_CH     = 4608
LDS_XT   = LDS_U + 2 * U_CH
XT_CH    = 4096
LDS_TOTAL = 163840
assert LDS_XT + 2 * XT_CH <= LDS_TOTAL
LDS_JOB = LDS_KX
LDS_CSP = LDS_KX + 32768
assert LDS_CSP + 512 <= LDS_U

S_WG=2
S_X=8; S_LOGA=10; S_AIM=12; S_CR=14; S_CI=16; S_LOGDT=18; S_DSK=20; S_BX=22
S_WGT=24; S_WUP=26; S_WD=28; S_OUT=30; S_DBG=32; S_WS=34
SRD_X=36; SRD_WS=40; SRD_W=44; SRD_W2=48
S_W=52
S_CH=53
S_NH=54
S_D0=55
S_TAG=56
S_I=57; S_J=58
S_T0=60
S_YS=80
S_DSKV=81
S_DT=82
S_W1I=83
S_JDST=84
S_JL=85
S_GW=59
S_JE=78
S_JK=79

LOG2E = 1.4426950408889634
INV2PI = 0.15915494309189535
def f2u(x):
    import struct
    return struct.unpack('<I', struct.pack('<f', x))[0]
def fl(x): return hex(f2u(x))

class Gen:
    def __init__(self, stop_after=None, dbg=False, mimic=2, ts=False, perturb=0.0):
        self.A = Asm(); self.stop_after = stop_after; self.dbg = dbg; self.mimic = mimic
        self.nlab = 0; self.ts=ts; self.nts=0; self.tsnames=[]; self.perturb=perturb; self.tsonly=None; self.xmode='gather'; self.costsched=0; self.map=1; self.xlate=1; self.w1start=0; self.w1_in_conv=0; self.w1n=9; self.w1step=4; self.fsleep=0; self.npre=6; self.wdspan=28; self.emov=0; self.npre2=4; self.gidx=(1,10,19,28,37); self.ng0=2; self.split0=0; self.bar=16; self.stl=6; self.stc=12; self.pp=0; self.hsleep=0; self.msleep=0; self.wpf=2; self.w1pf=0; self.tsop='s_memrealtime'; self.tswave=0
    def stamp(self, name):
        if not self.ts: return
        if self.tsonly is not None and name not in self.tsonly: return
        k=self.nts; self.nts+=1; self.tsnames.append(name); assert k<16
        A=self.A
        A("s_waitcnt lgkmcnt(0)")
        A(f"{self.tsop} s[6:7]")
        A("s_waitcnt lgkmcnt(0)")
        A(f"s_mov_b32 s{86+k}, s6")
    def lab(self, p='L'):
        self.nlab += 1; return f"{p}_{self.nlab}"

    def prologue(self):
        A = self.A
        A(f"s_cmp_ge_u32 s{S_WG}, {NGRID}")
        A("s_cbranch_scc1 L_end")
        if self.ts:
            A(f"{self.tsop} s[6:7]")
            A("s_waitcnt lgkmcnt(0)")
            A("s_mov_b32 s86, s6"); self.nts=1; self.tsnames.append('start')
        A(f"s_load_dwordx16 s[8:23], s[0:1], 0")
        A(f"s_load_dwordx8 s[24:31], s[0:1], 64")
        A(f"s_load_dwordx4 s[32:35], s[0:1], 96")
        A("s_getpc_b64 s[4:5]")
        A("L_pc:")
        A("v_lshlrev_b32 v1, 7, v0")
        A("v_add_u32 v2, 0x8000, v1")
        A("v_min_u32 v1, (L_codeend-L_pc-4), v1")
        A("global_load_dword v255, v1, s[4:5]")
        A("v_min_u32 v2, (L_codeend-L_pc-4), v2")
        A("global_load_dword v254, v2, s[4:5]")
        A("v_lshrrev_b32 v2, 6, v0")
        A("v_and_b32 v1, 63, v0")
        A(f"v_readfirstlane_b32 s{S_W}, v2")
        A(f"s_lshr_b32 s{S_CH}, s{S_W}, 1")
        A(f"s_and_b32 s{S_NH}, s{S_W}, 1")
        A(f"s_cmp_ge_u32 s{S_WG}, {NWG}")
        A("s_cbranch_scc1 L_helper")
        A(f"s_and_b32 s{S_T0}, s{S_WG}, 7")
        A(f"s_mul_i32 s{S_T0}, s{S_T0}, 28")
        A(f"s_lshr_b32 s{S_T0+1}, s{S_WG}, 3")
        A(f"s_add_u32 s{S_T0}, s{S_T0}, s{S_T0+1}")
        A(f"s_lshl_b32 s{S_D0}, s{S_T0}, 1")
        if self.map==0:
            A(f"s_mul_i32 s{S_T0+2}, s{S_T0+1}, 37")
            A(f"s_lshr_b32 s{S_T0+2}, s{S_T0+2}, 8")
            A(f"s_mul_i32 s{S_T0+3}, s{S_T0+2}, 7")
            A(f"s_sub_u32 s{S_T0+3}, s{S_T0+1}, s{S_T0+3}")
            A(f"s_and_b32 s{S_T0+4}, s{S_WG}, 7")
            A(f"s_lshr_b32 s{S_T0+5}, s{S_T0+4}, 1")
            A(f"s_lshl_b32 s{S_T0+5}, s{S_T0+5}, 2")
            A(f"s_add_u32 s{S_I}, s{S_T0+5}, s{S_T0+2}")
            A(f"s_and_b32 s{S_T0+4}, s{S_T0+4}, 1")
            A(f"s_mul_i32 s{S_T0+4}, s{S_T0+4}, 7")
            A(f"s_add_u32 s{S_J}, s{S_T0+4}, s{S_T0+3}")
        else:
            A(f"s_and_b32 s{S_T0+2}, s{S_WG}, 3")
            A(f"s_mul_i32 s{S_T0+2}, s{S_T0+2}, 28")
            A(f"s_add_u32 s{S_T0+2}, s{S_T0+2}, s{S_T0+1}")
            A(f"s_lshr_b32 s{S_J}, s{S_T0+2}, 3")
            A(f"s_and_b32 s{S_T0+2}, s{S_T0+2}, 7")
            A(f"s_bfe_u32 s{S_T0+3}, s{S_WG}, 0x10002")
            A(f"s_lshl_b32 s{S_T0+3}, s{S_T0+3}, 3")
            A(f"s_add_u32 s{S_I}, s{S_T0+2}, s{S_T0+3}")

def q7check():
    for q in range(28): assert (q*37)>>8 == q//7, q
q7check()

def add_method(f):
    setattr(Gen, f.__name__, f); return f

V_LANE=1
V_T=0
V_ZERO=2
V_XG=8
V_OFF=16
V_EP=27
V_PA=28
V_SX=36
V_TMP=48

@add_method
def phase0_loads(self):
    A=self.A
    A("s_waitcnt lgkmcnt(0)")
    self.stamp('kernarg')
    A(f"s_mov_b32 s{SRD_X}, s{S_X}\ns_mov_b32 s{SRD_X+1}, s{S_X+1}\ns_mov_b32 s{SRD_X+2}, {L_*D_*2}\ns_mov_b32 s{SRD_X+3}, 0x20000")
    A(f"s_mov_b32 s{SRD_WS}, s{S_WS}\ns_mov_b32 s{SRD_WS+1}, s{S_WS+1}\ns_mov_b32 s{SRD_WS+2}, {WS_SIZE}\ns_mov_b32 s{SRD_WS+3}, 0x20000")
    A(f"v_mov_b32 v{V_ZERO}, 0")
    self.job_roles()
    l=self.lab()
    A(f"s_cmp_lg_u32 s{S_WG}, {NWG-1}")
    A(f"s_cbranch_scc1 {l}")
    self.zero_counters_body()
    A(f"{l}:")
    self.xjob_issue()
    A(f"s_add_u32 s{S_T0+3}, s{S_D0}, s{S_CH}")
    A(f"s_lshl_b32 s{S_T0+3}, s{S_T0+3}, 9")
    A(f"s_lshl_b32 s{S_T0+4}, s{S_NH}, 8")
    A(f"s_add_u32 s{S_T0+3}, s{S_T0+3}, s{S_T0+4}")
    A(f"v_lshl_add_u32 v8, v{V_LANE}, 2, s{S_T0+3}")
    A(f"v_xor_b32 v9, 256, v8")
    A(f"global_load_dword v{V_PA}, v8, s[{S_LOGA}:{S_LOGA+1}]")
    A(f"global_load_dword v{V_PA+1}, v8, s[{S_AIM}:{S_AIM+1}]")
    A(f"global_load_dword v{V_PA+2}, v8, s[{S_CR}:{S_CR+1}]")
    A(f"global_load_dword v{V_PA+3}, v8, s[{S_CI}:{S_CI+1}]")
    A(f"global_load_dword v{V_PA+4}, v9, s[{S_CR}:{S_CR+1}]")
    A(f"global_load_dword v{V_PA+5}, v9, s[{S_CI}:{S_CI+1}]")
    A(f"s_lshl_b32 s{S_T0+4}, s{S_D0}, 1")
    A(f"s_load_dword s{S_DT}, s[{S_LOGDT}:{S_LOGDT+1}], s{S_T0+4}")
    A(f"s_load_dword s{S_DSKV}, s[{S_DSK}:{S_DSK+1}], s{S_T0+4}")
    A(f"global_load_dword v{V_EP}, v{V_ZERO}, s[{S_WS}:{S_WS+1}] sc1")
    if self.xmode=='gather':
        self.gl=self.gather_items(); self.gi=0
        for _ in range(self.ng0): A(self.gl[self.gi]); self.gi+=1
    if self.wpf:
        lpf=self.lab()
        A(f"s_cmp_ge_u32 s{S_W}, {self.wpf}")
        A(f"s_cbranch_scc1 {lpf}")
        A(f"s_cmp_eq_u32 s{S_W}, 0")
        A(f"s_cselect_b32 s{SRD_W}, s{S_WGT}, s{S_WUP}")
        A(f"s_cselect_b32 s{SRD_W+1}, s{S_WGT+1}, s{S_WUP+1}")
        A(f"s_cmp_eq_u32 s{S_W}, 2")
        A(f"s_cselect_b32 s{SRD_W}, s{S_WD}, s{SRD_W}")
        A(f"s_cselect_b32 s{SRD_W+1}, s{S_WD+1}, s{SRD_W+1}")
        A(f"s_mov_b32 s{SRD_W+2}, {D_*F_*2}")
        A(f"s_mov_b32 s{SRD_W+3}, 0x20000")
        A(f"v_min_u32 v5, 55, v{V_LANE}")
        A(f"v_lshlrev_b32 v5, 7, v5")
        A(f"s_mul_i32 s{S_T0}, s{S_WG}, {56*128}")
        A(f"buffer_load_dword v253, v5, s[{SRD_W}:{SRD_W+3}], s{S_T0} offen")
        A(f"{lpf}:")
    self.stamp('all issued')
    A(f"s_mul_i32 s{S_T0+5}, s{S_W}, {KG_WAVE}")
    A(f"v_and_b32 v182, 31, v{V_LANE}")
    A(f"v_lshrrev_b32 v183, 5, v{V_LANE}")
    A(f"v_lshlrev_b32 v176, 4, v182")
    A(f"v_lshl_add_u32 v176, v183, 3, v176")
    A(f"v_add_u32 v176, s{S_T0+5}, v176")
    A(f"v_lshlrev_b32 v177, 3, v182")
    A(f"v_add_u32 v177, 512, v177")
    A(f"v_lshlrev_b32 v178, 2, v182")
    A(f"v_add_u32 v178, 768, v178")
    A(f"v_cmp_eq_u32 vcc, 1, v183")
    A(f"v_cndmask_b32 v177, v177, v178, vcc")
    A(f"v_add_u32 v177, s{S_T0+5}, v177")
    A(f"v_mov_b32 v178, 4")
    A(f"v_mov_b32 v179, 128")
    A(f"v_cndmask_b32 v178, v178, v179, vcc")
    A(f"v_add_u32 v178, v177, v178")
    A(f"v_lshlrev_b32 v179, 1, v182")
    A(f"v_lshl_add_u32 v179, v183, 8, v179")
    A(f"v_add_u32 v179, s{S_T0+5}, v179")
    A(f"v_lshlrev_b32 v48, 3, v{V_T}")
    for x in range(11):
        o=V_OFF+x
        A(f"v_sub_u32 v49, {2047-x}, v48")
        A(f"v_cvt_f32_i32 v50, v49")
        A(f"v_cvt_pk_bf16_f32 v50, v50, v50")
        A(f"v_and_b32 v50, 0xffff, v50")
        A(f"v_subrev_u32 v50, 17024, v50")
        A(f"v_cmp_gt_i32 vcc, 128, v49")
        A(f"v_cndmask_b32 v50, v50, v49, vcc")
        if x>=8:
            A(f"v_cmp_gt_i32 vcc, 0, v49")
            A(f"v_mov_b32 v51, 768")
            A(f"v_cndmask_b32 v50, v50, v51, vcc")
        A(f"v_lshlrev_b32 v{o}, 1, v50")

NWJ = 588
LDS_XB = LDS_JOB + 3*8192

@add_method
def job_roles(self):
    A=self.A
    A(f"s_mul_i32 s{S_T0}, s{S_W}, 224")
    A(f"s_add_u32 s{S_GW}, s{S_T0}, s{S_WG}")
    A(f"s_lshl_b32 s{S_JL}, s{S_W}, 13")
    A(f"s_add_u32 s{S_JL}, s{S_JL}, {LDS_JOB}")

V_SR=64
@add_method
def xjob_issue(self):
    A=self.A
    A(f"v_bfe_u32 v50, v{V_LANE}, 4, 1")
    A(f"v_lshrrev_b32 v51, 5, v{V_LANE}")
    A(f"v_mul_u32_u24 v51, {224*8}, v51")
    A(f"v_add_u32 v50, v50, v51")
    A(f"s_lshl_b32 s{S_T0}, s{S_WG}, 3")
    A(f"s_lshl_b32 s{S_T0+1}, s{S_W}, 1")
    A(f"s_add_u32 s{S_T0}, s{S_T0}, s{S_T0+1}")
    A(f"v_add_u32 v50, s{S_T0}, v50")
    A(f"v_mul_u32_u24 v50, 896, v50")
    A(f"v_and_b32 v51, 15, v{V_LANE}")
    A(f"v_lshl_add_u32 v50, v51, 4, v50")
    A(f"v_mov_b32 v52, 0x10000000")
    A(f"v_cmp_gt_u32 vcc, 8, v51")
    A(f"v_cndmask_b32 v52, v52, v50, vcc")
    for k in range(3):
        A(f"buffer_load_dwordx4 v[{V_SR+4*k}:{V_SR+4*k+3}], v50, s[{SRD_X}:{SRD_X+3}], 0 offen offset:{256*k}")
    A(f"buffer_load_dwordx4 v[{V_SR+12}:{V_SR+15}], v52, s[{SRD_X}:{SRD_X+3}], 0 offen offset:768")

@add_method
def gather_items(self):
    A=self.A
    A(f"s_lshl_b32 s{S_T0+14}, s{S_D0}, 1")
    A(f"s_movk_i32 s{S_T0+15}, 7168")
    A(f"v_mul_lo_u32 v4, v{V_T}, s{S_T0+15}")
    A(f"v_add_u32 v4, s{S_T0+14}, v4")
    A(f"s_movk_i32 s{S_T0+15}, 4480")
    out=[]
    for j in range(8):
        if j<5: out.append(f"buffer_load_dword v{V_XG+j}, v4, s[{SRD_X}:{SRD_X+3}], 0 offen offset:{j*896}")
        else:   out.append(f"buffer_load_dword v{V_XG+j}, v4, s[{SRD_X}:{SRD_X+3}], s{S_T0+15} offen offset:{(j-5)*896}")
    return out

@add_method
def xjob_post(self):
    A=self.A
    gather=(self.xmode=='gather')
    if self.wpf:
        lw=self.lab(); lc=self.lab()
        A(f"s_cmp_ge_u32 s{S_W}, {self.wpf}")
        A(f"s_cbranch_scc1 {lw}")
        A(f"s_waitcnt vmcnt({self.ng0+1}) lgkmcnt(0)")
        A(f"s_branch {lc}")
        A(f"{lw}:")
        A(f"s_waitcnt vmcnt({self.ng0}) lgkmcnt(0)")
        A(f"{lc}:")
    else:
        A(f"s_waitcnt vmcnt({2 if gather else 0}) lgkmcnt(0)")
    A(f"v_readfirstlane_b32 s{S_TAG}, v{V_EP}")
    A(f"s_add_u32 s{S_TAG}, s{S_TAG}, 0x9E3779B9")
    J=V_SR
    if not gather:
        A(f"v_bfe_u32 v50, v{V_LANE}, 4, 1")
        A(f"s_lshl_b32 s{S_T0}, s{S_W}, 1")
        A(f"v_add_u32 v50, s{S_T0}, v50")
        A(f"v_mul_u32_u24 v50, 896, v50")
        A(f"v_lshrrev_b32 v51, 5, v{V_LANE}")
        A(f"v_mul_u32_u24 v51, 7168, v51")
        A(f"v_add_u32 v50, v50, v51")
        A(f"v_and_b32 v51, 15, v{V_LANE}")
        A(f"v_lshl_add_u32 v50, v51, 4, v50")
        A(f"v_add_u32 v50, {LDS_XB}, v50")
        for k in range(3): A(f"ds_write_b128 v50, v[{J+4*k}:{J+4*k+3}] offset:{k*256}")
        A("s_mov_b32 exec_lo, 0x00ff00ff\ns_mov_b32 exec_hi, 0x00ff00ff")
        A(f"ds_write_b128 v50, v[{J+12}:{J+15}] offset:768")
        A("s_mov_b64 exec, -1")
    A("v_mov_b32 v54, 0x3f803f80")
    for i in range(16):
        c1="0" if i<2 else f"v{56+(i&1)}"; c2="0" if i<2 else f"v{58+(i&1)}"
        A(f"v_dot2_f32_bf16 v{56+(i&1)}, v{J+i}, v54, {c1}")
        A(f"v_dot2_f32_bf16 v{58+(i&1)}, v{J+i}, v{J+i}, {c2}")
    A(f"v_bfe_u32 v42, v{V_LANE}, 4, 1")
    A(f"v_lshlrev_b32 v42, 3, v42")
    A(f"v_lshrrev_b32 v39, 5, v{V_LANE}")
    A(f"v_mul_u32_u24 v39, {224*64}, v39")
    A(f"v_add_u32 v42, v42, v39")
    A(f"s_lshl_b32 s{S_T0+10}, s{S_WG}, 6")
    A(f"s_lshl_b32 s{S_T0+9}, s{S_W}, 4")
    A(f"s_add_u32 s{S_T0+10}, s{S_T0+10}, s{S_T0+9}")
    A(f"s_add_u32 s{S_T0+10}, s{S_T0+10}, {WS_STATS}")
    A("v_add_f32 v56, v56, v57\nv_add_f32 v57, v58, v59")
    for mode in ["row_shr:1","row_shr:2","row_shr:4","row_shr:8"]:
        A(f"v_add_f32_dpp v56, v56, v56 {mode} row_mask:0xf bank_mask:0xf bound_ctrl:0"); A(f"v_add_f32_dpp v57, v57, v57 {mode} row_mask:0xf bank_mask:0xf bound_ctrl:0")
    A(f"v_mul_f32 v56, {fl(1.0/448)}, v56")
    A(f"v_mul_f32 v57, {fl(1.0/448)}, v57")
    A("v_fma_f32 v57, -v56, v56, v57")
    A("v_max_f32 v57, 0, v57")
    A("v_cvt_pk_bf16_f32 v57, v57, v57")
    A("v_lshlrev_b32 v57, 16, v57")
    A(f"v_add_f32 v57, {fl(1e-5)}, v57")
    A("v_cvt_pk_bf16_f32 v57, v57, v57")
    A("v_lshlrev_b32 v57, 16, v57")
    A("v_sqrt_f32 v57, v57")
    A(f"v_mov_b32 v41, s{S_TAG}")
    A(f"v_cvt_pk_bf16_f32 v40, v57, v56")
    A(f"s_cmp_lt_u32 s{S_WG}, 32")
    A(f"s_cselect_b32 exec_hi, 0x80008000, 0")
    A("s_mov_b32 exec_lo, 0x80008000")
    A(f"buffer_store_dwordx2 v[40:41], v42, s[{SRD_WS}:{SRD_WS+3}], s{S_T0+10} offen sc1")
    A("s_mov_b64 exec, -1")
    if gather: return
    A("s_waitcnt lgkmcnt(0)")
    A("s_barrier")
    X=80
    A(f"v_bfe_u32 v52, v{V_LANE}, 2, 2")
    A(f"v_mul_u32_u24 v52, 896, v52")
    A(f"v_lshrrev_b32 v53, 4, v{V_LANE}")
    A(f"v_lshl_add_u32 v52, v53, 5, v52")
    A(f"v_and_b32 v53, 3, v{V_LANE}")
    A(f"v_lshl_add_u32 v52, v53, 3, v52")
    A(f"s_lshl_b32 s{S_T0+1}, s{S_W}, 7")
    A(f"s_add_u32 s{S_T0+1}, s{S_T0+1}, {LDS_XB}")
    A(f"v_add_u32 v52, s{S_T0+1}, v52")
    for k in range(2):
        o=7168*k; x=X+8*k
        A(f"ds_read_b64_tr_b16 v[{x}:{x+1}], v52 offset:{o}")
        A(f"ds_read_b64_tr_b16 v[{x+2}:{x+3}], v52 offset:{o+4*896}")
        A(f"ds_read_b64_tr_b16 v[{x+4}:{x+5}], v52 offset:{o+512}")
        A(f"ds_read_b64_tr_b16 v[{x+6}:{x+7}], v52 offset:{o+512+4*896}")
    A(f"v_lshlrev_b32 v53, 4, v{V_LANE}")
    A(f"s_mul_i32 s{S_T0+2}, s{S_WG}, 7168")
    A(f"s_lshl_b32 s{S_T0+3}, s{S_W}, 10")
    A(f"s_add_u32 s{S_T0+2}, s{S_T0+2}, s{S_T0+3}")
    A(f"s_add_u32 s{S_T0+2}, s{S_T0+2}, {WS_XT}")
    def st(x,extra):
        A(f"s_add_u32 s{S_T0+3}, s{S_T0+2}, {extra}")
        A(f"buffer_store_dwordx4 v[{x}:{x+3}], v53, s[{SRD_WS}:{SRD_WS+3}], s{S_T0+3} offen sc1")
    l3=self.lab(); l32=self.lab()
    A("s_waitcnt lgkmcnt(6)")
    st(X,0)
    A(f"s_cmp_eq_u32 s{S_W}, 3")
    A(f"s_cbranch_scc1 {l3}")
    A("s_waitcnt lgkmcnt(4)")
    st(X+4,4096)
    A(f"{l3}:")
    A(f"s_cmp_ge_u32 s{S_WG}, 32")
    A(f"s_cbranch_scc1 {l32}")
    A("s_waitcnt lgkmcnt(0)")
    st(X+8,224*7168)
    A(f"s_cmp_eq_u32 s{S_W}, 3")
    A(f"s_cbranch_scc1 {l32}")
    st(X+12,224*7168+4096)
    A(f"{l32}:")
    A("s_waitcnt lgkmcnt(0)")

@add_method
def xflag_publish(self):
    A=self.A
    A("s_waitcnt vmcnt(0)")
    A(f"s_lshl_b32 s{S_T0+10}, s{S_WG}, 2")
    A(f"s_add_u32 s{S_T0+10}, s{S_T0+10}, s{S_W}")
    A(f"s_lshl_b32 s{S_T0+10}, s{S_T0+10}, 6")
    A(f"s_add_u32 s{S_T0+10}, s{S_T0+10}, {WS_XF}")
    A(f"v_mul_u32_u24 v42, {224*4*64}, v{V_LANE}")
    A(f"v_mov_b32 v41, s{S_TAG}")
    A(f"s_cmp_lt_u32 s{S_WG}, 32")
    A(f"s_cselect_b32 exec_lo, 3, 1")
    A("s_mov_b32 exec_hi, 0")
    A(f"buffer_store_dword v41, v42, s[{SRD_WS}:{SRD_WS+3}], s{S_T0+10} offen sc1")
    A("s_mov_b64 exec, -1")

@add_method
def zero_counters_body(self):
    A=self.A; l=self.lab()
    A(f"s_cmp_lg_u32 s{S_W}, 3")
    A(f"s_cbranch_scc1 {l}")
    A(f"v_lshlrev_b32 v3, 7, v{V_LANE}")
    A(f"s_mov_b32 s{S_T0+5}, {WS_CNT2}")
    A(f"buffer_store_dword v{V_ZERO}, v3, s[{SRD_WS}:{SRD_WS+3}], s{S_T0+5} offen sc1")
    A(f"s_mov_b32 s{S_T0+5}, {WS_CNT3}")
    A(f"buffer_store_dword v{V_ZERO}, v3, s[{SRD_WS}:{SRD_WS+3}], s{S_T0+5} offen sc1")
    A(f"{l}:")

S_HY=64; S_HL=65; S_HD=66; S_HE=67; S_HK=68; S_HRET=70
S_HSTR=69; S_HG=72; S_HP=73
@add_method
def wjob_params(self):
    A=self.A; ld=self.lab('Lwd'); lc=self.lab('Lwc'); T=S_T0
    A(f"s_cmp_ge_u32 s{S_HY}, 392")
    A(f"s_cbranch_scc1 {ld}")
    A(f"s_cmp_ge_u32 s{S_HY}, 196")
    A(f"s_cselect_b32 s{SRD_W}, s{S_WUP}, s{S_WGT}")
    A(f"s_cselect_b32 s{SRD_W+1}, s{S_WUP+1}, s{S_WGT+1}")
    A(f"s_cselect_b32 s{T+1}, 1, 0")
    A(f"s_mul_i32 s{T+2}, s{T+1}, 196")
    A(f"s_sub_u32 s{T+2}, s{S_HY}, s{T+2}")
    A(f"s_mul_i32 s{S_HP}, s{T+2}, 9363")
    A(f"s_lshr_b32 s{S_HP}, s{S_HP}, 16")
    A(f"s_mul_i32 s{S_HG}, s{S_HP}, 7")
    A(f"s_sub_u32 s{S_HG}, s{T+2}, s{S_HG}")
    A(f"s_movk_i32 s{S_HSTR}, 3584")
    A(f"s_lshl_b32 s{T+2}, s{S_HP}, 2")
    A(f"s_add_u32 s{T+2}, s{T+2}, s{T+1}")
    A(f"s_mul_i32 s{T+2}, s{T+2}, 28")
    A(f"s_lshl_b32 s{T+3}, s{S_HG}, 2")
    A(f"s_add_u32 s{T+2}, s{T+2}, s{T+3}")
    A(f"s_lshl_b32 s{T+2}, s{T+2}, 10")
    A(f"s_add_u32 s{S_HD}, s{T+2}, {WS_WF1}")
    A(f"s_mov_b32 s{S_HE}, {56*1024}")
    A(f"s_mov_b32 s{S_HK}, 4")
    A(f"s_branch {lc}")
    A(f"{ld}:")
    A(f"s_mov_b32 s{SRD_W}, s{S_WD}")
    A(f"s_mov_b32 s{SRD_W+1}, s{S_WD+1}")
    A(f"s_sub_u32 s{T+2}, s{S_HY}, 392")
    A(f"s_mul_i32 s{S_HP}, s{T+2}, 2341")
    A(f"s_lshr_b32 s{S_HP}, s{S_HP}, 16")
    A(f"s_mul_i32 s{S_HG}, s{S_HP}, 28")
    A(f"s_sub_u32 s{S_HG}, s{T+2}, s{S_HG}")
    A(f"s_movk_i32 s{S_HSTR}, 896")
    A(f"s_mul_i32 s{T+2}, s{S_HP}, 224")
    A(f"s_lshl_b32 s{T+3}, s{S_HG}, 2")
    A(f"s_add_u32 s{T+2}, s{T+2}, s{T+3}")
    A(f"s_lshl_b32 s{T+2}, s{T+2}, 10")
    A(f"s_add_u32 s{S_HD}, s{T+2}, {WS_WFD}")
    A(f"s_mov_b32 s{S_HE}, {112*1024}")
    A(f"s_mov_b32 s{S_HK}, 8")
    A(f"{lc}:")

for _u in range(196): assert (_u*9363)>>16 == _u//7
for _u in range(196): assert (_u*2341)>>16 == _u//28

@add_method
def helper(self):
    A=self.A; T=S_T0
    A("L_helper:")
    hs=[0]
    def hstamp():
        if not (self.ts and getattr(self,'hts',False)): return
        A(f"{self.tsop} s[6:7]"); A("s_waitcnt lgkmcnt(0)"); A(f"v_writelane_b32 v200, s6, {hs[0]}"); hs[0]+=1
    A("s_waitcnt lgkmcnt(0)")
    if self.ts and getattr(self,'hts',False):
        A("v_mov_b32 v200, 0"); A("v_writelane_b32 v200, s86, 0"); hs[0]=1
    hstamp()
    A(f"s_mov_b32 s{SRD_WS}, s{S_WS}\ns_mov_b32 s{SRD_WS+1}, s{S_WS+1}\ns_mov_b32 s{SRD_WS+2}, {WS_SIZE}\ns_mov_b32 s{SRD_WS+3}, 0x20000")
    A(f"s_mov_b32 s{SRD_W+2}, {D_*F_*2}")
    A(f"s_mov_b32 s{SRD_W+3}, 0x20000")
    A(f"v_mov_b32 v{V_ZERO}, 0")
    A(f"global_load_dword v{V_EP}, v{V_ZERO}, s[{S_WS}:{S_WS+1}] sc1")
    A(f"s_sub_u32 s{S_GW}, s{S_WG}, {NWG}")
    A(f"s_lshl_b32 s{S_GW}, s{S_GW}, 2")
    A(f"s_add_u32 s{S_GW}, s{S_GW}, s{S_W}")
    A(f"s_mul_i32 s{S_JL}, s{S_W}, 40960")
    A(f"v_lshrrev_b32 v40, 3, v{V_LANE}")
    A(f"v_bfe_u32 v49, v{V_LANE}, 4, 1")
    A(f"v_lshlrev_b32 v49, 2, v49")
    A(f"v_and_b32 v50, 7, v{V_LANE}")
    A(f"v_xor_b32 v49, v49, v50")
    A(f"v_lshlrev_b32 v41, 4, v49")
    A(f"v_bfe_u32 v51, v{V_LANE}, 2, 2")
    A(f"v_lshlrev_b32 v42, 7, v51")
    A(f"v_lshrrev_b32 v51, 1, v51")
    A(f"v_lshlrev_b32 v51, 2, v51")
    A(f"v_bfe_u32 v52, v{V_LANE}, 4, 1")
    A(f"v_bfe_u32 v53, v{V_LANE}, 1, 1")
    A(f"v_lshl_add_u32 v52, v52, 1, v53")
    A(f"v_xor_b32 v51, v51, v52")
    A(f"v_lshl_add_u32 v42, v51, 4, v42")
    A(f"v_and_b32 v51, 1, v{V_LANE}")
    A(f"v_lshl_add_u32 v42, v51, 3, v42")
    A(f"v_lshrrev_b32 v43, 5, v{V_LANE}")
    A(f"v_lshlrev_b32 v54, 4, v{V_LANE}")
    A(f"v_mul_u32_u24 v58, {2*896}, v43")
    A(f"v_and_b32 v59, 31, v{V_LANE}")
    A(f"v_lshl_add_u32 v58, v59, 2, v58")
    def call(lbl):
        A(f"s_getpc_b64 s[{T+14}:{T+15}]")
        r=self.lab('Lr')
        A(f"{r}:")
        A(f"s_add_u32 s{T+14}, s{T+14}, ({lbl}-{r})")
        A(f"s_addc_u32 s{T+15}, s{T+15}, (({lbl}-{r})>>31)")
        A(f"s_swappc_b64 s[{S_HRET}:{S_HRET+1}], s[{T+14}:{T+15}]")
    NS=9
    def setjob_y(expr_add, clamp):
        A(f"s_add_u32 s{S_HY}, s{S_GW}, {expr_add}")
        A(f"s_min_u32 s{S_HY}, s{S_HY}, {clamp}")
    def job(n,kind):
        if kind=='w1': setjob_y(128*n, 391)
        else: setjob_y(392+128*(n-4), NWJ-1)
        A(f"s_add_u32 s{S_HL}, s{S_JL}, {8192*(n if n<4 else n-4)}")
    def flag_cur():
        A(f"s_lshl_b32 s{T+10}, s{S_HY}, 6")
        A(f"s_add_u32 s{T+10}, s{T+10}, {WS_JF}")
        A(f"v_mov_b32 v47, s{S_TAG}")
        A("s_mov_b64 exec, 1")
        A(f"buffer_store_dword v47, v{V_ZERO}, s[{SRD_WS}:{SRD_WS+3}], s{T+10} offen sc1")
        A("s_mov_b64 exec, -1")
    def batch(ns, kind):
        k=len(ns); st = NS if kind=='w1' else 8
        for n in ns: job(n,kind); call("L_hissue")
        hstamp()
        for i,n in enumerate(ns):
            job(n,kind); A(f"s_waitcnt vmcnt({8*(k-1-i)+st*i})"); call("L_hpost")
            if i==0 and kind=='w1':
                A(f"v_readfirstlane_b32 s{S_TAG}, v{V_EP}")
                A(f"s_add_u32 s{S_TAG}, s{S_TAG}, 0x9E3779B9")
        hstamp()
        for i,n in enumerate(ns):
            A(f"s_waitcnt vmcnt({st*(k-1-i)+i})")
            job(n,kind); flag_cur()
        hstamp()
    l4=self.lab('Lh4'); lb=self.lab('Lhb')
    A(f"s_cmp_lt_u32 s{S_GW}, 8")
    A(f"s_cbranch_scc1 {l4}")
    batch([0,1,2],'w1')
    A(f"s_branch {lb}")
    A(f"{l4}:")
    sv=hs[0]; hs[0]=2
    batch([0,1,2,3],'w1')
    hs[0]=sv
    A(f"{lb}:")
    batch([4,5],'wd')
    lp=self.lab('Lpoll'); le=self.lab()
    A(f"s_mov_b32 s{T+1}, 0")
    A(f"s_mov_b32 s{T}, {WS_STATS+(8*(NWG-1)+6)*8+4}")
    A(f"{lp}:")
    A(f"buffer_load_dword v49, v{V_ZERO}, s[{SRD_WS}:{SRD_WS+3}], s{T} offen sc1")
    A("s_waitcnt vmcnt(0)")
    A(f"v_cmp_ne_u32 vcc, s{S_TAG}, v49")
    A(f"s_add_u32 s{T+1}, s{T+1}, 1")
    A(f"s_cbranch_vccz {le}")
    A(f"s_cmp_lt_u32 s{T+1}, 0x8000")
    A(f"s_cbranch_scc1 {lp}")
    A(f"{le}:")
    self.sync_all_wait(sleep=self.hsleep)
    hstamp()
    A(f"s_sub_u32 s{T}, s{S_WG}, {NWG}")
    A(f"s_mul_i32 s{T}, s{T}, 57344")
    A(f"s_mul_i32 s{T+1}, s{S_W}, 14336")
    A(f"s_add_u32 s{T}, s{T}, s{T+1}")
    A(f"s_add_u32 s{T}, s{T}, {WS_HT}")
    for k in range(14):
        if k%4==0:
            A(f"s_add_u32 s{T+2}, s{T}, {k*1024}")
            A(f"s_add_u32 m0, s{T+1}, {k*1024}")
        A(f"buffer_load_dwordx4 v54, s[{SRD_WS}:{SRD_WS+3}], s{T+2} offen offset:{(k%4)*1024} sc1 lds")
    A(f"v_lshlrev_b32 v50, 9, v43")
    A(f"v_bfe_u32 v51, v{V_LANE}, 2, 2")
    A(f"v_lshl_add_u32 v50, v51, 6, v50")
    A(f"v_bfe_u32 v51, v{V_LANE}, 4, 1")
    A(f"v_lshl_add_u32 v50, v51, 5, v50")
    A(f"v_and_b32 v51, 3, v{V_LANE}")
    A(f"v_lshl_add_u32 v50, v51, 3, v50")
    A(f"v_add_u32 v50, s{T+1}, v50")
    A("v_mov_b32 v55, 0x3f803f80")
    for k0 in range(0,14,2):
        A(f"s_waitcnt vmcnt({12-k0})")
        for k in (k0,k0+1):
            r=64+4*(k%4)
            A(f"ds_read_b64_tr_b16 v[{r}:{r+1}], v50 offset:{k*1024}")
            A(f"ds_read_b64_tr_b16 v[{r+2}:{r+3}], v50 offset:{k*1024+256}")
        A("s_waitcnt lgkmcnt(0)")
        for k in (k0,k0+1):
            r=64+4*(k%4)
            for d in range(4):
                i=4*k+d
                c1="0" if i<2 else f"v{56+(i&1)}"; c2="0" if i<2 else f"v{58+(i&1)}"
                A(f"v_dot2_f32_bf16 v{56+(i&1)}, v{r+d}, v55, {c1}")
                A(f"v_dot2_f32_bf16 v{58+(i&1)}, v{r+d}, v{r+d}, {c2}")
    A("s_nop 2")
    A("v_add_f32 v56, v56, v57\nv_add_f32 v57, v58, v59")
    A("v_mov_b32 v58, v56\nv_mov_b32 v59, v57")
    A("v_permlane32_swap_b32 v56, v58\nv_permlane32_swap_b32 v57, v59")
    A("v_add_f32 v56, v56, v58\nv_add_f32 v57, v57, v59")
    A(f"v_and_b32 v60, 31, v{V_LANE}")
    A(f"v_lshlrev_b32 v61, 4, v60")
    A(f"s_lshr_b32 s{T+3}, s{S_W}, 1")
    A(f"s_lshl_b32 s{T+3}, s{T+3}, 9")
    A(f"s_add_u32 s{T+3}, s{T+3}, 65536")
    A(f"v_add_u32 v61, s{T+3}, v61")
    A(f"s_and_b32 s{T+4}, s{S_W}, 1")
    A(f"s_lshl_b32 s{T+4}, s{T+4}, 3")
    A(f"v_add_u32 v62, s{T+4}, v61")
    A("ds_write_b64 v62, v[56:57]")
    A("s_waitcnt lgkmcnt(0)")
    A("s_barrier")
    lz=self.lab()
    A(f"s_cmp_lg_u32 s{T+4}, 0")
    A(f"s_cbranch_scc1 {lz}")
    A("ds_read_b128 v[64:67], v61")
    A("s_waitcnt lgkmcnt(0)")
    A("v_add_f32 v64, v64, v66\nv_add_f32 v65, v65, v67")
    A(f"v_mul_f32 v64, {fl(1.0/448)}, v64")
    A(f"v_mul_f32 v65, {fl(1.0/448)}, v65")
    A("v_fma_f32 v65, -v64, v64, v65")
    A("v_max_f32 v65, 0, v65")
    A("v_cvt_pk_bf16_f32 v65, v65, v65")
    A("v_lshlrev_b32 v65, 16, v65")
    A(f"v_add_f32 v65, {fl(1e-5)}, v65")
    A("v_cvt_pk_bf16_f32 v65, v65, v65")
    A("v_lshlrev_b32 v65, 16, v65")
    A("v_sqrt_f32 v65, v65")
    A("v_cvt_pk_bf16_f32 v66, v65, v64")
    A(f"v_mov_b32 v67, s{S_TAG}")
    A(f"v_lshlrev_b32 v68, 3, v60")
    A(f"s_sub_u32 s{T+5}, s{S_WG}, {NWG}")
    A(f"s_lshl_b32 s{T+5}, s{T+5}, 1")
    A(f"s_lshr_b32 s{T+6}, s{S_W}, 1")
    A(f"s_add_u32 s{T+5}, s{T+5}, s{T+6}")
    A(f"s_lshl_b32 s{T+5}, s{T+5}, 8")
    A(f"s_add_u32 s{T+5}, s{T+5}, {WS_ST2}")
    A("s_mov_b32 exec_hi, 0")
    A(f"buffer_store_dwordx2 v[66:67], v68, s[{SRD_WS}:{SRD_WS+3}], s{T+5} offen sc1")
    A("s_mov_b32 exec_hi, -1")
    A(f"{lz}:")
    hstamp()
    if self.ts and getattr(self,'hts',False):
        l=self.lab()
        A(f"s_cmp_lg_u32 s{S_W}, 0")
        A(f"s_cbranch_scc1 {l}")
        A(f"v_lshlrev_b32 v5, 2, v{V_LANE}")
        A(f"s_lshl_b32 s{T}, s{S_WG}, 8")
        A(f"s_add_u32 s{T}, s{T}, {WS_TS}")
        A(f"buffer_store_dword v200, v5, s[{SRD_WS}:{SRD_WS+3}], s{T} offen")
        A(f"{l}:")
    A("s_endpgm")
    A("L_hissue:")
    self.wjob_params()
    A(f"v_mul_lo_u32 v48, v40, s{S_HSTR}")
    A(f"v_add_u32 v48, v48, v41")
    A(f"s_lshl_b32 s{T+6}, s{S_HG}, 6")
    A(f"s_mul_i32 s{T+6}, s{T+6}, s{S_HSTR}")
    A(f"s_lshl_b32 s{T+7}, s{S_HP}, 7")
    A(f"s_add_u32 s{T+6}, s{T+6}, s{T+7}")
    A(f"s_lshl_b32 s{T+7}, s{S_HSTR}, 3")
    for i in range(8):
        A(f"s_add_u32 m0, s{S_HL}, {i*1024}")
        A(f"buffer_load_dwordx4 v48, s[{SRD_W}:{SRD_W+3}], s{T+6} offen lds")
        if i<7: A(f"s_add_u32 s{T+6}, s{T+6}, s{T+7}")
    A(f"s_setpc_b64 s[{S_HRET}:{S_HRET+1}]")
    A("L_hpost:")
    self.wjob_params()
    J=64
    A(f"s_cmp_eq_u32 s{S_HK}, 4")
    A(f"s_cselect_b32 s{T}, 10, 9")
    A(f"s_lshl_b32 s{T+1}, s{S_HK}, 7")
    A(f"v_lshlrev_b32 v50, s{T}, v43")
    A(f"v_add_u32 v50, v50, v42")
    A(f"v_add_u32 v50, s{S_HL}, v50")
    A(f"v_add_u32 v51, s{T+1}, v50")
    A(f"v_xor_b32 v52, 64, v50")
    A(f"v_xor_b32 v53, 64, v51")
    def rd(k):
        kap,e=k>>1,k&1; r=J+4*k
        A(f"ds_read_b64_tr_b16 v[{r}:{r+1}], v{50+2*e} offset:{kap*2048}")
        A(f"ds_read_b64_tr_b16 v[{r+2}:{r+3}], v{51+2*e} offset:{kap*2048}")
    for k in range(6): rd(k)
    for k in range(8):
        kap,e=k>>1,k&1; r=J+4*k
        issued=min(8,6+k)
        A(f"s_waitcnt lgkmcnt({2*(issued-1-k)})")
        if e==0: A(f"s_add_u32 s{T+2}, s{S_HD}, {kap*1024}")
        else:
            A(f"s_add_u32 s{T+2}, s{S_HD}, s{S_HE}")
            A(f"s_add_u32 s{T+2}, s{T+2}, {kap*1024}")
        A(f"buffer_store_dwordx4 v[{r}:{r+3}], v54, s[{SRD_WS}:{SRD_WS+3}], s{T+2} offen sc1")
        if 6+k<8: rd(6+k)
    lcs=self.lab('Lcs')
    A(f"s_cmp_lg_u32 s{S_HK}, 4")
    A(f"s_cbranch_scc1 {lcs}")
    A("v_mov_b32 v55, 0x3f803f80")
    for k in range(8):
        e=k&1
        for d in range(4):
            c="0" if (k<2 and d==0) else f"v{56+e}"
            A(f"v_dot2_f32_bf16 v{56+e}, v{J+4*k+d}, v55, {c}")
    A("s_nop 2")
    A("v_permlane32_swap_b32 v56, v57")
    A("v_add_f32 v56, v56, v57")
    A(f"s_cmp_ge_u32 s{S_HY}, 196")
    A(f"s_cselect_b32 s{T+2}, 1, 0")
    A(f"s_lshl_b32 s{T+3}, s{S_HP}, 2")
    A(f"s_add_u32 s{T+2}, s{T+2}, s{T+3}")
    A(f"s_mul_i32 s{T+2}, s{T+2}, 7")
    A(f"s_add_u32 s{T+2}, s{T+2}, s{S_HG}")
    A(f"s_lshl_b32 s{T+2}, s{T+2}, 7")
    A(f"s_add_u32 s{T+2}, s{T+2}, {WS_CS}")
    A(f"buffer_store_dword v56, v58, s[{SRD_WS}:{SRD_WS+3}], s{T+2} offen sc1")
    A(f"{lcs}:")
    A(f"s_setpc_b64 s[{S_HRET}:{S_HRET+1}]")

def bf16_lo(dst, src): return f"v_lshlrev_b32 v{dst}, 16, v{src}"
def bf16_hi(dst, src): return f"v_and_b32 v{dst}, 0xffff0000, v{src}"

def cmul(A, R, P, Z, T):
    A(f"v_pk_mul_f32 v[{T}:{T+1}], v[{P}:{P+1}], v[{Z}:{Z+1}] op_sel_hi:[0,1]")
    A(f"v_pk_fma_f32 v[{R}:{R+1}], v[{P}:{P+1}], v[{Z}:{Z+1}], v[{T}:{T+1}] op_sel:[1,1,0] op_sel_hi:[1,0,1] neg_lo:[1,0,0]")

def kreg(e,name):
    names=['C','Z1','Z2','Z4','Z8','Z256','P','Q','R','T','X0','X1']
    return [128,152][e]+2*names.index(name)
ROWS=[0,1,2,3,4,5,6,7,256,258,260,262,512,516,768,772,1024,1280,1536,1792,2048]

@add_method
def kgen_setup(self):
    A=self.A
    A("s_waitcnt lgkmcnt(0)")
    A(f"s_lshl_b32 s{S_T0}, s{S_CH}, 4")
    A(f"s_lshr_b32 s{S_DT}, s{S_DT}, s{S_T0}")
    A(f"s_lshl_b32 s{S_DT}, s{S_DT}, 16")
    A(f"s_lshr_b32 s{S_DSKV}, s{S_DSKV}, s{S_T0}")
    A(f"s_lshl_b32 s{S_DSKV}, s{S_DSKV}, 16")
    DT=48
    A(f"v_mov_b32 v{DT}, s{S_DT}")
    A(f"v_mul_f32 v{DT}, {fl(LOG2E)}, v{DT}")
    A(f"v_exp_f32 v{DT}, v{DT}")
    A(f"v_cvt_pk_bf16_f32 v{DT}, v{DT}, v{DT}")
    A(f"v_lshlrev_b32 v{DT}, 16, v{DT}")
    A(f"v_and_b32 v50, 0x7fff7fff, v{V_PA+2}")
    A(f"v_and_b32 v51, 0x7fff7fff, v{V_PA+3}")
    A(f"v_and_b32 v52, 0x7fff7fff, v{V_PA+4}")
    A(f"v_and_b32 v53, 0x7fff7fff, v{V_PA+5}")
    A("v_pk_max_u16 v50, v50, v51")
    A("v_pk_max_u16 v52, v52, v53")
    A("v_pk_max_u16 v50, v50, v52")
    A("v_lshrrev_b32 v51, 16, v50")
    A("v_and_b32 v50, 0xffff, v50")
    A("v_max_u32 v50, v50, v51")
    for mode in ["row_shr:1 row_mask:0xf bank_mask:0xf bound_ctrl:0","row_shr:2 row_mask:0xf bank_mask:0xf bound_ctrl:0",
                 "row_shr:4 row_mask:0xf bank_mask:0xf bound_ctrl:0","row_shr:8 row_mask:0xf bank_mask:0xf bound_ctrl:0",
                 "row_bcast:15 row_mask:0xa bank_mask:0xf","row_bcast:31 row_mask:0xc bank_mask:0xf"]:
        A(f"v_max_u32_dpp v50, v50, v50 {mode}")
    A(f"v_readlane_b32 s{S_T0}, v50, 63")
    A(f"s_lshr_b32 s{S_T0}, s{S_T0}, 7")
    A(f"s_max_u32 s{S_T0}, s{S_T0}, 1")
    A(f"s_min_u32 s{S_T0}, s{S_T0}, 253")
    A(f"s_sub_u32 s{S_T0+1}, 254, s{S_T0}")
    A(f"s_lshl_b32 s{S_T0+1}, s{S_T0+1}, 23")
    A(f"s_lshl_b32 s{S_T0}, s{S_T0}, 23")
    A(f"v_add_f32 v49, v{DT}, v{DT}")
    A(f"v_mul_f32 v49, s{S_T0}, v49")
    A(f"v_readfirstlane_b32 s{S_YS}, v49")
    AR=[50,51]; TH=[52,53]
    reg=kreg
    for e in range(2):
        un = bf16_lo if e==0 else bf16_hi
        A(un(AR[e], V_PA)); A(un(TH[e], V_PA+1))
        A(un(reg(e,'C'), V_PA+2)); A(un(reg(e,'C')+1, V_PA+3))
    for e in range(2):
        A(f"v_mul_f32 v{AR[e]}, {fl(LOG2E)}, v{AR[e]}")
    for e in range(2): A(f"v_exp_f32 v{AR[e]}, v{AR[e]}")
    for e in range(2):
        A(f"v_cvt_pk_bf16_f32 v{AR[e]}, v{AR[e]}, v{AR[e]}")
    for e in range(2):
        A(f"v_lshlrev_b32 v{AR[e]}, 16, v{AR[e]}")
    for e in range(2):
        A(f"v_mul_f32 v{AR[e]}, v{AR[e]}, v{DT}")
        A(f"v_mul_f32 v{TH[e]}, v{TH[e]}, v{DT}")
    for e in range(2):
        A(f"v_mul_f32 v{AR[e]}, {fl(-LOG2E)}, v{AR[e]}")
        A(f"v_mul_f32 v{TH[e]}, {fl(INV2PI)}, v{TH[e]}")
        c=reg(e,'C')
        A(f"v_mul_f32 v{c}, s{S_T0+1}, v{c}")
        A(f"v_mul_f32 v{c+1}, s{S_T0+1}, v{c+1}")
    for name,p in (('Z1',1.0),('Z8',8.0),('Z256',256.0)):
        for e in range(2):
            z=reg(e,name); x0=reg(e,'X0'); x1=reg(e,'X1')
            if p==1.0:
                A(f"v_exp_f32 v{x0}, v{AR[e]}")
                A(f"v_fract_f32 v{x0+1}, v{TH[e]}")
            else:
                A(f"v_mul_f32 v{x0}, {fl(p)}, v{AR[e]}")
                A(f"v_mul_f32 v{x0+1}, {fl(p)}, v{TH[e]}")
                A(f"v_exp_f32 v{x0}, v{x0}")
                A(f"v_fract_f32 v{x0+1}, v{x0+1}")
            A(f"v_cos_f32 v{x1}, v{x0+1}")
            A(f"v_sin_f32 v{x1+1}, v{x0+1}")
        for e in range(2):
            z=reg(e,name); x0=reg(e,'X0'); x1=reg(e,'X1')
            A(f"v_pk_mul_f32 v[{z}:{z+1}], v[{x1}:{x1+1}], v[{x0}:{x0+1}] op_sel_hi:[1,0]")
    if self.xmode=='gather': A(self.gl[self.gi]); self.gi+=1
    for e in range(2): cmul(A, reg(e,'Z2'), reg(e,'Z1'), reg(e,'Z1'), reg(e,'T'))
    for e in range(2): cmul(A, reg(e,'Z4'), reg(e,'Z2'), reg(e,'Z2'), reg(e,'T'))

@add_method
def kgen_gen(self):
    A=self.A
    reg=kreg
    VA=104
    A(f"s_mul_i32 s{S_T0+2}, s{S_W}, {KG_WAVE}")
    A(f"v_lshl_add_u32 v{VA}, v{V_LANE}, 3, s{S_T0+2}")
    OUT=[106,108,110,112]; oi=[0]
    def emit(idx, name, neg):
        if self.xmode=='xt' and idx==36: self.xflag_publish()
        if self.xmode=='gather' and idx in self.gidx: A(self.gl[self.gi]); self.gi+=1
        o=OUT[oi[0]%4]; oi[0]+=1
        for e in range(2):
            r=reg(e,name)
            A(f"v_cvt_pk_f16_f32 v{o+e}, v{r}, {'-' if neg else ''}v{r+1}")
        A(f"ds_write_b64 v{VA}, v[{o}:{o+1}] offset:{idx*KG_PITCH}")
    def step(dst, src, z):
        for e in range(2):
            A(f"v_pk_mul_f32 v[{reg(e,'T')}:{reg(e,'T')+1}], v[{reg(e,src)}:{reg(e,src)+1}], v[{reg(e,z)}:{reg(e,z)+1}] op_sel_hi:[0,1]")
        for e in range(2):
            A(f"v_pk_fma_f32 v[{reg(e,dst)}:{reg(e,dst)+1}], v[{reg(e,src)}:{reg(e,src)+1}], v[{reg(e,z)}:{reg(e,z)+1}], v[{reg(e,'T')}:{reg(e,'T')+1}] op_sel:[1,1,0] op_sel_hi:[1,0,1] neg_lo:[1,0,0]")
    emit(0,'C',True)
    step('P','C','Z1'); emit(1,'P',True)
    for r in range(2,8): step('P','P','Z1'); emit(r,'P',True)
    step('Q','C','Z256'); emit(8,'Q',True)
    step('R','Q','Z2'); emit(9,'R',True)
    step('R','R','Z2'); emit(10,'R',True)
    step('R','R','Z2'); emit(11,'R',True)
    step('Q','Q','Z256'); emit(12,'Q',True)
    step('R','Q','Z4'); emit(13,'R',True)
    step('Q','Q','Z256'); emit(14,'Q',True)
    step('R','Q','Z4'); emit(15,'R',True)
    for r in range(16,21): step('Q','Q','Z256'); emit(r,'Q',True)
    o=OUT[oi[0]%4]; oi[0]+=1
    A(f"v_mov_b32 v{o}, 0x3c00\nv_mov_b32 v{o+1}, 0x3c00")
    A(f"ds_write_b64 v{VA}, v[{o}:{o+1}] offset:{21*KG_PITCH}")
    emit(22,'Z8',False)
    step('P','Z8','Z8'); emit(23,'P',False)
    for b in range(3,32): step('P','P','Z8'); emit(21+b,'P',False)
    if self.xmode=='gather':
        while self.gi<8: A(self.gl[self.gi]); self.gi+=1
    self.stamp('gen done')
    A(f"s_mul_i32 s{S_T0+2}, s{S_W}, {KG_WAVE}")
    VAa=104; VAb=105
    A(f"v_and_b32 v48, 31, v{V_LANE}")
    A(f"v_min_u32 v49, 20, v48")
    A(f"v_lshrrev_b32 v50, 5, v{V_LANE}")
    A(f"v_lshlrev_b32 v50, 4, v50")
    A(f"v_add_u32 v50, s{S_T0+2}, v50")
    A(f"s_movk_i32 s{S_T0+3}, {KG_PITCH}")
    A(f"v_mad_u32_u24 v{VAa}, v49, s{S_T0+3}, v50")
    A(f"v_mad_u32_u24 v{VAb}, v48, s{S_T0+3}, v50")
    ACC=112
    FR=[64,72,80,88]
    def ld(ks):
        f=FR[ks%4]
        A(f"ds_read_b128 v[{f}:{f+3}], v{VAa} offset:{ks*32}")
        A(f"ds_read_b128 v[{f+4}:{f+7}], v{VAb} offset:{21*KG_PITCH+ks*32}")
    for ks in range(3): ld(ks)
    for ks in range(16):
        if ks+3<16: ld(ks+3)
        nxt=min(15,ks+3)-ks
        A(f"s_waitcnt lgkmcnt({2*nxt})")
        f=FR[ks%4]
        c = "0" if ks==0 else f"v[{ACC}:{ACC+15}]"
        A(f"v_mfma_f32_32x32x16_f16 v[{ACC}:{ACC+15}], v[{f}:{f+3}], v[{f+4}:{f+7}], {c}")
    l1=self.lab(); l2=self.lab()
    A(f"v_lshl_add_u32 v48, v{V_LANE}, 4, s{S_T0+2}")
    A(f"s_cmp_eq_u32 s{S_NH}, 0")
    A(f"s_cbranch_scc1 {l1}")
    for q in range(3): A(f"ds_write_b128 v48, v[{ACC+4*q}:{ACC+4*q+3}] offset:{q*1024}")
    A(f"{l1}:")
    A("s_nop 1")
    A("s_waitcnt lgkmcnt(0)")
    self.stamp('kmfma')
    A("s_barrier")
    self.stamp('kbar1')
    A(f"s_cmp_eq_u32 s{S_NH}, 0")
    A(f"s_cbranch_scc0 {l2}")
    for q in range(3): A(f"ds_read_b128 v[{64+4*q}:{64+4*q+3}], v48 offset:{KG_WAVE+q*1024}")
    A("s_waitcnt lgkmcnt(0)")
    for r in range(12):
        A(f"v_add_f32 v{64+r}, v{64+r}, v{ACC+r}")
    for r in range(12):
        A(f"v_cvt_f16_f32 v{64+r}, v{64+r}")
    for r in range(4): A(f"ds_write_b16 v176, v{64+r} offset:{2*r}")
    for r in (4,5): A(f"ds_write_b16 v177, v{64+r} offset:{2*(r-4)}")
    for r in (6,7): A(f"ds_write_b16 v178, v{64+r} offset:{2*(r-6)}")
    for r in range(8,12): A(f"ds_write_b16 v179, v{64+r} offset:{1024+64*(r-8)}")
    A(f"v_mov_b32 v50, 0")
    A(f"v_mov_b32 v51, s{S_T0+2}")
    A(f"ds_write_b16 v51, v50 offset:{2*768}")
    A(f"{l2}:")
    self.granule_loads()
    A("s_waitcnt lgkmcnt(0)")
    A("s_barrier")

@add_method
def kexpand(self):
    A=self.A
    D0=64
    def rd(ch,x):
        tb=(2*ch)*KG_WAVE; d=D0+ch*28
        A(f"ds_read_u16 v{d+x}, v{V_OFF+x} offset:{tb}")
    def mk(ch):
        d=D0+ch*28
        for c in range(4):
            for x in range(4):
                A(f"v_lshl_or_b32 v{d+12+4*c+x}, v{d+c+2*x+1}, 16, v{d+c+2*x}")
    def wr(ch):
        d=D0+ch*28
        for c in range(4):
            r=d+12+4*c
            A(f"ds_write_b128 v49, v[{r}:{r+3}] offset:{ch*KX_CH+c*KX_COPY}")
    for x in range(11): rd(0,x)
    for x in range(4): rd(1,x)
    A(f"v_lshlrev_b32 v49, 4, v{V_T}")
    A(f"v_add_u32 v49, {LDS_KX}, v49")
    A("s_waitcnt lgkmcnt(4)")
    mk(0)
    for x in range(4,11): rd(1,x)
    wr(0)
    A("s_waitcnt lgkmcnt(4)")
    mk(1)
    wr(1)

S_GB=76
S_GB2=82
S_KSTR=68
@add_method
def stage_w(self, kind):
    A=self.A
    RING=24576
    if kind=='w1':
        stride=3584
        A(f"s_mov_b32 s{SRD_W}, s{S_WGT}\ns_mov_b32 s{SRD_W+1}, s{S_WGT+1}\ns_mov_b32 s{SRD_W+2}, {D_*F_*2}\ns_mov_b32 s{SRD_W+3}, 0x20000")
        A(f"s_mov_b32 s{SRD_W2}, s{S_WUP}\ns_mov_b32 s{SRD_W2+1}, s{S_WUP+1}\ns_mov_b32 s{SRD_W2+2}, {D_*F_*2}\ns_mov_b32 s{SRD_W2+3}, 0x20000")
        A(f"s_lshl_b32 s{S_T0}, s{S_J}, 8")
        A(f"s_lshl_b32 s{S_T0+1}, s{S_W}, 6")
        A(f"s_add_u32 s{S_T0}, s{S_T0}, s{S_T0+1}")
        for g in range(4):
            A(f"s_add_u32 s{S_T0+1}, s{S_W}, {g}")
            A(f"s_and_b32 s{S_T0+1}, s{S_T0+1}, 3")
            A(f"s_mul_i32 s{S_T0+1}, s{S_T0+1}, {7*16*stride}")
            A(f"s_add_u32 s{S_GB+g}, s{S_T0+1}, s{S_T0}")
        tileoff2=0
    else:
        stride=896
        A(f"s_mov_b32 s{SRD_W}, s{S_WD}\ns_mov_b32 s{SRD_W+1}, s{S_WD+1}\ns_mov_b32 s{SRD_W+2}, {D_*F_*2}\ns_mov_b32 s{SRD_W+3}, 0x20000")
        A(f"s_mov_b32 s{SRD_W2}, s{S_WD}\ns_mov_b32 s{SRD_W2+1}, s{S_WD+1}\ns_mov_b32 s{SRD_W2+2}, {D_*F_*2}\ns_mov_b32 s{SRD_W2+3}, 0x20000")
        A(f"s_cmp_ge_u32 s{S_J}, 7")
        A(f"s_cselect_b32 s{S_T0}, 7, 0")
        A(f"s_sub_u32 s{S_T0}, s{S_J}, s{S_T0}")
        A(f"s_lshl_b32 s{S_T0}, s{S_T0}, 7")
        A(f"s_mul_i32 s{S_T0+1}, s{S_W}, {448*stride}")
        A(f"s_add_u32 s{S_T0}, s{S_T0}, s{S_T0+1}")
        for g in range(4):
            A(f"s_add_u32 s{S_GB+g}, s{S_T0}, {g*7*16*stride}")
        tileoff2=64
    kstr=16*stride
    A(f"v_lshrrev_b32 v48, 2, v{V_LANE}")
    A(f"v_mul_u32_u24 v48, {stride}, v48")
    A(f"v_and_b32 v49, 3, v{V_LANE}")
    A(f"v_lshl_add_u32 v48, v49, 4, v48")
    if kind=='w1':
        A(f"v_mov_b32 v52, v48")
    else:
        A(f"s_lshl_b32 s{S_T0+1}, s{S_NH}, 6")
        A(f"s_xor_b32 s{S_T0+3}, s{S_T0+1}, 64")
        A(f"v_add_u32 v52, s{S_T0+3}, v48")
        A(f"v_add_u32 v48, s{S_T0+1}, v48")
    A(f"s_mul_i32 s{S_T0+2}, s{S_W}, {RING}")
    A(f"v_lshrrev_b32 v50, 5, v{V_LANE}")
    A(f"v_lshlrev_b32 v50, {9 if kind=='w1' else 8}, v50")
    A(f"v_bfe_u32 v51, v{V_LANE}, 2, 2")
    A(f"v_lshl_add_u32 v50, v51, 6, v50")
    A(f"v_bfe_u32 v51, v{V_LANE}, 4, 1")
    A(f"v_lshl_add_u32 v50, v51, 5, v50")
    A(f"v_and_b32 v51, 3, v{V_LANE}")
    A(f"v_lshl_add_u32 v50, v51, 3, v50")
    A(f"v_add_u32 v50, s{S_T0+2}, v50")
    second = 256 if kind=='w1' else 512
    def issue(c):
        slot=c%3
        for i in range(4):
            s=4*c+i; g=s//7; r=s%7
            A(f"s_add_u32 s{S_T0+3}, s{S_GB+g}, {r*kstr}")
            A(f"s_add_u32 m0, s{S_T0+2}, {slot*8192+i*2048}")
            A(f"buffer_load_dwordx4 v48, s[{SRD_W}:{SRD_W+3}], s{S_T0+3} offen lds")
            A(f"s_add_u32 m0, s{S_T0+2}, {slot*8192+i*2048+1024}")
            A(f"buffer_load_dwordx4 v52, s[{SRD_W2}:{SRD_W2+3}], s{S_T0+3} offen lds")
    for c in range(3): issue(c)
    for c in range(7):
        A(f"s_waitcnt vmcnt({8*min(2,6-c)})")
        slot=c%3
        for i in range(4):
            s=4*c+i
            for tile in range(2):
                a=8*s+4*tile; off=slot*8192+i*2048+tile*1024
                A(f"ds_read_b64_tr_b16 a[{a}:{a+1}], v50 offset:{off}")
                A(f"ds_read_b64_tr_b16 a[{a+2}:{a+3}], v50 offset:{off+second}")
            if i==1: A("s_waitcnt lgkmcnt(4)")
        if c+3<7:
            A("s_waitcnt lgkmcnt(0)")
            issue(c+3)
    A("s_waitcnt lgkmcnt(0)")

@add_method
def flag_load(self):
    A=self.A
    A(f"s_lshl_b32 s{S_T0}, s{S_J}, 2")
    A(f"s_add_u32 s{S_T0}, s{S_T0}, s{S_W}")
    A(f"s_lshr_b32 s{S_T0}, s{S_T0}, 1")
    A(f"s_mul_i32 s{S_T0}, s{S_T0}, 7")
    A(f"v_min_u32 v44, 13, v{V_LANE}")
    A(f"v_add_u32 v46, 189, v44")
    A(f"v_cmp_lt_u32 vcc, 6, v44")
    A(f"v_cndmask_b32 v44, v44, v46, vcc")
    A(f"v_add_u32 v44, s{S_T0}, v44")
    A(f"v_lshlrev_b32 v44, 6, v44")
    A(f"s_mov_b32 s{S_T0+11}, {WS_JF}")
    A(f"buffer_load_dword v46, v44, s[{SRD_WS}:{SRD_WS+3}], s{S_T0+11} offen sc1")

@add_method
def wdflag_load(self, S):
    A=self.A
    A(f"s_cmp_ge_u32 s{S_J}, 7")
    A(f"s_cselect_b32 s{S_T0+8}, 7, 0")
    A(f"s_sub_u32 s{S_T0+8}, s{S_J}, s{S_T0+8}")
    A(f"s_mul_i32 s{S_T0+8}, s{S_T0+8}, 28")
    A(f"s_mul_i32 s{S_T0+9}, s{S_W}, 7")
    A(f"s_add_u32 s{S_T0+8}, s{S_T0+8}, s{S_T0+9}")
    A(f"s_add_u32 s{S_T0+8}, s{S_T0+8}, 392")
    A(f"v_min_u32 v44, 6, v{V_LANE}")
    A(f"v_add_u32 v44, s{S_T0+8}, v44")
    A(f"v_lshlrev_b32 v44, 6, v44")
    A(f"s_mov_b32 s{S_T0+11}, {WS_JF}")
    S.vmem(f"buffer_load_dword v46, v44, s[{SRD_WS}:{SRD_WS+3}], s{S_T0+11} offen sc1","WDF")

@add_method
def wdflag_check(self, S):
    A=self.A
    lp=self.lab('Lpoll'); le=self.lab()
    S.need_vm(["WDF"])
    A(f"s_mov_b32 s{S_T0+8}, 0")
    A(f"{lp}:")
    A(f"v_cmp_eq_u32 vcc, s{S_TAG}, v46")
    A(f"s_and_b32 s{S_T0+9}, vcc_lo, 0x7f")
    A(f"s_cmp_eq_u32 s{S_T0+9}, 0x7f")
    A(f"s_cbranch_scc1 {le}")
    A(f"buffer_load_dword v46, v44, s[{SRD_WS}:{SRD_WS+3}], s{S_T0+11} offen sc1")
    A("s_waitcnt vmcnt(0)")
    A(f"s_add_u32 s{S_T0+8}, s{S_T0+8}, 1")
    A(f"s_cmp_lt_u32 s{S_T0+8}, 0x8000")
    A(f"s_cbranch_scc1 {lp}")
    A(f"{le}:")

@add_method
def granule_loads(self):
    A=self.A; SG=144
    if self.xmode=='gather':
        A(f"v_lshlrev_b32 v43, 6, v{V_T}")
        A(f"s_mov_b32 s{S_T0+13}, {WS_STATS}")
        for k in range(4):
            A(f"buffer_load_dwordx4 v[{SG+4*k}:{SG+4*k+3}], v43, s[{SRD_WS}:{SRD_WS+3}], s{S_T0+13} offen offset:{16*k} sc1")
        return
    A(f"s_lshr_b32 s{S_T0+12}, s{S_D0}, 6")
    A(f"s_and_b32 s{S_T0+12}, s{S_T0+12}, 3")
    A(f"s_lshl_b32 s{S_T0+12}, s{S_T0+12}, 6")
    A(f"s_add_u32 s{S_T0+12}, s{S_T0+12}, {WS_XF}")
    A(f"v_lshlrev_b32 v37, 8, v{V_T}")
    A(f"buffer_load_dword v36, v37, s[{SRD_WS}:{SRD_WS+3}], s{S_T0+12} offen sc1")
    A(f"v_lshlrev_b32 v43, 6, v{V_T}")
    A(f"s_mov_b32 s{S_T0+13}, {WS_STATS}")
    for k in range(4):
        A(f"buffer_load_dwordx4 v[{SG+4*k}:{SG+4*k+3}], v43, s[{SRD_WS}:{SRD_WS+3}], s{S_T0+13} offen offset:{16*k} sc1")

@add_method
def granule_wait(self):
    A=self.A; SG=144
    lp=self.lab('Lpoll'); le=self.lab()
    A(f"s_mov_b32 s{S_T0+1}, 0")
    A("s_waitcnt vmcnt(0)")
    A(f"{lp}:")
    if self.xmode=='gather': A("v_mov_b32 v49, 0")
    else: A(f"v_xor_b32 v49, s{S_TAG}, v36")
    for k in range(8):
        A(f"v_xor_b32 v50, s{S_TAG}, v{SG+2*k+1}")
        A(f"v_or_b32 v49, v49, v50")
    A("v_cmp_ne_u32 vcc, 0, v49")
    A(f"s_add_u32 s{S_T0+1}, s{S_T0+1}, 1")
    A(f"s_cbranch_vccz {le}")
    if self.xmode=='xt': A(f"buffer_load_dword v36, v37, s[{SRD_WS}:{SRD_WS+3}], s{S_T0+12} offen sc1")
    for k in range(4):
        A(f"buffer_load_dwordx4 v[{SG+4*k}:{SG+4*k+3}], v43, s[{SRD_WS}:{SRD_WS+3}], s{S_T0+13} offen offset:{16*k} sc1")
    A("s_waitcnt vmcnt(0)")
    A(f"s_cmp_lt_u32 s{S_T0+1}, 0x8000")
    A(f"s_cbranch_scc1 {lp}")
    A(f"{le}:")

@add_method
def flag_wait(self, mask, landed=False, sleep=0):
    A=self.A
    lp=self.lab('Lpoll'); le=self.lab(); lf=self.lab()
    A(f"s_mov_b32 s{S_T0+1}, 0")
    if landed: A(f"s_branch {lf}")
    A(f"{lp}:")
    A("s_waitcnt vmcnt(0)")
    A(f"{lf}:")
    A(f"v_cmp_eq_u32 vcc, s{S_TAG}, v46")
    A(f"s_and_b32 s{S_T0+2}, vcc_lo, {hex(mask)}")
    A(f"s_cmp_eq_u32 s{S_T0+2}, {hex(mask)}")
    A(f"s_cbranch_scc1 {le}")
    if sleep: A(f"s_sleep {sleep}")
    A(f"buffer_load_dword v46, v44, s[{SRD_WS}:{SRD_WS+3}], s{S_T0+11} offen sc1")
    A(f"s_add_u32 s{S_T0+1}, s{S_T0+1}, 1")
    A(f"s_cmp_lt_u32 s{S_T0+1}, 0x8000")
    A(f"s_cbranch_scc1 {lp}")
    A(f"{le}:")

@add_method
def xt_loads(self):
    A=self.A; XA=8
    A(f"s_movk_i32 s{S_T0+2}, 7168")
    A(f"v_mul_lo_u32 v48, v{V_T}, s{S_T0+2}")
    A(f"s_lshl_b32 s{S_T0+2}, s{S_D0}, 4")
    A(f"s_add_u32 s{S_T0+2}, s{S_T0+2}, {WS_XT}")
    A(f"buffer_load_dwordx4 v[{XA}:{XA+3}], v48, s[{SRD_WS}:{SRD_WS+3}], s{S_T0+2} offen sc1")
    A(f"buffer_load_dwordx4 v[{XA+4}:{XA+7}], v48, s[{SRD_WS}:{SRD_WS+3}], s{S_T0+2} offen offset:16 sc1")

@add_method
def w1_setup(self):
    A=self.A
    A(f"s_lshl_b32 s{S_T0}, s{S_J}, 2")
    A(f"s_add_u32 s{S_T0}, s{S_T0}, s{S_W}")
    A(f"s_mul_i32 s{S_T0}, s{S_T0}, 56")
    for g in range(4):
        A(f"s_add_u32 s{S_T0+1}, s{S_W}, {g}")
        A(f"s_and_b32 s{S_T0+1}, s{S_T0+1}, 3")
        A(f"s_mul_i32 s{S_T0+1}, s{S_T0+1}, 7")
        A(f"s_add_u32 s{S_T0+1}, s{S_T0+1}, s{S_T0}")
        A(f"s_lshl_b32 s{S_T0+1}, s{S_T0+1}, 10")
        A(f"s_add_u32 s{S_GB+g}, s{S_T0+1}, {WS_WF1}")
        A(f"s_add_u32 s{S_GB2+g}, s{S_GB+g}, {28*1024}")
    A(f"v_lshlrev_b32 v45, 4, v{V_LANE}")
    A(f"v_add_u32 v3, 4096, v45")

@add_method
def w1_items(self, s0, s1):
    out=[]
    for s in range(s0,s1):
        g=s//7; i=s%7
        for t in range(2):
            sb=(S_GB if t==0 else S_GB2)+g
            va,off=("v45",i*1024) if i<4 else ("v3",(i-4)*1024)
            out.append([f"buffer_load_dwordx4 a[{8*s+4*t}:{8*s+4*t+3}], {va}, s[{SRD_WS}:{SRD_WS+3}], s{sb} offen offset:{off} sc1"])
    return out
@add_method
def w1_loads(self, s0, s1):
    for it in self.w1_items(s0,s1):
        for x in it: self.A(x)

@add_method
def x_prepare(self):
    A=self.A
    A("s_waitcnt vmcnt(4)")
    for ch in range(2):
        for j in range(8): A((bf16_lo if ch==0 else bf16_hi)(96+8*ch+j, V_XG+j))
    A(f"s_mov_b32 s{S_T0+2}, 0x05040100")
    A(f"s_mov_b32 s{S_T0+3}, 0x07060302")
    for ch in range(2):
        for j in range(0,8,2):
            A(f"v_perm_b32 v{176+ch*4+j//2}, v{V_XG+j+1}, v{V_XG+j}, s{S_T0+2+ch}")
    A(f"v_lshlrev_b32 v48, 4, v{V_T}")
    A(f"v_add_u32 v42, {LDS_U+512}, v48")
    A(f"v_add_u32 v50, {LDS_XT}, v48")
    A(f"ds_write_b128 v50, v[176:179]")
    A(f"ds_write_b128 v50, v[180:183] offset:{XT_CH}")
    self.w1_setup()

@add_method
def stats_consume(self):
    A=self.A
    SG=144
    for j in range(8):
        A(f"v_lshlrev_b32 v{80+j}, 16, v{SG+2*j}")
        A(f"v_and_b32 v{88+j}, 0xffff0000, v{SG+2*j}")
    for j in range(8): A(f"v_rcp_f32 v{80+j}, v{80+j}")
    for ch in range(2):
        X=96+ch*8
        for j in range(0,8,2):
            A(f"v_pk_add_f32 v[{X+j}:{X+j+1}], v[{X+j}:{X+j+1}], v[{88+j}:{88+j+1}] neg_lo:[0,1] neg_hi:[0,1]")
        if self.mimic>=2:
            for j in range(0,8,2):
                A(f"v_cvt_pk_bf16_f32 v{128+j//2}, v{X+j}, v{X+j+1}")
            for j in range(0,8,2):
                A(bf16_lo(X+j,128+j//2)); A(bf16_hi(X+j+1,128+j//2))
        for j in range(0,8,2):
            A(f"v_pk_mul_f32 v[{X+j}:{X+j+1}], v[{X+j}:{X+j+1}], v[{80+j}:{80+j+1}]")
        if self.mimic>=1:
            for j in range(0,8,2):
                A(f"v_cvt_pk_bf16_f32 v{128+j//2}, v{X+j}, v{X+j+1}")
            for j in range(0,8,2):
                A(bf16_lo(X+j,128+j//2)); A(bf16_hi(X+j+1,128+j//2))
        U=132+ch*4
        for j in range(0,8,2):
            A(f"v_cvt_pk_f16_f32 v{U+j//2}, v{X+j}, v{X+j+1}")
        A(f"ds_write_b128 v42, v[{U}:{U+3}] offset:{ch*U_CH}")
    if self.w1pf or self.w1start: self.flag_load()
    A("s_waitcnt lgkmcnt(0)")
    A("s_barrier")

@add_method
def w1_rest(self):
    self.w1_loads(W1_IN_CONV,28)

@add_method
def wd_loads(self, s0, s1, S=None):
    out=[]
    for s in range(s0,s1):
        for ca in range(2):
            out.append(f"s_add_u32 s{S_T0+14}, s{S_T0+12+ca}, {s*1024}")
            out.append(('vm',f"buffer_load_dwordx4 a[{8*s+4*ca}:{8*s+4*ca+3}], v47, s[{SRD_WS}:{SRD_WS+3}], s{S_T0+14} offen sc1",f"WD{s}"))
    return out

@add_method
def wd_setup(self):
    A=self.A
    A(f"s_cmp_ge_u32 s{S_J}, 7")
    A(f"s_cselect_b32 s{S_T0+14}, 7, 0")
    A(f"s_sub_u32 s{S_T0+14}, s{S_J}, s{S_T0+14}")
    A(f"s_lshl_b32 s{S_T0+14}, s{S_T0+14}, 1")
    for ca in range(2):
        A(f"s_xor_b32 s{S_T0+12+ca}, s{S_NH}, {ca}")
        A(f"s_add_u32 s{S_T0+12+ca}, s{S_T0+12+ca}, s{S_T0+14}")
        A(f"s_mul_i32 s{S_T0+12+ca}, s{S_T0+12+ca}, 112")
        A(f"s_mul_i32 s{S_T0+15}, s{S_W}, 28")
        A(f"s_add_u32 s{S_T0+12+ca}, s{S_T0+12+ca}, s{S_T0+15}")
        A(f"s_lshl_b32 s{S_T0+12+ca}, s{S_T0+12+ca}, 10")
        A(f"s_add_u32 s{S_T0+12+ca}, s{S_T0+12+ca}, {WS_WFD}")
    A(f"v_lshlrev_b32 v47, 4, v{V_LANE}")

W1_PRE=16
W1_IN_CONV=0
C_ACC=64
C_F=[96,160]
C_G=[128,192]
C_VF=34; C_VG=35
C_EU=224; C_EX=232
@add_method
def conv_setup(self):
    A=self.A
    A(f"v_and_b32 v50, 15, v{V_LANE}")
    A(f"v_lshrrev_b32 v51, 4, v{V_LANE}")
    A(f"v_sub_u32 v52, 3, v50")
    A(f"v_and_b32 v52, 3, v52")
    A(f"v_mul_u32_u24 v52, {KX_COPY}, v52")
    A(f"v_lshrrev_b32 v53, 2, v50")
    A(f"v_lshlrev_b32 v53, 3, v53")
    A(f"v_sub_u32 v52, v52, v53")
    A(f"v_lshl_add_u32 v52, v51, 4, v52")
    A(f"s_mul_i32 s{S_T0}, s{S_CH}, {KX_CH}")
    A(f"s_lshl_b32 s{S_T0+1}, s{S_NH}, 8")
    A(f"s_sub_u32 s{S_T0}, s{S_T0}, s{S_T0+1}")
    A(f"s_add_u32 s{S_T0}, s{S_T0}, {LDS_KX+2*2028-64*63}")
    A(f"v_add_u32 v{C_VF}, s{S_T0}, v52")
    A(f"v_lshlrev_b32 v52, 5, v50")
    A(f"v_lshl_add_u32 v52, v51, 4, v52")
    A(f"s_mul_i32 s{S_T0}, s{S_CH}, {U_CH}")
    A(f"s_sub_u32 s{S_T0}, s{S_T0}, s{S_T0+1}")
    A(f"s_add_u32 s{S_T0}, s{S_T0}, {LDS_U+480-192}")
    A(f"v_add_u32 v{C_VG}, s{S_T0}, v52")
    A(f"v_lshlrev_b32 v52, 5, v50")
    A(f"v_lshl_add_u32 v52, v51, 3, v52")
    A(f"s_lshl_b32 s{S_T0}, s{S_NH}, 11")
    A(f"s_mul_i32 s{S_T0+1}, s{S_CH}, {U_CH}")
    A(f"s_add_u32 s{S_T0+1}, s{S_T0+1}, s{S_T0}")
    A(f"s_add_u32 s{S_T0+1}, s{S_T0+1}, {LDS_U+512}")
    A(f"v_add_u32 v36, s{S_T0+1}, v52")
    A(f"s_mul_i32 s{S_T0+1}, s{S_CH}, {XT_CH}")
    A(f"s_add_u32 s{S_T0+1}, s{S_T0+1}, s{S_T0}")
    A(f"s_add_u32 s{S_T0+1}, s{S_T0+1}, {LDS_XT}")
    A(f"v_add_u32 v37, s{S_T0+1}, v52")
    A(f"v_and_b32 v38, 1, v51")
    A(f"v_lshlrev_b32 v38, 3, v38")
    A(f"v_lshrrev_b32 v53, 1, v50")
    A(f"v_add_u32 v38, v38, v53")
    A(f"s_movk_i32 s{S_T0+8}, {448*64}")
    A(f"v_mul_lo_u32 v38, v38, s{S_T0+8}")
    A(f"v_and_b32 v53, 1, v50")
    A(f"v_lshl_add_u32 v38, v53, 5, v38")
    A(f"v_lshrrev_b32 v53, 1, v51")
    A(f"v_lshl_add_u32 v38, v53, 4, v38")
    A(f"s_lshl_b32 s{S_T0+8}, s{S_NH}, 5")
    A(f"s_mul_i32 s{S_T0+8}, s{S_T0+8}, {448*64}")
    A(f"s_add_u32 s{S_T0+9}, s{S_D0}, s{S_CH}")
    A(f"s_lshl_b32 s{S_T0+9}, s{S_T0+9}, 6")
    A(f"s_add_u32 s{S_T0+8}, s{S_T0+8}, s{S_T0+9}")
    A(f"s_add_u32 s22, s{S_T0+8}, {WS_HT}")
    A(f"s_add_u32 s23, s22, {16*448*64}")

@add_method
def conv(self):
    A=self.A
    def loads(sp):
        st=sp&1; out=[]
        for k in range(8):
            g=C_G[st]+4*k; f=C_F[st]+4*k
            out.append(f"ds_read_b128 v[{g}:{g+3}], v{C_VG} offset:{512*k+64*(3-sp)}")
            o=64*(63-8*k-sp)
            out.append(f"ds_read_b64 v[{f}:{f+1}], v{C_VF} offset:{o}")
            out.append(f"ds_read_b64 v[{f+2}:{f+3}], v{C_VF} offset:{o+8}")
        return out
    def mfmas(sp):
        st=sp&1; out=[]
        for t in range(8):
            for d in range(t+1):
                acc=C_ACC+4*t
                c = "0" if (sp==0 and d==0) else f"v[{acc}:{acc+3}]"
                out.append((t,d,f"v_mfma_f32_16x16x32_f16 v[{acc}:{acc+3}], v[{C_F[st]+4*d}:{C_F[st]+4*d+3}], v[{C_G[st]+4*(t-d)}:{C_G[st]+4*(t-d)+3}], {c}"))
        return out
    l0=loads(0)
    for k in range(5):
        for x in l0[3*k:3*k+3]: A(x)
    issued=5
    nconv=self.w1n if self.w1start else 0
    self.w1_in_conv=nconv
    wl=self.w1_items(0,nconv); wi=[0]; mc=[0]; cur_sp=[0]
    def wfill():
        if not self.w1start or cur_sp[0]<self.w1start: return
        mc[0]+=1
        if mc[0]%self.w1step==1 and wi[0]<len(wl):
            for x in wl[wi[0]]: A(x)
            wi[0]+=1
    nxt=loads(1); ni=0
    cur_t=-1
    for (t,d,txt) in mfmas(0):
        first = (t!=cur_t)
        if first:
            cur_t=t
            if t<=3: A(f"s_waitcnt lgkmcnt({3*(issued-1-t)})")
            elif t==4: A("s_waitcnt lgkmcnt(0)")
        A(txt)
        if first and issued<8:
            for x in l0[3*issued:3*issued+3]: A(x)
            issued+=1
        elif t>=4 and ni<len(nxt):
            A(nxt[ni]); ni+=1
    assert ni==len(nxt)

    epi=[]
    for tt in range(4):
        epi.append(f"ds_read_b64 v[{C_EU+2*tt}:{C_EU+2*tt+1}], v36 offset:{512*tt}")
        epi.append(f"ds_read_b64 v[{C_EX+2*tt}:{C_EX+2*tt+1}], v37 offset:{512*tt}")
    U=224; X=240
    PRE=160
    PRE=96
    UU=112
    pre=[]
    if self.mimic==0:
        pre.append(f"v_mov_b32 v47, s{S_DSKV}")
        for tt in range(4):
            for h in range(2):
                pre.append(f"v_cvt_f32_f16 v{UU+4*tt+2*h}, v{C_EU+2*tt+h}")
                pre.append(f"v_lshrrev_b32 v{UU+4*tt+2*h+1}, 16, v{C_EU+2*tt+h}")
                pre.append(f"v_cvt_f32_f16 v{UU+4*tt+2*h+1}, v{UU+4*tt+2*h+1}")
                pre.append(bf16_lo(PRE+4*tt+2*h, C_EX+2*tt+h)); pre.append(bf16_hi(PRE+4*tt+2*h+1, C_EX+2*tt+h))
        for r in range(16): pre.append(f"v_fma_f32 v{PRE+r}, v{UU+r}, v47, v{PRE+r}")
    for sp in range(1,4):
        if self.w1start and sp==self.w1start:
            self.flag_wait(0x3fff, sleep=self.fsleep)
            self.stamp('w1 flags')
        if self.w1pf and sp==self.w1pf:
            lpf=self.lab()
            A("s_waitcnt vmcnt(0)")
            A(f"v_cmp_eq_u32 vcc, s{S_TAG}, v46")
            A(f"s_and_b32 s{S_T0+2}, vcc_lo, 0x3fff")
            A(f"s_cmp_eq_u32 s{S_T0+2}, 0x3fff")
            A(f"s_cbranch_scc0 {lpf}")
            A(f"s_lshl_b32 s{S_T0+2}, s{S_J}, 2")
            A(f"s_add_u32 s{S_T0+2}, s{S_T0+2}, s{S_W}")
            A(f"s_mul_i32 s{S_T0+2}, s{S_T0+2}, {56*1024}")
            A(f"s_and_b32 s{S_T0+3}, s{S_I}, 3")
            A(f"s_mul_i32 s{S_T0+3}, s{S_T0+3}, {14*1024}")
            A(f"s_add_u32 s{S_T0+2}, s{S_T0+2}, s{S_T0+3}")
            A(f"s_add_u32 s{S_T0+2}, s{S_T0+2}, {WS_WF1}")
            A(f"v_min_u32 v40, 55, v{V_LANE}")
            A(f"v_lshlrev_b32 v40, 7, v40")
            A(f"buffer_load_dword v253, v40, s[{SRD_WS}:{SRD_WS+3}], s{S_T0+2} offen sc1")
            A(f"s_add_u32 s{S_T0+2}, s{S_T0+2}, {7*1024}")
            A(f"buffer_load_dword v252, v40, s[{SRD_WS}:{SRD_WS+3}], s{S_T0+2} offen sc1")
            A(f"{lpf}:")
        A("s_waitcnt lgkmcnt(0)")
        nxt = loads(sp+1) if sp<3 else epi
        cur_sp[0]=sp
        ni=0; pi=0; k=0
        for (t,d,txt) in mfmas(sp):
            A(txt); k+=1
            if ni<len(nxt): A(nxt[ni]); ni+=1
            elif sp==3 and pre:
                if k==12: A("s_waitcnt lgkmcnt(0)")
                if k>=12:
                    tgt=min(len(pre),(len(pre)*(k-11)+23)//24)
                    while pi<tgt: A(pre[pi]); pi+=1
            wfill()
        if sp==3:
            while pi<len(pre): A(pre[pi]); pi+=1
    assert wi[0]==len(wl)
    A(f"s_lshl_b32 s{S_T0}, s{S_W}, 12")
    A(f"v_lshl_add_u32 v55, v{V_LANE}, 4, s{S_T0}")
    if self.mimic==0:
        lA=self.lab(); lB=self.lab()
        A(f"s_cmp_eq_u32 s{S_NH}, 0")
        A(f"s_cbranch_scc0 {lA}")
        A("s_nop 5")
        for tt in range(4): A(f"ds_write_b128 v55, v[{C_ACC+16+4*tt}:{C_ACC+16+4*tt+3}] offset:{1024*tt}")
        A(f"s_branch {lB}")
        A(f"{lA}:")
        A("s_nop 5")
        for tt in range(4): A(f"ds_write_b128 v55, v[{C_ACC+4*tt}:{C_ACC+4*tt+3}] offset:{1024*tt}")
        A(f"{lB}:")
        A("v_xor_b32 v55, 4096, v55")
        A(f"v_mov_b32 v146, s{S_YS}\nv_mov_b32 v147, s{S_YS}")
        A("s_waitcnt lgkmcnt(0)")
        A("s_barrier")
        PT=128
        for tt in range(4): A(f"ds_read_b128 v[{PT+4*tt}:{PT+4*tt+3}], v55 offset:{1024*tt}")
        def fin(Y):
            for tt in range(4):
                A(f"s_waitcnt lgkmcnt({3-tt})")
                for p in (2*tt,2*tt+1):
                    A(f"v_pk_add_f32 v[{PT+2*p}:{PT+2*p+1}], v[{Y+2*p}:{Y+2*p+1}], v[{PT+2*p}:{PT+2*p+1}]")
                for p in (2*tt,2*tt+1):
                    A(f"v_pk_fma_f32 v[{PT+2*p}:{PT+2*p+1}], v[{PT+2*p}:{PT+2*p+1}], v[146:147], v[{PRE+2*p}:{PRE+2*p+1}]")
        lA=self.lab(); lB=self.lab()
        A(f"s_cmp_eq_u32 s{S_NH}, 0")
        A(f"s_cbranch_scc0 {lA}")
        fin(C_ACC)
        A(f"s_branch {lB}")
        A(f"{lA}:")
        fin(C_ACC+16)
        A(f"{lB}:")
        Y=PT
    else:
        l=self.lab()
        A(f"s_cmp_eq_u32 s{S_NH}, 0")
        A(f"s_cbranch_scc1 {l}")
        A("s_nop 7")
        for r in range(16): A(f"v_swap_b32 v{C_ACC+r}, v{C_ACC+16+r}")
        A(f"{l}:")
        A("s_nop 7")
        for tt in range(4): A(f"ds_write_b128 v55, v[{C_ACC+16+4*tt}:{C_ACC+16+4*tt+3}] offset:{1024*tt}")
        A("v_xor_b32 v55, 4096, v55")
        A("s_waitcnt lgkmcnt(0)")
        A("s_barrier")
    if self.mimic==0: pass
    else:
        for tt in range(4): A(f"ds_read_b128 v[{96+4*tt}:{96+4*tt+3}], v55 offset:{1024*tt}")
        U=112; X=128; Y=C_ACC
        for tt in range(4):
            for h in range(2):
                A(f"v_cvt_f32_f16 v{U+4*tt+2*h}, v{C_EU+2*tt+h}")
                A(f"v_cvt_f32_f16_sdwa v{U+4*tt+2*h+1}, v{C_EU+2*tt+h} dst_sel:DWORD dst_unused:UNUSED_PAD src0_sel:WORD_1")
                A(bf16_lo(X+4*tt+2*h, C_EX+2*tt+h)); A(bf16_hi(X+4*tt+2*h+1, C_EX+2*tt+h))
        A(f"v_mov_b32 v144, s{S_DSKV}\nv_mov_b32 v145, s{S_DSKV}\nv_mov_b32 v146, s{S_YS}\nv_mov_b32 v147, s{S_YS}")
        for p in range(8):
            A(f"v_pk_mul_f32 v[{U+2*p}:{U+2*p+1}], v[{U+2*p}:{U+2*p+1}], v[144:145]")
        if self.mimic>=1:
            for p in range(8): A(f"v_cvt_pk_bf16_f32 v{148+p}, v{U+2*p}, v{U+2*p+1}")
            for p in range(8): A(bf16_lo(U+2*p,148+p)); A(bf16_hi(U+2*p+1,148+p))
        A("s_waitcnt lgkmcnt(0)")
        for p in range(8):
            A(f"v_pk_add_f32 v[{Y+2*p}:{Y+2*p+1}], v[{Y+2*p}:{Y+2*p+1}], v[{96+2*p}:{96+2*p+1}]")
        for p in range(8):
            A(f"v_pk_mul_f32 v[{Y+2*p}:{Y+2*p+1}], v[{Y+2*p}:{Y+2*p+1}], v[146:147]")
        if self.mimic>=1:
            for p in range(8): A(f"v_cvt_pk_bf16_f32 v{148+p}, v{Y+2*p}, v{Y+2*p+1}")
            for p in range(8): A(bf16_lo(Y+2*p,148+p)); A(bf16_hi(Y+2*p+1,148+p))
        for p in range(8):
            A(f"v_pk_add_f32 v[{Y+2*p}:{Y+2*p+1}], v[{Y+2*p}:{Y+2*p+1}], v[{U+2*p}:{U+2*p+1}]")
        if self.mimic>=1:
            for p in range(8): A(f"v_cvt_pk_bf16_f32 v{148+p}, v{Y+2*p}, v{Y+2*p+1}")
            for p in range(8): A(bf16_lo(Y+2*p,148+p)); A(bf16_hi(Y+2*p+1,148+p))
        for p in range(8):
            A(f"v_pk_add_f32 v[{Y+2*p}:{Y+2*p+1}], v[{Y+2*p}:{Y+2*p+1}], v[{X+2*p}:{X+2*p+1}]")
    H=148
    for p in range(8): A(f"v_cvt_pk_bf16_f32 v{H+p}, v{Y+2*p}, v{Y+2*p+1}")
    for pr in range(2):
        b=H+4*pr
        A(f"v_permlane16_swap_b32 v{b}, v{b+2}")
        A(f"v_permlane16_swap_b32 v{b+1}, v{b+3}")
    A(f"buffer_store_dwordx4 v[{H}:{H+3}], v38, s[{SRD_WS}:{SRD_WS+3}], s22 offen sc1")
    A(f"buffer_store_dwordx4 v[{H+4}:{H+7}], v38, s[{SRD_WS}:{SRD_WS+3}], s23 offen sc1")

@add_method
def sync_all(self):
    A=self.A
    if not self.w1start: self.flag_load()
    A("s_waitcnt vmcnt(0)")
    A("s_barrier")
    l=self.lab()
    A(f"s_cmp_lg_u32 s{S_W}, 0")
    A(f"s_cbranch_scc1 {l}")
    A(f"s_and_b32 s{S_T0}, s{S_WG}, 7")
    A(f"s_lshl_b32 s{S_T0}, s{S_T0}, 7")
    A(f"s_add_u32 s{S_T0}, s{S_T0}, {WS_CNT2}")
    A(f"v_lshlrev_b32 v48, 10, v{V_LANE}")
    A("v_mov_b32 v49, 1")
    A("s_mov_b64 exec, 0xff")
    A(f"buffer_atomic_add v49, v48, s[{SRD_WS}:{SRD_WS+3}], s{S_T0} offen")
    A("s_mov_b64 exec, -1")
    A(f"{l}:")

@add_method
def sync_all_wait(self, sleep=0, presleep=0):
    A=self.A
    l=self.lab(); lp=self.lab('Lpoll'); le=self.lab()
    A(f"s_cmp_lg_u32 s{S_W}, 0")
    A(f"s_cbranch_scc1 {l}")
    A(f"s_lshr_b32 s{S_T0}, s{S_WG}, 3")
    A(f"s_and_b32 s{S_T0}, s{S_T0}, 7")
    A(f"s_lshl_b32 s{S_T0}, s{S_T0}, 10")
    A(f"s_add_u32 s{S_T0}, s{S_T0}, {WS_CNT2}")
    A(f"v_and_b32 v48, 7, v{V_LANE}")
    A(f"v_lshlrev_b32 v48, 7, v48")
    A(f"s_mov_b32 s{S_T0+1}, 0")
    if self.pp:
        A(f"buffer_load_dword v252, v48, s[{SRD_WS}:{SRD_WS+3}], s{S_T0} offen sc1")
        A(f"{lp}:")
        for a_,b_ in ((253,252),(252,253)):
            A(f"buffer_load_dword v{a_}, v48, s[{SRD_WS}:{SRD_WS+3}], s{S_T0} offen sc1")
            A("s_waitcnt vmcnt(1)")
            A(f"v_cmp_gt_u32 vcc, 28, v{b_}")
            A(f"s_cbranch_vccz {le}")
        A(f"s_add_u32 s{S_T0+1}, s{S_T0+1}, 1")
        A(f"s_cmp_lt_u32 s{S_T0+1}, 0x4000")
        A(f"s_cbranch_scc1 {lp}")
    else:
        A(f"{lp}:")
        A(f"buffer_load_dword v49, v48, s[{SRD_WS}:{SRD_WS+3}], s{S_T0} offen sc1")
        A("s_waitcnt vmcnt(0)")
        A("v_cmp_gt_u32 vcc, 28, v49")
        A(f"s_add_u32 s{S_T0+1}, s{S_T0+1}, 1")
        A(f"s_cbranch_vccz {le}")
        if sleep: A(f"s_sleep {sleep}")
        A(f"s_cmp_lt_u32 s{S_T0+1}, 0x8000")
        A(f"s_cbranch_scc1 {lp}")
    A(f"{le}:")
    A(f"{l}:")
    A("s_barrier")

class Stream:
    def __init__(self, A):
        self.A=A; self.lds=[]; self.vm=[]
    def ds(self, text, tag=None):
        self.A(text); self.lds.append(tag)
    def vmem(self, text, tag=None):
        self.A(text); self.vm.append(tag)
    def need_lds(self, tags):
        idx=-1
        for t in tags:
            if t in self.lds: idx=max(idx, len(self.lds)-1-self.lds[::-1].index(t))
        if idx>=0:
            n=len(self.lds)-idx-1
            n=min(n,15)
            self.A(f"s_waitcnt lgkmcnt({n})")
            self.lds=self.lds[len(self.lds)-n:] if n>0 else []
    def need_vm(self, tags):
        idx=-1
        for t in tags:
            if t in self.vm: idx=max(idx, len(self.vm)-1-self.vm[::-1].index(t))
        if idx>=0:
            n=len(self.vm)-idx-1
            n=min(n,63)
            self.A(f"s_waitcnt vmcnt({n})")
            self.vm=self.vm[len(self.vm)-n:] if n>0 else []
    def item(self, it):
        if isinstance(it,str): self.A(it)
        elif it[0]=='ds': self.ds(it[1],it[2])
        elif it[0]=='vm': self.vmem(it[1],it[2])
        elif it[0]=='needl': self.need_lds(it[1])
        elif it[0]=='needv': self.need_vm(it[1])

G_ACC=[64,96]; G_CS=128; G_RING=160; G_SB=184; G_VB=56; G_ST=54; G_ET=60; G_PK=232; G_R2=250; G_MU=240; G_C1=244
LDS_ST=114688
@add_method
def cs_mfma(self, s0, s1, init=True):
    A=self.A
    if s0==0 and init:
        for k in range(4): A(f"v_mov_b32 v{48+k}, 0x3f803f80")
    for s in range(s0,s1):
        for t in range(2):
            d=G_CS+16*t
            c="0" if s==0 else f"v[{d}:{d+15}]"
            A(f"v_mfma_f32_32x32x16_bf16 v[{d}:{d+15}], a[{8*s+4*t}:{8*s+4*t+3}], v[48:51], {c}")

def wd_loc(sig, ca):
    if sig<5: return ('v', 4+8*sig+4*ca)
    if sig<9: return ('a', 224+8*(sig-5)+4*ca)
    if sig<14: return ('v', 192+8*(sig-9)+4*ca)
    return ('a', 8*(sig-14)+4*ca)

@add_method
def wd_item(self, sig, ca):
    k,r=wd_loc(sig,ca)
    it=[]
    if sig%8==0 and sig>0: it.append(f"s_add_u32 s{S_T0+12+ca}, s{S_T0+12+ca}, 8192")
    va,off=("v48",(sig%8)*1024) if sig%8<4 else ("v3",(sig%8-4)*1024)
    it.append(('vm',f"buffer_load_dwordx4 {k}[{r}:{r+3}], {va}, s[{SRD_WS}:{SRD_WS+3}], s{S_T0+12+ca} offen offset:{off} sc1",f"WD{sig}"))
    return it

PF=4
@add_method
def gemm1(self):
    A=self.A; S=Stream(A); self.S=S
    A(f"s_mul_i32 s{S_T0}, s{S_I}, {4*28672}")
    A(f"s_mul_i32 s{S_T0+1}, s{S_W}, 7168")
    A(f"s_add_u32 s{S_T0}, s{S_T0}, s{S_T0+1}")
    A(f"s_add_u32 s{S_T0}, s{S_T0}, {WS_HT}")
    A(f"v_lshlrev_b32 v48, 4, v{V_LANE}")
    A(f"v_add_u32 v3, 4096, v48")
    def xdma(lt,k):
        base=lt*28672+(k//4)*4096
        it=[]
        if k%4==0: it+=[f"s_add_u32 s{S_T0+2}, s{S_T0}, {base}", f"s_add_u32 m0, s{S_T0+1}, {base}"]
        it.append(('vm',f"buffer_load_dwordx4 v48, s[{SRD_WS}:{SRD_WS+3}], s{S_T0+2} offen offset:{(k%4)*1024} sc1 lds", f"X{lt}"))
        return it
    for lt in range(2):
        for k in range(7):
            for it in xdma(lt,k): S.item(it)
    self.wd_setup()
    self.wdflag_load(S)
    A(f"s_lshl_b32 s{S_T0+3}, s{S_J}, 2")
    A(f"s_add_u32 s{S_T0+3}, s{S_T0+3}, s{S_W}")
    A(f"s_mul_i32 s{S_T0+3}, s{S_T0+3}, {2*896}")
    A(f"s_add_u32 s{S_T0+3}, s{S_T0+3}, {WS_CS}")
    A(f"v_lshrrev_b32 v50, 5, v{V_LANE}")
    A(f"v_mul_u32_u24 v50, 896, v50")
    A(f"v_and_b32 v51, 31, v{V_LANE}")
    A(f"v_lshl_add_u32 v50, v51, 2, v50")
    for g in range(7):
        S.vmem(f"buffer_load_dword v{184+g}, v50, s[{SRD_WS}:{SRD_WS+3}], s{S_T0+3} offen offset:{g*128} sc1","CSP")
    A(f"s_lshl_b32 s{S_T0+3}, s{S_W}, 8")
    A(f"s_add_u32 s{S_T0+3}, s{S_T0+3}, {LDS_ST+2048}")
    A(f"v_lshl_add_u32 v191, v{V_LANE}, 2, s{S_T0+3}")
    A(f"v_lshrrev_b32 v55, 5, v{V_LANE}")
    A(f"v_lshlrev_b32 v55, 4, v55")
    A(f"v_add_u32 v55, s{S_T0+3}, v55")
    A(f"v_lshrrev_b32 v50, 5, v{V_LANE}")
    A(f"v_lshlrev_b32 v50, 9, v50")
    A(f"v_bfe_u32 v51, v{V_LANE}, 2, 2")
    A(f"v_lshl_add_u32 v50, v51, 6, v50")
    A(f"v_bfe_u32 v51, v{V_LANE}, 4, 1")
    A(f"v_lshl_add_u32 v50, v51, 5, v50")
    A(f"v_and_b32 v51, 3, v{V_LANE}")
    A(f"v_lshl_add_u32 v50, v51, 3, v50")
    for g in range(4):
        A(f"s_add_u32 s{S_T0+3}, s{S_W}, {g}")
        A(f"s_and_b32 s{S_T0+3}, s{S_T0+3}, 3")
        A(f"s_sub_u32 s{S_T0+3}, s{S_T0+3}, {g}")
        A(f"s_mul_i32 s{S_T0+3}, s{S_T0+3}, 7168")
        A(f"v_add_u32 v{G_VB+g}, s{S_T0+3}, v50")
    A(f"v_and_b32 v52, 31, v{V_LANE}")
    A(f"v_lshlrev_b32 v52, 3, v52")
    A(f"s_lshl_b32 s{S_T0+10}, s{S_I}, 10")
    A(f"s_add_u32 s{S_T0+10}, s{S_T0+10}, {WS_ST2}")
    A(f"s_lshl_b32 s{S_T0+4}, s{S_I}, 2")
    A(f"s_mul_i32 s{S_T0+4}, s{S_T0+4}, 112")
    A(f"s_lshl_b32 s{S_T0+5}, s{S_J}, 3")
    A(f"s_add_u32 s{S_T0+4}, s{S_T0+4}, s{S_T0+5}")
    A(f"s_lshl_b32 s{S_T0+5}, s{S_W}, 1")
    A(f"s_add_u32 s{S_T0+4}, s{S_T0+4}, s{S_T0+5}")
    A(f"s_lshl_b32 s{S_T0+4}, s{S_T0+4}, 10")
    A(f"s_add_u32 s{S_T0+4}, s{S_T0+4}, {WS_M}")
    SM=S_T0+4
    RING=[G_RING+4*k for k in range(6)]
    def breg(p,s): return RING[(28*p+s)%6]
    def bload(p,s):
        r=breg(p,s); vb=G_VB+s//7
        return [('ds',f"ds_read_b64_tr_b16 v[{r}:{r+1}], v{vb} offset:{s*1024}",f"B{p}_{s}a"),
                ('ds',f"ds_read_b64_tr_b16 v[{r+2}:{r+3}], v{vb} offset:{s*1024+256}",f"B{p}_{s}b")]
    SG2=G_SB
    def stats_loads():
        it=[]
        for p in range(4):
            it.append(('vm',f"buffer_load_dwordx2 v[{SG2+2*p}:{SG2+2*p+1}], v52, s[{SRD_WS}:{SRD_WS+3}], s{S_T0+10} offen offset:{p*256} sc1","ST2"))
        return it
    def stats_check():
        lp=self.lab('Lpoll'); le=self.lab()
        S.need_vm(["ST2"])
        A(f"s_mov_b32 s{S_T0+8}, 0")
        A(f"{lp}:")
        A(f"v_xor_b32 v53, s{S_TAG}, v{SG2+1}")
        for p in range(1,4):
            A(f"v_xor_b32 v54, s{S_TAG}, v{SG2+2*p+1}")
            A(f"v_or_b32 v53, v53, v54")
        A("v_cmp_ne_u32 vcc, 0, v53")
        A(f"s_add_u32 s{S_T0+8}, s{S_T0+8}, 1")
        A(f"s_cbranch_vccz {le}")
        for p in range(4):
            A(f"buffer_load_dwordx2 v[{SG2+2*p}:{SG2+2*p+1}], v52, s[{SRD_WS}:{SRD_WS+3}], s{S_T0+10} offen offset:{p*256} sc1")
        A("s_waitcnt vmcnt(0)")
        A(f"s_cmp_lt_u32 s{S_T0+8}, 0x8000")
        A(f"s_cbranch_scc1 {lp}")
        A(f"{le}:")
    def stats_final(p):
        g=SG2+2*p; T=G_ST
        return [f"v_and_b32 v{G_MU+p}, 0xffff0000, v{g}",
                f"v_lshlrev_b32 v{T}, 16, v{g}",
                f"v_rcp_f32 v{T}, v{T}",
                f"s_nop 0",
                f"v_mul_f32 v{G_C1+p}, {fl(-LOG2E)}, v{T}",
                f"v_mul_f32 v{G_R2+p}, v{T}, v{T}"]
    def epi_items(p):
        acc=G_ACC[p&1]; it=[]; E=G_ET; mu=G_MU+p; c1=G_C1+p
        for r0 in range(0,16,4):
            rs=range(r0,r0+4)
            for r in rs: it.append(f"v_fma_f32 v{acc+r}, -v{mu}, v{G_CS+r}, v{acc+r}")
            for r in rs: it.append(f"v_fma_f32 v{acc+16+r}, -v{mu}, v{G_CS+16+r}, v{acc+16+r}")
            for r in rs: it.append(f"v_mul_f32 v{E+(r&3)}, v{c1}, v{acc+r}")
            for r in rs: it.append(f"v_exp_f32 v{E+(r&3)}, v{E+(r&3)}")
            for r in rs: it.append(f"v_mul_f32 v{acc+r}, v{acc+r}, v{acc+16+r}")
            for r in rs: it.append(f"v_add_f32 v{E+(r&3)}, 1.0, v{E+(r&3)}")
            for r in rs: it.append(f"v_rcp_f32 v{E+(r&3)}, v{E+(r&3)}")
            for r in rs: it.append(f"v_mul_f32 v{acc+r}, v{acc+r}, v{E+(r&3)}")
            q=r0//4
            it.append(f"v_cvt_pk_bf16_f32 v{G_PK+2*q}, v{acc+r0}, v{acc+r0+1}")
            it.append(f"v_cvt_pk_bf16_f32 v{G_PK+2*q+1}, v{acc+r0+2}, v{acc+r0+3}")
            if q==1 or q==3:
                h=q//2
                if h==0: it.append(f"s_add_u32 s{SM+1}, s{SM}, {p*112*1024}")
                it.append(('vm',f"buffer_store_dwordx4 v[{G_PK+4*h}:{G_PK+4*h+3}], v48, s[{SRD_WS}:{SRD_WS+3}], s{SM+1} offen offset:{h*1024} sc1",f"M{p}_{h}"))
        return it
    vmx={0:[],1:[],2:[],3:[]}
    wr=self.w1_items(W1_PRE,28)
    for n,it in enumerate(wr):
        sl=W1_PRE+n//2
        vmx[0].append((n//2, [('vm',it[0],f"W{sl}")]))
    if self.xlate:
        for q in range(7): vmx[1].append((q, xdma(2,q)))
        for q in range(7): vmx[2].append((q, xdma(3,q)))
    else:
        k=0
        for lt in (2,3):
            for q in range(7):
                vmx[0].append((min(27,len(wr)//2+k), xdma(lt,q))); k+=1
    csit=[('needv',["CSP"])]
    for g in range(1,7): csit.append(f"v_add_f32 v184, v184, v{184+g}")
    csit.append(('ds',"ds_write_b32 v191, v184","CSW"))
    for t in range(2):
        for q in range(4):
            csit.append(('ds',f"ds_read_b128 v[{G_CS+16*t+4*q}:{G_CS+16*t+4*q+3}], v55 offset:{t*128+q*32}","CSR"))
    n=0
    for sig in range(5):
        for ca in range(2): vmx[1].append((9+(18*n)//10, self.wd_item(sig,ca))); n+=1
    n=0
    for sig in range(5,14):
        for ca in range(2): vmx[2].append(((8+(19*n)//18) if self.xlate else (1+(26*n)//18), self.wd_item(sig,ca))); n+=1
    for n in range(28): vmx[3].append((max(n//2,(n*self.wdspan)//28), self.wd_item(14+n//2, n%2)))
    S.need_vm(["X0"])
    A("s_barrier")
    self.stamp('x0')
    for s in range(PF):
        for it in bload(0,s): S.item(it)
    BAR=self.bar; csi=[0]
    ST_LOAD,ST_CHK=self.stl,self.stc; _=0
    def emit_pass(p, pre):
        acc=G_ACC[p&1]
        ep=epi_items(p-1) if p>0 else []
        e0=1
        if p==1:
            while csi[0]<len(csit): S.item(csit[csi[0]]); csi[0]+=1
            ep=[('needl',["CSR"])]+sum((stats_final(q) for q in range(4)),[])+ep
            e0=ST_CHK+1
        epi=0
        def cost(it):
            if isinstance(it,tuple):
                return {'ds':5,'vm':20}.get(it[0],1)
            m=it.split()[0]
            if m in ('v_exp_f32','v_rcp_f32','v_sqrt_f32'): return 8.6
            if m.startswith('s_'): return 3
            return 4.3
        fixed=[0.0]*56
        for g_ in range(56):
            sl_,t_=g_//2,g_%2
            fixed[g_]+=5
            if t_==1:
                for (sl,items) in vmx[p]:
                    if sl==sl_: fixed[g_]+=sum(cost(x) for x in items)
            if t_==0 and sl_%2==0: fixed[g_]+=3
        g0=2*e0
        tot=sum(cost(x) for x in ep)
        quota=[0]*56
        if ep:
            lo,hi=0.0,200.0
            for _ in range(30):
                mid=(lo+hi)/2
                if sum(max(0.0,mid-fixed[g_]) for g_ in range(g0,56))>=tot+25: hi=mid
                else: lo=mid
            quota=[max(0.0,hi-fixed[g_]) if g_>=g0 else 0.0 for g_ in range(56)]
        carry=0.0
        for s in range(28):
            if s%2==0: S.need_lds([f"B{p}_{s}a",f"B{p}_{s}b",f"B{p}_{s+1}a",f"B{p}_{s+1}b"])
            if p==0 and s>=pre and s%2==0: S.need_vm([f"W{s}",f"W{s+1}"])
            if p==0 and s>=18 and csi[0]<len(csit):
                for _ in range(2):
                    if csi[0]<len(csit): S.item(csit[csi[0]]); csi[0]+=1
            r=breg(p,s)
            for t in range(2):
                d=acc+16*t
                c="0" if s==0 else f"v[{d}:{d+15}]"
                A(f"v_mfma_f32_32x32x16_bf16 v[{d}:{d+15}], a[{8*s+4*t}:{8*s+4*t+3}], v[{r}:{r+3}], {c}")
                ns=s+PF
                if ns<28: S.item(bload(p,ns)[t])
                elif p<3: S.item(bload(p+1,ns-28)[t])
                gap=2*s+t
                if t==1:
                    for (sl,items) in vmx[p]:
                        if sl==s:
                            for it in items: S.item(it)
                if self.costsched:
                    carry+=quota[gap]
                    while epi<len(ep) and cost(ep[epi])<=carry+1.0:
                        carry-=cost(ep[epi]); S.item(ep[epi]); epi+=1
                elif s>=e0 and ep:
                    ng=2*(28-e0)-1
                    tgt=min(len(ep),(len(ep)*(gap-2*e0+1)+ng-1)//ng)
                    while epi<tgt: S.item(ep[epi]); epi+=1
            if p==1 and s==ST_LOAD:
                for it in stats_loads(): S.item(it)
            if p==1 and s==ST_CHK: stats_check()
            if p<3 and s in (6-PF,13-PF,20-PF,27-PF):
                g={6-PF:0,13-PF:1,20-PF:2,27-PF:3}[s]
                A(f"v_add_u32 v{G_VB+g}, 28672, v{G_VB+g}")
            if p==3 and s==22 and self.emov:
                A(f"s_lshl_b32 s{S_T0+2}, s{S_I}, 7")
                A(f"s_add_u32 s{S_T0+2}, s{S_T0+2}, {WS_CNT3}")
                S.vmem(f"buffer_load_dword v55, v{V_ZERO}, s[{SRD_WS}:{SRD_WS+3}], s{S_T0+2} offen sc1","pollE")
            if s==((4 if self.emov else BAR) if p==3 else BAR):
                if p<3: S.need_vm([f"X{p+1}"])
                if p==0: self.wdflag_check(S)
                if p==3: S.need_vm(["M1_1"])
                A("s_barrier")
                if p==3:
                    l=self.lab()
                    A(f"s_cmp_lg_u32 s{S_W}, 0")
                    A(f"s_cbranch_scc1 {l}")
                    A(f"s_lshl_b32 s{S_T0+2}, s{S_I}, 7")
                    A(f"s_add_u32 s{S_T0+2}, s{S_T0+2}, {WS_CNT3}")
                    A("v_mov_b32 v55, 1")
                    A("s_mov_b64 exec, 1")
                    A(f"buffer_atomic_add v55, v{V_ZERO}, s[{SRD_WS}:{SRD_WS+3}], s{S_T0+2} offen")
                    A("s_mov_b64 exec, -1")
                    A(f"{l}:")
        while epi<len(ep): S.item(ep[epi]); epi+=1
    def w_rest(pre):
        out=[]
        wr=self.w1_items(pre,28); n_=len(wr)
        for n,it in enumerate(wr):
            sl=pre+n//2
            out.append((min(n//2 if not self.split0 else (n*max(1,pre))//max(1,n_) , max(0,sl-4)), [('vm',it[0],f"W{sl}")]))
        return out
    base0=[x for x in vmx[0] if not (isinstance(x[1][0],tuple) and str(x[1][0][2]).startswith('W'))]
    for p in range(4):
        if p==0 and self.split0:
            lB=self.lab('Lp0'); lJ=self.lab('Lp0')
            st=(list(S.lds),list(S.vm),csi[0])
            A(f"s_cmp_lg_u32 s{S_W}, 0")
            A(f"s_cbranch_scc1 {lB}")
            vmx[0]=base0+w_rest(self.split0)
            emit_pass(0,self.split0)
            A(f"s_branch {lJ}")
            A(f"{lB}:")
            S.lds,S.vm,csi[0]=list(st[0]),list(st[1]),st[2]
            vmx[0]=base0
            emit_pass(0,28)
            A(f"{lJ}:")
            A("s_waitcnt vmcnt(0)"); S.vm=[]
        else:
            emit_pass(p,W1_PRE)
        if self.ts and (self.tsonly is None or f'pass{p}' in self.tsonly):
            self.stamp(f'pass{p}'); S.lds=[]
    self.g2_ids()
    self.early_loads=[]
    if self.emov:
        lp=self.lab('Lpoll'); le=self.lab()
        S.need_vm(["pollE"])
        A(f"s_mov_b32 s{S_T0+8}, 0")
        A(f"{lp}:")
        A("v_cmp_gt_u32 vcc, 14, v55")
        A(f"s_cbranch_vccz {le}")
        A(f"buffer_load_dword v55, v{V_ZERO}, s[{SRD_WS}:{SRD_WS+3}], s{S_T0+2} offen sc1")
        A("s_waitcnt vmcnt(0)")
        A(f"s_add_u32 s{S_T0+8}, s{S_T0+8}, 1")
        A(f"s_cmp_lt_u32 s{S_T0+8}, 0x8000")
        A(f"s_cbranch_scc1 {lp}")
        A(f"{le}:")
    else:
        A(f"s_lshl_b32 s{S_T0+2}, s{S_I}, 7")
        A(f"s_add_u32 s{S_T0+2}, s{S_T0+2}, {WS_CNT3}")
        S.vmem(f"buffer_load_dword v55, v{V_ZERO}, s[{SRD_WS}:{SRD_WS+3}], s{S_T0+2} offen sc1","pollE")
    A("s_nop 7")
    acc=G_ACC[1]; E=G_ET
    PMU,PC1=(54,52) if self.emov else (184,186)
    A(f"v_mov_b32 v{PMU}, v{G_MU+3}")
    A(f"v_mov_b32 v{PC1}, v{G_C1+3}")
    ne=0
    for r0 in range(0,16,4):
        for r in (r0,r0+2): A(f"v_pk_fma_f32 v[{acc+r}:{acc+r+1}], v[{G_CS+r}:{G_CS+r+1}], v[{PMU}:{PMU+1}], v[{acc+r}:{acc+r+1}] op_sel_hi:[1,0,1] neg_lo:[0,1,0] neg_hi:[0,1,0]")
        for r in (r0,r0+2): A(f"v_pk_fma_f32 v[{acc+16+r}:{acc+16+r+1}], v[{G_CS+16+r}:{G_CS+16+r+1}], v[{PMU}:{PMU+1}], v[{acc+16+r}:{acc+16+r+1}] op_sel_hi:[1,0,1] neg_lo:[0,1,0] neg_hi:[0,1,0]")
        for r in (r0,r0+2): A(f"v_pk_mul_f32 v[{E+(r&3)}:{E+(r&3)+1}], v[{acc+r}:{acc+r+1}], v[{PC1}:{PC1+1}] op_sel_hi:[1,0]")
        for r in range(4): A(f"v_exp_f32 v{E+r}, v{E+r}")
        if self.emov:
            for _ in range(2): S.vmem(self.m_load_text(0,ne),f"m0_{ne}"); ne+=1
        for r in (r0,r0+2): A(f"v_pk_mul_f32 v[{acc+r}:{acc+r+1}], v[{acc+r}:{acc+r+1}], v[{acc+16+r}:{acc+16+r+1}]")
        for r in (0,2): A(f"v_pk_add_f32 v[{E+r}:{E+r+1}], v[{E+r}:{E+r+1}], 1.0 op_sel_hi:[1,0]")
        for r in range(4): A(f"v_rcp_f32 v{E+r}, v{E+r}")
        for r in (r0,r0+2): A(f"v_pk_mul_f32 v[{acc+r}:{acc+r+1}], v[{acc+r}:{acc+r+1}], v[{E+(r&3)}:{E+(r&3)+1}]")
        q=r0//4
        A(f"v_cvt_pk_bf16_f32 v{G_PK+2*q}, v{acc+r0}, v{acc+r0+1}")
        A(f"v_cvt_pk_bf16_f32 v{G_PK+2*q+1}, v{acc+r0+2}, v{acc+r0+3}")
        if q in (1,3):
            h=q//2
            if h==0: A(f"s_add_u32 s{SM+1}, s{SM}, {3*112*1024}")
            S.vmem(f"buffer_store_dwordx4 v[{G_PK+4*h}:{G_PK+4*h+3}], v48, s[{SRD_WS}:{SRD_WS+3}], s{SM+1} offen offset:{h*1024} sc1",f"M3_{h}")

S_MB=76
@add_method
def g2_ids(self):
    A=self.A
    A(f"s_cmp_ge_u32 s{S_J}, 7")
    A(f"s_cselect_b32 s{S_T0}, 1, 0")
    A(f"s_cselect_b32 s{S_T0+6}, 7, 0")
    A(f"s_sub_u32 s{S_T0+6}, s{S_J}, s{S_T0+6}")
    A(f"s_lshl_b32 s{S_T0+1}, s{S_I}, 2")
    A(f"s_sub_u32 s{S_T0+3}, 3, s{S_T0}")
    A(f"s_add_u32 s{S_T0+3}, s{S_T0+3}, s{S_T0+1}")
    A(f"s_add_u32 s{S_T0+1}, s{S_T0+1}, s{S_T0}")
    A(f"s_mul_i32 s{S_T0+7}, s{S_W}, 28")
    for la,src in ((0,S_T0+1),(1,S_T0+3)):
        A(f"s_mul_i32 s{S_MB+la}, s{src}, 112")
        A(f"s_add_u32 s{S_MB+la}, s{S_MB+la}, s{S_T0+7}")
        A(f"s_lshl_b32 s{S_MB+la}, s{S_MB+la}, 10")
        A(f"s_add_u32 s{S_MB+la}, s{S_MB+la}, {WS_M}")
@add_method
def m_entry(self, la, s): return H_RING+4*((28*la+s+(8 if self.emov else 0))%NRING)
@add_method
def m_load_text(self, la, s):
    r=self.m_entry(la,s)
    if s%8==0 and s>0: self.A(f"s_add_u32 s{S_MB+la}, s{S_MB+la}, 8192")
    va,off=("v48",(s%8)*1024) if s%8<4 else ("v3",(s%8-4)*1024)
    return f"buffer_load_dwordx4 v[{r}:{r+3}], {va}, s[{SRD_WS}:{SRD_WS+3}], s{S_MB+la} offen offset:{off} sc1"

H_ACC=64
H_RING=128
NRING=16
LDS_RED=0
LDS_RES=49152
@add_method
def gemm2(self):
    A=self.A; S=self.S
    if not self.emov:
        lp=self.lab('Lpoll'); le=self.lab()
        A(f"s_mov_b32 s{S_T0+8}, 0")
        A(f"s_waitcnt vmcnt(2)")
        A(f"{lp}:")
        A("v_cmp_gt_u32 vcc, 14, v55")
        A(f"s_cbranch_vccz {le}")
        A(f"buffer_load_dword v55, v{V_ZERO}, s[{SRD_WS}:{SRD_WS+3}], s{S_T0+2} offen sc1")
        A("s_waitcnt vmcnt(0)")
        A(f"s_add_u32 s{S_T0+8}, s{S_T0+8}, 1")
        A(f"s_cmp_lt_u32 s{S_T0+8}, 0x8000")
        A(f"s_cbranch_scc1 {lp}")
        A(f"{le}:")
    S2=Stream(A)
    if self.emov:
        S2.vm=["m0_0","m0_1","m0_2","m0_3","Mfin","m0_4","m0_5","m0_6","m0_7","Mfin"]
    else: S2.vm=["Mfin","Mfin"]
    def mload(la,s):
        S2.vmem(self.m_load_text(la,s), f"m{la}_{s}")
    N0=8 if self.emov else 0
    NPRE=self.npre
    NPRE=max(NPRE,N0) if not self.emov else N0+self.npre2
    for s_ in range(N0,NPRE): mload(0,s_)
    A(f"s_lshl_b32 s{S_T0+11}, s{S_T0+6}, 6")
    A(f"s_lshl_b32 s{S_T0+7}, s{S_NH}, 5")
    A(f"s_add_u32 s{S_T0+11}, s{S_T0+11}, s{S_T0+7}")
    A(f"s_lshl_b32 s{S_T0+7}, s{S_CH}, 4")
    A(f"s_add_u32 s{S_T0+11}, s{S_T0+11}, s{S_T0+7}")
    for la,src,dst in ((0,S_T0+1,S_T0+8),(1,S_T0+3,S_T0+9)):
        A(f"s_mul_i32 s{dst}, s{src}, 448")
        A(f"s_add_u32 s{dst}, s{dst}, s{S_T0+11}")
        A(f"s_lshl_b32 s{dst}, s{dst}, 6")
        A(f"s_add_u32 s{dst}, s{dst}, {WS_HT}")
    A(f"s_lshl_b32 s{S_T0+11}, s{S_T0+11}, 1")
    A(f"s_mul_i32 s{S_T0+14}, s{S_T0+1}, {32*896}")
    A(f"s_add_u32 s{S_T0+14}, s{S_T0+14}, s{S_T0+11}")
    A(f"s_mul_i32 s{S_T0+15}, s{S_T0+3}, {32*896}")
    A(f"s_add_u32 s{S_T0+15}, s{S_T0+15}, s{S_T0+11}")
    A(f"s_lshl_b32 s{S_T0+11}, s{S_W}, 11")
    A(f"s_add_u32 s{S_T0+11}, s{S_T0+11}, {LDS_RES}")
    A(f"s_mov_b32 s{SRD_W}, s{S_OUT}\ns_mov_b32 s{SRD_W+1}, s{S_OUT+1}\ns_mov_b32 s{SRD_W+2}, {L_*D_*2}\ns_mov_b32 s{SRD_W+3}, 0x20000")
    A(f"s_cmp_eq_u32 s{S_T0}, 0")
    A("s_cselect_b64 vcc, -1, 0")
    A(f"v_cndmask_b32 v248, v{G_R2+1}, v{G_R2}, vcc")
    A(f"v_cndmask_b32 v254, v{G_R2+2}, v{G_R2+3}, vcc")
    A("v_mov_b32 v249, v248\nv_mov_b32 v255, v254")
    A(f"v_lshrrev_b32 v50, 5, v{V_LANE}")
    A(f"v_lshlrev_b32 v50, 8, v50")
    A(f"v_bfe_u32 v51, v{V_LANE}, 2, 2")
    A(f"v_lshl_add_u32 v50, v51, 6, v50")
    A(f"v_bfe_u32 v51, v{V_LANE}, 4, 1")
    A(f"v_lshl_add_u32 v50, v51, 5, v50")
    A(f"v_and_b32 v51, 3, v{V_LANE}")
    A(f"v_lshl_add_u32 v50, v51, 3, v50")
    A(f"v_add_u32 v50, s{S_T0+11}, v50")
    A(f"v_and_b32 v52, 31, v{V_LANE}")
    A(f"v_mul_u32_u24 v52, 896, v52")
    A(f"v_lshrrev_b32 v51, 5, v{V_LANE}")
    A(f"v_lshl_add_u32 v52, v51, 4, v52")
    for x in (1,2,3):
        A(f"s_xor_b32 s{S_T0+7}, s{S_W}, {x}")
        A(f"s_mul_i32 s{S_T0+7}, s{S_T0+7}, 6144")
        A(f"s_add_u32 s{S_T0+7}, s{S_T0+7}, {LDS_RED+(x-1)*2048}")
        A(f"v_add_u32 v{43+x}, s{S_T0+7}, v48")
    A(f"s_mul_i32 s{S_T0+7}, s{S_W}, 6144")
    A(f"s_add_u32 s{S_T0+7}, s{S_T0+7}, {LDS_RED}")
    A(f"v_add_u32 v47, s{S_T0+7}, v48")
    S2.need_vm(["Mfin"])
    A("s_barrier")
    l=self.lab()
    A(f"s_lshl_b32 s{S_T0+10}, s{S_I}, 7")
    A(f"s_add_u32 s{S_T0+10}, s{S_T0+10}, {WS_CNT3+2048}")
    A(f"s_cmp_lg_u32 s{S_W}, 0")
    A(f"s_cbranch_scc1 {l}")
    A("v_mov_b32 v55, 1")
    A("s_mov_b64 exec, 1")
    A(f"buffer_atomic_add v55, v{V_ZERO}, s[{SRD_WS}:{SRD_WS+3}], s{S_T0+10} offen")
    l2=self.lab()
    A(f"s_cmp_lg_u32 s{S_WG}, 0")
    A(f"s_cbranch_scc1 {l2}")
    A(f"v_mov_b32 v55, s{S_TAG}")
    A(f"buffer_store_dword v55, v{V_ZERO}, s[{SRD_WS}:{SRD_WS+3}], 0 offen sc1")
    A(f"{l2}:")
    A("s_mov_b64 exec, -1")
    A(f"{l}:")
    self.stamp('sync3 arrive')
    def by_half(fn):
        la_=self.lab('Lh'); lb_=self.lab('Lh')
        A(f"s_cmp_ge_u32 s{S_W}, 2")
        A(f"s_cbranch_scc1 {la_}")
        fn(0)
        A(f"s_branch {lb_}")
        A(f"{la_}:")
        fn(1)
        A(f"{lb_}:")
    def red_write(la):
        def f(h):
            b0=H_ACC+32*la; b1=b0+16
            for x,r in ((2,b0+8*(1-h)),(1,b1+8*h),(3,b1+8*(1-h))):
                for q in range(2):
                    A(f"ds_write_b128 v{43+x}, v[{r+4*q}:{r+4*q+3}] offset:{la*24576+q*1024}")
        by_half(f)
    def red_final(la):
        P=208; RS=232; O=244
        A(f"ds_read_b64_tr_b16 v[{RS}:{RS+1}], v50 offset:{la*1024}")
        A(f"ds_read_b64_tr_b16 v[{RS+2}:{RS+3}], v50 offset:{la*1024+512}")
        for k in range(3):
            for q in range(2):
                A(f"ds_read_b128 v[{P+8*k+4*q}:{P+8*k+4*q+3}], v47 offset:{la*24576+k*2048+q*1024}")
        A("s_waitcnt lgkmcnt(6)")
        for d in range(4): A(bf16_lo(RS+4+2*d,RS+d)); A(bf16_hi(RS+5+2*d,RS+d))
        A("s_waitcnt lgkmcnt(2)")
        for r in range(0,8,2): A(f"v_pk_add_f32 v[{P+r}:{P+r+1}], v[{P+r}:{P+r+1}], v[{P+8+r}:{P+8+r+1}]")
        A("s_waitcnt lgkmcnt(0)")
        for r in range(0,8,2): A(f"v_pk_add_f32 v[{P+r}:{P+r+1}], v[{P+r}:{P+r+1}], v[{P+16+r}:{P+16+r+1}]")
        def f(h):
            b=H_ACC+32*la+8*h
            for r in range(0,8,2): A(f"v_pk_add_f32 v[{P+r}:{P+r+1}], v[{P+r}:{P+r+1}], v[{b+r}:{b+r+1}]")
        by_half(f)
        r2=(248,254)[la]
        if self.mimic>=1:
            for r in range(0,8,2): A(f"v_pk_mul_f32 v[{P+r}:{P+r+1}], v[{P+r}:{P+r+1}], v[{r2}:{r2+1}]")
            for r in range(0,8,2): A(f"v_cvt_pk_bf16_f32 v{O+r//2}, v{P+r}, v{P+r+1}")
            for r in range(0,8,2): A(bf16_lo(P+r,O+r//2)); A(bf16_hi(P+r+1,O+r//2))
            for r in range(0,8,2): A(f"v_pk_add_f32 v[{P+r}:{P+r+1}], v[{P+r}:{P+r+1}], v[{RS+4+r}:{RS+4+r+1}]")
        else:
            for r in range(0,8,2): A(f"v_pk_fma_f32 v[{P+r}:{P+r+1}], v[{P+r}:{P+r+1}], v[{r2}:{r2+1}], v[{RS+4+r}:{RS+4+r+1}]")
        if self.perturb:
            for r in range(8): A(f"v_add_f32 v{P+r}, {fl(self.perturb)}, v{P+r}")
        for r in range(0,8,2): A(f"v_cvt_pk_bf16_f32 v{O+r//2}, v{P+r}, v{P+r+1}")
        A(f"v_permlane32_swap_b32 v{O}, v{O+2}")
        A(f"v_permlane32_swap_b32 v{O+1}, v{O+3}")
        return f"buffer_store_dwordx4 v[{O}:{O+3}], v52, s[{SRD_W}:{SRD_W+3}], s{S_T0+14+la} offen"
    def mf(la,s):
        for ca in range(2):
            d=H_ACC+16*(2*la+ca)
            c="0" if s==0 else f"v[{d}:{d+15}]"
            k,r=wd_loc(s,ca); rr=self.m_entry(la,s)
            A(f"v_mfma_f32_32x32x16_bf16 v[{d}:{d+15}], {k}[{r}:{r+3}], v[{rr}:{rr+3}], {c}")
    for s_ in range(NPRE,NRING): mload(0,s_)
    POLL_AT=28-NRING
    for s_ in range(28):
        S2.need_vm([f"m0_{s_}"])
        mf(0,s_)
        if s_+NRING<28: mload(0,s_+NRING)
        if s_==POLL_AT-1:
            S2.vmem(f"buffer_load_dword v55, v{V_ZERO}, s[{SRD_WS}:{SRD_WS+3}], s{S_T0+10} offen sc1","pollL")
            A(f"s_mov_b32 m0, s{S_T0+11}")
            S2.vmem(f"buffer_load_dwordx4 v48, s[{SRD_WS}:{SRD_WS+3}], s{S_T0+8} offen sc1 lds","res")
            A(f"s_add_u32 m0, s{S_T0+11}, 1024")
            S2.vmem(f"buffer_load_dwordx4 v48, s[{SRD_WS}:{SRD_WS+3}], s{S_T0+9} offen sc1 lds","res")
        if s_==POLL_AT+5:
            lp=self.lab('Lpoll'); le=self.lab()
            S2.need_vm(["pollL"])
            A(f"s_mov_b32 s{S_T0+7}, 0")
            A(f"{lp}:")
            if self.pp>1:
                lq=self.lab('Lpoll')
                A("v_cmp_gt_u32 vcc, 14, v55")
                A(f"s_cbranch_vccz {le}")
                A(f"buffer_load_dword v54, v{V_ZERO}, s[{SRD_WS}:{SRD_WS+3}], s{S_T0+10} offen sc1")
                A(f"{lq}:")
                for a_,b_ in ((55,54),(54,55)):
                    A(f"buffer_load_dword v{a_}, v{V_ZERO}, s[{SRD_WS}:{SRD_WS+3}], s{S_T0+10} offen sc1")
                    A("s_waitcnt vmcnt(1)")
                    A(f"v_cmp_gt_u32 vcc, 14, v{b_}")
                    A(f"s_cbranch_vccz {le}")
                A(f"s_add_u32 s{S_T0+7}, s{S_T0+7}, 1")
                A(f"s_cmp_lt_u32 s{S_T0+7}, 0x4000")
                A(f"s_cbranch_scc1 {lq}")
            else:
                A("v_cmp_gt_u32 vcc, 14, v55")
                A(f"s_cbranch_vccz {le}")
                A(f"buffer_load_dword v55, v{V_ZERO}, s[{SRD_WS}:{SRD_WS+3}], s{S_T0+10} offen sc1")
                A("s_waitcnt vmcnt(0)")
                A(f"s_add_u32 s{S_T0+7}, s{S_T0+7}, 1")
                A(f"s_cmp_lt_u32 s{S_T0+7}, 0x8000")
                A(f"s_cbranch_scc1 {lp}")
            A(f"{le}:")
            self.stamp('late ready')
            nl=0
            while nl<28 and (28+nl)-NRING <= s_: mload(1,nl); nl+=1
        elif s_>POLL_AT+5:
            while nl<28 and (28+nl)-NRING <= s_: mload(1,nl); nl+=1
    self.stamp('early done')
    for s_ in range(28):
        S2.need_vm([f"m1_{s_}"])
        mf(1,s_)
        while nl<28 and (28+nl)-NRING <= 28+s_: mload(1,nl); nl+=1
        if s_==5:
            red_write(0)
        if s_==13:
            A("s_waitcnt lgkmcnt(0)")
            A("s_barrier")
            st=red_final(0)
            S2.vmem(st,"out0")
    self.stamp('late done')
    A("s_nop 11")
    red_write(1)
    A("s_waitcnt lgkmcnt(0)")
    A("s_barrier")
    self.stamp('red barrier')
    A(red_final(1))

@add_method
def dump_lds(self, lds_off, nbytes, ws_off_per_wg):
    A=self.A
    A("s_waitcnt vmcnt(0) lgkmcnt(0)")
    A("s_barrier")
    A(f"v_lshlrev_b32 v48, 4, v{V_T}")
    A(f"s_mul_i32 s{S_T0}, s{S_WG}, {ws_off_per_wg}")
    A(f"s_add_u32 s{S_T0}, s{S_T0}, {WS_DBG}")
    for k in range(nbytes//4096):
        A(f"v_add_u32 v49, {lds_off+k*4096}, v48")
        A("ds_read_b128 v[52:55], v49")
        A("s_waitcnt lgkmcnt(0)")
        A(f"s_add_u32 s{S_T0+1}, s{S_T0}, {k*4096}")
        A(f"buffer_store_dwordx4 v[52:55], v48, s[{SRD_WS}:{SRD_WS+3}], s{S_T0+1} offen")
        A("s_waitcnt vmcnt(0)")

@add_method
def dump_regs(self, first, n, kind='v'):
    A=self.A
    A("s_waitcnt vmcnt(0) lgkmcnt(0)")
    A("s_nop 15")
    A(f"v_lshlrev_b32 v3, 2, v{V_T}")
    A(f"s_mul_i32 s{S_T0}, s{S_WG}, {n*1024}")
    A(f"s_add_u32 s{S_T0}, s{S_T0}, {WS_DBG}")
    for k in range(n):
        A(f"s_add_u32 s{S_T0+1}, s{S_T0}, {k*1024}")
        A(f"buffer_store_dword {kind}{first+k}, v3, s[{SRD_WS}:{SRD_WS+3}], s{S_T0+1} offen")
    A("s_waitcnt vmcnt(0)")

@add_method
def build(self):
    A=self.A
    stop=self.stop_after
    def done(name):
        return stop==name
    self.prologue()
    self.phase0_loads()
    A("v_mov_b32 v56, 0\nv_mov_b32 v57, 0\nv_mov_b32 v58, 0\nv_mov_b32 v59, 0")
    l=self.lab()
    A(f"s_cmp_lg_u32 s{S_W}, 0")
    A(f"s_cbranch_scc1 {l}")
    A(f"v_and_b32 v50, 31, v{V_LANE}")
    A(f"v_lshlrev_b32 v50, 4, v50")
    A(f"v_lshrrev_b32 v51, 5, v{V_LANE}")
    A(f"v_mul_u32_u24 v51, {U_CH}, v51")
    A(f"v_add_u32 v50, v50, v51")
    A(f"v_add_u32 v50, {LDS_U}, v50")
    A(f"ds_write_b128 v50, v[56:59]")
    A(f"v_lshrrev_b32 v50, 1, v{V_LANE}")
    A(f"v_and_b32 v50, 7, v50")
    A(f"v_mul_u32_u24 v50, {KX_COPY}, v50")
    A(f"v_and_b32 v51, 1, v{V_LANE}")
    A(f"v_lshl_add_u32 v50, v51, 4, v50")
    A(f"v_add_u32 v50, {LDS_KX+4096}, v50")
    A(f"ds_write_b128 v50, v[56:59]")
    A(f"{l}:")
    self.conv_setup()
    self.stamp('index done')
    self.xjob_post()
    self.stamp('xjob post')
    self.kgen_setup()
    self.stamp('kgen setup')
    self.kgen_gen()
    self.stamp('kgen')
    if done('kx'):
        self.kexpand()
        A("s_waitcnt lgkmcnt(0)")
        A("s_barrier")
        self.dump_lds(LDS_KX, 36864, 36864); return self.finish()
    self.kexpand()
    self.stamp('kexpand')
    self.x_prepare()
    self.granule_wait()
    self.stamp('x flags')
    if self.xmode=='xt': self.xt_loads()
    self.stats_consume()
    self.stamp('u ready')
    if done('u'):
        self.dump_lds(LDS_U-LDS_U%16, 20480, 20480); return self.finish()
    self.conv()
    self.stamp('conv done')
    self.sync_all()
    self.stamp('sync2 arrive')
    if not self.w1start:
        self.flag_wait(0x3fff, landed=True)
        self.stamp('w1 flags')
    if self.split0:
        lA=self.lab(); lB=self.lab()
        A(f"s_cmp_lg_u32 s{S_W}, 0")
        A(f"s_cbranch_scc1 {lA}")
        self.w1_loads(0,self.split0)
        A(f"s_branch {lB}")
        A(f"{lA}:")
        self.w1_loads(0,28)
        A(f"{lB}:")
    else:
        self.w1_loads(self.w1_in_conv,W1_PRE)
    self.stamp('cs done')
    self.sync_all_wait(sleep=self.msleep)
    self.stamp('sync2 passed')
    if done('w1'):
        self.dump_regs(0,224,'a'); return self.finish()
    if done('conv'): return self.finish()
    self.gemm1()
    self.stamp('gemm1 done')
    self.gemm2()
    return self.finish()

@add_method
def finish(self):
    A=self.A
    if self.ts:
        A("s_waitcnt vmcnt(0)")
        self.stamp('end')
        l=self.lab()
        A(f"s_cmp_lg_u32 s{S_W}, {self.tswave}")
        A(f"s_cbranch_scc1 {l}")
        A("v_mov_b32 v4, 0")
        for k in range(self.nts): A(f"v_writelane_b32 v4, s{86+k}, {k}")
        A(f"v_lshlrev_b32 v5, 2, v{V_LANE}")
        A(f"s_lshl_b32 s{S_T0}, s{S_WG}, 8")
        A(f"s_add_u32 s{S_T0}, s{S_T0}, {WS_TS}")
        A(f"buffer_store_dword v4, v5, s[{SRD_WS}:{SRD_WS+3}], s{S_T0} offen")
        l2=self.lab()
        A(f"s_cmp_lg_u32 s{S_WG}, 0")
        A(f"s_cbranch_scc1 {l2}")
        A(f"global_store_dword v5, v4, s[{S_DBG}:{S_DBG+1}]")
        A(f"{l2}:")
        A(f"{l}:")
    A("L_end:")
    A("s_endpgm")
    self.helper()
    A("L_codeend:")
    body, nfix, probs = hazard_fix(A.L)
    for p in probs: print("HAZARD(backedge):", p, file=sys.stderr)
    errs = wait_lint(body)
    for e in errs[:40]: print("WAITLINT:", e, file=sys.stderr)
    hdr = [
     "; Fused preLN + S4D long-conv + preLN + SwiGLU FFN: one persistent launch, 224 main + 32 helper workgroups (one per CU).",
     "; Generated by the author's own generator script (gen/gen.py); no compiler output.",
     "; Main workgroup wg (< 224): owns channel pair d0 = 2*((wg&7)*28 + (wg>>3)) for the convolution,",
     ";   then tile (i: 128 rows, j: 128 gate/up columns) of GEMM1 and a 64x64 output tile of GEMM2.",
     ";  1. LN1 row statistics of 8 rows per workgroup, published as tagged 8-byte granules in d_ws.",
     ";  2. S4D kernel K[d][p] at the 641 distinct bf16-rounded positions: exp(A dt (r + 8b)) = exp(A dt r) exp(A dt 8b), the sum over",
     ";     the 256 modes is one f16 MFMA product (21 x 32); expanded to 2048 lags in LDS (4 shifted copies).",
     ";  3. causal convolution as block-Toeplitz 16x16x32 f16 MFMAs, h = x + y + u*D, h^T written to d_ws; grid barrier (sharded counters).",
     ";  4. GEMM1 with the weight panel resident in AGPRs, LN2 applied algebraically: g = r (h W - mean * colsum W); SwiGLU epilogue;",
     ";     m is written in MFMA-fragment order; per-row-tile counters hand it over to GEMM2 (split-K over the 4 waves) + residual.",
     "; Helper workgroups (224..255): transpose the weights into MFMA fragments (+ partial column sums), later the LN2 row statistics.",
     "; Hand-offs use write-through (sc1) stores, drained before a tagged flag / counter is published; every spin loop is bounded.",
     "; The tag is derived from the word found in d_ws[0] at entry (only to tell this launch's hand-offs from an earlier launch's).",
     f"; @launch grid=({NGRID},1,1) block=(256,1,1) lds={LDS_TOTAL}",
     '.amdgcn_target "amdgcn-amd-amdhsa--gfx950"',
     ".text", f".globl {KNAME}", ".p2align 8", f".type {KNAME},@function", f"{KNAME}:"]
    ftr = ['.section .rodata,"a"', ".p2align 6", f".amdhsa_kernel {KNAME}",
     "  .amdhsa_next_free_vgpr 512", "  .amdhsa_next_free_sgpr 102", "  .amdhsa_accum_offset 256",
     "  .amdhsa_group_segment_fixed_size 0", "  .amdhsa_kernarg_size 112", "  .amdhsa_user_sgpr_count 2",
     "  .amdhsa_user_sgpr_kernarg_segment_ptr 1", "  .amdhsa_system_sgpr_workgroup_id_x 1",
     ".end_amdhsa_kernel"]
    self.nfix=nfix
    return "\n".join(hdr+body+ftr)+"\n"

if __name__=="__main__":
    import argparse
    ap=argparse.ArgumentParser(); ap.add_argument("-o",default="out.s"); ap.add_argument("--stop",default=None); ap.add_argument("--mimic",type=int,default=2); ap.add_argument("--ts",action="store_true"); ap.add_argument("--perturb",type=float,default=0.0); ap.add_argument("--tsset",default="main"); ap.add_argument("--cyc",action="store_true"); ap.add_argument("--tswave",type=int,default=0); ap.add_argument("--hts",action="store_true"); ap.add_argument("--xmode",default="gather"); ap.add_argument("--wpf",type=int,default=2); ap.add_argument("--w1pf",type=int,default=0); ap.add_argument("--pp",type=int,default=0); ap.add_argument("--bar",type=int,default=16); ap.add_argument("--stl",type=int,default=6); ap.add_argument("--stc",type=int,default=12); ap.add_argument("--split0",type=int,default=0); ap.add_argument("--gidx",default="1,10,19,28,37"); ap.add_argument("--ng0",type=int,default=2); ap.add_argument("--emov",type=int,default=0); ap.add_argument("--wdspan",type=int,default=28); ap.add_argument("--npre2",type=int,default=4); ap.add_argument("--npre",type=int,default=6); ap.add_argument("--w1start",type=int,default=0); ap.add_argument("--w1n",type=int,default=9); ap.add_argument("--w1step",type=int,default=4); ap.add_argument("--fsleep",type=int,default=0); ap.add_argument("--xlate",type=int,default=1); ap.add_argument("--map",type=int,default=1); ap.add_argument("--cs",type=int,default=0); ap.add_argument("--hsleep",type=int,default=0); ap.add_argument("--msleep",type=int,default=0); ap.add_argument("--w1pre",type=int,default=16)
    a=ap.parse_args()
    g=Gen(stop_after=a.stop, mimic=a.mimic, ts=a.ts, perturb=a.perturb)
    if a.tsset=='main': g.tsonly=set(['xjob post','kgen','x flags','u ready','conv done','sync2 arrive','w1 flags','cs done','sync2 passed','gemm1 done','sync3 arrive','early done','late ready','end'])
    if a.cyc: g.tsop='s_memtime'
    g.tswave=a.tswave; g.hts=a.hts; g.xmode=a.xmode; g.pp=a.pp; g.bar=a.bar; g.stl=a.stl; g.stc=a.stc; g.split0=a.split0; g.gidx=tuple(int(x) for x in a.gidx.split(',') if x); g.ng0=a.ng0; g.wdspan=a.wdspan; g.emov=a.emov; g.npre2=a.npre2; g.npre=a.npre; g.w1start=a.w1start; g.w1n=a.w1n; g.w1step=a.w1step; g.fsleep=a.fsleep; g.xlate=a.xlate; g.map=a.map; g.costsched=a.cs; g.hsleep=a.hsleep; g.msleep=a.msleep; g.wpf=a.wpf; g.w1pf=a.w1pf; globals().__setitem__('W1_PRE',a.w1pre)
    if a.tsset=='end': g.tsonly=set(['end'])
    if a.tsset=='g': g.tsonly=set(['sync2 passed','x0','pass0','pass1','pass2','pass3','gemm1 done','sync3 arrive','early done','late ready','late done','red barrier','end'])
    if a.tsset=='start': g.tsonly=set(['kernarg','all issued','index done','xjob post','kgen setup','gen done','wjob post','kmfma','kbar1','kgen','x flags','kexpand','xt landed','u ready','end'])
    txt=g.build()
    open(a.o,"w").write(txt)
    print("wrote",a.o,len(txt.splitlines()),"lines; nops inserted:",g.nfix, "stamps:", g.tsnames, file=sys.stderr)
```

```python
import sys, math
sys.path.insert(0, "gen")
from asmlib import *

KNAME = "sequential_preLN__ssm_conv_s4d__swiglu_ffn__prompt_kernel"
L_, D_, N_, F_ = 2048, 448, 256, 1792
NWG = 224
NGRID = 256

WS_EPOCH = 0
WS_CNT2  = 4096
WS_CNT3  = 12288
WS_STATS = 32768
WS_HT    = 1 << 20
WS_M     = 4 << 20
WS_ST2   = 49152
WS_JF    = 65536
WS_XF    = 196608
WS_CSF   = 131072
WS_CS    = 294912
WS_XT    = 12 << 20
WS_WF1   = 18 << 20
WS_WFD   = 22 << 20
WS_DBG   = 32 << 20
WS_TS    = 16 << 20
WS_SIZE  = 268435456

KG_PITCH = 528
KG_WAVE  = 53 * KG_PITCH
LDS_KX   = 112000
KX_COPY  = 4160
KX_CH    = 4 * KX_COPY
LDS_U    = LDS_KX + 2 * KX_CH
U_CH     = 4608
LDS_XT   = LDS_U + 2 * U_CH
XT_CH    = 4096
LDS_TOTAL = 163840
assert LDS_XT + 2 * XT_CH <= LDS_TOTAL
LDS_JOB = LDS_KX
LDS_CSP = LDS_KX + 32768
assert LDS_CSP + 512 <= LDS_U

S_WG=2
S_X=8; S_LOGA=10; S_AIM=12; S_CR=14; S_CI=16; S_LOGDT=18; S_DSK=20; S_BX=22
S_WGT=24; S_WUP=26; S_WD=28; S_OUT=30; S_DBG=32; S_WS=34
SRD_X=36; SRD_WS=40; SRD_W=44; SRD_W2=48
S_W=52
S_CH=53
S_NH=54
S_D0=55
S_TAG=56
S_I=57; S_J=58
S_T0=60
S_YS=80
S_DSKV=81
S_DT=82
S_W1I=83
S_JDST=84
S_JL=85
S_GW=59
S_JE=78
S_JK=79

LOG2E = 1.4426950408889634
INV2PI = 0.15915494309189535
def f2u(x):
    import struct
    return struct.unpack('<I', struct.pack('<f', x))[0]
def fl(x): return hex(f2u(x))

class Gen:
    def __init__(self, stop_after=None, dbg=False, mimic=2, ts=False, perturb=0.0):
        self.A = Asm(); self.stop_after = stop_after; self.dbg = dbg; self.mimic = mimic
        self.nlab = 0; self.ts=ts; self.nts=0; self.tsnames=[]; self.perturb=perturb; self.tsonly=None; self.xmode='gather'; self.costsched=0; self.map=1; self.xlate=1; self.w1start=0; self.w1_in_conv=0; self.w1n=9; self.w1step=4; self.fsleep=0; self.npre=6; self.wdspan=28; self.emov=0; self.npre2=4; self.gidx=(1,10,19,28,37); self.ng0=2; self.split0=0; self.bar=16; self.stl=6; self.stc=12; self.wdrain=0; self.z8sq=1; self.pp=0; self.hsleep=0; self.msleep=0; self.wpf=2; self.w1pf=0; self.tsop='s_memrealtime'; self.tswave=0
    def stamp(self, name):
        if not self.ts: return
        if self.tsonly is not None and name not in self.tsonly: return
        k=self.nts; self.nts+=1; self.tsnames.append(name); assert k<16
        A=self.A
        A("s_waitcnt lgkmcnt(0)")
        A(f"{self.tsop} s[6:7]")
        A("s_waitcnt lgkmcnt(0)")
        A(f"s_mov_b32 s{86+k}, s6")
    def lab(self, p='L'):
        self.nlab += 1; return f"{p}_{self.nlab}"

    def prologue(self):
        A = self.A
        A(f"s_cmp_ge_u32 s{S_WG}, {NGRID}")
        A("s_cbranch_scc1 L_end")
        if self.ts:
            A(f"{self.tsop} s[6:7]")
            A("s_waitcnt lgkmcnt(0)")
            A("s_mov_b32 s86, s6"); self.nts=1; self.tsnames.append('start')
        A(f"s_load_dwordx16 s[8:23], s[0:1], 0")
        A(f"s_load_dwordx8 s[24:31], s[0:1], 64")
        A(f"s_load_dwordx4 s[32:35], s[0:1], 96")
        A("s_getpc_b64 s[4:5]")
        A("L_pc:")
        A("v_lshlrev_b32 v1, 7, v0")
        A("v_add_u32 v2, 0x8000, v1")
        A("v_min_u32 v1, (L_codeend-L_pc-4), v1")
        A("global_load_dword v255, v1, s[4:5]")
        A("v_min_u32 v2, (L_codeend-L_pc-4), v2")
        A("global_load_dword v254, v2, s[4:5]")
        A("v_lshrrev_b32 v2, 6, v0")
        A("v_and_b32 v1, 63, v0")
        A(f"v_readfirstlane_b32 s{S_W}, v2")
        A(f"s_lshr_b32 s{S_CH}, s{S_W}, 1")
        A(f"s_and_b32 s{S_NH}, s{S_W}, 1")
        A(f"s_cmp_ge_u32 s{S_WG}, {NWG}")
        A("s_cbranch_scc1 L_helper")
        A(f"s_and_b32 s{S_T0}, s{S_WG}, 7")
        A(f"s_mul_i32 s{S_T0}, s{S_T0}, 28")
        A(f"s_lshr_b32 s{S_T0+1}, s{S_WG}, 3")
        A(f"s_add_u32 s{S_T0}, s{S_T0}, s{S_T0+1}")
        A(f"s_lshl_b32 s{S_D0}, s{S_T0}, 1")
        if self.map==0:
            A(f"s_mul_i32 s{S_T0+2}, s{S_T0+1}, 37")
            A(f"s_lshr_b32 s{S_T0+2}, s{S_T0+2}, 8")
            A(f"s_mul_i32 s{S_T0+3}, s{S_T0+2}, 7")
            A(f"s_sub_u32 s{S_T0+3}, s{S_T0+1}, s{S_T0+3}")
            A(f"s_and_b32 s{S_T0+4}, s{S_WG}, 7")
            A(f"s_lshr_b32 s{S_T0+5}, s{S_T0+4}, 1")
            A(f"s_lshl_b32 s{S_T0+5}, s{S_T0+5}, 2")
            A(f"s_add_u32 s{S_I}, s{S_T0+5}, s{S_T0+2}")
            A(f"s_and_b32 s{S_T0+4}, s{S_T0+4}, 1")
            A(f"s_mul_i32 s{S_T0+4}, s{S_T0+4}, 7")
            A(f"s_add_u32 s{S_J}, s{S_T0+4}, s{S_T0+3}")
        else:
            A(f"s_and_b32 s{S_T0+2}, s{S_WG}, 3")
            A(f"s_mul_i32 s{S_T0+2}, s{S_T0+2}, 28")
            A(f"s_add_u32 s{S_T0+2}, s{S_T0+2}, s{S_T0+1}")
            A(f"s_lshr_b32 s{S_J}, s{S_T0+2}, 3")
            A(f"s_and_b32 s{S_T0+2}, s{S_T0+2}, 7")
            A(f"s_bfe_u32 s{S_T0+3}, s{S_WG}, 0x10002")
            A(f"s_lshl_b32 s{S_T0+3}, s{S_T0+3}, 3")
            A(f"s_add_u32 s{S_I}, s{S_T0+2}, s{S_T0+3}")

def q7check():
    for q in range(28): assert (q*37)>>8 == q//7, q
q7check()

def add_method(f):
    setattr(Gen, f.__name__, f); return f

V_LANE=1
V_T=0
V_ZERO=2
V_XG=8
V_OFF=16
V_EP=27
V_PA=28
V_SX=36
V_TMP=48

@add_method
def phase0_loads(self):
    A=self.A
    A("s_waitcnt lgkmcnt(0)")
    self.stamp('kernarg')
    A(f"s_mov_b32 s{SRD_X}, s{S_X}\ns_mov_b32 s{SRD_X+1}, s{S_X+1}\ns_mov_b32 s{SRD_X+2}, {L_*D_*2}\ns_mov_b32 s{SRD_X+3}, 0x20000")
    A(f"s_mov_b32 s{SRD_WS}, s{S_WS}\ns_mov_b32 s{SRD_WS+1}, s{S_WS+1}\ns_mov_b32 s{SRD_WS+2}, {WS_SIZE}\ns_mov_b32 s{SRD_WS+3}, 0x20000")
    A(f"v_mov_b32 v{V_ZERO}, 0")
    self.job_roles()
    l=self.lab()
    A(f"s_cmp_lg_u32 s{S_WG}, {NWG-1}")
    A(f"s_cbranch_scc1 {l}")
    self.zero_counters_body()
    A(f"{l}:")
    self.xjob_issue()
    A(f"s_add_u32 s{S_T0+3}, s{S_D0}, s{S_CH}")
    A(f"s_lshl_b32 s{S_T0+3}, s{S_T0+3}, 9")
    A(f"s_lshl_b32 s{S_T0+4}, s{S_NH}, 8")
    A(f"s_add_u32 s{S_T0+3}, s{S_T0+3}, s{S_T0+4}")
    A(f"v_lshl_add_u32 v8, v{V_LANE}, 2, s{S_T0+3}")
    A(f"v_xor_b32 v9, 256, v8")
    A(f"global_load_dword v{V_PA}, v8, s[{S_LOGA}:{S_LOGA+1}]")
    A(f"global_load_dword v{V_PA+1}, v8, s[{S_AIM}:{S_AIM+1}]")
    A(f"global_load_dword v{V_PA+2}, v8, s[{S_CR}:{S_CR+1}]")
    A(f"global_load_dword v{V_PA+3}, v8, s[{S_CI}:{S_CI+1}]")
    A(f"global_load_dword v{V_PA+4}, v9, s[{S_CR}:{S_CR+1}]")
    A(f"global_load_dword v{V_PA+5}, v9, s[{S_CI}:{S_CI+1}]")
    A(f"s_lshl_b32 s{S_T0+4}, s{S_D0}, 1")
    A(f"s_load_dword s{S_DT}, s[{S_LOGDT}:{S_LOGDT+1}], s{S_T0+4}")
    A(f"s_load_dword s{S_DSKV}, s[{S_DSK}:{S_DSK+1}], s{S_T0+4}")
    A(f"global_load_dword v{V_EP}, v{V_ZERO}, s[{S_WS}:{S_WS+1}] sc1")
    if self.xmode=='gather':
        self.gl=self.gather_items(); self.gi=0
        for _ in range(self.ng0): A(self.gl[self.gi]); self.gi+=1
    if self.wpf:
        lpf=self.lab()
        A(f"s_cmp_ge_u32 s{S_W}, {self.wpf}")
        A(f"s_cbranch_scc1 {lpf}")
        A(f"s_cmp_eq_u32 s{S_W}, 0")
        A(f"s_cselect_b32 s{SRD_W}, s{S_WGT}, s{S_WUP}")
        A(f"s_cselect_b32 s{SRD_W+1}, s{S_WGT+1}, s{S_WUP+1}")
        A(f"s_cmp_eq_u32 s{S_W}, 2")
        A(f"s_cselect_b32 s{SRD_W}, s{S_WD}, s{SRD_W}")
        A(f"s_cselect_b32 s{SRD_W+1}, s{S_WD+1}, s{SRD_W+1}")
        A(f"s_mov_b32 s{SRD_W+2}, {D_*F_*2}")
        A(f"s_mov_b32 s{SRD_W+3}, 0x20000")
        A(f"v_min_u32 v5, 55, v{V_LANE}")
        A(f"v_lshlrev_b32 v5, 7, v5")
        A(f"s_mul_i32 s{S_T0}, s{S_WG}, {56*128}")
        A(f"buffer_load_dword v253, v5, s[{SRD_W}:{SRD_W+3}], s{S_T0} offen")
        A(f"{lpf}:")
    self.stamp('all issued')
    A(f"s_mul_i32 s{S_T0+5}, s{S_W}, {KG_WAVE}")
    A(f"v_and_b32 v182, 31, v{V_LANE}")
    A(f"v_lshrrev_b32 v183, 5, v{V_LANE}")
    A(f"v_lshlrev_b32 v176, 4, v182")
    A(f"v_lshl_add_u32 v176, v183, 3, v176")
    A(f"v_add_u32 v176, s{S_T0+5}, v176")
    A(f"v_lshlrev_b32 v177, 3, v182")
    A(f"v_add_u32 v177, 512, v177")
    A(f"v_lshlrev_b32 v178, 2, v182")
    A(f"v_add_u32 v178, 768, v178")
    A(f"v_cmp_eq_u32 vcc, 1, v183")
    A(f"v_cndmask_b32 v177, v177, v178, vcc")
    A(f"v_add_u32 v177, s{S_T0+5}, v177")
    A(f"v_mov_b32 v178, 4")
    A(f"v_mov_b32 v179, 128")
    A(f"v_cndmask_b32 v178, v178, v179, vcc")
    A(f"v_add_u32 v178, v177, v178")
    A(f"v_lshlrev_b32 v179, 1, v182")
    A(f"v_lshl_add_u32 v179, v183, 8, v179")
    A(f"v_add_u32 v179, s{S_T0+5}, v179")
    A(f"v_lshlrev_b32 v48, 3, v{V_T}")
    for x in range(11):
        o=V_OFF+x
        A(f"v_sub_u32 v49, {2047-x}, v48")
        A(f"v_cvt_f32_i32 v50, v49")
        A(f"v_cvt_pk_bf16_f32 v50, v50, v50")
        A(f"v_and_b32 v50, 0xffff, v50")
        A(f"v_subrev_u32 v50, 17024, v50")
        A(f"v_cmp_gt_i32 vcc, 128, v49")
        A(f"v_cndmask_b32 v50, v50, v49, vcc")
        if x>=8:
            A(f"v_cmp_gt_i32 vcc, 0, v49")
            A(f"v_mov_b32 v51, 768")
            A(f"v_cndmask_b32 v50, v50, v51, vcc")
        A(f"v_lshlrev_b32 v{o}, 1, v50")

NWJ = 588
LDS_XB = LDS_JOB + 3*8192

@add_method
def job_roles(self):
    A=self.A
    A(f"s_mul_i32 s{S_T0}, s{S_W}, 224")
    A(f"s_add_u32 s{S_GW}, s{S_T0}, s{S_WG}")
    A(f"s_lshl_b32 s{S_JL}, s{S_W}, 13")
    A(f"s_add_u32 s{S_JL}, s{S_JL}, {LDS_JOB}")

V_SR=64
@add_method
def xjob_issue(self):
    A=self.A
    A(f"v_bfe_u32 v50, v{V_LANE}, 4, 1")
    A(f"v_lshrrev_b32 v51, 5, v{V_LANE}")
    A(f"v_mul_u32_u24 v51, {224*8}, v51")
    A(f"v_add_u32 v50, v50, v51")
    A(f"s_lshl_b32 s{S_T0}, s{S_WG}, 3")
    A(f"s_lshl_b32 s{S_T0+1}, s{S_W}, 1")
    A(f"s_add_u32 s{S_T0}, s{S_T0}, s{S_T0+1}")
    A(f"v_add_u32 v50, s{S_T0}, v50")
    A(f"v_mul_u32_u24 v50, 896, v50")
    A(f"v_and_b32 v51, 15, v{V_LANE}")
    A(f"v_lshl_add_u32 v50, v51, 4, v50")
    A(f"v_mov_b32 v52, 0x10000000")
    A(f"v_cmp_gt_u32 vcc, 8, v51")
    A(f"v_cndmask_b32 v52, v52, v50, vcc")
    for k in range(3):
        A(f"buffer_load_dwordx4 v[{V_SR+4*k}:{V_SR+4*k+3}], v50, s[{SRD_X}:{SRD_X+3}], 0 offen offset:{256*k}")
    A(f"buffer_load_dwordx4 v[{V_SR+12}:{V_SR+15}], v52, s[{SRD_X}:{SRD_X+3}], 0 offen offset:768")

@add_method
def gather_items(self):
    A=self.A
    A(f"s_lshl_b32 s{S_T0+14}, s{S_D0}, 1")
    A(f"s_movk_i32 s{S_T0+15}, 7168")
    A(f"v_mul_lo_u32 v4, v{V_T}, s{S_T0+15}")
    A(f"v_add_u32 v4, s{S_T0+14}, v4")
    A(f"s_movk_i32 s{S_T0+15}, 4480")
    out=[]
    for j in range(8):
        if j<5: out.append(f"buffer_load_dword v{V_XG+j}, v4, s[{SRD_X}:{SRD_X+3}], 0 offen offset:{j*896}")
        else:   out.append(f"buffer_load_dword v{V_XG+j}, v4, s[{SRD_X}:{SRD_X+3}], s{S_T0+15} offen offset:{(j-5)*896}")
    return out

@add_method
def xjob_post(self):
    A=self.A
    gather=(self.xmode=='gather')
    if self.wpf:
        lw=self.lab(); lc=self.lab()
        A(f"s_cmp_ge_u32 s{S_W}, {self.wpf}")
        A(f"s_cbranch_scc1 {lw}")
        A(f"s_waitcnt vmcnt({self.ng0+1}) lgkmcnt(0)")
        A(f"s_branch {lc}")
        A(f"{lw}:")
        A(f"s_waitcnt vmcnt({self.ng0}) lgkmcnt(0)")
        A(f"{lc}:")
    else:
        A(f"s_waitcnt vmcnt({2 if gather else 0}) lgkmcnt(0)")
    A(f"v_readfirstlane_b32 s{S_TAG}, v{V_EP}")
    A(f"s_add_u32 s{S_TAG}, s{S_TAG}, 0x9E3779B9")
    J=V_SR
    if not gather:
        A(f"v_bfe_u32 v50, v{V_LANE}, 4, 1")
        A(f"s_lshl_b32 s{S_T0}, s{S_W}, 1")
        A(f"v_add_u32 v50, s{S_T0}, v50")
        A(f"v_mul_u32_u24 v50, 896, v50")
        A(f"v_lshrrev_b32 v51, 5, v{V_LANE}")
        A(f"v_mul_u32_u24 v51, 7168, v51")
        A(f"v_add_u32 v50, v50, v51")
        A(f"v_and_b32 v51, 15, v{V_LANE}")
        A(f"v_lshl_add_u32 v50, v51, 4, v50")
        A(f"v_add_u32 v50, {LDS_XB}, v50")
        for k in range(3): A(f"ds_write_b128 v50, v[{J+4*k}:{J+4*k+3}] offset:{k*256}")
        A("s_mov_b32 exec_lo, 0x00ff00ff\ns_mov_b32 exec_hi, 0x00ff00ff")
        A(f"ds_write_b128 v50, v[{J+12}:{J+15}] offset:768")
        A("s_mov_b64 exec, -1")
    A("v_mov_b32 v54, 0x3f803f80")
    for i in range(16):
        c1="0" if i<2 else f"v{56+(i&1)}"; c2="0" if i<2 else f"v{58+(i&1)}"
        A(f"v_dot2_f32_bf16 v{56+(i&1)}, v{J+i}, v54, {c1}")
        A(f"v_dot2_f32_bf16 v{58+(i&1)}, v{J+i}, v{J+i}, {c2}")
    A(f"v_bfe_u32 v42, v{V_LANE}, 4, 1")
    A(f"v_lshlrev_b32 v42, 3, v42")
    A(f"v_lshrrev_b32 v39, 5, v{V_LANE}")
    A(f"v_mul_u32_u24 v39, {224*64}, v39")
    A(f"v_add_u32 v42, v42, v39")
    A(f"s_lshl_b32 s{S_T0+10}, s{S_WG}, 6")
    A(f"s_lshl_b32 s{S_T0+9}, s{S_W}, 4")
    A(f"s_add_u32 s{S_T0+10}, s{S_T0+10}, s{S_T0+9}")
    A(f"s_add_u32 s{S_T0+10}, s{S_T0+10}, {WS_STATS}")
    A("v_add_f32 v56, v56, v57\nv_add_f32 v57, v58, v59")
    for mode in ["row_shr:1","row_shr:2","row_shr:4","row_shr:8"]:
        A(f"v_add_f32_dpp v56, v56, v56 {mode} row_mask:0xf bank_mask:0xf bound_ctrl:0"); A(f"v_add_f32_dpp v57, v57, v57 {mode} row_mask:0xf bank_mask:0xf bound_ctrl:0")
    A(f"v_mul_f32 v56, {fl(1.0/448)}, v56")
    A(f"v_mul_f32 v57, {fl(1.0/448)}, v57")
    A("v_fma_f32 v57, -v56, v56, v57")
    A("v_max_f32 v57, 0, v57")
    A("v_cvt_pk_bf16_f32 v57, v57, v57")
    A("v_lshlrev_b32 v57, 16, v57")
    A(f"v_add_f32 v57, {fl(1e-5)}, v57")
    A("v_cvt_pk_bf16_f32 v57, v57, v57")
    A("v_lshlrev_b32 v57, 16, v57")
    A("v_sqrt_f32 v57, v57")
    A(f"v_mov_b32 v41, s{S_TAG}")
    A(f"v_cvt_pk_bf16_f32 v40, v57, v56")
    A(f"s_cmp_lt_u32 s{S_WG}, 32")
    A(f"s_cselect_b32 exec_hi, 0x80008000, 0")
    A("s_mov_b32 exec_lo, 0x80008000")
    A(f"buffer_store_dwordx2 v[40:41], v42, s[{SRD_WS}:{SRD_WS+3}], s{S_T0+10} offen sc1")
    A("s_mov_b64 exec, -1")
    if gather: return
    A("s_waitcnt lgkmcnt(0)")
    A("s_barrier")
    X=80
    A(f"v_bfe_u32 v52, v{V_LANE}, 2, 2")
    A(f"v_mul_u32_u24 v52, 896, v52")
    A(f"v_lshrrev_b32 v53, 4, v{V_LANE}")
    A(f"v_lshl_add_u32 v52, v53, 5, v52")
    A(f"v_and_b32 v53, 3, v{V_LANE}")
    A(f"v_lshl_add_u32 v52, v53, 3, v52")
    A(f"s_lshl_b32 s{S_T0+1}, s{S_W}, 7")
    A(f"s_add_u32 s{S_T0+1}, s{S_T0+1}, {LDS_XB}")
    A(f"v_add_u32 v52, s{S_T0+1}, v52")
    for k in range(2):
        o=7168*k; x=X+8*k
        A(f"ds_read_b64_tr_b16 v[{x}:{x+1}], v52 offset:{o}")
        A(f"ds_read_b64_tr_b16 v[{x+2}:{x+3}], v52 offset:{o+4*896}")
        A(f"ds_read_b64_tr_b16 v[{x+4}:{x+5}], v52 offset:{o+512}")
        A(f"ds_read_b64_tr_b16 v[{x+6}:{x+7}], v52 offset:{o+512+4*896}")
    A(f"v_lshlrev_b32 v53, 4, v{V_LANE}")
    A(f"s_mul_i32 s{S_T0+2}, s{S_WG}, 7168")
    A(f"s_lshl_b32 s{S_T0+3}, s{S_W}, 10")
    A(f"s_add_u32 s{S_T0+2}, s{S_T0+2}, s{S_T0+3}")
    A(f"s_add_u32 s{S_T0+2}, s{S_T0+2}, {WS_XT}")
    def st(x,extra):
        A(f"s_add_u32 s{S_T0+3}, s{S_T0+2}, {extra}")
        A(f"buffer_store_dwordx4 v[{x}:{x+3}], v53, s[{SRD_WS}:{SRD_WS+3}], s{S_T0+3} offen sc1")
    l3=self.lab(); l32=self.lab()
    A("s_waitcnt lgkmcnt(6)")
    st(X,0)
    A(f"s_cmp_eq_u32 s{S_W}, 3")
    A(f"s_cbranch_scc1 {l3}")
    A("s_waitcnt lgkmcnt(4)")
    st(X+4,4096)
    A(f"{l3}:")
    A(f"s_cmp_ge_u32 s{S_WG}, 32")
    A(f"s_cbranch_scc1 {l32}")
    A("s_waitcnt lgkmcnt(0)")
    st(X+8,224*7168)
    A(f"s_cmp_eq_u32 s{S_W}, 3")
    A(f"s_cbranch_scc1 {l32}")
    st(X+12,224*7168+4096)
    A(f"{l32}:")
    A("s_waitcnt lgkmcnt(0)")

@add_method
def xflag_publish(self):
    A=self.A
    A("s_waitcnt vmcnt(0)")
    A(f"s_lshl_b32 s{S_T0+10}, s{S_WG}, 2")
    A(f"s_add_u32 s{S_T0+10}, s{S_T0+10}, s{S_W}")
    A(f"s_lshl_b32 s{S_T0+10}, s{S_T0+10}, 6")
    A(f"s_add_u32 s{S_T0+10}, s{S_T0+10}, {WS_XF}")
    A(f"v_mul_u32_u24 v42, {224*4*64}, v{V_LANE}")
    A(f"v_mov_b32 v41, s{S_TAG}")
    A(f"s_cmp_lt_u32 s{S_WG}, 32")
    A(f"s_cselect_b32 exec_lo, 3, 1")
    A("s_mov_b32 exec_hi, 0")
    A(f"buffer_store_dword v41, v42, s[{SRD_WS}:{SRD_WS+3}], s{S_T0+10} offen sc1")
    A("s_mov_b64 exec, -1")

@add_method
def zero_counters_body(self):
    A=self.A; l=self.lab()
    A(f"s_cmp_lg_u32 s{S_W}, 3")
    A(f"s_cbranch_scc1 {l}")
    A(f"v_lshlrev_b32 v3, 7, v{V_LANE}")
    A(f"s_mov_b32 s{S_T0+5}, {WS_CNT2}")
    A(f"buffer_store_dword v{V_ZERO}, v3, s[{SRD_WS}:{SRD_WS+3}], s{S_T0+5} offen sc1")
    A(f"s_mov_b32 s{S_T0+5}, {WS_CNT3}")
    A(f"buffer_store_dword v{V_ZERO}, v3, s[{SRD_WS}:{SRD_WS+3}], s{S_T0+5} offen sc1")
    A(f"{l}:")

S_HY=64; S_HL=65; S_HD=66; S_HE=67; S_HK=68; S_HRET=70
S_HSTR=69; S_HG=72; S_HP=73
@add_method
def wjob_params(self):
    A=self.A; ld=self.lab('Lwd'); lc=self.lab('Lwc'); T=S_T0
    A(f"s_cmp_ge_u32 s{S_HY}, 392")
    A(f"s_cbranch_scc1 {ld}")
    A(f"s_cmp_ge_u32 s{S_HY}, 196")
    A(f"s_cselect_b32 s{SRD_W}, s{S_WUP}, s{S_WGT}")
    A(f"s_cselect_b32 s{SRD_W+1}, s{S_WUP+1}, s{S_WGT+1}")
    A(f"s_cselect_b32 s{T+1}, 1, 0")
    A(f"s_mul_i32 s{T+2}, s{T+1}, 196")
    A(f"s_sub_u32 s{T+2}, s{S_HY}, s{T+2}")
    A(f"s_mul_i32 s{S_HP}, s{T+2}, 9363")
    A(f"s_lshr_b32 s{S_HP}, s{S_HP}, 16")
    A(f"s_mul_i32 s{S_HG}, s{S_HP}, 7")
    A(f"s_sub_u32 s{S_HG}, s{T+2}, s{S_HG}")
    A(f"s_movk_i32 s{S_HSTR}, 3584")
    A(f"s_lshl_b32 s{T+2}, s{S_HP}, 2")
    A(f"s_add_u32 s{T+2}, s{T+2}, s{T+1}")
    A(f"s_mul_i32 s{T+2}, s{T+2}, 28")
    A(f"s_lshl_b32 s{T+3}, s{S_HG}, 2")
    A(f"s_add_u32 s{T+2}, s{T+2}, s{T+3}")
    A(f"s_lshl_b32 s{T+2}, s{T+2}, 10")
    A(f"s_add_u32 s{S_HD}, s{T+2}, {WS_WF1}")
    A(f"s_mov_b32 s{S_HE}, {56*1024}")
    A(f"s_mov_b32 s{S_HK}, 4")
    A(f"s_branch {lc}")
    A(f"{ld}:")
    A(f"s_mov_b32 s{SRD_W}, s{S_WD}")
    A(f"s_mov_b32 s{SRD_W+1}, s{S_WD+1}")
    A(f"s_sub_u32 s{T+2}, s{S_HY}, 392")
    A(f"s_mul_i32 s{S_HP}, s{T+2}, 2341")
    A(f"s_lshr_b32 s{S_HP}, s{S_HP}, 16")
    A(f"s_mul_i32 s{S_HG}, s{S_HP}, 28")
    A(f"s_sub_u32 s{S_HG}, s{T+2}, s{S_HG}")
    A(f"s_movk_i32 s{S_HSTR}, 896")
    A(f"s_mul_i32 s{T+2}, s{S_HP}, 224")
    A(f"s_lshl_b32 s{T+3}, s{S_HG}, 2")
    A(f"s_add_u32 s{T+2}, s{T+2}, s{T+3}")
    A(f"s_lshl_b32 s{T+2}, s{T+2}, 10")
    A(f"s_add_u32 s{S_HD}, s{T+2}, {WS_WFD}")
    A(f"s_mov_b32 s{S_HE}, {112*1024}")
    A(f"s_mov_b32 s{S_HK}, 8")
    A(f"{lc}:")

for _u in range(196): assert (_u*9363)>>16 == _u//7
for _u in range(196): assert (_u*2341)>>16 == _u//28

@add_method
def helper(self):
    A=self.A; T=S_T0
    A("L_helper:")
    hs=[0]
    def hstamp():
        if not (self.ts and getattr(self,'hts',False)): return
        A(f"{self.tsop} s[6:7]"); A("s_waitcnt lgkmcnt(0)"); A(f"v_writelane_b32 v200, s6, {hs[0]}"); hs[0]+=1
    A("s_waitcnt lgkmcnt(0)")
    if self.ts and getattr(self,'hts',False):
        A("v_mov_b32 v200, 0"); A("v_writelane_b32 v200, s86, 0"); hs[0]=1
    hstamp()
    A(f"s_mov_b32 s{SRD_WS}, s{S_WS}\ns_mov_b32 s{SRD_WS+1}, s{S_WS+1}\ns_mov_b32 s{SRD_WS+2}, {WS_SIZE}\ns_mov_b32 s{SRD_WS+3}, 0x20000")
    A(f"s_mov_b32 s{SRD_W+2}, {D_*F_*2}")
    A(f"s_mov_b32 s{SRD_W+3}, 0x20000")
    A(f"v_mov_b32 v{V_ZERO}, 0")
    A(f"global_load_dword v{V_EP}, v{V_ZERO}, s[{S_WS}:{S_WS+1}] sc1")
    A(f"s_sub_u32 s{S_GW}, s{S_WG}, {NWG}")
    A(f"s_lshl_b32 s{S_GW}, s{S_GW}, 2")
    A(f"s_add_u32 s{S_GW}, s{S_GW}, s{S_W}")
    A(f"s_mul_i32 s{S_JL}, s{S_W}, 40960")
    A(f"v_lshrrev_b32 v40, 3, v{V_LANE}")
    A(f"v_bfe_u32 v49, v{V_LANE}, 4, 1")
    A(f"v_lshlrev_b32 v49, 2, v49")
    A(f"v_and_b32 v50, 7, v{V_LANE}")
    A(f"v_xor_b32 v49, v49, v50")
    A(f"v_lshlrev_b32 v41, 4, v49")
    A(f"v_bfe_u32 v51, v{V_LANE}, 2, 2")
    A(f"v_lshlrev_b32 v42, 7, v51")
    A(f"v_lshrrev_b32 v51, 1, v51")
    A(f"v_lshlrev_b32 v51, 2, v51")
    A(f"v_bfe_u32 v52, v{V_LANE}, 4, 1")
    A(f"v_bfe_u32 v53, v{V_LANE}, 1, 1")
    A(f"v_lshl_add_u32 v52, v52, 1, v53")
    A(f"v_xor_b32 v51, v51, v52")
    A(f"v_lshl_add_u32 v42, v51, 4, v42")
    A(f"v_and_b32 v51, 1, v{V_LANE}")
    A(f"v_lshl_add_u32 v42, v51, 3, v42")
    A(f"v_lshrrev_b32 v43, 5, v{V_LANE}")
    A(f"v_lshlrev_b32 v54, 4, v{V_LANE}")
    A(f"v_mul_u32_u24 v58, {2*896}, v43")
    A(f"v_and_b32 v59, 31, v{V_LANE}")
    A(f"v_lshl_add_u32 v58, v59, 2, v58")
    def call(lbl):
        A(f"s_getpc_b64 s[{T+14}:{T+15}]")
        r=self.lab('Lr')
        A(f"{r}:")
        A(f"s_add_u32 s{T+14}, s{T+14}, ({lbl}-{r})")
        A(f"s_addc_u32 s{T+15}, s{T+15}, (({lbl}-{r})>>31)")
        A(f"s_swappc_b64 s[{S_HRET}:{S_HRET+1}], s[{T+14}:{T+15}]")
    NS=9
    def setjob_y(expr_add, clamp):
        A(f"s_add_u32 s{S_HY}, s{S_GW}, {expr_add}")
        A(f"s_min_u32 s{S_HY}, s{S_HY}, {clamp}")
    def job(n,kind):
        if kind=='w1': setjob_y(128*n, 391)
        else: setjob_y(392+128*(n-4), NWJ-1)
        A(f"s_add_u32 s{S_HL}, s{S_JL}, {8192*(n if n<4 else n-4)}")
    def flag_cur():
        A(f"s_lshl_b32 s{T+10}, s{S_HY}, 6")
        A(f"s_add_u32 s{T+10}, s{T+10}, {WS_JF}")
        A(f"v_mov_b32 v47, s{S_TAG}")
        A("s_mov_b64 exec, 1")
        A(f"buffer_store_dword v47, v{V_ZERO}, s[{SRD_WS}:{SRD_WS+3}], s{T+10} offen sc1")
        A("s_mov_b64 exec, -1")
    def batch(ns, kind):
        k=len(ns); st = NS if kind=='w1' else 8
        for n in ns: job(n,kind); call("L_hissue")
        hstamp()
        for i,n in enumerate(ns):
            job(n,kind); A(f"s_waitcnt vmcnt({8*(k-1-i)+st*i})"); call("L_hpost")
            if i==0 and kind=='w1':
                A(f"v_readfirstlane_b32 s{S_TAG}, v{V_EP}")
                A(f"s_add_u32 s{S_TAG}, s{S_TAG}, 0x9E3779B9")
        hstamp()
        for i,n in enumerate(ns):
            A(f"s_waitcnt vmcnt({st*(k-1-i)+i})")
            job(n,kind); flag_cur()
        hstamp()
    l4=self.lab('Lh4'); lb=self.lab('Lhb')
    A(f"s_cmp_lt_u32 s{S_GW}, 8")
    A(f"s_cbranch_scc1 {l4}")
    batch([0,1,2],'w1')
    A(f"s_branch {lb}")
    A(f"{l4}:")
    sv=hs[0]; hs[0]=2
    batch([0,1,2,3],'w1')
    hs[0]=sv
    A(f"{lb}:")
    batch([4,5],'wd')
    lp=self.lab('Lpoll'); le=self.lab()
    A(f"s_mov_b32 s{T+1}, 0")
    A(f"s_mov_b32 s{T}, {WS_STATS+(8*(NWG-1)+6)*8+4}")
    A(f"{lp}:")
    A(f"buffer_load_dword v49, v{V_ZERO}, s[{SRD_WS}:{SRD_WS+3}], s{T} offen sc1")
    A("s_waitcnt vmcnt(0)")
    A(f"v_cmp_ne_u32 vcc, s{S_TAG}, v49")
    A(f"s_add_u32 s{T+1}, s{T+1}, 1")
    A(f"s_cbranch_vccz {le}")
    A(f"s_cmp_lt_u32 s{T+1}, 0x8000")
    A(f"s_cbranch_scc1 {lp}")
    A(f"{le}:")
    self.sync_all_wait(sleep=self.hsleep)
    hstamp()
    A(f"s_sub_u32 s{T}, s{S_WG}, {NWG}")
    A(f"s_mul_i32 s{T}, s{T}, 57344")
    A(f"s_mul_i32 s{T+1}, s{S_W}, 14336")
    A(f"s_add_u32 s{T}, s{T}, s{T+1}")
    A(f"s_add_u32 s{T}, s{T}, {WS_HT}")
    for k in range(14):
        if k%4==0:
            A(f"s_add_u32 s{T+2}, s{T}, {k*1024}")
            A(f"s_add_u32 m0, s{T+1}, {k*1024}")
        A(f"buffer_load_dwordx4 v54, s[{SRD_WS}:{SRD_WS+3}], s{T+2} offen offset:{(k%4)*1024} sc1 lds")
    A(f"v_lshlrev_b32 v50, 9, v43")
    A(f"v_bfe_u32 v51, v{V_LANE}, 2, 2")
    A(f"v_lshl_add_u32 v50, v51, 6, v50")
    A(f"v_bfe_u32 v51, v{V_LANE}, 4, 1")
    A(f"v_lshl_add_u32 v50, v51, 5, v50")
    A(f"v_and_b32 v51, 3, v{V_LANE}")
    A(f"v_lshl_add_u32 v50, v51, 3, v50")
    A(f"v_add_u32 v50, s{T+1}, v50")
    A("v_mov_b32 v55, 0x3f803f80")
    for k0 in range(0,14,2):
        A(f"s_waitcnt vmcnt({12-k0})")
        for k in (k0,k0+1):
            r=64+4*(k%4)
            A(f"ds_read_b64_tr_b16 v[{r}:{r+1}], v50 offset:{k*1024}")
            A(f"ds_read_b64_tr_b16 v[{r+2}:{r+3}], v50 offset:{k*1024+256}")
        A("s_waitcnt lgkmcnt(0)")
        for k in (k0,k0+1):
            r=64+4*(k%4)
            for d in range(4):
                i=4*k+d
                c1="0" if i<2 else f"v{56+(i&1)}"; c2="0" if i<2 else f"v{58+(i&1)}"
                A(f"v_dot2_f32_bf16 v{56+(i&1)}, v{r+d}, v55, {c1}")
                A(f"v_dot2_f32_bf16 v{58+(i&1)}, v{r+d}, v{r+d}, {c2}")
    A("s_nop 2")
    A("v_add_f32 v56, v56, v57\nv_add_f32 v57, v58, v59")
    A("v_mov_b32 v58, v56\nv_mov_b32 v59, v57")
    A("v_permlane32_swap_b32 v56, v58\nv_permlane32_swap_b32 v57, v59")
    A("v_add_f32 v56, v56, v58\nv_add_f32 v57, v57, v59")
    A(f"v_and_b32 v60, 31, v{V_LANE}")
    A(f"v_lshlrev_b32 v61, 4, v60")
    A(f"s_lshr_b32 s{T+3}, s{S_W}, 1")
    A(f"s_lshl_b32 s{T+3}, s{T+3}, 9")
    A(f"s_add_u32 s{T+3}, s{T+3}, 65536")
    A(f"v_add_u32 v61, s{T+3}, v61")
    A(f"s_and_b32 s{T+4}, s{S_W}, 1")
    A(f"s_lshl_b32 s{T+4}, s{T+4}, 3")
    A(f"v_add_u32 v62, s{T+4}, v61")
    A("ds_write_b64 v62, v[56:57]")
    A("s_waitcnt lgkmcnt(0)")
    A("s_barrier")
    lz=self.lab()
    A(f"s_cmp_lg_u32 s{T+4}, 0")
    A(f"s_cbranch_scc1 {lz}")
    A("ds_read_b128 v[64:67], v61")
    A("s_waitcnt lgkmcnt(0)")
    A("v_add_f32 v64, v64, v66\nv_add_f32 v65, v65, v67")
    A(f"v_mul_f32 v64, {fl(1.0/448)}, v64")
    A(f"v_mul_f32 v65, {fl(1.0/448)}, v65")
    A("v_fma_f32 v65, -v64, v64, v65")
    A("v_max_f32 v65, 0, v65")
    A("v_cvt_pk_bf16_f32 v65, v65, v65")
    A("v_lshlrev_b32 v65, 16, v65")
    A(f"v_add_f32 v65, {fl(1e-5)}, v65")
    A("v_cvt_pk_bf16_f32 v65, v65, v65")
    A("v_lshlrev_b32 v65, 16, v65")
    A("v_sqrt_f32 v65, v65")
    A("v_cvt_pk_bf16_f32 v66, v65, v64")
    A(f"v_mov_b32 v67, s{S_TAG}")
    A(f"v_lshlrev_b32 v68, 3, v60")
    A(f"s_sub_u32 s{T+5}, s{S_WG}, {NWG}")
    A(f"s_lshl_b32 s{T+5}, s{T+5}, 1")
    A(f"s_lshr_b32 s{T+6}, s{S_W}, 1")
    A(f"s_add_u32 s{T+5}, s{T+5}, s{T+6}")
    A(f"s_lshl_b32 s{T+5}, s{T+5}, 8")
    A(f"s_add_u32 s{T+5}, s{T+5}, {WS_ST2}")
    A("s_mov_b32 exec_hi, 0")
    A(f"buffer_store_dwordx2 v[66:67], v68, s[{SRD_WS}:{SRD_WS+3}], s{T+5} offen sc1")
    A("s_mov_b32 exec_hi, -1")
    A(f"{lz}:")
    hstamp()
    if self.ts and getattr(self,'hts',False):
        l=self.lab()
        A(f"s_cmp_lg_u32 s{S_W}, 0")
        A(f"s_cbranch_scc1 {l}")
        A(f"v_lshlrev_b32 v5, 2, v{V_LANE}")
        A(f"s_lshl_b32 s{T}, s{S_WG}, 8")
        A(f"s_add_u32 s{T}, s{T}, {WS_TS}")
        A(f"buffer_store_dword v200, v5, s[{SRD_WS}:{SRD_WS+3}], s{T} offen")
        A(f"{l}:")
    A("s_endpgm")
    A("L_hissue:")
    self.wjob_params()
    A(f"v_mul_lo_u32 v48, v40, s{S_HSTR}")
    A(f"v_add_u32 v48, v48, v41")
    A(f"s_lshl_b32 s{T+6}, s{S_HG}, 6")
    A(f"s_mul_i32 s{T+6}, s{T+6}, s{S_HSTR}")
    A(f"s_lshl_b32 s{T+7}, s{S_HP}, 7")
    A(f"s_add_u32 s{T+6}, s{T+6}, s{T+7}")
    A(f"s_lshl_b32 s{T+7}, s{S_HSTR}, 3")
    for i in range(8):
        A(f"s_add_u32 m0, s{S_HL}, {i*1024}")
        A(f"buffer_load_dwordx4 v48, s[{SRD_W}:{SRD_W+3}], s{T+6} offen lds")
        if i<7: A(f"s_add_u32 s{T+6}, s{T+6}, s{T+7}")
    A(f"s_setpc_b64 s[{S_HRET}:{S_HRET+1}]")
    A("L_hpost:")
    self.wjob_params()
    J=64
    A(f"s_cmp_eq_u32 s{S_HK}, 4")
    A(f"s_cselect_b32 s{T}, 10, 9")
    A(f"s_lshl_b32 s{T+1}, s{S_HK}, 7")
    A(f"v_lshlrev_b32 v50, s{T}, v43")
    A(f"v_add_u32 v50, v50, v42")
    A(f"v_add_u32 v50, s{S_HL}, v50")
    A(f"v_add_u32 v51, s{T+1}, v50")
    A(f"v_xor_b32 v52, 64, v50")
    A(f"v_xor_b32 v53, 64, v51")
    def rd(k):
        kap,e=k>>1,k&1; r=J+4*k
        A(f"ds_read_b64_tr_b16 v[{r}:{r+1}], v{50+2*e} offset:{kap*2048}")
        A(f"ds_read_b64_tr_b16 v[{r+2}:{r+3}], v{51+2*e} offset:{kap*2048}")
    for k in range(6): rd(k)
    for k in range(8):
        kap,e=k>>1,k&1; r=J+4*k
        issued=min(8,6+k)
        A(f"s_waitcnt lgkmcnt({2*(issued-1-k)})")
        if e==0: A(f"s_add_u32 s{T+2}, s{S_HD}, {kap*1024}")
        else:
            A(f"s_add_u32 s{T+2}, s{S_HD}, s{S_HE}")
            A(f"s_add_u32 s{T+2}, s{T+2}, {kap*1024}")
        A(f"buffer_store_dwordx4 v[{r}:{r+3}], v54, s[{SRD_WS}:{SRD_WS+3}], s{T+2} offen sc1")
        if 6+k<8: rd(6+k)
    lcs=self.lab('Lcs')
    A(f"s_cmp_lg_u32 s{S_HK}, 4")
    A(f"s_cbranch_scc1 {lcs}")
    A("v_mov_b32 v55, 0x3f803f80")
    for k in range(8):
        e=k&1
        for d in range(4):
            c="0" if (k<2 and d==0) else f"v{56+e}"
            A(f"v_dot2_f32_bf16 v{56+e}, v{J+4*k+d}, v55, {c}")
    A("s_nop 2")
    A("v_permlane32_swap_b32 v56, v57")
    A("v_add_f32 v56, v56, v57")
    A(f"s_cmp_ge_u32 s{S_HY}, 196")
    A(f"s_cselect_b32 s{T+2}, 1, 0")
    A(f"s_lshl_b32 s{T+3}, s{S_HP}, 2")
    A(f"s_add_u32 s{T+2}, s{T+2}, s{T+3}")
    A(f"s_mul_i32 s{T+2}, s{T+2}, 7")
    A(f"s_add_u32 s{T+2}, s{T+2}, s{S_HG}")
    A(f"s_lshl_b32 s{T+2}, s{T+2}, 7")
    A(f"s_add_u32 s{T+2}, s{T+2}, {WS_CS}")
    A(f"buffer_store_dword v56, v58, s[{SRD_WS}:{SRD_WS+3}], s{T+2} offen sc1")
    A(f"{lcs}:")
    A(f"s_setpc_b64 s[{S_HRET}:{S_HRET+1}]")

def bf16_lo(dst, src): return f"v_lshlrev_b32 v{dst}, 16, v{src}"
def bf16_hi(dst, src): return f"v_and_b32 v{dst}, 0xffff0000, v{src}"

def cmul(A, R, P, Z, T):
    A(f"v_pk_mul_f32 v[{T}:{T+1}], v[{P}:{P+1}], v[{Z}:{Z+1}] op_sel_hi:[0,1]")
    A(f"v_pk_fma_f32 v[{R}:{R+1}], v[{P}:{P+1}], v[{Z}:{Z+1}], v[{T}:{T+1}] op_sel:[1,1,0] op_sel_hi:[1,0,1] neg_lo:[1,0,0]")

def kreg(e,name):
    names=['C','Z1','Z2','Z4','Z8','Z256','P','Q','R','T','X0','X1']
    return [128,152][e]+2*names.index(name)
ROWS=[0,1,2,3,4,5,6,7,256,258,260,262,512,516,768,772,1024,1280,1536,1792,2048]

@add_method
def kgen_setup(self):
    A=self.A
    A("s_waitcnt lgkmcnt(0)")
    A(f"s_lshl_b32 s{S_T0}, s{S_CH}, 4")
    A(f"s_lshr_b32 s{S_DT}, s{S_DT}, s{S_T0}")
    A(f"s_lshl_b32 s{S_DT}, s{S_DT}, 16")
    A(f"s_lshr_b32 s{S_DSKV}, s{S_DSKV}, s{S_T0}")
    A(f"s_lshl_b32 s{S_DSKV}, s{S_DSKV}, 16")
    DT=48
    A(f"v_mov_b32 v{DT}, s{S_DT}")
    A(f"v_mul_f32 v{DT}, {fl(LOG2E)}, v{DT}")
    A(f"v_exp_f32 v{DT}, v{DT}")
    A(f"v_cvt_pk_bf16_f32 v{DT}, v{DT}, v{DT}")
    A(f"v_lshlrev_b32 v{DT}, 16, v{DT}")
    A(f"v_and_b32 v50, 0x7fff7fff, v{V_PA+2}")
    A(f"v_and_b32 v51, 0x7fff7fff, v{V_PA+3}")
    A(f"v_and_b32 v52, 0x7fff7fff, v{V_PA+4}")
    A(f"v_and_b32 v53, 0x7fff7fff, v{V_PA+5}")
    A("v_pk_max_u16 v50, v50, v51")
    A("v_pk_max_u16 v52, v52, v53")
    A("v_pk_max_u16 v50, v50, v52")
    A("v_lshrrev_b32 v51, 16, v50")
    A("v_and_b32 v50, 0xffff, v50")
    A("v_max_u32 v50, v50, v51")
    for mode in ["row_shr:1 row_mask:0xf bank_mask:0xf bound_ctrl:0","row_shr:2 row_mask:0xf bank_mask:0xf bound_ctrl:0",
                 "row_shr:4 row_mask:0xf bank_mask:0xf bound_ctrl:0","row_shr:8 row_mask:0xf bank_mask:0xf bound_ctrl:0",
                 "row_bcast:15 row_mask:0xa bank_mask:0xf","row_bcast:31 row_mask:0xc bank_mask:0xf"]:
        A(f"v_max_u32_dpp v50, v50, v50 {mode}")
    A(f"v_readlane_b32 s{S_T0}, v50, 63")
    A(f"s_lshr_b32 s{S_T0}, s{S_T0}, 7")
    A(f"s_max_u32 s{S_T0}, s{S_T0}, 1")
    A(f"s_min_u32 s{S_T0}, s{S_T0}, 253")
    A(f"s_sub_u32 s{S_T0+1}, 254, s{S_T0}")
    A(f"s_lshl_b32 s{S_T0+1}, s{S_T0+1}, 23")
    A(f"s_lshl_b32 s{S_T0}, s{S_T0}, 23")
    A(f"v_add_f32 v49, v{DT}, v{DT}")
    A(f"v_mul_f32 v49, s{S_T0}, v49")
    A(f"v_readfirstlane_b32 s{S_YS}, v49")
    AR=[50,51]; TH=[52,53]
    reg=kreg
    for e in range(2):
        un = bf16_lo if e==0 else bf16_hi
        A(un(AR[e], V_PA)); A(un(TH[e], V_PA+1))
        A(un(reg(e,'C'), V_PA+2)); A(un(reg(e,'C')+1, V_PA+3))
    for e in range(2):
        A(f"v_mul_f32 v{AR[e]}, {fl(LOG2E)}, v{AR[e]}")
    for e in range(2): A(f"v_exp_f32 v{AR[e]}, v{AR[e]}")
    for e in range(2):
        A(f"v_cvt_pk_bf16_f32 v{AR[e]}, v{AR[e]}, v{AR[e]}")
    for e in range(2):
        A(f"v_lshlrev_b32 v{AR[e]}, 16, v{AR[e]}")
    for e in range(2):
        A(f"v_mul_f32 v{AR[e]}, v{AR[e]}, v{DT}")
        A(f"v_mul_f32 v{TH[e]}, v{TH[e]}, v{DT}")
    for e in range(2):
        A(f"v_mul_f32 v{AR[e]}, {fl(-LOG2E)}, v{AR[e]}")
        A(f"v_mul_f32 v{TH[e]}, {fl(INV2PI)}, v{TH[e]}")
        c=reg(e,'C')
        A(f"v_mul_f32 v{c}, s{S_T0+1}, v{c}")
        A(f"v_mul_f32 v{c+1}, s{S_T0+1}, v{c+1}")
    for name,p in ((('Z1',1.0),('Z256',256.0)) if self.z8sq else (('Z1',1.0),('Z8',8.0),('Z256',256.0))):
        for e in range(2):
            z=reg(e,name); x0=reg(e,'X0'); x1=reg(e,'X1')
            if p==1.0:
                A(f"v_exp_f32 v{x0}, v{AR[e]}")
                A(f"v_fract_f32 v{x0+1}, v{TH[e]}")
            else:
                A(f"v_mul_f32 v{x0}, {fl(p)}, v{AR[e]}")
                A(f"v_mul_f32 v{x0+1}, {fl(p)}, v{TH[e]}")
                A(f"v_exp_f32 v{x0}, v{x0}")
                A(f"v_fract_f32 v{x0+1}, v{x0+1}")
            A(f"v_cos_f32 v{x1}, v{x0+1}")
            A(f"v_sin_f32 v{x1+1}, v{x0+1}")
        for e in range(2):
            z=reg(e,name); x0=reg(e,'X0'); x1=reg(e,'X1')
            A(f"v_pk_mul_f32 v[{z}:{z+1}], v[{x1}:{x1+1}], v[{x0}:{x0+1}] op_sel_hi:[1,0]")
    if self.xmode=='gather': A(self.gl[self.gi]); self.gi+=1
    for e in range(2): cmul(A, reg(e,'Z2'), reg(e,'Z1'), reg(e,'Z1'), reg(e,'T'))
    for e in range(2): cmul(A, reg(e,'Z4'), reg(e,'Z2'), reg(e,'Z2'), reg(e,'T'))
    if self.z8sq:
        for e in range(2): cmul(A, reg(e,'Z8'), reg(e,'Z4'), reg(e,'Z4'), reg(e,'T'))

@add_method
def kgen_gen(self):
    A=self.A
    reg=kreg
    VA=104
    A(f"s_mul_i32 s{S_T0+2}, s{S_W}, {KG_WAVE}")
    A(f"v_lshl_add_u32 v{VA}, v{V_LANE}, 3, s{S_T0+2}")
    OUT=[106,108,110,112]; oi=[0]
    def emit(idx, name, neg):
        if self.xmode=='xt' and idx==36: self.xflag_publish()
        if self.xmode=='gather' and idx in self.gidx: A(self.gl[self.gi]); self.gi+=1
        o=OUT[oi[0]%4]; oi[0]+=1
        for e in range(2):
            r=reg(e,name)
            A(f"v_cvt_pk_f16_f32 v{o+e}, v{r}, {'-' if neg else ''}v{r+1}")
        A(f"ds_write_b64 v{VA}, v[{o}:{o+1}] offset:{idx*KG_PITCH}")
    def step(dst, src, z):
        for e in range(2):
            A(f"v_pk_mul_f32 v[{reg(e,'T')}:{reg(e,'T')+1}], v[{reg(e,src)}:{reg(e,src)+1}], v[{reg(e,z)}:{reg(e,z)+1}] op_sel_hi:[0,1]")
        for e in range(2):
            A(f"v_pk_fma_f32 v[{reg(e,dst)}:{reg(e,dst)+1}], v[{reg(e,src)}:{reg(e,src)+1}], v[{reg(e,z)}:{reg(e,z)+1}], v[{reg(e,'T')}:{reg(e,'T')+1}] op_sel:[1,1,0] op_sel_hi:[1,0,1] neg_lo:[1,0,0]")
    emit(0,'C',True)
    step('P','C','Z1'); emit(1,'P',True)
    for r in range(2,8): step('P','P','Z1'); emit(r,'P',True)
    step('Q','C','Z256'); emit(8,'Q',True)
    step('R','Q','Z2'); emit(9,'R',True)
    step('R','R','Z2'); emit(10,'R',True)
    step('R','R','Z2'); emit(11,'R',True)
    step('Q','Q','Z256'); emit(12,'Q',True)
    step('R','Q','Z4'); emit(13,'R',True)
    step('Q','Q','Z256'); emit(14,'Q',True)
    step('R','Q','Z4'); emit(15,'R',True)
    for r in range(16,21): step('Q','Q','Z256'); emit(r,'Q',True)
    o=OUT[oi[0]%4]; oi[0]+=1
    A(f"v_mov_b32 v{o}, 0x3c00\nv_mov_b32 v{o+1}, 0x3c00")
    A(f"ds_write_b64 v{VA}, v[{o}:{o+1}] offset:{21*KG_PITCH}")
    emit(22,'Z8',False)
    step('P','Z8','Z8'); emit(23,'P',False)
    for b in range(3,32): step('P','P','Z8'); emit(21+b,'P',False)
    if self.xmode=='gather':
        while self.gi<8: A(self.gl[self.gi]); self.gi+=1
    self.stamp('gen done')
    A(f"s_mul_i32 s{S_T0+2}, s{S_W}, {KG_WAVE}")
    VAa=104; VAb=105
    A(f"v_and_b32 v48, 31, v{V_LANE}")
    A(f"v_min_u32 v49, 20, v48")
    A(f"v_lshrrev_b32 v50, 5, v{V_LANE}")
    A(f"v_lshlrev_b32 v50, 4, v50")
    A(f"v_add_u32 v50, s{S_T0+2}, v50")
    A(f"s_movk_i32 s{S_T0+3}, {KG_PITCH}")
    A(f"v_mad_u32_u24 v{VAa}, v49, s{S_T0+3}, v50")
    A(f"v_mad_u32_u24 v{VAb}, v48, s{S_T0+3}, v50")
    ACC=112
    FR=[64,72,80,88]
    def ld(ks):
        f=FR[ks%4]
        A(f"ds_read_b128 v[{f}:{f+3}], v{VAa} offset:{ks*32}")
        A(f"ds_read_b128 v[{f+4}:{f+7}], v{VAb} offset:{21*KG_PITCH+ks*32}")
    for ks in range(3): ld(ks)
    for ks in range(16):
        if ks+3<16: ld(ks+3)
        nxt=min(15,ks+3)-ks
        A(f"s_waitcnt lgkmcnt({2*nxt})")
        f=FR[ks%4]
        c = "0" if ks==0 else f"v[{ACC}:{ACC+15}]"
        A(f"v_mfma_f32_32x32x16_f16 v[{ACC}:{ACC+15}], v[{f}:{f+3}], v[{f+4}:{f+7}], {c}")
    l1=self.lab(); l2=self.lab()
    A(f"v_lshl_add_u32 v48, v{V_LANE}, 4, s{S_T0+2}")
    A(f"s_cmp_eq_u32 s{S_NH}, 0")
    A(f"s_cbranch_scc1 {l1}")
    for q in range(3): A(f"ds_write_b128 v48, v[{ACC+4*q}:{ACC+4*q+3}] offset:{q*1024}")
    A(f"{l1}:")
    A("s_nop 1")
    A("s_waitcnt lgkmcnt(0)")
    self.stamp('kmfma')
    A("s_barrier")
    self.stamp('kbar1')
    A(f"s_cmp_eq_u32 s{S_NH}, 0")
    A(f"s_cbranch_scc0 {l2}")
    for q in range(3): A(f"ds_read_b128 v[{64+4*q}:{64+4*q+3}], v48 offset:{KG_WAVE+q*1024}")
    A("s_waitcnt lgkmcnt(0)")
    for r in range(12):
        A(f"v_add_f32 v{64+r}, v{64+r}, v{ACC+r}")
    for k in range(4): A(f"v_cvt_pk_f16_f32 v{76+k}, v{64+2*k}, v{65+2*k}")
    for r in range(8,12): A(f"v_cvt_f16_f32 v{64+r}, v{64+r}")
    A("ds_write_b64 v176, v[76:77]")
    A("ds_write_b32 v177, v78")
    A("ds_write_b32 v178, v79")
    for r in range(8,12): A(f"ds_write_b16 v179, v{64+r} offset:{1024+64*(r-8)}")
    A(f"v_mov_b32 v50, 0")
    A(f"v_mov_b32 v51, s{S_T0+2}")
    A(f"ds_write_b16 v51, v50 offset:{2*768}")
    A(f"{l2}:")
    self.granule_loads()
    A("s_waitcnt lgkmcnt(0)")
    A("s_barrier")

@add_method
def kexpand(self):
    A=self.A
    D0=64
    def rd(ch,x):
        tb=(2*ch)*KG_WAVE; d=D0+ch*28
        A(f"ds_read_u16 v{d+x}, v{V_OFF+x} offset:{tb}")
    def mk(ch):
        d=D0+ch*28
        for c in range(4):
            for x in range(4):
                A(f"v_lshl_or_b32 v{d+12+4*c+x}, v{d+c+2*x+1}, 16, v{d+c+2*x}")
    def wr(ch):
        d=D0+ch*28
        for c in range(4):
            r=d+12+4*c
            A(f"ds_write_b128 v49, v[{r}:{r+3}] offset:{ch*KX_CH+c*KX_COPY}")
    for x in range(11): rd(0,x)
    for x in range(4): rd(1,x)
    A(f"v_lshlrev_b32 v49, 4, v{V_T}")
    A(f"v_add_u32 v49, {LDS_KX}, v49")
    A("s_waitcnt lgkmcnt(4)")
    mk(0)
    for x in range(4,11): rd(1,x)
    wr(0)
    A("s_waitcnt lgkmcnt(4)")
    mk(1)
    wr(1)

S_GB=76
S_GB2=82
S_KSTR=68
@add_method
def stage_w(self, kind):
    A=self.A
    RING=24576
    if kind=='w1':
        stride=3584
        A(f"s_mov_b32 s{SRD_W}, s{S_WGT}\ns_mov_b32 s{SRD_W+1}, s{S_WGT+1}\ns_mov_b32 s{SRD_W+2}, {D_*F_*2}\ns_mov_b32 s{SRD_W+3}, 0x20000")
        A(f"s_mov_b32 s{SRD_W2}, s{S_WUP}\ns_mov_b32 s{SRD_W2+1}, s{S_WUP+1}\ns_mov_b32 s{SRD_W2+2}, {D_*F_*2}\ns_mov_b32 s{SRD_W2+3}, 0x20000")
        A(f"s_lshl_b32 s{S_T0}, s{S_J}, 8")
        A(f"s_lshl_b32 s{S_T0+1}, s{S_W}, 6")
        A(f"s_add_u32 s{S_T0}, s{S_T0}, s{S_T0+1}")
        for g in range(4):
            A(f"s_add_u32 s{S_T0+1}, s{S_W}, {g}")
            A(f"s_and_b32 s{S_T0+1}, s{S_T0+1}, 3")
            A(f"s_mul_i32 s{S_T0+1}, s{S_T0+1}, {7*16*stride}")
            A(f"s_add_u32 s{S_GB+g}, s{S_T0+1}, s{S_T0}")
        tileoff2=0
    else:
        stride=896
        A(f"s_mov_b32 s{SRD_W}, s{S_WD}\ns_mov_b32 s{SRD_W+1}, s{S_WD+1}\ns_mov_b32 s{SRD_W+2}, {D_*F_*2}\ns_mov_b32 s{SRD_W+3}, 0x20000")
        A(f"s_mov_b32 s{SRD_W2}, s{S_WD}\ns_mov_b32 s{SRD_W2+1}, s{S_WD+1}\ns_mov_b32 s{SRD_W2+2}, {D_*F_*2}\ns_mov_b32 s{SRD_W2+3}, 0x20000")
        A(f"s_cmp_ge_u32 s{S_J}, 7")
        A(f"s_cselect_b32 s{S_T0}, 7, 0")
        A(f"s_sub_u32 s{S_T0}, s{S_J}, s{S_T0}")
        A(f"s_lshl_b32 s{S_T0}, s{S_T0}, 7")
        A(f"s_mul_i32 s{S_T0+1}, s{S_W}, {448*stride}")
        A(f"s_add_u32 s{S_T0}, s{S_T0}, s{S_T0+1}")
        for g in range(4):
            A(f"s_add_u32 s{S_GB+g}, s{S_T0}, {g*7*16*stride}")
        tileoff2=64
    kstr=16*stride
    A(f"v_lshrrev_b32 v48, 2, v{V_LANE}")
    A(f"v_mul_u32_u24 v48, {stride}, v48")
    A(f"v_and_b32 v49, 3, v{V_LANE}")
    A(f"v_lshl_add_u32 v48, v49, 4, v48")
    if kind=='w1':
        A(f"v_mov_b32 v52, v48")
    else:
        A(f"s_lshl_b32 s{S_T0+1}, s{S_NH}, 6")
        A(f"s_xor_b32 s{S_T0+3}, s{S_T0+1}, 64")
        A(f"v_add_u32 v52, s{S_T0+3}, v48")
        A(f"v_add_u32 v48, s{S_T0+1}, v48")
    A(f"s_mul_i32 s{S_T0+2}, s{S_W}, {RING}")
    A(f"v_lshrrev_b32 v50, 5, v{V_LANE}")
    A(f"v_lshlrev_b32 v50, {9 if kind=='w1' else 8}, v50")
    A(f"v_bfe_u32 v51, v{V_LANE}, 2, 2")
    A(f"v_lshl_add_u32 v50, v51, 6, v50")
    A(f"v_bfe_u32 v51, v{V_LANE}, 4, 1")
    A(f"v_lshl_add_u32 v50, v51, 5, v50")
    A(f"v_and_b32 v51, 3, v{V_LANE}")
    A(f"v_lshl_add_u32 v50, v51, 3, v50")
    A(f"v_add_u32 v50, s{S_T0+2}, v50")
    second = 256 if kind=='w1' else 512
    def issue(c):
        slot=c%3
        for i in range(4):
            s=4*c+i; g=s//7; r=s%7
            A(f"s_add_u32 s{S_T0+3}, s{S_GB+g}, {r*kstr}")
            A(f"s_add_u32 m0, s{S_T0+2}, {slot*8192+i*2048}")
            A(f"buffer_load_dwordx4 v48, s[{SRD_W}:{SRD_W+3}], s{S_T0+3} offen lds")
            A(f"s_add_u32 m0, s{S_T0+2}, {slot*8192+i*2048+1024}")
            A(f"buffer_load_dwordx4 v52, s[{SRD_W2}:{SRD_W2+3}], s{S_T0+3} offen lds")
    for c in range(3): issue(c)
    for c in range(7):
        A(f"s_waitcnt vmcnt({8*min(2,6-c)})")
        slot=c%3
        for i in range(4):
            s=4*c+i
            for tile in range(2):
                a=8*s+4*tile; off=slot*8192+i*2048+tile*1024
                A(f"ds_read_b64_tr_b16 a[{a}:{a+1}], v50 offset:{off}")
                A(f"ds_read_b64_tr_b16 a[{a+2}:{a+3}], v50 offset:{off+second}")
            if i==1: A("s_waitcnt lgkmcnt(4)")
        if c+3<7:
            A("s_waitcnt lgkmcnt(0)")
            issue(c+3)
    A("s_waitcnt lgkmcnt(0)")

@add_method
def flag_load(self):
    A=self.A
    A(f"s_lshl_b32 s{S_T0}, s{S_J}, 2")
    A(f"s_add_u32 s{S_T0}, s{S_T0}, s{S_W}")
    A(f"s_lshr_b32 s{S_T0}, s{S_T0}, 1")
    A(f"s_mul_i32 s{S_T0}, s{S_T0}, 7")
    A(f"v_min_u32 v44, 13, v{V_LANE}")
    A(f"v_add_u32 v46, 189, v44")
    A(f"v_cmp_lt_u32 vcc, 6, v44")
    A(f"v_cndmask_b32 v44, v44, v46, vcc")
    A(f"v_add_u32 v44, s{S_T0}, v44")
    A(f"v_lshlrev_b32 v44, 6, v44")
    A(f"s_mov_b32 s{S_T0+11}, {WS_JF}")
    A(f"buffer_load_dword v46, v44, s[{SRD_WS}:{SRD_WS+3}], s{S_T0+11} offen sc1")

@add_method
def wdflag_load(self, S):
    A=self.A
    A(f"s_cmp_ge_u32 s{S_J}, 7")
    A(f"s_cselect_b32 s{S_T0+8}, 7, 0")
    A(f"s_sub_u32 s{S_T0+8}, s{S_J}, s{S_T0+8}")
    A(f"s_mul_i32 s{S_T0+8}, s{S_T0+8}, 28")
    A(f"s_mul_i32 s{S_T0+9}, s{S_W}, 7")
    A(f"s_add_u32 s{S_T0+8}, s{S_T0+8}, s{S_T0+9}")
    A(f"s_add_u32 s{S_T0+8}, s{S_T0+8}, 392")
    A(f"v_min_u32 v44, 6, v{V_LANE}")
    A(f"v_add_u32 v44, s{S_T0+8}, v44")
    A(f"v_lshlrev_b32 v44, 6, v44")
    A(f"s_mov_b32 s{S_T0+11}, {WS_JF}")
    S.vmem(f"buffer_load_dword v46, v44, s[{SRD_WS}:{SRD_WS+3}], s{S_T0+11} offen sc1","WDF")

@add_method
def wdflag_check(self, S):
    A=self.A
    lp=self.lab('Lpoll'); le=self.lab()
    S.need_vm(["WDF"])
    A(f"s_mov_b32 s{S_T0+8}, 0")
    A(f"{lp}:")
    A(f"v_cmp_eq_u32 vcc, s{S_TAG}, v46")
    A(f"s_and_b32 s{S_T0+9}, vcc_lo, 0x7f")
    A(f"s_cmp_eq_u32 s{S_T0+9}, 0x7f")
    A(f"s_cbranch_scc1 {le}")
    A(f"buffer_load_dword v46, v44, s[{SRD_WS}:{SRD_WS+3}], s{S_T0+11} offen sc1")
    A("s_waitcnt vmcnt(0)")
    A(f"s_add_u32 s{S_T0+8}, s{S_T0+8}, 1")
    A(f"s_cmp_lt_u32 s{S_T0+8}, 0x8000")
    A(f"s_cbranch_scc1 {lp}")
    A(f"{le}:")

@add_method
def granule_loads(self):
    A=self.A; SG=144
    if self.xmode=='gather':
        A(f"v_lshlrev_b32 v43, 6, v{V_T}")
        A(f"s_mov_b32 s{S_T0+13}, {WS_STATS}")
        for k in range(4):
            A(f"buffer_load_dwordx4 v[{SG+4*k}:{SG+4*k+3}], v43, s[{SRD_WS}:{SRD_WS+3}], s{S_T0+13} offen offset:{16*k} sc1")
        return
    A(f"s_lshr_b32 s{S_T0+12}, s{S_D0}, 6")
    A(f"s_and_b32 s{S_T0+12}, s{S_T0+12}, 3")
    A(f"s_lshl_b32 s{S_T0+12}, s{S_T0+12}, 6")
    A(f"s_add_u32 s{S_T0+12}, s{S_T0+12}, {WS_XF}")
    A(f"v_lshlrev_b32 v37, 8, v{V_T}")
    A(f"buffer_load_dword v36, v37, s[{SRD_WS}:{SRD_WS+3}], s{S_T0+12} offen sc1")
    A(f"v_lshlrev_b32 v43, 6, v{V_T}")
    A(f"s_mov_b32 s{S_T0+13}, {WS_STATS}")
    for k in range(4):
        A(f"buffer_load_dwordx4 v[{SG+4*k}:{SG+4*k+3}], v43, s[{SRD_WS}:{SRD_WS+3}], s{S_T0+13} offen offset:{16*k} sc1")

@add_method
def granule_wait(self):
    A=self.A; SG=144
    lp=self.lab('Lpoll'); le=self.lab()
    A(f"s_mov_b32 s{S_T0+1}, 0")
    A("s_waitcnt vmcnt(0)")
    A(f"{lp}:")
    if self.xmode=='gather': A("v_mov_b32 v49, 0")
    else: A(f"v_xor_b32 v49, s{S_TAG}, v36")
    for k in range(8):
        A(f"v_xor_b32 v50, s{S_TAG}, v{SG+2*k+1}")
        A(f"v_or_b32 v49, v49, v50")
    A("v_cmp_ne_u32 vcc, 0, v49")
    A(f"s_add_u32 s{S_T0+1}, s{S_T0+1}, 1")
    A(f"s_cbranch_vccz {le}")
    if self.xmode=='xt': A(f"buffer_load_dword v36, v37, s[{SRD_WS}:{SRD_WS+3}], s{S_T0+12} offen sc1")
    for k in range(4):
        A(f"buffer_load_dwordx4 v[{SG+4*k}:{SG+4*k+3}], v43, s[{SRD_WS}:{SRD_WS+3}], s{S_T0+13} offen offset:{16*k} sc1")
    A("s_waitcnt vmcnt(0)")
    A(f"s_cmp_lt_u32 s{S_T0+1}, 0x8000")
    A(f"s_cbranch_scc1 {lp}")
    A(f"{le}:")

@add_method
def flag_wait(self, mask, landed=False, sleep=0):
    A=self.A
    lp=self.lab('Lpoll'); le=self.lab(); lf=self.lab()
    A(f"s_mov_b32 s{S_T0+1}, 0")
    if landed: A(f"s_branch {lf}")
    A(f"{lp}:")
    A("s_waitcnt vmcnt(0)")
    A(f"{lf}:")
    A(f"v_cmp_eq_u32 vcc, s{S_TAG}, v46")
    A(f"s_and_b32 s{S_T0+2}, vcc_lo, {hex(mask)}")
    A(f"s_cmp_eq_u32 s{S_T0+2}, {hex(mask)}")
    A(f"s_cbranch_scc1 {le}")
    if sleep: A(f"s_sleep {sleep}")
    A(f"buffer_load_dword v46, v44, s[{SRD_WS}:{SRD_WS+3}], s{S_T0+11} offen sc1")
    A(f"s_add_u32 s{S_T0+1}, s{S_T0+1}, 1")
    A(f"s_cmp_lt_u32 s{S_T0+1}, 0x8000")
    A(f"s_cbranch_scc1 {lp}")
    A(f"{le}:")

@add_method
def xt_loads(self):
    A=self.A; XA=8
    A(f"s_movk_i32 s{S_T0+2}, 7168")
    A(f"v_mul_lo_u32 v48, v{V_T}, s{S_T0+2}")
    A(f"s_lshl_b32 s{S_T0+2}, s{S_D0}, 4")
    A(f"s_add_u32 s{S_T0+2}, s{S_T0+2}, {WS_XT}")
    A(f"buffer_load_dwordx4 v[{XA}:{XA+3}], v48, s[{SRD_WS}:{SRD_WS+3}], s{S_T0+2} offen sc1")
    A(f"buffer_load_dwordx4 v[{XA+4}:{XA+7}], v48, s[{SRD_WS}:{SRD_WS+3}], s{S_T0+2} offen offset:16 sc1")

@add_method
def w1_setup(self):
    A=self.A
    A(f"s_lshl_b32 s{S_T0}, s{S_J}, 2")
    A(f"s_add_u32 s{S_T0}, s{S_T0}, s{S_W}")
    A(f"s_mul_i32 s{S_T0}, s{S_T0}, 56")
    for g in range(4):
        A(f"s_add_u32 s{S_T0+1}, s{S_W}, {g}")
        A(f"s_and_b32 s{S_T0+1}, s{S_T0+1}, 3")
        A(f"s_mul_i32 s{S_T0+1}, s{S_T0+1}, 7")
        A(f"s_add_u32 s{S_T0+1}, s{S_T0+1}, s{S_T0}")
        A(f"s_lshl_b32 s{S_T0+1}, s{S_T0+1}, 10")
        A(f"s_add_u32 s{S_GB+g}, s{S_T0+1}, {WS_WF1}")
        A(f"s_add_u32 s{S_GB2+g}, s{S_GB+g}, {28*1024}")
    A(f"v_lshlrev_b32 v45, 4, v{V_LANE}")
    A(f"v_add_u32 v3, 4096, v45")

@add_method
def w1_items(self, s0, s1):
    out=[]
    for s in range(s0,s1):
        g=s//7; i=s%7
        for t in range(2):
            sb=(S_GB if t==0 else S_GB2)+g
            va,off=("v45",i*1024) if i<4 else ("v3",(i-4)*1024)
            out.append([f"buffer_load_dwordx4 a[{8*s+4*t}:{8*s+4*t+3}], {va}, s[{SRD_WS}:{SRD_WS+3}], s{sb} offen offset:{off} sc1"])
    return out
@add_method
def w1_loads(self, s0, s1):
    for it in self.w1_items(s0,s1):
        for x in it: self.A(x)

@add_method
def x_prepare(self):
    A=self.A
    A("s_waitcnt vmcnt(4)")
    for ch in range(2):
        for j in range(8): A((bf16_lo if ch==0 else bf16_hi)(96+8*ch+j, V_XG+j))
    A(f"s_mov_b32 s{S_T0+2}, 0x05040100")
    A(f"s_mov_b32 s{S_T0+3}, 0x07060302")
    for ch in range(2):
        for j in range(0,8,2):
            A(f"v_perm_b32 v{176+ch*4+j//2}, v{V_XG+j+1}, v{V_XG+j}, s{S_T0+2+ch}")
    A(f"v_lshlrev_b32 v48, 4, v{V_T}")
    A(f"v_add_u32 v42, {LDS_U+512}, v48")
    A(f"v_add_u32 v50, {LDS_XT}, v48")
    A(f"ds_write_b128 v50, v[176:179]")
    A(f"ds_write_b128 v50, v[180:183] offset:{XT_CH}")
    self.w1_setup()

@add_method
def stats_consume(self):
    A=self.A
    SG=144
    for j in range(8):
        A(f"v_lshlrev_b32 v{80+j}, 16, v{SG+2*j}")
        A(f"v_and_b32 v{88+j}, 0xffff0000, v{SG+2*j}")
    for j in range(8): A(f"v_rcp_f32 v{80+j}, v{80+j}")
    for ch in range(2):
        X=96+ch*8
        for j in range(0,8,2):
            A(f"v_pk_add_f32 v[{X+j}:{X+j+1}], v[{X+j}:{X+j+1}], v[{88+j}:{88+j+1}] neg_lo:[0,1] neg_hi:[0,1]")
        if self.mimic>=2:
            for j in range(0,8,2):
                A(f"v_cvt_pk_bf16_f32 v{128+j//2}, v{X+j}, v{X+j+1}")
            for j in range(0,8,2):
                A(bf16_lo(X+j,128+j//2)); A(bf16_hi(X+j+1,128+j//2))
        for j in range(0,8,2):
            A(f"v_pk_mul_f32 v[{X+j}:{X+j+1}], v[{X+j}:{X+j+1}], v[{80+j}:{80+j+1}]")
        if self.mimic>=1:
            for j in range(0,8,2):
                A(f"v_cvt_pk_bf16_f32 v{128+j//2}, v{X+j}, v{X+j+1}")
            for j in range(0,8,2):
                A(bf16_lo(X+j,128+j//2)); A(bf16_hi(X+j+1,128+j//2))
        U=132+ch*4
        for j in range(0,8,2):
            A(f"v_cvt_pk_f16_f32 v{U+j//2}, v{X+j}, v{X+j+1}")
        A(f"ds_write_b128 v42, v[{U}:{U+3}] offset:{ch*U_CH}")
    if self.w1pf or self.w1start: self.flag_load()
    A("s_waitcnt lgkmcnt(0)")
    A("s_barrier")

@add_method
def w1_rest(self):
    self.w1_loads(W1_IN_CONV,28)

@add_method
def wd_loads(self, s0, s1, S=None):
    out=[]
    for s in range(s0,s1):
        for ca in range(2):
            out.append(f"s_add_u32 s{S_T0+14}, s{S_T0+12+ca}, {s*1024}")
            out.append(('vm',f"buffer_load_dwordx4 a[{8*s+4*ca}:{8*s+4*ca+3}], v47, s[{SRD_WS}:{SRD_WS+3}], s{S_T0+14} offen sc1",f"WD{s}"))
    return out

@add_method
def wd_setup(self):
    A=self.A
    A(f"s_cmp_ge_u32 s{S_J}, 7")
    A(f"s_cselect_b32 s{S_T0+14}, 7, 0")
    A(f"s_sub_u32 s{S_T0+14}, s{S_J}, s{S_T0+14}")
    A(f"s_lshl_b32 s{S_T0+14}, s{S_T0+14}, 1")
    for ca in range(2):
        A(f"s_xor_b32 s{S_T0+12+ca}, s{S_NH}, {ca}")
        A(f"s_add_u32 s{S_T0+12+ca}, s{S_T0+12+ca}, s{S_T0+14}")
        A(f"s_mul_i32 s{S_T0+12+ca}, s{S_T0+12+ca}, 112")
        A(f"s_mul_i32 s{S_T0+15}, s{S_W}, 28")
        A(f"s_add_u32 s{S_T0+12+ca}, s{S_T0+12+ca}, s{S_T0+15}")
        A(f"s_lshl_b32 s{S_T0+12+ca}, s{S_T0+12+ca}, 10")
        A(f"s_add_u32 s{S_T0+12+ca}, s{S_T0+12+ca}, {WS_WFD}")
    A(f"v_lshlrev_b32 v47, 4, v{V_LANE}")

W1_PRE=16
W1_IN_CONV=0
C_ACC=64
C_F=[96,160]
C_G=[128,192]
C_VF=34; C_VG=35
C_EU=224; C_EX=232
@add_method
def conv_setup(self):
    A=self.A
    A(f"v_and_b32 v50, 15, v{V_LANE}")
    A(f"v_lshrrev_b32 v51, 4, v{V_LANE}")
    A(f"v_sub_u32 v52, 3, v50")
    A(f"v_and_b32 v52, 3, v52")
    A(f"v_mul_u32_u24 v52, {KX_COPY}, v52")
    A(f"v_lshrrev_b32 v53, 2, v50")
    A(f"v_lshlrev_b32 v53, 3, v53")
    A(f"v_sub_u32 v52, v52, v53")
    A(f"v_lshl_add_u32 v52, v51, 4, v52")
    A(f"s_mul_i32 s{S_T0}, s{S_CH}, {KX_CH}")
    A(f"s_lshl_b32 s{S_T0+1}, s{S_NH}, 8")
    A(f"s_sub_u32 s{S_T0}, s{S_T0}, s{S_T0+1}")
    A(f"s_add_u32 s{S_T0}, s{S_T0}, {LDS_KX+2*2028-64*63}")
    A(f"v_add_u32 v{C_VF}, s{S_T0}, v52")
    A(f"v_lshlrev_b32 v52, 5, v50")
    A(f"v_lshl_add_u32 v52, v51, 4, v52")
    A(f"s_mul_i32 s{S_T0}, s{S_CH}, {U_CH}")
    A(f"s_sub_u32 s{S_T0}, s{S_T0}, s{S_T0+1}")
    A(f"s_add_u32 s{S_T0}, s{S_T0}, {LDS_U+480-192}")
    A(f"v_add_u32 v{C_VG}, s{S_T0}, v52")
    A(f"v_lshlrev_b32 v52, 5, v50")
    A(f"v_lshl_add_u32 v52, v51, 3, v52")
    A(f"s_lshl_b32 s{S_T0}, s{S_NH}, 11")
    A(f"s_mul_i32 s{S_T0+1}, s{S_CH}, {U_CH}")
    A(f"s_add_u32 s{S_T0+1}, s{S_T0+1}, s{S_T0}")
    A(f"s_add_u32 s{S_T0+1}, s{S_T0+1}, {LDS_U+512}")
    A(f"v_add_u32 v36, s{S_T0+1}, v52")
    A(f"s_mul_i32 s{S_T0+1}, s{S_CH}, {XT_CH}")
    A(f"s_add_u32 s{S_T0+1}, s{S_T0+1}, s{S_T0}")
    A(f"s_add_u32 s{S_T0+1}, s{S_T0+1}, {LDS_XT}")
    A(f"v_add_u32 v37, s{S_T0+1}, v52")
    A(f"v_and_b32 v38, 1, v51")
    A(f"v_lshlrev_b32 v38, 3, v38")
    A(f"v_lshrrev_b32 v53, 1, v50")
    A(f"v_add_u32 v38, v38, v53")
    A(f"s_movk_i32 s{S_T0+8}, {448*64}")
    A(f"v_mul_lo_u32 v38, v38, s{S_T0+8}")
    A(f"v_and_b32 v53, 1, v50")
    A(f"v_lshl_add_u32 v38, v53, 5, v38")
    A(f"v_lshrrev_b32 v53, 1, v51")
    A(f"v_lshl_add_u32 v38, v53, 4, v38")
    A(f"s_lshl_b32 s{S_T0+8}, s{S_NH}, 5")
    A(f"s_mul_i32 s{S_T0+8}, s{S_T0+8}, {448*64}")
    A(f"s_add_u32 s{S_T0+9}, s{S_D0}, s{S_CH}")
    A(f"s_lshl_b32 s{S_T0+9}, s{S_T0+9}, 6")
    A(f"s_add_u32 s{S_T0+8}, s{S_T0+8}, s{S_T0+9}")
    A(f"s_add_u32 s22, s{S_T0+8}, {WS_HT}")
    A(f"s_add_u32 s23, s22, {16*448*64}")

@add_method
def conv(self):
    A=self.A
    def loads(sp):
        st=sp&1; out=[]
        for k in range(8):
            g=C_G[st]+4*k; f=C_F[st]+4*k
            out.append(f"ds_read_b128 v[{g}:{g+3}], v{C_VG} offset:{512*k+64*(3-sp)}")
            o=64*(63-8*k-sp)
            out.append(f"ds_read_b64 v[{f}:{f+1}], v{C_VF} offset:{o}")
            out.append(f"ds_read_b64 v[{f+2}:{f+3}], v{C_VF} offset:{o+8}")
        return out
    def mfmas(sp):
        st=sp&1; out=[]
        for t in range(8):
            for d in range(t+1):
                acc=C_ACC+4*t
                c = "0" if (sp==0 and d==0) else f"v[{acc}:{acc+3}]"
                out.append((t,d,f"v_mfma_f32_16x16x32_f16 v[{acc}:{acc+3}], v[{C_F[st]+4*d}:{C_F[st]+4*d+3}], v[{C_G[st]+4*(t-d)}:{C_G[st]+4*(t-d)+3}], {c}"))
        return out
    l0=loads(0)
    for k in range(5):
        for x in l0[3*k:3*k+3]: A(x)
    issued=5
    nconv=self.w1n if self.w1start else 0
    self.w1_in_conv=nconv
    wl=self.w1_items(0,nconv); wi=[0]; mc=[0]; cur_sp=[0]
    def wfill():
        if not self.w1start or cur_sp[0]<self.w1start: return
        mc[0]+=1
        if mc[0]%self.w1step==1 and wi[0]<len(wl):
            for x in wl[wi[0]]: A(x)
            wi[0]+=1
    nxt=loads(1); ni=0
    cur_t=-1
    for (t,d,txt) in mfmas(0):
        first = (t!=cur_t)
        if first:
            cur_t=t
            if t<=3: A(f"s_waitcnt lgkmcnt({3*(issued-1-t)})")
            elif t==4: A("s_waitcnt lgkmcnt(0)")
        A(txt)
        if first and issued<8:
            for x in l0[3*issued:3*issued+3]: A(x)
            issued+=1
        elif t>=4 and ni<len(nxt):
            A(nxt[ni]); ni+=1
    assert ni==len(nxt)

    epi=[]
    for tt in range(4):
        epi.append(f"ds_read_b64 v[{C_EU+2*tt}:{C_EU+2*tt+1}], v36 offset:{512*tt}")
        epi.append(f"ds_read_b64 v[{C_EX+2*tt}:{C_EX+2*tt+1}], v37 offset:{512*tt}")
    U=224; X=240
    PRE=160
    PRE=96
    UU=112
    pre=[]
    if self.mimic==0:
        pre.append(f"v_mov_b32 v47, s{S_DSKV}")
        for tt in range(4):
            for h in range(2):
                pre.append(f"v_cvt_f32_f16 v{UU+4*tt+2*h}, v{C_EU+2*tt+h}")
                pre.append(f"v_lshrrev_b32 v{UU+4*tt+2*h+1}, 16, v{C_EU+2*tt+h}")
                pre.append(f"v_cvt_f32_f16 v{UU+4*tt+2*h+1}, v{UU+4*tt+2*h+1}")
                pre.append(bf16_lo(PRE+4*tt+2*h, C_EX+2*tt+h)); pre.append(bf16_hi(PRE+4*tt+2*h+1, C_EX+2*tt+h))
        for r in range(16): pre.append(f"v_fma_f32 v{PRE+r}, v{UU+r}, v47, v{PRE+r}")
    for sp in range(1,4):
        if self.wdrain and sp==3: self.flag_load()
        if self.w1start and sp==self.w1start:
            self.flag_wait(0x3fff, sleep=self.fsleep)
            self.stamp('w1 flags')
        if self.w1pf and sp==self.w1pf:
            lpf=self.lab()
            A("s_waitcnt vmcnt(0)")
            A(f"v_cmp_eq_u32 vcc, s{S_TAG}, v46")
            A(f"s_and_b32 s{S_T0+2}, vcc_lo, 0x3fff")
            A(f"s_cmp_eq_u32 s{S_T0+2}, 0x3fff")
            A(f"s_cbranch_scc0 {lpf}")
            A(f"s_lshl_b32 s{S_T0+2}, s{S_J}, 2")
            A(f"s_add_u32 s{S_T0+2}, s{S_T0+2}, s{S_W}")
            A(f"s_mul_i32 s{S_T0+2}, s{S_T0+2}, {56*1024}")
            A(f"s_and_b32 s{S_T0+3}, s{S_I}, 3")
            A(f"s_mul_i32 s{S_T0+3}, s{S_T0+3}, {14*1024}")
            A(f"s_add_u32 s{S_T0+2}, s{S_T0+2}, s{S_T0+3}")
            A(f"s_add_u32 s{S_T0+2}, s{S_T0+2}, {WS_WF1}")
            A(f"v_min_u32 v40, 55, v{V_LANE}")
            A(f"v_lshlrev_b32 v40, 7, v40")
            A(f"buffer_load_dword v253, v40, s[{SRD_WS}:{SRD_WS+3}], s{S_T0+2} offen sc1")
            A(f"s_add_u32 s{S_T0+2}, s{S_T0+2}, {7*1024}")
            A(f"buffer_load_dword v252, v40, s[{SRD_WS}:{SRD_WS+3}], s{S_T0+2} offen sc1")
            A(f"{lpf}:")
        A("s_waitcnt lgkmcnt(0)")
        nxt = loads(sp+1) if sp<3 else epi
        cur_sp[0]=sp
        ni=0; pi=0; k=0
        for (t,d,txt) in mfmas(sp):
            A(txt); k+=1
            if ni<len(nxt): A(nxt[ni]); ni+=1
            elif sp==3 and pre:
                if k==12: A("s_waitcnt lgkmcnt(0)")
                if k>=12:
                    tgt=min(len(pre),(len(pre)*(k-11)+23)//24)
                    while pi<tgt: A(pre[pi]); pi+=1
            wfill()
        if sp==3:
            while pi<len(pre): A(pre[pi]); pi+=1
    assert wi[0]==len(wl)
    A(f"s_lshl_b32 s{S_T0}, s{S_W}, 12")
    A(f"v_lshl_add_u32 v55, v{V_LANE}, 4, s{S_T0}")
    if self.mimic==0:
        lA=self.lab(); lB=self.lab()
        A(f"s_cmp_eq_u32 s{S_NH}, 0")
        A(f"s_cbranch_scc0 {lA}")
        A("s_nop 5")
        for tt in range(4): A(f"ds_write_b128 v55, v[{C_ACC+16+4*tt}:{C_ACC+16+4*tt+3}] offset:{1024*tt}")
        A(f"s_branch {lB}")
        A(f"{lA}:")
        A("s_nop 5")
        for tt in range(4): A(f"ds_write_b128 v55, v[{C_ACC+4*tt}:{C_ACC+4*tt+3}] offset:{1024*tt}")
        A(f"{lB}:")
        A("v_xor_b32 v55, 4096, v55")
        A(f"v_mov_b32 v146, s{S_YS}\nv_mov_b32 v147, s{S_YS}")
        A("s_waitcnt lgkmcnt(0)")
        A("s_barrier")
        PT=128
        for tt in range(4): A(f"ds_read_b128 v[{PT+4*tt}:{PT+4*tt+3}], v55 offset:{1024*tt}")
        def fin(Y):
            for tt in range(4):
                A(f"s_waitcnt lgkmcnt({3-tt})")
                for p in (2*tt,2*tt+1):
                    A(f"v_pk_add_f32 v[{PT+2*p}:{PT+2*p+1}], v[{Y+2*p}:{Y+2*p+1}], v[{PT+2*p}:{PT+2*p+1}]")
                for p in (2*tt,2*tt+1):
                    A(f"v_pk_fma_f32 v[{PT+2*p}:{PT+2*p+1}], v[{PT+2*p}:{PT+2*p+1}], v[146:147], v[{PRE+2*p}:{PRE+2*p+1}]")
        lA=self.lab(); lB=self.lab()
        A(f"s_cmp_eq_u32 s{S_NH}, 0")
        A(f"s_cbranch_scc0 {lA}")
        fin(C_ACC)
        A(f"s_branch {lB}")
        A(f"{lA}:")
        fin(C_ACC+16)
        A(f"{lB}:")
        Y=PT
    else:
        l=self.lab()
        A(f"s_cmp_eq_u32 s{S_NH}, 0")
        A(f"s_cbranch_scc1 {l}")
        A("s_nop 7")
        for r in range(16): A(f"v_swap_b32 v{C_ACC+r}, v{C_ACC+16+r}")
        A(f"{l}:")
        A("s_nop 7")
        for tt in range(4): A(f"ds_write_b128 v55, v[{C_ACC+16+4*tt}:{C_ACC+16+4*tt+3}] offset:{1024*tt}")
        A("v_xor_b32 v55, 4096, v55")
        A("s_waitcnt lgkmcnt(0)")
        A("s_barrier")
    if self.mimic==0: pass
    else:
        for tt in range(4): A(f"ds_read_b128 v[{96+4*tt}:{96+4*tt+3}], v55 offset:{1024*tt}")
        U=112; X=128; Y=C_ACC
        for tt in range(4):
            for h in range(2):
                A(f"v_cvt_f32_f16 v{U+4*tt+2*h}, v{C_EU+2*tt+h}")
                A(f"v_cvt_f32_f16_sdwa v{U+4*tt+2*h+1}, v{C_EU+2*tt+h} dst_sel:DWORD dst_unused:UNUSED_PAD src0_sel:WORD_1")
                A(bf16_lo(X+4*tt+2*h, C_EX+2*tt+h)); A(bf16_hi(X+4*tt+2*h+1, C_EX+2*tt+h))
        A(f"v_mov_b32 v144, s{S_DSKV}\nv_mov_b32 v145, s{S_DSKV}\nv_mov_b32 v146, s{S_YS}\nv_mov_b32 v147, s{S_YS}")
        for p in range(8):
            A(f"v_pk_mul_f32 v[{U+2*p}:{U+2*p+1}], v[{U+2*p}:{U+2*p+1}], v[144:145]")
        if self.mimic>=1:
            for p in range(8): A(f"v_cvt_pk_bf16_f32 v{148+p}, v{U+2*p}, v{U+2*p+1}")
            for p in range(8): A(bf16_lo(U+2*p,148+p)); A(bf16_hi(U+2*p+1,148+p))
        A("s_waitcnt lgkmcnt(0)")
        for p in range(8):
            A(f"v_pk_add_f32 v[{Y+2*p}:{Y+2*p+1}], v[{Y+2*p}:{Y+2*p+1}], v[{96+2*p}:{96+2*p+1}]")
        for p in range(8):
            A(f"v_pk_mul_f32 v[{Y+2*p}:{Y+2*p+1}], v[{Y+2*p}:{Y+2*p+1}], v[146:147]")
        if self.mimic>=1:
            for p in range(8): A(f"v_cvt_pk_bf16_f32 v{148+p}, v{Y+2*p}, v{Y+2*p+1}")
            for p in range(8): A(bf16_lo(Y+2*p,148+p)); A(bf16_hi(Y+2*p+1,148+p))
        for p in range(8):
            A(f"v_pk_add_f32 v[{Y+2*p}:{Y+2*p+1}], v[{Y+2*p}:{Y+2*p+1}], v[{U+2*p}:{U+2*p+1}]")
        if self.mimic>=1:
            for p in range(8): A(f"v_cvt_pk_bf16_f32 v{148+p}, v{Y+2*p}, v{Y+2*p+1}")
            for p in range(8): A(bf16_lo(Y+2*p,148+p)); A(bf16_hi(Y+2*p+1,148+p))
        for p in range(8):
            A(f"v_pk_add_f32 v[{Y+2*p}:{Y+2*p+1}], v[{Y+2*p}:{Y+2*p+1}], v[{X+2*p}:{X+2*p+1}]")
    H=148
    for p in range(8): A(f"v_cvt_pk_bf16_f32 v{H+p}, v{Y+2*p}, v{Y+2*p+1}")
    for pr in range(2):
        b=H+4*pr
        A(f"v_permlane16_swap_b32 v{b}, v{b+2}")
        A(f"v_permlane16_swap_b32 v{b+1}, v{b+3}")
    if self.wdrain:
        A("s_waitcnt vmcnt(0)")
        A(f"v_cmp_eq_u32 vcc, s{S_TAG}, v46")
        A(f"s_and_b32 s{S_T0+2}, vcc_lo, 0x3fff")
        A(f"s_cmp_eq_u32 s{S_T0+2}, 0x3fff")
        A(f"s_cselect_b32 s3, 1, 0")
    A(f"buffer_store_dwordx4 v[{H}:{H+3}], v38, s[{SRD_WS}:{SRD_WS+3}], s22 offen sc1")
    A(f"buffer_store_dwordx4 v[{H+4}:{H+7}], v38, s[{SRD_WS}:{SRD_WS+3}], s23 offen sc1")

@add_method
def sync_all(self):
    A=self.A
    if self.wdrain:
        la=self.lab(); lb=self.lab()
        A(f"s_cmp_eq_u32 s3, 0")
        A(f"s_cbranch_scc1 {la}")
        self.w1_loads(0,self.wdrain)
        A(f"s_waitcnt vmcnt({2*self.wdrain})")
        A(f"s_branch {lb}")
        A(f"{la}:")
        A("s_waitcnt vmcnt(0)")
        A(f"{lb}:")
    else:
        if not self.w1start: self.flag_load()
        A("s_waitcnt vmcnt(0)")
    A("s_barrier")
    l=self.lab()
    A(f"s_cmp_lg_u32 s{S_W}, 0")
    A(f"s_cbranch_scc1 {l}")
    A(f"s_and_b32 s{S_T0}, s{S_WG}, 7")
    A(f"s_lshl_b32 s{S_T0}, s{S_T0}, 7")
    A(f"s_add_u32 s{S_T0}, s{S_T0}, {WS_CNT2}")
    A(f"v_lshlrev_b32 v48, 10, v{V_LANE}")
    A("v_mov_b32 v49, 1")
    A("s_mov_b64 exec, 0xff")
    A(f"buffer_atomic_add v49, v48, s[{SRD_WS}:{SRD_WS+3}], s{S_T0} offen")
    A("s_mov_b64 exec, -1")
    A(f"{l}:")

@add_method
def sync_all_wait(self, sleep=0, presleep=0):
    A=self.A
    l=self.lab(); lp=self.lab('Lpoll'); le=self.lab()
    A(f"s_cmp_lg_u32 s{S_W}, 0")
    A(f"s_cbranch_scc1 {l}")
    A(f"s_lshr_b32 s{S_T0}, s{S_WG}, 3")
    A(f"s_and_b32 s{S_T0}, s{S_T0}, 7")
    A(f"s_lshl_b32 s{S_T0}, s{S_T0}, 10")
    A(f"s_add_u32 s{S_T0}, s{S_T0}, {WS_CNT2}")
    A(f"v_and_b32 v48, 7, v{V_LANE}")
    A(f"v_lshlrev_b32 v48, 7, v48")
    A(f"s_mov_b32 s{S_T0+1}, 0")
    if self.pp:
        A(f"buffer_load_dword v252, v48, s[{SRD_WS}:{SRD_WS+3}], s{S_T0} offen sc1")
        A(f"{lp}:")
        for a_,b_ in ((253,252),(252,253)):
            A(f"buffer_load_dword v{a_}, v48, s[{SRD_WS}:{SRD_WS+3}], s{S_T0} offen sc1")
            A("s_waitcnt vmcnt(1)")
            A(f"v_cmp_gt_u32 vcc, 28, v{b_}")
            A(f"s_cbranch_vccz {le}")
        A(f"s_add_u32 s{S_T0+1}, s{S_T0+1}, 1")
        A(f"s_cmp_lt_u32 s{S_T0+1}, 0x4000")
        A(f"s_cbranch_scc1 {lp}")
    else:
        A(f"{lp}:")
        A(f"buffer_load_dword v49, v48, s[{SRD_WS}:{SRD_WS+3}], s{S_T0} offen sc1")
        A("s_waitcnt vmcnt(0)")
        A("v_cmp_gt_u32 vcc, 28, v49")
        A(f"s_add_u32 s{S_T0+1}, s{S_T0+1}, 1")
        A(f"s_cbranch_vccz {le}")
        if sleep: A(f"s_sleep {sleep}")
        A(f"s_cmp_lt_u32 s{S_T0+1}, 0x8000")
        A(f"s_cbranch_scc1 {lp}")
    A(f"{le}:")
    A(f"{l}:")
    A("s_barrier")

class Stream:
    def __init__(self, A):
        self.A=A; self.lds=[]; self.vm=[]
    def ds(self, text, tag=None):
        self.A(text); self.lds.append(tag)
    def vmem(self, text, tag=None):
        self.A(text); self.vm.append(tag)
    def need_lds(self, tags):
        idx=-1
        for t in tags:
            if t in self.lds: idx=max(idx, len(self.lds)-1-self.lds[::-1].index(t))
        if idx>=0:
            n=len(self.lds)-idx-1
            n=min(n,15)
            self.A(f"s_waitcnt lgkmcnt({n})")
            self.lds=self.lds[len(self.lds)-n:] if n>0 else []
    def need_vm(self, tags):
        idx=-1
        for t in tags:
            if t in self.vm: idx=max(idx, len(self.vm)-1-self.vm[::-1].index(t))
        if idx>=0:
            n=len(self.vm)-idx-1
            n=min(n,63)
            self.A(f"s_waitcnt vmcnt({n})")
            self.vm=self.vm[len(self.vm)-n:] if n>0 else []
    def item(self, it):
        if isinstance(it,str): self.A(it)
        elif it[0]=='ds': self.ds(it[1],it[2])
        elif it[0]=='vm': self.vmem(it[1],it[2])
        elif it[0]=='needl': self.need_lds(it[1])
        elif it[0]=='needv': self.need_vm(it[1])

G_ACC=[64,96]; G_CS=128; G_RING=160; G_SB=184; G_VB=56; G_ST=54; G_ET=60; G_PK=232; G_R2=250; G_MU=240; G_C1=244
LDS_ST=114688
@add_method
def cs_mfma(self, s0, s1, init=True):
    A=self.A
    if s0==0 and init:
        for k in range(4): A(f"v_mov_b32 v{48+k}, 0x3f803f80")
    for s in range(s0,s1):
        for t in range(2):
            d=G_CS+16*t
            c="0" if s==0 else f"v[{d}:{d+15}]"
            A(f"v_mfma_f32_32x32x16_bf16 v[{d}:{d+15}], a[{8*s+4*t}:{8*s+4*t+3}], v[48:51], {c}")

def wd_loc(sig, ca):
    if sig<5: return ('v', 4+8*sig+4*ca)
    if sig<9: return ('a', 224+8*(sig-5)+4*ca)
    if sig<14: return ('v', 192+8*(sig-9)+4*ca)
    return ('a', 8*(sig-14)+4*ca)

@add_method
def wd_item(self, sig, ca):
    k,r=wd_loc(sig,ca)
    it=[]
    if sig%8==0 and sig>0: it.append(f"s_add_u32 s{S_T0+12+ca}, s{S_T0+12+ca}, 8192")
    va,off=("v48",(sig%8)*1024) if sig%8<4 else ("v3",(sig%8-4)*1024)
    it.append(('vm',f"buffer_load_dwordx4 {k}[{r}:{r+3}], {va}, s[{SRD_WS}:{SRD_WS+3}], s{S_T0+12+ca} offen offset:{off} sc1",f"WD{sig}"))
    return it

PF=4
@add_method
def gemm1(self):
    A=self.A; S=Stream(A); self.S=S
    A(f"s_mul_i32 s{S_T0}, s{S_I}, {4*28672}")
    A(f"s_mul_i32 s{S_T0+1}, s{S_W}, 7168")
    A(f"s_add_u32 s{S_T0}, s{S_T0}, s{S_T0+1}")
    A(f"s_add_u32 s{S_T0}, s{S_T0}, {WS_HT}")
    A(f"v_lshlrev_b32 v48, 4, v{V_LANE}")
    A(f"v_add_u32 v3, 4096, v48")
    def xdma(lt,k):
        base=lt*28672+(k//4)*4096
        it=[]
        if k%4==0: it+=[f"s_add_u32 s{S_T0+2}, s{S_T0}, {base}", f"s_add_u32 m0, s{S_T0+1}, {base}"]
        it.append(('vm',f"buffer_load_dwordx4 v48, s[{SRD_WS}:{SRD_WS+3}], s{S_T0+2} offen offset:{(k%4)*1024} sc1 lds", f"X{lt}"))
        return it
    for lt in range(2):
        for k in range(7):
            for it in xdma(lt,k): S.item(it)
    self.wd_setup()
    self.wdflag_load(S)
    A(f"s_lshl_b32 s{S_T0+3}, s{S_J}, 2")
    A(f"s_add_u32 s{S_T0+3}, s{S_T0+3}, s{S_W}")
    A(f"s_mul_i32 s{S_T0+3}, s{S_T0+3}, {2*896}")
    A(f"s_add_u32 s{S_T0+3}, s{S_T0+3}, {WS_CS}")
    A(f"v_lshrrev_b32 v50, 5, v{V_LANE}")
    A(f"v_mul_u32_u24 v50, 896, v50")
    A(f"v_and_b32 v51, 31, v{V_LANE}")
    A(f"v_lshl_add_u32 v50, v51, 2, v50")
    for g in range(7):
        S.vmem(f"buffer_load_dword v{184+g}, v50, s[{SRD_WS}:{SRD_WS+3}], s{S_T0+3} offen offset:{g*128} sc1","CSP")
    A(f"s_lshl_b32 s{S_T0+3}, s{S_W}, 8")
    A(f"s_add_u32 s{S_T0+3}, s{S_T0+3}, {LDS_ST+2048}")
    A(f"v_lshl_add_u32 v191, v{V_LANE}, 2, s{S_T0+3}")
    A(f"v_lshrrev_b32 v55, 5, v{V_LANE}")
    A(f"v_lshlrev_b32 v55, 4, v55")
    A(f"v_add_u32 v55, s{S_T0+3}, v55")
    A(f"v_lshrrev_b32 v50, 5, v{V_LANE}")
    A(f"v_lshlrev_b32 v50, 9, v50")
    A(f"v_bfe_u32 v51, v{V_LANE}, 2, 2")
    A(f"v_lshl_add_u32 v50, v51, 6, v50")
    A(f"v_bfe_u32 v51, v{V_LANE}, 4, 1")
    A(f"v_lshl_add_u32 v50, v51, 5, v50")
    A(f"v_and_b32 v51, 3, v{V_LANE}")
    A(f"v_lshl_add_u32 v50, v51, 3, v50")
    for g in range(4):
        A(f"s_add_u32 s{S_T0+3}, s{S_W}, {g}")
        A(f"s_and_b32 s{S_T0+3}, s{S_T0+3}, 3")
        A(f"s_sub_u32 s{S_T0+3}, s{S_T0+3}, {g}")
        A(f"s_mul_i32 s{S_T0+3}, s{S_T0+3}, 7168")
        A(f"v_add_u32 v{G_VB+g}, s{S_T0+3}, v50")
    A(f"v_and_b32 v52, 31, v{V_LANE}")
    A(f"v_lshlrev_b32 v52, 3, v52")
    A(f"s_lshl_b32 s{S_T0+10}, s{S_I}, 10")
    A(f"s_add_u32 s{S_T0+10}, s{S_T0+10}, {WS_ST2}")
    A(f"s_lshl_b32 s{S_T0+4}, s{S_I}, 2")
    A(f"s_mul_i32 s{S_T0+4}, s{S_T0+4}, 112")
    A(f"s_lshl_b32 s{S_T0+5}, s{S_J}, 3")
    A(f"s_add_u32 s{S_T0+4}, s{S_T0+4}, s{S_T0+5}")
    A(f"s_lshl_b32 s{S_T0+5}, s{S_W}, 1")
    A(f"s_add_u32 s{S_T0+4}, s{S_T0+4}, s{S_T0+5}")
    A(f"s_lshl_b32 s{S_T0+4}, s{S_T0+4}, 10")
    A(f"s_add_u32 s{S_T0+4}, s{S_T0+4}, {WS_M}")
    SM=S_T0+4
    RING=[G_RING+4*k for k in range(6)]
    def breg(p,s): return RING[(28*p+s)%6]
    def bload(p,s):
        r=breg(p,s); vb=G_VB+s//7
        return [('ds',f"ds_read_b64_tr_b16 v[{r}:{r+1}], v{vb} offset:{s*1024}",f"B{p}_{s}a"),
                ('ds',f"ds_read_b64_tr_b16 v[{r+2}:{r+3}], v{vb} offset:{s*1024+256}",f"B{p}_{s}b")]
    SG2=G_SB
    def stats_loads():
        it=[]
        for p in range(4):
            it.append(('vm',f"buffer_load_dwordx2 v[{SG2+2*p}:{SG2+2*p+1}], v52, s[{SRD_WS}:{SRD_WS+3}], s{S_T0+10} offen offset:{p*256} sc1","ST2"))
        return it
    def stats_check():
        lp=self.lab('Lpoll'); le=self.lab()
        S.need_vm(["ST2"])
        A(f"s_mov_b32 s{S_T0+8}, 0")
        A(f"{lp}:")
        A(f"v_xor_b32 v53, s{S_TAG}, v{SG2+1}")
        for p in range(1,4):
            A(f"v_xor_b32 v54, s{S_TAG}, v{SG2+2*p+1}")
            A(f"v_or_b32 v53, v53, v54")
        A("v_cmp_ne_u32 vcc, 0, v53")
        A(f"s_add_u32 s{S_T0+8}, s{S_T0+8}, 1")
        A(f"s_cbranch_vccz {le}")
        for p in range(4):
            A(f"buffer_load_dwordx2 v[{SG2+2*p}:{SG2+2*p+1}], v52, s[{SRD_WS}:{SRD_WS+3}], s{S_T0+10} offen offset:{p*256} sc1")
        A("s_waitcnt vmcnt(0)")
        A(f"s_cmp_lt_u32 s{S_T0+8}, 0x8000")
        A(f"s_cbranch_scc1 {lp}")
        A(f"{le}:")
    def stats_final(p):
        g=SG2+2*p; T=G_ST
        return [f"v_and_b32 v{G_MU+p}, 0xffff0000, v{g}",
                f"v_lshlrev_b32 v{T}, 16, v{g}",
                f"v_rcp_f32 v{T}, v{T}",
                f"s_nop 0",
                f"v_mul_f32 v{G_C1+p}, {fl(-LOG2E)}, v{T}",
                f"v_mul_f32 v{G_R2+p}, v{T}, v{T}"]
    def epi_items(p):
        acc=G_ACC[p&1]; it=[]; E=G_ET; mu=G_MU+p; c1=G_C1+p
        for r0 in range(0,16,4):
            rs=range(r0,r0+4)
            for r in rs: it.append(f"v_fma_f32 v{acc+r}, -v{mu}, v{G_CS+r}, v{acc+r}")
            for r in rs: it.append(f"v_fma_f32 v{acc+16+r}, -v{mu}, v{G_CS+16+r}, v{acc+16+r}")
            for r in rs: it.append(f"v_mul_f32 v{E+(r&3)}, v{c1}, v{acc+r}")
            for r in rs: it.append(f"v_exp_f32 v{E+(r&3)}, v{E+(r&3)}")
            for r in rs: it.append(f"v_mul_f32 v{acc+r}, v{acc+r}, v{acc+16+r}")
            for r in rs: it.append(f"v_add_f32 v{E+(r&3)}, 1.0, v{E+(r&3)}")
            for r in rs: it.append(f"v_rcp_f32 v{E+(r&3)}, v{E+(r&3)}")
            for r in rs: it.append(f"v_mul_f32 v{acc+r}, v{acc+r}, v{E+(r&3)}")
            q=r0//4
            it.append(f"v_cvt_pk_bf16_f32 v{G_PK+2*q}, v{acc+r0}, v{acc+r0+1}")
            it.append(f"v_cvt_pk_bf16_f32 v{G_PK+2*q+1}, v{acc+r0+2}, v{acc+r0+3}")
            if q==1 or q==3:
                h=q//2
                if h==0: it.append(f"s_add_u32 s{SM+1}, s{SM}, {p*112*1024}")
                it.append(('vm',f"buffer_store_dwordx4 v[{G_PK+4*h}:{G_PK+4*h+3}], v48, s[{SRD_WS}:{SRD_WS+3}], s{SM+1} offen offset:{h*1024} sc1",f"M{p}_{h}"))
        return it
    vmx={0:[],1:[],2:[],3:[]}
    wr=self.w1_items(W1_PRE,28)
    for n,it in enumerate(wr):
        sl=W1_PRE+n//2
        vmx[0].append((n//2, [('vm',it[0],f"W{sl}")]))
    if self.xlate:
        for q in range(7): vmx[1].append((q, xdma(2,q)))
        for q in range(7): vmx[2].append((q, xdma(3,q)))
    else:
        k=0
        for lt in (2,3):
            for q in range(7):
                vmx[0].append((min(27,len(wr)//2+k), xdma(lt,q))); k+=1
    csit=[('needv',["CSP"])]
    for g in range(1,7): csit.append(f"v_add_f32 v184, v184, v{184+g}")
    csit.append(('ds',"ds_write_b32 v191, v184","CSW"))
    for t in range(2):
        for q in range(4):
            csit.append(('ds',f"ds_read_b128 v[{G_CS+16*t+4*q}:{G_CS+16*t+4*q+3}], v55 offset:{t*128+q*32}","CSR"))
    n=0
    for sig in range(5):
        for ca in range(2): vmx[1].append((9+(18*n)//10, self.wd_item(sig,ca))); n+=1
    n=0
    for sig in range(5,14):
        for ca in range(2): vmx[2].append(((8+(19*n)//18) if self.xlate else (1+(26*n)//18), self.wd_item(sig,ca))); n+=1
    for n in range(28): vmx[3].append((max(n//2,(n*self.wdspan)//28), self.wd_item(14+n//2, n%2)))
    S.need_vm(["X0"])
    A("s_barrier")
    self.stamp('x0')
    for s in range(PF):
        for it in bload(0,s): S.item(it)
    BAR=self.bar; csi=[0]
    ST_LOAD,ST_CHK=self.stl,self.stc; _=0
    def emit_pass(p, pre):
        acc=G_ACC[p&1]
        ep=epi_items(p-1) if p>0 else []
        e0=1
        if p==1:
            while csi[0]<len(csit): S.item(csit[csi[0]]); csi[0]+=1
            ep=[('needl',["CSR"])]+sum((stats_final(q) for q in range(4)),[])+ep
            e0=ST_CHK+1
        epi=0
        def cost(it):
            if isinstance(it,tuple):
                return {'ds':5,'vm':20}.get(it[0],1)
            m=it.split()[0]
            if m in ('v_exp_f32','v_rcp_f32','v_sqrt_f32'): return 8.6
            if m.startswith('s_'): return 3
            return 4.3
        fixed=[0.0]*56
        for g_ in range(56):
            sl_,t_=g_//2,g_%2
            fixed[g_]+=5
            if t_==1:
                for (sl,items) in vmx[p]:
                    if sl==sl_: fixed[g_]+=sum(cost(x) for x in items)
            if t_==0 and sl_%2==0: fixed[g_]+=3
        g0=2*e0
        tot=sum(cost(x) for x in ep)
        quota=[0]*56
        if ep:
            lo,hi=0.0,200.0
            for _ in range(30):
                mid=(lo+hi)/2
                if sum(max(0.0,mid-fixed[g_]) for g_ in range(g0,56))>=tot+25: hi=mid
                else: lo=mid
            quota=[max(0.0,hi-fixed[g_]) if g_>=g0 else 0.0 for g_ in range(56)]
        carry=0.0
        for s in range(28):
            if s%2==0: S.need_lds([f"B{p}_{s}a",f"B{p}_{s}b",f"B{p}_{s+1}a",f"B{p}_{s+1}b"])
            if p==0 and s>=pre and s%2==0: S.need_vm([f"W{s}",f"W{s+1}"])
            if p==0 and s>=18 and csi[0]<len(csit):
                for _ in range(2):
                    if csi[0]<len(csit): S.item(csit[csi[0]]); csi[0]+=1
            r=breg(p,s)
            for t in range(2):
                d=acc+16*t
                c="0" if s==0 else f"v[{d}:{d+15}]"
                A(f"v_mfma_f32_32x32x16_bf16 v[{d}:{d+15}], a[{8*s+4*t}:{8*s+4*t+3}], v[{r}:{r+3}], {c}")
                ns=s+PF
                if ns<28: S.item(bload(p,ns)[t])
                elif p<3: S.item(bload(p+1,ns-28)[t])
                gap=2*s+t
                if t==1:
                    for (sl,items) in vmx[p]:
                        if sl==s:
                            for it in items: S.item(it)
                if self.costsched:
                    carry+=quota[gap]
                    while epi<len(ep) and cost(ep[epi])<=carry+1.0:
                        carry-=cost(ep[epi]); S.item(ep[epi]); epi+=1
                elif s>=e0 and ep:
                    ng=2*(28-e0)-1
                    tgt=min(len(ep),(len(ep)*(gap-2*e0+1)+ng-1)//ng)
                    while epi<tgt: S.item(ep[epi]); epi+=1
            if p==1 and s==ST_LOAD:
                for it in stats_loads(): S.item(it)
            if p==1 and s==ST_CHK: stats_check()
            if p<3 and s in (6-PF,13-PF,20-PF,27-PF):
                g={6-PF:0,13-PF:1,20-PF:2,27-PF:3}[s]
                A(f"v_add_u32 v{G_VB+g}, 28672, v{G_VB+g}")
            if p==3 and s==22 and self.emov:
                A(f"s_lshl_b32 s{S_T0+2}, s{S_I}, 7")
                A(f"s_add_u32 s{S_T0+2}, s{S_T0+2}, {WS_CNT3}")
                S.vmem(f"buffer_load_dword v55, v{V_ZERO}, s[{SRD_WS}:{SRD_WS+3}], s{S_T0+2} offen sc1","pollE")
            if s==((4 if self.emov else BAR) if p==3 else BAR):
                if p<3: S.need_vm([f"X{p+1}"])
                if p==0: self.wdflag_check(S)
                if p==3: S.need_vm(["M1_1"])
                A("s_barrier")
                if p==3:
                    l=self.lab()
                    A(f"s_cmp_lg_u32 s{S_W}, 0")
                    A(f"s_cbranch_scc1 {l}")
                    A(f"s_lshl_b32 s{S_T0+2}, s{S_I}, 7")
                    A(f"s_add_u32 s{S_T0+2}, s{S_T0+2}, {WS_CNT3}")
                    A("v_mov_b32 v55, 1")
                    A("s_mov_b64 exec, 1")
                    A(f"buffer_atomic_add v55, v{V_ZERO}, s[{SRD_WS}:{SRD_WS+3}], s{S_T0+2} offen")
                    A("s_mov_b64 exec, -1")
                    A(f"{l}:")
        while epi<len(ep): S.item(ep[epi]); epi+=1
    def w_rest(pre):
        out=[]
        wr=self.w1_items(pre,28); n_=len(wr)
        for n,it in enumerate(wr):
            sl=pre+n//2
            out.append((min(n//2 if not self.split0 else (n*max(1,pre))//max(1,n_) , max(0,sl-4)), [('vm',it[0],f"W{sl}")]))
        return out
    base0=[x for x in vmx[0] if not (isinstance(x[1][0],tuple) and str(x[1][0][2]).startswith('W'))]
    for p in range(4):
        if p==0 and self.split0:
            lB=self.lab('Lp0'); lJ=self.lab('Lp0')
            st=(list(S.lds),list(S.vm),csi[0])
            A(f"s_cmp_lg_u32 s{S_W}, 0")
            A(f"s_cbranch_scc1 {lB}")
            vmx[0]=base0+w_rest(self.split0)
            emit_pass(0,self.split0)
            A(f"s_branch {lJ}")
            A(f"{lB}:")
            S.lds,S.vm,csi[0]=list(st[0]),list(st[1]),st[2]
            vmx[0]=base0
            emit_pass(0,28)
            A(f"{lJ}:")
            A("s_waitcnt vmcnt(0)"); S.vm=[]
        else:
            emit_pass(p,W1_PRE)
        if self.ts and (self.tsonly is None or f'pass{p}' in self.tsonly):
            self.stamp(f'pass{p}'); S.lds=[]
    self.g2_ids()
    self.early_loads=[]
    if self.emov:
        lp=self.lab('Lpoll'); le=self.lab()
        S.need_vm(["pollE"])
        A(f"s_mov_b32 s{S_T0+8}, 0")
        A(f"{lp}:")
        A("v_cmp_gt_u32 vcc, 14, v55")
        A(f"s_cbranch_vccz {le}")
        A(f"buffer_load_dword v55, v{V_ZERO}, s[{SRD_WS}:{SRD_WS+3}], s{S_T0+2} offen sc1")
        A("s_waitcnt vmcnt(0)")
        A(f"s_add_u32 s{S_T0+8}, s{S_T0+8}, 1")
        A(f"s_cmp_lt_u32 s{S_T0+8}, 0x8000")
        A(f"s_cbranch_scc1 {lp}")
        A(f"{le}:")
    else:
        A(f"s_lshl_b32 s{S_T0+2}, s{S_I}, 7")
        A(f"s_add_u32 s{S_T0+2}, s{S_T0+2}, {WS_CNT3}")
        S.vmem(f"buffer_load_dword v55, v{V_ZERO}, s[{SRD_WS}:{SRD_WS+3}], s{S_T0+2} offen sc1","pollE")
    A("s_nop 7")
    acc=G_ACC[1]; E=G_ET
    PMU,PC1=(54,52) if self.emov else (184,186)
    A(f"v_mov_b32 v{PMU}, v{G_MU+3}")
    A(f"v_mov_b32 v{PC1}, v{G_C1+3}")
    ne=0
    for r0 in range(0,16,4):
        for r in (r0,r0+2): A(f"v_pk_fma_f32 v[{acc+r}:{acc+r+1}], v[{G_CS+r}:{G_CS+r+1}], v[{PMU}:{PMU+1}], v[{acc+r}:{acc+r+1}] op_sel_hi:[1,0,1] neg_lo:[0,1,0] neg_hi:[0,1,0]")
        for r in (r0,r0+2): A(f"v_pk_fma_f32 v[{acc+16+r}:{acc+16+r+1}], v[{G_CS+16+r}:{G_CS+16+r+1}], v[{PMU}:{PMU+1}], v[{acc+16+r}:{acc+16+r+1}] op_sel_hi:[1,0,1] neg_lo:[0,1,0] neg_hi:[0,1,0]")
        for r in (r0,r0+2): A(f"v_pk_mul_f32 v[{E+(r&3)}:{E+(r&3)+1}], v[{acc+r}:{acc+r+1}], v[{PC1}:{PC1+1}] op_sel_hi:[1,0]")
        for r in range(4): A(f"v_exp_f32 v{E+r}, v{E+r}")
        if self.emov:
            for _ in range(2): S.vmem(self.m_load_text(0,ne),f"m0_{ne}"); ne+=1
        for r in (r0,r0+2): A(f"v_pk_mul_f32 v[{acc+r}:{acc+r+1}], v[{acc+r}:{acc+r+1}], v[{acc+16+r}:{acc+16+r+1}]")
        for r in (0,2): A(f"v_pk_add_f32 v[{E+r}:{E+r+1}], v[{E+r}:{E+r+1}], 1.0 op_sel_hi:[1,0]")
        for r in range(4): A(f"v_rcp_f32 v{E+r}, v{E+r}")
        for r in (r0,r0+2): A(f"v_pk_mul_f32 v[{acc+r}:{acc+r+1}], v[{acc+r}:{acc+r+1}], v[{E+(r&3)}:{E+(r&3)+1}]")
        q=r0//4
        A(f"v_cvt_pk_bf16_f32 v{G_PK+2*q}, v{acc+r0}, v{acc+r0+1}")
        A(f"v_cvt_pk_bf16_f32 v{G_PK+2*q+1}, v{acc+r0+2}, v{acc+r0+3}")
        if q in (1,3):
            h=q//2
            if h==0: A(f"s_add_u32 s{SM+1}, s{SM}, {3*112*1024}")
            S.vmem(f"buffer_store_dwordx4 v[{G_PK+4*h}:{G_PK+4*h+3}], v48, s[{SRD_WS}:{SRD_WS+3}], s{SM+1} offen offset:{h*1024} sc1",f"M3_{h}")

S_MB=76
@add_method
def g2_ids(self):
    A=self.A
    A(f"s_cmp_ge_u32 s{S_J}, 7")
    A(f"s_cselect_b32 s{S_T0}, 1, 0")
    A(f"s_cselect_b32 s{S_T0+6}, 7, 0")
    A(f"s_sub_u32 s{S_T0+6}, s{S_J}, s{S_T0+6}")
    A(f"s_lshl_b32 s{S_T0+1}, s{S_I}, 2")
    A(f"s_sub_u32 s{S_T0+3}, 3, s{S_T0}")
    A(f"s_add_u32 s{S_T0+3}, s{S_T0+3}, s{S_T0+1}")
    A(f"s_add_u32 s{S_T0+1}, s{S_T0+1}, s{S_T0}")
    A(f"s_mul_i32 s{S_T0+7}, s{S_W}, 28")
    for la,src in ((0,S_T0+1),(1,S_T0+3)):
        A(f"s_mul_i32 s{S_MB+la}, s{src}, 112")
        A(f"s_add_u32 s{S_MB+la}, s{S_MB+la}, s{S_T0+7}")
        A(f"s_lshl_b32 s{S_MB+la}, s{S_MB+la}, 10")
        A(f"s_add_u32 s{S_MB+la}, s{S_MB+la}, {WS_M}")
@add_method
def m_entry(self, la, s): return H_RING+4*((28*la+s+(8 if self.emov else 0))%NRING)
@add_method
def m_load_text(self, la, s):
    r=self.m_entry(la,s)
    if s%8==0 and s>0: self.A(f"s_add_u32 s{S_MB+la}, s{S_MB+la}, 8192")
    va,off=("v48",(s%8)*1024) if s%8<4 else ("v3",(s%8-4)*1024)
    return f"buffer_load_dwordx4 v[{r}:{r+3}], {va}, s[{SRD_WS}:{SRD_WS+3}], s{S_MB+la} offen offset:{off} sc1"

H_ACC=64
H_RING=128
NRING=16
LDS_RED=0
LDS_RES=49152
@add_method
def gemm2(self):
    A=self.A; S=self.S
    if not self.emov:
        lp=self.lab('Lpoll'); le=self.lab()
        A(f"s_mov_b32 s{S_T0+8}, 0")
        A(f"s_waitcnt vmcnt(2)")
        A(f"{lp}:")
        A("v_cmp_gt_u32 vcc, 14, v55")
        A(f"s_cbranch_vccz {le}")
        A(f"buffer_load_dword v55, v{V_ZERO}, s[{SRD_WS}:{SRD_WS+3}], s{S_T0+2} offen sc1")
        A("s_waitcnt vmcnt(0)")
        A(f"s_add_u32 s{S_T0+8}, s{S_T0+8}, 1")
        A(f"s_cmp_lt_u32 s{S_T0+8}, 0x8000")
        A(f"s_cbranch_scc1 {lp}")
        A(f"{le}:")
    S2=Stream(A)
    if self.emov:
        S2.vm=["m0_0","m0_1","m0_2","m0_3","Mfin","m0_4","m0_5","m0_6","m0_7","Mfin"]
    else: S2.vm=["Mfin","Mfin"]
    def mload(la,s):
        S2.vmem(self.m_load_text(la,s), f"m{la}_{s}")
    N0=8 if self.emov else 0
    NPRE=self.npre
    NPRE=max(NPRE,N0) if not self.emov else N0+self.npre2
    for s_ in range(N0,NPRE): mload(0,s_)
    A(f"s_lshl_b32 s{S_T0+11}, s{S_T0+6}, 6")
    A(f"s_lshl_b32 s{S_T0+7}, s{S_NH}, 5")
    A(f"s_add_u32 s{S_T0+11}, s{S_T0+11}, s{S_T0+7}")
    A(f"s_lshl_b32 s{S_T0+7}, s{S_CH}, 4")
    A(f"s_add_u32 s{S_T0+11}, s{S_T0+11}, s{S_T0+7}")
    for la,src,dst in ((0,S_T0+1,S_T0+8),(1,S_T0+3,S_T0+9)):
        A(f"s_mul_i32 s{dst}, s{src}, 448")
        A(f"s_add_u32 s{dst}, s{dst}, s{S_T0+11}")
        A(f"s_lshl_b32 s{dst}, s{dst}, 6")
        A(f"s_add_u32 s{dst}, s{dst}, {WS_HT}")
    A(f"s_lshl_b32 s{S_T0+11}, s{S_T0+11}, 1")
    A(f"s_mul_i32 s{S_T0+14}, s{S_T0+1}, {32*896}")
    A(f"s_add_u32 s{S_T0+14}, s{S_T0+14}, s{S_T0+11}")
    A(f"s_mul_i32 s{S_T0+15}, s{S_T0+3}, {32*896}")
    A(f"s_add_u32 s{S_T0+15}, s{S_T0+15}, s{S_T0+11}")
    A(f"s_lshl_b32 s{S_T0+11}, s{S_W}, 11")
    A(f"s_add_u32 s{S_T0+11}, s{S_T0+11}, {LDS_RES}")
    A(f"s_mov_b32 s{SRD_W}, s{S_OUT}\ns_mov_b32 s{SRD_W+1}, s{S_OUT+1}\ns_mov_b32 s{SRD_W+2}, {L_*D_*2}\ns_mov_b32 s{SRD_W+3}, 0x20000")
    A(f"s_cmp_eq_u32 s{S_T0}, 0")
    A("s_cselect_b64 vcc, -1, 0")
    A(f"v_cndmask_b32 v248, v{G_R2+1}, v{G_R2}, vcc")
    A(f"v_cndmask_b32 v254, v{G_R2+2}, v{G_R2+3}, vcc")
    A("v_mov_b32 v249, v248\nv_mov_b32 v255, v254")
    A(f"v_lshrrev_b32 v50, 5, v{V_LANE}")
    A(f"v_lshlrev_b32 v50, 8, v50")
    A(f"v_bfe_u32 v51, v{V_LANE}, 2, 2")
    A(f"v_lshl_add_u32 v50, v51, 6, v50")
    A(f"v_bfe_u32 v51, v{V_LANE}, 4, 1")
    A(f"v_lshl_add_u32 v50, v51, 5, v50")
    A(f"v_and_b32 v51, 3, v{V_LANE}")
    A(f"v_lshl_add_u32 v50, v51, 3, v50")
    A(f"v_add_u32 v50, s{S_T0+11}, v50")
    A(f"v_and_b32 v52, 31, v{V_LANE}")
    A(f"v_mul_u32_u24 v52, 896, v52")
    A(f"v_lshrrev_b32 v51, 5, v{V_LANE}")
    A(f"v_lshl_add_u32 v52, v51, 4, v52")
    for x in (1,2,3):
        A(f"s_xor_b32 s{S_T0+7}, s{S_W}, {x}")
        A(f"s_mul_i32 s{S_T0+7}, s{S_T0+7}, 6144")
        A(f"s_add_u32 s{S_T0+7}, s{S_T0+7}, {LDS_RED+(x-1)*2048}")
        A(f"v_add_u32 v{43+x}, s{S_T0+7}, v48")
    A(f"s_mul_i32 s{S_T0+7}, s{S_W}, 6144")
    A(f"s_add_u32 s{S_T0+7}, s{S_T0+7}, {LDS_RED}")
    A(f"v_add_u32 v47, s{S_T0+7}, v48")
    S2.need_vm(["Mfin"])
    A("s_barrier")
    l=self.lab()
    A(f"s_lshl_b32 s{S_T0+10}, s{S_I}, 7")
    A(f"s_add_u32 s{S_T0+10}, s{S_T0+10}, {WS_CNT3+2048}")
    A(f"s_cmp_lg_u32 s{S_W}, 0")
    A(f"s_cbranch_scc1 {l}")
    A("v_mov_b32 v55, 1")
    A("s_mov_b64 exec, 1")
    A(f"buffer_atomic_add v55, v{V_ZERO}, s[{SRD_WS}:{SRD_WS+3}], s{S_T0+10} offen")
    l2=self.lab()
    A(f"s_cmp_lg_u32 s{S_WG}, 0")
    A(f"s_cbranch_scc1 {l2}")
    A(f"v_mov_b32 v55, s{S_TAG}")
    A(f"buffer_store_dword v55, v{V_ZERO}, s[{SRD_WS}:{SRD_WS+3}], 0 offen sc1")
    A(f"{l2}:")
    A("s_mov_b64 exec, -1")
    A(f"{l}:")
    self.stamp('sync3 arrive')
    def by_half(fn):
        la_=self.lab('Lh'); lb_=self.lab('Lh')
        A(f"s_cmp_ge_u32 s{S_W}, 2")
        A(f"s_cbranch_scc1 {la_}")
        fn(0)
        A(f"s_branch {lb_}")
        A(f"{la_}:")
        fn(1)
        A(f"{lb_}:")
    def red_write(la):
        def f(h):
            b0=H_ACC+32*la; b1=b0+16
            for x,r in ((2,b0+8*(1-h)),(1,b1+8*h),(3,b1+8*(1-h))):
                for q in range(2):
                    A(f"ds_write_b128 v{43+x}, v[{r+4*q}:{r+4*q+3}] offset:{la*24576+q*1024}")
        by_half(f)
    def red_final(la):
        P=208; RS=232; O=244
        A(f"ds_read_b64_tr_b16 v[{RS}:{RS+1}], v50 offset:{la*1024}")
        A(f"ds_read_b64_tr_b16 v[{RS+2}:{RS+3}], v50 offset:{la*1024+512}")
        for k in range(3):
            for q in range(2):
                A(f"ds_read_b128 v[{P+8*k+4*q}:{P+8*k+4*q+3}], v47 offset:{la*24576+k*2048+q*1024}")
        A("s_waitcnt lgkmcnt(6)")
        for d in range(4): A(bf16_lo(RS+4+2*d,RS+d)); A(bf16_hi(RS+5+2*d,RS+d))
        A("s_waitcnt lgkmcnt(2)")
        for r in range(0,8,2): A(f"v_pk_add_f32 v[{P+r}:{P+r+1}], v[{P+r}:{P+r+1}], v[{P+8+r}:{P+8+r+1}]")
        A("s_waitcnt lgkmcnt(0)")
        for r in range(0,8,2): A(f"v_pk_add_f32 v[{P+r}:{P+r+1}], v[{P+r}:{P+r+1}], v[{P+16+r}:{P+16+r+1}]")
        def f(h):
            b=H_ACC+32*la+8*h
            for r in range(0,8,2): A(f"v_pk_add_f32 v[{P+r}:{P+r+1}], v[{P+r}:{P+r+1}], v[{b+r}:{b+r+1}]")
        by_half(f)
        r2=(248,254)[la]
        if self.mimic>=1:
            for r in range(0,8,2): A(f"v_pk_mul_f32 v[{P+r}:{P+r+1}], v[{P+r}:{P+r+1}], v[{r2}:{r2+1}]")
            for r in range(0,8,2): A(f"v_cvt_pk_bf16_f32 v{O+r//2}, v{P+r}, v{P+r+1}")
            for r in range(0,8,2): A(bf16_lo(P+r,O+r//2)); A(bf16_hi(P+r+1,O+r//2))
            for r in range(0,8,2): A(f"v_pk_add_f32 v[{P+r}:{P+r+1}], v[{P+r}:{P+r+1}], v[{RS+4+r}:{RS+4+r+1}]")
        else:
            for r in range(0,8,2): A(f"v_pk_fma_f32 v[{P+r}:{P+r+1}], v[{P+r}:{P+r+1}], v[{r2}:{r2+1}], v[{RS+4+r}:{RS+4+r+1}]")
        if self.perturb:
            for r in range(8): A(f"v_add_f32 v{P+r}, {fl(self.perturb)}, v{P+r}")
        for r in range(0,8,2): A(f"v_cvt_pk_bf16_f32 v{O+r//2}, v{P+r}, v{P+r+1}")
        A(f"v_permlane32_swap_b32 v{O}, v{O+2}")
        A(f"v_permlane32_swap_b32 v{O+1}, v{O+3}")
        return f"buffer_store_dwordx4 v[{O}:{O+3}], v52, s[{SRD_W}:{SRD_W+3}], s{S_T0+14+la} offen"
    def mf(la,s):
        for ca in range(2):
            d=H_ACC+16*(2*la+ca)
            c="0" if s==0 else f"v[{d}:{d+15}]"
            k,r=wd_loc(s,ca); rr=self.m_entry(la,s)
            A(f"v_mfma_f32_32x32x16_bf16 v[{d}:{d+15}], {k}[{r}:{r+3}], v[{rr}:{rr+3}], {c}")
    for s_ in range(NPRE,NRING): mload(0,s_)
    POLL_AT=28-NRING
    for s_ in range(28):
        S2.need_vm([f"m0_{s_}"])
        mf(0,s_)
        if s_+NRING<28: mload(0,s_+NRING)
        if s_==POLL_AT-1:
            S2.vmem(f"buffer_load_dword v55, v{V_ZERO}, s[{SRD_WS}:{SRD_WS+3}], s{S_T0+10} offen sc1","pollL")
            A(f"s_mov_b32 m0, s{S_T0+11}")
            S2.vmem(f"buffer_load_dwordx4 v48, s[{SRD_WS}:{SRD_WS+3}], s{S_T0+8} offen sc1 lds","res")
            A(f"s_add_u32 m0, s{S_T0+11}, 1024")
            S2.vmem(f"buffer_load_dwordx4 v48, s[{SRD_WS}:{SRD_WS+3}], s{S_T0+9} offen sc1 lds","res")
        if s_==POLL_AT+5:
            lp=self.lab('Lpoll'); le=self.lab()
            S2.need_vm(["pollL"])
            A(f"s_mov_b32 s{S_T0+7}, 0")
            A(f"{lp}:")
            if self.pp>1:
                lq=self.lab('Lpoll')
                A("v_cmp_gt_u32 vcc, 14, v55")
                A(f"s_cbranch_vccz {le}")
                A(f"buffer_load_dword v54, v{V_ZERO}, s[{SRD_WS}:{SRD_WS+3}], s{S_T0+10} offen sc1")
                A(f"{lq}:")
                for a_,b_ in ((55,54),(54,55)):
                    A(f"buffer_load_dword v{a_}, v{V_ZERO}, s[{SRD_WS}:{SRD_WS+3}], s{S_T0+10} offen sc1")
                    A("s_waitcnt vmcnt(1)")
                    A(f"v_cmp_gt_u32 vcc, 14, v{b_}")
                    A(f"s_cbranch_vccz {le}")
                A(f"s_add_u32 s{S_T0+7}, s{S_T0+7}, 1")
                A(f"s_cmp_lt_u32 s{S_T0+7}, 0x4000")
                A(f"s_cbranch_scc1 {lq}")
            else:
                A("v_cmp_gt_u32 vcc, 14, v55")
                A(f"s_cbranch_vccz {le}")
                A(f"buffer_load_dword v55, v{V_ZERO}, s[{SRD_WS}:{SRD_WS+3}], s{S_T0+10} offen sc1")
                A("s_waitcnt vmcnt(0)")
                A(f"s_add_u32 s{S_T0+7}, s{S_T0+7}, 1")
                A(f"s_cmp_lt_u32 s{S_T0+7}, 0x8000")
                A(f"s_cbranch_scc1 {lp}")
            A(f"{le}:")
            self.stamp('late ready')
            nl=0
            while nl<28 and (28+nl)-NRING <= s_: mload(1,nl); nl+=1
        elif s_>POLL_AT+5:
            while nl<28 and (28+nl)-NRING <= s_: mload(1,nl); nl+=1
    self.stamp('early done')
    for s_ in range(28):
        S2.need_vm([f"m1_{s_}"])
        mf(1,s_)
        while nl<28 and (28+nl)-NRING <= 28+s_: mload(1,nl); nl+=1
        if s_==5:
            red_write(0)
        if s_==13:
            A("s_waitcnt lgkmcnt(0)")
            A("s_barrier")
            st=red_final(0)
            S2.vmem(st,"out0")
    self.stamp('late done')
    A("s_nop 11")
    red_write(1)
    A("s_waitcnt lgkmcnt(0)")
    A("s_barrier")
    self.stamp('red barrier')
    A(red_final(1))

@add_method
def dump_lds(self, lds_off, nbytes, ws_off_per_wg):
    A=self.A
    A("s_waitcnt vmcnt(0) lgkmcnt(0)")
    A("s_barrier")
    A(f"v_lshlrev_b32 v48, 4, v{V_T}")
    A(f"s_mul_i32 s{S_T0}, s{S_WG}, {ws_off_per_wg}")
    A(f"s_add_u32 s{S_T0}, s{S_T0}, {WS_DBG}")
    for k in range(nbytes//4096):
        A(f"v_add_u32 v49, {lds_off+k*4096}, v48")
        A("ds_read_b128 v[52:55], v49")
        A("s_waitcnt lgkmcnt(0)")
        A(f"s_add_u32 s{S_T0+1}, s{S_T0}, {k*4096}")
        A(f"buffer_store_dwordx4 v[52:55], v48, s[{SRD_WS}:{SRD_WS+3}], s{S_T0+1} offen")
        A("s_waitcnt vmcnt(0)")

@add_method
def dump_regs(self, first, n, kind='v'):
    A=self.A
    A("s_waitcnt vmcnt(0) lgkmcnt(0)")
    A("s_nop 15")
    A(f"v_lshlrev_b32 v3, 2, v{V_T}")
    A(f"s_mul_i32 s{S_T0}, s{S_WG}, {n*1024}")
    A(f"s_add_u32 s{S_T0}, s{S_T0}, {WS_DBG}")
    for k in range(n):
        A(f"s_add_u32 s{S_T0+1}, s{S_T0}, {k*1024}")
        A(f"buffer_store_dword {kind}{first+k}, v3, s[{SRD_WS}:{SRD_WS+3}], s{S_T0+1} offen")
    A("s_waitcnt vmcnt(0)")

@add_method
def build(self):
    A=self.A
    stop=self.stop_after
    def done(name):
        return stop==name
    self.prologue()
    self.phase0_loads()
    A("v_mov_b32 v56, 0\nv_mov_b32 v57, 0\nv_mov_b32 v58, 0\nv_mov_b32 v59, 0")
    l=self.lab()
    A(f"s_cmp_lg_u32 s{S_W}, 0")
    A(f"s_cbranch_scc1 {l}")
    A(f"v_and_b32 v50, 31, v{V_LANE}")
    A(f"v_lshlrev_b32 v50, 4, v50")
    A(f"v_lshrrev_b32 v51, 5, v{V_LANE}")
    A(f"v_mul_u32_u24 v51, {U_CH}, v51")
    A(f"v_add_u32 v50, v50, v51")
    A(f"v_add_u32 v50, {LDS_U}, v50")
    A(f"ds_write_b128 v50, v[56:59]")
    A(f"v_lshrrev_b32 v50, 1, v{V_LANE}")
    A(f"v_and_b32 v50, 7, v50")
    A(f"v_mul_u32_u24 v50, {KX_COPY}, v50")
    A(f"v_and_b32 v51, 1, v{V_LANE}")
    A(f"v_lshl_add_u32 v50, v51, 4, v50")
    A(f"v_add_u32 v50, {LDS_KX+4096}, v50")
    A(f"ds_write_b128 v50, v[56:59]")
    A(f"{l}:")
    self.conv_setup()
    self.stamp('index done')
    self.xjob_post()
    self.stamp('xjob post')
    self.kgen_setup()
    self.stamp('kgen setup')
    self.kgen_gen()
    self.stamp('kgen')
    if done('kx'):
        self.kexpand()
        A("s_waitcnt lgkmcnt(0)")
        A("s_barrier")
        self.dump_lds(LDS_KX, 36864, 36864); return self.finish()
    self.kexpand()
    self.stamp('kexpand')
    self.x_prepare()
    self.granule_wait()
    self.stamp('x flags')
    if self.xmode=='xt': self.xt_loads()
    self.stats_consume()
    self.stamp('u ready')
    if done('u'):
        self.dump_lds(LDS_U-LDS_U%16, 20480, 20480); return self.finish()
    self.conv()
    self.stamp('conv done')
    self.sync_all()
    self.stamp('sync2 arrive')
    if self.wdrain:
        lc=self.lab()
        A(f"s_cmp_lg_u32 s3, 0")
        A(f"s_cbranch_scc1 {lc}")
        self.flag_wait(0x3fff, landed=True)
        self.w1_loads(0,self.wdrain)
        A(f"{lc}:")
        self.w1_in_conv=self.wdrain
    elif not self.w1start:
        self.flag_wait(0x3fff, landed=True)
        self.stamp('w1 flags')
    if self.split0:
        lA=self.lab(); lB=self.lab()
        A(f"s_cmp_lg_u32 s{S_W}, 0")
        A(f"s_cbranch_scc1 {lA}")
        self.w1_loads(0,self.split0)
        A(f"s_branch {lB}")
        A(f"{lA}:")
        self.w1_loads(0,28)
        A(f"{lB}:")
    else:
        self.w1_loads(self.w1_in_conv,W1_PRE)
    self.stamp('cs done')
    self.sync_all_wait(sleep=self.msleep)
    self.stamp('sync2 passed')
    if done('w1'):
        self.dump_regs(0,224,'a'); return self.finish()
    if done('conv'): return self.finish()
    self.gemm1()
    self.stamp('gemm1 done')
    self.gemm2()
    return self.finish()

@add_method
def finish(self):
    A=self.A
    if self.ts:
        A("s_waitcnt vmcnt(0)")
        self.stamp('end')
        l=self.lab()
        A(f"s_cmp_lg_u32 s{S_W}, {self.tswave}")
        A(f"s_cbranch_scc1 {l}")
        A("v_mov_b32 v4, 0")
        for k in range(self.nts): A(f"v_writelane_b32 v4, s{86+k}, {k}")
        A(f"v_lshlrev_b32 v5, 2, v{V_LANE}")
        A(f"s_lshl_b32 s{S_T0}, s{S_WG}, 8")
        A(f"s_add_u32 s{S_T0}, s{S_T0}, {WS_TS}")
        A(f"buffer_store_dword v4, v5, s[{SRD_WS}:{SRD_WS+3}], s{S_T0} offen")
        l2=self.lab()
        A(f"s_cmp_lg_u32 s{S_WG}, 0")
        A(f"s_cbranch_scc1 {l2}")
        A(f"global_store_dword v5, v4, s[{S_DBG}:{S_DBG+1}]")
        A(f"{l2}:")
        A(f"{l}:")
    A("L_end:")
    A("s_endpgm")
    self.helper()
    A("L_codeend:")
    body, nfix, probs = hazard_fix(A.L)
    for p in probs: print("HAZARD(backedge):", p, file=sys.stderr)
    errs = wait_lint(body)
    for e in errs[:40]: print("WAITLINT:", e, file=sys.stderr)
    hdr = [
     "; Fused preLN + S4D long-conv + preLN + SwiGLU FFN: one persistent launch, 224 main + 32 helper workgroups (one per CU).",
     "; Generated by the author's own generator script (gen/gen.py); no compiler output.",
     "; Main workgroup wg (< 224): owns channel pair d0 = 2*((wg&7)*28 + (wg>>3)) for the convolution,",
     ";   then tile (i: 128 rows, j: 128 gate/up columns) of GEMM1 and a 64x64 output tile of GEMM2.",
     ";  1. LN1 row statistics of 8 rows per workgroup, published as tagged 8-byte granules in d_ws.",
     ";  2. S4D kernel K[d][p] at the 641 distinct bf16-rounded positions: exp(A dt (r + 8b)) = exp(A dt r) exp(A dt 8b), the sum over",
     ";     the 256 modes is one f16 MFMA product (21 x 32); expanded to 2048 lags in LDS (4 shifted copies).",
     ";  3. causal convolution as block-Toeplitz 16x16x32 f16 MFMAs, h = x + y + u*D, h^T written to d_ws; grid barrier (sharded counters).",
     ";  4. GEMM1 with the weight panel resident in AGPRs, LN2 applied algebraically: g = r (h W - mean * colsum W); SwiGLU epilogue;",
     ";     m is written in MFMA-fragment order; per-row-tile counters hand it over to GEMM2 (split-K over the 4 waves) + residual.",
     "; Helper workgroups (224..255): transpose the weights into MFMA fragments (+ partial column sums), later the LN2 row statistics.",
     "; Hand-offs use write-through (sc1) stores, drained before a tagged flag / counter is published; every spin loop is bounded.",
     "; The tag is derived from the word found in d_ws[0] at entry (only to tell this launch's hand-offs from an earlier launch's).",
     f"; @launch grid=({NGRID},1,1) block=(256,1,1) lds={LDS_TOTAL}",
     '.amdgcn_target "amdgcn-amd-amdhsa--gfx950"',
     ".text", f".globl {KNAME}", ".p2align 8", f".type {KNAME},@function", f"{KNAME}:"]
    ftr = ['.section .rodata,"a"', ".p2align 6", f".amdhsa_kernel {KNAME}",
     "  .amdhsa_next_free_vgpr 512", "  .amdhsa_next_free_sgpr 102", "  .amdhsa_accum_offset 256",
     "  .amdhsa_group_segment_fixed_size 0", "  .amdhsa_kernarg_size 112", "  .amdhsa_user_sgpr_count 2",
     "  .amdhsa_user_sgpr_kernarg_segment_ptr 1", "  .amdhsa_system_sgpr_workgroup_id_x 1",
     ".end_amdhsa_kernel"]
    self.nfix=nfix
    return "\n".join(hdr+body+ftr)+"\n"

if __name__=="__main__":
    import argparse
    ap=argparse.ArgumentParser(); ap.add_argument("-o",default="out.s"); ap.add_argument("--stop",default=None); ap.add_argument("--mimic",type=int,default=2); ap.add_argument("--ts",action="store_true"); ap.add_argument("--perturb",type=float,default=0.0); ap.add_argument("--tsset",default="main"); ap.add_argument("--cyc",action="store_true"); ap.add_argument("--tswave",type=int,default=0); ap.add_argument("--hts",action="store_true"); ap.add_argument("--xmode",default="gather"); ap.add_argument("--wpf",type=int,default=2); ap.add_argument("--w1pf",type=int,default=0); ap.add_argument("--pp",type=int,default=0); ap.add_argument("--wdrain",type=int,default=0); ap.add_argument("--bar",type=int,default=16); ap.add_argument("--stl",type=int,default=6); ap.add_argument("--stc",type=int,default=12); ap.add_argument("--split0",type=int,default=0); ap.add_argument("--gidx",default="1,10,19,28,37"); ap.add_argument("--ng0",type=int,default=2); ap.add_argument("--emov",type=int,default=0); ap.add_argument("--wdspan",type=int,default=28); ap.add_argument("--npre2",type=int,default=4); ap.add_argument("--npre",type=int,default=6); ap.add_argument("--w1start",type=int,default=0); ap.add_argument("--w1n",type=int,default=9); ap.add_argument("--w1step",type=int,default=4); ap.add_argument("--fsleep",type=int,default=0); ap.add_argument("--xlate",type=int,default=1); ap.add_argument("--map",type=int,default=1); ap.add_argument("--cs",type=int,default=0); ap.add_argument("--hsleep",type=int,default=0); ap.add_argument("--msleep",type=int,default=0); ap.add_argument("--w1pre",type=int,default=16)
    a=ap.parse_args()
    g=Gen(stop_after=a.stop, mimic=a.mimic, ts=a.ts, perturb=a.perturb)
    if a.tsset=='main': g.tsonly=set(['xjob post','kgen','x flags','u ready','conv done','sync2 arrive','w1 flags','cs done','sync2 passed','gemm1 done','sync3 arrive','early done','late ready','end'])
    if a.cyc: g.tsop='s_memtime'
    g.tswave=a.tswave; g.hts=a.hts; g.xmode=a.xmode; g.pp=a.pp; g.wdrain=a.wdrain; g.bar=a.bar; g.stl=a.stl; g.stc=a.stc; g.split0=a.split0; g.gidx=tuple(int(x) for x in a.gidx.split(',') if x); g.ng0=a.ng0; g.wdspan=a.wdspan; g.emov=a.emov; g.npre2=a.npre2; g.npre=a.npre; g.w1start=a.w1start; g.w1n=a.w1n; g.w1step=a.w1step; g.fsleep=a.fsleep; g.xlate=a.xlate; g.map=a.map; g.costsched=a.cs; g.hsleep=a.hsleep; g.msleep=a.msleep; g.wpf=a.wpf; g.w1pf=a.w1pf; globals().__setitem__('W1_PRE',a.w1pre)
    if a.tsset=='end': g.tsonly=set(['end'])
    if a.tsset=='g': g.tsonly=set(['sync2 passed','x0','pass0','pass1','pass2','pass3','gemm1 done','sync3 arrive','early done','late ready','late done','red barrier','end'])
    if a.tsset=='start': g.tsonly=set(['kernarg','all issued','index done','xjob post','kgen setup','gen done','wjob post','kmfma','kbar1','kgen','x flags','kexpand','xt landed','u ready','end'])
    txt=g.build()
    open(a.o,"w").write(txt)
    print("wrote",a.o,len(txt.splitlines()),"lines; nops inserted:",g.nfix, "stamps:", g.tsnames, file=sys.stderr)
```

```python
import sys, math
sys.path.insert(0, "gen")
from asmlib import *

KNAME = "sequential_preLN__ssm_conv_s4d__swiglu_ffn__prompt_kernel"
L_, D_, N_, F_ = 2048, 448, 256, 1792
NWG = 224
NGRID = 256

WS_EPOCH = 0
WS_CNT2  = 4096
WS_CNT3  = 12288
WS_STATS = 32768
WS_HT    = 1 << 20
WS_M     = 4 << 20
WS_ST2   = 49152
WS_JF    = 65536
WS_XF    = 196608
WS_CSF   = 131072
WS_CS    = 294912
WS_XT    = 12 << 20
WS_WF1   = 18 << 20
WS_WFD   = 22 << 20
WS_DBG   = 32 << 20
WS_TS    = 16 << 20
WS_SIZE  = 268435456

KG_PITCH = 528
KG_WAVE  = 53 * KG_PITCH
LDS_KX   = 112000
KX_COPY  = 4160
KX_CH    = 4 * KX_COPY
LDS_U    = LDS_KX + 2 * KX_CH
U_CH     = 4608
LDS_XT   = LDS_U + 2 * U_CH
XT_CH    = 4096
LDS_TOTAL = 163840
assert LDS_XT + 2 * XT_CH <= LDS_TOTAL
LDS_JOB = LDS_KX
LDS_CSP = LDS_KX + 32768
assert LDS_CSP + 512 <= LDS_U

S_WG=2
S_X=8; S_LOGA=10; S_AIM=12; S_CR=14; S_CI=16; S_LOGDT=18; S_DSK=20; S_BX=22
S_WGT=24; S_WUP=26; S_WD=28; S_OUT=30; S_DBG=32; S_WS=34
SRD_X=36; SRD_WS=40; SRD_W=44; SRD_W2=48
S_W=52
S_CH=53
S_NH=54
S_D0=55
S_TAG=56
S_I=57; S_J=58
S_T0=60
S_YS=80
S_DSKV=81
S_DT=82
S_W1I=83
S_JDST=84
S_JL=85
S_GW=59
S_JE=78
S_JK=79

LOG2E = 1.4426950408889634
INV2PI = 0.15915494309189535
def f2u(x):
    import struct
    return struct.unpack('<I', struct.pack('<f', x))[0]
def fl(x): return hex(f2u(x))

class Gen:
    def __init__(self, stop_after=None, dbg=False, mimic=2, ts=False, perturb=0.0):
        self.A = Asm(); self.stop_after = stop_after; self.dbg = dbg; self.mimic = mimic
        self.nlab = 0; self.ts=ts; self.nts=0; self.tsnames=[]; self.perturb=perturb; self.tsonly=None; self.xmode='gather'; self.costsched=0; self.map=1; self.xlate=1; self.w1start=0; self.w1_in_conv=0; self.w1n=9; self.w1step=4; self.fsleep=0; self.npre=6; self.wdspan=28; self.emov=0; self.npre2=4; self.gidx=(1,10,19,28,37); self.ng0=2; self.split0=0; self.bar=16; self.stl=6; self.stc=12; self.wdrain=0; self.z8sq=1; self.aug=0; self.pp=0; self.hsleep=0; self.msleep=0; self.wpf=2; self.w1pf=0; self.tsop='s_memrealtime'; self.tswave=0
    def stamp(self, name):
        if not self.ts: return
        if self.tsonly is not None and name not in self.tsonly: return
        k=self.nts; self.nts+=1; self.tsnames.append(name); assert k<16
        A=self.A
        A("s_waitcnt lgkmcnt(0)")
        A(f"{self.tsop} s[6:7]")
        A("s_waitcnt lgkmcnt(0)")
        A(f"s_mov_b32 s{86+k}, s6")
    def lab(self, p='L'):
        self.nlab += 1; return f"{p}_{self.nlab}"

    def prologue(self):
        A = self.A
        A(f"s_cmp_ge_u32 s{S_WG}, {NGRID}")
        A("s_cbranch_scc1 L_end")
        if self.ts:
            A(f"{self.tsop} s[6:7]")
            A("s_waitcnt lgkmcnt(0)")
            A("s_mov_b32 s86, s6"); self.nts=1; self.tsnames.append('start')
        A(f"s_load_dwordx16 s[8:23], s[0:1], 0")
        A(f"s_load_dwordx8 s[24:31], s[0:1], 64")
        A(f"s_load_dwordx4 s[32:35], s[0:1], 96")
        A("s_getpc_b64 s[4:5]")
        A("L_pc:")
        A("v_lshlrev_b32 v1, 7, v0")
        A("v_add_u32 v2, 0x8000, v1")
        A("v_min_u32 v1, (L_codeend-L_pc-4), v1")
        A("global_load_dword v255, v1, s[4:5]")
        A("v_min_u32 v2, (L_codeend-L_pc-4), v2")
        A("global_load_dword v254, v2, s[4:5]")
        A("v_lshrrev_b32 v2, 6, v0")
        A("v_and_b32 v1, 63, v0")
        A(f"v_readfirstlane_b32 s{S_W}, v2")
        A(f"s_lshr_b32 s{S_CH}, s{S_W}, 1")
        A(f"s_and_b32 s{S_NH}, s{S_W}, 1")
        A(f"s_cmp_ge_u32 s{S_WG}, {NWG}")
        A("s_cbranch_scc1 L_helper")
        A(f"s_and_b32 s{S_T0}, s{S_WG}, 7")
        A(f"s_mul_i32 s{S_T0}, s{S_T0}, 28")
        A(f"s_lshr_b32 s{S_T0+1}, s{S_WG}, 3")
        A(f"s_add_u32 s{S_T0}, s{S_T0}, s{S_T0+1}")
        A(f"s_lshl_b32 s{S_D0}, s{S_T0}, 1")
        if self.map==0:
            A(f"s_mul_i32 s{S_T0+2}, s{S_T0+1}, 37")
            A(f"s_lshr_b32 s{S_T0+2}, s{S_T0+2}, 8")
            A(f"s_mul_i32 s{S_T0+3}, s{S_T0+2}, 7")
            A(f"s_sub_u32 s{S_T0+3}, s{S_T0+1}, s{S_T0+3}")
            A(f"s_and_b32 s{S_T0+4}, s{S_WG}, 7")
            A(f"s_lshr_b32 s{S_T0+5}, s{S_T0+4}, 1")
            A(f"s_lshl_b32 s{S_T0+5}, s{S_T0+5}, 2")
            A(f"s_add_u32 s{S_I}, s{S_T0+5}, s{S_T0+2}")
            A(f"s_and_b32 s{S_T0+4}, s{S_T0+4}, 1")
            A(f"s_mul_i32 s{S_T0+4}, s{S_T0+4}, 7")
            A(f"s_add_u32 s{S_J}, s{S_T0+4}, s{S_T0+3}")
        else:
            A(f"s_and_b32 s{S_T0+2}, s{S_WG}, 3")
            A(f"s_mul_i32 s{S_T0+2}, s{S_T0+2}, 28")
            A(f"s_add_u32 s{S_T0+2}, s{S_T0+2}, s{S_T0+1}")
            A(f"s_lshr_b32 s{S_J}, s{S_T0+2}, 3")
            A(f"s_and_b32 s{S_T0+2}, s{S_T0+2}, 7")
            A(f"s_bfe_u32 s{S_T0+3}, s{S_WG}, 0x10002")
            A(f"s_lshl_b32 s{S_T0+3}, s{S_T0+3}, 3")
            A(f"s_add_u32 s{S_I}, s{S_T0+2}, s{S_T0+3}")

def q7check():
    for q in range(28): assert (q*37)>>8 == q//7, q
q7check()

def add_method(f):
    setattr(Gen, f.__name__, f); return f

V_LANE=1
V_T=0
V_ZERO=2
V_XG=8
V_OFF=16
V_EP=27
V_PA=28
V_SX=36
V_TMP=48

@add_method
def phase0_loads(self):
    A=self.A
    A("s_waitcnt lgkmcnt(0)")
    self.stamp('kernarg')
    A(f"s_mov_b32 s{SRD_X}, s{S_X}\ns_mov_b32 s{SRD_X+1}, s{S_X+1}\ns_mov_b32 s{SRD_X+2}, {L_*D_*2}\ns_mov_b32 s{SRD_X+3}, 0x20000")
    A(f"s_mov_b32 s{SRD_WS}, s{S_WS}\ns_mov_b32 s{SRD_WS+1}, s{S_WS+1}\ns_mov_b32 s{SRD_WS+2}, {WS_SIZE}\ns_mov_b32 s{SRD_WS+3}, 0x20000")
    A(f"v_mov_b32 v{V_ZERO}, 0")
    self.job_roles()
    l=self.lab()
    A(f"s_cmp_lg_u32 s{S_WG}, {NWG-1}")
    A(f"s_cbranch_scc1 {l}")
    self.zero_counters_body()
    A(f"{l}:")
    self.xjob_issue()
    A(f"s_add_u32 s{S_T0+3}, s{S_D0}, s{S_CH}")
    A(f"s_lshl_b32 s{S_T0+3}, s{S_T0+3}, 9")
    A(f"s_lshl_b32 s{S_T0+4}, s{S_NH}, 8")
    A(f"s_add_u32 s{S_T0+3}, s{S_T0+3}, s{S_T0+4}")
    A(f"v_lshl_add_u32 v8, v{V_LANE}, 2, s{S_T0+3}")
    A(f"v_xor_b32 v9, 256, v8")
    A(f"global_load_dword v{V_PA}, v8, s[{S_LOGA}:{S_LOGA+1}]")
    A(f"global_load_dword v{V_PA+1}, v8, s[{S_AIM}:{S_AIM+1}]")
    A(f"global_load_dword v{V_PA+2}, v8, s[{S_CR}:{S_CR+1}]")
    A(f"global_load_dword v{V_PA+3}, v8, s[{S_CI}:{S_CI+1}]")
    A(f"global_load_dword v{V_PA+4}, v9, s[{S_CR}:{S_CR+1}]")
    A(f"global_load_dword v{V_PA+5}, v9, s[{S_CI}:{S_CI+1}]")
    A(f"s_lshl_b32 s{S_T0+4}, s{S_D0}, 1")
    A(f"s_load_dword s{S_DT}, s[{S_LOGDT}:{S_LOGDT+1}], s{S_T0+4}")
    A(f"s_load_dword s{S_DSKV}, s[{S_DSK}:{S_DSK+1}], s{S_T0+4}")
    A(f"global_load_dword v{V_EP}, v{V_ZERO}, s[{S_WS}:{S_WS+1}] sc1")
    if self.xmode=='gather':
        self.gl=self.gather_items(); self.gi=0
        for _ in range(self.ng0): A(self.gl[self.gi]); self.gi+=1
    if self.wpf:
        lpf=self.lab()
        A(f"s_cmp_ge_u32 s{S_W}, {self.wpf}")
        A(f"s_cbranch_scc1 {lpf}")
        A(f"s_cmp_eq_u32 s{S_W}, 0")
        A(f"s_cselect_b32 s{SRD_W}, s{S_WGT}, s{S_WUP}")
        A(f"s_cselect_b32 s{SRD_W+1}, s{S_WGT+1}, s{S_WUP+1}")
        A(f"s_cmp_eq_u32 s{S_W}, 2")
        A(f"s_cselect_b32 s{SRD_W}, s{S_WD}, s{SRD_W}")
        A(f"s_cselect_b32 s{SRD_W+1}, s{S_WD+1}, s{SRD_W+1}")
        A(f"s_mov_b32 s{SRD_W+2}, {D_*F_*2}")
        A(f"s_mov_b32 s{SRD_W+3}, 0x20000")
        A(f"v_min_u32 v5, 55, v{V_LANE}")
        A(f"v_lshlrev_b32 v5, 7, v5")
        A(f"s_mul_i32 s{S_T0}, s{S_WG}, {56*128}")
        A(f"buffer_load_dword v253, v5, s[{SRD_W}:{SRD_W+3}], s{S_T0} offen")
        A(f"{lpf}:")
    self.stamp('all issued')
    A(f"s_mul_i32 s{S_T0+5}, s{S_W}, {KG_WAVE}")
    A(f"v_and_b32 v182, 31, v{V_LANE}")
    A(f"v_lshrrev_b32 v183, 5, v{V_LANE}")
    A(f"v_lshlrev_b32 v176, 4, v182")
    A(f"v_lshl_add_u32 v176, v183, 3, v176")
    A(f"v_add_u32 v176, s{S_T0+5}, v176")
    A(f"v_lshlrev_b32 v177, 3, v182")
    A(f"v_add_u32 v177, 512, v177")
    A(f"v_lshlrev_b32 v178, 2, v182")
    A(f"v_add_u32 v178, 768, v178")
    A(f"v_cmp_eq_u32 vcc, 1, v183")
    A(f"v_cndmask_b32 v177, v177, v178, vcc")
    A(f"v_add_u32 v177, s{S_T0+5}, v177")
    A(f"v_mov_b32 v178, 4")
    A(f"v_mov_b32 v179, 128")
    A(f"v_cndmask_b32 v178, v178, v179, vcc")
    A(f"v_add_u32 v178, v177, v178")
    A(f"v_lshlrev_b32 v179, 1, v182")
    A(f"v_lshl_add_u32 v179, v183, 8, v179")
    A(f"v_add_u32 v179, s{S_T0+5}, v179")
    A(f"v_lshlrev_b32 v48, 3, v{V_T}")
    for x in range(11):
        o=V_OFF+x
        A(f"v_sub_u32 v49, {2047-x}, v48")
        A(f"v_cvt_f32_i32 v50, v49")
        A(f"v_cvt_pk_bf16_f32 v50, v50, v50")
        A(f"v_and_b32 v50, 0xffff, v50")
        A(f"v_subrev_u32 v50, 17024, v50")
        A(f"v_cmp_gt_i32 vcc, 128, v49")
        A(f"v_cndmask_b32 v50, v50, v49, vcc")
        if x>=8:
            A(f"v_cmp_gt_i32 vcc, 0, v49")
            A(f"v_mov_b32 v51, 768")
            A(f"v_cndmask_b32 v50, v50, v51, vcc")
        A(f"v_lshlrev_b32 v{o}, 1, v50")

NWJ = 588
LDS_XB = LDS_JOB + 3*8192

@add_method
def job_roles(self):
    A=self.A
    A(f"s_mul_i32 s{S_T0}, s{S_W}, 224")
    A(f"s_add_u32 s{S_GW}, s{S_T0}, s{S_WG}")
    A(f"s_lshl_b32 s{S_JL}, s{S_W}, 13")
    A(f"s_add_u32 s{S_JL}, s{S_JL}, {LDS_JOB}")

V_SR=64
@add_method
def xjob_issue(self):
    A=self.A
    A(f"v_bfe_u32 v50, v{V_LANE}, 4, 1")
    A(f"v_lshrrev_b32 v51, 5, v{V_LANE}")
    A(f"v_mul_u32_u24 v51, {224*8}, v51")
    A(f"v_add_u32 v50, v50, v51")
    A(f"s_lshl_b32 s{S_T0}, s{S_WG}, 3")
    A(f"s_lshl_b32 s{S_T0+1}, s{S_W}, 1")
    A(f"s_add_u32 s{S_T0}, s{S_T0}, s{S_T0+1}")
    A(f"v_add_u32 v50, s{S_T0}, v50")
    A(f"v_mul_u32_u24 v50, 896, v50")
    A(f"v_and_b32 v51, 15, v{V_LANE}")
    A(f"v_lshl_add_u32 v50, v51, 4, v50")
    A(f"v_mov_b32 v52, 0x10000000")
    A(f"v_cmp_gt_u32 vcc, 8, v51")
    A(f"v_cndmask_b32 v52, v52, v50, vcc")
    for k in range(3):
        A(f"buffer_load_dwordx4 v[{V_SR+4*k}:{V_SR+4*k+3}], v50, s[{SRD_X}:{SRD_X+3}], 0 offen offset:{256*k}")
    A(f"buffer_load_dwordx4 v[{V_SR+12}:{V_SR+15}], v52, s[{SRD_X}:{SRD_X+3}], 0 offen offset:768")

@add_method
def gather_items(self):
    A=self.A
    A(f"s_lshl_b32 s{S_T0+14}, s{S_D0}, 1")
    A(f"s_movk_i32 s{S_T0+15}, 7168")
    A(f"v_mul_lo_u32 v4, v{V_T}, s{S_T0+15}")
    A(f"v_add_u32 v4, s{S_T0+14}, v4")
    A(f"s_movk_i32 s{S_T0+15}, 4480")
    out=[]
    for j in range(8):
        if j<5: out.append(f"buffer_load_dword v{V_XG+j}, v4, s[{SRD_X}:{SRD_X+3}], 0 offen offset:{j*896}")
        else:   out.append(f"buffer_load_dword v{V_XG+j}, v4, s[{SRD_X}:{SRD_X+3}], s{S_T0+15} offen offset:{(j-5)*896}")
    return out

@add_method
def xjob_post(self):
    A=self.A
    gather=(self.xmode=='gather')
    if self.wpf:
        lw=self.lab(); lc=self.lab()
        A(f"s_cmp_ge_u32 s{S_W}, {self.wpf}")
        A(f"s_cbranch_scc1 {lw}")
        A(f"s_waitcnt vmcnt({self.ng0+1}) lgkmcnt(0)")
        A(f"s_branch {lc}")
        A(f"{lw}:")
        A(f"s_waitcnt vmcnt({self.ng0}) lgkmcnt(0)")
        A(f"{lc}:")
    else:
        A(f"s_waitcnt vmcnt({2 if gather else 0}) lgkmcnt(0)")
    A(f"v_readfirstlane_b32 s{S_TAG}, v{V_EP}")
    A(f"s_add_u32 s{S_TAG}, s{S_TAG}, 0x9E3779B9")
    J=V_SR
    if not gather:
        A(f"v_bfe_u32 v50, v{V_LANE}, 4, 1")
        A(f"s_lshl_b32 s{S_T0}, s{S_W}, 1")
        A(f"v_add_u32 v50, s{S_T0}, v50")
        A(f"v_mul_u32_u24 v50, 896, v50")
        A(f"v_lshrrev_b32 v51, 5, v{V_LANE}")
        A(f"v_mul_u32_u24 v51, 7168, v51")
        A(f"v_add_u32 v50, v50, v51")
        A(f"v_and_b32 v51, 15, v{V_LANE}")
        A(f"v_lshl_add_u32 v50, v51, 4, v50")
        A(f"v_add_u32 v50, {LDS_XB}, v50")
        for k in range(3): A(f"ds_write_b128 v50, v[{J+4*k}:{J+4*k+3}] offset:{k*256}")
        A("s_mov_b32 exec_lo, 0x00ff00ff\ns_mov_b32 exec_hi, 0x00ff00ff")
        A(f"ds_write_b128 v50, v[{J+12}:{J+15}] offset:768")
        A("s_mov_b64 exec, -1")
    A("v_mov_b32 v54, 0x3f803f80")
    for i in range(16):
        c1="0" if i<2 else f"v{56+(i&1)}"; c2="0" if i<2 else f"v{58+(i&1)}"
        A(f"v_dot2_f32_bf16 v{56+(i&1)}, v{J+i}, v54, {c1}")
        A(f"v_dot2_f32_bf16 v{58+(i&1)}, v{J+i}, v{J+i}, {c2}")
    A(f"v_bfe_u32 v42, v{V_LANE}, 4, 1")
    A(f"v_lshlrev_b32 v42, 3, v42")
    A(f"v_lshrrev_b32 v39, 5, v{V_LANE}")
    A(f"v_mul_u32_u24 v39, {224*64}, v39")
    A(f"v_add_u32 v42, v42, v39")
    A(f"s_lshl_b32 s{S_T0+10}, s{S_WG}, 6")
    A(f"s_lshl_b32 s{S_T0+9}, s{S_W}, 4")
    A(f"s_add_u32 s{S_T0+10}, s{S_T0+10}, s{S_T0+9}")
    A(f"s_add_u32 s{S_T0+10}, s{S_T0+10}, {WS_STATS}")
    A("v_add_f32 v56, v56, v57\nv_add_f32 v57, v58, v59")
    for mode in ["row_shr:1","row_shr:2","row_shr:4","row_shr:8"]:
        A(f"v_add_f32_dpp v56, v56, v56 {mode} row_mask:0xf bank_mask:0xf bound_ctrl:0"); A(f"v_add_f32_dpp v57, v57, v57 {mode} row_mask:0xf bank_mask:0xf bound_ctrl:0")
    A(f"v_mul_f32 v56, {fl(1.0/448)}, v56")
    A(f"v_mul_f32 v57, {fl(1.0/448)}, v57")
    A("v_fma_f32 v57, -v56, v56, v57")
    A("v_max_f32 v57, 0, v57")
    A("v_cvt_pk_bf16_f32 v57, v57, v57")
    A("v_lshlrev_b32 v57, 16, v57")
    A(f"v_add_f32 v57, {fl(1e-5)}, v57")
    A("v_cvt_pk_bf16_f32 v57, v57, v57")
    A("v_lshlrev_b32 v57, 16, v57")
    A("v_sqrt_f32 v57, v57")
    A(f"v_mov_b32 v41, s{S_TAG}")
    A(f"v_cvt_pk_bf16_f32 v40, v57, v56")
    A(f"s_cmp_lt_u32 s{S_WG}, 32")
    A(f"s_cselect_b32 exec_hi, 0x80008000, 0")
    A("s_mov_b32 exec_lo, 0x80008000")
    A(f"buffer_store_dwordx2 v[40:41], v42, s[{SRD_WS}:{SRD_WS+3}], s{S_T0+10} offen sc1")
    A("s_mov_b64 exec, -1")
    if gather: return
    A("s_waitcnt lgkmcnt(0)")
    A("s_barrier")
    X=80
    A(f"v_bfe_u32 v52, v{V_LANE}, 2, 2")
    A(f"v_mul_u32_u24 v52, 896, v52")
    A(f"v_lshrrev_b32 v53, 4, v{V_LANE}")
    A(f"v_lshl_add_u32 v52, v53, 5, v52")
    A(f"v_and_b32 v53, 3, v{V_LANE}")
    A(f"v_lshl_add_u32 v52, v53, 3, v52")
    A(f"s_lshl_b32 s{S_T0+1}, s{S_W}, 7")
    A(f"s_add_u32 s{S_T0+1}, s{S_T0+1}, {LDS_XB}")
    A(f"v_add_u32 v52, s{S_T0+1}, v52")
    for k in range(2):
        o=7168*k; x=X+8*k
        A(f"ds_read_b64_tr_b16 v[{x}:{x+1}], v52 offset:{o}")
        A(f"ds_read_b64_tr_b16 v[{x+2}:{x+3}], v52 offset:{o+4*896}")
        A(f"ds_read_b64_tr_b16 v[{x+4}:{x+5}], v52 offset:{o+512}")
        A(f"ds_read_b64_tr_b16 v[{x+6}:{x+7}], v52 offset:{o+512+4*896}")
    A(f"v_lshlrev_b32 v53, 4, v{V_LANE}")
    A(f"s_mul_i32 s{S_T0+2}, s{S_WG}, 7168")
    A(f"s_lshl_b32 s{S_T0+3}, s{S_W}, 10")
    A(f"s_add_u32 s{S_T0+2}, s{S_T0+2}, s{S_T0+3}")
    A(f"s_add_u32 s{S_T0+2}, s{S_T0+2}, {WS_XT}")
    def st(x,extra):
        A(f"s_add_u32 s{S_T0+3}, s{S_T0+2}, {extra}")
        A(f"buffer_store_dwordx4 v[{x}:{x+3}], v53, s[{SRD_WS}:{SRD_WS+3}], s{S_T0+3} offen sc1")
    l3=self.lab(); l32=self.lab()
    A("s_waitcnt lgkmcnt(6)")
    st(X,0)
    A(f"s_cmp_eq_u32 s{S_W}, 3")
    A(f"s_cbranch_scc1 {l3}")
    A("s_waitcnt lgkmcnt(4)")
    st(X+4,4096)
    A(f"{l3}:")
    A(f"s_cmp_ge_u32 s{S_WG}, 32")
    A(f"s_cbranch_scc1 {l32}")
    A("s_waitcnt lgkmcnt(0)")
    st(X+8,224*7168)
    A(f"s_cmp_eq_u32 s{S_W}, 3")
    A(f"s_cbranch_scc1 {l32}")
    st(X+12,224*7168+4096)
    A(f"{l32}:")
    A("s_waitcnt lgkmcnt(0)")

@add_method
def xflag_publish(self):
    A=self.A
    A("s_waitcnt vmcnt(0)")
    A(f"s_lshl_b32 s{S_T0+10}, s{S_WG}, 2")
    A(f"s_add_u32 s{S_T0+10}, s{S_T0+10}, s{S_W}")
    A(f"s_lshl_b32 s{S_T0+10}, s{S_T0+10}, 6")
    A(f"s_add_u32 s{S_T0+10}, s{S_T0+10}, {WS_XF}")
    A(f"v_mul_u32_u24 v42, {224*4*64}, v{V_LANE}")
    A(f"v_mov_b32 v41, s{S_TAG}")
    A(f"s_cmp_lt_u32 s{S_WG}, 32")
    A(f"s_cselect_b32 exec_lo, 3, 1")
    A("s_mov_b32 exec_hi, 0")
    A(f"buffer_store_dword v41, v42, s[{SRD_WS}:{SRD_WS+3}], s{S_T0+10} offen sc1")
    A("s_mov_b64 exec, -1")

@add_method
def zero_counters_body(self):
    A=self.A; l=self.lab()
    A(f"s_cmp_lg_u32 s{S_W}, 3")
    A(f"s_cbranch_scc1 {l}")
    A(f"v_lshlrev_b32 v3, 7, v{V_LANE}")
    A(f"s_mov_b32 s{S_T0+5}, {WS_CNT2}")
    A(f"buffer_store_dword v{V_ZERO}, v3, s[{SRD_WS}:{SRD_WS+3}], s{S_T0+5} offen sc1")
    A(f"s_mov_b32 s{S_T0+5}, {WS_CNT3}")
    A(f"buffer_store_dword v{V_ZERO}, v3, s[{SRD_WS}:{SRD_WS+3}], s{S_T0+5} offen sc1")
    A(f"{l}:")

S_HY=64; S_HL=65; S_HD=66; S_HE=67; S_HK=68; S_HRET=70
S_HSTR=69; S_HG=72; S_HP=73
@add_method
def wjob_params(self):
    A=self.A; ld=self.lab('Lwd'); lc=self.lab('Lwc'); T=S_T0
    A(f"s_cmp_ge_u32 s{S_HY}, 392")
    A(f"s_cbranch_scc1 {ld}")
    A(f"s_cmp_ge_u32 s{S_HY}, 196")
    A(f"s_cselect_b32 s{SRD_W}, s{S_WUP}, s{S_WGT}")
    A(f"s_cselect_b32 s{SRD_W+1}, s{S_WUP+1}, s{S_WGT+1}")
    A(f"s_cselect_b32 s{T+1}, 1, 0")
    A(f"s_mul_i32 s{T+2}, s{T+1}, 196")
    A(f"s_sub_u32 s{T+2}, s{S_HY}, s{T+2}")
    A(f"s_mul_i32 s{S_HP}, s{T+2}, 9363")
    A(f"s_lshr_b32 s{S_HP}, s{S_HP}, 16")
    A(f"s_mul_i32 s{S_HG}, s{S_HP}, 7")
    A(f"s_sub_u32 s{S_HG}, s{T+2}, s{S_HG}")
    A(f"s_movk_i32 s{S_HSTR}, 3584")
    A(f"s_lshl_b32 s{T+2}, s{S_HP}, 2")
    A(f"s_add_u32 s{T+2}, s{T+2}, s{T+1}")
    A(f"s_mul_i32 s{T+2}, s{T+2}, 28")
    A(f"s_lshl_b32 s{T+3}, s{S_HG}, 2")
    A(f"s_add_u32 s{T+2}, s{T+2}, s{T+3}")
    A(f"s_lshl_b32 s{T+2}, s{T+2}, 10")
    A(f"s_add_u32 s{S_HD}, s{T+2}, {WS_WF1}")
    A(f"s_mov_b32 s{S_HE}, {56*1024}")
    A(f"s_mov_b32 s{S_HK}, 4")
    A(f"s_branch {lc}")
    A(f"{ld}:")
    A(f"s_mov_b32 s{SRD_W}, s{S_WD}")
    A(f"s_mov_b32 s{SRD_W+1}, s{S_WD+1}")
    A(f"s_sub_u32 s{T+2}, s{S_HY}, 392")
    A(f"s_mul_i32 s{S_HP}, s{T+2}, 2341")
    A(f"s_lshr_b32 s{S_HP}, s{S_HP}, 16")
    A(f"s_mul_i32 s{S_HG}, s{S_HP}, 28")
    A(f"s_sub_u32 s{S_HG}, s{T+2}, s{S_HG}")
    A(f"s_movk_i32 s{S_HSTR}, 896")
    A(f"s_mul_i32 s{T+2}, s{S_HP}, 224")
    A(f"s_lshl_b32 s{T+3}, s{S_HG}, 2")
    A(f"s_add_u32 s{T+2}, s{T+2}, s{T+3}")
    A(f"s_lshl_b32 s{T+2}, s{T+2}, 10")
    A(f"s_add_u32 s{S_HD}, s{T+2}, {WS_WFD}")
    A(f"s_mov_b32 s{S_HE}, {112*1024}")
    A(f"s_mov_b32 s{S_HK}, 8")
    A(f"{lc}:")

for _u in range(196): assert (_u*9363)>>16 == _u//7
for _u in range(196): assert (_u*2341)>>16 == _u//28

@add_method
def helper(self):
    A=self.A; T=S_T0
    A("L_helper:")
    hs=[0]
    def hstamp():
        if not (self.ts and getattr(self,'hts',False)): return
        A(f"{self.tsop} s[6:7]"); A("s_waitcnt lgkmcnt(0)"); A(f"v_writelane_b32 v200, s6, {hs[0]}"); hs[0]+=1
    A("s_waitcnt lgkmcnt(0)")
    if self.ts and getattr(self,'hts',False):
        A("v_mov_b32 v200, 0"); A("v_writelane_b32 v200, s86, 0"); hs[0]=1
    hstamp()
    A(f"s_mov_b32 s{SRD_WS}, s{S_WS}\ns_mov_b32 s{SRD_WS+1}, s{S_WS+1}\ns_mov_b32 s{SRD_WS+2}, {WS_SIZE}\ns_mov_b32 s{SRD_WS+3}, 0x20000")
    A(f"s_mov_b32 s{SRD_W+2}, {D_*F_*2}")
    A(f"s_mov_b32 s{SRD_W+3}, 0x20000")
    A(f"v_mov_b32 v{V_ZERO}, 0")
    A(f"global_load_dword v{V_EP}, v{V_ZERO}, s[{S_WS}:{S_WS+1}] sc1")
    A(f"s_sub_u32 s{S_GW}, s{S_WG}, {NWG}")
    A(f"s_lshl_b32 s{S_GW}, s{S_GW}, 2")
    A(f"s_add_u32 s{S_GW}, s{S_GW}, s{S_W}")
    A(f"s_mul_i32 s{S_JL}, s{S_W}, 40960")
    A(f"v_lshrrev_b32 v40, 3, v{V_LANE}")
    A(f"v_bfe_u32 v49, v{V_LANE}, 4, 1")
    A(f"v_lshlrev_b32 v49, 2, v49")
    A(f"v_and_b32 v50, 7, v{V_LANE}")
    A(f"v_xor_b32 v49, v49, v50")
    A(f"v_lshlrev_b32 v41, 4, v49")
    A(f"v_bfe_u32 v51, v{V_LANE}, 2, 2")
    A(f"v_lshlrev_b32 v42, 7, v51")
    A(f"v_lshrrev_b32 v51, 1, v51")
    A(f"v_lshlrev_b32 v51, 2, v51")
    A(f"v_bfe_u32 v52, v{V_LANE}, 4, 1")
    A(f"v_bfe_u32 v53, v{V_LANE}, 1, 1")
    A(f"v_lshl_add_u32 v52, v52, 1, v53")
    A(f"v_xor_b32 v51, v51, v52")
    A(f"v_lshl_add_u32 v42, v51, 4, v42")
    A(f"v_and_b32 v51, 1, v{V_LANE}")
    A(f"v_lshl_add_u32 v42, v51, 3, v42")
    A(f"v_lshrrev_b32 v43, 5, v{V_LANE}")
    A(f"v_lshlrev_b32 v54, 4, v{V_LANE}")
    A(f"v_mul_u32_u24 v58, {2*896}, v43")
    A(f"v_and_b32 v59, 31, v{V_LANE}")
    A(f"v_lshl_add_u32 v58, v59, 2, v58")
    def call(lbl):
        A(f"s_getpc_b64 s[{T+14}:{T+15}]")
        r=self.lab('Lr')
        A(f"{r}:")
        A(f"s_add_u32 s{T+14}, s{T+14}, ({lbl}-{r})")
        A(f"s_addc_u32 s{T+15}, s{T+15}, (({lbl}-{r})>>31)")
        A(f"s_swappc_b64 s[{S_HRET}:{S_HRET+1}], s[{T+14}:{T+15}]")
    NS=9
    def setjob_y(expr_add, clamp):
        A(f"s_add_u32 s{S_HY}, s{S_GW}, {expr_add}")
        A(f"s_min_u32 s{S_HY}, s{S_HY}, {clamp}")
    def job(n,kind):
        if kind=='w1': setjob_y(128*n, 391)
        else: setjob_y(392+128*(n-4), NWJ-1)
        A(f"s_add_u32 s{S_HL}, s{S_JL}, {8192*(n if n<4 else n-4)}")
    def flag_cur():
        A(f"s_lshl_b32 s{T+10}, s{S_HY}, 6")
        A(f"s_add_u32 s{T+10}, s{T+10}, {WS_JF}")
        A(f"v_mov_b32 v47, s{S_TAG}")
        A("s_mov_b64 exec, 1")
        A(f"buffer_store_dword v47, v{V_ZERO}, s[{SRD_WS}:{SRD_WS+3}], s{T+10} offen sc1")
        A("s_mov_b64 exec, -1")
    def batch(ns, kind):
        k=len(ns); st = NS if kind=='w1' else 8
        for n in ns: job(n,kind); call("L_hissue")
        hstamp()
        for i,n in enumerate(ns):
            job(n,kind); A(f"s_waitcnt vmcnt({8*(k-1-i)+st*i})"); call("L_hpost")
            if i==0 and kind=='w1':
                A(f"v_readfirstlane_b32 s{S_TAG}, v{V_EP}")
                A(f"s_add_u32 s{S_TAG}, s{S_TAG}, 0x9E3779B9")
        hstamp()
        for i,n in enumerate(ns):
            A(f"s_waitcnt vmcnt({st*(k-1-i)+i})")
            job(n,kind); flag_cur()
        hstamp()
    l4=self.lab('Lh4'); lb=self.lab('Lhb')
    A(f"s_cmp_lt_u32 s{S_GW}, 8")
    A(f"s_cbranch_scc1 {l4}")
    batch([0,1,2],'w1')
    A(f"s_branch {lb}")
    A(f"{l4}:")
    sv=hs[0]; hs[0]=2
    batch([0,1,2,3],'w1')
    hs[0]=sv
    A(f"{lb}:")
    batch([4,5],'wd')
    lp=self.lab('Lpoll'); le=self.lab()
    A(f"s_mov_b32 s{T+1}, 0")
    A(f"s_mov_b32 s{T}, {WS_STATS+(8*(NWG-1)+6)*8+4}")
    A(f"{lp}:")
    A(f"buffer_load_dword v49, v{V_ZERO}, s[{SRD_WS}:{SRD_WS+3}], s{T} offen sc1")
    A("s_waitcnt vmcnt(0)")
    A(f"v_cmp_ne_u32 vcc, s{S_TAG}, v49")
    A(f"s_add_u32 s{T+1}, s{T+1}, 1")
    A(f"s_cbranch_vccz {le}")
    A(f"s_cmp_lt_u32 s{T+1}, 0x8000")
    A(f"s_cbranch_scc1 {lp}")
    A(f"{le}:")
    self.sync_all_wait(sleep=self.hsleep)
    hstamp()
    A(f"s_sub_u32 s{T}, s{S_WG}, {NWG}")
    A(f"s_mul_i32 s{T}, s{T}, 57344")
    A(f"s_mul_i32 s{T+1}, s{S_W}, 14336")
    A(f"s_add_u32 s{T}, s{T}, s{T+1}")
    A(f"s_add_u32 s{T}, s{T}, {WS_HT}")
    for k in range(14):
        if k%4==0:
            A(f"s_add_u32 s{T+2}, s{T}, {k*1024}")
            A(f"s_add_u32 m0, s{T+1}, {k*1024}")
        A(f"buffer_load_dwordx4 v54, s[{SRD_WS}:{SRD_WS+3}], s{T+2} offen offset:{(k%4)*1024} sc1 lds")
    A(f"v_lshlrev_b32 v50, 9, v43")
    A(f"v_bfe_u32 v51, v{V_LANE}, 2, 2")
    A(f"v_lshl_add_u32 v50, v51, 6, v50")
    A(f"v_bfe_u32 v51, v{V_LANE}, 4, 1")
    A(f"v_lshl_add_u32 v50, v51, 5, v50")
    A(f"v_and_b32 v51, 3, v{V_LANE}")
    A(f"v_lshl_add_u32 v50, v51, 3, v50")
    A(f"v_add_u32 v50, s{T+1}, v50")
    A("v_mov_b32 v55, 0x3f803f80")
    for k0 in range(0,14,2):
        A(f"s_waitcnt vmcnt({12-k0})")
        for k in (k0,k0+1):
            r=64+4*(k%4)
            A(f"ds_read_b64_tr_b16 v[{r}:{r+1}], v50 offset:{k*1024}")
            A(f"ds_read_b64_tr_b16 v[{r+2}:{r+3}], v50 offset:{k*1024+256}")
        A("s_waitcnt lgkmcnt(0)")
        for k in (k0,k0+1):
            r=64+4*(k%4)
            for d in range(4):
                i=4*k+d
                c1="0" if i<2 else f"v{56+(i&1)}"; c2="0" if i<2 else f"v{58+(i&1)}"
                A(f"v_dot2_f32_bf16 v{56+(i&1)}, v{r+d}, v55, {c1}")
                A(f"v_dot2_f32_bf16 v{58+(i&1)}, v{r+d}, v{r+d}, {c2}")
    A("s_nop 2")
    A("v_add_f32 v56, v56, v57\nv_add_f32 v57, v58, v59")
    A("v_mov_b32 v58, v56\nv_mov_b32 v59, v57")
    A("v_permlane32_swap_b32 v56, v58\nv_permlane32_swap_b32 v57, v59")
    A("v_add_f32 v56, v56, v58\nv_add_f32 v57, v57, v59")
    A(f"v_and_b32 v60, 31, v{V_LANE}")
    A(f"v_lshlrev_b32 v61, 4, v60")
    A(f"s_lshr_b32 s{T+3}, s{S_W}, 1")
    A(f"s_lshl_b32 s{T+3}, s{T+3}, 9")
    A(f"s_add_u32 s{T+3}, s{T+3}, 65536")
    A(f"v_add_u32 v61, s{T+3}, v61")
    A(f"s_and_b32 s{T+4}, s{S_W}, 1")
    A(f"s_lshl_b32 s{T+4}, s{T+4}, 3")
    A(f"v_add_u32 v62, s{T+4}, v61")
    A("ds_write_b64 v62, v[56:57]")
    A("s_waitcnt lgkmcnt(0)")
    A("s_barrier")
    lz=self.lab()
    A(f"s_cmp_lg_u32 s{T+4}, 0")
    A(f"s_cbranch_scc1 {lz}")
    A("ds_read_b128 v[64:67], v61")
    A("s_waitcnt lgkmcnt(0)")
    A("v_add_f32 v64, v64, v66\nv_add_f32 v65, v65, v67")
    A(f"v_mul_f32 v64, {fl(1.0/448)}, v64")
    A(f"v_mul_f32 v65, {fl(1.0/448)}, v65")
    A("v_fma_f32 v65, -v64, v64, v65")
    A("v_max_f32 v65, 0, v65")
    A("v_cvt_pk_bf16_f32 v65, v65, v65")
    A("v_lshlrev_b32 v65, 16, v65")
    A(f"v_add_f32 v65, {fl(1e-5)}, v65")
    A("v_cvt_pk_bf16_f32 v65, v65, v65")
    A("v_lshlrev_b32 v65, 16, v65")
    A("v_sqrt_f32 v65, v65")
    A("v_cvt_pk_bf16_f32 v66, v65, v64")
    A(f"v_mov_b32 v67, s{S_TAG}")
    A(f"v_lshlrev_b32 v68, 3, v60")
    A(f"s_sub_u32 s{T+5}, s{S_WG}, {NWG}")
    A(f"s_lshl_b32 s{T+5}, s{T+5}, 1")
    A(f"s_lshr_b32 s{T+6}, s{S_W}, 1")
    A(f"s_add_u32 s{T+5}, s{T+5}, s{T+6}")
    A(f"s_lshl_b32 s{T+5}, s{T+5}, 8")
    A(f"s_add_u32 s{T+5}, s{T+5}, {WS_ST2}")
    A("s_mov_b32 exec_hi, 0")
    A(f"buffer_store_dwordx2 v[66:67], v68, s[{SRD_WS}:{SRD_WS+3}], s{T+5} offen sc1")
    A("s_mov_b32 exec_hi, -1")
    A(f"{lz}:")
    hstamp()
    if self.ts and getattr(self,'hts',False):
        l=self.lab()
        A(f"s_cmp_lg_u32 s{S_W}, 0")
        A(f"s_cbranch_scc1 {l}")
        A(f"v_lshlrev_b32 v5, 2, v{V_LANE}")
        A(f"s_lshl_b32 s{T}, s{S_WG}, 8")
        A(f"s_add_u32 s{T}, s{T}, {WS_TS}")
        A(f"buffer_store_dword v200, v5, s[{SRD_WS}:{SRD_WS+3}], s{T} offen")
        A(f"{l}:")
    A("s_endpgm")
    A("L_hissue:")
    self.wjob_params()
    A(f"v_mul_lo_u32 v48, v40, s{S_HSTR}")
    A(f"v_add_u32 v48, v48, v41")
    A(f"s_lshl_b32 s{T+6}, s{S_HG}, 6")
    A(f"s_mul_i32 s{T+6}, s{T+6}, s{S_HSTR}")
    A(f"s_lshl_b32 s{T+7}, s{S_HP}, 7")
    A(f"s_add_u32 s{T+6}, s{T+6}, s{T+7}")
    A(f"s_lshl_b32 s{T+7}, s{S_HSTR}, 3")
    for i in range(8):
        A(f"s_add_u32 m0, s{S_HL}, {i*1024}")
        A(f"buffer_load_dwordx4 v48, s[{SRD_W}:{SRD_W+3}], s{T+6} offen lds")
        if i<7: A(f"s_add_u32 s{T+6}, s{T+6}, s{T+7}")
    A(f"s_setpc_b64 s[{S_HRET}:{S_HRET+1}]")
    A("L_hpost:")
    self.wjob_params()
    J=64
    A(f"s_cmp_eq_u32 s{S_HK}, 4")
    A(f"s_cselect_b32 s{T}, 10, 9")
    A(f"s_lshl_b32 s{T+1}, s{S_HK}, 7")
    A(f"v_lshlrev_b32 v50, s{T}, v43")
    A(f"v_add_u32 v50, v50, v42")
    A(f"v_add_u32 v50, s{S_HL}, v50")
    A(f"v_add_u32 v51, s{T+1}, v50")
    A(f"v_xor_b32 v52, 64, v50")
    A(f"v_xor_b32 v53, 64, v51")
    def rd(k):
        kap,e=k>>1,k&1; r=J+4*k
        A(f"ds_read_b64_tr_b16 v[{r}:{r+1}], v{50+2*e} offset:{kap*2048}")
        A(f"ds_read_b64_tr_b16 v[{r+2}:{r+3}], v{51+2*e} offset:{kap*2048}")
    for k in range(6): rd(k)
    for k in range(8):
        kap,e=k>>1,k&1; r=J+4*k
        issued=min(8,6+k)
        A(f"s_waitcnt lgkmcnt({2*(issued-1-k)})")
        if e==0: A(f"s_add_u32 s{T+2}, s{S_HD}, {kap*1024}")
        else:
            A(f"s_add_u32 s{T+2}, s{S_HD}, s{S_HE}")
            A(f"s_add_u32 s{T+2}, s{T+2}, {kap*1024}")
        A(f"buffer_store_dwordx4 v[{r}:{r+3}], v54, s[{SRD_WS}:{SRD_WS+3}], s{T+2} offen sc1")
        if 6+k<8: rd(6+k)
    lcs=self.lab('Lcs')
    A(f"s_cmp_lg_u32 s{S_HK}, 4")
    A(f"s_cbranch_scc1 {lcs}")
    A("v_mov_b32 v55, 0x3f803f80")
    for k in range(8):
        e=k&1
        for d in range(4):
            c="0" if (k<2 and d==0) else f"v{56+e}"
            A(f"v_dot2_f32_bf16 v{56+e}, v{J+4*k+d}, v55, {c}")
    A("s_nop 2")
    A("v_permlane32_swap_b32 v56, v57")
    A("v_add_f32 v56, v56, v57")
    A(f"s_cmp_ge_u32 s{S_HY}, 196")
    A(f"s_cselect_b32 s{T+2}, 1, 0")
    A(f"s_lshl_b32 s{T+3}, s{S_HP}, 2")
    A(f"s_add_u32 s{T+2}, s{T+2}, s{T+3}")
    A(f"s_mul_i32 s{T+2}, s{T+2}, 7")
    A(f"s_add_u32 s{T+2}, s{T+2}, s{S_HG}")
    A(f"s_lshl_b32 s{T+2}, s{T+2}, 7")
    A(f"s_add_u32 s{T+2}, s{T+2}, {WS_CS}")
    A(f"buffer_store_dword v56, v58, s[{SRD_WS}:{SRD_WS+3}], s{T+2} offen sc1")
    A(f"{lcs}:")
    A(f"s_setpc_b64 s[{S_HRET}:{S_HRET+1}]")

def bf16_lo(dst, src): return f"v_lshlrev_b32 v{dst}, 16, v{src}"
def bf16_hi(dst, src): return f"v_and_b32 v{dst}, 0xffff0000, v{src}"

def cmul(A, R, P, Z, T):
    A(f"v_pk_mul_f32 v[{T}:{T+1}], v[{P}:{P+1}], v[{Z}:{Z+1}] op_sel_hi:[0,1]")
    A(f"v_pk_fma_f32 v[{R}:{R+1}], v[{P}:{P+1}], v[{Z}:{Z+1}], v[{T}:{T+1}] op_sel:[1,1,0] op_sel_hi:[1,0,1] neg_lo:[1,0,0]")

def kreg(e,name):
    names=['C','Z1','Z2','Z4','Z8','Z256','P','Q','R','T','X0','X1']
    return [128,152][e]+2*names.index(name)
ROWS=[0,1,2,3,4,5,6,7,256,258,260,262,512,516,768,772,1024,1280,1536,1792,2048]

@add_method
def kgen_setup(self):
    A=self.A
    A("s_waitcnt lgkmcnt(0)")
    A(f"s_lshl_b32 s{S_T0}, s{S_CH}, 4")
    A(f"s_lshr_b32 s{S_DT}, s{S_DT}, s{S_T0}")
    A(f"s_lshl_b32 s{S_DT}, s{S_DT}, 16")
    A(f"s_lshr_b32 s{S_DSKV}, s{S_DSKV}, s{S_T0}")
    A(f"s_lshl_b32 s{S_DSKV}, s{S_DSKV}, 16")
    DT=48
    A(f"v_mov_b32 v{DT}, s{S_DT}")
    A(f"v_mul_f32 v{DT}, {fl(LOG2E)}, v{DT}")
    A(f"v_exp_f32 v{DT}, v{DT}")
    A(f"v_cvt_pk_bf16_f32 v{DT}, v{DT}, v{DT}")
    A(f"v_lshlrev_b32 v{DT}, 16, v{DT}")
    A(f"v_and_b32 v50, 0x7fff7fff, v{V_PA+2}")
    A(f"v_and_b32 v51, 0x7fff7fff, v{V_PA+3}")
    A(f"v_and_b32 v52, 0x7fff7fff, v{V_PA+4}")
    A(f"v_and_b32 v53, 0x7fff7fff, v{V_PA+5}")
    A("v_pk_max_u16 v50, v50, v51")
    A("v_pk_max_u16 v52, v52, v53")
    A("v_pk_max_u16 v50, v50, v52")
    A("v_lshrrev_b32 v51, 16, v50")
    A("v_and_b32 v50, 0xffff, v50")
    A("v_max_u32 v50, v50, v51")
    for mode in ["row_shr:1 row_mask:0xf bank_mask:0xf bound_ctrl:0","row_shr:2 row_mask:0xf bank_mask:0xf bound_ctrl:0",
                 "row_shr:4 row_mask:0xf bank_mask:0xf bound_ctrl:0","row_shr:8 row_mask:0xf bank_mask:0xf bound_ctrl:0",
                 "row_bcast:15 row_mask:0xa bank_mask:0xf","row_bcast:31 row_mask:0xc bank_mask:0xf"]:
        A(f"v_max_u32_dpp v50, v50, v50 {mode}")
    A(f"v_readlane_b32 s{S_T0}, v50, 63")
    A(f"s_lshr_b32 s{S_T0}, s{S_T0}, 7")
    A(f"s_max_u32 s{S_T0}, s{S_T0}, 1")
    A(f"s_min_u32 s{S_T0}, s{S_T0}, 253")
    A(f"s_sub_u32 s{S_T0+1}, 254, s{S_T0}")
    A(f"s_lshl_b32 s{S_T0+1}, s{S_T0+1}, 23")
    A(f"s_lshl_b32 s{S_T0}, s{S_T0}, 23")
    A(f"v_add_f32 v49, v{DT}, v{DT}")
    A(f"v_mul_f32 v49, s{S_T0}, v49")
    A(f"v_readfirstlane_b32 s{S_YS}, v49")
    AR=[50,51]; TH=[52,53]
    reg=kreg
    for e in range(2):
        un = bf16_lo if e==0 else bf16_hi
        A(un(AR[e], V_PA)); A(un(TH[e], V_PA+1))
        A(un(reg(e,'C'), V_PA+2)); A(un(reg(e,'C')+1, V_PA+3))
    for e in range(2):
        A(f"v_mul_f32 v{AR[e]}, {fl(LOG2E)}, v{AR[e]}")
    for e in range(2): A(f"v_exp_f32 v{AR[e]}, v{AR[e]}")
    for e in range(2):
        A(f"v_cvt_pk_bf16_f32 v{AR[e]}, v{AR[e]}, v{AR[e]}")
    for e in range(2):
        A(f"v_lshlrev_b32 v{AR[e]}, 16, v{AR[e]}")
    for e in range(2):
        A(f"v_mul_f32 v{AR[e]}, v{AR[e]}, v{DT}")
        A(f"v_mul_f32 v{TH[e]}, v{TH[e]}, v{DT}")
    for e in range(2):
        A(f"v_mul_f32 v{AR[e]}, {fl(-LOG2E)}, v{AR[e]}")
        A(f"v_mul_f32 v{TH[e]}, {fl(INV2PI)}, v{TH[e]}")
        c=reg(e,'C')
        A(f"v_mul_f32 v{c}, s{S_T0+1}, v{c}")
        A(f"v_mul_f32 v{c+1}, s{S_T0+1}, v{c+1}")
    for name,p in ((('Z1',1.0),('Z256',256.0)) if self.z8sq else (('Z1',1.0),('Z8',8.0),('Z256',256.0))):
        for e in range(2):
            z=reg(e,name); x0=reg(e,'X0'); x1=reg(e,'X1')
            if p==1.0:
                A(f"v_exp_f32 v{x0}, v{AR[e]}")
                A(f"v_fract_f32 v{x0+1}, v{TH[e]}")
            else:
                A(f"v_mul_f32 v{x0}, {fl(p)}, v{AR[e]}")
                A(f"v_mul_f32 v{x0+1}, {fl(p)}, v{TH[e]}")
                A(f"v_exp_f32 v{x0}, v{x0}")
                A(f"v_fract_f32 v{x0+1}, v{x0+1}")
            A(f"v_cos_f32 v{x1}, v{x0+1}")
            A(f"v_sin_f32 v{x1+1}, v{x0+1}")
        for e in range(2):
            z=reg(e,name); x0=reg(e,'X0'); x1=reg(e,'X1')
            A(f"v_pk_mul_f32 v[{z}:{z+1}], v[{x1}:{x1+1}], v[{x0}:{x0+1}] op_sel_hi:[1,0]")
    if self.xmode=='gather': A(self.gl[self.gi]); self.gi+=1
    for e in range(2): cmul(A, reg(e,'Z2'), reg(e,'Z1'), reg(e,'Z1'), reg(e,'T'))
    for e in range(2): cmul(A, reg(e,'Z4'), reg(e,'Z2'), reg(e,'Z2'), reg(e,'T'))
    if self.z8sq:
        for e in range(2): cmul(A, reg(e,'Z8'), reg(e,'Z4'), reg(e,'Z4'), reg(e,'T'))

@add_method
def kgen_gen(self):
    A=self.A
    reg=kreg
    VA=104
    A(f"s_mul_i32 s{S_T0+2}, s{S_W}, {KG_WAVE}")
    A(f"v_lshl_add_u32 v{VA}, v{V_LANE}, 3, s{S_T0+2}")
    OUT=[106,108,110,112]; oi=[0]
    def emit(idx, name, neg):
        if self.xmode=='xt' and idx==36: self.xflag_publish()
        if self.xmode=='gather' and idx in self.gidx: A(self.gl[self.gi]); self.gi+=1
        o=OUT[oi[0]%4]; oi[0]+=1
        for e in range(2):
            r=reg(e,name)
            A(f"v_cvt_pk_f16_f32 v{o+e}, v{r}, {'-' if neg else ''}v{r+1}")
        A(f"ds_write_b64 v{VA}, v[{o}:{o+1}] offset:{idx*KG_PITCH}")
    def step(dst, src, z):
        for e in range(2):
            A(f"v_pk_mul_f32 v[{reg(e,'T')}:{reg(e,'T')+1}], v[{reg(e,src)}:{reg(e,src)+1}], v[{reg(e,z)}:{reg(e,z)+1}] op_sel_hi:[0,1]")
        for e in range(2):
            A(f"v_pk_fma_f32 v[{reg(e,dst)}:{reg(e,dst)+1}], v[{reg(e,src)}:{reg(e,src)+1}], v[{reg(e,z)}:{reg(e,z)+1}], v[{reg(e,'T')}:{reg(e,'T')+1}] op_sel:[1,1,0] op_sel_hi:[1,0,1] neg_lo:[1,0,0]")
    emit(0,'C',True)
    step('P','C','Z1'); emit(1,'P',True)
    for r in range(2,8): step('P','P','Z1'); emit(r,'P',True)
    step('Q','C','Z256'); emit(8,'Q',True)
    step('R','Q','Z2'); emit(9,'R',True)
    step('R','R','Z2'); emit(10,'R',True)
    step('R','R','Z2'); emit(11,'R',True)
    step('Q','Q','Z256'); emit(12,'Q',True)
    step('R','Q','Z4'); emit(13,'R',True)
    step('Q','Q','Z256'); emit(14,'Q',True)
    step('R','Q','Z4'); emit(15,'R',True)
    for r in range(16,21): step('Q','Q','Z256'); emit(r,'Q',True)
    o=OUT[oi[0]%4]; oi[0]+=1
    A(f"v_mov_b32 v{o}, 0x3c00\nv_mov_b32 v{o+1}, 0x3c00")
    A(f"ds_write_b64 v{VA}, v[{o}:{o+1}] offset:{21*KG_PITCH}")
    emit(22,'Z8',False)
    step('P','Z8','Z8'); emit(23,'P',False)
    for b in range(3,32): step('P','P','Z8'); emit(21+b,'P',False)
    if self.xmode=='gather':
        while self.gi<8: A(self.gl[self.gi]); self.gi+=1
    self.stamp('gen done')
    A(f"s_mul_i32 s{S_T0+2}, s{S_W}, {KG_WAVE}")
    VAa=104; VAb=105
    A(f"v_and_b32 v48, 31, v{V_LANE}")
    A(f"v_min_u32 v49, 20, v48")
    A(f"v_lshrrev_b32 v50, 5, v{V_LANE}")
    A(f"v_lshlrev_b32 v50, 4, v50")
    A(f"v_add_u32 v50, s{S_T0+2}, v50")
    A(f"s_movk_i32 s{S_T0+3}, {KG_PITCH}")
    A(f"v_mad_u32_u24 v{VAa}, v49, s{S_T0+3}, v50")
    A(f"v_mad_u32_u24 v{VAb}, v48, s{S_T0+3}, v50")
    ACC=112
    FR=[64,72,80,88]
    def ld(ks):
        f=FR[ks%4]
        A(f"ds_read_b128 v[{f}:{f+3}], v{VAa} offset:{ks*32}")
        A(f"ds_read_b128 v[{f+4}:{f+7}], v{VAb} offset:{21*KG_PITCH+ks*32}")
    for ks in range(3): ld(ks)
    for ks in range(16):
        if ks+3<16: ld(ks+3)
        nxt=min(15,ks+3)-ks
        A(f"s_waitcnt lgkmcnt({2*nxt})")
        f=FR[ks%4]
        c = "0" if ks==0 else f"v[{ACC}:{ACC+15}]"
        A(f"v_mfma_f32_32x32x16_f16 v[{ACC}:{ACC+15}], v[{f}:{f+3}], v[{f+4}:{f+7}], {c}")
    l1=self.lab(); l2=self.lab()
    A(f"v_lshl_add_u32 v48, v{V_LANE}, 4, s{S_T0+2}")
    A(f"s_cmp_eq_u32 s{S_NH}, 0")
    A(f"s_cbranch_scc1 {l1}")
    for q in range(3): A(f"ds_write_b128 v48, v[{ACC+4*q}:{ACC+4*q+3}] offset:{q*1024}")
    A(f"{l1}:")
    A("s_nop 1")
    A("s_waitcnt lgkmcnt(0)")
    self.stamp('kmfma')
    A("s_barrier")
    self.stamp('kbar1')
    A(f"s_cmp_eq_u32 s{S_NH}, 0")
    A(f"s_cbranch_scc0 {l2}")
    for q in range(3): A(f"ds_read_b128 v[{64+4*q}:{64+4*q+3}], v48 offset:{KG_WAVE+q*1024}")
    A("s_waitcnt lgkmcnt(0)")
    for r in range(12):
        A(f"v_add_f32 v{64+r}, v{64+r}, v{ACC+r}")
    for k in range(4): A(f"v_cvt_pk_f16_f32 v{76+k}, v{64+2*k}, v{65+2*k}")
    for r in range(8,12): A(f"v_cvt_f16_f32 v{64+r}, v{64+r}")
    A("ds_write_b64 v176, v[76:77]")
    A("ds_write_b32 v177, v78")
    A("ds_write_b32 v178, v79")
    for r in range(8,12): A(f"ds_write_b16 v179, v{64+r} offset:{1024+64*(r-8)}")
    A(f"v_mov_b32 v50, 0")
    A(f"v_mov_b32 v51, s{S_T0+2}")
    A(f"ds_write_b16 v51, v50 offset:{2*768}")
    A(f"{l2}:")
    self.granule_loads()
    A("s_waitcnt lgkmcnt(0)")
    A("s_barrier")

@add_method
def kexpand(self):
    A=self.A
    D0=64
    def rd(ch,x):
        tb=(2*ch)*KG_WAVE; d=D0+ch*28
        A(f"ds_read_u16 v{d+x}, v{V_OFF+x} offset:{tb}")
    def mk(ch):
        d=D0+ch*28
        for c in range(4):
            for x in range(4):
                A(f"v_lshl_or_b32 v{d+12+4*c+x}, v{d+c+2*x+1}, 16, v{d+c+2*x}")
    def wr(ch):
        d=D0+ch*28
        for c in range(4):
            r=d+12+4*c
            A(f"ds_write_b128 v49, v[{r}:{r+3}] offset:{ch*KX_CH+c*KX_COPY}")
    for x in range(11): rd(0,x)
    for x in range(4): rd(1,x)
    A(f"v_lshlrev_b32 v49, 4, v{V_T}")
    A(f"v_add_u32 v49, {LDS_KX}, v49")
    A("s_waitcnt lgkmcnt(4)")
    mk(0)
    for x in range(4,11): rd(1,x)
    wr(0)
    A("s_waitcnt lgkmcnt(4)")
    mk(1)
    wr(1)

S_GB=76
S_GB2=82
S_KSTR=68
@add_method
def stage_w(self, kind):
    A=self.A
    RING=24576
    if kind=='w1':
        stride=3584
        A(f"s_mov_b32 s{SRD_W}, s{S_WGT}\ns_mov_b32 s{SRD_W+1}, s{S_WGT+1}\ns_mov_b32 s{SRD_W+2}, {D_*F_*2}\ns_mov_b32 s{SRD_W+3}, 0x20000")
        A(f"s_mov_b32 s{SRD_W2}, s{S_WUP}\ns_mov_b32 s{SRD_W2+1}, s{S_WUP+1}\ns_mov_b32 s{SRD_W2+2}, {D_*F_*2}\ns_mov_b32 s{SRD_W2+3}, 0x20000")
        A(f"s_lshl_b32 s{S_T0}, s{S_J}, 8")
        A(f"s_lshl_b32 s{S_T0+1}, s{S_W}, 6")
        A(f"s_add_u32 s{S_T0}, s{S_T0}, s{S_T0+1}")
        for g in range(4):
            A(f"s_add_u32 s{S_T0+1}, s{S_W}, {g}")
            A(f"s_and_b32 s{S_T0+1}, s{S_T0+1}, 3")
            A(f"s_mul_i32 s{S_T0+1}, s{S_T0+1}, {7*16*stride}")
            A(f"s_add_u32 s{S_GB+g}, s{S_T0+1}, s{S_T0}")
        tileoff2=0
    else:
        stride=896
        A(f"s_mov_b32 s{SRD_W}, s{S_WD}\ns_mov_b32 s{SRD_W+1}, s{S_WD+1}\ns_mov_b32 s{SRD_W+2}, {D_*F_*2}\ns_mov_b32 s{SRD_W+3}, 0x20000")
        A(f"s_mov_b32 s{SRD_W2}, s{S_WD}\ns_mov_b32 s{SRD_W2+1}, s{S_WD+1}\ns_mov_b32 s{SRD_W2+2}, {D_*F_*2}\ns_mov_b32 s{SRD_W2+3}, 0x20000")
        A(f"s_cmp_ge_u32 s{S_J}, 7")
        A(f"s_cselect_b32 s{S_T0}, 7, 0")
        A(f"s_sub_u32 s{S_T0}, s{S_J}, s{S_T0}")
        A(f"s_lshl_b32 s{S_T0}, s{S_T0}, 7")
        A(f"s_mul_i32 s{S_T0+1}, s{S_W}, {448*stride}")
        A(f"s_add_u32 s{S_T0}, s{S_T0}, s{S_T0+1}")
        for g in range(4):
            A(f"s_add_u32 s{S_GB+g}, s{S_T0}, {g*7*16*stride}")
        tileoff2=64
    kstr=16*stride
    A(f"v_lshrrev_b32 v48, 2, v{V_LANE}")
    A(f"v_mul_u32_u24 v48, {stride}, v48")
    A(f"v_and_b32 v49, 3, v{V_LANE}")
    A(f"v_lshl_add_u32 v48, v49, 4, v48")
    if kind=='w1':
        A(f"v_mov_b32 v52, v48")
    else:
        A(f"s_lshl_b32 s{S_T0+1}, s{S_NH}, 6")
        A(f"s_xor_b32 s{S_T0+3}, s{S_T0+1}, 64")
        A(f"v_add_u32 v52, s{S_T0+3}, v48")
        A(f"v_add_u32 v48, s{S_T0+1}, v48")
    A(f"s_mul_i32 s{S_T0+2}, s{S_W}, {RING}")
    A(f"v_lshrrev_b32 v50, 5, v{V_LANE}")
    A(f"v_lshlrev_b32 v50, {9 if kind=='w1' else 8}, v50")
    A(f"v_bfe_u32 v51, v{V_LANE}, 2, 2")
    A(f"v_lshl_add_u32 v50, v51, 6, v50")
    A(f"v_bfe_u32 v51, v{V_LANE}, 4, 1")
    A(f"v_lshl_add_u32 v50, v51, 5, v50")
    A(f"v_and_b32 v51, 3, v{V_LANE}")
    A(f"v_lshl_add_u32 v50, v51, 3, v50")
    A(f"v_add_u32 v50, s{S_T0+2}, v50")
    second = 256 if kind=='w1' else 512
    def issue(c):
        slot=c%3
        for i in range(4):
            s=4*c+i; g=s//7; r=s%7
            A(f"s_add_u32 s{S_T0+3}, s{S_GB+g}, {r*kstr}")
            A(f"s_add_u32 m0, s{S_T0+2}, {slot*8192+i*2048}")
            A(f"buffer_load_dwordx4 v48, s[{SRD_W}:{SRD_W+3}], s{S_T0+3} offen lds")
            A(f"s_add_u32 m0, s{S_T0+2}, {slot*8192+i*2048+1024}")
            A(f"buffer_load_dwordx4 v52, s[{SRD_W2}:{SRD_W2+3}], s{S_T0+3} offen lds")
    for c in range(3): issue(c)
    for c in range(7):
        A(f"s_waitcnt vmcnt({8*min(2,6-c)})")
        slot=c%3
        for i in range(4):
            s=4*c+i
            for tile in range(2):
                a=8*s+4*tile; off=slot*8192+i*2048+tile*1024
                A(f"ds_read_b64_tr_b16 a[{a}:{a+1}], v50 offset:{off}")
                A(f"ds_read_b64_tr_b16 a[{a+2}:{a+3}], v50 offset:{off+second}")
            if i==1: A("s_waitcnt lgkmcnt(4)")
        if c+3<7:
            A("s_waitcnt lgkmcnt(0)")
            issue(c+3)
    A("s_waitcnt lgkmcnt(0)")

@add_method
def flag_load(self):
    A=self.A
    A(f"s_lshl_b32 s{S_T0}, s{S_J}, 2")
    A(f"s_add_u32 s{S_T0}, s{S_T0}, s{S_W}")
    A(f"s_lshr_b32 s{S_T0}, s{S_T0}, 1")
    A(f"s_mul_i32 s{S_T0}, s{S_T0}, 7")
    A(f"v_min_u32 v44, 13, v{V_LANE}")
    A(f"v_add_u32 v46, 189, v44")
    A(f"v_cmp_lt_u32 vcc, 6, v44")
    A(f"v_cndmask_b32 v44, v44, v46, vcc")
    A(f"v_add_u32 v44, s{S_T0}, v44")
    A(f"v_lshlrev_b32 v44, 6, v44")
    A(f"s_mov_b32 s{S_T0+11}, {WS_JF}")
    A(f"buffer_load_dword v46, v44, s[{SRD_WS}:{SRD_WS+3}], s{S_T0+11} offen sc1")

@add_method
def wdflag_load(self, S):
    A=self.A
    A(f"s_cmp_ge_u32 s{S_J}, 7")
    A(f"s_cselect_b32 s{S_T0+8}, 7, 0")
    A(f"s_sub_u32 s{S_T0+8}, s{S_J}, s{S_T0+8}")
    A(f"s_mul_i32 s{S_T0+8}, s{S_T0+8}, 28")
    A(f"s_mul_i32 s{S_T0+9}, s{S_W}, 7")
    A(f"s_add_u32 s{S_T0+8}, s{S_T0+8}, s{S_T0+9}")
    A(f"s_add_u32 s{S_T0+8}, s{S_T0+8}, 392")
    A(f"v_min_u32 v44, 6, v{V_LANE}")
    A(f"v_add_u32 v44, s{S_T0+8}, v44")
    A(f"v_lshlrev_b32 v44, 6, v44")
    A(f"s_mov_b32 s{S_T0+11}, {WS_JF}")
    S.vmem(f"buffer_load_dword v46, v44, s[{SRD_WS}:{SRD_WS+3}], s{S_T0+11} offen sc1","WDF")

@add_method
def wdflag_check(self, S):
    A=self.A
    lp=self.lab('Lpoll'); le=self.lab()
    S.need_vm(["WDF"])
    A(f"s_mov_b32 s{S_T0+8}, 0")
    A(f"{lp}:")
    A(f"v_cmp_eq_u32 vcc, s{S_TAG}, v46")
    A(f"s_and_b32 s{S_T0+9}, vcc_lo, 0x7f")
    A(f"s_cmp_eq_u32 s{S_T0+9}, 0x7f")
    A(f"s_cbranch_scc1 {le}")
    A(f"buffer_load_dword v46, v44, s[{SRD_WS}:{SRD_WS+3}], s{S_T0+11} offen sc1")
    A("s_waitcnt vmcnt(0)")
    A(f"s_add_u32 s{S_T0+8}, s{S_T0+8}, 1")
    A(f"s_cmp_lt_u32 s{S_T0+8}, 0x8000")
    A(f"s_cbranch_scc1 {lp}")
    A(f"{le}:")

@add_method
def granule_loads(self):
    A=self.A; SG=144
    if self.xmode=='gather':
        A(f"v_lshlrev_b32 v43, 6, v{V_T}")
        A(f"s_mov_b32 s{S_T0+13}, {WS_STATS}")
        for k in range(4):
            A(f"buffer_load_dwordx4 v[{SG+4*k}:{SG+4*k+3}], v43, s[{SRD_WS}:{SRD_WS+3}], s{S_T0+13} offen offset:{16*k} sc1")
        return
    A(f"s_lshr_b32 s{S_T0+12}, s{S_D0}, 6")
    A(f"s_and_b32 s{S_T0+12}, s{S_T0+12}, 3")
    A(f"s_lshl_b32 s{S_T0+12}, s{S_T0+12}, 6")
    A(f"s_add_u32 s{S_T0+12}, s{S_T0+12}, {WS_XF}")
    A(f"v_lshlrev_b32 v37, 8, v{V_T}")
    A(f"buffer_load_dword v36, v37, s[{SRD_WS}:{SRD_WS+3}], s{S_T0+12} offen sc1")
    A(f"v_lshlrev_b32 v43, 6, v{V_T}")
    A(f"s_mov_b32 s{S_T0+13}, {WS_STATS}")
    for k in range(4):
        A(f"buffer_load_dwordx4 v[{SG+4*k}:{SG+4*k+3}], v43, s[{SRD_WS}:{SRD_WS+3}], s{S_T0+13} offen offset:{16*k} sc1")

@add_method
def granule_wait(self):
    A=self.A; SG=144
    lp=self.lab('Lpoll'); le=self.lab()
    A(f"s_mov_b32 s{S_T0+1}, 0")
    A("s_waitcnt vmcnt(0)")
    A(f"{lp}:")
    if self.xmode=='gather': A("v_mov_b32 v49, 0")
    else: A(f"v_xor_b32 v49, s{S_TAG}, v36")
    for k in range(8):
        A(f"v_xor_b32 v50, s{S_TAG}, v{SG+2*k+1}")
        A(f"v_or_b32 v49, v49, v50")
    A("v_cmp_ne_u32 vcc, 0, v49")
    A(f"s_add_u32 s{S_T0+1}, s{S_T0+1}, 1")
    A(f"s_cbranch_vccz {le}")
    if self.xmode=='xt': A(f"buffer_load_dword v36, v37, s[{SRD_WS}:{SRD_WS+3}], s{S_T0+12} offen sc1")
    for k in range(4):
        A(f"buffer_load_dwordx4 v[{SG+4*k}:{SG+4*k+3}], v43, s[{SRD_WS}:{SRD_WS+3}], s{S_T0+13} offen offset:{16*k} sc1")
    A("s_waitcnt vmcnt(0)")
    A(f"s_cmp_lt_u32 s{S_T0+1}, 0x8000")
    A(f"s_cbranch_scc1 {lp}")
    A(f"{le}:")

@add_method
def flag_wait(self, mask, landed=False, sleep=0):
    A=self.A
    lp=self.lab('Lpoll'); le=self.lab(); lf=self.lab()
    A(f"s_mov_b32 s{S_T0+1}, 0")
    if landed: A(f"s_branch {lf}")
    A(f"{lp}:")
    A("s_waitcnt vmcnt(0)")
    A(f"{lf}:")
    A(f"v_cmp_eq_u32 vcc, s{S_TAG}, v46")
    A(f"s_and_b32 s{S_T0+2}, vcc_lo, {hex(mask)}")
    A(f"s_cmp_eq_u32 s{S_T0+2}, {hex(mask)}")
    A(f"s_cbranch_scc1 {le}")
    if sleep: A(f"s_sleep {sleep}")
    A(f"buffer_load_dword v46, v44, s[{SRD_WS}:{SRD_WS+3}], s{S_T0+11} offen sc1")
    A(f"s_add_u32 s{S_T0+1}, s{S_T0+1}, 1")
    A(f"s_cmp_lt_u32 s{S_T0+1}, 0x8000")
    A(f"s_cbranch_scc1 {lp}")
    A(f"{le}:")

@add_method
def xt_loads(self):
    A=self.A; XA=8
    A(f"s_movk_i32 s{S_T0+2}, 7168")
    A(f"v_mul_lo_u32 v48, v{V_T}, s{S_T0+2}")
    A(f"s_lshl_b32 s{S_T0+2}, s{S_D0}, 4")
    A(f"s_add_u32 s{S_T0+2}, s{S_T0+2}, {WS_XT}")
    A(f"buffer_load_dwordx4 v[{XA}:{XA+3}], v48, s[{SRD_WS}:{SRD_WS+3}], s{S_T0+2} offen sc1")
    A(f"buffer_load_dwordx4 v[{XA+4}:{XA+7}], v48, s[{SRD_WS}:{SRD_WS+3}], s{S_T0+2} offen offset:16 sc1")

@add_method
def w1_setup(self):
    A=self.A
    A(f"s_lshl_b32 s{S_T0}, s{S_J}, 2")
    A(f"s_add_u32 s{S_T0}, s{S_T0}, s{S_W}")
    A(f"s_mul_i32 s{S_T0}, s{S_T0}, 56")
    for g in range(4):
        A(f"s_add_u32 s{S_T0+1}, s{S_W}, {g}")
        A(f"s_and_b32 s{S_T0+1}, s{S_T0+1}, 3")
        A(f"s_mul_i32 s{S_T0+1}, s{S_T0+1}, 7")
        A(f"s_add_u32 s{S_T0+1}, s{S_T0+1}, s{S_T0}")
        A(f"s_lshl_b32 s{S_T0+1}, s{S_T0+1}, 10")
        A(f"s_add_u32 s{S_GB+g}, s{S_T0+1}, {WS_WF1}")
        A(f"s_add_u32 s{S_GB2+g}, s{S_GB+g}, {28*1024}")
    A(f"v_lshlrev_b32 v45, 4, v{V_LANE}")
    A(f"v_add_u32 v3, 4096, v45")

@add_method
def w1_items(self, s0, s1):
    out=[]
    for s in range(s0,s1):
        g=s//7; i=s%7
        for t in range(2):
            sb=(S_GB if t==0 else S_GB2)+g
            va,off=("v45",i*1024) if i<4 else ("v3",(i-4)*1024)
            out.append([f"buffer_load_dwordx4 a[{8*s+4*t}:{8*s+4*t+3}], {va}, s[{SRD_WS}:{SRD_WS+3}], s{sb} offen offset:{off} sc1"])
    return out
@add_method
def w1_loads(self, s0, s1):
    for it in self.w1_items(s0,s1):
        for x in it: self.A(x)

@add_method
def x_prepare(self):
    A=self.A
    A("s_waitcnt vmcnt(4)")
    for ch in range(2):
        for j in range(8): A((bf16_lo if ch==0 else bf16_hi)(96+8*ch+j, V_XG+j))
    A(f"s_mov_b32 s{S_T0+2}, 0x05040100")
    A(f"s_mov_b32 s{S_T0+3}, 0x07060302")
    for ch in range(2):
        for j in range(0,8,2):
            A(f"v_perm_b32 v{176+ch*4+j//2}, v{V_XG+j+1}, v{V_XG+j}, s{S_T0+2+ch}")
    A(f"v_lshlrev_b32 v48, 4, v{V_T}")
    A(f"v_add_u32 v42, {LDS_U+512}, v48")
    A(f"v_add_u32 v50, {LDS_XT}, v48")
    A(f"ds_write_b128 v50, v[176:179]")
    A(f"ds_write_b128 v50, v[180:183] offset:{XT_CH}")
    self.w1_setup()

@add_method
def stats_consume(self):
    A=self.A
    SG=144
    for j in range(8):
        A(f"v_lshlrev_b32 v{80+j}, 16, v{SG+2*j}")
        A(f"v_and_b32 v{88+j}, 0xffff0000, v{SG+2*j}")
    for j in range(8): A(f"v_rcp_f32 v{80+j}, v{80+j}")
    for ch in range(2):
        X=96+ch*8
        for j in range(0,8,2):
            A(f"v_pk_add_f32 v[{X+j}:{X+j+1}], v[{X+j}:{X+j+1}], v[{88+j}:{88+j+1}] neg_lo:[0,1] neg_hi:[0,1]")
        if self.mimic>=2:
            for j in range(0,8,2):
                A(f"v_cvt_pk_bf16_f32 v{128+j//2}, v{X+j}, v{X+j+1}")
            for j in range(0,8,2):
                A(bf16_lo(X+j,128+j//2)); A(bf16_hi(X+j+1,128+j//2))
        for j in range(0,8,2):
            A(f"v_pk_mul_f32 v[{X+j}:{X+j+1}], v[{X+j}:{X+j+1}], v[{80+j}:{80+j+1}]")
        if self.mimic>=1:
            for j in range(0,8,2):
                A(f"v_cvt_pk_bf16_f32 v{128+j//2}, v{X+j}, v{X+j+1}")
            for j in range(0,8,2):
                A(bf16_lo(X+j,128+j//2)); A(bf16_hi(X+j+1,128+j//2))
        U=132+ch*4
        for j in range(0,8,2):
            A(f"v_cvt_pk_f16_f32 v{U+j//2}, v{X+j}, v{X+j+1}")
        A(f"ds_write_b128 v42, v[{U}:{U+3}] offset:{ch*U_CH}")
    if self.w1pf or self.w1start: self.flag_load()
    A("s_waitcnt lgkmcnt(0)")
    A("s_barrier")

@add_method
def w1_rest(self):
    self.w1_loads(W1_IN_CONV,28)

@add_method
def wd_loads(self, s0, s1, S=None):
    out=[]
    for s in range(s0,s1):
        for ca in range(2):
            out.append(f"s_add_u32 s{S_T0+14}, s{S_T0+12+ca}, {s*1024}")
            out.append(('vm',f"buffer_load_dwordx4 a[{8*s+4*ca}:{8*s+4*ca+3}], v47, s[{SRD_WS}:{SRD_WS+3}], s{S_T0+14} offen sc1",f"WD{s}"))
    return out

@add_method
def wd_setup(self):
    A=self.A
    A(f"s_cmp_ge_u32 s{S_J}, 7")
    A(f"s_cselect_b32 s{S_T0+14}, 7, 0")
    A(f"s_sub_u32 s{S_T0+14}, s{S_J}, s{S_T0+14}")
    A(f"s_lshl_b32 s{S_T0+14}, s{S_T0+14}, 1")
    for ca in range(2):
        A(f"s_xor_b32 s{S_T0+12+ca}, s{S_NH}, {ca}")
        A(f"s_add_u32 s{S_T0+12+ca}, s{S_T0+12+ca}, s{S_T0+14}")
        A(f"s_mul_i32 s{S_T0+12+ca}, s{S_T0+12+ca}, 112")
        A(f"s_mul_i32 s{S_T0+15}, s{S_W}, 28")
        A(f"s_add_u32 s{S_T0+12+ca}, s{S_T0+12+ca}, s{S_T0+15}")
        A(f"s_lshl_b32 s{S_T0+12+ca}, s{S_T0+12+ca}, 10")
        A(f"s_add_u32 s{S_T0+12+ca}, s{S_T0+12+ca}, {WS_WFD}")
    A(f"v_lshlrev_b32 v47, 4, v{V_LANE}")

W1_PRE=16
W1_IN_CONV=0
C_ACC=64
C_F=[96,160]
C_G=[128,192]
C_VF=34; C_VG=35
C_EU=224; C_EX=232
@add_method
def conv_setup(self):
    A=self.A
    A(f"v_and_b32 v50, 15, v{V_LANE}")
    A(f"v_lshrrev_b32 v51, 4, v{V_LANE}")
    A(f"v_sub_u32 v52, 3, v50")
    A(f"v_and_b32 v52, 3, v52")
    A(f"v_mul_u32_u24 v52, {KX_COPY}, v52")
    A(f"v_lshrrev_b32 v53, 2, v50")
    A(f"v_lshlrev_b32 v53, 3, v53")
    A(f"v_sub_u32 v52, v52, v53")
    A(f"v_lshl_add_u32 v52, v51, 4, v52")
    A(f"s_mul_i32 s{S_T0}, s{S_CH}, {KX_CH}")
    A(f"s_lshl_b32 s{S_T0+1}, s{S_NH}, 8")
    A(f"s_sub_u32 s{S_T0}, s{S_T0}, s{S_T0+1}")
    A(f"s_add_u32 s{S_T0}, s{S_T0}, {LDS_KX+2*2028-64*63}")
    A(f"v_add_u32 v{C_VF}, s{S_T0}, v52")
    A(f"v_lshlrev_b32 v52, 5, v50")
    A(f"v_lshl_add_u32 v52, v51, 4, v52")
    A(f"s_mul_i32 s{S_T0}, s{S_CH}, {U_CH}")
    A(f"s_sub_u32 s{S_T0}, s{S_T0}, s{S_T0+1}")
    A(f"s_add_u32 s{S_T0}, s{S_T0}, {LDS_U+480-192}")
    A(f"v_add_u32 v{C_VG}, s{S_T0}, v52")
    A(f"v_lshlrev_b32 v52, 5, v50")
    A(f"v_lshl_add_u32 v52, v51, 3, v52")
    A(f"s_lshl_b32 s{S_T0}, s{S_NH}, 11")
    A(f"s_mul_i32 s{S_T0+1}, s{S_CH}, {U_CH}")
    A(f"s_add_u32 s{S_T0+1}, s{S_T0+1}, s{S_T0}")
    A(f"s_add_u32 s{S_T0+1}, s{S_T0+1}, {LDS_U+512}")
    A(f"v_add_u32 v36, s{S_T0+1}, v52")
    A(f"s_mul_i32 s{S_T0+1}, s{S_CH}, {XT_CH}")
    A(f"s_add_u32 s{S_T0+1}, s{S_T0+1}, s{S_T0}")
    A(f"s_add_u32 s{S_T0+1}, s{S_T0+1}, {LDS_XT}")
    A(f"v_add_u32 v37, s{S_T0+1}, v52")
    A(f"v_and_b32 v38, 1, v51")
    A(f"v_lshlrev_b32 v38, 3, v38")
    A(f"v_lshrrev_b32 v53, 1, v50")
    A(f"v_add_u32 v38, v38, v53")
    A(f"s_movk_i32 s{S_T0+8}, {448*64}")
    A(f"v_mul_lo_u32 v38, v38, s{S_T0+8}")
    A(f"v_and_b32 v53, 1, v50")
    A(f"v_lshl_add_u32 v38, v53, 5, v38")
    A(f"v_lshrrev_b32 v53, 1, v51")
    A(f"v_lshl_add_u32 v38, v53, 4, v38")
    A(f"s_lshl_b32 s{S_T0+8}, s{S_NH}, 5")
    A(f"s_mul_i32 s{S_T0+8}, s{S_T0+8}, {448*64}")
    A(f"s_add_u32 s{S_T0+9}, s{S_D0}, s{S_CH}")
    A(f"s_lshl_b32 s{S_T0+9}, s{S_T0+9}, 6")
    A(f"s_add_u32 s{S_T0+8}, s{S_T0+8}, s{S_T0+9}")
    A(f"s_add_u32 s22, s{S_T0+8}, {WS_HT}")
    A(f"s_add_u32 s23, s22, {16*448*64}")

@add_method
def conv(self):
    A=self.A
    def loads(sp):
        st=sp&1; out=[]
        for k in range(8):
            g=C_G[st]+4*k; f=C_F[st]+4*k
            out.append(f"ds_read_b128 v[{g}:{g+3}], v{C_VG} offset:{512*k+64*(3-sp)}")
            o=64*(63-8*k-sp)
            out.append(f"ds_read_b64 v[{f}:{f+1}], v{C_VF} offset:{o}")
            out.append(f"ds_read_b64 v[{f+2}:{f+3}], v{C_VF} offset:{o+8}")
        return out
    def mfmas(sp):
        st=sp&1; out=[]
        for t in range(8):
            for d in range(t+1):
                acc=C_ACC+4*t
                c = "0" if (sp==0 and d==0) else f"v[{acc}:{acc+3}]"
                out.append((t,d,f"v_mfma_f32_16x16x32_f16 v[{acc}:{acc+3}], v[{C_F[st]+4*d}:{C_F[st]+4*d+3}], v[{C_G[st]+4*(t-d)}:{C_G[st]+4*(t-d)+3}], {c}"))
        return out
    l0=loads(0)
    for k in range(5):
        for x in l0[3*k:3*k+3]: A(x)
    issued=5
    nconv=self.w1n if self.w1start else 0
    self.w1_in_conv=nconv
    wl=self.w1_items(0,nconv); wi=[0]; mc=[0]; cur_sp=[0]
    def wfill():
        if not self.w1start or cur_sp[0]<self.w1start: return
        mc[0]+=1
        if mc[0]%self.w1step==1 and wi[0]<len(wl):
            for x in wl[wi[0]]: A(x)
            wi[0]+=1
    nxt=loads(1); ni=0
    cur_t=-1
    for (t,d,txt) in mfmas(0):
        first = (t!=cur_t)
        if first:
            cur_t=t
            if t<=3: A(f"s_waitcnt lgkmcnt({3*(issued-1-t)})")
            elif t==4: A("s_waitcnt lgkmcnt(0)")
        A(txt)
        if first and issued<8:
            for x in l0[3*issued:3*issued+3]: A(x)
            issued+=1
        elif t>=4 and ni<len(nxt):
            A(nxt[ni]); ni+=1
    assert ni==len(nxt)

    epi=[]
    for tt in range(4):
        epi.append(f"ds_read_b64 v[{C_EU+2*tt}:{C_EU+2*tt+1}], v36 offset:{512*tt}")
        epi.append(f"ds_read_b64 v[{C_EX+2*tt}:{C_EX+2*tt+1}], v37 offset:{512*tt}")
    U=224; X=240
    PRE=160
    PRE=96
    UU=112
    pre=[]
    if self.mimic==0:
        pre.append(f"v_mov_b32 v47, s{S_DSKV}")
        for tt in range(4):
            for h in range(2):
                pre.append(f"v_cvt_f32_f16 v{UU+4*tt+2*h}, v{C_EU+2*tt+h}")
                pre.append(f"v_lshrrev_b32 v{UU+4*tt+2*h+1}, 16, v{C_EU+2*tt+h}")
                pre.append(f"v_cvt_f32_f16 v{UU+4*tt+2*h+1}, v{UU+4*tt+2*h+1}")
                pre.append(bf16_lo(PRE+4*tt+2*h, C_EX+2*tt+h)); pre.append(bf16_hi(PRE+4*tt+2*h+1, C_EX+2*tt+h))
        for r in range(16): pre.append(f"v_fma_f32 v{PRE+r}, v{UU+r}, v47, v{PRE+r}")
    for sp in range(1,4):
        if self.wdrain and sp==3: self.flag_load()
        if self.w1start and sp==self.w1start:
            self.flag_wait(0x3fff, sleep=self.fsleep)
            self.stamp('w1 flags')
        if self.w1pf and sp==self.w1pf:
            lpf=self.lab()
            A("s_waitcnt vmcnt(0)")
            A(f"v_cmp_eq_u32 vcc, s{S_TAG}, v46")
            A(f"s_and_b32 s{S_T0+2}, vcc_lo, 0x3fff")
            A(f"s_cmp_eq_u32 s{S_T0+2}, 0x3fff")
            A(f"s_cbranch_scc0 {lpf}")
            A(f"s_lshl_b32 s{S_T0+2}, s{S_J}, 2")
            A(f"s_add_u32 s{S_T0+2}, s{S_T0+2}, s{S_W}")
            A(f"s_mul_i32 s{S_T0+2}, s{S_T0+2}, {56*1024}")
            A(f"s_and_b32 s{S_T0+3}, s{S_I}, 3")
            A(f"s_mul_i32 s{S_T0+3}, s{S_T0+3}, {14*1024}")
            A(f"s_add_u32 s{S_T0+2}, s{S_T0+2}, s{S_T0+3}")
            A(f"s_add_u32 s{S_T0+2}, s{S_T0+2}, {WS_WF1}")
            A(f"v_min_u32 v40, 55, v{V_LANE}")
            A(f"v_lshlrev_b32 v40, 7, v40")
            A(f"buffer_load_dword v253, v40, s[{SRD_WS}:{SRD_WS+3}], s{S_T0+2} offen sc1")
            A(f"s_add_u32 s{S_T0+2}, s{S_T0+2}, {7*1024}")
            A(f"buffer_load_dword v252, v40, s[{SRD_WS}:{SRD_WS+3}], s{S_T0+2} offen sc1")
            A(f"{lpf}:")
        A("s_waitcnt lgkmcnt(0)")
        nxt = loads(sp+1) if sp<3 else epi
        cur_sp[0]=sp
        ni=0; pi=0; k=0
        for (t,d,txt) in mfmas(sp):
            A(txt); k+=1
            if ni<len(nxt): A(nxt[ni]); ni+=1
            elif sp==3 and pre:
                if k==12: A("s_waitcnt lgkmcnt(0)")
                if k>=12:
                    tgt=min(len(pre),(len(pre)*(k-11)+23)//24)
                    while pi<tgt: A(pre[pi]); pi+=1
            wfill()
        if sp==3:
            while pi<len(pre): A(pre[pi]); pi+=1
    assert wi[0]==len(wl)
    A(f"s_lshl_b32 s{S_T0}, s{S_W}, 12")
    A(f"v_lshl_add_u32 v55, v{V_LANE}, 4, s{S_T0}")
    if self.mimic==0:
        lA=self.lab(); lB=self.lab()
        A(f"s_cmp_eq_u32 s{S_NH}, 0")
        A(f"s_cbranch_scc0 {lA}")
        A("s_nop 5")
        for tt in range(4): A(f"ds_write_b128 v55, v[{C_ACC+16+4*tt}:{C_ACC+16+4*tt+3}] offset:{1024*tt}")
        A(f"s_branch {lB}")
        A(f"{lA}:")
        A("s_nop 5")
        for tt in range(4): A(f"ds_write_b128 v55, v[{C_ACC+4*tt}:{C_ACC+4*tt+3}] offset:{1024*tt}")
        A(f"{lB}:")
        A("v_xor_b32 v55, 4096, v55")
        A(f"v_mov_b32 v146, s{S_YS}\nv_mov_b32 v147, s{S_YS}")
        A("s_waitcnt lgkmcnt(0)")
        A("s_barrier")
        PT=128
        for tt in range(4): A(f"ds_read_b128 v[{PT+4*tt}:{PT+4*tt+3}], v55 offset:{1024*tt}")
        def fin(Y):
            for tt in range(4):
                A(f"s_waitcnt lgkmcnt({3-tt})")
                for p in (2*tt,2*tt+1):
                    A(f"v_pk_add_f32 v[{PT+2*p}:{PT+2*p+1}], v[{Y+2*p}:{Y+2*p+1}], v[{PT+2*p}:{PT+2*p+1}]")
                for p in (2*tt,2*tt+1):
                    A(f"v_pk_fma_f32 v[{PT+2*p}:{PT+2*p+1}], v[{PT+2*p}:{PT+2*p+1}], v[146:147], v[{PRE+2*p}:{PRE+2*p+1}]")
        lA=self.lab(); lB=self.lab()
        A(f"s_cmp_eq_u32 s{S_NH}, 0")
        A(f"s_cbranch_scc0 {lA}")
        fin(C_ACC)
        A(f"s_branch {lB}")
        A(f"{lA}:")
        fin(C_ACC+16)
        A(f"{lB}:")
        Y=PT
    else:
        l=self.lab()
        A(f"s_cmp_eq_u32 s{S_NH}, 0")
        A(f"s_cbranch_scc1 {l}")
        A("s_nop 7")
        for r in range(16): A(f"v_swap_b32 v{C_ACC+r}, v{C_ACC+16+r}")
        A(f"{l}:")
        A("s_nop 7")
        for tt in range(4): A(f"ds_write_b128 v55, v[{C_ACC+16+4*tt}:{C_ACC+16+4*tt+3}] offset:{1024*tt}")
        A("v_xor_b32 v55, 4096, v55")
        A("s_waitcnt lgkmcnt(0)")
        A("s_barrier")
    if self.mimic==0: pass
    else:
        for tt in range(4): A(f"ds_read_b128 v[{96+4*tt}:{96+4*tt+3}], v55 offset:{1024*tt}")
        U=112; X=128; Y=C_ACC
        for tt in range(4):
            for h in range(2):
                A(f"v_cvt_f32_f16 v{U+4*tt+2*h}, v{C_EU+2*tt+h}")
                A(f"v_cvt_f32_f16_sdwa v{U+4*tt+2*h+1}, v{C_EU+2*tt+h} dst_sel:DWORD dst_unused:UNUSED_PAD src0_sel:WORD_1")
                A(bf16_lo(X+4*tt+2*h, C_EX+2*tt+h)); A(bf16_hi(X+4*tt+2*h+1, C_EX+2*tt+h))
        A(f"v_mov_b32 v144, s{S_DSKV}\nv_mov_b32 v145, s{S_DSKV}\nv_mov_b32 v146, s{S_YS}\nv_mov_b32 v147, s{S_YS}")
        for p in range(8):
            A(f"v_pk_mul_f32 v[{U+2*p}:{U+2*p+1}], v[{U+2*p}:{U+2*p+1}], v[144:145]")
        if self.mimic>=1:
            for p in range(8): A(f"v_cvt_pk_bf16_f32 v{148+p}, v{U+2*p}, v{U+2*p+1}")
            for p in range(8): A(bf16_lo(U+2*p,148+p)); A(bf16_hi(U+2*p+1,148+p))
        A("s_waitcnt lgkmcnt(0)")
        for p in range(8):
            A(f"v_pk_add_f32 v[{Y+2*p}:{Y+2*p+1}], v[{Y+2*p}:{Y+2*p+1}], v[{96+2*p}:{96+2*p+1}]")
        for p in range(8):
            A(f"v_pk_mul_f32 v[{Y+2*p}:{Y+2*p+1}], v[{Y+2*p}:{Y+2*p+1}], v[146:147]")
        if self.mimic>=1:
            for p in range(8): A(f"v_cvt_pk_bf16_f32 v{148+p}, v{Y+2*p}, v{Y+2*p+1}")
            for p in range(8): A(bf16_lo(Y+2*p,148+p)); A(bf16_hi(Y+2*p+1,148+p))
        for p in range(8):
            A(f"v_pk_add_f32 v[{Y+2*p}:{Y+2*p+1}], v[{Y+2*p}:{Y+2*p+1}], v[{U+2*p}:{U+2*p+1}]")
        if self.mimic>=1:
            for p in range(8): A(f"v_cvt_pk_bf16_f32 v{148+p}, v{Y+2*p}, v{Y+2*p+1}")
            for p in range(8): A(bf16_lo(Y+2*p,148+p)); A(bf16_hi(Y+2*p+1,148+p))
        for p in range(8):
            A(f"v_pk_add_f32 v[{Y+2*p}:{Y+2*p+1}], v[{Y+2*p}:{Y+2*p+1}], v[{X+2*p}:{X+2*p+1}]")
    H=148
    for p in range(8): A(f"v_cvt_pk_bf16_f32 v{H+p}, v{Y+2*p}, v{Y+2*p+1}")
    for pr in range(2):
        b=H+4*pr
        A(f"v_permlane16_swap_b32 v{b}, v{b+2}")
        A(f"v_permlane16_swap_b32 v{b+1}, v{b+3}")
    if self.wdrain:
        A("s_waitcnt vmcnt(0)")
        A(f"v_cmp_eq_u32 vcc, s{S_TAG}, v46")
        A(f"s_and_b32 s{S_T0+2}, vcc_lo, 0x3fff")
        A(f"s_cmp_eq_u32 s{S_T0+2}, 0x3fff")
        A(f"s_cselect_b32 s3, 1, 0")
    A(f"buffer_store_dwordx4 v[{H}:{H+3}], v38, s[{SRD_WS}:{SRD_WS+3}], s22 offen sc1")
    A(f"buffer_store_dwordx4 v[{H+4}:{H+7}], v38, s[{SRD_WS}:{SRD_WS+3}], s23 offen sc1")

@add_method
def sync_all(self):
    A=self.A
    if self.wdrain:
        la=self.lab(); lb=self.lab()
        A(f"s_cmp_eq_u32 s3, 0")
        A(f"s_cbranch_scc1 {la}")
        self.w1_loads(0,self.wdrain)
        A(f"s_waitcnt vmcnt({2*self.wdrain})")
        A(f"s_branch {lb}")
        A(f"{la}:")
        A("s_waitcnt vmcnt(0)")
        A(f"{lb}:")
    else:
        if not self.w1start: self.flag_load()
        A("s_waitcnt vmcnt(0)")
    A("s_barrier")
    l=self.lab()
    A(f"s_cmp_lg_u32 s{S_W}, 0")
    A(f"s_cbranch_scc1 {l}")
    A(f"s_and_b32 s{S_T0}, s{S_WG}, 7")
    A(f"s_lshl_b32 s{S_T0}, s{S_T0}, 7")
    A(f"s_add_u32 s{S_T0}, s{S_T0}, {WS_CNT2}")
    A(f"v_lshlrev_b32 v48, 10, v{V_LANE}")
    A("v_mov_b32 v49, 1")
    A("s_mov_b64 exec, 0xff")
    A(f"buffer_atomic_add v49, v48, s[{SRD_WS}:{SRD_WS+3}], s{S_T0} offen")
    A("s_mov_b64 exec, -1")
    A(f"{l}:")

@add_method
def sync_all_wait(self, sleep=0, presleep=0):
    A=self.A
    l=self.lab(); lp=self.lab('Lpoll'); le=self.lab()
    A(f"s_cmp_lg_u32 s{S_W}, 0")
    A(f"s_cbranch_scc1 {l}")
    A(f"s_lshr_b32 s{S_T0}, s{S_WG}, 3")
    A(f"s_and_b32 s{S_T0}, s{S_T0}, 7")
    A(f"s_lshl_b32 s{S_T0}, s{S_T0}, 10")
    A(f"s_add_u32 s{S_T0}, s{S_T0}, {WS_CNT2}")
    A(f"v_and_b32 v48, 7, v{V_LANE}")
    A(f"v_lshlrev_b32 v48, 7, v48")
    A(f"s_mov_b32 s{S_T0+1}, 0")
    if self.pp:
        A(f"buffer_load_dword v252, v48, s[{SRD_WS}:{SRD_WS+3}], s{S_T0} offen sc1")
        A(f"{lp}:")
        for a_,b_ in ((253,252),(252,253)):
            A(f"buffer_load_dword v{a_}, v48, s[{SRD_WS}:{SRD_WS+3}], s{S_T0} offen sc1")
            A("s_waitcnt vmcnt(1)")
            A(f"v_cmp_gt_u32 vcc, 28, v{b_}")
            A(f"s_cbranch_vccz {le}")
        A(f"s_add_u32 s{S_T0+1}, s{S_T0+1}, 1")
        A(f"s_cmp_lt_u32 s{S_T0+1}, 0x4000")
        A(f"s_cbranch_scc1 {lp}")
    else:
        A(f"{lp}:")
        A(f"buffer_load_dword v49, v48, s[{SRD_WS}:{SRD_WS+3}], s{S_T0} offen sc1")
        A("s_waitcnt vmcnt(0)")
        A("v_cmp_gt_u32 vcc, 28, v49")
        A(f"s_add_u32 s{S_T0+1}, s{S_T0+1}, 1")
        A(f"s_cbranch_vccz {le}")
        if sleep: A(f"s_sleep {sleep}")
        A(f"s_cmp_lt_u32 s{S_T0+1}, 0x8000")
        A(f"s_cbranch_scc1 {lp}")
    A(f"{le}:")
    A(f"{l}:")
    A("s_barrier")

class Stream:
    def __init__(self, A):
        self.A=A; self.lds=[]; self.vm=[]
    def ds(self, text, tag=None):
        self.A(text); self.lds.append(tag)
    def vmem(self, text, tag=None):
        self.A(text); self.vm.append(tag)
    def need_lds(self, tags):
        idx=-1
        for t in tags:
            if t in self.lds: idx=max(idx, len(self.lds)-1-self.lds[::-1].index(t))
        if idx>=0:
            n=len(self.lds)-idx-1
            n=min(n,15)
            self.A(f"s_waitcnt lgkmcnt({n})")
            self.lds=self.lds[len(self.lds)-n:] if n>0 else []
    def need_vm(self, tags):
        idx=-1
        for t in tags:
            if t in self.vm: idx=max(idx, len(self.vm)-1-self.vm[::-1].index(t))
        if idx>=0:
            n=len(self.vm)-idx-1
            n=min(n,63)
            self.A(f"s_waitcnt vmcnt({n})")
            self.vm=self.vm[len(self.vm)-n:] if n>0 else []
    def item(self, it):
        if isinstance(it,str): self.A(it)
        elif it[0]=='ds': self.ds(it[1],it[2])
        elif it[0]=='vm': self.vmem(it[1],it[2])
        elif it[0]=='needl': self.need_lds(it[1])
        elif it[0]=='needv': self.need_vm(it[1])

G_ACC=[64,96]; G_CS=128; G_RING=160; G_SB=184; G_VB=56; G_ST=54; G_ET=60; G_PK=232; G_R2=250; G_MU=240; G_C1=244
LDS_ST=114688
@add_method
def cs_mfma(self, s0, s1, init=True):
    A=self.A
    if s0==0 and init:
        for k in range(4): A(f"v_mov_b32 v{48+k}, 0x3f803f80")
    for s in range(s0,s1):
        for t in range(2):
            d=G_CS+16*t
            c="0" if s==0 else f"v[{d}:{d+15}]"
            A(f"v_mfma_f32_32x32x16_bf16 v[{d}:{d+15}], a[{8*s+4*t}:{8*s+4*t+3}], v[48:51], {c}")

def wd_loc(sig, ca):
    if sig<5: return ('v', 4+8*sig+4*ca)
    if sig<9: return ('a', 224+8*(sig-5)+4*ca)
    if sig<14: return ('v', 192+8*(sig-9)+4*ca)
    return ('a', 8*(sig-14)+4*ca)

@add_method
def wd_item(self, sig, ca):
    k,r=wd_loc(sig,ca)
    it=[]
    if sig%8==0 and sig>0: it.append(f"s_add_u32 s{S_T0+12+ca}, s{S_T0+12+ca}, 8192")
    va,off=("v48",(sig%8)*1024) if sig%8<4 else ("v3",(sig%8-4)*1024)
    it.append(('vm',f"buffer_load_dwordx4 {k}[{r}:{r+3}], {va}, s[{SRD_WS}:{SRD_WS+3}], s{S_T0+12+ca} offen offset:{off} sc1",f"WD{sig}"))
    return it

PF=5
@add_method
def gemm1(self):
    A=self.A; S=Stream(A); self.S=S
    A(f"s_mul_i32 s{S_T0}, s{S_I}, {4*28672}")
    A(f"s_mul_i32 s{S_T0+1}, s{S_W}, 7168")
    A(f"s_add_u32 s{S_T0}, s{S_T0}, s{S_T0+1}")
    A(f"s_add_u32 s{S_T0}, s{S_T0}, {WS_HT}")
    A(f"v_lshlrev_b32 v48, 4, v{V_LANE}")
    A(f"v_add_u32 v3, 4096, v48")
    def xdma(lt,k):
        base=lt*28672+(k//4)*4096
        it=[]
        if k%4==0: it+=[f"s_add_u32 s{S_T0+2}, s{S_T0}, {base}", f"s_add_u32 m0, s{S_T0+1}, {base}"]
        it.append(('vm',f"buffer_load_dwordx4 v48, s[{SRD_WS}:{SRD_WS+3}], s{S_T0+2} offen offset:{(k%4)*1024} sc1 lds", f"X{lt}"))
        return it
    for lt in range(2):
        for k in range(7):
            for it in xdma(lt,k): S.item(it)
    self.wd_setup()
    self.wdflag_load(S)
    A(f"s_lshl_b32 s{S_T0+3}, s{S_J}, 2")
    A(f"s_add_u32 s{S_T0+3}, s{S_T0+3}, s{S_W}")
    A(f"s_mul_i32 s{S_T0+3}, s{S_T0+3}, {2*896}")
    A(f"s_add_u32 s{S_T0+3}, s{S_T0+3}, {WS_CS}")
    A(f"v_lshrrev_b32 v50, 5, v{V_LANE}")
    A(f"v_mul_u32_u24 v50, 896, v50")
    A(f"v_and_b32 v51, 31, v{V_LANE}")
    A(f"v_lshl_add_u32 v50, v51, 2, v50")
    for g in range(7):
        S.vmem(f"buffer_load_dword v{184+g}, v50, s[{SRD_WS}:{SRD_WS+3}], s{S_T0+3} offen offset:{g*128} sc1","CSP")
    A(f"s_lshl_b32 s{S_T0+3}, s{S_W}, 8")
    A(f"s_add_u32 s{S_T0+3}, s{S_T0+3}, {LDS_ST+2048}")
    A(f"v_lshl_add_u32 v191, v{V_LANE}, 2, s{S_T0+3}")
    A(f"v_lshrrev_b32 v55, 5, v{V_LANE}")
    A(f"v_lshlrev_b32 v55, 4, v55")
    A(f"v_add_u32 v55, s{S_T0+3}, v55")
    A(f"v_lshrrev_b32 v50, 5, v{V_LANE}")
    A(f"v_lshlrev_b32 v50, 9, v50")
    A(f"v_bfe_u32 v51, v{V_LANE}, 2, 2")
    A(f"v_lshl_add_u32 v50, v51, 6, v50")
    A(f"v_bfe_u32 v51, v{V_LANE}, 4, 1")
    A(f"v_lshl_add_u32 v50, v51, 5, v50")
    A(f"v_and_b32 v51, 3, v{V_LANE}")
    A(f"v_lshl_add_u32 v50, v51, 3, v50")
    for g in range(4):
        A(f"s_add_u32 s{S_T0+3}, s{S_W}, {g}")
        A(f"s_and_b32 s{S_T0+3}, s{S_T0+3}, 3")
        A(f"s_sub_u32 s{S_T0+3}, s{S_T0+3}, {g}")
        A(f"s_mul_i32 s{S_T0+3}, s{S_T0+3}, 7168")
        A(f"v_add_u32 v{G_VB+g}, s{S_T0+3}, v50")
    A(f"v_and_b32 v52, 31, v{V_LANE}")
    A(f"v_lshlrev_b32 v52, 3, v52")
    A(f"s_lshl_b32 s{S_T0+10}, s{S_I}, 10")
    A(f"s_add_u32 s{S_T0+10}, s{S_T0+10}, {WS_ST2}")
    A(f"s_lshl_b32 s{S_T0+4}, s{S_I}, 2")
    A(f"s_mul_i32 s{S_T0+4}, s{S_T0+4}, 112")
    A(f"s_lshl_b32 s{S_T0+5}, s{S_J}, 3")
    A(f"s_add_u32 s{S_T0+4}, s{S_T0+4}, s{S_T0+5}")
    A(f"s_lshl_b32 s{S_T0+5}, s{S_W}, 1")
    A(f"s_add_u32 s{S_T0+4}, s{S_T0+4}, s{S_T0+5}")
    A(f"s_lshl_b32 s{S_T0+4}, s{S_T0+4}, 10")
    A(f"s_add_u32 s{S_T0+4}, s{S_T0+4}, {WS_M}")
    SM=S_T0+4
    RING=[G_RING+4*k for k in range(6)]
    def breg(p,s): return RING[(28*p+s)%6]
    def bload(p,s):
        r=breg(p,s); vb=G_VB+s//7
        return [('ds',f"ds_read_b64_tr_b16 v[{r}:{r+1}], v{vb} offset:{s*1024}",f"B{p}_{s}a"),
                ('ds',f"ds_read_b64_tr_b16 v[{r+2}:{r+3}], v{vb} offset:{s*1024+256}",f"B{p}_{s}b")]
    SG2=G_SB
    def stats_loads():
        it=[]
        for p in range(4):
            it.append(('vm',f"buffer_load_dwordx2 v[{SG2+2*p}:{SG2+2*p+1}], v52, s[{SRD_WS}:{SRD_WS+3}], s{S_T0+10} offen offset:{p*256} sc1","ST2"))
        return it
    def stats_check():
        lp=self.lab('Lpoll'); le=self.lab()
        S.need_vm(["ST2"])
        A(f"s_mov_b32 s{S_T0+8}, 0")
        A(f"{lp}:")
        A(f"v_xor_b32 v53, s{S_TAG}, v{SG2+1}")
        for p in range(1,4):
            A(f"v_xor_b32 v54, s{S_TAG}, v{SG2+2*p+1}")
            A(f"v_or_b32 v53, v53, v54")
        A("v_cmp_ne_u32 vcc, 0, v53")
        A(f"s_add_u32 s{S_T0+8}, s{S_T0+8}, 1")
        A(f"s_cbranch_vccz {le}")
        for p in range(4):
            A(f"buffer_load_dwordx2 v[{SG2+2*p}:{SG2+2*p+1}], v52, s[{SRD_WS}:{SRD_WS+3}], s{S_T0+10} offen offset:{p*256} sc1")
        A("s_waitcnt vmcnt(0)")
        A(f"s_cmp_lt_u32 s{S_T0+8}, 0x8000")
        A(f"s_cbranch_scc1 {lp}")
        A(f"{le}:")
    def stats_final(p):
        g=SG2+2*p; T=G_ST
        if self.aug:
            b=G_CS+8+4*p
            return [f"v_and_b32 v{b}, 0xffff0000, v{g}",
                    f"v_xor_b32 v{b}, 0x80000000, v{b}",
                    f"v_lshrrev_b32 v{T}, 16, v{b}",
                    f"v_or_b32 v{b}, v{b}, v{T}",
                    f"v_lshlrev_b32 v{T}, 16, v{g}",
                    f"v_rcp_f32 v{T}, v{T}",
                    f"s_nop 0",
                    f"v_mul_f32 v{G_C1+p}, {fl(-LOG2E)}, v{T}",
                    f"v_mul_f32 v{G_R2+p}, v{T}, v{T}"]
        return [f"v_and_b32 v{G_MU+p}, 0xffff0000, v{g}",
                f"v_lshlrev_b32 v{T}, 16, v{g}",
                f"v_rcp_f32 v{T}, v{T}",
                f"s_nop 0",
                f"v_mul_f32 v{G_C1+p}, {fl(-LOG2E)}, v{T}",
                f"v_mul_f32 v{G_R2+p}, v{T}, v{T}"]
    def epi_items(p):
        acc=G_ACC[p&1]; it=[]; E=G_ET; mu=G_MU+p; c1=G_C1+p
        if self.aug:
            for t in range(2):
                it.append(f"v_mfma_f32_32x32x16_bf16 v[{acc+16*t}:{acc+16*t+15}], v[{G_CS+4*t}:{G_CS+4*t+3}], v[{G_CS+8+4*p}:{G_CS+8+4*p+3}], v[{acc+16*t}:{acc+16*t+15}]")
        for r0 in range(0,16,4):
            rs=range(r0,r0+4)
            if not self.aug:
                for r in rs: it.append(f"v_fma_f32 v{acc+r}, -v{mu}, v{G_CS+r}, v{acc+r}")
                for r in rs: it.append(f"v_fma_f32 v{acc+16+r}, -v{mu}, v{G_CS+16+r}, v{acc+16+r}")
            for r in rs: it.append(f"v_mul_f32 v{E+(r&3)}, v{c1}, v{acc+r}")
            for r in rs: it.append(f"v_exp_f32 v{E+(r&3)}, v{E+(r&3)}")
            for r in rs: it.append(f"v_mul_f32 v{acc+r}, v{acc+r}, v{acc+16+r}")
            for r in rs: it.append(f"v_add_f32 v{E+(r&3)}, 1.0, v{E+(r&3)}")
            for r in rs: it.append(f"v_rcp_f32 v{E+(r&3)}, v{E+(r&3)}")
            for r in rs: it.append(f"v_mul_f32 v{acc+r}, v{acc+r}, v{E+(r&3)}")
            q=r0//4
            it.append(f"v_cvt_pk_bf16_f32 v{G_PK+2*q}, v{acc+r0}, v{acc+r0+1}")
            it.append(f"v_cvt_pk_bf16_f32 v{G_PK+2*q+1}, v{acc+r0+2}, v{acc+r0+3}")
            if q==1 or q==3:
                h=q//2
                if h==0: it.append(f"s_add_u32 s{SM+1}, s{SM}, {p*112*1024}")
                it.append(('vm',f"buffer_store_dwordx4 v[{G_PK+4*h}:{G_PK+4*h+3}], v48, s[{SRD_WS}:{SRD_WS+3}], s{SM+1} offen offset:{h*1024} sc1",f"M{p}_{h}"))
        return it
    vmx={0:[],1:[],2:[],3:[]}
    wr=self.w1_items(W1_PRE,28)
    for n,it in enumerate(wr):
        sl=W1_PRE+n//2
        vmx[0].append((n//2, [('vm',it[0],f"W{sl}")]))
    if self.xlate:
        for q in range(7): vmx[1].append((q, xdma(2,q)))
        for q in range(7): vmx[2].append((q, xdma(3,q)))
    else:
        k=0
        for lt in (2,3):
            for q in range(7):
                vmx[0].append((min(27,len(wr)//2+k), xdma(lt,q))); k+=1
    csit=[('needv',["CSP"])]
    for g in range(1,7): csit.append(f"v_add_f32 v184, v184, v{184+g}")
    if self.aug:
        AUGA=G_CS; AUGB=G_CS+8
        csit+= [f"v_cvt_pk_bf16_f32 v185, v184, v184", f"v_lshlrev_b32 v185, 16, v185", f"v_sub_f32 v186, v184, v185",
                f"v_cvt_pk_bf16_f32 v{AUGA}, v185, v186", f"v_mov_b32 v{AUGA+4}, 0"]
        csit+= [f"v_mov_b32 v{AUGA+r}, 0" for r in (1,2,3,5,6,7)]
        csit+= [f"v_mov_b32 v{AUGB+4*q+r}, 0" for q in range(4) for r in (1,2,3)]
        csit+= [f"v_permlane32_swap_b32 v{AUGA}, v{AUGA+4}"]
    else:
        csit.append(('ds',"ds_write_b32 v191, v184","CSW"))
        for t in range(2):
            for q in range(4):
                csit.append(('ds',f"ds_read_b128 v[{G_CS+16*t+4*q}:{G_CS+16*t+4*q+3}], v55 offset:{t*128+q*32}","CSR"))
    n=0
    for sig in range(5):
        for ca in range(2): vmx[1].append((9+(18*n)//10, self.wd_item(sig,ca))); n+=1
    n=0
    for sig in range(5,14):
        for ca in range(2): vmx[2].append(((8+(19*n)//18) if self.xlate else (1+(26*n)//18), self.wd_item(sig,ca))); n+=1
    for n in range(28): vmx[3].append((max(n//2,(n*self.wdspan)//28), self.wd_item(14+n//2, n%2)))
    S.need_vm(["X0"])
    A("s_barrier")
    self.stamp('x0')
    for s in range(PF):
        for it in bload(0,s): S.item(it)
    BAR=self.bar; csi=[0]
    ST_LOAD,ST_CHK=self.stl,self.stc; _=0
    def emit_pass(p, pre):
        acc=G_ACC[p&1]
        ep=epi_items(p-1) if p>0 else []
        e0=1
        if p==1:
            while csi[0]<len(csit): S.item(csit[csi[0]]); csi[0]+=1
            ep=([] if self.aug else [('needl',["CSR"])])+sum((stats_final(q) for q in range(4)),[])+ep
            e0=ST_CHK+1
        epi=0
        pre_ep=[]
        if self.aug and ep:
            k_=max(i for i,x in enumerate(ep) if isinstance(x,str) and x.startswith('v_mfma'))+1
            pre_ep,ep=ep[:k_],ep[k_:]
            e_pre=e0; e0=e0+3
        def cost(it):
            if isinstance(it,tuple):
                return {'ds':5,'vm':20}.get(it[0],1)
            m=it.split()[0]
            if m in ('v_exp_f32','v_rcp_f32','v_sqrt_f32'): return 8.6
            if m.startswith('s_'): return 3
            return 4.3
        fixed=[0.0]*56
        for g_ in range(56):
            sl_,t_=g_//2,g_%2
            fixed[g_]+=5
            if t_==1:
                for (sl,items) in vmx[p]:
                    if sl==sl_: fixed[g_]+=sum(cost(x) for x in items)
            if t_==0 and sl_%2==0: fixed[g_]+=3
        g0=2*e0
        tot=sum(cost(x) for x in ep)
        quota=[0]*56
        if ep:
            lo,hi=0.0,200.0
            for _ in range(30):
                mid=(lo+hi)/2
                if sum(max(0.0,mid-fixed[g_]) for g_ in range(g0,56))>=tot+25: hi=mid
                else: lo=mid
            quota=[max(0.0,hi-fixed[g_]) if g_>=g0 else 0.0 for g_ in range(56)]
        carry=0.0
        for s in range(28):
            if s%2==0: S.need_lds([f"B{p}_{s}a",f"B{p}_{s}b",f"B{p}_{s+1}a",f"B{p}_{s+1}b"])
            if p==0 and s>=pre and s%2==0: S.need_vm([f"W{s}",f"W{s+1}"])
            if p==0 and s>=18 and csi[0]<len(csit):
                for _ in range(2):
                    if csi[0]<len(csit): S.item(csit[csi[0]]); csi[0]+=1
            r=breg(p,s)
            for t in range(2):
                d=acc+16*t
                c="0" if s==0 else f"v[{d}:{d+15}]"
                A(f"v_mfma_f32_32x32x16_bf16 v[{d}:{d+15}], a[{8*s+4*t}:{8*s+4*t+3}], v[{r}:{r+3}], {c}")
                ns=s+PF
                if ns<28: S.item(bload(p,ns)[t])
                elif p<3: S.item(bload(p+1,ns-28)[t])
                gap=2*s+t
                if t==1:
                    for (sl,items) in vmx[p]:
                        if sl==s:
                            for it in items: S.item(it)
                if pre_ep and s==e_pre and t==1:
                    for it in pre_ep: S.item(it)
                if self.costsched:
                    carry+=quota[gap]
                    while epi<len(ep) and cost(ep[epi])<=carry+1.0:
                        carry-=cost(ep[epi]); S.item(ep[epi]); epi+=1
                elif s>=e0 and ep:
                    ng=2*(28-e0)-1
                    tgt=min(len(ep),(len(ep)*(gap-2*e0+1)+ng-1)//ng)
                    while epi<tgt: S.item(ep[epi]); epi+=1
            if p==1 and s==ST_LOAD:
                for it in stats_loads(): S.item(it)
            if p==1 and s==ST_CHK: stats_check()
            if p<3 and s in (6-PF,13-PF,20-PF,27-PF):
                g={6-PF:0,13-PF:1,20-PF:2,27-PF:3}[s]
                A(f"v_add_u32 v{G_VB+g}, 28672, v{G_VB+g}")
            if p==3 and s==22 and self.emov:
                A(f"s_lshl_b32 s{S_T0+2}, s{S_I}, 7")
                A(f"s_add_u32 s{S_T0+2}, s{S_T0+2}, {WS_CNT3}")
                S.vmem(f"buffer_load_dword v55, v{V_ZERO}, s[{SRD_WS}:{SRD_WS+3}], s{S_T0+2} offen sc1","pollE")
            if s==((4 if self.emov else BAR) if p==3 else BAR):
                if p<3: S.need_vm([f"X{p+1}"])
                if p==0: self.wdflag_check(S)
                if p==3: S.need_vm(["M1_1"])
                A("s_barrier")
                if p==3:
                    l=self.lab()
                    A(f"s_cmp_lg_u32 s{S_W}, 0")
                    A(f"s_cbranch_scc1 {l}")
                    A(f"s_lshl_b32 s{S_T0+2}, s{S_I}, 7")
                    A(f"s_add_u32 s{S_T0+2}, s{S_T0+2}, {WS_CNT3}")
                    A("v_mov_b32 v55, 1")
                    A("s_mov_b64 exec, 1")
                    A(f"buffer_atomic_add v55, v{V_ZERO}, s[{SRD_WS}:{SRD_WS+3}], s{S_T0+2} offen")
                    A("s_mov_b64 exec, -1")
                    A(f"{l}:")
        while epi<len(ep): S.item(ep[epi]); epi+=1
    def w_rest(pre):
        out=[]
        wr=self.w1_items(pre,28); n_=len(wr)
        for n,it in enumerate(wr):
            sl=pre+n//2
            out.append((min(n//2 if not self.split0 else (n*max(1,pre))//max(1,n_) , max(0,sl-4)), [('vm',it[0],f"W{sl}")]))
        return out
    base0=[x for x in vmx[0] if not (isinstance(x[1][0],tuple) and str(x[1][0][2]).startswith('W'))]
    for p in range(4):
        if p==0 and self.split0:
            lB=self.lab('Lp0'); lJ=self.lab('Lp0')
            st=(list(S.lds),list(S.vm),csi[0])
            A(f"s_cmp_lg_u32 s{S_W}, 0")
            A(f"s_cbranch_scc1 {lB}")
            vmx[0]=base0+w_rest(self.split0)
            emit_pass(0,self.split0)
            A(f"s_branch {lJ}")
            A(f"{lB}:")
            S.lds,S.vm,csi[0]=list(st[0]),list(st[1]),st[2]
            vmx[0]=base0
            emit_pass(0,28)
            A(f"{lJ}:")
            A("s_waitcnt vmcnt(0)"); S.vm=[]
        else:
            emit_pass(p,W1_PRE)
        if self.ts and (self.tsonly is None or f'pass{p}' in self.tsonly):
            self.stamp(f'pass{p}'); S.lds=[]
    self.g2_ids()
    self.early_loads=[]
    if self.emov:
        lp=self.lab('Lpoll'); le=self.lab()
        S.need_vm(["pollE"])
        A(f"s_mov_b32 s{S_T0+8}, 0")
        A(f"{lp}:")
        A("v_cmp_gt_u32 vcc, 14, v55")
        A(f"s_cbranch_vccz {le}")
        A(f"buffer_load_dword v55, v{V_ZERO}, s[{SRD_WS}:{SRD_WS+3}], s{S_T0+2} offen sc1")
        A("s_waitcnt vmcnt(0)")
        A(f"s_add_u32 s{S_T0+8}, s{S_T0+8}, 1")
        A(f"s_cmp_lt_u32 s{S_T0+8}, 0x8000")
        A(f"s_cbranch_scc1 {lp}")
        A(f"{le}:")
    else:
        A(f"s_lshl_b32 s{S_T0+2}, s{S_I}, 7")
        A(f"s_add_u32 s{S_T0+2}, s{S_T0+2}, {WS_CNT3}")
        S.vmem(f"buffer_load_dword v55, v{V_ZERO}, s[{SRD_WS}:{SRD_WS+3}], s{S_T0+2} offen sc1","pollE")
    acc=G_ACC[1]; E=G_ET
    if self.aug:
        for t in range(2):
            A(f"v_mfma_f32_32x32x16_bf16 v[{acc+16*t}:{acc+16*t+15}], v[{G_CS+4*t}:{G_CS+4*t+3}], v[{G_CS+8+12}:{G_CS+8+15}], v[{acc+16*t}:{acc+16*t+15}]")
    A("s_nop 7")
    PMU,PC1=(54,52) if self.emov else (184,186)
    if not self.aug: A(f"v_mov_b32 v{PMU}, v{G_MU+3}")
    A(f"v_mov_b32 v{PC1}, v{G_C1+3}")
    ne=0
    for r0 in range(0,16,4):
        if not self.aug:
            for r in (r0,r0+2): A(f"v_pk_fma_f32 v[{acc+r}:{acc+r+1}], v[{G_CS+r}:{G_CS+r+1}], v[{PMU}:{PMU+1}], v[{acc+r}:{acc+r+1}] op_sel_hi:[1,0,1] neg_lo:[0,1,0] neg_hi:[0,1,0]")
            for r in (r0,r0+2): A(f"v_pk_fma_f32 v[{acc+16+r}:{acc+16+r+1}], v[{G_CS+16+r}:{G_CS+16+r+1}], v[{PMU}:{PMU+1}], v[{acc+16+r}:{acc+16+r+1}] op_sel_hi:[1,0,1] neg_lo:[0,1,0] neg_hi:[0,1,0]")
        for r in (r0,r0+2): A(f"v_pk_mul_f32 v[{E+(r&3)}:{E+(r&3)+1}], v[{acc+r}:{acc+r+1}], v[{PC1}:{PC1+1}] op_sel_hi:[1,0]")
        for r in range(4): A(f"v_exp_f32 v{E+r}, v{E+r}")
        if self.emov:
            for _ in range(2): S.vmem(self.m_load_text(0,ne),f"m0_{ne}"); ne+=1
        for r in (r0,r0+2): A(f"v_pk_mul_f32 v[{acc+r}:{acc+r+1}], v[{acc+r}:{acc+r+1}], v[{acc+16+r}:{acc+16+r+1}]")
        for r in (0,2): A(f"v_pk_add_f32 v[{E+r}:{E+r+1}], v[{E+r}:{E+r+1}], 1.0 op_sel_hi:[1,0]")
        for r in range(4): A(f"v_rcp_f32 v{E+r}, v{E+r}")
        for r in (r0,r0+2): A(f"v_pk_mul_f32 v[{acc+r}:{acc+r+1}], v[{acc+r}:{acc+r+1}], v[{E+(r&3)}:{E+(r&3)+1}]")
        q=r0//4
        A(f"v_cvt_pk_bf16_f32 v{G_PK+2*q}, v{acc+r0}, v{acc+r0+1}")
        A(f"v_cvt_pk_bf16_f32 v{G_PK+2*q+1}, v{acc+r0+2}, v{acc+r0+3}")
        if q in (1,3):
            h=q//2
            if h==0: A(f"s_add_u32 s{SM+1}, s{SM}, {3*112*1024}")
            S.vmem(f"buffer_store_dwordx4 v[{G_PK+4*h}:{G_PK+4*h+3}], v48, s[{SRD_WS}:{SRD_WS+3}], s{SM+1} offen offset:{h*1024} sc1",f"M3_{h}")

S_MB=76
@add_method
def g2_ids(self):
    A=self.A
    A(f"s_cmp_ge_u32 s{S_J}, 7")
    A(f"s_cselect_b32 s{S_T0}, 1, 0")
    A(f"s_cselect_b32 s{S_T0+6}, 7, 0")
    A(f"s_sub_u32 s{S_T0+6}, s{S_J}, s{S_T0+6}")
    A(f"s_lshl_b32 s{S_T0+1}, s{S_I}, 2")
    A(f"s_sub_u32 s{S_T0+3}, 3, s{S_T0}")
    A(f"s_add_u32 s{S_T0+3}, s{S_T0+3}, s{S_T0+1}")
    A(f"s_add_u32 s{S_T0+1}, s{S_T0+1}, s{S_T0}")
    A(f"s_mul_i32 s{S_T0+7}, s{S_W}, 28")
    for la,src in ((0,S_T0+1),(1,S_T0+3)):
        A(f"s_mul_i32 s{S_MB+la}, s{src}, 112")
        A(f"s_add_u32 s{S_MB+la}, s{S_MB+la}, s{S_T0+7}")
        A(f"s_lshl_b32 s{S_MB+la}, s{S_MB+la}, 10")
        A(f"s_add_u32 s{S_MB+la}, s{S_MB+la}, {WS_M}")
@add_method
def m_entry(self, la, s): return H_RING+4*((28*la+s+(8 if self.emov else 0))%NRING)
@add_method
def m_load_text(self, la, s):
    r=self.m_entry(la,s)
    if s%8==0 and s>0: self.A(f"s_add_u32 s{S_MB+la}, s{S_MB+la}, 8192")
    va,off=("v48",(s%8)*1024) if s%8<4 else ("v3",(s%8-4)*1024)
    return f"buffer_load_dwordx4 v[{r}:{r+3}], {va}, s[{SRD_WS}:{SRD_WS+3}], s{S_MB+la} offen offset:{off} sc1"

H_ACC=64
H_RING=128
NRING=16
LDS_RED=0
LDS_RES=49152
@add_method
def gemm2(self):
    A=self.A; S=self.S
    if not self.emov:
        lp=self.lab('Lpoll'); le=self.lab()
        A(f"s_mov_b32 s{S_T0+8}, 0")
        A(f"s_waitcnt vmcnt(2)")
        A(f"{lp}:")
        A("v_cmp_gt_u32 vcc, 14, v55")
        A(f"s_cbranch_vccz {le}")
        A(f"buffer_load_dword v55, v{V_ZERO}, s[{SRD_WS}:{SRD_WS+3}], s{S_T0+2} offen sc1")
        A("s_waitcnt vmcnt(0)")
        A(f"s_add_u32 s{S_T0+8}, s{S_T0+8}, 1")
        A(f"s_cmp_lt_u32 s{S_T0+8}, 0x8000")
        A(f"s_cbranch_scc1 {lp}")
        A(f"{le}:")
    S2=Stream(A)
    if self.emov:
        S2.vm=["m0_0","m0_1","m0_2","m0_3","Mfin","m0_4","m0_5","m0_6","m0_7","Mfin"]
    else: S2.vm=["Mfin","Mfin"]
    def mload(la,s):
        S2.vmem(self.m_load_text(la,s), f"m{la}_{s}")
    N0=8 if self.emov else 0
    NPRE=self.npre
    NPRE=max(NPRE,N0) if not self.emov else N0+self.npre2
    for s_ in range(N0,NPRE): mload(0,s_)
    A(f"s_lshl_b32 s{S_T0+11}, s{S_T0+6}, 6")
    A(f"s_lshl_b32 s{S_T0+7}, s{S_NH}, 5")
    A(f"s_add_u32 s{S_T0+11}, s{S_T0+11}, s{S_T0+7}")
    A(f"s_lshl_b32 s{S_T0+7}, s{S_CH}, 4")
    A(f"s_add_u32 s{S_T0+11}, s{S_T0+11}, s{S_T0+7}")
    for la,src,dst in ((0,S_T0+1,S_T0+8),(1,S_T0+3,S_T0+9)):
        A(f"s_mul_i32 s{dst}, s{src}, 448")
        A(f"s_add_u32 s{dst}, s{dst}, s{S_T0+11}")
        A(f"s_lshl_b32 s{dst}, s{dst}, 6")
        A(f"s_add_u32 s{dst}, s{dst}, {WS_HT}")
    A(f"s_lshl_b32 s{S_T0+11}, s{S_T0+11}, 1")
    A(f"s_mul_i32 s{S_T0+14}, s{S_T0+1}, {32*896}")
    A(f"s_add_u32 s{S_T0+14}, s{S_T0+14}, s{S_T0+11}")
    A(f"s_mul_i32 s{S_T0+15}, s{S_T0+3}, {32*896}")
    A(f"s_add_u32 s{S_T0+15}, s{S_T0+15}, s{S_T0+11}")
    A(f"s_lshl_b32 s{S_T0+11}, s{S_W}, 11")
    A(f"s_add_u32 s{S_T0+11}, s{S_T0+11}, {LDS_RES}")
    A(f"s_mov_b32 s{SRD_W}, s{S_OUT}\ns_mov_b32 s{SRD_W+1}, s{S_OUT+1}\ns_mov_b32 s{SRD_W+2}, {L_*D_*2}\ns_mov_b32 s{SRD_W+3}, 0x20000")
    A(f"s_cmp_eq_u32 s{S_T0}, 0")
    A("s_cselect_b64 vcc, -1, 0")
    A(f"v_cndmask_b32 v248, v{G_R2+1}, v{G_R2}, vcc")
    A(f"v_cndmask_b32 v254, v{G_R2+2}, v{G_R2+3}, vcc")
    A("v_mov_b32 v249, v248\nv_mov_b32 v255, v254")
    A(f"v_lshrrev_b32 v50, 5, v{V_LANE}")
    A(f"v_lshlrev_b32 v50, 8, v50")
    A(f"v_bfe_u32 v51, v{V_LANE}, 2, 2")
    A(f"v_lshl_add_u32 v50, v51, 6, v50")
    A(f"v_bfe_u32 v51, v{V_LANE}, 4, 1")
    A(f"v_lshl_add_u32 v50, v51, 5, v50")
    A(f"v_and_b32 v51, 3, v{V_LANE}")
    A(f"v_lshl_add_u32 v50, v51, 3, v50")
    A(f"v_add_u32 v50, s{S_T0+11}, v50")
    A(f"v_and_b32 v52, 31, v{V_LANE}")
    A(f"v_mul_u32_u24 v52, 896, v52")
    A(f"v_lshrrev_b32 v51, 5, v{V_LANE}")
    A(f"v_lshl_add_u32 v52, v51, 4, v52")
    for x in (1,2,3):
        A(f"s_xor_b32 s{S_T0+7}, s{S_W}, {x}")
        A(f"s_mul_i32 s{S_T0+7}, s{S_T0+7}, 6144")
        A(f"s_add_u32 s{S_T0+7}, s{S_T0+7}, {LDS_RED+(x-1)*2048}")
        A(f"v_add_u32 v{43+x}, s{S_T0+7}, v48")
    A(f"s_mul_i32 s{S_T0+7}, s{S_W}, 6144")
    A(f"s_add_u32 s{S_T0+7}, s{S_T0+7}, {LDS_RED}")
    A(f"v_add_u32 v47, s{S_T0+7}, v48")
    S2.need_vm(["Mfin"])
    A("s_barrier")
    l=self.lab()
    A(f"s_lshl_b32 s{S_T0+10}, s{S_I}, 7")
    A(f"s_add_u32 s{S_T0+10}, s{S_T0+10}, {WS_CNT3+2048}")
    A(f"s_cmp_lg_u32 s{S_W}, 0")
    A(f"s_cbranch_scc1 {l}")
    A("v_mov_b32 v55, 1")
    A("s_mov_b64 exec, 1")
    A(f"buffer_atomic_add v55, v{V_ZERO}, s[{SRD_WS}:{SRD_WS+3}], s{S_T0+10} offen")
    l2=self.lab()
    A(f"s_cmp_lg_u32 s{S_WG}, 0")
    A(f"s_cbranch_scc1 {l2}")
    A(f"v_mov_b32 v55, s{S_TAG}")
    A(f"buffer_store_dword v55, v{V_ZERO}, s[{SRD_WS}:{SRD_WS+3}], 0 offen sc1")
    A(f"{l2}:")
    A("s_mov_b64 exec, -1")
    A(f"{l}:")
    self.stamp('sync3 arrive')
    def by_half(fn):
        la_=self.lab('Lh'); lb_=self.lab('Lh')
        A(f"s_cmp_ge_u32 s{S_W}, 2")
        A(f"s_cbranch_scc1 {la_}")
        fn(0)
        A(f"s_branch {lb_}")
        A(f"{la_}:")
        fn(1)
        A(f"{lb_}:")
    def red_write(la):
        def f(h):
            b0=H_ACC+32*la; b1=b0+16
            for x,r in ((2,b0+8*(1-h)),(1,b1+8*h),(3,b1+8*(1-h))):
                for q in range(2):
                    A(f"ds_write_b128 v{43+x}, v[{r+4*q}:{r+4*q+3}] offset:{la*24576+q*1024}")
        by_half(f)
    def red_final(la):
        P=208; RS=232; O=244
        A(f"ds_read_b64_tr_b16 v[{RS}:{RS+1}], v50 offset:{la*1024}")
        A(f"ds_read_b64_tr_b16 v[{RS+2}:{RS+3}], v50 offset:{la*1024+512}")
        for k in range(3):
            for q in range(2):
                A(f"ds_read_b128 v[{P+8*k+4*q}:{P+8*k+4*q+3}], v47 offset:{la*24576+k*2048+q*1024}")
        A("s_waitcnt lgkmcnt(6)")
        for d in range(4): A(bf16_lo(RS+4+2*d,RS+d)); A(bf16_hi(RS+5+2*d,RS+d))
        A("s_waitcnt lgkmcnt(2)")
        for r in range(0,8,2): A(f"v_pk_add_f32 v[{P+r}:{P+r+1}], v[{P+r}:{P+r+1}], v[{P+8+r}:{P+8+r+1}]")
        A("s_waitcnt lgkmcnt(0)")
        for r in range(0,8,2): A(f"v_pk_add_f32 v[{P+r}:{P+r+1}], v[{P+r}:{P+r+1}], v[{P+16+r}:{P+16+r+1}]")
        def f(h):
            b=H_ACC+32*la+8*h
            for r in range(0,8,2): A(f"v_pk_add_f32 v[{P+r}:{P+r+1}], v[{P+r}:{P+r+1}], v[{b+r}:{b+r+1}]")
        by_half(f)
        r2=(248,254)[la]
        if self.mimic>=1:
            for r in range(0,8,2): A(f"v_pk_mul_f32 v[{P+r}:{P+r+1}], v[{P+r}:{P+r+1}], v[{r2}:{r2+1}]")
            for r in range(0,8,2): A(f"v_cvt_pk_bf16_f32 v{O+r//2}, v{P+r}, v{P+r+1}")
            for r in range(0,8,2): A(bf16_lo(P+r,O+r//2)); A(bf16_hi(P+r+1,O+r//2))
            for r in range(0,8,2): A(f"v_pk_add_f32 v[{P+r}:{P+r+1}], v[{P+r}:{P+r+1}], v[{RS+4+r}:{RS+4+r+1}]")
        else:
            for r in range(0,8,2): A(f"v_pk_fma_f32 v[{P+r}:{P+r+1}], v[{P+r}:{P+r+1}], v[{r2}:{r2+1}], v[{RS+4+r}:{RS+4+r+1}]")
        if self.perturb:
            for r in range(8): A(f"v_add_f32 v{P+r}, {fl(self.perturb)}, v{P+r}")
        for r in range(0,8,2): A(f"v_cvt_pk_bf16_f32 v{O+r//2}, v{P+r}, v{P+r+1}")
        A(f"v_permlane32_swap_b32 v{O}, v{O+2}")
        A(f"v_permlane32_swap_b32 v{O+1}, v{O+3}")
        return f"buffer_store_dwordx4 v[{O}:{O+3}], v52, s[{SRD_W}:{SRD_W+3}], s{S_T0+14+la} offen"
    def mf(la,s):
        for ca in range(2):
            d=H_ACC+16*(2*la+ca)
            c="0" if s==0 else f"v[{d}:{d+15}]"
            k,r=wd_loc(s,ca); rr=self.m_entry(la,s)
            A(f"v_mfma_f32_32x32x16_bf16 v[{d}:{d+15}], {k}[{r}:{r+3}], v[{rr}:{rr+3}], {c}")
    for s_ in range(NPRE,NRING): mload(0,s_)
    POLL_AT=28-NRING
    for s_ in range(28):
        S2.need_vm([f"m0_{s_}"])
        mf(0,s_)
        if s_+NRING<28: mload(0,s_+NRING)
        if s_==POLL_AT-1:
            S2.vmem(f"buffer_load_dword v55, v{V_ZERO}, s[{SRD_WS}:{SRD_WS+3}], s{S_T0+10} offen sc1","pollL")
            A(f"s_mov_b32 m0, s{S_T0+11}")
            S2.vmem(f"buffer_load_dwordx4 v48, s[{SRD_WS}:{SRD_WS+3}], s{S_T0+8} offen sc1 lds","res")
            A(f"s_add_u32 m0, s{S_T0+11}, 1024")
            S2.vmem(f"buffer_load_dwordx4 v48, s[{SRD_WS}:{SRD_WS+3}], s{S_T0+9} offen sc1 lds","res")
        if s_==POLL_AT+5:
            lp=self.lab('Lpoll'); le=self.lab()
            S2.need_vm(["pollL"])
            A(f"s_mov_b32 s{S_T0+7}, 0")
            A(f"{lp}:")
            if self.pp>1:
                lq=self.lab('Lpoll')
                A("v_cmp_gt_u32 vcc, 14, v55")
                A(f"s_cbranch_vccz {le}")
                A(f"buffer_load_dword v54, v{V_ZERO}, s[{SRD_WS}:{SRD_WS+3}], s{S_T0+10} offen sc1")
                A(f"{lq}:")
                for a_,b_ in ((55,54),(54,55)):
                    A(f"buffer_load_dword v{a_}, v{V_ZERO}, s[{SRD_WS}:{SRD_WS+3}], s{S_T0+10} offen sc1")
                    A("s_waitcnt vmcnt(1)")
                    A(f"v_cmp_gt_u32 vcc, 14, v{b_}")
                    A(f"s_cbranch_vccz {le}")
                A(f"s_add_u32 s{S_T0+7}, s{S_T0+7}, 1")
                A(f"s_cmp_lt_u32 s{S_T0+7}, 0x4000")
                A(f"s_cbranch_scc1 {lq}")
            else:
                A("v_cmp_gt_u32 vcc, 14, v55")
                A(f"s_cbranch_vccz {le}")
                A(f"buffer_load_dword v55, v{V_ZERO}, s[{SRD_WS}:{SRD_WS+3}], s{S_T0+10} offen sc1")
                A("s_waitcnt vmcnt(0)")
                A(f"s_add_u32 s{S_T0+7}, s{S_T0+7}, 1")
                A(f"s_cmp_lt_u32 s{S_T0+7}, 0x8000")
                A(f"s_cbranch_scc1 {lp}")
            A(f"{le}:")
            self.stamp('late ready')
            nl=0
            while nl<28 and (28+nl)-NRING <= s_: mload(1,nl); nl+=1
        elif s_>POLL_AT+5:
            while nl<28 and (28+nl)-NRING <= s_: mload(1,nl); nl+=1
    self.stamp('early done')
    for s_ in range(28):
        S2.need_vm([f"m1_{s_}"])
        mf(1,s_)
        while nl<28 and (28+nl)-NRING <= 28+s_: mload(1,nl); nl+=1
        if s_==5:
            red_write(0)
        if s_==13:
            A("s_waitcnt lgkmcnt(0)")
            A("s_barrier")
            st=red_final(0)
            S2.vmem(st,"out0")
    self.stamp('late done')
    A("s_nop 11")
    red_write(1)
    A("s_waitcnt lgkmcnt(0)")
    A("s_barrier")
    self.stamp('red barrier')
    A(red_final(1))

@add_method
def dump_lds(self, lds_off, nbytes, ws_off_per_wg):
    A=self.A
    A("s_waitcnt vmcnt(0) lgkmcnt(0)")
    A("s_barrier")
    A(f"v_lshlrev_b32 v48, 4, v{V_T}")
    A(f"s_mul_i32 s{S_T0}, s{S_WG}, {ws_off_per_wg}")
    A(f"s_add_u32 s{S_T0}, s{S_T0}, {WS_DBG}")
    for k in range(nbytes//4096):
        A(f"v_add_u32 v49, {lds_off+k*4096}, v48")
        A("ds_read_b128 v[52:55], v49")
        A("s_waitcnt lgkmcnt(0)")
        A(f"s_add_u32 s{S_T0+1}, s{S_T0}, {k*4096}")
        A(f"buffer_store_dwordx4 v[52:55], v48, s[{SRD_WS}:{SRD_WS+3}], s{S_T0+1} offen")
        A("s_waitcnt vmcnt(0)")

@add_method
def dump_regs(self, first, n, kind='v'):
    A=self.A
    A("s_waitcnt vmcnt(0) lgkmcnt(0)")
    A("s_nop 15")
    A(f"v_lshlrev_b32 v3, 2, v{V_T}")
    A(f"s_mul_i32 s{S_T0}, s{S_WG}, {n*1024}")
    A(f"s_add_u32 s{S_T0}, s{S_T0}, {WS_DBG}")
    for k in range(n):
        A(f"s_add_u32 s{S_T0+1}, s{S_T0}, {k*1024}")
        A(f"buffer_store_dword {kind}{first+k}, v3, s[{SRD_WS}:{SRD_WS+3}], s{S_T0+1} offen")
    A("s_waitcnt vmcnt(0)")

@add_method
def build(self):
    A=self.A
    stop=self.stop_after
    def done(name):
        return stop==name
    self.prologue()
    self.phase0_loads()
    A("v_mov_b32 v56, 0\nv_mov_b32 v57, 0\nv_mov_b32 v58, 0\nv_mov_b32 v59, 0")
    l=self.lab()
    A(f"s_cmp_lg_u32 s{S_W}, 0")
    A(f"s_cbranch_scc1 {l}")
    A(f"v_and_b32 v50, 31, v{V_LANE}")
    A(f"v_lshlrev_b32 v50, 4, v50")
    A(f"v_lshrrev_b32 v51, 5, v{V_LANE}")
    A(f"v_mul_u32_u24 v51, {U_CH}, v51")
    A(f"v_add_u32 v50, v50, v51")
    A(f"v_add_u32 v50, {LDS_U}, v50")
    A(f"ds_write_b128 v50, v[56:59]")
    A(f"v_lshrrev_b32 v50, 1, v{V_LANE}")
    A(f"v_and_b32 v50, 7, v50")
    A(f"v_mul_u32_u24 v50, {KX_COPY}, v50")
    A(f"v_and_b32 v51, 1, v{V_LANE}")
    A(f"v_lshl_add_u32 v50, v51, 4, v50")
    A(f"v_add_u32 v50, {LDS_KX+4096}, v50")
    A(f"ds_write_b128 v50, v[56:59]")
    A(f"{l}:")
    self.conv_setup()
    self.stamp('index done')
    self.xjob_post()
    self.stamp('xjob post')
    self.kgen_setup()
    self.stamp('kgen setup')
    self.kgen_gen()
    self.stamp('kgen')
    if done('kx'):
        self.kexpand()
        A("s_waitcnt lgkmcnt(0)")
        A("s_barrier")
        self.dump_lds(LDS_KX, 36864, 36864); return self.finish()
    self.kexpand()
    self.stamp('kexpand')
    self.x_prepare()
    self.granule_wait()
    self.stamp('x flags')
    if self.xmode=='xt': self.xt_loads()
    self.stats_consume()
    self.stamp('u ready')
    if done('u'):
        self.dump_lds(LDS_U-LDS_U%16, 20480, 20480); return self.finish()
    self.conv()
    self.stamp('conv done')
    self.sync_all()
    self.stamp('sync2 arrive')
    if self.wdrain:
        lc=self.lab()
        A(f"s_cmp_lg_u32 s3, 0")
        A(f"s_cbranch_scc1 {lc}")
        self.flag_wait(0x3fff, landed=True)
        self.w1_loads(0,self.wdrain)
        A(f"{lc}:")
        self.w1_in_conv=self.wdrain
    elif not self.w1start:
        self.flag_wait(0x3fff, landed=True)
        self.stamp('w1 flags')
    if self.split0:
        lA=self.lab(); lB=self.lab()
        A(f"s_cmp_lg_u32 s{S_W}, 0")
        A(f"s_cbranch_scc1 {lA}")
        self.w1_loads(0,self.split0)
        A(f"s_branch {lB}")
        A(f"{lA}:")
        self.w1_loads(0,28)
        A(f"{lB}:")
    else:
        self.w1_loads(self.w1_in_conv,W1_PRE)
    self.stamp('cs done')
    self.sync_all_wait(sleep=self.msleep)
    self.stamp('sync2 passed')
    if done('w1'):
        self.dump_regs(0,224,'a'); return self.finish()
    if done('conv'): return self.finish()
    self.gemm1()
    self.stamp('gemm1 done')
    self.gemm2()
    return self.finish()

@add_method
def finish(self):
    A=self.A
    if self.ts:
        A("s_waitcnt vmcnt(0)")
        self.stamp('end')
        l=self.lab()
        A(f"s_cmp_lg_u32 s{S_W}, {self.tswave}")
        A(f"s_cbranch_scc1 {l}")
        A("v_mov_b32 v4, 0")
        for k in range(self.nts): A(f"v_writelane_b32 v4, s{86+k}, {k}")
        A(f"v_lshlrev_b32 v5, 2, v{V_LANE}")
        A(f"s_lshl_b32 s{S_T0}, s{S_WG}, 8")
        A(f"s_add_u32 s{S_T0}, s{S_T0}, {WS_TS}")
        A(f"buffer_store_dword v4, v5, s[{SRD_WS}:{SRD_WS+3}], s{S_T0} offen")
        l2=self.lab()
        A(f"s_cmp_lg_u32 s{S_WG}, 0")
        A(f"s_cbranch_scc1 {l2}")
        A(f"global_store_dword v5, v4, s[{S_DBG}:{S_DBG+1}]")
        A(f"{l2}:")
        A(f"{l}:")
    A("L_end:")
    A("s_endpgm")
    self.helper()
    A("L_codeend:")
    body, nfix, probs = hazard_fix(A.L)
    for p in probs: print("HAZARD(backedge):", p, file=sys.stderr)
    errs = wait_lint(body)
    for e in errs[:40]: print("WAITLINT:", e, file=sys.stderr)
    hdr = [
     "; Fused preLN + S4D long-conv + preLN + SwiGLU FFN: one persistent launch, 224 main + 32 helper workgroups (one per CU).",
     "; Generated by the author's own generator script (gen/gen.py); no compiler output.",
     "; Main workgroup wg (< 224): owns channel pair d0 = 2*((wg&7)*28 + (wg>>3)) for the convolution,",
     ";   then tile (i: 128 rows, j: 128 gate/up columns) of GEMM1 and a 64x64 output tile of GEMM2.",
     ";  1. LN1 row statistics of 8 rows per workgroup, published as tagged 8-byte granules in d_ws.",
     ";  2. S4D kernel K[d][p] at the 641 distinct bf16-rounded positions: exp(A dt (r + 8b)) = exp(A dt r) exp(A dt 8b), the sum over",
     ";     the 256 modes is one f16 MFMA product (21 x 32); expanded to 2048 lags in LDS (4 shifted copies).",
     ";  3. causal convolution as block-Toeplitz 16x16x32 f16 MFMAs, h = x + y + u*D, h^T written to d_ws; grid barrier (sharded counters).",
     ";  4. GEMM1 with the weight panel resident in AGPRs, LN2 applied algebraically: g = r (h W - mean * colsum W); SwiGLU epilogue;",
     ";     m is written in MFMA-fragment order; per-row-tile counters hand it over to GEMM2 (split-K over the 4 waves) + residual.",
     "; Helper workgroups (224..255): transpose the weights into MFMA fragments (+ partial column sums), later the LN2 row statistics.",
     "; Hand-offs use write-through (sc1) stores, drained before a tagged flag / counter is published; every spin loop is bounded.",
     "; The tag is derived from the word found in d_ws[0] at entry (only to tell this launch's hand-offs from an earlier launch's).",
     f"; @launch grid=({NGRID},1,1) block=(256,1,1) lds={LDS_TOTAL}",
     '.amdgcn_target "amdgcn-amd-amdhsa--gfx950"',
     ".text", f".globl {KNAME}", ".p2align 8", f".type {KNAME},@function", f"{KNAME}:"]
    ftr = ['.section .rodata,"a"', ".p2align 6", f".amdhsa_kernel {KNAME}",
     "  .amdhsa_next_free_vgpr 512", "  .amdhsa_next_free_sgpr 102", "  .amdhsa_accum_offset 256",
     "  .amdhsa_group_segment_fixed_size 0", "  .amdhsa_kernarg_size 112", "  .amdhsa_user_sgpr_count 2",
     "  .amdhsa_user_sgpr_kernarg_segment_ptr 1", "  .amdhsa_system_sgpr_workgroup_id_x 1",
     ".end_amdhsa_kernel"]
    self.nfix=nfix
    return "\n".join(hdr+body+ftr)+"\n"

if __name__=="__main__":
    import argparse
    ap=argparse.ArgumentParser(); ap.add_argument("-o",default="out.s"); ap.add_argument("--stop",default=None); ap.add_argument("--mimic",type=int,default=2); ap.add_argument("--ts",action="store_true"); ap.add_argument("--perturb",type=float,default=0.0); ap.add_argument("--tsset",default="main"); ap.add_argument("--cyc",action="store_true"); ap.add_argument("--tswave",type=int,default=0); ap.add_argument("--hts",action="store_true"); ap.add_argument("--xmode",default="gather"); ap.add_argument("--wpf",type=int,default=2); ap.add_argument("--w1pf",type=int,default=0); ap.add_argument("--pp",type=int,default=0); ap.add_argument("--pf",type=int,default=5); ap.add_argument("--aug",type=int,default=0); ap.add_argument("--wdrain",type=int,default=0); ap.add_argument("--bar",type=int,default=16); ap.add_argument("--stl",type=int,default=6); ap.add_argument("--stc",type=int,default=12); ap.add_argument("--split0",type=int,default=0); ap.add_argument("--gidx",default="1,10,19,28,37"); ap.add_argument("--ng0",type=int,default=2); ap.add_argument("--emov",type=int,default=0); ap.add_argument("--wdspan",type=int,default=28); ap.add_argument("--npre2",type=int,default=4); ap.add_argument("--npre",type=int,default=6); ap.add_argument("--w1start",type=int,default=0); ap.add_argument("--w1n",type=int,default=9); ap.add_argument("--w1step",type=int,default=4); ap.add_argument("--fsleep",type=int,default=0); ap.add_argument("--xlate",type=int,default=1); ap.add_argument("--map",type=int,default=1); ap.add_argument("--cs",type=int,default=0); ap.add_argument("--hsleep",type=int,default=0); ap.add_argument("--msleep",type=int,default=0); ap.add_argument("--w1pre",type=int,default=16)
    a=ap.parse_args()
    g=Gen(stop_after=a.stop, mimic=a.mimic, ts=a.ts, perturb=a.perturb)
    if a.tsset=='main': g.tsonly=set(['xjob post','kgen','x flags','u ready','conv done','sync2 arrive','w1 flags','cs done','sync2 passed','gemm1 done','sync3 arrive','early done','late ready','end'])
    if a.cyc: g.tsop='s_memtime'
    g.tswave=a.tswave; g.hts=a.hts; g.xmode=a.xmode; g.pp=a.pp; globals().__setitem__('PF',a.pf); g.aug=a.aug; g.wdrain=a.wdrain; g.bar=a.bar; g.stl=a.stl; g.stc=a.stc; g.split0=a.split0; g.gidx=tuple(int(x) for x in a.gidx.split(',') if x); g.ng0=a.ng0; g.wdspan=a.wdspan; g.emov=a.emov; g.npre2=a.npre2; g.npre=a.npre; g.w1start=a.w1start; g.w1n=a.w1n; g.w1step=a.w1step; g.fsleep=a.fsleep; g.xlate=a.xlate; g.map=a.map; g.costsched=a.cs; g.hsleep=a.hsleep; g.msleep=a.msleep; g.wpf=a.wpf; g.w1pf=a.w1pf; globals().__setitem__('W1_PRE',a.w1pre)
    if a.tsset=='end': g.tsonly=set(['end'])
    if a.tsset=='g': g.tsonly=set(['sync2 passed','x0','pass0','pass1','pass2','pass3','gemm1 done','sync3 arrive','early done','late ready','late done','red barrier','end'])
    if a.tsset=='start': g.tsonly=set(['kernarg','all issued','index done','xjob post','kgen setup','gen done','wjob post','kmfma','kbar1','kgen','x flags','kexpand','xt landed','u ready','end'])
    txt=g.build()
    open(a.o,"w").write(txt)
    print("wrote",a.o,len(txt.splitlines()),"lines; nops inserted:",g.nfix, "stamps:", g.tsnames, file=sys.stderr)
```

```python
import sys, math
sys.path.insert(0, "gen")
from asmlib import *

KNAME = "sequential_preLN__ssm_conv_s4d__swiglu_ffn__prompt_kernel"
L_, D_, N_, F_ = 2048, 448, 256, 1792
NWG = 224
NGRID = 256

WS_EPOCH = 0
WS_CNT2  = 4096
WS_CNT3  = 12288
WS_STATS = 32768
WS_HT    = 1 << 20
WS_M     = 4 << 20
WS_ST2   = 49152
WS_JF    = 65536
WS_XF    = 196608
WS_CSF   = 131072
WS_CS    = 294912
WS_XT    = 12 << 20
WS_WF1   = 18 << 20
WS_WFD   = 22 << 20
WS_DBG   = 32 << 20
WS_TS    = 16 << 20
WS_SIZE  = 268435456

KG_PITCH = 528
KG_WAVE  = 53 * KG_PITCH
LDS_KX   = 112000
KX_COPY  = 4160
KX_CH    = 4 * KX_COPY
LDS_U    = LDS_KX + 2 * KX_CH
U_CH     = 4608
LDS_XT   = LDS_U + 2 * U_CH
XT_CH    = 4096
LDS_TOTAL = 163840
assert LDS_XT + 2 * XT_CH <= LDS_TOTAL
LDS_JOB = LDS_KX
LDS_CSP = LDS_KX + 32768
assert LDS_CSP + 512 <= LDS_U

S_WG=2
S_X=8; S_LOGA=10; S_AIM=12; S_CR=14; S_CI=16; S_LOGDT=18; S_DSK=20; S_BX=22
S_WGT=24; S_WUP=26; S_WD=28; S_OUT=30; S_DBG=32; S_WS=34
SRD_X=36; SRD_WS=40; SRD_W=44; SRD_W2=48
S_W=52
S_CH=53
S_NH=54
S_D0=55
S_TAG=56
S_I=57; S_J=58
S_T0=60
S_YS=80
S_DSKV=81
S_DT=82
S_W1I=83
S_JDST=84
S_JL=85
S_GW=59
S_JE=78
S_JK=79

LOG2E = 1.4426950408889634
INV2PI = 0.15915494309189535
def f2u(x):
    import struct
    return struct.unpack('<I', struct.pack('<f', x))[0]
def fl(x): return hex(f2u(x))

class Gen:
    def __init__(self, stop_after=None, dbg=False, mimic=2, ts=False, perturb=0.0):
        self.A = Asm(); self.stop_after = stop_after; self.dbg = dbg; self.mimic = mimic
        self.nlab = 0; self.ts=ts; self.nts=0; self.tsnames=[]; self.perturb=perturb; self.tsonly=None; self.xmode='gather'; self.costsched=0; self.map=1; self.xlate=1; self.w1start=0; self.w1_in_conv=0; self.w1n=9; self.w1step=4; self.fsleep=0; self.npre=6; self.wdspan=28; self.emov=0; self.npre2=4; self.gidx=(1,10,19,28,37); self.ng0=2; self.split0=0; self.bar=16; self.stl=6; self.stc=12; self.wdrain=0; self.z8sq=1; self.aug=0; self.hbal=1; self.pp=0; self.hsleep=0; self.msleep=0; self.wpf=2; self.w1pf=0; self.tsop='s_memrealtime'; self.tswave=0
    def stamp(self, name):
        if not self.ts: return
        if self.tsonly is not None and name not in self.tsonly: return
        k=self.nts; self.nts+=1; self.tsnames.append(name); assert k<16
        A=self.A
        A("s_waitcnt lgkmcnt(0)")
        A(f"{self.tsop} s[6:7]")
        A("s_waitcnt lgkmcnt(0)")
        A(f"s_mov_b32 s{86+k}, s6")
    def lab(self, p='L'):
        self.nlab += 1; return f"{p}_{self.nlab}"

    def prologue(self):
        A = self.A
        A(f"s_cmp_ge_u32 s{S_WG}, {NGRID}")
        A("s_cbranch_scc1 L_end")
        if self.ts:
            A(f"{self.tsop} s[6:7]")
            A("s_waitcnt lgkmcnt(0)")
            A("s_mov_b32 s86, s6"); self.nts=1; self.tsnames.append('start')
        A(f"s_load_dwordx16 s[8:23], s[0:1], 0")
        A(f"s_load_dwordx8 s[24:31], s[0:1], 64")
        A(f"s_load_dwordx4 s[32:35], s[0:1], 96")
        A("s_getpc_b64 s[4:5]")
        A("L_pc:")
        A("v_lshlrev_b32 v1, 7, v0")
        A("v_add_u32 v2, 0x8000, v1")
        A("v_min_u32 v1, (L_codeend-L_pc-4), v1")
        A("global_load_dword v255, v1, s[4:5]")
        A("v_min_u32 v2, (L_codeend-L_pc-4), v2")
        A("global_load_dword v254, v2, s[4:5]")
        A("v_lshrrev_b32 v2, 6, v0")
        A("v_and_b32 v1, 63, v0")
        A(f"v_readfirstlane_b32 s{S_W}, v2")
        A(f"s_lshr_b32 s{S_CH}, s{S_W}, 1")
        A(f"s_and_b32 s{S_NH}, s{S_W}, 1")
        A(f"s_cmp_ge_u32 s{S_WG}, {NWG}")
        A("s_cbranch_scc1 L_helper")
        A(f"s_and_b32 s{S_T0}, s{S_WG}, 7")
        A(f"s_mul_i32 s{S_T0}, s{S_T0}, 28")
        A(f"s_lshr_b32 s{S_T0+1}, s{S_WG}, 3")
        A(f"s_add_u32 s{S_T0}, s{S_T0}, s{S_T0+1}")
        A(f"s_lshl_b32 s{S_D0}, s{S_T0}, 1")
        if self.map==0:
            A(f"s_mul_i32 s{S_T0+2}, s{S_T0+1}, 37")
            A(f"s_lshr_b32 s{S_T0+2}, s{S_T0+2}, 8")
            A(f"s_mul_i32 s{S_T0+3}, s{S_T0+2}, 7")
            A(f"s_sub_u32 s{S_T0+3}, s{S_T0+1}, s{S_T0+3}")
            A(f"s_and_b32 s{S_T0+4}, s{S_WG}, 7")
            A(f"s_lshr_b32 s{S_T0+5}, s{S_T0+4}, 1")
            A(f"s_lshl_b32 s{S_T0+5}, s{S_T0+5}, 2")
            A(f"s_add_u32 s{S_I}, s{S_T0+5}, s{S_T0+2}")
            A(f"s_and_b32 s{S_T0+4}, s{S_T0+4}, 1")
            A(f"s_mul_i32 s{S_T0+4}, s{S_T0+4}, 7")
            A(f"s_add_u32 s{S_J}, s{S_T0+4}, s{S_T0+3}")
        else:
            A(f"s_and_b32 s{S_T0+2}, s{S_WG}, 3")
            A(f"s_mul_i32 s{S_T0+2}, s{S_T0+2}, 28")
            A(f"s_add_u32 s{S_T0+2}, s{S_T0+2}, s{S_T0+1}")
            A(f"s_lshr_b32 s{S_J}, s{S_T0+2}, 3")
            A(f"s_and_b32 s{S_T0+2}, s{S_T0+2}, 7")
            A(f"s_bfe_u32 s{S_T0+3}, s{S_WG}, 0x10002")
            A(f"s_lshl_b32 s{S_T0+3}, s{S_T0+3}, 3")
            A(f"s_add_u32 s{S_I}, s{S_T0+2}, s{S_T0+3}")

def q7check():
    for q in range(28): assert (q*37)>>8 == q//7, q
q7check()

def add_method(f):
    setattr(Gen, f.__name__, f); return f

V_LANE=1
V_T=0
V_ZERO=2
V_XG=8
V_OFF=16
V_EP=27
V_PA=28
V_SX=36
V_TMP=48

@add_method
def phase0_loads(self):
    A=self.A
    A("s_waitcnt lgkmcnt(0)")
    self.stamp('kernarg')
    A(f"s_mov_b32 s{SRD_X}, s{S_X}\ns_mov_b32 s{SRD_X+1}, s{S_X+1}\ns_mov_b32 s{SRD_X+2}, {L_*D_*2}\ns_mov_b32 s{SRD_X+3}, 0x20000")
    A(f"s_mov_b32 s{SRD_WS}, s{S_WS}\ns_mov_b32 s{SRD_WS+1}, s{S_WS+1}\ns_mov_b32 s{SRD_WS+2}, {WS_SIZE}\ns_mov_b32 s{SRD_WS+3}, 0x20000")
    A(f"v_mov_b32 v{V_ZERO}, 0")
    self.job_roles()
    l=self.lab()
    A(f"s_cmp_lg_u32 s{S_WG}, {NWG-1}")
    A(f"s_cbranch_scc1 {l}")
    self.zero_counters_body()
    A(f"{l}:")
    self.xjob_issue()
    A(f"s_add_u32 s{S_T0+3}, s{S_D0}, s{S_CH}")
    A(f"s_lshl_b32 s{S_T0+3}, s{S_T0+3}, 9")
    A(f"s_lshl_b32 s{S_T0+4}, s{S_NH}, 8")
    A(f"s_add_u32 s{S_T0+3}, s{S_T0+3}, s{S_T0+4}")
    A(f"v_lshl_add_u32 v8, v{V_LANE}, 2, s{S_T0+3}")
    A(f"v_xor_b32 v9, 256, v8")
    A(f"global_load_dword v{V_PA}, v8, s[{S_LOGA}:{S_LOGA+1}]")
    A(f"global_load_dword v{V_PA+1}, v8, s[{S_AIM}:{S_AIM+1}]")
    A(f"global_load_dword v{V_PA+2}, v8, s[{S_CR}:{S_CR+1}]")
    A(f"global_load_dword v{V_PA+3}, v8, s[{S_CI}:{S_CI+1}]")
    A(f"global_load_dword v{V_PA+4}, v9, s[{S_CR}:{S_CR+1}]")
    A(f"global_load_dword v{V_PA+5}, v9, s[{S_CI}:{S_CI+1}]")
    A(f"s_lshl_b32 s{S_T0+4}, s{S_D0}, 1")
    A(f"s_load_dword s{S_DT}, s[{S_LOGDT}:{S_LOGDT+1}], s{S_T0+4}")
    A(f"s_load_dword s{S_DSKV}, s[{S_DSK}:{S_DSK+1}], s{S_T0+4}")
    A(f"global_load_dword v{V_EP}, v{V_ZERO}, s[{S_WS}:{S_WS+1}] sc1")
    if self.xmode=='gather':
        self.gl=self.gather_items(); self.gi=0
        for _ in range(self.ng0): A(self.gl[self.gi]); self.gi+=1
    if self.wpf:
        lpf=self.lab()
        A(f"s_cmp_ge_u32 s{S_W}, {self.wpf}")
        A(f"s_cbranch_scc1 {lpf}")
        A(f"s_cmp_eq_u32 s{S_W}, 0")
        A(f"s_cselect_b32 s{SRD_W}, s{S_WGT}, s{S_WUP}")
        A(f"s_cselect_b32 s{SRD_W+1}, s{S_WGT+1}, s{S_WUP+1}")
        A(f"s_cmp_eq_u32 s{S_W}, 2")
        A(f"s_cselect_b32 s{SRD_W}, s{S_WD}, s{SRD_W}")
        A(f"s_cselect_b32 s{SRD_W+1}, s{S_WD+1}, s{SRD_W+1}")
        A(f"s_mov_b32 s{SRD_W+2}, {D_*F_*2}")
        A(f"s_mov_b32 s{SRD_W+3}, 0x20000")
        A(f"v_min_u32 v5, 55, v{V_LANE}")
        A(f"v_lshlrev_b32 v5, 7, v5")
        A(f"s_mul_i32 s{S_T0}, s{S_WG}, {56*128}")
        A(f"buffer_load_dword v253, v5, s[{SRD_W}:{SRD_W+3}], s{S_T0} offen")
        A(f"{lpf}:")
    self.stamp('all issued')
    A(f"s_mul_i32 s{S_T0+5}, s{S_W}, {KG_WAVE}")
    A(f"v_and_b32 v182, 31, v{V_LANE}")
    A(f"v_lshrrev_b32 v183, 5, v{V_LANE}")
    A(f"v_lshlrev_b32 v176, 4, v182")
    A(f"v_lshl_add_u32 v176, v183, 3, v176")
    A(f"v_add_u32 v176, s{S_T0+5}, v176")
    A(f"v_lshlrev_b32 v177, 3, v182")
    A(f"v_add_u32 v177, 512, v177")
    A(f"v_lshlrev_b32 v178, 2, v182")
    A(f"v_add_u32 v178, 768, v178")
    A(f"v_cmp_eq_u32 vcc, 1, v183")
    A(f"v_cndmask_b32 v177, v177, v178, vcc")
    A(f"v_add_u32 v177, s{S_T0+5}, v177")
    A(f"v_mov_b32 v178, 4")
    A(f"v_mov_b32 v179, 128")
    A(f"v_cndmask_b32 v178, v178, v179, vcc")
    A(f"v_add_u32 v178, v177, v178")
    A(f"v_lshlrev_b32 v179, 1, v182")
    A(f"v_lshl_add_u32 v179, v183, 8, v179")
    A(f"v_add_u32 v179, s{S_T0+5}, v179")
    A(f"v_lshlrev_b32 v48, 3, v{V_T}")
    for x in range(11):
        o=V_OFF+x
        A(f"v_sub_u32 v49, {2047-x}, v48")
        A(f"v_cvt_f32_i32 v50, v49")
        A(f"v_cvt_pk_bf16_f32 v50, v50, v50")
        A(f"v_and_b32 v50, 0xffff, v50")
        A(f"v_subrev_u32 v50, 17024, v50")
        A(f"v_cmp_gt_i32 vcc, 128, v49")
        A(f"v_cndmask_b32 v50, v50, v49, vcc")
        if x>=8:
            A(f"v_cmp_gt_i32 vcc, 0, v49")
            A(f"v_mov_b32 v51, 768")
            A(f"v_cndmask_b32 v50, v50, v51, vcc")
        A(f"v_lshlrev_b32 v{o}, 1, v50")

NWJ = 588
LDS_XB = LDS_JOB + 3*8192

@add_method
def job_roles(self):
    A=self.A
    A(f"s_mul_i32 s{S_T0}, s{S_W}, 224")
    A(f"s_add_u32 s{S_GW}, s{S_T0}, s{S_WG}")
    A(f"s_lshl_b32 s{S_JL}, s{S_W}, 13")
    A(f"s_add_u32 s{S_JL}, s{S_JL}, {LDS_JOB}")

V_SR=64
@add_method
def xjob_issue(self):
    A=self.A
    A(f"v_bfe_u32 v50, v{V_LANE}, 4, 1")
    A(f"v_lshrrev_b32 v51, 5, v{V_LANE}")
    A(f"v_mul_u32_u24 v51, {224*8}, v51")
    A(f"v_add_u32 v50, v50, v51")
    A(f"s_lshl_b32 s{S_T0}, s{S_WG}, 3")
    A(f"s_lshl_b32 s{S_T0+1}, s{S_W}, 1")
    A(f"s_add_u32 s{S_T0}, s{S_T0}, s{S_T0+1}")
    A(f"v_add_u32 v50, s{S_T0}, v50")
    A(f"v_mul_u32_u24 v50, 896, v50")
    A(f"v_and_b32 v51, 15, v{V_LANE}")
    A(f"v_lshl_add_u32 v50, v51, 4, v50")
    A(f"v_mov_b32 v52, 0x10000000")
    A(f"v_cmp_gt_u32 vcc, 8, v51")
    A(f"v_cndmask_b32 v52, v52, v50, vcc")
    for k in range(3):
        A(f"buffer_load_dwordx4 v[{V_SR+4*k}:{V_SR+4*k+3}], v50, s[{SRD_X}:{SRD_X+3}], 0 offen offset:{256*k}")
    A(f"buffer_load_dwordx4 v[{V_SR+12}:{V_SR+15}], v52, s[{SRD_X}:{SRD_X+3}], 0 offen offset:768")

@add_method
def gather_items(self):
    A=self.A
    A(f"s_lshl_b32 s{S_T0+14}, s{S_D0}, 1")
    A(f"s_movk_i32 s{S_T0+15}, 7168")
    A(f"v_mul_lo_u32 v4, v{V_T}, s{S_T0+15}")
    A(f"v_add_u32 v4, s{S_T0+14}, v4")
    A(f"s_movk_i32 s{S_T0+15}, 4480")
    out=[]
    for j in range(8):
        if j<5: out.append(f"buffer_load_dword v{V_XG+j}, v4, s[{SRD_X}:{SRD_X+3}], 0 offen offset:{j*896}")
        else:   out.append(f"buffer_load_dword v{V_XG+j}, v4, s[{SRD_X}:{SRD_X+3}], s{S_T0+15} offen offset:{(j-5)*896}")
    return out

@add_method
def xjob_post(self):
    A=self.A
    gather=(self.xmode=='gather')
    if self.wpf:
        lw=self.lab(); lc=self.lab()
        A(f"s_cmp_ge_u32 s{S_W}, {self.wpf}")
        A(f"s_cbranch_scc1 {lw}")
        A(f"s_waitcnt vmcnt({self.ng0+1}) lgkmcnt(0)")
        A(f"s_branch {lc}")
        A(f"{lw}:")
        A(f"s_waitcnt vmcnt({self.ng0}) lgkmcnt(0)")
        A(f"{lc}:")
    else:
        A(f"s_waitcnt vmcnt({2 if gather else 0}) lgkmcnt(0)")
    A(f"v_readfirstlane_b32 s{S_TAG}, v{V_EP}")
    A(f"s_add_u32 s{S_TAG}, s{S_TAG}, 0x9E3779B9")
    J=V_SR
    if not gather:
        A(f"v_bfe_u32 v50, v{V_LANE}, 4, 1")
        A(f"s_lshl_b32 s{S_T0}, s{S_W}, 1")
        A(f"v_add_u32 v50, s{S_T0}, v50")
        A(f"v_mul_u32_u24 v50, 896, v50")
        A(f"v_lshrrev_b32 v51, 5, v{V_LANE}")
        A(f"v_mul_u32_u24 v51, 7168, v51")
        A(f"v_add_u32 v50, v50, v51")
        A(f"v_and_b32 v51, 15, v{V_LANE}")
        A(f"v_lshl_add_u32 v50, v51, 4, v50")
        A(f"v_add_u32 v50, {LDS_XB}, v50")
        for k in range(3): A(f"ds_write_b128 v50, v[{J+4*k}:{J+4*k+3}] offset:{k*256}")
        A("s_mov_b32 exec_lo, 0x00ff00ff\ns_mov_b32 exec_hi, 0x00ff00ff")
        A(f"ds_write_b128 v50, v[{J+12}:{J+15}] offset:768")
        A("s_mov_b64 exec, -1")
    A("v_mov_b32 v54, 0x3f803f80")
    for i in range(16):
        c1="0" if i<2 else f"v{56+(i&1)}"; c2="0" if i<2 else f"v{58+(i&1)}"
        A(f"v_dot2_f32_bf16 v{56+(i&1)}, v{J+i}, v54, {c1}")
        A(f"v_dot2_f32_bf16 v{58+(i&1)}, v{J+i}, v{J+i}, {c2}")
    A(f"v_bfe_u32 v42, v{V_LANE}, 4, 1")
    A(f"v_lshlrev_b32 v42, 3, v42")
    A(f"v_lshrrev_b32 v39, 5, v{V_LANE}")
    A(f"v_mul_u32_u24 v39, {224*64}, v39")
    A(f"v_add_u32 v42, v42, v39")
    A(f"s_lshl_b32 s{S_T0+10}, s{S_WG}, 6")
    A(f"s_lshl_b32 s{S_T0+9}, s{S_W}, 4")
    A(f"s_add_u32 s{S_T0+10}, s{S_T0+10}, s{S_T0+9}")
    A(f"s_add_u32 s{S_T0+10}, s{S_T0+10}, {WS_STATS}")
    A("v_add_f32 v56, v56, v57\nv_add_f32 v57, v58, v59")
    for mode in ["row_shr:1","row_shr:2","row_shr:4","row_shr:8"]:
        A(f"v_add_f32_dpp v56, v56, v56 {mode} row_mask:0xf bank_mask:0xf bound_ctrl:0"); A(f"v_add_f32_dpp v57, v57, v57 {mode} row_mask:0xf bank_mask:0xf bound_ctrl:0")
    A(f"v_mul_f32 v56, {fl(1.0/448)}, v56")
    A(f"v_mul_f32 v57, {fl(1.0/448)}, v57")
    A("v_fma_f32 v57, -v56, v56, v57")
    A("v_max_f32 v57, 0, v57")
    A("v_cvt_pk_bf16_f32 v57, v57, v57")
    A("v_lshlrev_b32 v57, 16, v57")
    A(f"v_add_f32 v57, {fl(1e-5)}, v57")
    A("v_cvt_pk_bf16_f32 v57, v57, v57")
    A("v_lshlrev_b32 v57, 16, v57")
    A("v_sqrt_f32 v57, v57")
    A(f"v_mov_b32 v41, s{S_TAG}")
    A(f"v_cvt_pk_bf16_f32 v40, v57, v56")
    A(f"s_cmp_lt_u32 s{S_WG}, 32")
    A(f"s_cselect_b32 exec_hi, 0x80008000, 0")
    A("s_mov_b32 exec_lo, 0x80008000")
    A(f"buffer_store_dwordx2 v[40:41], v42, s[{SRD_WS}:{SRD_WS+3}], s{S_T0+10} offen sc1")
    A("s_mov_b64 exec, -1")
    if gather: return
    A("s_waitcnt lgkmcnt(0)")
    A("s_barrier")
    X=80
    A(f"v_bfe_u32 v52, v{V_LANE}, 2, 2")
    A(f"v_mul_u32_u24 v52, 896, v52")
    A(f"v_lshrrev_b32 v53, 4, v{V_LANE}")
    A(f"v_lshl_add_u32 v52, v53, 5, v52")
    A(f"v_and_b32 v53, 3, v{V_LANE}")
    A(f"v_lshl_add_u32 v52, v53, 3, v52")
    A(f"s_lshl_b32 s{S_T0+1}, s{S_W}, 7")
    A(f"s_add_u32 s{S_T0+1}, s{S_T0+1}, {LDS_XB}")
    A(f"v_add_u32 v52, s{S_T0+1}, v52")
    for k in range(2):
        o=7168*k; x=X+8*k
        A(f"ds_read_b64_tr_b16 v[{x}:{x+1}], v52 offset:{o}")
        A(f"ds_read_b64_tr_b16 v[{x+2}:{x+3}], v52 offset:{o+4*896}")
        A(f"ds_read_b64_tr_b16 v[{x+4}:{x+5}], v52 offset:{o+512}")
        A(f"ds_read_b64_tr_b16 v[{x+6}:{x+7}], v52 offset:{o+512+4*896}")
    A(f"v_lshlrev_b32 v53, 4, v{V_LANE}")
    A(f"s_mul_i32 s{S_T0+2}, s{S_WG}, 7168")
    A(f"s_lshl_b32 s{S_T0+3}, s{S_W}, 10")
    A(f"s_add_u32 s{S_T0+2}, s{S_T0+2}, s{S_T0+3}")
    A(f"s_add_u32 s{S_T0+2}, s{S_T0+2}, {WS_XT}")
    def st(x,extra):
        A(f"s_add_u32 s{S_T0+3}, s{S_T0+2}, {extra}")
        A(f"buffer_store_dwordx4 v[{x}:{x+3}], v53, s[{SRD_WS}:{SRD_WS+3}], s{S_T0+3} offen sc1")
    l3=self.lab(); l32=self.lab()
    A("s_waitcnt lgkmcnt(6)")
    st(X,0)
    A(f"s_cmp_eq_u32 s{S_W}, 3")
    A(f"s_cbranch_scc1 {l3}")
    A("s_waitcnt lgkmcnt(4)")
    st(X+4,4096)
    A(f"{l3}:")
    A(f"s_cmp_ge_u32 s{S_WG}, 32")
    A(f"s_cbranch_scc1 {l32}")
    A("s_waitcnt lgkmcnt(0)")
    st(X+8,224*7168)
    A(f"s_cmp_eq_u32 s{S_W}, 3")
    A(f"s_cbranch_scc1 {l32}")
    st(X+12,224*7168+4096)
    A(f"{l32}:")
    A("s_waitcnt lgkmcnt(0)")

@add_method
def xflag_publish(self):
    A=self.A
    A("s_waitcnt vmcnt(0)")
    A(f"s_lshl_b32 s{S_T0+10}, s{S_WG}, 2")
    A(f"s_add_u32 s{S_T0+10}, s{S_T0+10}, s{S_W}")
    A(f"s_lshl_b32 s{S_T0+10}, s{S_T0+10}, 6")
    A(f"s_add_u32 s{S_T0+10}, s{S_T0+10}, {WS_XF}")
    A(f"v_mul_u32_u24 v42, {224*4*64}, v{V_LANE}")
    A(f"v_mov_b32 v41, s{S_TAG}")
    A(f"s_cmp_lt_u32 s{S_WG}, 32")
    A(f"s_cselect_b32 exec_lo, 3, 1")
    A("s_mov_b32 exec_hi, 0")
    A(f"buffer_store_dword v41, v42, s[{SRD_WS}:{SRD_WS+3}], s{S_T0+10} offen sc1")
    A("s_mov_b64 exec, -1")

@add_method
def zero_counters_body(self):
    A=self.A; l=self.lab()
    A(f"s_cmp_lg_u32 s{S_W}, 3")
    A(f"s_cbranch_scc1 {l}")
    A(f"v_lshlrev_b32 v3, 7, v{V_LANE}")
    A(f"s_mov_b32 s{S_T0+5}, {WS_CNT2}")
    A(f"buffer_store_dword v{V_ZERO}, v3, s[{SRD_WS}:{SRD_WS+3}], s{S_T0+5} offen sc1")
    A(f"s_mov_b32 s{S_T0+5}, {WS_CNT3}")
    A(f"buffer_store_dword v{V_ZERO}, v3, s[{SRD_WS}:{SRD_WS+3}], s{S_T0+5} offen sc1")
    A(f"{l}:")

S_HY=64; S_HL=65; S_HD=66; S_HE=67; S_HK=68; S_HRET=70
S_HSTR=69; S_HG=72; S_HP=73
@add_method
def wjob_params(self):
    A=self.A; ld=self.lab('Lwd'); lc=self.lab('Lwc'); T=S_T0
    A(f"s_cmp_ge_u32 s{S_HY}, 392")
    A(f"s_cbranch_scc1 {ld}")
    A(f"s_cmp_ge_u32 s{S_HY}, 196")
    A(f"s_cselect_b32 s{SRD_W}, s{S_WUP}, s{S_WGT}")
    A(f"s_cselect_b32 s{SRD_W+1}, s{S_WUP+1}, s{S_WGT+1}")
    A(f"s_cselect_b32 s{T+1}, 1, 0")
    A(f"s_mul_i32 s{T+2}, s{T+1}, 196")
    A(f"s_sub_u32 s{T+2}, s{S_HY}, s{T+2}")
    A(f"s_mul_i32 s{S_HP}, s{T+2}, 9363")
    A(f"s_lshr_b32 s{S_HP}, s{S_HP}, 16")
    A(f"s_mul_i32 s{S_HG}, s{S_HP}, 7")
    A(f"s_sub_u32 s{S_HG}, s{T+2}, s{S_HG}")
    A(f"s_movk_i32 s{S_HSTR}, 3584")
    A(f"s_lshl_b32 s{T+2}, s{S_HP}, 2")
    A(f"s_add_u32 s{T+2}, s{T+2}, s{T+1}")
    A(f"s_mul_i32 s{T+2}, s{T+2}, 28")
    A(f"s_lshl_b32 s{T+3}, s{S_HG}, 2")
    A(f"s_add_u32 s{T+2}, s{T+2}, s{T+3}")
    A(f"s_lshl_b32 s{T+2}, s{T+2}, 10")
    A(f"s_add_u32 s{S_HD}, s{T+2}, {WS_WF1}")
    A(f"s_mov_b32 s{S_HE}, {56*1024}")
    A(f"s_mov_b32 s{S_HK}, 4")
    A(f"s_branch {lc}")
    A(f"{ld}:")
    A(f"s_mov_b32 s{SRD_W}, s{S_WD}")
    A(f"s_mov_b32 s{SRD_W+1}, s{S_WD+1}")
    A(f"s_sub_u32 s{T+2}, s{S_HY}, 392")
    A(f"s_mul_i32 s{S_HP}, s{T+2}, 2341")
    A(f"s_lshr_b32 s{S_HP}, s{S_HP}, 16")
    A(f"s_mul_i32 s{S_HG}, s{S_HP}, 28")
    A(f"s_sub_u32 s{S_HG}, s{T+2}, s{S_HG}")
    A(f"s_movk_i32 s{S_HSTR}, 896")
    A(f"s_mul_i32 s{T+2}, s{S_HP}, 224")
    A(f"s_lshl_b32 s{T+3}, s{S_HG}, 2")
    A(f"s_add_u32 s{T+2}, s{T+2}, s{T+3}")
    A(f"s_lshl_b32 s{T+2}, s{T+2}, 10")
    A(f"s_add_u32 s{S_HD}, s{T+2}, {WS_WFD}")
    A(f"s_mov_b32 s{S_HE}, {112*1024}")
    A(f"s_mov_b32 s{S_HK}, 8")
    A(f"{lc}:")

for _u in range(196): assert (_u*9363)>>16 == _u//7
for _u in range(196): assert (_u*2341)>>16 == _u//28

@add_method
def helper(self):
    A=self.A; T=S_T0
    A("L_helper:")
    hs=[0]
    def hstamp():
        if not (self.ts and getattr(self,'hts',False)): return
        A(f"{self.tsop} s[6:7]"); A("s_waitcnt lgkmcnt(0)"); A(f"v_writelane_b32 v200, s6, {hs[0]}"); hs[0]+=1
    A("s_waitcnt lgkmcnt(0)")
    if self.ts and getattr(self,'hts',False):
        A("v_mov_b32 v200, 0"); A("v_writelane_b32 v200, s86, 0"); hs[0]=1
    hstamp()
    A(f"s_mov_b32 s{SRD_WS}, s{S_WS}\ns_mov_b32 s{SRD_WS+1}, s{S_WS+1}\ns_mov_b32 s{SRD_WS+2}, {WS_SIZE}\ns_mov_b32 s{SRD_WS+3}, 0x20000")
    A(f"s_mov_b32 s{SRD_W+2}, {D_*F_*2}")
    A(f"s_mov_b32 s{SRD_W+3}, 0x20000")
    A(f"v_mov_b32 v{V_ZERO}, 0")
    A(f"global_load_dword v{V_EP}, v{V_ZERO}, s[{S_WS}:{S_WS+1}] sc1")
    A(f"s_sub_u32 s{S_GW}, s{S_WG}, {NWG}")
    A(f"s_lshl_b32 s{S_GW}, s{S_GW}, 2")
    A(f"s_add_u32 s{S_GW}, s{S_GW}, s{S_W}")
    A(f"s_mul_i32 s{S_JL}, s{S_W}, 40960")
    A(f"v_lshrrev_b32 v40, 3, v{V_LANE}")
    A(f"v_bfe_u32 v49, v{V_LANE}, 4, 1")
    A(f"v_lshlrev_b32 v49, 2, v49")
    A(f"v_and_b32 v50, 7, v{V_LANE}")
    A(f"v_xor_b32 v49, v49, v50")
    A(f"v_lshlrev_b32 v41, 4, v49")
    A(f"v_bfe_u32 v51, v{V_LANE}, 2, 2")
    A(f"v_lshlrev_b32 v42, 7, v51")
    A(f"v_lshrrev_b32 v51, 1, v51")
    A(f"v_lshlrev_b32 v51, 2, v51")
    A(f"v_bfe_u32 v52, v{V_LANE}, 4, 1")
    A(f"v_bfe_u32 v53, v{V_LANE}, 1, 1")
    A(f"v_lshl_add_u32 v52, v52, 1, v53")
    A(f"v_xor_b32 v51, v51, v52")
    A(f"v_lshl_add_u32 v42, v51, 4, v42")
    A(f"v_and_b32 v51, 1, v{V_LANE}")
    A(f"v_lshl_add_u32 v42, v51, 3, v42")
    A(f"v_lshrrev_b32 v43, 5, v{V_LANE}")
    A(f"v_lshlrev_b32 v54, 4, v{V_LANE}")
    A(f"v_mul_u32_u24 v58, {2*896}, v43")
    A(f"v_and_b32 v59, 31, v{V_LANE}")
    A(f"v_lshl_add_u32 v58, v59, 2, v58")
    def call(lbl):
        A(f"s_getpc_b64 s[{T+14}:{T+15}]")
        r=self.lab('Lr')
        A(f"{r}:")
        A(f"s_add_u32 s{T+14}, s{T+14}, ({lbl}-{r})")
        A(f"s_addc_u32 s{T+15}, s{T+15}, (({lbl}-{r})>>31)")
        A(f"s_swappc_b64 s[{S_HRET}:{S_HRET+1}], s[{T+14}:{T+15}]")
    NS=9
    def setjob_y(expr_add, clamp):
        A(f"s_add_u32 s{S_HY}, s{S_GW}, {expr_add}")
        A(f"s_min_u32 s{S_HY}, s{S_HY}, {clamp}")
    def job(n,kind):
        if kind=='w1': setjob_y(128*n, 391)
        elif n==4: setjob_y(392, NWJ-1)
        else: setjob_y(392+128-(60 if self.hbal else 0), NWJ-1)
        A(f"s_add_u32 s{S_HL}, s{S_JL}, {8192*(n if n<4 else n-4)}")
    def flag_cur():
        A(f"s_lshl_b32 s{T+10}, s{S_HY}, 6")
        A(f"s_add_u32 s{T+10}, s{T+10}, {WS_JF}")
        A(f"v_mov_b32 v47, s{S_TAG}")
        A("s_mov_b64 exec, 1")
        A(f"buffer_store_dword v47, v{V_ZERO}, s[{SRD_WS}:{SRD_WS+3}], s{T+10} offen sc1")
        A("s_mov_b64 exec, -1")
    def batch(ns, kind):
        k=len(ns); st = NS if kind=='w1' else 8
        for n in ns: job(n,kind); call("L_hissue")
        hstamp()
        for i,n in enumerate(ns):
            job(n,kind); A(f"s_waitcnt vmcnt({8*(k-1-i)+st*i})"); call("L_hpost")
            if i==0 and kind=='w1':
                A(f"v_readfirstlane_b32 s{S_TAG}, v{V_EP}")
                A(f"s_add_u32 s{S_TAG}, s{S_TAG}, 0x9E3779B9")
        hstamp()
        for i,n in enumerate(ns):
            A(f"s_waitcnt vmcnt({st*(k-1-i)+i})")
            job(n,kind); flag_cur()
        hstamp()
    l4=self.lab('Lh4'); lb=self.lab('Lhb')
    A(f"s_cmp_lt_u32 s{S_GW}, 8")
    A(f"s_cbranch_scc1 {l4}")
    batch([0,1,2],'w1')
    A(f"s_branch {lb}")
    A(f"{l4}:")
    sv=hs[0]; hs[0]=2
    batch([0,1,2,3],'w1')
    hs[0]=sv
    A(f"{lb}:")
    if self.hbal:
        l1=self.lab('Lh1'); l2=self.lab('Lh2')
        A(f"s_cmp_lt_u32 s{S_GW}, 60")
        A(f"s_cbranch_scc1 {l1}")
        batch([4,5],'wd')
        A(f"s_branch {l2}")
        A(f"{l1}:")
        sv=hs[0]; hs[0]=sv-3
        batch([4],'wd')
        hs[0]=sv
        A(f"{l2}:")
    else:
        batch([4,5],'wd')
    lp=self.lab('Lpoll'); le=self.lab()
    A(f"s_mov_b32 s{T+1}, 0")
    A(f"s_mov_b32 s{T}, {WS_STATS+(8*(NWG-1)+6)*8+4}")
    A(f"{lp}:")
    A(f"buffer_load_dword v49, v{V_ZERO}, s[{SRD_WS}:{SRD_WS+3}], s{T} offen sc1")
    A("s_waitcnt vmcnt(0)")
    A(f"v_cmp_ne_u32 vcc, s{S_TAG}, v49")
    A(f"s_add_u32 s{T+1}, s{T+1}, 1")
    A(f"s_cbranch_vccz {le}")
    A(f"s_cmp_lt_u32 s{T+1}, 0x8000")
    A(f"s_cbranch_scc1 {lp}")
    A(f"{le}:")
    self.sync_all_wait(sleep=self.hsleep)
    hstamp()
    A(f"s_sub_u32 s{T}, s{S_WG}, {NWG}")
    A(f"s_mul_i32 s{T}, s{T}, 57344")
    A(f"s_mul_i32 s{T+1}, s{S_W}, 14336")
    A(f"s_add_u32 s{T}, s{T}, s{T+1}")
    A(f"s_add_u32 s{T}, s{T}, {WS_HT}")
    for k in range(14):
        if k%4==0:
            A(f"s_add_u32 s{T+2}, s{T}, {k*1024}")
            A(f"s_add_u32 m0, s{T+1}, {k*1024}")
        A(f"buffer_load_dwordx4 v54, s[{SRD_WS}:{SRD_WS+3}], s{T+2} offen offset:{(k%4)*1024} sc1 lds")
    A(f"v_lshlrev_b32 v50, 9, v43")
    A(f"v_bfe_u32 v51, v{V_LANE}, 2, 2")
    A(f"v_lshl_add_u32 v50, v51, 6, v50")
    A(f"v_bfe_u32 v51, v{V_LANE}, 4, 1")
    A(f"v_lshl_add_u32 v50, v51, 5, v50")
    A(f"v_and_b32 v51, 3, v{V_LANE}")
    A(f"v_lshl_add_u32 v50, v51, 3, v50")
    A(f"v_add_u32 v50, s{T+1}, v50")
    A("v_mov_b32 v55, 0x3f803f80")
    for k0 in range(0,14,2):
        A(f"s_waitcnt vmcnt({12-k0})")
        for k in (k0,k0+1):
            r=64+4*(k%4)
            A(f"ds_read_b64_tr_b16 v[{r}:{r+1}], v50 offset:{k*1024}")
            A(f"ds_read_b64_tr_b16 v[{r+2}:{r+3}], v50 offset:{k*1024+256}")
        A("s_waitcnt lgkmcnt(0)")
        for k in (k0,k0+1):
            r=64+4*(k%4)
            for d in range(4):
                i=4*k+d
                c1="0" if i<2 else f"v{56+(i&1)}"; c2="0" if i<2 else f"v{58+(i&1)}"
                A(f"v_dot2_f32_bf16 v{56+(i&1)}, v{r+d}, v55, {c1}")
                A(f"v_dot2_f32_bf16 v{58+(i&1)}, v{r+d}, v{r+d}, {c2}")
    A("s_nop 2")
    A("v_add_f32 v56, v56, v57\nv_add_f32 v57, v58, v59")
    A("v_mov_b32 v58, v56\nv_mov_b32 v59, v57")
    A("v_permlane32_swap_b32 v56, v58\nv_permlane32_swap_b32 v57, v59")
    A("v_add_f32 v56, v56, v58\nv_add_f32 v57, v57, v59")
    A(f"v_and_b32 v60, 31, v{V_LANE}")
    A(f"v_lshlrev_b32 v61, 4, v60")
    A(f"s_lshr_b32 s{T+3}, s{S_W}, 1")
    A(f"s_lshl_b32 s{T+3}, s{T+3}, 9")
    A(f"s_add_u32 s{T+3}, s{T+3}, 65536")
    A(f"v_add_u32 v61, s{T+3}, v61")
    A(f"s_and_b32 s{T+4}, s{S_W}, 1")
    A(f"s_lshl_b32 s{T+4}, s{T+4}, 3")
    A(f"v_add_u32 v62, s{T+4}, v61")
    A("ds_write_b64 v62, v[56:57]")
    A("s_waitcnt lgkmcnt(0)")
    A("s_barrier")
    lz=self.lab()
    A(f"s_cmp_lg_u32 s{T+4}, 0")
    A(f"s_cbranch_scc1 {lz}")
    A("ds_read_b128 v[64:67], v61")
    A("s_waitcnt lgkmcnt(0)")
    A("v_add_f32 v64, v64, v66\nv_add_f32 v65, v65, v67")
    A(f"v_mul_f32 v64, {fl(1.0/448)}, v64")
    A(f"v_mul_f32 v65, {fl(1.0/448)}, v65")
    A("v_fma_f32 v65, -v64, v64, v65")
    A("v_max_f32 v65, 0, v65")
    A("v_cvt_pk_bf16_f32 v65, v65, v65")
    A("v_lshlrev_b32 v65, 16, v65")
    A(f"v_add_f32 v65, {fl(1e-5)}, v65")
    A("v_cvt_pk_bf16_f32 v65, v65, v65")
    A("v_lshlrev_b32 v65, 16, v65")
    A("v_sqrt_f32 v65, v65")
    A("v_cvt_pk_bf16_f32 v66, v65, v64")
    A(f"v_mov_b32 v67, s{S_TAG}")
    A(f"v_lshlrev_b32 v68, 3, v60")
    A(f"s_sub_u32 s{T+5}, s{S_WG}, {NWG}")
    A(f"s_lshl_b32 s{T+5}, s{T+5}, 1")
    A(f"s_lshr_b32 s{T+6}, s{S_W}, 1")
    A(f"s_add_u32 s{T+5}, s{T+5}, s{T+6}")
    A(f"s_lshl_b32 s{T+5}, s{T+5}, 8")
    A(f"s_add_u32 s{T+5}, s{T+5}, {WS_ST2}")
    A("s_mov_b32 exec_hi, 0")
    A(f"buffer_store_dwordx2 v[66:67], v68, s[{SRD_WS}:{SRD_WS+3}], s{T+5} offen sc1")
    A("s_mov_b32 exec_hi, -1")
    A(f"{lz}:")
    hstamp()
    if self.ts and getattr(self,'hts',False):
        l=self.lab()
        A(f"s_cmp_lg_u32 s{S_W}, 0")
        A(f"s_cbranch_scc1 {l}")
        A(f"v_lshlrev_b32 v5, 2, v{V_LANE}")
        A(f"s_lshl_b32 s{T}, s{S_WG}, 8")
        A(f"s_add_u32 s{T}, s{T}, {WS_TS}")
        A(f"buffer_store_dword v200, v5, s[{SRD_WS}:{SRD_WS+3}], s{T} offen")
        A(f"{l}:")
    A("s_endpgm")
    A("L_hissue:")
    self.wjob_params()
    A(f"v_mul_lo_u32 v48, v40, s{S_HSTR}")
    A(f"v_add_u32 v48, v48, v41")
    A(f"s_lshl_b32 s{T+6}, s{S_HG}, 6")
    A(f"s_mul_i32 s{T+6}, s{T+6}, s{S_HSTR}")
    A(f"s_lshl_b32 s{T+7}, s{S_HP}, 7")
    A(f"s_add_u32 s{T+6}, s{T+6}, s{T+7}")
    A(f"s_lshl_b32 s{T+7}, s{S_HSTR}, 3")
    for i in range(8):
        A(f"s_add_u32 m0, s{S_HL}, {i*1024}")
        A(f"buffer_load_dwordx4 v48, s[{SRD_W}:{SRD_W+3}], s{T+6} offen lds")
        if i<7: A(f"s_add_u32 s{T+6}, s{T+6}, s{T+7}")
    A(f"s_setpc_b64 s[{S_HRET}:{S_HRET+1}]")
    A("L_hpost:")
    self.wjob_params()
    J=64
    A(f"s_cmp_eq_u32 s{S_HK}, 4")
    A(f"s_cselect_b32 s{T}, 10, 9")
    A(f"s_lshl_b32 s{T+1}, s{S_HK}, 7")
    A(f"v_lshlrev_b32 v50, s{T}, v43")
    A(f"v_add_u32 v50, v50, v42")
    A(f"v_add_u32 v50, s{S_HL}, v50")
    A(f"v_add_u32 v51, s{T+1}, v50")
    A(f"v_xor_b32 v52, 64, v50")
    A(f"v_xor_b32 v53, 64, v51")
    def rd(k):
        kap,e=k>>1,k&1; r=J+4*k
        A(f"ds_read_b64_tr_b16 v[{r}:{r+1}], v{50+2*e} offset:{kap*2048}")
        A(f"ds_read_b64_tr_b16 v[{r+2}:{r+3}], v{51+2*e} offset:{kap*2048}")
    for k in range(6): rd(k)
    for k in range(8):
        kap,e=k>>1,k&1; r=J+4*k
        issued=min(8,6+k)
        A(f"s_waitcnt lgkmcnt({2*(issued-1-k)})")
        if e==0: A(f"s_add_u32 s{T+2}, s{S_HD}, {kap*1024}")
        else:
            A(f"s_add_u32 s{T+2}, s{S_HD}, s{S_HE}")
            A(f"s_add_u32 s{T+2}, s{T+2}, {kap*1024}")
        A(f"buffer_store_dwordx4 v[{r}:{r+3}], v54, s[{SRD_WS}:{SRD_WS+3}], s{T+2} offen sc1")
        if 6+k<8: rd(6+k)
    lcs=self.lab('Lcs')
    A(f"s_cmp_lg_u32 s{S_HK}, 4")
    A(f"s_cbranch_scc1 {lcs}")
    A("v_mov_b32 v55, 0x3f803f80")
    for k in range(8):
        e=k&1
        for d in range(4):
            c="0" if (k<2 and d==0) else f"v{56+e}"
            A(f"v_dot2_f32_bf16 v{56+e}, v{J+4*k+d}, v55, {c}")
    A("s_nop 2")
    A("v_permlane32_swap_b32 v56, v57")
    A("v_add_f32 v56, v56, v57")
    A(f"s_cmp_ge_u32 s{S_HY}, 196")
    A(f"s_cselect_b32 s{T+2}, 1, 0")
    A(f"s_lshl_b32 s{T+3}, s{S_HP}, 2")
    A(f"s_add_u32 s{T+2}, s{T+2}, s{T+3}")
    A(f"s_mul_i32 s{T+2}, s{T+2}, 7")
    A(f"s_add_u32 s{T+2}, s{T+2}, s{S_HG}")
    A(f"s_lshl_b32 s{T+2}, s{T+2}, 7")
    A(f"s_add_u32 s{T+2}, s{T+2}, {WS_CS}")
    A(f"buffer_store_dword v56, v58, s[{SRD_WS}:{SRD_WS+3}], s{T+2} offen sc1")
    A(f"{lcs}:")
    A(f"s_setpc_b64 s[{S_HRET}:{S_HRET+1}]")

def bf16_lo(dst, src): return f"v_lshlrev_b32 v{dst}, 16, v{src}"
def bf16_hi(dst, src): return f"v_and_b32 v{dst}, 0xffff0000, v{src}"

def cmul(A, R, P, Z, T):
    A(f"v_pk_mul_f32 v[{T}:{T+1}], v[{P}:{P+1}], v[{Z}:{Z+1}] op_sel_hi:[0,1]")
    A(f"v_pk_fma_f32 v[{R}:{R+1}], v[{P}:{P+1}], v[{Z}:{Z+1}], v[{T}:{T+1}] op_sel:[1,1,0] op_sel_hi:[1,0,1] neg_lo:[1,0,0]")

def kreg(e,name):
    names=['C','Z1','Z2','Z4','Z8','Z256','P','Q','R','T','X0','X1']
    return [128,152][e]+2*names.index(name)
ROWS=[0,1,2,3,4,5,6,7,256,258,260,262,512,516,768,772,1024,1280,1536,1792,2048]

@add_method
def kgen_setup(self):
    A=self.A
    A("s_waitcnt lgkmcnt(0)")
    A(f"s_lshl_b32 s{S_T0}, s{S_CH}, 4")
    A(f"s_lshr_b32 s{S_DT}, s{S_DT}, s{S_T0}")
    A(f"s_lshl_b32 s{S_DT}, s{S_DT}, 16")
    A(f"s_lshr_b32 s{S_DSKV}, s{S_DSKV}, s{S_T0}")
    A(f"s_lshl_b32 s{S_DSKV}, s{S_DSKV}, 16")
    DT=48
    A(f"v_mov_b32 v{DT}, s{S_DT}")
    A(f"v_mul_f32 v{DT}, {fl(LOG2E)}, v{DT}")
    A(f"v_exp_f32 v{DT}, v{DT}")
    A(f"v_cvt_pk_bf16_f32 v{DT}, v{DT}, v{DT}")
    A(f"v_lshlrev_b32 v{DT}, 16, v{DT}")
    A(f"v_and_b32 v50, 0x7fff7fff, v{V_PA+2}")
    A(f"v_and_b32 v51, 0x7fff7fff, v{V_PA+3}")
    A(f"v_and_b32 v52, 0x7fff7fff, v{V_PA+4}")
    A(f"v_and_b32 v53, 0x7fff7fff, v{V_PA+5}")
    A("v_pk_max_u16 v50, v50, v51")
    A("v_pk_max_u16 v52, v52, v53")
    A("v_pk_max_u16 v50, v50, v52")
    A("v_lshrrev_b32 v51, 16, v50")
    A("v_and_b32 v50, 0xffff, v50")
    A("v_max_u32 v50, v50, v51")
    for mode in ["row_shr:1 row_mask:0xf bank_mask:0xf bound_ctrl:0","row_shr:2 row_mask:0xf bank_mask:0xf bound_ctrl:0",
                 "row_shr:4 row_mask:0xf bank_mask:0xf bound_ctrl:0","row_shr:8 row_mask:0xf bank_mask:0xf bound_ctrl:0",
                 "row_bcast:15 row_mask:0xa bank_mask:0xf","row_bcast:31 row_mask:0xc bank_mask:0xf"]:
        A(f"v_max_u32_dpp v50, v50, v50 {mode}")
    A(f"v_readlane_b32 s{S_T0}, v50, 63")
    A(f"s_lshr_b32 s{S_T0}, s{S_T0}, 7")
    A(f"s_max_u32 s{S_T0}, s{S_T0}, 1")
    A(f"s_min_u32 s{S_T0}, s{S_T0}, 253")
    A(f"s_sub_u32 s{S_T0+1}, 254, s{S_T0}")
    A(f"s_lshl_b32 s{S_T0+1}, s{S_T0+1}, 23")
    A(f"s_lshl_b32 s{S_T0}, s{S_T0}, 23")
    A(f"v_add_f32 v49, v{DT}, v{DT}")
    A(f"v_mul_f32 v49, s{S_T0}, v49")
    A(f"v_readfirstlane_b32 s{S_YS}, v49")
    AR=[50,51]; TH=[52,53]
    reg=kreg
    for e in range(2):
        un = bf16_lo if e==0 else bf16_hi
        A(un(AR[e], V_PA)); A(un(TH[e], V_PA+1))
        A(un(reg(e,'C'), V_PA+2)); A(un(reg(e,'C')+1, V_PA+3))
    for e in range(2):
        A(f"v_mul_f32 v{AR[e]}, {fl(LOG2E)}, v{AR[e]}")
    for e in range(2): A(f"v_exp_f32 v{AR[e]}, v{AR[e]}")
    for e in range(2):
        A(f"v_cvt_pk_bf16_f32 v{AR[e]}, v{AR[e]}, v{AR[e]}")
    for e in range(2):
        A(f"v_lshlrev_b32 v{AR[e]}, 16, v{AR[e]}")
    for e in range(2):
        A(f"v_mul_f32 v{AR[e]}, v{AR[e]}, v{DT}")
        A(f"v_mul_f32 v{TH[e]}, v{TH[e]}, v{DT}")
    for e in range(2):
        A(f"v_mul_f32 v{AR[e]}, {fl(-LOG2E)}, v{AR[e]}")
        A(f"v_mul_f32 v{TH[e]}, {fl(INV2PI)}, v{TH[e]}")
        c=reg(e,'C')
        A(f"v_mul_f32 v{c}, s{S_T0+1}, v{c}")
        A(f"v_mul_f32 v{c+1}, s{S_T0+1}, v{c+1}")
    for name,p in ((('Z1',1.0),('Z256',256.0)) if self.z8sq else (('Z1',1.0),('Z8',8.0),('Z256',256.0))):
        for e in range(2):
            z=reg(e,name); x0=reg(e,'X0'); x1=reg(e,'X1')
            if p==1.0:
                A(f"v_exp_f32 v{x0}, v{AR[e]}")
                A(f"v_fract_f32 v{x0+1}, v{TH[e]}")
            else:
                A(f"v_mul_f32 v{x0}, {fl(p)}, v{AR[e]}")
                A(f"v_mul_f32 v{x0+1}, {fl(p)}, v{TH[e]}")
                A(f"v_exp_f32 v{x0}, v{x0}")
                A(f"v_fract_f32 v{x0+1}, v{x0+1}")
            A(f"v_cos_f32 v{x1}, v{x0+1}")
            A(f"v_sin_f32 v{x1+1}, v{x0+1}")
        for e in range(2):
            z=reg(e,name); x0=reg(e,'X0'); x1=reg(e,'X1')
            A(f"v_pk_mul_f32 v[{z}:{z+1}], v[{x1}:{x1+1}], v[{x0}:{x0+1}] op_sel_hi:[1,0]")
    if self.xmode=='gather': A(self.gl[self.gi]); self.gi+=1
    for e in range(2): cmul(A, reg(e,'Z2'), reg(e,'Z1'), reg(e,'Z1'), reg(e,'T'))
    for e in range(2): cmul(A, reg(e,'Z4'), reg(e,'Z2'), reg(e,'Z2'), reg(e,'T'))
    if self.z8sq:
        for e in range(2): cmul(A, reg(e,'Z8'), reg(e,'Z4'), reg(e,'Z4'), reg(e,'T'))

@add_method
def kgen_gen(self):
    A=self.A
    reg=kreg
    VA=104
    A(f"s_mul_i32 s{S_T0+2}, s{S_W}, {KG_WAVE}")
    A(f"v_lshl_add_u32 v{VA}, v{V_LANE}, 3, s{S_T0+2}")
    OUT=[106,108,110,112]; oi=[0]
    def emit(idx, name, neg):
        if self.xmode=='xt' and idx==36: self.xflag_publish()
        if self.xmode=='gather' and idx in self.gidx: A(self.gl[self.gi]); self.gi+=1
        o=OUT[oi[0]%4]; oi[0]+=1
        for e in range(2):
            r=reg(e,name)
            A(f"v_cvt_pk_f16_f32 v{o+e}, v{r}, {'-' if neg else ''}v{r+1}")
        A(f"ds_write_b64 v{VA}, v[{o}:{o+1}] offset:{idx*KG_PITCH}")
    def step(dst, src, z):
        for e in range(2):
            A(f"v_pk_mul_f32 v[{reg(e,'T')}:{reg(e,'T')+1}], v[{reg(e,src)}:{reg(e,src)+1}], v[{reg(e,z)}:{reg(e,z)+1}] op_sel_hi:[0,1]")
        for e in range(2):
            A(f"v_pk_fma_f32 v[{reg(e,dst)}:{reg(e,dst)+1}], v[{reg(e,src)}:{reg(e,src)+1}], v[{reg(e,z)}:{reg(e,z)+1}], v[{reg(e,'T')}:{reg(e,'T')+1}] op_sel:[1,1,0] op_sel_hi:[1,0,1] neg_lo:[1,0,0]")
    emit(0,'C',True)
    step('P','C','Z1'); emit(1,'P',True)
    for r in range(2,8): step('P','P','Z1'); emit(r,'P',True)
    step('Q','C','Z256'); emit(8,'Q',True)
    step('R','Q','Z2'); emit(9,'R',True)
    step('R','R','Z2'); emit(10,'R',True)
    step('R','R','Z2'); emit(11,'R',True)
    step('Q','Q','Z256'); emit(12,'Q',True)
    step('R','Q','Z4'); emit(13,'R',True)
    step('Q','Q','Z256'); emit(14,'Q',True)
    step('R','Q','Z4'); emit(15,'R',True)
    for r in range(16,21): step('Q','Q','Z256'); emit(r,'Q',True)
    o=OUT[oi[0]%4]; oi[0]+=1
    A(f"v_mov_b32 v{o}, 0x3c00\nv_mov_b32 v{o+1}, 0x3c00")
    A(f"ds_write_b64 v{VA}, v[{o}:{o+1}] offset:{21*KG_PITCH}")
    emit(22,'Z8',False)
    step('P','Z8','Z8'); emit(23,'P',False)
    for b in range(3,32): step('P','P','Z8'); emit(21+b,'P',False)
    if self.xmode=='gather':
        while self.gi<8: A(self.gl[self.gi]); self.gi+=1
    self.stamp('gen done')
    A(f"s_mul_i32 s{S_T0+2}, s{S_W}, {KG_WAVE}")
    VAa=104; VAb=105
    A(f"v_and_b32 v48, 31, v{V_LANE}")
    A(f"v_min_u32 v49, 20, v48")
    A(f"v_lshrrev_b32 v50, 5, v{V_LANE}")
    A(f"v_lshlrev_b32 v50, 4, v50")
    A(f"v_add_u32 v50, s{S_T0+2}, v50")
    A(f"s_movk_i32 s{S_T0+3}, {KG_PITCH}")
    A(f"v_mad_u32_u24 v{VAa}, v49, s{S_T0+3}, v50")
    A(f"v_mad_u32_u24 v{VAb}, v48, s{S_T0+3}, v50")
    ACC=112
    FR=[64,72,80,88]
    def ld(ks):
        f=FR[ks%4]
        A(f"ds_read_b128 v[{f}:{f+3}], v{VAa} offset:{ks*32}")
        A(f"ds_read_b128 v[{f+4}:{f+7}], v{VAb} offset:{21*KG_PITCH+ks*32}")
    for ks in range(3): ld(ks)
    for ks in range(16):
        if ks+3<16: ld(ks+3)
        nxt=min(15,ks+3)-ks
        A(f"s_waitcnt lgkmcnt({2*nxt})")
        f=FR[ks%4]
        c = "0" if ks==0 else f"v[{ACC}:{ACC+15}]"
        A(f"v_mfma_f32_32x32x16_f16 v[{ACC}:{ACC+15}], v[{f}:{f+3}], v[{f+4}:{f+7}], {c}")
    l1=self.lab(); l2=self.lab()
    A(f"v_lshl_add_u32 v48, v{V_LANE}, 4, s{S_T0+2}")
    A(f"s_cmp_eq_u32 s{S_NH}, 0")
    A(f"s_cbranch_scc1 {l1}")
    for q in range(3): A(f"ds_write_b128 v48, v[{ACC+4*q}:{ACC+4*q+3}] offset:{q*1024}")
    A(f"{l1}:")
    A("s_nop 1")
    A("s_waitcnt lgkmcnt(0)")
    self.stamp('kmfma')
    A("s_barrier")
    self.stamp('kbar1')
    A(f"s_cmp_eq_u32 s{S_NH}, 0")
    A(f"s_cbranch_scc0 {l2}")
    for q in range(3): A(f"ds_read_b128 v[{64+4*q}:{64+4*q+3}], v48 offset:{KG_WAVE+q*1024}")
    A("s_waitcnt lgkmcnt(0)")
    for r in range(12):
        A(f"v_add_f32 v{64+r}, v{64+r}, v{ACC+r}")
    for k in range(4): A(f"v_cvt_pk_f16_f32 v{76+k}, v{64+2*k}, v{65+2*k}")
    for r in range(8,12): A(f"v_cvt_f16_f32 v{64+r}, v{64+r}")
    A("ds_write_b64 v176, v[76:77]")
    A("ds_write_b32 v177, v78")
    A("ds_write_b32 v178, v79")
    for r in range(8,12): A(f"ds_write_b16 v179, v{64+r} offset:{1024+64*(r-8)}")
    A(f"v_mov_b32 v50, 0")
    A(f"v_mov_b32 v51, s{S_T0+2}")
    A(f"ds_write_b16 v51, v50 offset:{2*768}")
    A(f"{l2}:")
    self.granule_loads()
    A("s_waitcnt lgkmcnt(0)")
    A("s_barrier")

@add_method
def kexpand(self):
    A=self.A
    D0=64
    def rd(ch,x):
        tb=(2*ch)*KG_WAVE; d=D0+ch*28
        A(f"ds_read_u16 v{d+x}, v{V_OFF+x} offset:{tb}")
    def mk(ch):
        d=D0+ch*28
        for c in range(4):
            for x in range(4):
                A(f"v_lshl_or_b32 v{d+12+4*c+x}, v{d+c+2*x+1}, 16, v{d+c+2*x}")
    def wr(ch):
        d=D0+ch*28
        for c in range(4):
            r=d+12+4*c
            A(f"ds_write_b128 v49, v[{r}:{r+3}] offset:{ch*KX_CH+c*KX_COPY}")
    for x in range(11): rd(0,x)
    for x in range(4): rd(1,x)
    A(f"v_lshlrev_b32 v49, 4, v{V_T}")
    A(f"v_add_u32 v49, {LDS_KX}, v49")
    A("s_waitcnt lgkmcnt(4)")
    mk(0)
    for x in range(4,11): rd(1,x)
    wr(0)
    A("s_waitcnt lgkmcnt(4)")
    mk(1)
    wr(1)

S_GB=76
S_GB2=82
S_KSTR=68
@add_method
def stage_w(self, kind):
    A=self.A
    RING=24576
    if kind=='w1':
        stride=3584
        A(f"s_mov_b32 s{SRD_W}, s{S_WGT}\ns_mov_b32 s{SRD_W+1}, s{S_WGT+1}\ns_mov_b32 s{SRD_W+2}, {D_*F_*2}\ns_mov_b32 s{SRD_W+3}, 0x20000")
        A(f"s_mov_b32 s{SRD_W2}, s{S_WUP}\ns_mov_b32 s{SRD_W2+1}, s{S_WUP+1}\ns_mov_b32 s{SRD_W2+2}, {D_*F_*2}\ns_mov_b32 s{SRD_W2+3}, 0x20000")
        A(f"s_lshl_b32 s{S_T0}, s{S_J}, 8")
        A(f"s_lshl_b32 s{S_T0+1}, s{S_W}, 6")
        A(f"s_add_u32 s{S_T0}, s{S_T0}, s{S_T0+1}")
        for g in range(4):
            A(f"s_add_u32 s{S_T0+1}, s{S_W}, {g}")
            A(f"s_and_b32 s{S_T0+1}, s{S_T0+1}, 3")
            A(f"s_mul_i32 s{S_T0+1}, s{S_T0+1}, {7*16*stride}")
            A(f"s_add_u32 s{S_GB+g}, s{S_T0+1}, s{S_T0}")
        tileoff2=0
    else:
        stride=896
        A(f"s_mov_b32 s{SRD_W}, s{S_WD}\ns_mov_b32 s{SRD_W+1}, s{S_WD+1}\ns_mov_b32 s{SRD_W+2}, {D_*F_*2}\ns_mov_b32 s{SRD_W+3}, 0x20000")
        A(f"s_mov_b32 s{SRD_W2}, s{S_WD}\ns_mov_b32 s{SRD_W2+1}, s{S_WD+1}\ns_mov_b32 s{SRD_W2+2}, {D_*F_*2}\ns_mov_b32 s{SRD_W2+3}, 0x20000")
        A(f"s_cmp_ge_u32 s{S_J}, 7")
        A(f"s_cselect_b32 s{S_T0}, 7, 0")
        A(f"s_sub_u32 s{S_T0}, s{S_J}, s{S_T0}")
        A(f"s_lshl_b32 s{S_T0}, s{S_T0}, 7")
        A(f"s_mul_i32 s{S_T0+1}, s{S_W}, {448*stride}")
        A(f"s_add_u32 s{S_T0}, s{S_T0}, s{S_T0+1}")
        for g in range(4):
            A(f"s_add_u32 s{S_GB+g}, s{S_T0}, {g*7*16*stride}")
        tileoff2=64
    kstr=16*stride
    A(f"v_lshrrev_b32 v48, 2, v{V_LANE}")
    A(f"v_mul_u32_u24 v48, {stride}, v48")
    A(f"v_and_b32 v49, 3, v{V_LANE}")
    A(f"v_lshl_add_u32 v48, v49, 4, v48")
    if kind=='w1':
        A(f"v_mov_b32 v52, v48")
    else:
        A(f"s_lshl_b32 s{S_T0+1}, s{S_NH}, 6")
        A(f"s_xor_b32 s{S_T0+3}, s{S_T0+1}, 64")
        A(f"v_add_u32 v52, s{S_T0+3}, v48")
        A(f"v_add_u32 v48, s{S_T0+1}, v48")
    A(f"s_mul_i32 s{S_T0+2}, s{S_W}, {RING}")
    A(f"v_lshrrev_b32 v50, 5, v{V_LANE}")
    A(f"v_lshlrev_b32 v50, {9 if kind=='w1' else 8}, v50")
    A(f"v_bfe_u32 v51, v{V_LANE}, 2, 2")
    A(f"v_lshl_add_u32 v50, v51, 6, v50")
    A(f"v_bfe_u32 v51, v{V_LANE}, 4, 1")
    A(f"v_lshl_add_u32 v50, v51, 5, v50")
    A(f"v_and_b32 v51, 3, v{V_LANE}")
    A(f"v_lshl_add_u32 v50, v51, 3, v50")
    A(f"v_add_u32 v50, s{S_T0+2}, v50")
    second = 256 if kind=='w1' else 512
    def issue(c):
        slot=c%3
        for i in range(4):
            s=4*c+i; g=s//7; r=s%7
            A(f"s_add_u32 s{S_T0+3}, s{S_GB+g}, {r*kstr}")
            A(f"s_add_u32 m0, s{S_T0+2}, {slot*8192+i*2048}")
            A(f"buffer_load_dwordx4 v48, s[{SRD_W}:{SRD_W+3}], s{S_T0+3} offen lds")
            A(f"s_add_u32 m0, s{S_T0+2}, {slot*8192+i*2048+1024}")
            A(f"buffer_load_dwordx4 v52, s[{SRD_W2}:{SRD_W2+3}], s{S_T0+3} offen lds")
    for c in range(3): issue(c)
    for c in range(7):
        A(f"s_waitcnt vmcnt({8*min(2,6-c)})")
        slot=c%3
        for i in range(4):
            s=4*c+i
            for tile in range(2):
                a=8*s+4*tile; off=slot*8192+i*2048+tile*1024
                A(f"ds_read_b64_tr_b16 a[{a}:{a+1}], v50 offset:{off}")
                A(f"ds_read_b64_tr_b16 a[{a+2}:{a+3}], v50 offset:{off+second}")
            if i==1: A("s_waitcnt lgkmcnt(4)")
        if c+3<7:
            A("s_waitcnt lgkmcnt(0)")
            issue(c+3)
    A("s_waitcnt lgkmcnt(0)")

@add_method
def flag_load(self):
    A=self.A
    A(f"s_lshl_b32 s{S_T0}, s{S_J}, 2")
    A(f"s_add_u32 s{S_T0}, s{S_T0}, s{S_W}")
    A(f"s_lshr_b32 s{S_T0}, s{S_T0}, 1")
    A(f"s_mul_i32 s{S_T0}, s{S_T0}, 7")
    A(f"v_min_u32 v44, 13, v{V_LANE}")
    A(f"v_add_u32 v46, 189, v44")
    A(f"v_cmp_lt_u32 vcc, 6, v44")
    A(f"v_cndmask_b32 v44, v44, v46, vcc")
    A(f"v_add_u32 v44, s{S_T0}, v44")
    A(f"v_lshlrev_b32 v44, 6, v44")
    A(f"s_mov_b32 s{S_T0+11}, {WS_JF}")
    A(f"buffer_load_dword v46, v44, s[{SRD_WS}:{SRD_WS+3}], s{S_T0+11} offen sc1")

@add_method
def wdflag_load(self, S):
    A=self.A
    A(f"s_cmp_ge_u32 s{S_J}, 7")
    A(f"s_cselect_b32 s{S_T0+8}, 7, 0")
    A(f"s_sub_u32 s{S_T0+8}, s{S_J}, s{S_T0+8}")
    A(f"s_mul_i32 s{S_T0+8}, s{S_T0+8}, 28")
    A(f"s_mul_i32 s{S_T0+9}, s{S_W}, 7")
    A(f"s_add_u32 s{S_T0+8}, s{S_T0+8}, s{S_T0+9}")
    A(f"s_add_u32 s{S_T0+8}, s{S_T0+8}, 392")
    A(f"v_min_u32 v44, 6, v{V_LANE}")
    A(f"v_add_u32 v44, s{S_T0+8}, v44")
    A(f"v_lshlrev_b32 v44, 6, v44")
    A(f"s_mov_b32 s{S_T0+11}, {WS_JF}")
    S.vmem(f"buffer_load_dword v46, v44, s[{SRD_WS}:{SRD_WS+3}], s{S_T0+11} offen sc1","WDF")

@add_method
def wdflag_check(self, S):
    A=self.A
    lp=self.lab('Lpoll'); le=self.lab()
    S.need_vm(["WDF"])
    A(f"s_mov_b32 s{S_T0+8}, 0")
    A(f"{lp}:")
    A(f"v_cmp_eq_u32 vcc, s{S_TAG}, v46")
    A(f"s_and_b32 s{S_T0+9}, vcc_lo, 0x7f")
    A(f"s_cmp_eq_u32 s{S_T0+9}, 0x7f")
    A(f"s_cbranch_scc1 {le}")
    A(f"buffer_load_dword v46, v44, s[{SRD_WS}:{SRD_WS+3}], s{S_T0+11} offen sc1")
    A("s_waitcnt vmcnt(0)")
    A(f"s_add_u32 s{S_T0+8}, s{S_T0+8}, 1")
    A(f"s_cmp_lt_u32 s{S_T0+8}, 0x8000")
    A(f"s_cbranch_scc1 {lp}")
    A(f"{le}:")

@add_method
def granule_loads(self):
    A=self.A; SG=144
    if self.xmode=='gather':
        A(f"v_lshlrev_b32 v43, 6, v{V_T}")
        A(f"s_mov_b32 s{S_T0+13}, {WS_STATS}")
        for k in range(4):
            A(f"buffer_load_dwordx4 v[{SG+4*k}:{SG+4*k+3}], v43, s[{SRD_WS}:{SRD_WS+3}], s{S_T0+13} offen offset:{16*k} sc1")
        return
    A(f"s_lshr_b32 s{S_T0+12}, s{S_D0}, 6")
    A(f"s_and_b32 s{S_T0+12}, s{S_T0+12}, 3")
    A(f"s_lshl_b32 s{S_T0+12}, s{S_T0+12}, 6")
    A(f"s_add_u32 s{S_T0+12}, s{S_T0+12}, {WS_XF}")
    A(f"v_lshlrev_b32 v37, 8, v{V_T}")
    A(f"buffer_load_dword v36, v37, s[{SRD_WS}:{SRD_WS+3}], s{S_T0+12} offen sc1")
    A(f"v_lshlrev_b32 v43, 6, v{V_T}")
    A(f"s_mov_b32 s{S_T0+13}, {WS_STATS}")
    for k in range(4):
        A(f"buffer_load_dwordx4 v[{SG+4*k}:{SG+4*k+3}], v43, s[{SRD_WS}:{SRD_WS+3}], s{S_T0+13} offen offset:{16*k} sc1")

@add_method
def granule_wait(self):
    A=self.A; SG=144
    lp=self.lab('Lpoll'); le=self.lab()
    A(f"s_mov_b32 s{S_T0+1}, 0")
    A("s_waitcnt vmcnt(0)")
    A(f"{lp}:")
    if self.xmode=='gather': A("v_mov_b32 v49, 0")
    else: A(f"v_xor_b32 v49, s{S_TAG}, v36")
    for k in range(8):
        A(f"v_xor_b32 v50, s{S_TAG}, v{SG+2*k+1}")
        A(f"v_or_b32 v49, v49, v50")
    A("v_cmp_ne_u32 vcc, 0, v49")
    A(f"s_add_u32 s{S_T0+1}, s{S_T0+1}, 1")
    A(f"s_cbranch_vccz {le}")
    if self.xmode=='xt': A(f"buffer_load_dword v36, v37, s[{SRD_WS}:{SRD_WS+3}], s{S_T0+12} offen sc1")
    for k in range(4):
        A(f"buffer_load_dwordx4 v[{SG+4*k}:{SG+4*k+3}], v43, s[{SRD_WS}:{SRD_WS+3}], s{S_T0+13} offen offset:{16*k} sc1")
    A("s_waitcnt vmcnt(0)")
    A(f"s_cmp_lt_u32 s{S_T0+1}, 0x8000")
    A(f"s_cbranch_scc1 {lp}")
    A(f"{le}:")

@add_method
def flag_wait(self, mask, landed=False, sleep=0):
    A=self.A
    lp=self.lab('Lpoll'); le=self.lab(); lf=self.lab()
    A(f"s_mov_b32 s{S_T0+1}, 0")
    if landed: A(f"s_branch {lf}")
    A(f"{lp}:")
    A("s_waitcnt vmcnt(0)")
    A(f"{lf}:")
    A(f"v_cmp_eq_u32 vcc, s{S_TAG}, v46")
    A(f"s_and_b32 s{S_T0+2}, vcc_lo, {hex(mask)}")
    A(f"s_cmp_eq_u32 s{S_T0+2}, {hex(mask)}")
    A(f"s_cbranch_scc1 {le}")
    if sleep: A(f"s_sleep {sleep}")
    A(f"buffer_load_dword v46, v44, s[{SRD_WS}:{SRD_WS+3}], s{S_T0+11} offen sc1")
    A(f"s_add_u32 s{S_T0+1}, s{S_T0+1}, 1")
    A(f"s_cmp_lt_u32 s{S_T0+1}, 0x8000")
    A(f"s_cbranch_scc1 {lp}")
    A(f"{le}:")

@add_method
def xt_loads(self):
    A=self.A; XA=8
    A(f"s_movk_i32 s{S_T0+2}, 7168")
    A(f"v_mul_lo_u32 v48, v{V_T}, s{S_T0+2}")
    A(f"s_lshl_b32 s{S_T0+2}, s{S_D0}, 4")
    A(f"s_add_u32 s{S_T0+2}, s{S_T0+2}, {WS_XT}")
    A(f"buffer_load_dwordx4 v[{XA}:{XA+3}], v48, s[{SRD_WS}:{SRD_WS+3}], s{S_T0+2} offen sc1")
    A(f"buffer_load_dwordx4 v[{XA+4}:{XA+7}], v48, s[{SRD_WS}:{SRD_WS+3}], s{S_T0+2} offen offset:16 sc1")

@add_method
def w1_setup(self):
    A=self.A
    A(f"s_lshl_b32 s{S_T0}, s{S_J}, 2")
    A(f"s_add_u32 s{S_T0}, s{S_T0}, s{S_W}")
    A(f"s_mul_i32 s{S_T0}, s{S_T0}, 56")
    for g in range(4):
        A(f"s_add_u32 s{S_T0+1}, s{S_W}, {g}")
        A(f"s_and_b32 s{S_T0+1}, s{S_T0+1}, 3")
        A(f"s_mul_i32 s{S_T0+1}, s{S_T0+1}, 7")
        A(f"s_add_u32 s{S_T0+1}, s{S_T0+1}, s{S_T0}")
        A(f"s_lshl_b32 s{S_T0+1}, s{S_T0+1}, 10")
        A(f"s_add_u32 s{S_GB+g}, s{S_T0+1}, {WS_WF1}")
        A(f"s_add_u32 s{S_GB2+g}, s{S_GB+g}, {28*1024}")
    A(f"v_lshlrev_b32 v45, 4, v{V_LANE}")
    A(f"v_add_u32 v3, 4096, v45")

@add_method
def w1_items(self, s0, s1):
    out=[]
    for s in range(s0,s1):
        g=s//7; i=s%7
        for t in range(2):
            sb=(S_GB if t==0 else S_GB2)+g
            va,off=("v45",i*1024) if i<4 else ("v3",(i-4)*1024)
            out.append([f"buffer_load_dwordx4 a[{8*s+4*t}:{8*s+4*t+3}], {va}, s[{SRD_WS}:{SRD_WS+3}], s{sb} offen offset:{off} sc1"])
    return out
@add_method
def w1_loads(self, s0, s1):
    for it in self.w1_items(s0,s1):
        for x in it: self.A(x)

@add_method
def x_prepare(self):
    A=self.A
    A("s_waitcnt vmcnt(4)")
    for ch in range(2):
        for j in range(8): A((bf16_lo if ch==0 else bf16_hi)(96+8*ch+j, V_XG+j))
    A(f"s_mov_b32 s{S_T0+2}, 0x05040100")
    A(f"s_mov_b32 s{S_T0+3}, 0x07060302")
    for ch in range(2):
        for j in range(0,8,2):
            A(f"v_perm_b32 v{176+ch*4+j//2}, v{V_XG+j+1}, v{V_XG+j}, s{S_T0+2+ch}")
    A(f"v_lshlrev_b32 v48, 4, v{V_T}")
    A(f"v_add_u32 v42, {LDS_U+512}, v48")
    A(f"v_add_u32 v50, {LDS_XT}, v48")
    A(f"ds_write_b128 v50, v[176:179]")
    A(f"ds_write_b128 v50, v[180:183] offset:{XT_CH}")
    self.w1_setup()

@add_method
def stats_consume(self):
    A=self.A
    SG=144
    for j in range(8):
        A(f"v_lshlrev_b32 v{80+j}, 16, v{SG+2*j}")
        A(f"v_and_b32 v{88+j}, 0xffff0000, v{SG+2*j}")
    for j in range(8): A(f"v_rcp_f32 v{80+j}, v{80+j}")
    for ch in range(2):
        X=96+ch*8
        for j in range(0,8,2):
            A(f"v_pk_add_f32 v[{X+j}:{X+j+1}], v[{X+j}:{X+j+1}], v[{88+j}:{88+j+1}] neg_lo:[0,1] neg_hi:[0,1]")
        if self.mimic>=2:
            for j in range(0,8,2):
                A(f"v_cvt_pk_bf16_f32 v{128+j//2}, v{X+j}, v{X+j+1}")
            for j in range(0,8,2):
                A(bf16_lo(X+j,128+j//2)); A(bf16_hi(X+j+1,128+j//2))
        for j in range(0,8,2):
            A(f"v_pk_mul_f32 v[{X+j}:{X+j+1}], v[{X+j}:{X+j+1}], v[{80+j}:{80+j+1}]")
        if self.mimic>=1:
            for j in range(0,8,2):
                A(f"v_cvt_pk_bf16_f32 v{128+j//2}, v{X+j}, v{X+j+1}")
            for j in range(0,8,2):
                A(bf16_lo(X+j,128+j//2)); A(bf16_hi(X+j+1,128+j//2))
        U=132+ch*4
        for j in range(0,8,2):
            A(f"v_cvt_pk_f16_f32 v{U+j//2}, v{X+j}, v{X+j+1}")
        A(f"ds_write_b128 v42, v[{U}:{U+3}] offset:{ch*U_CH}")
    if self.w1pf or self.w1start: self.flag_load()
    A("s_waitcnt lgkmcnt(0)")
    A("s_barrier")

@add_method
def w1_rest(self):
    self.w1_loads(W1_IN_CONV,28)

@add_method
def wd_loads(self, s0, s1, S=None):
    out=[]
    for s in range(s0,s1):
        for ca in range(2):
            out.append(f"s_add_u32 s{S_T0+14}, s{S_T0+12+ca}, {s*1024}")
            out.append(('vm',f"buffer_load_dwordx4 a[{8*s+4*ca}:{8*s+4*ca+3}], v47, s[{SRD_WS}:{SRD_WS+3}], s{S_T0+14} offen sc1",f"WD{s}"))
    return out

@add_method
def wd_setup(self):
    A=self.A
    A(f"s_cmp_ge_u32 s{S_J}, 7")
    A(f"s_cselect_b32 s{S_T0+14}, 7, 0")
    A(f"s_sub_u32 s{S_T0+14}, s{S_J}, s{S_T0+14}")
    A(f"s_lshl_b32 s{S_T0+14}, s{S_T0+14}, 1")
    for ca in range(2):
        A(f"s_xor_b32 s{S_T0+12+ca}, s{S_NH}, {ca}")
        A(f"s_add_u32 s{S_T0+12+ca}, s{S_T0+12+ca}, s{S_T0+14}")
        A(f"s_mul_i32 s{S_T0+12+ca}, s{S_T0+12+ca}, 112")
        A(f"s_mul_i32 s{S_T0+15}, s{S_W}, 28")
        A(f"s_add_u32 s{S_T0+12+ca}, s{S_T0+12+ca}, s{S_T0+15}")
        A(f"s_lshl_b32 s{S_T0+12+ca}, s{S_T0+12+ca}, 10")
        A(f"s_add_u32 s{S_T0+12+ca}, s{S_T0+12+ca}, {WS_WFD}")
    A(f"v_lshlrev_b32 v47, 4, v{V_LANE}")

W1_PRE=16
W1_IN_CONV=0
C_ACC=64
C_F=[96,160]
C_G=[128,192]
C_VF=34; C_VG=35
C_EU=224; C_EX=232
@add_method
def conv_setup(self):
    A=self.A
    A(f"v_and_b32 v50, 15, v{V_LANE}")
    A(f"v_lshrrev_b32 v51, 4, v{V_LANE}")
    A(f"v_sub_u32 v52, 3, v50")
    A(f"v_and_b32 v52, 3, v52")
    A(f"v_mul_u32_u24 v52, {KX_COPY}, v52")
    A(f"v_lshrrev_b32 v53, 2, v50")
    A(f"v_lshlrev_b32 v53, 3, v53")
    A(f"v_sub_u32 v52, v52, v53")
    A(f"v_lshl_add_u32 v52, v51, 4, v52")
    A(f"s_mul_i32 s{S_T0}, s{S_CH}, {KX_CH}")
    A(f"s_lshl_b32 s{S_T0+1}, s{S_NH}, 8")
    A(f"s_sub_u32 s{S_T0}, s{S_T0}, s{S_T0+1}")
    A(f"s_add_u32 s{S_T0}, s{S_T0}, {LDS_KX+2*2028-64*63}")
    A(f"v_add_u32 v{C_VF}, s{S_T0}, v52")
    A(f"v_lshlrev_b32 v52, 5, v50")
    A(f"v_lshl_add_u32 v52, v51, 4, v52")
    A(f"s_mul_i32 s{S_T0}, s{S_CH}, {U_CH}")
    A(f"s_sub_u32 s{S_T0}, s{S_T0}, s{S_T0+1}")
    A(f"s_add_u32 s{S_T0}, s{S_T0}, {LDS_U+480-192}")
    A(f"v_add_u32 v{C_VG}, s{S_T0}, v52")
    A(f"v_lshlrev_b32 v52, 5, v50")
    A(f"v_lshl_add_u32 v52, v51, 3, v52")
    A(f"s_lshl_b32 s{S_T0}, s{S_NH}, 11")
    A(f"s_mul_i32 s{S_T0+1}, s{S_CH}, {U_CH}")
    A(f"s_add_u32 s{S_T0+1}, s{S_T0+1}, s{S_T0}")
    A(f"s_add_u32 s{S_T0+1}, s{S_T0+1}, {LDS_U+512}")
    A(f"v_add_u32 v36, s{S_T0+1}, v52")
    A(f"s_mul_i32 s{S_T0+1}, s{S_CH}, {XT_CH}")
    A(f"s_add_u32 s{S_T0+1}, s{S_T0+1}, s{S_T0}")
    A(f"s_add_u32 s{S_T0+1}, s{S_T0+1}, {LDS_XT}")
    A(f"v_add_u32 v37, s{S_T0+1}, v52")
    A(f"v_and_b32 v38, 1, v51")
    A(f"v_lshlrev_b32 v38, 3, v38")
    A(f"v_lshrrev_b32 v53, 1, v50")
    A(f"v_add_u32 v38, v38, v53")
    A(f"s_movk_i32 s{S_T0+8}, {448*64}")
    A(f"v_mul_lo_u32 v38, v38, s{S_T0+8}")
    A(f"v_and_b32 v53, 1, v50")
    A(f"v_lshl_add_u32 v38, v53, 5, v38")
    A(f"v_lshrrev_b32 v53, 1, v51")
    A(f"v_lshl_add_u32 v38, v53, 4, v38")
    A(f"s_lshl_b32 s{S_T0+8}, s{S_NH}, 5")
    A(f"s_mul_i32 s{S_T0+8}, s{S_T0+8}, {448*64}")
    A(f"s_add_u32 s{S_T0+9}, s{S_D0}, s{S_CH}")
    A(f"s_lshl_b32 s{S_T0+9}, s{S_T0+9}, 6")
    A(f"s_add_u32 s{S_T0+8}, s{S_T0+8}, s{S_T0+9}")
    A(f"s_add_u32 s22, s{S_T0+8}, {WS_HT}")
    A(f"s_add_u32 s23, s22, {16*448*64}")

@add_method
def conv(self):
    A=self.A
    def loads(sp):
        st=sp&1; out=[]
        for k in range(8):
            g=C_G[st]+4*k; f=C_F[st]+4*k
            out.append(f"ds_read_b128 v[{g}:{g+3}], v{C_VG} offset:{512*k+64*(3-sp)}")
            o=64*(63-8*k-sp)
            out.append(f"ds_read_b64 v[{f}:{f+1}], v{C_VF} offset:{o}")
            out.append(f"ds_read_b64 v[{f+2}:{f+3}], v{C_VF} offset:{o+8}")
        return out
    def mfmas(sp):
        st=sp&1; out=[]
        for t in range(8):
            for d in range(t+1):
                acc=C_ACC+4*t
                c = "0" if (sp==0 and d==0) else f"v[{acc}:{acc+3}]"
                out.append((t,d,f"v_mfma_f32_16x16x32_f16 v[{acc}:{acc+3}], v[{C_F[st]+4*d}:{C_F[st]+4*d+3}], v[{C_G[st]+4*(t-d)}:{C_G[st]+4*(t-d)+3}], {c}"))
        return out
    l0=loads(0)
    for k in range(5):
        for x in l0[3*k:3*k+3]: A(x)
    issued=5
    nconv=self.w1n if self.w1start else 0
    self.w1_in_conv=nconv
    wl=self.w1_items(0,nconv); wi=[0]; mc=[0]; cur_sp=[0]
    def wfill():
        if not self.w1start or cur_sp[0]<self.w1start: return
        mc[0]+=1
        if mc[0]%self.w1step==1 and wi[0]<len(wl):
            for x in wl[wi[0]]: A(x)
            wi[0]+=1
    nxt=loads(1); ni=0
    cur_t=-1
    for (t,d,txt) in mfmas(0):
        first = (t!=cur_t)
        if first:
            cur_t=t
            if t<=3: A(f"s_waitcnt lgkmcnt({3*(issued-1-t)})")
            elif t==4: A("s_waitcnt lgkmcnt(0)")
        A(txt)
        if first and issued<8:
            for x in l0[3*issued:3*issued+3]: A(x)
            issued+=1
        elif t>=4 and ni<len(nxt):
            A(nxt[ni]); ni+=1
    assert ni==len(nxt)

    epi=[]
    for tt in range(4):
        epi.append(f"ds_read_b64 v[{C_EU+2*tt}:{C_EU+2*tt+1}], v36 offset:{512*tt}")
        epi.append(f"ds_read_b64 v[{C_EX+2*tt}:{C_EX+2*tt+1}], v37 offset:{512*tt}")
    U=224; X=240
    PRE=160
    PRE=96
    UU=112
    pre=[]
    if self.mimic==0:
        pre.append(f"v_mov_b32 v47, s{S_DSKV}")
        for tt in range(4):
            for h in range(2):
                pre.append(f"v_cvt_f32_f16 v{UU+4*tt+2*h}, v{C_EU+2*tt+h}")
                pre.append(f"v_lshrrev_b32 v{UU+4*tt+2*h+1}, 16, v{C_EU+2*tt+h}")
                pre.append(f"v_cvt_f32_f16 v{UU+4*tt+2*h+1}, v{UU+4*tt+2*h+1}")
                pre.append(bf16_lo(PRE+4*tt+2*h, C_EX+2*tt+h)); pre.append(bf16_hi(PRE+4*tt+2*h+1, C_EX+2*tt+h))
        for r in range(16): pre.append(f"v_fma_f32 v{PRE+r}, v{UU+r}, v47, v{PRE+r}")
    for sp in range(1,4):
        if self.wdrain and sp==3: self.flag_load()
        if self.w1start and sp==self.w1start:
            self.flag_wait(0x3fff, sleep=self.fsleep)
            self.stamp('w1 flags')
        if self.w1pf and sp==self.w1pf:
            lpf=self.lab()
            A("s_waitcnt vmcnt(0)")
            A(f"v_cmp_eq_u32 vcc, s{S_TAG}, v46")
            A(f"s_and_b32 s{S_T0+2}, vcc_lo, 0x3fff")
            A(f"s_cmp_eq_u32 s{S_T0+2}, 0x3fff")
            A(f"s_cbranch_scc0 {lpf}")
            A(f"s_lshl_b32 s{S_T0+2}, s{S_J}, 2")
            A(f"s_add_u32 s{S_T0+2}, s{S_T0+2}, s{S_W}")
            A(f"s_mul_i32 s{S_T0+2}, s{S_T0+2}, {56*1024}")
            A(f"s_and_b32 s{S_T0+3}, s{S_I}, 3")
            A(f"s_mul_i32 s{S_T0+3}, s{S_T0+3}, {14*1024}")
            A(f"s_add_u32 s{S_T0+2}, s{S_T0+2}, s{S_T0+3}")
            A(f"s_add_u32 s{S_T0+2}, s{S_T0+2}, {WS_WF1}")
            A(f"v_min_u32 v40, 55, v{V_LANE}")
            A(f"v_lshlrev_b32 v40, 7, v40")
            A(f"buffer_load_dword v253, v40, s[{SRD_WS}:{SRD_WS+3}], s{S_T0+2} offen sc1")
            A(f"s_add_u32 s{S_T0+2}, s{S_T0+2}, {7*1024}")
            A(f"buffer_load_dword v252, v40, s[{SRD_WS}:{SRD_WS+3}], s{S_T0+2} offen sc1")
            A(f"{lpf}:")
        A("s_waitcnt lgkmcnt(0)")
        nxt = loads(sp+1) if sp<3 else epi
        cur_sp[0]=sp
        ni=0; pi=0; k=0
        for (t,d,txt) in mfmas(sp):
            A(txt); k+=1
            if ni<len(nxt): A(nxt[ni]); ni+=1
            elif sp==3 and pre:
                if k==12: A("s_waitcnt lgkmcnt(0)")
                if k>=12:
                    tgt=min(len(pre),(len(pre)*(k-11)+23)//24)
                    while pi<tgt: A(pre[pi]); pi+=1
            wfill()
        if sp==3:
            while pi<len(pre): A(pre[pi]); pi+=1
    assert wi[0]==len(wl)
    A(f"s_lshl_b32 s{S_T0}, s{S_W}, 12")
    A(f"v_lshl_add_u32 v55, v{V_LANE}, 4, s{S_T0}")
    if self.mimic==0:
        lA=self.lab(); lB=self.lab()
        A(f"s_cmp_eq_u32 s{S_NH}, 0")
        A(f"s_cbranch_scc0 {lA}")
        A("s_nop 5")
        for tt in range(4): A(f"ds_write_b128 v55, v[{C_ACC+16+4*tt}:{C_ACC+16+4*tt+3}] offset:{1024*tt}")
        A(f"s_branch {lB}")
        A(f"{lA}:")
        A("s_nop 5")
        for tt in range(4): A(f"ds_write_b128 v55, v[{C_ACC+4*tt}:{C_ACC+4*tt+3}] offset:{1024*tt}")
        A(f"{lB}:")
        A("v_xor_b32 v55, 4096, v55")
        A(f"v_mov_b32 v146, s{S_YS}\nv_mov_b32 v147, s{S_YS}")
        A("s_waitcnt lgkmcnt(0)")
        A("s_barrier")
        PT=128
        for tt in range(4): A(f"ds_read_b128 v[{PT+4*tt}:{PT+4*tt+3}], v55 offset:{1024*tt}")
        def fin(Y):
            for tt in range(4):
                A(f"s_waitcnt lgkmcnt({3-tt})")
                for p in (2*tt,2*tt+1):
                    A(f"v_pk_add_f32 v[{PT+2*p}:{PT+2*p+1}], v[{Y+2*p}:{Y+2*p+1}], v[{PT+2*p}:{PT+2*p+1}]")
                for p in (2*tt,2*tt+1):
                    A(f"v_pk_fma_f32 v[{PT+2*p}:{PT+2*p+1}], v[{PT+2*p}:{PT+2*p+1}], v[146:147], v[{PRE+2*p}:{PRE+2*p+1}]")
        lA=self.lab(); lB=self.lab()
        A(f"s_cmp_eq_u32 s{S_NH}, 0")
        A(f"s_cbranch_scc0 {lA}")
        fin(C_ACC)
        A(f"s_branch {lB}")
        A(f"{lA}:")
        fin(C_ACC+16)
        A(f"{lB}:")
        Y=PT
    else:
        l=self.lab()
        A(f"s_cmp_eq_u32 s{S_NH}, 0")
        A(f"s_cbranch_scc1 {l}")
        A("s_nop 7")
        for r in range(16): A(f"v_swap_b32 v{C_ACC+r}, v{C_ACC+16+r}")
        A(f"{l}:")
        A("s_nop 7")
        for tt in range(4): A(f"ds_write_b128 v55, v[{C_ACC+16+4*tt}:{C_ACC+16+4*tt+3}] offset:{1024*tt}")
        A("v_xor_b32 v55, 4096, v55")
        A("s_waitcnt lgkmcnt(0)")
        A("s_barrier")
    if self.mimic==0: pass
    else:
        for tt in range(4): A(f"ds_read_b128 v[{96+4*tt}:{96+4*tt+3}], v55 offset:{1024*tt}")
        U=112; X=128; Y=C_ACC
        for tt in range(4):
            for h in range(2):
                A(f"v_cvt_f32_f16 v{U+4*tt+2*h}, v{C_EU+2*tt+h}")
                A(f"v_cvt_f32_f16_sdwa v{U+4*tt+2*h+1}, v{C_EU+2*tt+h} dst_sel:DWORD dst_unused:UNUSED_PAD src0_sel:WORD_1")
                A(bf16_lo(X+4*tt+2*h, C_EX+2*tt+h)); A(bf16_hi(X+4*tt+2*h+1, C_EX+2*tt+h))
        A(f"v_mov_b32 v144, s{S_DSKV}\nv_mov_b32 v145, s{S_DSKV}\nv_mov_b32 v146, s{S_YS}\nv_mov_b32 v147, s{S_YS}")
        for p in range(8):
            A(f"v_pk_mul_f32 v[{U+2*p}:{U+2*p+1}], v[{U+2*p}:{U+2*p+1}], v[144:145]")
        if self.mimic>=1:
            for p in range(8): A(f"v_cvt_pk_bf16_f32 v{148+p}, v{U+2*p}, v{U+2*p+1}")
            for p in range(8): A(bf16_lo(U+2*p,148+p)); A(bf16_hi(U+2*p+1,148+p))
        A("s_waitcnt lgkmcnt(0)")
        for p in range(8):
            A(f"v_pk_add_f32 v[{Y+2*p}:{Y+2*p+1}], v[{Y+2*p}:{Y+2*p+1}], v[{96+2*p}:{96+2*p+1}]")
        for p in range(8):
            A(f"v_pk_mul_f32 v[{Y+2*p}:{Y+2*p+1}], v[{Y+2*p}:{Y+2*p+1}], v[146:147]")
        if self.mimic>=1:
            for p in range(8): A(f"v_cvt_pk_bf16_f32 v{148+p}, v{Y+2*p}, v{Y+2*p+1}")
            for p in range(8): A(bf16_lo(Y+2*p,148+p)); A(bf16_hi(Y+2*p+1,148+p))
        for p in range(8):
            A(f"v_pk_add_f32 v[{Y+2*p}:{Y+2*p+1}], v[{Y+2*p}:{Y+2*p+1}], v[{U+2*p}:{U+2*p+1}]")
        if self.mimic>=1:
            for p in range(8): A(f"v_cvt_pk_bf16_f32 v{148+p}, v{Y+2*p}, v{Y+2*p+1}")
            for p in range(8): A(bf16_lo(Y+2*p,148+p)); A(bf16_hi(Y+2*p+1,148+p))
        for p in range(8):
            A(f"v_pk_add_f32 v[{Y+2*p}:{Y+2*p+1}], v[{Y+2*p}:{Y+2*p+1}], v[{X+2*p}:{X+2*p+1}]")
    H=148
    for p in range(8): A(f"v_cvt_pk_bf16_f32 v{H+p}, v{Y+2*p}, v{Y+2*p+1}")
    for pr in range(2):
        b=H+4*pr
        A(f"v_permlane16_swap_b32 v{b}, v{b+2}")
        A(f"v_permlane16_swap_b32 v{b+1}, v{b+3}")
    if self.wdrain:
        A("s_waitcnt vmcnt(0)")
        A(f"v_cmp_eq_u32 vcc, s{S_TAG}, v46")
        A(f"s_and_b32 s{S_T0+2}, vcc_lo, 0x3fff")
        A(f"s_cmp_eq_u32 s{S_T0+2}, 0x3fff")
        A(f"s_cselect_b32 s3, 1, 0")
    A(f"buffer_store_dwordx4 v[{H}:{H+3}], v38, s[{SRD_WS}:{SRD_WS+3}], s22 offen sc1")
    A(f"buffer_store_dwordx4 v[{H+4}:{H+7}], v38, s[{SRD_WS}:{SRD_WS+3}], s23 offen sc1")

@add_method
def sync_all(self):
    A=self.A
    if self.wdrain:
        la=self.lab(); lb=self.lab()
        A(f"s_cmp_eq_u32 s3, 0")
        A(f"s_cbranch_scc1 {la}")
        self.w1_loads(0,self.wdrain)
        A(f"s_waitcnt vmcnt({2*self.wdrain})")
        A(f"s_branch {lb}")
        A(f"{la}:")
        A("s_waitcnt vmcnt(0)")
        A(f"{lb}:")
    else:
        if not self.w1start: self.flag_load()
        A("s_waitcnt vmcnt(0)")
    A("s_barrier")
    l=self.lab()
    A(f"s_cmp_lg_u32 s{S_W}, 0")
    A(f"s_cbranch_scc1 {l}")
    A(f"s_and_b32 s{S_T0}, s{S_WG}, 7")
    A(f"s_lshl_b32 s{S_T0}, s{S_T0}, 7")
    A(f"s_add_u32 s{S_T0}, s{S_T0}, {WS_CNT2}")
    A(f"v_lshlrev_b32 v48, 10, v{V_LANE}")
    A("v_mov_b32 v49, 1")
    A("s_mov_b64 exec, 0xff")
    A(f"buffer_atomic_add v49, v48, s[{SRD_WS}:{SRD_WS+3}], s{S_T0} offen")
    A("s_mov_b64 exec, -1")
    A(f"{l}:")

@add_method
def sync_all_wait(self, sleep=0, presleep=0):
    A=self.A
    l=self.lab(); lp=self.lab('Lpoll'); le=self.lab()
    A(f"s_cmp_lg_u32 s{S_W}, 0")
    A(f"s_cbranch_scc1 {l}")
    A(f"s_lshr_b32 s{S_T0}, s{S_WG}, 3")
    A(f"s_and_b32 s{S_T0}, s{S_T0}, 7")
    A(f"s_lshl_b32 s{S_T0}, s{S_T0}, 10")
    A(f"s_add_u32 s{S_T0}, s{S_T0}, {WS_CNT2}")
    A(f"v_and_b32 v48, 7, v{V_LANE}")
    A(f"v_lshlrev_b32 v48, 7, v48")
    A(f"s_mov_b32 s{S_T0+1}, 0")
    if self.pp:
        A(f"buffer_load_dword v252, v48, s[{SRD_WS}:{SRD_WS+3}], s{S_T0} offen sc1")
        A(f"{lp}:")
        for a_,b_ in ((253,252),(252,253)):
            A(f"buffer_load_dword v{a_}, v48, s[{SRD_WS}:{SRD_WS+3}], s{S_T0} offen sc1")
            A("s_waitcnt vmcnt(1)")
            A(f"v_cmp_gt_u32 vcc, 28, v{b_}")
            A(f"s_cbranch_vccz {le}")
        A(f"s_add_u32 s{S_T0+1}, s{S_T0+1}, 1")
        A(f"s_cmp_lt_u32 s{S_T0+1}, 0x4000")
        A(f"s_cbranch_scc1 {lp}")
    else:
        A(f"{lp}:")
        A(f"buffer_load_dword v49, v48, s[{SRD_WS}:{SRD_WS+3}], s{S_T0} offen sc1")
        A("s_waitcnt vmcnt(0)")
        A("v_cmp_gt_u32 vcc, 28, v49")
        A(f"s_add_u32 s{S_T0+1}, s{S_T0+1}, 1")
        A(f"s_cbranch_vccz {le}")
        if sleep: A(f"s_sleep {sleep}")
        A(f"s_cmp_lt_u32 s{S_T0+1}, 0x8000")
        A(f"s_cbranch_scc1 {lp}")
    A(f"{le}:")
    A(f"{l}:")
    A("s_barrier")

class Stream:
    def __init__(self, A):
        self.A=A; self.lds=[]; self.vm=[]
    def ds(self, text, tag=None):
        self.A(text); self.lds.append(tag)
    def vmem(self, text, tag=None):
        self.A(text); self.vm.append(tag)
    def need_lds(self, tags):
        idx=-1
        for t in tags:
            if t in self.lds: idx=max(idx, len(self.lds)-1-self.lds[::-1].index(t))
        if idx>=0:
            n=len(self.lds)-idx-1
            n=min(n,15)
            self.A(f"s_waitcnt lgkmcnt({n})")
            self.lds=self.lds[len(self.lds)-n:] if n>0 else []
    def need_vm(self, tags):
        idx=-1
        for t in tags:
            if t in self.vm: idx=max(idx, len(self.vm)-1-self.vm[::-1].index(t))
        if idx>=0:
            n=len(self.vm)-idx-1
            n=min(n,63)
            self.A(f"s_waitcnt vmcnt({n})")
            self.vm=self.vm[len(self.vm)-n:] if n>0 else []
    def item(self, it):
        if isinstance(it,str): self.A(it)
        elif it[0]=='ds': self.ds(it[1],it[2])
        elif it[0]=='vm': self.vmem(it[1],it[2])
        elif it[0]=='needl': self.need_lds(it[1])
        elif it[0]=='needv': self.need_vm(it[1])

G_ACC=[64,96]; G_CS=128; G_RING=160; G_SB=184; G_VB=56; G_ST=54; G_ET=60; G_PK=232; G_R2=250; G_MU=240; G_C1=244
LDS_ST=114688
@add_method
def cs_mfma(self, s0, s1, init=True):
    A=self.A
    if s0==0 and init:
        for k in range(4): A(f"v_mov_b32 v{48+k}, 0x3f803f80")
    for s in range(s0,s1):
        for t in range(2):
            d=G_CS+16*t
            c="0" if s==0 else f"v[{d}:{d+15}]"
            A(f"v_mfma_f32_32x32x16_bf16 v[{d}:{d+15}], a[{8*s+4*t}:{8*s+4*t+3}], v[48:51], {c}")

def wd_loc(sig, ca):
    if sig<5: return ('v', 4+8*sig+4*ca)
    if sig<9: return ('a', 224+8*(sig-5)+4*ca)
    if sig<14: return ('v', 192+8*(sig-9)+4*ca)
    return ('a', 8*(sig-14)+4*ca)

@add_method
def wd_item(self, sig, ca):
    k,r=wd_loc(sig,ca)
    it=[]
    if sig%8==0 and sig>0: it.append(f"s_add_u32 s{S_T0+12+ca}, s{S_T0+12+ca}, 8192")
    va,off=("v48",(sig%8)*1024) if sig%8<4 else ("v3",(sig%8-4)*1024)
    it.append(('vm',f"buffer_load_dwordx4 {k}[{r}:{r+3}], {va}, s[{SRD_WS}:{SRD_WS+3}], s{S_T0+12+ca} offen offset:{off} sc1",f"WD{sig}"))
    return it

PF=5
@add_method
def gemm1(self):
    A=self.A; S=Stream(A); self.S=S
    A(f"s_mul_i32 s{S_T0}, s{S_I}, {4*28672}")
    A(f"s_mul_i32 s{S_T0+1}, s{S_W}, 7168")
    A(f"s_add_u32 s{S_T0}, s{S_T0}, s{S_T0+1}")
    A(f"s_add_u32 s{S_T0}, s{S_T0}, {WS_HT}")
    A(f"v_lshlrev_b32 v48, 4, v{V_LANE}")
    A(f"v_add_u32 v3, 4096, v48")
    def xdma(lt,k):
        base=lt*28672+(k//4)*4096
        it=[]
        if k%4==0: it+=[f"s_add_u32 s{S_T0+2}, s{S_T0}, {base}", f"s_add_u32 m0, s{S_T0+1}, {base}"]
        it.append(('vm',f"buffer_load_dwordx4 v48, s[{SRD_WS}:{SRD_WS+3}], s{S_T0+2} offen offset:{(k%4)*1024} sc1 lds", f"X{lt}"))
        return it
    for lt in range(2):
        for k in range(7):
            for it in xdma(lt,k): S.item(it)
    self.wd_setup()
    self.wdflag_load(S)
    A(f"s_lshl_b32 s{S_T0+3}, s{S_J}, 2")
    A(f"s_add_u32 s{S_T0+3}, s{S_T0+3}, s{S_W}")
    A(f"s_mul_i32 s{S_T0+3}, s{S_T0+3}, {2*896}")
    A(f"s_add_u32 s{S_T0+3}, s{S_T0+3}, {WS_CS}")
    A(f"v_lshrrev_b32 v50, 5, v{V_LANE}")
    A(f"v_mul_u32_u24 v50, 896, v50")
    A(f"v_and_b32 v51, 31, v{V_LANE}")
    A(f"v_lshl_add_u32 v50, v51, 2, v50")
    for g in range(7):
        S.vmem(f"buffer_load_dword v{184+g}, v50, s[{SRD_WS}:{SRD_WS+3}], s{S_T0+3} offen offset:{g*128} sc1","CSP")
    A(f"s_lshl_b32 s{S_T0+3}, s{S_W}, 8")
    A(f"s_add_u32 s{S_T0+3}, s{S_T0+3}, {LDS_ST+2048}")
    A(f"v_lshl_add_u32 v191, v{V_LANE}, 2, s{S_T0+3}")
    A(f"v_lshrrev_b32 v55, 5, v{V_LANE}")
    A(f"v_lshlrev_b32 v55, 4, v55")
    A(f"v_add_u32 v55, s{S_T0+3}, v55")
    A(f"v_lshrrev_b32 v50, 5, v{V_LANE}")
    A(f"v_lshlrev_b32 v50, 9, v50")
    A(f"v_bfe_u32 v51, v{V_LANE}, 2, 2")
    A(f"v_lshl_add_u32 v50, v51, 6, v50")
    A(f"v_bfe_u32 v51, v{V_LANE}, 4, 1")
    A(f"v_lshl_add_u32 v50, v51, 5, v50")
    A(f"v_and_b32 v51, 3, v{V_LANE}")
    A(f"v_lshl_add_u32 v50, v51, 3, v50")
    for g in range(4):
        A(f"s_add_u32 s{S_T0+3}, s{S_W}, {g}")
        A(f"s_and_b32 s{S_T0+3}, s{S_T0+3}, 3")
        A(f"s_sub_u32 s{S_T0+3}, s{S_T0+3}, {g}")
        A(f"s_mul_i32 s{S_T0+3}, s{S_T0+3}, 7168")
        A(f"v_add_u32 v{G_VB+g}, s{S_T0+3}, v50")
    A(f"v_and_b32 v52, 31, v{V_LANE}")
    A(f"v_lshlrev_b32 v52, 3, v52")
    A(f"s_lshl_b32 s{S_T0+10}, s{S_I}, 10")
    A(f"s_add_u32 s{S_T0+10}, s{S_T0+10}, {WS_ST2}")
    A(f"s_lshl_b32 s{S_T0+4}, s{S_I}, 2")
    A(f"s_mul_i32 s{S_T0+4}, s{S_T0+4}, 112")
    A(f"s_lshl_b32 s{S_T0+5}, s{S_J}, 3")
    A(f"s_add_u32 s{S_T0+4}, s{S_T0+4}, s{S_T0+5}")
    A(f"s_lshl_b32 s{S_T0+5}, s{S_W}, 1")
    A(f"s_add_u32 s{S_T0+4}, s{S_T0+4}, s{S_T0+5}")
    A(f"s_lshl_b32 s{S_T0+4}, s{S_T0+4}, 10")
    A(f"s_add_u32 s{S_T0+4}, s{S_T0+4}, {WS_M}")
    SM=S_T0+4
    RING=[G_RING+4*k for k in range(6)]
    def breg(p,s): return RING[(28*p+s)%6]
    def bload(p,s):
        r=breg(p,s); vb=G_VB+s//7
        return [('ds',f"ds_read_b64_tr_b16 v[{r}:{r+1}], v{vb} offset:{s*1024}",f"B{p}_{s}a"),
                ('ds',f"ds_read_b64_tr_b16 v[{r+2}:{r+3}], v{vb} offset:{s*1024+256}",f"B{p}_{s}b")]
    SG2=G_SB
    def stats_loads():
        it=[]
        for p in range(4):
            it.append(('vm',f"buffer_load_dwordx2 v[{SG2+2*p}:{SG2+2*p+1}], v52, s[{SRD_WS}:{SRD_WS+3}], s{S_T0+10} offen offset:{p*256} sc1","ST2"))
        return it
    def stats_check():
        lp=self.lab('Lpoll'); le=self.lab()
        S.need_vm(["ST2"])
        A(f"s_mov_b32 s{S_T0+8}, 0")
        A(f"{lp}:")
        A(f"v_xor_b32 v53, s{S_TAG}, v{SG2+1}")
        for p in range(1,4):
            A(f"v_xor_b32 v54, s{S_TAG}, v{SG2+2*p+1}")
            A(f"v_or_b32 v53, v53, v54")
        A("v_cmp_ne_u32 vcc, 0, v53")
        A(f"s_add_u32 s{S_T0+8}, s{S_T0+8}, 1")
        A(f"s_cbranch_vccz {le}")
        for p in range(4):
            A(f"buffer_load_dwordx2 v[{SG2+2*p}:{SG2+2*p+1}], v52, s[{SRD_WS}:{SRD_WS+3}], s{S_T0+10} offen offset:{p*256} sc1")
        A("s_waitcnt vmcnt(0)")
        A(f"s_cmp_lt_u32 s{S_T0+8}, 0x8000")
        A(f"s_cbranch_scc1 {lp}")
        A(f"{le}:")
    def stats_final(p):
        g=SG2+2*p; T=G_ST
        if self.aug:
            b=G_CS+8+4*p
            return [f"v_and_b32 v{b}, 0xffff0000, v{g}",
                    f"v_xor_b32 v{b}, 0x80000000, v{b}",
                    f"v_lshrrev_b32 v{T}, 16, v{b}",
                    f"v_or_b32 v{b}, v{b}, v{T}",
                    f"v_lshlrev_b32 v{T}, 16, v{g}",
                    f"v_rcp_f32 v{T}, v{T}",
                    f"s_nop 0",
                    f"v_mul_f32 v{G_C1+p}, {fl(-LOG2E)}, v{T}",
                    f"v_mul_f32 v{G_R2+p}, v{T}, v{T}"]
        return [f"v_and_b32 v{G_MU+p}, 0xffff0000, v{g}",
                f"v_lshlrev_b32 v{T}, 16, v{g}",
                f"v_rcp_f32 v{T}, v{T}",
                f"s_nop 0",
                f"v_mul_f32 v{G_C1+p}, {fl(-LOG2E)}, v{T}",
                f"v_mul_f32 v{G_R2+p}, v{T}, v{T}"]
    def epi_items(p):
        acc=G_ACC[p&1]; it=[]; E=G_ET; mu=G_MU+p; c1=G_C1+p
        if self.aug:
            for t in range(2):
                it.append(f"v_mfma_f32_32x32x16_bf16 v[{acc+16*t}:{acc+16*t+15}], v[{G_CS+4*t}:{G_CS+4*t+3}], v[{G_CS+8+4*p}:{G_CS+8+4*p+3}], v[{acc+16*t}:{acc+16*t+15}]")
        for r0 in range(0,16,4):
            rs=range(r0,r0+4)
            if not self.aug:
                for r in rs: it.append(f"v_fma_f32 v{acc+r}, -v{mu}, v{G_CS+r}, v{acc+r}")
                for r in rs: it.append(f"v_fma_f32 v{acc+16+r}, -v{mu}, v{G_CS+16+r}, v{acc+16+r}")
            for r in rs: it.append(f"v_mul_f32 v{E+(r&3)}, v{c1}, v{acc+r}")
            for r in rs: it.append(f"v_exp_f32 v{E+(r&3)}, v{E+(r&3)}")
            for r in rs: it.append(f"v_mul_f32 v{acc+r}, v{acc+r}, v{acc+16+r}")
            for r in rs: it.append(f"v_add_f32 v{E+(r&3)}, 1.0, v{E+(r&3)}")
            for r in rs: it.append(f"v_rcp_f32 v{E+(r&3)}, v{E+(r&3)}")
            for r in rs: it.append(f"v_mul_f32 v{acc+r}, v{acc+r}, v{E+(r&3)}")
            q=r0//4
            it.append(f"v_cvt_pk_bf16_f32 v{G_PK+2*q}, v{acc+r0}, v{acc+r0+1}")
            it.append(f"v_cvt_pk_bf16_f32 v{G_PK+2*q+1}, v{acc+r0+2}, v{acc+r0+3}")
            if q==1 or q==3:
                h=q//2
                if h==0: it.append(f"s_add_u32 s{SM+1}, s{SM}, {p*112*1024}")
                it.append(('vm',f"buffer_store_dwordx4 v[{G_PK+4*h}:{G_PK+4*h+3}], v48, s[{SRD_WS}:{SRD_WS+3}], s{SM+1} offen offset:{h*1024} sc1",f"M{p}_{h}"))
        return it
    vmx={0:[],1:[],2:[],3:[]}
    wr=self.w1_items(W1_PRE,28)
    for n,it in enumerate(wr):
        sl=W1_PRE+n//2
        vmx[0].append((n//2, [('vm',it[0],f"W{sl}")]))
    if self.xlate:
        for q in range(7): vmx[1].append((q, xdma(2,q)))
        for q in range(7): vmx[2].append((q, xdma(3,q)))
    else:
        k=0
        for lt in (2,3):
            for q in range(7):
                vmx[0].append((min(27,len(wr)//2+k), xdma(lt,q))); k+=1
    csit=[('needv',["CSP"])]
    for g in range(1,7): csit.append(f"v_add_f32 v184, v184, v{184+g}")
    if self.aug:
        AUGA=G_CS; AUGB=G_CS+8
        csit+= [f"v_cvt_pk_bf16_f32 v185, v184, v184", f"v_lshlrev_b32 v185, 16, v185", f"v_sub_f32 v186, v184, v185",
                f"v_cvt_pk_bf16_f32 v{AUGA}, v185, v186", f"v_mov_b32 v{AUGA+4}, 0"]
        csit+= [f"v_mov_b32 v{AUGA+r}, 0" for r in (1,2,3,5,6,7)]
        csit+= [f"v_mov_b32 v{AUGB+4*q+r}, 0" for q in range(4) for r in (1,2,3)]
        csit+= [f"v_permlane32_swap_b32 v{AUGA}, v{AUGA+4}"]
    else:
        csit.append(('ds',"ds_write_b32 v191, v184","CSW"))
        for t in range(2):
            for q in range(4):
                csit.append(('ds',f"ds_read_b128 v[{G_CS+16*t+4*q}:{G_CS+16*t+4*q+3}], v55 offset:{t*128+q*32}","CSR"))
    n=0
    for sig in range(5):
        for ca in range(2): vmx[1].append((9+(18*n)//10, self.wd_item(sig,ca))); n+=1
    n=0
    for sig in range(5,14):
        for ca in range(2): vmx[2].append(((8+(19*n)//18) if self.xlate else (1+(26*n)//18), self.wd_item(sig,ca))); n+=1
    for n in range(28): vmx[3].append((max(n//2,(n*self.wdspan)//28), self.wd_item(14+n//2, n%2)))
    S.need_vm(["X0"])
    A("s_barrier")
    self.stamp('x0')
    for s in range(PF):
        for it in bload(0,s): S.item(it)
    BAR=self.bar; csi=[0]
    ST_LOAD,ST_CHK=self.stl,self.stc; _=0
    def emit_pass(p, pre):
        acc=G_ACC[p&1]
        ep=epi_items(p-1) if p>0 else []
        e0=1
        if p==1:
            while csi[0]<len(csit): S.item(csit[csi[0]]); csi[0]+=1
            ep=([] if self.aug else [('needl',["CSR"])])+sum((stats_final(q) for q in range(4)),[])+ep
            e0=ST_CHK+1
        epi=0
        pre_ep=[]
        if self.aug and ep:
            k_=max(i for i,x in enumerate(ep) if isinstance(x,str) and x.startswith('v_mfma'))+1
            pre_ep,ep=ep[:k_],ep[k_:]
            e_pre=e0; e0=e0+3
        def cost(it):
            if isinstance(it,tuple):
                return {'ds':5,'vm':20}.get(it[0],1)
            m=it.split()[0]
            if m in ('v_exp_f32','v_rcp_f32','v_sqrt_f32'): return 8.6
            if m.startswith('s_'): return 3
            return 4.3
        fixed=[0.0]*56
        for g_ in range(56):
            sl_,t_=g_//2,g_%2
            fixed[g_]+=5
            if t_==1:
                for (sl,items) in vmx[p]:
                    if sl==sl_: fixed[g_]+=sum(cost(x) for x in items)
            if t_==0 and sl_%2==0: fixed[g_]+=3
        g0=2*e0
        tot=sum(cost(x) for x in ep)
        quota=[0]*56
        if ep:
            lo,hi=0.0,200.0
            for _ in range(30):
                mid=(lo+hi)/2
                if sum(max(0.0,mid-fixed[g_]) for g_ in range(g0,56))>=tot+25: hi=mid
                else: lo=mid
            quota=[max(0.0,hi-fixed[g_]) if g_>=g0 else 0.0 for g_ in range(56)]
        carry=0.0
        for s in range(28):
            if s%2==0: S.need_lds([f"B{p}_{s}a",f"B{p}_{s}b",f"B{p}_{s+1}a",f"B{p}_{s+1}b"])
            if p==0 and s>=pre and s%2==0: S.need_vm([f"W{s}",f"W{s+1}"])
            if p==0 and s>=18 and csi[0]<len(csit):
                for _ in range(2):
                    if csi[0]<len(csit): S.item(csit[csi[0]]); csi[0]+=1
            r=breg(p,s)
            for t in range(2):
                d=acc+16*t
                c="0" if s==0 else f"v[{d}:{d+15}]"
                A(f"v_mfma_f32_32x32x16_bf16 v[{d}:{d+15}], a[{8*s+4*t}:{8*s+4*t+3}], v[{r}:{r+3}], {c}")
                ns=s+PF
                if ns<28: S.item(bload(p,ns)[t])
                elif p<3: S.item(bload(p+1,ns-28)[t])
                gap=2*s+t
                if t==1:
                    for (sl,items) in vmx[p]:
                        if sl==s:
                            for it in items: S.item(it)
                if pre_ep and s==e_pre and t==1:
                    for it in pre_ep: S.item(it)
                if self.costsched:
                    carry+=quota[gap]
                    while epi<len(ep) and cost(ep[epi])<=carry+1.0:
                        carry-=cost(ep[epi]); S.item(ep[epi]); epi+=1
                elif s>=e0 and ep:
                    ng=2*(28-e0)-1
                    tgt=min(len(ep),(len(ep)*(gap-2*e0+1)+ng-1)//ng)
                    while epi<tgt: S.item(ep[epi]); epi+=1
            if p==1 and s==ST_LOAD:
                for it in stats_loads(): S.item(it)
            if p==1 and s==ST_CHK: stats_check()
            if p<3 and s in (6-PF,13-PF,20-PF,27-PF):
                g={6-PF:0,13-PF:1,20-PF:2,27-PF:3}[s]
                A(f"v_add_u32 v{G_VB+g}, 28672, v{G_VB+g}")
            if p==3 and s==22 and self.emov:
                A(f"s_lshl_b32 s{S_T0+2}, s{S_I}, 7")
                A(f"s_add_u32 s{S_T0+2}, s{S_T0+2}, {WS_CNT3}")
                S.vmem(f"buffer_load_dword v55, v{V_ZERO}, s[{SRD_WS}:{SRD_WS+3}], s{S_T0+2} offen sc1","pollE")
            if s==((4 if self.emov else BAR) if p==3 else BAR):
                if p<3: S.need_vm([f"X{p+1}"])
                if p==0: self.wdflag_check(S)
                if p==3: S.need_vm(["M1_1"])
                A("s_barrier")
                if p==3:
                    l=self.lab()
                    A(f"s_cmp_lg_u32 s{S_W}, 0")
                    A(f"s_cbranch_scc1 {l}")
                    A(f"s_lshl_b32 s{S_T0+2}, s{S_I}, 7")
                    A(f"s_add_u32 s{S_T0+2}, s{S_T0+2}, {WS_CNT3}")
                    A("v_mov_b32 v55, 1")
                    A("s_mov_b64 exec, 1")
                    A(f"buffer_atomic_add v55, v{V_ZERO}, s[{SRD_WS}:{SRD_WS+3}], s{S_T0+2} offen")
                    A("s_mov_b64 exec, -1")
                    A(f"{l}:")
        while epi<len(ep): S.item(ep[epi]); epi+=1
    def w_rest(pre):
        out=[]
        wr=self.w1_items(pre,28); n_=len(wr)
        for n,it in enumerate(wr):
            sl=pre+n//2
            out.append((min(n//2 if not self.split0 else (n*max(1,pre))//max(1,n_) , max(0,sl-4)), [('vm',it[0],f"W{sl}")]))
        return out
    base0=[x for x in vmx[0] if not (isinstance(x[1][0],tuple) and str(x[1][0][2]).startswith('W'))]
    for p in range(4):
        if p==0 and self.split0:
            lB=self.lab('Lp0'); lJ=self.lab('Lp0')
            st=(list(S.lds),list(S.vm),csi[0])
            A(f"s_cmp_lg_u32 s{S_W}, 0")
            A(f"s_cbranch_scc1 {lB}")
            vmx[0]=base0+w_rest(self.split0)
            emit_pass(0,self.split0)
            A(f"s_branch {lJ}")
            A(f"{lB}:")
            S.lds,S.vm,csi[0]=list(st[0]),list(st[1]),st[2]
            vmx[0]=base0
            emit_pass(0,28)
            A(f"{lJ}:")
            A("s_waitcnt vmcnt(0)"); S.vm=[]
        else:
            emit_pass(p,W1_PRE)
        if self.ts and (self.tsonly is None or f'pass{p}' in self.tsonly):
            self.stamp(f'pass{p}'); S.lds=[]
    self.g2_ids()
    self.early_loads=[]
    if self.emov:
        lp=self.lab('Lpoll'); le=self.lab()
        S.need_vm(["pollE"])
        A(f"s_mov_b32 s{S_T0+8}, 0")
        A(f"{lp}:")
        A("v_cmp_gt_u32 vcc, 14, v55")
        A(f"s_cbranch_vccz {le}")
        A(f"buffer_load_dword v55, v{V_ZERO}, s[{SRD_WS}:{SRD_WS+3}], s{S_T0+2} offen sc1")
        A("s_waitcnt vmcnt(0)")
        A(f"s_add_u32 s{S_T0+8}, s{S_T0+8}, 1")
        A(f"s_cmp_lt_u32 s{S_T0+8}, 0x8000")
        A(f"s_cbranch_scc1 {lp}")
        A(f"{le}:")
    else:
        A(f"s_lshl_b32 s{S_T0+2}, s{S_I}, 7")
        A(f"s_add_u32 s{S_T0+2}, s{S_T0+2}, {WS_CNT3}")
        S.vmem(f"buffer_load_dword v55, v{V_ZERO}, s[{SRD_WS}:{SRD_WS+3}], s{S_T0+2} offen sc1","pollE")
    acc=G_ACC[1]; E=G_ET
    if self.aug:
        for t in range(2):
            A(f"v_mfma_f32_32x32x16_bf16 v[{acc+16*t}:{acc+16*t+15}], v[{G_CS+4*t}:{G_CS+4*t+3}], v[{G_CS+8+12}:{G_CS+8+15}], v[{acc+16*t}:{acc+16*t+15}]")
    A("s_nop 7")
    PMU,PC1=(54,52) if self.emov else (184,186)
    if not self.aug: A(f"v_mov_b32 v{PMU}, v{G_MU+3}")
    A(f"v_mov_b32 v{PC1}, v{G_C1+3}")
    ne=0
    for r0 in range(0,16,4):
        if not self.aug:
            for r in (r0,r0+2): A(f"v_pk_fma_f32 v[{acc+r}:{acc+r+1}], v[{G_CS+r}:{G_CS+r+1}], v[{PMU}:{PMU+1}], v[{acc+r}:{acc+r+1}] op_sel_hi:[1,0,1] neg_lo:[0,1,0] neg_hi:[0,1,0]")
            for r in (r0,r0+2): A(f"v_pk_fma_f32 v[{acc+16+r}:{acc+16+r+1}], v[{G_CS+16+r}:{G_CS+16+r+1}], v[{PMU}:{PMU+1}], v[{acc+16+r}:{acc+16+r+1}] op_sel_hi:[1,0,1] neg_lo:[0,1,0] neg_hi:[0,1,0]")
        for r in (r0,r0+2): A(f"v_pk_mul_f32 v[{E+(r&3)}:{E+(r&3)+1}], v[{acc+r}:{acc+r+1}], v[{PC1}:{PC1+1}] op_sel_hi:[1,0]")
        for r in range(4): A(f"v_exp_f32 v{E+r}, v{E+r}")
        if self.emov:
            for _ in range(2): S.vmem(self.m_load_text(0,ne),f"m0_{ne}"); ne+=1
        for r in (r0,r0+2): A(f"v_pk_mul_f32 v[{acc+r}:{acc+r+1}], v[{acc+r}:{acc+r+1}], v[{acc+16+r}:{acc+16+r+1}]")
        for r in (0,2): A(f"v_pk_add_f32 v[{E+r}:{E+r+1}], v[{E+r}:{E+r+1}], 1.0 op_sel_hi:[1,0]")
        for r in range(4): A(f"v_rcp_f32 v{E+r}, v{E+r}")
        for r in (r0,r0+2): A(f"v_pk_mul_f32 v[{acc+r}:{acc+r+1}], v[{acc+r}:{acc+r+1}], v[{E+(r&3)}:{E+(r&3)+1}]")
        q=r0//4
        A(f"v_cvt_pk_bf16_f32 v{G_PK+2*q}, v{acc+r0}, v{acc+r0+1}")
        A(f"v_cvt_pk_bf16_f32 v{G_PK+2*q+1}, v{acc+r0+2}, v{acc+r0+3}")
        if q in (1,3):
            h=q//2
            if h==0: A(f"s_add_u32 s{SM+1}, s{SM}, {3*112*1024}")
            S.vmem(f"buffer_store_dwordx4 v[{G_PK+4*h}:{G_PK+4*h+3}], v48, s[{SRD_WS}:{SRD_WS+3}], s{SM+1} offen offset:{h*1024} sc1",f"M3_{h}")

S_MB=76
@add_method
def g2_ids(self):
    A=self.A
    A(f"s_cmp_ge_u32 s{S_J}, 7")
    A(f"s_cselect_b32 s{S_T0}, 1, 0")
    A(f"s_cselect_b32 s{S_T0+6}, 7, 0")
    A(f"s_sub_u32 s{S_T0+6}, s{S_J}, s{S_T0+6}")
    A(f"s_lshl_b32 s{S_T0+1}, s{S_I}, 2")
    A(f"s_sub_u32 s{S_T0+3}, 3, s{S_T0}")
    A(f"s_add_u32 s{S_T0+3}, s{S_T0+3}, s{S_T0+1}")
    A(f"s_add_u32 s{S_T0+1}, s{S_T0+1}, s{S_T0}")
    A(f"s_mul_i32 s{S_T0+7}, s{S_W}, 28")
    for la,src in ((0,S_T0+1),(1,S_T0+3)):
        A(f"s_mul_i32 s{S_MB+la}, s{src}, 112")
        A(f"s_add_u32 s{S_MB+la}, s{S_MB+la}, s{S_T0+7}")
        A(f"s_lshl_b32 s{S_MB+la}, s{S_MB+la}, 10")
        A(f"s_add_u32 s{S_MB+la}, s{S_MB+la}, {WS_M}")
@add_method
def m_entry(self, la, s): return H_RING+4*((28*la+s+(8 if self.emov else 0))%NRING)
@add_method
def m_load_text(self, la, s):
    r=self.m_entry(la,s)
    if s%8==0 and s>0: self.A(f"s_add_u32 s{S_MB+la}, s{S_MB+la}, 8192")
    va,off=("v48",(s%8)*1024) if s%8<4 else ("v3",(s%8-4)*1024)
    return f"buffer_load_dwordx4 v[{r}:{r+3}], {va}, s[{SRD_WS}:{SRD_WS+3}], s{S_MB+la} offen offset:{off} sc1"

H_ACC=64
H_RING=128
NRING=16
LDS_RED=0
LDS_RES=49152
@add_method
def gemm2(self):
    A=self.A; S=self.S
    if not self.emov:
        lp=self.lab('Lpoll'); le=self.lab()
        A(f"s_mov_b32 s{S_T0+8}, 0")
        A(f"s_waitcnt vmcnt(2)")
        A(f"{lp}:")
        A("v_cmp_gt_u32 vcc, 14, v55")
        A(f"s_cbranch_vccz {le}")
        A(f"buffer_load_dword v55, v{V_ZERO}, s[{SRD_WS}:{SRD_WS+3}], s{S_T0+2} offen sc1")
        A("s_waitcnt vmcnt(0)")
        A(f"s_add_u32 s{S_T0+8}, s{S_T0+8}, 1")
        A(f"s_cmp_lt_u32 s{S_T0+8}, 0x8000")
        A(f"s_cbranch_scc1 {lp}")
        A(f"{le}:")
    S2=Stream(A)
    if self.emov:
        S2.vm=["m0_0","m0_1","m0_2","m0_3","Mfin","m0_4","m0_5","m0_6","m0_7","Mfin"]
    else: S2.vm=["Mfin","Mfin"]
    def mload(la,s):
        S2.vmem(self.m_load_text(la,s), f"m{la}_{s}")
    N0=8 if self.emov else 0
    NPRE=self.npre
    NPRE=max(NPRE,N0) if not self.emov else N0+self.npre2
    for s_ in range(N0,NPRE): mload(0,s_)
    A(f"s_lshl_b32 s{S_T0+11}, s{S_T0+6}, 6")
    A(f"s_lshl_b32 s{S_T0+7}, s{S_NH}, 5")
    A(f"s_add_u32 s{S_T0+11}, s{S_T0+11}, s{S_T0+7}")
    A(f"s_lshl_b32 s{S_T0+7}, s{S_CH}, 4")
    A(f"s_add_u32 s{S_T0+11}, s{S_T0+11}, s{S_T0+7}")
    for la,src,dst in ((0,S_T0+1,S_T0+8),(1,S_T0+3,S_T0+9)):
        A(f"s_mul_i32 s{dst}, s{src}, 448")
        A(f"s_add_u32 s{dst}, s{dst}, s{S_T0+11}")
        A(f"s_lshl_b32 s{dst}, s{dst}, 6")
        A(f"s_add_u32 s{dst}, s{dst}, {WS_HT}")
    A(f"s_lshl_b32 s{S_T0+11}, s{S_T0+11}, 1")
    A(f"s_mul_i32 s{S_T0+14}, s{S_T0+1}, {32*896}")
    A(f"s_add_u32 s{S_T0+14}, s{S_T0+14}, s{S_T0+11}")
    A(f"s_mul_i32 s{S_T0+15}, s{S_T0+3}, {32*896}")
    A(f"s_add_u32 s{S_T0+15}, s{S_T0+15}, s{S_T0+11}")
    A(f"s_lshl_b32 s{S_T0+11}, s{S_W}, 11")
    A(f"s_add_u32 s{S_T0+11}, s{S_T0+11}, {LDS_RES}")
    A(f"s_mov_b32 s{SRD_W}, s{S_OUT}\ns_mov_b32 s{SRD_W+1}, s{S_OUT+1}\ns_mov_b32 s{SRD_W+2}, {L_*D_*2}\ns_mov_b32 s{SRD_W+3}, 0x20000")
    A(f"s_cmp_eq_u32 s{S_T0}, 0")
    A("s_cselect_b64 vcc, -1, 0")
    A(f"v_cndmask_b32 v248, v{G_R2+1}, v{G_R2}, vcc")
    A(f"v_cndmask_b32 v254, v{G_R2+2}, v{G_R2+3}, vcc")
    A("v_mov_b32 v249, v248\nv_mov_b32 v255, v254")
    A(f"v_lshrrev_b32 v50, 5, v{V_LANE}")
    A(f"v_lshlrev_b32 v50, 8, v50")
    A(f"v_bfe_u32 v51, v{V_LANE}, 2, 2")
    A(f"v_lshl_add_u32 v50, v51, 6, v50")
    A(f"v_bfe_u32 v51, v{V_LANE}, 4, 1")
    A(f"v_lshl_add_u32 v50, v51, 5, v50")
    A(f"v_and_b32 v51, 3, v{V_LANE}")
    A(f"v_lshl_add_u32 v50, v51, 3, v50")
    A(f"v_add_u32 v50, s{S_T0+11}, v50")
    A(f"v_and_b32 v52, 31, v{V_LANE}")
    A(f"v_mul_u32_u24 v52, 896, v52")
    A(f"v_lshrrev_b32 v51, 5, v{V_LANE}")
    A(f"v_lshl_add_u32 v52, v51, 4, v52")
    for x in (1,2,3):
        A(f"s_xor_b32 s{S_T0+7}, s{S_W}, {x}")
        A(f"s_mul_i32 s{S_T0+7}, s{S_T0+7}, 6144")
        A(f"s_add_u32 s{S_T0+7}, s{S_T0+7}, {LDS_RED+(x-1)*2048}")
        A(f"v_add_u32 v{43+x}, s{S_T0+7}, v48")
    A(f"s_mul_i32 s{S_T0+7}, s{S_W}, 6144")
    A(f"s_add_u32 s{S_T0+7}, s{S_T0+7}, {LDS_RED}")
    A(f"v_add_u32 v47, s{S_T0+7}, v48")
    S2.need_vm(["Mfin"])
    A("s_barrier")
    l=self.lab()
    A(f"s_lshl_b32 s{S_T0+10}, s{S_I}, 7")
    A(f"s_add_u32 s{S_T0+10}, s{S_T0+10}, {WS_CNT3+2048}")
    A(f"s_cmp_lg_u32 s{S_W}, 0")
    A(f"s_cbranch_scc1 {l}")
    A("v_mov_b32 v55, 1")
    A("s_mov_b64 exec, 1")
    A(f"buffer_atomic_add v55, v{V_ZERO}, s[{SRD_WS}:{SRD_WS+3}], s{S_T0+10} offen")
    l2=self.lab()
    A(f"s_cmp_lg_u32 s{S_WG}, 0")
    A(f"s_cbranch_scc1 {l2}")
    A(f"v_mov_b32 v55, s{S_TAG}")
    A(f"buffer_store_dword v55, v{V_ZERO}, s[{SRD_WS}:{SRD_WS+3}], 0 offen sc1")
    A(f"{l2}:")
    A("s_mov_b64 exec, -1")
    A(f"{l}:")
    self.stamp('sync3 arrive')
    def by_half(fn):
        la_=self.lab('Lh'); lb_=self.lab('Lh')
        A(f"s_cmp_ge_u32 s{S_W}, 2")
        A(f"s_cbranch_scc1 {la_}")
        fn(0)
        A(f"s_branch {lb_}")
        A(f"{la_}:")
        fn(1)
        A(f"{lb_}:")
    def red_write(la):
        def f(h):
            b0=H_ACC+32*la; b1=b0+16
            for x,r in ((2,b0+8*(1-h)),(1,b1+8*h),(3,b1+8*(1-h))):
                for q in range(2):
                    A(f"ds_write_b128 v{43+x}, v[{r+4*q}:{r+4*q+3}] offset:{la*24576+q*1024}")
        by_half(f)
    def red_final(la):
        P=208; RS=232; O=244
        A(f"ds_read_b64_tr_b16 v[{RS}:{RS+1}], v50 offset:{la*1024}")
        A(f"ds_read_b64_tr_b16 v[{RS+2}:{RS+3}], v50 offset:{la*1024+512}")
        for k in range(3):
            for q in range(2):
                A(f"ds_read_b128 v[{P+8*k+4*q}:{P+8*k+4*q+3}], v47 offset:{la*24576+k*2048+q*1024}")
        A("s_waitcnt lgkmcnt(6)")
        for d in range(4): A(bf16_lo(RS+4+2*d,RS+d)); A(bf16_hi(RS+5+2*d,RS+d))
        A("s_waitcnt lgkmcnt(2)")
        for r in range(0,8,2): A(f"v_pk_add_f32 v[{P+r}:{P+r+1}], v[{P+r}:{P+r+1}], v[{P+8+r}:{P+8+r+1}]")
        A("s_waitcnt lgkmcnt(0)")
        for r in range(0,8,2): A(f"v_pk_add_f32 v[{P+r}:{P+r+1}], v[{P+r}:{P+r+1}], v[{P+16+r}:{P+16+r+1}]")
        def f(h):
            b=H_ACC+32*la+8*h
            for r in range(0,8,2): A(f"v_pk_add_f32 v[{P+r}:{P+r+1}], v[{P+r}:{P+r+1}], v[{b+r}:{b+r+1}]")
        by_half(f)
        r2=(248,254)[la]
        if self.mimic>=1:
            for r in range(0,8,2): A(f"v_pk_mul_f32 v[{P+r}:{P+r+1}], v[{P+r}:{P+r+1}], v[{r2}:{r2+1}]")
            for r in range(0,8,2): A(f"v_cvt_pk_bf16_f32 v{O+r//2}, v{P+r}, v{P+r+1}")
            for r in range(0,8,2): A(bf16_lo(P+r,O+r//2)); A(bf16_hi(P+r+1,O+r//2))
            for r in range(0,8,2): A(f"v_pk_add_f32 v[{P+r}:{P+r+1}], v[{P+r}:{P+r+1}], v[{RS+4+r}:{RS+4+r+1}]")
        else:
            for r in range(0,8,2): A(f"v_pk_fma_f32 v[{P+r}:{P+r+1}], v[{P+r}:{P+r+1}], v[{r2}:{r2+1}], v[{RS+4+r}:{RS+4+r+1}]")
        if self.perturb:
            for r in range(8): A(f"v_add_f32 v{P+r}, {fl(self.perturb)}, v{P+r}")
        for r in range(0,8,2): A(f"v_cvt_pk_bf16_f32 v{O+r//2}, v{P+r}, v{P+r+1}")
        A(f"v_permlane32_swap_b32 v{O}, v{O+2}")
        A(f"v_permlane32_swap_b32 v{O+1}, v{O+3}")
        return f"buffer_store_dwordx4 v[{O}:{O+3}], v52, s[{SRD_W}:{SRD_W+3}], s{S_T0+14+la} offen"
    def mf(la,s):
        for ca in range(2):
            d=H_ACC+16*(2*la+ca)
            c="0" if s==0 else f"v[{d}:{d+15}]"
            k,r=wd_loc(s,ca); rr=self.m_entry(la,s)
            A(f"v_mfma_f32_32x32x16_bf16 v[{d}:{d+15}], {k}[{r}:{r+3}], v[{rr}:{rr+3}], {c}")
    for s_ in range(NPRE,NRING): mload(0,s_)
    POLL_AT=28-NRING
    for s_ in range(28):
        S2.need_vm([f"m0_{s_}"])
        mf(0,s_)
        if s_+NRING<28: mload(0,s_+NRING)
        if s_==POLL_AT-1:
            S2.vmem(f"buffer_load_dword v55, v{V_ZERO}, s[{SRD_WS}:{SRD_WS+3}], s{S_T0+10} offen sc1","pollL")
            A(f"s_mov_b32 m0, s{S_T0+11}")
            S2.vmem(f"buffer_load_dwordx4 v48, s[{SRD_WS}:{SRD_WS+3}], s{S_T0+8} offen sc1 lds","res")
            A(f"s_add_u32 m0, s{S_T0+11}, 1024")
            S2.vmem(f"buffer_load_dwordx4 v48, s[{SRD_WS}:{SRD_WS+3}], s{S_T0+9} offen sc1 lds","res")
        if s_==POLL_AT+5:
            lp=self.lab('Lpoll'); le=self.lab()
            S2.need_vm(["pollL"])
            A(f"s_mov_b32 s{S_T0+7}, 0")
            A(f"{lp}:")
            if self.pp>1:
                lq=self.lab('Lpoll')
                A("v_cmp_gt_u32 vcc, 14, v55")
                A(f"s_cbranch_vccz {le}")
                A(f"buffer_load_dword v54, v{V_ZERO}, s[{SRD_WS}:{SRD_WS+3}], s{S_T0+10} offen sc1")
                A(f"{lq}:")
                for a_,b_ in ((55,54),(54,55)):
                    A(f"buffer_load_dword v{a_}, v{V_ZERO}, s[{SRD_WS}:{SRD_WS+3}], s{S_T0+10} offen sc1")
                    A("s_waitcnt vmcnt(1)")
                    A(f"v_cmp_gt_u32 vcc, 14, v{b_}")
                    A(f"s_cbranch_vccz {le}")
                A(f"s_add_u32 s{S_T0+7}, s{S_T0+7}, 1")
                A(f"s_cmp_lt_u32 s{S_T0+7}, 0x4000")
                A(f"s_cbranch_scc1 {lq}")
            else:
                A("v_cmp_gt_u32 vcc, 14, v55")
                A(f"s_cbranch_vccz {le}")
                A(f"buffer_load_dword v55, v{V_ZERO}, s[{SRD_WS}:{SRD_WS+3}], s{S_T0+10} offen sc1")
                A("s_waitcnt vmcnt(0)")
                A(f"s_add_u32 s{S_T0+7}, s{S_T0+7}, 1")
                A(f"s_cmp_lt_u32 s{S_T0+7}, 0x8000")
                A(f"s_cbranch_scc1 {lp}")
            A(f"{le}:")
            self.stamp('late ready')
            nl=0
            while nl<28 and (28+nl)-NRING <= s_: mload(1,nl); nl+=1
        elif s_>POLL_AT+5:
            while nl<28 and (28+nl)-NRING <= s_: mload(1,nl); nl+=1
    self.stamp('early done')
    for s_ in range(28):
        S2.need_vm([f"m1_{s_}"])
        mf(1,s_)
        while nl<28 and (28+nl)-NRING <= 28+s_: mload(1,nl); nl+=1
        if s_==5:
            red_write(0)
        if s_==13:
            A("s_waitcnt lgkmcnt(0)")
            A("s_barrier")
            st=red_final(0)
            S2.vmem(st,"out0")
    self.stamp('late done')
    A("s_nop 11")
    red_write(1)
    A("s_waitcnt lgkmcnt(0)")
    A("s_barrier")
    self.stamp('red barrier')
    A(red_final(1))

@add_method
def dump_lds(self, lds_off, nbytes, ws_off_per_wg):
    A=self.A
    A("s_waitcnt vmcnt(0) lgkmcnt(0)")
    A("s_barrier")
    A(f"v_lshlrev_b32 v48, 4, v{V_T}")
    A(f"s_mul_i32 s{S_T0}, s{S_WG}, {ws_off_per_wg}")
    A(f"s_add_u32 s{S_T0}, s{S_T0}, {WS_DBG}")
    for k in range(nbytes//4096):
        A(f"v_add_u32 v49, {lds_off+k*4096}, v48")
        A("ds_read_b128 v[52:55], v49")
        A("s_waitcnt lgkmcnt(0)")
        A(f"s_add_u32 s{S_T0+1}, s{S_T0}, {k*4096}")
        A(f"buffer_store_dwordx4 v[52:55], v48, s[{SRD_WS}:{SRD_WS+3}], s{S_T0+1} offen")
        A("s_waitcnt vmcnt(0)")

@add_method
def dump_regs(self, first, n, kind='v'):
    A=self.A
    A("s_waitcnt vmcnt(0) lgkmcnt(0)")
    A("s_nop 15")
    A(f"v_lshlrev_b32 v3, 2, v{V_T}")
    A(f"s_mul_i32 s{S_T0}, s{S_WG}, {n*1024}")
    A(f"s_add_u32 s{S_T0}, s{S_T0}, {WS_DBG}")
    for k in range(n):
        A(f"s_add_u32 s{S_T0+1}, s{S_T0}, {k*1024}")
        A(f"buffer_store_dword {kind}{first+k}, v3, s[{SRD_WS}:{SRD_WS+3}], s{S_T0+1} offen")
    A("s_waitcnt vmcnt(0)")

@add_method
def build(self):
    A=self.A
    stop=self.stop_after
    def done(name):
        return stop==name
    self.prologue()
    self.phase0_loads()
    A("v_mov_b32 v56, 0\nv_mov_b32 v57, 0\nv_mov_b32 v58, 0\nv_mov_b32 v59, 0")
    l=self.lab()
    A(f"s_cmp_lg_u32 s{S_W}, 0")
    A(f"s_cbranch_scc1 {l}")
    A(f"v_and_b32 v50, 31, v{V_LANE}")
    A(f"v_lshlrev_b32 v50, 4, v50")
    A(f"v_lshrrev_b32 v51, 5, v{V_LANE}")
    A(f"v_mul_u32_u24 v51, {U_CH}, v51")
    A(f"v_add_u32 v50, v50, v51")
    A(f"v_add_u32 v50, {LDS_U}, v50")
    A(f"ds_write_b128 v50, v[56:59]")
    A(f"v_lshrrev_b32 v50, 1, v{V_LANE}")
    A(f"v_and_b32 v50, 7, v50")
    A(f"v_mul_u32_u24 v50, {KX_COPY}, v50")
    A(f"v_and_b32 v51, 1, v{V_LANE}")
    A(f"v_lshl_add_u32 v50, v51, 4, v50")
    A(f"v_add_u32 v50, {LDS_KX+4096}, v50")
    A(f"ds_write_b128 v50, v[56:59]")
    A(f"{l}:")
    self.conv_setup()
    self.stamp('index done')
    self.xjob_post()
    self.stamp('xjob post')
    self.kgen_setup()
    self.stamp('kgen setup')
    self.kgen_gen()
    self.stamp('kgen')
    if done('kx'):
        self.kexpand()
        A("s_waitcnt lgkmcnt(0)")
        A("s_barrier")
        self.dump_lds(LDS_KX, 36864, 36864); return self.finish()
    self.kexpand()
    self.stamp('kexpand')
    self.x_prepare()
    self.granule_wait()
    self.stamp('x flags')
    if self.xmode=='xt': self.xt_loads()
    self.stats_consume()
    self.stamp('u ready')
    if done('u'):
        self.dump_lds(LDS_U-LDS_U%16, 20480, 20480); return self.finish()
    self.conv()
    self.stamp('conv done')
    self.sync_all()
    self.stamp('sync2 arrive')
    if self.wdrain:
        lc=self.lab()
        A(f"s_cmp_lg_u32 s3, 0")
        A(f"s_cbranch_scc1 {lc}")
        self.flag_wait(0x3fff, landed=True)
        self.w1_loads(0,self.wdrain)
        A(f"{lc}:")
        self.w1_in_conv=self.wdrain
    elif not self.w1start:
        self.flag_wait(0x3fff, landed=True)
        self.stamp('w1 flags')
    if self.split0:
        lA=self.lab(); lB=self.lab()
        A(f"s_cmp_lg_u32 s{S_W}, 0")
        A(f"s_cbranch_scc1 {lA}")
        self.w1_loads(0,self.split0)
        A(f"s_branch {lB}")
        A(f"{lA}:")
        self.w1_loads(0,28)
        A(f"{lB}:")
    else:
        self.w1_loads(self.w1_in_conv,W1_PRE)
    self.stamp('cs done')
    self.sync_all_wait(sleep=self.msleep)
    self.stamp('sync2 passed')
    if done('w1'):
        self.dump_regs(0,224,'a'); return self.finish()
    if done('conv'): return self.finish()
    self.gemm1()
    self.stamp('gemm1 done')
    self.gemm2()
    return self.finish()

@add_method
def finish(self):
    A=self.A
    if self.ts:
        A("s_waitcnt vmcnt(0)")
        self.stamp('end')
        l=self.lab()
        A(f"s_cmp_lg_u32 s{S_W}, {self.tswave}")
        A(f"s_cbranch_scc1 {l}")
        A("v_mov_b32 v4, 0")
        for k in range(self.nts): A(f"v_writelane_b32 v4, s{86+k}, {k}")
        A(f"v_lshlrev_b32 v5, 2, v{V_LANE}")
        A(f"s_lshl_b32 s{S_T0}, s{S_WG}, 8")
        A(f"s_add_u32 s{S_T0}, s{S_T0}, {WS_TS}")
        A(f"buffer_store_dword v4, v5, s[{SRD_WS}:{SRD_WS+3}], s{S_T0} offen")
        l2=self.lab()
        A(f"s_cmp_lg_u32 s{S_WG}, 0")
        A(f"s_cbranch_scc1 {l2}")
        A(f"global_store_dword v5, v4, s[{S_DBG}:{S_DBG+1}]")
        A(f"{l2}:")
        A(f"{l}:")
    A("L_end:")
    A("s_endpgm")
    self.helper()
    A("L_codeend:")
    body, nfix, probs = hazard_fix(A.L)
    for p in probs: print("HAZARD(backedge):", p, file=sys.stderr)
    errs = wait_lint(body)
    for e in errs[:40]: print("WAITLINT:", e, file=sys.stderr)
    hdr = [
     "; Fused preLN + S4D long-conv + preLN + SwiGLU FFN: one persistent launch, 224 main + 32 helper workgroups (one per CU).",
     "; Generated by the author's own generator script (gen/gen.py); no compiler output.",
     "; Main workgroup wg (< 224): owns channel pair d0 = 2*((wg&7)*28 + (wg>>3)) for the convolution,",
     ";   then tile (i: 128 rows, j: 128 gate/up columns) of GEMM1 and a 64x64 output tile of GEMM2.",
     ";  1. LN1 row statistics of 8 rows per workgroup, published as tagged 8-byte granules in d_ws.",
     ";  2. S4D kernel K[d][p] at the 641 distinct bf16-rounded positions: exp(A dt (r + 8b)) = exp(A dt r) exp(A dt 8b), the sum over",
     ";     the 256 modes is one f16 MFMA product (21 x 32); expanded to 2048 lags in LDS (4 shifted copies).",
     ";  3. causal convolution as block-Toeplitz 16x16x32 f16 MFMAs, h = x + y + u*D, h^T written to d_ws; grid barrier (sharded counters).",
     ";  4. GEMM1 with the weight panel resident in AGPRs, LN2 applied algebraically: g = r (h W - mean * colsum W); SwiGLU epilogue;",
     ";     m is written in MFMA-fragment order; per-row-tile counters hand it over to GEMM2 (split-K over the 4 waves) + residual.",
     "; Helper workgroups (224..255): transpose the weights into MFMA fragments (+ partial column sums), later the LN2 row statistics.",
     "; Hand-offs use write-through (sc1) stores, drained before a tagged flag / counter is published; every spin loop is bounded.",
     "; The tag is derived from the word found in d_ws[0] at entry (only to tell this launch's hand-offs from an earlier launch's).",
     f"; @launch grid=({NGRID},1,1) block=(256,1,1) lds={LDS_TOTAL}",
     '.amdgcn_target "amdgcn-amd-amdhsa--gfx950"',
     ".text", f".globl {KNAME}", ".p2align 8", f".type {KNAME},@function", f"{KNAME}:"]
    ftr = ['.section .rodata,"a"', ".p2align 6", f".amdhsa_kernel {KNAME}",
     "  .amdhsa_next_free_vgpr 512", "  .amdhsa_next_free_sgpr 102", "  .amdhsa_accum_offset 256",
     "  .amdhsa_group_segment_fixed_size 0", "  .amdhsa_kernarg_size 112", "  .amdhsa_user_sgpr_count 2",
     "  .amdhsa_user_sgpr_kernarg_segment_ptr 1", "  .amdhsa_system_sgpr_workgroup_id_x 1",
     ".end_amdhsa_kernel"]
    self.nfix=nfix
    return "\n".join(hdr+body+ftr)+"\n"

if __name__=="__main__":
    import argparse
    ap=argparse.ArgumentParser(); ap.add_argument("-o",default="out.s"); ap.add_argument("--stop",default=None); ap.add_argument("--mimic",type=int,default=2); ap.add_argument("--ts",action="store_true"); ap.add_argument("--perturb",type=float,default=0.0); ap.add_argument("--tsset",default="main"); ap.add_argument("--cyc",action="store_true"); ap.add_argument("--tswave",type=int,default=0); ap.add_argument("--hts",action="store_true"); ap.add_argument("--xmode",default="gather"); ap.add_argument("--wpf",type=int,default=2); ap.add_argument("--w1pf",type=int,default=0); ap.add_argument("--pp",type=int,default=0); ap.add_argument("--hbal",type=int,default=1); ap.add_argument("--pf",type=int,default=5); ap.add_argument("--aug",type=int,default=0); ap.add_argument("--wdrain",type=int,default=0); ap.add_argument("--bar",type=int,default=16); ap.add_argument("--stl",type=int,default=6); ap.add_argument("--stc",type=int,default=12); ap.add_argument("--split0",type=int,default=0); ap.add_argument("--gidx",default="1,10,19,28,37"); ap.add_argument("--ng0",type=int,default=2); ap.add_argument("--emov",type=int,default=0); ap.add_argument("--wdspan",type=int,default=28); ap.add_argument("--npre2",type=int,default=4); ap.add_argument("--npre",type=int,default=6); ap.add_argument("--w1start",type=int,default=0); ap.add_argument("--w1n",type=int,default=9); ap.add_argument("--w1step",type=int,default=4); ap.add_argument("--fsleep",type=int,default=0); ap.add_argument("--xlate",type=int,default=1); ap.add_argument("--map",type=int,default=1); ap.add_argument("--cs",type=int,default=0); ap.add_argument("--hsleep",type=int,default=0); ap.add_argument("--msleep",type=int,default=0); ap.add_argument("--w1pre",type=int,default=16)
    a=ap.parse_args()
    g=Gen(stop_after=a.stop, mimic=a.mimic, ts=a.ts, perturb=a.perturb)
    if a.tsset=='main': g.tsonly=set(['xjob post','kgen','x flags','u ready','conv done','sync2 arrive','w1 flags','cs done','sync2 passed','gemm1 done','sync3 arrive','early done','late ready','end'])
    if a.cyc: g.tsop='s_memtime'
    g.tswave=a.tswave; g.hts=a.hts; g.xmode=a.xmode; g.pp=a.pp; g.hbal=a.hbal; globals().__setitem__('PF',a.pf); g.aug=a.aug; g.wdrain=a.wdrain; g.bar=a.bar; g.stl=a.stl; g.stc=a.stc; g.split0=a.split0; g.gidx=tuple(int(x) for x in a.gidx.split(',') if x); g.ng0=a.ng0; g.wdspan=a.wdspan; g.emov=a.emov; g.npre2=a.npre2; g.npre=a.npre; g.w1start=a.w1start; g.w1n=a.w1n; g.w1step=a.w1step; g.fsleep=a.fsleep; g.xlate=a.xlate; g.map=a.map; g.costsched=a.cs; g.hsleep=a.hsleep; g.msleep=a.msleep; g.wpf=a.wpf; g.w1pf=a.w1pf; globals().__setitem__('W1_PRE',a.w1pre)
    if a.tsset=='end': g.tsonly=set(['end'])
    if a.tsset=='g': g.tsonly=set(['sync2 passed','x0','pass0','pass1','pass2','pass3','gemm1 done','sync3 arrive','early done','late ready','late done','red barrier','end'])
    if a.tsset=='start': g.tsonly=set(['kernarg','all issued','index done','xjob post','kgen setup','gen done','wjob post','kmfma','kbar1','kgen','x flags','kexpand','xt landed','u ready','end'])
    txt=g.build()
    open(a.o,"w").write(txt)
    print("wrote",a.o,len(txt.splitlines()),"lines; nops inserted:",g.nfix, "stamps:", g.tsnames, file=sys.stderr)
```
